```python
import torch

def _softmax(x, axis=-1):
    return torch.softmax(x, dim=axis)
def _gelu(x):
    return torch.nn.functional.gelu(x, approximate="tanh")
def _silu(x):
    return torch.nn.functional.silu(x)
def _sigmoid(x):
    return torch.sigmoid(x)
def _layernorm(x, axis=-1, eps=1e-5):
    m = x.mean(dim=axis, keepdim=True)
    v = x.var(dim=axis, keepdim=True, unbiased=False)
    return (x - m) / torch.sqrt(v + eps)
def _scatter_add(tgt, idx, src, axis=0):
    return tgt.clone().index_add_(axis, idx, src)
def _segment_sum(src, seg, n):
    out = torch.zeros((n,) + src.shape[1:], dtype=src.dtype)
    return out.index_add_(0, seg, src)
def _pad(x, pw):
    flat = tuple(v for pair in reversed(pw) for v in pair)
    return torch.nn.functional.pad(x, flat)

kernel_name = 'interleave_layers__grouped_kv_mqa__glu_gated_swiglu__prompt'

def setup_inputs():

    _w = (lambda a: (lambda t: t.to(torch.bfloat16) if t.is_floating_point() else t)(torch.as_tensor(a)))
    def _A_setup():
        B, S, D, H = 1, 2048, 512, 32
        Dh = D // H
        return {
            "x": _w((lambda *s: torch.randn(*s, dtype=torch.bfloat16) * 0.05)(B, S, D)),
            "wq": _w((lambda *s: torch.randn(*s, dtype=torch.bfloat16) * 0.05)(D, H * Dh)),
            "wk": _w((lambda *s: torch.randn(*s, dtype=torch.bfloat16) * 0.05)(D, Dh)),
            "wv": _w((lambda *s: torch.randn(*s, dtype=torch.bfloat16) * 0.05)(D, Dh)),
            "wo": _w((lambda *s: torch.randn(*s, dtype=torch.bfloat16) * 0.05)(H * Dh, D)),
        }
    _A_in = _A_setup()

    def _B_setup():
        B, S, D, F = 1, 2048, 512, 1792
        return {
            "x": _w((lambda *s: torch.randn(*s, dtype=torch.bfloat16) * 0.05)(B, S, D)),
            "w1": _w((lambda *s: torch.randn(*s, dtype=torch.bfloat16) * 0.4)(D, F) * (2.0 / D) ** 0.5),
            "w3": _w((lambda *s: torch.randn(*s, dtype=torch.bfloat16) * 0.4)(D, F) * (2.0 / D) ** 0.5),
            "w2": _w((lambda *s: torch.randn(*s, dtype=torch.bfloat16) * 0.4)(F, D) * (2.0 / F) ** 0.5),
        }
    _B_in = _B_setup()

    return {
        "A_x": _A_in["x"],
        "A_wq": _A_in["wq"],
        "A_wk": _A_in["wk"],
        "A_wv": _A_in["wv"],
        "A_wo": _A_in["wo"],
        "B_x": _B_in["x"],
        "B_w1": _B_in["w1"],
        "B_w3": _B_in["w3"],
        "B_w2": _B_in["w2"],
    }

def reference(A_x, A_wq, A_wk, A_wv, A_wo, B_x, B_w1, B_w3, B_w2):
    def _A_ref(x, wq, wk, wv, wo):
        B, S, D = x.shape
        H = 32
        Dh = D // H
        q = (lambda x, *d: x.permute(*d))((x @ wq).reshape(B, S, H, Dh), 0, 2, 1, 3)
        k = x @ wk
        v = x @ wv
        scores = torch.einsum("bhqd,bkd->bhqk", q, k) * (Dh ** -0.5)
        p = _softmax(scores, axis=-1)
        o = torch.einsum("bhqk,bkd->bhqd", p, v)
        return (lambda x, *d: x.permute(*d))(o, 0, 2, 1, 3).reshape(B, S, H * Dh) @ wo

    def _B_ref(x, w1, w3, w2):
        gate = torch.einsum("bsd,df->bsf", x, w1)
        up = torch.einsum("bsd,df->bsf", x, w3)
        h = _silu(gate) * up
        out = torch.einsum("bsf,fd->bsd", h, w2)
        return out

    x = A_x
    x = x + _A_ref(_layernorm(x, axis=-1), A_wq, A_wk, A_wv, A_wo)
    x = x + _B_ref(_layernorm(x, axis=-1), B_w1, B_w3, B_w2)
    x = x + _A_ref(_layernorm(x, axis=-1), A_wq, A_wk, A_wv, A_wo)
    x = x + _B_ref(_layernorm(x, axis=-1), B_w1, B_w3, B_w2)
    return x
```

```python
import re

TRANS = ("v_exp_f32", "v_log_f32", "v_rcp_f32", "v_rsq_f32", "v_sqrt_f32", "v_sin_f32", "v_cos_f32",
         "v_rcp_iflag_f32", "v_exp_f16", "v_rcp_f16")

_reg_re = re.compile(r"^(-|abs\(|\|)?([vas])(\d+)\)?\|?$")
_rng_re = re.compile(r"^(-|abs\()?([vas])\[(\d+):(\d+)\]\)?$")


def regs_of(op):
    op = op.strip()
    m = _reg_re.match(op)
    if m:
        return [m.group(2) + m.group(3)]
    m = _rng_re.match(op)
    if m:
        return [m.group(2) + str(i) for i in range(int(m.group(3)), int(m.group(4)) + 1)]
    if op in ("vcc", "exec"):
        return [op + "_lo", op + "_hi"]
    if op in ("vcc_lo", "vcc_hi", "exec_lo", "exec_hi", "m0", "scc"):
        return [op]
    return []


def split_ops(s):
    out, depth, cur = [], 0, ""
    for ch in s:
        if ch in "[(":
            depth += 1
        elif ch in "])":
            depth -= 1
        if ch == "," and depth == 0:
            out.append(cur.strip())
            cur = ""
        else:
            cur += ch
    if cur.strip():
        out.append(cur.strip())
    return out


class Ins:
    __slots__ = ("text", "mn", "ops", "mods", "kind", "dst", "src", "srcA", "srcC", "label", "target", "ws", "passes",
                 "dpp", "perm", "lds_dma", "wide_store_data", "sgpr_src", "auto")

    def __init__(self, text):
        self.text = text
        self.label = None
        self.target = None
        self.dst, self.src, self.srcA, self.srcC = set(), set(), set(), []
        self.kind = "other"
        self.ws = 1
        self.passes = 0
        self.dpp = self.perm = self.lds_dma = False
        self.wide_store_data = set()
        self.auto = False
        t = text.split(";")[0].strip()
        self.mn, self.ops, self.mods = "", [], ""
        if not t:
            self.kind, self.ws = "empty", 0
            return
        if t.endswith(":"):
            self.kind, self.ws, self.label = "label", 0, t[:-1]
            return
        if t.startswith("."):
            self.kind, self.ws = "directive", 0
            return
        parts = t.split(None, 1)
        mn = parts[0]
        rest = parts[1] if len(parts) > 1 else ""
        ops = split_ops(rest)
        mods = ""
        if ops:
            lp = ops[-1].split(None, 1)
            if len(lp) > 1 and not ops[-1].startswith("hwreg"):
                ops[-1] = lp[0]
                mods = lp[1]
        self.mn, self.ops, self.mods = mn, ops, mods
        R = lambda i: regs_of(ops[i]) if i < len(ops) else []
        if mn == "s_nop":
            self.kind, self.ws = "nop", int(ops[0], 0) + 1
        elif mn in ("s_branch",) or mn.startswith("s_cbranch"):
            self.kind, self.target = "branch", ops[0]
            if "vcc" in mn:
                self.src |= {"vcc_lo", "vcc_hi"}
        elif mn == "s_endpgm":
            self.kind = "end"
        elif mn in ("s_waitcnt", "s_barrier", "s_sleep", "s_setprio"):
            self.kind = "ctl"
        elif mn.startswith("s_load") or mn.startswith("s_memtime") or mn.startswith("s_memrealtime") or mn.startswith("s_buffer_load"):
            self.kind = "smem"
            self.dst |= set(R(0))
            for i in range(1, len(ops)):
                self.src |= set(R(i))
        elif mn.startswith("s_cmp") or mn.startswith("s_bitcmp"):
            self.kind = "salu"
            for i in range(len(ops)):
                self.src |= set(R(i))
        elif mn.startswith("s_"):
            self.kind = "salu"
            self.dst |= set(R(0))
            for i in range(1, len(ops)):
                self.src |= set(R(i))
            if "saveexec" in mn:
                self.dst |= {"exec_lo", "exec_hi"}
        elif mn.startswith("v_mfma"):
            self.kind = "mfma"
            self.passes = 8 if "32x32x16" in mn else (4 if "16x16x32" in mn else None)
            assert self.passes, mn
            self.dst |= set(R(0))
            self.srcA = set(R(1)) | set(R(2))
            self.srcC = R(3)
            self.src = self.srcA | set(self.srcC)
        elif mn.startswith("v_"):
            base = mn.replace("_e32", "").replace("_e64", "").replace("_dpp", "")
            self.kind = "trans" if base in TRANS else "valu"
            if base.startswith("v_dot2"):
                self.kind = "dot"
            self.dpp = mn.endswith("_dpp") or "row_" in mods or "quad_perm" in mods
            if base.startswith("v_permlane"):
                self.perm = True
                self.dst |= set(R(0)) | set(R(1))
                self.src |= set(R(0)) | set(R(1))
            elif base.startswith("v_cmp"):
                self.dst |= set(R(0))
                for i in range(1, len(ops)):
                    self.src |= set(R(i))
            else:
                self.dst |= set(R(0))
                st = 1
                if base in ("v_add_co_u32", "v_sub_co_u32", "v_addc_co_u32", "v_subb_co_u32"):
                    self.dst |= set(R(1))
                    st = 2
                for i in range(st, len(ops)):
                    self.src |= set(R(i))
                if base in ("v_fmac_f32", "v_dot2c_f32_bf16") or self.dpp:
                    self.src |= set(R(0))
        elif mn.startswith("buffer_") or mn.startswith("global_"):
            self.kind = "vmem"
            is_lds = " lds" in (" " + mods) or "_lds_" in mn
            self.lds_dma = is_lds
            if mn in ("buffer_wbl2", "buffer_inv"):
                pass
            elif "load" in mn:
                st = 0 if is_lds else 1
                if not is_lds:
                    self.dst |= set(R(0))
                for i in range(st, len(ops)):
                    self.src |= set(R(i))
                if is_lds:
                    self.src.add("m0")
            else:
                for i in range(len(ops)):
                    self.src |= set(R(i))
                di = 0 if mn.startswith("buffer_") else 1
                if "x4" in mn or "x3" in mn:
                    self.wide_store_data = set(R(di))
                if "atomic" in mn and "sc0" in mods:
                    self.dst |= set(R(0))
        elif mn.startswith("ds_"):
            self.kind = "ds"
            if "read" in mn or "permute" in mn or "swizzle" in mn or "rtn" in mn:
                self.dst |= set(R(0))
                for i in range(1, len(ops)):
                    self.src |= set(R(i))
            else:
                for i in range(len(ops)):
                    self.src |= set(R(i))
        else:
            raise ValueError("unknown instruction: " + text)

    def is_valu(self):
        return self.kind in ("valu", "trans", "dot")


def _sg(rs):
    return {r for r in rs if r[0] == "s" or r.startswith("vcc")}


def required(p, c):
    n = 0
    pv, cv = p.is_valu(), c.is_valu()
    if pv:
        w = p.dst
        vw = {r for r in w if r[0] in "va" and not r.startswith("vcc")}
        sw = _sg(w)
        if c.kind == "mfma" and vw & c.src:
            n = max(n, 2)
        if p.kind == "trans" and (vw & c.src) and c.kind != "trans":
            n = max(n, 1)
        if cv and c.dpp and vw & c.src:
            n = max(n, 2)
        if cv and c.perm and vw & c.src:
            n = max(n, 2)
        if c.mn.startswith("v_readfirstlane") or c.mn.startswith("v_readlane"):
            if vw & c.src:
                n = max(n, 1)
            if sw & c.src:
                n = max(n, 4)
        if sw:
            if cv and sw & c.src:
                n = max(n, 2)
            if c.kind == "vmem" and sw & c.src:
                n = max(n, 5)
            if c.kind in ("salu", "smem", "branch") and sw & c.src:
                n = max(n, 2)
        if p.kind == "dot":
            if c.kind == "dot" and c.mn == p.mn:
                ab = set()
                for o in c.ops[1:3]:
                    ab |= set(regs_of(o))
                if vw & ab:
                    n = max(n, 3)
            elif vw & (c.src | c.dst):
                n = max(n, 3)
    if p.kind == "mfma":
        big = p.passes == 8
        D = p.dst
        if c.kind == "mfma":
            if D & c.srcA:
                n = max(n, 12 if big else 8)
            if D & set(c.srcC):
                if not (set(c.srcC) == D and c.mn == p.mn):
                    n = max(n, 10 if big else 6)
        elif cv:
            if D & (c.src | c.dst):
                n = max(n, 12 if big else 8)
            if set(p.srcC) & c.dst:
                n = max(n, 7 if big else 3)
        elif c.kind in ("vmem", "ds"):
            if D & (c.src | c.dst):
                n = max(n, 12 if big else 8)
            if set(p.srcC) & c.dst:
                n = max(n, 7 if big else 3)
    if p.kind == "salu" and "m0" in p.dst and c.lds_dma:
        n = max(n, 1)
    if p.wide_store_data and (p.wide_store_data & c.dst):
        n = max(n, 2 if cv else 1)
    return n


MAXLOOK = 12


def fix_hazards(lines, report=None):
    ins = [Ins(l) for l in lines]
    changed = True
    total = 0
    while changed:
        changed = False
        labels = {x.label: i for i, x in enumerate(ins) if x.kind == "label"}
        branch_to = {}
        for i, x in enumerate(ins):
            if x.kind == "branch":
                branch_to.setdefault(labels[x.target], []).append(i)

        def preds(i):
            out = []
            if i > 0:
                q = ins[i - 1]
                if not (q.mn == "s_branch" or q.kind == "end"):
                    out.append(i - 1)
            if ins[i].kind == "label":
                out += branch_to.get(i, [])
            return out

        for i, c in enumerate(ins):
            if c.ws == 0 or c.kind in ("nop", "ctl", "end"):
                continue
            need = 0
            stack = [(j, 0) for j in preds(i)]
            seen = set()
            while stack:
                j, dist = stack.pop()
                if (j, dist) in seen:
                    continue
                seen.add((j, dist))
                p = ins[j]
                if p.ws:
                    r = required(p, c)
                    if r - dist > need:
                        need = r - dist
                        why = p.text
                nd = dist + p.ws
                if nd < MAXLOOK:
                    for k in preds(j):
                        stack.append((k, nd))
            if need > 0:
                n = Ins("  s_nop %d" % (need - 1))
                n.auto = True
                n.text += "   ; auto-hazard"
                ins.insert(i, n)
                total += need
                if report is not None:
                    report.append((need, why.strip(), c.text.strip()))
                changed = True
                break
    return [x.text for x in ins], total


def fix_hazards_fast(lines, report=None):
    ins = [Ins(l) for l in lines]
    total = 0
    while True:
        labels = {x.label: i for i, x in enumerate(ins) if x.kind == "label"}
        branch_to = {}
        for i, x in enumerate(ins):
            if x.kind == "branch":
                branch_to.setdefault(labels[x.target], []).append(i)
        extra = {}

        def preds(i):
            out = []
            if i > 0:
                q = ins[i - 1]
                if not (q.mn == "s_branch" or q.kind == "end"):
                    out.append(i - 1)
            if ins[i].kind == "label":
                out += branch_to.get(i, [])
            return out

        for i, c in enumerate(ins):
            if c.ws == 0 or c.kind in ("nop", "ctl", "end"):
                continue
            need, why = 0, None
            stack = [(j, 0) for j in preds(i)]
            seen = set()
            while stack:
                j, dist = stack.pop()
                if (j, dist) in seen:
                    continue
                seen.add((j, dist))
                p = ins[j]
                if p.ws:
                    r = required(p, c)
                    if r - dist > need:
                        need, why = r - dist, p.text
                nd = dist + p.ws + extra.get(j, 0)
                if nd < MAXLOOK:
                    for k in preds(j):
                        stack.append((k, nd))
            if need > 0:
                extra[i] = need
                total += need
                if report is not None:
                    report.append((need, why.strip(), c.text.strip()))
        if not extra:
            break
        new = []
        for i, x in enumerate(ins):
            if i in extra:
                n = Ins("  s_nop %d   ; auto-hazard" % (extra[i] - 1))
                new.append(n)
            new.append(x)
        ins = new
    return [x.text for x in ins], total


class Asm:
    def __init__(self):
        self.lines = []
        self.vm_issued = 0
        self.lg_issued = 0
        self._lab = 0

    def __call__(self, text):
        for l in text.split("\n"):
            l = l.strip()
            if not l:
                continue
            if l.endswith(":") or l.startswith("."):
                self.lines.append(l)
            else:
                self.lines.append("  " + l)
            mn = l.split()[0]
            if (mn.startswith("buffer_") or mn.startswith("global_")) and mn not in ("buffer_inv", "buffer_wbl2"):
                self.vm_issued += 1
            elif mn.startswith("ds_"):
                self.lg_issued += 1

    def c(self, text):
        self.lines.append("  ; " + text)

    def newlabel(self, base="L"):
        self._lab += 1
        return "%s_%d" % (base, self._lab)

    def vt(self):
        return self.vm_issued

    def lt(self):
        return self.lg_issued

    def wait_vm(self, ticket):
        n = self.vm_issued - ticket
        assert 0 <= n, n
        self("s_waitcnt vmcnt(%d)" % min(n, 63))

    def wait_lg(self, ticket):
        n = self.lg_issued - ticket
        assert 0 <= n
        self("s_waitcnt lgkmcnt(%d)" % min(n, 15))


def vr(b, n=1):
    return "v%d" % b if n == 1 else "v[%d:%d]" % (b, b + n - 1)


def ar(b, n=1):
    return "a%d" % b if n == 1 else "a[%d:%d]" % (b, b + n - 1)


def sr(b, n=1):
    return "s%d" % b if n == 1 else "s[%d:%d]" % (b, b + n - 1)


def rr(spec, off=0, n=1):
    f, b = spec
    return (vr if f == "v" else ar)(b + off, n)
```

```python
KB = 1024
OFF_WQ = 0x000000
OFF_WO = 0x080000
OFF_W13 = 0x100000
OFF_W2 = 0x480000
OFF_WKV = 0x1600000
OFF_CSQ = 0x648000
OFF_CSKV = 0x648800
OFF_CS13 = 0x64A000
OFF_KV = 0x650000
KV_STRIDE = 0x30000
OFF_FLAGS = 0x6B0000
OFF_CSX = 0x6C0000
OFF_CSQX = 0x6E0000
OFF_CKS = 0x1500000
OFF_STAT = 0x700000
STAT_STRIDE = 0x40000
OFF_X = 0x800000
X_STRIDE = 0x200000
OFF_O = 0x1000000
OFF_Q = 0x1400000
OFF_H = 0x1800000
H_STRIDE = 0x700000
WS_USED = 0x2600000
LOG2E = 1.4426950408889634
QSCALE = 0.25 * LOG2E
BOUND_T = 40.0
```

```python
import struct, sys
from asmlib import *
from layout import *

NAME = "interleave_layers__grouped_kv_mqa__glu_gated_swiglu__prompt"


def f2u(x):
    return struct.unpack("<I", struct.pack("<f", x))[0]


def fl(x):
    return "0x%08x" % f2u(x)


MF = "v_mfma_f32_32x32x16_bf16"

S_LAYER = 3
SRD_WS = 4
SRD_AUX = 8
S_W = 12
S_RB, S_HQ, S_RG, S_M = 13, 14, 15, 16
V_TID, V_L16, V_LANE, V_R31, V_H = 0, 1, 2, 3, 4
V_OFF = [1, 5, 6, 7, 8, 9, 10]
V_FIRST = 12


def blk(a, dst, sbase, i, sc=""):
    a("buffer_load_dwordx4 %s, v%d, s[4:7], s%d offen offset:%d %s" % (dst, V_OFF[i // 4], sbase, (i % 4) * 1024, sc))


def common_prologue(a, need_out=False):
    a("s_cmp_ge_u32 s2, 256")
    a("s_cbranch_scc1 L_exit")
    a("s_load_dwordx2 s[4:5], s[0:1], 88")
    if need_out:
        a("s_load_dwordx2 s[8:9], s[0:1], 72")
    a("v_and_b32 v%d, 63, v0" % V_LANE)
    a("v_lshrrev_b32 v%d, 6, v0" % V_H)
    a("v_lshlrev_b32 v%d, 4, v%d" % (V_L16, V_LANE))
    a("v_readfirstlane_b32 s%d, v%d" % (S_W, V_H))
    a("v_and_b32 v%d, 31, v0" % V_R31)
    a("v_lshrrev_b32 v%d, 5, v%d" % (V_H, V_LANE))
    for j in range(1, 7):
        a("v_add_u32 v%d, %d, v%d" % (V_OFF[j], 4096 * j, V_L16))
    a("s_and_b32 s17, s2, 7")
    a("s_lshr_b32 s18, s2, 3")
    a("s_lshl_b32 s%d, s17, 1" % S_RG)
    a("s_lshr_b32 s19, s18, 4")
    a("s_add_u32 s%d, s%d, s19" % (S_RG, S_RG))
    a("s_and_b32 s%d, s18, 15" % S_M)
    a("s_and_b32 s%d, s18, 7" % S_HQ)
    a("s_lshl_b32 s%d, s17, 2" % S_RB)
    a("s_lshr_b32 s19, s18, 3")
    a("s_add_u32 s%d, s%d, s19" % (S_RB, S_RB))
    a("s_mov_b32 s6, 0x%x" % WS_USED)
    a("s_mov_b32 s7, 0x00020000")
    if need_out:
        a("s_mov_b32 s10, %d" % (2048 * 512 * 2))
        a("s_mov_b32 s11, 0x00020000")
    a("s_waitcnt lgkmcnt(0)")


def xhalf_sum(a, v, tmp):
    a("v_mov_b32 v%d, v%d" % (tmp, v))
    a("v_permlane32_swap_b32 v%d, v%d" % (v, tmp))
    a("v_add_f32 v%d, v%d, v%d" % (v, v, tmp))


def load_stats(a, st, s_off, vtmp, sc=""):
    a("v_lshlrev_b32 v%d, 7, v%d" % (vtmp, V_R31))
    a("v_lshl_add_u32 v%d, v%d, 6, v%d" % (vtmp, V_H, vtmp))
    for q in range(4):
        a("buffer_load_dwordx4 v[%d:%d], v%d, s[4:7], s%d offen offset:%d %s" % (st + 4 * q, st + 4 * q + 3, vtmp, s_off, 16 * q, sc))


def finish_stats(a, st, nmu, rstd):
    for q in (4, 2, 1):
        for i in range(q):
            a("v_add_f32 v%d, v%d, v%d" % (st + 2 * i, st + 2 * i, st + 2 * (i + q)))
            a("v_add_f32 v%d, v%d, v%d" % (st + 2 * i + 1, st + 2 * i + 1, st + 2 * (i + q) + 1))
    a("v_mov_b32 v%d, v%d" % (st + 2, st))
    a("v_mov_b32 v%d, v%d" % (st + 3, st + 1))
    a("v_permlane32_swap_b32 v%d, v%d" % (st, st + 2))
    a("v_permlane32_swap_b32 v%d, v%d" % (st + 1, st + 3))
    a("v_add_f32 v%d, v%d, v%d" % (st, st, st + 2))
    a("v_add_f32 v%d, v%d, v%d" % (st + 1, st + 1, st + 3))
    a("v_mul_f32 v%d, %s, v%d" % (nmu, fl(-1.0 / 512), st))
    a("v_mul_f32 v%d, %s, v%d" % (st + 1, fl(1.0 / 512), st + 1))
    a("v_fma_f32 v%d, -v%d, v%d, v%d" % (st + 1, nmu, nmu, st + 1))
    a("v_max_f32 v%d, 0, v%d" % (st + 1, st + 1))
    a("v_add_f32 v%d, %s, v%d" % (st + 1, fl(1e-5), st + 1))
    a("v_rsq_f32 v%d, v%d" % (rstd, st + 1))


def pack8(a, dst, src):
    for i in range(4):
        a("v_cvt_pk_bf16_f32 v%d, v%d, v%d" % (dst + i, src + 2 * i, src + 2 * i + 1))


def prep(a, cfg):
    a("s_cmp_ge_u32 s2, 256")
    a("s_cbranch_scc1 L_exit")
    a("s_load_dwordx16 s[16:31], s[0:1], 0")
    a("s_load_dwordx2 s[32:33], s[0:1], 64")
    a("s_load_dwordx2 s[4:5], s[0:1], 88")
    a("v_and_b32 v2, 63, v0")
    a("v_lshrrev_b32 v4, 6, v0")
    a("v_lshlrev_b32 v1, 4, v2")
    a("v_readfirstlane_b32 s12, v4")
    a("v_and_b32 v3, 31, v0")
    a("v_lshrrev_b32 v4, 5, v2")
    a("s_mov_b32 s6, 0x%x" % WS_USED)
    a("s_mov_b32 s7, 0x00020000")
    a("s_mov_b32 s11, 0x00020000")
    a("s_mov_b32 s39, 0x00020000")
    a("s_lshr_b32 s13, s2, 2")
    a("s_and_b32 s14, s2, 3")
    a("s_lshl_b32 s14, s14, 2")
    a("s_add_u32 s14, s14, s12")
    a("s_lshl_b32 s15, s13, 15")
    a("s_lshl_b32 s40, s14, 6")
    a("s_add_u32 s15, s15, s40")
    a("v_lshlrev_b32 v5, 10, v3")
    a("v_lshl_add_u32 v5, v4, 4, v5")
    a("s_waitcnt lgkmcnt(0)")
    a("s_mov_b32 s8, s16")
    a("s_mov_b32 s9, s17")
    a("s_mov_b32 s10, %d" % (2048 * 512 * 2))
    a("buffer_load_dwordx4 v[8:11], v5, s[8:11], s15 offen")
    a("buffer_load_dwordx4 v[12:15], v5, s[8:11], s15 offen offset:32")
    t_x = a.vt()
    a("s_mov_b32 s45, 8")
    a("s_mov_b32 s44, 0")
    a("s_lshr_b32 s46, s12, 1")
    a("s_cmp_lt_u32 s2, 16")
    a("s_cbranch_scc1 L_p_wq")
    a("s_cmp_eq_u32 s2, 16")
    a("s_cbranch_scc1 L_p_wkv")
    a("s_cmp_lt_u32 s2, 33")
    a("s_cbranch_scc1 L_p_wo")
    a("s_cmp_lt_u32 s2, 145")
    a("s_cbranch_scc1 L_p_w13")
    a("s_cmp_lt_u32 s2, 209")
    a("s_cbranch_scc1 L_p_w2")
    a("s_mov_b32 s45, 0")
    a("s_branch L_p_xpart")
    a("L_p_wq:")
    a("s_mov_b32 s36, s18\ns_mov_b32 s37, s19\ns_mov_b32 s38, %d" % (512 * 512 * 2))
    a("s_mov_b32 s41, 1024")
    a("s_lshl_b32 s42, s2, 6\ns_lshl_b32 s47, s46, 5\ns_add_u32 s42, s42, s47")
    a("s_lshl_b32 s43, s2, 15\ns_add_u32 s43, s43, 0x%x" % OFF_WQ)
    a("s_lshl_b32 s44, s2, 7\ns_add_u32 s44, s44, 0x%x" % OFF_CSQ)
    a("s_branch L_p_go")
    a("L_p_wkv:")
    a("s_cmp_eq_u32 s46, 0")
    a("s_cselect_b32 s36, s22, s20\ns_cselect_b32 s37, s23, s21\ns_mov_b32 s38, %d" % (512 * 16 * 2))
    a("s_mov_b32 s41, 32\ns_mov_b32 s42, 0\ns_mov_b32 s43, 0x%x\ns_mov_b32 s44, 0x%x" % (OFF_WKV, OFF_CSKV))
    a("s_branch L_p_go")
    a("L_p_wo:")
    a("s_mov_b32 s36, s24\ns_mov_b32 s37, s25\ns_mov_b32 s38, %d" % (512 * 512 * 2))
    a("s_mov_b32 s41, 1024\ns_sub_u32 s48, s2, 17")
    a("s_lshl_b32 s42, s48, 6\ns_lshl_b32 s47, s46, 5\ns_add_u32 s42, s42, s47")
    a("s_lshl_b32 s43, s48, 15\ns_add_u32 s43, s43, 0x%x" % OFF_WO)
    a("s_branch L_p_go")
    a("L_p_w13:")
    a("s_cmp_eq_u32 s46, 0")
    a("s_cselect_b32 s36, s28, s30\ns_cselect_b32 s37, s29, s31\ns_mov_b32 s38, %d" % (512 * 1792 * 2))
    a("s_mov_b32 s41, 3584\ns_sub_u32 s48, s2, 33")
    a("s_lshl_b32 s42, s48, 5")
    a("s_lshl_b32 s43, s48, 15\ns_add_u32 s43, s43, 0x%x" % OFF_W13)
    a("s_lshl_b32 s44, s48, 7\ns_add_u32 s44, s44, 0x%x" % OFF_CS13)
    a("s_branch L_p_go")
    a("L_p_w2:")
    a("s_mov_b32 s36, s32\ns_mov_b32 s37, s33\ns_mov_b32 s38, %d" % (1792 * 512 * 2))
    a("s_mov_b32 s41, 1024\ns_sub_u32 s48, s2, 145")
    a("s_lshr_b32 s49, s48, 2\ns_and_b32 s48, s48, 3")
    a("s_mul_i32 s42, s48, %d" % (448 * 1024))
    a("s_lshl_b32 s47, s49, 6\ns_add_u32 s42, s42, s47\ns_lshl_b32 s47, s46, 5\ns_add_u32 s42, s42, s47")
    a("s_mul_i32 s43, s49, %d\ns_mul_i32 s47, s48, %d\ns_add_u32 s43, s43, s47\ns_add_u32 s43, s43, 0x%x" % (112 * 1024, 28 * 1024, OFF_W2))
    a("s_mov_b32 s45, 7")
    a("L_p_go:")
    a("v_and_b32 v6, 127, v0")
    a("v_lshrrev_b32 v7, 1, v6")
    a("v_and_b32 v6, 1, v6")
    a("v_mul_lo_u32 v16, v7, s41")
    a("v_lshl_add_u32 v16, v6, 4, v16")
    a("v_lshlrev_b32 v17, 6, v7")
    a("v_lshl_add_u32 v17, v6, 4, v17")
    a("s_lshl_b32 s47, s46, 5")
    a("v_add_u32 v17, s47, v17")
    a("s_lshl_b32 s47, s41, 6")
    for p in range(8):
        a("buffer_load_dwordx4 v[%d:%d], v16, s[36:39], s42 offen" % (20 + 4 * p, 23 + 4 * p))
        if p < 7:
            a("s_add_u32 s42, s42, s47")
    for p in range(8):
        a("s_waitcnt vmcnt(%d)" % (7 - p))
        a("ds_write_b128 v17, v[%d:%d] offset:%d" % (20 + 4 * p, 23 + 4 * p, 4096 * p))
    a("v_and_b32 v6, 15, v2")
    a("v_lshrrev_b32 v7, 2, v6")
    a("v_and_b32 v6, 3, v6")
    a("v_lshlrev_b32 v18, 8, v4")
    a("v_lshl_add_u32 v18, v7, 6, v18")
    a("v_lshl_add_u32 v18, v6, 3, v18")
    a("v_bfe_u32 v6, v2, 4, 1")
    a("v_lshl_add_u32 v18, v6, 5, v18")
    a("s_mul_i32 s47, s12, s45")
    a("s_lshl_b32 s47, s47, 10")
    a("v_add_u32 v18, s47, v18")
    a("s_add_u32 s43, s43, s47")
    a("v_add_u32 v19, 4096, v1")
    a("s_waitcnt lgkmcnt(0)")
    a("s_barrier")
    for i in range(8):
        a("ds_read_b64_tr_b16 v[%d:%d], v18 offset:%d" % (20 + 4 * i, 21 + 4 * i, 1024 * i))
        a("ds_read_b64_tr_b16 v[%d:%d], v18 offset:%d" % (22 + 4 * i, 23 + 4 * i, 1024 * i + 512))
    a("v_mov_b32 v52, 0x3f803f80")
    a("v_mov_b32 v53, 0")
    for i in range(8):
        a("s_waitcnt lgkmcnt(%d)" % min(15, 14 - 2 * i))
        if i == 7:
            a("s_cmp_eq_u32 s45, 7")
            a("s_cbranch_scc1 L_p_skip7")
        a("buffer_store_dwordx4 v[%d:%d], v%d, s[4:7], s43 offen offset:%d" % (20 + 4 * i, 23 + 4 * i, 1 if i < 4 else 19, (i % 4) * 1024))
        for r in range(4):
            a("v_dot2_f32_bf16 v53, v%d, v52, v53" % (20 + 4 * i + r))
    a("L_p_skip7:")
    a("s_cmp_eq_u32 s44, 0")
    a("s_cbranch_scc1 L_p_xpart")
    a("v_lshlrev_b32 v6, 2, v0")
    a("ds_write_b32 v6, v53 offset:32768")
    a("s_waitcnt lgkmcnt(0)")
    a("s_barrier")
    a("s_cmp_lg_u32 s12, 0")
    a("s_cbranch_scc1 L_p_xpart")
    a("v_lshlrev_b32 v6, 2, v3")
    for w in range(4):
        a("ds_read2_b32 v[%d:%d], v6 offset0:%d offset1:%d" % (56 + 2 * w, 57 + 2 * w, 0, 32) if False else
          "ds_read_b32 v%d, v6 offset:%d\nds_read_b32 v%d, v6 offset:%d" % (56 + 2 * w, 32768 + 256 * w, 57 + 2 * w, 32768 + 256 * w + 128))
    a("s_waitcnt lgkmcnt(0)")
    for q in (4, 2, 1):
        for i in range(q):
            a("v_add_f32 v%d, v%d, v%d" % (56 + i, 56 + i, 56 + i + q))
    a("buffer_store_dword v56, v6, s[4:7], s44 offen")
    a("L_p_xpart:")
    a("s_waitcnt vmcnt(0)") if False else None
    a("s_waitcnt vmcnt(0)")
    a("v_permlane32_swap_b32 v8, v10")
    a("v_permlane32_swap_b32 v9, v11")
    a("v_permlane32_swap_b32 v12, v14")
    a("v_permlane32_swap_b32 v13, v15")
    a("s_lshl_b32 s15, s13, 15")
    a("s_lshl_b32 s40, s14, 11")
    a("s_add_u32 s15, s15, s40")
    a("s_add_u32 s15, s15, 0x%x" % OFF_X)
    a("buffer_store_dwordx4 v[8:11], v1, s[4:7], s15 offen")
    a("buffer_store_dwordx4 v[12:15], v1, s[4:7], s15 offen offset:1024")
    a("v_mov_b32 v52, 0x3f803f80")
    a("v_mov_b32 v54, 0")
    a("v_mov_b32 v55, 0")
    for r in range(8, 16):
        a("v_dot2_f32_bf16 v54, v%d, v52, v54" % r)
        a("v_dot2_f32_bf16 v55, v%d, v%d, v55" % (r, r))
    a("v_mov_b32 v56, v54")
    a("v_mov_b32 v57, v55")
    a("v_permlane32_swap_b32 v54, v56")
    a("v_permlane32_swap_b32 v55, v57")
    a("v_add_f32 v54, v54, v56")
    a("v_add_f32 v55, v55, v57")
    a("s_lshl_b32 s15, s13, 12")
    a("s_lshl_b32 s40, s14, 3")
    a("s_add_u32 s15, s15, s40")
    a("s_add_u32 s15, s15, 0x%x" % OFF_STAT)
    a("v_lshlrev_b32 v6, 7, v3")
    a("buffer_store_dwordx2 v[54:55], v6, s[4:7], s15 offen")
    a("v_mov_b32 v58, 0")
    a("s_lshl_b32 s15, s2, 8")
    a("s_add_u32 s15, s15, 0x%x" % OFF_FLAGS)
    a("v_lshlrev_b32 v6, 2, v2")
    a("buffer_store_dword v58, v6, s[4:7], s15 offen")
    if cfg.get("code_prefetch"):
        a("s_getpc_b64 s[50:51]")
        a("L_p_pc:")
        a("s_add_u32 s50, s50, L_code_begin-L_p_pc")
        a("s_addc_u32 s51, s51, 0")
        a("s_lshr_b32 s52, s2, 3")
        a("s_lshl_b32 s52, s52, 11")
        a("v_lshlrev_b32 v6, 3, v0")
        a("v_add_u32 v6, s52, v6")
        a("v_cmp_gt_u32 vcc, L_code_end-L_code_begin-8, v6")
        a("s_and_saveexec_b64 s[54:55], vcc")
        a("s_cbranch_execz L_exit")
        a("global_load_dwordx2 v[60:61], v6, s[50:51]")
        a("s_waitcnt vmcnt(0)")


G_ACC = 16
G_ST = 80
G_CS = 96
G_T = 112
G_RED = 128
G_KVACC = 176
G_Q = 208
V_NMU, V_RSTD = 218, 219
V_WR = [220, 221, 222]
V_RD = 223


def gemm64_addr(a, s_a0, s_a1, s_b0, s_b1, offA, ksA, offB_sreg, ksB, ksw):
    a("s_lshr_b32 s17, s%d, 1" % S_W)
    a("s_and_b32 s18, s%d, 1" % S_W)
    a("s_lshl_b32 s19, s%d, 1" % S_HQ)
    a("s_add_u32 s19, s19, s17")
    a("s_mul_i32 s20, s%d, %d" % (S_W, ksw * 1024))
    a("s_mul_i32 s%d, s19, %d" % (s_a0, ksA * 1024))
    a("s_add_u32 s%d, s%d, s20" % (s_a0, s_a0))
    a("s_add_u32 s%d, s%d, 0x%x" % (s_a0, s_a0, offA))
    a("s_xor_b32 s21, s19, 1")
    a("s_mul_i32 s%d, s21, %d" % (s_a1, ksA * 1024))
    a("s_add_u32 s%d, s%d, s20" % (s_a1, s_a1))
    a("s_add_u32 s%d, s%d, 0x%x" % (s_a1, s_a1, offA))
    a("s_lshl_b32 s22, s%d, 1" % S_RB)
    a("s_add_u32 s22, s22, s18")
    a("s_mul_i32 s%d, s22, %d" % (s_b0, ksB * 1024))
    a("s_add_u32 s%d, s%d, s20" % (s_b0, s_b0))
    a("s_add_u32 s%d, s%d, s%d" % (s_b0, s_b0, offB_sreg))
    a("s_xor_b32 s21, s22, 1")
    a("s_mul_i32 s%d, s21, %d" % (s_b1, ksB * 1024))
    a("s_add_u32 s%d, s%d, s20" % (s_b1, s_b1))
    a("s_add_u32 s%d, s%d, s%d" % (s_b1, s_b1, offB_sreg))


def reduce_addr(a, base=0):
    for j in (1, 2, 3):
        a("s_xor_b32 s17, s%d, %d" % (S_W, j))
        a("s_mul_i32 s17, s17, 12288")
        a("s_add_u32 s17, s17, %d" % (base + (j - 1) * 4096))
        a("v_add_u32 v%d, s17, v%d" % (V_WR[j - 1], V_L16))
    a("s_mul_i32 s17, s%d, 12288" % S_W)
    a("s_add_u32 s17, s17, %d" % base)
    a("v_add_u32 v%d, s17, v%d" % (V_RD, V_L16))


def reduce4(a):
    for j in (1, 2, 3):
        for q in range(4):
            r = G_ACC + 16 * j + 4 * q
            a("ds_write_b128 v%d, v[%d:%d] offset:%d" % (V_WR[j - 1], r, r + 3, q * 1024))
    a("s_waitcnt lgkmcnt(0)")
    a("s_barrier")
    for j in range(3):
        for q in range(4):
            r = G_RED + 16 * j + 4 * q
            a("ds_read_b128 v[%d:%d], v%d offset:%d" % (r, r + 3, V_RD, j * 4096 + q * 1024))
    for j in range(3):
        for q in range(4):
            a("s_waitcnt lgkmcnt(%d)" % (11 - (j * 4 + q)))
            for e in range(4):
                a("v_add_f32 v%d, v%d, v%d" % (G_ACC + 4 * q + e, G_ACC + 4 * q + e, G_RED + 16 * j + 4 * q + e))


def layer_off(a, sdst, base, stride, mul=1, add=0):
    a("s_mul_i32 s%d, s%d, 0x%x" % (sdst, S_LAYER, stride * mul))
    a("s_add_u32 s%d, s%d, 0x%x" % (sdst, sdst, base + add * stride))


def phase_qkv(a, cfg):
    sc = cfg.get("sc", "")
    SA0, SA1, SB0, SB1, SX, SKV = 24, 25, 26, 27, 28, 29
    layer_off(a, SX, OFF_X, X_STRIDE, 2, 0)
    gemm64_addr(a, SA0, SA1, SB0, SB1, OFF_WQ, 32, SX, 32, 8)
    a("s_lshl_b32 s%d, s%d, 13" % (SKV, S_W))
    a("s_add_u32 s%d, s%d, 0x%x" % (SKV, SKV, OFF_WKV))
    layer_off(a, 30, OFF_STAT, STAT_STRIDE, 2, 0)
    a("s_lshl_b32 s17, s22, 12")
    a("s_add_u32 s30, s30, s17")
    a("s_mov_b32 s31, s22")
    a("s_mov_b32 s32, s19")
    tB = []
    for i in range(8):
        blk(a, ar(64 + 4 * i, 4), SB0, i, sc)
        blk(a, ar(96 + 4 * i, 4), SB1, i, sc)
        blk(a, ar(128 + 4 * i, 4), SKV, i)
        tB.append(a.vt())
    load_stats(a, G_ST, 30, G_T, sc)
    t_st = a.vt()
    tA = []
    for i in range(8):
        blk(a, ar(0 + 4 * i, 4), SA0, i)
        blk(a, ar(32 + 4 * i, 4), SA1, i)
        tA.append(a.vt())
    a("s_lshl_b32 s17, s32, 7")
    a("s_add_u32 s17, s17, 0x%x" % OFF_CSQ)
    a("v_lshlrev_b32 v%d, 4, v%d" % (G_T + 1, V_H))
    for g in range(4):
        a("buffer_load_dwordx4 v[%d:%d], v%d, s[4:7], s17 offen offset:%d" % (G_CS + 4 * g, G_CS + 4 * g + 3, G_T + 1, 32 * g))
    t_cs = a.vt()
    reduce_addr(a, 0)
    layer_off(a, 33, OFF_KV, KV_STRIDE)
    a("s_cmp_ge_u32 s%d, 2" % S_HQ)
    a("s_cbranch_scc1 L_qkv_nokv")
    KVL = 49152
    a("s_and_b32 s17, s%d, 1" % S_W)
    a("s_xor_b32 s17, s17, 1")
    a("s_lshl_b32 s17, s17, 1")
    a("s_lshr_b32 s18, s%d, 1" % S_W)
    a("s_add_u32 s17, s17, s18")
    a("s_lshl_b32 s17, s17, 12")
    a("s_add_u32 s17, s17, %d" % KVL)
    a("v_add_u32 v%d, s17, v%d" % (G_T + 2, V_L16))
    a("s_lshl_b32 s17, s%d, 12" % S_W)
    a("s_add_u32 s17, s17, %d" % (KVL + 16384))
    a("v_add_u32 v%d, s17, v%d" % (G_T + 3, V_L16))
    a("s_lshl_b32 s17, s%d, 12" % S_W)
    a("s_add_u32 s17, s17, %d" % KVL)
    a("v_add_u32 v%d, s17, v%d" % (G_T + 4, V_L16))
    a("v_add_u32 v%d, s17, v%d" % (G_T + 5, V_L16))
    a("s_lshl_b32 s17, s%d, 12" % S_W)
    a("v_add_u32 v%d, s17, v%d" % (G_T + 5, G_T + 5))
    a("s_cmp_eq_u32 s%d, 1" % S_HQ)
    a("s_cbranch_scc1 L_qkv_vacc")
    for i in range(8):
        a.wait_vm(tB[i])
        for j in range(2):
            a("%s v[%d:%d], %s, %s, %s" % (MF, G_KVACC + 16 * j, G_KVACC + 16 * j + 15, ar(128 + 4 * i, 4), ar(64 + 32 * j + 4 * i, 4),
                                          "0" if i == 0 else vr(G_KVACC + 16 * j, 16)))
    a("s_branch L_qkv_kvred")
    a("L_qkv_vacc:")
    for i in range(8):
        a.wait_vm(tB[i])
        for j in range(2):
            a("%s v[%d:%d], %s, %s, %s" % (MF, G_KVACC + 16 * j, G_KVACC + 16 * j + 15, ar(64 + 32 * j + 4 * i, 4), ar(128 + 4 * i, 4),
                                          "0" if i == 0 else vr(G_KVACC + 16 * j, 16)))
    a("L_qkv_kvred:")
    for q in range(4):
        a("ds_write_b128 v%d, v[%d:%d] offset:%d" % (G_T + 2, G_KVACC + 16 + 4 * q, G_KVACC + 16 + 4 * q + 3, q * 1024))
    for q in range(4):
        a("ds_write_b128 v%d, v[%d:%d] offset:%d" % (G_T + 3, G_KVACC + 4 * q, G_KVACC + 4 * q + 3, q * 1024))
    a("s_waitcnt lgkmcnt(0)")
    a("s_barrier")
    a("s_cmp_ge_u32 s%d, 2" % S_W)
    a("s_cbranch_scc1 L_qkv_nokv")
    for q in range(4):
        a("ds_read_b128 v[%d:%d], v%d offset:%d" % (G_RED + 4 * q, G_RED + 4 * q + 3, G_T + 5, q * 1024))
        a("ds_read_b128 v[%d:%d], v%d offset:%d" % (G_RED + 16 + 4 * q, G_RED + 16 + 4 * q + 3, G_T + 5, 4096 + q * 1024))
        a("ds_read_b128 v[%d:%d], v%d offset:%d" % (G_RED + 32 + 4 * q, G_RED + 32 + 4 * q + 3, G_T + 4, 16384 + 8192 + q * 1024))
    a("s_mov_b32 s17, 0x%x" % OFF_CSKV)
    a("buffer_load_dwordx4 v[%d:%d], v%d, s[4:7], s17 offen offset:64" % (G_KVACC + 16, G_KVACC + 19, G_T + 1))
    a("buffer_load_dwordx4 v[%d:%d], v%d, s[4:7], s17 offen offset:96" % (G_KVACC + 20, G_KVACC + 23, G_T + 1))
    a("v_lshlrev_b32 v%d, 2, v%d" % (G_T + 6, V_R31))
    a("buffer_load_dword v%d, v%d, s[4:7], s17 offen" % (G_KVACC + 24, G_T + 6))
    a.wait_vm(t_st)
    finish_stats(a, G_ST, V_NMU, V_RSTD)
    a("s_waitcnt lgkmcnt(0)")
    for j in range(3):
        for e in range(16):
            a("v_add_f32 v%d, v%d, v%d" % (G_KVACC + e, G_KVACC + e, G_RED + 16 * j + e))
    a("s_waitcnt vmcnt(0)")
    a("s_lshl_b32 s17, s31, 10")
    a("s_add_u32 s34, s33, s17")
    a("s_cmp_eq_u32 s%d, 1" % S_HQ)
    a("s_cbranch_scc1 L_qkv_vfin")
    for e in range(8):
        a("v_fmac_f32 v%d, v%d, v%d" % (G_KVACC + 8 + e, V_NMU, G_KVACC + 16 + e))
        a("v_mul_f32 v%d, v%d, v%d" % (G_KVACC + 8 + e, V_RSTD, G_KVACC + 8 + e))
    pack8(a, G_T + 8, G_KVACC + 8)
    a("buffer_store_dwordx4 v[%d:%d], v%d, s[4:7], s34 offen %s" % (G_T + 8, G_T + 11, V_L16, sc))
    a("v_mov_b32 v%d, 0" % (G_T + 12))
    for r in range(4):
        a("v_dot2_f32_bf16 v%d, v%d, v%d, v%d" % (G_T + 12, G_T + 8 + r, G_T + 8 + r, G_T + 12))
    xhalf_sum(a, G_T + 12, G_T + 13)
    for d in ("row_shr:1", "row_shr:2", "row_shr:4", "row_shr:8"):
        a("v_max_f32_dpp v%d, v%d, v%d %s row_mask:0xf bank_mask:0xf" % (G_T + 12, G_T + 12, G_T + 12, d))
    a("v_max_f32_dpp v%d, v%d, v%d row_bcast:15 row_mask:0xa bank_mask:0xf" % (G_T + 12, G_T + 12, G_T + 12))
    a("v_readlane_b32 s17, v%d, 31" % (G_T + 12))
    a("s_lshl_b32 s18, s31, 2")
    a("s_add_u32 s18, s18, s33")
    a("s_add_u32 s18, s18, 0x20000")
    a("v_mov_b32 v%d, s17" % (G_T + 13))
    a("v_mov_b32 v%d, 0" % (G_T + 14))
    a("buffer_store_dword v%d, v%d, s[4:7], s18 offen %s" % (G_T + 13, G_T + 14, sc))
    a("s_branch L_qkv_kvdone")
    a("L_qkv_vfin:")
    a("s_lshl_b32 s17, s%d, 8" % S_W)
    a("s_add_u32 s17, s17, %d" % (KVL + 32768))
    a("v_add_u32 v%d, s17, v%d" % (G_T + 7, G_T + 6))
    a("v_mul_f32 v%d, v%d, v%d" % (G_T + 8, V_NMU, V_RSTD))
    a("ds_write_b32 v%d, v%d" % (G_T + 7, V_RSTD))
    a("ds_write_b32 v%d, v%d offset:128" % (G_T + 7, G_T + 8))
    a("v_add_u32 v%d, s17, v%d" % (G_T + 7, G_T + 1))
    a("s_waitcnt lgkmcnt(0)")
    for g in range(4):
        a("ds_read_b128 v[%d:%d], v%d offset:%d" % (G_RED + 4 * g, G_RED + 4 * g + 3, G_T + 7, 32 * g))
        a("ds_read_b128 v[%d:%d], v%d offset:%d" % (G_RED + 16 + 4 * g, G_RED + 16 + 4 * g + 3, G_T + 7, 128 + 32 * g))
    a("s_waitcnt lgkmcnt(0)")
    for e in range(16):
        a("v_mul_f32 v%d, v%d, v%d" % (G_KVACC + e, G_RED + e, G_KVACC + e))
        a("v_fmac_f32 v%d, v%d, v%d" % (G_KVACC + e, G_RED + 16 + e, G_KVACC + 24))
    pack8(a, G_T + 8, G_KVACC)
    pack8(a, G_T + 12, G_KVACC + 8)
    a("v_lshlrev_b32 v%d, 4, v%d" % (G_T + 7, V_R31))
    a("v_lshl_add_u32 v%d, v%d, 8, v%d" % (G_T + 7, V_H, G_T + 7))
    a("s_add_u32 s34, s34, 0x10000")
    a("v_cmp_gt_u32 vcc, 16, v%d" % V_R31)
    a("s_and_saveexec_b64 s[36:37], vcc")
    a("buffer_store_dwordx4 v[%d:%d], v%d, s[4:7], s34 offen %s" % (G_T + 8, G_T + 11, G_T + 7, sc))
    a("buffer_store_dwordx4 v[%d:%d], v%d, s[4:7], s34 offen offset:512 %s" % (G_T + 12, G_T + 15, G_T + 7, sc))
    a("s_mov_b64 exec, s[36:37]")
    a("L_qkv_kvdone:")
    a("s_mov_b32 s35, 1")
    a("s_branch L_qkv_q")
    a("L_qkv_nokv:")
    a("s_mov_b32 s35, 0")
    a("L_qkv_q:")
    nq = t_cs
    for i in range(8):
        a("s_waitcnt vmcnt(%d)" % (nq - tA[i]))
        for j in range(4):
            a("%s v[%d:%d], %s, %s, %s" % (MF, G_ACC + 16 * j, G_ACC + 16 * j + 15, ar(32 * (j >> 1) + 4 * i, 4), ar(64 + 32 * (j & 1) + 4 * i, 4),
                                          "0" if i == 0 else vr(G_ACC + 16 * j, 16)))
    a("s_cmp_eq_u32 s35, 1")
    a("s_cbranch_scc1 L_qkv_hs")
    finish_stats(a, G_ST, V_NMU, V_RSTD)
    a("L_qkv_hs:")
    reduce4(a)
    a("s_waitcnt vmcnt(0)")
    a("v_mul_f32 v%d, %s, v%d" % (G_T, fl(QSCALE), V_RSTD))
    for e in range(16):
        a("v_fmac_f32 v%d, v%d, v%d" % (G_ACC + e, V_NMU, G_CS + e))
        a("v_mul_f32 v%d, v%d, v%d" % (G_ACC + e, G_T, G_ACC + e))
    pack8(a, G_Q, G_ACC)
    pack8(a, G_Q + 4, G_ACC + 8)
    if cfg.get("store_q"):
        a("s_lshl_b32 s17, s31, 15")
        a("s_lshl_b32 s18, s32, 11")
        a("s_add_u32 s17, s17, s18")
        a("s_add_u32 s17, s17, 0x%x" % OFF_Q)
        a("buffer_store_dwordx4 v[%d:%d], v%d, s[4:7], s17 offen" % (G_Q, G_Q + 3, V_L16))
        a("buffer_store_dwordx4 v[%d:%d], v%d, s[4:7], s17 offen offset:1024" % (G_Q + 4, G_Q + 7, V_L16))


A_C = [16, 32]
A_O = [48, 64]
A_S = [80, 96]
A_P = [112, 116, 120, 124]
A_KF = [128, 132]
A_VF = [[136, 140], [144, 148]]
A_VK, A_VV, A_VINC = 152, 153, 154
A_T = 156
LDS_V = 65536
LDS_ONES = 131072
LDS_ATT_FLAG = LDS_ONES + 5120
UNR = 4


def phase_att(a, cfg):
    sc = cfg.get("sc", "")
    Q = [G_Q, G_Q + 4]
    layer_off(a, 33, OFF_KV, KV_STRIDE)
    a("s_lshr_b32 s17, s%d, 1" % S_W)
    a("s_and_b32 s18, s%d, 1" % S_W)
    a("s_lshl_b32 s32, s%d, 1" % S_HQ)
    a("s_add_u32 s32, s32, s17")
    a("s_lshl_b32 s31, s%d, 1" % S_RB)
    a("s_add_u32 s31, s31, s18")
    if cfg.get("load_q"):
        a("s_lshl_b32 s17, s31, 15")
        a("s_lshl_b32 s18, s32, 11")
        a("s_add_u32 s17, s17, s18")
        a("s_add_u32 s17, s17, 0x%x" % OFF_Q)
        a("buffer_load_dwordx4 v[%d:%d], v%d, s[4:7], s17 offen" % (G_Q, G_Q + 3, V_L16))
        a("buffer_load_dwordx4 v[%d:%d], v%d, s[4:7], s17 offen offset:1024" % (G_Q + 4, G_Q + 7, V_L16))
    a("v_lshlrev_b32 v%d, 2, v%d" % (A_T, V_LANE))
    a("s_add_u32 s17, s33, 0x20000")
    a("buffer_load_dword v%d, v%d, s[4:7], s17 offen %s" % (A_T + 1, A_T, sc))
    t_kn = a.vt()
    a("s_lshl_b32 s20, s%d, 10" % S_W)
    a("s_add_u32 s21, s33, s20")
    a("s_add_u32 s22, s21, 0x10000")
    a("s_add_u32 s23, s20, %d" % LDS_V)
    for g in range(16):
        a("s_add_u32 m0, s20, %d" % (g * 4096))
        a("buffer_load_dwordx4 v%d, s[4:7], s21 offen %s lds" % (V_L16, sc))
        a("s_add_u32 m0, s23, %d" % (g * 4096))
        a("buffer_load_dwordx4 v%d, s[4:7], s22 offen %s lds" % (V_L16, sc))
        if g < 15:
            a("s_add_u32 s21, s21, 4096")
            a("s_add_u32 s22, s22, 4096")
        if g == 3:
            t_g3 = a.vt()
    t_all = a.vt()
    for r in range(4):
        a("v_mov_b32 v%d, 0x3f803f80" % (A_T + 4 + r))
    a("v_lshlrev_b32 v%d, 4, v0" % (A_T + 2))
    a("ds_write_b128 v%d, v[%d:%d] offset:%d" % (A_T + 2, A_T + 4, A_T + 7, 0) if False else
      "v_add_u32 v%d, %d, v%d" % (A_T + 2, LDS_ONES, A_T + 2))
    a("ds_write_b128 v%d, v[%d:%d]" % (A_T + 2, A_T + 4, A_T + 7))
    a("ds_write_b128 v%d, v[%d:%d] offset:1024" % (A_T + 2, A_T + 4, A_T + 7))
    a("v_mov_b32 v%d, v%d" % (A_VK, V_L16))
    a("v_and_b32 v%d, 15, v%d" % (A_T + 2, V_LANE))
    a("v_lshlrev_b32 v%d, 4, v%d" % (A_T + 2, A_T + 2))
    a("v_lshl_add_u32 v%d, v%d, 8, v%d" % (A_T + 2, V_H, A_T + 2))
    a("v_add_u32 v%d, %d, v%d" % (A_VV, LDS_V, A_T + 2))
    a("v_add_u32 v%d, -20, v%d" % (A_T + 3, V_R31))
    a("v_cmp_gt_u32 vcc, 8, v%d" % (A_T + 3))
    a("v_mov_b32 v%d, %d" % (A_T + 2, LDS_ONES))
    a("v_mov_b32 v%d, %d" % (A_T + 3, LDS_ONES + 64))
    a("v_cndmask_b32 v%d, v%d, v%d, vcc" % (A_T + 2, A_T + 2, A_T + 3))
    a("v_cmp_le_u32 vcc, 16, v%d" % V_R31)
    a("v_mov_b32 v%d, %d" % (A_VINC, UNR * 1024))
    a("v_mov_b32 v%d, 0" % (A_T + 3))
    a("v_cndmask_b32 v%d, v%d, v%d, vcc" % (A_VV, A_VV, A_T + 2))
    a("v_cndmask_b32 v%d, v%d, v%d, vcc" % (A_VINC, A_VINC, A_T + 3))
    for t in range(2):
        for r in range(16):
            a("v_mov_b32 v%d, 0" % (A_O[t] + r))
    for r in range(4):
        a("v_mov_b32 v%d, 0" % (A_P[3] + r))
        a("v_mov_b32 v%d, 0" % (A_VF[1][1] + r))
    a.wait_vm(t_kn)
    k2 = A_T + 1
    for d in ("row_shr:1", "row_shr:2", "row_shr:4", "row_shr:8"):
        a("v_max_f32_dpp v%d, v%d, v%d %s row_mask:0xf bank_mask:0xf" % (k2, k2, k2, d))
    a("v_max_f32_dpp v%d, v%d, v%d row_bcast:15 row_mask:0xa bank_mask:0xf" % (k2, k2, k2))
    a("v_max_f32_dpp v%d, v%d, v%d row_bcast:31 row_mask:0xc bank_mask:0xf" % (k2, k2, k2))
    a("v_readlane_b32 s17, v%d, 63" % k2)
    for t in range(2):
        n = A_T + 8 + t
        a("v_mov_b32 v%d, 0" % n)
        for r in range(4):
            a("v_dot2_f32_bf16 v%d, v%d, v%d, v%d" % (n, Q[t] + r, Q[t] + r, n))
        xhalf_sum(a, n, A_T + 10)
        a("v_mul_f32 v%d, s17, v%d" % (n, n))
        a("v_sqrt_f32 v%d, v%d" % (n, n))
        a("v_mul_f32 v%d, %s, v%d" % (n, fl(-1.001), n))
        for r in range(16):
            a("v_mov_b32 v%d, v%d" % (A_C[t] + r, n))
    a("v_min_f32 v%d, v%d, v%d" % (A_T + 10, A_T + 8, A_T + 9))
    a("v_cmp_nge_f32 vcc, v%d, v%d" % (A_T + 10, A_T + 10) if False else "v_mov_b32 v%d, %s" % (A_T + 11, fl(-cfg.get("bound_t", BOUND_T))))
    a("v_cmp_nge_f32 vcc, v%d, v%d" % (A_T + 10, A_T + 11))
    a("s_cmp_lg_u64 vcc, 0")
    a("s_cselect_b32 s18, 1, 0")
    a("v_mov_b32 v%d, s18" % (A_T + 11))
    a("s_lshl_b32 s19, s%d, 2" % S_W)
    a("s_add_u32 s19, s19, %d" % LDS_ATT_FLAG)
    a("v_mov_b32 v%d, s19" % (A_T + 12))
    a("ds_write_b32 v%d, v%d" % (A_T + 12, A_T + 11))
    a.wait_vm(t_g3)
    a("s_waitcnt lgkmcnt(0)")
    a("s_barrier")
    a("v_mov_b32 v%d, %d" % (A_T + 12, LDS_ATT_FLAG))
    a("ds_read_b128 v[%d:%d], v%d" % (A_T + 4, A_T + 7, A_T + 12))
    a("ds_read_b128 v[%d:%d], v%d" % (A_KF[0], A_KF[0] + 3, A_VK))
    a("ds_read_b128 v[%d:%d], v%d" % (A_VF[0][0], A_VF[0][0] + 3, A_VV))
    a("ds_read_b128 v[%d:%d], v%d offset:512" % (A_VF[0][1], A_VF[0][1] + 3, A_VV))
    a("ds_read_b128 v[%d:%d], v%d offset:1024" % (A_KF[1], A_KF[1] + 3, A_VK))
    a("s_waitcnt lgkmcnt(4)")
    a("v_or_b32 v%d, v%d, v%d" % (A_T + 4, A_T + 4, A_T + 5))
    a("v_or3_b32 v%d, v%d, v%d, v%d" % (A_T + 4, A_T + 4, A_T + 6, A_T + 7))
    a("v_readfirstlane_b32 s18, v%d" % (A_T + 4))
    a("s_cmp_eq_u32 s18, 0")
    a("s_cbranch_scc1 L_att_fast")
    a("s_waitcnt vmcnt(0)")
    a("s_barrier")
    a("v_mov_b32 v%d, 0xff800000" % (A_T + 8))
    a("v_mov_b32 v%d, 0xff800000" % (A_T + 9))
    a("v_mov_b32 v%d, v%d" % (A_T + 12, V_L16))
    a("s_mov_b32 s19, 64")
    a("L_att_pre:")
    a("ds_read_b128 v[%d:%d], v%d" % (A_P[0], A_P[0] + 3, A_T + 12))
    a("v_add_u32 v%d, 1024, v%d" % (A_T + 12, A_T + 12))
    a("s_waitcnt lgkmcnt(0)")
    for t in range(2):
        a("%s v[%d:%d], v[%d:%d], v[%d:%d], 0" % (MF, A_S[t], A_S[t] + 15, A_P[0], A_P[0] + 3, Q[t], Q[t] + 3))
    for t in range(2):
        for r in range(0, 16, 2):
            a("v_max3_f32 v%d, v%d, v%d, v%d" % (A_T + 8 + t, A_S[t] + r, A_S[t] + r + 1, A_T + 8 + t))
    a("s_sub_u32 s19, s19, 1")
    a("s_cmp_lg_u32 s19, 0")
    a("s_cbranch_scc1 L_att_pre")
    for t in range(2):
        n = A_T + 8 + t
        a("v_mov_b32 v%d, v%d" % (A_T + 10, n))
        a("v_permlane32_swap_b32 v%d, v%d" % (n, A_T + 10))
        a("v_max_f32 v%d, v%d, v%d" % (n, n, A_T + 10))
        a("v_sub_f32 v%d, 0, v%d" % (n, n))
        for r in range(16):
            a("v_mov_b32 v%d, v%d" % (A_C[t] + r, n))
    a("L_att_fast:")
    a("s_waitcnt lgkmcnt(0)")

    def mf(d, x, y, c):
        a("%s v[%d:%d], v[%d:%d], v[%d:%d], v[%d:%d]" % (MF, d, d + 15, x, x + 3, y, y + 3, c, c + 15))

    def ex(r):
        a("v_exp_f32 v%d, v%d" % (r, r))

    def cv(d, s):
        a("v_cvt_pk_bf16_f32 v%d, v%d, v%d" % (d, s, s + 1))

    mf(A_S[0], A_KF[0], Q[0], A_C[0])
    a("s_mov_b32 s19, 3")
    a("s_mov_b32 s18, 0")
    a("s_nop 7")
    a(".p2align 3")
    a("L_att_loop:")
    units = [(j, t) for j in range(UNR) for t in range(2)]
    U = len(units)
    for u, (j, t) in enumerate(units):
        nj, nt = units[(u + 1) % U]
        pj, pt = units[(u - 1) % U]
        sb, nsb = A_S[u % 2], A_S[(u + 1) % 2]
        plo, phi = A_P[(u % 2) * 2], A_P[(u % 2) * 2 + 1]
        pphi = A_P[((u - 1) % 2) * 2 + 1]
        mf(nsb, A_KF[nj % 2], Q[nt], A_C[nt])
        if t == 0:
            a("ds_read_b128 v[%d:%d], v%d offset:%d" % (A_KF[j % 2], A_KF[j % 2] + 3, A_VK, (j + 2) * 1024))
        for r in range(0, 4):
            ex(sb + r)
        mf(A_O[pt], A_VF[pj % 2][1], pphi, A_O[pt])
        if t == 0:
            off = (j + 1) * 1024
            a("ds_read_b128 v[%d:%d], v%d offset:%d" % (A_VF[(j + 1) % 2][0], A_VF[(j + 1) % 2][0] + 3, A_VV, off))
            a("ds_read_b128 v[%d:%d], v%d offset:%d" % (A_VF[(j + 1) % 2][1], A_VF[(j + 1) % 2][1] + 3, A_VV, off + 512))
        for r in range(4, 9):
            ex(sb + r)
        for r in range(0, 4):
            cv(plo + r, sb + 2 * r)
        for r in range(9, 12):
            ex(sb + r)
        mf(A_O[t], A_VF[j % 2][0], plo, A_O[t])
        if t == 1:
            a("s_waitcnt lgkmcnt(0)")
        if u == U - 1:
            a("s_sub_u32 s19, s19, 1")
        for r in range(12, 16):
            ex(sb + r)
        if u == U - 1:
            a("v_add_u32 v%d, %d, v%d" % (A_VK, UNR * 1024, A_VK))
            a("v_add_u32 v%d, v%d, v%d" % (A_VV, A_VINC, A_VV))
        for r in range(4, 8):
            cv(phi + r - 4, sb + 2 * r)
    a("s_cmp_lg_u32 s19, 0")
    a("s_cbranch_scc1 L_att_loop")
    a("s_cmp_lg_u32 s18, 0")
    a("s_cbranch_scc1 L_att_done")
    a("s_mov_b32 s18, 1")
    a("s_mov_b32 s19, %d" % (64 // UNR - 3))
    a("s_waitcnt vmcnt(%d)" % (a.vm_issued - t_all))
    a("s_barrier")
    a("s_branch L_att_loop")
    a("L_att_done:")
    lj, lt = units[-1]
    mf(A_O[lt], A_VF[lj % 2][1], A_P[((U - 1) % 2) * 2 + 1], A_O[lt])
    layer_off(a, 17, OFF_O, X_STRIDE)
    a("s_lshl_b32 s18, s31, 15")
    a("s_add_u32 s17, s17, s18")
    a("s_lshl_b32 s18, s32, 11")
    a("s_add_u32 s17, s17, s18")
    for t in range(2):
        a("v_rcp_f32 v%d, v%d" % (A_T, A_O[t] + 8))
        for r in range(8):
            a("v_mul_f32 v%d, v%d, v%d" % (A_O[t] + r, A_T, A_O[t] + r))
        pack8(a, A_P[t], A_O[t])
        a("buffer_store_dwordx4 v[%d:%d], v%d, s[4:7], s17 offen offset:%d %s" % (A_P[t], A_P[t] + 3, V_L16, t * 1024, sc))


def res_epilogue(a, cfg, xin_mul_add, xout_add, final):
    sc = cfg.get("sc", "")
    for i in range(8):
        a("v_lshlrev_b32 v%d, 16, v%d" % (G_T, G_CS + i))
        a("v_and_b32 v%d, 0xffff0000, v%d" % (G_T + 1, G_CS + i))
        a("v_add_f32 v%d, v%d, v%d" % (G_ACC + 2 * i, G_ACC + 2 * i, G_T))
        a("v_add_f32 v%d, v%d, v%d" % (G_ACC + 2 * i + 1, G_ACC + 2 * i + 1, G_T + 1))
    pack8(a, G_T + 4, G_ACC)
    pack8(a, G_T + 8, G_ACC + 8)
    if final is not None:
        a("s_cmp_eq_u32 s%d, 1" % S_LAYER)
        a("s_cbranch_scc1 %s" % final)
    layer_off(a, 17, OFF_X, X_STRIDE, 2, xout_add)
    a("s_lshl_b32 s18, s31, 15")
    a("s_add_u32 s17, s17, s18")
    a("s_lshl_b32 s18, s32, 11")
    a("s_add_u32 s17, s17, s18")
    a("buffer_store_dwordx4 v[%d:%d], v%d, s[4:7], s17 offen %s" % (G_T + 4, G_T + 7, V_L16, sc))
    a("buffer_store_dwordx4 v[%d:%d], v%d, s[4:7], s17 offen offset:1024 %s" % (G_T + 8, G_T + 11, V_L16, sc))
    a("v_mov_b32 v%d, 0x3f803f80" % G_T)
    a("v_mov_b32 v%d, 0" % (G_T + 12))
    a("v_mov_b32 v%d, 0" % (G_T + 13))
    for r in range(8):
        a("v_dot2_f32_bf16 v%d, v%d, v%d, v%d" % (G_T + 12, G_T + 4 + r, G_T, G_T + 12))
        a("v_dot2_f32_bf16 v%d, v%d, v%d, v%d" % (G_T + 13, G_T + 4 + r, G_T + 4 + r, G_T + 13))
    a("v_mov_b32 v%d, v%d" % (G_T + 14, G_T + 12))
    a("v_mov_b32 v%d, v%d" % (G_T + 15, G_T + 13))
    a("v_permlane32_swap_b32 v%d, v%d" % (G_T + 12, G_T + 14))
    a("v_permlane32_swap_b32 v%d, v%d" % (G_T + 13, G_T + 15))
    a("v_add_f32 v%d, v%d, v%d" % (G_T + 12, G_T + 12, G_T + 14))
    a("v_add_f32 v%d, v%d, v%d" % (G_T + 13, G_T + 13, G_T + 15))
    layer_off(a, 17, OFF_STAT, STAT_STRIDE, 2, xout_add)
    a("s_lshl_b32 s18, s31, 12")
    a("s_add_u32 s17, s17, s18")
    a("s_lshl_b32 s18, s32, 3")
    a("s_add_u32 s17, s17, s18")
    a("v_lshlrev_b32 v%d, 7, v%d" % (G_T + 2, V_R31))
    a("v_cmp_gt_u32 vcc, 32, v%d" % V_LANE)
    a("s_and_saveexec_b64 s[36:37], vcc")
    a("buffer_store_dwordx2 v[%d:%d], v%d, s[4:7], s17 offen %s" % (G_T + 12, G_T + 13, G_T + 2, sc))
    a("s_mov_b64 exec, s[36:37]")


def final_store(a):
    a("v_permlane32_swap_b32 v%d, v%d" % (G_T + 4, G_T + 6))
    a("v_permlane32_swap_b32 v%d, v%d" % (G_T + 5, G_T + 7))
    a("v_permlane32_swap_b32 v%d, v%d" % (G_T + 8, G_T + 10))
    a("v_permlane32_swap_b32 v%d, v%d" % (G_T + 9, G_T + 11))
    a("s_lshl_b32 s17, s31, 15")
    a("s_lshl_b32 s18, s32, 6")
    a("s_add_u32 s17, s17, s18")
    a("v_lshlrev_b32 v%d, 10, v%d" % (G_T + 2, V_R31))
    a("v_lshl_add_u32 v%d, v%d, 4, v%d" % (G_T + 2, V_H, G_T + 2))
    a("buffer_store_dwordx4 v[%d:%d], v%d, s[8:11], s17 offen" % (G_T + 4, G_T + 7, G_T + 2))
    a("buffer_store_dwordx4 v[%d:%d], v%d, s[8:11], s17 offen offset:32" % (G_T + 8, G_T + 11, G_T + 2))


def load_resid(a, cfg, xin_add):
    sc = cfg.get("sc", "")
    layer_off(a, 17, OFF_X, X_STRIDE, 2, xin_add)
    a("s_lshl_b32 s18, s31, 15")
    a("s_add_u32 s17, s17, s18")
    a("s_lshl_b32 s18, s32, 11")
    a("s_add_u32 s17, s17, s18")
    a("buffer_load_dwordx4 v[%d:%d], v%d, s[4:7], s17 offen %s" % (G_CS, G_CS + 3, V_L16, sc))
    a("buffer_load_dwordx4 v[%d:%d], v%d, s[4:7], s17 offen offset:1024 %s" % (G_CS + 4, G_CS + 7, V_L16, sc))


def phase_wo(a, cfg):
    sc = cfg.get("sc", "")
    SA0, SA1, SB0, SB1, SX = 24, 25, 26, 27, 28
    layer_off(a, SX, OFF_O, X_STRIDE)
    gemm64_addr(a, SA0, SA1, SB0, SB1, OFF_WO, 32, SX, 32, 8)
    a("s_mov_b32 s31, s22")
    a("s_mov_b32 s32, s19")
    t = []
    for i in range(8):
        blk(a, ar(0 + 4 * i, 4), SA0, i)
        blk(a, ar(64 + 4 * i, 4), SB0, i, sc)
        blk(a, ar(96 + 4 * i, 4), SB1, i, sc)
        blk(a, ar(32 + 4 * i, 4), SA1, i)
        t.append(a.vt())
    load_resid(a, cfg, 0)
    reduce_addr(a, 0)
    for i in range(8):
        a.wait_vm(t[i])
        for j in range(4):
            a("%s v[%d:%d], %s, %s, %s" % (MF, G_ACC + 16 * j, G_ACC + 16 * j + 15, ar(32 * (j >> 1) + 4 * i, 4), ar(64 + 32 * (j & 1) + 4 * i, 4),
                                          "0" if i == 0 else vr(G_ACC + 16 * j, 16)))
    reduce4(a)
    a("s_waitcnt vmcnt(0)")
    res_epilogue(a, cfg, 0, 1, None)


def phase_ffn2(a, cfg):
    sc = cfg.get("sc", "")
    SA0, SA1, SB0, SB1, SX = 24, 25, 26, 27, 28
    layer_off(a, SX, OFF_H, H_STRIDE)
    gemm64_addr(a, SA0, SA1, SB0, SB1, OFF_W2, 112, SX, 112, 28)
    a("s_mov_b32 s31, s22")
    a("s_mov_b32 s32, s19")
    R = 14
    t = {}

    def issue(i):
        b = 16 * (i % R)
        blk(a, ar(b, 4), SA0, i)
        blk(a, ar(b + 8, 4), SB0, i, sc)
        blk(a, ar(b + 12, 4), SB1, i, sc)
        blk(a, ar(b + 4, 4), SA1, i)
        t[i] = a.vt()

    load_resid(a, cfg, 1)
    for i in range(R):
        issue(i)
    reduce_addr(a, 0)
    for i in range(28):
        a.wait_vm(t[i])
        b = 16 * (i % R)
        for j in range(4):
            a("%s v[%d:%d], %s, %s, %s" % (MF, G_ACC + 16 * j, G_ACC + 16 * j + 15, ar(b + 4 * (j >> 1), 4), ar(b + 8 + 4 * (j & 1), 4),
                                          "0" if i == 0 else vr(G_ACC + 16 * j, 16)))
        if i + R < 28:
            issue(i + R)
    reduce4(a)
    res_epilogue(a, cfg, 1, 2, "L_ffn2_final")
    a("s_branch L_ffn2_end")
    a("L_ffn2_final:")
    final_store(a)
    a("L_ffn2_end:")


F_ACC = [16, 32, 48]
F_W = 64
F_CS = [96, 112]
F_ST = 128
F_T = 144
F_H = 176
F_LA = [184, 185]
F_NMU, F_C1, F_RS2 = 186, 187, 188


def phase_ffn1(a, cfg):
    sc = cfg.get("sc", "")
    SX, SW, SCS, SH = 24, 25, 26, 27
    a("s_lshl_b32 s31, s%d, 2" % S_RG)
    a("s_add_u32 s31, s31, s%d" % S_W)
    a("s_mul_i32 s%d, s%d, %d" % (SW, S_M, 7 * 32768))
    a("s_lshl_b32 s17, s%d, 13" % S_W)
    a("s_add_u32 s%d, s%d, s17" % (SW, SW))
    a("s_add_u32 s%d, s%d, 0x%x" % (SW, SW, OFF_W13))
    a("s_mov_b32 s28, s17")

    def dma(i):
        slot = i % 4
        for hh in range(2):
            a("s_add_u32 m0, s28, %d" % (slot * 32768 + hh * 4096))
            a("s_add_u32 s29, s%d, %d" % (SW, i * 32768 + hh * 4096))
            for q in range(4):
                a("buffer_load_dwordx4 v%d, s[4:7], s29 offen offset:%d lds" % (V_L16, q * 1024))

    layer_off(a, SX, OFF_X, X_STRIDE, 2, 1)
    a("s_lshl_b32 s17, s31, 15")
    a("s_add_u32 s%d, s%d, s17" % (SX, SX))
    a("s_add_u32 s30, s%d, %d" % (SX, 28 * 1024))
    dma(0)
    dma(1)
    t_w01 = a.vt()
    tX = []
    for i in range(32):
        if i < 28:
            blk(a, ar(4 * i, 4), SX, i, sc)
        else:
            blk(a, ar(4 * i, 4), 30, i - 28, sc)
        tX.append(a.vt())
    layer_off(a, 17, OFF_STAT, STAT_STRIDE, 2, 1)
    a("s_lshl_b32 s18, s31, 12")
    a("s_add_u32 s17, s17, s18")
    load_stats(a, F_ST, 17, F_T, sc)
    t_st = a.vt()
    a("s_mul_i32 s%d, s%d, %d" % (SCS, S_M, 7 * 128))
    a("s_add_u32 s%d, s%d, 0x%x" % (SCS, SCS, OFF_CS13))
    a("v_lshlrev_b32 v%d, 4, v%d" % (F_T + 1, V_H))
    t_cs = {}

    def load_cs(i):
        for g in range(4):
            a("buffer_load_dwordx4 v[%d:%d], v%d, s[4:7], s%d offen offset:%d" % (F_CS[i % 2] + 4 * g, F_CS[i % 2] + 4 * g + 3, F_T + 1, SCS, i * 128 + 32 * g))
        t_cs[i] = a.vt()

    load_cs(0)
    load_cs(1)
    layer_off(a, SH, OFF_H, H_STRIDE)
    a("s_mul_i32 s17, s31, %d" % (112 * 1024))
    a("s_add_u32 s%d, s%d, s17" % (SH, SH))
    a("s_mul_i32 s17, s%d, %d" % (S_M, 7 * 1024))
    a("s_add_u32 s%d, s%d, s17" % (SH, SH))
    a("v_mov_b32 v%d, v%d" % (F_LA[0], V_L16))
    a("v_add_u32 v%d, 65536, v%d" % (F_LA[1], V_L16))
    a.wait_vm(t_w01)
    a("s_barrier")
    dma(2)
    dma(3)
    t_w23 = a.vt()

    def wread(tile, ks, ring):
        slot = tile % 4
        a("ds_read_b128 v[%d:%d], v%d offset:%d" % (F_W + 4 * ring, F_W + 4 * ring + 3, F_LA[slot >> 1], (slot & 1) * 32768 + ks * 1024))

    def epi(tile):
        acc, cs = F_ACC[tile % 3], F_CS[tile % 2]
        hp = F_H + 4 * (tile % 2)
        out = []
        for e in range(8):
            out.append("v_fmac_f32 v%d, v%d, v%d" % (acc + e, F_NMU, cs + e))
            out.append("v_fmac_f32 v%d, v%d, v%d" % (acc + 8 + e, F_NMU, cs + 8 + e))
        for e in range(8):
            out.append("v_mul_f32 v%d, v%d, v%d" % (F_T + 8 + e, F_C1, acc + e))
        for e in range(8):
            out.append("v_exp_f32 v%d, v%d" % (F_T + 8 + e, F_T + 8 + e))
            out.append("v_mul_f32 v%d, v%d, v%d" % (acc + e, acc + e, acc + 8 + e))
        for e in range(8):
            out.append("v_add_f32 v%d, 1.0, v%d" % (F_T + 8 + e, F_T + 8 + e))
        for e in range(8):
            out.append("v_rcp_f32 v%d, v%d" % (F_T + 8 + e, F_T + 8 + e))
            out.append("v_mul_f32 v%d, v%d, v%d" % (acc + e, F_RS2, acc + e))
        for e in range(8):
            out.append("v_mul_f32 v%d, v%d, v%d" % (acc + e, F_T + 8 + e, acc + e))
        for i in range(4):
            out.append("v_cvt_pk_bf16_f32 v%d, v%d, v%d" % (hp + i, acc + 2 * i, acc + 2 * i + 1))
        out.append("buffer_store_dwordx4 v[%d:%d], v%d, s[4:7], s%d offen offset:%d %s" % (hp, hp + 3, V_OFF[tile // 4], SH, (tile % 4) * 1024, sc))
        return out

    steps = []
    for ks in range(32):
        steps.append((0, ks))
        steps.append((1, ks))
    for tile in range(2, 7):
        for ks in range(32):
            steps.append((tile, ks))
    N = len(steps)
    PF = 6
    lt = {}
    first_of = {}
    for n, (tile, ks) in enumerate(steps):
        first_of.setdefault(tile, n)
    def fence_before_read(tile):
        if tile == 2:
            a.wait_vm(t_w23)
            a("s_barrier")
        elif tile == 4:
            a.wait_vm(fence_t[4])
            a("s_barrier")
        elif tile == 6:
            a.wait_vm(fence_t[6])
            a("s_barrier")

    fence_t = {}
    nread = 0

    def do_read(n):
        tile, ks = steps[n]
        if n == first_of[tile]:
            fence_before_read(tile)
        wread(tile, ks, n % 8)
        lt[n] = a.lt()

    for n in range(PF):
        do_read(n)
    pending = []
    stats_done = False
    for n, (tile, ks) in enumerate(steps):
        if tile < 2 and tile == 0:
            a.wait_vm(tX[ks])
        a.wait_lg(lt[n])
        acc = F_ACC[tile % 3]
        a("%s v[%d:%d], v[%d:%d], %s, %s" % (MF, acc, acc + 15, F_W + 4 * (n % 8), F_W + 4 * (n % 8) + 3, ar(4 * ks, 4),
                                            "0" if ks == 0 else vr(acc, 16)))
        if n + PF < N:
            do_read(n + PF)
        if n == first_of[2] + 2:
            a("s_barrier")
            dma(4)
            dma(5)
            fence_t[4] = a.vt()
        if n == first_of[3] + 2:
            a("s_barrier")
            dma(6)
            fence_t[6] = a.vt()
        if n == first_of[2] - 12:
            a.wait_vm(t_st)
            finish_stats(a, F_ST, F_NMU, F_RS2)
            a("v_mul_f32 v%d, %s, v%d" % (F_C1, fl(-LOG2E), F_RS2))
            a("v_mul_f32 v%d, v%d, v%d" % (F_RS2, F_RS2, F_RS2))
        if n == first_of[2] + 4:
            a.wait_vm(t_cs[1]) if False else None
            pending += [("W", 0)] + epi(0) + [("W", 1)] + epi(1)
        for tl in range(3, 7):
            if n == first_of[tl] + 4:
                pending += [("W", tl - 1)] + epi(tl - 1)
        k = 0
        lim = 5 if tile == 2 else 3
        while pending and k < lim:
            x = pending.pop(0)
            if isinstance(x, tuple):
                a.wait_vm(t_cs[x[1]])
                continue
            a(x)
            k += 1
            if x.startswith("buffer_store"):
                pass
            for tl in range(0, 5):
                if x == "v_fmac_f32 v%d, v%d, v%d" % (F_ACC[tl % 3] + 15, F_NMU, F_CS[tl % 2] + 15) and (tl + 2) not in t_cs and tl in t_cs and cur_epi(tl, tile, n, first_of):
                    load_cs(tl + 2)
    assert not pending, len(pending)
    a.wait_vm(t_cs[6])
    for x in epi(6):
        a(x)


def cur_epi(tl, tile, n, first_of):
    return tile == max(2, tl + 1)


def kernel_desc(name, nfv, acc, sgpr=96):
    return """.amdhsa_kernel %s
  .amdhsa_next_free_vgpr %d
  .amdhsa_next_free_sgpr %d
  .amdhsa_accum_offset %d
  .amdhsa_group_segment_fixed_size 0
  .amdhsa_kernarg_size 96
  .amdhsa_user_sgpr_count 2
  .amdhsa_user_sgpr_kernarg_segment_ptr 1
  .amdhsa_system_sgpr_workgroup_id_x 1
.end_amdhsa_kernel
""" % (name, nfv, sgpr, acc)


def uniq(lines, tag):
    out = []
    for l in lines:
        out.append(l.replace("L_exit", "L_exit_" + tag))
    return out


def build_multi(cfg):
    launches = []
    text = []
    descs = []
    rep = []

    def body(tag, fn, need_out=False, pro=True):
        a = Asm()
        if pro:
            common_prologue(a, need_out)
        fn(a, cfg)
        a("L_exit:")
        a("s_endpgm")
        lines, tot = fix_hazards_fast(uniq(a.lines, tag), rep)
        return lines

    text += [".p2align 8", "prep_kernel:"] + body("prep", prep, pro=False)
    descs.append(kernel_desc("prep_kernel", 64, 64))
    text += [".p2align 8", "L_code_begin:"]
    phases = [("qkv", phase_qkv, False, 88 * 1024), ("att", phase_att, False, 137 * 1024), ("wo", phase_wo, False, 48 * 1024),
              ("ffn1", phase_ffn1, False, 128 * 1024), ("ffn2", phase_ffn2, True, 48 * 1024)]
    for tag, fn, no, lds in phases:
        text += [".p2align 8", "%s1_kernel:" % tag, "  s_mov_b32 s3, 1", "  s_branch L_%s_entry" % tag]
        text += [".p2align 8", "%s0_kernel:" % tag, "  s_mov_b32 s3, 0", "L_%s_entry:" % tag] + body(tag, fn, no)
        for l in (0, 1):
            descs.append(kernel_desc("%s%d_kernel" % (tag, l), 512, 256))
    text += ["L_code_end:"]
    launches.append("; @launch kernel=prep_kernel grid=(256,1,1) block=(256,1,1) lds=%d" % (34 * 1024))
    for l in (0, 1):
        for tag, fn, no, lds in phases:
            launches.append("; @launch kernel=%s%d_kernel grid=(256,1,1) block=(256,1,1) lds=%d" % (tag, l, lds))
    s = "\n".join(launches) + "\n"
    s += '.amdgcn_target "amdgcn-amd-amdhsa--gfx950"\n.text\n'
    s += "\n".join(text) + "\n"
    s += '.section .rodata,"a"\n.p2align 6\n' + ".p2align 6\n".join(descs)
    return s, rep


if __name__ == "__main__":
    cfg = dict(store_q=True, load_q=True, code_prefetch=True)
    for kv in sys.argv[2:]:
        k, v = kv.split("=")
        cfg[k] = eval(v)
    s, rep = build_multi(cfg)
    open(sys.argv[1], "w").write(s)
    from collections import Counter
    print("auto nops:", sum(r[0] for r in rep), "sites", len(rep))
    if cfg.get("verbose"):
        for r in rep:
            print(r)
```

```python
import re

TRANS = ("v_exp_f32", "v_log_f32", "v_rcp_f32", "v_rsq_f32", "v_sqrt_f32", "v_sin_f32", "v_cos_f32",
         "v_rcp_iflag_f32", "v_exp_f16", "v_rcp_f16")

_reg_re = re.compile(r"^(-|abs\(|\|)?([vas])(\d+)\)?\|?$")
_rng_re = re.compile(r"^(-|abs\()?([vas])\[(\d+):(\d+)\]\)?$")


def regs_of(op):
    op = op.strip()
    m = _reg_re.match(op)
    if m:
        return [m.group(2) + m.group(3)]
    m = _rng_re.match(op)
    if m:
        return [m.group(2) + str(i) for i in range(int(m.group(3)), int(m.group(4)) + 1)]
    if op in ("vcc", "exec"):
        return [op + "_lo", op + "_hi"]
    if op in ("vcc_lo", "vcc_hi", "exec_lo", "exec_hi", "m0", "scc"):
        return [op]
    return []


def split_ops(s):
    out, depth, cur = [], 0, ""
    for ch in s:
        if ch in "[(":
            depth += 1
        elif ch in "])":
            depth -= 1
        if ch == "," and depth == 0:
            out.append(cur.strip())
            cur = ""
        else:
            cur += ch
    if cur.strip():
        out.append(cur.strip())
    return out


class Ins:
    __slots__ = ("text", "mn", "ops", "mods", "kind", "dst", "src", "srcA", "srcC", "label", "target", "ws", "passes",
                 "dpp", "perm", "lds_dma", "wide_store_data", "sgpr_src", "auto")

    def __init__(self, text):
        self.text = text
        self.label = None
        self.target = None
        self.dst, self.src, self.srcA, self.srcC = set(), set(), set(), []
        self.kind = "other"
        self.ws = 1
        self.passes = 0
        self.dpp = self.perm = self.lds_dma = False
        self.wide_store_data = set()
        self.auto = False
        t = text.split(";")[0].strip()
        self.mn, self.ops, self.mods = "", [], ""
        if not t:
            self.kind, self.ws = "empty", 0
            return
        if t.endswith(":"):
            self.kind, self.ws, self.label = "label", 0, t[:-1]
            return
        if t.startswith("."):
            self.kind, self.ws = "directive", 0
            return
        parts = t.split(None, 1)
        mn = parts[0]
        rest = parts[1] if len(parts) > 1 else ""
        ops = split_ops(rest)
        mods = ""
        if ops:
            lp = ops[-1].split(None, 1)
            if len(lp) > 1 and not ops[-1].startswith("hwreg"):
                ops[-1] = lp[0]
                mods = lp[1]
        self.mn, self.ops, self.mods = mn, ops, mods
        R = lambda i: regs_of(ops[i]) if i < len(ops) else []
        if mn == "s_nop":
            self.kind, self.ws = "nop", int(ops[0], 0) + 1
        elif mn in ("s_branch",) or mn.startswith("s_cbranch"):
            self.kind, self.target = "branch", ops[0]
            if "vcc" in mn:
                self.src |= {"vcc_lo", "vcc_hi"}
        elif mn == "s_endpgm":
            self.kind = "end"
        elif mn == "s_call_b64":
            self.kind, self.target = "branch", ops[1]
            self.mn = "s_branch"
        elif mn == "s_setpc_b64":
            self.kind = "branch"
            self.mn = "s_branch"
            self.target = text.split("ret=")[1].strip().split(",")
        elif mn in ("s_waitcnt", "s_barrier", "s_sleep", "s_setprio"):
            self.kind = "ctl"
        elif mn.startswith("s_load") or mn.startswith("s_memtime") or mn.startswith("s_memrealtime") or mn.startswith("s_buffer_load"):
            self.kind = "smem"
            self.dst |= set(R(0))
            for i in range(1, len(ops)):
                self.src |= set(R(i))
        elif mn.startswith("s_cmp") or mn.startswith("s_bitcmp"):
            self.kind = "salu"
            for i in range(len(ops)):
                self.src |= set(R(i))
        elif mn.startswith("s_"):
            self.kind = "salu"
            self.dst |= set(R(0))
            for i in range(1, len(ops)):
                self.src |= set(R(i))
            if "saveexec" in mn:
                self.dst |= {"exec_lo", "exec_hi"}
        elif mn.startswith("v_mfma"):
            self.kind = "mfma"
            self.passes = 8 if "32x32x16" in mn else (4 if "16x16x32" in mn else None)
            assert self.passes, mn
            self.dst |= set(R(0))
            self.srcA = set(R(1)) | set(R(2))
            self.srcC = R(3)
            self.src = self.srcA | set(self.srcC)
        elif mn.startswith("v_"):
            base = mn.replace("_e32", "").replace("_e64", "").replace("_dpp", "")
            self.kind = "trans" if base in TRANS else "valu"
            if base.startswith("v_dot2"):
                self.kind = "dot"
            self.dpp = mn.endswith("_dpp") or "row_" in mods or "quad_perm" in mods
            if base.startswith("v_permlane"):
                self.perm = True
                self.dst |= set(R(0)) | set(R(1))
                self.src |= set(R(0)) | set(R(1))
            elif base.startswith("v_cmp"):
                self.dst |= set(R(0))
                for i in range(1, len(ops)):
                    self.src |= set(R(i))
            else:
                self.dst |= set(R(0))
                st = 1
                if base in ("v_add_co_u32", "v_sub_co_u32", "v_addc_co_u32", "v_subb_co_u32"):
                    self.dst |= set(R(1))
                    st = 2
                for i in range(st, len(ops)):
                    self.src |= set(R(i))
                if base in ("v_fmac_f32", "v_dot2c_f32_bf16") or self.dpp:
                    self.src |= set(R(0))
        elif mn.startswith("buffer_") or mn.startswith("global_"):
            self.kind = "vmem"
            is_lds = " lds" in (" " + mods) or "_lds_" in mn
            self.lds_dma = is_lds
            if mn in ("buffer_wbl2", "buffer_inv"):
                pass
            elif "load" in mn:
                st = 0 if is_lds else 1
                if not is_lds:
                    self.dst |= set(R(0))
                for i in range(st, len(ops)):
                    self.src |= set(R(i))
                if is_lds:
                    self.src.add("m0")
            else:
                for i in range(len(ops)):
                    self.src |= set(R(i))
                di = 0 if mn.startswith("buffer_") else 1
                if "x4" in mn or "x3" in mn:
                    self.wide_store_data = set(R(di))
                if "atomic" in mn and "sc0" in mods:
                    self.dst |= set(R(0))
        elif mn.startswith("ds_"):
            self.kind = "ds"
            if "read" in mn or "permute" in mn or "swizzle" in mn or "rtn" in mn:
                self.dst |= set(R(0))
                for i in range(1, len(ops)):
                    self.src |= set(R(i))
            else:
                for i in range(len(ops)):
                    self.src |= set(R(i))
        else:
            raise ValueError("unknown instruction: " + text)

    def is_valu(self):
        return self.kind in ("valu", "trans", "dot")


def _sg(rs):
    return {r for r in rs if r[0] == "s" or r.startswith("vcc")}


def required(p, c):
    n = 0
    pv, cv = p.is_valu(), c.is_valu()
    if pv:
        w = p.dst
        vw = {r for r in w if r[0] in "va" and not r.startswith("vcc")}
        sw = _sg(w)
        if c.kind == "mfma" and vw & c.src:
            n = max(n, 2)
        if p.kind == "trans" and (vw & c.src) and c.kind != "trans":
            n = max(n, 1)
        if cv and c.dpp and vw & c.src:
            n = max(n, 2)
        if cv and c.perm and vw & c.src:
            n = max(n, 2)
        if c.mn.startswith("v_readfirstlane") or c.mn.startswith("v_readlane"):
            if vw & c.src:
                n = max(n, 1)
            if sw & c.src:
                n = max(n, 4)
        if sw:
            if cv and sw & c.src:
                n = max(n, 2)
            if c.kind == "vmem" and sw & c.src:
                n = max(n, 5)
            if c.kind in ("salu", "smem", "branch") and sw & c.src:
                n = max(n, 2)
        if p.kind == "dot":
            if c.kind == "dot" and c.mn == p.mn:
                ab = set()
                for o in c.ops[1:3]:
                    ab |= set(regs_of(o))
                if vw & ab:
                    n = max(n, 3)
            elif vw & (c.src | c.dst):
                n = max(n, 3)
    if p.kind == "mfma":
        big = p.passes == 8
        D = p.dst
        if c.kind == "mfma":
            if D & c.srcA:
                n = max(n, 12 if big else 8)
            if D & set(c.srcC):
                if not (set(c.srcC) == D and c.mn == p.mn):
                    n = max(n, 10 if big else 6)
        elif cv:
            if D & (c.src | c.dst):
                n = max(n, 12 if big else 8)
            if set(p.srcC) & c.dst:
                n = max(n, 7 if big else 3)
        elif c.kind in ("vmem", "ds"):
            if D & (c.src | c.dst):
                n = max(n, 12 if big else 8)
            if set(p.srcC) & c.dst:
                n = max(n, 7 if big else 3)
    if p.kind == "salu" and "m0" in p.dst and c.lds_dma:
        n = max(n, 1)
    if p.wide_store_data and (p.wide_store_data & c.dst):
        n = max(n, 2 if cv else 1)
    return n


MAXLOOK = 12


def fix_hazards(lines, report=None):
    ins = [Ins(l) for l in lines]
    changed = True
    total = 0
    while changed:
        changed = False
        labels = {x.label: i for i, x in enumerate(ins) if x.kind == "label"}
        branch_to = {}
        for i, x in enumerate(ins):
            if x.kind == "branch":
                branch_to.setdefault(labels[x.target], []).append(i)

        def preds(i):
            out = []
            if i > 0:
                q = ins[i - 1]
                if not (q.mn == "s_branch" or q.kind == "end"):
                    out.append(i - 1)
            if ins[i].kind == "label":
                out += branch_to.get(i, [])
            return out

        for i, c in enumerate(ins):
            if c.ws == 0 or c.kind in ("nop", "ctl", "end"):
                continue
            need = 0
            stack = [(j, 0) for j in preds(i)]
            seen = set()
            while stack:
                j, dist = stack.pop()
                if (j, dist) in seen:
                    continue
                seen.add((j, dist))
                p = ins[j]
                if p.ws:
                    r = required(p, c)
                    if r - dist > need:
                        need = r - dist
                        why = p.text
                nd = dist + p.ws
                if nd < MAXLOOK:
                    for k in preds(j):
                        stack.append((k, nd))
            if need > 0:
                n = Ins("  s_nop %d" % (need - 1))
                n.auto = True
                n.text += "   ; auto-hazard"
                ins.insert(i, n)
                total += need
                if report is not None:
                    report.append((need, why.strip(), c.text.strip()))
                changed = True
                break
    return [x.text for x in ins], total


def fix_hazards_fast(lines, report=None):
    ins = [Ins(l) for l in lines]
    total = 0
    while True:
        labels = {x.label: i for i, x in enumerate(ins) if x.kind == "label"}
        branch_to = {}
        for i, x in enumerate(ins):
            if x.kind == "branch":
                for tg in (x.target if isinstance(x.target, list) else [x.target]):
                    branch_to.setdefault(labels[tg], []).append(i)
        extra = {}

        def preds(i):
            out = []
            if i > 0:
                q = ins[i - 1]
                if not (q.mn == "s_branch" or q.kind == "end"):
                    out.append(i - 1)
            if ins[i].kind == "label":
                out += branch_to.get(i, [])
            return out

        for i, c in enumerate(ins):
            if c.ws == 0 or c.kind in ("nop", "ctl", "end"):
                continue
            need, why = 0, None
            stack = [(j, 0) for j in preds(i)]
            seen = set()
            while stack:
                j, dist = stack.pop()
                if (j, dist) in seen:
                    continue
                seen.add((j, dist))
                p = ins[j]
                if p.ws:
                    r = required(p, c)
                    if r - dist > need:
                        need, why = r - dist, p.text
                nd = dist + p.ws + extra.get(j, 0)
                if nd < MAXLOOK:
                    for k in preds(j):
                        stack.append((k, nd))
            if need > 0:
                extra[i] = need
                total += need
                if report is not None:
                    report.append((need, why.strip(), c.text.strip()))
        if not extra:
            break
        new = []
        for i, x in enumerate(ins):
            if i in extra:
                n = Ins("  s_nop %d   ; auto-hazard" % (extra[i] - 1))
                new.append(n)
            new.append(x)
        ins = new
    return [x.text for x in ins], total


class Asm:
    def __init__(self):
        self.lines = []
        self.vm_issued = 0
        self.lg_issued = 0
        self._lab = 0

    def __call__(self, text):
        for l in text.split("\n"):
            l = l.strip()
            if not l:
                continue
            if l.endswith(":") or l.startswith("."):
                self.lines.append(l)
            else:
                self.lines.append("  " + l)
            mn = l.split()[0]
            if (mn.startswith("buffer_") or mn.startswith("global_")) and "load" in mn:
                self.vm_issued += 1
            elif mn.startswith("ds_"):
                self.lg_issued += 1

    def c(self, text):
        self.lines.append("  ; " + text)

    def newlabel(self, base="L"):
        self._lab += 1
        return "%s_%d" % (base, self._lab)

    def vt(self):
        return self.vm_issued

    def lt(self):
        return self.lg_issued

    def wait_vm(self, ticket):
        n = self.vm_issued - ticket
        assert 0 <= n, n
        self("s_waitcnt vmcnt(%d)" % min(n, 63))

    def wait_lg(self, ticket):
        n = self.lg_issued - ticket
        assert 0 <= n
        self("s_waitcnt lgkmcnt(%d)" % min(n, 15))


def vr(b, n=1):
    return "v%d" % b if n == 1 else "v[%d:%d]" % (b, b + n - 1)


def ar(b, n=1):
    return "a%d" % b if n == 1 else "a[%d:%d]" % (b, b + n - 1)


def sr(b, n=1):
    return "s%d" % b if n == 1 else "s[%d:%d]" % (b, b + n - 1)


def rr(spec, off=0, n=1):
    f, b = spec
    return (vr if f == "v" else ar)(b + off, n)
```

```python
import struct, sys
from asmlib import *
from layout import *

NAME = "interleave_layers__grouped_kv_mqa__glu_gated_swiglu__prompt"


def f2u(x):
    return struct.unpack("<I", struct.pack("<f", x))[0]


def fl(x):
    return "0x%08x" % f2u(x)


MF = "v_mfma_f32_32x32x16_bf16"

S_LAYER = 3
SRD_WS = 4
SRD_AUX = 8
S_W = 12
S_RB, S_HQ, S_RG, S_M = 13, 14, 15, 16
V_TID, V_L16, V_LANE, V_R31, V_H = 0, 1, 2, 3, 4
V_OFF = [1, 5, 6, 7, 8, 9, 10]
V_FIRST = 12


def blk(a, dst, sbase, i, sc=""):
    a("buffer_load_dwordx4 %s, v%d, s[4:7], s%d offen offset:%d %s" % (dst, V_OFF[i // 4], sbase, (i % 4) * 1024, sc))


OFF_STAMP = 0x2600000
NSTAMP = 14


def stamp(a, cfg, i):
    if not cfg.get("stamps"):
        return
    a("s_memtime s[62:63]")
    a("s_waitcnt lgkmcnt(0)")
    a("s_mov_b32 s%d, s62" % (64 + i))


def stamp_init(a, cfg):
    if not cfg.get("stamps"):
        return
    for i in range(NSTAMP):
        a("s_mov_b32 s%d, 0" % (64 + i))
    a("s_memrealtime s[62:63]")
    a("s_waitcnt lgkmcnt(0)")
    a("s_mov_b32 s78, s62")
    stamp(a, cfg, 0)


def stamp_flush(a, cfg, idx_expr):
    if not cfg.get("stamps"):
        return
    a("s_waitcnt vmcnt(0)")
    stamp(a, cfg, NSTAMP - 1)
    a("s_memrealtime s[62:63]")
    a("s_waitcnt lgkmcnt(0)")
    a("s_mov_b32 s79, s62")
    a(idx_expr)
    a("s_lshl_b32 s60, s60, 16")
    a("s_lshl_b32 s61, s2, 8")
    a("s_add_u32 s60, s60, s61")
    a("s_lshl_b32 s61, s12, 6")
    a("s_add_u32 s60, s60, s61")
    a("s_add_u32 s60, s60, 0x%x" % OFF_STAMP)
    a("v_mov_b32 v12, 0")
    for i in range(16):
        a("v_mov_b32 v13, s%d" % (64 + i))
        a("buffer_store_dword v13, v12, s[4:7], s60 offen offset:%d" % (4 * i))


def common_prologue(a, need_out=False):
    a("s_cmp_ge_u32 s2, 256")
    a("s_cbranch_scc1 L_exit")
    a("s_load_dwordx2 s[4:5], s[0:1], 88")
    if need_out:
        a("s_load_dwordx2 s[8:9], s[0:1], 72")
    a("v_and_b32 v%d, 63, v0" % V_LANE)
    a("v_lshrrev_b32 v%d, 6, v0" % V_H)
    a("v_lshlrev_b32 v%d, 4, v%d" % (V_L16, V_LANE))
    a("v_readfirstlane_b32 s%d, v%d" % (S_W, V_H))
    a("v_and_b32 v%d, 31, v0" % V_R31)
    a("v_lshrrev_b32 v%d, 5, v%d" % (V_H, V_LANE))
    for j in range(1, 7):
        a("v_add_u32 v%d, %d, v%d" % (V_OFF[j], 4096 * j, V_L16))
    a("s_and_b32 s17, s2, 7")
    a("s_lshr_b32 s18, s2, 3")
    a("s_lshl_b32 s%d, s17, 1" % S_RG)
    a("s_lshr_b32 s19, s18, 4")
    a("s_add_u32 s%d, s%d, s19" % (S_RG, S_RG))
    a("s_and_b32 s%d, s18, 15" % S_M)
    a("s_and_b32 s%d, s18, 7" % S_HQ)
    a("s_lshl_b32 s%d, s17, 2" % S_RB)
    a("s_lshr_b32 s19, s18, 3")
    a("s_add_u32 s%d, s%d, s19" % (S_RB, S_RB))
    a("s_mov_b32 s6, 0x%x" % (WS_USED + 0x200000))
    a("s_mov_b32 s7, 0x00020000")
    if need_out:
        a("s_mov_b32 s10, %d" % (2048 * 512 * 2))
        a("s_mov_b32 s11, 0x00020000")
    a("s_waitcnt lgkmcnt(0)")


def xhalf_sum(a, v, tmp):
    a("v_mov_b32 v%d, v%d" % (tmp, v))
    a("v_permlane32_swap_b32 v%d, v%d" % (v, tmp))
    a("v_add_f32 v%d, v%d, v%d" % (v, v, tmp))


def load_stats(a, st, s_off, vtmp, sc=""):
    a("v_lshlrev_b32 v%d, 3, v%d" % (vtmp, V_R31))
    a("v_lshl_add_u32 v%d, v%d, 11, v%d" % (vtmp, V_H, vtmp))
    for q in range(8):
        a("buffer_load_dwordx2 v[%d:%d], v%d, s[4:7], s%d offen offset:%d %s" % (st + 2 * q, st + 2 * q + 1, vtmp, s_off, 256 * q, sc))


def finish_stats(a, st, nmu, rstd):
    for q in (4, 2, 1):
        for i in range(q):
            a("v_add_f32 v%d, v%d, v%d" % (st + 2 * i, st + 2 * i, st + 2 * (i + q)))
            a("v_add_f32 v%d, v%d, v%d" % (st + 2 * i + 1, st + 2 * i + 1, st + 2 * (i + q) + 1))
    a("v_mov_b32 v%d, v%d" % (st + 2, st))
    a("v_mov_b32 v%d, v%d" % (st + 3, st + 1))
    a("v_permlane32_swap_b32 v%d, v%d" % (st, st + 2))
    a("v_permlane32_swap_b32 v%d, v%d" % (st + 1, st + 3))
    a("v_add_f32 v%d, v%d, v%d" % (st, st, st + 2))
    a("v_add_f32 v%d, v%d, v%d" % (st + 1, st + 1, st + 3))
    a("v_mul_f32 v%d, %s, v%d" % (nmu, fl(-1.0 / 512), st))
    a("v_mul_f32 v%d, %s, v%d" % (st + 1, fl(1.0 / 512), st + 1))
    a("v_fma_f32 v%d, -v%d, v%d, v%d" % (st + 1, nmu, nmu, st + 1))
    a("v_max_f32 v%d, 0, v%d" % (st + 1, st + 1))
    a("v_add_f32 v%d, %s, v%d" % (st + 1, fl(1e-5), st + 1))
    a("v_rsq_f32 v%d, v%d" % (rstd, st + 1))


def split3(a, x, d):
    a("v_cvt_pk_bf16_f32 v%d, v%d, v%d" % (d, x, x))
    a("v_and_b32 v%d, 0xffff0000, v%d" % (d, d))
    a("v_sub_f32 v%d, v%d, v%d" % (d + 3, x, d))
    a("v_cvt_pk_bf16_f32 v%d, v%d, v%d" % (d + 1, d + 3, d + 3))
    a("v_and_b32 v%d, 0xffff0000, v%d" % (d + 1, d + 1))
    a("v_sub_f32 v%d, v%d, v%d" % (d + 3, d + 3, d + 1))
    a("v_cvt_pk_bf16_f32 v%d, v%d, v%d" % (d + 2, d + 3, d + 3))
    a("v_and_b32 v%d, 0xffff0000, v%d" % (d + 2, d + 2))


def pack8(a, dst, src):
    for i in range(4):
        a("v_cvt_pk_bf16_f32 v%d, v%d, v%d" % (dst + i, src + 2 * i, src + 2 * i + 1))


def prep(a, cfg):
    a("s_cmp_ge_u32 s2, 256")
    a("s_cbranch_scc1 L_exit")
    stamp_init(a, cfg)
    a("s_load_dwordx16 s[16:31], s[0:1], 0")
    a("s_load_dwordx2 s[32:33], s[0:1], 64")
    a("s_load_dwordx2 s[4:5], s[0:1], 88")
    a("v_and_b32 v2, 63, v0")
    a("v_lshrrev_b32 v4, 6, v0")
    a("v_lshlrev_b32 v1, 4, v2")
    a("v_readfirstlane_b32 s12, v4")
    a("v_and_b32 v3, 31, v0")
    a("v_lshrrev_b32 v4, 5, v2")
    a("s_mov_b32 s6, 0x%x" % (WS_USED + 0x200000))
    a("s_mov_b32 s7, 0x00020000")
    a("s_mov_b32 s11, 0x00020000")
    a("s_mov_b32 s39, 0x00020000")
    a("s_and_b32 s13, s2, 7")
    a("s_lshl_b32 s13, s13, 3")
    a("s_bfe_u32 s14, s2, 0x30003")
    a("s_add_u32 s13, s13, s14")
    a("s_lshr_b32 s14, s2, 6")
    a("s_lshl_b32 s14, s14, 2")
    a("s_add_u32 s14, s14, s12")
    a("s_lshl_b32 s15, s13, 15")
    a("s_lshl_b32 s40, s14, 6")
    a("s_add_u32 s15, s15, s40")
    a("v_lshlrev_b32 v5, 10, v3")
    a("v_lshl_add_u32 v5, v4, 4, v5")
    a("s_waitcnt lgkmcnt(0)")
    a("s_mov_b32 s8, s16")
    a("s_mov_b32 s9, s17")
    a("s_mov_b32 s10, %d" % (2048 * 512 * 2))
    a("buffer_load_dwordx4 v[8:11], v5, s[8:11], s15 offen")
    a("buffer_load_dwordx4 v[12:15], v5, s[8:11], s15 offen offset:32")
    t_x = a.vt()
    stamp(a, cfg, 1)
    a("s_mov_b32 s45, 8")
    a("s_mov_b32 s44, 0")
    a("s_lshr_b32 s46, s12, 1")
    a("s_cmp_lt_u32 s2, 16")
    a("s_cbranch_scc1 L_p_wq")
    a("s_cmp_eq_u32 s2, 16")
    a("s_cbranch_scc1 L_p_wkv")
    a("s_cmp_lt_u32 s2, 33")
    a("s_cbranch_scc1 L_p_wo")
    a("s_cmp_lt_u32 s2, 145")
    a("s_cbranch_scc1 L_p_w13")
    a("s_cmp_lt_u32 s2, 209")
    a("s_cbranch_scc1 L_p_w2")
    a("s_mov_b32 s45, 0")
    a("s_branch L_p_xpart")
    a("L_p_wq:")
    a("s_mov_b32 s36, s18\ns_mov_b32 s37, s19\ns_mov_b32 s38, %d" % (512 * 512 * 2))
    a("s_mov_b32 s41, 1024")
    a("s_lshl_b32 s42, s2, 6\ns_lshl_b32 s47, s46, 5\ns_add_u32 s42, s42, s47")
    a("s_lshl_b32 s43, s2, 15\ns_add_u32 s43, s43, 0x%x" % OFF_WQ)
    a("s_lshl_b32 s44, s2, 7\ns_add_u32 s44, s44, 0x%x" % OFF_CSQ)
    a("s_branch L_p_go")
    a("L_p_wkv:")
    a("s_cmp_eq_u32 s46, 0")
    a("s_cselect_b32 s36, s22, s20\ns_cselect_b32 s37, s23, s21\ns_mov_b32 s38, %d" % (512 * 16 * 2))
    a("s_mov_b32 s41, 32\ns_mov_b32 s42, 0\ns_mov_b32 s43, 0x%x\ns_mov_b32 s44, 0x%x" % (OFF_WKV, OFF_CSKV))
    a("s_branch L_p_go")
    a("L_p_wo:")
    a("s_mov_b32 s36, s24\ns_mov_b32 s37, s25\ns_mov_b32 s38, %d" % (512 * 512 * 2))
    a("s_mov_b32 s41, 1024\ns_sub_u32 s48, s2, 17")
    a("s_lshl_b32 s42, s48, 6\ns_lshl_b32 s47, s46, 5\ns_add_u32 s42, s42, s47")
    a("s_lshl_b32 s43, s48, 15\ns_add_u32 s43, s43, 0x%x" % OFF_WO)
    a("s_branch L_p_go")
    a("L_p_w13:")
    a("s_cmp_eq_u32 s46, 0")
    a("s_cselect_b32 s36, s28, s30\ns_cselect_b32 s37, s29, s31\ns_mov_b32 s38, %d" % (512 * 1792 * 2))
    a("s_mov_b32 s41, 3584\ns_sub_u32 s48, s2, 33")
    a("s_lshl_b32 s42, s48, 5")
    a("s_lshl_b32 s43, s48, 15\ns_add_u32 s43, s43, 0x%x" % OFF_W13)
    a("s_lshl_b32 s44, s48, 7\ns_add_u32 s44, s44, 0x%x" % OFF_CS13)
    a("s_branch L_p_go")
    a("L_p_w2:")
    a("s_mov_b32 s36, s32\ns_mov_b32 s37, s33\ns_mov_b32 s38, %d" % (1792 * 512 * 2))
    a("s_mov_b32 s41, 1024\ns_sub_u32 s48, s2, 145")
    a("s_lshr_b32 s49, s48, 2\ns_and_b32 s48, s48, 3")
    a("s_mul_i32 s42, s48, %d" % (448 * 1024))
    a("s_lshl_b32 s47, s49, 6\ns_add_u32 s42, s42, s47\ns_lshl_b32 s47, s46, 5\ns_add_u32 s42, s42, s47")
    a("s_mul_i32 s43, s49, %d\ns_mul_i32 s47, s48, %d\ns_add_u32 s43, s43, s47\ns_add_u32 s43, s43, 0x%x" % (112 * 1024, 28 * 1024, OFF_W2))
    a("s_mov_b32 s45, 7")
    a("L_p_go:")
    a("v_and_b32 v6, 127, v0")
    a("v_lshrrev_b32 v7, 1, v6")
    a("v_and_b32 v6, 1, v6")
    a("v_mul_lo_u32 v16, v7, s41")
    a("v_lshl_add_u32 v16, v6, 4, v16")
    a("v_lshlrev_b32 v17, 6, v7")
    a("v_lshl_add_u32 v17, v6, 4, v17")
    a("s_lshl_b32 s47, s46, 5")
    a("v_add_u32 v17, s47, v17")
    a("s_lshl_b32 s47, s41, 6")
    for p in range(8):
        a("buffer_load_dwordx4 v[%d:%d], v16, s[36:39], s42 offen" % (20 + 4 * p, 23 + 4 * p))
        if p < 7:
            a("s_add_u32 s42, s42, s47")
    stamp(a, cfg, 2)
    for p in range(8):
        a("s_waitcnt vmcnt(%d)" % (7 - p))
        a("ds_write_b128 v17, v[%d:%d] offset:%d" % (20 + 4 * p, 23 + 4 * p, 4096 * p))
    a("v_and_b32 v6, 15, v2")
    a("v_lshrrev_b32 v7, 2, v6")
    a("v_and_b32 v6, 3, v6")
    a("v_lshlrev_b32 v18, 8, v4")
    a("v_lshl_add_u32 v18, v7, 6, v18")
    a("v_lshl_add_u32 v18, v6, 3, v18")
    a("v_bfe_u32 v6, v2, 4, 1")
    a("v_lshl_add_u32 v18, v6, 5, v18")
    a("s_mul_i32 s47, s12, s45")
    a("s_lshl_b32 s47, s47, 10")
    a("v_add_u32 v18, s47, v18")
    a("s_add_u32 s43, s43, s47")
    a("v_add_u32 v19, 4096, v1")
    a("s_waitcnt lgkmcnt(0)")
    stamp(a, cfg, 3)
    a("s_barrier")
    stamp(a, cfg, 4)
    for i in range(8):
        a("ds_read_b64_tr_b16 v[%d:%d], v18 offset:%d" % (20 + 4 * i, 21 + 4 * i, 1024 * i))
        a("ds_read_b64_tr_b16 v[%d:%d], v18 offset:%d" % (22 + 4 * i, 23 + 4 * i, 1024 * i + 512))
    a("v_mov_b32 v52, 0x3f803f80")
    a("v_mov_b32 v53, 0")
    for i in range(8):
        a("s_waitcnt lgkmcnt(%d)" % min(15, 14 - 2 * i))
        if i == 7:
            a("s_cmp_eq_u32 s45, 7")
            a("s_cbranch_scc1 L_p_skip7")
        a("buffer_store_dwordx4 v[%d:%d], v%d, s[4:7], s43 offen offset:%d" % (20 + 4 * i, 23 + 4 * i, 1 if i < 4 else 19, (i % 4) * 1024))
        for r in range(4):
            a("v_dot2_f32_bf16 v53, v%d, v52, v53" % (20 + 4 * i + r))
    a("L_p_skip7:")
    stamp(a, cfg, 5)
    a("s_cmp_eq_u32 s44, 0")
    a("s_cbranch_scc1 L_p_xpart")
    a("v_lshlrev_b32 v6, 2, v0")
    a("ds_write_b32 v6, v53 offset:32768")
    a("s_waitcnt lgkmcnt(0)")
    a("s_barrier")
    a("s_cmp_lg_u32 s12, 0")
    a("s_cbranch_scc1 L_p_xpart")
    a("v_lshlrev_b32 v6, 2, v3")
    for w in range(4):
        a("ds_read2_b32 v[%d:%d], v6 offset0:%d offset1:%d" % (56 + 2 * w, 57 + 2 * w, 0, 32) if False else
          "ds_read_b32 v%d, v6 offset:%d\nds_read_b32 v%d, v6 offset:%d" % (56 + 2 * w, 32768 + 256 * w, 57 + 2 * w, 32768 + 256 * w + 128))
    a("s_waitcnt lgkmcnt(0)")
    for q in (4, 2, 1):
        for i in range(q):
            a("v_add_f32 v%d, v%d, v%d" % (56 + i, 56 + i, 56 + i + q))
    a("buffer_store_dword v56, v6, s[4:7], s44 offen")
    a("s_cmp_lt_u32 s2, 33")
    a("s_cbranch_scc1 L_p_xpart")
    split3(a, 56, 60)
    a("v_lshrrev_b32 v57, 16, v60")
    a("v_or_b32 v20, v57, v60")
    a("v_lshrrev_b32 v58, 16, v61")
    a("v_or_b32 v21, v58, v60")
    a("v_lshrrev_b32 v58, 16, v62")
    a("v_or_b32 v22, v58, v61")
    a("v_mov_b32 v23, 0")
    a("v_cmp_gt_u32 vcc, 32, v2")
    a("v_cndmask_b32 v20, v23, v20, vcc")
    a("v_cndmask_b32 v21, v23, v21, vcc")
    a("v_cndmask_b32 v22, v23, v22, vcc")
    a("s_sub_u32 s48, s2, 33")
    a("s_lshl_b32 s48, s48, 10")
    a("s_add_u32 s48, s48, 0x%x" % OFF_CSX)
    a("buffer_store_dwordx4 v[20:23], v1, s[4:7], s48 offen")
    a("L_p_xpart:")
    stamp(a, cfg, 6)
    a("s_waitcnt vmcnt(0)")
    stamp(a, cfg, 7)
    a("v_permlane32_swap_b32 v8, v10")
    a("v_permlane32_swap_b32 v9, v11")
    a("v_permlane32_swap_b32 v12, v14")
    a("v_permlane32_swap_b32 v13, v15")
    a("s_lshl_b32 s15, s13, 15")
    a("s_lshl_b32 s40, s14, 11")
    a("s_add_u32 s15, s15, s40")
    a("s_add_u32 s15, s15, 0x%x" % OFF_X)
    a("buffer_store_dwordx4 v[8:11], v1, s[4:7], s15 offen")
    a("buffer_store_dwordx4 v[12:15], v1, s[4:7], s15 offen offset:1024")
    a("v_mov_b32 v52, 0x3f803f80")
    a("v_mov_b32 v54, 0")
    a("v_mov_b32 v55, 0")
    for r in range(8, 16):
        a("v_dot2_f32_bf16 v54, v%d, v52, v54" % r)
        a("v_dot2_f32_bf16 v55, v%d, v%d, v55" % (r, r))
    a("v_mov_b32 v56, v54")
    a("v_mov_b32 v57, v55")
    a("v_permlane32_swap_b32 v54, v56")
    a("v_permlane32_swap_b32 v55, v57")
    a("v_add_f32 v54, v54, v56")
    a("v_add_f32 v55, v55, v57")
    a("s_lshl_b32 s15, s13, 12")
    a("s_lshl_b32 s40, s14, 8")
    a("s_add_u32 s15, s15, s40")
    a("s_add_u32 s15, s15, 0x%x" % OFF_STAT)
    a("v_lshlrev_b32 v6, 3, v3")
    a("buffer_store_dwordx2 v[54:55], v6, s[4:7], s15 offen")
    a("v_mov_b32 v58, 0")
    a("s_lshl_b32 s15, s2, 8")
    a("s_add_u32 s15, s15, 0x%x" % OFF_FLAGS)
    a("v_lshlrev_b32 v6, 2, v2")
    a("buffer_store_dword v58, v6, s[4:7], s15 offen")
    stamp(a, cfg, 8)
    stamp_flush(a, cfg, "s_mov_b32 s60, 0")
    if cfg.get("code_prefetch"):
        a("s_getpc_b64 s[50:51]")
        a("L_p_pc:")
        a("s_add_u32 s50, s50, L_code_begin-L_p_pc")
        a("s_addc_u32 s51, s51, 0")
        a("s_lshr_b32 s52, s2, 3")
        a("s_lshl_b32 s52, s52, 11")
        a("v_lshlrev_b32 v6, 3, v0")
        a("v_add_u32 v6, s52, v6")
        a("v_cmp_gt_u32 vcc, L_code_end-L_code_begin-8, v6")
        a("s_and_saveexec_b64 s[54:55], vcc")
        a("s_cbranch_execz L_exit")
        a("global_load_dwordx2 v[60:61], v6, s[50:51]")
        a("s_waitcnt vmcnt(0)")


G_ACC = 16
G_ST = 80
G_CS = 96
G_T = 112
G_RED = 128
G_KVACC = 176
G_Q = 208
V_NMU, V_RSTD = 218, 219
V_WR = [220, 221, 222]
V_RD = 223


def gemm64_addr(a, s_a0, s_a1, s_b0, s_b1, offA, ksA, offB_sreg, ksB, ksw):
    a("s_lshr_b32 s17, s%d, 1" % S_W)
    a("s_and_b32 s18, s%d, 1" % S_W)
    a("s_lshl_b32 s19, s%d, 1" % S_HQ)
    a("s_add_u32 s19, s19, s17")
    a("s_mul_i32 s20, s%d, %d" % (S_W, ksw * 1024))
    a("s_mul_i32 s%d, s19, %d" % (s_a0, ksA * 1024))
    a("s_add_u32 s%d, s%d, s20" % (s_a0, s_a0))
    a("s_add_u32 s%d, s%d, 0x%x" % (s_a0, s_a0, offA))
    a("s_xor_b32 s21, s19, 1")
    a("s_mul_i32 s%d, s21, %d" % (s_a1, ksA * 1024))
    a("s_add_u32 s%d, s%d, s20" % (s_a1, s_a1))
    a("s_add_u32 s%d, s%d, 0x%x" % (s_a1, s_a1, offA))
    a("s_lshl_b32 s22, s%d, 1" % S_RB)
    a("s_add_u32 s22, s22, s18")
    a("s_mul_i32 s%d, s22, %d" % (s_b0, ksB * 1024))
    a("s_add_u32 s%d, s%d, s20" % (s_b0, s_b0))
    a("s_add_u32 s%d, s%d, s%d" % (s_b0, s_b0, offB_sreg))
    a("s_xor_b32 s21, s22, 1")
    a("s_mul_i32 s%d, s21, %d" % (s_b1, ksB * 1024))
    a("s_add_u32 s%d, s%d, s20" % (s_b1, s_b1))
    a("s_add_u32 s%d, s%d, s%d" % (s_b1, s_b1, offB_sreg))


def reduce_addr(a, base=0):
    for j in (1, 2, 3):
        a("s_xor_b32 s17, s%d, %d" % (S_W, j))
        a("s_mul_i32 s17, s17, 12288")
        a("s_add_u32 s17, s17, %d" % (base + (j - 1) * 4096))
        a("v_add_u32 v%d, s17, v%d" % (V_WR[j - 1], V_L16))
    a("s_mul_i32 s17, s%d, 12288" % S_W)
    a("s_add_u32 s17, s17, %d" % base)
    a("v_add_u32 v%d, s17, v%d" % (V_RD, V_L16))


def reduce4(a, cfg={}):
    stamp(a, cfg, 4)
    for j in (1, 2, 3):
        for q in range(4):
            r = G_ACC + 16 * j + 4 * q
            a("ds_write_b128 v%d, v[%d:%d] offset:%d" % (V_WR[j - 1], r, r + 3, q * 1024))
    a("s_waitcnt lgkmcnt(0)")
    stamp(a, cfg, 5)
    a("s_barrier")
    stamp(a, cfg, 6)
    for j in range(3):
        for q in range(4):
            r = G_RED + 16 * j + 4 * q
            a("ds_read_b128 v[%d:%d], v%d offset:%d" % (r, r + 3, V_RD, j * 4096 + q * 1024))
    for j in range(3):
        for q in range(4):
            a("s_waitcnt lgkmcnt(%d)" % (11 - (j * 4 + q)))
            for e in range(4):
                a("v_add_f32 v%d, v%d, v%d" % (G_ACC + 4 * q + e, G_ACC + 4 * q + e, G_RED + 16 * j + 4 * q + e))


def layer_off(a, sdst, base, stride, mul=1, add=0):
    a("s_mul_i32 s%d, s%d, 0x%x" % (sdst, S_LAYER, stride * mul))
    a("s_add_u32 s%d, s%d, 0x%x" % (sdst, sdst, base + add * stride))


def phase_qkv(a, cfg):
    sc = cfg.get("sc", "")
    SA0, SA1, SB0, SB1, SX, SKV = 24, 25, 26, 27, 28, 29
    layer_off(a, SX, OFF_X, X_STRIDE, 2, 0)
    gemm64_addr(a, SA0, SA1, SB0, SB1, OFF_WQ, 32, SX, 32, 8)
    a("s_lshl_b32 s%d, s%d, 13" % (SKV, S_W))
    a("s_add_u32 s%d, s%d, 0x%x" % (SKV, SKV, OFF_WKV))
    layer_off(a, 30, OFF_STAT, STAT_STRIDE, 2, 0)
    a("s_lshl_b32 s17, s22, 12")
    a("s_add_u32 s30, s30, s17")
    a("s_mov_b32 s31, s22")
    a("s_mov_b32 s32, s19")
    tB = []
    for i in range(8):
        blk(a, ar(64 + 4 * i, 4), SB0, i, sc)
        blk(a, ar(96 + 4 * i, 4), SB1, i, sc)
        blk(a, ar(128 + 4 * i, 4), SKV, i)
        tB.append(a.vt())
    load_stats(a, G_ST, 30, G_T, sc)
    t_st = a.vt()
    tA = []
    for i in range(8):
        blk(a, ar(0 + 4 * i, 4), SA0, i)
        blk(a, ar(32 + 4 * i, 4), SA1, i)
        tA.append(a.vt())
    a("s_lshl_b32 s17, s32, 7")
    a("s_add_u32 s17, s17, 0x%x" % OFF_CSQ)
    a("v_lshlrev_b32 v%d, 4, v%d" % (G_T + 1, V_H))
    for g in range(4):
        a("buffer_load_dwordx4 v[%d:%d], v%d, s[4:7], s17 offen offset:%d" % (G_CS + 4 * g, G_CS + 4 * g + 3, G_T + 1, 32 * g))
    t_cs = a.vt()
    reduce_addr(a, 0)
    layer_off(a, 33, OFF_KV, KV_STRIDE)
    stamp(a, cfg, 1)
    a("s_cmp_ge_u32 s%d, 2" % S_HQ)
    a("s_cbranch_scc1 L_qkv_nokv")
    KVL = 49152
    a("s_and_b32 s17, s%d, 1" % S_W)
    a("s_xor_b32 s17, s17, 1")
    a("s_lshl_b32 s17, s17, 1")
    a("s_lshr_b32 s18, s%d, 1" % S_W)
    a("s_add_u32 s17, s17, s18")
    a("s_lshl_b32 s17, s17, 12")
    a("s_add_u32 s17, s17, %d" % KVL)
    a("v_add_u32 v%d, s17, v%d" % (G_T + 2, V_L16))
    a("s_lshl_b32 s17, s%d, 12" % S_W)
    a("s_add_u32 s17, s17, %d" % (KVL + 16384))
    a("v_add_u32 v%d, s17, v%d" % (G_T + 3, V_L16))
    a("s_lshl_b32 s17, s%d, 12" % S_W)
    a("s_add_u32 s17, s17, %d" % KVL)
    a("v_add_u32 v%d, s17, v%d" % (G_T + 4, V_L16))
    a("v_add_u32 v%d, s17, v%d" % (G_T + 5, V_L16))
    a("s_lshl_b32 s17, s%d, 12" % S_W)
    a("v_add_u32 v%d, s17, v%d" % (G_T + 5, G_T + 5))
    a("s_cmp_eq_u32 s%d, 1" % S_HQ)
    a("s_cbranch_scc1 L_qkv_vacc")
    for i in range(8):
        a.wait_vm(tB[i])
        for j in range(2):
            a("%s v[%d:%d], %s, %s, %s" % (MF, G_KVACC + 16 * j, G_KVACC + 16 * j + 15, ar(128 + 4 * i, 4), ar(64 + 32 * j + 4 * i, 4),
                                          "0" if i == 0 else vr(G_KVACC + 16 * j, 16)))
    a("s_branch L_qkv_kvred")
    a("L_qkv_vacc:")
    for i in range(8):
        a.wait_vm(tB[i])
        for j in range(2):
            a("%s v[%d:%d], %s, %s, %s" % (MF, G_KVACC + 16 * j, G_KVACC + 16 * j + 15, ar(64 + 32 * j + 4 * i, 4), ar(128 + 4 * i, 4),
                                          "0" if i == 0 else vr(G_KVACC + 16 * j, 16)))
    a("L_qkv_kvred:")
    for q in range(4):
        a("ds_write_b128 v%d, v[%d:%d] offset:%d" % (G_T + 2, G_KVACC + 16 + 4 * q, G_KVACC + 16 + 4 * q + 3, q * 1024))
    for q in range(4):
        a("ds_write_b128 v%d, v[%d:%d] offset:%d" % (G_T + 3, G_KVACC + 4 * q, G_KVACC + 4 * q + 3, q * 1024))
    a("s_waitcnt lgkmcnt(0)")
    a("s_barrier")
    a("s_cmp_ge_u32 s%d, 2" % S_W)
    a("s_cbranch_scc1 L_qkv_nokv")
    for q in range(4):
        a("ds_read_b128 v[%d:%d], v%d offset:%d" % (G_RED + 4 * q, G_RED + 4 * q + 3, G_T + 5, q * 1024))
        a("ds_read_b128 v[%d:%d], v%d offset:%d" % (G_RED + 16 + 4 * q, G_RED + 16 + 4 * q + 3, G_T + 5, 4096 + q * 1024))
        a("ds_read_b128 v[%d:%d], v%d offset:%d" % (G_RED + 32 + 4 * q, G_RED + 32 + 4 * q + 3, G_T + 4, 16384 + 8192 + q * 1024))
    a("s_mov_b32 s17, 0x%x" % OFF_CSKV)
    a("buffer_load_dwordx4 v[%d:%d], v%d, s[4:7], s17 offen offset:64" % (G_KVACC + 16, G_KVACC + 19, G_T + 1))
    a("buffer_load_dwordx4 v[%d:%d], v%d, s[4:7], s17 offen offset:96" % (G_KVACC + 20, G_KVACC + 23, G_T + 1))
    a("v_lshlrev_b32 v%d, 2, v%d" % (G_T + 6, V_R31))
    a("buffer_load_dword v%d, v%d, s[4:7], s17 offen" % (G_KVACC + 24, G_T + 6))
    a.wait_vm(t_st)
    finish_stats(a, G_ST, V_NMU, V_RSTD)
    a("s_waitcnt lgkmcnt(0)")
    for j in range(3):
        for e in range(16):
            a("v_add_f32 v%d, v%d, v%d" % (G_KVACC + e, G_KVACC + e, G_RED + 16 * j + e))
    a("s_waitcnt vmcnt(0)")
    a("s_lshl_b32 s17, s31, 10")
    a("s_add_u32 s34, s33, s17")
    a("s_cmp_eq_u32 s%d, 1" % S_HQ)
    a("s_cbranch_scc1 L_qkv_vfin")
    for e in range(8):
        a("v_fmac_f32 v%d, v%d, v%d" % (G_KVACC + 8 + e, V_NMU, G_KVACC + 16 + e))
        a("v_mul_f32 v%d, v%d, v%d" % (G_KVACC + 8 + e, V_RSTD, G_KVACC + 8 + e))
    pack8(a, G_T + 8, G_KVACC + 8)
    a("buffer_store_dwordx4 v[%d:%d], v%d, s[4:7], s34 offen %s" % (G_T + 8, G_T + 11, V_L16, sc))
    a("v_mov_b32 v%d, 0" % (G_T + 12))
    for r in range(4):
        a("v_dot2_f32_bf16 v%d, v%d, v%d, v%d" % (G_T + 12, G_T + 8 + r, G_T + 8 + r, G_T + 12))
    xhalf_sum(a, G_T + 12, G_T + 13)
    for d in ("row_shr:1", "row_shr:2", "row_shr:4", "row_shr:8"):
        a("v_max_f32_dpp v%d, v%d, v%d %s row_mask:0xf bank_mask:0xf" % (G_T + 12, G_T + 12, G_T + 12, d))
    a("v_max_f32_dpp v%d, v%d, v%d row_bcast:15 row_mask:0xa bank_mask:0xf" % (G_T + 12, G_T + 12, G_T + 12))
    a("v_readlane_b32 s17, v%d, 31" % (G_T + 12))
    a("s_lshl_b32 s18, s31, 2")
    a("s_add_u32 s18, s18, s33")
    a("s_add_u32 s18, s18, 0x20000")
    a("v_mov_b32 v%d, s17" % (G_T + 13))
    a("v_mov_b32 v%d, 0" % (G_T + 14))
    a("buffer_store_dword v%d, v%d, s[4:7], s18 offen %s" % (G_T + 13, G_T + 14, sc))
    a("s_branch L_qkv_kvdone")
    a("L_qkv_vfin:")
    a("s_lshl_b32 s17, s%d, 8" % S_W)
    a("s_add_u32 s17, s17, %d" % (KVL + 32768))
    a("v_add_u32 v%d, s17, v%d" % (G_T + 7, G_T + 6))
    a("v_mul_f32 v%d, v%d, v%d" % (G_T + 8, V_NMU, V_RSTD))
    a("ds_write_b32 v%d, v%d" % (G_T + 7, V_RSTD))
    a("ds_write_b32 v%d, v%d offset:128" % (G_T + 7, G_T + 8))
    a("v_add_u32 v%d, s17, v%d" % (G_T + 7, G_T + 1))
    a("s_waitcnt lgkmcnt(0)")
    for g in range(4):
        a("ds_read_b128 v[%d:%d], v%d offset:%d" % (G_RED + 4 * g, G_RED + 4 * g + 3, G_T + 7, 32 * g))
        a("ds_read_b128 v[%d:%d], v%d offset:%d" % (G_RED + 16 + 4 * g, G_RED + 16 + 4 * g + 3, G_T + 7, 128 + 32 * g))
    a("s_waitcnt lgkmcnt(0)")
    for e in range(16):
        a("v_mul_f32 v%d, v%d, v%d" % (G_KVACC + e, G_RED + e, G_KVACC + e))
        a("v_fmac_f32 v%d, v%d, v%d" % (G_KVACC + e, G_RED + 16 + e, G_KVACC + 24))
    pack8(a, G_T + 8, G_KVACC)
    pack8(a, G_T + 12, G_KVACC + 8)
    a("v_lshlrev_b32 v%d, 4, v%d" % (G_T + 7, V_R31))
    a("v_lshl_add_u32 v%d, v%d, 8, v%d" % (G_T + 7, V_H, G_T + 7))
    a("s_add_u32 s34, s34, 0x10000")
    a("v_cmp_gt_u32 vcc, 16, v%d" % V_R31)
    a("s_and_saveexec_b64 s[36:37], vcc")
    a("buffer_store_dwordx4 v[%d:%d], v%d, s[4:7], s34 offen %s" % (G_T + 8, G_T + 11, G_T + 7, sc))
    a("buffer_store_dwordx4 v[%d:%d], v%d, s[4:7], s34 offen offset:512 %s" % (G_T + 12, G_T + 15, G_T + 7, sc))
    a("s_mov_b64 exec, s[36:37]")
    a("L_qkv_kvdone:")
    a("s_mov_b32 s35, 1")
    a("s_branch L_qkv_q")
    a("L_qkv_nokv:")
    a("s_mov_b32 s35, 0")
    a("L_qkv_q:")
    stamp(a, cfg, 2)
    nq = t_cs
    for i in range(8):
        a("s_waitcnt vmcnt(%d)" % (nq - tA[i]))
        for j in range(4):
            a("%s v[%d:%d], %s, %s, %s" % (MF, G_ACC + 16 * j, G_ACC + 16 * j + 15, ar(32 * (j >> 1) + 4 * i, 4), ar(64 + 32 * (j & 1) + 4 * i, 4),
                                          "0" if i == 0 else vr(G_ACC + 16 * j, 16)))
    a("s_cmp_eq_u32 s35, 1")
    a("s_cbranch_scc1 L_qkv_hs")
    finish_stats(a, G_ST, V_NMU, V_RSTD)
    a("L_qkv_hs:")
    reduce4(a, cfg)
    stamp(a, cfg, 7)
    a("s_waitcnt vmcnt(0)")
    a("v_mul_f32 v%d, %s, v%d" % (G_T, fl(QSCALE), V_RSTD))
    for e in range(16):
        a("v_fmac_f32 v%d, v%d, v%d" % (G_ACC + e, V_NMU, G_CS + e))
        a("v_mul_f32 v%d, v%d, v%d" % (G_ACC + e, G_T, G_ACC + e))
    pack8(a, G_Q, G_ACC)
    pack8(a, G_Q + 4, G_ACC + 8)
    if cfg.get("store_q"):
        a("s_lshl_b32 s17, s31, 15")
        a("s_lshl_b32 s18, s32, 11")
        a("s_add_u32 s17, s17, s18")
        a("s_add_u32 s17, s17, 0x%x" % OFF_Q)
        a("buffer_store_dwordx4 v[%d:%d], v%d, s[4:7], s17 offen" % (G_Q, G_Q + 3, V_L16))
        a("buffer_store_dwordx4 v[%d:%d], v%d, s[4:7], s17 offen offset:1024" % (G_Q + 4, G_Q + 7, V_L16))


A_C = [16, 32]
A_O = [48, 64]
A_S = [80, 96]
A_P = [112, 116, 120, 124]
A_KF = [128, 132]
A_VF = [[136, 140], [144, 148]]
A_VK, A_VV, A_VINC = 152, 153, 154
A_T = 156
LDS_V = 65536
LDS_ONES = 131072
LDS_ATT_FLAG = LDS_ONES + 5120
UNR = 4


def phase_att(a, cfg):
    sc = cfg.get("sc", "")
    Q = [G_Q, G_Q + 4]
    layer_off(a, 33, OFF_KV, KV_STRIDE)
    a("s_lshr_b32 s17, s%d, 1" % S_W)
    a("s_and_b32 s18, s%d, 1" % S_W)
    a("s_lshl_b32 s32, s%d, 1" % S_HQ)
    a("s_add_u32 s32, s32, s17")
    a("s_lshl_b32 s31, s%d, 1" % S_RB)
    a("s_add_u32 s31, s31, s18")
    if cfg.get("load_q"):
        a("s_lshl_b32 s17, s31, 15")
        a("s_lshl_b32 s18, s32, 11")
        a("s_add_u32 s17, s17, s18")
        a("s_add_u32 s17, s17, 0x%x" % OFF_Q)
        a("buffer_load_dwordx4 v[%d:%d], v%d, s[4:7], s17 offen" % (G_Q, G_Q + 3, V_L16))
        a("buffer_load_dwordx4 v[%d:%d], v%d, s[4:7], s17 offen offset:1024" % (G_Q + 4, G_Q + 7, V_L16))
    a("v_lshlrev_b32 v%d, 2, v%d" % (A_T, V_LANE))
    a("s_add_u32 s17, s33, 0x20000")
    a("buffer_load_dword v%d, v%d, s[4:7], s17 offen %s" % (A_T + 1, A_T, sc))
    t_kn = a.vt()
    a("s_lshl_b32 s20, s%d, 10" % S_W)
    a("s_add_u32 s21, s33, s20")
    a("s_add_u32 s22, s21, 0x10000")
    a("s_add_u32 s23, s20, %d" % LDS_V)
    for g in range(16):
        a("s_add_u32 m0, s20, %d" % (g * 4096))
        a("buffer_load_dwordx4 v%d, s[4:7], s21 offen %s lds" % (V_L16, sc))
        a("s_add_u32 m0, s23, %d" % (g * 4096))
        a("buffer_load_dwordx4 v%d, s[4:7], s22 offen %s lds" % (V_L16, sc))
        if g < 15:
            a("s_add_u32 s21, s21, 4096")
            a("s_add_u32 s22, s22, 4096")
        if g == 3:
            t_g3 = a.vt()
    t_all = a.vt()
    for r in range(4):
        a("v_mov_b32 v%d, 0x3f803f80" % (A_T + 4 + r))
    a("v_lshlrev_b32 v%d, 4, v0" % (A_T + 2))
    a("ds_write_b128 v%d, v[%d:%d] offset:%d" % (A_T + 2, A_T + 4, A_T + 7, 0) if False else
      "v_add_u32 v%d, %d, v%d" % (A_T + 2, LDS_ONES, A_T + 2))
    a("ds_write_b128 v%d, v[%d:%d]" % (A_T + 2, A_T + 4, A_T + 7))
    a("ds_write_b128 v%d, v[%d:%d] offset:1024" % (A_T + 2, A_T + 4, A_T + 7))
    a("v_mov_b32 v%d, v%d" % (A_VK, V_L16))
    a("v_and_b32 v%d, 15, v%d" % (A_T + 2, V_LANE))
    a("v_lshlrev_b32 v%d, 4, v%d" % (A_T + 2, A_T + 2))
    a("v_lshl_add_u32 v%d, v%d, 8, v%d" % (A_T + 2, V_H, A_T + 2))
    a("v_add_u32 v%d, %d, v%d" % (A_VV, LDS_V, A_T + 2))
    a("v_add_u32 v%d, -20, v%d" % (A_T + 3, V_R31))
    a("v_cmp_gt_u32 vcc, 8, v%d" % (A_T + 3))
    a("v_mov_b32 v%d, %d" % (A_T + 2, LDS_ONES))
    a("v_mov_b32 v%d, %d" % (A_T + 3, LDS_ONES + 64))
    a("v_cndmask_b32 v%d, v%d, v%d, vcc" % (A_T + 2, A_T + 2, A_T + 3))
    a("v_cmp_le_u32 vcc, 16, v%d" % V_R31)
    a("v_mov_b32 v%d, %d" % (A_VINC, UNR * 1024))
    a("v_mov_b32 v%d, 0" % (A_T + 3))
    a("v_cndmask_b32 v%d, v%d, v%d, vcc" % (A_VV, A_VV, A_T + 2))
    a("v_cndmask_b32 v%d, v%d, v%d, vcc" % (A_VINC, A_VINC, A_T + 3))
    for t in range(2):
        for r in range(16):
            a("v_mov_b32 v%d, 0" % (A_O[t] + r))
    for r in range(4):
        a("v_mov_b32 v%d, 0" % (A_P[3] + r))
        a("v_mov_b32 v%d, 0" % (A_VF[1][1] + r))
    stamp(a, cfg, 1)
    a.wait_vm(t_kn)
    stamp(a, cfg, 2)
    k2 = A_T + 1
    for d in ("row_shr:1", "row_shr:2", "row_shr:4", "row_shr:8"):
        a("v_max_f32_dpp v%d, v%d, v%d %s row_mask:0xf bank_mask:0xf" % (k2, k2, k2, d))
    a("v_max_f32_dpp v%d, v%d, v%d row_bcast:15 row_mask:0xa bank_mask:0xf" % (k2, k2, k2))
    a("v_max_f32_dpp v%d, v%d, v%d row_bcast:31 row_mask:0xc bank_mask:0xf" % (k2, k2, k2))
    a("v_readlane_b32 s17, v%d, 63" % k2)
    for t in range(2):
        n = A_T + 8 + t
        a("v_mov_b32 v%d, 0" % n)
        for r in range(4):
            a("v_dot2_f32_bf16 v%d, v%d, v%d, v%d" % (n, Q[t] + r, Q[t] + r, n))
        xhalf_sum(a, n, A_T + 10)
        a("v_mul_f32 v%d, s17, v%d" % (n, n))
        a("v_sqrt_f32 v%d, v%d" % (n, n))
        a("v_mul_f32 v%d, %s, v%d" % (n, fl(-1.001), n))
        for r in range(16):
            a("v_mov_b32 v%d, v%d" % (A_C[t] + r, n))
    a("v_min_f32 v%d, v%d, v%d" % (A_T + 10, A_T + 8, A_T + 9))
    a("v_cmp_nge_f32 vcc, v%d, v%d" % (A_T + 10, A_T + 10) if False else "v_mov_b32 v%d, %s" % (A_T + 11, fl(-cfg.get("bound_t", BOUND_T))))
    a("v_cmp_nge_f32 vcc, v%d, v%d" % (A_T + 10, A_T + 11))
    a("s_cmp_lg_u64 vcc, 0")
    a("s_cselect_b32 s18, 1, 0")
    a("v_mov_b32 v%d, s18" % (A_T + 11))
    a("s_lshl_b32 s19, s%d, 2" % S_W)
    a("s_add_u32 s19, s19, %d" % LDS_ATT_FLAG)
    a("v_mov_b32 v%d, s19" % (A_T + 12))
    a("ds_write_b32 v%d, v%d" % (A_T + 12, A_T + 11))
    stamp(a, cfg, 3)
    a.wait_vm(t_g3)
    a("s_waitcnt lgkmcnt(0)")
    a("s_barrier")
    stamp(a, cfg, 4)
    a("v_mov_b32 v%d, %d" % (A_T + 12, LDS_ATT_FLAG))
    a("ds_read_b128 v[%d:%d], v%d" % (A_T + 4, A_T + 7, A_T + 12))
    a("ds_read_b128 v[%d:%d], v%d" % (A_KF[0], A_KF[0] + 3, A_VK))
    a("ds_read_b128 v[%d:%d], v%d" % (A_VF[0][0], A_VF[0][0] + 3, A_VV))
    a("ds_read_b128 v[%d:%d], v%d offset:512" % (A_VF[0][1], A_VF[0][1] + 3, A_VV))
    a("ds_read_b128 v[%d:%d], v%d offset:1024" % (A_KF[1], A_KF[1] + 3, A_VK))
    a("s_waitcnt lgkmcnt(4)")
    a("v_or_b32 v%d, v%d, v%d" % (A_T + 4, A_T + 4, A_T + 5))
    a("v_or3_b32 v%d, v%d, v%d, v%d" % (A_T + 4, A_T + 4, A_T + 6, A_T + 7))
    a("v_readfirstlane_b32 s18, v%d" % (A_T + 4))
    a("s_cmp_eq_u32 s18, 0")
    a("s_cbranch_scc1 L_att_fast")
    a("s_waitcnt vmcnt(0)")
    a("s_barrier")
    a("v_mov_b32 v%d, 0xff800000" % (A_T + 8))
    a("v_mov_b32 v%d, 0xff800000" % (A_T + 9))
    a("v_mov_b32 v%d, v%d" % (A_T + 12, V_L16))
    a("s_mov_b32 s19, 64")
    a("L_att_pre:")
    a("ds_read_b128 v[%d:%d], v%d" % (A_P[0], A_P[0] + 3, A_T + 12))
    a("v_add_u32 v%d, 1024, v%d" % (A_T + 12, A_T + 12))
    a("s_waitcnt lgkmcnt(0)")
    for t in range(2):
        a("%s v[%d:%d], v[%d:%d], v[%d:%d], 0" % (MF, A_S[t], A_S[t] + 15, A_P[0], A_P[0] + 3, Q[t], Q[t] + 3))
    for t in range(2):
        for r in range(0, 16, 2):
            a("v_max3_f32 v%d, v%d, v%d, v%d" % (A_T + 8 + t, A_S[t] + r, A_S[t] + r + 1, A_T + 8 + t))
    a("s_sub_u32 s19, s19, 1")
    a("s_cmp_lg_u32 s19, 0")
    a("s_cbranch_scc1 L_att_pre")
    for t in range(2):
        n = A_T + 8 + t
        a("v_mov_b32 v%d, v%d" % (A_T + 10, n))
        a("v_permlane32_swap_b32 v%d, v%d" % (n, A_T + 10))
        a("v_max_f32 v%d, v%d, v%d" % (n, n, A_T + 10))
        a("v_sub_f32 v%d, 0, v%d" % (n, n))
        for r in range(16):
            a("v_mov_b32 v%d, v%d" % (A_C[t] + r, n))
    a("L_att_fast:")
    a("s_waitcnt lgkmcnt(0)")

    def mf(d, x, y, c):
        a("%s v[%d:%d], v[%d:%d], v[%d:%d], v[%d:%d]" % (MF, d, d + 15, x, x + 3, y, y + 3, c, c + 15))

    def ex(r):
        a("v_exp_f32 v%d, v%d" % (r, r))

    def cv(d, s):
        a("v_cvt_pk_bf16_f32 v%d, v%d, v%d" % (d, s, s + 1))

    mf(A_S[0], A_KF[0], Q[0], A_C[0])
    a("s_mov_b32 s19, 3")
    a("s_mov_b32 s18, 0")
    a("s_nop 7")
    a(".p2align 3")
    a("L_att_loop:")
    units = [(j, t) for j in range(UNR) for t in range(2)]
    U = len(units)
    for u, (j, t) in enumerate(units):
        nj, nt = units[(u + 1) % U]
        pj, pt = units[(u - 1) % U]
        sb, nsb = A_S[u % 2], A_S[(u + 1) % 2]
        plo, phi = A_P[(u % 2) * 2], A_P[(u % 2) * 2 + 1]
        pphi = A_P[((u - 1) % 2) * 2 + 1]
        mf(nsb, A_KF[nj % 2], Q[nt], A_C[nt])
        if t == 0:
            a("ds_read_b128 v[%d:%d], v%d offset:%d" % (A_KF[j % 2], A_KF[j % 2] + 3, A_VK, (j + 2) * 1024))
        for r in range(0, 4):
            ex(sb + r)
        mf(A_O[pt], A_VF[pj % 2][1], pphi, A_O[pt])
        if t == 0:
            off = (j + 1) * 1024
            a("ds_read_b128 v[%d:%d], v%d offset:%d" % (A_VF[(j + 1) % 2][0], A_VF[(j + 1) % 2][0] + 3, A_VV, off))
            a("ds_read_b128 v[%d:%d], v%d offset:%d" % (A_VF[(j + 1) % 2][1], A_VF[(j + 1) % 2][1] + 3, A_VV, off + 512))
        for r in range(4, 9):
            ex(sb + r)
        for r in range(0, 4):
            cv(plo + r, sb + 2 * r)
        for r in range(9, 12):
            ex(sb + r)
        mf(A_O[t], A_VF[j % 2][0], plo, A_O[t])
        if t == 1:
            a("s_waitcnt lgkmcnt(0)")
        if u == U - 1:
            a("s_sub_u32 s19, s19, 1")
        for r in range(12, 16):
            ex(sb + r)
        if u == U - 1:
            a("v_add_u32 v%d, %d, v%d" % (A_VK, UNR * 1024, A_VK))
            a("v_add_u32 v%d, v%d, v%d" % (A_VV, A_VINC, A_VV))
        for r in range(4, 8):
            cv(phi + r - 4, sb + 2 * r)
    a("s_cmp_lg_u32 s19, 0")
    a("s_cbranch_scc1 L_att_loop")
    a("s_cmp_lg_u32 s18, 0")
    a("s_cbranch_scc1 L_att_done")
    a("s_mov_b32 s18, 1")
    a("s_mov_b32 s19, %d" % (64 // UNR - 3))
    stamp(a, cfg, 5)
    a("s_waitcnt vmcnt(%d)" % (a.vm_issued - t_all))
    a("s_barrier")
    stamp(a, cfg, 6)
    a("s_branch L_att_loop")
    a("L_att_done:")
    stamp(a, cfg, 7)
    lj, lt = units[-1]
    mf(A_O[lt], A_VF[lj % 2][1], A_P[((U - 1) % 2) * 2 + 1], A_O[lt])
    layer_off(a, 17, OFF_O, X_STRIDE)
    a("s_lshl_b32 s18, s31, 15")
    a("s_add_u32 s17, s17, s18")
    a("s_lshl_b32 s18, s32, 11")
    a("s_add_u32 s17, s17, s18")
    for t in range(2):
        a("v_rcp_f32 v%d, v%d" % (A_T, A_O[t] + 8))
        for r in range(8):
            a("v_mul_f32 v%d, v%d, v%d" % (A_O[t] + r, A_T, A_O[t] + r))
        pack8(a, A_P[t], A_O[t])
        a("buffer_store_dwordx4 v[%d:%d], v%d, s[4:7], s17 offen offset:%d %s" % (A_P[t], A_P[t] + 3, V_L16, t * 1024, sc))


def res_epilogue(a, cfg, xin_mul_add, xout_add, final):
    sc = cfg.get("sc", "")
    for i in range(8):
        a("v_lshlrev_b32 v%d, 16, v%d" % (G_T, G_CS + i))
        a("v_and_b32 v%d, 0xffff0000, v%d" % (G_T + 1, G_CS + i))
        a("v_add_f32 v%d, v%d, v%d" % (G_ACC + 2 * i, G_ACC + 2 * i, G_T))
        a("v_add_f32 v%d, v%d, v%d" % (G_ACC + 2 * i + 1, G_ACC + 2 * i + 1, G_T + 1))
    pack8(a, G_T + 4, G_ACC)
    pack8(a, G_T + 8, G_ACC + 8)
    if final is not None:
        a("s_cmp_eq_u32 s%d, 1" % S_LAYER)
        a("s_cbranch_scc1 %s" % final)
    layer_off(a, 17, OFF_X, X_STRIDE, 2, xout_add)
    a("s_lshl_b32 s18, s31, 15")
    a("s_add_u32 s17, s17, s18")
    a("s_lshl_b32 s18, s32, 11")
    a("s_add_u32 s17, s17, s18")
    a("buffer_store_dwordx4 v[%d:%d], v%d, s[4:7], s17 offen %s" % (G_T + 4, G_T + 7, V_L16, sc))
    a("buffer_store_dwordx4 v[%d:%d], v%d, s[4:7], s17 offen offset:1024 %s" % (G_T + 8, G_T + 11, V_L16, sc))
    a("v_mov_b32 v%d, 0x3f803f80" % G_T)
    a("v_mov_b32 v%d, 0" % (G_T + 12))
    a("v_mov_b32 v%d, 0" % (G_T + 13))
    for r in range(8):
        a("v_dot2_f32_bf16 v%d, v%d, v%d, v%d" % (G_T + 12, G_T + 4 + r, G_T, G_T + 12))
        a("v_dot2_f32_bf16 v%d, v%d, v%d, v%d" % (G_T + 13, G_T + 4 + r, G_T + 4 + r, G_T + 13))
    a("v_mov_b32 v%d, v%d" % (G_T + 14, G_T + 12))
    a("v_mov_b32 v%d, v%d" % (G_T + 15, G_T + 13))
    a("v_permlane32_swap_b32 v%d, v%d" % (G_T + 12, G_T + 14))
    a("v_permlane32_swap_b32 v%d, v%d" % (G_T + 13, G_T + 15))
    a("v_add_f32 v%d, v%d, v%d" % (G_T + 12, G_T + 12, G_T + 14))
    a("v_add_f32 v%d, v%d, v%d" % (G_T + 13, G_T + 13, G_T + 15))
    layer_off(a, 17, OFF_STAT, STAT_STRIDE, 2, xout_add)
    a("s_lshl_b32 s18, s31, 12")
    a("s_add_u32 s17, s17, s18")
    a("s_lshl_b32 s18, s32, 3")
    a("s_add_u32 s17, s17, s18")
    a("v_lshlrev_b32 v%d, 7, v%d" % (G_T + 2, V_R31))
    a("v_cmp_gt_u32 vcc, 32, v%d" % V_LANE)
    a("s_and_saveexec_b64 s[36:37], vcc")
    a("buffer_store_dwordx2 v[%d:%d], v%d, s[4:7], s17 offen %s" % (G_T + 12, G_T + 13, G_T + 2, sc))
    a("s_mov_b64 exec, s[36:37]")


def final_store(a):
    a("v_permlane32_swap_b32 v%d, v%d" % (G_T + 4, G_T + 6))
    a("v_permlane32_swap_b32 v%d, v%d" % (G_T + 5, G_T + 7))
    a("v_permlane32_swap_b32 v%d, v%d" % (G_T + 8, G_T + 10))
    a("v_permlane32_swap_b32 v%d, v%d" % (G_T + 9, G_T + 11))
    a("s_lshl_b32 s17, s31, 15")
    a("s_lshl_b32 s18, s32, 6")
    a("s_add_u32 s17, s17, s18")
    a("v_lshlrev_b32 v%d, 10, v%d" % (G_T + 2, V_R31))
    a("v_lshl_add_u32 v%d, v%d, 4, v%d" % (G_T + 2, V_H, G_T + 2))
    a("buffer_store_dwordx4 v[%d:%d], v%d, s[8:11], s17 offen" % (G_T + 4, G_T + 7, G_T + 2))
    a("buffer_store_dwordx4 v[%d:%d], v%d, s[8:11], s17 offen offset:32" % (G_T + 8, G_T + 11, G_T + 2))


def load_resid(a, cfg, xin_add):
    sc = cfg.get("sc", "")
    layer_off(a, 17, OFF_X, X_STRIDE, 2, xin_add)
    a("s_lshl_b32 s18, s31, 15")
    a("s_add_u32 s17, s17, s18")
    a("s_lshl_b32 s18, s32, 11")
    a("s_add_u32 s17, s17, s18")
    a("buffer_load_dwordx4 v[%d:%d], v%d, s[4:7], s17 offen %s" % (G_CS, G_CS + 3, V_L16, sc))
    a("buffer_load_dwordx4 v[%d:%d], v%d, s[4:7], s17 offen offset:1024 %s" % (G_CS + 4, G_CS + 7, V_L16, sc))


def phase_wo(a, cfg):
    sc = cfg.get("sc", "")
    SA0, SA1, SB0, SB1, SX = 24, 25, 26, 27, 28
    layer_off(a, SX, OFF_O, X_STRIDE)
    gemm64_addr(a, SA0, SA1, SB0, SB1, OFF_WO, 32, SX, 32, 8)
    a("s_mov_b32 s31, s22")
    a("s_mov_b32 s32, s19")
    t = []
    for i in range(8):
        blk(a, ar(0 + 4 * i, 4), SA0, i)
        blk(a, ar(64 + 4 * i, 4), SB0, i, sc)
        blk(a, ar(96 + 4 * i, 4), SB1, i, sc)
        blk(a, ar(32 + 4 * i, 4), SA1, i)
        t.append(a.vt())
    load_resid(a, cfg, 0)
    reduce_addr(a, 0)
    stamp(a, cfg, 1)
    for i in range(8):
        a.wait_vm(t[i])
        if i == 0:
            stamp(a, cfg, 2)
        for j in range(4):
            a("%s v[%d:%d], %s, %s, %s" % (MF, G_ACC + 16 * j, G_ACC + 16 * j + 15, ar(32 * (j >> 1) + 4 * i, 4), ar(64 + 32 * (j & 1) + 4 * i, 4),
                                          "0" if i == 0 else vr(G_ACC + 16 * j, 16)))
    reduce4(a, cfg)
    stamp(a, cfg, 7)
    a("s_waitcnt vmcnt(0)")
    res_epilogue(a, cfg, 0, 1, None)


def phase_ffn2(a, cfg):
    sc = cfg.get("sc", "")
    SA0, SA1, SB0, SB1, SX = 24, 25, 26, 27, 28
    layer_off(a, SX, OFF_H, H_STRIDE)
    gemm64_addr(a, SA0, SA1, SB0, SB1, OFF_W2, 112, SX, 112, 28)
    a("s_mov_b32 s31, s22")
    a("s_mov_b32 s32, s19")
    R = 14
    t = {}

    def issue(i):
        b = 16 * (i % R)
        blk(a, ar(b, 4), SA0, i)
        blk(a, ar(b + 8, 4), SB0, i, sc)
        blk(a, ar(b + 12, 4), SB1, i, sc)
        blk(a, ar(b + 4, 4), SA1, i)
        t[i] = a.vt()

    load_resid(a, cfg, 1)
    for i in range(R):
        issue(i)
    reduce_addr(a, 0)
    stamp(a, cfg, 1)
    for i in range(28):
        a.wait_vm(t[i])
        if i == 0:
            stamp(a, cfg, 2)
        if i == 14:
            stamp(a, cfg, 3)
        b = 16 * (i % R)
        for j in range(4):
            a("%s v[%d:%d], %s, %s, %s" % (MF, G_ACC + 16 * j, G_ACC + 16 * j + 15, ar(b + 4 * (j >> 1), 4), ar(b + 8 + 4 * (j & 1), 4),
                                          "0" if i == 0 else vr(G_ACC + 16 * j, 16)))
        if i + R < 28:
            issue(i + R)
    reduce4(a, cfg)
    stamp(a, cfg, 7)
    res_epilogue(a, cfg, 1, 2, "L_ffn2_final")
    a("s_branch L_ffn2_end")
    a("L_ffn2_final:")
    final_store(a)
    a("L_ffn2_end:")


F_ACC = [16, 32, 48]
F_W = 64
F_CS = [96, 112]
F_ST = 128
F_T = 144
F_H = 176
F_LA = [184, 185]
F_NMU, F_C1, F_RS2 = 186, 187, 188


def phase_ffn1(a, cfg):
    sc = cfg.get("sc", "")
    SX, SW, SCS, SH = 24, 25, 26, 27
    a("s_lshl_b32 s31, s%d, 2" % S_RG)
    a("s_add_u32 s31, s31, s%d" % S_W)
    a("s_mul_i32 s%d, s%d, %d" % (SW, S_M, 7 * 32768))
    a("s_lshl_b32 s17, s%d, 13" % S_W)
    a("s_add_u32 s%d, s%d, s17" % (SW, SW))
    a("s_add_u32 s%d, s%d, 0x%x" % (SW, SW, OFF_W13))
    a("s_mov_b32 s28, s17")

    def dma(i):
        slot = i % 4
        for hh in range(2):
            a("s_add_u32 m0, s28, %d" % (slot * 32768 + hh * 4096))
            a("s_add_u32 s29, s%d, %d" % (SW, i * 32768 + hh * 4096))
            for q in range(4):
                a("buffer_load_dwordx4 v%d, s[4:7], s29 offen offset:%d lds" % (V_L16, q * 1024))

    layer_off(a, SX, OFF_X, X_STRIDE, 2, 1)
    a("s_lshl_b32 s17, s31, 15")
    a("s_add_u32 s%d, s%d, s17" % (SX, SX))
    a("s_add_u32 s30, s%d, %d" % (SX, 28 * 1024))
    dma(0)
    dma(1)
    t_w01 = a.vt()
    tX = []
    for i in range(32):
        if i < 28:
            blk(a, ar(4 * i, 4), SX, i, sc)
        else:
            blk(a, ar(4 * i, 4), 30, i - 28, sc)
        tX.append(a.vt())
    layer_off(a, 17, OFF_STAT, STAT_STRIDE, 2, 1)
    a("s_lshl_b32 s18, s31, 12")
    a("s_add_u32 s17, s17, s18")
    load_stats(a, F_ST, 17, F_T, sc)
    t_st = a.vt()
    a("s_mul_i32 s%d, s%d, %d" % (SCS, S_M, 7 * 128))
    a("s_add_u32 s%d, s%d, 0x%x" % (SCS, SCS, OFF_CS13))
    a("v_lshlrev_b32 v%d, 4, v%d" % (F_T + 1, V_H))
    t_cs = {}

    def load_cs(i):
        for g in range(4):
            a("buffer_load_dwordx4 v[%d:%d], v%d, s[4:7], s%d offen offset:%d" % (F_CS[i % 2] + 4 * g, F_CS[i % 2] + 4 * g + 3, F_T + 1, SCS, i * 128 + 32 * g))
        t_cs[i] = a.vt()

    load_cs(0)
    load_cs(1)
    layer_off(a, SH, OFF_H, H_STRIDE)
    a("s_mul_i32 s17, s31, %d" % (112 * 1024))
    a("s_add_u32 s%d, s%d, s17" % (SH, SH))
    a("s_mul_i32 s17, s%d, %d" % (S_M, 7 * 1024))
    a("s_add_u32 s%d, s%d, s17" % (SH, SH))
    a("v_mov_b32 v%d, v%d" % (F_LA[0], V_L16))
    a("v_add_u32 v%d, 65536, v%d" % (F_LA[1], V_L16))
    stamp(a, cfg, 1)
    a.wait_vm(t_w01)
    a("s_barrier")
    stamp(a, cfg, 2)
    dma(2)
    dma(3)
    t_w23 = a.vt()

    def wread(tile, ks, ring):
        slot = tile % 4
        a("ds_read_b128 v[%d:%d], v%d offset:%d" % (F_W + 4 * ring, F_W + 4 * ring + 3, F_LA[slot >> 1], (slot & 1) * 32768 + ks * 1024))

    def epi(tile):
        acc, cs = F_ACC[tile % 3], F_CS[tile % 2]
        hp = F_H + 4 * (tile % 2)
        out = []
        for e in range(8):
            out.append("v_fmac_f32 v%d, v%d, v%d" % (acc + e, F_NMU, cs + e))
            out.append("v_fmac_f32 v%d, v%d, v%d" % (acc + 8 + e, F_NMU, cs + 8 + e))
        for e in range(8):
            out.append("v_mul_f32 v%d, v%d, v%d" % (F_T + 8 + e, F_C1, acc + e))
        for e in range(8):
            out.append("v_exp_f32 v%d, v%d" % (F_T + 8 + e, F_T + 8 + e))
            out.append("v_mul_f32 v%d, v%d, v%d" % (acc + e, acc + e, acc + 8 + e))
        for e in range(8):
            out.append("v_add_f32 v%d, 1.0, v%d" % (F_T + 8 + e, F_T + 8 + e))
        for e in range(8):
            out.append("v_rcp_f32 v%d, v%d" % (F_T + 8 + e, F_T + 8 + e))
            out.append("v_mul_f32 v%d, v%d, v%d" % (acc + e, F_RS2, acc + e))
        for e in range(8):
            out.append("v_mul_f32 v%d, v%d, v%d" % (acc + e, F_T + 8 + e, acc + e))
        for i in range(4):
            out.append("v_cvt_pk_bf16_f32 v%d, v%d, v%d" % (hp + i, acc + 2 * i, acc + 2 * i + 1))
        out.append("buffer_store_dwordx4 v[%d:%d], v%d, s[4:7], s%d offen offset:%d %s" % (hp, hp + 3, V_OFF[tile // 4], SH, (tile % 4) * 1024, sc))
        return out

    steps = []
    for ks in range(32):
        steps.append((0, ks))
        steps.append((1, ks))
    for tile in range(2, 7):
        for ks in range(32):
            steps.append((tile, ks))
    N = len(steps)
    PF = 6
    lt = {}
    first_of = {}
    for n, (tile, ks) in enumerate(steps):
        first_of.setdefault(tile, n)
    def fence_before_read(tile):
        if tile == 2:
            a.wait_vm(t_w23)
            a("s_barrier")
        elif tile == 4:
            a.wait_vm(fence_t[4])
            a("s_barrier")
        elif tile == 6:
            a.wait_vm(fence_t[6])
            a("s_barrier")

    fence_t = {}
    nread = 0

    def do_read(n):
        tile, ks = steps[n]
        if n == first_of[tile]:
            fence_before_read(tile)
        wread(tile, ks, n % 8)
        lt[n] = a.lt()

    for n in range(PF):
        do_read(n)
    pending = []
    stats_done = False
    for n, (tile, ks) in enumerate(steps):
        if tile >= 2 and ks == 0:
            stamp(a, cfg, 1 + tile)
        if tile < 2 and tile == 0:
            a.wait_vm(tX[ks])
        a.wait_lg(lt[n])
        acc = F_ACC[tile % 3]
        a("%s v[%d:%d], v[%d:%d], %s, %s" % (MF, acc, acc + 15, F_W + 4 * (n % 8), F_W + 4 * (n % 8) + 3, ar(4 * ks, 4),
                                            "0" if ks == 0 else vr(acc, 16)))
        if n + PF < N:
            do_read(n + PF)
        if n == first_of[2] + 2:
            a("s_barrier")
            dma(4)
            dma(5)
            fence_t[4] = a.vt()
        if n == first_of[3] + 2:
            a("s_barrier")
            dma(6)
            fence_t[6] = a.vt()
        if n == first_of[2] - 12:
            a.wait_vm(t_st)
            finish_stats(a, F_ST, F_NMU, F_RS2)
            a("v_mul_f32 v%d, %s, v%d" % (F_C1, fl(-LOG2E), F_RS2))
            a("v_mul_f32 v%d, v%d, v%d" % (F_RS2, F_RS2, F_RS2))
        if n == first_of[2] + 4:
            a.wait_vm(t_cs[1]) if False else None
            pending += [("W", 0)] + epi(0) + [("W", 1)] + epi(1)
        for tl in range(3, 7):
            if n == first_of[tl] + 4:
                pending += [("W", tl - 1)] + epi(tl - 1)
        k = 0
        lim = 5 if tile == 2 else 3
        while pending and k < lim:
            x = pending.pop(0)
            if isinstance(x, tuple):
                a.wait_vm(t_cs[x[1]])
                continue
            a(x)
            k += 1
            if x.startswith("buffer_store"):
                pass
            for tl in range(0, 5):
                if x == "v_fmac_f32 v%d, v%d, v%d" % (F_ACC[tl % 3] + 15, F_NMU, F_CS[tl % 2] + 15) and (tl + 2) not in t_cs and tl in t_cs and cur_epi(tl, tile, n, first_of):
                    load_cs(tl + 2)
    assert not pending, len(pending)
    stamp(a, cfg, 8)
    a.wait_vm(t_cs[6])
    for x in epi(6):
        a(x)


def cur_epi(tl, tile, n, first_of):
    return tile == max(2, tl + 1)


def kernel_desc(name, nfv, acc, sgpr=96):
    return """.amdhsa_kernel %s
  .amdhsa_next_free_vgpr %d
  .amdhsa_next_free_sgpr %d
  .amdhsa_accum_offset %d
  .amdhsa_group_segment_fixed_size 0
  .amdhsa_kernarg_size 96
  .amdhsa_user_sgpr_count 2
  .amdhsa_user_sgpr_kernarg_segment_ptr 1
  .amdhsa_system_sgpr_workgroup_id_x 1
.end_amdhsa_kernel
""" % (name, nfv, sgpr, acc)


def uniq(lines, tag):
    out = []
    for l in lines:
        out.append(l.replace("L_exit", "L_exit_" + tag))
    return out


def build_multi(cfg):
    launches = []
    text = []
    descs = []
    rep = []

    def body(tag, fn, need_out=False, pro=True):
        a = Asm()
        if pro:
            stamp_init(a, cfg)
            common_prologue(a, need_out)
        fn(a, cfg)
        if pro:
            stamp_flush(a, cfg, "s_mul_i32 s60, s3, 5\ns_add_u32 s60, s60, %d" % (1 + ["qkv", "att", "wo", "ffn1", "ffn2"].index(tag)))
        a("L_exit:")
        a("s_endpgm")
        lines, tot = fix_hazards_fast(uniq(a.lines, tag), rep)
        return lines

    text += [".p2align 8", "prep_kernel:"] + body("prep", prep, pro=False)
    descs.append(kernel_desc("prep_kernel", 64, 64))
    text += [".p2align 8", "L_code_begin:"]
    phases = [("qkv", phase_qkv, False, 88 * 1024), ("att", phase_att, False, 137 * 1024), ("wo", phase_wo, False, 48 * 1024),
              ("ffn1", phase_ffn1, False, 128 * 1024), ("ffn2", phase_ffn2, True, 48 * 1024)]
    for tag, fn, no, lds in phases:
        text += [".p2align 8", "%s1_kernel:" % tag, "  s_mov_b32 s3, 1", "  s_branch L_%s_entry" % tag]
        text += [".p2align 8", "%s0_kernel:" % tag, "  s_mov_b32 s3, 0", "L_%s_entry:" % tag] + body(tag, fn, no)
        for l in (0, 1):
            descs.append(kernel_desc("%s%d_kernel" % (tag, l), 512, 256))
    text += ["L_code_end:"]
    launches.append("; @launch kernel=prep_kernel grid=(256,1,1) block=(256,1,1) lds=%d" % (34 * 1024))
    for l in (0, 1):
        for tag, fn, no, lds in phases:
            for _ in range(2 if cfg.get("twice") else 1):
                launches.append("; @launch kernel=%s%d_kernel grid=(256,1,1) block=(256,1,1) lds=%d" % (tag, l, lds))
    s = "\n".join(launches) + "\n"
    s += '.amdgcn_target "amdgcn-amd-amdhsa--gfx950"\n.text\n'
    s += "\n".join(text) + "\n"
    s += '.section .rodata,"a"\n.p2align 6\n' + ".p2align 6\n".join(descs)
    return s, rep


if __name__ == "__main__":
    cfg = dict(store_q=True, load_q=True, code_prefetch=True)
    for kv in sys.argv[2:]:
        k, v = kv.split("=")
        cfg[k] = eval(v)
    s, rep = build_multi(cfg)
    open(sys.argv[1], "w").write(s)
    from collections import Counter
    print("auto nops:", sum(r[0] for r in rep), "sites", len(rep))
    if cfg.get("verbose"):
        for r in rep:
            print(r)
```

```python
from asmlib import *
from layout import *
from kern import split3, stamp, stamp_init, stamp_flush

LROW = 192


def prep2(a, cfg):
    WS = cfg.get("prep_sc", "sc1")
    XS = cfg.get("prep_xsc", "")
    a("s_cmp_ge_u32 s2, 256")
    a("s_cbranch_scc1 L_exit")
    stamp_init(a, cfg)
    a("s_load_dwordx16 s[16:31], s[0:1], 0")
    a("s_load_dwordx2 s[32:33], s[0:1], 64")
    a("s_load_dwordx2 s[4:5], s[0:1], 88")
    a("v_and_b32 v2, 63, v0")
    a("v_lshrrev_b32 v4, 6, v0")
    a("v_lshlrev_b32 v1, 4, v2")
    a("v_readfirstlane_b32 s12, v4")
    a("v_and_b32 v3, 31, v0")
    a("v_lshrrev_b32 v4, 5, v2")
    a("s_mov_b32 s6, 0x%x" % (WS_USED + 0x200000))
    a("s_mov_b32 s7, 0x00020000")
    a("s_mov_b32 s11, 0x00020000")
    a("s_mov_b32 s39, 0x00020000")
    a("s_mov_b32 s10, %d" % (2048 * 512 * 2))
    a("s_and_b32 s13, s2, 7")
    a("s_lshl_b32 s13, s13, 3")
    a("s_bfe_u32 s14, s2, 0x30003")
    a("s_add_u32 s13, s13, s14")
    a("s_lshr_b32 s14, s2, 6")
    a("s_lshl_b32 s14, s14, 2")
    a("s_add_u32 s14, s14, s12")
    a("s_lshl_b32 s15, s13, 15")
    a("s_lshl_b32 s40, s14, 6")
    a("s_add_u32 s15, s15, s40")
    a("v_lshlrev_b32 v5, 10, v3")
    a("v_lshl_add_u32 v5, v4, 4, v5")
    a("v_lshrrev_b32 v6, 3, v0")
    a("v_and_b32 v7, 7, v0")
    a("v_mul_u32_u24 v17, %d, v6" % LROW)
    a("v_lshl_add_u32 v17, v7, 4, v17")
    a("v_mov_b32 v19, v1")
    a("s_and_b32 s46, s2, 1")
    a("s_mov_b32 s44, 0")
    a("s_mov_b32 s45, 0")
    a("s_mov_b32 s47, 32768")
    a("s_mov_b32 s41, 1024")
    a("s_mov_b32 s38, %d" % (512 * 512 * 2))
    a("s_waitcnt lgkmcnt(0)")
    a("s_mov_b32 s8, s16")
    a("s_mov_b32 s9, s17")
    a("buffer_load_dwordx4 v[8:11], v5, s[8:11], s15 offen")
    a("buffer_load_dwordx4 v[12:15], v5, s[8:11], s15 offen offset:32")
    code_prefetch(a)
    a("s_cmp_lt_u32 s2, 112")
    a("s_cbranch_scc1 L_p_w13")
    a("s_cmp_lt_u32 s2, 168")
    a("s_cbranch_scc1 L_p_w2")
    a("s_cmp_lt_u32 s2, 200")
    a("s_cbranch_scc1 L_p_wqo")
    a("s_cmp_lt_u32 s2, 202")
    a("s_cbranch_scc1 L_p_wkv")
    a("s_branch L_p_xpart")
    a("L_p_wqo:")
    a("s_sub_u32 s48, s2, 168")
    a("s_bfe_u32 s49, s48, 0x30001")
    a("s_cmp_lt_u32 s48, 16")
    a("s_cselect_b32 s36, s18, s24")
    a("s_cselect_b32 s37, s19, s25")
    a("s_cselect_b32 s43, 0x%x, %s" % (OFF_WQ, "s47"))
    a("s_cselect_b32 s44, 0x%x, 0" % OFF_CSQ)
    a("s_cbranch_scc1 L_p_isq")
    a("s_mov_b32 s43, 0x%x" % OFF_WO)
    a("L_p_isq:")
    a("s_lshl_b32 s42, s46, 18")
    a("s_lshl_b32 s50, s49, 7")
    a("s_add_u32 s42, s42, s50")
    a("s_lshl_b32 s50, s49, 16")
    a("s_add_u32 s43, s43, s50")
    a("s_lshl_b32 s50, s46, 14")
    a("s_add_u32 s43, s43, s50")
    a("s_cmp_eq_u32 s44, 0")
    a("s_cbranch_scc1 L_p_go")
    a("s_lshl_b32 s50, s49, 8")
    a("s_add_u32 s44, s44, s50")
    a("s_lshl_b32 s50, s46, 12")
    a("s_add_u32 s44, s44, s50")
    a("s_branch L_p_go")
    a("L_p_wkv:")
    a("s_cmp_eq_u32 s46, 0")
    a("s_cselect_b32 s36, s22, s20")
    a("s_cselect_b32 s37, s23, s21")
    a("s_mov_b32 s38, %d" % (512 * 16 * 2))
    a("s_branch L_p_kv")
    a("L_p_w2:")
    a("s_sub_u32 s48, s2, 112")
    a("s_and_b32 s49, s48, 7")
    a("s_lshr_b32 s48, s48, 3")
    a("s_mov_b32 s36, s32")
    a("s_mov_b32 s37, s33")
    a("s_mov_b32 s38, %d" % (1792 * 512 * 2))
    a("s_lshl_b32 s42, s48, 18")
    a("s_lshl_b32 s50, s49, 7")
    a("s_add_u32 s42, s42, s50")
    a("s_mov_b32 s47, %d" % (112 * 1024))
    a("s_mul_i32 s43, s49, %d" % (2 * 112 * 1024))
    a("s_lshl_b32 s50, s48, 14")
    a("s_add_u32 s43, s43, s50")
    a("s_add_u32 s43, s43, 0x%x" % OFF_W2)
    a("s_branch L_p_go")
    a("L_p_w13:")
    a("s_bfe_u32 s51, s2, 0x10001")
    a("s_lshr_b32 s49, s2, 2")
    a("s_cmp_eq_u32 s51, 0")
    a("s_cselect_b32 s36, s28, s30")
    a("s_cselect_b32 s37, s29, s31")
    a("s_mov_b32 s38, %d" % (512 * 1792 * 2))
    a("s_mov_b32 s41, 3584")
    a("s_mul_i32 s42, s46, %d" % (256 * 3584))
    a("s_lshl_b32 s50, s49, 7")
    a("s_add_u32 s42, s42, s50")
    a("s_mov_b32 s47, 65536")
    a("s_lshl_b32 s43, s49, 17")
    a("s_lshl_b32 s50, s46, 14")
    a("s_add_u32 s43, s43, s50")
    a("s_lshl_b32 s50, s51, 8")
    a("s_add_u32 s43, s43, s50")
    a("s_add_u32 s43, s43, 0x%x" % OFF_W13)
    a("s_lshl_b32 s45, s49, 12")
    a("s_add_u32 s45, s45, s50")
    a("s_lshl_b32 s50, s46, 9")
    a("s_add_u32 s45, s45, s50")
    a("s_add_u32 s45, s45, 0x%x" % OFF_CSX)
    a("v_and_b32 v19, 15, v2")
    a("v_lshlrev_b32 v19, 4, v19")
    a("v_lshl_add_u32 v19, v4, 9, v19")
    a("v_bfe_u32 v18, v2, 4, 1")
    a("v_lshl_add_u32 v19, v18, 15, v19")
    a("L_p_go:")
    a("v_mul_lo_u32 v16, v6, s41")
    a("v_lshl_add_u32 v16, v7, 4, v16")
    a("s_lshl_b32 s50, s41, 5")
    for p in range(8):
        a("buffer_load_dwordx4 v[%d:%d], v16, s[36:39], s42 offen" % (20 + 4 * p, 23 + 4 * p))
        if p < 7:
            a("s_add_u32 s42, s42, s50")
    stamp(a, cfg, 2)
    a("v_and_b32 v6, 15, v2")
    a("v_lshrrev_b32 v7, 2, v6")
    a("v_lshl_add_u32 v7, v4, 2, v7")
    a("v_mul_u32_u24 v18, %d, v7" % LROW)
    a("v_and_b32 v6, 3, v6")
    a("v_lshl_add_u32 v18, v6, 3, v18")
    a("v_bfe_u32 v6, v2, 4, 1")
    a("v_lshl_add_u32 v18, v6, 5, v18")
    a("s_lshr_b32 s50, s12, 1")
    a("s_and_b32 s52, s12, 1")
    a("s_mul_i32 s53, s50, s47")
    a("s_add_u32 s43, s43, s53")
    a("s_lshl_b32 s53, s52, 13")
    a("s_add_u32 s43, s43, s53")
    a("s_lshl_b32 s50, s50, 6")
    a("s_mul_i32 s52, s52, %d" % (128 * LROW))
    a("s_add_u32 s50, s50, s52")
    a("v_add_u32 v18, s50, v18")
    a("v_add_u32 v54, 4096, v19")
    for p in range(8):
        a("s_waitcnt vmcnt(%d)" % (7 - p))
        a("ds_write_b128 v17, v[%d:%d] offset:%d" % (20 + 4 * p, 23 + 4 * p, 32 * LROW * p))
    a("L_p_tr:")
    a("s_waitcnt lgkmcnt(0)")
    stamp(a, cfg, 3)
    a("s_barrier")
    stamp(a, cfg, 4)
    for i in range(8):
        a("ds_read_b64_tr_b16 v[%d:%d], v18 offset:%d" % (20 + 4 * i, 21 + 4 * i, 16 * LROW * i))
        a("ds_read_b64_tr_b16 v[%d:%d], v18 offset:%d" % (22 + 4 * i, 23 + 4 * i, 16 * LROW * i + 8 * LROW))
    a("v_mov_b32 v52, 0x3f803f80")
    a("v_mov_b32 v53, 0")
    for i in range(8):
        a("s_waitcnt lgkmcnt(%d)" % min(15, 14 - 2 * i))
        a("buffer_store_dwordx4 v[%d:%d], v%d, s[4:7], s43 offen offset:%d %s" % (20 + 4 * i, 23 + 4 * i, 19 if i < 4 else 54, (i % 4) * 1024, WS))
        for r in range(4):
            a("v_dot2_f32_bf16 v53, v%d, v52, v53" % (20 + 4 * i + r))
    stamp(a, cfg, 5)
    a("s_or_b32 s50, s44, s45")
    a("s_cmp_eq_u32 s50, 0")
    a("s_cbranch_scc1 L_p_xpart")
    a("v_lshlrev_b32 v6, 2, v0")
    a("ds_write_b32 v6, v53 offset:49152")
    a("s_waitcnt lgkmcnt(0)")
    a("s_barrier")
    a("s_bitcmp1_b32 s12, 0")
    a("s_cbranch_scc1 L_p_xpart")
    a("s_lshl_b32 s50, s12, 8")
    a("v_lshlrev_b32 v6, 2, v3")
    a("v_add_u32 v7, s50, v6")
    for q in range(4):
        a("ds_read_b32 v%d, v7 offset:%d" % (56 + q, 49152 + 128 * q))
    a("s_waitcnt lgkmcnt(0)")
    a("v_add_f32 v56, v56, v57")
    a("v_add_f32 v58, v58, v59")
    a("v_add_f32 v56, v56, v58")
    a("s_cmp_eq_u32 s44, 0")
    a("s_cbranch_scc1 L_p_csx")
    a("s_lshl_b32 s50, s12, 6")
    a("s_add_u32 s44, s44, s50")
    a("buffer_store_dword v56, v6, s[4:7], s44 offen %s" % WS)
    a("s_branch L_p_xpart")
    a("L_p_csx:")
    split3(a, 56, 60)
    a("v_lshrrev_b32 v57, 16, v60")
    a("v_or_b32 v20, v57, v60")
    a("v_lshrrev_b32 v58, 16, v61")
    a("v_or_b32 v21, v58, v60")
    a("v_lshrrev_b32 v58, 16, v62")
    a("v_or_b32 v22, v58, v61")
    a("v_mov_b32 v23, 0")
    a("v_and_b32 v6, 15, v2")
    a("v_lshlrev_b32 v6, 4, v6")
    a("v_bfe_u32 v7, v2, 4, 1")
    a("v_lshl_add_u32 v6, v7, 10, v6")
    a("s_lshl_b32 s50, s12, 10")
    a("s_add_u32 s45, s45, s50")
    a("s_mov_b32 exec_hi, 0")
    a("buffer_store_dwordx4 v[20:23], v6, s[4:7], s45 offen %s" % WS)
    a("s_mov_b32 exec_hi, -1")
    a("s_branch L_p_xpart")
    a("L_p_kv:")
    a("v_lshrrev_b32 v6, 1, v0")
    a("v_and_b32 v7, 1, v0")
    a("v_mul_u32_u24 v17, %d, v6" % LROW)
    a("v_lshl_add_u32 v17, v7, 4, v17")
    a("v_lshlrev_b32 v16, 4, v0")
    for p in range(4):
        a("buffer_load_dwordx4 v[%d:%d], v16, s[36:39], 0 offen" % (20 + 4 * p, 23 + 4 * p))
        a("v_add_u32 v16, 4096, v16")
    a("v_and_b32 v6, 15, v2")
    a("v_lshrrev_b32 v7, 2, v6")
    a("v_lshl_add_u32 v7, v4, 2, v7")
    a("v_mul_u32_u24 v18, %d, v7" % LROW)
    a("v_and_b32 v6, 3, v6")
    a("v_lshl_add_u32 v18, v6, 3, v18")
    a("s_lshl_b32 s50, s12, 5")
    a("v_add_u32 v18, s50, v18")
    a("v_and_b32 v19, 15, v2")
    a("v_lshlrev_b32 v19, 4, v19")
    a("v_lshl_add_u32 v19, v4, 9, v19")
    a("v_add_u32 v54, 4096, v19")
    a("s_lshl_b32 s43, s12, 13")
    a("s_lshl_b32 s50, s46, 8")
    a("s_add_u32 s43, s43, s50")
    a("s_add_u32 s43, s43, 0x%x" % OFF_WKV)
    for p in range(4):
        a("s_waitcnt vmcnt(%d)" % (3 - p))
        a("ds_write_b128 v17, v[%d:%d] offset:%d" % (20 + 4 * p, 23 + 4 * p, 32 * p))
    a("s_waitcnt lgkmcnt(0)")
    a("s_barrier")
    for i in range(8):
        a("ds_read_b64_tr_b16 v[%d:%d], v18 offset:%d" % (20 + 4 * i, 21 + 4 * i, 16 * LROW * i))
        a("ds_read_b64_tr_b16 v[%d:%d], v18 offset:%d" % (22 + 4 * i, 23 + 4 * i, 16 * LROW * i + 8 * LROW))
    a("v_mov_b32 v52, 0x3f803f80")
    a("v_mov_b32 v53, 0")
    for i in range(8):
        a("s_waitcnt lgkmcnt(%d)" % min(15, 14 - 2 * i))
        a("buffer_store_dwordx4 v[%d:%d], v%d, s[4:7], s43 offen offset:%d %s" % (20 + 4 * i, 23 + 4 * i, 19 if i < 4 else 54, (i % 4) * 1024, WS))
        for r in range(4):
            a("v_dot2_f32_bf16 v53, v%d, v52, v53" % (20 + 4 * i + r))
    a("v_lshlrev_b32 v6, 2, v0")
    a("ds_write_b32 v6, v53 offset:49152")
    a("s_waitcnt lgkmcnt(0)")
    a("s_barrier")
    a("s_cmp_lg_u32 s12, 0")
    a("s_cbranch_scc1 L_p_xpart")
    a("v_and_b32 v6, 15, v2")
    a("v_lshlrev_b32 v6, 2, v6")
    for q in range(8):
        a("ds_read_b32 v%d, v6 offset:%d" % (56 + q, 49152 + 128 * q))
    a("s_waitcnt lgkmcnt(0)")
    for q in (4, 2, 1):
        for i in range(q):
            a("v_add_f32 v%d, v%d, v%d" % (56 + i, 56 + i, 56 + i + q))
    a("s_lshl_b32 s50, s46, 6")
    a("s_add_u32 s50, s50, 0x%x" % OFF_CSKV)
    a("buffer_store_dword v56, v6, s[4:7], s50 offen %s" % WS)
    a("L_p_xpart:")
    stamp(a, cfg, 6)
    a("s_cmp_lt_u32 s2, 202")
    a("s_cbranch_scc1 L_p_xr")
    a("s_waitcnt vmcnt(0)")
    a("L_p_xr:")
    a("v_permlane32_swap_b32 v8, v10")
    a("v_permlane32_swap_b32 v9, v11")
    a("v_permlane32_swap_b32 v12, v14")
    a("v_permlane32_swap_b32 v13, v15")
    a("s_lshl_b32 s15, s13, 15")
    a("s_lshl_b32 s40, s14, 11")
    a("s_add_u32 s15, s15, s40")
    a("s_add_u32 s15, s15, 0x%x" % OFF_X)
    a("buffer_store_dwordx4 v[8:11], v1, s[4:7], s15 offen %s" % XS)
    a("buffer_store_dwordx4 v[12:15], v1, s[4:7], s15 offen offset:1024 %s" % XS)
    a("v_mov_b32 v52, 0x3f803f80")
    a("v_mov_b32 v56, 0")
    a("v_mov_b32 v57, 0")
    for r in range(8, 16):
        a("v_dot2_f32_bf16 v56, v%d, v52, v56" % r)
        a("v_dot2_f32_bf16 v57, v%d, v%d, v57" % (r, r))
    a("s_lshl_b32 s15, s13, 12")
    a("s_lshl_b32 s40, s14, 8")
    a("s_add_u32 s15, s15, s40")
    a("v_mov_b32 v58, v56")
    a("v_mov_b32 v59, v57")
    a("s_add_u32 s15, s15, 0x%x" % OFF_STAT)
    a("v_lshlrev_b32 v6, 3, v3")
    a("v_permlane32_swap_b32 v56, v58")
    a("v_permlane32_swap_b32 v57, v59")
    a("v_add_f32 v56, v56, v58")
    a("v_add_f32 v57, v57, v59")
    a("buffer_store_dwordx2 v[56:57], v6, s[4:7], s15 offen %s" % XS)
    a("v_mov_b32 v58, 0")
    a("s_lshl_b32 s15, s2, 8")
    a("s_add_u32 s15, s15, 0x%x" % OFF_FLAGS)
    a("v_lshlrev_b32 v6, 2, v2")
    a("buffer_store_dword v58, v6, s[4:7], s15 offen %s" % WS)
    stamp(a, cfg, 8)
    stamp_flush(a, cfg, "s_mov_b32 s60, 0")


def code_prefetch(a):
    a("s_getpc_b64 s[54:55]")
    a("L_p_pc:")
    a("s_add_u32 s54, s54, L_code_begin-L_p_pc")
    a("s_addc_u32 s55, s55, 0")
    a("s_lshr_b32 s56, s2, 3")
    a("s_lshl_b32 s56, s56, 11")
    a("v_lshlrev_b32 v62, 3, v0")
    a("v_add_u32 v62, s56, v62")
    a("v_min_u32 v62, L_code_end-L_code_begin-8, v62")
    a("global_load_dwordx2 v[64:65], v62, s[54:55]")
```

```python
import sys
from asmlib import *
from layout import *
import kern
import prep2
from kern import (split3, fl, MF, S_LAYER, S_W, S_RB, S_HQ, S_RG, S_M, V_L16, V_LANE, V_R31, V_H, V_OFF, blk, xhalf_sum,
                  load_stats, finish_stats, pack8, layer_off, stamp, kernel_desc, prep, NSTAMP)

SC = "sc1"
FL_O = 0x0000
FL_X1 = 0x2000
FL_H = 0x8000
FL_X2 = 0x6000
FL_KV = 0xC000

S_RT, S_NT = 31, 32
S_FO, S_FX1, S_FH = 40, 41, 42
S_W13, S_WL = 47, 48
S_RET = 44
V_RES = 12
V_ONE = 11
V_L4 = 20
V_ZERO = 21
VB = 24

G_ACC = 24
G_RED = 88
G_ST = 136
G_CS = 152
G_T = 168
V_WR = [184, 185, 186]
V_RD = 187
V_NMU, V_RSTD = 188, 189
G_KVACC = 88
G_Q = 190
W2V = 200

LDS_R1 = 96 * 1024
LDS_RQ = 0
LDS_KVX = 49152
LDS_CS = 144 * 1024


DBL = [0]


def st4(a, data, voff, soff, imm=0):
    a("buffer_store_dwordx4 v[%d:%d], v%d, s[4:7], s%d offen offset:%d %s" % (data, data + 3, voff, soff, imm, SC))
    if DBL[0]:
        a("buffer_store_dwordx4 v[%d:%d], v%d, s[4:7], s%d offen offset:%d" % (data, data + 3, voff, soff, imm))


TOUCH = [1]
V_L128 = 23


def touch_lines(a, s_data, nlines, imm=0):
    if not TOUCH[0]:
        return
    a("s_mov_b32 exec_lo, 0x%x" % (((1 << nlines) - 1) & 0xffffffff))
    a("s_mov_b32 exec_hi, 0x%x" % (((1 << nlines) - 1) >> 32))
    a("buffer_load_dword v22, v%d, s[4:7], s%d offen offset:%d %s" % (V_L128, s_data, imm, SC))


def publish(a, s_addr, s_data=None, nlines=16, imm=0):
    a("s_waitcnt vmcnt(0)")
    a("s_mov_b64 exec, 1")
    a("buffer_store_dword v%d, v%d, s[4:7], s%d offen %s" % (V_ONE, V_ZERO, s_addr, SC))
    if s_data is not None:
        touch_lines(a, s_data, nlines, imm)
    a("s_mov_b64 exec, -1")


def poll(a, cfg, s_addr, voff, vtmp, wide=False, imm=0, sleep=0):
    L = a.newlabel("L_poll")
    if cfg.get("spin_limit"):
        a("s_mov_b32 s46, %d" % cfg["spin_limit"])
    a(L + ":")
    if wide:
        a("buffer_load_dwordx2 v[%d:%d], v%d, s[4:7], s%d offen %s" % (vtmp, vtmp + 1, voff, s_addr, SC))
        a("s_waitcnt vmcnt(0)")
        a("v_and_b32 v%d, v%d, v%d" % (vtmp, vtmp, vtmp + 1))
    else:
        a("buffer_load_dword v%d, v%d, s[4:7], s%d offen offset:%d %s" % (vtmp, voff, s_addr, imm, SC))
        a("s_waitcnt vmcnt(0)")
    if cfg.get("spin_limit"):
        a("s_sub_u32 s46, s46, 1")
        a("s_cbranch_scc1 %s_out" % L)
    a("v_cmp_ne_u32 vcc, 1, v%d" % vtmp)
    if sleep:
        a("s_cbranch_vccz %s_out" % L)
        a("s_sleep %d" % sleep)
        a("s_branch %s" % L)
    else:
        a("s_cbranch_vccnz %s" % L)
    a(L + "_out:")


def lane_pat(a, vdst, mask, hi_shift, lo_mul):
    a("v_and_b32 v%d, %d, v%d" % (vdst, mask & ~1, V_LANE))
    a("v_lshlrev_b32 v%d, 3, v%d" % (vdst, vdst))
    a("v_and_b32 v%d, 1, v%d" % (vdst + 1, V_LANE))
    a("v_lshl_add_u32 v%d, v%d, %d, v%d" % (vdst, vdst + 1, lo_mul, vdst))


def flag_addr(a, sdst, base, s_grp, grp_shift, s_mem=None, per_layer=0x1000):
    a("s_mul_i32 s%d, s%d, 0x%x" % (sdst, S_LAYER, per_layer))
    a("s_add_u32 s%d, s%d, 0x%x" % (sdst, sdst, OFF_FLAGS + base))
    a("s_lshl_b32 s17, s%d, %d" % (s_grp, grp_shift))
    a("s_add_u32 s%d, s%d, s17" % (sdst, sdst))
    if s_mem is not None:
        a("s_lshl_b32 s17, s%d, 4" % s_mem)
        a("s_add_u32 s%d, s%d, s17" % (sdst, sdst))
        a("s_lshl_b32 s17, s%d, 2" % S_W)
        a("s_add_u32 s%d, s%d, s17" % (sdst, sdst))


def a_addr(a, s_a0, s_a1, offA, ksA, ksw):
    a("s_mul_i32 s20, s%d, %d" % (S_W, ksw * 1024))
    a("s_mul_i32 s%d, s%d, %d" % (s_a0, S_NT, ksA * 1024))
    a("s_add_u32 s%d, s%d, s20" % (s_a0, s_a0))
    a("s_add_u32 s%d, s%d, 0x%x" % (s_a0, s_a0, offA))
    a("s_xor_b32 s21, s%d, 1" % S_NT)
    a("s_mul_i32 s%d, s21, %d" % (s_a1, ksA * 1024))
    a("s_add_u32 s%d, s%d, s20" % (s_a1, s_a1))
    a("s_add_u32 s%d, s%d, 0x%x" % (s_a1, s_a1, offA))


def b_addr(a, s_b0, s_b1, s_base, ksB, ksw):
    a("s_mul_i32 s20, s%d, %d" % (S_W, ksw * 1024))
    a("s_add_u32 s20, s20, s%d" % s_base)
    a("s_mul_i32 s%d, s%d, %d" % (s_b0, S_RT, ksB * 1024))
    a("s_add_u32 s%d, s%d, s20" % (s_b0, s_b0))
    a("s_xor_b32 s21, s%d, 1" % S_RT)
    a("s_mul_i32 s%d, s21, %d" % (s_b1, ksB * 1024))
    a("s_add_u32 s%d, s%d, s20" % (s_b1, s_b1))


def reduce_addr(a, base):
    for j in (1, 2, 3):
        a("s_xor_b32 s17, s%d, %d" % (S_W, j))
        a("s_mul_i32 s17, s17, 12288")
        a("s_add_u32 s17, s17, %d" % (base + (j - 1) * 4096))
        a("v_add_u32 v%d, s17, v%d" % (V_WR[j - 1], V_L16))
    a("s_mul_i32 s17, s%d, 12288" % S_W)
    a("s_add_u32 s17, s17, %d" % base)
    a("v_add_u32 v%d, s17, v%d" % (V_RD, V_L16))


def mf(a, d, x, y, c):
    a("%s v[%d:%d], %s, %s, %s" % (MF, d, d + 15, x, y, c))


def wr_tile(a, j):
    for q in range(4):
        r = G_ACC + 16 * j + 4 * q
        a("ds_write_b128 v%d, v[%d:%d] offset:%d" % (V_WR[j - 1], r, r + 3, q * 1024))


def rd_tile(a, j, dst):
    for q in range(4):
        a("ds_read_b128 v[%d:%d], v%d offset:%d" % (dst + 4 * q, dst + 4 * q + 3, V_RD, (j - 1) * 4096 + q * 1024))


def gemm64_core(a, cfg, n, A0, A1, Breg, issueB, window, pre_tickets=None, order=None, side=None, side_from=0, side_n=1,
                gate=None, side2=None, side2_from=0, ramp=None, resid=False):
    if order is None:
        order = [(1, i) for i in range(n)] + [(0, i) for i in range(n)]
    M = len(order)
    side = list(side or [])
    t = dict(pre_tickets or {})
    nxt = len(t)
    gpos = gate[0] if gate else M + 1
    gated = [False]

    def try_issue(limit):
        nonlocal nxt
        while nxt < M and nxt < limit:
            if nxt >= gpos and not gated[0]:
                return
            issueB(nxt)
            t[nxt] = a.vt()
            nxt += 1
            if gate and nxt == gate[3]:
                gate[1]()

    try_issue(ramp or window)
    if cfg.get("stamps") != 2:
        stamp(a, cfg, 1)
    last1 = max(e for e, (st, i) in enumerate(order) if st == 1)
    wr1 = last1 + 2
    bar1 = min(M - 2, last1 + 1 + max(2, (M - last1) // 2))
    seen = set()
    for e, (st, i) in enumerate(order):
        if gate and not gated[0] and e == gate[4]:
            assert not side
            gate[2]()
            gated[0] = True
            try_issue(e + window)
        a.wait_vm(t[e])
        if e == 0 and cfg.get("stamps") != 2:
            stamp(a, cfg, 2)
        first = "0" if st not in seen else None
        seen.add(st)
        if st == 1:
            mf(a, G_ACC + 16, A0(i), Breg(e), first or vr(G_ACC + 16, 16))
            mf(a, G_ACC + 48, A1(i), Breg(e), first or vr(G_ACC + 48, 16))
        else:
            mf(a, G_ACC + 32, A1(i), Breg(e), first or vr(G_ACC + 32, 16))
            mf(a, G_ACC, A0(i), Breg(e), first or vr(G_ACC, 16))
        try_issue(min(e + 1 + window, nxt + 2))
        if e >= side_from:
            k = 0
            while side and k < side_n:
                x = side.pop(0)
                a(x)
                k += x.startswith("buffer_")
        if side2 and e >= side2_from:
            for _ in range(2):
                if side2:
                    a(side2.pop(0))
        if e == wr1:
            wr_tile(a, 1)
            wr_tile(a, 3)
        if e == bar1:
            a("s_waitcnt lgkmcnt(0)")
            a("s_barrier")
            rd_tile(a, 1, G_RED)
            rd_tile(a, 3, G_RED + 16)
    assert wr1 <= bar1 < M and not side2
    stamp(a, cfg, 4)
    a("s_waitcnt lgkmcnt(0)")
    for e in range(6):
        a("v_add_f32 v%d, v%d, v%d" % (G_RED + e, G_RED + e, G_RED + 16 + e))
    wr_tile(a, 2)
    for e in range(6, 16):
        a("v_add_f32 v%d, v%d, v%d" % (G_RED + e, G_RED + e, G_RED + 16 + e))
    for e in range(16):
        a("v_add_f32 v%d, v%d, v%d" % (G_ACC + e, G_ACC + e, G_RED + e))
    if resid:
        for i in range(8):
            a("v_lshlrev_b32 v%d, 16, v%d" % (G_T, V_RES + i))
            a("v_and_b32 v%d, 0xffff0000, v%d" % (G_T + 1, V_RES + i))
            a("v_add_f32 v%d, v%d, v%d" % (G_ACC + 2 * i, G_ACC + 2 * i, G_T))
            a("v_add_f32 v%d, v%d, v%d" % (G_ACC + 2 * i + 1, G_ACC + 2 * i + 1, G_T + 1))
    for x in side:
        a(x)
    a("s_waitcnt lgkmcnt(0)")
    a("s_barrier")
    stamp(a, cfg, 6)
    rd_tile(a, 2, G_RED + 32)
    for q in range(4):
        a("s_waitcnt lgkmcnt(%d)" % (3 - q))
        for e in range(4):
            a("v_add_f32 v%d, v%d, v%d" % (G_ACC + 4 * q + e, G_ACC + 4 * q + e, G_RED + 32 + 4 * q + e))
    stamp(a, cfg, 7)


def res_epilogue(a, cfg, xout_add, final):
    for i in range(8):
        a("v_cvt_pk_bf16_f32 v%d, v%d, v%d" % (V_RES + i, G_ACC + 2 * i, G_ACC + 2 * i + 1))
        if i == 3 and final is None:
            st4(a, V_RES, V_L16, 34)
    if final is not None:
        a("s_cmp_eq_u32 s%d, 1" % S_LAYER)
        a("s_cbranch_scc1 %s" % final)
        st4(a, V_RES, V_L16, 34)
    st4(a, V_RES + 4, V_L16, 34, 1024)
    a("v_mov_b32 v%d, 0x3f803f80" % G_T)
    a("v_mov_b32 v%d, 0" % (G_T + 12))
    a("v_mov_b32 v%d, 0" % (G_T + 13))
    for r in range(8):
        a("v_dot2_f32_bf16 v%d, v%d, v%d, v%d" % (G_T + 12, V_RES + r, G_T, G_T + 12))
        a("v_dot2_f32_bf16 v%d, v%d, v%d, v%d" % (G_T + 13, V_RES + r, V_RES + r, G_T + 13))
    a("v_lshlrev_b32 v%d, 3, v%d" % (G_T + 2, V_R31))
    a("s_nop 1")
    a("v_mov_b32 v%d, v%d" % (G_T + 14, G_T + 12))
    a("v_mov_b32 v%d, v%d" % (G_T + 15, G_T + 13))
    a("s_nop 0")
    a("v_permlane32_swap_b32 v%d, v%d" % (G_T + 12, G_T + 14))
    a("v_permlane32_swap_b32 v%d, v%d" % (G_T + 13, G_T + 15))
    a("v_add_f32 v%d, v%d, v%d" % (G_T + 12, G_T + 12, G_T + 14))
    a("v_add_f32 v%d, v%d, v%d" % (G_T + 13, G_T + 13, G_T + 15))
    a("s_mov_b32 exec_lo, 0xffffffff\ns_mov_b32 exec_hi, 0x0")
    a("buffer_store_dwordx2 v[%d:%d], v%d, s[4:7], s35 offen %s" % (G_T + 12, G_T + 13, G_T + 2, SC))
    a("s_mov_b64 exec, -1")


def out_addr(a, xout_add):
    layer_off(a, 34, OFF_X, X_STRIDE, 2, xout_add)
    a("s_lshl_b32 s18, s%d, 15" % S_RT)
    a("s_add_u32 s34, s34, s18")
    a("s_lshl_b32 s18, s%d, 11" % S_NT)
    a("s_add_u32 s34, s34, s18")
    layer_off(a, 35, OFF_STAT, STAT_STRIDE, 2, xout_add)
    a("s_lshl_b32 s18, s%d, 12" % S_RT)
    a("s_add_u32 s35, s35, s18")
    a("s_lshl_b32 s18, s%d, 8" % S_NT)
    a("s_add_u32 s35, s35, s18")


S_Q0, S_Q1, S_KVW = 50, 51, 52


def wq_lines():
    b = Asm()
    for i in range(8):
        blk(b, ar(128 + 4 * i, 4), S_KVW, i)
    for i in range(8):
        blk(b, ar(160 + 4 * i, 4), S_Q0, i)
        blk(b, ar(192 + 4 * i, 4), S_Q1, i)
    return [l.strip() for l in b.lines]


def phase_qkv(a, cfg):
    SA0, SA1, SB0, SB1, SX, SKV = 24, 25, 26, 27, 28, 29
    CK = G_T + 8
    a("v_lshlrev_b32 v%d, 4, v%d" % (G_T + 1, V_H))
    a("v_lshlrev_b32 v%d, 2, v%d" % (G_T + 6, V_R31))
    a("s_mov_b32 s17, 0x%x" % OFF_CSKV)
    a("buffer_load_dwordx4 v[%d:%d], v%d, s[4:7], s17 offen offset:64" % (CK, CK + 3, G_T + 1))
    a("buffer_load_dwordx4 v[%d:%d], v%d, s[4:7], s17 offen offset:96" % (CK + 4, CK + 7, G_T + 1))
    a("buffer_load_dword v%d, v%d, s[4:7], s17 offen" % (G_T + 7, G_T + 6))
    layer_off(a, SX, OFF_X, X_STRIDE, 2, 0)
    b_addr(a, SB0, SB1, SX, 32, 8)
    layer_off(a, 30, OFF_STAT, STAT_STRIDE, 2, 0)
    a("s_lshl_b32 s17, s%d, 12" % S_RT)
    a("s_add_u32 s30, s30, s17")
    reduce_addr(a, LDS_RQ)
    layer_off(a, 33, OFF_KV, KV_STRIDE)
    a("s_lshr_b32 s36, s%d, 1" % S_HQ)
    a("s_lshl_b32 s17, s%d, 1" % S_RB)
    a("s_add_u32 s17, s17, s36")
    a("s_lshl_b32 s17, s17, 15")
    a("s_add_u32 s23, s17, s%d" % SX)
    a("s_lshl_b32 s17, s%d, 13" % S_W)
    a("s_add_u32 s23, s23, s17")
    a("s_sub_u32 s17, s%d, s36" % S_W)
    a("s_sub_u32 s17, s17, 1")
    a("s_and_b32 s17, s17, 3")
    a("s_lshl_b32 s17, s17, 12")
    a("s_add_u32 s17, s17, %d" % LDS_KVX)
    a("v_add_u32 v%d, s17, v%d" % (G_T + 2, V_L16))
    a("v_add_u32 v%d, %d, v%d" % (G_T + 3, LDS_KVX, V_L16))
    a("s_mul_i32 s37, s%d, 0x1000" % S_LAYER)
    a("s_add_u32 s37, s37, 0x%x" % (OFF_FLAGS + FL_KV))
    a("s_lshl_b32 s17, s%d, 4" % S_RB)
    a("s_add_u32 s37, s37, s17")
    a("s_lshl_b32 s17, s%d, 2" % S_HQ)
    a("s_add_u32 s37, s37, s17")
    stamp(a, cfg, 8)
    a("s_cmp_eq_u32 s%d, 0" % S_LAYER)
    a("s_cbranch_scc1 L_qkv_nowait")
    a("s_lshl_b32 s17, s%d, 7" % S_RB)
    a("s_add_u32 s38, s17, 0x%x" % (OFF_FLAGS + FL_X2))
    poll(a, cfg, 38, G_T + 6, G_T + 4)
    a("L_qkv_nowait:")
    stamp(a, cfg, 9)
    a("s_cmp_ge_u32 s%d, 4" % S_HQ)
    a("s_cbranch_scc1 L_qkv_stats")
    tK = {}
    for i in range(8):
        blk(a, ar(224 + 4 * i, 4), 23, i, SC)
        tK[i] = a.vt()
    load_stats(a, G_ST, 30, G_T, SC)
    stamp(a, cfg, 1)
    a("s_bitcmp1_b32 s%d, 0" % S_HQ)
    a("s_cbranch_scc1 L_qkv_v1")
    for v in range(2):
        if v:
            a("L_qkv_v%d:" % v)
        for i in range(8):
            a.wait_vm(tK[i])
            x, w = ar(224 + 4 * i, 4), ar(128 + 4 * i, 4)
            c = "0" if i == 0 else vr(G_KVACC, 16)
            if v & 1:
                mf(a, G_KVACC, x, w, c)
            else:
                mf(a, G_KVACC, w, x, c)
        if v < 1:
            a("s_branch L_qkv_kvred")
    a("L_qkv_kvred:")
    stamp(a, cfg, 2)
    a("s_waitcnt vmcnt(0)")
    finish_stats(a, G_ST, V_NMU, V_RSTD)
    for q in range(4):
        a("ds_write_b128 v%d, v[%d:%d] offset:%d" % (G_T + 2, G_KVACC + 4 * q, G_KVACC + 4 * q + 3, q * 1024))
    XS = LDS_KVX + 16384
    a("s_lshl_b32 s17, s%d, 8" % S_W)
    a("s_add_u32 s17, s17, %d" % XS)
    a("v_add_u32 v%d, s17, v%d" % (G_T + 4, G_T + 6))
    a("v_mul_f32 v%d, v%d, v%d" % (G_T + 5, V_NMU, V_RSTD))
    a("ds_write_b32 v%d, v%d" % (G_T + 4, V_RSTD))
    a("ds_write_b32 v%d, v%d offset:128" % (G_T + 4, G_T + 5))
    a("v_add_u32 v%d, s17, v%d" % (G_T + 4, G_T + 1))
    RS = G_ACC + 16
    for g in range(4):
        a("ds_read_b128 v[%d:%d], v%d offset:%d" % (RS + 4 * g, RS + 4 * g + 3, G_T + 4, 32 * g))
        a("ds_read_b128 v[%d:%d], v%d offset:%d" % (RS + 16 + 4 * g, RS + 16 + 4 * g + 3, G_T + 4, 128 + 32 * g))
    def b1_loads():
        cs_q()
        for e in range(8):
            blk(a, ar(64 + 4 * e, 4), SB1, e, SC)
            tB[e] = a.vt()

    def cs_q():
        a("s_lshl_b32 s17, s%d, 7" % S_NT)
        a("s_add_u32 s17, s17, 0x%x" % OFF_CSQ)
        for g in range(4):
            a("buffer_load_dwordx4 v[%d:%d], v%d, s[4:7], s17 offen offset:%d" % (G_CS + 4 * g, G_CS + 4 * g + 3, G_T + 1, 32 * g))
        a("s_add_u32 s17, s17, 4096")
        for g in range(4):
            a("buffer_load_dwordx4 v[%d:%d], v%d, s[4:7], s17 offen offset:%d" % (G_ST + 4 * g, G_ST + 4 * g + 3, G_T + 1, 32 * g))

    tB = {}
    b1_loads()
    a("s_waitcnt lgkmcnt(0)")
    a("s_barrier")
    stamp(a, cfg, 3)
    a("s_cmp_lg_u32 s%d, s36" % S_W)
    a("s_cbranch_scc1 L_qkv_q")
    RD = [G_RED + 16, G_RED + 32, G_ACC]
    for j in range(3):
        for q in range(4):
            a("ds_read_b128 v[%d:%d], v%d offset:%d" % (RD[j] + 4 * q, RD[j] + 4 * q + 3, G_T + 3, j * 4096 + q * 1024))
    for j in range(3):
        a("s_waitcnt lgkmcnt(%d)" % (8 - 4 * j))
        for e in range(16):
            a("v_add_f32 v%d, v%d, v%d" % (G_KVACC + e, G_KVACC + e, RD[j] + e))
    a("s_lshl_b32 s17, s%d, 10" % S_RT)
    a("s_add_u32 s34, s33, s17")
    a("s_bitcmp1_b32 s%d, 0" % S_HQ)
    a("s_cbranch_scc1 L_qkv_vfin")
    PK = G_RED + 16
    for e in range(8):
        a("v_fmac_f32 v%d, v%d, v%d" % (G_KVACC + 8 + e, V_NMU, CK + e))
        a("v_mul_f32 v%d, v%d, v%d" % (G_KVACC + 8 + e, V_RSTD, G_KVACC + 8 + e))
    pack8(a, PK, G_KVACC + 8)
    a("buffer_store_dwordx4 v[%d:%d], v%d, s[4:7], s34 offen %s" % (PK, PK + 3, V_L16, SC))
    a("v_mov_b32 v%d, 0" % (PK + 4))
    for r in range(4):
        a("v_dot2_f32_bf16 v%d, v%d, v%d, v%d" % (PK + 4, PK + r, PK + r, PK + 4))
    xhalf_sum(a, PK + 4, PK + 5)
    for d in ("row_shr:1", "row_shr:2", "row_shr:4", "row_shr:8"):
        a("v_max_f32_dpp v%d, v%d, v%d %s row_mask:0xf bank_mask:0xf" % (PK + 4, PK + 4, PK + 4, d))
    a("v_max_f32_dpp v%d, v%d, v%d row_bcast:15 row_mask:0xa bank_mask:0xf" % (PK + 4, PK + 4, PK + 4))
    a("s_lshl_b32 s18, s%d, 2" % S_RT)
    a("s_add_u32 s18, s18, s33")
    a("s_add_u32 s18, s18, 0x20000")
    a("s_mov_b32 exec_lo, 0x80000000\ns_mov_b32 exec_hi, 0x0")
    a("buffer_store_dword v%d, v%d, s[4:7], s18 offen %s" % (PK + 4, V_ZERO, SC))
    a("s_mov_b64 exec, -1")
    a("s_branch L_qkv_kvdone")
    a("L_qkv_vfin:")
    a("v_lshlrev_b32 v%d, 4, v%d" % (G_T + 4, V_R31))
    a("v_lshl_add_u32 v%d, v%d, 8, v%d" % (G_T + 4, V_H, G_T + 4))
    a("s_add_u32 s34, s34, 0x10000")
    for e in range(16):
        a("v_mul_f32 v%d, v%d, v%d" % (G_KVACC + e, RS + e, G_KVACC + e))
        a("v_fmac_f32 v%d, v%d, v%d" % (G_KVACC + e, RS + 16 + e, G_T + 7))
    pack8(a, G_ACC, G_KVACC)
    pack8(a, G_ACC + 4, G_KVACC + 8)
    a("s_mov_b32 exec_lo, 0xffff\ns_mov_b32 exec_hi, 0xffff")
    a("buffer_store_dwordx4 v[%d:%d], v%d, s[4:7], s34 offen %s" % (G_ACC, G_ACC + 3, G_T + 4, SC))
    a("buffer_store_dwordx4 v[%d:%d], v%d, s[4:7], s34 offen offset:512 %s" % (G_ACC + 4, G_ACC + 7, G_T + 4, SC))
    a("s_mov_b64 exec, -1")
    a("L_qkv_kvdone:")
    stamp(a, cfg, 5)
    a("v_lshlrev_b32 v%d, 9, v%d" % (G_T + 4, V_LANE))
    a("s_waitcnt vmcnt(0)")
    a("s_mov_b64 exec, 0xff")
    a("buffer_store_dword v%d, v%d, s[4:7], s37 offen %s" % (V_ONE, G_T + 4, SC))
    a("s_mov_b64 exec, -1")
    a("s_branch L_qkv_q")
    a("L_qkv_stats:")
    load_stats(a, G_ST, 30, G_T, SC)
    a("s_waitcnt vmcnt(0)")
    finish_stats(a, G_ST, V_NMU, V_RSTD)
    b1_loads()
    a("L_qkv_q:")
    stamp(a, cfg, 10)
    gemm64_core(a, dict(cfg, stamps=cfg.get('stamps') and 2), 8, lambda i: ar(160 + 4 * i, 4), lambda i: ar(192 + 4 * i, 4), lambda e: ar(64 + 4 * e, 4),
                lambda e: blk(a, ar(64 + 4 * e, 4), SB1 if e < 8 else SB0, e % 8, SC), 16, pre_tickets=tB, ramp=12)
    a("v_mul_f32 v%d, %s, v%d" % (G_T, fl(QSCALE), V_RSTD))
    for e in range(16):
        a("v_fmac_f32 v%d, v%d, v%d" % (G_ACC + e, V_NMU, G_CS + e))
        a("v_fmac_f32 v%d, v%d, v%d" % (G_ACC + e, V_NMU, G_ST + e))
        a("v_mul_f32 v%d, v%d, v%d" % (G_ACC + e, G_T, G_ACC + e))
    pack8(a, G_Q, G_ACC)
    pack8(a, G_Q + 4, G_ACC + 8)
    if cfg.get("store_q"):
        a("s_lshl_b32 s17, s%d, 15" % S_RT)
        a("s_lshl_b32 s18, s%d, 11" % S_NT)
        a("s_add_u32 s17, s17, s18")
        a("s_add_u32 s17, s17, 0x%x" % OFF_Q)
        a("buffer_store_dwordx4 v[%d:%d], v%d, s[4:7], s17 offen" % (G_Q, G_Q + 3, V_L16))
        a("buffer_store_dwordx4 v[%d:%d], v%d, s[4:7], s17 offen offset:1024" % (G_Q + 4, G_Q + 7, V_L16))
    stamp(a, cfg, 11)


A_C = [24, 40]
A_O = [56, 72]
A_S = [88, 104]
A_P = [120, 124, 128, 132]
A_KF = [136, 140]
A_VF = [[144, 148], [152, 156]]
A_VK, A_VV, A_VINC = 160, 161, 162
A_T = 164
LDS_V = 65536
LDS_ONES = 131072
LDS_ATT_FLAG = LDS_ONES + 5120
UNR = 4


EARLY = 5
W2ORD = [7 * mm + tl for tl in range(7) for mm in range(4)]
W2POS = {k: p for p, k in enumerate(W2ORD)}


def w2load(a, idx, s0, s1):
    i = W2ORD[idx >> 1]
    blk(a, w2reg(idx & 1, i), s1 if idx & 1 else s0, i)


def w2reg(s, i):
    idx = 2 * W2POS[i] + s
    if idx < 32:
        return ar(128 + 4 * idx, 4)
    if idx < 46:
        return vr(W2V + 4 * (idx - 32), 4)
    if idx < 54:
        return vr(136 + 4 * (idx - 46), 4)
    return vr(190 + 4 * (idx - 54), 4)


SLOT13 = [0, 2, 1, 3, 0, 2, 1]


def dma13(a, i, part=None):
    slot = SLOT13[i]
    for hh in range(2):
        a("s_add_u32 m0, s%d, %d" % (S_WL, slot * 32768 + hh * 4096))
        a("s_add_u32 s29, s%d, %d" % (S_W13, i * 32768 + hh * 4096))
        for q in range(4):
            a("buffer_load_dwordx4 v%d, s[4:7], s29 offen offset:%d lds" % (V_L16, q * 1024))


def dma_lines(i):
    b = Asm()
    dma13(b, i)
    return [l.strip() for l in b.lines]


def phase_att(a, cfg):
    Q = [G_Q, G_Q + 4]
    SA0, SA1, SW0, SW1 = 24, 25, 26, 27
    a("v_mov_b32 v%d, 0x3f803f80" % (A_T + 4))
    if cfg.get("zpad", 1):
        a("v_and_b32 v%d, 8, v0" % (A_T + 5))
        a("v_cmp_eq_u32 vcc, 0, v%d" % (A_T + 5))
        a("v_cndmask_b32 v%d, v%d, v%d, vcc" % (A_T + 4, V_ZERO, A_T + 4))
    for r in range(1, 4):
        a("v_mov_b32 v%d, v%d" % (A_T + 4 + r, A_T + 4))
    a("v_lshlrev_b32 v%d, 4, v0" % (A_T + 2))
    a("v_add_u32 v%d, %d, v%d" % (A_T + 2, LDS_ONES, A_T + 2))
    a("ds_write_b128 v%d, v[%d:%d]" % (A_T + 2, A_T + 4, A_T + 7))
    a("ds_write_b128 v%d, v[%d:%d] offset:1024" % (A_T + 2, A_T + 4, A_T + 7))
    a("v_and_b32 v%d, 15, v%d" % (A_T + 2, V_LANE))
    a("v_lshlrev_b32 v%d, 4, v%d" % (A_T + 2, A_T + 2))
    a("v_lshl_add_u32 v%d, v%d, 8, v%d" % (A_T + 2, V_H, A_T + 2))
    a("v_add_u32 v%d, %d, v%d" % (A_VV, LDS_V, A_T + 2))
    a("v_add_u32 v%d, -20, v%d" % (A_T + 3, V_R31))
    a("v_cmp_gt_u32 vcc, 8, v%d" % (A_T + 3))
    a("v_mov_b32 v%d, %d" % (A_T + 2, LDS_ONES))
    a("v_mov_b32 v%d, %d" % (A_T + 3, LDS_ONES + 64))
    a("v_cndmask_b32 v%d, v%d, v%d, vcc" % (A_T + 2, A_T + 2, A_T + 3))
    if cfg.get("zpad", 1):
        a("v_and_b32 v%d, 27, v%d" % (A_T + 3, V_R31))
        a("v_cmp_ne_u32 vcc, 16, v%d" % (A_T + 3))
        a("v_add_u32 v%d, 128, v%d" % (A_T + 3, A_T + 2))
        a("v_cndmask_b32 v%d, v%d, v%d, vcc" % (A_T + 2, A_T + 2, A_T + 3))
    a("v_cmp_le_u32 vcc, 16, v%d" % V_R31)
    a("v_mov_b32 v%d, %d" % (A_VINC, UNR * 1024))
    a("v_cndmask_b32 v%d, v%d, v%d, vcc" % (A_VV, A_VV, A_T + 2))
    a("v_cndmask_b32 v%d, v%d, v%d, vcc" % (A_VINC, A_VINC, V_ZERO))
    for t in range(2):
        n = A_T + 8 + t
        a("v_mov_b32 v%d, 0" % n)
        for r in range(4):
            a("v_dot2_f32_bf16 v%d, v%d, v%d, v%d" % (n, Q[t] + r, Q[t] + r, n))
    for t in range(2):
        xhalf_sum(a, A_T + 8 + t, A_T + 10)
    a_addr(a, SA0, SA1, OFF_WO, 32, 8)
    a("s_mul_i32 s%d, s%d, %d" % (S_W13, S_M, 7 * 32768))
    a("s_lshl_b32 s%d, s%d, 13" % (S_WL, S_W))
    a("s_add_u32 s%d, s%d, s%d" % (S_W13, S_W13, S_WL))
    a("s_add_u32 s%d, s%d, 0x%x" % (S_W13, S_W13, OFF_W13))
    a_addr(a, SW0, SW1, OFF_W2, 112, 28)
    a("s_lshl_b32 s20, s%d, 10" % S_W)
    a("s_add_u32 s21, s33, s20")
    a("s_add_u32 s22, s21, 0x10000")
    a("s_add_u32 s23, s20, %d" % LDS_V)
    a("s_mul_i32 s38, s%d, 0x1000" % S_LAYER)
    a("s_add_u32 s38, s38, 0x%x" % (OFF_FLAGS + FL_KV))
    a("s_and_b32 s17, s2, 7")
    a("s_lshl_b32 s17, s17, 9")
    a("s_add_u32 s38, s38, s17")
    stamp(a, cfg, 1)
    a("v_lshlrev_b32 v%d, 3, v%d" % (A_T + 14, V_LANE))
    a("s_cmp_lg_u32 s%d, 0" % S_W)
    a("s_cbranch_scc1 L_att_nopoll")
    poll(a, cfg, 38, A_T + 14, A_T + 12, wide=True, sleep=cfg.get("kv_sleep", 2))
    a("L_att_nopoll:")
    a("s_barrier")
    stamp(a, cfg, 2)
    a("s_add_u32 s17, s33, 0x20000")
    a("buffer_load_dword v%d, v%d, s[4:7], s17 offen %s" % (A_T + 1, V_L4, SC))
    t_kn = a.vt()
    def kvdma(g):
        a("s_add_u32 m0, s20, %d" % (g * 4096))
        a("s_add_u32 s17, s21, %d" % (g * 4096))
        a("buffer_load_dwordx4 v%d, s[4:7], s17 offen %s lds" % (V_L16, SC))
        a("s_add_u32 m0, s23, %d" % (g * 4096))
        a("s_add_u32 s17, s22, %d" % (g * 4096))
        a("buffer_load_dwordx4 v%d, s[4:7], s17 offen %s lds" % (V_L16, SC))

    G1 = 6
    for g in range(G1):
        kvdma(g)
        if g == 3:
            t_g3 = a.vt()
            a.wait_vm(t_kn)
            k2 = A_T + 1
            for d in ("row_shr:1", "row_shr:2", "row_shr:4", "row_shr:8"):
                a("v_max_f32_dpp v%d, v%d, v%d %s row_mask:0xf bank_mask:0xf" % (k2, k2, k2, d))
            a("v_max_f32_dpp v%d, v%d, v%d row_bcast:15 row_mask:0xa bank_mask:0xf" % (k2, k2, k2))
            a("v_max_f32_dpp v%d, v%d, v%d row_bcast:31 row_mask:0xc bank_mask:0xf" % (k2, k2, k2))
            a("v_readlane_b32 s18, v%d, 63" % k2)
            for t in range(2):
                n = A_T + 8 + t
                a("v_mul_f32 v%d, s18, v%d" % (n, n))
                a("v_sqrt_f32 v%d, v%d" % (n, n))
            for t in range(2):
                n = A_T + 8 + t
                a("v_mul_f32 v%d, %s, v%d" % (n, fl(-1.001), n))
            a("v_min_f32 v%d, v%d, v%d" % (A_T + 10, A_T + 8, A_T + 9))
            a("v_mov_b32 v%d, %s" % (A_T + 11, fl(-cfg.get("bound_t", BOUND_T))))
            a("v_cmp_nge_f32 vcc, v%d, v%d" % (A_T + 10, A_T + 11))
            a("s_lshl_b32 s19, s%d, 2" % S_W)
            a("s_add_u32 s19, s19, %d" % LDS_ATT_FLAG)
            a("v_mov_b32 v%d, s19" % (A_T + 12))
            a("s_cmp_lg_u64 vcc, 0")
            a("s_cselect_b32 s18, 1, 0")
            a("v_mov_b32 v%d, s18" % (A_T + 11))
            a("ds_write_b32 v%d, v%d" % (A_T + 12, A_T + 11))
            for t in range(2):
                for r in range(16):
                    a("v_mov_b32 v%d, v%d" % (A_C[t] + r, A_T + 8 + t))
    stamp(a, cfg, 3)
    a.wait_vm(t_g3)
    a("s_waitcnt lgkmcnt(0)")
    a("s_barrier")
    stamp(a, cfg, 4)
    a("v_mov_b32 v%d, %d" % (A_T + 12, LDS_ATT_FLAG))
    a("ds_read_b128 v[%d:%d], v%d" % (A_T + 4, A_T + 7, A_T + 12))
    a("ds_read_b128 v[%d:%d], v%d" % (A_KF[0], A_KF[0] + 3, V_L16))
    a("ds_read_b128 v[%d:%d], v%d" % (A_VF[0][0], A_VF[0][0] + 3, A_VV))
    a("ds_read_b128 v[%d:%d], v%d offset:512" % (A_VF[0][1], A_VF[0][1] + 3, A_VV))
    a("ds_read_b128 v[%d:%d], v%d offset:1024" % (A_KF[1], A_KF[1] + 3, V_L16))
    a("s_waitcnt lgkmcnt(4)")
    a("v_or_b32 v%d, v%d, v%d" % (A_T + 4, A_T + 4, A_T + 5))
    a("v_or3_b32 v%d, v%d, v%d, v%d" % (A_T + 4, A_T + 4, A_T + 6, A_T + 7))
    a("v_readfirstlane_b32 s18, v%d" % (A_T + 4))
    a("s_cmp_eq_u32 s18, 0")
    a("s_cbranch_scc1 L_att_fast")
    keep = a.vm_issued
    for g in range(G1, 16):
        kvdma(g)
    a.vm_issued = keep
    a("s_waitcnt vmcnt(0)")
    a("s_barrier")
    a("v_mov_b32 v%d, 0xff800000" % (A_T + 8))
    a("v_mov_b32 v%d, 0xff800000" % (A_T + 9))
    a("v_mov_b32 v%d, v%d" % (A_T + 12, V_L16))
    a("s_mov_b32 s19, 64")
    a("L_att_pre:")
    a("ds_read_b128 v[%d:%d], v%d" % (A_P[0], A_P[0] + 3, A_T + 12))
    a("v_add_u32 v%d, 1024, v%d" % (A_T + 12, A_T + 12))
    a("s_waitcnt lgkmcnt(0)")
    for t in range(2):
        mf(a, A_S[t], vr(A_P[0], 4), vr(Q[t], 4), "0")
    for t in range(2):
        for r in range(0, 16, 2):
            a("v_max3_f32 v%d, v%d, v%d, v%d" % (A_T + 8 + t, A_S[t] + r, A_S[t] + r + 1, A_T + 8 + t))
    a("s_sub_u32 s19, s19, 1")
    a("s_cmp_lg_u32 s19, 0")
    a("s_cbranch_scc1 L_att_pre")
    for t in range(2):
        n = A_T + 8 + t
        a("v_mov_b32 v%d, v%d" % (A_T + 10, n))
        a("v_permlane32_swap_b32 v%d, v%d" % (n, A_T + 10))
        a("v_max_f32 v%d, v%d, v%d" % (n, n, A_T + 10))
        a("v_sub_f32 v%d, 0, v%d" % (n, n))
        for r in range(16):
            a("v_mov_b32 v%d, v%d" % (A_C[t] + r, n))
    a("L_att_fast:")
    a("s_waitcnt lgkmcnt(0)")

    def m4(d, x, y, c):
        mf(a, d, vr(x, 4), vr(y, 4), vr(c, 16))

    def ex(r):
        a("v_exp_f32 v%d, v%d" % (r, r))

    def cv(d, s):
        a("v_cvt_pk_bf16_f32 v%d, v%d, v%d" % (d, s, s + 1))

    m4(A_S[0], A_KF[0], Q[0], A_C[0])
    a("s_nop 7")

    def lines_of(fn):
        b = Asm()
        fn(b)
        return [l.strip() for l in b.lines]

    def groups(lines):
        out, cur = [], []
        for x in lines:
            cur.append(x)
            if x.startswith("buffer_"):
                out.append(cur)
                cur = []
        assert not cur
        return out

    def kvl(g):
        return ["s_add_u32 m0, s20, %d" % (g * 4096), "s_add_u32 s17, s21, %d" % (g * 4096),
                "buffer_load_dwordx4 v%d, s[4:7], s17 offen %s lds" % (V_L16, SC),
                "s_add_u32 m0, s23, %d" % (g * 4096), "s_add_u32 s17, s22, %d" % (g * 4096),
                "buffer_load_dwordx4 v%d, s[4:7], s17 offen %s lds" % (V_L16, SC)]

    q_kv = []
    for g in range(G1, 16):
        q_kv += [(x, g) for x in groups(kvl(g))]
    q_w = []
    for i in range(8):
        q_w += groups(lines_of(lambda b: blk(b, ar(4 * i, 4), SA0, i)))
        q_w += groups(lines_of(lambda b: blk(b, ar(32 + 4 * i, 4), SA1, i)))
    for idx in range(46):
        q_w += groups(lines_of(lambda b: w2load(b, idx, SW0, SW1)))
    q_t = [["s_add_u32 s17, s49, %d" % (q * 4096), "buffer_load_dword v%d, v%d, s[4:7], s17 offen" % (A_T + 3, A_T + 2)] for q in range(5)]
    if not cfg.get("touch13", 1):
        q_t = []
    q_d = groups(dma_lines(0) + dma_lines(1))
    a("s_mul_i32 s49, s%d, %d" % (S_M, 7 * 32768))
    a("s_and_b32 s18, s%d, 1" % S_RG)
    a("s_mul_i32 s18, s18, %d" % 81920)
    a("s_add_u32 s49, s49, s18")
    a("s_mul_i32 s18, s%d, %d" % (S_W, 20480))
    a("s_add_u32 s49, s49, s18")
    a("s_add_u32 s49, s49, 0x%x" % (OFF_W13 + 65536))
    a("v_lshlrev_b32 v%d, 6, v%d" % (A_T + 2, V_LANE))
    tg = {}
    NU = 128
    BAR = {16: 9, 36: 15}
    for u in range(NU):
        j, t = u >> 1, u & 1
        nj, nt = (u + 1) >> 1, (u + 1) & 1
        pj, pt = (u - 1) >> 1, (u - 1) & 1
        jj = j % UNR
        sb, nsb = A_S[u % 2], A_S[(u + 1) % 2]
        plo, phi = A_P[(u % 2) * 2], A_P[(u % 2) * 2 + 1]
        pphi = A_P[((u - 1) % 2) * 2 + 1]
        if u + 1 < NU:
            m4(nsb, A_KF[nj % 2], Q[nt], A_C[nt])
        if t == 0 and j + 2 < 64:
            a("ds_read_b128 v[%d:%d], v%d offset:%d" % (A_KF[j % 2], A_KF[j % 2] + 3, V_L16, (j + 2) * 1024))
        for r in range(0, 4):
            ex(sb + r)
        if u > 0:
            m4(A_O[pt], A_VF[pj % 2][1], pphi, A_O[pt])
        if t == 0 and j + 1 < 64:
            off = (jj + 1) * 1024
            a("ds_read_b128 v[%d:%d], v%d offset:%d" % (A_VF[(j + 1) % 2][0], A_VF[(j + 1) % 2][0] + 3, A_VV, off))
            a("ds_read_b128 v[%d:%d], v%d offset:%d" % (A_VF[(j + 1) % 2][1], A_VF[(j + 1) % 2][1] + 3, A_VV, off + 512))
        if t == 1:
            grp = None
            if q_kv:
                grp, g = q_kv.pop(0)
            elif u >= 68 and q_d:
                grp, g = q_d.pop(0), None
            elif q_t and u >= 24 and u % 8 == 1:
                grp, g = q_t.pop(0), None
            elif q_w:
                grp, g = q_w.pop(0), None
            if grp:
                for x in grp:
                    a(x)
                if g is not None:
                    tg[g] = a.vt()
        for r in range(4, 9):
            ex(sb + r)
        for r in range(0, 4):
            cv(plo + r, sb + 2 * r)
        for r in range(9, 12):
            ex(sb + r)
        m4(A_O[t], A_VF[j % 2][0], plo, A_O[t]) if u > 1 else mf(a, A_O[t], vr(A_VF[j % 2][0], 4), vr(plo, 4), "0")
        if t == 1:
            a("s_waitcnt lgkmcnt(0)")
            if (j + 3) in BAR:
                g = BAR[j + 3]
                if g is not None:
                    a.wait_vm(tg[g])
                a("s_barrier")
                if j + 3 == 16:
                    stamp(a, cfg, 6)
        else:
            grp = None
            if q_kv:
                grp, g = q_kv.pop(0)
            elif q_w and u >= 20:
                grp, g = q_w.pop(0), None
            elif u >= 68 and q_d:
                grp, g = q_d.pop(0), None
            elif q_t and u >= 64:
                grp, g = q_t.pop(0), None
            if grp:
                for x in grp:
                    a(x)
                if g is not None:
                    tg[g] = a.vt()
        for r in range(12, 16):
            ex(sb + r)
        if t == 1 and jj == UNR - 1:
            a("v_add_u32 v%d, v%d, v%d" % (A_VV, A_VINC, A_VV))
        for r in range(4, 8):
            cv(phi + r - 4, sb + 2 * r)
    assert not (q_kv or q_w or q_t or q_d), (len(q_kv), len(q_w), len(q_t), len(q_d))
    units = [(63, 1)]
    U = 128
    a("L_att_done:")
    stamp(a, cfg, 7)
    lj, lt = units[-1]
    m4(A_O[lt], A_VF[lj % 2][1], A_P[((U - 1) % 2) * 2 + 1], A_O[lt])
    layer_off(a, 34, OFF_O, X_STRIDE)
    a("s_lshl_b32 s18, s%d, 15" % S_RT)
    a("s_add_u32 s34, s34, s18")
    a("s_lshl_b32 s18, s%d, 11" % S_NT)
    a("s_add_u32 s34, s34, s18")
    for t in range(2):
        a("v_rcp_f32 v%d, v%d" % (A_T, A_O[t] + 8))
        for r in range(8):
            a("v_mul_f32 v%d, v%d, v%d" % (A_O[t] + r, A_T, A_O[t] + r))
        pack8(a, A_P[t], A_O[t])
        st4(a, A_P[t], V_L16, 34, t * 1024)
    flag_addr(a, S_FO, FL_O, S_RB, 7, S_HQ)
    publish(a, S_FO, 34)
    stamp(a, cfg, 8)


def phase_wo(a, cfg):
    SB0, SB1, SX = 26, 27, 28
    a("s_barrier")
    if not cfg.get("pf_att", 1):
        for i in range(8):
            blk(a, ar(4 * i, 4), 24, i)
            blk(a, ar(32 + 4 * i, 4), 25, i)
    dma13(a, 2)
    layer_off(a, SX, OFF_O, X_STRIDE)
    b_addr(a, SB0, SB1, SX, 32, 8)
    reduce_addr(a, LDS_R1)
    out_addr(a, 1)
    flag_addr(a, 38, FL_O, S_RB, 7)
    a("s_lshl_b32 s17, s%d, 5" % S_W)
    a("s_add_u32 s38, s38, s17")
    a("v_and_b32 v%d, 28, v%d" % (G_T + 5, V_L4))
    flag_addr(a, S_FX1, FL_X1, S_RG, 8, S_M)
    stamp(a, cfg, 8)
    poll(a, cfg, 38, G_T + 5, G_T + 4)
    stamp(a, cfg, 9)
    gemm64_core(a, cfg, 8, lambda i: ar(4 * i, 4), lambda i: ar(32 + 4 * i, 4), lambda e: ar(64 + 4 * e, 4),
                lambda e: blk(a, ar(64 + 4 * e, 4), SB1 if e < 8 else SB0, e % 8, SC), 16, ramp=cfg.get("ramp1", 8), resid=True)
    res_epilogue(a, cfg, 1, None)
    stamp(a, cfg, 10)
    publish(a, S_FX1, 34)
    stamp(a, cfg, 11)


F_ACC = [24, 40, 56, 72]
NACC = 4
F_W = 88
F_CS = 120
F_H = 128
F_ST = 136
F_T = 168
F_LA = [184, 185]
F_NMU, F_C1, F_RS2, F_CSA, F_LG = 186, 187, 188, 189, 198


def phase_ffn1(a, cfg):
    SX, SH = 24, 27
    a("s_barrier")
    dma13(a, 3)
    a("s_mul_i32 s29, s%d, %d" % (S_M, 7 * 1024))
    a("s_lshl_b32 s17, s%d, 11" % S_W)
    a("s_add_u32 s29, s29, s17")
    a("s_add_u32 m0, s17, %d" % LDS_CS)
    a("s_add_u32 s29, s29, 0x%x" % OFF_CSX)
    a("buffer_load_dwordx4 v%d, s[4:7], s29 offen lds" % V_L16)
    a("buffer_load_dwordx4 v%d, s[4:7], s29 offen offset:1024 lds" % V_L16)
    t_w = a.vt()
    a("s_lshl_b32 s30, s%d, 2" % S_RG)
    a("s_add_u32 s30, s30, s%d" % S_W)
    layer_off(a, SX, OFF_X, X_STRIDE, 2, 1)
    a("s_lshl_b32 s17, s30, 15")
    a("s_add_u32 s%d, s%d, s17" % (SX, SX))
    a("s_add_u32 s25, s%d, %d" % (SX, 28 * 1024))
    layer_off(a, 26, OFF_STAT, STAT_STRIDE, 2, 1)
    a("s_lshl_b32 s18, s30, 12")
    a("s_add_u32 s26, s26, s18")
    layer_off(a, SH, OFF_H, H_STRIDE)
    a("s_mul_i32 s17, s30, %d" % (112 * 1024))
    a("s_add_u32 s%d, s%d, s17" % (SH, SH))
    a("s_mul_i32 s17, s%d, %d" % (S_M, 7 * 1024))
    a("s_add_u32 s%d, s%d, s17" % (SH, SH))
    a("v_mov_b32 v%d, v%d" % (F_LA[0], V_L16))
    a("v_add_u32 v%d, 65536, v%d" % (F_LA[1], V_L16))
    a("v_add_u32 v%d, %d, v%d" % (F_CSA, LDS_CS, V_L16))
    a_addr(a, 53, 54, OFF_W2, 112, 28)
    flag_addr(a, 38, FL_X1, S_RG, 8)
    a("s_lshr_b32 s17, s%d, 1" % S_W)
    a("s_lshl_b32 s17, s17, 7")
    a("s_add_u32 s38, s38, s17")
    a("s_and_b32 s17, s%d, 1" % S_W)
    a("s_lshl_b32 s17, s17, 2")
    a("s_add_u32 s38, s38, s17")
    lane_pat(a, F_T + 2, 15, 0, 3)
    flag_addr(a, S_FH, FL_H, S_RG, 9, S_M, per_layer=0x2000)
    stamp(a, cfg, 1)
    poll(a, cfg, 38, F_T + 2, F_T)
    stamp(a, cfg, 2)
    a("s_barrier")
    tX = {}

    def xload(i):
        if i < 28:
            blk(a, ar(4 * i, 4), SX, i, SC)
        else:
            blk(a, ar(4 * i, 4), 25, i - 28, SC)
        tX[i] = a.vt()

    XW = cfg.get("xwin", 10)
    for i in range(XW):
        xload(i)

    def wread(tile, ks, ring):
        slot = SLOT13[tile]
        if ks == 32:
            a("ds_read_b128 v[%d:%d], v%d offset:%d" % (F_W + 4 * ring, F_W + 4 * ring + 3, F_CSA, tile * 1024))
            return
        a("ds_read_b128 v[%d:%d], v%d offset:%d" % (F_W + 4 * ring, F_W + 4 * ring + 3, F_LA[slot >> 1], (slot & 1) * 32768 + ks * 1024))

    def epi(tile):
        acc, cs = F_ACC[tile % NACC], F_CS
        hp = F_H + 4 * (tile % 2)
        out = []
        for e in range(8):
            out.append("v_fma_f32 v%d, v%d, v%d, v%d" % (F_T + 8 + e, F_C1, acc + e, F_LG))
        for e in range(8):
            out.append("v_exp_f32 v%d, v%d" % (F_T + 8 + e, F_T + 8 + e))
            out.append("v_mul_f32 v%d, v%d, v%d" % (acc + e, acc + e, acc + 8 + e))
            if e:
                out.append("v_add_f32 v%d, v%d, v%d" % (F_T + 7 + e, F_RS2, F_T + 7 + e))
        out.append("v_add_f32 v%d, v%d, v%d" % (F_T + 15, F_RS2, F_T + 15))
        for e in range(8):
            out.append("v_rcp_f32 v%d, v%d" % (F_T + 8 + e, F_T + 8 + e))
            if e:
                out.append("v_mul_f32 v%d, v%d, v%d" % (acc + e - 1, F_T + 7 + e, acc + e - 1))
        out.append("v_mul_f32 v%d, v%d, v%d" % (acc + 7, F_T + 15, acc + 7))
        for i in range(4):
            out.append("v_cvt_pk_bf16_f32 v%d, v%d, v%d" % (hp + i, acc + 2 * i, acc + 2 * i + 1))
        out.append("buffer_store_dwordx4 v[%d:%d], v%d, s[4:7], s%d offen offset:%d %s" % (hp, hp + 3, V_OFF[tile // 4], SH, (tile % 4) * 1024, SC))
        if DBL[0]:
            out.append("buffer_store_dwordx4 v[%d:%d], v%d, s[4:7], s%d offen offset:%d" % (hp, hp + 3, V_OFF[tile // 4], SH, (tile % 4) * 1024))
        return out

    G0 = cfg.get("g0", 2)
    steps = []
    for ks in range(33):
        for tl in range(G0):
            steps.append((tl, ks))
    for tile in range(G0, 7):
        for ks in range(33):
            steps.append((tile, ks))
    N = len(steps)
    PF = 6
    lt = {}
    first_of, last_of = {}, {}
    for n, (tile, ks) in enumerate(steps):
        first_of.setdefault(tile, n)
        last_of[tile] = n
    dma_q = []
    fence_t = {}

    def do_read(n):
        tile, ks = steps[n]
        if n == first_of[tile] and tile >= 4:
            assert tile in fence_t and not any(q[0] == tile for q in dma_q), tile
            a.wait_vm(fence_t[tile])
            a("s_barrier")
        wread(tile, ks, n % 8)
        lt[n] = a.lt()

    cs_t = 0
    for n in range(PF):
        do_read(n)
    pending = []
    nx = XW
    nst, st_t, st_n, early_done = 0, {}, {}, False
    for n, (tile, ks) in enumerate(steps):
        if tile >= G0 and ks == 0:
            stamp(a, cfg, 1 + tile)
        if tile == 0 and ks < 32:
            a.wait_vm(tX[ks])
        if n % 2 == 0:
            a.wait_lg(lt[min(n + 1, N - 1)])
            lg_done = lt[min(n + 1, N - 1)]
        acc = F_ACC[tile % NACC]
        mf(a, acc, vr(F_W + 4 * (n % 8), 4), ar(4 * ks, 4) if ks < 32 else vr(F_CS, 4), "0" if ks == 0 else vr(acc, 16))
        if tile < G0 and nx < 32:
            xload(nx)
            nx += 1
            if nx == 32:
                load_stats(a, F_ST, 26, F_T, SC)
                t_st = a.vt()
        if n + PF < N:
            do_read(n + PF)
        if n == last_of[G0 - 1] + 2:
            a("s_barrier")
            for tl in range(4, 4 + min(G0, 3)):
                dma_q += [(tl, x) for x in dma_lines(tl)]
        for old in range(G0, 3):
            if n == last_of[old] + 2:
                a("s_barrier")
                dma_q += [(old + 4, x) for x in dma_lines(old + 4)]
                if old == 2:
                    b = Asm()
                    for idx in range(46, 56):
                        w2load(b, idx, 53, 54)
                    dma_q += [(99, l.strip()) for l in b.lines]
        if dma_q and n % cfg.get("dma_every", 3) == 0:
            while dma_q:
                tl, x = dma_q.pop(0)
                a(x)
                if x.startswith("buffer_load"):
                    fence_t[tl] = a.vt()
                    break
        if n == last_of[G0 - 1] - G0 - 2:
            a.wait_vm(t_st)
            finish_stats(a, F_ST, F_NMU, F_RS2)
            a("v_mul_f32 v%d, %s, v%d" % (F_C1, fl(-LOG2E), F_RS2))
            a("v_mov_b32 v%d, v%d" % (F_RS2, F_ST + 1))
            a("v_log_f32 v%d, v%d" % (F_LG, F_ST + 1))
            split3(a, F_NMU, F_CS + 4)
            hi, mi, lo = F_CS + 4, F_CS + 5, F_CS + 6
            a("v_lshrrev_b32 v%d, 16, v%d" % (F_CS + 7, hi))
            a("v_or_b32 v%d, v%d, v%d" % (F_CS, F_CS + 7, mi))
            a("v_or_b32 v%d, v%d, v%d" % (F_CS + 1, F_CS + 7, lo))
            a("v_mov_b32 v%d, v%d" % (F_CS + 2, F_CS))
            a("v_mov_b32 v%d, 0" % (F_CS + 3))
        for tl in range(0, 6):
            if n == max(last_of[tl], last_of[G0 - 1]) + 3:
                pending += epi(tl)
        cost = 0
        lim = cfg.get("epi_cost", 12)
        while pending:
            x = pending[0]
            if x == "CSWAIT":
                pending.pop(0)
                if cs_t > lg_done:
                    a.wait_lg(cs_t)
                    cost += 4
                continue
            cx = 8 if x.split()[0] in TRANS else (8 if x.startswith("buffer_") else 4)
            if cost + cx > lim:
                break
            pending.pop(0)
            a(x)
            cost += cx
            if x.startswith("ds_read"):
                cs_t = a.lt()
            if x.startswith("buffer_store"):
                nst += 1
                st_t[nst - 1] = a.vt()
                st_n[nst - 1] = n
        if not early_done and nst >= EARLY and n >= st_n[EARLY - 1] + cfg.get("early_lag", 16):
            a.wait_vm(st_t[EARLY - 1])
            a("s_mov_b64 exec, 1")
            a("buffer_store_dword v%d, v%d, s[4:7], s%d offen offset:%d %s" % (V_ONE, V_ZERO, S_FH, 0x100, SC))
            touch_lines(a, SH, 8 * EARLY)
            a("s_mov_b64 exec, -1")
            early_done = True
    assert early_done
    assert not dma_q
    stamp(a, cfg, 8)
    for x in pending + epi(6):
        if x == "CSWAIT":
            a.wait_lg(cs_t)
            continue
        a(x)
        if x.startswith("ds_read"):
            cs_t = a.lt()
    stamp(a, cfg, 9)
    a("s_add_u32 s17, s%d, %d" % (SH, EARLY * 1024))
    publish(a, S_FH, 17, 8 * (7 - EARLY))
    stamp(a, cfg, 10)


def phase_ffn2(a, cfg):
    SB0, SB1, SX = 26, 27, 28
    SW0, SW1 = 24, 25
    a("s_cmp_eq_u32 s%d, 1" % S_LAYER)
    for r in (S_Q0, S_Q1, S_KVW):
        a("s_cselect_b32 s%d, 0xf0000000, s%d" % (r, r))
    side = []
    if cfg.get("touchq", 0):
        a("s_lshl_b32 s49, s%d, 16" % S_HQ)
        a("s_and_b32 s18, s%d, 3" % S_RB)
        a("s_lshl_b32 s18, s18, 14")
        a("s_add_u32 s49, s49, s18")
        a("s_lshl_b32 s18, s%d, 12" % S_W)
        a("s_add_u32 s49, s49, s18")
        a("s_add_u32 s49, s49, 0x%x" % OFF_WQ)
        a("s_cmp_eq_u32 s%d, 1" % S_LAYER)
        a("s_cselect_b32 s49, 0xf0000000, s49")
        a("v_lshlrev_b32 v%d, 6, v%d" % (G_T + 2, V_LANE))
        side.append("buffer_load_dword v%d, v%d, s[4:7], s49 offen" % (G_T + 3, G_T + 2))
    layer_off(a, SX, OFF_H, H_STRIDE)
    b_addr(a, SB0, SB1, SX, 112, 28)
    reduce_addr(a, LDS_R1)
    out_addr(a, 2)
    flag_addr(a, 38, FL_H, S_RG, 9, per_layer=0x2000)
    a("s_lshl_b32 s17, s%d, 6" % S_W)
    a("s_add_u32 s38, s38, s17")
    a("s_and_b32 s17, s%d, 1" % S_RB)
    a("s_lshl_b32 s17, s17, 3")
    a("s_add_u32 s38, s38, s17")
    lane_pat(a, G_T + 6, 7, 0, 2)
    a("s_lshl_b32 s17, s%d, 7" % S_RB)
    a("s_add_u32 s39, s17, 0x%x" % (OFF_FLAGS + FL_X2))
    a("s_lshl_b32 s17, s%d, 4" % S_HQ)
    a("s_add_u32 s39, s39, s17")
    a("s_lshl_b32 s17, s%d, 2" % S_W)
    a("s_add_u32 s39, s39, s17")
    stamp(a, cfg, 8)
    poll(a, cfg, 38, G_T + 6, G_T + 4, imm=0x100)
    stamp(a, cfg, 9)
    R = 32

    def hreg(e):
        return ar(4 * (e % R), 4)

    early = [7 * mm + tl for tl in range(EARLY) for mm in range(4)]
    late = [7 * mm + tl for tl in range(EARLY, 7) for mm in range(4)]
    order = [(1, i) for i in early] + [(0, i) for i in early] + [(1, i) for i in late] + [(0, i) for i in late]
    tp = {}

    def probe():
        a("buffer_load_dword v%d, v%d, s[4:7], s38 offen %s" % (G_T + 5, G_T + 6, SC))
        tp[0] = a.vt()

    def check():
        a.wait_vm(tp[0])
        a("v_cmp_ne_u32 vcc, 1, v%d" % (G_T + 5))
        a("s_cbranch_vccz L_ffn2_go")
        keep = a.vm_issued
        poll(a, cfg, 38, G_T + 6, G_T + 4)
        a.vm_issued = keep
        a("L_ffn2_go:")
        stamp(a, cfg, 3)

    pp = cfg.get("probe_at", 20)
    gemm64_core(a, cfg, 28, lambda i: w2reg(0, i), lambda i: w2reg(1, i), hreg,
                lambda e: blk(a, hreg(e), SB1 if order[e][0] else SB0, order[e][1], SC), R, order=order,
                gate=(2 * len(early), probe, check, pp, pp), side=side, side_from=cfg.get('w2_side', 6), side_n=1,
                side2=wq_lines(), side2_from=cfg.get('wq_from', 36), ramp=cfg.get('ramp2', 10), resid=True)
    res_epilogue(a, cfg, 2, "L_final")
    stamp(a, cfg, 10)
    publish(a, 39, 34)
    stamp(a, cfg, 11)


def final_store(a):
    a("v_permlane32_swap_b32 v%d, v%d" % (V_RES, V_RES + 2))
    a("v_permlane32_swap_b32 v%d, v%d" % (V_RES + 1, V_RES + 3))
    a("v_permlane32_swap_b32 v%d, v%d" % (V_RES + 4, V_RES + 6))
    a("v_permlane32_swap_b32 v%d, v%d" % (V_RES + 5, V_RES + 7))
    a("s_lshl_b32 s17, s%d, 15" % S_RT)
    a("s_lshl_b32 s18, s%d, 6" % S_NT)
    a("s_add_u32 s17, s17, s18")
    a("v_lshlrev_b32 v%d, 10, v%d" % (G_T + 2, V_R31))
    a("v_lshl_add_u32 v%d, v%d, 4, v%d" % (G_T + 2, V_H, G_T + 2))
    a("buffer_store_dwordx4 v[%d:%d], v%d, s[8:11], s17 offen" % (V_RES, V_RES + 3, G_T + 2))
    a("buffer_store_dwordx4 v[%d:%d], v%d, s[8:11], s17 offen offset:32" % (V_RES + 4, V_RES + 7, G_T + 2))


def st_begin(a, cfg):
    kern.stamp_init(a, cfg)


def st_end(a, cfg, k):
    if not cfg.get("stamps"):
        return
    stamp(a, cfg, NSTAMP - 1)
    a("s_memrealtime s[62:63]")
    a("s_waitcnt lgkmcnt(0)")
    a("s_mov_b32 s79, s62")
    a("s_mul_i32 s60, s3, 5\ns_add_u32 s60, s60, %d" % k)
    a("s_lshl_b32 s60, s60, 16")
    a("s_lshl_b32 s61, s2, 8")
    a("s_add_u32 s60, s60, s61")
    a("s_lshl_b32 s61, s12, 6")
    a("s_add_u32 s60, s60, s61")
    a("s_add_u32 s60, s60, 0x%x" % kern.OFF_STAMP)
    for i in range(16):
        a("v_writelane_b32 v199, s%d, %d" % (64 + i, i))
    a("s_mov_b32 exec_lo, 0xffff\ns_mov_b32 exec_hi, 0x0")
    a("buffer_store_dword v199, v%d, s[4:7], s60 offen" % V_L4)
    a("s_mov_b64 exec, -1")


def build(cfg):
    rep = []
    DBL[0] = cfg.get("dbl", 0)
    TOUCH[0] = cfg.get("ptouch", 1)
    a = Asm()
    prep2.prep2(a, cfg)
    a("L_exit:")
    a("s_endpgm")
    prep_lines, _ = fix_hazards_fast(kern.uniq(a.lines, "prep"), rep)

    a = Asm()
    kern.common_prologue(a, True)
    a("v_mov_b32 v%d, 1" % V_ONE)
    a("v_mov_b32 v%d, 0" % V_ZERO)
    a("v_mov_b32 v199, 0")
    a("v_lshlrev_b32 v%d, 7, v%d" % (V_L128, V_LANE))
    a("v_lshlrev_b32 v%d, 2, v%d" % (V_L4, V_LANE))
    a("s_lshr_b32 s17, s%d, 1" % S_W)
    a("s_and_b32 s18, s%d, 1" % S_W)
    a("s_lshl_b32 s%d, s%d, 1" % (S_NT, S_HQ))
    a("s_add_u32 s%d, s%d, s17" % (S_NT, S_NT))
    a("s_lshl_b32 s%d, s%d, 1" % (S_RT, S_RB))
    a("s_add_u32 s%d, s%d, s18" % (S_RT, S_RT))
    a("s_mov_b32 s%d, 0" % S_LAYER)
    a("s_lshl_b32 s17, s%d, 15" % S_RT)
    a("s_lshl_b32 s18, s%d, 11" % S_NT)
    a("s_add_u32 s17, s17, s18")
    a("s_add_u32 s17, s17, 0x%x" % OFF_X)
    a("buffer_load_dwordx4 v[%d:%d], v%d, s[4:7], s17 offen" % (V_RES, V_RES + 3, V_L16))
    a("buffer_load_dwordx4 v[%d:%d], v%d, s[4:7], s17 offen offset:1024" % (V_RES + 4, V_RES + 7, V_L16))
    a_addr(a, S_Q0, S_Q1, OFF_WQ, 32, 8)
    a("s_lshl_b32 s%d, s%d, 13" % (S_KVW, S_W))
    a("s_add_u32 s%d, s%d, 0x%x" % (S_KVW, S_KVW, OFF_WKV))
    a("s_cmp_ge_u32 s%d, 4" % S_HQ)
    a("s_cselect_b32 s%d, 0xf0000000, s%d" % (S_KVW, S_KVW))
    for x in wq_lines():
        a(x)
    a("L_layer:")
    for k, ph in enumerate((phase_qkv, phase_att, phase_wo, phase_ffn1, phase_ffn2)):
        st_begin(a, cfg)
        ph(a, cfg)
        st_end(a, cfg, k + 1)
    a("s_mov_b32 s%d, 1" % S_LAYER)
    a("s_branch L_layer")
    a("L_final:")
    final_store(a)
    st_end(a, cfg, 5)
    a("L_exit:")
    a("s_endpgm")
    main_lines, _ = fix_hazards_fast(kern.uniq(a.lines, "main"), rep)

    s = "; @launch kernel=prep_kernel grid=(256,1,1) block=(256,1,1) lds=%d\n" % (50 * 1024)
    s += "; @launch kernel=main_kernel grid=(256,1,1) block=(256,1,1) lds=%d\n" % (160 * 1024)
    s += '.amdgcn_target "amdgcn-amd-amdhsa--gfx950"\n.text\n'
    s += "\n".join([".p2align 8", "prep_kernel:"] + prep_lines + [".p2align 8", "L_code_begin:", "main_kernel:"] + main_lines + ["L_code_end:"]) + "\n"
    s += '.section .rodata,"a"\n.p2align 6\n' + kernel_desc("prep_kernel", 72, 72) + ".p2align 6\n" + kernel_desc("main_kernel", 512, 256)
    return s, rep


if __name__ == "__main__":
    cfg = dict(code_prefetch=True)
    for kv in sys.argv[2:]:
        k, v = kv.split("=")
        cfg[k] = eval(v)
    s, rep = build(cfg)
    open(sys.argv[1], "w").write(s)
    print("auto nops:", sum(r[0] for r in rep), "sites", len(rep), "bytes of source", len(s))
    if cfg.get("verbose"):
        for r in rep:
            print(r)
```

```python
from asmlib import *
from layout import *
from kern import split3, stamp, S_W, S_RB, S_HQ, V_L16, V_LANE, V_R31, V_H

LROW = 192
LST = 96 * 1024
LCS = LST + 49152
PX, PWQ, PWK, PWV, PWO, PW1, PW3, PW2, PDBG = 80, 82, 84, 86, 88, 92, 94, 96, 98
D = 200
V_SO, V_SO2 = 232, 233
S_DST = 55
S_TASK = 56
FL_WQ = 0xE000
WKV_COPY = 0x8000


def startup(a, cfg, K):
    SC = K.SC
    RES = K.V_RES
    t0, t1, t2, t3, t4, t5 = 24, 25, 26, 27, 28, 29
    ONES, CS = 32, 33
    R = 36
    QR = 88
    u0, u1, u2, u3, u4, u5 = 48, 49, 50, 51, 52, 53
    a("s_mov_b32 s36, s%d" % PDBG)
    a("s_mov_b32 s37, s%d" % (PDBG + 1))
    a("s_mov_b32 s38, 256")
    a("s_mov_b32 s39, 0x00020000")
    a("s_or_b32 s17, s2, s%d" % S_W)
    a("s_cmp_lg_u32 s17, 0")
    a("s_cbranch_scc1 L_s_notag")
    a("s_memrealtime s[18:19]")
    a("s_waitcnt lgkmcnt(0)")
    a("s_or_b32 s18, s18, 1")
    a("v_mov_b32 v%d, s18" % t0)
    a("s_mov_b64 exec, 3")
    a("buffer_store_dword v%d, v%d, s[36:39], 0 offen %s" % (t0, K.V_L128, SC))
    a("s_mov_b64 exec, -1")
    a("L_s_notag:")
    a("s_mov_b32 s40, s%d" % PX)
    a("s_mov_b32 s41, s%d" % (PX + 1))
    a("s_mov_b32 s42, %d" % (2048 * 512 * 2))
    a("s_mov_b32 s43, 0x00020000")
    a("s_lshl_b32 s17, s%d, 15" % K.S_RT)
    a("s_lshl_b32 s18, s%d, 6" % K.S_NT)
    a("s_add_u32 s17, s17, s18")
    a("v_lshlrev_b32 v%d, 10, v%d" % (t0, V_R31))
    a("v_lshl_add_u32 v%d, v%d, 4, v%d" % (t0, V_H, t0))
    a("buffer_load_dwordx4 v[%d:%d], v%d, s[40:43], s17 offen" % (RES, RES + 3, t0))
    a("buffer_load_dwordx4 v[%d:%d], v%d, s[40:43], s17 offen offset:32" % (RES + 4, RES + 7, t0))
    a("s_bitcmp1_b32 s%d, 0" % S_HQ)
    a("s_cselect_b32 s40, s%d, s%d" % (PWV, PWK))
    a("s_cselect_b32 s41, s%d, s%d" % (PWV + 1, PWK + 1))
    a("s_mov_b32 s42, %d" % (512 * 16 * 2))
    a("s_lshl_b32 s17, s%d, 12" % S_W)
    for p in range(4):
        a("buffer_load_dwordx4 v[%d:%d], v%d, s[40:43], s17 offen offset:%d" % (QR + 4 * p, QR + 4 * p + 3, V_L16, 1024 * p))
    a("s_mov_b32 s40, s%d\ns_mov_b32 s41, s%d\ns_mov_b32 s42, %d" % (PWQ, PWQ + 1, 512 * 512 * 2))
    a("v_lshrrev_b32 v%d, 3, v%d" % (u0, V_LANE))
    a("v_and_b32 v%d, 7, v%d" % (u1, V_LANE))
    a("v_lshlrev_b32 v%d, 10, v%d" % (u2, u0))
    a("v_lshl_add_u32 v%d, v%d, 4, v%d" % (u2, u1, u2))
    a("s_lshl_b32 s17, s%d, 17" % S_W)
    a("s_lshl_b32 s18, s%d, 7" % S_HQ)
    a("s_add_u32 s17, s17, s18")
    for p in range(16):
        a("buffer_load_dwordx4 v[%d:%d], v%d, s[40:43], s17 offen" % (QR + 16 + 4 * p, QR + 16 + 4 * p + 3, u2))
        if p < 15:
            a("s_add_u32 s17, s17, 8192")
    a("s_mul_i32 s18, s%d, %d" % (S_W, 128 * LROW))
    a("v_mul_u32_u24 v%d, %d, v%d" % (u2, LROW, u0))
    a("v_lshl_add_u32 v%d, v%d, 4, v%d" % (u2, u1, u2))
    a("v_add_u32 v%d, s18, v%d" % (u2, u2))
    a("v_lshrrev_b32 v%d, 1, v%d" % (u0, V_LANE))
    a("v_and_b32 v%d, 1, v%d" % (u1, V_LANE))
    a("v_mul_u32_u24 v%d, %d, v%d" % (u3, LROW, u0))
    a("v_lshl_add_u32 v%d, v%d, 4, v%d" % (u3, u1, u3))
    a("v_add_u32 v%d, s18, v%d" % (u3, u3))
    a("v_and_b32 v%d, 15, v%d" % (u0, V_LANE))
    a("v_lshrrev_b32 v%d, 2, v%d" % (u1, u0))
    a("v_lshl_add_u32 v%d, v%d, 2, v%d" % (u1, V_H, u1))
    a("v_mul_u32_u24 v%d, %d, v%d" % (u4, LROW, u1))
    a("v_and_b32 v%d, 3, v%d" % (u0, u0))
    a("v_lshl_add_u32 v%d, v%d, 3, v%d" % (u4, u0, u4))
    a("v_add_u32 v%d, s18, v%d" % (u4, u4))
    a("v_bfe_u32 v%d, v%d, 4, 1" % (u0, V_LANE))
    a("v_lshl_add_u32 v%d, v%d, 5, v%d" % (u5, u0, u4))
    a("s_lshr_b32 s18, s%d, 1" % S_W)
    a("s_lshl_b32 s18, s18, 6")
    a("v_add_u32 v%d, s18, v%d" % (u0, u5))
    a("s_xor_b32 s18, s18, 64")
    a("v_add_u32 v%d, s18, v%d" % (u1, u5))
    a("s_lshr_b32 s20, s2, 3")
    a("s_and_b32 s21, s2, 7")
    a("v_lshrrev_b32 v%d, 3, v0" % t1)
    a("v_and_b32 v%d, 7, v0" % t2)
    a("v_mul_u32_u24 v%d, %d, v%d" % (t4, LROW, t1))
    a("v_lshl_add_u32 v%d, v%d, 4, v%d" % (t4, t2, t4))
    a("v_add_u32 v%d, %d, v%d" % (t4, LST, t4))
    a("v_mov_b32 v%d, v%d" % (V_SO, V_L16))
    a("s_mov_b32 s22, 0")
    a("s_mov_b32 s23, 0")
    a("s_mov_b32 s24, 32768")
    a("s_mov_b32 s25, 1024")
    a("s_mov_b32 s42, %d" % (512 * 512 * 2))
    a("s_mov_b32 s%d, 2" % S_TASK)
    a("s_lshr_b32 s26, s20, 3")
    a("s_and_b32 s17, s20, 0x17")
    a("s_cmp_eq_u32 s17, 4")
    a("s_cbranch_scc1 L_s_wkv")
    a("s_cmp_eq_u32 s17, 5")
    a("s_cbranch_scc1 L_s_wq")
    a("s_cmp_gt_u32 s20, 5")
    a("s_cselect_b32 s17, 2, 0")
    a("s_sub_u32 s27, s20, s17")
    a("s_cmp_gt_u32 s20, 13")
    a("s_cselect_b32 s17, 2, 0")
    a("s_sub_u32 s27, s27, s17")
    a("s_lshl_b32 s27, s27, 3")
    a("s_add_u32 s27, s27, s21")
    a("s_and_b32 s26, s27, 1")
    a("s_cmp_lt_u32 s27, 112")
    a("s_cbranch_scc1 L_s_w13")
    a("s_cmp_lt_u32 s27, 168")
    a("s_cbranch_scc1 L_s_w2")
    a("s_cmp_lt_u32 s27, 184")
    a("s_cbranch_scc1 L_s_wo")
    a("s_mov_b32 s%d, 0" % S_TASK)
    a("s_mov_b32 s%d, 0xf0000000" % S_DST)
    a("s_branch L_s_loaded")
    a("L_s_wq:")
    a("s_mov_b32 s%d, 1" % S_TASK)
    a("s_mov_b32 s40, s%d\ns_mov_b32 s41, s%d" % (PWQ, PWQ + 1))
    a("s_mov_b32 s28, s21")
    a("s_mov_b32 s%d, 0x%x" % (S_DST, OFF_WQ))
    a("s_lshl_b32 s22, s28, 8")
    a("s_lshl_b32 s17, s26, 12")
    a("s_add_u32 s22, s22, s17")
    a("s_add_u32 s22, s22, 0x%x" % OFF_CSQ)
    a("s_lshl_b32 s29, s28, 5")
    a("s_lshl_b32 s17, s26, 4")
    a("s_add_u32 s29, s29, s17")
    a("s_add_u32 s29, s29, 0x%x" % (OFF_FLAGS + FL_WQ))
    a("s_branch L_s_qo")
    a("L_s_wo:")
    a("s_mov_b32 s40, s%d\ns_mov_b32 s41, s%d" % (PWO, PWO + 1))
    a("s_sub_u32 s28, s27, 168")
    a("s_lshr_b32 s28, s28, 1")
    a("s_mov_b32 s%d, 0x%x" % (S_DST, OFF_WO))
    a("L_s_qo:")
    a("s_lshl_b32 s30, s26, 18")
    a("s_lshl_b32 s17, s28, 7")
    a("s_add_u32 s30, s30, s17")
    a("s_lshl_b32 s17, s28, 16")
    a("s_add_u32 s%d, s%d, s17" % (S_DST, S_DST))
    a("s_lshl_b32 s17, s26, 14")
    a("s_add_u32 s%d, s%d, s17" % (S_DST, S_DST))
    a("s_branch L_s_go")
    a("L_s_w2:")
    a("s_sub_u32 s27, s27, 112")
    a("s_and_b32 s28, s27, 7")
    a("s_lshr_b32 s27, s27, 3")
    a("s_mov_b32 s40, s%d\ns_mov_b32 s41, s%d\ns_mov_b32 s42, %d" % (PW2, PW2 + 1, 1792 * 512 * 2))
    a("s_lshl_b32 s30, s27, 18")
    a("s_lshl_b32 s17, s28, 7")
    a("s_add_u32 s30, s30, s17")
    a("s_mov_b32 s24, %d" % (112 * 1024))
    a("s_mul_i32 s%d, s28, %d" % (S_DST, 2 * 112 * 1024))
    a("s_lshl_b32 s17, s27, 14")
    a("s_add_u32 s%d, s%d, s17" % (S_DST, S_DST))
    a("s_add_u32 s%d, s%d, 0x%x" % (S_DST, S_DST, OFF_W2))
    a("s_branch L_s_go")
    a("L_s_w13:")
    a("s_bfe_u32 s29, s27, 0x10001")
    a("s_lshr_b32 s28, s27, 2")
    a("s_cmp_eq_u32 s29, 0")
    a("s_cselect_b32 s40, s%d, s%d" % (PW1, PW3))
    a("s_cselect_b32 s41, s%d, s%d" % (PW1 + 1, PW3 + 1))
    a("s_mov_b32 s42, %d" % (512 * 1792 * 2))
    a("s_mov_b32 s25, 3584")
    a("s_mul_i32 s30, s26, %d" % (256 * 3584))
    a("s_lshl_b32 s17, s28, 7")
    a("s_add_u32 s30, s30, s17")
    a("s_mov_b32 s24, 65536")
    a("s_lshl_b32 s%d, s28, 17" % S_DST)
    a("s_lshl_b32 s17, s26, 14")
    a("s_add_u32 s%d, s%d, s17" % (S_DST, S_DST))
    a("s_lshl_b32 s17, s29, 8")
    a("s_add_u32 s%d, s%d, s17" % (S_DST, S_DST))
    a("s_add_u32 s%d, s%d, 0x%x" % (S_DST, S_DST, OFF_W13))
    a("s_lshl_b32 s23, s28, 12")
    a("s_add_u32 s23, s23, s17")
    a("s_lshl_b32 s17, s26, 9")
    a("s_add_u32 s23, s23, s17")
    a("s_add_u32 s23, s23, 0x%x" % OFF_CSX)
    a("v_and_b32 v%d, 15, v%d" % (V_SO, V_LANE))
    a("v_lshlrev_b32 v%d, 4, v%d" % (V_SO, V_SO))
    a("v_lshl_add_u32 v%d, v%d, 9, v%d" % (V_SO, V_H, V_SO))
    a("v_bfe_u32 v%d, v%d, 4, 1" % (t5, V_LANE))
    a("v_lshl_add_u32 v%d, v%d, 15, v%d" % (V_SO, t5, V_SO))
    a("L_s_go:")
    a("v_mul_lo_u32 v%d, v%d, s25" % (t3, t1))
    a("v_lshl_add_u32 v%d, v%d, 4, v%d" % (t3, t2, t3))
    a("s_lshl_b32 s17, s25, 5")
    for p in range(8):
        a("buffer_load_dwordx4 v[%d:%d], v%d, s[40:43], s30 offen" % (D + 4 * p, D + 4 * p + 3, t3))
        if p < 7:
            a("s_add_u32 s30, s30, s17")
    a("s_lshr_b32 s17, s%d, 1" % S_W)
    a("s_and_b32 s18, s%d, 1" % S_W)
    a("s_mul_i32 s19, s17, s24")
    a("s_add_u32 s%d, s%d, s19" % (S_DST, S_DST))
    a("s_lshl_b32 s19, s18, 13")
    a("s_add_u32 s%d, s%d, s19" % (S_DST, S_DST))
    a("s_lshl_b32 s17, s17, 6")
    a("s_mul_i32 s18, s18, %d" % (128 * LROW))
    a("s_add_u32 s33, s17, s18")
    a("v_bfe_u32 v%d, v%d, 4, 1" % (t1, V_LANE))
    a("v_lshlrev_b32 v%d, 5, v%d" % (t1, t1))
    a("s_mov_b32 s30, %d" % (32 * LROW))
    a("s_branch L_s_common")
    a("L_s_wkv:")
    a("s_mov_b32 s%d, 1" % S_TASK)
    a("s_cmp_eq_u32 s26, 0")
    a("s_cselect_b32 s40, s%d, s%d" % (PWV, PWK))
    a("s_cselect_b32 s41, s%d, s%d" % (PWV + 1, PWK + 1))
    a("s_mov_b32 s42, %d" % (512 * 16 * 2))
    a("v_lshrrev_b32 v%d, 1, v0" % t1)
    a("v_and_b32 v%d, 1, v0" % t2)
    a("v_mul_u32_u24 v%d, %d, v%d" % (t4, LROW, t1))
    a("v_lshl_add_u32 v%d, v%d, 4, v%d" % (t4, t2, t4))
    a("v_add_u32 v%d, %d, v%d" % (t4, LST, t4))
    a("v_lshlrev_b32 v%d, 4, v0" % t3)
    a("s_mov_b32 s30, 0")
    for p in range(8):
        a("buffer_load_dwordx4 v[%d:%d], v%d, s[40:43], s30 offen" % (D + 4 * p, D + 4 * p + 3, t3))
        if p < 7:
            a("s_add_u32 s30, s30, 4096")
            a("s_and_b32 s30, s30, 0x3fff")
    a("v_and_b32 v%d, 15, v%d" % (V_SO, V_LANE))
    a("v_lshlrev_b32 v%d, 4, v%d" % (V_SO, V_SO))
    a("v_lshl_add_u32 v%d, v%d, 9, v%d" % (V_SO, V_H, V_SO))
    a("s_mul_i32 s%d, s21, 0x%x" % (S_DST, WKV_COPY))
    a("s_lshl_b32 s17, s%d, 13" % S_W)
    a("s_add_u32 s%d, s%d, s17" % (S_DST, S_DST))
    a("s_lshl_b32 s17, s26, 8")
    a("s_add_u32 s%d, s%d, s17" % (S_DST, S_DST))
    a("s_add_u32 s%d, s%d, 0x%x" % (S_DST, S_DST, OFF_WKV))
    a("s_lshl_b32 s22, s21, 7")
    a("s_lshl_b32 s17, s26, 6")
    a("s_add_u32 s22, s22, s17")
    a("s_add_u32 s22, s22, 0x%x" % OFF_CSKV)
    a("s_lshl_b32 s29, s21, 7")
    a("s_lshl_b32 s17, s26, 4")
    a("s_add_u32 s29, s29, s17")
    a("s_add_u32 s29, s29, 0x%x" % (OFF_FLAGS + FL_WQ + 0x800))
    a("s_lshl_b32 s33, s%d, 5" % S_W)
    a("v_mov_b32 v%d, 0" % t1)
    a("s_mov_b32 s30, 16")
    a("s_mov_b32 s%d, 3" % S_TASK)
    a("L_s_common:")
    a("v_and_b32 v%d, 15, v%d" % (t2, V_LANE))
    a("v_lshrrev_b32 v%d, 2, v%d" % (t3, t2))
    a("v_lshl_add_u32 v%d, v%d, 2, v%d" % (t3, V_H, t3))
    a("v_mul_u32_u24 v%d, %d, v%d" % (t5, LROW, t3))
    a("v_and_b32 v%d, 3, v%d" % (t2, t2))
    a("v_lshl_add_u32 v%d, v%d, 3, v%d" % (t5, t2, t5))
    a("v_add_u32 v%d, v%d, v%d" % (t5, t1, t5))
    a("s_add_u32 s33, s33, %d" % LST)
    a("v_add_u32 v%d, s33, v%d" % (t5, t5))
    a("L_s_loaded:")
    a("v_add_u32 v%d, 4096, v%d" % (V_SO2, V_SO))
    a("s_and_b32 s17, s%d, 1" % S_W)
    a("s_lshl_b32 s57, s17, 7")
    a("buffer_load_dword v%d, v%d, s[36:39], s57 offen %s" % (K.V_TAG, K.V_ZERO, SC))
    a("s_getpc_b64 s[18:19]")
    a("L_s_pc:")
    a("s_add_u32 s18, s18, L_code_begin-L_s_pc")
    a("s_addc_u32 s19, s19, -1")
    a("s_lshl_b32 s17, s20, 11")
    a("v_lshlrev_b32 v%d, 3, v0" % t0)
    a("v_add_u32 v%d, s17, v%d" % (t0, t0))
    a("v_min_u32 v%d, L_code_end-L_code_begin-8, v%d" % (t0, t0))
    a("global_load_dwordx2 v[%d:%d], v%d, s[18:19]" % (34, 35, t0))
    stamp(a, cfg, 1)
    def raw_stage(extra):
        for j in range(20):
            if j % 2 == 0:
                a("s_waitcnt vmcnt(%d)" % (18 - j + extra))
            if j < 4:
                a("ds_write_b128 v%d, v[%d:%d] offset:%d" % (u3, QR + 4 * j, QR + 4 * j + 3, 128 + 32 * LROW * j))
            else:
                a("ds_write_b128 v%d, v[%d:%d] offset:%d" % (u2, QR + 4 * j, QR + 4 * j + 3, 8 * LROW * (j - 4)))

    a("s_cmp_eq_u32 s%d, 0" % S_TASK)
    a("s_cbranch_scc1 L_s_x0")
    a("s_waitcnt vmcnt(30)")
    a("s_branch L_s_x1")
    a("L_s_x0:")
    a("s_waitcnt vmcnt(22)")
    a("L_s_x1:")
    stamp(a, cfg, 2)
    a("v_permlane32_swap_b32 v%d, v%d" % (RES, RES + 2))
    a("v_permlane32_swap_b32 v%d, v%d" % (RES + 1, RES + 3))
    a("v_permlane32_swap_b32 v%d, v%d" % (RES + 4, RES + 6))
    a("v_permlane32_swap_b32 v%d, v%d" % (RES + 5, RES + 7))
    K.out_addr(a, 0)
    K.st4(a, RES, V_L16, 34)
    K.store_x_tail(a)
    K.xin_flag_addr(a, 58, True, 0)
    a("s_cmp_eq_u32 s%d, 0" % S_TASK)
    a("s_cbranch_scc1 L_s_raw0")
    raw_stage(13)
    a("s_branch L_s_raw1")
    a("L_s_raw0:")
    raw_stage(5)
    a("L_s_raw1:")
    a("s_waitcnt lgkmcnt(0)")
    for i in range(8):
        a("ds_read_b64_tr_b16 a[%d:%d], v%d offset:%d" % (128 + 4 * i, 129 + 4 * i, u4, 128 + 16 * LROW * i))
        a("ds_read_b64_tr_b16 a[%d:%d], v%d offset:%d" % (130 + 4 * i, 131 + 4 * i, u4, 128 + 16 * LROW * i + 8 * LROW))
    for j, ua in ((160, u0), (192, u1)):
        for i in range(8):
            a("ds_read_b64_tr_b16 a[%d:%d], v%d offset:%d" % (j + 4 * i, j + 1 + 4 * i, ua, 16 * LROW * i))
            a("ds_read_b64_tr_b16 a[%d:%d], v%d offset:%d" % (j + 2 + 4 * i, j + 3 + 4 * i, ua, 16 * LROW * i + 8 * LROW))
    stamp(a, cfg, 7)
    a("s_cmp_eq_u32 s%d, 0" % S_TASK)
    a("s_cbranch_scc1 L_s_xpub")
    a("s_cmp_eq_u32 s%d, 3" % S_TASK)
    a("s_cbranch_scc1 L_s_kvw")
    for p in range(8):
        a("s_waitcnt vmcnt(%d)" % (12 - p))
        a("ds_write_b128 v%d, v[%d:%d] offset:%d" % (t4, D + 4 * p, D + 4 * p + 3, 32 * LROW * p))
    a("s_branch L_s_xpub")
    a("L_s_kvw:")
    for p in range(4):
        a("s_waitcnt vmcnt(%d)" % (12 - p))
        a("ds_write_b128 v%d, v[%d:%d] offset:%d" % (t4, D + 4 * p, D + 4 * p + 3, 32 * p))
    a("s_waitcnt vmcnt(5)")
    a("L_s_xpub:")
    stamp(a, cfg, 3)

    def xflag(tagn, cnt):
        a("s_waitcnt vmcnt(%d)" % cnt)
        a("L_s_tg%d:" % tagn)
        a("v_cmp_ne_u32 vcc, 0, v%d" % K.V_TAG)
        a("s_cbranch_vccnz L_s_tagok%d" % tagn)
        if cfg.get("spin_limit"):
            a("s_sub_u32 s46, s46, 1")
            a("s_cbranch_scc1 L_s_tagok%d" % tagn)
        a("s_sleep 2")
        a("buffer_load_dword v%d, v%d, s[36:39], s57 offen %s" % (K.V_TAG, K.V_ZERO, SC))
        a("s_waitcnt vmcnt(0)")
        a("s_branch L_s_tg%d" % tagn)
        a("L_s_tagok%d:" % tagn)
        a("s_mov_b64 exec, 1")
        a("buffer_store_dword v%d, v%d, s[4:7], s58 offen %s" % (K.V_TAG, K.V_ZERO, SC))
        a("s_mov_b64 exec, -1")
        stamp(a, cfg, 4)

    a("s_bitcmp1_b32 s%d, 0" % S_TASK)
    a("s_cbranch_scc1 L_s_tr")
    xflag(0, 0)
    a("s_cmp_eq_u32 s%d, 0" % S_TASK)
    a("s_cbranch_scc1 L_s_done")
    a("L_s_tr:")
    a("s_waitcnt lgkmcnt(0)")
    a("s_barrier")
    for i in range(8):
        a("ds_read_b64_tr_b16 v[%d:%d], v%d offset:%d" % (D + 4 * i, D + 4 * i + 1, t5, 16 * LROW * i))
        a("ds_read_b64_tr_b16 v[%d:%d], v%d offset:%d" % (D + 4 * i + 2, D + 4 * i + 3, t5, 16 * LROW * i + 8 * LROW))
    a("s_cmp_eq_u32 s%d, 2" % S_TASK)
    a("s_cbranch_scc1 L_s_nost")
    for i in range(8):
        a("s_waitcnt lgkmcnt(%d)" % min(15, 14 - 2 * i))
        a("buffer_store_dwordx4 v[%d:%d], v%d, s[4:7], s%d offen offset:%d %s" % (D + 4 * i, D + 4 * i + 3, V_SO if i < 4 else V_SO2, S_DST, (i % 4) * 1024, SC))
    a("s_mov_b32 s%d, 0xf0000000" % S_DST)
    a("L_s_nost:")
    a("s_or_b32 s17, s22, s23")
    a("s_cmp_eq_u32 s17, 0")
    a("s_cbranch_scc1 L_s_done")
    a("v_mov_b32 v%d, 0x3f803f80" % ONES)
    a("v_mov_b32 v%d, 0" % CS)
    a("s_waitcnt lgkmcnt(0)")
    for r in range(32):
        a("v_dot2_f32_bf16 v%d, v%d, v%d, v%d" % (CS, D + r, ONES, CS))
    a("v_lshlrev_b32 v%d, 2, v0" % t0)
    a("v_add_u32 v%d, %d, v%d" % (t0, LCS, t0))
    a("ds_write_b32 v%d, v%d" % (t0, CS))
    a("s_waitcnt lgkmcnt(0)")
    a("s_barrier")
    a("s_and_b32 s17, s%d, 2" % S_W)
    a("s_lshl_b32 s17, s17, 8")
    a("s_add_u32 s17, s17, %d" % LCS)
    a("v_lshlrev_b32 v%d, 2, v%d" % (t0, V_R31))
    a("v_add_u32 v%d, s17, v%d" % (t1, t0))
    a("v_add_u32 v%d, %d, v%d" % (t2, LCS, t0))
    for q in range(4):
        a("ds_read_b32 v%d, v%d offset:%d" % (R + q, t1, 128 * q))
    for q in range(8):
        a("ds_read_b32 v%d, v%d offset:%d" % (R + 4 + q, t2, 128 * q))
    a("s_waitcnt lgkmcnt(0)")
    a("v_add_f32 v%d, v%d, v%d" % (R, R, R + 1))
    a("v_add_f32 v%d, v%d, v%d" % (R + 2, R + 2, R + 3))
    a("v_add_f32 v%d, v%d, v%d" % (R, R, R + 2))
    a("s_cmp_eq_u32 s%d, 2" % S_TASK)
    a("s_cbranch_scc1 L_s_csx")
    a("s_lshr_b32 s17, s%d, 1" % S_W)
    a("s_lshl_b32 s17, s17, 7")
    a("s_cmp_eq_u32 s%d, 1" % S_TASK)
    a("s_cbranch_scc1 L_s_csq")
    for q in (4, 2, 1):
        for i in range(q):
            a("v_add_f32 v%d, v%d, v%d" % (R + 4 + i, R + 4 + i, R + 4 + i + q))
    a("v_mov_b32 v%d, v%d" % (R, R + 4))
    a("v_and_b32 v%d, 60, v%d" % (t0, t0))
    a("s_mov_b32 s17, 0")
    a("L_s_csq:")
    a("s_add_u32 s22, s22, s17")
    a("buffer_store_dword v%d, v%d, s[4:7], s22 offen %s" % (R, t0, SC))
    a("s_lshl_b32 s17, s%d, 2" % S_W)
    a("s_add_u32 s29, s29, s17")
    xflag(1, 9)
    a("v_lshlrev_b32 v%d, 8, v%d" % (t1, V_LANE))
    a("s_cmp_eq_u32 s%d, 1" % S_TASK)
    a("s_cselect_b32 s17, 0xff, 1")
    a("s_waitcnt vmcnt(0)")
    a("s_mov_b32 exec_hi, 0")
    a("s_mov_b32 exec_lo, s17")
    a("buffer_store_dword v%d, v%d, s[4:7], s29 offen %s" % (K.V_TAG, t1, SC))
    a("s_mov_b64 exec, -1")
    a("s_branch L_s_done")
    a("L_s_csx:")
    split3(a, R, R + 4)
    a("v_lshrrev_b32 v%d, 16, v%d" % (R + 1, R + 4))
    a("v_or_b32 v%d, v%d, v%d" % (R + 8, R + 1, R + 4))
    a("v_lshrrev_b32 v%d, 16, v%d" % (R + 1, R + 5))
    a("v_or_b32 v%d, v%d, v%d" % (R + 9, R + 1, R + 4))
    a("v_lshrrev_b32 v%d, 16, v%d" % (R + 1, R + 6))
    a("v_or_b32 v%d, v%d, v%d" % (R + 10, R + 1, R + 5))
    a("v_mov_b32 v%d, 0" % (R + 11))
    a("v_and_b32 v%d, 15, v%d" % (t0, V_LANE))
    a("v_lshlrev_b32 v%d, 4, v%d" % (t0, t0))
    a("v_bfe_u32 v%d, v%d, 4, 1" % (t1, V_LANE))
    a("v_lshl_add_u32 v%d, v%d, 10, v%d" % (t0, t1, t0))
    a("s_lshr_b32 s17, s%d, 1" % S_W)
    a("s_lshl_b32 s17, s17, 11")
    a("s_add_u32 s23, s23, s17")
    a("buffer_store_dwordx4 v[%d:%d], v%d, s[4:7], s23 offen %s" % (R + 8, R + 11, t0, SC))
    a("L_s_done:")
    a("s_waitcnt lgkmcnt(0)")
    stamp(a, cfg, 5)
    a("s_barrier")
    stamp(a, cfg, 6)


def probe_addr(a, K, v0, v1, sdst):
    a("v_and_b32 v%d, 28, v%d" % (v0, K.V_L4))
    a("v_bfe_u32 v%d, v%d, 3, 1" % (v1, V_LANE))
    a("s_and_b32 s19, s2, 7")
    a("s_lshl_b32 s17, s%d, 5" % S_HQ)
    a("s_lshl_b32 s18, s19, 8")
    a("s_add_u32 s17, s17, s18")
    a("s_lshl_b32 s18, s19, 7")
    a("s_add_u32 s18, s18, 0x800")
    a("s_sub_u32 s18, s18, s17")
    a("v_mul_lo_u32 v%d, v%d, s18" % (v1, v1))
    a("v_add_u32 v%d, v%d, v%d" % (v0, v0, v1))
    a("s_add_u32 s%d, s17, 0x%x" % (sdst, OFF_FLAGS + FL_WQ))


def deferred_store_groups(K):
    return [["buffer_store_dwordx4 v[%d:%d], v%d, s[4:7], s%d offen offset:%d %s" % (D + 4 * i, D + 4 * i + 3, V_SO if i < 4 else V_SO2, S_DST, (i % 4) * 1024, K.SC)]
            for i in range(8)]
```

```python
import sys
from asmlib import *
from layout import *
import kern
import startup as SU
from kern import (split3, fl, MF, S_LAYER, S_W, S_RB, S_HQ, S_RG, S_M, V_L16, V_LANE, V_R31, V_H, V_OFF, xhalf_sum,
                  load_stats, finish_stats, pack8, stamp, kernel_desc, prep, NSTAMP)

SC = "sc1"


COMPACT = [1]
CMAP = {OFF_X: 0x800000, OFF_O: 0xC00000, OFF_H: 0xE00000, OFF_STAT: OFF_STAT}
C_WKV = 0x780000
C_END = 0x1500000


def layer_off(a, sdst, base, stride, mul=1, add=0):
    if COMPACT[0] and base in CMAP:
        a("s_mov_b32 s%d, 0x%x" % (sdst, CMAP[base] + (add & 1) * stride))
    else:
        kern.layer_off(a, sdst, base, stride, mul, add)


def blk(a, dst, sbase, i, sc=SC):
    kern.blk(a, dst, sbase, i, SC)


FL_O = 0x0000
FL_X1 = 0x2000
FL_H = 0x8000
FL_XIN = 0x6000
OFF_FLW = 0x64C000
FL_KV = 0xC000

S_RT, S_NT = 31, 32
S_FO, S_FX1, S_FH = 40, 41, 42
S_W13, S_WL = 47, 48
S_RET = 44
V_RES = 12
V_TAG = 11
V_L4 = 20
V_ZERO = 21
VB = 24

G_ACC = 24
G_RED = 88
G_ST = 136
G_CS = 152
G_T = 168
V_WR = [184, 185, 186]
V_RD = 187
V_NMU, V_RSTD = 188, 189
G_KVACC = 88
G_Q = 190
W2V = 200

LDS_R1 = 96 * 1024
LDS_RQ = 0
LDS_KVX = 49152
LDS_CS = 144 * 1024


DBL = [0]


def st4(a, data, voff, soff, imm=0):
    a("buffer_store_dwordx4 v[%d:%d], v%d, s[4:7], s%d offen offset:%d %s" % (data, data + 3, voff, soff, imm, SC))
    if DBL[0]:
        a("buffer_store_dwordx4 v[%d:%d], v%d, s[4:7], s%d offen offset:%d" % (data, data + 3, voff, soff, imm))


TOUCH = [1]
V_L128 = 23


def touch_lines(a, s_data, nlines, imm=0):
    if not TOUCH[0]:
        return
    a("s_mov_b32 exec_lo, 0x%x" % (((1 << nlines) - 1) & 0xffffffff))
    a("s_mov_b32 exec_hi, 0x%x" % (((1 << nlines) - 1) >> 32))
    a("buffer_load_dword v22, v%d, s[4:7], s%d offen offset:%d %s" % (V_L128, s_data, imm, SC))


def publish(a, s_addr, s_data=None, nlines=16, imm=0):
    a("s_waitcnt vmcnt(0)")
    a("s_mov_b64 exec, 1")
    a("buffer_store_dword v%d, v%d, s[4:7], s%d offen %s" % (V_TAG, V_ZERO, s_addr, SC))
    if s_data is not None:
        touch_lines(a, s_data, nlines, imm)
    a("s_mov_b64 exec, -1")


def poll(a, cfg, s_addr, voff, vtmp, wide=False, imm=0, sleep=0):
    L = a.newlabel("L_poll")
    if cfg.get("spin_limit"):
        a("s_mov_b32 s46, %d" % cfg["spin_limit"])
    a(L + ":")
    if wide:
        a("buffer_load_dwordx2 v[%d:%d], v%d, s[4:7], s%d offen %s" % (vtmp, vtmp + 1, voff, s_addr, SC))
        a("s_waitcnt vmcnt(0)")
        a("v_xor_b32 v%d, v%d, v%d" % (vtmp + 1, V_TAG, vtmp + 1))
        a("v_xor_b32 v%d, v%d, v%d" % (vtmp, vtmp, vtmp + 1))
        a("v_or_b32 v%d, v%d, v%d" % (vtmp, vtmp, vtmp + 1) if False else "v_cmp_ne_u32 s[18:19], 0, v%d" % (vtmp + 1))
        a("v_cndmask_b32 v%d, v%d, v%d, s[18:19]" % (vtmp, vtmp, V_ZERO))
    else:
        a("buffer_load_dword v%d, v%d, s[4:7], s%d offen offset:%d %s" % (vtmp, voff, s_addr, imm, SC))
        a("s_waitcnt vmcnt(0)")
    if cfg.get("spin_limit"):
        a("s_sub_u32 s46, s46, 1")
        a("s_cbranch_scc1 %s_out" % L)
    a("v_cmp_ne_u32 vcc, v%d, v%d" % (V_TAG, vtmp))
    if sleep:
        a("s_cbranch_vccz %s_out" % L)
        a("s_sleep %d" % sleep)
        a("s_branch %s" % L)
    else:
        a("s_cbranch_vccnz %s" % L)
    a(L + "_out:")


def lane_pat(a, vdst, mask, hi_shift, lo_mul):
    a("v_and_b32 v%d, %d, v%d" % (vdst, mask & ~1, V_LANE))
    a("v_lshlrev_b32 v%d, 3, v%d" % (vdst, vdst))
    a("v_and_b32 v%d, 1, v%d" % (vdst + 1, V_LANE))
    a("v_lshl_add_u32 v%d, v%d, %d, v%d" % (vdst, vdst + 1, lo_mul, vdst))


def flag_addr(a, sdst, base, s_grp, grp_shift, s_mem=None, per_layer=0x1000):
    a("s_mul_i32 s%d, s%d, 0x%x" % (sdst, S_LAYER, per_layer))
    a("s_add_u32 s%d, s%d, 0x%x" % (sdst, sdst, OFF_FLAGS + base))
    a("s_lshl_b32 s17, s%d, %d" % (s_grp, grp_shift))
    a("s_add_u32 s%d, s%d, s17" % (sdst, sdst))
    if s_mem is not None:
        a("s_lshl_b32 s17, s%d, 4" % s_mem)
        a("s_add_u32 s%d, s%d, s17" % (sdst, sdst))
        a("s_lshl_b32 s17, s%d, 2" % S_W)
        a("s_add_u32 s%d, s%d, s17" % (sdst, sdst))


def xin_flag_addr(a, sdst, own, layer_add):
    flag_addr(a, sdst, FL_XIN + 0x1000 * layer_add, S_RB, 7, S_HQ if own else None)


def a_addr(a, s_a0, s_a1, offA, ksA, ksw):
    a("s_mul_i32 s20, s%d, %d" % (S_W, ksw * 1024))
    a("s_mul_i32 s%d, s%d, %d" % (s_a0, S_NT, ksA * 1024))
    a("s_add_u32 s%d, s%d, s20" % (s_a0, s_a0))
    a("s_add_u32 s%d, s%d, 0x%x" % (s_a0, s_a0, offA))
    a("s_xor_b32 s21, s%d, 1" % S_NT)
    a("s_mul_i32 s%d, s21, %d" % (s_a1, ksA * 1024))
    a("s_add_u32 s%d, s%d, s20" % (s_a1, s_a1))
    a("s_add_u32 s%d, s%d, 0x%x" % (s_a1, s_a1, offA))


def b_addr(a, s_b0, s_b1, s_base, ksB, ksw):
    a("s_mul_i32 s20, s%d, %d" % (S_W, ksw * 1024))
    a("s_add_u32 s20, s20, s%d" % s_base)
    a("s_mul_i32 s%d, s%d, %d" % (s_b0, S_RT, ksB * 1024))
    a("s_add_u32 s%d, s%d, s20" % (s_b0, s_b0))
    a("s_xor_b32 s21, s%d, 1" % S_RT)
    a("s_mul_i32 s%d, s21, %d" % (s_b1, ksB * 1024))
    a("s_add_u32 s%d, s%d, s20" % (s_b1, s_b1))


def reduce_addr(a, base):
    for j in (1, 2, 3):
        a("s_xor_b32 s17, s%d, %d" % (S_W, j))
        a("s_mul_i32 s17, s17, 12288")
        a("s_add_u32 s17, s17, %d" % (base + (j - 1) * 4096))
        a("v_add_u32 v%d, s17, v%d" % (V_WR[j - 1], V_L16))
    a("s_mul_i32 s17, s%d, 12288" % S_W)
    a("s_add_u32 s17, s17, %d" % base)
    a("v_add_u32 v%d, s17, v%d" % (V_RD, V_L16))


def mf(a, d, x, y, c):
    a("%s v[%d:%d], %s, %s, %s" % (MF, d, d + 15, x, y, c))


def wr_tile(a, j):
    for q in range(4):
        r = G_ACC + 16 * j + 4 * q
        a("ds_write_b128 v%d, v[%d:%d] offset:%d" % (V_WR[j - 1], r, r + 3, q * 1024))


def rd_tile(a, j, dst):
    for q in range(4):
        a("ds_read_b128 v[%d:%d], v%d offset:%d" % (dst + 4 * q, dst + 4 * q + 3, V_RD, (j - 1) * 4096 + q * 1024))


def gemm64_core(a, cfg, n, A0, A1, Breg, issueB, window, pre_tickets=None, order=None, side=None, side_from=0, side_n=1,
                gate=None, side2=None, side2_from=0, ramp=None, resid=False):
    if order is None:
        order = [(1, i) for i in range(n)] + [(0, i) for i in range(n)]
    M = len(order)
    side = list(side or [])
    t = dict(pre_tickets or {})
    nxt = len(t)
    gpos = gate[0] if gate else M + 1
    gated = [False]

    def try_issue(limit):
        nonlocal nxt
        while nxt < M and nxt < limit:
            if nxt >= gpos and not gated[0]:
                return
            issueB(nxt)
            t[nxt] = a.vt()
            nxt += 1
            if gate and nxt == gate[3]:
                gate[1]()

    try_issue(ramp or window)
    if cfg.get("stamps") != 2:
        stamp(a, cfg, 1)
    last1 = max(e for e, (st, i) in enumerate(order) if st == 1)
    wr1 = last1 + 2
    bar1 = min(M - 2, last1 + 1 + max(2, (M - last1) // 2))
    seen = set()
    for e, (st, i) in enumerate(order):
        if gate and not gated[0] and e == gate[4]:
            assert not side
            gate[2]()
            gated[0] = True
            try_issue(e + window)
        a.wait_vm(t[e])
        if e == 0 and cfg.get("stamps") != 2:
            stamp(a, cfg, 2)
        first = "0" if st not in seen else None
        seen.add(st)
        if st == 1:
            mf(a, G_ACC + 16, A0(i), Breg(e), first or vr(G_ACC + 16, 16))
            mf(a, G_ACC + 48, A1(i), Breg(e), first or vr(G_ACC + 48, 16))
        else:
            mf(a, G_ACC + 32, A1(i), Breg(e), first or vr(G_ACC + 32, 16))
            mf(a, G_ACC, A0(i), Breg(e), first or vr(G_ACC, 16))
        try_issue(min(e + 1 + window, nxt + 2))
        if e >= side_from:
            k = 0
            while side and k < side_n:
                x = side.pop(0)
                a(x)
                k += x.startswith("buffer_")
        if side2 and e >= side2_from:
            for _ in range(2):
                if side2:
                    a(side2.pop(0))
        if e == wr1:
            wr_tile(a, 1)
            wr_tile(a, 3)
        if e == bar1:
            a("s_waitcnt lgkmcnt(0)")
            a("s_barrier")
            rd_tile(a, 1, G_RED)
            rd_tile(a, 3, G_RED + 16)
    assert wr1 <= bar1 < M and not side2
    stamp(a, cfg, 4)
    a("s_waitcnt lgkmcnt(0)")
    for e in range(6):
        a("v_add_f32 v%d, v%d, v%d" % (G_RED + e, G_RED + e, G_RED + 16 + e))
    wr_tile(a, 2)
    for e in range(6, 16):
        a("v_add_f32 v%d, v%d, v%d" % (G_RED + e, G_RED + e, G_RED + 16 + e))
    for e in range(16):
        a("v_add_f32 v%d, v%d, v%d" % (G_ACC + e, G_ACC + e, G_RED + e))
    if resid:
        for i in range(8):
            a("v_lshlrev_b32 v%d, 16, v%d" % (G_T, V_RES + i))
            a("v_and_b32 v%d, 0xffff0000, v%d" % (G_T + 1, V_RES + i))
            a("v_add_f32 v%d, v%d, v%d" % (G_ACC + 2 * i, G_ACC + 2 * i, G_T))
            a("v_add_f32 v%d, v%d, v%d" % (G_ACC + 2 * i + 1, G_ACC + 2 * i + 1, G_T + 1))
    for x in side:
        a(x)
    a("s_waitcnt lgkmcnt(0)")
    a("s_barrier")
    stamp(a, cfg, 6)
    rd_tile(a, 2, G_RED + 32)
    for q in range(4):
        a("s_waitcnt lgkmcnt(%d)" % (3 - q))
        for e in range(4):
            a("v_add_f32 v%d, v%d, v%d" % (G_ACC + 4 * q + e, G_ACC + 4 * q + e, G_RED + 32 + 4 * q + e))
    stamp(a, cfg, 7)


def res_epilogue(a, cfg, xout_add, final):
    for i in range(8):
        a("v_cvt_pk_bf16_f32 v%d, v%d, v%d" % (V_RES + i, G_ACC + 2 * i, G_ACC + 2 * i + 1))
        if i == 3 and final is None:
            st4(a, V_RES, V_L16, 34)
    if final is not None:
        a("s_cmp_eq_u32 s%d, 1" % S_LAYER)
        a("s_cbranch_scc1 %s" % final)
        st4(a, V_RES, V_L16, 34)
    store_x_tail(a)


def store_x_tail(a):
    st4(a, V_RES + 4, V_L16, 34, 1024)
    a("v_mov_b32 v%d, 0x3f803f80" % G_T)
    a("v_mov_b32 v%d, 0" % (G_T + 12))
    a("v_mov_b32 v%d, 0" % (G_T + 13))
    for r in range(8):
        a("v_dot2_f32_bf16 v%d, v%d, v%d, v%d" % (G_T + 12, V_RES + r, G_T, G_T + 12))
        a("v_dot2_f32_bf16 v%d, v%d, v%d, v%d" % (G_T + 13, V_RES + r, V_RES + r, G_T + 13))
    a("v_lshlrev_b32 v%d, 3, v%d" % (G_T + 2, V_R31))
    a("s_nop 1")
    a("v_mov_b32 v%d, v%d" % (G_T + 14, G_T + 12))
    a("v_mov_b32 v%d, v%d" % (G_T + 15, G_T + 13))
    a("s_nop 0")
    a("v_permlane32_swap_b32 v%d, v%d" % (G_T + 12, G_T + 14))
    a("v_permlane32_swap_b32 v%d, v%d" % (G_T + 13, G_T + 15))
    a("v_add_f32 v%d, v%d, v%d" % (G_T + 12, G_T + 12, G_T + 14))
    a("v_add_f32 v%d, v%d, v%d" % (G_T + 13, G_T + 13, G_T + 15))
    a("s_mov_b32 exec_lo, 0xffffffff\ns_mov_b32 exec_hi, 0x0")
    a("buffer_store_dwordx2 v[%d:%d], v%d, s[4:7], s35 offen %s" % (G_T + 12, G_T + 13, G_T + 2, SC))
    a("s_mov_b64 exec, -1")


def out_addr(a, xout_add):
    layer_off(a, 34, OFF_X, X_STRIDE, 2, xout_add)
    a("s_lshl_b32 s18, s%d, 15" % S_RT)
    a("s_add_u32 s34, s34, s18")
    a("s_lshl_b32 s18, s%d, 11" % S_NT)
    a("s_add_u32 s34, s34, s18")
    layer_off(a, 35, OFF_STAT, STAT_STRIDE, 2, xout_add)
    a("s_lshl_b32 s18, s%d, 12" % S_RT)
    a("s_add_u32 s35, s35, s18")
    a("s_lshl_b32 s18, s%d, 8" % S_NT)
    a("s_add_u32 s35, s35, s18")


S_Q0, S_Q1, S_KVW = 50, 51, 52


def wq_lines():
    b = Asm()
    for i in range(8):
        blk(b, ar(128 + 4 * i, 4), S_KVW, i)
    for i in range(8):
        blk(b, ar(160 + 4 * i, 4), S_Q0, i)
        blk(b, ar(192 + 4 * i, 4), S_Q1, i)
    return [l.strip() for l in b.lines]


def phase_qkv(a, cfg):
    SA0, SA1, SB0, SB1, SX, SKV = 24, 25, 26, 27, 28, 29
    CK = G_T + 8
    a("v_lshlrev_b32 v%d, 4, v%d" % (G_T + 1, V_H))
    a("v_lshlrev_b32 v%d, 2, v%d" % (G_T + 6, V_R31))
    VP, VPA = 198, 22
    SU.probe_addr(a, sys.modules[__name__], VPA, VP, 59)
    a("buffer_load_dword v%d, v%d, s[4:7], s59 offen sc1" % (VP, VPA))

    def cs_kv():
        a("s_and_b32 s17, s2, 7")
        a("s_lshl_b32 s17, s17, 7")
        a("s_add_u32 s17, s17, 0x%x" % OFF_CSKV)
        a("buffer_load_dwordx4 v[%d:%d], v%d, s[4:7], s17 offen offset:64 sc1" % (CK, CK + 3, G_T + 1))
        a("buffer_load_dwordx4 v[%d:%d], v%d, s[4:7], s17 offen offset:96 sc1" % (CK + 4, CK + 7, G_T + 1))
        a("buffer_load_dword v%d, v%d, s[4:7], s17 offen sc1" % (G_T + 7, G_T + 6))

    cs_kv()

    def wcheck(tag):
        a("v_cmp_ne_u32 vcc, v%d, v%d" % (V_TAG, VP))
        a("s_cbranch_vccz L_qkv_wok%s" % tag)
        keep = a.vm_issued
        poll(a, cfg, 59, VPA, VP, sleep=1)
        cs_kv()
        a("s_waitcnt vmcnt(0)")
        a.vm_issued = keep
        a("L_qkv_wok%s:" % tag)

    layer_off(a, SX, OFF_X, X_STRIDE, 2, 0)
    b_addr(a, SB0, SB1, SX, 32, 8)
    layer_off(a, 30, OFF_STAT, STAT_STRIDE, 2, 0)
    a("s_lshl_b32 s17, s%d, 12" % S_RT)
    a("s_add_u32 s30, s30, s17")
    reduce_addr(a, LDS_RQ)
    layer_off(a, 33, OFF_KV, KV_STRIDE)
    a("s_lshr_b32 s36, s%d, 1" % S_HQ)
    a("s_lshl_b32 s17, s%d, 1" % S_RB)
    a("s_add_u32 s17, s17, s36")
    a("s_lshl_b32 s17, s17, 15")
    a("s_add_u32 s23, s17, s%d" % SX)
    a("s_lshl_b32 s17, s%d, 13" % S_W)
    a("s_add_u32 s23, s23, s17")
    a("s_sub_u32 s17, s%d, s36" % S_W)
    a("s_sub_u32 s17, s17, 1")
    a("s_and_b32 s17, s17, 3")
    a("s_lshl_b32 s17, s17, 12")
    a("s_add_u32 s17, s17, %d" % LDS_KVX)
    a("v_add_u32 v%d, s17, v%d" % (G_T + 2, V_L16))
    a("v_add_u32 v%d, %d, v%d" % (G_T + 3, LDS_KVX, V_L16))
    a("s_mul_i32 s37, s%d, 0x1000" % S_LAYER)
    a("s_add_u32 s37, s37, 0x%x" % (OFF_FLAGS + FL_KV))
    a("s_lshl_b32 s17, s%d, 4" % S_RB)
    a("s_add_u32 s37, s37, s17")
    a("s_lshl_b32 s17, s%d, 2" % S_HQ)
    a("s_add_u32 s37, s37, s17")
    stamp(a, cfg, 8)
    xin_flag_addr(a, 38, False, 0)
    poll(a, cfg, 38, G_T + 6, G_T + 4)
    stamp(a, cfg, 9)
    a("s_cmp_ge_u32 s%d, 4" % S_HQ)
    a("s_cbranch_scc1 L_qkv_stats")
    tK = {}
    for i in range(8):
        blk(a, ar(224 + 4 * i, 4), 23, i, SC)
        tK[i] = a.vt()
    load_stats(a, G_ST, 30, G_T, SC)
    stamp(a, cfg, 1)
    a("s_bitcmp1_b32 s%d, 0" % S_HQ)
    a("s_cbranch_scc1 L_qkv_v1")
    for v in range(2):
        if v:
            a("L_qkv_v%d:" % v)
        for i in range(8):
            a.wait_vm(tK[i])
            x, w = ar(224 + 4 * i, 4), ar(128 + 4 * i, 4)
            c = "0" if i == 0 else vr(G_KVACC, 16)
            if v & 1:
                mf(a, G_KVACC, x, w, c)
            else:
                mf(a, G_KVACC, w, x, c)
        if v < 1:
            a("s_branch L_qkv_kvred")
    a("L_qkv_kvred:")
    stamp(a, cfg, 2)
    a("s_waitcnt vmcnt(0)")
    finish_stats(a, G_ST, V_NMU, V_RSTD)
    for q in range(4):
        a("ds_write_b128 v%d, v[%d:%d] offset:%d" % (G_T + 2, G_KVACC + 4 * q, G_KVACC + 4 * q + 3, q * 1024))
    XS = LDS_KVX + 16384
    a("s_lshl_b32 s17, s%d, 8" % S_W)
    a("s_add_u32 s17, s17, %d" % XS)
    a("v_add_u32 v%d, s17, v%d" % (G_T + 4, G_T + 6))
    a("v_mul_f32 v%d, v%d, v%d" % (G_T + 5, V_NMU, V_RSTD))
    a("ds_write_b32 v%d, v%d" % (G_T + 4, V_RSTD))
    a("ds_write_b32 v%d, v%d offset:128" % (G_T + 4, G_T + 5))
    a("v_add_u32 v%d, s17, v%d" % (G_T + 4, G_T + 1))
    RS = G_ACC + 16
    for g in range(4):
        a("ds_read_b128 v[%d:%d], v%d offset:%d" % (RS + 4 * g, RS + 4 * g + 3, G_T + 4, 32 * g))
        a("ds_read_b128 v[%d:%d], v%d offset:%d" % (RS + 16 + 4 * g, RS + 16 + 4 * g + 3, G_T + 4, 128 + 32 * g))
    def b1_loads():
        cs_q()
        for e in range(8):
            blk(a, ar(64 + 4 * e, 4), SB1, e, SC)
            tB[e] = a.vt()

    def cs_q():
        a("s_lshl_b32 s17, s%d, 7" % S_NT)
        a("s_add_u32 s17, s17, 0x%x" % OFF_CSQ)
        for g in range(4):
            a("buffer_load_dwordx4 v[%d:%d], v%d, s[4:7], s17 offen offset:%d sc1" % (G_CS + 4 * g, G_CS + 4 * g + 3, G_T + 1, 32 * g))
        a("s_add_u32 s17, s17, 4096")
        for g in range(4):
            a("buffer_load_dwordx4 v[%d:%d], v%d, s[4:7], s17 offen offset:%d sc1" % (G_ST + 4 * g, G_ST + 4 * g + 3, G_T + 1, 32 * g))

    tB = {}
    wcheck("a")
    b1_loads()
    a("s_waitcnt lgkmcnt(0)")
    a("s_barrier")
    stamp(a, cfg, 3)
    a("s_cmp_lg_u32 s%d, s36" % S_W)
    a("s_cbranch_scc1 L_qkv_q")
    RD = [G_RED + 16, G_RED + 32, G_ACC]
    for j in range(3):
        for q in range(4):
            a("ds_read_b128 v[%d:%d], v%d offset:%d" % (RD[j] + 4 * q, RD[j] + 4 * q + 3, G_T + 3, j * 4096 + q * 1024))
    for j in range(3):
        a("s_waitcnt lgkmcnt(%d)" % (8 - 4 * j))
        for e in range(16):
            a("v_add_f32 v%d, v%d, v%d" % (G_KVACC + e, G_KVACC + e, RD[j] + e))
    a("s_lshl_b32 s17, s%d, 10" % S_RT)
    a("s_add_u32 s34, s33, s17")
    a("s_bitcmp1_b32 s%d, 0" % S_HQ)
    a("s_cbranch_scc1 L_qkv_vfin")
    PK = G_RED + 16
    for e in range(8):
        a("v_fmac_f32 v%d, v%d, v%d" % (G_KVACC + 8 + e, V_NMU, CK + e))
        a("v_mul_f32 v%d, v%d, v%d" % (G_KVACC + 8 + e, V_RSTD, G_KVACC + 8 + e))
    pack8(a, PK, G_KVACC + 8)
    a("buffer_store_dwordx4 v[%d:%d], v%d, s[4:7], s34 offen %s" % (PK, PK + 3, V_L16, SC))
    a("v_mov_b32 v%d, 0" % (PK + 4))
    for r in range(4):
        a("v_dot2_f32_bf16 v%d, v%d, v%d, v%d" % (PK + 4, PK + r, PK + r, PK + 4))
    xhalf_sum(a, PK + 4, PK + 5)
    for d in ("row_shr:1", "row_shr:2", "row_shr:4", "row_shr:8"):
        a("v_max_f32_dpp v%d, v%d, v%d %s row_mask:0xf bank_mask:0xf" % (PK + 4, PK + 4, PK + 4, d))
    a("v_max_f32_dpp v%d, v%d, v%d row_bcast:15 row_mask:0xa bank_mask:0xf" % (PK + 4, PK + 4, PK + 4))
    a("s_lshl_b32 s18, s%d, 2" % S_RT)
    a("s_add_u32 s18, s18, s33")
    a("s_add_u32 s18, s18, 0x20000")
    a("s_mov_b32 exec_lo, 0x80000000\ns_mov_b32 exec_hi, 0x0")
    a("buffer_store_dword v%d, v%d, s[4:7], s18 offen %s" % (PK + 4, V_ZERO, SC))
    a("s_mov_b64 exec, -1")
    a("s_branch L_qkv_kvdone")
    a("L_qkv_vfin:")
    a("v_lshlrev_b32 v%d, 4, v%d" % (G_T + 4, V_R31))
    a("v_lshl_add_u32 v%d, v%d, 8, v%d" % (G_T + 4, V_H, G_T + 4))
    a("s_add_u32 s34, s34, 0x10000")
    for e in range(16):
        a("v_mul_f32 v%d, v%d, v%d" % (G_KVACC + e, RS + e, G_KVACC + e))
        a("v_fmac_f32 v%d, v%d, v%d" % (G_KVACC + e, RS + 16 + e, G_T + 7))
    pack8(a, G_ACC, G_KVACC)
    pack8(a, G_ACC + 4, G_KVACC + 8)
    a("s_mov_b32 exec_lo, 0xffff\ns_mov_b32 exec_hi, 0xffff")
    a("buffer_store_dwordx4 v[%d:%d], v%d, s[4:7], s34 offen %s" % (G_ACC, G_ACC + 3, G_T + 4, SC))
    a("buffer_store_dwordx4 v[%d:%d], v%d, s[4:7], s34 offen offset:512 %s" % (G_ACC + 4, G_ACC + 7, G_T + 4, SC))
    a("s_mov_b64 exec, -1")
    a("L_qkv_kvdone:")
    stamp(a, cfg, 5)
    a("v_lshlrev_b32 v%d, 9, v%d" % (G_T + 4, V_LANE))
    a("s_waitcnt vmcnt(0)")
    a("s_mov_b64 exec, 0xff")
    a("buffer_store_dword v%d, v%d, s[4:7], s37 offen %s" % (V_TAG, G_T + 4, SC))
    a("s_mov_b64 exec, -1")
    a("s_branch L_qkv_q")
    a("L_qkv_stats:")
    load_stats(a, G_ST, 30, G_T, SC)
    a("s_waitcnt vmcnt(0)")
    finish_stats(a, G_ST, V_NMU, V_RSTD)
    wcheck("b")
    b1_loads()
    a("L_qkv_q:")
    stamp(a, cfg, 10)
    gemm64_core(a, dict(cfg, stamps=cfg.get('stamps') and 2), 8, lambda i: ar(160 + 4 * i, 4), lambda i: ar(192 + 4 * i, 4), lambda e: ar(64 + 4 * e, 4),
                lambda e: blk(a, ar(64 + 4 * e, 4), SB1 if e < 8 else SB0, e % 8, SC), 16, pre_tickets=tB, ramp=12,
                side=[g[0] for g in SU.deferred_store_groups(sys.modules[__name__])], side_from=99, side_n=1)
    a("v_mul_f32 v%d, %s, v%d" % (G_T, fl(QSCALE), V_RSTD))
    for e in range(16):
        a("v_fmac_f32 v%d, v%d, v%d" % (G_ACC + e, V_NMU, G_CS + e))
        a("v_fmac_f32 v%d, v%d, v%d" % (G_ACC + e, V_NMU, G_ST + e))
        a("v_mul_f32 v%d, v%d, v%d" % (G_ACC + e, G_T, G_ACC + e))
    pack8(a, G_Q, G_ACC)
    pack8(a, G_Q + 4, G_ACC + 8)
    if cfg.get("store_q"):
        a("s_lshl_b32 s17, s%d, 15" % S_RT)
        a("s_lshl_b32 s18, s%d, 11" % S_NT)
        a("s_add_u32 s17, s17, s18")
        a("s_add_u32 s17, s17, 0x%x" % OFF_Q)
        a("buffer_store_dwordx4 v[%d:%d], v%d, s[4:7], s17 offen" % (G_Q, G_Q + 3, V_L16))
        a("buffer_store_dwordx4 v[%d:%d], v%d, s[4:7], s17 offen offset:1024" % (G_Q + 4, G_Q + 7, V_L16))
    stamp(a, cfg, 11)


A_C = [24, 40]
A_O = [56, 72]
A_S = [88, 104]
A_P = [120, 124, 128, 132]
A_KF = [136, 140]
A_VF = [[144, 148], [152, 156]]
A_VK, A_VV, A_VINC = 160, 161, 162
A_T = 164
LDS_V = 65536
LDS_ONES = 131072
LDS_ATT_FLAG = LDS_ONES + 5120
UNR = 4


EARLY = 4
W2ORD = [7 * mm + tl for tl in range(7) for mm in range(4)]
W2POS = {k: p for p, k in enumerate(W2ORD)}


def w2load(a, idx, s0, s1):
    i = W2ORD[idx >> 1]
    blk(a, w2reg(idx & 1, i), s1 if idx & 1 else s0, i)


def w2reg(s, i):
    idx = 2 * W2POS[i] + s
    if idx < 32:
        return ar(128 + 4 * idx, 4)
    if idx < 46:
        return vr(W2V + 4 * (idx - 32), 4)
    if idx < 54:
        return vr(136 + 4 * (idx - 46), 4)
    return vr(190 + 4 * (idx - 54), 4)


SLOT13 = [0, 2, 1, 3, 0, 2, 1]


def dma13(a, i, part=None):
    slot = SLOT13[i]
    for hh in range(2):
        a("s_add_u32 m0, s%d, %d" % (S_WL, slot * 32768 + hh * 4096))
        a("s_add_u32 s29, s%d, %d" % (S_W13, i * 32768 + hh * 4096))
        for q in range(4):
            a("buffer_load_dwordx4 v%d, s[4:7], s29 offen offset:%d sc1 lds" % (V_L16, q * 1024))


def dma_lines(i):
    b = Asm()
    dma13(b, i)
    return [l.strip() for l in b.lines]


def phase_att(a, cfg):
    Q = [G_Q, G_Q + 4]
    SA0, SA1, SW0, SW1 = 24, 25, 26, 27
    a("v_mov_b32 v%d, 0x3f803f80" % (A_T + 4))
    if cfg.get("zpad", 1):
        a("v_and_b32 v%d, 8, v0" % (A_T + 5))
        a("v_cmp_eq_u32 vcc, 0, v%d" % (A_T + 5))
        a("v_cndmask_b32 v%d, v%d, v%d, vcc" % (A_T + 4, V_ZERO, A_T + 4))
    for r in range(1, 4):
        a("v_mov_b32 v%d, v%d" % (A_T + 4 + r, A_T + 4))
    a("v_lshlrev_b32 v%d, 4, v0" % (A_T + 2))
    a("v_add_u32 v%d, %d, v%d" % (A_T + 2, LDS_ONES, A_T + 2))
    a("ds_write_b128 v%d, v[%d:%d]" % (A_T + 2, A_T + 4, A_T + 7))
    a("ds_write_b128 v%d, v[%d:%d] offset:1024" % (A_T + 2, A_T + 4, A_T + 7))
    a("v_and_b32 v%d, 15, v%d" % (A_T + 2, V_LANE))
    a("v_lshlrev_b32 v%d, 4, v%d" % (A_T + 2, A_T + 2))
    a("v_lshl_add_u32 v%d, v%d, 8, v%d" % (A_T + 2, V_H, A_T + 2))
    a("v_add_u32 v%d, %d, v%d" % (A_VV, LDS_V, A_T + 2))
    a("v_add_u32 v%d, -20, v%d" % (A_T + 3, V_R31))
    a("v_cmp_gt_u32 vcc, 8, v%d" % (A_T + 3))
    a("v_mov_b32 v%d, %d" % (A_T + 2, LDS_ONES))
    a("v_mov_b32 v%d, %d" % (A_T + 3, LDS_ONES + 64))
    a("v_cndmask_b32 v%d, v%d, v%d, vcc" % (A_T + 2, A_T + 2, A_T + 3))
    if cfg.get("zpad", 1):
        a("v_and_b32 v%d, 27, v%d" % (A_T + 3, V_R31))
        a("v_cmp_ne_u32 vcc, 16, v%d" % (A_T + 3))
        a("v_add_u32 v%d, 128, v%d" % (A_T + 3, A_T + 2))
        a("v_cndmask_b32 v%d, v%d, v%d, vcc" % (A_T + 2, A_T + 2, A_T + 3))
    a("v_cmp_le_u32 vcc, 16, v%d" % V_R31)
    a("v_mov_b32 v%d, %d" % (A_VINC, UNR * 1024))
    a("v_cndmask_b32 v%d, v%d, v%d, vcc" % (A_VV, A_VV, A_T + 2))
    a("v_cndmask_b32 v%d, v%d, v%d, vcc" % (A_VINC, A_VINC, V_ZERO))
    for t in range(2):
        n = A_T + 8 + t
        a("v_mov_b32 v%d, 0" % n)
        for r in range(4):
            a("v_dot2_f32_bf16 v%d, v%d, v%d, v%d" % (n, Q[t] + r, Q[t] + r, n))
    for t in range(2):
        xhalf_sum(a, A_T + 8 + t, A_T + 10)
    a_addr(a, SA0, SA1, OFF_WO, 32, 8)
    a("s_mul_i32 s%d, s%d, %d" % (S_W13, S_M, 7 * 32768))
    a("s_lshl_b32 s%d, s%d, 13" % (S_WL, S_W))
    a("s_add_u32 s%d, s%d, s%d" % (S_W13, S_W13, S_WL))
    a("s_add_u32 s%d, s%d, 0x%x" % (S_W13, S_W13, OFF_W13))
    a_addr(a, SW0, SW1, OFF_W2, 112, 28)
    a("s_lshl_b32 s20, s%d, 10" % S_W)
    a("s_add_u32 s21, s33, s20")
    a("s_add_u32 s22, s21, 0x10000")
    a("s_add_u32 s23, s20, %d" % LDS_V)
    a("s_mul_i32 s38, s%d, 0x1000" % S_LAYER)
    a("s_add_u32 s38, s38, 0x%x" % (OFF_FLAGS + FL_KV))
    a("s_and_b32 s17, s2, 7")
    a("s_lshl_b32 s17, s17, 9")
    a("s_add_u32 s38, s38, s17")
    a("s_lshl_b32 s58, s2, 2")
    a("s_add_u32 s58, s58, 0x%x" % OFF_FLW)
    a("s_or_b32 s17, s%d, s%d" % (S_W, S_LAYER))
    a("s_cmp_lg_u32 s17, 0")
    a("s_cselect_b32 s58, 0xf0000000, s58")
    a("s_and_b32 s59, s2, 7")
    a("s_lshl_b32 s59, s59, 10")
    a("s_add_u32 s59, s59, 0x%x" % OFF_FLW)
    a("v_lshlrev_b32 v%d, 10, v%d" % (A_T + 16, V_LANE))

    stamp(a, cfg, 1)
    a("v_lshlrev_b32 v%d, 3, v%d" % (A_T + 14, V_LANE))
    a("s_cmp_lg_u32 s%d, 0" % S_W)
    a("s_cbranch_scc1 L_att_nopoll")
    poll(a, cfg, 38, A_T + 14, A_T + 12, wide=True, sleep=cfg.get("kv_sleep", 2))
    a("L_att_nopoll:")
    a("s_waitcnt vmcnt(0)")
    a("s_barrier")
    a("s_mov_b64 exec, 0xff")
    a("buffer_store_dword v%d, v%d, s[4:7], s58 offen %s" % (V_TAG, A_T + 16, SC))
    a("s_mov_b64 exec, -1")
    a("s_mov_b32 s%d, 0xf0000000" % SU.S_DST)
    stamp(a, cfg, 2)
    a("s_add_u32 s17, s33, 0x20000")
    a("buffer_load_dword v%d, v%d, s[4:7], s17 offen %s" % (A_T + 1, V_L4, SC))
    t_kn = a.vt()
    def kvdma(g):
        a("s_add_u32 m0, s20, %d" % (g * 4096))
        a("s_add_u32 s17, s21, %d" % (g * 4096))
        a("buffer_load_dwordx4 v%d, s[4:7], s17 offen %s lds" % (V_L16, SC))
        a("s_add_u32 m0, s23, %d" % (g * 4096))
        a("s_add_u32 s17, s22, %d" % (g * 4096))
        a("buffer_load_dwordx4 v%d, s[4:7], s17 offen %s lds" % (V_L16, SC))

    G1 = 6
    for g in range(G1):
        kvdma(g)
        if g == 3:
            t_g3 = a.vt()
            a.wait_vm(t_kn)
            k2 = A_T + 1
            for d in ("row_shr:1", "row_shr:2", "row_shr:4", "row_shr:8"):
                a("v_max_f32_dpp v%d, v%d, v%d %s row_mask:0xf bank_mask:0xf" % (k2, k2, k2, d))
            a("v_max_f32_dpp v%d, v%d, v%d row_bcast:15 row_mask:0xa bank_mask:0xf" % (k2, k2, k2))
            a("v_max_f32_dpp v%d, v%d, v%d row_bcast:31 row_mask:0xc bank_mask:0xf" % (k2, k2, k2))
            a("v_readlane_b32 s18, v%d, 63" % k2)
            for t in range(2):
                n = A_T + 8 + t
                a("v_mul_f32 v%d, s18, v%d" % (n, n))
                a("v_sqrt_f32 v%d, v%d" % (n, n))
            for t in range(2):
                n = A_T + 8 + t
                a("v_mul_f32 v%d, %s, v%d" % (n, fl(-1.001), n))
            a("v_min_f32 v%d, v%d, v%d" % (A_T + 10, A_T + 8, A_T + 9))
            a("v_mov_b32 v%d, %s" % (A_T + 11, fl(-cfg.get("bound_t", BOUND_T))))
            a("v_cmp_nge_f32 vcc, v%d, v%d" % (A_T + 10, A_T + 11))
            a("s_lshl_b32 s19, s%d, 2" % S_W)
            a("s_add_u32 s19, s19, %d" % LDS_ATT_FLAG)
            a("v_mov_b32 v%d, s19" % (A_T + 12))
            a("s_cmp_lg_u64 vcc, 0")
            a("s_cselect_b32 s18, 1, 0")
            a("v_mov_b32 v%d, s18" % (A_T + 11))
            a("ds_write_b32 v%d, v%d" % (A_T + 12, A_T + 11))
            for t in range(2):
                for r in range(16):
                    a("v_mov_b32 v%d, v%d" % (A_C[t] + r, A_T + 8 + t))
    stamp(a, cfg, 3)
    a.wait_vm(t_g3)
    a("s_waitcnt lgkmcnt(0)")
    a("s_barrier")
    stamp(a, cfg, 4)
    a("v_mov_b32 v%d, %d" % (A_T + 12, LDS_ATT_FLAG))
    a("ds_read_b128 v[%d:%d], v%d" % (A_T + 4, A_T + 7, A_T + 12))
    a("ds_read_b128 v[%d:%d], v%d" % (A_KF[0], A_KF[0] + 3, V_L16))
    a("ds_read_b128 v[%d:%d], v%d" % (A_VF[0][0], A_VF[0][0] + 3, A_VV))
    a("ds_read_b128 v[%d:%d], v%d offset:512" % (A_VF[0][1], A_VF[0][1] + 3, A_VV))
    a("ds_read_b128 v[%d:%d], v%d offset:1024" % (A_KF[1], A_KF[1] + 3, V_L16))
    a("s_waitcnt lgkmcnt(4)")
    a("v_or_b32 v%d, v%d, v%d" % (A_T + 4, A_T + 4, A_T + 5))
    a("v_or3_b32 v%d, v%d, v%d, v%d" % (A_T + 4, A_T + 4, A_T + 6, A_T + 7))
    a("v_readfirstlane_b32 s18, v%d" % (A_T + 4))
    a("s_cmp_eq_u32 s18, 0")
    a("s_cbranch_scc1 L_att_fast")
    keep = a.vm_issued
    for g in range(G1, 16):
        kvdma(g)
    a.vm_issued = keep
    a("s_waitcnt vmcnt(0)")
    a("s_barrier")
    a("v_mov_b32 v%d, 0xff800000" % (A_T + 8))
    a("v_mov_b32 v%d, 0xff800000" % (A_T + 9))
    a("v_mov_b32 v%d, v%d" % (A_T + 12, V_L16))
    a("s_mov_b32 s19, 64")
    a("L_att_pre:")
    a("ds_read_b128 v[%d:%d], v%d" % (A_P[0], A_P[0] + 3, A_T + 12))
    a("v_add_u32 v%d, 1024, v%d" % (A_T + 12, A_T + 12))
    a("s_waitcnt lgkmcnt(0)")
    for t in range(2):
        mf(a, A_S[t], vr(A_P[0], 4), vr(Q[t], 4), "0")
    for t in range(2):
        for r in range(0, 16, 2):
            a("v_max3_f32 v%d, v%d, v%d, v%d" % (A_T + 8 + t, A_S[t] + r, A_S[t] + r + 1, A_T + 8 + t))
    a("s_sub_u32 s19, s19, 1")
    a("s_cmp_lg_u32 s19, 0")
    a("s_cbranch_scc1 L_att_pre")
    for t in range(2):
        n = A_T + 8 + t
        a("v_mov_b32 v%d, v%d" % (A_T + 10, n))
        a("v_permlane32_swap_b32 v%d, v%d" % (n, A_T + 10))
        a("v_max_f32 v%d, v%d, v%d" % (n, n, A_T + 10))
        a("v_sub_f32 v%d, 0, v%d" % (n, n))
        for r in range(16):
            a("v_mov_b32 v%d, v%d" % (A_C[t] + r, n))
    a("L_att_fast:")
    a("s_waitcnt lgkmcnt(0)")

    def m4(d, x, y, c):
        mf(a, d, vr(x, 4), vr(y, 4), vr(c, 16))

    def ex(r):
        a("v_exp_f32 v%d, v%d" % (r, r))

    def cv(d, s):
        a("v_cvt_pk_bf16_f32 v%d, v%d, v%d" % (d, s, s + 1))

    m4(A_S[0], A_KF[0], Q[0], A_C[0])
    a("s_nop 7")

    def lines_of(fn):
        b = Asm()
        fn(b)
        return [l.strip() for l in b.lines]

    def groups(lines):
        out, cur = [], []
        for x in lines:
            cur.append(x)
            if x.startswith("buffer_"):
                out.append(cur)
                cur = []
        assert not cur
        return out

    def kvl(g):
        return ["s_add_u32 m0, s20, %d" % (g * 4096), "s_add_u32 s17, s21, %d" % (g * 4096),
                "buffer_load_dwordx4 v%d, s[4:7], s17 offen %s lds" % (V_L16, SC),
                "s_add_u32 m0, s23, %d" % (g * 4096), "s_add_u32 s17, s22, %d" % (g * 4096),
                "buffer_load_dwordx4 v%d, s[4:7], s17 offen %s lds" % (V_L16, SC)]

    q_kv = []
    for g in range(G1, 16):
        q_kv += [(x, g) for x in groups(kvl(g))]
    q_w = []
    for i in range(8):
        q_w += groups(lines_of(lambda b: blk(b, ar(4 * i, 4), SA0, i)))
        q_w += groups(lines_of(lambda b: blk(b, ar(32 + 4 * i, 4), SA1, i)))
    for idx in range(46):
        q_w += groups(lines_of(lambda b: w2load(b, idx, SW0, SW1)))
    q_t = [["s_add_u32 s17, s49, %d" % (q * 4096), "buffer_load_dword v%d, v%d, s[4:7], s17 offen sc1" % (A_T + 3, A_T + 2)] for q in range(5)]
    if not cfg.get("touch13", 1):
        q_t = []
    q_d = groups(dma_lines(0) + dma_lines(1))
    a("s_mul_i32 s49, s%d, %d" % (S_M, 7 * 32768))
    a("s_and_b32 s18, s%d, 1" % S_RG)
    a("s_mul_i32 s18, s18, %d" % 81920)
    a("s_add_u32 s49, s49, s18")
    a("s_mul_i32 s18, s%d, %d" % (S_W, 20480))
    a("s_add_u32 s49, s49, s18")
    a("s_add_u32 s49, s49, 0x%x" % (OFF_W13 + 65536))
    a("v_lshlrev_b32 v%d, 6, v%d" % (A_T + 2, V_LANE))
    tg = {}
    U_PROBE, U_CHK = cfg.get("u_probe", 21), cfg.get("u_chk", 24)
    PB = A_T + 12
    def slot(u):
        grp, g = None, None
        if q_kv:
            grp, g = q_kv.pop(0)
        elif u == U_PROBE:
            a("buffer_load_dwordx4 v[%d:%d], v%d, s[4:7], s59 offen %s" % (PB, PB + 3, V_L16, SC))
            tg["probe"] = a.vt()
        elif u == U_CHK:
            a.wait_vm(tg["probe"])
            a("L_att_wchk:")
            a("v_cmp_ne_u32 vcc, v%d, v%d" % (V_TAG, PB))
            for r in range(1, 4):
                a("v_cmp_ne_u32 s[18:19], v%d, v%d" % (V_TAG, PB + r))
                a("s_or_b64 vcc, vcc, s[18:19]")
            a("s_cmp_eq_u64 vcc, 0")
            a("s_cbranch_scc1 L_att_wok")
            if cfg.get("spin_limit"):
                a("s_sub_u32 s46, s46, 1")
                a("s_cbranch_scc1 L_att_wok")
            keep = a.vm_issued
            a("s_sleep 4")
            a("buffer_load_dwordx4 v[%d:%d], v%d, s[4:7], s59 offen %s" % (PB, PB + 3, V_L16, SC))
            a("s_waitcnt vmcnt(0)")
            a("s_branch L_att_wchk")
            a.vm_issued = keep
            a("L_att_wok:")
        elif u < U_CHK:
            pass
        elif u >= 68 and q_d:
            grp = q_d.pop(0)
        elif q_t and u % 8 == 1:
            grp = q_t.pop(0)
        elif q_w:
            grp = q_w.pop(0)
        elif q_t:
            grp = q_t.pop(0)
        if grp:
            for x in grp:
                a(x)
            if g is not None:
                tg[g] = a.vt()

    NU = 128
    BAR = {16: 9, 36: 15}
    for u in range(NU):
        j, t = u >> 1, u & 1
        nj, nt = (u + 1) >> 1, (u + 1) & 1
        pj, pt = (u - 1) >> 1, (u - 1) & 1
        jj = j % UNR
        sb, nsb = A_S[u % 2], A_S[(u + 1) % 2]
        plo, phi = A_P[(u % 2) * 2], A_P[(u % 2) * 2 + 1]
        pphi = A_P[((u - 1) % 2) * 2 + 1]
        if u + 1 < NU:
            m4(nsb, A_KF[nj % 2], Q[nt], A_C[nt])
        if t == 0 and j + 2 < 64:
            a("ds_read_b128 v[%d:%d], v%d offset:%d" % (A_KF[j % 2], A_KF[j % 2] + 3, V_L16, (j + 2) * 1024))
        if t == 1 and u > U_CHK and cfg.get('slot3', 0):
            slot(u)
        for r in range(0, 4):
            ex(sb + r)
        if u > 0:
            m4(A_O[pt], A_VF[pj % 2][1], pphi, A_O[pt])
        if t == 0 and j + 1 < 64:
            off = (jj + 1) * 1024
            a("ds_read_b128 v[%d:%d], v%d offset:%d" % (A_VF[(j + 1) % 2][0], A_VF[(j + 1) % 2][0] + 3, A_VV, off))
            a("ds_read_b128 v[%d:%d], v%d offset:%d" % (A_VF[(j + 1) % 2][1], A_VF[(j + 1) % 2][1] + 3, A_VV, off + 512))
        if t == 1:
            slot(u)
        for r in range(4, 9):
            ex(sb + r)
        for r in range(0, 4):
            cv(plo + r, sb + 2 * r)
        for r in range(9, 12):
            ex(sb + r)
        m4(A_O[t], A_VF[j % 2][0], plo, A_O[t]) if u > 1 else mf(a, A_O[t], vr(A_VF[j % 2][0], 4), vr(plo, 4), "0")
        if t == 1:
            a("s_waitcnt lgkmcnt(0)")
            if (j + 3) in BAR:
                g = BAR[j + 3]
                if g is not None:
                    a.wait_vm(tg[g])
                a("s_barrier")
                if j + 3 == 16:
                    stamp(a, cfg, 6)
        else:
            slot(u)
        for r in range(12, 16):
            ex(sb + r)
        if t == 1 and jj == UNR - 1:
            a("v_add_u32 v%d, v%d, v%d" % (A_VV, A_VINC, A_VV))
        for r in range(4, 8):
            cv(phi + r - 4, sb + 2 * r)
    assert not (q_kv or q_w or q_t or q_d), (len(q_kv), len(q_w), len(q_t), len(q_d))
    units = [(63, 1)]
    U = 128
    a("L_att_done:")
    stamp(a, cfg, 7)
    lj, lt = units[-1]
    m4(A_O[lt], A_VF[lj % 2][1], A_P[((U - 1) % 2) * 2 + 1], A_O[lt])
    layer_off(a, 34, OFF_O, X_STRIDE)
    a("s_lshl_b32 s18, s%d, 15" % S_RT)
    a("s_add_u32 s34, s34, s18")
    a("s_lshl_b32 s18, s%d, 11" % S_NT)
    a("s_add_u32 s34, s34, s18")
    for t in range(2):
        a("v_rcp_f32 v%d, v%d" % (A_T, A_O[t] + 8))
        for r in range(8):
            a("v_mul_f32 v%d, v%d, v%d" % (A_O[t] + r, A_T, A_O[t] + r))
        pack8(a, A_P[t], A_O[t])
        st4(a, A_P[t], V_L16, 34, t * 1024)
    flag_addr(a, S_FO, FL_O, S_RB, 7, S_HQ)
    publish(a, S_FO, 34)
    stamp(a, cfg, 8)


def phase_wo(a, cfg):
    SB0, SB1, SX = 26, 27, 28
    a("s_barrier")
    if not cfg.get("pf_att", 1):
        for i in range(8):
            blk(a, ar(4 * i, 4), 24, i)
            blk(a, ar(32 + 4 * i, 4), 25, i)
    dma13(a, 2)
    layer_off(a, SX, OFF_O, X_STRIDE)
    b_addr(a, SB0, SB1, SX, 32, 8)
    reduce_addr(a, LDS_R1)
    out_addr(a, 1)
    flag_addr(a, 38, FL_O, S_RB, 7)
    a("s_lshl_b32 s17, s%d, 5" % S_W)
    a("s_add_u32 s38, s38, s17")
    a("v_and_b32 v%d, 28, v%d" % (G_T + 5, V_L4))
    flag_addr(a, S_FX1, FL_X1, S_RG, 8, S_M)
    stamp(a, cfg, 8)
    poll(a, cfg, 38, G_T + 5, G_T + 4)
    stamp(a, cfg, 9)
    gemm64_core(a, cfg, 8, lambda i: ar(4 * i, 4), lambda i: ar(32 + 4 * i, 4), lambda e: ar(64 + 4 * e, 4),
                lambda e: blk(a, ar(64 + 4 * e, 4), SB1 if e < 8 else SB0, e % 8, SC), 16, ramp=cfg.get("ramp1", 8), resid=True)
    res_epilogue(a, cfg, 1, None)
    stamp(a, cfg, 10)
    publish(a, S_FX1, 34)
    stamp(a, cfg, 11)


F_ACC = [24, 40, 56, 72]
NACC = 4
F_W = 88
F_CS = 120
F_H = 128
F_ST = 136
F_T = 168
F_LA = [184, 185]
F_NMU, F_C1, F_RS2, F_CSA, F_LG = 186, 187, 188, 189, 198


def phase_ffn1(a, cfg):
    SX, SH = 24, 27
    a("s_barrier")
    dma13(a, 3)
    a("s_mul_i32 s29, s%d, %d" % (S_M, 7 * 1024))
    a("s_lshl_b32 s17, s%d, 11" % S_W)
    a("s_add_u32 s29, s29, s17")
    a("s_add_u32 m0, s17, %d" % LDS_CS)
    a("s_add_u32 s29, s29, 0x%x" % OFF_CSX)
    a("buffer_load_dwordx4 v%d, s[4:7], s29 offen sc1 lds" % V_L16)
    a("buffer_load_dwordx4 v%d, s[4:7], s29 offen offset:1024 sc1 lds" % V_L16)
    t_w = a.vt()
    a("s_lshl_b32 s30, s%d, 2" % S_RG)
    a("s_add_u32 s30, s30, s%d" % S_W)
    layer_off(a, SX, OFF_X, X_STRIDE, 2, 1)
    a("s_lshl_b32 s17, s30, 15")
    a("s_add_u32 s%d, s%d, s17" % (SX, SX))
    a("s_add_u32 s25, s%d, %d" % (SX, 28 * 1024))
    layer_off(a, 26, OFF_STAT, STAT_STRIDE, 2, 1)
    a("s_lshl_b32 s18, s30, 12")
    a("s_add_u32 s26, s26, s18")
    layer_off(a, SH, OFF_H, H_STRIDE)
    a("s_mul_i32 s17, s30, %d" % (112 * 1024))
    a("s_add_u32 s%d, s%d, s17" % (SH, SH))
    a("s_mul_i32 s17, s%d, %d" % (S_M, 7 * 1024))
    a("s_add_u32 s%d, s%d, s17" % (SH, SH))
    a("v_mov_b32 v%d, v%d" % (F_LA[0], V_L16))
    a("v_add_u32 v%d, 65536, v%d" % (F_LA[1], V_L16))
    a("v_add_u32 v%d, %d, v%d" % (F_CSA, LDS_CS, V_L16))
    a_addr(a, 53, 54, OFF_W2, 112, 28)
    flag_addr(a, 38, FL_X1, S_RG, 8)
    a("s_lshr_b32 s17, s%d, 1" % S_W)
    a("s_lshl_b32 s17, s17, 7")
    a("s_add_u32 s38, s38, s17")
    a("s_and_b32 s17, s%d, 1" % S_W)
    a("s_lshl_b32 s17, s17, 2")
    a("s_add_u32 s38, s38, s17")
    lane_pat(a, F_T + 2, 15, 0, 3)
    flag_addr(a, S_FH, FL_H, S_RG, 9, S_M, per_layer=0x2000)
    stamp(a, cfg, 1)
    poll(a, cfg, 38, F_T + 2, F_T)
    stamp(a, cfg, 2)
    a("s_barrier")
    tX = {}

    def xload(i):
        if i < 28:
            blk(a, ar(4 * i, 4), SX, i, SC)
        else:
            blk(a, ar(4 * i, 4), 25, i - 28, SC)
        tX[i] = a.vt()

    XW = cfg.get("xwin", 10)
    for i in range(XW):
        xload(i)

    def wread(tile, ks, ring):
        slot = SLOT13[tile]
        if ks == 32:
            a("ds_read_b128 v[%d:%d], v%d offset:%d" % (F_W + 4 * ring, F_W + 4 * ring + 3, F_CSA, tile * 1024))
            return
        a("ds_read_b128 v[%d:%d], v%d offset:%d" % (F_W + 4 * ring, F_W + 4 * ring + 3, F_LA[slot >> 1], (slot & 1) * 32768 + ks * 1024))

    def epi(tile):
        acc, cs = F_ACC[tile % NACC], F_CS
        hp = F_H + 4 * (tile % 2)
        out = []
        for e in range(8):
            out.append("v_fma_f32 v%d, v%d, v%d, v%d" % (F_T + 8 + e, F_C1, acc + e, F_LG))
        for e in range(8):
            out.append("v_exp_f32 v%d, v%d" % (F_T + 8 + e, F_T + 8 + e))
            out.append("v_mul_f32 v%d, v%d, v%d" % (acc + e, acc + e, acc + 8 + e))
            if e:
                out.append("v_add_f32 v%d, v%d, v%d" % (F_T + 7 + e, F_RS2, F_T + 7 + e))
        out.append("v_add_f32 v%d, v%d, v%d" % (F_T + 15, F_RS2, F_T + 15))
        for e in range(8):
            out.append("v_rcp_f32 v%d, v%d" % (F_T + 8 + e, F_T + 8 + e))
            if e:
                out.append("v_mul_f32 v%d, v%d, v%d" % (acc + e - 1, F_T + 7 + e, acc + e - 1))
        out.append("v_mul_f32 v%d, v%d, v%d" % (acc + 7, F_T + 15, acc + 7))
        for i in range(4):
            out.append("v_cvt_pk_bf16_f32 v%d, v%d, v%d" % (hp + i, acc + 2 * i, acc + 2 * i + 1))
        out.append("buffer_store_dwordx4 v[%d:%d], v%d, s[4:7], s%d offen offset:%d %s" % (hp, hp + 3, V_OFF[tile // 4], SH, (tile % 4) * 1024, SC))
        if DBL[0]:
            out.append("buffer_store_dwordx4 v[%d:%d], v%d, s[4:7], s%d offen offset:%d" % (hp, hp + 3, V_OFF[tile // 4], SH, (tile % 4) * 1024))
        return out

    G0 = cfg.get("g0", 2)
    steps = []
    for ks in range(33):
        for tl in range(G0):
            steps.append((tl, ks))
    for tile in range(G0, 7):
        for ks in range(33):
            steps.append((tile, ks))
    N = len(steps)
    PF = 6
    lt = {}
    first_of, last_of = {}, {}
    for n, (tile, ks) in enumerate(steps):
        first_of.setdefault(tile, n)
        last_of[tile] = n
    dma_q = []
    fence_t = {}

    def do_read(n):
        tile, ks = steps[n]
        if n == first_of[tile] and tile >= 4:
            assert tile in fence_t and not any(q[0] == tile for q in dma_q), tile
            a.wait_vm(fence_t[tile])
            a("s_barrier")
        wread(tile, ks, n % 8)
        lt[n] = a.lt()

    cs_t = 0
    for n in range(PF):
        do_read(n)
    pending = []
    nx = XW
    nst, st_t, st_n, early_done = 0, {}, {}, False
    for n, (tile, ks) in enumerate(steps):
        if tile >= G0 and ks == 0:
            stamp(a, cfg, 1 + tile)
        if tile == 0 and ks < 32:
            a.wait_vm(tX[ks])
        if n % 2 == 0:
            a.wait_lg(lt[min(n + 1, N - 1)])
            lg_done = lt[min(n + 1, N - 1)]
        acc = F_ACC[tile % NACC]
        mf(a, acc, vr(F_W + 4 * (n % 8), 4), ar(4 * ks, 4) if ks < 32 else vr(F_CS, 4), "0" if ks == 0 else vr(acc, 16))
        if tile < G0 and nx < 32:
            xload(nx)
            nx += 1
            if nx == 32:
                load_stats(a, F_ST, 26, F_T, SC)
                t_st = a.vt()
        if n + PF < N:
            do_read(n + PF)
        if n == last_of[G0 - 1] + 2:
            a("s_barrier")
            for tl in range(4, 4 + min(G0, 3)):
                dma_q += [(tl, x) for x in dma_lines(tl)]
        for old in range(G0, 3):
            if n == last_of[old] + 2:
                a("s_barrier")
                dma_q += [(old + 4, x) for x in dma_lines(old + 4)]
                if old == 2:
                    b = Asm()
                    for idx in range(46, 56):
                        w2load(b, idx, 53, 54)
                    dma_q += [(99, l.strip()) for l in b.lines]
        if dma_q and n % cfg.get("dma_every", 3) == 0:
            while dma_q:
                tl, x = dma_q.pop(0)
                a(x)
                if x.startswith("buffer_load"):
                    fence_t[tl] = a.vt()
                    break
        if n == last_of[G0 - 1] - G0 - 2:
            a.wait_vm(t_st)
            finish_stats(a, F_ST, F_NMU, F_RS2)
            a("v_mul_f32 v%d, %s, v%d" % (F_C1, fl(-LOG2E), F_RS2))
            a("v_mov_b32 v%d, v%d" % (F_RS2, F_ST + 1))
            a("v_log_f32 v%d, v%d" % (F_LG, F_ST + 1))
            split3(a, F_NMU, F_CS + 4)
            hi, mi, lo = F_CS + 4, F_CS + 5, F_CS + 6
            a("v_lshrrev_b32 v%d, 16, v%d" % (F_CS + 7, hi))
            a("v_or_b32 v%d, v%d, v%d" % (F_CS, F_CS + 7, mi))
            a("v_or_b32 v%d, v%d, v%d" % (F_CS + 1, F_CS + 7, lo))
            a("v_mov_b32 v%d, v%d" % (F_CS + 2, F_CS))
            a("v_mov_b32 v%d, 0" % (F_CS + 3))
        for tl in range(0, 6):
            if n == max(last_of[tl], last_of[G0 - 1]) + 3:
                pending += epi(tl)
        cost = 0
        lim = cfg.get("epi_cost", 12)
        while pending:
            x = pending[0]
            if x == "CSWAIT":
                pending.pop(0)
                if cs_t > lg_done:
                    a.wait_lg(cs_t)
                    cost += 4
                continue
            cx = 8 if x.split()[0] in TRANS else (8 if x.startswith("buffer_") else 4)
            if cost + cx > lim:
                break
            pending.pop(0)
            if x.startswith("buffer_store") and nst == EARLY:
                assert not dma_q
                a("s_waitcnt vmcnt(0)")
                a("s_mov_b64 exec, 1")
                a("buffer_store_dword v%d, v%d, s[4:7], s%d offen offset:%d %s" % (V_TAG, V_ZERO, S_FH, 0x100, SC))
                touch_lines(a, SH, 8 * EARLY)
                a("s_mov_b64 exec, -1")
                early_done = True
            a(x)
            cost += cx
            if x.startswith("ds_read"):
                cs_t = a.lt()
            if x.startswith("buffer_store"):
                nst += 1
                st_t[nst - 1] = a.vt()
                st_n[nst - 1] = n
    assert early_done
    assert not dma_q
    stamp(a, cfg, 8)
    for x in pending + epi(6):
        if x == "CSWAIT":
            a.wait_lg(cs_t)
            continue
        a(x)
        if x.startswith("ds_read"):
            cs_t = a.lt()
    stamp(a, cfg, 9)
    a("s_add_u32 s17, s%d, %d" % (SH, EARLY * 1024))
    publish(a, S_FH, 17, 8 * (7 - EARLY))
    stamp(a, cfg, 10)


def phase_ffn2(a, cfg):
    SB0, SB1, SX = 26, 27, 28
    SW0, SW1 = 24, 25
    side = []
    if cfg.get("touchq", 0):
        a("s_lshl_b32 s49, s%d, 16" % S_HQ)
        a("s_and_b32 s18, s%d, 3" % S_RB)
        a("s_lshl_b32 s18, s18, 14")
        a("s_add_u32 s49, s49, s18")
        a("s_lshl_b32 s18, s%d, 12" % S_W)
        a("s_add_u32 s49, s49, s18")
        a("s_add_u32 s49, s49, 0x%x" % OFF_WQ)
        a("s_cmp_eq_u32 s%d, 1" % S_LAYER)
        a("s_cselect_b32 s49, 0xf0000000, s49")
        a("v_lshlrev_b32 v%d, 6, v%d" % (G_T + 2, V_LANE))
        side.append("buffer_load_dword v%d, v%d, s[4:7], s49 offen" % (G_T + 3, G_T + 2))
    layer_off(a, SX, OFF_H, H_STRIDE)
    b_addr(a, SB0, SB1, SX, 112, 28)
    reduce_addr(a, LDS_R1)
    out_addr(a, 2)
    flag_addr(a, 38, FL_H, S_RG, 9, per_layer=0x2000)
    a("s_lshl_b32 s17, s%d, 6" % S_W)
    a("s_add_u32 s38, s38, s17")
    a("s_and_b32 s17, s%d, 1" % S_RB)
    a("s_lshl_b32 s17, s17, 3")
    a("s_add_u32 s38, s38, s17")
    lane_pat(a, G_T + 6, 7, 0, 2)
    xin_flag_addr(a, 39, True, 1)
    stamp(a, cfg, 8)
    poll(a, cfg, 38, G_T + 6, G_T + 4, imm=0x100)
    stamp(a, cfg, 9)
    R = 32

    def hreg(e):
        return ar(4 * (e % R), 4)

    early = [7 * mm + tl for tl in range(EARLY) for mm in range(4)]
    late = [7 * mm + tl for tl in range(EARLY, 7) for mm in range(4)]
    order = [(1, i) for i in early] + [(0, i) for i in early] + [(1, i) for i in late] + [(0, i) for i in late]
    tp = {}

    def probe():
        a("buffer_load_dword v%d, v%d, s[4:7], s38 offen %s" % (G_T + 5, G_T + 6, SC))
        tp[0] = a.vt()

    def check():
        a.wait_vm(tp[0])
        a("v_cmp_ne_u32 vcc, v%d, v%d" % (V_TAG, G_T + 5))
        a("s_cbranch_vccz L_ffn2_go")
        keep = a.vm_issued
        poll(a, cfg, 38, G_T + 6, G_T + 4)
        a.vm_issued = keep
        a("L_ffn2_go:")
        stamp(a, cfg, 3)

    pp = cfg.get("probe_at", 16)
    gemm64_core(a, cfg, 28, lambda i: w2reg(0, i), lambda i: w2reg(1, i), hreg,
                lambda e: blk(a, hreg(e), SB1 if order[e][0] else SB0, order[e][1], SC), R, order=order,
                gate=(2 * len(early), probe, check, pp, pp), side=side, side_from=cfg.get('w2_side', 6), side_n=1,
                side2=wq_lines(), side2_from=cfg.get('wq_from', 40), ramp=cfg.get('ramp2', 10), resid=True)
    res_epilogue(a, cfg, 2, "L_final")
    stamp(a, cfg, 10)
    publish(a, 39, 34)
    stamp(a, cfg, 11)


def final_store(a):
    a("v_permlane32_swap_b32 v%d, v%d" % (V_RES, V_RES + 2))
    a("v_permlane32_swap_b32 v%d, v%d" % (V_RES + 1, V_RES + 3))
    a("v_permlane32_swap_b32 v%d, v%d" % (V_RES + 4, V_RES + 6))
    a("v_permlane32_swap_b32 v%d, v%d" % (V_RES + 5, V_RES + 7))
    a("s_lshl_b32 s17, s%d, 15" % S_RT)
    a("s_lshl_b32 s18, s%d, 6" % S_NT)
    a("s_add_u32 s17, s17, s18")
    a("v_lshlrev_b32 v%d, 10, v%d" % (G_T + 2, V_R31))
    a("v_lshl_add_u32 v%d, v%d, 4, v%d" % (G_T + 2, V_H, G_T + 2))
    a("buffer_store_dwordx4 v[%d:%d], v%d, s[8:11], s17 offen" % (V_RES, V_RES + 3, G_T + 2))
    a("buffer_store_dwordx4 v[%d:%d], v%d, s[8:11], s17 offen offset:32" % (V_RES + 4, V_RES + 7, G_T + 2))


def st_begin(a, cfg):
    kern.stamp_init(a, cfg)


def st_end(a, cfg, k):
    if not cfg.get("stamps"):
        return
    stamp(a, cfg, NSTAMP - 1)
    a("s_memrealtime s[62:63]")
    a("s_waitcnt lgkmcnt(0)")
    a("s_mov_b32 s79, s62")
    a("s_mul_i32 s60, s3, 5\ns_add_u32 s60, s60, %d" % k)
    a("s_lshl_b32 s60, s60, 16")
    a("s_lshl_b32 s61, s2, 8")
    a("s_add_u32 s60, s60, s61")
    a("s_lshl_b32 s61, s12, 6")
    a("s_add_u32 s60, s60, s61")
    a("s_add_u32 s60, s60, 0x%x" % kern.OFF_STAMP)
    for i in range(16):
        a("v_writelane_b32 v199, s%d, %d" % (64 + i, i))
    a("s_mov_b32 exec_lo, 0xffff\ns_mov_b32 exec_hi, 0x0")
    a("buffer_store_dword v199, v%d, s[4:7], s60 offen" % V_L4)
    a("s_mov_b64 exec, -1")


KNAME = kern.NAME + "_kernel"


def build(cfg):
    rep = []
    DBL[0] = cfg.get("dbl", 0)
    TOUCH[0] = cfg.get("ptouch", 0)
    COMPACT[0] = cfg.get("compact", 1)
    global OFF_WKV
    if COMPACT[0]:
        OFF_WKV = SU.OFF_WKV = C_WKV
    a = Asm()
    a("s_load_dwordx16 s[80:95], s[0:1], 0")
    a("s_load_dwordx2 s[96:97], s[0:1], 64")
    a("s_load_dwordx2 s[98:99], s[0:1], 80")
    kern.common_prologue(a, True)
    a("v_mov_b32 v%d, 0" % V_ZERO)
    a("v_mov_b32 v199, 0")
    a("v_lshlrev_b32 v%d, 7, v%d" % (V_L128, V_LANE))
    a("v_lshlrev_b32 v%d, 2, v%d" % (V_L4, V_LANE))
    a("s_lshr_b32 s17, s%d, 1" % S_W)
    a("s_and_b32 s18, s%d, 1" % S_W)
    a("s_lshl_b32 s%d, s%d, 1" % (S_NT, S_HQ))
    a("s_add_u32 s%d, s%d, s17" % (S_NT, S_NT))
    a("s_lshl_b32 s%d, s%d, 1" % (S_RT, S_RB))
    a("s_add_u32 s%d, s%d, s18" % (S_RT, S_RT))
    a("s_mov_b32 s%d, 0" % S_LAYER)
    if cfg.get("spin_limit"):
        a("s_mov_b32 s46, %d" % cfg["spin_limit"])
    st_begin(a, cfg)
    SU.startup(a, cfg, sys.modules[__name__])
    a_addr(a, S_Q0, S_Q1, OFF_WQ, 32, 8)
    a("s_lshl_b32 s%d, s%d, 13" % (S_KVW, S_W))
    a("s_add_u32 s%d, s%d, 0x%x" % (S_KVW, S_KVW, OFF_WKV))
    a("s_and_b32 s17, s2, 7")
    a("s_lshl_b32 s17, s17, 15")
    a("s_add_u32 s%d, s%d, s17" % (S_KVW, S_KVW))
    a("s_cmp_ge_u32 s%d, 4" % S_HQ)
    a("s_cselect_b32 s%d, s%d, s%d" % (S_KVW, S_Q0, S_KVW))
    st_end(a, cfg, 0)
    a("L_layer:")
    for k, ph in enumerate((phase_qkv, phase_att, phase_wo, phase_ffn1, phase_ffn2)):
        st_begin(a, cfg)
        ph(a, cfg)
        st_end(a, cfg, k + 1)
    a("s_mov_b32 s%d, 1" % S_LAYER)
    a("s_branch L_layer")
    a("L_final:")
    final_store(a)
    st_end(a, cfg, 5)
    a("L_exit:")
    a("s_endpgm")
    main_lines, _ = fix_hazards_fast(kern.uniq(a.lines, "main"), rep)

    s = "; @launch grid=(256,1,1) block=(256,1,1) lds=%d\n" % (160 * 1024)
    s += '.amdgcn_target "amdgcn-amd-amdhsa--gfx950"\n.text\n.globl %s\n.p2align 8\n.type %s,@function\n' % (KNAME, KNAME)
    s += "\n".join(["L_code_begin:", KNAME + ":"] + main_lines + ["L_code_end:"]) + "\n"
    s += '.section .rodata,"a"\n.p2align 6\n' + kernel_desc(KNAME, 512, 256, 102)
    return s, rep


if __name__ == "__main__":
    cfg = dict(code_prefetch=True)
    for kv in sys.argv[2:]:
        k, v = kv.split("=")
        cfg[k] = eval(v)
    s, rep = build(cfg)
    open(sys.argv[1], "w").write(s)
    print("auto nops:", sum(r[0] for r in rep), "sites", len(rep), "bytes of source", len(s))
    if cfg.get("verbose"):
        for r in rep:
            print(r)
```

```python
import sys
from asmlib import *
from layout import *
import kern
import startup as SU
from kern import (split3, fl, MF, S_LAYER, S_W, S_RB, S_HQ, S_RG, S_M, V_L16, V_LANE, V_R31, V_H, V_OFF, xhalf_sum,
                  load_stats, finish_stats, pack8, stamp, kernel_desc, prep, NSTAMP)

SC = "sc1"


COMPACT = [1]
CMAP = {OFF_X: 0x800000, OFF_O: 0xC00000, OFF_H: 0xE00000, OFF_STAT: OFF_STAT}
C_WKV = 0x780000
C_END = 0x1500000


def layer_off(a, sdst, base, stride, mul=1, add=0):
    if COMPACT[0] and base in CMAP:
        a("s_mov_b32 s%d, 0x%x" % (sdst, CMAP[base] + (add & 1) * stride))
    else:
        kern.layer_off(a, sdst, base, stride, mul, add)


def blk(a, dst, sbase, i, sc=SC):
    kern.blk(a, dst, sbase, i, SC)


FL_O = 0x0000
FL_X1 = 0x2000
FL_H = 0x8000
FL_XIN = 0x6000
OFF_FLW = 0x64C000
FL_KV = 0xC000

S_RT, S_NT = 31, 32
S_FO, S_FX1, S_FH = 40, 41, 42
S_W13, S_WL = 47, 48
S_RET = 44
V_RES = 12
V_TAG = 11
V_L4 = 20
V_ZERO = 21
VB = 24

G_ACC = 24
G_RED = 88
G_ST = 136
G_CS = 152
G_T = 168
V_WR = [184, 185, 186]
V_RD = 187
V_NMU, V_RSTD = 188, 189
G_KVACC = 88
G_Q = 190
W2V = 200

LDS_R1 = 96 * 1024
LDS_RQ = 0
LDS_KVX = 49152
LDS_CS = 144 * 1024


DBL = [0]


def st4(a, data, voff, soff, imm=0):
    a("buffer_store_dwordx4 v[%d:%d], v%d, s[4:7], s%d offen offset:%d %s" % (data, data + 3, voff, soff, imm, SC))
    if DBL[0]:
        a("buffer_store_dwordx4 v[%d:%d], v%d, s[4:7], s%d offen offset:%d" % (data, data + 3, voff, soff, imm))


TOUCH = [1]
V_L128 = 23


def touch_lines(a, s_data, nlines, imm=0):
    if not TOUCH[0]:
        return
    a("s_mov_b32 exec_lo, 0x%x" % (((1 << nlines) - 1) & 0xffffffff))
    a("s_mov_b32 exec_hi, 0x%x" % (((1 << nlines) - 1) >> 32))
    a("buffer_load_dword v22, v%d, s[4:7], s%d offen offset:%d %s" % (V_L128, s_data, imm, SC))


def publish(a, s_addr, s_data=None, nlines=16, imm=0):
    a("s_waitcnt vmcnt(0)")
    a("s_mov_b64 exec, 1")
    a("buffer_store_dword v%d, v%d, s[4:7], s%d offen %s" % (V_TAG, V_ZERO, s_addr, SC))
    if s_data is not None:
        touch_lines(a, s_data, nlines, imm)
    a("s_mov_b64 exec, -1")


def poll(a, cfg, s_addr, voff, vtmp, wide=False, imm=0, sleep=0):
    L = a.newlabel("L_poll")
    if cfg.get("spin_limit"):
        a("s_mov_b32 s46, %d" % cfg["spin_limit"])
    a(L + ":")
    if wide:
        a("buffer_load_dwordx2 v[%d:%d], v%d, s[4:7], s%d offen %s" % (vtmp, vtmp + 1, voff, s_addr, SC))
        a("s_waitcnt vmcnt(0)")
        a("v_xor_b32 v%d, v%d, v%d" % (vtmp + 1, V_TAG, vtmp + 1))
        a("v_xor_b32 v%d, v%d, v%d" % (vtmp, vtmp, vtmp + 1))
        a("v_or_b32 v%d, v%d, v%d" % (vtmp, vtmp, vtmp + 1) if False else "v_cmp_ne_u32 s[18:19], 0, v%d" % (vtmp + 1))
        a("v_cndmask_b32 v%d, v%d, v%d, s[18:19]" % (vtmp, vtmp, V_ZERO))
    else:
        a("buffer_load_dword v%d, v%d, s[4:7], s%d offen offset:%d %s" % (vtmp, voff, s_addr, imm, SC))
        a("s_waitcnt vmcnt(0)")
    if cfg.get("spin_limit"):
        a("s_sub_u32 s46, s46, 1")
        a("s_cbranch_scc1 %s_out" % L)
    a("v_cmp_ne_u32 vcc, v%d, v%d" % (V_TAG, vtmp))
    if sleep:
        a("s_cbranch_vccz %s_out" % L)
        a("s_sleep %d" % sleep)
        a("s_branch %s" % L)
    else:
        a("s_cbranch_vccnz %s" % L)
    a(L + "_out:")


def lane_pat(a, vdst, mask, hi_shift, lo_mul):
    a("v_and_b32 v%d, %d, v%d" % (vdst, mask & ~1, V_LANE))
    a("v_lshlrev_b32 v%d, 3, v%d" % (vdst, vdst))
    a("v_and_b32 v%d, 1, v%d" % (vdst + 1, V_LANE))
    a("v_lshl_add_u32 v%d, v%d, %d, v%d" % (vdst, vdst + 1, lo_mul, vdst))


def flag_addr(a, sdst, base, s_grp, grp_shift, s_mem=None, per_layer=0x1000):
    a("s_mul_i32 s%d, s%d, 0x%x" % (sdst, S_LAYER, per_layer))
    a("s_add_u32 s%d, s%d, 0x%x" % (sdst, sdst, OFF_FLAGS + base))
    a("s_lshl_b32 s17, s%d, %d" % (s_grp, grp_shift))
    a("s_add_u32 s%d, s%d, s17" % (sdst, sdst))
    if s_mem is not None:
        a("s_lshl_b32 s17, s%d, 4" % s_mem)
        a("s_add_u32 s%d, s%d, s17" % (sdst, sdst))
        a("s_lshl_b32 s17, s%d, 2" % S_W)
        a("s_add_u32 s%d, s%d, s17" % (sdst, sdst))


def xin_flag_addr(a, sdst, own, layer_add):
    flag_addr(a, sdst, FL_XIN + 0x1000 * layer_add, S_RB, 7, S_HQ if own else None)


def a_addr(a, s_a0, s_a1, offA, ksA, ksw):
    a("s_mul_i32 s20, s%d, %d" % (S_W, ksw * 1024))
    a("s_mul_i32 s%d, s%d, %d" % (s_a0, S_NT, ksA * 1024))
    a("s_add_u32 s%d, s%d, s20" % (s_a0, s_a0))
    a("s_add_u32 s%d, s%d, 0x%x" % (s_a0, s_a0, offA))
    a("s_xor_b32 s21, s%d, 1" % S_NT)
    a("s_mul_i32 s%d, s21, %d" % (s_a1, ksA * 1024))
    a("s_add_u32 s%d, s%d, s20" % (s_a1, s_a1))
    a("s_add_u32 s%d, s%d, 0x%x" % (s_a1, s_a1, offA))


def b_addr(a, s_b0, s_b1, s_base, ksB, ksw):
    a("s_mul_i32 s20, s%d, %d" % (S_W, ksw * 1024))
    a("s_add_u32 s20, s20, s%d" % s_base)
    a("s_mul_i32 s%d, s%d, %d" % (s_b0, S_RT, ksB * 1024))
    a("s_add_u32 s%d, s%d, s20" % (s_b0, s_b0))
    a("s_xor_b32 s21, s%d, 1" % S_RT)
    a("s_mul_i32 s%d, s21, %d" % (s_b1, ksB * 1024))
    a("s_add_u32 s%d, s%d, s20" % (s_b1, s_b1))


def reduce_addr(a, base):
    for j in (1, 2, 3):
        a("s_xor_b32 s17, s%d, %d" % (S_W, j))
        a("s_mul_i32 s17, s17, 12288")
        a("s_add_u32 s17, s17, %d" % (base + (j - 1) * 4096))
        a("v_add_u32 v%d, s17, v%d" % (V_WR[j - 1], V_L16))
    a("s_mul_i32 s17, s%d, 12288" % S_W)
    a("s_add_u32 s17, s17, %d" % base)
    a("v_add_u32 v%d, s17, v%d" % (V_RD, V_L16))


def mf(a, d, x, y, c):
    a("%s v[%d:%d], %s, %s, %s" % (MF, d, d + 15, x, y, c))


def wr_tile(a, j):
    for q in range(4):
        r = G_ACC + 16 * j + 4 * q
        a("ds_write_b128 v%d, v[%d:%d] offset:%d" % (V_WR[j - 1], r, r + 3, q * 1024))


def rd_tile(a, j, dst):
    for q in range(4):
        a("ds_read_b128 v[%d:%d], v%d offset:%d" % (dst + 4 * q, dst + 4 * q + 3, V_RD, (j - 1) * 4096 + q * 1024))


def gemm64_core(a, cfg, n, A0, A1, Breg, issueB, window, pre_tickets=None, order=None, side=None, side_from=0, side_n=1,
                gate=None, side2=None, side2_from=0, ramp=None, resid=False):
    if order is None:
        order = [(1, i) for i in range(n)] + [(0, i) for i in range(n)]
    M = len(order)
    side = list(side or [])
    t = dict(pre_tickets or {})
    nxt = len(t)
    gpos = gate[0] if gate else M + 1
    gated = [False]

    def try_issue(limit):
        nonlocal nxt
        while nxt < M and nxt < limit:
            if nxt >= gpos and not gated[0]:
                return
            issueB(nxt)
            t[nxt] = a.vt()
            nxt += 1
            if gate and nxt == gate[3]:
                gate[1]()

    try_issue(ramp or window)
    if cfg.get("stamps") != 2:
        stamp(a, cfg, 1)
    last1 = max(e for e, (st, i) in enumerate(order) if st == 1)
    wr1 = last1 + 2
    bar1 = min(M - 2, last1 + 1 + max(2, (M - last1) // 2))
    seen = set()
    for e, (st, i) in enumerate(order):
        if gate and not gated[0] and e == gate[4]:
            assert not side
            gate[2]()
            gated[0] = True
            try_issue(e + window)
        a.wait_vm(t[e])
        if e == 0 and cfg.get("stamps") != 2:
            stamp(a, cfg, 2)
        first = "0" if st not in seen else None
        seen.add(st)
        if st == 1:
            mf(a, G_ACC + 16, A0(i), Breg(e), first or vr(G_ACC + 16, 16))
            mf(a, G_ACC + 48, A1(i), Breg(e), first or vr(G_ACC + 48, 16))
        else:
            mf(a, G_ACC + 32, A1(i), Breg(e), first or vr(G_ACC + 32, 16))
            mf(a, G_ACC, A0(i), Breg(e), first or vr(G_ACC, 16))
        try_issue(min(e + 1 + window, nxt + 2))
        if e >= side_from:
            k = 0
            while side and k < side_n:
                x = side.pop(0)
                a(x)
                k += x.startswith("buffer_")
        if side2 and e >= side2_from:
            for _ in range(2):
                if side2:
                    a(side2.pop(0))
        if e == wr1:
            wr_tile(a, 1)
            wr_tile(a, 3)
        if e == bar1:
            a("s_waitcnt lgkmcnt(0)")
            a("s_barrier")
            rd_tile(a, 1, G_RED)
            rd_tile(a, 3, G_RED + 16)
    assert wr1 <= bar1 < M and not side2
    stamp(a, cfg, 4)
    a("s_waitcnt lgkmcnt(0)")
    for e in range(6):
        a("v_add_f32 v%d, v%d, v%d" % (G_RED + e, G_RED + e, G_RED + 16 + e))
    wr_tile(a, 2)
    for e in range(6, 16):
        a("v_add_f32 v%d, v%d, v%d" % (G_RED + e, G_RED + e, G_RED + 16 + e))
    for e in range(16):
        a("v_add_f32 v%d, v%d, v%d" % (G_ACC + e, G_ACC + e, G_RED + e))
    if resid:
        for i in range(8):
            a("v_lshlrev_b32 v%d, 16, v%d" % (G_T, V_RES + i))
            a("v_and_b32 v%d, 0xffff0000, v%d" % (G_T + 1, V_RES + i))
            a("v_add_f32 v%d, v%d, v%d" % (G_ACC + 2 * i, G_ACC + 2 * i, G_T))
            a("v_add_f32 v%d, v%d, v%d" % (G_ACC + 2 * i + 1, G_ACC + 2 * i + 1, G_T + 1))
    for x in side:
        a(x)
    a("s_waitcnt lgkmcnt(0)")
    a("s_barrier")
    stamp(a, cfg, 6)
    rd_tile(a, 2, G_RED + 32)
    for q in range(4):
        a("s_waitcnt lgkmcnt(%d)" % (3 - q))
        for e in range(4):
            a("v_add_f32 v%d, v%d, v%d" % (G_ACC + 4 * q + e, G_ACC + 4 * q + e, G_RED + 32 + 4 * q + e))
    stamp(a, cfg, 7)


def res_epilogue(a, cfg, xout_add, final):
    for i in range(8):
        a("v_cvt_pk_bf16_f32 v%d, v%d, v%d" % (V_RES + i, G_ACC + 2 * i, G_ACC + 2 * i + 1))
        if i == 3 and final is None:
            st4(a, V_RES, V_L16, 34)
    if final is not None:
        a("s_cmp_eq_u32 s%d, 1" % S_LAYER)
        a("s_cbranch_scc1 %s" % final)
        st4(a, V_RES, V_L16, 34)
    store_x_tail(a)


def store_x_tail(a):
    st4(a, V_RES + 4, V_L16, 34, 1024)
    a("v_mov_b32 v%d, 0x3f803f80" % G_T)
    a("v_mov_b32 v%d, 0" % (G_T + 12))
    a("v_mov_b32 v%d, 0" % (G_T + 13))
    for r in range(8):
        a("v_dot2_f32_bf16 v%d, v%d, v%d, v%d" % (G_T + 12, V_RES + r, G_T, G_T + 12))
        a("v_dot2_f32_bf16 v%d, v%d, v%d, v%d" % (G_T + 13, V_RES + r, V_RES + r, G_T + 13))
    a("v_lshlrev_b32 v%d, 3, v%d" % (G_T + 2, V_R31))
    a("s_nop 1")
    a("v_mov_b32 v%d, v%d" % (G_T + 14, G_T + 12))
    a("v_mov_b32 v%d, v%d" % (G_T + 15, G_T + 13))
    a("s_nop 0")
    a("v_permlane32_swap_b32 v%d, v%d" % (G_T + 12, G_T + 14))
    a("v_permlane32_swap_b32 v%d, v%d" % (G_T + 13, G_T + 15))
    a("v_add_f32 v%d, v%d, v%d" % (G_T + 12, G_T + 12, G_T + 14))
    a("v_add_f32 v%d, v%d, v%d" % (G_T + 13, G_T + 13, G_T + 15))
    a("s_mov_b32 exec_lo, 0xffffffff\ns_mov_b32 exec_hi, 0x0")
    a("buffer_store_dwordx2 v[%d:%d], v%d, s[4:7], s35 offen %s" % (G_T + 12, G_T + 13, G_T + 2, SC))
    a("s_mov_b64 exec, -1")


def out_addr(a, xout_add):
    layer_off(a, 34, OFF_X, X_STRIDE, 2, xout_add)
    a("s_lshl_b32 s18, s%d, 15" % S_RT)
    a("s_add_u32 s34, s34, s18")
    a("s_lshl_b32 s18, s%d, 11" % S_NT)
    a("s_add_u32 s34, s34, s18")
    layer_off(a, 35, OFF_STAT, STAT_STRIDE, 2, xout_add)
    a("s_lshl_b32 s18, s%d, 12" % S_RT)
    a("s_add_u32 s35, s35, s18")
    a("s_lshl_b32 s18, s%d, 8" % S_NT)
    a("s_add_u32 s35, s35, s18")


S_Q0, S_Q1, S_KVW = 50, 51, 52


def wq_lines():
    b = Asm()
    for i in range(8):
        blk(b, ar(128 + 4 * i, 4), S_KVW, i)
    for i in range(8):
        blk(b, ar(160 + 4 * i, 4), S_Q0, i)
        blk(b, ar(192 + 4 * i, 4), S_Q1, i)
    return [l.strip() for l in b.lines]


def phase_qkv(a, cfg):
    SA0, SA1, SB0, SB1, SX, SKV = 24, 25, 26, 27, 28, 29
    CK = G_T + 8
    a("v_lshlrev_b32 v%d, 4, v%d" % (G_T + 1, V_H))
    a("v_lshlrev_b32 v%d, 2, v%d" % (G_T + 6, V_R31))
    VP, VPA = 198, 22
    SU.probe_addr(a, sys.modules[__name__], VPA, VP, 59)
    a("buffer_load_dword v%d, v%d, s[4:7], s59 offen sc1" % (VP, VPA))

    def cs_kv():
        a("s_and_b32 s17, s2, 7")
        a("s_lshl_b32 s17, s17, 7")
        a("s_add_u32 s17, s17, 0x%x" % OFF_CSKV)
        a("buffer_load_dwordx4 v[%d:%d], v%d, s[4:7], s17 offen offset:64 sc1" % (CK, CK + 3, G_T + 1))
        a("buffer_load_dwordx4 v[%d:%d], v%d, s[4:7], s17 offen offset:96 sc1" % (CK + 4, CK + 7, G_T + 1))
        a("buffer_load_dword v%d, v%d, s[4:7], s17 offen sc1" % (G_T + 7, G_T + 6))

    cs_kv()

    def wcheck(tag):
        a("v_cmp_ne_u32 vcc, v%d, v%d" % (V_TAG, VP))
        a("s_cbranch_vccz L_qkv_wok%s" % tag)
        keep = a.vm_issued
        poll(a, cfg, 59, VPA, VP, sleep=1)
        cs_kv()
        a("s_waitcnt vmcnt(0)")
        a.vm_issued = keep
        a("L_qkv_wok%s:" % tag)

    layer_off(a, SX, OFF_X, X_STRIDE, 2, 0)
    b_addr(a, SB0, SB1, SX, 32, 8)
    layer_off(a, 30, OFF_STAT, STAT_STRIDE, 2, 0)
    a("s_lshl_b32 s17, s%d, 12" % S_RT)
    a("s_add_u32 s30, s30, s17")
    reduce_addr(a, LDS_RQ)
    layer_off(a, 33, OFF_KV, KV_STRIDE)
    a("s_lshr_b32 s36, s%d, 1" % S_HQ)
    a("s_lshl_b32 s17, s%d, 1" % S_RB)
    a("s_add_u32 s17, s17, s36")
    a("s_lshl_b32 s17, s17, 15")
    a("s_add_u32 s23, s17, s%d" % SX)
    a("s_lshl_b32 s17, s%d, 13" % S_W)
    a("s_add_u32 s23, s23, s17")
    a("s_sub_u32 s17, s%d, s36" % S_W)
    a("s_sub_u32 s17, s17, 1")
    a("s_and_b32 s17, s17, 3")
    a("s_lshl_b32 s17, s17, 12")
    a("s_add_u32 s17, s17, %d" % LDS_KVX)
    a("v_add_u32 v%d, s17, v%d" % (G_T + 2, V_L16))
    a("v_add_u32 v%d, %d, v%d" % (G_T + 3, LDS_KVX, V_L16))
    a("s_mul_i32 s37, s%d, 0x1000" % S_LAYER)
    a("s_add_u32 s37, s37, 0x%x" % (OFF_FLAGS + FL_KV))
    a("s_lshl_b32 s17, s%d, 4" % S_RB)
    a("s_add_u32 s37, s37, s17")
    a("s_lshl_b32 s17, s%d, 2" % S_HQ)
    a("s_add_u32 s37, s37, s17")
    stamp(a, cfg, 8)
    xin_flag_addr(a, 38, False, 0)
    poll(a, cfg, 38, G_T + 6, G_T + 4)
    stamp(a, cfg, 9)
    a("s_cmp_ge_u32 s%d, 4" % S_HQ)
    a("s_cbranch_scc1 L_qkv_stats")
    tK = {}
    for i in range(8):
        blk(a, ar(224 + 4 * i, 4), 23, i, SC)
        tK[i] = a.vt()
    load_stats(a, G_ST, 30, G_T, SC)
    stamp(a, cfg, 1)
    a("s_bitcmp1_b32 s%d, 0" % S_HQ)
    a("s_cbranch_scc1 L_qkv_v1")
    for v in range(2):
        if v:
            a("L_qkv_v%d:" % v)
        for i in range(8):
            a.wait_vm(tK[i])
            x, w = ar(224 + 4 * i, 4), ar(128 + 4 * i, 4)
            c = "0" if i == 0 else vr(G_KVACC, 16)
            if v & 1:
                mf(a, G_KVACC, x, w, c)
            else:
                mf(a, G_KVACC, w, x, c)
        if v < 1:
            a("s_branch L_qkv_kvred")
    a("L_qkv_kvred:")
    stamp(a, cfg, 2)
    a("s_waitcnt vmcnt(0)")
    finish_stats(a, G_ST, V_NMU, V_RSTD)
    for q in range(4):
        a("ds_write_b128 v%d, v[%d:%d] offset:%d" % (G_T + 2, G_KVACC + 4 * q, G_KVACC + 4 * q + 3, q * 1024))
    XS = LDS_KVX + 16384
    a("s_lshl_b32 s17, s%d, 8" % S_W)
    a("s_add_u32 s17, s17, %d" % XS)
    a("v_add_u32 v%d, s17, v%d" % (G_T + 4, G_T + 6))
    a("v_mul_f32 v%d, v%d, v%d" % (G_T + 5, V_NMU, V_RSTD))
    a("ds_write_b32 v%d, v%d" % (G_T + 4, V_RSTD))
    a("ds_write_b32 v%d, v%d offset:128" % (G_T + 4, G_T + 5))
    a("v_add_u32 v%d, s17, v%d" % (G_T + 4, G_T + 1))
    RS = G_ACC + 16
    for g in range(4):
        a("ds_read_b128 v[%d:%d], v%d offset:%d" % (RS + 4 * g, RS + 4 * g + 3, G_T + 4, 32 * g))
        a("ds_read_b128 v[%d:%d], v%d offset:%d" % (RS + 16 + 4 * g, RS + 16 + 4 * g + 3, G_T + 4, 128 + 32 * g))
    def b1_loads():
        cs_q()
        for e in range(8):
            blk(a, ar(64 + 4 * e, 4), SB1, e, SC)
            tB[e] = a.vt()

    def cs_q():
        a("s_lshl_b32 s17, s%d, 7" % S_NT)
        a("s_add_u32 s17, s17, 0x%x" % OFF_CSQ)
        for g in range(4):
            a("buffer_load_dwordx4 v[%d:%d], v%d, s[4:7], s17 offen offset:%d sc1" % (G_CS + 4 * g, G_CS + 4 * g + 3, G_T + 1, 32 * g))
        a("s_add_u32 s17, s17, 4096")
        for g in range(4):
            a("buffer_load_dwordx4 v[%d:%d], v%d, s[4:7], s17 offen offset:%d sc1" % (G_ST + 4 * g, G_ST + 4 * g + 3, G_T + 1, 32 * g))

    tB = {}
    wcheck("a")
    b1_loads()
    a("s_waitcnt lgkmcnt(0)")
    a("s_barrier")
    stamp(a, cfg, 3)
    a("s_cmp_lg_u32 s%d, s36" % S_W)
    a("s_cbranch_scc1 L_qkv_q")
    RD = [G_RED + 16, G_RED + 32, G_ACC]
    for j in range(3):
        for q in range(4):
            a("ds_read_b128 v[%d:%d], v%d offset:%d" % (RD[j] + 4 * q, RD[j] + 4 * q + 3, G_T + 3, j * 4096 + q * 1024))
    for j in range(3):
        a("s_waitcnt lgkmcnt(%d)" % (8 - 4 * j))
        for e in range(16):
            a("v_add_f32 v%d, v%d, v%d" % (G_KVACC + e, G_KVACC + e, RD[j] + e))
    a("s_lshl_b32 s17, s%d, 10" % S_RT)
    a("s_add_u32 s34, s33, s17")
    a("s_bitcmp1_b32 s%d, 0" % S_HQ)
    a("s_cbranch_scc1 L_qkv_vfin")
    PK = G_RED + 16
    for e in range(8):
        a("v_fmac_f32 v%d, v%d, v%d" % (G_KVACC + 8 + e, V_NMU, CK + e))
        a("v_mul_f32 v%d, v%d, v%d" % (G_KVACC + 8 + e, V_RSTD, G_KVACC + 8 + e))
    pack8(a, PK, G_KVACC + 8)
    a("buffer_store_dwordx4 v[%d:%d], v%d, s[4:7], s34 offen %s" % (PK, PK + 3, V_L16, SC))
    a("v_mov_b32 v%d, 0" % (PK + 4))
    for r in range(4):
        a("v_dot2_f32_bf16 v%d, v%d, v%d, v%d" % (PK + 4, PK + r, PK + r, PK + 4))
    xhalf_sum(a, PK + 4, PK + 5)
    for d in ("row_shr:1", "row_shr:2", "row_shr:4", "row_shr:8"):
        a("v_max_f32_dpp v%d, v%d, v%d %s row_mask:0xf bank_mask:0xf" % (PK + 4, PK + 4, PK + 4, d))
    a("v_max_f32_dpp v%d, v%d, v%d row_bcast:15 row_mask:0xa bank_mask:0xf" % (PK + 4, PK + 4, PK + 4))
    a("s_lshl_b32 s18, s%d, 2" % S_RT)
    a("s_add_u32 s18, s18, s33")
    a("s_add_u32 s18, s18, 0x20000")
    a("s_mov_b32 exec_lo, 0x80000000\ns_mov_b32 exec_hi, 0x0")
    a("buffer_store_dword v%d, v%d, s[4:7], s18 offen %s" % (PK + 4, V_ZERO, SC))
    a("s_mov_b64 exec, -1")
    a("s_branch L_qkv_kvdone")
    a("L_qkv_vfin:")
    a("v_lshlrev_b32 v%d, 4, v%d" % (G_T + 4, V_R31))
    a("v_lshl_add_u32 v%d, v%d, 8, v%d" % (G_T + 4, V_H, G_T + 4))
    a("s_add_u32 s34, s34, 0x10000")
    for e in range(16):
        a("v_mul_f32 v%d, v%d, v%d" % (G_KVACC + e, RS + e, G_KVACC + e))
        a("v_fmac_f32 v%d, v%d, v%d" % (G_KVACC + e, RS + 16 + e, G_T + 7))
    pack8(a, G_ACC, G_KVACC)
    pack8(a, G_ACC + 4, G_KVACC + 8)
    a("s_mov_b32 exec_lo, 0xffff\ns_mov_b32 exec_hi, 0xffff")
    a("buffer_store_dwordx4 v[%d:%d], v%d, s[4:7], s34 offen %s" % (G_ACC, G_ACC + 3, G_T + 4, SC))
    a("buffer_store_dwordx4 v[%d:%d], v%d, s[4:7], s34 offen offset:512 %s" % (G_ACC + 4, G_ACC + 7, G_T + 4, SC))
    a("s_mov_b64 exec, -1")
    a("L_qkv_kvdone:")
    stamp(a, cfg, 5)
    a("v_lshlrev_b32 v%d, 9, v%d" % (G_T + 4, V_LANE))
    a("s_waitcnt vmcnt(0)")
    a("s_mov_b64 exec, 0xff")
    a("buffer_store_dword v%d, v%d, s[4:7], s37 offen %s" % (V_TAG, G_T + 4, SC))
    a("s_mov_b64 exec, -1")
    a("s_branch L_qkv_q")
    a("L_qkv_stats:")
    load_stats(a, G_ST, 30, G_T, SC)
    a("s_waitcnt vmcnt(0)")
    finish_stats(a, G_ST, V_NMU, V_RSTD)
    wcheck("b")
    b1_loads()
    a("L_qkv_q:")
    stamp(a, cfg, 10)
    gemm64_core(a, dict(cfg, stamps=cfg.get('stamps') and 2), 8, lambda i: ar(160 + 4 * i, 4), lambda i: ar(192 + 4 * i, 4), lambda e: ar(64 + 4 * e, 4),
                lambda e: blk(a, ar(64 + 4 * e, 4), SB1 if e < 8 else SB0, e % 8, SC), 16, pre_tickets=tB, ramp=12,
                side=[g[0] for g in SU.deferred_store_groups(sys.modules[__name__])], side_from=99, side_n=1)
    a("v_mul_f32 v%d, %s, v%d" % (G_T, fl(QSCALE), V_RSTD))
    for e in range(16):
        a("v_fmac_f32 v%d, v%d, v%d" % (G_ACC + e, V_NMU, G_CS + e))
        a("v_fmac_f32 v%d, v%d, v%d" % (G_ACC + e, V_NMU, G_ST + e))
        a("v_mul_f32 v%d, v%d, v%d" % (G_ACC + e, G_T, G_ACC + e))
    pack8(a, G_Q, G_ACC)
    pack8(a, G_Q + 4, G_ACC + 8)
    if cfg.get("store_q"):
        a("s_lshl_b32 s17, s%d, 15" % S_RT)
        a("s_lshl_b32 s18, s%d, 11" % S_NT)
        a("s_add_u32 s17, s17, s18")
        a("s_add_u32 s17, s17, 0x%x" % OFF_Q)
        a("buffer_store_dwordx4 v[%d:%d], v%d, s[4:7], s17 offen" % (G_Q, G_Q + 3, V_L16))
        a("buffer_store_dwordx4 v[%d:%d], v%d, s[4:7], s17 offen offset:1024" % (G_Q + 4, G_Q + 7, V_L16))
    stamp(a, cfg, 11)


A_C = [24, 40]
A_O = [56, 72]
A_S = [88, 104]
A_P = [120, 124, 128, 132]
A_KF = [136, 140]
A_VF = [[144, 148], [152, 156]]
A_VK, A_VV, A_VINC = 160, 161, 162
A_T = 164
LDS_V = 65536
LDS_ONES = 131072
LDS_ATT_FLAG = LDS_ONES + 5120
UNR = 4


EARLY = 4
W2ORD = [7 * mm + tl for tl in range(7) for mm in range(4)]
W2POS = {k: p for p, k in enumerate(W2ORD)}


def w2load(a, idx, s0, s1):
    i = W2ORD[idx >> 1]
    blk(a, w2reg(idx & 1, i), s1 if idx & 1 else s0, i)


def w2reg(s, i):
    idx = 2 * W2POS[i] + s
    if idx < 32:
        return ar(128 + 4 * idx, 4)
    if idx < 46:
        return vr(W2V + 4 * (idx - 32), 4)
    if idx < 54:
        return vr(136 + 4 * (idx - 46), 4)
    return vr(190 + 4 * (idx - 54), 4)


SLOT13 = [0, 2, 1, 3, 0, 2, 1]


def dma13(a, i, part=None):
    slot = SLOT13[i]
    for hh in range(2):
        a("s_add_u32 m0, s%d, %d" % (S_WL, slot * 32768 + hh * 4096))
        a("s_add_u32 s29, s%d, %d" % (S_W13, i * 32768 + hh * 4096))
        for q in range(4):
            a("buffer_load_dwordx4 v%d, s[4:7], s29 offen offset:%d sc1 lds" % (V_L16, q * 1024))


def dma_lines(i):
    b = Asm()
    dma13(b, i)
    return [l.strip() for l in b.lines]


def phase_att(a, cfg):
    Q = [G_Q, G_Q + 4]
    SA0, SA1, SW0, SW1 = 24, 25, 26, 27
    a("v_mov_b32 v%d, 0x3f803f80" % (A_T + 4))
    if cfg.get("zpad", 1):
        a("v_and_b32 v%d, 2, v0" % (A_T + 5))
        a("v_cmp_eq_u32 vcc, 0, v%d" % (A_T + 5))
        a("v_cndmask_b32 v%d, v%d, v%d, vcc" % (A_T + 4, V_ZERO, A_T + 4))
    for r in range(1, 4):
        a("v_mov_b32 v%d, v%d" % (A_T + 4 + r, A_T + 4))
    a("v_lshlrev_b32 v%d, 4, v0" % (A_T + 2))
    a("v_add_u32 v%d, %d, v%d" % (A_T + 2, LDS_ONES, A_T + 2))
    a("ds_write_b128 v%d, v[%d:%d]" % (A_T + 2, A_T + 4, A_T + 7))
    a("ds_write_b128 v%d, v[%d:%d] offset:1024" % (A_T + 2, A_T + 4, A_T + 7))
    a("v_and_b32 v%d, 15, v%d" % (A_T + 2, V_LANE))
    a("v_lshlrev_b32 v%d, 4, v%d" % (A_T + 2, A_T + 2))
    a("v_lshl_add_u32 v%d, v%d, 8, v%d" % (A_T + 2, V_H, A_T + 2))
    a("v_add_u32 v%d, %d, v%d" % (A_VV, LDS_V, A_T + 2))
    a("v_add_u32 v%d, -20, v%d" % (A_T + 3, V_R31))
    a("v_cmp_gt_u32 vcc, 8, v%d" % (A_T + 3))
    a("v_mov_b32 v%d, %d" % (A_T + 2, LDS_ONES))
    a("v_mov_b32 v%d, %d" % (A_T + 3, LDS_ONES + 64))
    a("v_cndmask_b32 v%d, v%d, v%d, vcc" % (A_T + 2, A_T + 2, A_T + 3))
    if cfg.get("zpad", 1):
        a("v_and_b32 v%d, 27, v%d" % (A_T + 3, V_R31))
        a("v_cmp_ne_u32 vcc, 16, v%d" % (A_T + 3))
        a("v_add_u32 v%d, 32, v%d" % (A_T + 3, A_T + 2))
        a("v_cndmask_b32 v%d, v%d, v%d, vcc" % (A_T + 2, A_T + 2, A_T + 3))
    a("v_cmp_le_u32 vcc, 16, v%d" % V_R31)
    a("v_mov_b32 v%d, %d" % (A_VINC, UNR * 1024))
    a("v_cndmask_b32 v%d, v%d, v%d, vcc" % (A_VV, A_VV, A_T + 2))
    a("v_cndmask_b32 v%d, v%d, v%d, vcc" % (A_VINC, A_VINC, V_ZERO))
    for t in range(2):
        n = A_T + 8 + t
        a("v_mov_b32 v%d, 0" % n)
        for r in range(4):
            a("v_dot2_f32_bf16 v%d, v%d, v%d, v%d" % (n, Q[t] + r, Q[t] + r, n))
    for t in range(2):
        xhalf_sum(a, A_T + 8 + t, A_T + 10)
    a_addr(a, SA0, SA1, OFF_WO, 32, 8)
    a("s_mul_i32 s%d, s%d, %d" % (S_W13, S_M, 7 * 32768))
    a("s_lshl_b32 s%d, s%d, 13" % (S_WL, S_W))
    a("s_add_u32 s%d, s%d, s%d" % (S_W13, S_W13, S_WL))
    a("s_add_u32 s%d, s%d, 0x%x" % (S_W13, S_W13, OFF_W13))
    a_addr(a, SW0, SW1, OFF_W2, 112, 28)
    a("s_lshl_b32 s20, s%d, 10" % S_W)
    a("s_add_u32 s21, s33, s20")
    a("s_add_u32 s22, s21, 0x10000")
    a("s_add_u32 s23, s20, %d" % LDS_V)
    a("s_mul_i32 s38, s%d, 0x1000" % S_LAYER)
    a("s_add_u32 s38, s38, 0x%x" % (OFF_FLAGS + FL_KV))
    a("s_and_b32 s17, s2, 7")
    a("s_lshl_b32 s17, s17, 9")
    a("s_add_u32 s38, s38, s17")
    a("s_lshl_b32 s58, s2, 2")
    a("s_add_u32 s58, s58, 0x%x" % OFF_FLW)
    a("s_or_b32 s17, s%d, s%d" % (S_W, S_LAYER))
    a("s_cmp_lg_u32 s17, 0")
    a("s_cselect_b32 s58, 0xf0000000, s58")
    a("s_and_b32 s59, s2, 7")
    a("s_lshl_b32 s59, s59, 10")
    a("s_add_u32 s59, s59, 0x%x" % OFF_FLW)
    a("v_lshlrev_b32 v%d, 10, v%d" % (A_T + 16, V_LANE))

    stamp(a, cfg, 1)
    a("v_lshlrev_b32 v%d, 3, v%d" % (A_T + 14, V_LANE))
    a("s_cmp_lg_u32 s%d, 0" % S_W)
    a("s_cbranch_scc1 L_att_nopoll")
    poll(a, cfg, 38, A_T + 14, A_T + 12, wide=True, sleep=cfg.get("kv_sleep", 2))
    a("L_att_nopoll:")
    a("s_waitcnt vmcnt(0)")
    a("s_barrier")
    a("s_mov_b64 exec, 0xff")
    a("buffer_store_dword v%d, v%d, s[4:7], s58 offen %s" % (V_TAG, A_T + 16, SC))
    a("s_mov_b64 exec, -1")
    a("s_mov_b32 s%d, 0xf0000000" % SU.S_DST)
    stamp(a, cfg, 2)
    a("s_add_u32 s17, s33, 0x20000")
    a("buffer_load_dword v%d, v%d, s[4:7], s17 offen %s" % (A_T + 1, V_L4, SC))
    t_kn = a.vt()
    def kvdma(g):
        a("s_add_u32 m0, s20, %d" % (g * 4096))
        a("s_add_u32 s17, s21, %d" % (g * 4096))
        a("buffer_load_dwordx4 v%d, s[4:7], s17 offen %s lds" % (V_L16, SC))
        a("s_add_u32 m0, s23, %d" % (g * 4096))
        a("s_add_u32 s17, s22, %d" % (g * 4096))
        a("buffer_load_dwordx4 v%d, s[4:7], s17 offen %s lds" % (V_L16, SC))

    G1 = 6
    for g in range(G1):
        kvdma(g)
        if g == 3:
            t_g3 = a.vt()
            a.wait_vm(t_kn)
            k2 = A_T + 1
            for d in ("row_shr:1", "row_shr:2", "row_shr:4", "row_shr:8"):
                a("v_max_f32_dpp v%d, v%d, v%d %s row_mask:0xf bank_mask:0xf" % (k2, k2, k2, d))
            a("v_max_f32_dpp v%d, v%d, v%d row_bcast:15 row_mask:0xa bank_mask:0xf" % (k2, k2, k2))
            a("v_max_f32_dpp v%d, v%d, v%d row_bcast:31 row_mask:0xc bank_mask:0xf" % (k2, k2, k2))
            a("v_readlane_b32 s18, v%d, 63" % k2)
            for t in range(2):
                n = A_T + 8 + t
                a("v_mul_f32 v%d, s18, v%d" % (n, n))
                a("v_sqrt_f32 v%d, v%d" % (n, n))
            for t in range(2):
                n = A_T + 8 + t
                a("v_mul_f32 v%d, %s, v%d" % (n, fl(-1.001), n))
            a("v_min_f32 v%d, v%d, v%d" % (A_T + 10, A_T + 8, A_T + 9))
            a("v_mov_b32 v%d, %s" % (A_T + 11, fl(-cfg.get("bound_t", BOUND_T))))
            a("v_cmp_nge_f32 vcc, v%d, v%d" % (A_T + 10, A_T + 11))
            a("s_lshl_b32 s19, s%d, 2" % S_W)
            a("s_add_u32 s19, s19, %d" % LDS_ATT_FLAG)
            a("v_mov_b32 v%d, s19" % (A_T + 12))
            a("s_cmp_lg_u64 vcc, 0")
            a("s_cselect_b32 s18, 1, 0")
            a("v_mov_b32 v%d, s18" % (A_T + 11))
            a("ds_write_b32 v%d, v%d" % (A_T + 12, A_T + 11))
            for t in range(2):
                for r in range(16):
                    a("v_mov_b32 v%d, v%d" % (A_C[t] + r, A_T + 8 + t))
    stamp(a, cfg, 3)
    a.wait_vm(t_g3)
    a("s_waitcnt lgkmcnt(0)")
    a("s_barrier")
    stamp(a, cfg, 4)
    a("v_mov_b32 v%d, %d" % (A_T + 12, LDS_ATT_FLAG))
    a("ds_read_b128 v[%d:%d], v%d" % (A_T + 4, A_T + 7, A_T + 12))
    a("ds_read_b128 v[%d:%d], v%d" % (A_KF[0], A_KF[0] + 3, V_L16))
    a("ds_read_b128 v[%d:%d], v%d" % (A_VF[0][0], A_VF[0][0] + 3, A_VV))
    a("ds_read_b128 v[%d:%d], v%d offset:512" % (A_VF[0][1], A_VF[0][1] + 3, A_VV))
    a("ds_read_b128 v[%d:%d], v%d offset:1024" % (A_KF[1], A_KF[1] + 3, V_L16))
    a("s_waitcnt lgkmcnt(4)")
    a("v_or_b32 v%d, v%d, v%d" % (A_T + 4, A_T + 4, A_T + 5))
    a("v_or3_b32 v%d, v%d, v%d, v%d" % (A_T + 4, A_T + 4, A_T + 6, A_T + 7))
    a("v_readfirstlane_b32 s18, v%d" % (A_T + 4))
    a("s_cmp_eq_u32 s18, 0")
    a("s_cbranch_scc1 L_att_fast")
    keep = a.vm_issued
    for g in range(G1, 16):
        kvdma(g)
    a.vm_issued = keep
    a("s_waitcnt vmcnt(0)")
    a("s_barrier")
    a("v_mov_b32 v%d, 0xff800000" % (A_T + 8))
    a("v_mov_b32 v%d, 0xff800000" % (A_T + 9))
    a("v_mov_b32 v%d, v%d" % (A_T + 12, V_L16))
    a("s_mov_b32 s19, 64")
    a("L_att_pre:")
    a("ds_read_b128 v[%d:%d], v%d" % (A_P[0], A_P[0] + 3, A_T + 12))
    a("v_add_u32 v%d, 1024, v%d" % (A_T + 12, A_T + 12))
    a("s_waitcnt lgkmcnt(0)")
    for t in range(2):
        mf(a, A_S[t], vr(A_P[0], 4), vr(Q[t], 4), "0")
    for t in range(2):
        for r in range(0, 16, 2):
            a("v_max3_f32 v%d, v%d, v%d, v%d" % (A_T + 8 + t, A_S[t] + r, A_S[t] + r + 1, A_T + 8 + t))
    a("s_sub_u32 s19, s19, 1")
    a("s_cmp_lg_u32 s19, 0")
    a("s_cbranch_scc1 L_att_pre")
    for t in range(2):
        n = A_T + 8 + t
        a("v_mov_b32 v%d, v%d" % (A_T + 10, n))
        a("v_permlane32_swap_b32 v%d, v%d" % (n, A_T + 10))
        a("v_max_f32 v%d, v%d, v%d" % (n, n, A_T + 10))
        a("v_sub_f32 v%d, 0, v%d" % (n, n))
        for r in range(16):
            a("v_mov_b32 v%d, v%d" % (A_C[t] + r, n))
    a("L_att_fast:")
    a("s_waitcnt lgkmcnt(0)")

    def m4(d, x, y, c):
        mf(a, d, vr(x, 4), vr(y, 4), vr(c, 16))

    def ex(r):
        a("v_exp_f32 v%d, v%d" % (r, r))

    def cv(d, s):
        a("v_cvt_pk_bf16_f32 v%d, v%d, v%d" % (d, s, s + 1))

    m4(A_S[0], A_KF[0], Q[0], A_C[0])
    a("s_nop 7")

    def lines_of(fn):
        b = Asm()
        fn(b)
        return [l.strip() for l in b.lines]

    def groups(lines):
        out, cur = [], []
        for x in lines:
            cur.append(x)
            if x.startswith("buffer_"):
                out.append(cur)
                cur = []
        assert not cur
        return out

    def kvl(g):
        return ["s_add_u32 m0, s20, %d" % (g * 4096), "s_add_u32 s17, s21, %d" % (g * 4096),
                "buffer_load_dwordx4 v%d, s[4:7], s17 offen %s lds" % (V_L16, SC),
                "s_add_u32 m0, s23, %d" % (g * 4096), "s_add_u32 s17, s22, %d" % (g * 4096),
                "buffer_load_dwordx4 v%d, s[4:7], s17 offen %s lds" % (V_L16, SC)]

    q_kv = []
    for g in range(G1, 16):
        q_kv += [(x, g) for x in groups(kvl(g))]
    q_w = []
    for i in range(8):
        q_w += groups(lines_of(lambda b: blk(b, ar(4 * i, 4), SA0, i)))
        q_w += groups(lines_of(lambda b: blk(b, ar(32 + 4 * i, 4), SA1, i)))
    for idx in range(46):
        q_w += groups(lines_of(lambda b: w2load(b, idx, SW0, SW1)))
    q_t = [["s_add_u32 s17, s49, %d" % (q * 4096), "buffer_load_dword v%d, v%d, s[4:7], s17 offen sc1" % (A_T + 3, A_T + 2)] for q in range(5)]
    if not cfg.get("touch13", 1):
        q_t = []
    q_d = groups(dma_lines(0) + dma_lines(1))
    a("s_mul_i32 s49, s%d, %d" % (S_M, 7 * 32768))
    a("s_and_b32 s18, s%d, 1" % S_RG)
    a("s_mul_i32 s18, s18, %d" % 81920)
    a("s_add_u32 s49, s49, s18")
    a("s_mul_i32 s18, s%d, %d" % (S_W, 20480))
    a("s_add_u32 s49, s49, s18")
    a("s_add_u32 s49, s49, 0x%x" % (OFF_W13 + 65536))
    a("v_lshlrev_b32 v%d, 6, v%d" % (A_T + 2, V_LANE))
    tg = {}
    U_PROBE, U_CHK = cfg.get("u_probe", 21), cfg.get("u_chk", 24)
    PB = A_T + 12
    def slot(u):
        grp, g = None, None
        if q_kv:
            grp, g = q_kv.pop(0)
        elif u == U_PROBE:
            a("buffer_load_dwordx4 v[%d:%d], v%d, s[4:7], s59 offen %s" % (PB, PB + 3, V_L16, SC))
            tg["probe"] = a.vt()
        elif u == U_CHK:
            a.wait_vm(tg["probe"])
            a("L_att_wchk:")
            a("v_cmp_ne_u32 vcc, v%d, v%d" % (V_TAG, PB))
            for r in range(1, 4):
                a("v_cmp_ne_u32 s[18:19], v%d, v%d" % (V_TAG, PB + r))
                a("s_or_b64 vcc, vcc, s[18:19]")
            a("s_cmp_eq_u64 vcc, 0")
            a("s_cbranch_scc1 L_att_wok")
            if cfg.get("spin_limit"):
                a("s_sub_u32 s46, s46, 1")
                a("s_cbranch_scc1 L_att_wok")
            keep = a.vm_issued
            a("s_sleep 4")
            a("buffer_load_dwordx4 v[%d:%d], v%d, s[4:7], s59 offen %s" % (PB, PB + 3, V_L16, SC))
            a("s_waitcnt vmcnt(0)")
            a("s_branch L_att_wchk")
            a.vm_issued = keep
            a("L_att_wok:")
        elif u < U_CHK:
            pass
        elif u >= 68 and q_d:
            grp = q_d.pop(0)
        elif q_t and u % 8 == 1:
            grp = q_t.pop(0)
        elif q_w:
            grp = q_w.pop(0)
        elif q_t:
            grp = q_t.pop(0)
        if grp:
            for x in grp:
                a(x)
            if g is not None:
                tg[g] = a.vt()

    NU = 128
    BAR = {16: 9, 36: 15}
    for u in range(NU):
        j, t = u >> 1, u & 1
        nj, nt = (u + 1) >> 1, (u + 1) & 1
        pj, pt = (u - 1) >> 1, (u - 1) & 1
        jj = j % UNR
        sb, nsb = A_S[u % 2], A_S[(u + 1) % 2]
        plo, phi = A_P[(u % 2) * 2], A_P[(u % 2) * 2 + 1]
        pphi = A_P[((u - 1) % 2) * 2 + 1]
        if u + 1 < NU:
            m4(nsb, A_KF[nj % 2], Q[nt], A_C[nt])
        if t == 0 and j + 2 < 64:
            a("ds_read_b128 v[%d:%d], v%d offset:%d" % (A_KF[j % 2], A_KF[j % 2] + 3, V_L16, (j + 2) * 1024))
        if t == 1 and u > U_CHK and cfg.get('slot3', 0):
            slot(u)
        for r in range(0, 4):
            ex(sb + r)
        if u > 0:
            m4(A_O[pt], A_VF[pj % 2][1], pphi, A_O[pt])
        if t == 0 and j + 1 < 64:
            off = (jj + 1) * 1024
            a("ds_read_b128 v[%d:%d], v%d offset:%d" % (A_VF[(j + 1) % 2][0], A_VF[(j + 1) % 2][0] + 3, A_VV, off))
            a("ds_read_b128 v[%d:%d], v%d offset:%d" % (A_VF[(j + 1) % 2][1], A_VF[(j + 1) % 2][1] + 3, A_VV, off + 512))
        if t == 1:
            slot(u)
        for r in range(4, 9):
            ex(sb + r)
        for r in range(0, 4):
            cv(plo + r, sb + 2 * r)
        for r in range(9, 12):
            ex(sb + r)
        m4(A_O[t], A_VF[j % 2][0], plo, A_O[t]) if u > 1 else mf(a, A_O[t], vr(A_VF[j % 2][0], 4), vr(plo, 4), "0")
        if t == 1:
            a("s_waitcnt lgkmcnt(0)")
            if (j + 3) in BAR:
                g = BAR[j + 3]
                if g is not None:
                    a.wait_vm(tg[g])
                a("s_barrier")
                if j + 3 == 16:
                    stamp(a, cfg, 6)
        else:
            slot(u)
        for r in range(12, 16):
            ex(sb + r)
        if t == 1 and jj == UNR - 1:
            a("v_add_u32 v%d, v%d, v%d" % (A_VV, A_VINC, A_VV))
        for r in range(4, 8):
            cv(phi + r - 4, sb + 2 * r)
    assert not (q_kv or q_w or q_t or q_d), (len(q_kv), len(q_w), len(q_t), len(q_d))
    units = [(63, 1)]
    U = 128
    a("L_att_done:")
    stamp(a, cfg, 7)
    lj, lt = units[-1]
    m4(A_O[lt], A_VF[lj % 2][1], A_P[((U - 1) % 2) * 2 + 1], A_O[lt])
    layer_off(a, 34, OFF_O, X_STRIDE)
    a("s_lshl_b32 s18, s%d, 15" % S_RT)
    a("s_add_u32 s34, s34, s18")
    a("s_lshl_b32 s18, s%d, 11" % S_NT)
    a("s_add_u32 s34, s34, s18")
    for t in range(2):
        a("v_rcp_f32 v%d, v%d" % (A_T, A_O[t] + 8))
        for r in range(8):
            a("v_mul_f32 v%d, v%d, v%d" % (A_O[t] + r, A_T, A_O[t] + r))
        pack8(a, A_P[t], A_O[t])
        st4(a, A_P[t], V_L16, 34, t * 1024)
    flag_addr(a, S_FO, FL_O, S_RB, 7, S_HQ)
    publish(a, S_FO, 34)
    stamp(a, cfg, 8)


def phase_wo(a, cfg):
    SB0, SB1, SX = 26, 27, 28
    a("s_barrier")
    if not cfg.get("pf_att", 1):
        for i in range(8):
            blk(a, ar(4 * i, 4), 24, i)
            blk(a, ar(32 + 4 * i, 4), 25, i)
    dma13(a, 2)
    layer_off(a, SX, OFF_O, X_STRIDE)
    b_addr(a, SB0, SB1, SX, 32, 8)
    reduce_addr(a, LDS_R1)
    out_addr(a, 1)
    flag_addr(a, 38, FL_O, S_RB, 7)
    a("s_lshl_b32 s17, s%d, 5" % S_W)
    a("s_add_u32 s38, s38, s17")
    a("v_and_b32 v%d, 28, v%d" % (G_T + 5, V_L4))
    flag_addr(a, S_FX1, FL_X1, S_RG, 8, S_M)
    stamp(a, cfg, 8)
    poll(a, cfg, 38, G_T + 5, G_T + 4)
    stamp(a, cfg, 9)
    gemm64_core(a, cfg, 8, lambda i: ar(4 * i, 4), lambda i: ar(32 + 4 * i, 4), lambda e: ar(64 + 4 * e, 4),
                lambda e: blk(a, ar(64 + 4 * e, 4), SB1 if e < 8 else SB0, e % 8, SC), 16, ramp=cfg.get("ramp1", 8), resid=True)
    res_epilogue(a, cfg, 1, None)
    stamp(a, cfg, 10)
    publish(a, S_FX1, 34)
    stamp(a, cfg, 11)


F_ACC = [24, 40, 56, 72]
NACC = 4
F_W = 88
F_CS = 120
F_H = 128
F_ST = 136
F_T = 168
F_LA = [184, 185]
F_NMU, F_C1, F_RS2, F_CSA, F_LG = 186, 187, 188, 189, 198


def phase_ffn1(a, cfg):
    SX, SH = 24, 27
    a("s_barrier")
    dma13(a, 3)
    a("s_mul_i32 s29, s%d, %d" % (S_M, 7 * 1024))
    a("s_lshl_b32 s17, s%d, 11" % S_W)
    a("s_add_u32 s29, s29, s17")
    a("s_add_u32 m0, s17, %d" % LDS_CS)
    a("s_add_u32 s29, s29, 0x%x" % OFF_CSX)
    a("buffer_load_dwordx4 v%d, s[4:7], s29 offen sc1 lds" % V_L16)
    a("buffer_load_dwordx4 v%d, s[4:7], s29 offen offset:1024 sc1 lds" % V_L16)
    t_w = a.vt()
    a("s_lshl_b32 s30, s%d, 2" % S_RG)
    a("s_add_u32 s30, s30, s%d" % S_W)
    layer_off(a, SX, OFF_X, X_STRIDE, 2, 1)
    a("s_lshl_b32 s17, s30, 15")
    a("s_add_u32 s%d, s%d, s17" % (SX, SX))
    a("s_add_u32 s25, s%d, %d" % (SX, 28 * 1024))
    layer_off(a, 26, OFF_STAT, STAT_STRIDE, 2, 1)
    a("s_lshl_b32 s18, s30, 12")
    a("s_add_u32 s26, s26, s18")
    layer_off(a, SH, OFF_H, H_STRIDE)
    a("s_mul_i32 s17, s30, %d" % (112 * 1024))
    a("s_add_u32 s%d, s%d, s17" % (SH, SH))
    a("s_mul_i32 s17, s%d, %d" % (S_M, 7 * 1024))
    a("s_add_u32 s%d, s%d, s17" % (SH, SH))
    a("v_mov_b32 v%d, v%d" % (F_LA[0], V_L16))
    a("v_add_u32 v%d, 65536, v%d" % (F_LA[1], V_L16))
    a("v_add_u32 v%d, %d, v%d" % (F_CSA, LDS_CS, V_L16))
    a_addr(a, 53, 54, OFF_W2, 112, 28)
    flag_addr(a, 38, FL_X1, S_RG, 8)
    a("s_lshr_b32 s17, s%d, 1" % S_W)
    a("s_lshl_b32 s17, s17, 7")
    a("s_add_u32 s38, s38, s17")
    a("s_and_b32 s17, s%d, 1" % S_W)
    a("s_lshl_b32 s17, s17, 2")
    a("s_add_u32 s38, s38, s17")
    lane_pat(a, F_T + 2, 15, 0, 3)
    flag_addr(a, S_FH, FL_H, S_RG, 9, S_M, per_layer=0x2000)
    stamp(a, cfg, 1)
    poll(a, cfg, 38, F_T + 2, F_T)
    stamp(a, cfg, 2)
    a("s_barrier")
    tX = {}

    def xload(i):
        if i < 28:
            blk(a, ar(4 * i, 4), SX, i, SC)
        else:
            blk(a, ar(4 * i, 4), 25, i - 28, SC)
        tX[i] = a.vt()

    XW = cfg.get("xwin", 10)
    for i in range(XW):
        xload(i)

    def wread(tile, ks, ring):
        slot = SLOT13[tile]
        if ks == 32:
            a("ds_read_b128 v[%d:%d], v%d offset:%d" % (F_W + 4 * ring, F_W + 4 * ring + 3, F_CSA, tile * 1024))
            return
        a("ds_read_b128 v[%d:%d], v%d offset:%d" % (F_W + 4 * ring, F_W + 4 * ring + 3, F_LA[slot >> 1], (slot & 1) * 32768 + ks * 1024))

    def epi(tile):
        acc, cs = F_ACC[tile % NACC], F_CS
        hp = F_H + 4 * (tile % 2)
        out = []
        for e in range(8):
            out.append("v_fma_f32 v%d, v%d, v%d, v%d" % (F_T + 8 + e, F_C1, acc + e, F_LG))
        for e in range(8):
            out.append("v_exp_f32 v%d, v%d" % (F_T + 8 + e, F_T + 8 + e))
            out.append("v_mul_f32 v%d, v%d, v%d" % (acc + e, acc + e, acc + 8 + e))
            if e:
                out.append("v_add_f32 v%d, v%d, v%d" % (F_T + 7 + e, F_RS2, F_T + 7 + e))
        out.append("v_add_f32 v%d, v%d, v%d" % (F_T + 15, F_RS2, F_T + 15))
        for e in range(8):
            out.append("v_rcp_f32 v%d, v%d" % (F_T + 8 + e, F_T + 8 + e))
            if e:
                out.append("v_mul_f32 v%d, v%d, v%d" % (acc + e - 1, F_T + 7 + e, acc + e - 1))
        out.append("v_mul_f32 v%d, v%d, v%d" % (acc + 7, F_T + 15, acc + 7))
        for i in range(4):
            out.append("v_cvt_pk_bf16_f32 v%d, v%d, v%d" % (hp + i, acc + 2 * i, acc + 2 * i + 1))
        out.append("buffer_store_dwordx4 v[%d:%d], v%d, s[4:7], s%d offen offset:%d %s" % (hp, hp + 3, V_OFF[tile // 4], SH, (tile % 4) * 1024, SC))
        if DBL[0]:
            out.append("buffer_store_dwordx4 v[%d:%d], v%d, s[4:7], s%d offen offset:%d" % (hp, hp + 3, V_OFF[tile // 4], SH, (tile % 4) * 1024))
        return out

    G0 = cfg.get("g0", 2)
    steps = []
    for ks in range(33):
        for tl in range(G0):
            steps.append((tl, ks))
    for tile in range(G0, 7):
        for ks in range(33):
            steps.append((tile, ks))
    N = len(steps)
    PF = cfg.get('pf', 6)
    lt = {}
    first_of, last_of = {}, {}
    for n, (tile, ks) in enumerate(steps):
        first_of.setdefault(tile, n)
        last_of[tile] = n
    dma_q = []
    fence_t = {}

    def do_read(n):
        tile, ks = steps[n]
        if n == first_of[tile] and tile >= 4:
            assert tile in fence_t and not any(q[0] == tile for q in dma_q), tile
            a.wait_vm(fence_t[tile])
            a("s_barrier")
        wread(tile, ks, n % 8)
        lt[n] = a.lt()

    cs_t = 0
    for n in range(PF):
        do_read(n)
    pending = []
    nx = XW
    nst, st_t, st_n, early_done = 0, {}, {}, False
    for n, (tile, ks) in enumerate(steps):
        if tile >= G0 and ks == 0:
            stamp(a, cfg, 1 + tile)
        if tile == 0 and ks < 32:
            a.wait_vm(tX[ks])
        if n % 2 == 0:
            a.wait_lg(lt[min(n + 1, N - 1)])
            lg_done = lt[min(n + 1, N - 1)]
        acc = F_ACC[tile % NACC]
        mf(a, acc, vr(F_W + 4 * (n % 8), 4), ar(4 * ks, 4) if ks < 32 else vr(F_CS, 4), "0" if ks == 0 else vr(acc, 16))
        if tile < G0 and nx < 32:
            xload(nx)
            nx += 1
            if nx == 32:
                load_stats(a, F_ST, 26, F_T, SC)
                t_st = a.vt()
        if n + PF < N:
            do_read(n + PF)
        if n == last_of[G0 - 1] + 2:
            a("s_barrier")
            for tl in range(4, 4 + min(G0, 3)):
                dma_q += [(tl, x) for x in dma_lines(tl)]
        for old in range(G0, 3):
            if n == last_of[old] + 2:
                a("s_barrier")
                dma_q += [(old + 4, x) for x in dma_lines(old + 4)]
                if old == 2:
                    b = Asm()
                    for idx in range(46, 56):
                        w2load(b, idx, 53, 54)
                    dma_q += [(99, l.strip()) for l in b.lines]
        if dma_q and n % cfg.get("dma_every", 3) == 0:
            while dma_q:
                tl, x = dma_q.pop(0)
                a(x)
                if x.startswith("buffer_load"):
                    fence_t[tl] = a.vt()
                    break
        if n == last_of[G0 - 1] - G0 - 2:
            a.wait_vm(t_st)
            finish_stats(a, F_ST, F_NMU, F_RS2)
            a("v_mul_f32 v%d, %s, v%d" % (F_C1, fl(-LOG2E), F_RS2))
            a("v_mov_b32 v%d, v%d" % (F_RS2, F_ST + 1))
            a("v_log_f32 v%d, v%d" % (F_LG, F_ST + 1))
            split3(a, F_NMU, F_CS + 4)
            hi, mi, lo = F_CS + 4, F_CS + 5, F_CS + 6
            a("v_lshrrev_b32 v%d, 16, v%d" % (F_CS + 7, hi))
            a("v_or_b32 v%d, v%d, v%d" % (F_CS, F_CS + 7, mi))
            a("v_or_b32 v%d, v%d, v%d" % (F_CS + 1, F_CS + 7, lo))
            a("v_mov_b32 v%d, v%d" % (F_CS + 2, F_CS))
            a("v_mov_b32 v%d, 0" % (F_CS + 3))
        for tl in range(0, 6):
            if n == max(last_of[tl], last_of[G0 - 1]) + 3:
                pending += epi(tl)
        cost = 0
        lim = cfg.get("epi_cost", 12)
        while pending:
            x = pending[0]
            if x == "CSWAIT":
                pending.pop(0)
                if cs_t > lg_done:
                    a.wait_lg(cs_t)
                    cost += 4
                continue
            cx = 8 if x.split()[0] in TRANS else (8 if x.startswith("buffer_") else 4)
            if cost + cx > lim:
                break
            pending.pop(0)
            if x.startswith("buffer_store") and nst == EARLY:
                assert not dma_q
                a("s_waitcnt vmcnt(0)")
                a("s_mov_b64 exec, 1")
                a("buffer_store_dword v%d, v%d, s[4:7], s%d offen offset:%d %s" % (V_TAG, V_ZERO, S_FH, 0x100, SC))
                touch_lines(a, SH, 8 * EARLY)
                a("s_mov_b64 exec, -1")
                early_done = True
            a(x)
            cost += cx
            if x.startswith("ds_read"):
                cs_t = a.lt()
            if x.startswith("buffer_store"):
                nst += 1
                st_t[nst - 1] = a.vt()
                st_n[nst - 1] = n
    assert early_done
    assert not dma_q
    stamp(a, cfg, 8)
    for x in pending + epi(6):
        if x == "CSWAIT":
            a.wait_lg(cs_t)
            continue
        a(x)
        if x.startswith("ds_read"):
            cs_t = a.lt()
    stamp(a, cfg, 9)
    a("s_add_u32 s17, s%d, %d" % (SH, EARLY * 1024))
    publish(a, S_FH, 17, 8 * (7 - EARLY))
    stamp(a, cfg, 10)


def phase_ffn2(a, cfg):
    SB0, SB1, SX = 26, 27, 28
    SW0, SW1 = 24, 25
    side = []
    if cfg.get("touchq", 0):
        a("s_lshl_b32 s49, s%d, 16" % S_HQ)
        a("s_and_b32 s18, s%d, 3" % S_RB)
        a("s_lshl_b32 s18, s18, 14")
        a("s_add_u32 s49, s49, s18")
        a("s_lshl_b32 s18, s%d, 12" % S_W)
        a("s_add_u32 s49, s49, s18")
        a("s_add_u32 s49, s49, 0x%x" % OFF_WQ)
        a("s_cmp_eq_u32 s%d, 1" % S_LAYER)
        a("s_cselect_b32 s49, 0xf0000000, s49")
        a("v_lshlrev_b32 v%d, 6, v%d" % (G_T + 2, V_LANE))
        side.append("buffer_load_dword v%d, v%d, s[4:7], s49 offen" % (G_T + 3, G_T + 2))
    layer_off(a, SX, OFF_H, H_STRIDE)
    b_addr(a, SB0, SB1, SX, 112, 28)
    reduce_addr(a, LDS_R1)
    out_addr(a, 2)
    flag_addr(a, 38, FL_H, S_RG, 9, per_layer=0x2000)
    a("s_lshl_b32 s17, s%d, 6" % S_W)
    a("s_add_u32 s38, s38, s17")
    a("s_and_b32 s17, s%d, 1" % S_RB)
    a("s_lshl_b32 s17, s17, 3")
    a("s_add_u32 s38, s38, s17")
    lane_pat(a, G_T + 6, 7, 0, 2)
    xin_flag_addr(a, 39, True, 1)
    stamp(a, cfg, 8)
    poll(a, cfg, 38, G_T + 6, G_T + 4, imm=0x100)
    stamp(a, cfg, 9)
    R = 32

    def hreg(e):
        return ar(4 * (e % R), 4)

    early = [7 * mm + tl for tl in range(EARLY) for mm in range(4)]
    late = [7 * mm + tl for tl in range(EARLY, 7) for mm in range(4)]
    order = [(1, i) for i in early] + [(0, i) for i in early] + [(1, i) for i in late] + [(0, i) for i in late]
    tp = {}

    def probe():
        a("buffer_load_dword v%d, v%d, s[4:7], s38 offen %s" % (G_T + 5, G_T + 6, SC))
        tp[0] = a.vt()

    def check():
        a.wait_vm(tp[0])
        a("v_cmp_ne_u32 vcc, v%d, v%d" % (V_TAG, G_T + 5))
        a("s_cbranch_vccz L_ffn2_go")
        keep = a.vm_issued
        poll(a, cfg, 38, G_T + 6, G_T + 4)
        a.vm_issued = keep
        a("L_ffn2_go:")
        stamp(a, cfg, 3)

    pp = cfg.get("probe_at", 16)
    gemm64_core(a, cfg, 28, lambda i: w2reg(0, i), lambda i: w2reg(1, i), hreg,
                lambda e: blk(a, hreg(e), SB1 if order[e][0] else SB0, order[e][1], SC), R, order=order,
                gate=(2 * len(early), probe, check, pp, pp), side=side, side_from=cfg.get('w2_side', 6), side_n=1,
                side2=wq_lines(), side2_from=cfg.get('wq_from', 40), ramp=cfg.get('ramp2', 10), resid=True)
    res_epilogue(a, cfg, 2, "L_final")
    stamp(a, cfg, 10)
    publish(a, 39, 34)
    stamp(a, cfg, 11)


def final_store(a):
    a("v_permlane32_swap_b32 v%d, v%d" % (V_RES, V_RES + 2))
    a("v_permlane32_swap_b32 v%d, v%d" % (V_RES + 1, V_RES + 3))
    a("v_permlane32_swap_b32 v%d, v%d" % (V_RES + 4, V_RES + 6))
    a("v_permlane32_swap_b32 v%d, v%d" % (V_RES + 5, V_RES + 7))
    a("s_lshl_b32 s17, s%d, 15" % S_RT)
    a("s_lshl_b32 s18, s%d, 6" % S_NT)
    a("s_add_u32 s17, s17, s18")
    a("v_lshlrev_b32 v%d, 10, v%d" % (G_T + 2, V_R31))
    a("v_lshl_add_u32 v%d, v%d, 4, v%d" % (G_T + 2, V_H, G_T + 2))
    a("buffer_store_dwordx4 v[%d:%d], v%d, s[8:11], s17 offen" % (V_RES, V_RES + 3, G_T + 2))
    a("buffer_store_dwordx4 v[%d:%d], v%d, s[8:11], s17 offen offset:32" % (V_RES + 4, V_RES + 7, G_T + 2))


def st_begin(a, cfg):
    kern.stamp_init(a, cfg)


def st_end(a, cfg, k):
    if not cfg.get("stamps"):
        return
    stamp(a, cfg, NSTAMP - 1)
    a("s_memrealtime s[62:63]")
    a("s_waitcnt lgkmcnt(0)")
    a("s_mov_b32 s79, s62")
    a("s_mul_i32 s60, s3, 5\ns_add_u32 s60, s60, %d" % k)
    a("s_lshl_b32 s60, s60, 16")
    a("s_lshl_b32 s61, s2, 8")
    a("s_add_u32 s60, s60, s61")
    a("s_lshl_b32 s61, s12, 6")
    a("s_add_u32 s60, s60, s61")
    a("s_add_u32 s60, s60, 0x%x" % kern.OFF_STAMP)
    for i in range(16):
        a("v_writelane_b32 v199, s%d, %d" % (64 + i, i))
    a("s_mov_b32 exec_lo, 0xffff\ns_mov_b32 exec_hi, 0x0")
    a("buffer_store_dword v199, v%d, s[4:7], s60 offen" % V_L4)
    a("s_mov_b64 exec, -1")


KNAME = kern.NAME + "_kernel"


def build(cfg):
    rep = []
    DBL[0] = cfg.get("dbl", 0)
    TOUCH[0] = cfg.get("ptouch", 0)
    COMPACT[0] = cfg.get("compact", 1)
    global OFF_WKV
    if COMPACT[0]:
        OFF_WKV = SU.OFF_WKV = C_WKV
    a = Asm()
    a("s_load_dwordx16 s[80:95], s[0:1], 0")
    a("s_load_dwordx2 s[96:97], s[0:1], 64")
    a("s_load_dwordx2 s[98:99], s[0:1], 80")
    kern.common_prologue(a, True)
    a("v_mov_b32 v%d, 0" % V_ZERO)
    a("v_mov_b32 v199, 0")
    a("v_lshlrev_b32 v%d, 7, v%d" % (V_L128, V_LANE))
    a("v_lshlrev_b32 v%d, 2, v%d" % (V_L4, V_LANE))
    a("s_lshr_b32 s17, s%d, 1" % S_W)
    a("s_and_b32 s18, s%d, 1" % S_W)
    a("s_lshl_b32 s%d, s%d, 1" % (S_NT, S_HQ))
    a("s_add_u32 s%d, s%d, s17" % (S_NT, S_NT))
    a("s_lshl_b32 s%d, s%d, 1" % (S_RT, S_RB))
    a("s_add_u32 s%d, s%d, s18" % (S_RT, S_RT))
    a("s_mov_b32 s%d, 0" % S_LAYER)
    if cfg.get("spin_limit"):
        a("s_mov_b32 s46, %d" % cfg["spin_limit"])
    st_begin(a, cfg)
    SU.startup(a, cfg, sys.modules[__name__])
    a_addr(a, S_Q0, S_Q1, OFF_WQ, 32, 8)
    a("s_lshl_b32 s%d, s%d, 13" % (S_KVW, S_W))
    a("s_add_u32 s%d, s%d, 0x%x" % (S_KVW, S_KVW, OFF_WKV))
    a("s_and_b32 s17, s2, 7")
    a("s_lshl_b32 s17, s17, 15")
    a("s_add_u32 s%d, s%d, s17" % (S_KVW, S_KVW))
    a("s_cmp_ge_u32 s%d, 4" % S_HQ)
    a("s_cselect_b32 s%d, s%d, s%d" % (S_KVW, S_Q0, S_KVW))
    st_end(a, cfg, 0)
    a("L_layer:")
    for k, ph in enumerate((phase_qkv, phase_att, phase_wo, phase_ffn1, phase_ffn2)):
        st_begin(a, cfg)
        ph(a, cfg)
        st_end(a, cfg, k + 1)
    a("s_mov_b32 s%d, 1" % S_LAYER)
    a("s_branch L_layer")
    a("L_final:")
    final_store(a)
    st_end(a, cfg, 5)
    a("L_exit:")
    a("s_endpgm")
    main_lines, _ = fix_hazards_fast(kern.uniq(a.lines, "main"), rep)

    pf = cfg.get("pfk", 0)
    if pf:
        b = Asm()
        b("s_cmp_ge_u32 s2, 256")
        b("s_cbranch_scc1 L_pf_end")
        b("s_load_dwordx16 s[16:31], s[0:1], 0")
        b("s_load_dwordx2 s[32:33], s[0:1], 64")
        b("s_getpc_b64 s[4:5]")
        b("L_pf_pc:")
        b("s_add_u32 s4, s4, L_code_begin-L_pf_pc")
        b("s_addc_u32 s5, s5, -1")
        b("s_lshr_b32 s6, s2, 3")
        b("s_and_b32 s7, s2, 7")
        b("s_lshl_b32 s8, s6, 11")
        b("v_lshlrev_b32 v1, 3, v0")
        b("v_add_u32 v1, s8, v1")
        b("v_min_u32 v1, L_code_end-L_code_begin-8, v1")
        b("global_load_dwordx2 v[2:3], v1, s[4:5]")
        if pf >= 2:
            b("v_lshlrev_b32 v1, 6, v0")
            b("s_lshl_b32 s8, s6, 14")
            b("v_add_u32 v4, s8, v1")
            b("s_lshl_b32 s9, s7, 18")
            b("s_lshl_b32 s10, s6, 13")
            b("s_add_u32 s9, s9, s10")
            b("v_lshlrev_b32 v5, 5, v0")
            b("v_add_u32 v5, s9, v5")
            b("s_mul_i32 s11, s2, 7168")
            b("v_mul_u32_u24 v6, 28, v0")
            b("v_add_u32 v6, s11, v6")
            b("s_lshl_b32 s11, s2, 11")
            b("v_lshlrev_b32 v7, 3, v0")
            b("v_add_u32 v7, s11, v7")
            b("s_waitcnt lgkmcnt(0)")
            b("global_load_dword v8, v4, s[18:19]")
            b("global_load_dword v9, v5, s[16:17]")
            b("global_load_dword v10, v1, s[20:21]")
            b("global_load_dword v11, v1, s[22:23]")
            b("global_load_dword v12, v6, s[28:29]")
            b("global_load_dword v13, v6, s[30:31]")
            b("global_load_dword v14, v6, s[32:33]")
            b("global_load_dword v15, v7, s[24:25]")
        b("L_pf_end:")
        b("s_endpgm")
        pfl, _ = fix_hazards_fast(["L_code_begin:", "L_code_end:"] + b.lines, rep)
        main_lines2 = [".p2align 8", "pf_kernel:"] + pfl[2:]
        s = "; @launch kernel=pf_kernel grid=(256,1,1) block=(256,1,1) lds=0\n"
        s += "; @launch kernel=%s grid=(256,1,1) block=(256,1,1) lds=%d\n" % (KNAME, 160 * 1024)
    else:
        main_lines2 = []
        s = "; @launch grid=(256,1,1) block=(256,1,1) lds=%d\n" % (160 * 1024)
    s += '.amdgcn_target "amdgcn-amd-amdhsa--gfx950"\n.text\n.globl %s\n.p2align 8\n.type %s,@function\n' % (KNAME, KNAME)
    s += "\n".join(["L_code_begin:", KNAME + ":"] + main_lines + ["L_code_end:"] + main_lines2) + "\n"
    s += '.section .rodata,"a"\n.p2align 6\n' + kernel_desc(KNAME, 512, 256, 102)
    if pf:
        s += ".p2align 6\n" + kernel_desc("pf_kernel", 16, 16, 40)
    return s, rep


if __name__ == "__main__":
    cfg = dict(code_prefetch=True)
    for kv in sys.argv[2:]:
        k, v = kv.split("=")
        cfg[k] = eval(v)
    s, rep = build(cfg)
    open(sys.argv[1], "w").write(s)
    print("auto nops:", sum(r[0] for r in rep), "sites", len(rep), "bytes of source", len(s))
    if cfg.get("verbose"):
        for r in rep:
            print(r)
```

```python
import sys
from asmlib import *
from layout import *
import kern
import startup as SU
from kern import (split3, fl, MF, S_LAYER, S_W, S_RB, S_HQ, S_RG, S_M, V_L16, V_LANE, V_R31, V_H, V_OFF, xhalf_sum,
                  load_stats, finish_stats, pack8, stamp, kernel_desc, prep, NSTAMP)

SC = "sc1"


COMPACT = [1]
CMAP = {OFF_X: 0x800000, OFF_O: 0xC00000, OFF_H: 0xE00000, OFF_STAT: OFF_STAT}
C_WKV = 0x780000
C_END = 0x1500000


def layer_off(a, sdst, base, stride, mul=1, add=0):
    if COMPACT[0] and base in CMAP:
        a("s_mov_b32 s%d, 0x%x" % (sdst, CMAP[base] + (add & 1) * stride))
    else:
        kern.layer_off(a, sdst, base, stride, mul, add)


def blk(a, dst, sbase, i, sc=SC):
    kern.blk(a, dst, sbase, i, SC)


FL_O = 0x0000
FL_X1 = 0x2000
FL_H = 0x8000
FL_XIN = 0x6000
OFF_FLW = 0x64C000
FL_KV = 0xC000

S_RT, S_NT = 31, 32
S_FO, S_FX1, S_FH = 40, 41, 42
S_W13, S_WL = 47, 48
S_RET = 44
V_RES = 12
V_TAG = 11
V_L4 = 20
V_ZERO = 21
VB = 24

G_ACC = 24
G_RED = 88
G_ST = 136
G_CS = 152
G_T = 168
V_WR = [184, 185, 186]
V_RD = 187
V_NMU, V_RSTD = 188, 189
G_KVACC = 88
G_Q = 190
W2V = 200

LDS_R1 = 96 * 1024
LDS_RQ = 0
LDS_KVX = 49152
LDS_CS = 144 * 1024


DBL = [0]


def st4(a, data, voff, soff, imm=0):
    a("buffer_store_dwordx4 v[%d:%d], v%d, s[4:7], s%d offen offset:%d %s" % (data, data + 3, voff, soff, imm, SC))
    if DBL[0]:
        a("buffer_store_dwordx4 v[%d:%d], v%d, s[4:7], s%d offen offset:%d" % (data, data + 3, voff, soff, imm))


TOUCH = [1]
V_L128 = 23


def touch_lines(a, s_data, nlines, imm=0):
    if not TOUCH[0]:
        return
    a("s_mov_b32 exec_lo, 0x%x" % (((1 << nlines) - 1) & 0xffffffff))
    a("s_mov_b32 exec_hi, 0x%x" % (((1 << nlines) - 1) >> 32))
    a("buffer_load_dword v22, v%d, s[4:7], s%d offen offset:%d %s" % (V_L128, s_data, imm, SC))


def publish(a, s_addr, s_data=None, nlines=16, imm=0):
    a("s_waitcnt vmcnt(0)")
    a("s_mov_b64 exec, 1")
    a("buffer_store_dword v%d, v%d, s[4:7], s%d offen %s" % (V_TAG, V_ZERO, s_addr, SC))
    if s_data is not None:
        touch_lines(a, s_data, nlines, imm)
    a("s_mov_b64 exec, -1")


def poll(a, cfg, s_addr, voff, vtmp, wide=False, imm=0, sleep=0):
    L = a.newlabel("L_poll")
    if cfg.get("spin_limit"):
        a("s_mov_b32 s46, %d" % cfg["spin_limit"])
    a(L + ":")
    if wide:
        a("buffer_load_dwordx2 v[%d:%d], v%d, s[4:7], s%d offen %s" % (vtmp, vtmp + 1, voff, s_addr, SC))
        a("s_waitcnt vmcnt(0)")
        a("v_xor_b32 v%d, v%d, v%d" % (vtmp + 1, V_TAG, vtmp + 1))
        a("v_xor_b32 v%d, v%d, v%d" % (vtmp, vtmp, vtmp + 1))
        a("v_or_b32 v%d, v%d, v%d" % (vtmp, vtmp, vtmp + 1) if False else "v_cmp_ne_u32 s[18:19], 0, v%d" % (vtmp + 1))
        a("v_cndmask_b32 v%d, v%d, v%d, s[18:19]" % (vtmp, vtmp, V_ZERO))
    else:
        a("buffer_load_dword v%d, v%d, s[4:7], s%d offen offset:%d %s" % (vtmp, voff, s_addr, imm, SC))
        a("s_waitcnt vmcnt(0)")
    if cfg.get("spin_limit"):
        a("s_sub_u32 s46, s46, 1")
        a("s_cbranch_scc1 %s_out" % L)
    a("v_cmp_ne_u32 vcc, v%d, v%d" % (V_TAG, vtmp))
    if sleep:
        a("s_cbranch_vccz %s_out" % L)
        a("s_sleep %d" % sleep)
        a("s_branch %s" % L)
    else:
        a("s_cbranch_vccnz %s" % L)
    a(L + "_out:")


def lane_pat(a, vdst, mask, hi_shift, lo_mul):
    a("v_and_b32 v%d, %d, v%d" % (vdst, mask & ~1, V_LANE))
    a("v_lshlrev_b32 v%d, 3, v%d" % (vdst, vdst))
    a("v_and_b32 v%d, 1, v%d" % (vdst + 1, V_LANE))
    a("v_lshl_add_u32 v%d, v%d, %d, v%d" % (vdst, vdst + 1, lo_mul, vdst))


def flag_addr(a, sdst, base, s_grp, grp_shift, s_mem=None, per_layer=0x1000):
    a("s_mul_i32 s%d, s%d, 0x%x" % (sdst, S_LAYER, per_layer))
    a("s_add_u32 s%d, s%d, 0x%x" % (sdst, sdst, OFF_FLAGS + base))
    a("s_lshl_b32 s17, s%d, %d" % (s_grp, grp_shift))
    a("s_add_u32 s%d, s%d, s17" % (sdst, sdst))
    if s_mem is not None:
        a("s_lshl_b32 s17, s%d, 4" % s_mem)
        a("s_add_u32 s%d, s%d, s17" % (sdst, sdst))
        a("s_lshl_b32 s17, s%d, 2" % S_W)
        a("s_add_u32 s%d, s%d, s17" % (sdst, sdst))


def xin_flag_addr(a, sdst, own, layer_add):
    flag_addr(a, sdst, FL_XIN + 0x1000 * layer_add, S_RB, 7, S_HQ if own else None)


def a_addr(a, s_a0, s_a1, offA, ksA, ksw):
    a("s_mul_i32 s20, s%d, %d" % (S_W, ksw * 1024))
    a("s_mul_i32 s%d, s%d, %d" % (s_a0, S_NT, ksA * 1024))
    a("s_add_u32 s%d, s%d, s20" % (s_a0, s_a0))
    a("s_add_u32 s%d, s%d, 0x%x" % (s_a0, s_a0, offA))
    a("s_xor_b32 s21, s%d, 1" % S_NT)
    a("s_mul_i32 s%d, s21, %d" % (s_a1, ksA * 1024))
    a("s_add_u32 s%d, s%d, s20" % (s_a1, s_a1))
    a("s_add_u32 s%d, s%d, 0x%x" % (s_a1, s_a1, offA))


def b_addr(a, s_b0, s_b1, s_base, ksB, ksw):
    a("s_mul_i32 s20, s%d, %d" % (S_W, ksw * 1024))
    a("s_add_u32 s20, s20, s%d" % s_base)
    a("s_mul_i32 s%d, s%d, %d" % (s_b0, S_RT, ksB * 1024))
    a("s_add_u32 s%d, s%d, s20" % (s_b0, s_b0))
    a("s_xor_b32 s21, s%d, 1" % S_RT)
    a("s_mul_i32 s%d, s21, %d" % (s_b1, ksB * 1024))
    a("s_add_u32 s%d, s%d, s20" % (s_b1, s_b1))


def reduce_addr(a, base):
    for j in (1, 2, 3):
        a("s_xor_b32 s17, s%d, %d" % (S_W, j))
        a("s_mul_i32 s17, s17, 12288")
        a("s_add_u32 s17, s17, %d" % (base + (j - 1) * 4096))
        a("v_add_u32 v%d, s17, v%d" % (V_WR[j - 1], V_L16))
    a("s_mul_i32 s17, s%d, 12288" % S_W)
    a("s_add_u32 s17, s17, %d" % base)
    a("v_add_u32 v%d, s17, v%d" % (V_RD, V_L16))


def mf(a, d, x, y, c):
    a("%s v[%d:%d], %s, %s, %s" % (MF, d, d + 15, x, y, c))


def wr_tile(a, j):
    for q in range(4):
        r = G_ACC + 16 * j + 4 * q
        a("ds_write_b128 v%d, v[%d:%d] offset:%d" % (V_WR[j - 1], r, r + 3, q * 1024))


def rd_tile(a, j, dst):
    for q in range(4):
        a("ds_read_b128 v[%d:%d], v%d offset:%d" % (dst + 4 * q, dst + 4 * q + 3, V_RD, (j - 1) * 4096 + q * 1024))


def gemm64_core(a, cfg, n, A0, A1, Breg, issueB, window, pre_tickets=None, order=None, side=None, side_from=0, side_n=1,
                gate=None, side2=None, side2_from=0, ramp=None, resid=False):
    if order is None:
        order = [(1, i) for i in range(n)] + [(0, i) for i in range(n)]
    M = len(order)
    side = list(side or [])
    t = dict(pre_tickets or {})
    nxt = len(t)
    gpos = gate[0] if gate else M + 1
    gated = [False]

    def try_issue(limit):
        nonlocal nxt
        while nxt < M and nxt < limit:
            if nxt >= gpos and not gated[0]:
                return
            issueB(nxt)
            t[nxt] = a.vt()
            nxt += 1
            if gate and nxt == gate[3]:
                gate[1]()

    try_issue(ramp or window)
    if cfg.get("stamps") != 2:
        stamp(a, cfg, 1)
    last1 = max(e for e, (st, i) in enumerate(order) if st == 1)
    wr1 = last1 + 2
    bar1 = min(M - 2, last1 + 1 + max(2, (M - last1) // 2))
    seen = set()
    for e, (st, i) in enumerate(order):
        if gate and not gated[0] and e == gate[4]:
            assert not side
            gate[2]()
            gated[0] = True
            try_issue(e + window)
        a.wait_vm(t[e])
        if e == 0 and cfg.get("stamps") != 2:
            stamp(a, cfg, 2)
        first = "0" if st not in seen else None
        seen.add(st)
        if st == 1:
            mf(a, G_ACC + 16, A0(i), Breg(e), first or vr(G_ACC + 16, 16))
            mf(a, G_ACC + 48, A1(i), Breg(e), first or vr(G_ACC + 48, 16))
        else:
            mf(a, G_ACC + 32, A1(i), Breg(e), first or vr(G_ACC + 32, 16))
            mf(a, G_ACC, A0(i), Breg(e), first or vr(G_ACC, 16))
        try_issue(min(e + 1 + window, nxt + 2))
        if e >= side_from:
            k = 0
            while side and k < side_n:
                x = side.pop(0)
                a(x)
                k += x.startswith("buffer_")
        if side2 and e >= side2_from:
            for _ in range(2):
                if side2:
                    a(side2.pop(0))
        if e == wr1:
            wr_tile(a, 1)
            wr_tile(a, 3)
        if e == bar1:
            a("s_waitcnt lgkmcnt(0)")
            a("s_barrier")
            rd_tile(a, 1, G_RED)
            rd_tile(a, 3, G_RED + 16)
    assert wr1 <= bar1 < M and not side2
    stamp(a, cfg, 4)
    a("s_waitcnt lgkmcnt(0)")
    for e in range(6):
        a("v_add_f32 v%d, v%d, v%d" % (G_RED + e, G_RED + e, G_RED + 16 + e))
    wr_tile(a, 2)
    for e in range(6, 16):
        a("v_add_f32 v%d, v%d, v%d" % (G_RED + e, G_RED + e, G_RED + 16 + e))
    for e in range(16):
        a("v_add_f32 v%d, v%d, v%d" % (G_ACC + e, G_ACC + e, G_RED + e))
    if resid:
        for i in range(8):
            a("v_lshlrev_b32 v%d, 16, v%d" % (G_T, V_RES + i))
            a("v_and_b32 v%d, 0xffff0000, v%d" % (G_T + 1, V_RES + i))
            a("v_add_f32 v%d, v%d, v%d" % (G_ACC + 2 * i, G_ACC + 2 * i, G_T))
            a("v_add_f32 v%d, v%d, v%d" % (G_ACC + 2 * i + 1, G_ACC + 2 * i + 1, G_T + 1))
    for x in side:
        a(x)
    a("s_waitcnt lgkmcnt(0)")
    a("s_barrier")
    stamp(a, cfg, 6)
    rd_tile(a, 2, G_RED + 32)
    for q in range(4):
        a("s_waitcnt lgkmcnt(%d)" % (3 - q))
        for e in range(4):
            a("v_add_f32 v%d, v%d, v%d" % (G_ACC + 4 * q + e, G_ACC + 4 * q + e, G_RED + 32 + 4 * q + e))
    stamp(a, cfg, 7)


def res_epilogue(a, cfg, xout_add, final):
    for i in range(8):
        a("v_cvt_pk_bf16_f32 v%d, v%d, v%d" % (V_RES + i, G_ACC + 2 * i, G_ACC + 2 * i + 1))
        if i == 3 and final is None:
            st4(a, V_RES, V_L16, 34)
    if final is not None:
        a("s_cmp_eq_u32 s%d, 1" % S_LAYER)
        a("s_cbranch_scc1 %s" % final)
        st4(a, V_RES, V_L16, 34)
    store_x_tail(a)


def store_x_tail(a):
    st4(a, V_RES + 4, V_L16, 34, 1024)
    a("v_mov_b32 v%d, 0x3f803f80" % G_T)
    a("v_mov_b32 v%d, 0" % (G_T + 12))
    a("v_mov_b32 v%d, 0" % (G_T + 13))
    for r in range(8):
        a("v_dot2_f32_bf16 v%d, v%d, v%d, v%d" % (G_T + 12, V_RES + r, G_T, G_T + 12))
        a("v_dot2_f32_bf16 v%d, v%d, v%d, v%d" % (G_T + 13, V_RES + r, V_RES + r, G_T + 13))
    a("v_lshlrev_b32 v%d, 3, v%d" % (G_T + 2, V_R31))
    a("s_nop 1")
    a("v_mov_b32 v%d, v%d" % (G_T + 14, G_T + 12))
    a("v_mov_b32 v%d, v%d" % (G_T + 15, G_T + 13))
    a("s_nop 0")
    a("v_permlane32_swap_b32 v%d, v%d" % (G_T + 12, G_T + 14))
    a("v_permlane32_swap_b32 v%d, v%d" % (G_T + 13, G_T + 15))
    a("v_add_f32 v%d, v%d, v%d" % (G_T + 12, G_T + 12, G_T + 14))
    a("v_add_f32 v%d, v%d, v%d" % (G_T + 13, G_T + 13, G_T + 15))
    a("s_mov_b32 exec_lo, 0xffffffff\ns_mov_b32 exec_hi, 0x0")
    a("buffer_store_dwordx2 v[%d:%d], v%d, s[4:7], s35 offen %s" % (G_T + 12, G_T + 13, G_T + 2, SC))
    a("s_mov_b64 exec, -1")


def out_addr(a, xout_add):
    layer_off(a, 34, OFF_X, X_STRIDE, 2, xout_add)
    a("s_lshl_b32 s18, s%d, 15" % S_RT)
    a("s_add_u32 s34, s34, s18")
    a("s_lshl_b32 s18, s%d, 11" % S_NT)
    a("s_add_u32 s34, s34, s18")
    layer_off(a, 35, OFF_STAT, STAT_STRIDE, 2, xout_add)
    a("s_lshl_b32 s18, s%d, 12" % S_RT)
    a("s_add_u32 s35, s35, s18")
    a("s_lshl_b32 s18, s%d, 8" % S_NT)
    a("s_add_u32 s35, s35, s18")


S_Q0, S_Q1, S_KVW = 50, 51, 52


def wq_lines():
    b = Asm()
    for i in range(8):
        blk(b, ar(128 + 4 * i, 4), S_KVW, i)
    for i in range(8):
        blk(b, ar(160 + 4 * i, 4), S_Q0, i)
        blk(b, ar(192 + 4 * i, 4), S_Q1, i)
    return [l.strip() for l in b.lines]


def phase_qkv(a, cfg):
    SA0, SA1, SB0, SB1, SX, SKV = 24, 25, 26, 27, 28, 29
    CK = G_T + 8
    a("v_lshlrev_b32 v%d, 4, v%d" % (G_T + 1, V_H))
    a("v_lshlrev_b32 v%d, 2, v%d" % (G_T + 6, V_R31))
    VP, VPA = 198, 22
    SU.probe_addr(a, sys.modules[__name__], VPA, VP, 59)
    a("buffer_load_dword v%d, v%d, s[4:7], s59 offen sc1" % (VP, VPA))

    def cs_kv():
        a("s_and_b32 s17, s2, 7")
        a("s_lshl_b32 s17, s17, 7")
        a("s_add_u32 s17, s17, 0x%x" % OFF_CSKV)
        a("buffer_load_dwordx4 v[%d:%d], v%d, s[4:7], s17 offen offset:64 sc1" % (CK, CK + 3, G_T + 1))
        a("buffer_load_dwordx4 v[%d:%d], v%d, s[4:7], s17 offen offset:96 sc1" % (CK + 4, CK + 7, G_T + 1))
        a("buffer_load_dword v%d, v%d, s[4:7], s17 offen sc1" % (G_T + 7, G_T + 6))

    cs_kv()

    def wcheck(tag):
        a("v_cmp_ne_u32 vcc, v%d, v%d" % (V_TAG, VP))
        a("s_cbranch_vccz L_qkv_wok%s" % tag)
        keep = a.vm_issued
        poll(a, cfg, 59, VPA, VP, sleep=1)
        cs_kv()
        a("s_waitcnt vmcnt(0)")
        a.vm_issued = keep
        a("L_qkv_wok%s:" % tag)

    layer_off(a, SX, OFF_X, X_STRIDE, 2, 0)
    b_addr(a, SB0, SB1, SX, 32, 8)
    layer_off(a, 30, OFF_STAT, STAT_STRIDE, 2, 0)
    a("s_lshl_b32 s17, s%d, 12" % S_RT)
    a("s_add_u32 s30, s30, s17")
    reduce_addr(a, LDS_RQ)
    layer_off(a, 33, OFF_KV, KV_STRIDE)
    a("s_lshr_b32 s36, s%d, 1" % S_HQ)
    a("s_lshl_b32 s17, s%d, 1" % S_RB)
    a("s_add_u32 s17, s17, s36")
    a("s_lshl_b32 s17, s17, 15")
    a("s_add_u32 s23, s17, s%d" % SX)
    a("s_lshl_b32 s17, s%d, 13" % S_W)
    a("s_add_u32 s23, s23, s17")
    a("s_sub_u32 s17, s%d, s36" % S_W)
    a("s_sub_u32 s17, s17, 1")
    a("s_and_b32 s17, s17, 3")
    a("s_lshl_b32 s17, s17, 12")
    a("s_add_u32 s17, s17, %d" % LDS_KVX)
    a("v_add_u32 v%d, s17, v%d" % (G_T + 2, V_L16))
    a("v_add_u32 v%d, %d, v%d" % (G_T + 3, LDS_KVX, V_L16))
    a("s_mul_i32 s37, s%d, 0x1000" % S_LAYER)
    a("s_add_u32 s37, s37, 0x%x" % (OFF_FLAGS + FL_KV))
    a("s_lshl_b32 s17, s%d, 4" % S_RB)
    a("s_add_u32 s37, s37, s17")
    a("s_lshl_b32 s17, s%d, 2" % S_HQ)
    a("s_add_u32 s37, s37, s17")
    stamp(a, cfg, 8)
    xin_flag_addr(a, 38, False, 0)
    poll(a, cfg, 38, G_T + 6, G_T + 4)
    stamp(a, cfg, 9)
    a("s_cmp_ge_u32 s%d, 4" % S_HQ)
    a("s_cbranch_scc1 L_qkv_stats")
    tK = {}
    for i in range(8):
        blk(a, ar(224 + 4 * i, 4), 23, i, SC)
        tK[i] = a.vt()
    load_stats(a, G_ST, 30, G_T, SC)
    stamp(a, cfg, 1)
    a("s_bitcmp1_b32 s%d, 0" % S_HQ)
    a("s_cbranch_scc1 L_qkv_v1")
    for v in range(2):
        if v:
            a("L_qkv_v%d:" % v)
        for i in range(8):
            a.wait_vm(tK[i])
            x, w = ar(224 + 4 * i, 4), ar(128 + 4 * i, 4)
            c = "0" if i == 0 else vr(G_KVACC, 16)
            if v & 1:
                mf(a, G_KVACC, x, w, c)
            else:
                mf(a, G_KVACC, w, x, c)
        if v < 1:
            a("s_branch L_qkv_kvred")
    a("L_qkv_kvred:")
    stamp(a, cfg, 2)
    a("s_waitcnt vmcnt(0)")
    finish_stats(a, G_ST, V_NMU, V_RSTD)
    for q in range(4):
        a("ds_write_b128 v%d, v[%d:%d] offset:%d" % (G_T + 2, G_KVACC + 4 * q, G_KVACC + 4 * q + 3, q * 1024))
    XS = LDS_KVX + 16384
    a("s_lshl_b32 s17, s%d, 8" % S_W)
    a("s_add_u32 s17, s17, %d" % XS)
    a("v_add_u32 v%d, s17, v%d" % (G_T + 4, G_T + 6))
    a("v_mul_f32 v%d, v%d, v%d" % (G_T + 5, V_NMU, V_RSTD))
    a("ds_write_b32 v%d, v%d" % (G_T + 4, V_RSTD))
    a("ds_write_b32 v%d, v%d offset:128" % (G_T + 4, G_T + 5))
    a("v_add_u32 v%d, s17, v%d" % (G_T + 4, G_T + 1))
    RS = G_ACC + 16
    for g in range(4):
        a("ds_read_b128 v[%d:%d], v%d offset:%d" % (RS + 4 * g, RS + 4 * g + 3, G_T + 4, 32 * g))
        a("ds_read_b128 v[%d:%d], v%d offset:%d" % (RS + 16 + 4 * g, RS + 16 + 4 * g + 3, G_T + 4, 128 + 32 * g))
    def b1_loads():
        cs_q()
        for e in range(8):
            blk(a, ar(64 + 4 * e, 4), SB1, e, SC)
            tB[e] = a.vt()

    def cs_q():
        a("s_lshl_b32 s17, s%d, 7" % S_NT)
        a("s_add_u32 s17, s17, 0x%x" % OFF_CSQ)
        for g in range(4):
            a("buffer_load_dwordx4 v[%d:%d], v%d, s[4:7], s17 offen offset:%d sc1" % (G_CS + 4 * g, G_CS + 4 * g + 3, G_T + 1, 32 * g))
        a("s_add_u32 s17, s17, 4096")
        for g in range(4):
            a("buffer_load_dwordx4 v[%d:%d], v%d, s[4:7], s17 offen offset:%d sc1" % (G_ST + 4 * g, G_ST + 4 * g + 3, G_T + 1, 32 * g))

    tB = {}
    wcheck("a")
    b1_loads()
    a("s_waitcnt lgkmcnt(0)")
    a("s_barrier")
    stamp(a, cfg, 3)
    a("s_cmp_lg_u32 s%d, s36" % S_W)
    a("s_cbranch_scc1 L_qkv_q")
    RD = [G_RED + 16, G_RED + 32, G_ACC]
    for j in range(3):
        for q in range(4):
            a("ds_read_b128 v[%d:%d], v%d offset:%d" % (RD[j] + 4 * q, RD[j] + 4 * q + 3, G_T + 3, j * 4096 + q * 1024))
    for j in range(3):
        a("s_waitcnt lgkmcnt(%d)" % (8 - 4 * j))
        for e in range(16):
            a("v_add_f32 v%d, v%d, v%d" % (G_KVACC + e, G_KVACC + e, RD[j] + e))
    a("s_lshl_b32 s17, s%d, 10" % S_RT)
    a("s_add_u32 s34, s33, s17")
    a("s_bitcmp1_b32 s%d, 0" % S_HQ)
    a("s_cbranch_scc1 L_qkv_vfin")
    PK = G_RED + 16
    for e in range(8):
        a("v_fmac_f32 v%d, v%d, v%d" % (G_KVACC + 8 + e, V_NMU, CK + e))
        a("v_mul_f32 v%d, v%d, v%d" % (G_KVACC + 8 + e, V_RSTD, G_KVACC + 8 + e))
    pack8(a, PK, G_KVACC + 8)
    a("buffer_store_dwordx4 v[%d:%d], v%d, s[4:7], s34 offen %s" % (PK, PK + 3, V_L16, SC))
    a("v_mov_b32 v%d, 0" % (PK + 4))
    for r in range(4):
        a("v_dot2_f32_bf16 v%d, v%d, v%d, v%d" % (PK + 4, PK + r, PK + r, PK + 4))
    xhalf_sum(a, PK + 4, PK + 5)
    for d in ("row_shr:1", "row_shr:2", "row_shr:4", "row_shr:8"):
        a("v_max_f32_dpp v%d, v%d, v%d %s row_mask:0xf bank_mask:0xf" % (PK + 4, PK + 4, PK + 4, d))
    a("v_max_f32_dpp v%d, v%d, v%d row_bcast:15 row_mask:0xa bank_mask:0xf" % (PK + 4, PK + 4, PK + 4))
    a("s_lshl_b32 s18, s%d, 2" % S_RT)
    a("s_add_u32 s18, s18, s33")
    a("s_add_u32 s18, s18, 0x20000")
    a("s_mov_b32 exec_lo, 0x80000000\ns_mov_b32 exec_hi, 0x0")
    a("buffer_store_dword v%d, v%d, s[4:7], s18 offen %s" % (PK + 4, V_ZERO, SC))
    a("s_mov_b64 exec, -1")
    a("s_branch L_qkv_kvdone")
    a("L_qkv_vfin:")
    a("v_lshlrev_b32 v%d, 4, v%d" % (G_T + 4, V_R31))
    a("v_lshl_add_u32 v%d, v%d, 8, v%d" % (G_T + 4, V_H, G_T + 4))
    a("s_add_u32 s34, s34, 0x10000")
    for e in range(16):
        a("v_mul_f32 v%d, v%d, v%d" % (G_KVACC + e, RS + e, G_KVACC + e))
        a("v_fmac_f32 v%d, v%d, v%d" % (G_KVACC + e, RS + 16 + e, G_T + 7))
    pack8(a, G_ACC, G_KVACC)
    pack8(a, G_ACC + 4, G_KVACC + 8)
    a("s_mov_b32 exec_lo, 0xffff\ns_mov_b32 exec_hi, 0xffff")
    a("buffer_store_dwordx4 v[%d:%d], v%d, s[4:7], s34 offen %s" % (G_ACC, G_ACC + 3, G_T + 4, SC))
    a("buffer_store_dwordx4 v[%d:%d], v%d, s[4:7], s34 offen offset:512 %s" % (G_ACC + 4, G_ACC + 7, G_T + 4, SC))
    a("s_mov_b64 exec, -1")
    a("L_qkv_kvdone:")
    stamp(a, cfg, 5)
    a("v_lshlrev_b32 v%d, 9, v%d" % (G_T + 4, V_LANE))
    a("s_waitcnt vmcnt(0)")
    a("s_mov_b64 exec, 0xff")
    a("buffer_store_dword v%d, v%d, s[4:7], s37 offen %s" % (V_TAG, G_T + 4, SC))
    a("s_mov_b64 exec, -1")
    a("s_branch L_qkv_q")
    a("L_qkv_stats:")
    load_stats(a, G_ST, 30, G_T, SC)
    a("s_waitcnt vmcnt(0)")
    finish_stats(a, G_ST, V_NMU, V_RSTD)
    wcheck("b")
    b1_loads()
    a("L_qkv_q:")
    stamp(a, cfg, 10)
    gemm64_core(a, dict(cfg, stamps=cfg.get('stamps') and 2), 8, lambda i: ar(160 + 4 * i, 4), lambda i: ar(192 + 4 * i, 4), lambda e: ar(64 + 4 * e, 4),
                lambda e: blk(a, ar(64 + 4 * e, 4), SB1 if e < 8 else SB0, e % 8, SC), 16, pre_tickets=tB, ramp=12,
                side=[g[0] for g in SU.deferred_store_groups(sys.modules[__name__])], side_from=99, side_n=1)
    a("v_mul_f32 v%d, %s, v%d" % (G_T, fl(QSCALE), V_RSTD))
    for e in range(16):
        a("v_fmac_f32 v%d, v%d, v%d" % (G_ACC + e, V_NMU, G_CS + e))
        a("v_fmac_f32 v%d, v%d, v%d" % (G_ACC + e, V_NMU, G_ST + e))
        a("v_mul_f32 v%d, v%d, v%d" % (G_ACC + e, G_T, G_ACC + e))
    pack8(a, G_Q, G_ACC)
    pack8(a, G_Q + 4, G_ACC + 8)
    if cfg.get("store_q"):
        a("s_lshl_b32 s17, s%d, 15" % S_RT)
        a("s_lshl_b32 s18, s%d, 11" % S_NT)
        a("s_add_u32 s17, s17, s18")
        a("s_add_u32 s17, s17, 0x%x" % OFF_Q)
        a("buffer_store_dwordx4 v[%d:%d], v%d, s[4:7], s17 offen" % (G_Q, G_Q + 3, V_L16))
        a("buffer_store_dwordx4 v[%d:%d], v%d, s[4:7], s17 offen offset:1024" % (G_Q + 4, G_Q + 7, V_L16))
    stamp(a, cfg, 11)


A_C = [24, 40]
A_O = [56, 72]
A_S = [88, 104]
A_P = [120, 124, 128, 132]
A_KF = [136, 140]
A_VF = [[144, 148], [152, 156]]
A_VK, A_VV, A_VINC = 160, 161, 162
A_T = 164
LDS_V = 65536
LDS_ONES = 131072
LDS_ATT_FLAG = LDS_ONES + 5120
UNR = 4


EARLY = 4
W2ORD = [7 * mm + tl for tl in range(7) for mm in range(4)]
W2POS = {k: p for p, k in enumerate(W2ORD)}


def w2load(a, idx, s0, s1):
    i = W2ORD[idx >> 1]
    blk(a, w2reg(idx & 1, i), s1 if idx & 1 else s0, i)


def w2reg(s, i):
    idx = 2 * W2POS[i] + s
    if idx < 32:
        return ar(128 + 4 * idx, 4)
    if idx < 46:
        return vr(W2V + 4 * (idx - 32), 4)
    if idx < 54:
        return vr(136 + 4 * (idx - 46), 4)
    return vr(190 + 4 * (idx - 54), 4)


SLOT13 = [0, 2, 1, 3, 0, 2, 1]


def dma13(a, i, part=None):
    slot = SLOT13[i]
    for hh in range(2):
        a("s_add_u32 m0, s%d, %d" % (S_WL, slot * 32768 + hh * 4096))
        a("s_add_u32 s29, s%d, %d" % (S_W13, i * 32768 + hh * 4096))
        for q in range(4):
            a("buffer_load_dwordx4 v%d, s[4:7], s29 offen offset:%d sc1 lds" % (V_L16, q * 1024))


def dma_lines(i):
    b = Asm()
    dma13(b, i)
    return [l.strip() for l in b.lines]


def phase_att(a, cfg):
    Q = [G_Q, G_Q + 4]
    SA0, SA1, SW0, SW1 = 24, 25, 26, 27
    a("v_mov_b32 v%d, 0x3f803f80" % (A_T + 4))
    if cfg.get("zpad", 1):
        a("v_and_b32 v%d, 2, v0" % (A_T + 5))
        a("v_cmp_eq_u32 vcc, 0, v%d" % (A_T + 5))
        a("v_cndmask_b32 v%d, v%d, v%d, vcc" % (A_T + 4, V_ZERO, A_T + 4))
    for r in range(1, 4):
        a("v_mov_b32 v%d, v%d" % (A_T + 4 + r, A_T + 4))
    a("v_lshlrev_b32 v%d, 4, v0" % (A_T + 2))
    a("v_add_u32 v%d, %d, v%d" % (A_T + 2, LDS_ONES, A_T + 2))
    a("ds_write_b128 v%d, v[%d:%d]" % (A_T + 2, A_T + 4, A_T + 7))
    a("ds_write_b128 v%d, v[%d:%d] offset:1024" % (A_T + 2, A_T + 4, A_T + 7))
    a("v_and_b32 v%d, 15, v%d" % (A_T + 2, V_LANE))
    a("v_lshlrev_b32 v%d, 4, v%d" % (A_T + 2, A_T + 2))
    a("v_lshl_add_u32 v%d, v%d, 8, v%d" % (A_T + 2, V_H, A_T + 2))
    a("v_add_u32 v%d, %d, v%d" % (A_VV, LDS_V, A_T + 2))
    a("v_add_u32 v%d, -20, v%d" % (A_T + 3, V_R31))
    a("v_cmp_gt_u32 vcc, 8, v%d" % (A_T + 3))
    a("v_mov_b32 v%d, %d" % (A_T + 2, LDS_ONES))
    a("v_mov_b32 v%d, %d" % (A_T + 3, LDS_ONES + 64))
    a("v_cndmask_b32 v%d, v%d, v%d, vcc" % (A_T + 2, A_T + 2, A_T + 3))
    if cfg.get("zpad", 1):
        a("v_and_b32 v%d, 27, v%d" % (A_T + 3, V_R31))
        a("v_cmp_ne_u32 vcc, 16, v%d" % (A_T + 3))
        a("v_add_u32 v%d, 32, v%d" % (A_T + 3, A_T + 2))
        a("v_cndmask_b32 v%d, v%d, v%d, vcc" % (A_T + 2, A_T + 2, A_T + 3))
    a("v_cmp_le_u32 vcc, 16, v%d" % V_R31)
    a("v_mov_b32 v%d, %d" % (A_VINC, UNR * 1024))
    a("v_cndmask_b32 v%d, v%d, v%d, vcc" % (A_VV, A_VV, A_T + 2))
    a("v_cndmask_b32 v%d, v%d, v%d, vcc" % (A_VINC, A_VINC, V_ZERO))
    for t in range(2):
        n = A_T + 8 + t
        a("v_mov_b32 v%d, 0" % n)
        for r in range(4):
            a("v_dot2_f32_bf16 v%d, v%d, v%d, v%d" % (n, Q[t] + r, Q[t] + r, n))
    for t in range(2):
        xhalf_sum(a, A_T + 8 + t, A_T + 10)
    a_addr(a, SA0, SA1, OFF_WO, 32, 8)
    a("s_mul_i32 s%d, s%d, %d" % (S_W13, S_M, 7 * 32768))
    a("s_lshl_b32 s%d, s%d, 13" % (S_WL, S_W))
    a("s_add_u32 s%d, s%d, s%d" % (S_W13, S_W13, S_WL))
    a("s_add_u32 s%d, s%d, 0x%x" % (S_W13, S_W13, OFF_W13))
    a_addr(a, SW0, SW1, OFF_W2, 112, 28)
    a("s_lshl_b32 s20, s%d, 10" % S_W)
    a("s_add_u32 s21, s33, s20")
    a("s_add_u32 s22, s21, 0x10000")
    a("s_add_u32 s23, s20, %d" % LDS_V)
    a("s_mul_i32 s38, s%d, 0x1000" % S_LAYER)
    a("s_add_u32 s38, s38, 0x%x" % (OFF_FLAGS + FL_KV))
    a("s_and_b32 s17, s2, 7")
    a("s_lshl_b32 s17, s17, 9")
    a("s_add_u32 s38, s38, s17")
    a("s_lshl_b32 s58, s2, 2")
    a("s_add_u32 s58, s58, 0x%x" % OFF_FLW)
    a("s_or_b32 s17, s%d, s%d" % (S_W, S_LAYER))
    a("s_cmp_lg_u32 s17, 0")
    a("s_cselect_b32 s58, 0xf0000000, s58")
    a("s_and_b32 s59, s2, 7")
    a("s_lshl_b32 s59, s59, 10")
    a("s_add_u32 s59, s59, 0x%x" % OFF_FLW)
    a("v_lshlrev_b32 v%d, 10, v%d" % (A_T + 16, V_LANE))

    stamp(a, cfg, 1)
    a("v_lshlrev_b32 v%d, 3, v%d" % (A_T + 14, V_LANE))
    a("s_cmp_lg_u32 s%d, 0" % S_W)
    a("s_cbranch_scc1 L_att_nopoll")
    poll(a, cfg, 38, A_T + 14, A_T + 12, wide=True, sleep=cfg.get("kv_sleep", 2))
    a("L_att_nopoll:")
    a("s_waitcnt vmcnt(0)")
    a("s_barrier")
    a("s_mov_b64 exec, 0xff")
    a("buffer_store_dword v%d, v%d, s[4:7], s58 offen %s" % (V_TAG, A_T + 16, SC))
    a("s_mov_b64 exec, -1")
    a("s_mov_b32 s%d, 0xf0000000" % SU.S_DST)
    stamp(a, cfg, 2)
    a("s_add_u32 s17, s33, 0x20000")
    a("buffer_load_dword v%d, v%d, s[4:7], s17 offen %s" % (A_T + 1, V_L4, SC))
    t_kn = a.vt()
    def kvdma(g):
        a("s_add_u32 m0, s20, %d" % (g * 4096))
        a("s_add_u32 s17, s21, %d" % (g * 4096))
        a("buffer_load_dwordx4 v%d, s[4:7], s17 offen %s lds" % (V_L16, SC))
        a("s_add_u32 m0, s23, %d" % (g * 4096))
        a("s_add_u32 s17, s22, %d" % (g * 4096))
        a("buffer_load_dwordx4 v%d, s[4:7], s17 offen %s lds" % (V_L16, SC))

    G1 = 6
    for g in range(G1):
        kvdma(g)
        if g == 3:
            t_g3 = a.vt()
            a.wait_vm(t_kn)
            k2 = A_T + 1
            for d in ("row_shr:1", "row_shr:2", "row_shr:4", "row_shr:8"):
                a("v_max_f32_dpp v%d, v%d, v%d %s row_mask:0xf bank_mask:0xf" % (k2, k2, k2, d))
            a("v_max_f32_dpp v%d, v%d, v%d row_bcast:15 row_mask:0xa bank_mask:0xf" % (k2, k2, k2))
            a("v_max_f32_dpp v%d, v%d, v%d row_bcast:31 row_mask:0xc bank_mask:0xf" % (k2, k2, k2))
            a("v_readlane_b32 s18, v%d, 63" % k2)
            for t in range(2):
                n = A_T + 8 + t
                a("v_mul_f32 v%d, s18, v%d" % (n, n))
                a("v_sqrt_f32 v%d, v%d" % (n, n))
            for t in range(2):
                n = A_T + 8 + t
                a("v_mul_f32 v%d, %s, v%d" % (n, fl(-1.001), n))
            a("v_min_f32 v%d, v%d, v%d" % (A_T + 10, A_T + 8, A_T + 9))
            a("v_mov_b32 v%d, %s" % (A_T + 11, fl(-cfg.get("bound_t", BOUND_T))))
            a("v_cmp_nge_f32 vcc, v%d, v%d" % (A_T + 10, A_T + 11))
            a("s_lshl_b32 s19, s%d, 2" % S_W)
            a("s_add_u32 s19, s19, %d" % LDS_ATT_FLAG)
            a("v_mov_b32 v%d, s19" % (A_T + 12))
            a("s_cmp_lg_u64 vcc, 0")
            a("s_cselect_b32 s18, 1, 0")
            a("v_mov_b32 v%d, s18" % (A_T + 11))
            a("ds_write_b32 v%d, v%d" % (A_T + 12, A_T + 11))
            for t in range(2):
                for r in range(16):
                    a("v_mov_b32 v%d, v%d" % (A_C[t] + r, A_T + 8 + t))
    stamp(a, cfg, 3)
    a.wait_vm(t_g3)
    a("s_waitcnt lgkmcnt(0)")
    a("s_barrier")
    stamp(a, cfg, 4)
    a("v_mov_b32 v%d, %d" % (A_T + 12, LDS_ATT_FLAG))
    a("ds_read_b128 v[%d:%d], v%d" % (A_T + 4, A_T + 7, A_T + 12))
    a("ds_read_b128 v[%d:%d], v%d" % (A_KF[0], A_KF[0] + 3, V_L16))
    a("ds_read_b128 v[%d:%d], v%d" % (A_VF[0][0], A_VF[0][0] + 3, A_VV))
    a("ds_read_b128 v[%d:%d], v%d offset:512" % (A_VF[0][1], A_VF[0][1] + 3, A_VV))
    a("ds_read_b128 v[%d:%d], v%d offset:1024" % (A_KF[1], A_KF[1] + 3, V_L16))
    a("s_waitcnt lgkmcnt(4)")
    a("v_or_b32 v%d, v%d, v%d" % (A_T + 4, A_T + 4, A_T + 5))
    a("v_or3_b32 v%d, v%d, v%d, v%d" % (A_T + 4, A_T + 4, A_T + 6, A_T + 7))
    a("v_readfirstlane_b32 s18, v%d" % (A_T + 4))
    a("s_cmp_eq_u32 s18, 0")
    a("s_cbranch_scc1 L_att_fast")
    keep = a.vm_issued
    for g in range(G1, 16):
        kvdma(g)
    a.vm_issued = keep
    a("s_waitcnt vmcnt(0)")
    a("s_barrier")
    a("v_mov_b32 v%d, 0xff800000" % (A_T + 8))
    a("v_mov_b32 v%d, 0xff800000" % (A_T + 9))
    a("v_mov_b32 v%d, v%d" % (A_T + 12, V_L16))
    a("s_mov_b32 s19, 64")
    a("L_att_pre:")
    a("ds_read_b128 v[%d:%d], v%d" % (A_P[0], A_P[0] + 3, A_T + 12))
    a("v_add_u32 v%d, 1024, v%d" % (A_T + 12, A_T + 12))
    a("s_waitcnt lgkmcnt(0)")
    for t in range(2):
        mf(a, A_S[t], vr(A_P[0], 4), vr(Q[t], 4), "0")
    for t in range(2):
        for r in range(0, 16, 2):
            a("v_max3_f32 v%d, v%d, v%d, v%d" % (A_T + 8 + t, A_S[t] + r, A_S[t] + r + 1, A_T + 8 + t))
    a("s_sub_u32 s19, s19, 1")
    a("s_cmp_lg_u32 s19, 0")
    a("s_cbranch_scc1 L_att_pre")
    for t in range(2):
        n = A_T + 8 + t
        a("v_mov_b32 v%d, v%d" % (A_T + 10, n))
        a("v_permlane32_swap_b32 v%d, v%d" % (n, A_T + 10))
        a("v_max_f32 v%d, v%d, v%d" % (n, n, A_T + 10))
        a("v_sub_f32 v%d, 0, v%d" % (n, n))
        for r in range(16):
            a("v_mov_b32 v%d, v%d" % (A_C[t] + r, n))
    a("L_att_fast:")
    a("s_waitcnt lgkmcnt(0)")

    def m4(d, x, y, c):
        mf(a, d, vr(x, 4), vr(y, 4), vr(c, 16))

    def ex(r):
        a("v_exp_f32 v%d, v%d" % (r, r))

    def cv(d, s):
        a("v_cvt_pk_bf16_f32 v%d, v%d, v%d" % (d, s, s + 1))

    m4(A_S[0], A_KF[0], Q[0], A_C[0])
    a("s_nop 7")

    def lines_of(fn):
        b = Asm()
        fn(b)
        return [l.strip() for l in b.lines]

    def groups(lines):
        out, cur = [], []
        for x in lines:
            cur.append(x)
            if x.startswith("buffer_"):
                out.append(cur)
                cur = []
        assert not cur
        return out

    def kvl(g):
        return ["s_add_u32 m0, s20, %d" % (g * 4096), "s_add_u32 s17, s21, %d" % (g * 4096),
                "buffer_load_dwordx4 v%d, s[4:7], s17 offen %s lds" % (V_L16, SC),
                "s_add_u32 m0, s23, %d" % (g * 4096), "s_add_u32 s17, s22, %d" % (g * 4096),
                "buffer_load_dwordx4 v%d, s[4:7], s17 offen %s lds" % (V_L16, SC)]

    q_kv = []
    for g in range(G1, 16):
        q_kv += [(x, g) for x in groups(kvl(g))]
    q_w = []
    for i in range(8):
        q_w += groups(lines_of(lambda b: blk(b, ar(4 * i, 4), SA0, i)))
        q_w += groups(lines_of(lambda b: blk(b, ar(32 + 4 * i, 4), SA1, i)))
    for idx in range(46):
        q_w += groups(lines_of(lambda b: w2load(b, idx, SW0, SW1)))
    q_t = [["s_add_u32 s17, s49, %d" % (q * 4096), "buffer_load_dword v%d, v%d, s[4:7], s17 offen sc1" % (A_T + 3, A_T + 2)] for q in range(5)]
    if not cfg.get("touch13", 1):
        q_t = []
    q_d = groups(dma_lines(0) + dma_lines(1))
    a("s_mul_i32 s49, s%d, %d" % (S_M, 7 * 32768))
    a("s_and_b32 s18, s%d, 1" % S_RG)
    a("s_mul_i32 s18, s18, %d" % 81920)
    a("s_add_u32 s49, s49, s18")
    a("s_mul_i32 s18, s%d, %d" % (S_W, 20480))
    a("s_add_u32 s49, s49, s18")
    a("s_add_u32 s49, s49, 0x%x" % (OFF_W13 + 65536))
    a("v_lshlrev_b32 v%d, 6, v%d" % (A_T + 2, V_LANE))
    tg = {}
    U_PROBE, U_CHK = cfg.get("u_probe", 21), cfg.get("u_chk", 24)
    PB = A_T + 12
    def slot(u):
        grp, g = None, None
        if q_kv:
            grp, g = q_kv.pop(0)
        elif u == U_PROBE:
            a("buffer_load_dwordx4 v[%d:%d], v%d, s[4:7], s59 offen %s" % (PB, PB + 3, V_L16, SC))
            tg["probe"] = a.vt()
        elif u == U_CHK:
            a.wait_vm(tg["probe"])
            a("L_att_wchk:")
            a("v_cmp_ne_u32 vcc, v%d, v%d" % (V_TAG, PB))
            for r in range(1, 4):
                a("v_cmp_ne_u32 s[18:19], v%d, v%d" % (V_TAG, PB + r))
                a("s_or_b64 vcc, vcc, s[18:19]")
            a("s_cmp_eq_u64 vcc, 0")
            a("s_cbranch_scc1 L_att_wok")
            if cfg.get("spin_limit"):
                a("s_sub_u32 s46, s46, 1")
                a("s_cbranch_scc1 L_att_wok")
            keep = a.vm_issued
            a("s_sleep 4")
            a("buffer_load_dwordx4 v[%d:%d], v%d, s[4:7], s59 offen %s" % (PB, PB + 3, V_L16, SC))
            a("s_waitcnt vmcnt(0)")
            a("s_branch L_att_wchk")
            a.vm_issued = keep
            a("L_att_wok:")
        elif u < U_CHK:
            pass
        elif u >= 68 and q_d:
            grp = q_d.pop(0)
        elif q_t and u % 8 == 1:
            grp = q_t.pop(0)
        elif q_w:
            grp = q_w.pop(0)
        elif q_t:
            grp = q_t.pop(0)
        if grp:
            for x in grp:
                a(x)
            if g is not None:
                tg[g] = a.vt()

    NU = 128
    BAR = {16: 9, 36: 15}
    for u in range(NU):
        j, t = u >> 1, u & 1
        nj, nt = (u + 1) >> 1, (u + 1) & 1
        pj, pt = (u - 1) >> 1, (u - 1) & 1
        jj = j % UNR
        sb, nsb = A_S[u % 2], A_S[(u + 1) % 2]
        plo, phi = A_P[(u % 2) * 2], A_P[(u % 2) * 2 + 1]
        pphi = A_P[((u - 1) % 2) * 2 + 1]
        if u + 1 < NU:
            m4(nsb, A_KF[nj % 2], Q[nt], A_C[nt])
        if t == 0 and j + 2 < 64:
            a("ds_read_b128 v[%d:%d], v%d offset:%d" % (A_KF[j % 2], A_KF[j % 2] + 3, V_L16, (j + 2) * 1024))
        if t == 1 and u > U_CHK and cfg.get('slot3', 0):
            slot(u)
        for r in range(0, 4):
            ex(sb + r)
        if u > 0:
            m4(A_O[pt], A_VF[pj % 2][1], pphi, A_O[pt])
        if t == 0 and j + 1 < 64:
            off = (jj + 1) * 1024
            a("ds_read_b128 v[%d:%d], v%d offset:%d" % (A_VF[(j + 1) % 2][0], A_VF[(j + 1) % 2][0] + 3, A_VV, off))
            a("ds_read_b128 v[%d:%d], v%d offset:%d" % (A_VF[(j + 1) % 2][1], A_VF[(j + 1) % 2][1] + 3, A_VV, off + 512))
        if t == 1:
            slot(u)
        for r in range(4, 9):
            ex(sb + r)
        for r in range(0, 4):
            cv(plo + r, sb + 2 * r)
        for r in range(9, 12):
            ex(sb + r)
        m4(A_O[t], A_VF[j % 2][0], plo, A_O[t]) if u > 1 else mf(a, A_O[t], vr(A_VF[j % 2][0], 4), vr(plo, 4), "0")
        if t == 1:
            a("s_waitcnt lgkmcnt(0)")
            if (j + 3) in BAR:
                g = BAR[j + 3]
                if g is not None:
                    a.wait_vm(tg[g])
                a("s_barrier")
                if j + 3 == 16:
                    stamp(a, cfg, 6)
        else:
            slot(u)
        for r in range(12, 16):
            ex(sb + r)
        if t == 1 and jj == UNR - 1:
            a("v_add_u32 v%d, v%d, v%d" % (A_VV, A_VINC, A_VV))
        for r in range(4, 8):
            cv(phi + r - 4, sb + 2 * r)
    assert not (q_kv or q_w or q_t or q_d), (len(q_kv), len(q_w), len(q_t), len(q_d))
    units = [(63, 1)]
    U = 128
    a("L_att_done:")
    stamp(a, cfg, 7)
    lj, lt = units[-1]
    m4(A_O[lt], A_VF[lj % 2][1], A_P[((U - 1) % 2) * 2 + 1], A_O[lt])
    layer_off(a, 34, OFF_O, X_STRIDE)
    a("s_lshl_b32 s18, s%d, 15" % S_RT)
    a("s_add_u32 s34, s34, s18")
    a("s_lshl_b32 s18, s%d, 11" % S_NT)
    a("s_add_u32 s34, s34, s18")
    for t in range(2):
        a("v_rcp_f32 v%d, v%d" % (A_T, A_O[t] + 8))
        for r in range(8):
            a("v_mul_f32 v%d, v%d, v%d" % (A_O[t] + r, A_T, A_O[t] + r))
        pack8(a, A_P[t], A_O[t])
        st4(a, A_P[t], V_L16, 34, t * 1024)
    flag_addr(a, S_FO, FL_O, S_RB, 7, S_HQ)
    publish(a, S_FO, 34)
    stamp(a, cfg, 8)


def phase_wo(a, cfg):
    SB0, SB1, SX = 26, 27, 28
    a("s_barrier")
    if not cfg.get("pf_att", 1):
        for i in range(8):
            blk(a, ar(4 * i, 4), 24, i)
            blk(a, ar(32 + 4 * i, 4), 25, i)
    dma13(a, 2)
    layer_off(a, SX, OFF_O, X_STRIDE)
    b_addr(a, SB0, SB1, SX, 32, 8)
    reduce_addr(a, LDS_R1)
    out_addr(a, 1)
    flag_addr(a, 38, FL_O, S_RB, 7)
    a("s_lshl_b32 s17, s%d, 5" % S_W)
    a("s_add_u32 s38, s38, s17")
    a("v_and_b32 v%d, 28, v%d" % (G_T + 5, V_L4))
    flag_addr(a, S_FX1, FL_X1, S_RG, 8, S_M)
    stamp(a, cfg, 8)
    poll(a, cfg, 38, G_T + 5, G_T + 4)
    stamp(a, cfg, 9)
    gemm64_core(a, cfg, 8, lambda i: ar(4 * i, 4), lambda i: ar(32 + 4 * i, 4), lambda e: ar(64 + 4 * e, 4),
                lambda e: blk(a, ar(64 + 4 * e, 4), SB1 if e < 8 else SB0, e % 8, SC), 16, ramp=cfg.get("ramp1", 8), resid=True)
    res_epilogue(a, cfg, 1, None)
    stamp(a, cfg, 10)
    publish(a, S_FX1, 34)
    stamp(a, cfg, 11)


F_ACC = [24, 40, 56, 72]
NACC = 4
F_W = 88
F_CS = 120
F_H = 128
F_ST = 136
F_T = 168
F_LA = [184, 185]
F_NMU, F_C1, F_RS2, F_CSA, F_LG = 186, 187, 188, 189, 198


def phase_ffn1(a, cfg):
    SX, SH = 24, 27
    a("s_barrier")
    dma13(a, 3)
    a("s_mul_i32 s29, s%d, %d" % (S_M, 7 * 1024))
    a("s_lshl_b32 s17, s%d, 11" % S_W)
    a("s_add_u32 s29, s29, s17")
    a("s_add_u32 m0, s17, %d" % LDS_CS)
    a("s_add_u32 s29, s29, 0x%x" % OFF_CSX)
    a("buffer_load_dwordx4 v%d, s[4:7], s29 offen sc1 lds" % V_L16)
    a("buffer_load_dwordx4 v%d, s[4:7], s29 offen offset:1024 sc1 lds" % V_L16)
    t_w = a.vt()
    a("s_lshl_b32 s30, s%d, 2" % S_RG)
    a("s_add_u32 s30, s30, s%d" % S_W)
    layer_off(a, SX, OFF_X, X_STRIDE, 2, 1)
    a("s_lshl_b32 s17, s30, 15")
    a("s_add_u32 s%d, s%d, s17" % (SX, SX))
    a("s_add_u32 s25, s%d, %d" % (SX, 28 * 1024))
    layer_off(a, 26, OFF_STAT, STAT_STRIDE, 2, 1)
    a("s_lshl_b32 s18, s30, 12")
    a("s_add_u32 s26, s26, s18")
    layer_off(a, SH, OFF_H, H_STRIDE)
    a("s_mul_i32 s17, s30, %d" % (112 * 1024))
    a("s_add_u32 s%d, s%d, s17" % (SH, SH))
    a("s_mul_i32 s17, s%d, %d" % (S_M, 7 * 1024))
    a("s_add_u32 s%d, s%d, s17" % (SH, SH))
    a("v_mov_b32 v%d, v%d" % (F_LA[0], V_L16))
    a("v_add_u32 v%d, 65536, v%d" % (F_LA[1], V_L16))
    a("v_add_u32 v%d, %d, v%d" % (F_CSA, LDS_CS, V_L16))
    a_addr(a, 53, 54, OFF_W2, 112, 28)
    flag_addr(a, 38, FL_X1, S_RG, 8)
    a("s_lshr_b32 s17, s%d, 1" % S_W)
    a("s_lshl_b32 s17, s17, 7")
    a("s_add_u32 s38, s38, s17")
    a("s_and_b32 s17, s%d, 1" % S_W)
    a("s_lshl_b32 s17, s17, 2")
    a("s_add_u32 s38, s38, s17")
    lane_pat(a, F_T + 2, 15, 0, 3)
    flag_addr(a, S_FH, FL_H, S_RG, 9, S_M, per_layer=0x2000)
    stamp(a, cfg, 1)
    poll(a, cfg, 38, F_T + 2, F_T)
    stamp(a, cfg, 2)
    a("s_barrier")
    tX = {}

    def xload(i):
        if i < 28:
            blk(a, ar(4 * i, 4), SX, i, SC)
        else:
            blk(a, ar(4 * i, 4), 25, i - 28, SC)
        tX[i] = a.vt()

    XW = cfg.get("xwin", 10)
    for i in range(XW):
        xload(i)

    def wread(tile, ks, ring):
        slot = SLOT13[tile]
        if ks == 32:
            a("ds_read_b128 v[%d:%d], v%d offset:%d" % (F_W + 4 * ring, F_W + 4 * ring + 3, F_CSA, tile * 1024))
            return
        a("ds_read_b128 v[%d:%d], v%d offset:%d" % (F_W + 4 * ring, F_W + 4 * ring + 3, F_LA[slot >> 1], (slot & 1) * 32768 + ks * 1024))

    def epi(tile):
        acc, cs = F_ACC[tile % NACC], F_CS
        hp = F_H + 4 * (tile % 2)
        out = []
        for e in range(8):
            out.append("v_fma_f32 v%d, v%d, v%d, v%d" % (F_T + 8 + e, F_C1, acc + e, F_LG))
        for e in range(8):
            out.append("v_exp_f32 v%d, v%d" % (F_T + 8 + e, F_T + 8 + e))
            out.append("v_mul_f32 v%d, v%d, v%d" % (acc + e, acc + e, acc + 8 + e))
            if e:
                out.append("v_add_f32 v%d, v%d, v%d" % (F_T + 7 + e, F_RS2, F_T + 7 + e))
        out.append("v_add_f32 v%d, v%d, v%d" % (F_T + 15, F_RS2, F_T + 15))
        for e in range(8):
            out.append("v_rcp_f32 v%d, v%d" % (F_T + 8 + e, F_T + 8 + e))
            if e:
                out.append("v_mul_f32 v%d, v%d, v%d" % (acc + e - 1, F_T + 7 + e, acc + e - 1))
        out.append("v_mul_f32 v%d, v%d, v%d" % (acc + 7, F_T + 15, acc + 7))
        for i in range(4):
            out.append("v_cvt_pk_bf16_f32 v%d, v%d, v%d" % (hp + i, acc + 2 * i, acc + 2 * i + 1))
        out.append("buffer_store_dwordx4 v[%d:%d], v%d, s[4:7], s%d offen offset:%d %s" % (hp, hp + 3, V_OFF[tile // 4], SH, (tile % 4) * 1024, SC))
        if DBL[0]:
            out.append("buffer_store_dwordx4 v[%d:%d], v%d, s[4:7], s%d offen offset:%d" % (hp, hp + 3, V_OFF[tile // 4], SH, (tile % 4) * 1024))
        return out

    G0 = cfg.get("g0", 2)
    steps = []
    for ks in range(33):
        for tl in range(G0):
            steps.append((tl, ks))
    for tile in range(G0, 7):
        for ks in range(33):
            steps.append((tile, ks))
    N = len(steps)
    PF = cfg.get('pf', 6)
    lt = {}
    first_of, last_of = {}, {}
    for n, (tile, ks) in enumerate(steps):
        first_of.setdefault(tile, n)
        last_of[tile] = n
    dma_q = []
    fence_t = {}

    def do_read(n):
        tile, ks = steps[n]
        if n == first_of[tile] and tile >= 4:
            assert tile in fence_t and not any(q[0] == tile for q in dma_q), tile
            a.wait_vm(fence_t[tile])
            a("s_barrier")
        wread(tile, ks, n % 8)
        lt[n] = a.lt()

    cs_t = 0
    for n in range(PF):
        do_read(n)
    pending = []
    nx = XW
    nst, st_t, st_n, early_done = 0, {}, {}, False
    for n, (tile, ks) in enumerate(steps):
        if tile >= G0 and ks == 0:
            stamp(a, cfg, 1 + tile)
        if tile == 0 and ks < 32:
            a.wait_vm(tX[ks])
        if n % 2 == 0:
            a.wait_lg(lt[min(n + 1, N - 1)])
            lg_done = lt[min(n + 1, N - 1)]
        acc = F_ACC[tile % NACC]
        mf(a, acc, vr(F_W + 4 * (n % 8), 4), ar(4 * ks, 4) if ks < 32 else vr(F_CS, 4), "0" if ks == 0 else vr(acc, 16))
        if tile < G0 and nx < 32:
            xload(nx)
            nx += 1
            if nx == 32:
                load_stats(a, F_ST, 26, F_T, SC)
                t_st = a.vt()
        if n + PF < N:
            do_read(n + PF)
        if n == last_of[G0 - 1] + 2:
            a("s_barrier")
            for tl in range(4, 4 + min(G0, 3)):
                dma_q += [(tl, x) for x in dma_lines(tl)]
        for old in range(G0, 3):
            if n == last_of[old] + 2:
                a("s_barrier")
                dma_q += [(old + 4, x) for x in dma_lines(old + 4)]
                if old == 2:
                    b = Asm()
                    for idx in range(46, 56):
                        w2load(b, idx, 53, 54)
                    dma_q += [(99, l.strip()) for l in b.lines]
        if dma_q and n % cfg.get("dma_every", 3) == 0:
            while dma_q:
                tl, x = dma_q.pop(0)
                a(x)
                if x.startswith("buffer_load"):
                    fence_t[tl] = a.vt()
                    break
        if n == last_of[G0 - 1] - G0 - 2:
            a.wait_vm(t_st)
            finish_stats(a, F_ST, F_NMU, F_RS2)
            a("v_mul_f32 v%d, %s, v%d" % (F_C1, fl(-LOG2E), F_RS2))
            a("v_mov_b32 v%d, v%d" % (F_RS2, F_ST + 1))
            a("v_log_f32 v%d, v%d" % (F_LG, F_ST + 1))
            split3(a, F_NMU, F_CS + 4)
            hi, mi, lo = F_CS + 4, F_CS + 5, F_CS + 6
            a("v_lshrrev_b32 v%d, 16, v%d" % (F_CS + 7, hi))
            a("v_or_b32 v%d, v%d, v%d" % (F_CS, F_CS + 7, mi))
            a("v_or_b32 v%d, v%d, v%d" % (F_CS + 1, F_CS + 7, lo))
            a("v_mov_b32 v%d, v%d" % (F_CS + 2, F_CS))
            a("v_mov_b32 v%d, 0" % (F_CS + 3))
        for tl in range(0, 6):
            if n == max(last_of[tl], last_of[G0 - 1]) + 3:
                pending += epi(tl)
        cost = 0
        lim = cfg.get("epi_cost", 12)
        while pending:
            x = pending[0]
            if x == "CSWAIT":
                pending.pop(0)
                if cs_t > lg_done:
                    a.wait_lg(cs_t)
                    cost += 4
                continue
            cx = 8 if x.split()[0] in TRANS else (8 if x.startswith("buffer_") else 4)
            if cost + cx > lim:
                break
            pending.pop(0)
            if x.startswith("buffer_store") and nst == EARLY:
                assert not dma_q
                a("s_waitcnt vmcnt(0)")
                a("s_mov_b64 exec, 1")
                a("buffer_store_dword v%d, v%d, s[4:7], s%d offen offset:%d %s" % (V_TAG, V_ZERO, S_FH, 0x100, SC))
                touch_lines(a, SH, 8 * EARLY)
                a("s_mov_b64 exec, -1")
                early_done = True
            a(x)
            cost += cx
            if x.startswith("ds_read"):
                cs_t = a.lt()
            if x.startswith("buffer_store"):
                nst += 1
                st_t[nst - 1] = a.vt()
                st_n[nst - 1] = n
    assert early_done
    assert not dma_q
    stamp(a, cfg, 8)
    for x in pending + epi(6):
        if x == "CSWAIT":
            a.wait_lg(cs_t)
            continue
        a(x)
        if x.startswith("ds_read"):
            cs_t = a.lt()
    stamp(a, cfg, 9)
    a("s_add_u32 s17, s%d, %d" % (SH, EARLY * 1024))
    publish(a, S_FH, 17, 8 * (7 - EARLY))
    stamp(a, cfg, 10)


def phase_ffn2(a, cfg):
    SB0, SB1, SX = 26, 27, 28
    SW0, SW1 = 24, 25
    side = []
    if cfg.get("touchq", 0):
        a("s_lshl_b32 s49, s%d, 16" % S_HQ)
        a("s_and_b32 s18, s%d, 3" % S_RB)
        a("s_lshl_b32 s18, s18, 14")
        a("s_add_u32 s49, s49, s18")
        a("s_lshl_b32 s18, s%d, 12" % S_W)
        a("s_add_u32 s49, s49, s18")
        a("s_add_u32 s49, s49, 0x%x" % OFF_WQ)
        a("s_cmp_eq_u32 s%d, 1" % S_LAYER)
        a("s_cselect_b32 s49, 0xf0000000, s49")
        a("v_lshlrev_b32 v%d, 6, v%d" % (G_T + 2, V_LANE))
        side.append("buffer_load_dword v%d, v%d, s[4:7], s49 offen" % (G_T + 3, G_T + 2))
    layer_off(a, SX, OFF_H, H_STRIDE)
    b_addr(a, SB0, SB1, SX, 112, 28)
    reduce_addr(a, LDS_R1)
    out_addr(a, 2)
    flag_addr(a, 38, FL_H, S_RG, 9, per_layer=0x2000)
    a("s_lshl_b32 s17, s%d, 6" % S_W)
    a("s_add_u32 s38, s38, s17")
    a("s_and_b32 s17, s%d, 1" % S_RB)
    a("s_lshl_b32 s17, s17, 3")
    a("s_add_u32 s38, s38, s17")
    lane_pat(a, G_T + 6, 7, 0, 2)
    xin_flag_addr(a, 39, True, 1)
    stamp(a, cfg, 8)
    poll(a, cfg, 38, G_T + 6, G_T + 4, imm=0x100)
    stamp(a, cfg, 9)
    R = 32

    def hreg(e):
        return ar(4 * (e % R), 4)

    early = [7 * mm + tl for tl in range(EARLY) for mm in range(4)]
    late = [7 * mm + tl for tl in range(EARLY, 7) for mm in range(4)]
    order = [(1, i) for i in early] + [(0, i) for i in early] + [(1, i) for i in late] + [(0, i) for i in late]
    tp = {}

    def probe():
        a("buffer_load_dword v%d, v%d, s[4:7], s38 offen %s" % (G_T + 5, G_T + 6, SC))
        tp[0] = a.vt()

    def check():
        a.wait_vm(tp[0])
        a("v_cmp_ne_u32 vcc, v%d, v%d" % (V_TAG, G_T + 5))
        a("s_cbranch_vccz L_ffn2_go")
        keep = a.vm_issued
        poll(a, cfg, 38, G_T + 6, G_T + 4)
        a.vm_issued = keep
        a("L_ffn2_go:")
        stamp(a, cfg, 3)

    pp = cfg.get("probe_at", 16)
    gemm64_core(a, cfg, 28, lambda i: w2reg(0, i), lambda i: w2reg(1, i), hreg,
                lambda e: blk(a, hreg(e), SB1 if order[e][0] else SB0, order[e][1], SC), R, order=order,
                gate=(2 * len(early), probe, check, pp, pp), side=side, side_from=cfg.get('w2_side', 6), side_n=1,
                side2=wq_lines(), side2_from=cfg.get('wq_from', 40), ramp=cfg.get('ramp2', 10), resid=True)
    res_epilogue(a, cfg, 2, "L_final")
    stamp(a, cfg, 10)
    publish(a, 39, 34)
    stamp(a, cfg, 11)


def final_store(a):
    a("v_permlane32_swap_b32 v%d, v%d" % (V_RES, V_RES + 2))
    a("v_permlane32_swap_b32 v%d, v%d" % (V_RES + 1, V_RES + 3))
    a("v_permlane32_swap_b32 v%d, v%d" % (V_RES + 4, V_RES + 6))
    a("v_permlane32_swap_b32 v%d, v%d" % (V_RES + 5, V_RES + 7))
    a("s_lshl_b32 s17, s%d, 15" % S_RT)
    a("s_lshl_b32 s18, s%d, 6" % S_NT)
    a("s_add_u32 s17, s17, s18")
    a("v_lshlrev_b32 v%d, 10, v%d" % (G_T + 2, V_R31))
    a("v_lshl_add_u32 v%d, v%d, 4, v%d" % (G_T + 2, V_H, G_T + 2))
    a("buffer_store_dwordx4 v[%d:%d], v%d, s[8:11], s17 offen" % (V_RES, V_RES + 3, G_T + 2))
    a("buffer_store_dwordx4 v[%d:%d], v%d, s[8:11], s17 offen offset:32" % (V_RES + 4, V_RES + 7, G_T + 2))


def st_begin(a, cfg):
    kern.stamp_init(a, cfg)


def st_end(a, cfg, k):
    if not cfg.get("stamps"):
        return
    stamp(a, cfg, NSTAMP - 1)
    a("s_memrealtime s[62:63]")
    a("s_waitcnt lgkmcnt(0)")
    a("s_mov_b32 s79, s62")
    a("s_mul_i32 s60, s3, 5\ns_add_u32 s60, s60, %d" % k)
    a("s_lshl_b32 s60, s60, 16")
    a("s_lshl_b32 s61, s2, 8")
    a("s_add_u32 s60, s60, s61")
    a("s_lshl_b32 s61, s12, 6")
    a("s_add_u32 s60, s60, s61")
    a("s_add_u32 s60, s60, 0x%x" % kern.OFF_STAMP)
    for i in range(16):
        a("v_writelane_b32 v199, s%d, %d" % (64 + i, i))
    a("s_mov_b32 exec_lo, 0xffff\ns_mov_b32 exec_hi, 0x0")
    a("buffer_store_dword v199, v%d, s[4:7], s60 offen" % V_L4)
    a("s_mov_b64 exec, -1")


def dbgt(a, cfg, k, last=False):
    if not cfg.get("dbgtime"):
        return
    L = a.newlabel("L_dt")
    a("s_cmp_lg_u32 s2, %d" % (cfg["dbgtime"] - 1))
    a("s_cbranch_scc1 %s" % L)
    a("s_memrealtime s[64:65]")
    a("s_memtime s[66:67]")
    a("s_mov_b32 s68, s98\ns_mov_b32 s69, s99\ns_mov_b32 s70, 256\ns_mov_b32 s71, 0x00020000")
    a("s_mul_i32 s72, s3, 20")
    a("s_waitcnt lgkmcnt(0)")
    a("s_sub_u32 s64, s64, s60")
    a("s_sub_u32 s66, s66, s62")
    a("v_mov_b32 v199, s64")
    a("buffer_store_dword v199, v%d, s[68:71], s72 offen offset:%d" % (V_ZERO, 4 + 4 * k))
    if last:
        a("v_mov_b32 v198, s66")
        a("buffer_store_dword v198, v%d, s[68:71], 0 offen offset:%d" % (V_ZERO, 4 * 13))
    a(L + ":")


KNAME = kern.NAME + "_kernel"


def build(cfg):
    rep = []
    DBL[0] = cfg.get("dbl", 0)
    TOUCH[0] = cfg.get("ptouch", 0)
    COMPACT[0] = cfg.get("compact", 1)
    global OFF_WKV
    if COMPACT[0]:
        OFF_WKV = SU.OFF_WKV = C_WKV
    a = Asm()
    a("s_load_dwordx16 s[80:95], s[0:1], 0")
    a("s_load_dwordx2 s[96:97], s[0:1], 64")
    a("s_load_dwordx2 s[98:99], s[0:1], 80")
    kern.common_prologue(a, True)
    a("v_mov_b32 v%d, 0" % V_ZERO)
    a("v_mov_b32 v199, 0")
    a("v_lshlrev_b32 v%d, 7, v%d" % (V_L128, V_LANE))
    a("v_lshlrev_b32 v%d, 2, v%d" % (V_L4, V_LANE))
    a("s_lshr_b32 s17, s%d, 1" % S_W)
    a("s_and_b32 s18, s%d, 1" % S_W)
    a("s_lshl_b32 s%d, s%d, 1" % (S_NT, S_HQ))
    a("s_add_u32 s%d, s%d, s17" % (S_NT, S_NT))
    a("s_lshl_b32 s%d, s%d, 1" % (S_RT, S_RB))
    a("s_add_u32 s%d, s%d, s18" % (S_RT, S_RT))
    a("s_mov_b32 s%d, 0" % S_LAYER)
    if cfg.get("spin_limit"):
        a("s_mov_b32 s46, %d" % cfg["spin_limit"])
    if cfg.get("dbgtime"):
        a("s_memrealtime s[60:61]")
        a("s_memtime s[62:63]")
        a("s_waitcnt lgkmcnt(0)")
    st_begin(a, cfg)
    SU.startup(a, cfg, sys.modules[__name__])
    dbgt(a, cfg, 0)
    a_addr(a, S_Q0, S_Q1, OFF_WQ, 32, 8)
    a("s_lshl_b32 s%d, s%d, 13" % (S_KVW, S_W))
    a("s_add_u32 s%d, s%d, 0x%x" % (S_KVW, S_KVW, OFF_WKV))
    a("s_and_b32 s17, s2, 7")
    a("s_lshl_b32 s17, s17, 15")
    a("s_add_u32 s%d, s%d, s17" % (S_KVW, S_KVW))
    a("s_cmp_ge_u32 s%d, 4" % S_HQ)
    a("s_cselect_b32 s%d, s%d, s%d" % (S_KVW, S_Q0, S_KVW))
    st_end(a, cfg, 0)
    a("L_layer:")
    for k, ph in enumerate((phase_qkv, phase_att, phase_wo, phase_ffn1, phase_ffn2)):
        st_begin(a, cfg)
        ph(a, cfg)
        st_end(a, cfg, k + 1)
        dbgt(a, cfg, k + 1)
    a("s_mov_b32 s%d, 1" % S_LAYER)
    a("s_branch L_layer")
    a("L_final:")
    final_store(a)
    st_end(a, cfg, 5)
    dbgt(a, cfg, 5, True)
    a("L_exit:")
    a("s_endpgm")
    main_lines, _ = fix_hazards_fast(kern.uniq(a.lines, "main"), rep)

    pf = cfg.get("pfk", 0)
    if pf:
        b = Asm()
        b("s_cmp_ge_u32 s2, 256")
        b("s_cbranch_scc1 L_pf_end")
        b("s_load_dwordx16 s[16:31], s[0:1], 0")
        b("s_load_dwordx2 s[32:33], s[0:1], 64")
        b("s_getpc_b64 s[4:5]")
        b("L_pf_pc:")
        b("s_add_u32 s4, s4, L_code_begin-L_pf_pc")
        b("s_addc_u32 s5, s5, -1")
        b("s_lshr_b32 s6, s2, 3")
        b("s_and_b32 s7, s2, 7")
        b("s_lshl_b32 s8, s6, 11")
        b("v_lshlrev_b32 v1, 3, v0")
        b("v_add_u32 v1, s8, v1")
        b("v_min_u32 v1, L_code_end-L_code_begin-8, v1")
        b("global_load_dwordx2 v[2:3], v1, s[4:5]")
        if pf >= 2:
            b("v_lshlrev_b32 v1, 6, v0")
            b("s_lshl_b32 s8, s6, 14")
            b("v_add_u32 v4, s8, v1")
            b("s_lshl_b32 s9, s7, 18")
            b("s_lshl_b32 s10, s6, 13")
            b("s_add_u32 s9, s9, s10")
            b("v_lshlrev_b32 v5, 5, v0")
            b("v_add_u32 v5, s9, v5")
            b("s_mul_i32 s11, s2, 7168")
            b("v_mul_u32_u24 v6, 28, v0")
            b("v_add_u32 v6, s11, v6")
            b("s_lshl_b32 s11, s2, 11")
            b("v_lshlrev_b32 v7, 3, v0")
            b("v_add_u32 v7, s11, v7")
            b("s_waitcnt lgkmcnt(0)")
            b("global_load_dword v8, v4, s[18:19]")
            b("global_load_dword v9, v5, s[16:17]")
            b("global_load_dword v10, v1, s[20:21]")
            b("global_load_dword v11, v1, s[22:23]")
            b("global_load_dword v12, v6, s[28:29]")
            b("global_load_dword v13, v6, s[30:31]")
            b("global_load_dword v14, v6, s[32:33]")
            b("global_load_dword v15, v7, s[24:25]")
        b("L_pf_end:")
        b("s_endpgm")
        pfl, _ = fix_hazards_fast(["L_code_begin:", "L_code_end:"] + b.lines, rep)
        main_lines2 = [".p2align 8", "pf_kernel:"] + pfl[2:]
        s = "; @launch kernel=pf_kernel grid=(256,1,1) block=(256,1,1) lds=0\n"
        s += "; @launch kernel=%s grid=(256,1,1) block=(256,1,1) lds=%d\n" % (KNAME, 160 * 1024)
    else:
        main_lines2 = []
        s = "; @launch grid=(256,1,1) block=(256,1,1) lds=%d\n" % (160 * 1024)
    s += '.amdgcn_target "amdgcn-amd-amdhsa--gfx950"\n.text\n.globl %s\n.p2align 8\n.type %s,@function\n' % (KNAME, KNAME)
    s += "\n".join(["L_code_begin:", KNAME + ":"] + main_lines + ["L_code_end:"] + main_lines2) + "\n"
    s += '.section .rodata,"a"\n.p2align 6\n' + kernel_desc(KNAME, 512, 256, 102)
    if pf:
        s += ".p2align 6\n" + kernel_desc("pf_kernel", 16, 16, 40)
    return s, rep


if __name__ == "__main__":
    cfg = dict(code_prefetch=True)
    for kv in sys.argv[2:]:
        k, v = kv.split("=")
        cfg[k] = eval(v)
    s, rep = build(cfg)
    open(sys.argv[1], "w").write(s)
    print("auto nops:", sum(r[0] for r in rep), "sites", len(rep), "bytes of source", len(s))
    if cfg.get("verbose"):
        for r in rep:
            print(r)
```

```python
from asmlib import *
from layout import *
from kern import split3, stamp, S_W, S_RB, S_HQ, V_L16, V_LANE, V_R31, V_H

LROW = 192
LST = 96 * 1024
LCS = LST + 49152
PX, PWQ, PWK, PWV, PWO, PW1, PW3, PW2, PDBG = 80, 82, 84, 86, 88, 92, 94, 96, 98
D = 200
V_SO, V_SO2 = 232, 233
S_DST = 55
S_TASK = 56
FL_WQ = 0xE000
WKV_COPY = 0x8000


def startup(a, cfg, K):
    SC = K.SC
    RES = K.V_RES
    t0, t1, t2, t3, t4, t5 = 24, 25, 26, 27, 28, 29
    ONES, CS = 32, 33
    R = 36
    QR = 88
    u0, u1, u2, u3, u4, u5 = 48, 49, 50, 51, 52, 53
    a("s_mov_b32 s36, s%d" % PDBG)
    a("s_mov_b32 s37, s%d" % (PDBG + 1))
    a("s_mov_b32 s38, 256")
    a("s_mov_b32 s39, 0x00020000")
    a("s_or_b32 s17, s2, s%d" % S_W)
    a("s_cmp_lg_u32 s17, 0")
    a("s_cbranch_scc1 L_s_notag")
    a("s_memrealtime s[18:19]")
    a("s_waitcnt lgkmcnt(0)")
    a("s_lshl_b32 s18, s18, 4")
    a("s_or_b32 s18, s18, 1")
    a("v_mov_b32 v%d, s18" % t0)
    a("s_mov_b64 exec, 3")
    a("buffer_store_dword v%d, v%d, s[36:39], 0 offen %s" % (t0, K.V_L128, SC))
    a("s_mov_b64 exec, -1")
    a("L_s_notag:")
    a("s_mov_b32 s40, s%d" % PX)
    a("s_mov_b32 s41, s%d" % (PX + 1))
    a("s_mov_b32 s42, %d" % (2048 * 512 * 2))
    a("s_mov_b32 s43, 0x00020000")
    a("s_lshl_b32 s17, s%d, 15" % K.S_RT)
    a("s_lshl_b32 s18, s%d, 6" % K.S_NT)
    a("s_add_u32 s17, s17, s18")
    a("v_lshlrev_b32 v%d, 10, v%d" % (t0, V_R31))
    a("v_lshl_add_u32 v%d, v%d, 4, v%d" % (t0, V_H, t0))
    a("buffer_load_dwordx4 v[%d:%d], v%d, s[40:43], s17 offen" % (RES, RES + 3, t0))
    a("buffer_load_dwordx4 v[%d:%d], v%d, s[40:43], s17 offen offset:32" % (RES + 4, RES + 7, t0))
    a("s_bitcmp1_b32 s%d, 0" % S_HQ)
    a("s_cselect_b32 s40, s%d, s%d" % (PWV, PWK))
    a("s_cselect_b32 s41, s%d, s%d" % (PWV + 1, PWK + 1))
    a("s_mov_b32 s42, %d" % (512 * 16 * 2))
    a("s_lshl_b32 s17, s%d, 12" % S_W)
    for p in range(4):
        a("buffer_load_dwordx4 v[%d:%d], v%d, s[40:43], s17 offen offset:%d" % (QR + 4 * p, QR + 4 * p + 3, V_L16, 1024 * p))
    a("s_mov_b32 s40, s%d\ns_mov_b32 s41, s%d\ns_mov_b32 s42, %d" % (PWQ, PWQ + 1, 512 * 512 * 2))
    a("v_lshrrev_b32 v%d, 3, v%d" % (u0, V_LANE))
    a("v_and_b32 v%d, 7, v%d" % (u1, V_LANE))
    a("v_lshlrev_b32 v%d, 10, v%d" % (u2, u0))
    a("v_lshl_add_u32 v%d, v%d, 4, v%d" % (u2, u1, u2))
    a("s_lshl_b32 s17, s%d, 17" % S_W)
    a("s_lshl_b32 s18, s%d, 7" % S_HQ)
    a("s_add_u32 s17, s17, s18")
    for p in range(16):
        a("buffer_load_dwordx4 v[%d:%d], v%d, s[40:43], s17 offen" % (QR + 16 + 4 * p, QR + 16 + 4 * p + 3, u2))
        if p < 15:
            a("s_add_u32 s17, s17, 8192")
    a("s_mul_i32 s18, s%d, %d" % (S_W, 128 * LROW))
    a("v_mul_u32_u24 v%d, %d, v%d" % (u2, LROW, u0))
    a("v_lshl_add_u32 v%d, v%d, 4, v%d" % (u2, u1, u2))
    a("v_add_u32 v%d, s18, v%d" % (u2, u2))
    a("v_lshrrev_b32 v%d, 1, v%d" % (u0, V_LANE))
    a("v_and_b32 v%d, 1, v%d" % (u1, V_LANE))
    a("v_mul_u32_u24 v%d, %d, v%d" % (u3, LROW, u0))
    a("v_lshl_add_u32 v%d, v%d, 4, v%d" % (u3, u1, u3))
    a("v_add_u32 v%d, s18, v%d" % (u3, u3))
    a("v_and_b32 v%d, 15, v%d" % (u0, V_LANE))
    a("v_lshrrev_b32 v%d, 2, v%d" % (u1, u0))
    a("v_lshl_add_u32 v%d, v%d, 2, v%d" % (u1, V_H, u1))
    a("v_mul_u32_u24 v%d, %d, v%d" % (u4, LROW, u1))
    a("v_and_b32 v%d, 3, v%d" % (u0, u0))
    a("v_lshl_add_u32 v%d, v%d, 3, v%d" % (u4, u0, u4))
    a("v_add_u32 v%d, s18, v%d" % (u4, u4))
    a("v_bfe_u32 v%d, v%d, 4, 1" % (u0, V_LANE))
    a("v_lshl_add_u32 v%d, v%d, 5, v%d" % (u5, u0, u4))
    a("s_lshr_b32 s18, s%d, 1" % S_W)
    a("s_lshl_b32 s18, s18, 6")
    a("v_add_u32 v%d, s18, v%d" % (u0, u5))
    a("s_xor_b32 s18, s18, 64")
    a("v_add_u32 v%d, s18, v%d" % (u1, u5))
    a("s_lshr_b32 s20, s2, 3")
    a("s_and_b32 s21, s2, 7")
    a("v_lshrrev_b32 v%d, 3, v0" % t1)
    a("v_and_b32 v%d, 7, v0" % t2)
    a("v_mul_u32_u24 v%d, %d, v%d" % (t4, LROW, t1))
    a("v_lshl_add_u32 v%d, v%d, 4, v%d" % (t4, t2, t4))
    a("v_add_u32 v%d, %d, v%d" % (t4, LST, t4))
    a("v_mov_b32 v%d, v%d" % (V_SO, V_L16))
    a("s_mov_b32 s22, 0")
    a("s_mov_b32 s23, 0")
    a("s_mov_b32 s24, 32768")
    a("s_mov_b32 s25, 1024")
    a("s_mov_b32 s42, %d" % (512 * 512 * 2))
    a("s_mov_b32 s%d, 2" % S_TASK)
    a("s_lshr_b32 s26, s20, 3")
    a("s_and_b32 s17, s20, 0x17")
    a("s_cmp_eq_u32 s17, 4")
    a("s_cbranch_scc1 L_s_wkv")
    a("s_cmp_eq_u32 s17, 5")
    a("s_cbranch_scc1 L_s_wq")
    a("s_cmp_gt_u32 s20, 5")
    a("s_cselect_b32 s17, 2, 0")
    a("s_sub_u32 s27, s20, s17")
    a("s_cmp_gt_u32 s20, 13")
    a("s_cselect_b32 s17, 2, 0")
    a("s_sub_u32 s27, s27, s17")
    a("s_lshl_b32 s27, s27, 3")
    a("s_add_u32 s27, s27, s21")
    a("s_and_b32 s26, s27, 1")
    a("s_cmp_lt_u32 s27, 112")
    a("s_cbranch_scc1 L_s_w13")
    a("s_cmp_lt_u32 s27, 168")
    a("s_cbranch_scc1 L_s_w2")
    a("s_cmp_lt_u32 s27, 184")
    a("s_cbranch_scc1 L_s_wo")
    a("s_mov_b32 s%d, 0" % S_TASK)
    a("s_mov_b32 s%d, 0xf0000000" % S_DST)
    a("s_branch L_s_loaded")
    a("L_s_wq:")
    a("s_mov_b32 s%d, 1" % S_TASK)
    a("s_mov_b32 s40, s%d\ns_mov_b32 s41, s%d" % (PWQ, PWQ + 1))
    a("s_mov_b32 s28, s21")
    a("s_mov_b32 s%d, 0x%x" % (S_DST, OFF_WQ))
    a("s_lshl_b32 s23, s28, 11")
    a("s_lshl_b32 s17, s26, 9")
    a("s_add_u32 s23, s23, s17")
    a("s_add_u32 s23, s23, 0x%x" % OFF_CSQX)
    a("s_lshl_b32 s29, s28, 5")
    a("s_lshl_b32 s17, s26, 4")
    a("s_add_u32 s29, s29, s17")
    a("s_add_u32 s29, s29, 0x%x" % (OFF_FLAGS + FL_WQ))
    a("s_branch L_s_qo")
    a("L_s_wo:")
    a("s_mov_b32 s40, s%d\ns_mov_b32 s41, s%d" % (PWO, PWO + 1))
    a("s_sub_u32 s28, s27, 168")
    a("s_lshr_b32 s28, s28, 1")
    a("s_mov_b32 s%d, 0x%x" % (S_DST, OFF_WO))
    a("L_s_qo:")
    a("s_lshl_b32 s30, s26, 18")
    a("s_lshl_b32 s17, s28, 7")
    a("s_add_u32 s30, s30, s17")
    a("s_lshl_b32 s17, s28, 16")
    a("s_add_u32 s%d, s%d, s17" % (S_DST, S_DST))
    a("s_lshl_b32 s17, s26, 14")
    a("s_add_u32 s%d, s%d, s17" % (S_DST, S_DST))
    a("s_branch L_s_go")
    a("L_s_w2:")
    a("s_sub_u32 s27, s27, 112")
    a("s_and_b32 s28, s27, 7")
    a("s_lshr_b32 s27, s27, 3")
    a("s_mov_b32 s40, s%d\ns_mov_b32 s41, s%d\ns_mov_b32 s42, %d" % (PW2, PW2 + 1, 1792 * 512 * 2))
    a("s_lshl_b32 s30, s27, 18")
    a("s_lshl_b32 s17, s28, 7")
    a("s_add_u32 s30, s30, s17")
    a("s_mov_b32 s24, %d" % (112 * 1024))
    a("s_mul_i32 s%d, s28, %d" % (S_DST, 2 * 112 * 1024))
    a("s_lshl_b32 s17, s27, 14")
    a("s_add_u32 s%d, s%d, s17" % (S_DST, S_DST))
    a("s_add_u32 s%d, s%d, 0x%x" % (S_DST, S_DST, OFF_W2))
    a("s_branch L_s_go")
    a("L_s_w13:")
    a("s_bfe_u32 s29, s27, 0x10001")
    a("s_lshr_b32 s28, s27, 2")
    a("s_cmp_eq_u32 s29, 0")
    a("s_cselect_b32 s40, s%d, s%d" % (PW1, PW3))
    a("s_cselect_b32 s41, s%d, s%d" % (PW1 + 1, PW3 + 1))
    a("s_mov_b32 s42, %d" % (512 * 1792 * 2))
    a("s_mov_b32 s25, 3584")
    a("s_mul_i32 s30, s26, %d" % (256 * 3584))
    a("s_lshl_b32 s17, s28, 7")
    a("s_add_u32 s30, s30, s17")
    a("s_mov_b32 s24, 65536")
    a("s_lshl_b32 s%d, s28, 17" % S_DST)
    a("s_lshl_b32 s17, s26, 14")
    a("s_add_u32 s%d, s%d, s17" % (S_DST, S_DST))
    a("s_lshl_b32 s17, s29, 8")
    a("s_add_u32 s%d, s%d, s17" % (S_DST, S_DST))
    a("s_add_u32 s%d, s%d, 0x%x" % (S_DST, S_DST, OFF_W13))
    a("s_lshl_b32 s23, s28, 12")
    a("s_add_u32 s23, s23, s17")
    a("s_lshl_b32 s17, s26, 9")
    a("s_add_u32 s23, s23, s17")
    a("s_add_u32 s23, s23, 0x%x" % OFF_CSX)
    a("v_and_b32 v%d, 15, v%d" % (V_SO, V_LANE))
    a("v_lshlrev_b32 v%d, 4, v%d" % (V_SO, V_SO))
    a("v_lshl_add_u32 v%d, v%d, 9, v%d" % (V_SO, V_H, V_SO))
    a("v_bfe_u32 v%d, v%d, 4, 1" % (t5, V_LANE))
    a("v_lshl_add_u32 v%d, v%d, 15, v%d" % (V_SO, t5, V_SO))
    a("L_s_go:")
    a("v_mul_lo_u32 v%d, v%d, s25" % (t3, t1))
    a("v_lshl_add_u32 v%d, v%d, 4, v%d" % (t3, t2, t3))
    a("s_lshl_b32 s17, s25, 5")
    for p in range(8):
        a("buffer_load_dwordx4 v[%d:%d], v%d, s[40:43], s30 offen" % (D + 4 * p, D + 4 * p + 3, t3))
        if p < 7:
            a("s_add_u32 s30, s30, s17")
    a("s_lshr_b32 s17, s%d, 1" % S_W)
    a("s_and_b32 s18, s%d, 1" % S_W)
    a("s_mul_i32 s19, s17, s24")
    a("s_add_u32 s%d, s%d, s19" % (S_DST, S_DST))
    a("s_lshl_b32 s19, s18, 13")
    a("s_add_u32 s%d, s%d, s19" % (S_DST, S_DST))
    a("s_lshl_b32 s17, s17, 6")
    a("s_mul_i32 s18, s18, %d" % (128 * LROW))
    a("s_add_u32 s33, s17, s18")
    a("v_bfe_u32 v%d, v%d, 4, 1" % (t1, V_LANE))
    a("v_lshlrev_b32 v%d, 5, v%d" % (t1, t1))
    a("s_mov_b32 s30, %d" % (32 * LROW))
    a("s_branch L_s_common")
    a("L_s_wkv:")
    a("s_mov_b32 s%d, 1" % S_TASK)
    a("s_cmp_eq_u32 s26, 0")
    a("s_cselect_b32 s40, s%d, s%d" % (PWV, PWK))
    a("s_cselect_b32 s41, s%d, s%d" % (PWV + 1, PWK + 1))
    a("s_mov_b32 s42, %d" % (512 * 16 * 2))
    a("v_lshrrev_b32 v%d, 1, v0" % t1)
    a("v_and_b32 v%d, 1, v0" % t2)
    a("v_mul_u32_u24 v%d, %d, v%d" % (t4, LROW, t1))
    a("v_lshl_add_u32 v%d, v%d, 4, v%d" % (t4, t2, t4))
    a("v_add_u32 v%d, %d, v%d" % (t4, LST, t4))
    a("v_lshlrev_b32 v%d, 4, v0" % t3)
    a("s_mov_b32 s30, 0")
    for p in range(8):
        a("buffer_load_dwordx4 v[%d:%d], v%d, s[40:43], s30 offen" % (D + 4 * p, D + 4 * p + 3, t3))
        if p < 7:
            a("s_add_u32 s30, s30, 4096")
            a("s_and_b32 s30, s30, 0x3fff")
    a("v_and_b32 v%d, 15, v%d" % (V_SO, V_LANE))
    a("v_lshlrev_b32 v%d, 4, v%d" % (V_SO, V_SO))
    a("v_lshl_add_u32 v%d, v%d, 9, v%d" % (V_SO, V_H, V_SO))
    a("s_mul_i32 s%d, s21, 0x%x" % (S_DST, WKV_COPY))
    a("s_lshl_b32 s17, s%d, 13" % S_W)
    a("s_add_u32 s%d, s%d, s17" % (S_DST, S_DST))
    a("s_lshl_b32 s17, s26, 8")
    a("s_add_u32 s%d, s%d, s17" % (S_DST, S_DST))
    a("s_add_u32 s%d, s%d, 0x%x" % (S_DST, S_DST, OFF_WKV))
    a("s_lshl_b32 s22, s21, 7")
    a("s_lshl_b32 s17, s26, 6")
    a("s_add_u32 s22, s22, s17")
    a("s_add_u32 s22, s22, 0x%x" % OFF_CSKV)
    a("s_lshl_b32 s29, s21, 7")
    a("s_lshl_b32 s17, s26, 4")
    a("s_add_u32 s29, s29, s17")
    a("s_add_u32 s29, s29, 0x%x" % (OFF_FLAGS + FL_WQ + 0x800))
    a("s_lshl_b32 s33, s%d, 5" % S_W)
    a("v_mov_b32 v%d, 0" % t1)
    a("s_mov_b32 s30, 16")
    a("s_mov_b32 s%d, 3" % S_TASK)
    a("L_s_common:")
    a("v_and_b32 v%d, 15, v%d" % (t2, V_LANE))
    a("v_lshrrev_b32 v%d, 2, v%d" % (t3, t2))
    a("v_lshl_add_u32 v%d, v%d, 2, v%d" % (t3, V_H, t3))
    a("v_mul_u32_u24 v%d, %d, v%d" % (t5, LROW, t3))
    a("v_and_b32 v%d, 3, v%d" % (t2, t2))
    a("v_lshl_add_u32 v%d, v%d, 3, v%d" % (t5, t2, t5))
    a("v_add_u32 v%d, v%d, v%d" % (t5, t1, t5))
    a("s_add_u32 s33, s33, %d" % LST)
    a("v_add_u32 v%d, s33, v%d" % (t5, t5))
    a("L_s_loaded:")
    a("v_add_u32 v%d, 4096, v%d" % (V_SO2, V_SO))
    a("s_and_b32 s17, s%d, 1" % S_W)
    a("s_lshl_b32 s59, s17, 7")
    a("buffer_load_dword v%d, v%d, s[36:39], s59 offen %s" % (K.V_TAG, K.V_ZERO, SC))
    a("s_getpc_b64 s[18:19]")
    a("L_s_pc:")
    a("s_add_u32 s18, s18, L_code_begin-L_s_pc")
    a("s_addc_u32 s19, s19, -1")
    a("s_lshl_b32 s17, s20, 11")
    a("v_lshlrev_b32 v%d, 3, v0" % t0)
    a("v_add_u32 v%d, s17, v%d" % (t0, t0))
    a("v_min_u32 v%d, L_code_end-L_code_begin-8, v%d" % (t0, t0))
    a("global_load_dwordx2 v[%d:%d], v%d, s[18:19]" % (34, 35, t0))
    stamp(a, cfg, 1)
    def raw_stage(extra):
        for j in range(20):
            if j % 2 == 0:
                a("s_waitcnt vmcnt(%d)" % (18 - j + extra))
            if j < 4:
                a("ds_write_b128 v%d, v[%d:%d] offset:%d" % (u3, QR + 4 * j, QR + 4 * j + 3, 128 + 32 * LROW * j))
            else:
                a("ds_write_b128 v%d, v[%d:%d] offset:%d" % (u2, QR + 4 * j, QR + 4 * j + 3, 8 * LROW * (j - 4)))

    a("s_cmp_eq_u32 s%d, 0" % S_TASK)
    a("s_cbranch_scc1 L_s_x0")
    a("s_waitcnt vmcnt(30)")
    a("s_branch L_s_x1")
    a("L_s_x0:")
    a("s_waitcnt vmcnt(22)")
    a("L_s_x1:")
    stamp(a, cfg, 2)
    a("v_permlane32_swap_b32 v%d, v%d" % (RES, RES + 2))
    a("v_permlane32_swap_b32 v%d, v%d" % (RES + 1, RES + 3))
    a("v_permlane32_swap_b32 v%d, v%d" % (RES + 4, RES + 6))
    a("v_permlane32_swap_b32 v%d, v%d" % (RES + 5, RES + 7))
    K.out_addr(a, 0)
    K.st4(a, RES, V_L16, 34)
    K.store_x_tail(a)
    K.xin_flag_addr(a, 58, True, 0)
    a("s_cmp_eq_u32 s%d, 0" % S_TASK)
    a("s_cbranch_scc1 L_s_raw0")
    raw_stage(13)
    a("s_branch L_s_raw1")
    a("L_s_raw0:")
    raw_stage(5)
    a("L_s_raw1:")
    a("s_waitcnt lgkmcnt(0)")
    for i in range(8):
        a("ds_read_b64_tr_b16 a[%d:%d], v%d offset:%d" % (128 + 4 * i, 129 + 4 * i, u4, 128 + 16 * LROW * i))
        a("ds_read_b64_tr_b16 a[%d:%d], v%d offset:%d" % (130 + 4 * i, 131 + 4 * i, u4, 128 + 16 * LROW * i + 8 * LROW))
    for j, ua in ((160, u0), (192, u1)):
        for i in range(8):
            a("ds_read_b64_tr_b16 a[%d:%d], v%d offset:%d" % (j + 4 * i, j + 1 + 4 * i, ua, 16 * LROW * i))
            a("ds_read_b64_tr_b16 a[%d:%d], v%d offset:%d" % (j + 2 + 4 * i, j + 3 + 4 * i, ua, 16 * LROW * i + 8 * LROW))
    stamp(a, cfg, 7)
    a("s_cmp_eq_u32 s%d, 0" % S_TASK)
    a("s_cbranch_scc1 L_s_xpub")
    a("s_cmp_eq_u32 s%d, 3" % S_TASK)
    a("s_cbranch_scc1 L_s_kvw")
    for p in range(8):
        a("s_waitcnt vmcnt(%d)" % (12 - p))
        a("ds_write_b128 v%d, v[%d:%d] offset:%d" % (t4, D + 4 * p, D + 4 * p + 3, 32 * LROW * p))
    a("s_branch L_s_xpub")
    a("L_s_kvw:")
    for p in range(4):
        a("s_waitcnt vmcnt(%d)" % (12 - p))
        a("ds_write_b128 v%d, v[%d:%d] offset:%d" % (t4, D + 4 * p, D + 4 * p + 3, 32 * p))
    a("s_waitcnt vmcnt(5)")
    a("L_s_xpub:")
    stamp(a, cfg, 3)

    def xflag(tagn, cnt):
        a("s_waitcnt vmcnt(%d)" % cnt)
        a("L_s_tg%d:" % tagn)
        a("v_cmp_ne_u32 vcc, 0, v%d" % K.V_TAG)
        a("s_cbranch_vccnz L_s_tagok%d" % tagn)
        if cfg.get("spin_limit"):
            a("s_sub_u32 s46, s46, 1")
            a("s_cbranch_scc1 L_s_tagok%d" % tagn)
        a("s_sleep 2")
        a("buffer_load_dword v%d, v%d, s[36:39], s59 offen %s" % (K.V_TAG, K.V_ZERO, SC))
        a("s_waitcnt vmcnt(0)")
        a("s_branch L_s_tg%d" % tagn)
        a("L_s_tagok%d:" % tagn)
        a("s_mov_b64 exec, 1")
        a("buffer_store_dword v%d, v%d, s[4:7], s58 offen %s" % (K.V_TAG, K.V_ZERO, SC))
        a("s_mov_b64 exec, -1")
        stamp(a, cfg, 4)

    a("s_bitcmp1_b32 s%d, 0" % S_TASK)
    a("s_cbranch_scc1 L_s_tr")
    xflag(0, 0)
    a("s_cmp_eq_u32 s%d, 0" % S_TASK)
    a("s_cbranch_scc1 L_s_done")
    a("L_s_tr:")
    a("s_waitcnt lgkmcnt(0)")
    a("s_barrier")
    for i in range(8):
        a("ds_read_b64_tr_b16 v[%d:%d], v%d offset:%d" % (D + 4 * i, D + 4 * i + 1, t5, 16 * LROW * i))
        a("ds_read_b64_tr_b16 v[%d:%d], v%d offset:%d" % (D + 4 * i + 2, D + 4 * i + 3, t5, 16 * LROW * i + 8 * LROW))
    a("s_cmp_eq_u32 s%d, 2" % S_TASK)
    a("s_cbranch_scc1 L_s_nost")
    for i in range(8):
        a("s_waitcnt lgkmcnt(%d)" % min(15, 14 - 2 * i))
        a("buffer_store_dwordx4 v[%d:%d], v%d, s[4:7], s%d offen offset:%d %s" % (D + 4 * i, D + 4 * i + 3, V_SO if i < 4 else V_SO2, S_DST, (i % 4) * 1024, SC))
    a("s_mov_b32 s%d, 0xf0000000" % S_DST)
    a("L_s_nost:")
    a("s_or_b32 s17, s22, s23")
    a("s_cmp_eq_u32 s17, 0")
    a("s_cbranch_scc1 L_s_done")
    a("v_mov_b32 v%d, 0x3f803f80" % ONES)
    a("v_mov_b32 v%d, 0" % CS)
    a("s_waitcnt lgkmcnt(0)")
    for r in range(32):
        a("v_dot2_f32_bf16 v%d, v%d, v%d, v%d" % (CS, D + r, ONES, CS))
    a("v_lshlrev_b32 v%d, 2, v0" % t0)
    a("v_add_u32 v%d, %d, v%d" % (t0, LCS, t0))
    a("ds_write_b32 v%d, v%d" % (t0, CS))
    a("s_waitcnt lgkmcnt(0)")
    a("s_barrier")
    a("s_and_b32 s17, s%d, 2" % S_W)
    a("s_lshl_b32 s17, s17, 8")
    a("s_add_u32 s17, s17, %d" % LCS)
    a("v_lshlrev_b32 v%d, 2, v%d" % (t0, V_R31))
    a("v_add_u32 v%d, s17, v%d" % (t1, t0))
    a("v_add_u32 v%d, %d, v%d" % (t2, LCS, t0))
    for q in range(4):
        a("ds_read_b32 v%d, v%d offset:%d" % (R + q, t1, 128 * q))
    for q in range(8):
        a("ds_read_b32 v%d, v%d offset:%d" % (R + 4 + q, t2, 128 * q))
    a("s_waitcnt lgkmcnt(0)")
    a("v_add_f32 v%d, v%d, v%d" % (R, R, R + 1))
    a("v_add_f32 v%d, v%d, v%d" % (R + 2, R + 2, R + 3))
    a("v_add_f32 v%d, v%d, v%d" % (R, R, R + 2))
    a("s_cmp_lg_u32 s%d, 3" % S_TASK)
    a("s_cbranch_scc1 L_s_csx")
    for q in (4, 2, 1):
        for i in range(q):
            a("v_add_f32 v%d, v%d, v%d" % (R + 4 + i, R + 4 + i, R + 4 + i + q))
    a("s_mov_b64 exec, 0xffff")
    a("buffer_store_dword v%d, v%d, s[4:7], s22 offen %s" % (R + 4, t0, SC))
    a("s_mov_b64 exec, -1")
    a("s_branch L_s_pub")
    a("L_s_csx:")
    split3(a, R, R + 4)
    a("v_lshrrev_b32 v%d, 16, v%d" % (R + 1, R + 4))
    a("v_or_b32 v%d, v%d, v%d" % (R + 8, R + 1, R + 4))
    a("v_lshrrev_b32 v%d, 16, v%d" % (R + 1, R + 5))
    a("v_or_b32 v%d, v%d, v%d" % (R + 9, R + 1, R + 4))
    a("v_lshrrev_b32 v%d, 16, v%d" % (R + 1, R + 6))
    a("v_or_b32 v%d, v%d, v%d" % (R + 10, R + 1, R + 5))
    a("v_mov_b32 v%d, 0" % (R + 11))
    a("v_and_b32 v%d, 15, v%d" % (t0, V_LANE))
    a("v_lshlrev_b32 v%d, 4, v%d" % (t0, t0))
    a("v_bfe_u32 v%d, v%d, 4, 1" % (t1, V_LANE))
    a("s_cmp_eq_u32 s%d, 1" % S_TASK)
    a("s_cselect_b32 s18, 8, 10")
    a("s_cselect_b32 s19, 10, 11")
    a("v_lshlrev_b32 v%d, s18, v%d" % (t1, t1))
    a("v_add_u32 v%d, v%d, v%d" % (t0, t1, t0))
    a("s_lshr_b32 s17, s%d, 1" % S_W)
    a("s_lshl_b32 s17, s17, s19")
    a("s_add_u32 s23, s23, s17")
    a("s_mov_b32 exec_hi, 0")
    a("buffer_store_dwordx4 v[%d:%d], v%d, s[4:7], s23 offen %s" % (R + 8, R + 11, t0, SC))
    a("s_mov_b32 exec_hi, -1")
    a("s_cmp_eq_u32 s%d, 2" % S_TASK)
    a("s_cbranch_scc1 L_s_done")
    a("L_s_pub:")
    a("s_lshl_b32 s17, s%d, 2" % S_W)
    a("s_add_u32 s29, s29, s17")
    xflag(1, 9)
    a("v_lshlrev_b32 v%d, 8, v%d" % (t1, V_LANE))
    a("s_cmp_eq_u32 s%d, 1" % S_TASK)
    a("s_cselect_b32 s17, 0xff, 1")
    a("s_waitcnt vmcnt(0)")
    a("s_mov_b32 exec_hi, 0")
    a("s_mov_b32 exec_lo, s17")
    a("buffer_store_dword v%d, v%d, s[4:7], s29 offen %s" % (K.V_TAG, t1, SC))
    a("s_mov_b64 exec, -1")
    a("L_s_done:")
    a("s_waitcnt lgkmcnt(0)")
    stamp(a, cfg, 5)
    a("s_barrier")
    stamp(a, cfg, 6)


def probe_addr(a, K, v0, v1, sdst):
    a("v_and_b32 v%d, 28, v%d" % (v0, K.V_L4))
    a("v_bfe_u32 v%d, v%d, 3, 1" % (v1, V_LANE))
    a("s_and_b32 s19, s2, 7")
    a("s_lshl_b32 s17, s%d, 5" % S_HQ)
    a("s_lshl_b32 s18, s19, 8")
    a("s_add_u32 s17, s17, s18")
    a("s_lshl_b32 s18, s19, 7")
    a("s_add_u32 s18, s18, 0x800")
    a("s_sub_u32 s18, s18, s17")
    a("v_mul_lo_u32 v%d, v%d, s18" % (v1, v1))
    a("v_add_u32 v%d, v%d, v%d" % (v0, v0, v1))
    a("s_add_u32 s%d, s17, 0x%x" % (sdst, OFF_FLAGS + FL_WQ))


def deferred_store_groups(K):
    return [["buffer_store_dwordx4 v[%d:%d], v%d, s[4:7], s%d offen offset:%d %s" % (D + 4 * i, D + 4 * i + 3, V_SO if i < 4 else V_SO2, S_DST, (i % 4) * 1024, K.SC)]
            for i in range(8)]
```

```python
import sys
from asmlib import *
from layout import *
import kern
import startup as SU
from kern import (split3, fl, MF, S_LAYER, S_W, S_RB, S_HQ, S_RG, S_M, V_L16, V_LANE, V_R31, V_H, V_OFF, xhalf_sum,
                  load_stats, finish_stats, pack8, stamp, kernel_desc, prep, NSTAMP)

SC = "sc1"


COMPACT = [1]
CMAP = {OFF_X: 0x800000, OFF_O: 0xC00000, OFF_H: 0xE00000, OFF_STAT: OFF_STAT}
C_WKV = 0x780000
C_END = 0x1500000


def layer_off(a, sdst, base, stride, mul=1, add=0):
    if COMPACT[0] and base in CMAP:
        a("s_mov_b32 s%d, 0x%x" % (sdst, CMAP[base] + (add & 1) * stride))
    else:
        kern.layer_off(a, sdst, base, stride, mul, add)


def blk(a, dst, sbase, i, sc=SC):
    kern.blk(a, dst, sbase, i, SC)


FL_O = 0x0000
FL_X1 = 0x2000
FL_H = 0x8000
FL_XIN = 0x6000
OFF_FLW = 0x64C000
FL_KV = 0xC000

S_RT, S_NT = 31, 32
S_FO, S_FX1, S_FH = 40, 41, 42
S_W13, S_WL = 47, 48
S_RET = 44
V_RES = 12
V_TAG = 11
V_L4 = 20
V_ZERO = 21
VB = 24

G_ACC = 24
G_RED = 88
G_ST = 136
G_CS = 152
G_T = 168
V_WR = [184, 185, 186]
V_RD = 187
V_NMU, V_RSTD = 188, 189
G_KVACC = 88
G_Q = 190
W2V = 200

LDS_R1 = 96 * 1024
LDS_RQ = 0
LDS_KVX = 49152
LDS_CS = 152 * 1024
LDS_E = 128 * 1024


DBL = [0]
LSC = ["sc1"]
S_LOC = 57
DUAL = [False]
_dl = [0]


def lstore(text):
    lines = text if isinstance(text, list) else [text]
    if not DUAL[0]:
        return [l + " sc1" for l in lines]
    _dl[0] += 1
    n = _dl[0]
    return (["s_cbranch_scc1 L_ls%da ; needs scc" % n] + [l + " sc1" for l in lines] + ["s_branch L_ls%db" % n, "L_ls%da:" % n] +
            ["!" + l for l in lines] + ["L_ls%db:" % n])


def emit_l(a, text):
    out = lstore(text)
    if DUAL[0]:
        a("s_cmp_lg_u32 s%d, 0" % S_LOC)
    for l in out:
        if l.startswith("!"):
            a(l[1:])
        else:
            a(l)


def st4(a, data, voff, soff, imm=0):
    emit_l(a, "buffer_store_dwordx4 v[%d:%d], v%d, s[4:7], s%d offen offset:%d" % (data, data + 3, voff, soff, imm))
    if DBL[0]:
        a("buffer_store_dwordx4 v[%d:%d], v%d, s[4:7], s%d offen offset:%d" % (data, data + 3, voff, soff, imm))


TOUCH = [1]
V_L128 = 23
V_P2 = 199


def touch_lines(a, s_data, nlines, imm=0):
    if not TOUCH[0]:
        return
    a("s_mov_b32 exec_lo, 0x%x" % (((1 << nlines) - 1) & 0xffffffff))
    a("s_mov_b32 exec_hi, 0x%x" % (((1 << nlines) - 1) >> 32))
    a("buffer_load_dword v22, v%d, s[4:7], s%d offen offset:%d %s" % (V_L128, s_data, imm, SC))


def publish(a, s_addr, s_data=None, nlines=16, imm=0):
    a("s_waitcnt vmcnt(0)")
    a("s_mov_b64 exec, 1")
    emit_l(a, "buffer_store_dword v%d, v%d, s[4:7], s%d offen" % (V_TAG, V_ZERO, s_addr))
    if s_data is not None:
        touch_lines(a, s_data, nlines, imm)
    a("s_mov_b64 exec, -1")


def poll(a, cfg, s_addr, voff, vtmp, wide=False, imm=0, sleep=0):
    L = a.newlabel("L_poll")
    if cfg.get("spin_limit"):
        a("s_mov_b32 s46, %d" % cfg["spin_limit"])
    if cfg.get("ppoll", 0) and not wide and not sleep:
        ld = lambda r: a("buffer_load_dword v%d, v%d, s[4:7], s%d offen offset:%d %s" % (r, voff, s_addr, imm, SC))
        ld(vtmp)
        a("s_sleep %d" % cfg.get("ppoll_gap", 2))
        a(L + ":")
        ld(V_P2)
        a("s_waitcnt vmcnt(1)")
        a("v_cmp_ne_u32 vcc, v%d, v%d" % (V_TAG, vtmp))
        a("s_cbranch_vccz %s_out" % L)
        ld(vtmp)
        a("s_waitcnt vmcnt(1)")
        if cfg.get("spin_limit"):
            a("s_sub_u32 s46, s46, 1")
            a("s_cbranch_scc1 %s_out" % L)
        a("v_cmp_ne_u32 vcc, v%d, v%d" % (V_TAG, V_P2))
        a("s_cbranch_vccnz %s" % L)
        a.vm_issued -= 1
        a(L + "_out:")
        return
    a(L + ":")
    if wide:
        a("buffer_load_dwordx2 v[%d:%d], v%d, s[4:7], s%d offen %s" % (vtmp, vtmp + 1, voff, s_addr, SC))
        a("s_waitcnt vmcnt(0)")
        a("v_xor_b32 v%d, v%d, v%d" % (vtmp + 1, V_TAG, vtmp + 1))
        a("v_xor_b32 v%d, v%d, v%d" % (vtmp, vtmp, vtmp + 1))
        a("v_or_b32 v%d, v%d, v%d" % (vtmp, vtmp, vtmp + 1) if False else "v_cmp_ne_u32 s[18:19], 0, v%d" % (vtmp + 1))
        a("v_cndmask_b32 v%d, v%d, v%d, s[18:19]" % (vtmp, vtmp, V_ZERO))
    else:
        a("buffer_load_dword v%d, v%d, s[4:7], s%d offen offset:%d %s" % (vtmp, voff, s_addr, imm, SC))
        a("s_waitcnt vmcnt(0)")
    if cfg.get("spin_limit"):
        a("s_sub_u32 s46, s46, 1")
        a("s_cbranch_scc1 %s_out" % L)
    a("v_cmp_ne_u32 vcc, v%d, v%d" % (V_TAG, vtmp))
    if sleep:
        a("s_cbranch_vccz %s_out" % L)
        a("s_sleep %d" % sleep)
        a("s_branch %s" % L)
    else:
        a("s_cbranch_vccnz %s" % L)
    a(L + "_out:")


def lane_pat(a, vdst, mask, hi_shift, lo_mul):
    a("v_and_b32 v%d, %d, v%d" % (vdst, mask & ~1, V_LANE))
    a("v_lshlrev_b32 v%d, 3, v%d" % (vdst, vdst))
    a("v_and_b32 v%d, 1, v%d" % (vdst + 1, V_LANE))
    a("v_lshl_add_u32 v%d, v%d, %d, v%d" % (vdst, vdst + 1, lo_mul, vdst))


def flag_addr(a, sdst, base, s_grp, grp_shift, s_mem=None, per_layer=0x1000):
    a("s_mul_i32 s%d, s%d, 0x%x" % (sdst, S_LAYER, per_layer))
    a("s_add_u32 s%d, s%d, 0x%x" % (sdst, sdst, OFF_FLAGS + base))
    a("s_lshl_b32 s17, s%d, %d" % (s_grp, grp_shift))
    a("s_add_u32 s%d, s%d, s17" % (sdst, sdst))
    if s_mem is not None:
        a("s_lshl_b32 s17, s%d, 4" % s_mem)
        a("s_add_u32 s%d, s%d, s17" % (sdst, sdst))
        a("s_lshl_b32 s17, s%d, 2" % S_W)
        a("s_add_u32 s%d, s%d, s17" % (sdst, sdst))


def xin_flag_addr(a, sdst, own, layer_add):
    flag_addr(a, sdst, FL_XIN + 0x1000 * layer_add, S_RB, 7, S_HQ if own else None)


def a_addr(a, s_a0, s_a1, offA, ksA, ksw):
    a("s_mul_i32 s20, s%d, %d" % (S_W, ksw * 1024))
    a("s_mul_i32 s%d, s%d, %d" % (s_a0, S_NT, ksA * 1024))
    a("s_add_u32 s%d, s%d, s20" % (s_a0, s_a0))
    a("s_add_u32 s%d, s%d, 0x%x" % (s_a0, s_a0, offA))
    a("s_xor_b32 s21, s%d, 1" % S_NT)
    a("s_mul_i32 s%d, s21, %d" % (s_a1, ksA * 1024))
    a("s_add_u32 s%d, s%d, s20" % (s_a1, s_a1))
    a("s_add_u32 s%d, s%d, 0x%x" % (s_a1, s_a1, offA))


def b_addr(a, s_b0, s_b1, s_base, ksB, ksw):
    a("s_mul_i32 s20, s%d, %d" % (S_W, ksw * 1024))
    a("s_add_u32 s20, s20, s%d" % s_base)
    a("s_mul_i32 s%d, s%d, %d" % (s_b0, S_RT, ksB * 1024))
    a("s_add_u32 s%d, s%d, s20" % (s_b0, s_b0))
    a("s_xor_b32 s21, s%d, 1" % S_RT)
    a("s_mul_i32 s%d, s21, %d" % (s_b1, ksB * 1024))
    a("s_add_u32 s%d, s%d, s20" % (s_b1, s_b1))


def reduce_addr(a, base):
    for j in (1, 2, 3):
        a("s_xor_b32 s17, s%d, %d" % (S_W, j))
        a("s_mul_i32 s17, s17, 12288")
        a("s_add_u32 s17, s17, %d" % (base + (j - 1) * 4096))
        a("v_add_u32 v%d, s17, v%d" % (V_WR[j - 1], V_L16))
    a("s_mul_i32 s17, s%d, 12288" % S_W)
    a("s_add_u32 s17, s17, %d" % base)
    a("v_add_u32 v%d, s17, v%d" % (V_RD, V_L16))


def mf(a, d, x, y, c):
    a("%s v[%d:%d], %s, %s, %s" % (MF, d, d + 15, x, y, c))


def wr_tile(a, j):
    for q in range(4):
        r = G_ACC + 16 * j + 4 * q
        a("ds_write_b128 v%d, v[%d:%d] offset:%d" % (V_WR[j - 1], r, r + 3, q * 1024))


def rd_tile(a, j, dst):
    for q in range(4):
        a("ds_read_b128 v[%d:%d], v%d offset:%d" % (dst + 4 * q, dst + 4 * q + 3, V_RD, (j - 1) * 4096 + q * 1024))


def gemm64_core(a, cfg, n, A0, A1, Breg, issueB, window, pre_tickets=None, order=None, side=None, side_from=0, side_n=1,
                gate=None, side2=None, side2_from=0, ramp=None, resid=False, extra0=None):
    if order is None:
        order = [(1, i) for i in range(n)] + [(0, i) for i in range(n)]
    M = len(order)
    side = list(side or [])
    t = dict(pre_tickets or {})
    nxt = len(t)
    gpos = gate[0] if gate else M + 1
    gated = [False]

    def try_issue(limit):
        nonlocal nxt
        while nxt < M and nxt < limit:
            if nxt >= gpos and not gated[0]:
                return
            issueB(nxt)
            t[nxt] = a.vt()
            nxt += 1
            if gate and nxt == gate[3]:
                gate[1]()

    try_issue(ramp or window)
    if cfg.get("stamps") != 2:
        stamp(a, cfg, 1)
    last1 = max(e for e, (st, i) in enumerate(order) if st == 1)
    wr1 = last1 + 2
    bar1 = min(M - 2, last1 + 1 + max(2, (M - last1) // 2))
    seen = set()
    for e, (st, i) in enumerate(order):
        if gate and not gated[0] and e == gate[4]:
            assert not side
            gate[2]()
            gated[0] = True
            try_issue(e + window)
        a.wait_vm(t[e])
        if e == 0 and cfg.get("stamps") != 2:
            stamp(a, cfg, 2)
        first = "0" if st not in seen else None
        seen.add(st)
        if st == 1:
            mf(a, G_ACC + 16, A0(i), Breg(e), first or vr(G_ACC + 16, 16))
            if cfg.get("ldmid", 0) and window < 30:
                try_issue(min(e + 1 + window, nxt + 1))
            mf(a, G_ACC + 48, A1(i), Breg(e), first or vr(G_ACC + 48, 16))
        else:
            mf(a, G_ACC + 32, A1(i), Breg(e), first or vr(G_ACC + 32, 16))
            if cfg.get("ldmid", 0) and window < 30:
                try_issue(min(e + 1 + window, nxt + 1))
            mf(a, G_ACC, A0(i), Breg(e), first or vr(G_ACC, 16))
        try_issue(min(e + 1 + window, nxt + 2))
        if e >= side_from:
            k = 0
            while side and k < side_n:
                x = side.pop(0)
                a(x)
                k += x.startswith("buffer_")
        if side2 and e >= side2_from:
            for _ in range(cfg.get("side2_n", 1)):
                if side2:
                    a(side2.pop(0))
        if e == wr1:
            wr_tile(a, 1)
            wr_tile(a, 3)
        if e == bar1:
            a("s_waitcnt lgkmcnt(0)")
            a("s_barrier")
            rd_tile(a, 1, G_RED)
            rd_tile(a, 3, G_RED + 16)
    assert wr1 <= bar1 < M and not side2
    if extra0:
        mf(a, G_ACC, extra0[0], extra0[1], vr(G_ACC, 16))
    stamp(a, cfg, 4)
    a("s_waitcnt lgkmcnt(0)")
    for e in range(6):
        a("v_add_f32 v%d, v%d, v%d" % (G_RED + e, G_RED + e, G_RED + 16 + e))
    wr_tile(a, 2)
    for e in range(6, 16):
        a("v_add_f32 v%d, v%d, v%d" % (G_RED + e, G_RED + e, G_RED + 16 + e))
    for e in range(16):
        a("v_add_f32 v%d, v%d, v%d" % (G_ACC + e, G_ACC + e, G_RED + e))
    if resid:
        for i in range(8):
            a("v_lshlrev_b32 v%d, 16, v%d" % (G_T, V_RES + i))
            a("v_and_b32 v%d, 0xffff0000, v%d" % (G_T + 1, V_RES + i))
            a("v_add_f32 v%d, v%d, v%d" % (G_ACC + 2 * i, G_ACC + 2 * i, G_T))
            a("v_add_f32 v%d, v%d, v%d" % (G_ACC + 2 * i + 1, G_ACC + 2 * i + 1, G_T + 1))
    for x in side:
        a(x)
    a("s_waitcnt lgkmcnt(0)")
    a("s_barrier")
    stamp(a, cfg, 6)
    rd_tile(a, 2, G_RED + 32)
    for q in range(4):
        a("s_waitcnt lgkmcnt(%d)" % (3 - q))
        for e in range(4):
            a("v_add_f32 v%d, v%d, v%d" % (G_ACC + 4 * q + e, G_ACC + 4 * q + e, G_RED + 32 + 4 * q + e))
    stamp(a, cfg, 7)


def bextra(a, nmu, d):
    split3(a, nmu, d + 4)
    a("v_lshrrev_b32 v%d, 16, v%d" % (d + 7, d + 4))
    a("v_or_b32 v%d, v%d, v%d" % (d, d + 7, d + 5))
    a("v_or_b32 v%d, v%d, v%d" % (d + 1, d + 7, d + 6))
    a("v_mov_b32 v%d, v%d" % (d + 2, d))
    a("v_mov_b32 v%d, 0" % (d + 3))


def res_epilogue(a, cfg, xout_add, final):
    for i in range(8):
        a("v_cvt_pk_bf16_f32 v%d, v%d, v%d" % (V_RES + i, G_ACC + 2 * i, G_ACC + 2 * i + 1))
        if i == 3 and final is None:
            st4(a, V_RES, V_L16, 34)
    if final is not None:
        a("s_cmp_eq_u32 s%d, 1" % S_LAYER)
        a("s_cbranch_scc1 %s" % final)
        st4(a, V_RES, V_L16, 34)
    store_x_tail(a)


def store_x_tail(a):
    st4(a, V_RES + 4, V_L16, 34, 1024)
    a("v_mov_b32 v%d, 0x3f803f80" % G_T)
    a("v_mov_b32 v%d, 0" % (G_T + 12))
    a("v_mov_b32 v%d, 0" % (G_T + 13))
    for r in range(8):
        a("v_dot2_f32_bf16 v%d, v%d, v%d, v%d" % (G_T + 12, V_RES + r, G_T, G_T + 12))
        a("v_dot2_f32_bf16 v%d, v%d, v%d, v%d" % (G_T + 13, V_RES + r, V_RES + r, G_T + 13))
    a("v_lshlrev_b32 v%d, 3, v%d" % (G_T + 2, V_R31))
    a("s_nop 1")
    a("v_mov_b32 v%d, v%d" % (G_T + 14, G_T + 12))
    a("v_mov_b32 v%d, v%d" % (G_T + 15, G_T + 13))
    a("s_nop 0")
    a("v_permlane32_swap_b32 v%d, v%d" % (G_T + 12, G_T + 14))
    a("v_permlane32_swap_b32 v%d, v%d" % (G_T + 13, G_T + 15))
    a("v_add_f32 v%d, v%d, v%d" % (G_T + 12, G_T + 12, G_T + 14))
    a("v_add_f32 v%d, v%d, v%d" % (G_T + 13, G_T + 13, G_T + 15))
    a("s_mov_b32 exec_lo, 0xffffffff\ns_mov_b32 exec_hi, 0x0")
    emit_l(a, "buffer_store_dwordx2 v[%d:%d], v%d, s[4:7], s35 offen" % (G_T + 12, G_T + 13, G_T + 2))
    a("s_mov_b64 exec, -1")


def out_addr(a, xout_add):
    layer_off(a, 34, OFF_X, X_STRIDE, 2, xout_add)
    a("s_lshl_b32 s18, s%d, 15" % S_RT)
    a("s_add_u32 s34, s34, s18")
    a("s_lshl_b32 s18, s%d, 11" % S_NT)
    a("s_add_u32 s34, s34, s18")
    layer_off(a, 35, OFF_STAT, STAT_STRIDE, 2, xout_add)
    a("s_lshl_b32 s18, s%d, 12" % S_RT)
    a("s_add_u32 s35, s35, s18")
    a("s_lshl_b32 s18, s%d, 8" % S_NT)
    a("s_add_u32 s35, s35, s18")


S_Q0, S_Q1, S_KVW = 50, 51, 52


def wq_lines():
    b = Asm()
    for i in range(8):
        blk(b, ar(160 + 4 * i, 4), S_Q0, i)
        blk(b, ar(192 + 4 * i, 4), S_Q1, i)
    return [l.strip() for l in b.lines]


def phase_qkv(a, cfg):
    SA0, SA1, SB0, SB1, SX, SKV = 24, 25, 26, 27, 28, 29
    CK = G_T + 8
    a("v_lshlrev_b32 v%d, 4, v%d" % (G_T + 1, V_H))
    a("v_lshlrev_b32 v%d, 2, v%d" % (G_T + 6, V_R31))
    a("s_cmp_eq_u32 s%d, 0" % S_KVW)
    a("s_cbranch_scc1 L_qkv_nokw")
    for i in range(8):
        blk(a, ar(128 + 4 * i, 4), S_KVW, i)
    a("L_qkv_nokw:")
    VP, VPA = 198, 22
    SU.probe_addr(a, sys.modules[__name__], VPA, VP, 59)
    a("buffer_load_dword v%d, v%d, s[4:7], s59 offen sc1" % (VP, VPA))

    def cs_kv():
        a("s_and_b32 s17, s2, 7")
        a("s_lshl_b32 s17, s17, 7")
        a("s_add_u32 s17, s17, 0x%x" % OFF_CSKV)
        a("buffer_load_dwordx4 v[%d:%d], v%d, s[4:7], s17 offen offset:64 sc1" % (CK, CK + 3, G_T + 1))
        a("buffer_load_dwordx4 v[%d:%d], v%d, s[4:7], s17 offen offset:96 sc1" % (CK + 4, CK + 7, G_T + 1))
        a("buffer_load_dword v%d, v%d, s[4:7], s17 offen sc1" % (G_T + 7, G_T + 6))

    cs_kv()

    def wcheck(tag):
        a("v_cmp_ne_u32 vcc, v%d, v%d" % (V_TAG, VP))
        a("s_cbranch_vccz L_qkv_wok%s" % tag)
        keep = a.vm_issued
        poll(a, cfg, 59, VPA, VP, sleep=1)
        cs_kv()
        a("s_waitcnt vmcnt(0)")
        a.vm_issued = keep
        a("L_qkv_wok%s:" % tag)

    layer_off(a, SX, OFF_X, X_STRIDE, 2, 0)
    b_addr(a, SB0, SB1, SX, 32, 8)
    layer_off(a, 30, OFF_STAT, STAT_STRIDE, 2, 0)
    a("s_lshl_b32 s17, s%d, 12" % S_RT)
    a("s_add_u32 s30, s30, s17")
    reduce_addr(a, LDS_RQ)
    layer_off(a, 33, OFF_KV, KV_STRIDE)
    a("s_lshr_b32 s36, s%d, 1" % S_HQ)
    a("s_lshl_b32 s17, s%d, 1" % S_RB)
    a("s_add_u32 s17, s17, s36")
    a("s_lshl_b32 s17, s17, 15")
    a("s_add_u32 s23, s17, s%d" % SX)
    a("s_lshl_b32 s17, s%d, 13" % S_W)
    a("s_add_u32 s23, s23, s17")
    a("s_sub_u32 s17, s%d, s36" % S_W)
    a("s_sub_u32 s17, s17, 1")
    a("s_and_b32 s17, s17, 3")
    a("s_lshl_b32 s17, s17, 12")
    a("s_add_u32 s17, s17, %d" % LDS_KVX)
    a("v_add_u32 v%d, s17, v%d" % (G_T + 2, V_L16))
    a("v_add_u32 v%d, %d, v%d" % (G_T + 3, LDS_KVX, V_L16))
    a("s_mul_i32 s37, s%d, 0x1000" % S_LAYER)
    a("s_add_u32 s37, s37, 0x%x" % (OFF_FLAGS + FL_KV))
    a("s_lshl_b32 s17, s%d, 4" % S_RB)
    a("s_add_u32 s37, s37, s17")
    a("s_lshl_b32 s17, s%d, 2" % S_HQ)
    a("s_add_u32 s37, s37, s17")
    stamp(a, cfg, 8)
    xin_flag_addr(a, 38, False, 0)
    poll(a, cfg, 38, G_T + 6, G_T + 4)
    stamp(a, cfg, 9)
    def b1_loads():
        for e in range(8):
            blk(a, ar(64 + 4 * e, 4), SB1, e, SC)
            tB[e] = a.vt()

    def cs_q():
        a("s_lshl_b32 s17, s%d, 10" % S_NT)
        a("s_add_u32 s17, s17, 0x%x" % OFF_CSQX)
        a("buffer_load_dwordx4 v[%d:%d], v%d, s[4:7], s17 offen sc1" % (G_CS, G_CS + 3, V_L16))

    a("s_cmp_ge_u32 s%d, 4" % S_HQ)
    a("s_cbranch_scc1 L_qkv_stats")
    tK = {}
    for i in range(8):
        blk(a, ar(224 + 4 * i, 4), 23, i, SC)
        tK[i] = a.vt()
    load_stats(a, G_ST, 30, G_T, SC)
    t_st = a.vt()
    tB = {}
    b1_loads()
    stamp(a, cfg, 1)
    a("s_bitcmp1_b32 s%d, 0" % S_HQ)
    a("s_cbranch_scc1 L_qkv_v1")
    for v in range(2):
        if v:
            a("L_qkv_v%d:" % v)
        for i in range(8):
            a.wait_vm(tK[i])
            x, w = ar(224 + 4 * i, 4), ar(128 + 4 * i, 4)
            c = "0" if i == 0 else vr(G_KVACC, 16)
            if v & 1:
                mf(a, G_KVACC, x, w, c)
            else:
                mf(a, G_KVACC, w, x, c)
        if v < 1:
            a("s_branch L_qkv_kvred")
    a("L_qkv_kvred:")
    stamp(a, cfg, 2)
    a.wait_vm(t_st)
    finish_stats(a, G_ST, V_NMU, V_RSTD)
    for q in range(4):
        a("ds_write_b128 v%d, v[%d:%d] offset:%d" % (G_T + 2, G_KVACC + 4 * q, G_KVACC + 4 * q + 3, q * 1024))
    XS = LDS_KVX + 16384
    a("s_lshl_b32 s17, s%d, 8" % S_W)
    a("s_add_u32 s17, s17, %d" % XS)
    a("v_add_u32 v%d, s17, v%d" % (G_T + 4, G_T + 6))
    a("v_mul_f32 v%d, v%d, v%d" % (G_T + 5, V_NMU, V_RSTD))
    a("ds_write_b32 v%d, v%d" % (G_T + 4, V_RSTD))
    a("ds_write_b32 v%d, v%d offset:128" % (G_T + 4, G_T + 5))
    a("v_add_u32 v%d, s17, v%d" % (G_T + 4, G_T + 1))
    RS = G_ACC + 16
    for g in range(4):
        a("ds_read_b128 v[%d:%d], v%d offset:%d" % (RS + 4 * g, RS + 4 * g + 3, G_T + 4, 32 * g))
        a("ds_read_b128 v[%d:%d], v%d offset:%d" % (RS + 16 + 4 * g, RS + 16 + 4 * g + 3, G_T + 4, 128 + 32 * g))
    wcheck("a")
    a("s_waitcnt lgkmcnt(0)")
    a("s_barrier")
    stamp(a, cfg, 3)
    a("s_cmp_lg_u32 s%d, s36" % S_W)
    a("s_cbranch_scc1 L_qkv_q")
    RD = [G_RED + 16, G_RED + 32, G_ACC]
    for j in range(3):
        for q in range(4):
            a("ds_read_b128 v[%d:%d], v%d offset:%d" % (RD[j] + 4 * q, RD[j] + 4 * q + 3, G_T + 3, j * 4096 + q * 1024))
    for j in range(3):
        a("s_waitcnt lgkmcnt(%d)" % (8 - 4 * j))
        for e in range(16):
            a("v_add_f32 v%d, v%d, v%d" % (G_KVACC + e, G_KVACC + e, RD[j] + e))
    a("s_lshl_b32 s17, s%d, 10" % S_RT)
    a("s_add_u32 s34, s33, s17")
    a("s_bitcmp1_b32 s%d, 0" % S_HQ)
    a("s_cbranch_scc1 L_qkv_vfin")
    PK = G_RED + 16
    for e in range(8):
        a("v_fmac_f32 v%d, v%d, v%d" % (G_KVACC + 8 + e, V_NMU, CK + e))
        a("v_mul_f32 v%d, v%d, v%d" % (G_KVACC + 8 + e, V_RSTD, G_KVACC + 8 + e))
    pack8(a, PK, G_KVACC + 8)
    a("buffer_store_dwordx4 v[%d:%d], v%d, s[4:7], s34 offen %s" % (PK, PK + 3, V_L16, SC))
    a("v_mov_b32 v%d, 0" % (PK + 4))
    for r in range(4):
        a("v_dot2_f32_bf16 v%d, v%d, v%d, v%d" % (PK + 4, PK + r, PK + r, PK + 4))
    xhalf_sum(a, PK + 4, PK + 5)
    for d in ("row_shr:1", "row_shr:2", "row_shr:4", "row_shr:8"):
        a("v_max_f32_dpp v%d, v%d, v%d %s row_mask:0xf bank_mask:0xf" % (PK + 4, PK + 4, PK + 4, d))
    a("v_max_f32_dpp v%d, v%d, v%d row_bcast:15 row_mask:0xa bank_mask:0xf" % (PK + 4, PK + 4, PK + 4))
    a("s_lshl_b32 s18, s%d, 2" % S_RT)
    a("s_add_u32 s18, s18, s33")
    a("s_add_u32 s18, s18, 0x20000")
    a("s_mov_b32 exec_lo, 0x80000000\ns_mov_b32 exec_hi, 0x0")
    a("buffer_store_dword v%d, v%d, s[4:7], s18 offen %s" % (PK + 4, V_ZERO, SC))
    a("s_mov_b64 exec, -1")
    a("s_branch L_qkv_kvdone")
    a("L_qkv_vfin:")
    a("v_lshlrev_b32 v%d, 4, v%d" % (G_T + 4, V_R31))
    a("v_lshl_add_u32 v%d, v%d, 8, v%d" % (G_T + 4, V_H, G_T + 4))
    a("s_add_u32 s34, s34, 0x10000")
    for e in range(16):
        a("v_mul_f32 v%d, v%d, v%d" % (G_KVACC + e, RS + e, G_KVACC + e))
        a("v_fmac_f32 v%d, v%d, v%d" % (G_KVACC + e, RS + 16 + e, G_T + 7))
    pack8(a, G_ACC, G_KVACC)
    pack8(a, G_ACC + 4, G_KVACC + 8)
    a("s_mov_b32 exec_lo, 0xffff\ns_mov_b32 exec_hi, 0xffff")
    a("buffer_store_dwordx4 v[%d:%d], v%d, s[4:7], s34 offen %s" % (G_ACC, G_ACC + 3, G_T + 4, SC))
    a("buffer_store_dwordx4 v[%d:%d], v%d, s[4:7], s34 offen offset:512 %s" % (G_ACC + 4, G_ACC + 7, G_T + 4, SC))
    a("s_mov_b64 exec, -1")
    a("L_qkv_kvdone:")
    stamp(a, cfg, 5)
    a("v_lshlrev_b32 v%d, 9, v%d" % (G_T + 4, V_LANE))
    a("s_waitcnt vmcnt(0)")
    a("s_mov_b64 exec, 0xff")
    a("buffer_store_dword v%d, v%d, s[4:7], s37 offen %s" % (V_TAG, G_T + 4, SC))
    a("s_mov_b64 exec, -1")
    a("s_branch L_qkv_q")
    a("L_qkv_stats:")
    load_stats(a, G_ST, 30, G_T, SC)
    t_st = a.vt()
    b1_loads()
    a.wait_vm(t_st)
    finish_stats(a, G_ST, V_NMU, V_RSTD)
    wcheck("b")
    a("L_qkv_q:")
    stamp(a, cfg, 10)
    cs_q()
    bextra(a, V_NMU, G_CS + 4)
    gemm64_core(a, dict(cfg, stamps=cfg.get('stamps') and 2), 8, lambda i: ar(160 + 4 * i, 4), lambda i: ar(192 + 4 * i, 4), lambda e: ar(64 + 4 * e, 4),
                lambda e: blk(a, ar(64 + 4 * e, 4), SB1 if e < 8 else SB0, e % 8, SC), 16, pre_tickets=tB, ramp=12,
                side=[g[0] for g in SU.deferred_store_groups(sys.modules[__name__])], side_from=99, side_n=1, extra0=(vr(G_CS, 4), vr(G_CS + 4, 4)))
    a("v_mul_f32 v%d, %s, v%d" % (G_T, fl(QSCALE), V_RSTD))
    for e in range(16):
        a("v_mul_f32 v%d, v%d, v%d" % (G_ACC + e, G_T, G_ACC + e))
    pack8(a, G_Q, G_ACC)
    pack8(a, G_Q + 4, G_ACC + 8)
    if cfg.get("store_q"):
        a("s_lshl_b32 s17, s%d, 15" % S_RT)
        a("s_lshl_b32 s18, s%d, 11" % S_NT)
        a("s_add_u32 s17, s17, s18")
        a("s_add_u32 s17, s17, 0x%x" % OFF_Q)
        a("buffer_store_dwordx4 v[%d:%d], v%d, s[4:7], s17 offen" % (G_Q, G_Q + 3, V_L16))
        a("buffer_store_dwordx4 v[%d:%d], v%d, s[4:7], s17 offen offset:1024" % (G_Q + 4, G_Q + 7, V_L16))
    stamp(a, cfg, 11)


A_C = [24, 40]
A_O = [56, 72]
A_S = [88, 104]
A_P = [120, 124, 128, 132]
A_KF = [136, 140]
A_VF = [[144, 148], [152, 156]]
A_VK, A_VV, A_VINC = 160, 161, 162
A_T = 164
LDS_V = 65536
LDS_ONES = 131072
LDS_ATT_FLAG = LDS_ONES + 5120
UNR = 4


EARLY = 4
W2ORD = [7 * mm + tl for tl in range(7) for mm in range(4)]
W2POS = {k: p for p, k in enumerate(W2ORD)}


def w2load(a, idx, s0, s1):
    i = W2ORD[idx >> 1]
    blk(a, w2reg(idx & 1, i), s1 if idx & 1 else s0, i)


def w2reg(s, i):
    idx = 2 * W2POS[i] + s
    if idx < 32:
        return ar(128 + 4 * idx, 4)
    if idx < 46:
        return vr(W2V + 4 * (idx - 32), 4)
    if idx < 54:
        return vr(136 + 4 * (idx - 46), 4)
    return vr(190 + 4 * (idx - 54), 4)


SLOT13 = [0, 2, 1, 3, 0, 2, 1]


def dma13(a, i, part=None):
    slot = SLOT13[i]
    for hh in range(2):
        a("s_add_u32 m0, s%d, %d" % (S_WL, slot * 32768 + hh * 4096))
        a("s_add_u32 s29, s%d, %d" % (S_W13, i * 32768 + hh * 4096))
        for q in range(4):
            a("buffer_load_dwordx4 v%d, s[4:7], s29 offen offset:%d sc1 lds" % (V_L16, q * 1024))


def dma_lines(i):
    b = Asm()
    dma13(b, i)
    return [l.strip() for l in b.lines]


def phase_att(a, cfg):
    Q = [G_Q, G_Q + 4]
    SA0, SA1, SW0, SW1 = 24, 25, 26, 27
    a("v_mov_b32 v%d, 0x3f803f80" % (A_T + 4))
    if cfg.get("zpad", 1):
        a("v_and_b32 v%d, 2, v0" % (A_T + 5))
        a("v_cmp_eq_u32 vcc, 0, v%d" % (A_T + 5))
        a("v_cndmask_b32 v%d, v%d, v%d, vcc" % (A_T + 4, V_ZERO, A_T + 4))
    for r in range(1, 4):
        a("v_mov_b32 v%d, v%d" % (A_T + 4 + r, A_T + 4))
    a("v_lshlrev_b32 v%d, 4, v0" % (A_T + 2))
    a("v_add_u32 v%d, %d, v%d" % (A_T + 2, LDS_ONES, A_T + 2))
    a("ds_write_b128 v%d, v[%d:%d]" % (A_T + 2, A_T + 4, A_T + 7))
    a("ds_write_b128 v%d, v[%d:%d] offset:1024" % (A_T + 2, A_T + 4, A_T + 7))
    a("v_and_b32 v%d, 15, v%d" % (A_T + 2, V_LANE))
    a("v_lshlrev_b32 v%d, 4, v%d" % (A_T + 2, A_T + 2))
    a("v_lshl_add_u32 v%d, v%d, 8, v%d" % (A_T + 2, V_H, A_T + 2))
    a("v_add_u32 v%d, %d, v%d" % (A_VV, LDS_V, A_T + 2))
    a("v_add_u32 v%d, -20, v%d" % (A_T + 3, V_R31))
    a("v_cmp_gt_u32 vcc, 8, v%d" % (A_T + 3))
    a("v_mov_b32 v%d, %d" % (A_T + 2, LDS_ONES))
    a("v_mov_b32 v%d, %d" % (A_T + 3, LDS_ONES + 64))
    a("v_cndmask_b32 v%d, v%d, v%d, vcc" % (A_T + 2, A_T + 2, A_T + 3))
    if cfg.get("zpad", 1):
        a("v_and_b32 v%d, 27, v%d" % (A_T + 3, V_R31))
        a("v_cmp_ne_u32 vcc, 16, v%d" % (A_T + 3))
        a("v_add_u32 v%d, 32, v%d" % (A_T + 3, A_T + 2))
        a("v_cndmask_b32 v%d, v%d, v%d, vcc" % (A_T + 2, A_T + 2, A_T + 3))
    a("v_cmp_le_u32 vcc, 16, v%d" % V_R31)
    a("v_mov_b32 v%d, %d" % (A_VINC, UNR * 1024))
    a("v_cndmask_b32 v%d, v%d, v%d, vcc" % (A_VV, A_VV, A_T + 2))
    a("v_cndmask_b32 v%d, v%d, v%d, vcc" % (A_VINC, A_VINC, V_ZERO))
    for t in range(2):
        n = A_T + 8 + t
        a("v_mov_b32 v%d, 0" % n)
        for r in range(4):
            a("v_dot2_f32_bf16 v%d, v%d, v%d, v%d" % (n, Q[t] + r, Q[t] + r, n))
    for t in range(2):
        xhalf_sum(a, A_T + 8 + t, A_T + 10)
    a_addr(a, SA0, SA1, OFF_WO, 32, 8)
    a("s_mul_i32 s%d, s%d, %d" % (S_W13, S_M, 7 * 32768))
    a("s_lshl_b32 s%d, s%d, 13" % (S_WL, S_W))
    a("s_add_u32 s%d, s%d, s%d" % (S_W13, S_W13, S_WL))
    a("s_add_u32 s%d, s%d, 0x%x" % (S_W13, S_W13, OFF_W13))
    a_addr(a, SW0, SW1, OFF_W2, 112, 28)
    a("s_lshl_b32 s20, s%d, 10" % S_W)
    a("s_add_u32 s21, s33, s20")
    a("s_add_u32 s22, s21, 0x10000")
    a("s_add_u32 s23, s20, %d" % LDS_V)
    a("s_mul_i32 s38, s%d, 0x1000" % S_LAYER)
    a("s_add_u32 s38, s38, 0x%x" % (OFF_FLAGS + FL_KV))
    a("s_and_b32 s17, s2, 7")
    a("s_lshl_b32 s17, s17, 9")
    a("s_add_u32 s38, s38, s17")
    a("s_lshl_b32 s58, s2, 2")
    a("s_add_u32 s58, s58, 0x%x" % OFF_FLW)
    a("s_or_b32 s17, s%d, s%d" % (S_W, S_LAYER))
    a("s_cmp_lg_u32 s17, 0")
    a("s_cselect_b32 s58, 0xf0000000, s58")
    a("s_and_b32 s59, s2, 7")
    a("s_lshl_b32 s59, s59, 10")
    a("s_add_u32 s59, s59, 0x%x" % OFF_FLW)
    a("v_lshlrev_b32 v%d, 10, v%d" % (A_T + 16, V_LANE))
    a("s_getreg_b32 s17, hwreg(HW_REG_XCC_ID)")
    a("s_and_b32 s17, s17, 7")
    a("s_lshl_b32 s17, s17, 1")
    a("v_or_b32 v%d, s17, v%d" % (A_T + 17, V_TAG))
    a("v_and_b32 v%d, 15, v%d" % (A_T + 18, V_LANE))
    a("v_lshlrev_b32 v%d, 5, v%d" % (A_T + 18, A_T + 18))
    a("s_and_b32 s17, s2, 0x87")
    a("s_lshl_b32 s17, s17, 2")
    a("v_add_u32 v%d, s17, v%d" % (A_T + 18, A_T + 18))

    stamp(a, cfg, 1)
    a("v_lshlrev_b32 v%d, 3, v%d" % (A_T + 14, V_LANE))
    a("s_cmp_lg_u32 s%d, 0" % S_W)
    a("s_cbranch_scc1 L_att_nopoll")
    poll(a, cfg, 38, A_T + 14, A_T + 12, wide=True, sleep=cfg.get("kv_sleep", 2))
    a("L_att_nopoll:")
    a("s_waitcnt vmcnt(0)")
    a("s_barrier")
    a("s_mov_b64 exec, 0xff")
    a("buffer_store_dword v%d, v%d, s[4:7], s58 offen %s" % (A_T + 17, A_T + 16, SC))
    a("s_mov_b64 exec, -1")
    a("s_mov_b32 s%d, 0xf0000000" % SU.S_DST)
    stamp(a, cfg, 2)
    a("s_add_u32 s17, s33, 0x20000")
    a("buffer_load_dword v%d, v%d, s[4:7], s17 offen %s" % (A_T + 1, V_L4, SC))
    t_kn = a.vt()
    def kvdma(g):
        a("s_add_u32 m0, s20, %d" % (g * 4096))
        a("s_add_u32 s17, s21, %d" % (g * 4096))
        a("buffer_load_dwordx4 v%d, s[4:7], s17 offen %s lds" % (V_L16, SC))
        a("s_add_u32 m0, s23, %d" % (g * 4096))
        a("s_add_u32 s17, s22, %d" % (g * 4096))
        a("buffer_load_dwordx4 v%d, s[4:7], s17 offen %s lds" % (V_L16, SC))

    G1 = 6
    for g in range(G1):
        kvdma(g)
        if g == 3:
            t_g3 = a.vt()
            a.wait_vm(t_kn)
            k2 = A_T + 1
            for d in ("row_shr:1", "row_shr:2", "row_shr:4", "row_shr:8"):
                a("v_max_f32_dpp v%d, v%d, v%d %s row_mask:0xf bank_mask:0xf" % (k2, k2, k2, d))
            a("v_max_f32_dpp v%d, v%d, v%d row_bcast:15 row_mask:0xa bank_mask:0xf" % (k2, k2, k2))
            a("v_max_f32_dpp v%d, v%d, v%d row_bcast:31 row_mask:0xc bank_mask:0xf" % (k2, k2, k2))
            a("v_readlane_b32 s18, v%d, 63" % k2)
            for t in range(2):
                n = A_T + 8 + t
                a("v_mul_f32 v%d, s18, v%d" % (n, n))
                a("v_sqrt_f32 v%d, v%d" % (n, n))
            for t in range(2):
                n = A_T + 8 + t
                a("v_mul_f32 v%d, %s, v%d" % (n, fl(-1.001), n))
            a("v_min_f32 v%d, v%d, v%d" % (A_T + 10, A_T + 8, A_T + 9))
            a("v_mov_b32 v%d, %s" % (A_T + 11, fl(-cfg.get("bound_t", BOUND_T))))
            a("v_cmp_nge_f32 vcc, v%d, v%d" % (A_T + 10, A_T + 11))
            a("s_lshl_b32 s19, s%d, 2" % S_W)
            a("s_add_u32 s19, s19, %d" % LDS_ATT_FLAG)
            a("v_mov_b32 v%d, s19" % (A_T + 12))
            a("s_cmp_lg_u64 vcc, 0")
            a("s_cselect_b32 s18, 1, 0")
            a("v_mov_b32 v%d, s18" % (A_T + 11))
            a("ds_write_b32 v%d, v%d" % (A_T + 12, A_T + 11))
            for t in range(2):
                for r in range(16):
                    a("v_mov_b32 v%d, v%d" % (A_C[t] + r, A_T + 8 + t))
    stamp(a, cfg, 3)
    a.wait_vm(t_g3)
    a("s_waitcnt lgkmcnt(0)")
    a("s_barrier")
    stamp(a, cfg, 4)
    a("v_mov_b32 v%d, %d" % (A_T + 12, LDS_ATT_FLAG))
    a("ds_read_b128 v[%d:%d], v%d" % (A_T + 4, A_T + 7, A_T + 12))
    a("ds_read_b128 v[%d:%d], v%d" % (A_KF[0], A_KF[0] + 3, V_L16))
    a("ds_read_b128 v[%d:%d], v%d" % (A_VF[0][0], A_VF[0][0] + 3, A_VV))
    a("ds_read_b128 v[%d:%d], v%d offset:512" % (A_VF[0][1], A_VF[0][1] + 3, A_VV))
    a("ds_read_b128 v[%d:%d], v%d offset:1024" % (A_KF[1], A_KF[1] + 3, V_L16))
    a("s_waitcnt lgkmcnt(4)")
    a("v_or_b32 v%d, v%d, v%d" % (A_T + 4, A_T + 4, A_T + 5))
    a("v_or3_b32 v%d, v%d, v%d, v%d" % (A_T + 4, A_T + 4, A_T + 6, A_T + 7))
    a("v_readfirstlane_b32 s18, v%d" % (A_T + 4))
    a("s_cmp_eq_u32 s18, 0")
    a("s_cbranch_scc1 L_att_fast")
    keep = a.vm_issued
    for g in range(G1, 16):
        kvdma(g)
    a.vm_issued = keep
    a("s_waitcnt vmcnt(0)")
    a("s_barrier")
    a("v_mov_b32 v%d, 0xff800000" % (A_T + 8))
    a("v_mov_b32 v%d, 0xff800000" % (A_T + 9))
    a("v_mov_b32 v%d, v%d" % (A_T + 12, V_L16))
    a("s_mov_b32 s19, 64")
    a("L_att_pre:")
    a("ds_read_b128 v[%d:%d], v%d" % (A_P[0], A_P[0] + 3, A_T + 12))
    a("v_add_u32 v%d, 1024, v%d" % (A_T + 12, A_T + 12))
    a("s_waitcnt lgkmcnt(0)")
    for t in range(2):
        mf(a, A_S[t], vr(A_P[0], 4), vr(Q[t], 4), "0")
    for t in range(2):
        for r in range(0, 16, 2):
            a("v_max3_f32 v%d, v%d, v%d, v%d" % (A_T + 8 + t, A_S[t] + r, A_S[t] + r + 1, A_T + 8 + t))
    a("s_sub_u32 s19, s19, 1")
    a("s_cmp_lg_u32 s19, 0")
    a("s_cbranch_scc1 L_att_pre")
    for t in range(2):
        n = A_T + 8 + t
        a("v_mov_b32 v%d, v%d" % (A_T + 10, n))
        a("v_permlane32_swap_b32 v%d, v%d" % (n, A_T + 10))
        a("v_max_f32 v%d, v%d, v%d" % (n, n, A_T + 10))
        a("v_sub_f32 v%d, 0, v%d" % (n, n))
        for r in range(16):
            a("v_mov_b32 v%d, v%d" % (A_C[t] + r, n))
    a("L_att_fast:")
    a("s_waitcnt lgkmcnt(0)")

    def m4(d, x, y, c):
        mf(a, d, vr(x, 4), vr(y, 4), vr(c, 16))

    def ex(r):
        a("v_exp_f32 v%d, v%d" % (r, r))

    def cv(d, s):
        a("v_cvt_pk_bf16_f32 v%d, v%d, v%d" % (d, s, s + 1))

    m4(A_S[0], A_KF[0], Q[0], A_C[0])
    a("s_nop 7")

    def lines_of(fn):
        b = Asm()
        fn(b)
        return [l.strip() for l in b.lines]

    def groups(lines):
        out, cur = [], []
        for x in lines:
            cur.append(x)
            if x.startswith("buffer_"):
                out.append(cur)
                cur = []
        assert not cur
        return out

    def kvl(g):
        return ["s_add_u32 m0, s20, %d" % (g * 4096), "s_add_u32 s17, s21, %d" % (g * 4096),
                "buffer_load_dwordx4 v%d, s[4:7], s17 offen %s lds" % (V_L16, SC),
                "s_add_u32 m0, s23, %d" % (g * 4096), "s_add_u32 s17, s22, %d" % (g * 4096),
                "buffer_load_dwordx4 v%d, s[4:7], s17 offen %s lds" % (V_L16, SC)]

    q_kv = []
    for g in range(G1, 16):
        q_kv += [(x, g) for x in groups(kvl(g))]
    q_w = []
    for i in range(8):
        q_w += groups(lines_of(lambda b: blk(b, ar(4 * i, 4), SA0, i)))
        q_w += groups(lines_of(lambda b: blk(b, ar(32 + 4 * i, 4), SA1, i)))
    for idx in range(46):
        q_w += groups(lines_of(lambda b: w2load(b, idx, SW0, SW1)))
    q_t = [["s_add_u32 s17, s49, %d" % (q * 4096), "buffer_load_dword v%d, v%d, s[4:7], s17 offen sc1" % (A_T + 3, A_T + 2)] for q in range(5)]
    if not cfg.get("touch13", 1):
        q_t = []
    q_d = groups(dma_lines(0) + dma_lines(1))
    a("s_mul_i32 s49, s%d, %d" % (S_M, 7 * 32768))
    a("s_and_b32 s18, s%d, 1" % S_RG)
    a("s_mul_i32 s18, s18, %d" % 81920)
    a("s_add_u32 s49, s49, s18")
    a("s_mul_i32 s18, s%d, %d" % (S_W, 20480))
    a("s_add_u32 s49, s49, s18")
    a("s_add_u32 s49, s49, 0x%x" % (OFF_W13 + 65536))
    a("v_lshlrev_b32 v%d, 6, v%d" % (A_T + 2, V_LANE))
    tg = {}
    U_PROBE, U_CHK = cfg.get("u_probe", 21), cfg.get("u_chk", 24)
    PB = A_T + 12
    def slot(u):
        grp, g = None, None
        if q_kv:
            grp, g = q_kv.pop(0)
        elif u == U_PROBE:
            a("buffer_load_dwordx4 v[%d:%d], v%d, s[4:7], s59 offen %s" % (PB, PB + 3, V_L16, SC))
            tg["probe"] = a.vt()
        elif u == U_CHK:
            a.wait_vm(tg["probe"])
            a("L_att_wchk:")
            for r in range(4):
                a("v_and_b32 v%d, -15, v%d" % (PB + r, PB + r))
            a("v_cmp_ne_u32 vcc, v%d, v%d" % (V_TAG, PB))
            for r in range(1, 4):
                a("v_cmp_ne_u32 s[18:19], v%d, v%d" % (V_TAG, PB + r))
                a("s_or_b64 vcc, vcc, s[18:19]")
            a("s_cmp_eq_u64 vcc, 0")
            a("s_cbranch_scc1 L_att_wok")
            if cfg.get("spin_limit"):
                a("s_sub_u32 s46, s46, 1")
                a("s_cbranch_scc1 L_att_wok")
            keep = a.vm_issued
            a("s_sleep 4")
            a("buffer_load_dwordx4 v[%d:%d], v%d, s[4:7], s59 offen %s" % (PB, PB + 3, V_L16, SC))
            a("s_waitcnt vmcnt(0)")
            a("s_branch L_att_wchk")
            a.vm_issued = keep
            a("L_att_wok:")
            a("buffer_load_dword v%d, v%d, s[4:7], s59 offen %s" % (PB, A_T + 18, SC))
            tg["grp"] = a.vt()
        elif u == U_CHK + 8:
            a.wait_vm(tg["grp"])
            a("v_cmp_ne_u32 vcc, v%d, v%d" % (A_T + 17, PB))
            a("s_cmp_eq_u64 vcc, 0")
            a("s_cselect_b32 s%d, %d, 0" % (S_LOC, 0 if cfg.get("force_remote") else 1))
        elif u < U_CHK:
            pass
        elif u >= 68 and q_d:
            grp = q_d.pop(0)
        elif q_t and u % 8 == 1:
            grp = q_t.pop(0)
        elif q_w:
            grp = q_w.pop(0)
        elif q_t:
            grp = q_t.pop(0)
        if grp:
            for x in grp:
                a(x)
            if g is not None:
                tg[g] = a.vt()

    NU = 128
    BAR = {16: 9, 36: 15}
    for u in range(NU):
        j, t = u >> 1, u & 1
        nj, nt = (u + 1) >> 1, (u + 1) & 1
        pj, pt = (u - 1) >> 1, (u - 1) & 1
        jj = j % UNR
        sb, nsb = A_S[u % 2], A_S[(u + 1) % 2]
        plo, phi = A_P[(u % 2) * 2], A_P[(u % 2) * 2 + 1]
        pphi = A_P[((u - 1) % 2) * 2 + 1]
        if u + 1 < NU:
            m4(nsb, A_KF[nj % 2], Q[nt], A_C[nt])
        if t == 0 and j + 2 < 64:
            a("ds_read_b128 v[%d:%d], v%d offset:%d" % (A_KF[j % 2], A_KF[j % 2] + 3, V_L16, (j + 2) * 1024))
        if t == 1 and u > U_CHK and cfg.get('slot3', 0):
            slot(u)
        for r in range(0, 4):
            ex(sb + r)
        if u > 0:
            m4(A_O[pt], A_VF[pj % 2][1], pphi, A_O[pt])
        if t == 0 and j + 1 < 64:
            off = (jj + 1) * 1024
            a("ds_read_b128 v[%d:%d], v%d offset:%d" % (A_VF[(j + 1) % 2][0], A_VF[(j + 1) % 2][0] + 3, A_VV, off))
            a("ds_read_b128 v[%d:%d], v%d offset:%d" % (A_VF[(j + 1) % 2][1], A_VF[(j + 1) % 2][1] + 3, A_VV, off + 512))
        if t == 1:
            slot(u)
        for r in range(4, 9):
            ex(sb + r)
        for r in range(0, 4):
            cv(plo + r, sb + 2 * r)
        for r in range(9, 12):
            ex(sb + r)
        m4(A_O[t], A_VF[j % 2][0], plo, A_O[t]) if u > 1 else mf(a, A_O[t], vr(A_VF[j % 2][0], 4), vr(plo, 4), "0")
        if t == 1:
            a("s_waitcnt lgkmcnt(0)")
            if (j + 3) in BAR:
                g = BAR[j + 3]
                if g is not None:
                    a.wait_vm(tg[g])
                a("s_barrier")
                if j + 3 == 16:
                    stamp(a, cfg, 6)
        else:
            slot(u)
        for r in range(12, 16):
            ex(sb + r)
        if t == 1 and jj == UNR - 1:
            a("v_add_u32 v%d, v%d, v%d" % (A_VV, A_VINC, A_VV))
        for r in range(4, 8):
            cv(phi + r - 4, sb + 2 * r)
    assert not (q_kv or q_w or q_t or q_d), (len(q_kv), len(q_w), len(q_t), len(q_d))
    units = [(63, 1)]
    U = 128
    a("L_att_done:")
    DUAL[0] = bool(cfg.get("dual", 1))
    stamp(a, cfg, 7)
    lj, lt = units[-1]
    m4(A_O[lt], A_VF[lj % 2][1], A_P[((U - 1) % 2) * 2 + 1], A_O[lt])
    layer_off(a, 34, OFF_O, X_STRIDE)
    a("s_lshl_b32 s18, s%d, 15" % S_RT)
    a("s_add_u32 s34, s34, s18")
    a("s_lshl_b32 s18, s%d, 11" % S_NT)
    a("s_add_u32 s34, s34, s18")
    for t in range(2):
        a("v_rcp_f32 v%d, v%d" % (A_T, A_O[t] + 8))
        for r in range(8):
            a("v_mul_f32 v%d, v%d, v%d" % (A_O[t] + r, A_T, A_O[t] + r))
        pack8(a, A_P[t], A_O[t])
        st4(a, A_P[t], V_L16, 34, t * 1024)
    flag_addr(a, S_FO, FL_O, S_RB, 7, S_HQ)
    publish(a, S_FO, 34)
    stamp(a, cfg, 8)


def phase_wo(a, cfg):
    SB0, SB1, SX = 26, 27, 28
    a("s_barrier")
    if not cfg.get("pf_att", 1):
        for i in range(8):
            blk(a, ar(4 * i, 4), 24, i)
            blk(a, ar(32 + 4 * i, 4), 25, i)
    dma13(a, 2)
    layer_off(a, SX, OFF_O, X_STRIDE)
    b_addr(a, SB0, SB1, SX, 32, 8)
    reduce_addr(a, LDS_R1)
    out_addr(a, 1)
    flag_addr(a, 38, FL_O, S_RB, 7)
    a("s_lshl_b32 s17, s%d, 5" % S_W)
    a("s_add_u32 s38, s38, s17")
    a("v_and_b32 v%d, 28, v%d" % (G_T + 5, V_L4))
    flag_addr(a, S_FX1, FL_X1, S_RG, 8, S_M)
    stamp(a, cfg, 8)
    poll(a, cfg, 38, G_T + 5, G_T + 4)
    stamp(a, cfg, 9)
    gemm64_core(a, cfg, 8, lambda i: ar(4 * i, 4), lambda i: ar(32 + 4 * i, 4), lambda e: ar(64 + 4 * e, 4),
                lambda e: blk(a, ar(64 + 4 * e, 4), SB1 if e < 8 else SB0, e % 8, SC), 16, ramp=cfg.get("ramp1", 8), resid=True)
    res_epilogue(a, cfg, 1, None)
    stamp(a, cfg, 10)
    publish(a, S_FX1, 34)
    stamp(a, cfg, 11)


F_ACC = [24, 40, 56, 72]
NACC = 4
F_W = 88
F_CS = 120
F_H = 128
F_ST = 136
F_T = 168
F_LA = [184, 185]
F_NMU, F_C1, F_RS2, F_CSA, F_LG = 186, 187, 188, 189, 198


def phase_ffn1(a, cfg):
    SX, SH = 24, 27
    a("s_barrier")
    dma13(a, 3)
    G3 = cfg.get("g0", 2) == 3
    if G3:
        a("s_mul_i32 s17, s%d, 6144" % S_W)
        a("s_sub_u32 s29, s%d, s%d" % (S_W13, S_WL))
        a("s_add_u32 s29, s29, s17")
        a("s_add_u32 m0, s17, %d" % LDS_E)
        a("s_add_u32 s29, s29, %d" % (4 * 32768))
        for q in range(4):
            a("buffer_load_dwordx4 v%d, s[4:7], s29 offen offset:%d sc1 lds" % (V_L16, q * 1024))
        a("s_add_u32 m0, s17, %d" % (LDS_E + 4096))
        a("s_add_u32 s29, s29, 4096")
        for q in range(2):
            a("buffer_load_dwordx4 v%d, s[4:7], s29 offen offset:%d sc1 lds" % (V_L16, q * 1024))
        a("s_lshl_b32 s28, s%d, 11" % S_W)
        a("s_sub_u32 s33, s%d, s%d" % (S_W13, S_WL))
        a("s_add_u32 s33, s33, s28")
        a("s_add_u32 s33, s33, %d" % (4 * 32768 + 24 * 1024))
    a("s_mul_i32 s29, s%d, %d" % (S_M, 7 * 1024))
    a("s_lshl_b32 s17, s%d, 11" % S_W)
    a("s_add_u32 s29, s29, s17")
    a("s_add_u32 m0, s17, %d" % LDS_CS)
    a("s_add_u32 s29, s29, 0x%x" % OFF_CSX)
    a("buffer_load_dwordx4 v%d, s[4:7], s29 offen sc1 lds" % V_L16)
    a("buffer_load_dwordx4 v%d, s[4:7], s29 offen offset:1024 sc1 lds" % V_L16)
    t_w = a.vt()
    a("s_lshl_b32 s30, s%d, 2" % S_RG)
    a("s_add_u32 s30, s30, s%d" % S_W)
    layer_off(a, SX, OFF_X, X_STRIDE, 2, 1)
    a("s_lshl_b32 s17, s30, 15")
    a("s_add_u32 s%d, s%d, s17" % (SX, SX))
    a("s_add_u32 s25, s%d, %d" % (SX, 28 * 1024))
    layer_off(a, 26, OFF_STAT, STAT_STRIDE, 2, 1)
    a("s_lshl_b32 s18, s30, 12")
    a("s_add_u32 s26, s26, s18")
    layer_off(a, SH, OFF_H, H_STRIDE)
    a("s_mul_i32 s17, s30, %d" % (112 * 1024))
    a("s_add_u32 s%d, s%d, s17" % (SH, SH))
    a("s_mul_i32 s17, s%d, %d" % (S_M, 7 * 1024))
    a("s_add_u32 s%d, s%d, s17" % (SH, SH))
    a("v_mov_b32 v%d, v%d" % (F_LA[0], V_L16))
    a("v_add_u32 v%d, 65536, v%d" % (F_LA[1], V_L16))
    a("v_add_u32 v%d, %d, v%d" % (F_CSA, LDS_E, V_L16))
    a_addr(a, 53, 54, OFF_W2, 112, 28)
    flag_addr(a, 38, FL_X1, S_RG, 8)
    a("s_lshr_b32 s17, s%d, 1" % S_W)
    a("s_lshl_b32 s17, s17, 7")
    a("s_add_u32 s38, s38, s17")
    a("s_and_b32 s17, s%d, 1" % S_W)
    a("s_lshl_b32 s17, s17, 2")
    a("s_add_u32 s38, s38, s17")
    lane_pat(a, F_T + 2, 15, 0, 3)
    flag_addr(a, S_FH, FL_H, S_RG, 9, S_M, per_layer=0x2000)
    stamp(a, cfg, 1)
    a("s_waitcnt vmcnt(0)")
    a("s_barrier")
    poll(a, cfg, 38, F_T + 2, F_T)
    stamp(a, cfg, 2)
    tX = {}

    def xload(i):
        if i < 28:
            blk(a, ar(4 * i, 4), SX, i, SC)
        else:
            blk(a, ar(4 * i, 4), 25, i - 28, SC)
        tX[i] = a.vt()

    XW = cfg.get("xwin", 14)
    for i in range(XW):
        xload(i)

    def wread(tile, ks, ring):
        slot = SLOT13[tile]
        if ks == 32:
            a("ds_read_b128 v[%d:%d], v%d offset:%d" % (F_W + 4 * ring, F_W + 4 * ring + 3, F_CSA, LDS_CS - LDS_E + tile * 1024))
            return
        if G3 and tile == 4:
            a("ds_read_b128 v[%d:%d], v%d offset:%d" % (F_W + 4 * ring, F_W + 4 * ring + 3, F_CSA if ks < 24 else F_LA[0], (ks % 24) * 1024))
            return
        a("ds_read_b128 v[%d:%d], v%d offset:%d" % (F_W + 4 * ring, F_W + 4 * ring + 3, F_LA[slot >> 1], (slot & 1) * 32768 + ks * 1024))

    def epi(tile):
        acc, cs = F_ACC[tile % NACC], F_CS
        hp = F_H + 4 * (tile % 2)
        out = []
        for e in range(8):
            out.append("v_fma_f32 v%d, v%d, v%d, v%d" % (F_T + 8 + e, F_C1, acc + e, F_LG))
        for e in range(8):
            out.append("v_exp_f32 v%d, v%d" % (F_T + 8 + e, F_T + 8 + e))
            out.append("v_mul_f32 v%d, v%d, v%d" % (acc + e, acc + e, acc + 8 + e))
            if e:
                out.append("v_add_f32 v%d, v%d, v%d" % (F_T + 7 + e, F_RS2, F_T + 7 + e))
        out.append("v_add_f32 v%d, v%d, v%d" % (F_T + 15, F_RS2, F_T + 15))
        for e in range(8):
            out.append("v_rcp_f32 v%d, v%d" % (F_T + 8 + e, F_T + 8 + e))
            if e:
                out.append("v_mul_f32 v%d, v%d, v%d" % (acc + e - 1, F_T + 7 + e, acc + e - 1))
        out.append("v_mul_f32 v%d, v%d, v%d" % (acc + 7, F_T + 15, acc + 7))
        for i in range(4):
            out.append("v_cvt_pk_bf16_f32 v%d, v%d, v%d" % (hp + i, acc + 2 * i, acc + 2 * i + 1))
        out.append("buffer_store_dwordx4 v[%d:%d], v%d, s[4:7], s%d offen offset:%d" % (hp, hp + 3, V_OFF[tile // 4], SH, (tile % 4) * 1024))
        if DBL[0]:
            out.append("buffer_store_dwordx4 v[%d:%d], v%d, s[4:7], s%d offen offset:%d" % (hp, hp + 3, V_OFF[tile // 4], SH, (tile % 4) * 1024))
        return out

    G0 = cfg.get("g0", 2)
    steps = []
    for ks in range(33):
        for tl in range(G0):
            steps.append((tl, ks))
    for tile in range(G0, 7):
        for ks in range(33):
            steps.append((tile, ks))
    N = len(steps)
    PF = cfg.get('pf', 6)
    lt = {}
    first_of, last_of = {}, {}
    for n, (tile, ks) in enumerate(steps):
        first_of.setdefault(tile, n)
        last_of[tile] = n
    dma_q = []
    fence_t = {}

    def do_read(n):
        tile, ks = steps[n]
        if G3:
            ft = 5 if (tile, ks) == (4, 24) else (6 if (tile, ks) == (6, 0) else None)
            if ft:
                assert ft in fence_t and not any(q[0] <= ft for q in dma_q), ft
                a.wait_vm(fence_t[ft])
                a("s_barrier")
        elif n == first_of[tile] and tile >= 4:
            assert tile in fence_t and not any(q[0] == tile for q in dma_q), tile
            a.wait_vm(fence_t[tile])
            a("s_barrier")
        wread(tile, ks, n % 8)
        lt[n] = a.lt()

    cs_t = 0
    for n in range(PF):
        do_read(n)
    pending = []
    nx = XW
    nst, st_t, st_n, early_done = 0, {}, {}, False
    for n, (tile, ks) in enumerate(steps):
        if tile >= G0 and ks == 0:
            stamp(a, cfg, 1 + tile)
        if tile == 0 and ks < 32:
            a.wait_vm(tX[ks])
        if n % 2 == 0:
            a.wait_lg(lt[min(n + 1, N - 1)])
            lg_done = lt[min(n + 1, N - 1)]
        acc = F_ACC[tile % NACC]
        if ks == 0 and tile >= NACC:
            assert nst > tile - NACC, (tile, nst)
        mf(a, acc, vr(F_W + 4 * (n % 8), 4), ar(4 * ks, 4) if ks < 32 else vr(F_CS, 4), "0" if ks == 0 else vr(acc, 16))
        if (tile == 0 or (tile < G0 and cfg.get('xfast', 0))) and nx < 32:
            xload(nx)
            nx += 1
            if nx == 32:
                load_stats(a, F_ST, 26, F_T, SC)
                t_st = a.vt()
        if n + PF < N:
            do_read(n + PF)
        if n == last_of[G0 - 1] + 2:
            a("s_barrier")
            if G3:
                dma_q += [(4, "s_mov_b32 m0, s28"), (4, "s_nop 0"),
                          (4, "buffer_load_dwordx4 v%d, s[4:7], s33 offen sc1 lds" % V_L16),
                          (4, "buffer_load_dwordx4 v%d, s[4:7], s33 offen offset:1024 sc1 lds" % V_L16)]
                for tl in (5, 6):
                    dma_q += [(tl, x) for x in dma_lines(tl)]
                b = Asm()
                for idx in range(46, 56):
                    w2load(b, idx, 53, 54)
                dma_q += [(99, l.strip()) for l in b.lines]
            else:
                for tl in range(4, 4 + G0):
                    dma_q += [(tl, x) for x in dma_lines(tl)]
        for old in range(G0, 3):
            if n == last_of[old] + 2:
                a("s_barrier")
                dma_q += [(old + 4, x) for x in dma_lines(old + 4)]
                if old == 2:
                    b = Asm()
                    for idx in range(46, 56):
                        w2load(b, idx, 53, 54)
                    dma_q += [(99, l.strip()) for l in b.lines]
        dcost = 0
        if dma_q and n % cfg.get("dma_every", 3) == 0:
            while dma_q:
                tl, x = dma_q.pop(0)
                a(x)
                dcost += cfg.get("dma_cost", 8)
                if x.startswith("buffer_load"):
                    fence_t[tl] = a.vt()
                    break
        if n == last_of[G0 - 1] - G0 - 2:
            a.wait_vm(t_st)
            finish_stats(a, F_ST, F_NMU, F_RS2)
            a("v_mul_f32 v%d, %s, v%d" % (F_C1, fl(-LOG2E), F_RS2))
            a("v_mov_b32 v%d, v%d" % (F_RS2, F_ST + 1))
            a("v_log_f32 v%d, v%d" % (F_LG, F_ST + 1))
            bextra(a, F_NMU, F_CS)
        for tl in range(0, 6):
            if n == max(last_of[tl], last_of[G0 - 1]) + 3:
                pending += epi(tl)
        cost = dcost
        lim = cfg.get("epi_cost", 16)
        while pending:
            x = pending[0]
            if x == "CSWAIT":
                pending.pop(0)
                if cs_t > lg_done:
                    a.wait_lg(cs_t)
                    cost += 4
                continue
            cx = 8 if x.split()[0] in TRANS else (8 if x.startswith("buffer_") else 4)
            if cost + cx > lim:
                break
            pending.pop(0)
            if x.startswith("buffer_store") and nst == EARLY:
                assert not dma_q
                a("s_waitcnt vmcnt(0)")
                a("s_mov_b64 exec, 1")
                emit_l(a, "buffer_store_dword v%d, v%d, s[4:7], s%d offen offset:%d" % (V_TAG, V_ZERO, S_FH, 0x100))
                touch_lines(a, SH, 8 * EARLY)
                a("s_mov_b64 exec, -1")
                early_done = True
            if x.startswith("buffer_store"):
                emit_l(a, x)
            else:
                a(x)
            cost += cx
            if x.startswith("ds_read"):
                cs_t = a.lt()
            if x.startswith("buffer_store"):
                nst += 1
                st_t[nst - 1] = a.vt()
                st_n[nst - 1] = n
    assert early_done
    assert not dma_q
    stamp(a, cfg, 8)
    for x in pending + epi(6):
        if x == "CSWAIT":
            a.wait_lg(cs_t)
            continue
        if x.startswith("buffer_store"):
            emit_l(a, x)
        else:
            a(x)
    stamp(a, cfg, 9)
    a("s_add_u32 s17, s%d, %d" % (SH, EARLY * 1024))
    publish(a, S_FH, 17, 8 * (7 - EARLY))
    stamp(a, cfg, 10)


def phase_ffn2(a, cfg):
    SB0, SB1, SX = 26, 27, 28
    SW0, SW1 = 24, 25
    side = []
    if cfg.get("touchq", 0):
        a("s_lshl_b32 s49, s%d, 16" % S_HQ)
        a("s_and_b32 s18, s%d, 3" % S_RB)
        a("s_lshl_b32 s18, s18, 14")
        a("s_add_u32 s49, s49, s18")
        a("s_lshl_b32 s18, s%d, 12" % S_W)
        a("s_add_u32 s49, s49, s18")
        a("s_add_u32 s49, s49, 0x%x" % OFF_WQ)
        a("s_cmp_eq_u32 s%d, 1" % S_LAYER)
        a("s_cselect_b32 s49, 0xf0000000, s49")
        a("v_lshlrev_b32 v%d, 6, v%d" % (G_T + 2, V_LANE))
        side.append("buffer_load_dword v%d, v%d, s[4:7], s49 offen" % (G_T + 3, G_T + 2))
    layer_off(a, SX, OFF_H, H_STRIDE)
    b_addr(a, SB0, SB1, SX, 112, 28)
    reduce_addr(a, LDS_R1)
    out_addr(a, 2)
    flag_addr(a, 38, FL_H, S_RG, 9, per_layer=0x2000)
    a("s_lshl_b32 s17, s%d, 6" % S_W)
    a("s_add_u32 s38, s38, s17")
    a("s_and_b32 s17, s%d, 1" % S_RB)
    a("s_lshl_b32 s17, s17, 3")
    a("s_add_u32 s38, s38, s17")
    lane_pat(a, G_T + 6, 7, 0, 2)
    xin_flag_addr(a, 39, True, 1)
    stamp(a, cfg, 8)
    poll(a, cfg, 38, G_T + 6, G_T + 4, imm=0x100)
    stamp(a, cfg, 9)
    R = 32

    def hreg(e):
        return ar(4 * (e % R), 4)

    early = [7 * mm + tl for tl in range(EARLY) for mm in range(4)]
    late = [7 * mm + tl for tl in range(EARLY, 7) for mm in range(4)]
    order = [(1, i) for i in early] + [(0, i) for i in early] + [(1, i) for i in late] + [(0, i) for i in late]
    tp = {}

    def probe():
        a("buffer_load_dword v%d, v%d, s[4:7], s38 offen %s" % (G_T + 5, G_T + 6, SC))
        tp[0] = a.vt()

    def check():
        a.wait_vm(tp[0])
        a("v_cmp_ne_u32 vcc, v%d, v%d" % (V_TAG, G_T + 5))
        a("s_cbranch_vccz L_ffn2_go")
        keep = a.vm_issued
        poll(a, cfg, 38, G_T + 6, G_T + 4)
        a.vm_issued = keep
        a("L_ffn2_go:")
        stamp(a, cfg, 3)

    pp = cfg.get("probe_at", 16)
    gemm64_core(a, cfg, 28, lambda i: w2reg(0, i), lambda i: w2reg(1, i), hreg,
                lambda e: blk(a, hreg(e), SB1 if order[e][0] else SB0, order[e][1], SC), cfg.get('win2', 18), order=order,
                gate=(2 * len(early), probe, check, pp, pp), side=side, side_from=cfg.get('w2_side', 6), side_n=1,
                side2=wq_lines(), side2_from=cfg.get('wq_from', 33), ramp=cfg.get('ramp2', 10), resid=True)
    res_epilogue(a, cfg, 2, "L_final")
    stamp(a, cfg, 10)
    publish(a, 39, 34)
    stamp(a, cfg, 11)


def final_store(a):
    a("v_permlane32_swap_b32 v%d, v%d" % (V_RES, V_RES + 2))
    a("v_permlane32_swap_b32 v%d, v%d" % (V_RES + 1, V_RES + 3))
    a("v_permlane32_swap_b32 v%d, v%d" % (V_RES + 4, V_RES + 6))
    a("v_permlane32_swap_b32 v%d, v%d" % (V_RES + 5, V_RES + 7))
    a("s_lshl_b32 s17, s%d, 15" % S_RT)
    a("s_lshl_b32 s18, s%d, 6" % S_NT)
    a("s_add_u32 s17, s17, s18")
    a("v_lshlrev_b32 v%d, 10, v%d" % (G_T + 2, V_R31))
    a("v_lshl_add_u32 v%d, v%d, 4, v%d" % (G_T + 2, V_H, G_T + 2))
    a("buffer_store_dwordx4 v[%d:%d], v%d, s[8:11], s17 offen" % (V_RES, V_RES + 3, G_T + 2))
    a("buffer_store_dwordx4 v[%d:%d], v%d, s[8:11], s17 offen offset:32" % (V_RES + 4, V_RES + 7, G_T + 2))


def st_begin(a, cfg):
    kern.stamp_init(a, cfg)


def st_end(a, cfg, k):
    if not cfg.get("stamps"):
        return
    stamp(a, cfg, NSTAMP - 1)
    a("s_memrealtime s[62:63]")
    a("s_waitcnt lgkmcnt(0)")
    a("s_mov_b32 s79, s62")
    a("s_mul_i32 s60, s3, 5\ns_add_u32 s60, s60, %d" % k)
    a("s_lshl_b32 s60, s60, 16")
    a("s_lshl_b32 s61, s2, 8")
    a("s_add_u32 s60, s60, s61")
    a("s_lshl_b32 s61, s12, 6")
    a("s_add_u32 s60, s60, s61")
    a("s_add_u32 s60, s60, 0x%x" % kern.OFF_STAMP)
    for i in range(16):
        a("v_writelane_b32 v199, s%d, %d" % (64 + i, i))
    a("s_mov_b32 exec_lo, 0xffff\ns_mov_b32 exec_hi, 0x0")
    a("buffer_store_dword v199, v%d, s[4:7], s60 offen" % V_L4)
    a("s_mov_b64 exec, -1")


def dbgt(a, cfg, k, last=False):
    if not cfg.get("dbgtime"):
        return
    L = a.newlabel("L_dt")
    a("s_cmp_lg_u32 s2, %d" % (cfg["dbgtime"] - 1))
    a("s_cbranch_scc1 %s" % L)
    a("s_memrealtime s[64:65]")
    a("s_memtime s[66:67]")
    a("s_mov_b32 s68, s98\ns_mov_b32 s69, s99\ns_mov_b32 s70, 256\ns_mov_b32 s71, 0x00020000")
    a("s_mul_i32 s72, s3, 20")
    a("s_waitcnt lgkmcnt(0)")
    a("s_sub_u32 s64, s64, s60")
    a("s_sub_u32 s66, s66, s62")
    a("v_mov_b32 v199, s64")
    a("buffer_store_dword v199, v%d, s[68:71], s72 offen offset:%d" % (V_ZERO, 4 + 4 * k))
    if last:
        a("v_mov_b32 v198, s66")
        a("buffer_store_dword v198, v%d, s[68:71], 0 offen offset:%d" % (V_ZERO, 4 * 13))
    a(L + ":")


KNAME = kern.NAME + "_kernel"


def build(cfg):
    rep = []
    DBL[0] = cfg.get("dbl", 0)
    TOUCH[0] = cfg.get("ptouch", 0)
    COMPACT[0] = cfg.get("compact", 1)
    DUAL[0] = False
    global OFF_WKV
    if COMPACT[0]:
        OFF_WKV = SU.OFF_WKV = C_WKV
    a = Asm()
    a("s_load_dwordx16 s[80:95], s[0:1], 0")
    a("s_load_dwordx2 s[96:97], s[0:1], 64")
    a("s_load_dwordx2 s[98:99], s[0:1], 80")
    kern.common_prologue(a, True)
    a("v_mov_b32 v%d, 0" % V_ZERO)
    a("v_mov_b32 v199, 0")
    a("v_lshlrev_b32 v%d, 7, v%d" % (V_L128, V_LANE))
    a("v_lshlrev_b32 v%d, 2, v%d" % (V_L4, V_LANE))
    a("s_lshr_b32 s17, s%d, 1" % S_W)
    a("s_and_b32 s18, s%d, 1" % S_W)
    a("s_lshl_b32 s%d, s%d, 1" % (S_NT, S_HQ))
    a("s_add_u32 s%d, s%d, s17" % (S_NT, S_NT))
    a("s_lshl_b32 s%d, s%d, 1" % (S_RT, S_RB))
    a("s_add_u32 s%d, s%d, s18" % (S_RT, S_RT))
    a("s_mov_b32 s%d, 0" % S_LAYER)
    if cfg.get("spin_limit"):
        a("s_mov_b32 s46, %d" % cfg["spin_limit"])
    if cfg.get("dbgtime"):
        a("s_memrealtime s[60:61]")
        a("s_memtime s[62:63]")
        a("s_waitcnt lgkmcnt(0)")
    st_begin(a, cfg)
    SU.startup(a, cfg, sys.modules[__name__])
    dbgt(a, cfg, 0)
    a_addr(a, S_Q0, S_Q1, OFF_WQ, 32, 8)
    a("s_mov_b32 s%d, 0" % S_KVW)
    st_end(a, cfg, 0)
    a("L_layer:")
    for k, ph in enumerate((phase_qkv, phase_att, phase_wo, phase_ffn1, phase_ffn2)):
        st_begin(a, cfg)
        ph(a, cfg)
        st_end(a, cfg, k + 1)
        dbgt(a, cfg, k + 1)
    a("s_lshl_b32 s%d, s%d, 13" % (S_KVW, S_W))
    a("s_add_u32 s%d, s%d, 0x%x" % (S_KVW, S_KVW, OFF_WKV))
    a("s_and_b32 s17, s2, 7")
    a("s_lshl_b32 s17, s17, 15")
    a("s_add_u32 s%d, s%d, s17" % (S_KVW, S_KVW))
    a("s_cmp_ge_u32 s%d, 4" % S_HQ)
    a("s_cselect_b32 s%d, 0, s%d" % (S_KVW, S_KVW))
    a("s_mov_b32 s%d, 1" % S_LAYER)
    a("s_branch L_layer")
    a("L_final:")
    final_store(a)
    st_end(a, cfg, 5)
    dbgt(a, cfg, 5, True)
    a("L_exit:")
    a("s_endpgm")
    main_lines, _ = fix_hazards_fast(kern.uniq(a.lines, "main"), rep)

    pf = cfg.get("pfk", 0)
    if pf:
        b = Asm()
        b("s_cmp_ge_u32 s2, 256")
        b("s_cbranch_scc1 L_pf_end")
        b("s_load_dwordx16 s[16:31], s[0:1], 0")
        b("s_load_dwordx2 s[32:33], s[0:1], 64")
        b("s_getpc_b64 s[4:5]")
        b("L_pf_pc:")
        b("s_add_u32 s4, s4, L_code_begin-L_pf_pc")
        b("s_addc_u32 s5, s5, -1")
        b("s_lshr_b32 s6, s2, 3")
        b("s_and_b32 s7, s2, 7")
        b("s_lshl_b32 s8, s6, 11")
        b("v_lshlrev_b32 v1, 3, v0")
        b("v_add_u32 v1, s8, v1")
        b("v_min_u32 v1, L_code_end-L_code_begin-8, v1")
        b("global_load_dwordx2 v[2:3], v1, s[4:5]")
        if pf >= 2:
            b("v_lshlrev_b32 v1, 6, v0")
            b("s_lshl_b32 s8, s6, 14")
            b("v_add_u32 v4, s8, v1")
            b("s_lshl_b32 s9, s7, 18")
            b("s_lshl_b32 s10, s6, 13")
            b("s_add_u32 s9, s9, s10")
            b("v_lshlrev_b32 v5, 5, v0")
            b("v_add_u32 v5, s9, v5")
            b("s_mul_i32 s11, s2, 7168")
            b("v_mul_u32_u24 v6, 28, v0")
            b("v_add_u32 v6, s11, v6")
            b("s_lshl_b32 s11, s2, 11")
            b("v_lshlrev_b32 v7, 3, v0")
            b("v_add_u32 v7, s11, v7")
            b("s_waitcnt lgkmcnt(0)")
            b("global_load_dword v8, v4, s[18:19]")
            b("global_load_dword v9, v5, s[16:17]")
            b("global_load_dword v10, v1, s[20:21]")
            b("global_load_dword v11, v1, s[22:23]")
            b("global_load_dword v12, v6, s[28:29]")
            b("global_load_dword v13, v6, s[30:31]")
            b("global_load_dword v14, v6, s[32:33]")
            b("global_load_dword v15, v7, s[24:25]")
        b("L_pf_end:")
        b("s_endpgm")
        pfl, _ = fix_hazards_fast(["L_code_begin:", "L_code_end:"] + b.lines, rep)
        main_lines2 = [".p2align 8", "pf_kernel:"] + pfl[2:]
        s = "; @launch kernel=pf_kernel grid=(256,1,1) block=(256,1,1) lds=0\n"
        s += "; @launch kernel=%s grid=(256,1,1) block=(256,1,1) lds=%d\n" % (KNAME, 160 * 1024)
    else:
        main_lines2 = []
        s = "; @launch grid=(256,1,1) block=(256,1,1) lds=%d\n" % (160 * 1024)
    s += '.amdgcn_target "amdgcn-amd-amdhsa--gfx950"\n.text\n.globl %s\n.p2align 8\n.type %s,@function\n' % (KNAME, KNAME)
    s += "\n".join(["L_code_begin:", KNAME + ":"] + main_lines + ["L_code_end:"] + main_lines2) + "\n"
    s += '.section .rodata,"a"\n.p2align 6\n' + kernel_desc(KNAME, 512, 256, 102)
    if pf:
        s += ".p2align 6\n" + kernel_desc("pf_kernel", 16, 16, 40)
    return s, rep


if __name__ == "__main__":
    cfg = dict(code_prefetch=True)
    for kv in sys.argv[2:]:
        k, v = kv.split("=")
        cfg[k] = eval(v)
    s, rep = build(cfg)
    open(sys.argv[1], "w").write(s)
    print("auto nops:", sum(r[0] for r in rep), "sites", len(rep), "bytes of source", len(s))
    if cfg.get("verbose"):
        for r in rep:
            print(r)
```

```python
from asmlib import *
from layout import *
from kern import split3, stamp, S_W, S_RB, S_HQ, V_L16, V_LANE, V_R31, V_H

LROW = 192
LST = 96 * 1024
LCS = LST + 49152
PX, PWQ, PWK, PWV, PWO, PW1, PW3, PW2, PDBG = 80, 82, 84, 86, 88, 92, 94, 96, 98
D = 200
V_SO, V_SO2 = 232, 233
S_DST = 55
S_TASK = 56
FL_WQ = 0xE000
WKV_COPY = 0x8000


def startup(a, cfg, K):
    SC = K.SC
    RES = K.V_RES
    t0, t1, t2, t3, t4, t5 = 24, 25, 26, 27, 28, 29
    ONES, CS = 32, 33
    R = 36
    QR = 88
    u0, u1, u2, u3, u4, u5 = 48, 49, 50, 51, 52, 53
    a("s_mov_b32 s36, s%d" % PDBG)
    a("s_mov_b32 s37, s%d" % (PDBG + 1))
    a("s_mov_b32 s38, 256")
    a("s_mov_b32 s39, 0x00020000")
    a("s_or_b32 s17, s2, s%d" % S_W)
    a("s_cmp_lg_u32 s17, 0")
    a("s_cbranch_scc1 L_s_notag")
    a("s_memrealtime s[18:19]")
    a("s_waitcnt lgkmcnt(0)")
    a("s_lshl_b32 s18, s18, 4")
    a("s_or_b32 s18, s18, 1")
    a("v_mov_b32 v%d, s18" % t0)
    a("s_mov_b64 exec, 3")
    a("buffer_store_dword v%d, v%d, s[36:39], 0 offen %s" % (t0, K.V_L128, SC))
    a("s_mov_b64 exec, -1")
    a("L_s_notag:")
    a("s_mov_b32 s40, s%d" % PX)
    a("s_mov_b32 s41, s%d" % (PX + 1))
    a("s_mov_b32 s42, %d" % (2048 * 512 * 2))
    a("s_mov_b32 s43, 0x00020000")
    a("s_lshl_b32 s17, s%d, 15" % K.S_RT)
    a("s_lshl_b32 s18, s%d, 6" % K.S_NT)
    a("s_add_u32 s17, s17, s18")
    a("v_lshlrev_b32 v%d, 10, v%d" % (t0, V_R31))
    a("v_lshl_add_u32 v%d, v%d, 4, v%d" % (t0, V_H, t0))
    a("buffer_load_dwordx4 v[%d:%d], v%d, s[40:43], s17 offen" % (RES, RES + 3, t0))
    a("buffer_load_dwordx4 v[%d:%d], v%d, s[40:43], s17 offen offset:32" % (RES + 4, RES + 7, t0))
    a("s_bitcmp1_b32 s%d, 0" % S_HQ)
    a("s_cselect_b32 s40, s%d, s%d" % (PWV, PWK))
    a("s_cselect_b32 s41, s%d, s%d" % (PWV + 1, PWK + 1))
    a("s_mov_b32 s42, %d" % (512 * 16 * 2))
    a("s_lshl_b32 s17, s%d, 12" % S_W)
    for p in range(4):
        a("buffer_load_dwordx4 v[%d:%d], v%d, s[40:43], s17 offen offset:%d" % (QR + 4 * p, QR + 4 * p + 3, V_L16, 1024 * p))
    a("s_mov_b32 s40, s%d\ns_mov_b32 s41, s%d\ns_mov_b32 s42, %d" % (PWQ, PWQ + 1, 512 * 512 * 2))
    a("v_lshrrev_b32 v%d, 3, v%d" % (u0, V_LANE))
    a("v_and_b32 v%d, 7, v%d" % (u1, V_LANE))
    a("v_lshlrev_b32 v%d, 10, v%d" % (u2, u0))
    a("v_lshl_add_u32 v%d, v%d, 4, v%d" % (u2, u1, u2))
    a("s_lshl_b32 s17, s%d, 17" % S_W)
    a("s_lshl_b32 s18, s%d, 7" % S_HQ)
    a("s_add_u32 s17, s17, s18")
    for p in range(16):
        a("buffer_load_dwordx4 v[%d:%d], v%d, s[40:43], s17 offen" % (QR + 16 + 4 * p, QR + 16 + 4 * p + 3, u2))
        if p < 15:
            a("s_add_u32 s17, s17, 8192")
    a("s_mul_i32 s18, s%d, %d" % (S_W, 128 * LROW))
    a("v_mul_u32_u24 v%d, %d, v%d" % (u2, LROW, u0))
    a("v_lshl_add_u32 v%d, v%d, 4, v%d" % (u2, u1, u2))
    a("v_add_u32 v%d, s18, v%d" % (u2, u2))
    a("v_lshrrev_b32 v%d, 1, v%d" % (u0, V_LANE))
    a("v_and_b32 v%d, 1, v%d" % (u1, V_LANE))
    a("v_mul_u32_u24 v%d, %d, v%d" % (u3, LROW, u0))
    a("v_lshl_add_u32 v%d, v%d, 4, v%d" % (u3, u1, u3))
    a("v_add_u32 v%d, s18, v%d" % (u3, u3))
    a("v_and_b32 v%d, 15, v%d" % (u0, V_LANE))
    a("v_lshrrev_b32 v%d, 2, v%d" % (u1, u0))
    a("v_lshl_add_u32 v%d, v%d, 2, v%d" % (u1, V_H, u1))
    a("v_mul_u32_u24 v%d, %d, v%d" % (u4, LROW, u1))
    a("v_and_b32 v%d, 3, v%d" % (u0, u0))
    a("v_lshl_add_u32 v%d, v%d, 3, v%d" % (u4, u0, u4))
    a("v_add_u32 v%d, s18, v%d" % (u4, u4))
    a("v_bfe_u32 v%d, v%d, 4, 1" % (u0, V_LANE))
    a("v_lshl_add_u32 v%d, v%d, 5, v%d" % (u5, u0, u4))
    a("s_lshr_b32 s18, s%d, 1" % S_W)
    a("s_lshl_b32 s18, s18, 6")
    a("v_add_u32 v%d, s18, v%d" % (u0, u5))
    a("s_xor_b32 s18, s18, 64")
    a("v_add_u32 v%d, s18, v%d" % (u1, u5))
    a("s_lshr_b32 s20, s2, 3")
    a("s_and_b32 s21, s2, 7")
    a("v_lshrrev_b32 v%d, 3, v0" % t1)
    a("v_and_b32 v%d, 7, v0" % t2)
    a("v_mul_u32_u24 v%d, %d, v%d" % (t4, LROW, t1))
    a("v_lshl_add_u32 v%d, v%d, 4, v%d" % (t4, t2, t4))
    a("v_add_u32 v%d, %d, v%d" % (t4, LST, t4))
    a("v_mov_b32 v%d, v%d" % (V_SO, V_L16))
    a("s_mov_b32 s22, 0")
    a("s_mov_b32 s23, 0")
    a("s_mov_b32 s24, 32768")
    a("s_mov_b32 s25, 1024")
    a("s_mov_b32 s42, %d" % (512 * 512 * 2))
    a("s_mov_b32 s%d, 2" % S_TASK)
    a("s_lshr_b32 s26, s20, 3")
    a("s_and_b32 s17, s20, 0x17")
    a("s_cmp_eq_u32 s17, 4")
    a("s_cbranch_scc1 L_s_wkv")
    a("s_cmp_eq_u32 s17, 5")
    a("s_cbranch_scc1 L_s_wq")
    a("s_cmp_gt_u32 s20, 5")
    a("s_cselect_b32 s17, 2, 0")
    a("s_sub_u32 s27, s20, s17")
    a("s_cmp_gt_u32 s20, 13")
    a("s_cselect_b32 s17, 2, 0")
    a("s_sub_u32 s27, s27, s17")
    a("s_lshl_b32 s27, s27, 3")
    a("s_add_u32 s27, s27, s21")
    a("s_and_b32 s26, s27, 1")
    a("s_cmp_lt_u32 s27, 112")
    a("s_cbranch_scc1 L_s_w13")
    a("s_cmp_lt_u32 s27, 168")
    a("s_cbranch_scc1 L_s_w2")
    a("s_cmp_lt_u32 s27, 184")
    a("s_cbranch_scc1 L_s_wo")
    a("s_mov_b32 s%d, 0" % S_TASK)
    a("s_mov_b32 s%d, 0xf0000000" % S_DST)
    a("s_branch L_s_loaded")
    a("L_s_wq:")
    a("s_mov_b32 s%d, 1" % S_TASK)
    a("s_mov_b32 s40, s%d\ns_mov_b32 s41, s%d" % (PWQ, PWQ + 1))
    a("s_mov_b32 s28, s21")
    a("s_mov_b32 s%d, 0x%x" % (S_DST, OFF_WQ))
    a("s_lshl_b32 s23, s28, 11")
    a("s_lshl_b32 s17, s26, 9")
    a("s_add_u32 s23, s23, s17")
    a("s_add_u32 s23, s23, 0x%x" % OFF_CSQX)
    a("s_lshl_b32 s29, s28, 5")
    a("s_lshl_b32 s17, s26, 4")
    a("s_add_u32 s29, s29, s17")
    a("s_add_u32 s29, s29, 0x%x" % (OFF_FLAGS + FL_WQ))
    a("s_branch L_s_qo")
    a("L_s_wo:")
    a("s_mov_b32 s40, s%d\ns_mov_b32 s41, s%d" % (PWO, PWO + 1))
    a("s_sub_u32 s28, s27, 168")
    a("s_lshr_b32 s28, s28, 1")
    a("s_mov_b32 s%d, 0x%x" % (S_DST, OFF_WO))
    a("L_s_qo:")
    a("s_lshl_b32 s30, s26, 18")
    a("s_lshl_b32 s17, s28, 7")
    a("s_add_u32 s30, s30, s17")
    a("s_lshl_b32 s17, s28, 16")
    a("s_add_u32 s%d, s%d, s17" % (S_DST, S_DST))
    a("s_lshl_b32 s17, s26, 14")
    a("s_add_u32 s%d, s%d, s17" % (S_DST, S_DST))
    a("s_branch L_s_go")
    a("L_s_w2:")
    a("s_sub_u32 s27, s27, 112")
    a("s_and_b32 s28, s27, 7")
    a("s_lshr_b32 s27, s27, 3")
    a("s_mov_b32 s40, s%d\ns_mov_b32 s41, s%d\ns_mov_b32 s42, %d" % (PW2, PW2 + 1, 1792 * 512 * 2))
    a("s_lshl_b32 s30, s27, 18")
    a("s_lshl_b32 s17, s28, 7")
    a("s_add_u32 s30, s30, s17")
    a("s_mov_b32 s24, %d" % (112 * 1024))
    a("s_mul_i32 s%d, s28, %d" % (S_DST, 2 * 112 * 1024))
    a("s_lshl_b32 s17, s27, 14")
    a("s_add_u32 s%d, s%d, s17" % (S_DST, S_DST))
    a("s_add_u32 s%d, s%d, 0x%x" % (S_DST, S_DST, OFF_W2))
    a("s_branch L_s_go")
    a("L_s_w13:")
    a("s_bfe_u32 s29, s27, 0x10001")
    a("s_lshr_b32 s28, s27, 2")
    a("s_cmp_eq_u32 s29, 0")
    a("s_cselect_b32 s40, s%d, s%d" % (PW1, PW3))
    a("s_cselect_b32 s41, s%d, s%d" % (PW1 + 1, PW3 + 1))
    a("s_mov_b32 s42, %d" % (512 * 1792 * 2))
    a("s_mov_b32 s25, 3584")
    a("s_mul_i32 s30, s26, %d" % (256 * 3584))
    a("s_lshl_b32 s17, s28, 7")
    a("s_add_u32 s30, s30, s17")
    a("s_mov_b32 s24, 65536")
    a("s_lshl_b32 s%d, s28, 17" % S_DST)
    a("s_lshl_b32 s17, s26, 14")
    a("s_add_u32 s%d, s%d, s17" % (S_DST, S_DST))
    a("s_lshl_b32 s17, s29, 8")
    a("s_add_u32 s%d, s%d, s17" % (S_DST, S_DST))
    a("s_add_u32 s%d, s%d, 0x%x" % (S_DST, S_DST, OFF_W13))
    a("s_lshl_b32 s23, s28, 12")
    a("s_add_u32 s23, s23, s17")
    a("s_lshl_b32 s17, s26, 9")
    a("s_add_u32 s23, s23, s17")
    a("s_add_u32 s23, s23, 0x%x" % OFF_CSX)
    a("v_and_b32 v%d, 15, v%d" % (V_SO, V_LANE))
    a("v_lshlrev_b32 v%d, 4, v%d" % (V_SO, V_SO))
    a("v_lshl_add_u32 v%d, v%d, 9, v%d" % (V_SO, V_H, V_SO))
    a("v_bfe_u32 v%d, v%d, 4, 1" % (t5, V_LANE))
    a("v_lshl_add_u32 v%d, v%d, 15, v%d" % (V_SO, t5, V_SO))
    a("L_s_go:")
    a("v_mul_lo_u32 v%d, v%d, s25" % (t3, t1))
    a("v_lshl_add_u32 v%d, v%d, 4, v%d" % (t3, t2, t3))
    a("s_lshl_b32 s17, s25, 5")
    for p in range(8):
        a("buffer_load_dwordx4 v[%d:%d], v%d, s[40:43], s30 offen" % (D + 4 * p, D + 4 * p + 3, t3))
        if p < 7:
            a("s_add_u32 s30, s30, s17")
    a("s_lshr_b32 s17, s%d, 1" % S_W)
    a("s_and_b32 s18, s%d, 1" % S_W)
    a("s_mul_i32 s19, s17, s24")
    a("s_add_u32 s%d, s%d, s19" % (S_DST, S_DST))
    a("s_lshl_b32 s19, s18, 13")
    a("s_add_u32 s%d, s%d, s19" % (S_DST, S_DST))
    a("s_lshl_b32 s17, s17, 6")
    a("s_mul_i32 s18, s18, %d" % (128 * LROW))
    a("s_add_u32 s33, s17, s18")
    a("v_bfe_u32 v%d, v%d, 4, 1" % (t1, V_LANE))
    a("v_lshlrev_b32 v%d, 5, v%d" % (t1, t1))
    a("s_mov_b32 s30, %d" % (32 * LROW))
    a("s_branch L_s_common")
    a("L_s_wkv:")
    a("s_mov_b32 s%d, 1" % S_TASK)
    a("s_cmp_eq_u32 s26, 0")
    a("s_cselect_b32 s40, s%d, s%d" % (PWV, PWK))
    a("s_cselect_b32 s41, s%d, s%d" % (PWV + 1, PWK + 1))
    a("s_mov_b32 s42, %d" % (512 * 16 * 2))
    a("v_lshrrev_b32 v%d, 1, v0" % t1)
    a("v_and_b32 v%d, 1, v0" % t2)
    a("v_mul_u32_u24 v%d, %d, v%d" % (t4, LROW, t1))
    a("v_lshl_add_u32 v%d, v%d, 4, v%d" % (t4, t2, t4))
    a("v_add_u32 v%d, %d, v%d" % (t4, LST, t4))
    a("v_lshlrev_b32 v%d, 4, v0" % t3)
    a("s_mov_b32 s30, 0")
    for p in range(8):
        a("buffer_load_dwordx4 v[%d:%d], v%d, s[40:43], s30 offen" % (D + 4 * p, D + 4 * p + 3, t3))
        if p < 7:
            a("s_add_u32 s30, s30, 4096")
            a("s_and_b32 s30, s30, 0x3fff")
    a("v_and_b32 v%d, 15, v%d" % (V_SO, V_LANE))
    a("v_lshlrev_b32 v%d, 4, v%d" % (V_SO, V_SO))
    a("v_lshl_add_u32 v%d, v%d, 9, v%d" % (V_SO, V_H, V_SO))
    a("s_mul_i32 s%d, s21, 0x%x" % (S_DST, WKV_COPY))
    a("s_lshl_b32 s17, s%d, 13" % S_W)
    a("s_add_u32 s%d, s%d, s17" % (S_DST, S_DST))
    a("s_lshl_b32 s17, s26, 8")
    a("s_add_u32 s%d, s%d, s17" % (S_DST, S_DST))
    a("s_add_u32 s%d, s%d, 0x%x" % (S_DST, S_DST, OFF_WKV))
    a("s_lshl_b32 s22, s21, 7")
    a("s_lshl_b32 s17, s26, 6")
    a("s_add_u32 s22, s22, s17")
    a("s_add_u32 s22, s22, 0x%x" % OFF_CSKV)
    a("s_lshl_b32 s29, s21, 7")
    a("s_lshl_b32 s17, s26, 4")
    a("s_add_u32 s29, s29, s17")
    a("s_add_u32 s29, s29, 0x%x" % (OFF_FLAGS + FL_WQ + 0x800))
    a("s_lshl_b32 s33, s%d, 5" % S_W)
    a("v_mov_b32 v%d, 0" % t1)
    a("s_mov_b32 s30, 16")
    a("s_mov_b32 s%d, 3" % S_TASK)
    a("L_s_common:")
    a("v_and_b32 v%d, 15, v%d" % (t2, V_LANE))
    a("v_lshrrev_b32 v%d, 2, v%d" % (t3, t2))
    a("v_lshl_add_u32 v%d, v%d, 2, v%d" % (t3, V_H, t3))
    a("v_mul_u32_u24 v%d, %d, v%d" % (t5, LROW, t3))
    a("v_and_b32 v%d, 3, v%d" % (t2, t2))
    a("v_lshl_add_u32 v%d, v%d, 3, v%d" % (t5, t2, t5))
    a("v_add_u32 v%d, v%d, v%d" % (t5, t1, t5))
    a("s_add_u32 s33, s33, %d" % LST)
    a("v_add_u32 v%d, s33, v%d" % (t5, t5))
    a("L_s_loaded:")
    a("v_add_u32 v%d, 4096, v%d" % (V_SO2, V_SO))
    a("s_and_b32 s17, s%d, 1" % S_W)
    a("s_lshl_b32 s59, s17, 7")
    a("buffer_load_dword v%d, v%d, s[36:39], s59 offen %s" % (K.V_TAG, K.V_ZERO, SC))
    a("s_getpc_b64 s[18:19]")
    a("L_s_pc:")
    a("s_add_u32 s18, s18, L_code_begin-L_s_pc")
    a("s_addc_u32 s19, s19, -1")
    a("s_lshl_b32 s17, s20, 11")
    a("v_lshlrev_b32 v%d, 3, v0" % t0)
    a("v_add_u32 v%d, s17, v%d" % (t0, t0))
    a("v_min_u32 v%d, L_code_end-L_code_begin-8, v%d" % (t0, t0))
    a("global_load_dwordx2 v[%d:%d], v%d, s[18:19]" % (34, 35, t0))
    stamp(a, cfg, 1)
    def raw_stage(extra):
        for j in range(20):
            if j % 2 == 0:
                a("s_waitcnt vmcnt(%d)" % (18 - j + extra))
            if j < 4:
                a("ds_write_b128 v%d, v[%d:%d] offset:%d" % (u3, QR + 4 * j, QR + 4 * j + 3, 128 + 32 * LROW * j))
            else:
                a("ds_write_b128 v%d, v[%d:%d] offset:%d" % (u2, QR + 4 * j, QR + 4 * j + 3, 8 * LROW * (j - 4)))

    a("s_cmp_eq_u32 s%d, 0" % S_TASK)
    a("s_cbranch_scc1 L_s_x0")
    a("s_waitcnt vmcnt(30)")
    a("s_branch L_s_x1")
    a("L_s_x0:")
    a("s_waitcnt vmcnt(22)")
    a("L_s_x1:")
    stamp(a, cfg, 2)
    a("v_permlane32_swap_b32 v%d, v%d" % (RES, RES + 2))
    a("v_permlane32_swap_b32 v%d, v%d" % (RES + 1, RES + 3))
    a("v_permlane32_swap_b32 v%d, v%d" % (RES + 4, RES + 6))
    a("v_permlane32_swap_b32 v%d, v%d" % (RES + 5, RES + 7))
    K.out_addr(a, 0)
    K.st4(a, RES, V_L16, 34)
    K.store_x_tail(a)
    K.xin_flag_addr(a, 58, True, 0)
    a("s_cmp_eq_u32 s%d, 0" % S_TASK)
    a("s_cbranch_scc1 L_s_raw0")
    raw_stage(10)
    a("s_branch L_s_raw1")
    a("L_s_raw0:")
    raw_stage(2)
    a("L_s_raw1:")
    a("s_waitcnt lgkmcnt(0)")
    for i in range(8):
        a("ds_read_b64_tr_b16 a[%d:%d], v%d offset:%d" % (128 + 4 * i, 129 + 4 * i, u4, 128 + 16 * LROW * i))
        a("ds_read_b64_tr_b16 a[%d:%d], v%d offset:%d" % (130 + 4 * i, 131 + 4 * i, u4, 128 + 16 * LROW * i + 8 * LROW))
    for j, ua in ((160, u0), (192, u1)):
        for i in range(8):
            a("ds_read_b64_tr_b16 a[%d:%d], v%d offset:%d" % (j + 4 * i, j + 1 + 4 * i, ua, 16 * LROW * i))
            a("ds_read_b64_tr_b16 a[%d:%d], v%d offset:%d" % (j + 2 + 4 * i, j + 3 + 4 * i, ua, 16 * LROW * i + 8 * LROW))
    stamp(a, cfg, 7)
    a("s_cmp_eq_u32 s%d, 0" % S_TASK)
    a("s_cbranch_scc1 L_s_xpub")
    a("s_cmp_eq_u32 s%d, 3" % S_TASK)
    a("s_cbranch_scc1 L_s_kvw")
    for p in range(8):
        a("s_waitcnt vmcnt(%d)" % (9 - p))
        a("ds_write_b128 v%d, v[%d:%d] offset:%d" % (t4, D + 4 * p, D + 4 * p + 3, 32 * LROW * p))
    a("s_branch L_s_xpub")
    a("L_s_kvw:")
    for p in range(4):
        a("s_waitcnt vmcnt(%d)" % (9 - p))
        a("ds_write_b128 v%d, v[%d:%d] offset:%d" % (t4, D + 4 * p, D + 4 * p + 3, 32 * p))
    a("s_waitcnt vmcnt(2)")
    a("L_s_xpub:")
    stamp(a, cfg, 3)

    def xflag(tagn, cnt):
        a("s_waitcnt vmcnt(%d)" % cnt)
        a("L_s_tg%d:" % tagn)
        a("v_cmp_ne_u32 vcc, 0, v%d" % K.V_TAG)
        a("s_cbranch_vccnz L_s_tagok%d" % tagn)
        if cfg.get("spin_limit"):
            a("s_sub_u32 s46, s46, 1")
            a("s_cbranch_scc1 L_s_tagok%d" % tagn)
        a("s_sleep 2")
        a("buffer_load_dword v%d, v%d, s[36:39], s59 offen %s" % (K.V_TAG, K.V_ZERO, SC))
        a("s_waitcnt vmcnt(0)")
        a("s_branch L_s_tg%d" % tagn)
        a("L_s_tagok%d:" % tagn)
        a("s_mov_b64 exec, 1")
        a("buffer_store_dword v%d, v%d, s[4:7], s58 offen %s" % (K.V_TAG, K.V_ZERO, SC))
        a("s_mov_b64 exec, -1")
        stamp(a, cfg, 4)

    a("s_bitcmp1_b32 s%d, 0" % S_TASK)
    a("s_cbranch_scc1 L_s_tr")
    xflag(0, 0)
    a("s_cmp_eq_u32 s%d, 0" % S_TASK)
    a("s_cbranch_scc1 L_s_done")
    a("L_s_tr:")
    a("s_waitcnt lgkmcnt(0)")
    a("s_barrier")
    for i in range(8):
        a("ds_read_b64_tr_b16 v[%d:%d], v%d offset:%d" % (D + 4 * i, D + 4 * i + 1, t5, 16 * LROW * i))
        a("ds_read_b64_tr_b16 v[%d:%d], v%d offset:%d" % (D + 4 * i + 2, D + 4 * i + 3, t5, 16 * LROW * i + 8 * LROW))
    a("s_cmp_eq_u32 s%d, 2" % S_TASK)
    a("s_cbranch_scc1 L_s_nost")
    for i in range(8):
        a("s_waitcnt lgkmcnt(%d)" % min(15, 14 - 2 * i))
        a("buffer_store_dwordx4 v[%d:%d], v%d, s[4:7], s%d offen offset:%d %s" % (D + 4 * i, D + 4 * i + 3, V_SO if i < 4 else V_SO2, S_DST, (i % 4) * 1024, SC))
    a("s_mov_b32 s%d, 0xf0000000" % S_DST)
    a("L_s_nost:")
    a("s_or_b32 s17, s22, s23")
    a("s_cmp_eq_u32 s17, 0")
    a("s_cbranch_scc1 L_s_done")
    a("v_mov_b32 v%d, 0x3f803f80" % ONES)
    a("v_mov_b32 v%d, 0" % CS)
    a("s_waitcnt lgkmcnt(0)")
    for r in range(32):
        a("v_dot2_f32_bf16 v%d, v%d, v%d, v%d" % (CS, D + r, ONES, CS))
    a("v_lshlrev_b32 v%d, 2, v0" % t0)
    a("v_add_u32 v%d, %d, v%d" % (t0, LCS, t0))
    a("ds_write_b32 v%d, v%d" % (t0, CS))
    a("s_waitcnt lgkmcnt(0)")
    a("s_barrier")
    a("s_and_b32 s17, s%d, 2" % S_W)
    a("s_lshl_b32 s17, s17, 8")
    a("s_add_u32 s17, s17, %d" % LCS)
    a("v_lshlrev_b32 v%d, 2, v%d" % (t0, V_R31))
    a("v_add_u32 v%d, s17, v%d" % (t1, t0))
    a("v_add_u32 v%d, %d, v%d" % (t2, LCS, t0))
    for q in range(4):
        a("ds_read_b32 v%d, v%d offset:%d" % (R + q, t1, 128 * q))
    for q in range(8):
        a("ds_read_b32 v%d, v%d offset:%d" % (R + 4 + q, t2, 128 * q))
    a("s_waitcnt lgkmcnt(0)")
    a("v_add_f32 v%d, v%d, v%d" % (R, R, R + 1))
    a("v_add_f32 v%d, v%d, v%d" % (R + 2, R + 2, R + 3))
    a("v_add_f32 v%d, v%d, v%d" % (R, R, R + 2))
    a("s_cmp_lg_u32 s%d, 3" % S_TASK)
    a("s_cbranch_scc1 L_s_csx")
    for q in (4, 2, 1):
        for i in range(q):
            a("v_add_f32 v%d, v%d, v%d" % (R + 4 + i, R + 4 + i, R + 4 + i + q))
    a("s_mov_b64 exec, 0xffff")
    a("buffer_store_dword v%d, v%d, s[4:7], s22 offen %s" % (R + 4, t0, SC))
    a("s_mov_b64 exec, -1")
    a("s_branch L_s_pub")
    a("L_s_csx:")
    split3(a, R, R + 4)
    a("v_lshrrev_b32 v%d, 16, v%d" % (R + 1, R + 4))
    a("v_or_b32 v%d, v%d, v%d" % (R + 8, R + 1, R + 4))
    a("v_lshrrev_b32 v%d, 16, v%d" % (R + 1, R + 5))
    a("v_or_b32 v%d, v%d, v%d" % (R + 9, R + 1, R + 4))
    a("v_lshrrev_b32 v%d, 16, v%d" % (R + 1, R + 6))
    a("v_or_b32 v%d, v%d, v%d" % (R + 10, R + 1, R + 5))
    a("v_mov_b32 v%d, 0" % (R + 11))
    a("v_and_b32 v%d, 15, v%d" % (t0, V_LANE))
    a("v_lshlrev_b32 v%d, 4, v%d" % (t0, t0))
    a("v_bfe_u32 v%d, v%d, 4, 1" % (t1, V_LANE))
    a("s_cmp_eq_u32 s%d, 1" % S_TASK)
    a("s_cselect_b32 s18, 8, 10")
    a("s_cselect_b32 s19, 10, 11")
    a("v_lshlrev_b32 v%d, s18, v%d" % (t1, t1))
    a("v_add_u32 v%d, v%d, v%d" % (t0, t1, t0))
    a("s_lshr_b32 s17, s%d, 1" % S_W)
    a("s_lshl_b32 s17, s17, s19")
    a("s_add_u32 s23, s23, s17")
    a("s_mov_b32 exec_hi, 0")
    a("buffer_store_dwordx4 v[%d:%d], v%d, s[4:7], s23 offen %s" % (R + 8, R + 11, t0, SC))
    a("s_mov_b32 exec_hi, -1")
    a("s_cmp_eq_u32 s%d, 2" % S_TASK)
    a("s_cbranch_scc1 L_s_done")
    a("L_s_pub:")
    a("s_lshl_b32 s17, s%d, 2" % S_W)
    a("s_add_u32 s29, s29, s17")
    xflag(1, 9)
    a("v_lshlrev_b32 v%d, 8, v%d" % (t1, V_LANE))
    a("s_cmp_eq_u32 s%d, 1" % S_TASK)
    a("s_cselect_b32 s17, 0xff, 1")
    a("s_waitcnt vmcnt(0)")
    a("s_mov_b32 exec_hi, 0")
    a("s_mov_b32 exec_lo, s17")
    a("buffer_store_dword v%d, v%d, s[4:7], s29 offen %s" % (K.V_TAG, t1, SC))
    a("s_mov_b64 exec, -1")
    a("L_s_done:")
    a("s_waitcnt lgkmcnt(0)")
    stamp(a, cfg, 5)
    a("s_barrier")
    stamp(a, cfg, 6)


def probe_addr(a, K, v0, v1, sdst):
    a("v_and_b32 v%d, 28, v%d" % (v0, K.V_L4))
    a("v_bfe_u32 v%d, v%d, 3, 1" % (v1, V_LANE))
    a("s_and_b32 s19, s2, 7")
    a("s_lshl_b32 s17, s%d, 5" % S_HQ)
    a("s_lshl_b32 s18, s19, 8")
    a("s_add_u32 s17, s17, s18")
    a("s_lshl_b32 s18, s19, 7")
    a("s_add_u32 s18, s18, 0x800")
    a("s_sub_u32 s18, s18, s17")
    a("v_mul_lo_u32 v%d, v%d, s18" % (v1, v1))
    a("v_add_u32 v%d, v%d, v%d" % (v0, v0, v1))
    a("s_add_u32 s%d, s17, 0x%x" % (sdst, OFF_FLAGS + FL_WQ))


def deferred_store_groups(K):
    return [["buffer_store_dwordx4 v[%d:%d], v%d, s[4:7], s%d offen offset:%d %s" % (D + 4 * i, D + 4 * i + 3, V_SO if i < 4 else V_SO2, S_DST, (i % 4) * 1024, K.SC)]
            for i in range(8)]
```

```python
from asmlib import *
from layout import *
from kern import split3, stamp, S_W, S_RB, S_HQ, V_L16, V_LANE, V_R31, V_H

LROW = 192
LST = 96 * 1024
LCS = LST + 49152
PX, PWQ, PWK, PWV, PWO, PW1, PW3, PW2, PDBG = 80, 82, 84, 86, 88, 92, 94, 96, 98
D = 200
V_SO, V_SO2 = 232, 233
S_DST = 55
S_TASK = 56
FL_WQ = 0xE000
WKV_COPY = 0x8000


def startup(a, cfg, K):
    SC = K.SC
    RES = K.V_RES
    t0, t1, t2, t3, t4, t5 = 24, 25, 26, 27, 28, 29
    ONES, CS = 32, 33
    R = 36
    QR = 88
    u0, u1, u2, u3, u4, u5, u6 = 48, 49, 50, 51, 52, 53, 54
    a("s_mov_b32 s36, s%d" % PDBG)
    a("s_mov_b32 s37, s%d" % (PDBG + 1))
    a("s_mov_b32 s38, 256")
    a("s_mov_b32 s39, 0x00020000")
    a("s_or_b32 s17, s2, s%d" % S_W)
    a("s_cmp_lg_u32 s17, 0")
    a("s_cbranch_scc1 L_s_notag")
    a("s_memrealtime s[18:19]")
    a("s_waitcnt lgkmcnt(0)")
    a("s_lshl_b32 s18, s18, 4")
    a("s_or_b32 s18, s18, 1")
    a("v_mov_b32 v%d, s18" % t0)
    a("s_mov_b64 exec, 3")
    a("buffer_store_dword v%d, v%d, s[36:39], 0 offen %s" % (t0, K.V_L128, SC))
    a("s_mov_b64 exec, -1")
    a("L_s_notag:")
    a("s_mov_b32 s40, s%d" % PX)
    a("s_mov_b32 s41, s%d" % (PX + 1))
    a("s_mov_b32 s42, %d" % (2048 * 512 * 2))
    a("s_mov_b32 s43, 0x00020000")
    a("s_lshl_b32 s17, s%d, 15" % K.S_RT)
    a("s_lshl_b32 s18, s%d, 6" % K.S_NT)
    a("s_add_u32 s17, s17, s18")
    a("v_lshlrev_b32 v%d, 10, v%d" % (t0, V_R31))
    a("v_lshl_add_u32 v%d, v%d, 4, v%d" % (t0, V_H, t0))
    a("buffer_load_dwordx4 v[%d:%d], v%d, s[40:43], s17 offen" % (RES, RES + 3, t0))
    a("buffer_load_dwordx4 v[%d:%d], v%d, s[40:43], s17 offen offset:32" % (RES + 4, RES + 7, t0))
    a("s_bitcmp1_b32 s%d, 0" % S_HQ)
    a("s_cselect_b32 s40, s%d, s%d" % (PWV, PWK))
    a("s_cselect_b32 s41, s%d, s%d" % (PWV + 1, PWK + 1))
    a("s_mov_b32 s42, %d" % (512 * 16 * 2))
    a("s_lshl_b32 s17, s%d, 12" % S_W)
    for p in range(4):
        a("buffer_load_dwordx4 v[%d:%d], v%d, s[40:43], s17 offen offset:%d" % (QR + 4 * p, QR + 4 * p + 3, V_L16, 1024 * p))
    a("s_mov_b32 s40, s%d\ns_mov_b32 s41, s%d\ns_mov_b32 s42, %d" % (PWQ, PWQ + 1, 512 * 512 * 2))
    a("v_lshrrev_b32 v%d, 3, v%d" % (u0, V_LANE))
    a("v_and_b32 v%d, 7, v%d" % (u1, V_LANE))
    a("v_lshlrev_b32 v%d, 10, v%d" % (u2, u0))
    a("v_lshl_add_u32 v%d, v%d, 4, v%d" % (u2, u1, u2))
    a("s_lshl_b32 s17, s%d, 17" % S_W)
    a("s_lshl_b32 s18, s%d, 7" % S_HQ)
    a("s_add_u32 s17, s17, s18")
    a("v_mov_b32 v%d, v%d" % (u6, u2))
    for p in range(8):
        a("buffer_load_dwordx4 v[%d:%d], v%d, s[40:43], s17 offen" % (QR + 16 + 4 * p, QR + 16 + 4 * p + 3, u6))
        a("s_add_u32 s17, s17, 8192")
    a("s_mov_b32 s54, s17")
    a("s_and_b32 s18, s%d, 1" % S_W)
    a("s_lshl_b32 s59, s18, 7")
    a("buffer_load_dword v%d, v%d, s[36:39], s59 offen %s" % (K.V_TAG, K.V_ZERO, SC))
    a("s_mul_i32 s18, s%d, %d" % (S_W, 128 * LROW))
    a("v_mul_u32_u24 v%d, %d, v%d" % (u2, LROW, u0))
    a("v_lshl_add_u32 v%d, v%d, 4, v%d" % (u2, u1, u2))
    a("v_add_u32 v%d, s18, v%d" % (u2, u2))
    a("v_lshrrev_b32 v%d, 1, v%d" % (u0, V_LANE))
    a("v_and_b32 v%d, 1, v%d" % (u1, V_LANE))
    a("v_mul_u32_u24 v%d, %d, v%d" % (u3, LROW, u0))
    a("v_lshl_add_u32 v%d, v%d, 4, v%d" % (u3, u1, u3))
    a("v_add_u32 v%d, s18, v%d" % (u3, u3))
    a("v_and_b32 v%d, 15, v%d" % (u0, V_LANE))
    a("v_lshrrev_b32 v%d, 2, v%d" % (u1, u0))
    a("v_lshl_add_u32 v%d, v%d, 2, v%d" % (u1, V_H, u1))
    a("v_mul_u32_u24 v%d, %d, v%d" % (u4, LROW, u1))
    a("v_and_b32 v%d, 3, v%d" % (u0, u0))
    a("v_lshl_add_u32 v%d, v%d, 3, v%d" % (u4, u0, u4))
    a("v_add_u32 v%d, s18, v%d" % (u4, u4))
    a("v_bfe_u32 v%d, v%d, 4, 1" % (u0, V_LANE))
    a("v_lshl_add_u32 v%d, v%d, 5, v%d" % (u5, u0, u4))
    a("s_lshr_b32 s18, s%d, 1" % S_W)
    a("s_lshl_b32 s18, s18, 6")
    a("v_add_u32 v%d, s18, v%d" % (u0, u5))
    a("s_xor_b32 s18, s18, 64")
    a("v_add_u32 v%d, s18, v%d" % (u1, u5))

    def raw_stage(j0, j1, last, extra):
        for j in range(j0, j1):
            if (j - j0) % 2 == 0:
                a("s_waitcnt vmcnt(%d)" % (last - j - 1 + extra))
            if j < 4:
                a("ds_write_b128 v%d, v[%d:%d] offset:%d" % (u3, QR + 4 * j, QR + 4 * j + 3, 128 + 32 * LROW * j))
            else:
                a("ds_write_b128 v%d, v[%d:%d] offset:%d" % (u2, QR + 4 * j, QR + 4 * j + 3, 8 * LROW * (j - 4)))

    def xflag(tagn, cnt):
        a("s_waitcnt vmcnt(%d)" % cnt)
        a("L_s_tg%d:" % tagn)
        a("v_cmp_ne_u32 vcc, 0, v%d" % K.V_TAG)
        a("s_cbranch_vccnz L_s_tagok%d" % tagn)
        if cfg.get("spin_limit"):
            a("s_sub_u32 s46, s46, 1")
            a("s_cbranch_scc1 L_s_tagok%d" % tagn)
        a("s_sleep 2")
        a("buffer_load_dword v%d, v%d, s[36:39], s59 offen %s" % (K.V_TAG, K.V_ZERO, SC))
        a("s_waitcnt vmcnt(0)")
        a("s_branch L_s_tg%d" % tagn)
        a("L_s_tagok%d:" % tagn)
        a("s_mov_b64 exec, 1")
        a("buffer_store_dword v%d, v%d, s[4:7], s58 offen %s" % (K.V_TAG, K.V_ZERO, SC))
        a("s_mov_b64 exec, -1")
        stamp(a, cfg, 4)


    stamp(a, cfg, 1)
    a("s_waitcnt vmcnt(13)")
    stamp(a, cfg, 2)
    a("v_permlane32_swap_b32 v%d, v%d" % (RES, RES + 2))
    a("v_permlane32_swap_b32 v%d, v%d" % (RES + 1, RES + 3))
    a("v_permlane32_swap_b32 v%d, v%d" % (RES + 4, RES + 6))
    a("v_permlane32_swap_b32 v%d, v%d" % (RES + 5, RES + 7))
    K.out_addr(a, 0)
    K.st4(a, RES, V_L16, 34)
    K.store_x_tail(a)
    K.xin_flag_addr(a, 58, True, 0)
    raw_stage(0, 12, 11, 1)
    a("s_waitcnt lgkmcnt(0)")
    for i in range(8):
        a("ds_read_b64_tr_b16 a[%d:%d], v%d offset:%d" % (128 + 4 * i, 129 + 4 * i, u4, 128 + 16 * LROW * i))
        a("ds_read_b64_tr_b16 a[%d:%d], v%d offset:%d" % (130 + 4 * i, 131 + 4 * i, u4, 128 + 16 * LROW * i + 8 * LROW))
    xflag(0, 0)
    for p in range(8, 16):
        a("buffer_load_dwordx4 v[%d:%d], v%d, s[40:43], s54 offen" % (QR + 16 + 4 * p, QR + 16 + 4 * p + 3, u6))
        a("s_add_u32 s54, s54, 8192")
    a("s_lshr_b32 s20, s2, 3")
    a("s_and_b32 s21, s2, 7")
    a("v_lshrrev_b32 v%d, 3, v0" % t1)
    a("v_and_b32 v%d, 7, v0" % t2)
    a("v_mul_u32_u24 v%d, %d, v%d" % (t4, LROW, t1))
    a("v_lshl_add_u32 v%d, v%d, 4, v%d" % (t4, t2, t4))
    a("v_add_u32 v%d, %d, v%d" % (t4, LST, t4))
    a("v_mov_b32 v%d, v%d" % (V_SO, V_L16))
    a("s_mov_b32 s22, 0")
    a("s_mov_b32 s23, 0")
    a("s_mov_b32 s24, 32768")
    a("s_mov_b32 s25, 1024")
    a("s_mov_b32 s42, %d" % (512 * 512 * 2))
    a("s_mov_b32 s%d, 2" % S_TASK)
    a("s_lshr_b32 s26, s20, 3")
    a("s_and_b32 s17, s20, 0x17")
    a("s_cmp_eq_u32 s17, 4")
    a("s_cbranch_scc1 L_s_wkv")
    a("s_cmp_eq_u32 s17, 5")
    a("s_cbranch_scc1 L_s_wq")
    a("s_cmp_gt_u32 s20, 5")
    a("s_cselect_b32 s17, 2, 0")
    a("s_sub_u32 s27, s20, s17")
    a("s_cmp_gt_u32 s20, 13")
    a("s_cselect_b32 s17, 2, 0")
    a("s_sub_u32 s27, s27, s17")
    a("s_lshl_b32 s27, s27, 3")
    a("s_add_u32 s27, s27, s21")
    a("s_and_b32 s26, s27, 1")
    a("s_cmp_lt_u32 s27, 112")
    a("s_cbranch_scc1 L_s_w13")
    a("s_cmp_lt_u32 s27, 168")
    a("s_cbranch_scc1 L_s_w2")
    a("s_cmp_lt_u32 s27, 184")
    a("s_cbranch_scc1 L_s_wo")
    a("s_mov_b32 s%d, 0" % S_TASK)
    a("s_mov_b32 s%d, 0xf0000000" % S_DST)
    a("s_branch L_s_loaded")
    a("L_s_wq:")
    a("s_mov_b32 s%d, 1" % S_TASK)
    a("s_mov_b32 s40, s%d\ns_mov_b32 s41, s%d" % (PWQ, PWQ + 1))
    a("s_mov_b32 s28, s21")
    a("s_mov_b32 s%d, 0x%x" % (S_DST, OFF_WQ))
    a("s_lshl_b32 s23, s28, 11")
    a("s_lshl_b32 s17, s26, 9")
    a("s_add_u32 s23, s23, s17")
    a("s_add_u32 s23, s23, 0x%x" % OFF_CSQX)
    a("s_lshl_b32 s29, s28, 5")
    a("s_lshl_b32 s17, s26, 4")
    a("s_add_u32 s29, s29, s17")
    a("s_add_u32 s29, s29, 0x%x" % (OFF_FLAGS + FL_WQ))
    a("s_branch L_s_qo")
    a("L_s_wo:")
    a("s_mov_b32 s40, s%d\ns_mov_b32 s41, s%d" % (PWO, PWO + 1))
    a("s_sub_u32 s28, s27, 168")
    a("s_lshr_b32 s28, s28, 1")
    a("s_mov_b32 s%d, 0x%x" % (S_DST, OFF_WO))
    a("L_s_qo:")
    a("s_lshl_b32 s30, s26, 18")
    a("s_lshl_b32 s17, s28, 7")
    a("s_add_u32 s30, s30, s17")
    a("s_lshl_b32 s17, s28, 16")
    a("s_add_u32 s%d, s%d, s17" % (S_DST, S_DST))
    a("s_lshl_b32 s17, s26, 14")
    a("s_add_u32 s%d, s%d, s17" % (S_DST, S_DST))
    a("s_branch L_s_go")
    a("L_s_w2:")
    a("s_sub_u32 s27, s27, 112")
    a("s_and_b32 s28, s27, 7")
    a("s_lshr_b32 s27, s27, 3")
    a("s_mov_b32 s40, s%d\ns_mov_b32 s41, s%d\ns_mov_b32 s42, %d" % (PW2, PW2 + 1, 1792 * 512 * 2))
    a("s_lshl_b32 s30, s27, 18")
    a("s_lshl_b32 s17, s28, 7")
    a("s_add_u32 s30, s30, s17")
    a("s_mov_b32 s24, %d" % (112 * 1024))
    a("s_mul_i32 s%d, s28, %d" % (S_DST, 2 * 112 * 1024))
    a("s_lshl_b32 s17, s27, 14")
    a("s_add_u32 s%d, s%d, s17" % (S_DST, S_DST))
    a("s_add_u32 s%d, s%d, 0x%x" % (S_DST, S_DST, OFF_W2))
    a("s_branch L_s_go")
    a("L_s_w13:")
    a("s_bfe_u32 s29, s27, 0x10001")
    a("s_lshr_b32 s28, s27, 2")
    a("s_cmp_eq_u32 s29, 0")
    a("s_cselect_b32 s40, s%d, s%d" % (PW1, PW3))
    a("s_cselect_b32 s41, s%d, s%d" % (PW1 + 1, PW3 + 1))
    a("s_mov_b32 s42, %d" % (512 * 1792 * 2))
    a("s_mov_b32 s25, 3584")
    a("s_mul_i32 s30, s26, %d" % (256 * 3584))
    a("s_lshl_b32 s17, s28, 7")
    a("s_add_u32 s30, s30, s17")
    a("s_mov_b32 s24, 65536")
    a("s_lshl_b32 s%d, s28, 17" % S_DST)
    a("s_lshl_b32 s17, s26, 14")
    a("s_add_u32 s%d, s%d, s17" % (S_DST, S_DST))
    a("s_lshl_b32 s17, s29, 8")
    a("s_add_u32 s%d, s%d, s17" % (S_DST, S_DST))
    a("s_add_u32 s%d, s%d, 0x%x" % (S_DST, S_DST, OFF_W13))
    a("s_lshl_b32 s23, s28, 12")
    a("s_add_u32 s23, s23, s17")
    a("s_lshl_b32 s17, s26, 9")
    a("s_add_u32 s23, s23, s17")
    a("s_add_u32 s23, s23, 0x%x" % OFF_CSX)
    a("v_and_b32 v%d, 15, v%d" % (V_SO, V_LANE))
    a("v_lshlrev_b32 v%d, 4, v%d" % (V_SO, V_SO))
    a("v_lshl_add_u32 v%d, v%d, 9, v%d" % (V_SO, V_H, V_SO))
    a("v_bfe_u32 v%d, v%d, 4, 1" % (t5, V_LANE))
    a("v_lshl_add_u32 v%d, v%d, 15, v%d" % (V_SO, t5, V_SO))
    a("L_s_go:")
    a("v_mul_lo_u32 v%d, v%d, s25" % (t3, t1))
    a("v_lshl_add_u32 v%d, v%d, 4, v%d" % (t3, t2, t3))
    a("s_lshl_b32 s17, s25, 5")
    for p in range(8):
        a("buffer_load_dwordx4 v[%d:%d], v%d, s[40:43], s30 offen" % (D + 4 * p, D + 4 * p + 3, t3))
        if p < 7:
            a("s_add_u32 s30, s30, s17")
    a("s_lshr_b32 s17, s%d, 1" % S_W)
    a("s_and_b32 s18, s%d, 1" % S_W)
    a("s_mul_i32 s19, s17, s24")
    a("s_add_u32 s%d, s%d, s19" % (S_DST, S_DST))
    a("s_lshl_b32 s19, s18, 13")
    a("s_add_u32 s%d, s%d, s19" % (S_DST, S_DST))
    a("s_lshl_b32 s17, s17, 6")
    a("s_mul_i32 s18, s18, %d" % (128 * LROW))
    a("s_add_u32 s33, s17, s18")
    a("v_bfe_u32 v%d, v%d, 4, 1" % (t1, V_LANE))
    a("v_lshlrev_b32 v%d, 5, v%d" % (t1, t1))
    a("s_mov_b32 s30, %d" % (32 * LROW))
    a("s_branch L_s_common")
    a("L_s_wkv:")
    a("s_mov_b32 s%d, 1" % S_TASK)
    a("s_cmp_eq_u32 s26, 0")
    a("s_cselect_b32 s40, s%d, s%d" % (PWV, PWK))
    a("s_cselect_b32 s41, s%d, s%d" % (PWV + 1, PWK + 1))
    a("s_mov_b32 s42, %d" % (512 * 16 * 2))
    a("v_lshrrev_b32 v%d, 1, v0" % t1)
    a("v_and_b32 v%d, 1, v0" % t2)
    a("v_mul_u32_u24 v%d, %d, v%d" % (t4, LROW, t1))
    a("v_lshl_add_u32 v%d, v%d, 4, v%d" % (t4, t2, t4))
    a("v_add_u32 v%d, %d, v%d" % (t4, LST, t4))
    a("v_lshlrev_b32 v%d, 4, v0" % t3)
    a("s_mov_b32 s30, 0")
    for p in range(8):
        a("buffer_load_dwordx4 v[%d:%d], v%d, s[40:43], s30 offen" % (D + 4 * p, D + 4 * p + 3, t3))
        if p < 7:
            a("s_add_u32 s30, s30, 4096")
            a("s_and_b32 s30, s30, 0x3fff")
    a("v_and_b32 v%d, 15, v%d" % (V_SO, V_LANE))
    a("v_lshlrev_b32 v%d, 4, v%d" % (V_SO, V_SO))
    a("v_lshl_add_u32 v%d, v%d, 9, v%d" % (V_SO, V_H, V_SO))
    a("s_mul_i32 s%d, s21, 0x%x" % (S_DST, WKV_COPY))
    a("s_lshl_b32 s17, s%d, 13" % S_W)
    a("s_add_u32 s%d, s%d, s17" % (S_DST, S_DST))
    a("s_lshl_b32 s17, s26, 8")
    a("s_add_u32 s%d, s%d, s17" % (S_DST, S_DST))
    a("s_add_u32 s%d, s%d, 0x%x" % (S_DST, S_DST, OFF_WKV))
    a("s_lshl_b32 s29, s21, 7")
    a("s_lshl_b32 s17, s26, 4")
    a("s_add_u32 s29, s29, s17")
    a("s_add_u32 s29, s29, 0x%x" % (OFF_FLAGS + FL_WQ + 0x800))
    a("s_lshl_b32 s33, s%d, 5" % S_W)
    a("v_mov_b32 v%d, 0" % t1)
    a("s_mov_b32 s30, 16")
    a("s_mov_b32 s%d, 3" % S_TASK)
    a("L_s_common:")
    a("v_and_b32 v%d, 15, v%d" % (t2, V_LANE))
    a("v_lshrrev_b32 v%d, 2, v%d" % (t3, t2))
    a("v_lshl_add_u32 v%d, v%d, 2, v%d" % (t3, V_H, t3))
    a("v_mul_u32_u24 v%d, %d, v%d" % (t5, LROW, t3))
    a("v_and_b32 v%d, 3, v%d" % (t2, t2))
    a("v_lshl_add_u32 v%d, v%d, 3, v%d" % (t5, t2, t5))
    a("v_add_u32 v%d, v%d, v%d" % (t5, t1, t5))
    a("s_add_u32 s33, s33, %d" % LST)
    a("v_add_u32 v%d, s33, v%d" % (t5, t5))
    a("L_s_loaded:")
    a("v_add_u32 v%d, 4096, v%d" % (V_SO2, V_SO))
    a("s_getpc_b64 s[18:19]")
    a("L_s_pc:")
    a("s_add_u32 s18, s18, L_code_begin-L_s_pc")
    a("s_addc_u32 s19, s19, -1")
    a("s_lshl_b32 s17, s20, 11")
    a("v_lshlrev_b32 v%d, 3, v0" % t0)
    a("v_add_u32 v%d, s17, v%d" % (t0, t0))
    a("v_min_u32 v%d, L_code_end-L_code_begin-8, v%d" % (t0, t0))
    a("global_load_dwordx2 v[%d:%d], v%d, s[18:19]" % (34, 35, t0))
    a("s_cmp_eq_u32 s%d, 0" % S_TASK)
    a("s_cbranch_scc1 L_s_raw0")
    raw_stage(12, 20, 19, 9)
    a("s_branch L_s_raw1")
    a("L_s_raw0:")
    raw_stage(12, 20, 19, 1)
    a("L_s_raw1:")
    a("s_waitcnt lgkmcnt(0)")
    for j, ua in ((160, u0), (192, u1)):
        for i in range(8):
            a("ds_read_b64_tr_b16 a[%d:%d], v%d offset:%d" % (j + 4 * i, j + 1 + 4 * i, ua, 16 * LROW * i))
            a("ds_read_b64_tr_b16 a[%d:%d], v%d offset:%d" % (j + 2 + 4 * i, j + 3 + 4 * i, ua, 16 * LROW * i + 8 * LROW))
    stamp(a, cfg, 7)
    a("s_cmp_eq_u32 s%d, 0" % S_TASK)
    a("s_cbranch_scc1 L_s_xpub")
    a("s_cmp_eq_u32 s%d, 3" % S_TASK)
    a("s_cbranch_scc1 L_s_kvw")
    for p in range(8):
        a("s_waitcnt vmcnt(%d)" % (8 - p))
        a("ds_write_b128 v%d, v[%d:%d] offset:%d" % (t4, D + 4 * p, D + 4 * p + 3, 32 * LROW * p))
    a("s_branch L_s_xpub")
    a("L_s_kvw:")
    for p in range(4):
        a("s_waitcnt vmcnt(%d)" % (8 - p))
        a("ds_write_b128 v%d, v[%d:%d] offset:%d" % (t4, D + 4 * p, D + 4 * p + 3, 32 * p))
    a("s_waitcnt vmcnt(1)")
    a("L_s_xpub:")
    stamp(a, cfg, 3)

    a("s_cmp_eq_u32 s%d, 0" % S_TASK)
    a("s_cbranch_scc1 L_s_done")
    a("L_s_tr:")
    a("s_waitcnt lgkmcnt(0)")
    a("s_barrier")
    for i in range(8):
        a("ds_read_b64_tr_b16 v[%d:%d], v%d offset:%d" % (D + 4 * i, D + 4 * i + 1, t5, 16 * LROW * i))
        a("ds_read_b64_tr_b16 v[%d:%d], v%d offset:%d" % (D + 4 * i + 2, D + 4 * i + 3, t5, 16 * LROW * i + 8 * LROW))
    a("s_cmp_eq_u32 s%d, 2" % S_TASK)
    a("s_cbranch_scc1 L_s_nost")
    for i in range(8):
        a("s_waitcnt lgkmcnt(%d)" % min(15, 14 - 2 * i))
        a("buffer_store_dwordx4 v[%d:%d], v%d, s[4:7], s%d offen offset:%d %s" % (D + 4 * i, D + 4 * i + 3, V_SO if i < 4 else V_SO2, S_DST, (i % 4) * 1024, SC))
    a("s_mov_b32 s%d, 0xf0000000" % S_DST)
    a("L_s_nost:")
    a("s_cmp_eq_u32 s%d, 3" % S_TASK)
    a("s_cbranch_scc1 L_s_pub")
    a("s_cmp_eq_u32 s23, 0")
    a("s_cbranch_scc1 L_s_done")
    a("v_mov_b32 v%d, 0x3f803f80" % ONES)
    a("v_mov_b32 v%d, 0" % CS)
    a("s_waitcnt lgkmcnt(0)")
    for r in range(32):
        a("v_dot2_f32_bf16 v%d, v%d, v%d, v%d" % (CS, D + r, ONES, CS))
    a("v_lshlrev_b32 v%d, 2, v0" % t0)
    a("v_add_u32 v%d, %d, v%d" % (t0, LCS, t0))
    a("ds_write_b32 v%d, v%d" % (t0, CS))
    a("s_waitcnt lgkmcnt(0)")
    a("s_barrier")
    a("s_and_b32 s17, s%d, 2" % S_W)
    a("s_lshl_b32 s17, s17, 8")
    a("s_add_u32 s17, s17, %d" % LCS)
    a("v_lshlrev_b32 v%d, 2, v%d" % (t0, V_R31))
    a("v_add_u32 v%d, s17, v%d" % (t1, t0))
    for q in range(4):
        a("ds_read_b32 v%d, v%d offset:%d" % (R + q, t1, 128 * q))
    a("s_waitcnt lgkmcnt(0)")
    a("v_add_f32 v%d, v%d, v%d" % (R, R, R + 1))
    a("v_add_f32 v%d, v%d, v%d" % (R + 2, R + 2, R + 3))
    a("v_add_f32 v%d, v%d, v%d" % (R, R, R + 2))
    split3(a, R, R + 4)
    a("v_lshrrev_b32 v%d, 16, v%d" % (R + 1, R + 4))
    a("v_or_b32 v%d, v%d, v%d" % (R + 8, R + 1, R + 4))
    a("v_lshrrev_b32 v%d, 16, v%d" % (R + 1, R + 5))
    a("v_or_b32 v%d, v%d, v%d" % (R + 9, R + 1, R + 4))
    a("v_lshrrev_b32 v%d, 16, v%d" % (R + 1, R + 6))
    a("v_or_b32 v%d, v%d, v%d" % (R + 10, R + 1, R + 5))
    a("v_mov_b32 v%d, 0" % (R + 11))
    a("v_and_b32 v%d, 15, v%d" % (t0, V_LANE))
    a("v_lshlrev_b32 v%d, 4, v%d" % (t0, t0))
    a("v_bfe_u32 v%d, v%d, 4, 1" % (t1, V_LANE))
    a("s_cmp_eq_u32 s%d, 1" % S_TASK)
    a("s_cselect_b32 s18, 8, 10")
    a("s_cselect_b32 s19, 10, 11")
    a("v_lshlrev_b32 v%d, s18, v%d" % (t1, t1))
    a("v_add_u32 v%d, v%d, v%d" % (t0, t1, t0))
    a("s_lshr_b32 s17, s%d, 1" % S_W)
    a("s_lshl_b32 s17, s17, s19")
    a("s_add_u32 s23, s23, s17")
    a("s_mov_b32 exec_hi, 0")
    a("buffer_store_dwordx4 v[%d:%d], v%d, s[4:7], s23 offen %s" % (R + 8, R + 11, t0, SC))
    a("s_mov_b32 exec_hi, -1")
    a("s_cmp_eq_u32 s%d, 2" % S_TASK)
    a("s_cbranch_scc1 L_s_done")
    a("L_s_pub:")
    a("s_lshl_b32 s17, s%d, 2" % S_W)
    a("s_add_u32 s29, s29, s17")
    a("v_lshlrev_b32 v%d, 8, v%d" % (t1, V_LANE))
    a("s_cmp_eq_u32 s%d, 1" % S_TASK)
    a("s_cselect_b32 s17, 0xff, 1")
    a("s_waitcnt vmcnt(0)")
    a("s_mov_b32 exec_hi, 0")
    a("s_mov_b32 exec_lo, s17")
    a("buffer_store_dword v%d, v%d, s[4:7], s29 offen %s" % (K.V_TAG, t1, SC))
    a("s_mov_b64 exec, -1")
    a("L_s_done:")
    a("s_waitcnt lgkmcnt(0)")
    stamp(a, cfg, 5)
    a("s_barrier")
    stamp(a, cfg, 6)


def probe_addr(a, K, v0, v1, sdst):
    a("v_and_b32 v%d, 28, v%d" % (v0, K.V_L4))
    a("v_bfe_u32 v%d, v%d, 3, 1" % (v1, V_LANE))
    a("s_and_b32 s19, s2, 7")
    a("s_lshl_b32 s17, s%d, 5" % S_HQ)
    a("s_lshl_b32 s18, s19, 8")
    a("s_add_u32 s17, s17, s18")
    a("s_lshl_b32 s18, s19, 7")
    a("s_add_u32 s18, s18, 0x800")
    a("s_sub_u32 s18, s18, s17")
    a("v_mul_lo_u32 v%d, v%d, s18" % (v1, v1))
    a("v_add_u32 v%d, v%d, v%d" % (v0, v0, v1))
    a("s_add_u32 s%d, s17, 0x%x" % (sdst, OFF_FLAGS + FL_WQ))


def deferred_store_groups(K):
    return [["buffer_store_dwordx4 v[%d:%d], v%d, s[4:7], s%d offen offset:%d %s" % (D + 4 * i, D + 4 * i + 3, V_SO if i < 4 else V_SO2, S_DST, (i % 4) * 1024, K.SC)]
            for i in range(8)]
```

```python
import sys
from asmlib import *
from layout import *
import kern
import startup as SU
from kern import (split3, fl, MF, S_LAYER, S_W, S_RB, S_HQ, S_RG, S_M, V_L16, V_LANE, V_R31, V_H, V_OFF, xhalf_sum,
                  load_stats, finish_stats, pack8, stamp, kernel_desc, prep, NSTAMP)

SC = "sc1"


COMPACT = [1]
CMAP = {OFF_X: 0x800000, OFF_O: 0xC00000, OFF_H: 0xE00000, OFF_STAT: OFF_STAT}
C_WKV = 0x780000
C_END = 0x1500000


def layer_off(a, sdst, base, stride, mul=1, add=0):
    if COMPACT[0] and base in CMAP:
        a("s_mov_b32 s%d, 0x%x" % (sdst, CMAP[base] + (add & 1) * stride))
    else:
        kern.layer_off(a, sdst, base, stride, mul, add)


def blk(a, dst, sbase, i, sc=SC):
    kern.blk(a, dst, sbase, i, SC)


FL_O = 0x0000
FL_X1 = 0x2000
FL_H = 0x8000
FL_XIN = 0x6000
OFF_FLW = 0x64C000
FL_KV = 0xC000

S_RT, S_NT = 31, 32
S_FO, S_FX1, S_FH = 40, 41, 42
S_W13, S_WL = 47, 48
S_RET = 44
V_RES = 12
V_TAG = 11
V_L4 = 20
V_ZERO = 21
VB = 24

G_ACC = 24
G_RED = 88
G_ST = 136
G_CS = 152
G_T = 168
V_WR = [184, 185, 186]
V_RD = 187
V_NMU, V_RSTD = 188, 189
G_KVACC = 88
G_Q = 190
W2V = 200

LDS_R1 = 96 * 1024
LDS_RQ = 0
LDS_KVX = 49152
LDS_CSX = 69632
LDS_CS = 152 * 1024
LDS_E = 128 * 1024


DBL = [0]
LSC = ["sc1"]
S_LOC = 57
DUAL = [False]
_dl = [0]


def lstore(text):
    lines = text if isinstance(text, list) else [text]
    if not DUAL[0]:
        return [l + " sc1" for l in lines]
    _dl[0] += 1
    n = _dl[0]
    return (["s_cbranch_scc1 L_ls%da ; needs scc" % n] + [l + " sc1" for l in lines] + ["s_branch L_ls%db" % n, "L_ls%da:" % n] +
            ["!" + l for l in lines] + ["L_ls%db:" % n])


def emit_l(a, text):
    out = lstore(text)
    if DUAL[0]:
        a("s_cmp_lg_u32 s%d, 0" % S_LOC)
    for l in out:
        if l.startswith("!"):
            a(l[1:])
        else:
            a(l)


def st4(a, data, voff, soff, imm=0):
    emit_l(a, "buffer_store_dwordx4 v[%d:%d], v%d, s[4:7], s%d offen offset:%d" % (data, data + 3, voff, soff, imm))
    if DBL[0]:
        a("buffer_store_dwordx4 v[%d:%d], v%d, s[4:7], s%d offen offset:%d" % (data, data + 3, voff, soff, imm))


TOUCH = [1]
V_L128 = 23
V_P2 = 199


V_L64 = 22


def readback(a, regions):
    if not DUAL[0]:
        return
    L = a.newlabel("L_rb")
    keep = a.vm_issued
    a("s_cmp_eq_u32 s%d, 0" % S_LOC)
    a("s_cbranch_scc1 %s" % L)
    a("v_lshlrev_b32 v%d, 6, v%d" % (V_L64, V_LANE))
    for sg, nb, imm in regions:
        n = nb // 64
        assert n <= 64
        a("s_mov_b32 exec_lo, 0x%x" % (((1 << n) - 1) & 0xffffffff))
        a("s_mov_b32 exec_hi, 0x%x" % (((1 << n) - 1) >> 32))
        a("buffer_load_dword v%d, v%d, s[4:7], s%d offen offset:%d %s" % (V_P2, V_L64, sg, imm, SC))
    a(L + ":")
    a.vm_issued = keep


def publish(a, s_addr, regions, imm=0):
    readback(a, regions)
    a("s_waitcnt vmcnt(0)")
    a("s_mov_b64 exec, 1")
    emit_l(a, "buffer_store_dword v%d, v%d, s[4:7], s%d offen offset:%d" % (V_TAG, V_ZERO, s_addr, imm))
    a("s_mov_b64 exec, -1")


def poll(a, cfg, s_addr, voff, vtmp, wide=False, imm=0, sleep=0):
    L = a.newlabel("L_poll")
    if cfg.get("spin_limit"):
        a("s_mov_b32 s46, %d" % cfg["spin_limit"])
    if cfg.get("ppoll", 0) and not wide and not sleep:
        ld = lambda r: a("buffer_load_dword v%d, v%d, s[4:7], s%d offen offset:%d %s" % (r, voff, s_addr, imm, SC))
        ld(vtmp)
        a("s_sleep %d" % cfg.get("ppoll_gap", 2))
        a(L + ":")
        ld(V_P2)
        a("s_waitcnt vmcnt(1)")
        a("v_cmp_ne_u32 vcc, v%d, v%d" % (V_TAG, vtmp))
        a("s_cbranch_vccz %s_out" % L)
        ld(vtmp)
        a("s_waitcnt vmcnt(1)")
        if cfg.get("spin_limit"):
            a("s_sub_u32 s46, s46, 1")
            a("s_cbranch_scc1 %s_out" % L)
        a("v_cmp_ne_u32 vcc, v%d, v%d" % (V_TAG, V_P2))
        a("s_cbranch_vccnz %s" % L)
        a.vm_issued -= 1
        a(L + "_out:")
        return
    a(L + ":")
    if wide:
        a("buffer_load_dwordx2 v[%d:%d], v%d, s[4:7], s%d offen %s" % (vtmp, vtmp + 1, voff, s_addr, SC))
        a("s_waitcnt vmcnt(0)")
        a("v_xor_b32 v%d, v%d, v%d" % (vtmp + 1, V_TAG, vtmp + 1))
        a("v_xor_b32 v%d, v%d, v%d" % (vtmp, vtmp, vtmp + 1))
        a("v_or_b32 v%d, v%d, v%d" % (vtmp, vtmp, vtmp + 1) if False else "v_cmp_ne_u32 s[18:19], 0, v%d" % (vtmp + 1))
        a("v_cndmask_b32 v%d, v%d, v%d, s[18:19]" % (vtmp, vtmp, V_ZERO))
    else:
        a("buffer_load_dword v%d, v%d, s[4:7], s%d offen offset:%d %s" % (vtmp, voff, s_addr, imm, SC))
        a("s_waitcnt vmcnt(0)")
    if cfg.get("spin_limit"):
        a("s_sub_u32 s46, s46, 1")
        a("s_cbranch_scc1 %s_out" % L)
    a("v_cmp_ne_u32 vcc, v%d, v%d" % (V_TAG, vtmp))
    if sleep:
        a("s_cbranch_vccz %s_out" % L)
        a("s_sleep %d" % sleep)
        a("s_branch %s" % L)
    else:
        a("s_cbranch_vccnz %s" % L)
    a(L + "_out:")


def lane_pat(a, vdst, mask, hi_shift, lo_mul):
    a("v_and_b32 v%d, %d, v%d" % (vdst, mask & ~1, V_LANE))
    a("v_lshlrev_b32 v%d, 3, v%d" % (vdst, vdst))
    a("v_and_b32 v%d, 1, v%d" % (vdst + 1, V_LANE))
    a("v_lshl_add_u32 v%d, v%d, %d, v%d" % (vdst, vdst + 1, lo_mul, vdst))


def flag_addr(a, sdst, base, s_grp, grp_shift, s_mem=None, per_layer=0x1000):
    a("s_mul_i32 s%d, s%d, 0x%x" % (sdst, S_LAYER, per_layer))
    a("s_add_u32 s%d, s%d, 0x%x" % (sdst, sdst, OFF_FLAGS + base))
    a("s_lshl_b32 s17, s%d, %d" % (s_grp, grp_shift))
    a("s_add_u32 s%d, s%d, s17" % (sdst, sdst))
    if s_mem is not None:
        a("s_lshl_b32 s17, s%d, 4" % s_mem)
        a("s_add_u32 s%d, s%d, s17" % (sdst, sdst))
        a("s_lshl_b32 s17, s%d, 2" % S_W)
        a("s_add_u32 s%d, s%d, s17" % (sdst, sdst))


def xin_flag_addr(a, sdst, own, layer_add):
    flag_addr(a, sdst, FL_XIN + 0x1000 * layer_add, S_RB, 7, S_HQ if own else None)


def a_addr(a, s_a0, s_a1, offA, ksA, ksw):
    a("s_mul_i32 s20, s%d, %d" % (S_W, ksw * 1024))
    a("s_mul_i32 s%d, s%d, %d" % (s_a0, S_NT, ksA * 1024))
    a("s_add_u32 s%d, s%d, s20" % (s_a0, s_a0))
    a("s_add_u32 s%d, s%d, 0x%x" % (s_a0, s_a0, offA))
    a("s_xor_b32 s21, s%d, 1" % S_NT)
    a("s_mul_i32 s%d, s21, %d" % (s_a1, ksA * 1024))
    a("s_add_u32 s%d, s%d, s20" % (s_a1, s_a1))
    a("s_add_u32 s%d, s%d, 0x%x" % (s_a1, s_a1, offA))


def b_addr(a, s_b0, s_b1, s_base, ksB, ksw):
    a("s_mul_i32 s20, s%d, %d" % (S_W, ksw * 1024))
    a("s_add_u32 s20, s20, s%d" % s_base)
    a("s_mul_i32 s%d, s%d, %d" % (s_b0, S_RT, ksB * 1024))
    a("s_add_u32 s%d, s%d, s20" % (s_b0, s_b0))
    a("s_xor_b32 s21, s%d, 1" % S_RT)
    a("s_mul_i32 s%d, s21, %d" % (s_b1, ksB * 1024))
    a("s_add_u32 s%d, s%d, s20" % (s_b1, s_b1))


def reduce_addr(a, base):
    for j in (1, 2, 3):
        a("s_xor_b32 s17, s%d, %d" % (S_W, j))
        a("s_mul_i32 s17, s17, 12288")
        a("s_add_u32 s17, s17, %d" % (base + (j - 1) * 4096))
        a("v_add_u32 v%d, s17, v%d" % (V_WR[j - 1], V_L16))
    a("s_mul_i32 s17, s%d, 12288" % S_W)
    a("s_add_u32 s17, s17, %d" % base)
    a("v_add_u32 v%d, s17, v%d" % (V_RD, V_L16))


def mf(a, d, x, y, c):
    a("%s v[%d:%d], %s, %s, %s" % (MF, d, d + 15, x, y, c))


def wr_tile(a, j):
    for q in range(4):
        r = G_ACC + 16 * j + 4 * q
        a("ds_write_b128 v%d, v[%d:%d] offset:%d" % (V_WR[j - 1], r, r + 3, q * 1024))


def rd_tile(a, j, dst):
    for q in range(4):
        a("ds_read_b128 v[%d:%d], v%d offset:%d" % (dst + 4 * q, dst + 4 * q + 3, V_RD, (j - 1) * 4096 + q * 1024))


def gemm64_core(a, cfg, n, A0, A1, Breg, issueB, window, pre_tickets=None, order=None, side=None, side_from=0, side_n=1,
                gate=None, side2=None, side2_from=0, ramp=None, resid=False, extra0=None, hooks=None):
    if order is None:
        order = [(1, i) for i in range(n)] + [(0, i) for i in range(n)]
    M = len(order)
    side = list(side or [])
    t = dict(pre_tickets or {})
    nxt = len(t)
    gpos = gate[0] if gate else M + 1
    gated = [False]

    def try_issue(limit):
        nonlocal nxt
        while nxt < M and nxt < limit:
            if nxt >= gpos and not gated[0]:
                return
            issueB(nxt)
            t[nxt] = a.vt()
            nxt += 1
            if gate and nxt == gate[3]:
                gate[1]()

    try_issue(ramp or window)
    if cfg.get("stamps") != 2:
        stamp(a, cfg, 1)
    last1 = max(e for e, (st, i) in enumerate(order) if st == 1)
    wr1 = last1 + 2
    bar1 = min(M - 2, last1 + 1 + max(2, (M - last1) // 2))
    seen = set()
    for e, (st, i) in enumerate(order):
        if gate and not gated[0] and e == gate[4]:
            assert not side
            gate[2]()
            gated[0] = True
            try_issue(e + window)
        if hooks and e in hooks:
            hooks[e]()
        a.wait_vm(t[e])
        if e == 0 and cfg.get("stamps") != 2:
            stamp(a, cfg, 2)
        first = "0" if st not in seen else None
        seen.add(st)
        if st == 1:
            mf(a, G_ACC + 16, A0(i), Breg(e), first or vr(G_ACC + 16, 16))
            if cfg.get("ldmid", 0) and window < 30:
                try_issue(min(e + 1 + window, nxt + 1))
            mf(a, G_ACC + 48, A1(i), Breg(e), first or vr(G_ACC + 48, 16))
        else:
            mf(a, G_ACC + 32, A1(i), Breg(e), first or vr(G_ACC + 32, 16))
            if cfg.get("ldmid", 0) and window < 30:
                try_issue(min(e + 1 + window, nxt + 1))
            mf(a, G_ACC, A0(i), Breg(e), first or vr(G_ACC, 16))
        try_issue(min(e + 1 + window, nxt + 2))
        if e >= side_from:
            k = 0
            while side and k < side_n:
                x = side.pop(0)
                a(x)
                k += x.startswith("buffer_")
        if side2 and e >= side2_from:
            for _ in range(cfg.get("side2_n", 1)):
                if side2:
                    a(side2.pop(0))
        if e == wr1:
            wr_tile(a, 1)
            wr_tile(a, 3)
        if e == bar1:
            a("s_waitcnt lgkmcnt(0)")
            a("s_barrier")
            rd_tile(a, 1, G_RED)
            rd_tile(a, 3, G_RED + 16)
    assert wr1 <= bar1 < M and not side2
    if extra0:
        extra0[2]()
        mf(a, G_ACC, extra0[0], extra0[1], vr(G_ACC, 16))
    stamp(a, cfg, 4)
    a("s_waitcnt lgkmcnt(0)")
    for e in range(6):
        a("v_add_f32 v%d, v%d, v%d" % (G_RED + e, G_RED + e, G_RED + 16 + e))
    wr_tile(a, 2)
    for e in range(6, 16):
        a("v_add_f32 v%d, v%d, v%d" % (G_RED + e, G_RED + e, G_RED + 16 + e))
    for e in range(16):
        a("v_add_f32 v%d, v%d, v%d" % (G_ACC + e, G_ACC + e, G_RED + e))
    if resid:
        for i in range(8):
            a("v_lshlrev_b32 v%d, 16, v%d" % (G_T, V_RES + i))
            a("v_and_b32 v%d, 0xffff0000, v%d" % (G_T + 1, V_RES + i))
            a("v_add_f32 v%d, v%d, v%d" % (G_ACC + 2 * i, G_ACC + 2 * i, G_T))
            a("v_add_f32 v%d, v%d, v%d" % (G_ACC + 2 * i + 1, G_ACC + 2 * i + 1, G_T + 1))
    for x in side:
        a(x)
    a("s_waitcnt lgkmcnt(0)")
    a("s_barrier")
    stamp(a, cfg, 6)
    rd_tile(a, 2, G_RED + 32)
    for q in range(4):
        a("s_waitcnt lgkmcnt(%d)" % (3 - q))
        for e in range(4):
            a("v_add_f32 v%d, v%d, v%d" % (G_ACC + 4 * q + e, G_ACC + 4 * q + e, G_RED + 32 + 4 * q + e))
    stamp(a, cfg, 7)


def bextra(a, nmu, d):
    split3(a, nmu, d + 4)
    a("v_lshrrev_b32 v%d, 16, v%d" % (d + 7, d + 4))
    a("v_or_b32 v%d, v%d, v%d" % (d, d + 7, d + 5))
    a("v_or_b32 v%d, v%d, v%d" % (d + 1, d + 7, d + 6))
    a("v_mov_b32 v%d, v%d" % (d + 2, d))
    a("v_mov_b32 v%d, 0" % (d + 3))


def res_epilogue(a, cfg, xout_add, final):
    for i in range(8):
        a("v_cvt_pk_bf16_f32 v%d, v%d, v%d" % (V_RES + i, G_ACC + 2 * i, G_ACC + 2 * i + 1))
        if i == 3 and final is None:
            st4(a, V_RES, V_L16, 34)
    if final is not None:
        a("s_cmp_eq_u32 s%d, 1" % S_LAYER)
        a("s_cbranch_scc1 %s" % final)
        st4(a, V_RES, V_L16, 34)
    store_x_tail(a)


def store_x_tail(a):
    st4(a, V_RES + 4, V_L16, 34, 1024)
    a("v_mov_b32 v%d, 0x3f803f80" % G_T)
    a("v_mov_b32 v%d, 0" % (G_T + 12))
    a("v_mov_b32 v%d, 0" % (G_T + 13))
    for r in range(8):
        a("v_dot2_f32_bf16 v%d, v%d, v%d, v%d" % (G_T + 12, V_RES + r, G_T, G_T + 12))
        a("v_dot2_f32_bf16 v%d, v%d, v%d, v%d" % (G_T + 13, V_RES + r, V_RES + r, G_T + 13))
    a("v_lshlrev_b32 v%d, 3, v%d" % (G_T + 2, V_R31))
    a("s_nop 1")
    a("v_mov_b32 v%d, v%d" % (G_T + 14, G_T + 12))
    a("v_mov_b32 v%d, v%d" % (G_T + 15, G_T + 13))
    a("s_nop 0")
    a("v_permlane32_swap_b32 v%d, v%d" % (G_T + 12, G_T + 14))
    a("v_permlane32_swap_b32 v%d, v%d" % (G_T + 13, G_T + 15))
    a("v_add_f32 v%d, v%d, v%d" % (G_T + 12, G_T + 12, G_T + 14))
    a("v_add_f32 v%d, v%d, v%d" % (G_T + 13, G_T + 13, G_T + 15))
    a("s_mov_b32 exec_lo, 0xffffffff\ns_mov_b32 exec_hi, 0x0")
    emit_l(a, "buffer_store_dwordx2 v[%d:%d], v%d, s[4:7], s35 offen" % (G_T + 12, G_T + 13, G_T + 2))
    a("s_mov_b64 exec, -1")


def out_addr(a, xout_add):
    layer_off(a, 34, OFF_X, X_STRIDE, 2, xout_add)
    a("s_lshl_b32 s18, s%d, 15" % S_RT)
    a("s_add_u32 s34, s34, s18")
    a("s_lshl_b32 s18, s%d, 11" % S_NT)
    a("s_add_u32 s34, s34, s18")
    layer_off(a, 35, OFF_STAT, STAT_STRIDE, 2, xout_add)
    a("s_lshl_b32 s18, s%d, 12" % S_RT)
    a("s_add_u32 s35, s35, s18")
    a("s_lshl_b32 s18, s%d, 8" % S_NT)
    a("s_add_u32 s35, s35, s18")


S_Q0, S_Q1, S_KVW = 50, 51, 52


def wq_lines():
    b = Asm()
    for i in range(8):
        blk(b, ar(160 + 4 * i, 4), S_Q0, i)
        blk(b, ar(192 + 4 * i, 4), S_Q1, i)
    return [l.strip() for l in b.lines]


def phase_qkv(a, cfg):
    SA0, SA1, SB0, SB1, SX, SKV = 24, 25, 26, 27, 28, 29
    CK = G_T + 8
    a("v_lshlrev_b32 v%d, 4, v%d" % (G_T + 1, V_H))
    a("v_lshlrev_b32 v%d, 2, v%d" % (G_T + 6, V_R31))
    a("s_cmp_eq_u32 s%d, 0" % S_KVW)
    a("s_cbranch_scc1 L_qkv_nokw")
    for i in range(8):
        blk(a, ar(128 + 4 * i, 4), S_KVW, i)
    a("L_qkv_nokw:")
    VP, VPA = 198, 22
    SU.probe_addr(a, sys.modules[__name__], VPA, VP, 59)
    def wcheck(tag):
        a("v_cmp_ne_u32 vcc, v%d, v%d" % (V_TAG, VP))
        a("s_cbranch_vccz L_qkv_wok%s" % tag)
        keep = a.vm_issued
        poll(a, cfg, 59, VPA, VP, sleep=1)
        a.vm_issued = keep
        a("L_qkv_wok%s:" % tag)

    layer_off(a, SX, OFF_X, X_STRIDE, 2, 0)
    b_addr(a, SB0, SB1, SX, 32, 8)
    layer_off(a, 30, OFF_STAT, STAT_STRIDE, 2, 0)
    a("s_lshl_b32 s17, s%d, 12" % S_RT)
    a("s_add_u32 s30, s30, s17")
    reduce_addr(a, LDS_RQ)
    layer_off(a, 33, OFF_KV, KV_STRIDE)
    a("s_lshr_b32 s36, s%d, 1" % S_HQ)
    a("s_lshl_b32 s17, s%d, 1" % S_RB)
    a("s_add_u32 s17, s17, s36")
    a("s_lshl_b32 s17, s17, 15")
    a("s_add_u32 s23, s17, s%d" % SX)
    a("s_lshl_b32 s17, s%d, 13" % S_W)
    a("s_add_u32 s23, s23, s17")
    a("s_sub_u32 s17, s%d, s36" % S_W)
    a("s_sub_u32 s17, s17, 1")
    a("s_and_b32 s17, s17, 3")
    a("s_lshl_b32 s17, s17, 12")
    a("s_add_u32 s17, s17, %d" % LDS_KVX)
    a("v_add_u32 v%d, s17, v%d" % (G_T + 2, V_L16))
    a("v_add_u32 v%d, %d, v%d" % (G_T + 3, LDS_KVX, V_L16))
    a("s_mul_i32 s37, s%d, 0x1000" % S_LAYER)
    a("s_add_u32 s37, s37, 0x%x" % (OFF_FLAGS + FL_KV))
    a("s_lshl_b32 s17, s%d, 4" % S_RB)
    a("s_add_u32 s37, s37, s17")
    a("s_lshl_b32 s17, s%d, 2" % S_HQ)
    a("s_add_u32 s37, s37, s17")
    a("s_cmp_ge_u32 s%d, 4" % S_HQ)
    a("s_cbranch_scc1 L_qkv_nocs")
    for r in range(4):
        a("v_mov_b32 v%d, 0x3f803f80" % (G_CS + r))
    a("s_lshl_b32 s17, s%d, 11" % S_W)
    a("s_add_u32 s17, s17, %d" % LDS_CSX)
    a("v_add_u32 v%d, s17, v%d" % (G_CS + 4, V_L16))
    a("v_add_u32 v%d, %d, v%d" % (G_CS + 5, LDS_CSX, V_L16))
    a("s_waitcnt vmcnt(0)")
    a("s_bitcmp1_b32 s%d, 0" % S_HQ)
    a("s_cbranch_scc1 L_qkv_c1")
    for i in range(8):
        mf(a, G_ACC, ar(128 + 4 * i, 4), vr(G_CS, 4), "0" if i == 0 else vr(G_ACC, 16))
    a("s_branch L_qkv_c2")
    a("L_qkv_c1:")
    for i in range(8):
        mf(a, G_ACC, vr(G_CS, 4), ar(128 + 4 * i, 4), "0" if i == 0 else vr(G_ACC, 16))
    a("L_qkv_c2:")
    a("ds_write_b128 v%d, v[%d:%d]" % (G_CS + 4, G_ACC + 8, G_ACC + 11))
    a("ds_write_b128 v%d, v[%d:%d] offset:1024" % (G_CS + 4, G_ACC + 12, G_ACC + 15))
    a("s_waitcnt lgkmcnt(0)")
    a("s_barrier")
    for w in range(4):
        for q in range(2):
            a("ds_read_b128 v[%d:%d], v%d offset:%d" % (G_RED + 8 * w + 4 * q, G_RED + 8 * w + 4 * q + 3, G_CS + 5, 2048 * w + 1024 * q))
    a("s_waitcnt lgkmcnt(0)")
    for e in range(8):
        a("v_add_f32 v%d, v%d, v%d" % (G_RED + e, G_RED + e, G_RED + 8 + e))
        a("v_add_f32 v%d, v%d, v%d" % (G_RED + 16 + e, G_RED + 16 + e, G_RED + 24 + e))
        a("v_add_f32 v%d, v%d, v%d" % (CK + e, G_RED + e, G_RED + 16 + e))
    a("L_qkv_nocs:")
    stamp(a, cfg, 8)
    xin_flag_addr(a, 38, False, 0)
    poll(a, cfg, 38, G_T + 6, G_T + 4)
    stamp(a, cfg, 9)
    def b1_loads():
        for e in range(8):
            blk(a, ar(64 + 4 * e, 4), SB1, e, SC)
            tB[e] = a.vt()

    def cs_q():
        a("s_lshl_b32 s17, s%d, 10" % S_NT)
        a("s_add_u32 s17, s17, 0x%x" % OFF_CSQX)
        a("buffer_load_dwordx4 v[%d:%d], v%d, s[4:7], s17 offen sc1" % (G_CS, G_CS + 3, V_L16))

    a("s_cmp_ge_u32 s%d, 4" % S_HQ)
    a("s_cbranch_scc1 L_qkv_stats")
    tK = {}
    for i in range(8):
        blk(a, ar(224 + 4 * i, 4), 23, i, SC)
        tK[i] = a.vt()
    load_stats(a, G_ST, 30, G_T, SC)
    t_st = a.vt()
    tB = {}
    b1_loads()
    stamp(a, cfg, 1)
    a("s_bitcmp1_b32 s%d, 0" % S_HQ)
    a("s_cbranch_scc1 L_qkv_v1")
    for v in range(2):
        if v:
            a("L_qkv_v%d:" % v)
        for i in range(8):
            a.wait_vm(tK[i])
            x, w = ar(224 + 4 * i, 4), ar(128 + 4 * i, 4)
            c = "0" if i == 0 else vr(G_KVACC, 16)
            if v & 1:
                mf(a, G_KVACC, x, w, c)
            else:
                mf(a, G_KVACC, w, x, c)
        if v < 1:
            a("s_branch L_qkv_kvred")
    a("L_qkv_kvred:")
    stamp(a, cfg, 2)
    a.wait_vm(t_st)
    finish_stats(a, G_ST, V_NMU, V_RSTD)
    for q in range(4):
        a("ds_write_b128 v%d, v[%d:%d] offset:%d" % (G_T + 2, G_KVACC + 4 * q, G_KVACC + 4 * q + 3, q * 1024))
    XS = LDS_KVX + 16384
    a("s_lshl_b32 s17, s%d, 8" % S_W)
    a("s_add_u32 s17, s17, %d" % XS)
    a("v_add_u32 v%d, s17, v%d" % (G_T + 4, G_T + 6))
    a("v_mul_f32 v%d, v%d, v%d" % (G_T + 5, V_NMU, V_RSTD))
    a("ds_write_b32 v%d, v%d" % (G_T + 4, V_RSTD))
    a("ds_write_b32 v%d, v%d offset:128" % (G_T + 4, G_T + 5))
    a("v_add_u32 v%d, s17, v%d" % (G_T + 4, G_T + 1))
    RS = G_ACC + 16
    for g in range(4):
        a("ds_read_b128 v[%d:%d], v%d offset:%d" % (RS + 4 * g, RS + 4 * g + 3, G_T + 4, 32 * g))
        a("ds_read_b128 v[%d:%d], v%d offset:%d" % (RS + 16 + 4 * g, RS + 16 + 4 * g + 3, G_T + 4, 128 + 32 * g))
    a("s_waitcnt lgkmcnt(0)")
    a("s_barrier")
    stamp(a, cfg, 3)
    a("s_cmp_lg_u32 s%d, s36" % S_W)
    a("s_cbranch_scc1 L_qkv_q")
    RD = [G_RED + 16, G_RED + 32, G_ACC]
    for j in range(3):
        for q in range(4):
            a("ds_read_b128 v[%d:%d], v%d offset:%d" % (RD[j] + 4 * q, RD[j] + 4 * q + 3, G_T + 3, j * 4096 + q * 1024))
    for j in range(3):
        a("s_waitcnt lgkmcnt(%d)" % (8 - 4 * j))
        for e in range(16):
            a("v_add_f32 v%d, v%d, v%d" % (G_KVACC + e, G_KVACC + e, RD[j] + e))
    a("s_lshl_b32 s17, s%d, 10" % S_RT)
    a("s_add_u32 s34, s33, s17")
    a("s_bitcmp1_b32 s%d, 0" % S_HQ)
    a("s_cbranch_scc1 L_qkv_vfin")
    PK = G_RED + 16
    for e in range(8):
        a("v_fmac_f32 v%d, v%d, v%d" % (G_KVACC + 8 + e, V_NMU, CK + e))
        a("v_mul_f32 v%d, v%d, v%d" % (G_KVACC + 8 + e, V_RSTD, G_KVACC + 8 + e))
    pack8(a, PK, G_KVACC + 8)
    a("buffer_store_dwordx4 v[%d:%d], v%d, s[4:7], s34 offen %s" % (PK, PK + 3, V_L16, SC))
    a("v_mov_b32 v%d, 0" % (PK + 4))
    for r in range(4):
        a("v_dot2_f32_bf16 v%d, v%d, v%d, v%d" % (PK + 4, PK + r, PK + r, PK + 4))
    xhalf_sum(a, PK + 4, PK + 5)
    for d in ("row_shr:1", "row_shr:2", "row_shr:4", "row_shr:8"):
        a("v_max_f32_dpp v%d, v%d, v%d %s row_mask:0xf bank_mask:0xf" % (PK + 4, PK + 4, PK + 4, d))
    a("v_max_f32_dpp v%d, v%d, v%d row_bcast:15 row_mask:0xa bank_mask:0xf" % (PK + 4, PK + 4, PK + 4))
    a("s_lshl_b32 s18, s%d, 2" % S_RT)
    a("s_add_u32 s18, s18, s33")
    a("s_add_u32 s18, s18, 0x20000")
    a("s_mov_b32 exec_lo, 0x80000000\ns_mov_b32 exec_hi, 0x0")
    a("buffer_store_dword v%d, v%d, s[4:7], s18 offen %s" % (PK + 4, V_ZERO, SC))
    a("s_mov_b64 exec, -1")
    a("s_branch L_qkv_kvdone")
    a("L_qkv_vfin:")
    a("v_lshlrev_b32 v%d, 4, v%d" % (G_T + 4, V_R31))
    a("v_lshl_add_u32 v%d, v%d, 8, v%d" % (G_T + 4, V_H, G_T + 4))
    a("s_add_u32 s34, s34, 0x10000")
    for e in range(16):
        a("v_mul_f32 v%d, v%d, v%d" % (G_KVACC + e, RS + e, G_KVACC + e))
        a("v_fmac_f32 v%d, v%d, v%d" % (G_KVACC + e, RS + 16 + e, CK))
    pack8(a, G_ACC, G_KVACC)
    pack8(a, G_ACC + 4, G_KVACC + 8)
    a("s_mov_b32 exec_lo, 0xffff\ns_mov_b32 exec_hi, 0xffff")
    a("buffer_store_dwordx4 v[%d:%d], v%d, s[4:7], s34 offen %s" % (G_ACC, G_ACC + 3, G_T + 4, SC))
    a("buffer_store_dwordx4 v[%d:%d], v%d, s[4:7], s34 offen offset:512 %s" % (G_ACC + 4, G_ACC + 7, G_T + 4, SC))
    a("s_mov_b64 exec, -1")
    a("L_qkv_kvdone:")
    stamp(a, cfg, 5)
    a("v_lshlrev_b32 v%d, 9, v%d" % (G_T + 4, V_LANE))
    a("s_waitcnt vmcnt(0)")
    a("s_mov_b64 exec, 0xff")
    a("buffer_store_dword v%d, v%d, s[4:7], s37 offen %s" % (V_TAG, G_T + 4, SC))
    a("s_mov_b64 exec, -1")
    a("s_branch L_qkv_q")
    a("L_qkv_stats:")
    load_stats(a, G_ST, 30, G_T, SC)
    t_st = a.vt()
    b1_loads()
    a.wait_vm(t_st)
    finish_stats(a, G_ST, V_NMU, V_RSTD)
    a("L_qkv_q:")
    stamp(a, cfg, 10)
    bextra(a, V_NMU, G_CS + 4)
    tq = {}

    def h_probe():
        a("buffer_load_dword v%d, v%d, s[4:7], s59 offen sc1" % (VP, VPA))
        tq[0] = a.vt()

    def h_cs():
        a.wait_vm(tq[0])
        wcheck("q")
        cs_q()
        tq[1] = a.vt()
    gemm64_core(a, dict(cfg, stamps=cfg.get('stamps') and 2), 8, lambda i: ar(160 + 4 * i, 4), lambda i: ar(192 + 4 * i, 4), lambda e: ar(64 + 4 * e, 4),
                lambda e: blk(a, ar(64 + 4 * e, 4), SB1 if e < 8 else SB0, e % 8, SC), 16, pre_tickets=tB, ramp=12,
                side=[g[0] for g in SU.deferred_store_groups(sys.modules[__name__])], side_from=99, side_n=1, extra0=(vr(G_CS, 4), vr(G_CS + 4, 4), lambda: a.wait_vm(tq[1])),
                hooks={3: h_probe, 10: h_cs})
    a("v_mul_f32 v%d, %s, v%d" % (G_T, fl(QSCALE), V_RSTD))
    for e in range(16):
        a("v_mul_f32 v%d, v%d, v%d" % (G_ACC + e, G_T, G_ACC + e))
    pack8(a, G_Q, G_ACC)
    pack8(a, G_Q + 4, G_ACC + 8)
    if cfg.get("store_q"):
        a("s_lshl_b32 s17, s%d, 15" % S_RT)
        a("s_lshl_b32 s18, s%d, 11" % S_NT)
        a("s_add_u32 s17, s17, s18")
        a("s_add_u32 s17, s17, 0x%x" % OFF_Q)
        a("buffer_store_dwordx4 v[%d:%d], v%d, s[4:7], s17 offen" % (G_Q, G_Q + 3, V_L16))
        a("buffer_store_dwordx4 v[%d:%d], v%d, s[4:7], s17 offen offset:1024" % (G_Q + 4, G_Q + 7, V_L16))
    stamp(a, cfg, 11)


A_C = [24, 40]
A_O = [56, 72]
A_S = [88, 104]
A_P = [120, 124, 128, 132]
A_KF = [136, 140]
A_VF = [[144, 148], [152, 156]]
A_VK, A_VV, A_VINC = 160, 161, 162
A_T = 164
LDS_V = 65536
LDS_ONES = 131072
LDS_ATT_FLAG = LDS_ONES + 5120
UNR = 4


EARLY = 4
W2ORD = [7 * mm + tl for tl in range(7) for mm in range(4)]
W2POS = {k: p for p, k in enumerate(W2ORD)}


def w2load(a, idx, s0, s1):
    i = W2ORD[idx >> 1]
    blk(a, w2reg(idx & 1, i), s1 if idx & 1 else s0, i)


def w2reg(s, i):
    idx = 2 * W2POS[i] + s
    if idx < 32:
        return ar(128 + 4 * idx, 4)
    if idx < 46:
        return vr(W2V + 4 * (idx - 32), 4)
    if idx < 54:
        return vr(136 + 4 * (idx - 46), 4)
    return vr(190 + 4 * (idx - 54), 4)


SLOT13 = [0, 2, 1, 3, 0, 2, 1]


def dma13(a, i, part=None):
    slot = SLOT13[i]
    for hh in range(2):
        a("s_add_u32 m0, s%d, %d" % (S_WL, slot * 32768 + hh * 4096))
        a("s_add_u32 s29, s%d, %d" % (S_W13, i * 32768 + hh * 4096))
        for q in range(4):
            a("buffer_load_dwordx4 v%d, s[4:7], s29 offen offset:%d sc1 lds" % (V_L16, q * 1024))


def dma_lines(i):
    b = Asm()
    dma13(b, i)
    return [l.strip() for l in b.lines]


def phase_att(a, cfg):
    Q = [G_Q, G_Q + 4]
    SA0, SA1, SW0, SW1 = 24, 25, 26, 27
    a("v_mov_b32 v%d, 0x3f803f80" % (A_T + 4))
    if cfg.get("zpad", 1):
        a("v_and_b32 v%d, 2, v0" % (A_T + 5))
        a("v_cmp_eq_u32 vcc, 0, v%d" % (A_T + 5))
        a("v_cndmask_b32 v%d, v%d, v%d, vcc" % (A_T + 4, V_ZERO, A_T + 4))
    for r in range(1, 4):
        a("v_mov_b32 v%d, v%d" % (A_T + 4 + r, A_T + 4))
    a("v_lshlrev_b32 v%d, 4, v0" % (A_T + 2))
    a("v_add_u32 v%d, %d, v%d" % (A_T + 2, LDS_ONES, A_T + 2))
    a("ds_write_b128 v%d, v[%d:%d]" % (A_T + 2, A_T + 4, A_T + 7))
    a("ds_write_b128 v%d, v[%d:%d] offset:1024" % (A_T + 2, A_T + 4, A_T + 7))
    a("v_and_b32 v%d, 15, v%d" % (A_T + 2, V_LANE))
    a("v_lshlrev_b32 v%d, 4, v%d" % (A_T + 2, A_T + 2))
    a("v_lshl_add_u32 v%d, v%d, 8, v%d" % (A_T + 2, V_H, A_T + 2))
    a("v_add_u32 v%d, %d, v%d" % (A_VV, LDS_V, A_T + 2))
    a("v_add_u32 v%d, -20, v%d" % (A_T + 3, V_R31))
    a("v_cmp_gt_u32 vcc, 8, v%d" % (A_T + 3))
    a("v_mov_b32 v%d, %d" % (A_T + 2, LDS_ONES))
    a("v_mov_b32 v%d, %d" % (A_T + 3, LDS_ONES + 64))
    a("v_cndmask_b32 v%d, v%d, v%d, vcc" % (A_T + 2, A_T + 2, A_T + 3))
    if cfg.get("zpad", 1):
        a("v_and_b32 v%d, 27, v%d" % (A_T + 3, V_R31))
        a("v_cmp_ne_u32 vcc, 16, v%d" % (A_T + 3))
        a("v_add_u32 v%d, 32, v%d" % (A_T + 3, A_T + 2))
        a("v_cndmask_b32 v%d, v%d, v%d, vcc" % (A_T + 2, A_T + 2, A_T + 3))
    a("v_cmp_le_u32 vcc, 16, v%d" % V_R31)
    a("v_mov_b32 v%d, %d" % (A_VINC, UNR * 1024))
    a("v_cndmask_b32 v%d, v%d, v%d, vcc" % (A_VV, A_VV, A_T + 2))
    a("v_cndmask_b32 v%d, v%d, v%d, vcc" % (A_VINC, A_VINC, V_ZERO))
    for t in range(2):
        n = A_T + 8 + t
        a("v_mov_b32 v%d, 0" % n)
        for r in range(4):
            a("v_dot2_f32_bf16 v%d, v%d, v%d, v%d" % (n, Q[t] + r, Q[t] + r, n))
    for t in range(2):
        xhalf_sum(a, A_T + 8 + t, A_T + 10)
    a_addr(a, SA0, SA1, OFF_WO, 32, 8)
    a("s_mul_i32 s%d, s%d, %d" % (S_W13, S_M, 7 * 32768))
    a("s_lshl_b32 s%d, s%d, 13" % (S_WL, S_W))
    a("s_add_u32 s%d, s%d, s%d" % (S_W13, S_W13, S_WL))
    a("s_add_u32 s%d, s%d, 0x%x" % (S_W13, S_W13, OFF_W13))
    a_addr(a, SW0, SW1, OFF_W2, 112, 28)
    a("s_lshl_b32 s20, s%d, 10" % S_W)
    a("s_add_u32 s21, s33, s20")
    a("s_add_u32 s22, s21, 0x10000")
    a("s_add_u32 s23, s20, %d" % LDS_V)
    a("s_mul_i32 s38, s%d, 0x1000" % S_LAYER)
    a("s_add_u32 s38, s38, 0x%x" % (OFF_FLAGS + FL_KV))
    a("s_and_b32 s17, s2, 7")
    a("s_lshl_b32 s17, s17, 9")
    a("s_add_u32 s38, s38, s17")
    a("s_lshl_b32 s58, s2, 2")
    a("s_add_u32 s58, s58, 0x%x" % OFF_FLW)
    a("s_or_b32 s17, s%d, s%d" % (S_W, S_LAYER))
    a("s_cmp_lg_u32 s17, 0")
    a("s_cselect_b32 s58, 0xf0000000, s58")
    a("s_and_b32 s59, s2, 7")
    a("s_lshl_b32 s59, s59, 10")
    a("s_add_u32 s59, s59, 0x%x" % OFF_FLW)
    a("v_lshlrev_b32 v%d, 10, v%d" % (A_T + 16, V_LANE))
    a("s_getreg_b32 s17, hwreg(HW_REG_XCC_ID)")
    a("s_and_b32 s17, s17, 7")
    a("s_lshl_b32 s17, s17, 1")
    a("v_or_b32 v%d, s17, v%d" % (A_T + 17, V_TAG))
    a("v_and_b32 v%d, 15, v%d" % (A_T + 18, V_LANE))
    a("v_lshlrev_b32 v%d, 5, v%d" % (A_T + 18, A_T + 18))
    a("s_and_b32 s17, s2, 0x87")
    a("s_lshl_b32 s17, s17, 2")
    a("v_add_u32 v%d, s17, v%d" % (A_T + 18, A_T + 18))

    stamp(a, cfg, 1)
    a("v_lshlrev_b32 v%d, 3, v%d" % (A_T + 14, V_LANE))
    a("s_cmp_lg_u32 s%d, 0" % S_W)
    a("s_cbranch_scc1 L_att_nopoll")
    poll(a, cfg, 38, A_T + 14, A_T + 12, wide=True, sleep=cfg.get("kv_sleep", 2))
    a("L_att_nopoll:")
    a("s_waitcnt vmcnt(0)")
    a("s_barrier")
    a("s_mov_b64 exec, 0xff")
    a("buffer_store_dword v%d, v%d, s[4:7], s58 offen %s" % (A_T + 17, A_T + 16, SC))
    a("s_mov_b64 exec, -1")
    a("s_mov_b32 s%d, 0xf0000000" % SU.S_DST)
    stamp(a, cfg, 2)
    a("s_add_u32 s17, s33, 0x20000")
    a("buffer_load_dword v%d, v%d, s[4:7], s17 offen %s" % (A_T + 1, V_L4, SC))
    t_kn = a.vt()
    def kvdma(g):
        a("s_add_u32 m0, s20, %d" % (g * 4096))
        a("s_add_u32 s17, s21, %d" % (g * 4096))
        a("buffer_load_dwordx4 v%d, s[4:7], s17 offen %s lds" % (V_L16, SC))
        a("s_add_u32 m0, s23, %d" % (g * 4096))
        a("s_add_u32 s17, s22, %d" % (g * 4096))
        a("buffer_load_dwordx4 v%d, s[4:7], s17 offen %s lds" % (V_L16, SC))

    G1 = 6
    for g in range(G1):
        kvdma(g)
        if g == 3:
            t_g3 = a.vt()
            a.wait_vm(t_kn)
            k2 = A_T + 1
            for d in ("row_shr:1", "row_shr:2", "row_shr:4", "row_shr:8"):
                a("v_max_f32_dpp v%d, v%d, v%d %s row_mask:0xf bank_mask:0xf" % (k2, k2, k2, d))
            a("v_max_f32_dpp v%d, v%d, v%d row_bcast:15 row_mask:0xa bank_mask:0xf" % (k2, k2, k2))
            a("v_max_f32_dpp v%d, v%d, v%d row_bcast:31 row_mask:0xc bank_mask:0xf" % (k2, k2, k2))
            a("v_readlane_b32 s18, v%d, 63" % k2)
            for t in range(2):
                n = A_T + 8 + t
                a("v_mul_f32 v%d, s18, v%d" % (n, n))
                a("v_sqrt_f32 v%d, v%d" % (n, n))
            for t in range(2):
                n = A_T + 8 + t
                a("v_mul_f32 v%d, %s, v%d" % (n, fl(-1.001), n))
            a("v_min_f32 v%d, v%d, v%d" % (A_T + 10, A_T + 8, A_T + 9))
            a("v_mov_b32 v%d, %s" % (A_T + 11, fl(-cfg.get("bound_t", BOUND_T))))
            a("v_cmp_nge_f32 vcc, v%d, v%d" % (A_T + 10, A_T + 11))
            a("s_lshl_b32 s19, s%d, 2" % S_W)
            a("s_add_u32 s19, s19, %d" % LDS_ATT_FLAG)
            a("v_mov_b32 v%d, s19" % (A_T + 12))
            a("s_cmp_lg_u64 vcc, 0")
            a("s_cselect_b32 s18, 1, 0")
            a("v_mov_b32 v%d, s18" % (A_T + 11))
            a("ds_write_b32 v%d, v%d" % (A_T + 12, A_T + 11))
            for t in range(2):
                for r in range(16):
                    a("v_mov_b32 v%d, v%d" % (A_C[t] + r, A_T + 8 + t))
    stamp(a, cfg, 3)
    a.wait_vm(t_g3)
    a("s_waitcnt lgkmcnt(0)")
    a("s_barrier")
    stamp(a, cfg, 4)
    a("v_mov_b32 v%d, %d" % (A_T + 12, LDS_ATT_FLAG))
    a("ds_read_b128 v[%d:%d], v%d" % (A_T + 4, A_T + 7, A_T + 12))
    a("ds_read_b128 v[%d:%d], v%d" % (A_KF[0], A_KF[0] + 3, V_L16))
    a("ds_read_b128 v[%d:%d], v%d" % (A_VF[0][0], A_VF[0][0] + 3, A_VV))
    a("ds_read_b128 v[%d:%d], v%d offset:512" % (A_VF[0][1], A_VF[0][1] + 3, A_VV))
    a("ds_read_b128 v[%d:%d], v%d offset:1024" % (A_KF[1], A_KF[1] + 3, V_L16))
    a("s_waitcnt lgkmcnt(4)")
    a("v_or_b32 v%d, v%d, v%d" % (A_T + 4, A_T + 4, A_T + 5))
    a("v_or3_b32 v%d, v%d, v%d, v%d" % (A_T + 4, A_T + 4, A_T + 6, A_T + 7))
    a("v_readfirstlane_b32 s18, v%d" % (A_T + 4))
    a("s_cmp_eq_u32 s18, 0")
    a("s_cbranch_scc1 L_att_fast")
    keep = a.vm_issued
    for g in range(G1, 16):
        kvdma(g)
    a.vm_issued = keep
    a("s_waitcnt vmcnt(0)")
    a("s_barrier")
    a("v_mov_b32 v%d, 0xff800000" % (A_T + 8))
    a("v_mov_b32 v%d, 0xff800000" % (A_T + 9))
    a("v_mov_b32 v%d, v%d" % (A_T + 12, V_L16))
    a("s_mov_b32 s19, 64")
    a("L_att_pre:")
    a("ds_read_b128 v[%d:%d], v%d" % (A_P[0], A_P[0] + 3, A_T + 12))
    a("v_add_u32 v%d, 1024, v%d" % (A_T + 12, A_T + 12))
    a("s_waitcnt lgkmcnt(0)")
    for t in range(2):
        mf(a, A_S[t], vr(A_P[0], 4), vr(Q[t], 4), "0")
    for t in range(2):
        for r in range(0, 16, 2):
            a("v_max3_f32 v%d, v%d, v%d, v%d" % (A_T + 8 + t, A_S[t] + r, A_S[t] + r + 1, A_T + 8 + t))
    a("s_sub_u32 s19, s19, 1")
    a("s_cmp_lg_u32 s19, 0")
    a("s_cbranch_scc1 L_att_pre")
    for t in range(2):
        n = A_T + 8 + t
        a("v_mov_b32 v%d, v%d" % (A_T + 10, n))
        a("v_permlane32_swap_b32 v%d, v%d" % (n, A_T + 10))
        a("v_max_f32 v%d, v%d, v%d" % (n, n, A_T + 10))
        a("v_sub_f32 v%d, 0, v%d" % (n, n))
        for r in range(16):
            a("v_mov_b32 v%d, v%d" % (A_C[t] + r, n))
    a("L_att_fast:")
    a("s_waitcnt lgkmcnt(0)")

    def m4(d, x, y, c):
        mf(a, d, vr(x, 4), vr(y, 4), vr(c, 16))

    def ex(r):
        a("v_exp_f32 v%d, v%d" % (r, r))

    def cv(d, s):
        a("v_cvt_pk_bf16_f32 v%d, v%d, v%d" % (d, s, s + 1))

    m4(A_S[0], A_KF[0], Q[0], A_C[0])
    a("s_nop 7")

    def lines_of(fn):
        b = Asm()
        fn(b)
        return [l.strip() for l in b.lines]

    def groups(lines):
        out, cur = [], []
        for x in lines:
            cur.append(x)
            if x.startswith("buffer_"):
                out.append(cur)
                cur = []
        assert not cur
        return out

    def kvl(g):
        return ["s_add_u32 m0, s20, %d" % (g * 4096), "s_add_u32 s17, s21, %d" % (g * 4096),
                "buffer_load_dwordx4 v%d, s[4:7], s17 offen %s lds" % (V_L16, SC),
                "s_add_u32 m0, s23, %d" % (g * 4096), "s_add_u32 s17, s22, %d" % (g * 4096),
                "buffer_load_dwordx4 v%d, s[4:7], s17 offen %s lds" % (V_L16, SC)]

    q_kv = []
    for g in range(G1, 16):
        q_kv += [(x, g) for x in groups(kvl(g))]
    q_w = []
    for i in range(8):
        q_w += groups(lines_of(lambda b: blk(b, ar(4 * i, 4), SA0, i)))
        q_w += groups(lines_of(lambda b: blk(b, ar(32 + 4 * i, 4), SA1, i)))
    for idx in range(46):
        q_w += groups(lines_of(lambda b: w2load(b, idx, SW0, SW1)))
    q_t = [["s_add_u32 s17, s49, %d" % (q * 4096), "buffer_load_dword v%d, v%d, s[4:7], s17 offen sc1" % (A_T + 3, A_T + 2)] for q in range(5)]
    if not cfg.get("touch13", 1):
        q_t = []
    q_d = groups(dma_lines(0) + dma_lines(1))
    a("s_mul_i32 s49, s%d, %d" % (S_M, 7 * 32768))
    a("s_and_b32 s18, s%d, 1" % S_RG)
    a("s_mul_i32 s18, s18, %d" % 81920)
    a("s_add_u32 s49, s49, s18")
    a("s_mul_i32 s18, s%d, %d" % (S_W, 20480))
    a("s_add_u32 s49, s49, s18")
    a("s_add_u32 s49, s49, 0x%x" % (OFF_W13 + 65536))
    a("v_lshlrev_b32 v%d, 6, v%d" % (A_T + 2, V_LANE))
    tg = {}
    U_PROBE, U_CHK = cfg.get("u_probe", 21), cfg.get("u_chk", 24)
    PB = A_T + 12
    def slot(u):
        grp, g = None, None
        if q_kv:
            grp, g = q_kv.pop(0)
        elif u == U_PROBE:
            a("buffer_load_dwordx4 v[%d:%d], v%d, s[4:7], s59 offen %s" % (PB, PB + 3, V_L16, SC))
            tg["probe"] = a.vt()
        elif u == U_CHK:
            a.wait_vm(tg["probe"])
            a("L_att_wchk:")
            for r in range(4):
                a("v_and_b32 v%d, -15, v%d" % (PB + r, PB + r))
            a("v_cmp_ne_u32 vcc, v%d, v%d" % (V_TAG, PB))
            for r in range(1, 4):
                a("v_cmp_ne_u32 s[18:19], v%d, v%d" % (V_TAG, PB + r))
                a("s_or_b64 vcc, vcc, s[18:19]")
            a("s_cmp_eq_u64 vcc, 0")
            a("s_cbranch_scc1 L_att_wok")
            if cfg.get("spin_limit"):
                a("s_sub_u32 s46, s46, 1")
                a("s_cbranch_scc1 L_att_wok")
            keep = a.vm_issued
            a("s_sleep 4")
            a("buffer_load_dwordx4 v[%d:%d], v%d, s[4:7], s59 offen %s" % (PB, PB + 3, V_L16, SC))
            a("s_waitcnt vmcnt(0)")
            a("s_branch L_att_wchk")
            a.vm_issued = keep
            a("L_att_wok:")
            a("buffer_load_dword v%d, v%d, s[4:7], s59 offen %s" % (PB, A_T + 18, SC))
            tg["grp"] = a.vt()
        elif u == U_CHK + 8:
            a.wait_vm(tg["grp"])
            a("v_cmp_ne_u32 vcc, v%d, v%d" % (A_T + 17, PB))
            a("s_cmp_eq_u64 vcc, 0")
            a("s_cselect_b32 s%d, %d, 0" % (S_LOC, 0 if cfg.get("force_remote") else 1))
        elif u < U_CHK:
            pass
        elif u >= 68 and q_d:
            grp = q_d.pop(0)
        elif q_t and u % 8 == 1:
            grp = q_t.pop(0)
        elif q_w:
            grp = q_w.pop(0)
        elif q_t:
            grp = q_t.pop(0)
        if grp:
            for x in grp:
                a(x)
            if g is not None:
                tg[g] = a.vt()

    NU = 128
    BAR = {16: 9, 36: 15}
    for u in range(NU):
        j, t = u >> 1, u & 1
        nj, nt = (u + 1) >> 1, (u + 1) & 1
        pj, pt = (u - 1) >> 1, (u - 1) & 1
        jj = j % UNR
        sb, nsb = A_S[u % 2], A_S[(u + 1) % 2]
        plo, phi = A_P[(u % 2) * 2], A_P[(u % 2) * 2 + 1]
        pphi = A_P[((u - 1) % 2) * 2 + 1]
        if u + 1 < NU:
            m4(nsb, A_KF[nj % 2], Q[nt], A_C[nt])
        if t == 0 and j + 2 < 64:
            a("ds_read_b128 v[%d:%d], v%d offset:%d" % (A_KF[j % 2], A_KF[j % 2] + 3, V_L16, (j + 2) * 1024))
        if t == 1 and u > U_CHK and cfg.get('slot3', 0):
            slot(u)
        for r in range(0, 4):
            ex(sb + r)
        if u > 0:
            m4(A_O[pt], A_VF[pj % 2][1], pphi, A_O[pt])
        if t == 0 and j + 1 < 64:
            off = (jj + 1) * 1024
            a("ds_read_b128 v[%d:%d], v%d offset:%d" % (A_VF[(j + 1) % 2][0], A_VF[(j + 1) % 2][0] + 3, A_VV, off))
            a("ds_read_b128 v[%d:%d], v%d offset:%d" % (A_VF[(j + 1) % 2][1], A_VF[(j + 1) % 2][1] + 3, A_VV, off + 512))
        if t == 1:
            slot(u)
        for r in range(4, 9):
            ex(sb + r)
        for r in range(0, 4):
            cv(plo + r, sb + 2 * r)
        for r in range(9, 12):
            ex(sb + r)
        m4(A_O[t], A_VF[j % 2][0], plo, A_O[t]) if u > 1 else mf(a, A_O[t], vr(A_VF[j % 2][0], 4), vr(plo, 4), "0")
        if t == 1:
            a("s_waitcnt lgkmcnt(0)")
            if (j + 3) in BAR:
                g = BAR[j + 3]
                if g is not None:
                    a.wait_vm(tg[g])
                a("s_barrier")
                if j + 3 == 16:
                    stamp(a, cfg, 6)
        else:
            slot(u)
        for r in range(12, 16):
            ex(sb + r)
        if t == 1 and jj == UNR - 1:
            a("v_add_u32 v%d, v%d, v%d" % (A_VV, A_VINC, A_VV))
        for r in range(4, 8):
            cv(phi + r - 4, sb + 2 * r)
    assert not (q_kv or q_w or q_t or q_d), (len(q_kv), len(q_w), len(q_t), len(q_d))
    units = [(63, 1)]
    U = 128
    a("L_att_done:")
    DUAL[0] = bool(cfg.get("dual", 1))
    stamp(a, cfg, 7)
    lj, lt = units[-1]
    m4(A_O[lt], A_VF[lj % 2][1], A_P[((U - 1) % 2) * 2 + 1], A_O[lt])
    layer_off(a, 34, OFF_O, X_STRIDE)
    a("s_lshl_b32 s18, s%d, 15" % S_RT)
    a("s_add_u32 s34, s34, s18")
    a("s_lshl_b32 s18, s%d, 11" % S_NT)
    a("s_add_u32 s34, s34, s18")
    for t in range(2):
        a("v_rcp_f32 v%d, v%d" % (A_T, A_O[t] + 8))
        for r in range(8):
            a("v_mul_f32 v%d, v%d, v%d" % (A_O[t] + r, A_T, A_O[t] + r))
        pack8(a, A_P[t], A_O[t])
        st4(a, A_P[t], V_L16, 34, t * 1024)
    flag_addr(a, S_FO, FL_O, S_RB, 7, S_HQ)
    publish(a, S_FO, [(34, 2048, 0)])
    stamp(a, cfg, 8)


def phase_wo(a, cfg):
    SB0, SB1, SX = 26, 27, 28
    a("s_barrier")
    if not cfg.get("pf_att", 1):
        for i in range(8):
            blk(a, ar(4 * i, 4), 24, i)
            blk(a, ar(32 + 4 * i, 4), 25, i)
    dma13(a, 2)
    layer_off(a, SX, OFF_O, X_STRIDE)
    b_addr(a, SB0, SB1, SX, 32, 8)
    reduce_addr(a, LDS_R1)
    out_addr(a, 1)
    flag_addr(a, 38, FL_O, S_RB, 7)
    a("s_lshl_b32 s17, s%d, 5" % S_W)
    a("s_add_u32 s38, s38, s17")
    a("v_and_b32 v%d, 28, v%d" % (G_T + 5, V_L4))
    flag_addr(a, S_FX1, FL_X1, S_RG, 8, S_M)
    stamp(a, cfg, 8)
    poll(a, cfg, 38, G_T + 5, G_T + 4)
    stamp(a, cfg, 9)
    gemm64_core(a, cfg, 8, lambda i: ar(4 * i, 4), lambda i: ar(32 + 4 * i, 4), lambda e: ar(64 + 4 * e, 4),
                lambda e: blk(a, ar(64 + 4 * e, 4), SB1 if e < 8 else SB0, e % 8, SC), 16, ramp=cfg.get("ramp1", 8), resid=True)
    res_epilogue(a, cfg, 1, None)
    stamp(a, cfg, 10)
    publish(a, S_FX1, [(34, 2048, 0), (35, 256, 0)])
    stamp(a, cfg, 11)


F_ACC = [24, 40, 56, 72]
NACC = 4
F_W = 88
F_CS = 120
F_H = 128
F_ST = 136
F_T = 168
F_LA = [184, 185]
F_NMU, F_C1, F_RS2, F_CSA, F_LG = 186, 187, 188, 189, 198


def phase_ffn1(a, cfg):
    SX, SH = 24, 27
    a("s_barrier")
    dma13(a, 3)
    G3 = cfg.get("g0", 2) == 3
    if G3:
        a("s_mul_i32 s17, s%d, 6144" % S_W)
        a("s_sub_u32 s29, s%d, s%d" % (S_W13, S_WL))
        a("s_add_u32 s29, s29, s17")
        a("s_add_u32 m0, s17, %d" % LDS_E)
        a("s_add_u32 s29, s29, %d" % (4 * 32768))
        for q in range(4):
            a("buffer_load_dwordx4 v%d, s[4:7], s29 offen offset:%d sc1 lds" % (V_L16, q * 1024))
        a("s_add_u32 m0, s17, %d" % (LDS_E + 4096))
        a("s_add_u32 s29, s29, 4096")
        for q in range(2):
            a("buffer_load_dwordx4 v%d, s[4:7], s29 offen offset:%d sc1 lds" % (V_L16, q * 1024))
        a("s_lshl_b32 s28, s%d, 11" % S_W)
        a("s_sub_u32 s33, s%d, s%d" % (S_W13, S_WL))
        a("s_add_u32 s33, s33, s28")
        a("s_add_u32 s33, s33, %d" % (4 * 32768 + 24 * 1024))
    a("s_mul_i32 s29, s%d, %d" % (S_M, 7 * 1024))
    a("s_lshl_b32 s17, s%d, 11" % S_W)
    a("s_add_u32 s29, s29, s17")
    a("s_add_u32 m0, s17, %d" % LDS_CS)
    a("s_add_u32 s29, s29, 0x%x" % OFF_CSX)
    a("buffer_load_dwordx4 v%d, s[4:7], s29 offen sc1 lds" % V_L16)
    a("buffer_load_dwordx4 v%d, s[4:7], s29 offen offset:1024 sc1 lds" % V_L16)
    t_w = a.vt()
    a("s_lshl_b32 s30, s%d, 2" % S_RG)
    a("s_add_u32 s30, s30, s%d" % S_W)
    layer_off(a, SX, OFF_X, X_STRIDE, 2, 1)
    a("s_lshl_b32 s17, s30, 15")
    a("s_add_u32 s%d, s%d, s17" % (SX, SX))
    a("s_add_u32 s25, s%d, %d" % (SX, 28 * 1024))
    layer_off(a, 26, OFF_STAT, STAT_STRIDE, 2, 1)
    a("s_lshl_b32 s18, s30, 12")
    a("s_add_u32 s26, s26, s18")
    layer_off(a, SH, OFF_H, H_STRIDE)
    a("s_mul_i32 s17, s30, %d" % (112 * 1024))
    a("s_add_u32 s%d, s%d, s17" % (SH, SH))
    a("s_mul_i32 s17, s%d, %d" % (S_M, 7 * 1024))
    a("s_add_u32 s%d, s%d, s17" % (SH, SH))
    a("v_mov_b32 v%d, v%d" % (F_LA[0], V_L16))
    a("v_add_u32 v%d, 65536, v%d" % (F_LA[1], V_L16))
    a("v_add_u32 v%d, %d, v%d" % (F_CSA, LDS_E, V_L16))
    a_addr(a, 53, 54, OFF_W2, 112, 28)
    flag_addr(a, 38, FL_X1, S_RG, 8)
    a("s_lshr_b32 s17, s%d, 1" % S_W)
    a("s_lshl_b32 s17, s17, 7")
    a("s_add_u32 s38, s38, s17")
    a("s_and_b32 s17, s%d, 1" % S_W)
    a("s_lshl_b32 s17, s17, 2")
    a("s_add_u32 s38, s38, s17")
    lane_pat(a, F_T + 2, 15, 0, 3)
    flag_addr(a, S_FH, FL_H, S_RG, 9, S_M, per_layer=0x2000)
    stamp(a, cfg, 1)
    a("s_waitcnt vmcnt(0)")
    a("s_barrier")
    poll(a, cfg, 38, F_T + 2, F_T)
    stamp(a, cfg, 2)
    tX = {}

    def xload(i):
        if i < 28:
            blk(a, ar(4 * i, 4), SX, i, SC)
        else:
            blk(a, ar(4 * i, 4), 25, i - 28, SC)
        tX[i] = a.vt()

    XW = cfg.get("xwin", 14)
    for i in range(XW):
        xload(i)

    def wread(tile, ks, ring):
        slot = SLOT13[tile]
        if ks == 32:
            a("ds_read_b128 v[%d:%d], v%d offset:%d" % (F_W + 4 * ring, F_W + 4 * ring + 3, F_CSA, LDS_CS - LDS_E + tile * 1024))
            return
        if G3 and tile == 4:
            a("ds_read_b128 v[%d:%d], v%d offset:%d" % (F_W + 4 * ring, F_W + 4 * ring + 3, F_CSA if ks < 24 else F_LA[0], (ks % 24) * 1024))
            return
        a("ds_read_b128 v[%d:%d], v%d offset:%d" % (F_W + 4 * ring, F_W + 4 * ring + 3, F_LA[slot >> 1], (slot & 1) * 32768 + ks * 1024))

    def epi(tile):
        acc, cs = F_ACC[tile % NACC], F_CS
        hp = F_H + 4 * (tile % 2)
        out = []
        for e in range(8):
            out.append("v_fma_f32 v%d, v%d, v%d, v%d" % (F_T + 8 + e, F_C1, acc + e, F_LG))
        for e in range(8):
            out.append("v_exp_f32 v%d, v%d" % (F_T + 8 + e, F_T + 8 + e))
            out.append("v_mul_f32 v%d, v%d, v%d" % (acc + e, acc + e, acc + 8 + e))
            if e:
                out.append("v_add_f32 v%d, v%d, v%d" % (F_T + 7 + e, F_RS2, F_T + 7 + e))
        out.append("v_add_f32 v%d, v%d, v%d" % (F_T + 15, F_RS2, F_T + 15))
        for e in range(8):
            out.append("v_rcp_f32 v%d, v%d" % (F_T + 8 + e, F_T + 8 + e))
            if e:
                out.append("v_mul_f32 v%d, v%d, v%d" % (acc + e - 1, F_T + 7 + e, acc + e - 1))
        out.append("v_mul_f32 v%d, v%d, v%d" % (acc + 7, F_T + 15, acc + 7))
        for i in range(4):
            out.append("v_cvt_pk_bf16_f32 v%d, v%d, v%d" % (hp + i, acc + 2 * i, acc + 2 * i + 1))
        out.append("buffer_store_dwordx4 v[%d:%d], v%d, s[4:7], s%d offen offset:%d" % (hp, hp + 3, V_OFF[tile // 4], SH, (tile % 4) * 1024))
        if DBL[0]:
            out.append("buffer_store_dwordx4 v[%d:%d], v%d, s[4:7], s%d offen offset:%d" % (hp, hp + 3, V_OFF[tile // 4], SH, (tile % 4) * 1024))
        return out

    G0 = cfg.get("g0", 2)
    steps = []
    for ks in range(33):
        for tl in range(G0):
            steps.append((tl, ks))
    for tile in range(G0, 7):
        for ks in range(33):
            steps.append((tile, ks))
    N = len(steps)
    PF = cfg.get('pf', 6)
    lt = {}
    first_of, last_of = {}, {}
    for n, (tile, ks) in enumerate(steps):
        first_of.setdefault(tile, n)
        last_of[tile] = n
    dma_q = []
    fence_t = {}

    def do_read(n):
        tile, ks = steps[n]
        if G3:
            ft = 5 if (tile, ks) == (4, 24) else (6 if (tile, ks) == (6, 0) else None)
            if ft:
                assert ft in fence_t and not any(q[0] <= ft for q in dma_q), ft
                a.wait_vm(fence_t[ft])
                a("s_barrier")
        elif n == first_of[tile] and tile >= 4:
            assert tile in fence_t and not any(q[0] == tile for q in dma_q), tile
            a.wait_vm(fence_t[tile])
            a("s_barrier")
        wread(tile, ks, n % 8)
        lt[n] = a.lt()

    cs_t = 0
    for n in range(PF):
        do_read(n)
    pending = []
    nx = XW
    nst, st_t, st_n, early_done, rb_done = 0, {}, {}, False, False
    for n, (tile, ks) in enumerate(steps):
        if tile >= G0 and ks == 0:
            stamp(a, cfg, 1 + tile)
        if tile == 0 and ks < 32:
            a.wait_vm(tX[ks])
        if n % 2 == 0:
            a.wait_lg(lt[min(n + 1, N - 1)])
            lg_done = lt[min(n + 1, N - 1)]
        acc = F_ACC[tile % NACC]
        if ks == 0 and tile >= NACC:
            assert nst > tile - NACC, (tile, nst)
        mf(a, acc, vr(F_W + 4 * (n % 8), 4), ar(4 * ks, 4) if ks < 32 else vr(F_CS, 4), "0" if ks == 0 else vr(acc, 16))
        if (tile == 0 or (tile < G0 and cfg.get('xfast', 0))) and nx < 32:
            xload(nx)
            nx += 1
            if nx == 32:
                load_stats(a, F_ST, 26, F_T, SC)
                t_st = a.vt()
        if n + PF < N:
            do_read(n + PF)
        if n == last_of[G0 - 1] + 2:
            a("s_barrier")
            if G3:
                dma_q += [(4, "s_mov_b32 m0, s28"), (4, "s_nop 0"),
                          (4, "buffer_load_dwordx4 v%d, s[4:7], s33 offen sc1 lds" % V_L16),
                          (4, "buffer_load_dwordx4 v%d, s[4:7], s33 offen offset:1024 sc1 lds" % V_L16)]
                for tl in (5, 6):
                    dma_q += [(tl, x) for x in dma_lines(tl)]
                b = Asm()
                for idx in range(46, 56):
                    w2load(b, idx, 53, 54)
                dma_q += [(99, l.strip()) for l in b.lines]
            else:
                for tl in range(4, 4 + G0):
                    dma_q += [(tl, x) for x in dma_lines(tl)]
        for old in range(G0, 3):
            if n == last_of[old] + 2:
                a("s_barrier")
                dma_q += [(old + 4, x) for x in dma_lines(old + 4)]
                if old == 2:
                    b = Asm()
                    for idx in range(46, 56):
                        w2load(b, idx, 53, 54)
                    dma_q += [(99, l.strip()) for l in b.lines]
        dcost = 0
        if dma_q and n % cfg.get("dma_every", 3) == 0:
            while dma_q:
                tl, x = dma_q.pop(0)
                a(x)
                dcost += cfg.get("dma_cost", 8)
                if x.startswith("buffer_load"):
                    fence_t[tl] = a.vt()
                    break
        if n == last_of[G0 - 1] - G0 - 2:
            a.wait_vm(t_st)
            finish_stats(a, F_ST, F_NMU, F_RS2)
            a("v_mul_f32 v%d, %s, v%d" % (F_C1, fl(-LOG2E), F_RS2))
            a("v_mov_b32 v%d, v%d" % (F_RS2, F_ST + 1))
            a("v_log_f32 v%d, v%d" % (F_LG, F_ST + 1))
            bextra(a, F_NMU, F_CS)
        for tl in range(0, 6):
            if n == max(last_of[tl], last_of[G0 - 1]) + 3:
                pending += epi(tl)
        if nst >= EARLY and not rb_done and n >= st_n[EARLY - 1] + 1:
            readback(a, [(SH, 1024 * EARLY, 0)])
            a("s_mov_b64 exec, -1")
            rb_done = n
            dcost += 24
        cost = dcost
        lim = cfg.get("epi_cost", 16)
        while pending:
            x = pending[0]
            if x == "CSWAIT":
                pending.pop(0)
                if cs_t > lg_done:
                    a.wait_lg(cs_t)
                    cost += 4
                continue
            cx = 8 if x.split()[0] in TRANS else (8 if x.startswith("buffer_") else 4)
            if cost + cx > lim:
                break
            pending.pop(0)
            if x.startswith("buffer_store") and nst == EARLY + 1:
                assert rb_done
                assert not dma_q
                a("s_waitcnt vmcnt(0)")
                a("s_mov_b64 exec, 1")
                emit_l(a, "buffer_store_dword v%d, v%d, s[4:7], s%d offen offset:%d" % (V_TAG, V_ZERO, S_FH, 0x100))
                a("s_mov_b64 exec, -1")
                early_done = True
            if x.startswith("buffer_store") and nst < cfg.get("h_wt", 0):
                a(x + " sc1")
            elif x.startswith("buffer_store"):
                emit_l(a, x)
            else:
                a(x)
            cost += cx
            if x.startswith("ds_read"):
                cs_t = a.lt()
            if x.startswith("buffer_store"):
                nst += 1
                st_t[nst - 1] = a.vt()
                st_n[nst - 1] = n
    assert early_done
    assert not dma_q
    stamp(a, cfg, 8)
    for x in pending + epi(6):
        if x == "CSWAIT":
            a.wait_lg(cs_t)
            continue
        if x.startswith("buffer_store"):
            emit_l(a, x)
        else:
            a(x)
    stamp(a, cfg, 9)
    a("s_add_u32 s17, s%d, %d" % (SH, EARLY * 1024))
    publish(a, S_FH, [(17, 1024 * (7 - EARLY), 0)])
    stamp(a, cfg, 10)


def phase_ffn2(a, cfg):
    SB0, SB1, SX = 26, 27, 28
    SW0, SW1 = 24, 25
    side = []
    if cfg.get("touchq", 0):
        a("s_lshl_b32 s49, s%d, 16" % S_HQ)
        a("s_and_b32 s18, s%d, 3" % S_RB)
        a("s_lshl_b32 s18, s18, 14")
        a("s_add_u32 s49, s49, s18")
        a("s_lshl_b32 s18, s%d, 12" % S_W)
        a("s_add_u32 s49, s49, s18")
        a("s_add_u32 s49, s49, 0x%x" % OFF_WQ)
        a("s_cmp_eq_u32 s%d, 1" % S_LAYER)
        a("s_cselect_b32 s49, 0xf0000000, s49")
        a("v_lshlrev_b32 v%d, 6, v%d" % (G_T + 2, V_LANE))
        side.append("buffer_load_dword v%d, v%d, s[4:7], s49 offen" % (G_T + 3, G_T + 2))
    layer_off(a, SX, OFF_H, H_STRIDE)
    b_addr(a, SB0, SB1, SX, 112, 28)
    reduce_addr(a, LDS_R1)
    out_addr(a, 2)
    flag_addr(a, 38, FL_H, S_RG, 9, per_layer=0x2000)
    a("s_lshl_b32 s17, s%d, 6" % S_W)
    a("s_add_u32 s38, s38, s17")
    a("s_and_b32 s17, s%d, 1" % S_RB)
    a("s_lshl_b32 s17, s17, 3")
    a("s_add_u32 s38, s38, s17")
    lane_pat(a, G_T + 6, 7, 0, 2)
    xin_flag_addr(a, 39, True, 1)
    stamp(a, cfg, 8)
    poll(a, cfg, 38, G_T + 6, G_T + 4, imm=0x100)
    stamp(a, cfg, 9)
    wb = cfg.get("wbl2", 0)
    R = 32

    def hreg(e):
        return ar(4 * (e % R), 4)

    early = [7 * mm + tl for tl in range(EARLY) for mm in range(4)]
    late = [7 * mm + tl for tl in range(EARLY, 7) for mm in range(4)]
    order = [(1, i) for i in early] + [(0, i) for i in early] + [(1, i) for i in late] + [(0, i) for i in late]
    tp = {}

    def probe():
        a("buffer_load_dword v%d, v%d, s[4:7], s38 offen %s" % (G_T + 5, G_T + 6, SC))
        tp[0] = a.vt()

    def check():
        a.wait_vm(tp[0])
        a("v_cmp_ne_u32 vcc, v%d, v%d" % (V_TAG, G_T + 5))
        a("s_cbranch_vccz L_ffn2_go")
        keep = a.vm_issued
        poll(a, cfg, 38, G_T + 6, G_T + 4)
        a.vm_issued = keep
        a("L_ffn2_go:")
        if wb:
            a("s_lshr_b32 s17, s2, %d" % (3 if wb == 1 else 6))
            a("s_or_b32 s17, s17, s%d" % S_W)
            a("s_xor_b32 s18, s%d, 1" % S_LAYER)
            a("s_or_b32 s17, s17, s18")
            a("s_cmp_lg_u32 s17, 0")
            a("s_cbranch_scc1 L_ffn2_nowb")
            a("buffer_wbl2 sc1")
            a("L_ffn2_nowb:")
        stamp(a, cfg, 3)

    pp = cfg.get("probe_at", 16)
    gemm64_core(a, cfg, 28, lambda i: w2reg(0, i), lambda i: w2reg(1, i), hreg,
                lambda e: blk(a, hreg(e), SB1 if order[e][0] else SB0, order[e][1], SC), cfg.get('win2', 18), order=order,
                gate=(2 * len(early), probe, check, pp, pp), side=side, side_from=cfg.get('w2_side', 6), side_n=1,
                side2=wq_lines(), side2_from=cfg.get('wq_from', 33), ramp=cfg.get('ramp2', 10), resid=True)
    res_epilogue(a, cfg, 2, "L_final")
    stamp(a, cfg, 10)
    publish(a, 39, [(34, 2048, 0), (35, 256, 0)])
    stamp(a, cfg, 11)


def final_store(a):
    a("v_permlane32_swap_b32 v%d, v%d" % (V_RES, V_RES + 2))
    a("v_permlane32_swap_b32 v%d, v%d" % (V_RES + 1, V_RES + 3))
    a("v_permlane32_swap_b32 v%d, v%d" % (V_RES + 4, V_RES + 6))
    a("v_permlane32_swap_b32 v%d, v%d" % (V_RES + 5, V_RES + 7))
    a("s_lshl_b32 s17, s%d, 15" % S_RT)
    a("s_lshl_b32 s18, s%d, 6" % S_NT)
    a("s_add_u32 s17, s17, s18")
    a("v_lshlrev_b32 v%d, 10, v%d" % (G_T + 2, V_R31))
    a("v_lshl_add_u32 v%d, v%d, 4, v%d" % (G_T + 2, V_H, G_T + 2))
    a("buffer_store_dwordx4 v[%d:%d], v%d, s[8:11], s17 offen" % (V_RES, V_RES + 3, G_T + 2))
    a("buffer_store_dwordx4 v[%d:%d], v%d, s[8:11], s17 offen offset:32" % (V_RES + 4, V_RES + 7, G_T + 2))


def st_begin(a, cfg):
    kern.stamp_init(a, cfg)


def st_end(a, cfg, k):
    if not cfg.get("stamps"):
        return
    stamp(a, cfg, NSTAMP - 1)
    a("s_memrealtime s[62:63]")
    a("s_waitcnt lgkmcnt(0)")
    a("s_mov_b32 s79, s62")
    a("s_mul_i32 s60, s3, 5\ns_add_u32 s60, s60, %d" % k)
    a("s_lshl_b32 s60, s60, 16")
    a("s_lshl_b32 s61, s2, 8")
    a("s_add_u32 s60, s60, s61")
    a("s_lshl_b32 s61, s12, 6")
    a("s_add_u32 s60, s60, s61")
    a("s_add_u32 s60, s60, 0x%x" % kern.OFF_STAMP)
    for i in range(16):
        a("v_writelane_b32 v199, s%d, %d" % (64 + i, i))
    a("s_mov_b32 exec_lo, 0xffff\ns_mov_b32 exec_hi, 0x0")
    a("buffer_store_dword v199, v%d, s[4:7], s60 offen" % V_L4)
    a("s_mov_b64 exec, -1")


def dbgt(a, cfg, k, last=False):
    if not cfg.get("dbgtime"):
        return
    L = a.newlabel("L_dt")
    a("s_cmp_lg_u32 s2, %d" % (cfg["dbgtime"] - 1))
    a("s_cbranch_scc1 %s" % L)
    a("s_memrealtime s[64:65]")
    a("s_memtime s[66:67]")
    a("s_mov_b32 s68, s98\ns_mov_b32 s69, s99\ns_mov_b32 s70, 256\ns_mov_b32 s71, 0x00020000")
    a("s_mul_i32 s72, s3, 20")
    a("s_waitcnt lgkmcnt(0)")
    a("s_sub_u32 s64, s64, s60")
    a("s_sub_u32 s66, s66, s62")
    a("v_mov_b32 v199, s64")
    a("buffer_store_dword v199, v%d, s[68:71], s72 offen offset:%d" % (V_ZERO, 4 + 4 * k))
    if last:
        a("v_mov_b32 v198, s66")
        a("buffer_store_dword v198, v%d, s[68:71], 0 offen offset:%d" % (V_ZERO, 4 * 13))
    a(L + ":")


KNAME = kern.NAME + "_kernel"


def build(cfg):
    rep = []
    DBL[0] = cfg.get("dbl", 0)
    TOUCH[0] = cfg.get("ptouch", 0)
    COMPACT[0] = cfg.get("compact", 1)
    DUAL[0] = False
    global OFF_WKV
    if COMPACT[0]:
        OFF_WKV = SU.OFF_WKV = C_WKV
    a = Asm()
    a("s_load_dwordx16 s[80:95], s[0:1], 0")
    a("s_load_dwordx2 s[96:97], s[0:1], 64")
    a("s_load_dwordx2 s[98:99], s[0:1], 80")
    kern.common_prologue(a, True)
    a("v_mov_b32 v%d, 0" % V_ZERO)
    a("v_mov_b32 v199, 0")
    a("v_lshlrev_b32 v%d, 7, v%d" % (V_L128, V_LANE))
    a("v_lshlrev_b32 v%d, 2, v%d" % (V_L4, V_LANE))
    a("s_lshr_b32 s17, s%d, 1" % S_W)
    a("s_and_b32 s18, s%d, 1" % S_W)
    a("s_lshl_b32 s%d, s%d, 1" % (S_NT, S_HQ))
    a("s_add_u32 s%d, s%d, s17" % (S_NT, S_NT))
    a("s_lshl_b32 s%d, s%d, 1" % (S_RT, S_RB))
    a("s_add_u32 s%d, s%d, s18" % (S_RT, S_RT))
    a("s_mov_b32 s%d, 0" % S_LAYER)
    if cfg.get("spin_limit"):
        a("s_mov_b32 s46, %d" % cfg["spin_limit"])
    if cfg.get("dbgtime"):
        a("s_memrealtime s[60:61]")
        a("s_memtime s[62:63]")
        a("s_waitcnt lgkmcnt(0)")
    st_begin(a, cfg)
    SU.startup(a, cfg, sys.modules[__name__])
    dbgt(a, cfg, 0)
    a_addr(a, S_Q0, S_Q1, OFF_WQ, 32, 8)
    a("s_mov_b32 s%d, 0" % S_KVW)
    st_end(a, cfg, 0)
    a("L_layer:")
    for k, ph in enumerate((phase_qkv, phase_att, phase_wo, phase_ffn1, phase_ffn2)):
        st_begin(a, cfg)
        ph(a, cfg)
        st_end(a, cfg, k + 1)
        dbgt(a, cfg, k + 1)
    a("s_lshl_b32 s%d, s%d, 13" % (S_KVW, S_W))
    a("s_add_u32 s%d, s%d, 0x%x" % (S_KVW, S_KVW, OFF_WKV))
    a("s_and_b32 s17, s2, 7")
    a("s_lshl_b32 s17, s17, 15")
    a("s_add_u32 s%d, s%d, s17" % (S_KVW, S_KVW))
    a("s_cmp_ge_u32 s%d, 4" % S_HQ)
    a("s_cselect_b32 s%d, 0, s%d" % (S_KVW, S_KVW))
    a("s_mov_b32 s%d, 1" % S_LAYER)
    a("s_branch L_layer")
    a("L_final:")
    final_store(a)
    st_end(a, cfg, 5)
    dbgt(a, cfg, 5, True)
    a("L_exit:")
    a("s_endpgm")
    main_lines, _ = fix_hazards_fast(kern.uniq(a.lines, "main"), rep)

    pf = cfg.get("pfk", 0)
    if pf:
        b = Asm()
        b("s_cmp_ge_u32 s2, 256")
        b("s_cbranch_scc1 L_pf_end")
        b("s_load_dwordx16 s[16:31], s[0:1], 0")
        b("s_load_dwordx2 s[32:33], s[0:1], 64")
        b("s_getpc_b64 s[4:5]")
        b("L_pf_pc:")
        b("s_add_u32 s4, s4, L_code_begin-L_pf_pc")
        b("s_addc_u32 s5, s5, -1")
        b("s_lshr_b32 s6, s2, 3")
        b("s_and_b32 s7, s2, 7")
        b("s_lshl_b32 s8, s6, 11")
        b("v_lshlrev_b32 v1, 3, v0")
        b("v_add_u32 v1, s8, v1")
        b("v_min_u32 v1, L_code_end-L_code_begin-8, v1")
        b("global_load_dwordx2 v[2:3], v1, s[4:5]")
        if pf >= 2:
            b("v_lshlrev_b32 v1, 6, v0")
            b("s_lshl_b32 s8, s6, 14")
            b("v_add_u32 v4, s8, v1")
            b("s_lshl_b32 s9, s7, 18")
            b("s_lshl_b32 s10, s6, 13")
            b("s_add_u32 s9, s9, s10")
            b("v_lshlrev_b32 v5, 5, v0")
            b("v_add_u32 v5, s9, v5")
            b("s_mul_i32 s11, s2, 7168")
            b("v_mul_u32_u24 v6, 28, v0")
            b("v_add_u32 v6, s11, v6")
            b("s_lshl_b32 s11, s2, 11")
            b("v_lshlrev_b32 v7, 3, v0")
            b("v_add_u32 v7, s11, v7")
            b("s_waitcnt lgkmcnt(0)")
            b("global_load_dword v8, v4, s[18:19]")
            b("global_load_dword v9, v5, s[16:17]")
            b("global_load_dword v10, v1, s[20:21]")
            b("global_load_dword v11, v1, s[22:23]")
            b("global_load_dword v12, v6, s[28:29]")
            b("global_load_dword v13, v6, s[30:31]")
            b("global_load_dword v14, v6, s[32:33]")
            b("global_load_dword v15, v7, s[24:25]")
        b("L_pf_end:")
        b("s_endpgm")
        pfl, _ = fix_hazards_fast(["L_code_begin:", "L_code_end:"] + b.lines, rep)
        main_lines2 = [".p2align 8", "pf_kernel:"] + pfl[2:]
        s = "; @launch kernel=pf_kernel grid=(256,1,1) block=(256,1,1) lds=0\n"
        s += "; @launch kernel=%s grid=(256,1,1) block=(256,1,1) lds=%d\n" % (KNAME, 160 * 1024)
    else:
        main_lines2 = []
        s = "; @launch grid=(256,1,1) block=(256,1,1) lds=%d\n" % (160 * 1024)
    s += '.amdgcn_target "amdgcn-amd-amdhsa--gfx950"\n.text\n.globl %s\n.p2align 8\n.type %s,@function\n' % (KNAME, KNAME)
    s += "\n".join(["L_code_begin:", KNAME + ":"] + main_lines + ["L_code_end:"] + main_lines2) + "\n"
    s += '.section .rodata,"a"\n.p2align 6\n' + kernel_desc(KNAME, 512, 256, 102)
    if pf:
        s += ".p2align 6\n" + kernel_desc("pf_kernel", 16, 16, 40)
    return s, rep


if __name__ == "__main__":
    cfg = dict(code_prefetch=True)
    for kv in sys.argv[2:]:
        k, v = kv.split("=")
        cfg[k] = eval(v)
    s, rep = build(cfg)
    open(sys.argv[1], "w").write(s)
    print("auto nops:", sum(r[0] for r in rep), "sites", len(rep), "bytes of source", len(s))
    if cfg.get("verbose"):
        for r in rep:
            print(r)
```

```python
import sys
from asmlib import *
from layout import *
import kern
import startup as SU
from kern import (split3, fl, MF, S_LAYER, S_W, S_RB, S_HQ, S_RG, S_M, V_L16, V_LANE, V_R31, V_H, V_OFF, xhalf_sum,
                  load_stats, finish_stats, pack8, stamp, kernel_desc, prep, NSTAMP)

SC = "sc1"


COMPACT = [1]
CMAP = {OFF_X: 0x800000, OFF_O: 0xC00000, OFF_H: 0xE00000, OFF_STAT: OFF_STAT}
C_WKV = 0x780000
C_END = 0x1500000


def layer_off(a, sdst, base, stride, mul=1, add=0):
    if COMPACT[0] and base in CMAP:
        a("s_mov_b32 s%d, 0x%x" % (sdst, CMAP[base] + (add & 1) * stride))
    else:
        kern.layer_off(a, sdst, base, stride, mul, add)


def blk(a, dst, sbase, i, sc=SC):
    kern.blk(a, dst, sbase, i, SC)


FL_O = 0x0000
FL_X1 = 0x2000
FL_H = 0x8000
FL_XIN = 0x6000
OFF_FLW = 0x64C000
FL_KV = 0xC000

S_RT, S_NT = 31, 32
S_FO, S_FX1, S_FH = 40, 41, 42
S_W13, S_WL = 47, 48
S_RET = 44
V_RES = 12
V_TAG = 11
V_L4 = 20
V_ZERO = 21
VB = 24

G_ACC = 24
G_RED = 88
G_ST = 136
G_CS = 152
G_T = 168
V_WR = [184, 185, 186]
V_RD = 187
V_NMU, V_RSTD = 188, 189
G_KVACC = 88
G_Q = 190
W2V = 200

LDS_R1 = 96 * 1024
LDS_RQ = 0
LDS_KVX = 49152
LDS_CSX = 69632
LDS_CS = 152 * 1024
LDS_E = 128 * 1024


DBL = [0]
LSC = ["sc1"]
S_LOC = 57
DUAL = [False]
_dl = [0]


def lstore(text):
    lines = text if isinstance(text, list) else [text]
    if not DUAL[0]:
        return [l + " sc1" for l in lines]
    _dl[0] += 1
    n = _dl[0]
    return (["s_cbranch_scc1 L_ls%da ; needs scc" % n] + [l + " sc1" for l in lines] + ["s_branch L_ls%db" % n, "L_ls%da:" % n] +
            ["!" + l + " " + LSC[0] for l in lines] + ["L_ls%db:" % n])


def emit_l(a, text):
    out = lstore(text)
    if DUAL[0]:
        a("s_cmp_lg_u32 s%d, 0" % S_LOC)
    for l in out:
        if l.startswith("!"):
            a(l[1:])
        else:
            a(l)


def st4(a, data, voff, soff, imm=0):
    emit_l(a, "buffer_store_dwordx4 v[%d:%d], v%d, s[4:7], s%d offen offset:%d" % (data, data + 3, voff, soff, imm))
    if DBL[0]:
        a("buffer_store_dwordx4 v[%d:%d], v%d, s[4:7], s%d offen offset:%d" % (data, data + 3, voff, soff, imm))


TOUCH = [1]
V_L128 = 23
V_P2 = 199


V_L64 = 22


RBW = [0]


def readback(a, regions, final=False):
    if not DUAL[0]:
        return
    L = a.newlabel("L_rb")
    keep = a.vm_issued
    a("s_cmp_eq_u32 s%d, 0" % S_LOC)
    a("s_cbranch_scc1 %s" % L)
    a("v_lshlrev_b32 v%d, 6, v%d" % (V_L64, V_LANE))
    if RBW[0] and final:
        a("s_waitcnt vmcnt(0)")
    for sg, nb, imm in regions:
        n = nb // 64
        assert n <= 64
        a("s_mov_b32 exec_lo, 0x%x" % (((1 << n) - 1) & 0xffffffff))
        a("s_mov_b32 exec_hi, 0x%x" % (((1 << n) - 1) >> 32))
        a("buffer_load_dword v%d, v%d, s[4:7], s%d offen offset:%d %s" % (V_P2, V_L64, sg, imm, SC))
    a(L + ":")
    a.vm_issued = keep


def publish(a, s_addr, regions, imm=0):
    readback(a, regions, True)
    a("s_waitcnt vmcnt(0)")
    a("s_mov_b64 exec, 1")
    emit_l(a, "buffer_store_dword v%d, v%d, s[4:7], s%d offen offset:%d" % (V_TAG, V_ZERO, s_addr, imm))
    a("s_mov_b64 exec, -1")


def poll(a, cfg, s_addr, voff, vtmp, wide=False, imm=0, sleep=0):
    L = a.newlabel("L_poll")
    if cfg.get("spin_limit"):
        a("s_mov_b32 s46, %d" % cfg["spin_limit"])
    if cfg.get("ppoll", 0) and not wide and not sleep:
        ld = lambda r: a("buffer_load_dword v%d, v%d, s[4:7], s%d offen offset:%d %s" % (r, voff, s_addr, imm, SC))
        ld(vtmp)
        a("s_sleep %d" % cfg.get("ppoll_gap", 2))
        a(L + ":")
        ld(V_P2)
        a("s_waitcnt vmcnt(1)")
        a("v_cmp_ne_u32 vcc, v%d, v%d" % (V_TAG, vtmp))
        a("s_cbranch_vccz %s_out" % L)
        ld(vtmp)
        a("s_waitcnt vmcnt(1)")
        if cfg.get("spin_limit"):
            a("s_sub_u32 s46, s46, 1")
            a("s_cbranch_scc1 %s_out" % L)
        a("v_cmp_ne_u32 vcc, v%d, v%d" % (V_TAG, V_P2))
        a("s_cbranch_vccnz %s" % L)
        a.vm_issued -= 1
        a(L + "_out:")
        return
    a(L + ":")
    if wide:
        a("buffer_load_dwordx2 v[%d:%d], v%d, s[4:7], s%d offen %s" % (vtmp, vtmp + 1, voff, s_addr, SC))
        a("s_waitcnt vmcnt(0)")
        a("v_xor_b32 v%d, v%d, v%d" % (vtmp + 1, V_TAG, vtmp + 1))
        a("v_xor_b32 v%d, v%d, v%d" % (vtmp, vtmp, vtmp + 1))
        a("v_or_b32 v%d, v%d, v%d" % (vtmp, vtmp, vtmp + 1) if False else "v_cmp_ne_u32 s[18:19], 0, v%d" % (vtmp + 1))
        a("v_cndmask_b32 v%d, v%d, v%d, s[18:19]" % (vtmp, vtmp, V_ZERO))
    else:
        a("buffer_load_dword v%d, v%d, s[4:7], s%d offen offset:%d %s" % (vtmp, voff, s_addr, imm, SC))
        a("s_waitcnt vmcnt(0)")
    if cfg.get("spin_limit"):
        a("s_sub_u32 s46, s46, 1")
        a("s_cbranch_scc1 %s_out" % L)
    a("v_cmp_ne_u32 vcc, v%d, v%d" % (V_TAG, vtmp))
    if sleep:
        a("s_cbranch_vccz %s_out" % L)
        a("s_sleep %d" % sleep)
        a("s_branch %s" % L)
    else:
        a("s_cbranch_vccnz %s" % L)
    a(L + "_out:")


def lane_pat(a, vdst, mask, hi_shift, lo_mul):
    a("v_and_b32 v%d, %d, v%d" % (vdst, mask & ~1, V_LANE))
    a("v_lshlrev_b32 v%d, 3, v%d" % (vdst, vdst))
    a("v_and_b32 v%d, 1, v%d" % (vdst + 1, V_LANE))
    a("v_lshl_add_u32 v%d, v%d, %d, v%d" % (vdst, vdst + 1, lo_mul, vdst))


def flag_addr(a, sdst, base, s_grp, grp_shift, s_mem=None, per_layer=0x1000):
    a("s_mul_i32 s%d, s%d, 0x%x" % (sdst, S_LAYER, per_layer))
    a("s_add_u32 s%d, s%d, 0x%x" % (sdst, sdst, OFF_FLAGS + base))
    a("s_lshl_b32 s17, s%d, %d" % (s_grp, grp_shift))
    a("s_add_u32 s%d, s%d, s17" % (sdst, sdst))
    if s_mem is not None:
        a("s_lshl_b32 s17, s%d, 4" % s_mem)
        a("s_add_u32 s%d, s%d, s17" % (sdst, sdst))
        a("s_lshl_b32 s17, s%d, 2" % S_W)
        a("s_add_u32 s%d, s%d, s17" % (sdst, sdst))


def xin_flag_addr(a, sdst, own, layer_add):
    flag_addr(a, sdst, FL_XIN + 0x1000 * layer_add, S_RB, 7, S_HQ if own else None)


def a_addr(a, s_a0, s_a1, offA, ksA, ksw):
    a("s_mul_i32 s20, s%d, %d" % (S_W, ksw * 1024))
    a("s_mul_i32 s%d, s%d, %d" % (s_a0, S_NT, ksA * 1024))
    a("s_add_u32 s%d, s%d, s20" % (s_a0, s_a0))
    a("s_add_u32 s%d, s%d, 0x%x" % (s_a0, s_a0, offA))
    a("s_xor_b32 s21, s%d, 1" % S_NT)
    a("s_mul_i32 s%d, s21, %d" % (s_a1, ksA * 1024))
    a("s_add_u32 s%d, s%d, s20" % (s_a1, s_a1))
    a("s_add_u32 s%d, s%d, 0x%x" % (s_a1, s_a1, offA))


def b_addr(a, s_b0, s_b1, s_base, ksB, ksw):
    a("s_mul_i32 s20, s%d, %d" % (S_W, ksw * 1024))
    a("s_add_u32 s20, s20, s%d" % s_base)
    a("s_mul_i32 s%d, s%d, %d" % (s_b0, S_RT, ksB * 1024))
    a("s_add_u32 s%d, s%d, s20" % (s_b0, s_b0))
    a("s_xor_b32 s21, s%d, 1" % S_RT)
    a("s_mul_i32 s%d, s21, %d" % (s_b1, ksB * 1024))
    a("s_add_u32 s%d, s%d, s20" % (s_b1, s_b1))


def reduce_addr(a, base):
    for j in (1, 2, 3):
        a("s_xor_b32 s17, s%d, %d" % (S_W, j))
        a("s_mul_i32 s17, s17, 12288")
        a("s_add_u32 s17, s17, %d" % (base + (j - 1) * 4096))
        a("v_add_u32 v%d, s17, v%d" % (V_WR[j - 1], V_L16))
    a("s_mul_i32 s17, s%d, 12288" % S_W)
    a("s_add_u32 s17, s17, %d" % base)
    a("v_add_u32 v%d, s17, v%d" % (V_RD, V_L16))


def mf(a, d, x, y, c):
    a("%s v[%d:%d], %s, %s, %s" % (MF, d, d + 15, x, y, c))


def wr_tile(a, j):
    for q in range(4):
        r = G_ACC + 16 * j + 4 * q
        a("ds_write_b128 v%d, v[%d:%d] offset:%d" % (V_WR[j - 1], r, r + 3, q * 1024))


def rd_tile(a, j, dst):
    for q in range(4):
        a("ds_read_b128 v[%d:%d], v%d offset:%d" % (dst + 4 * q, dst + 4 * q + 3, V_RD, (j - 1) * 4096 + q * 1024))


def gemm64_core(a, cfg, n, A0, A1, Breg, issueB, window, pre_tickets=None, order=None, side=None, side_from=0, side_n=1,
                gate=None, side2=None, side2_from=0, ramp=None, resid=False, extra0=None, hooks=None):
    if order is None:
        order = [(1, i) for i in range(n)] + [(0, i) for i in range(n)]
    M = len(order)
    side = list(side or [])
    t = dict(pre_tickets or {})
    nxt = len(t)
    gpos = gate[0] if gate else M + 1
    gated = [False]

    def try_issue(limit):
        nonlocal nxt
        while nxt < M and nxt < limit:
            if nxt >= gpos and not gated[0]:
                return
            issueB(nxt)
            t[nxt] = a.vt()
            nxt += 1
            if gate and nxt == gate[3]:
                gate[1]()

    try_issue(ramp or window)
    if cfg.get("stamps") != 2:
        stamp(a, cfg, 1)
    last1 = max(e for e, (st, i) in enumerate(order) if st == 1)
    wr1 = last1 + 2
    bar1 = min(M - 2, last1 + 1 + max(2, (M - last1) // 2))
    seen = set()
    for e, (st, i) in enumerate(order):
        if gate and not gated[0] and e == gate[4]:
            assert not side
            gate[2]()
            gated[0] = True
            try_issue(e + window)
        if hooks and e in hooks:
            hooks[e]()
        a.wait_vm(t[e])
        if e == 0 and cfg.get("stamps") != 2:
            stamp(a, cfg, 2)
        first = "0" if st not in seen else None
        seen.add(st)
        if st == 1:
            mf(a, G_ACC + 16, A0(i), Breg(e), first or vr(G_ACC + 16, 16))
            if cfg.get("ldmid", 0) and window < 30:
                try_issue(min(e + 1 + window, nxt + 1))
            mf(a, G_ACC + 48, A1(i), Breg(e), first or vr(G_ACC + 48, 16))
        else:
            mf(a, G_ACC + 32, A1(i), Breg(e), first or vr(G_ACC + 32, 16))
            if cfg.get("ldmid", 0) and window < 30:
                try_issue(min(e + 1 + window, nxt + 1))
            mf(a, G_ACC, A0(i), Breg(e), first or vr(G_ACC, 16))
        try_issue(min(e + 1 + window, nxt + 2))
        if e >= side_from:
            k = 0
            while side and k < side_n:
                x = side.pop(0)
                a(x)
                k += x.startswith("buffer_")
        if side2 and e >= side2_from:
            for _ in range(cfg.get("side2_n", 1)):
                if side2:
                    a(side2.pop(0))
        if e == wr1:
            wr_tile(a, 1)
            wr_tile(a, 3)
        if e == bar1:
            a("s_waitcnt lgkmcnt(0)")
            a("s_barrier")
            rd_tile(a, 1, G_RED)
            rd_tile(a, 3, G_RED + 16)
    assert wr1 <= bar1 < M and not side2
    if extra0:
        extra0[2]()
        mf(a, G_ACC, extra0[0], extra0[1], vr(G_ACC, 16))
    stamp(a, cfg, 4)
    a("s_waitcnt lgkmcnt(0)")
    for e in range(6):
        a("v_add_f32 v%d, v%d, v%d" % (G_RED + e, G_RED + e, G_RED + 16 + e))
    wr_tile(a, 2)
    for e in range(6, 16):
        a("v_add_f32 v%d, v%d, v%d" % (G_RED + e, G_RED + e, G_RED + 16 + e))
    for e in range(16):
        a("v_add_f32 v%d, v%d, v%d" % (G_ACC + e, G_ACC + e, G_RED + e))
    if resid:
        for i in range(8):
            a("v_lshlrev_b32 v%d, 16, v%d" % (G_T, V_RES + i))
            a("v_and_b32 v%d, 0xffff0000, v%d" % (G_T + 1, V_RES + i))
            a("v_add_f32 v%d, v%d, v%d" % (G_ACC + 2 * i, G_ACC + 2 * i, G_T))
            a("v_add_f32 v%d, v%d, v%d" % (G_ACC + 2 * i + 1, G_ACC + 2 * i + 1, G_T + 1))
    for x in side:
        a(x)
    a("s_waitcnt lgkmcnt(0)")
    a("s_barrier")
    stamp(a, cfg, 6)
    rd_tile(a, 2, G_RED + 32)
    for q in range(4):
        a("s_waitcnt lgkmcnt(%d)" % (3 - q))
        for e in range(4):
            a("v_add_f32 v%d, v%d, v%d" % (G_ACC + 4 * q + e, G_ACC + 4 * q + e, G_RED + 32 + 4 * q + e))
    stamp(a, cfg, 7)


def bextra(a, nmu, d):
    split3(a, nmu, d + 4)
    a("v_lshrrev_b32 v%d, 16, v%d" % (d + 7, d + 4))
    a("v_or_b32 v%d, v%d, v%d" % (d, d + 7, d + 5))
    a("v_or_b32 v%d, v%d, v%d" % (d + 1, d + 7, d + 6))
    a("v_mov_b32 v%d, v%d" % (d + 2, d))
    a("v_mov_b32 v%d, 0" % (d + 3))


def res_epilogue(a, cfg, xout_add, final):
    for i in range(8):
        a("v_cvt_pk_bf16_f32 v%d, v%d, v%d" % (V_RES + i, G_ACC + 2 * i, G_ACC + 2 * i + 1))
        if i == 3 and final is None:
            st4(a, V_RES, V_L16, 34)
    if final is not None:
        a("s_cmp_eq_u32 s%d, 1" % S_LAYER)
        a("s_cbranch_scc1 %s" % final)
        st4(a, V_RES, V_L16, 34)
    store_x_tail(a)


def store_x_tail(a):
    st4(a, V_RES + 4, V_L16, 34, 1024)
    a("v_mov_b32 v%d, 0x3f803f80" % G_T)
    a("v_mov_b32 v%d, 0" % (G_T + 12))
    a("v_mov_b32 v%d, 0" % (G_T + 13))
    for r in range(8):
        a("v_dot2_f32_bf16 v%d, v%d, v%d, v%d" % (G_T + 12, V_RES + r, G_T, G_T + 12))
        a("v_dot2_f32_bf16 v%d, v%d, v%d, v%d" % (G_T + 13, V_RES + r, V_RES + r, G_T + 13))
    a("v_lshlrev_b32 v%d, 3, v%d" % (G_T + 2, V_R31))
    a("s_nop 1")
    a("v_mov_b32 v%d, v%d" % (G_T + 14, G_T + 12))
    a("v_mov_b32 v%d, v%d" % (G_T + 15, G_T + 13))
    a("s_nop 0")
    a("v_permlane32_swap_b32 v%d, v%d" % (G_T + 12, G_T + 14))
    a("v_permlane32_swap_b32 v%d, v%d" % (G_T + 13, G_T + 15))
    a("v_add_f32 v%d, v%d, v%d" % (G_T + 12, G_T + 12, G_T + 14))
    a("v_add_f32 v%d, v%d, v%d" % (G_T + 13, G_T + 13, G_T + 15))
    a("s_mov_b32 exec_lo, 0xffffffff\ns_mov_b32 exec_hi, 0x0")
    emit_l(a, "buffer_store_dwordx2 v[%d:%d], v%d, s[4:7], s35 offen" % (G_T + 12, G_T + 13, G_T + 2))
    a("s_mov_b64 exec, -1")


def out_addr(a, xout_add):
    layer_off(a, 34, OFF_X, X_STRIDE, 2, xout_add)
    a("s_lshl_b32 s18, s%d, 15" % S_RT)
    a("s_add_u32 s34, s34, s18")
    a("s_lshl_b32 s18, s%d, 11" % S_NT)
    a("s_add_u32 s34, s34, s18")
    layer_off(a, 35, OFF_STAT, STAT_STRIDE, 2, xout_add)
    a("s_lshl_b32 s18, s%d, 12" % S_RT)
    a("s_add_u32 s35, s35, s18")
    a("s_lshl_b32 s18, s%d, 8" % S_NT)
    a("s_add_u32 s35, s35, s18")


S_Q0, S_Q1, S_KVW = 50, 51, 52


def wq_lines():
    b = Asm()
    for i in range(8):
        blk(b, ar(128 + 4 * i, 4), S_KVW, i)
    for i in range(8):
        blk(b, ar(160 + 4 * i, 4), S_Q0, i)
        blk(b, ar(192 + 4 * i, 4), S_Q1, i)
    return [l.strip() for l in b.lines]


def phase_qkv(a, cfg):
    SA0, SA1, SB0, SB1, SX, SKV = 24, 25, 26, 27, 28, 29
    CK = G_T + 8
    a("v_lshlrev_b32 v%d, 4, v%d" % (G_T + 1, V_H))
    a("v_lshlrev_b32 v%d, 2, v%d" % (G_T + 6, V_R31))
    VP, VPA = 198, 22
    SU.probe_addr(a, sys.modules[__name__], VPA, VP, 59)
    def wcheck(tag):
        a("v_cmp_ne_u32 vcc, v%d, v%d" % (V_TAG, VP))
        a("s_cbranch_vccz L_qkv_wok%s" % tag)
        keep = a.vm_issued
        poll(a, cfg, 59, VPA, VP, sleep=1)
        a.vm_issued = keep
        a("L_qkv_wok%s:" % tag)

    layer_off(a, SX, OFF_X, X_STRIDE, 2, 0)
    b_addr(a, SB0, SB1, SX, 32, 8)
    layer_off(a, 30, OFF_STAT, STAT_STRIDE, 2, 0)
    a("s_lshl_b32 s17, s%d, 12" % S_RT)
    a("s_add_u32 s30, s30, s17")
    reduce_addr(a, LDS_RQ)
    layer_off(a, 33, OFF_KV, KV_STRIDE)
    a("s_lshr_b32 s36, s%d, 1" % S_HQ)
    a("s_lshl_b32 s17, s%d, 1" % S_RB)
    a("s_add_u32 s17, s17, s36")
    a("s_lshl_b32 s17, s17, 15")
    a("s_add_u32 s23, s17, s%d" % SX)
    a("s_lshl_b32 s17, s%d, 13" % S_W)
    a("s_add_u32 s23, s23, s17")
    a("s_sub_u32 s17, s%d, s36" % S_W)
    a("s_sub_u32 s17, s17, 1")
    a("s_and_b32 s17, s17, 3")
    a("s_lshl_b32 s17, s17, 12")
    a("s_add_u32 s17, s17, %d" % LDS_KVX)
    a("v_add_u32 v%d, s17, v%d" % (G_T + 2, V_L16))
    a("v_add_u32 v%d, %d, v%d" % (G_T + 3, LDS_KVX, V_L16))
    a("s_mul_i32 s37, s%d, 0x1000" % S_LAYER)
    a("s_add_u32 s37, s37, 0x%x" % (OFF_FLAGS + FL_KV))
    a("s_lshl_b32 s17, s%d, 4" % S_RB)
    a("s_add_u32 s37, s37, s17")
    a("s_lshl_b32 s17, s%d, 2" % S_HQ)
    a("s_add_u32 s37, s37, s17")
    a("s_lshl_b32 s39, s2, 11")
    a("s_add_u32 s39, s39, 0x%x" % OFF_CKS)
    a("s_cmp_eq_u32 s%d, 0" % S_LAYER)
    a("s_cbranch_scc1 L_qkv_cs0")
    a("buffer_load_dwordx4 v[%d:%d], v%d, s[4:7], s39 offen sc1" % (CK, CK + 3, V_L16))
    a("buffer_load_dwordx4 v[%d:%d], v%d, s[4:7], s39 offen offset:1024 sc1" % (CK + 4, CK + 7, V_L16))
    a("s_branch L_qkv_nocs")
    a("L_qkv_cs0:")
    a("s_cmp_ge_u32 s%d, 4" % S_HQ)
    a("s_cbranch_scc1 L_qkv_nocs")
    for r in range(4):
        a("v_mov_b32 v%d, 0x3f803f80" % (G_CS + r))
    a("s_lshl_b32 s17, s%d, 11" % S_W)
    a("s_add_u32 s17, s17, %d" % LDS_CSX)
    a("v_add_u32 v%d, s17, v%d" % (G_CS + 4, V_L16))
    a("v_add_u32 v%d, %d, v%d" % (G_CS + 5, LDS_CSX, V_L16))
    a("s_bitcmp1_b32 s%d, 0" % S_HQ)
    a("s_cbranch_scc1 L_qkv_c1")
    for i in range(8):
        mf(a, G_ACC, ar(128 + 4 * i, 4), vr(G_CS, 4), "0" if i == 0 else vr(G_ACC, 16))
    a("s_branch L_qkv_c2")
    a("L_qkv_c1:")
    for i in range(8):
        mf(a, G_ACC, vr(G_CS, 4), ar(128 + 4 * i, 4), "0" if i == 0 else vr(G_ACC, 16))
    a("L_qkv_c2:")
    a("ds_write_b128 v%d, v[%d:%d]" % (G_CS + 4, G_ACC + 8, G_ACC + 11))
    a("ds_write_b128 v%d, v[%d:%d] offset:1024" % (G_CS + 4, G_ACC + 12, G_ACC + 15))
    a("s_waitcnt lgkmcnt(0)")
    a("s_barrier")
    for w in range(4):
        for q in range(2):
            a("ds_read_b128 v[%d:%d], v%d offset:%d" % (G_RED + 8 * w + 4 * q, G_RED + 8 * w + 4 * q + 3, G_CS + 5, 2048 * w + 1024 * q))
    a("s_waitcnt lgkmcnt(0)")
    for e in range(8):
        a("v_add_f32 v%d, v%d, v%d" % (G_RED + e, G_RED + e, G_RED + 8 + e))
        a("v_add_f32 v%d, v%d, v%d" % (G_RED + 16 + e, G_RED + 16 + e, G_RED + 24 + e))
        a("v_add_f32 v%d, v%d, v%d" % (CK + e, G_RED + e, G_RED + 16 + e))
    a("buffer_store_dwordx4 v[%d:%d], v%d, s[4:7], s39 offen sc1" % (CK, CK + 3, V_L16))
    a("buffer_store_dwordx4 v[%d:%d], v%d, s[4:7], s39 offen offset:1024 sc1" % (CK + 4, CK + 7, V_L16))
    a("L_qkv_nocs:")
    stamp(a, cfg, 8)
    xin_flag_addr(a, 38, False, 0)
    poll(a, cfg, 38, G_T + 6, G_T + 4)
    stamp(a, cfg, 9)
    def b1_loads():
        for e in range(8):
            blk(a, ar(64 + 4 * e, 4), SB1, e, SC)
            tB[e] = a.vt()

    def cs_q():
        a("s_lshl_b32 s17, s%d, 10" % S_NT)
        a("s_add_u32 s17, s17, 0x%x" % OFF_CSQX)
        a("buffer_load_dwordx4 v[%d:%d], v%d, s[4:7], s17 offen sc1" % (G_CS, G_CS + 3, V_L16))

    a("s_cmp_ge_u32 s%d, 4" % S_HQ)
    a("s_cbranch_scc1 L_qkv_stats")
    tK = {}
    for i in range(8):
        blk(a, ar(224 + 4 * i, 4), 23, i, SC)
        tK[i] = a.vt()
    load_stats(a, G_ST, 30, G_T, SC)
    t_st = a.vt()
    tB = {}
    b1_loads()
    stamp(a, cfg, 1)
    a("s_bitcmp1_b32 s%d, 0" % S_HQ)
    a("s_cbranch_scc1 L_qkv_v1")
    for v in range(2):
        if v:
            a("L_qkv_v%d:" % v)
        for i in range(8):
            a.wait_vm(tK[i])
            x, w = ar(224 + 4 * i, 4), ar(128 + 4 * i, 4)
            c = "0" if i == 0 else vr(G_KVACC, 16)
            if v & 1:
                mf(a, G_KVACC, x, w, c)
            else:
                mf(a, G_KVACC, w, x, c)
        if v < 1:
            a("s_branch L_qkv_kvred")
    a("L_qkv_kvred:")
    stamp(a, cfg, 2)
    a.wait_vm(t_st)
    finish_stats(a, G_ST, V_NMU, V_RSTD)
    for q in range(4):
        a("ds_write_b128 v%d, v[%d:%d] offset:%d" % (G_T + 2, G_KVACC + 4 * q, G_KVACC + 4 * q + 3, q * 1024))
    XS = LDS_KVX + 16384
    a("s_lshl_b32 s17, s%d, 8" % S_W)
    a("s_add_u32 s17, s17, %d" % XS)
    a("v_add_u32 v%d, s17, v%d" % (G_T + 4, G_T + 6))
    a("v_mul_f32 v%d, v%d, v%d" % (G_T + 5, V_NMU, V_RSTD))
    a("ds_write_b32 v%d, v%d" % (G_T + 4, V_RSTD))
    a("ds_write_b32 v%d, v%d offset:128" % (G_T + 4, G_T + 5))
    a("v_add_u32 v%d, s17, v%d" % (G_T + 4, G_T + 1))
    RS = G_ACC + 16
    for g in range(4):
        a("ds_read_b128 v[%d:%d], v%d offset:%d" % (RS + 4 * g, RS + 4 * g + 3, G_T + 4, 32 * g))
        a("ds_read_b128 v[%d:%d], v%d offset:%d" % (RS + 16 + 4 * g, RS + 16 + 4 * g + 3, G_T + 4, 128 + 32 * g))
    a("s_waitcnt lgkmcnt(0)")
    a("s_barrier")
    stamp(a, cfg, 3)
    a("s_cmp_lg_u32 s%d, s36" % S_W)
    a("s_cbranch_scc1 L_qkv_q")
    RD = [G_RED + 16, G_RED + 32, G_ACC]
    for j in range(3):
        for q in range(4):
            a("ds_read_b128 v[%d:%d], v%d offset:%d" % (RD[j] + 4 * q, RD[j] + 4 * q + 3, G_T + 3, j * 4096 + q * 1024))
    for j in range(3):
        a("s_waitcnt lgkmcnt(%d)" % (8 - 4 * j))
        for e in range(16):
            a("v_add_f32 v%d, v%d, v%d" % (G_KVACC + e, G_KVACC + e, RD[j] + e))
    a("s_lshl_b32 s17, s%d, 10" % S_RT)
    a("s_add_u32 s34, s33, s17")
    a("s_bitcmp1_b32 s%d, 0" % S_HQ)
    a("s_cbranch_scc1 L_qkv_vfin")
    PK = G_RED + 16
    for e in range(8):
        a("v_fmac_f32 v%d, v%d, v%d" % (G_KVACC + 8 + e, V_NMU, CK + e))
        a("v_mul_f32 v%d, v%d, v%d" % (G_KVACC + 8 + e, V_RSTD, G_KVACC + 8 + e))
    pack8(a, PK, G_KVACC + 8)
    a("buffer_store_dwordx4 v[%d:%d], v%d, s[4:7], s34 offen %s" % (PK, PK + 3, V_L16, SC))
    a("v_mov_b32 v%d, 0" % (PK + 4))
    for r in range(4):
        a("v_dot2_f32_bf16 v%d, v%d, v%d, v%d" % (PK + 4, PK + r, PK + r, PK + 4))
    xhalf_sum(a, PK + 4, PK + 5)
    for d in ("row_shr:1", "row_shr:2", "row_shr:4", "row_shr:8"):
        a("v_max_f32_dpp v%d, v%d, v%d %s row_mask:0xf bank_mask:0xf" % (PK + 4, PK + 4, PK + 4, d))
    a("v_max_f32_dpp v%d, v%d, v%d row_bcast:15 row_mask:0xa bank_mask:0xf" % (PK + 4, PK + 4, PK + 4))
    a("s_lshl_b32 s18, s%d, 2" % S_RT)
    a("s_add_u32 s18, s18, s33")
    a("s_add_u32 s18, s18, 0x20000")
    a("s_mov_b32 exec_lo, 0x80000000\ns_mov_b32 exec_hi, 0x0")
    a("buffer_store_dword v%d, v%d, s[4:7], s18 offen %s" % (PK + 4, V_ZERO, SC))
    a("s_mov_b64 exec, -1")
    a("s_branch L_qkv_kvdone")
    a("L_qkv_vfin:")
    a("v_lshlrev_b32 v%d, 4, v%d" % (G_T + 4, V_R31))
    a("v_lshl_add_u32 v%d, v%d, 8, v%d" % (G_T + 4, V_H, G_T + 4))
    a("s_add_u32 s34, s34, 0x10000")
    for e in range(16):
        a("v_mul_f32 v%d, v%d, v%d" % (G_KVACC + e, RS + e, G_KVACC + e))
        a("v_fmac_f32 v%d, v%d, v%d" % (G_KVACC + e, RS + 16 + e, CK))
    pack8(a, G_ACC, G_KVACC)
    pack8(a, G_ACC + 4, G_KVACC + 8)
    a("s_mov_b32 exec_lo, 0xffff\ns_mov_b32 exec_hi, 0xffff")
    a("buffer_store_dwordx4 v[%d:%d], v%d, s[4:7], s34 offen %s" % (G_ACC, G_ACC + 3, G_T + 4, SC))
    a("buffer_store_dwordx4 v[%d:%d], v%d, s[4:7], s34 offen offset:512 %s" % (G_ACC + 4, G_ACC + 7, G_T + 4, SC))
    a("s_mov_b64 exec, -1")
    a("L_qkv_kvdone:")
    stamp(a, cfg, 5)
    a("v_lshlrev_b32 v%d, 9, v%d" % (G_T + 4, V_LANE))
    a("s_waitcnt vmcnt(0)")
    a("s_mov_b64 exec, 0xff")
    a("buffer_store_dword v%d, v%d, s[4:7], s37 offen %s" % (V_TAG, G_T + 4, SC))
    a("s_mov_b64 exec, -1")
    a("s_branch L_qkv_q")
    a("L_qkv_stats:")
    load_stats(a, G_ST, 30, G_T, SC)
    t_st = a.vt()
    b1_loads()
    a.wait_vm(t_st)
    finish_stats(a, G_ST, V_NMU, V_RSTD)
    a("L_qkv_q:")
    stamp(a, cfg, 10)
    bextra(a, V_NMU, G_CS + 4)
    tq = {}

    def h_probe():
        a("buffer_load_dword v%d, v%d, s[4:7], s59 offen sc1" % (VP, VPA))
        tq[0] = a.vt()

    def h_cs():
        a.wait_vm(tq[0])
        wcheck("q")
        cs_q()
        tq[1] = a.vt()
    gemm64_core(a, dict(cfg, stamps=cfg.get('stamps') and 2), 8, lambda i: ar(160 + 4 * i, 4), lambda i: ar(192 + 4 * i, 4), lambda e: ar(64 + 4 * e, 4),
                lambda e: blk(a, ar(64 + 4 * e, 4), SB1 if e < 8 else SB0, e % 8, SC), 16, pre_tickets=tB, ramp=12,
                side=[g[0] for g in SU.deferred_store_groups(sys.modules[__name__])], side_from=99, side_n=1, extra0=(vr(G_CS, 4), vr(G_CS + 4, 4), lambda: a.wait_vm(tq[1])),
                hooks={3: h_probe, 10: h_cs})
    a("v_mul_f32 v%d, %s, v%d" % (G_T, fl(QSCALE), V_RSTD))
    for e in range(16):
        a("v_mul_f32 v%d, v%d, v%d" % (G_ACC + e, G_T, G_ACC + e))
    pack8(a, G_Q, G_ACC)
    pack8(a, G_Q + 4, G_ACC + 8)
    if cfg.get("store_q"):
        a("s_lshl_b32 s17, s%d, 15" % S_RT)
        a("s_lshl_b32 s18, s%d, 11" % S_NT)
        a("s_add_u32 s17, s17, s18")
        a("s_add_u32 s17, s17, 0x%x" % OFF_Q)
        a("buffer_store_dwordx4 v[%d:%d], v%d, s[4:7], s17 offen" % (G_Q, G_Q + 3, V_L16))
        a("buffer_store_dwordx4 v[%d:%d], v%d, s[4:7], s17 offen offset:1024" % (G_Q + 4, G_Q + 7, V_L16))
    stamp(a, cfg, 11)


A_C = [24, 40]
A_O = [56, 72]
A_S = [88, 104]
A_P = [120, 124, 128, 132]
A_KF = [136, 140]
A_VF = [[144, 148], [152, 156]]
A_VK, A_VV, A_VINC = 160, 161, 162
A_T = 164
LDS_V = 65536
LDS_ONES = 131072
LDS_ATT_FLAG = LDS_ONES + 5120
UNR = 4


EARLY = 4
W2ORD = [7 * mm + tl for tl in range(7) for mm in range(4)]
W2POS = {k: p for p, k in enumerate(W2ORD)}


def w2load(a, idx, s0, s1):
    i = W2ORD[idx >> 1]
    blk(a, w2reg(idx & 1, i), s1 if idx & 1 else s0, i)


def w2reg(s, i):
    idx = 2 * W2POS[i] + s
    if idx < 32:
        return ar(128 + 4 * idx, 4)
    if idx < 46:
        return vr(W2V + 4 * (idx - 32), 4)
    if idx < 54:
        return vr(136 + 4 * (idx - 46), 4)
    return vr(190 + 4 * (idx - 54), 4)


SLOT13 = [0, 2, 1, 3, 0, 2, 1]


def dma13(a, i, part=None):
    slot = SLOT13[i]
    for hh in range(2):
        a("s_add_u32 m0, s%d, %d" % (S_WL, slot * 32768 + hh * 4096))
        a("s_add_u32 s29, s%d, %d" % (S_W13, i * 32768 + hh * 4096))
        for q in range(4):
            a("buffer_load_dwordx4 v%d, s[4:7], s29 offen offset:%d sc1 lds" % (V_L16, q * 1024))


def dma_lines(i):
    b = Asm()
    dma13(b, i)
    return [l.strip() for l in b.lines]


def phase_att(a, cfg):
    Q = [G_Q, G_Q + 4]
    SA0, SA1, SW0, SW1 = 24, 25, 26, 27
    a("v_mov_b32 v%d, 0x3f803f80" % (A_T + 4))
    if cfg.get("zpad", 1):
        a("v_and_b32 v%d, 2, v0" % (A_T + 5))
        a("v_cmp_eq_u32 vcc, 0, v%d" % (A_T + 5))
        a("v_cndmask_b32 v%d, v%d, v%d, vcc" % (A_T + 4, V_ZERO, A_T + 4))
    for r in range(1, 4):
        a("v_mov_b32 v%d, v%d" % (A_T + 4 + r, A_T + 4))
    a("v_lshlrev_b32 v%d, 4, v0" % (A_T + 2))
    a("v_add_u32 v%d, %d, v%d" % (A_T + 2, LDS_ONES, A_T + 2))
    a("ds_write_b128 v%d, v[%d:%d]" % (A_T + 2, A_T + 4, A_T + 7))
    a("ds_write_b128 v%d, v[%d:%d] offset:1024" % (A_T + 2, A_T + 4, A_T + 7))
    a("v_and_b32 v%d, 15, v%d" % (A_T + 2, V_LANE))
    a("v_lshlrev_b32 v%d, 4, v%d" % (A_T + 2, A_T + 2))
    a("v_lshl_add_u32 v%d, v%d, 8, v%d" % (A_T + 2, V_H, A_T + 2))
    a("v_add_u32 v%d, %d, v%d" % (A_VV, LDS_V, A_T + 2))
    a("v_add_u32 v%d, -20, v%d" % (A_T + 3, V_R31))
    a("v_cmp_gt_u32 vcc, 8, v%d" % (A_T + 3))
    a("v_mov_b32 v%d, %d" % (A_T + 2, LDS_ONES))
    a("v_mov_b32 v%d, %d" % (A_T + 3, LDS_ONES + 64))
    a("v_cndmask_b32 v%d, v%d, v%d, vcc" % (A_T + 2, A_T + 2, A_T + 3))
    if cfg.get("zpad", 1):
        a("v_and_b32 v%d, 27, v%d" % (A_T + 3, V_R31))
        a("v_cmp_ne_u32 vcc, 16, v%d" % (A_T + 3))
        a("v_add_u32 v%d, 32, v%d" % (A_T + 3, A_T + 2))
        a("v_cndmask_b32 v%d, v%d, v%d, vcc" % (A_T + 2, A_T + 2, A_T + 3))
    a("v_cmp_le_u32 vcc, 16, v%d" % V_R31)
    a("v_mov_b32 v%d, %d" % (A_VINC, UNR * 1024))
    a("v_cndmask_b32 v%d, v%d, v%d, vcc" % (A_VV, A_VV, A_T + 2))
    a("v_cndmask_b32 v%d, v%d, v%d, vcc" % (A_VINC, A_VINC, V_ZERO))
    for t in range(2):
        n = A_T + 8 + t
        a("v_mov_b32 v%d, 0" % n)
        for r in range(4):
            a("v_dot2_f32_bf16 v%d, v%d, v%d, v%d" % (n, Q[t] + r, Q[t] + r, n))
    for t in range(2):
        xhalf_sum(a, A_T + 8 + t, A_T + 10)
    a_addr(a, SA0, SA1, OFF_WO, 32, 8)
    a("s_mul_i32 s%d, s%d, %d" % (S_W13, S_M, 7 * 32768))
    a("s_lshl_b32 s%d, s%d, 13" % (S_WL, S_W))
    a("s_add_u32 s%d, s%d, s%d" % (S_W13, S_W13, S_WL))
    a("s_add_u32 s%d, s%d, 0x%x" % (S_W13, S_W13, OFF_W13))
    a_addr(a, SW0, SW1, OFF_W2, 112, 28)
    a("s_lshl_b32 s20, s%d, 10" % S_W)
    a("s_add_u32 s21, s33, s20")
    a("s_add_u32 s22, s21, 0x10000")
    a("s_add_u32 s23, s20, %d" % LDS_V)
    a("s_mul_i32 s38, s%d, 0x1000" % S_LAYER)
    a("s_add_u32 s38, s38, 0x%x" % (OFF_FLAGS + FL_KV))
    a("s_and_b32 s17, s2, 7")
    a("s_lshl_b32 s17, s17, 9")
    a("s_add_u32 s38, s38, s17")
    a("s_lshl_b32 s58, s2, 2")
    a("s_add_u32 s58, s58, 0x%x" % OFF_FLW)
    a("s_or_b32 s17, s%d, s%d" % (S_W, S_LAYER))
    a("s_cmp_lg_u32 s17, 0")
    a("s_cselect_b32 s58, 0xf0000000, s58")
    a("s_and_b32 s59, s2, 7")
    a("s_lshl_b32 s59, s59, 10")
    a("s_add_u32 s59, s59, 0x%x" % OFF_FLW)
    a("v_lshlrev_b32 v%d, 10, v%d" % (A_T + 16, V_LANE))
    a("s_getreg_b32 s17, hwreg(HW_REG_XCC_ID)")
    a("s_and_b32 s17, s17, 7")
    a("s_lshl_b32 s17, s17, 1")
    a("v_or_b32 v%d, s17, v%d" % (A_T + 17, V_TAG))
    a("v_and_b32 v%d, 15, v%d" % (A_T + 18, V_LANE))
    a("v_lshlrev_b32 v%d, 5, v%d" % (A_T + 18, A_T + 18))
    a("s_and_b32 s17, s2, 0x87")
    a("s_lshl_b32 s17, s17, 2")
    a("v_add_u32 v%d, s17, v%d" % (A_T + 18, A_T + 18))

    stamp(a, cfg, 1)
    a("v_lshlrev_b32 v%d, 3, v%d" % (A_T + 14, V_LANE))
    a("s_cmp_lg_u32 s%d, 0" % S_W)
    a("s_cbranch_scc1 L_att_nopoll")
    poll(a, cfg, 38, A_T + 14, A_T + 12, wide=True, sleep=cfg.get("kv_sleep", 2))
    a("L_att_nopoll:")
    a("s_waitcnt vmcnt(0)")
    a("s_barrier")
    a("s_mov_b64 exec, 0xff")
    a("buffer_store_dword v%d, v%d, s[4:7], s58 offen %s" % (A_T + 17, A_T + 16, SC))
    a("s_mov_b64 exec, -1")
    a("s_mov_b32 s%d, 0xf0000000" % SU.S_DST)
    stamp(a, cfg, 2)
    a("s_add_u32 s17, s33, 0x20000")
    a("buffer_load_dword v%d, v%d, s[4:7], s17 offen %s" % (A_T + 1, V_L4, SC))
    t_kn = a.vt()
    def kvdma(g):
        a("s_add_u32 m0, s20, %d" % (g * 4096))
        a("s_add_u32 s17, s21, %d" % (g * 4096))
        a("buffer_load_dwordx4 v%d, s[4:7], s17 offen %s lds" % (V_L16, SC))
        a("s_add_u32 m0, s23, %d" % (g * 4096))
        a("s_add_u32 s17, s22, %d" % (g * 4096))
        a("buffer_load_dwordx4 v%d, s[4:7], s17 offen %s lds" % (V_L16, SC))

    G1 = 6
    for g in range(G1):
        kvdma(g)
        if g == 3:
            t_g3 = a.vt()
            a.wait_vm(t_kn)
            k2 = A_T + 1
            for d in ("row_shr:1", "row_shr:2", "row_shr:4", "row_shr:8"):
                a("v_max_f32_dpp v%d, v%d, v%d %s row_mask:0xf bank_mask:0xf" % (k2, k2, k2, d))
            a("v_max_f32_dpp v%d, v%d, v%d row_bcast:15 row_mask:0xa bank_mask:0xf" % (k2, k2, k2))
            a("v_max_f32_dpp v%d, v%d, v%d row_bcast:31 row_mask:0xc bank_mask:0xf" % (k2, k2, k2))
            a("v_readlane_b32 s18, v%d, 63" % k2)
            for t in range(2):
                n = A_T + 8 + t
                a("v_mul_f32 v%d, s18, v%d" % (n, n))
                a("v_sqrt_f32 v%d, v%d" % (n, n))
            for t in range(2):
                n = A_T + 8 + t
                a("v_mul_f32 v%d, %s, v%d" % (n, fl(-1.001), n))
            a("v_min_f32 v%d, v%d, v%d" % (A_T + 10, A_T + 8, A_T + 9))
            a("v_mov_b32 v%d, %s" % (A_T + 11, fl(-cfg.get("bound_t", BOUND_T))))
            a("v_cmp_nge_f32 vcc, v%d, v%d" % (A_T + 10, A_T + 11))
            a("s_lshl_b32 s19, s%d, 2" % S_W)
            a("s_add_u32 s19, s19, %d" % LDS_ATT_FLAG)
            a("v_mov_b32 v%d, s19" % (A_T + 12))
            a("s_cmp_lg_u64 vcc, 0")
            a("s_cselect_b32 s18, 1, 0")
            a("v_mov_b32 v%d, s18" % (A_T + 11))
            a("ds_write_b32 v%d, v%d" % (A_T + 12, A_T + 11))
            for t in range(2):
                for r in range(16):
                    a("v_mov_b32 v%d, v%d" % (A_C[t] + r, A_T + 8 + t))
    stamp(a, cfg, 3)
    a.wait_vm(t_g3)
    a("s_waitcnt lgkmcnt(0)")
    a("s_barrier")
    stamp(a, cfg, 4)
    a("v_mov_b32 v%d, %d" % (A_T + 12, LDS_ATT_FLAG))
    a("ds_read_b128 v[%d:%d], v%d" % (A_T + 4, A_T + 7, A_T + 12))
    a("ds_read_b128 v[%d:%d], v%d" % (A_KF[0], A_KF[0] + 3, V_L16))
    a("ds_read_b128 v[%d:%d], v%d" % (A_VF[0][0], A_VF[0][0] + 3, A_VV))
    a("ds_read_b128 v[%d:%d], v%d offset:512" % (A_VF[0][1], A_VF[0][1] + 3, A_VV))
    a("ds_read_b128 v[%d:%d], v%d offset:1024" % (A_KF[1], A_KF[1] + 3, V_L16))
    a("s_waitcnt lgkmcnt(4)")
    a("v_or_b32 v%d, v%d, v%d" % (A_T + 4, A_T + 4, A_T + 5))
    a("v_or3_b32 v%d, v%d, v%d, v%d" % (A_T + 4, A_T + 4, A_T + 6, A_T + 7))
    a("v_readfirstlane_b32 s18, v%d" % (A_T + 4))
    a("s_cmp_eq_u32 s18, 0")
    a("s_cbranch_scc1 L_att_fast")
    keep = a.vm_issued
    for g in range(G1, 16):
        kvdma(g)
    a.vm_issued = keep
    a("s_waitcnt vmcnt(0)")
    a("s_barrier")
    a("v_mov_b32 v%d, 0xff800000" % (A_T + 8))
    a("v_mov_b32 v%d, 0xff800000" % (A_T + 9))
    a("v_mov_b32 v%d, v%d" % (A_T + 12, V_L16))
    a("s_mov_b32 s19, 64")
    a("L_att_pre:")
    a("ds_read_b128 v[%d:%d], v%d" % (A_P[0], A_P[0] + 3, A_T + 12))
    a("v_add_u32 v%d, 1024, v%d" % (A_T + 12, A_T + 12))
    a("s_waitcnt lgkmcnt(0)")
    for t in range(2):
        mf(a, A_S[t], vr(A_P[0], 4), vr(Q[t], 4), "0")
    for t in range(2):
        for r in range(0, 16, 2):
            a("v_max3_f32 v%d, v%d, v%d, v%d" % (A_T + 8 + t, A_S[t] + r, A_S[t] + r + 1, A_T + 8 + t))
    a("s_sub_u32 s19, s19, 1")
    a("s_cmp_lg_u32 s19, 0")
    a("s_cbranch_scc1 L_att_pre")
    for t in range(2):
        n = A_T + 8 + t
        a("v_mov_b32 v%d, v%d" % (A_T + 10, n))
        a("v_permlane32_swap_b32 v%d, v%d" % (n, A_T + 10))
        a("v_max_f32 v%d, v%d, v%d" % (n, n, A_T + 10))
        a("v_sub_f32 v%d, 0, v%d" % (n, n))
        for r in range(16):
            a("v_mov_b32 v%d, v%d" % (A_C[t] + r, n))
    a("L_att_fast:")
    a("s_waitcnt lgkmcnt(0)")

    def m4(d, x, y, c):
        mf(a, d, vr(x, 4), vr(y, 4), vr(c, 16))

    def ex(r):
        a("v_exp_f32 v%d, v%d" % (r, r))

    def cv(d, s):
        a("v_cvt_pk_bf16_f32 v%d, v%d, v%d" % (d, s, s + 1))

    m4(A_S[0], A_KF[0], Q[0], A_C[0])
    a("s_nop 7")

    def lines_of(fn):
        b = Asm()
        fn(b)
        return [l.strip() for l in b.lines]

    def groups(lines):
        out, cur = [], []
        for x in lines:
            cur.append(x)
            if x.startswith("buffer_"):
                out.append(cur)
                cur = []
        assert not cur
        return out

    def kvl(g):
        return ["s_add_u32 m0, s20, %d" % (g * 4096), "s_add_u32 s17, s21, %d" % (g * 4096),
                "buffer_load_dwordx4 v%d, s[4:7], s17 offen %s lds" % (V_L16, SC),
                "s_add_u32 m0, s23, %d" % (g * 4096), "s_add_u32 s17, s22, %d" % (g * 4096),
                "buffer_load_dwordx4 v%d, s[4:7], s17 offen %s lds" % (V_L16, SC)]

    q_kv = []
    for g in range(G1, 16):
        q_kv += [(x, g) for x in groups(kvl(g))]
    q_w = []
    for i in range(8):
        q_w += groups(lines_of(lambda b: blk(b, ar(4 * i, 4), SA0, i)))
        q_w += groups(lines_of(lambda b: blk(b, ar(32 + 4 * i, 4), SA1, i)))
    for idx in range(46):
        q_w += groups(lines_of(lambda b: w2load(b, idx, SW0, SW1)))
    q_t = [["s_add_u32 s17, s49, %d" % (q * 4096), "buffer_load_dword v%d, v%d, s[4:7], s17 offen sc1" % (A_T + 3, A_T + 2)] for q in range(5)]
    if not cfg.get("touch13", 1):
        q_t = []
    q_d = groups(dma_lines(0) + dma_lines(1))
    a("s_mul_i32 s49, s%d, %d" % (S_M, 7 * 32768))
    a("s_and_b32 s18, s%d, 1" % S_RG)
    a("s_mul_i32 s18, s18, %d" % 81920)
    a("s_add_u32 s49, s49, s18")
    a("s_mul_i32 s18, s%d, %d" % (S_W, 20480))
    a("s_add_u32 s49, s49, s18")
    a("s_add_u32 s49, s49, 0x%x" % (OFF_W13 + 65536))
    a("v_lshlrev_b32 v%d, 6, v%d" % (A_T + 2, V_LANE))
    tg = {}
    U_PROBE, U_CHK = cfg.get("u_probe", 21), cfg.get("u_chk", 24)
    PB = A_T + 12
    def slot(u):
        grp, g = None, None
        if q_kv:
            grp, g = q_kv.pop(0)
        elif u == U_PROBE:
            a("buffer_load_dwordx4 v[%d:%d], v%d, s[4:7], s59 offen %s" % (PB, PB + 3, V_L16, SC))
            tg["probe"] = a.vt()
        elif u == U_CHK:
            a.wait_vm(tg["probe"])
            a("L_att_wchk:")
            for r in range(4):
                a("v_and_b32 v%d, -15, v%d" % (PB + r, PB + r))
            a("v_cmp_ne_u32 vcc, v%d, v%d" % (V_TAG, PB))
            for r in range(1, 4):
                a("v_cmp_ne_u32 s[18:19], v%d, v%d" % (V_TAG, PB + r))
                a("s_or_b64 vcc, vcc, s[18:19]")
            a("s_cmp_eq_u64 vcc, 0")
            a("s_cbranch_scc1 L_att_wok")
            if cfg.get("spin_limit"):
                a("s_sub_u32 s46, s46, 1")
                a("s_cbranch_scc1 L_att_wok")
            keep = a.vm_issued
            a("s_sleep 4")
            a("buffer_load_dwordx4 v[%d:%d], v%d, s[4:7], s59 offen %s" % (PB, PB + 3, V_L16, SC))
            a("s_waitcnt vmcnt(0)")
            a("s_branch L_att_wchk")
            a.vm_issued = keep
            a("L_att_wok:")
            a("buffer_load_dword v%d, v%d, s[4:7], s59 offen %s" % (PB, A_T + 18, SC))
            tg["grp"] = a.vt()
        elif u == U_CHK + 8:
            a.wait_vm(tg["grp"])
            a("v_cmp_ne_u32 vcc, v%d, v%d" % (A_T + 17, PB))
            a("s_cmp_eq_u64 vcc, 0")
            a("s_cselect_b32 s%d, %d, 0" % (S_LOC, 0 if cfg.get("force_remote") else 1))
        elif u < U_CHK:
            pass
        elif u >= 68 and q_d:
            grp = q_d.pop(0)
        elif q_t and u % 8 == 1:
            grp = q_t.pop(0)
        elif q_w:
            grp = q_w.pop(0)
        elif q_t:
            grp = q_t.pop(0)
        if grp:
            for x in grp:
                a(x)
            if g is not None:
                tg[g] = a.vt()

    NU = 128
    BAR = {16: 9, 36: 15}
    for u in range(NU):
        j, t = u >> 1, u & 1
        nj, nt = (u + 1) >> 1, (u + 1) & 1
        pj, pt = (u - 1) >> 1, (u - 1) & 1
        jj = j % UNR
        sb, nsb = A_S[u % 2], A_S[(u + 1) % 2]
        plo, phi = A_P[(u % 2) * 2], A_P[(u % 2) * 2 + 1]
        pphi = A_P[((u - 1) % 2) * 2 + 1]
        if u + 1 < NU:
            m4(nsb, A_KF[nj % 2], Q[nt], A_C[nt])
        if t == 0 and j + 2 < 64:
            a("ds_read_b128 v[%d:%d], v%d offset:%d" % (A_KF[j % 2], A_KF[j % 2] + 3, V_L16, (j + 2) * 1024))
        if t == 1 and u > U_CHK and cfg.get('slot3', 0):
            slot(u)
        for r in range(0, 4):
            ex(sb + r)
        if u > 0:
            m4(A_O[pt], A_VF[pj % 2][1], pphi, A_O[pt])
        if t == 0 and j + 1 < 64:
            off = (jj + 1) * 1024
            a("ds_read_b128 v[%d:%d], v%d offset:%d" % (A_VF[(j + 1) % 2][0], A_VF[(j + 1) % 2][0] + 3, A_VV, off))
            a("ds_read_b128 v[%d:%d], v%d offset:%d" % (A_VF[(j + 1) % 2][1], A_VF[(j + 1) % 2][1] + 3, A_VV, off + 512))
        if t == 1:
            slot(u)
        for r in range(4, 9):
            ex(sb + r)
        for r in range(0, 4):
            cv(plo + r, sb + 2 * r)
        for r in range(9, 12):
            ex(sb + r)
        m4(A_O[t], A_VF[j % 2][0], plo, A_O[t]) if u > 1 else mf(a, A_O[t], vr(A_VF[j % 2][0], 4), vr(plo, 4), "0")
        if t == 1:
            a("s_waitcnt lgkmcnt(0)")
            if (j + 3) in BAR:
                g = BAR[j + 3]
                if g is not None:
                    a.wait_vm(tg[g])
                a("s_barrier")
                if j + 3 == 16:
                    stamp(a, cfg, 6)
        else:
            slot(u)
        for r in range(12, 16):
            ex(sb + r)
        if t == 1 and jj == UNR - 1:
            a("v_add_u32 v%d, v%d, v%d" % (A_VV, A_VINC, A_VV))
        for r in range(4, 8):
            cv(phi + r - 4, sb + 2 * r)
    assert not (q_kv or q_w or q_t or q_d), (len(q_kv), len(q_w), len(q_t), len(q_d))
    units = [(63, 1)]
    U = 128
    a("L_att_done:")
    DUAL[0] = bool(cfg.get("dual", 1))
    stamp(a, cfg, 7)
    lj, lt = units[-1]
    m4(A_O[lt], A_VF[lj % 2][1], A_P[((U - 1) % 2) * 2 + 1], A_O[lt])
    layer_off(a, 34, OFF_O, X_STRIDE)
    a("s_lshl_b32 s18, s%d, 15" % S_RT)
    a("s_add_u32 s34, s34, s18")
    a("s_lshl_b32 s18, s%d, 11" % S_NT)
    a("s_add_u32 s34, s34, s18")
    for t in range(2):
        a("v_rcp_f32 v%d, v%d" % (A_T, A_O[t] + 8))
        for r in range(8):
            a("v_mul_f32 v%d, v%d, v%d" % (A_O[t] + r, A_T, A_O[t] + r))
        pack8(a, A_P[t], A_O[t])
        st4(a, A_P[t], V_L16, 34, t * 1024)
    flag_addr(a, S_FO, FL_O, S_RB, 7, S_HQ)
    publish(a, S_FO, [(34, 2048, 0)])
    stamp(a, cfg, 8)


def phase_wo(a, cfg):
    SB0, SB1, SX = 26, 27, 28
    a("s_barrier")
    if not cfg.get("pf_att", 1):
        for i in range(8):
            blk(a, ar(4 * i, 4), 24, i)
            blk(a, ar(32 + 4 * i, 4), 25, i)
    b = Asm()
    dma13(b, 2)
    b("s_mul_i32 s29, s%d, %d" % (S_M, 7 * 1024))
    b("s_lshl_b32 s17, s%d, 11" % S_W)
    b("s_add_u32 s29, s29, s17")
    b("s_add_u32 m0, s17, %d" % LDS_CS)
    b("s_add_u32 s29, s29, 0x%x" % OFF_CSX)
    b("buffer_load_dwordx4 v%d, s[4:7], s29 offen sc1 lds" % V_L16)
    b("buffer_load_dwordx4 v%d, s[4:7], s29 offen offset:1024 sc1 lds" % V_L16)
    wside = [l.strip() for l in b.lines]
    layer_off(a, SX, OFF_O, X_STRIDE)
    b_addr(a, SB0, SB1, SX, 32, 8)
    reduce_addr(a, LDS_R1)
    out_addr(a, 1)
    flag_addr(a, 38, FL_O, S_RB, 7)
    a("s_lshl_b32 s17, s%d, 5" % S_W)
    a("s_add_u32 s38, s38, s17")
    a("v_and_b32 v%d, 28, v%d" % (G_T + 5, V_L4))
    flag_addr(a, S_FX1, FL_X1, S_RG, 8, S_M)
    stamp(a, cfg, 8)
    poll(a, cfg, 38, G_T + 5, G_T + 4)
    stamp(a, cfg, 9)
    gemm64_core(a, cfg, 8, lambda i: ar(4 * i, 4), lambda i: ar(32 + 4 * i, 4), lambda e: ar(64 + 4 * e, 4),
                lambda e: blk(a, ar(64 + 4 * e, 4), SB1 if e < 8 else SB0, e % 8, SC), 16, ramp=cfg.get("ramp1", 8), resid=True,
                side=wside, side_from=cfg.get("wo_side", 5), side_n=1)
    res_epilogue(a, cfg, 1, None)
    stamp(a, cfg, 10)
    publish(a, S_FX1, [(34, 2048, 0), (35, 256, 0)])
    stamp(a, cfg, 11)


F_ACC = [24, 40, 56, 72]
NACC = 4
F_W = 88
F_CS = 120
F_H = 128
F_ST = 136
F_T = 168
F_LA = [184, 185]
F_NMU, F_C1, F_RS2, F_CSA, F_LG = 186, 187, 188, 189, 198


def phase_ffn1(a, cfg):
    SX, SH = 24, 27
    G3 = cfg.get("g0", 2) == 3
    if G3:
        a("s_mul_i32 s17, s%d, 6144" % S_W)
        a("s_sub_u32 s29, s%d, s%d" % (S_W13, S_WL))
        a("s_add_u32 s29, s29, s17")
        a("s_add_u32 m0, s17, %d" % LDS_E)
        a("s_add_u32 s29, s29, %d" % (4 * 32768))
        for q in range(4):
            a("buffer_load_dwordx4 v%d, s[4:7], s29 offen offset:%d sc1 lds" % (V_L16, q * 1024))
        a("s_add_u32 m0, s17, %d" % (LDS_E + 4096))
        a("s_add_u32 s29, s29, 4096")
        for q in range(2):
            a("buffer_load_dwordx4 v%d, s[4:7], s29 offen offset:%d sc1 lds" % (V_L16, q * 1024))
        a("s_lshl_b32 s28, s%d, 11" % S_W)
        a("s_sub_u32 s33, s%d, s%d" % (S_W13, S_WL))
        a("s_add_u32 s33, s33, s28")
        a("s_add_u32 s33, s33, %d" % (4 * 32768 + 24 * 1024))
    a("s_lshl_b32 s30, s%d, 2" % S_RG)
    a("s_add_u32 s30, s30, s%d" % S_W)
    layer_off(a, SX, OFF_X, X_STRIDE, 2, 1)
    a("s_lshl_b32 s17, s30, 15")
    a("s_add_u32 s%d, s%d, s17" % (SX, SX))
    a("s_add_u32 s25, s%d, %d" % (SX, 28 * 1024))
    layer_off(a, 26, OFF_STAT, STAT_STRIDE, 2, 1)
    a("s_lshl_b32 s18, s30, 12")
    a("s_add_u32 s26, s26, s18")
    layer_off(a, SH, OFF_H, H_STRIDE)
    a("s_mul_i32 s17, s30, %d" % (112 * 1024))
    a("s_add_u32 s%d, s%d, s17" % (SH, SH))
    a("s_mul_i32 s17, s%d, %d" % (S_M, 7 * 1024))
    a("s_add_u32 s%d, s%d, s17" % (SH, SH))
    a("v_mov_b32 v%d, v%d" % (F_LA[0], V_L16))
    a("v_add_u32 v%d, 65536, v%d" % (F_LA[1], V_L16))
    a("v_add_u32 v%d, %d, v%d" % (F_CSA, LDS_E, V_L16))
    a_addr(a, 53, 54, OFF_W2, 112, 28)
    flag_addr(a, 38, FL_X1, S_RG, 8)
    a("s_lshr_b32 s17, s%d, 1" % S_W)
    a("s_lshl_b32 s17, s17, 7")
    a("s_add_u32 s38, s38, s17")
    a("s_and_b32 s17, s%d, 1" % S_W)
    a("s_lshl_b32 s17, s17, 2")
    a("s_add_u32 s38, s38, s17")
    lane_pat(a, F_T + 2, 15, 0, 3)
    flag_addr(a, S_FH, FL_H, S_RG, 9, S_M, per_layer=0x2000)
    stamp(a, cfg, 1)
    a("s_barrier")
    poll(a, cfg, 38, F_T + 2, F_T)
    stamp(a, cfg, 2)
    tX = {}

    def xload(i):
        if i < 28:
            blk(a, ar(4 * i, 4), SX, i, SC)
        else:
            blk(a, ar(4 * i, 4), 25, i - 28, SC)
        tX[i] = a.vt()

    XW = cfg.get("xwin", 14)
    for i in range(XW):
        xload(i)

    def wread(tile, ks, ring):
        slot = SLOT13[tile]
        if ks == 32:
            a("ds_read_b128 v[%d:%d], v%d offset:%d" % (F_W + 4 * ring, F_W + 4 * ring + 3, F_CSA, LDS_CS - LDS_E + tile * 1024))
            return
        if G3 and tile == 4:
            a("ds_read_b128 v[%d:%d], v%d offset:%d" % (F_W + 4 * ring, F_W + 4 * ring + 3, F_CSA if ks < 24 else F_LA[0], (ks % 24) * 1024))
            return
        a("ds_read_b128 v[%d:%d], v%d offset:%d" % (F_W + 4 * ring, F_W + 4 * ring + 3, F_LA[slot >> 1], (slot & 1) * 32768 + ks * 1024))

    def epi(tile):
        acc, cs = F_ACC[tile % NACC], F_CS
        hp = F_H + 4 * (tile % 2)
        out = []
        for e in range(8):
            out.append("v_fma_f32 v%d, v%d, v%d, v%d" % (F_T + 8 + e, F_C1, acc + e, F_LG))
        for e in range(8):
            out.append("v_exp_f32 v%d, v%d" % (F_T + 8 + e, F_T + 8 + e))
            out.append("v_mul_f32 v%d, v%d, v%d" % (acc + e, acc + e, acc + 8 + e))
            if e:
                out.append("v_add_f32 v%d, v%d, v%d" % (F_T + 7 + e, F_RS2, F_T + 7 + e))
        out.append("v_add_f32 v%d, v%d, v%d" % (F_T + 15, F_RS2, F_T + 15))
        for e in range(8):
            out.append("v_rcp_f32 v%d, v%d" % (F_T + 8 + e, F_T + 8 + e))
            if e:
                out.append("v_mul_f32 v%d, v%d, v%d" % (acc + e - 1, F_T + 7 + e, acc + e - 1))
        out.append("v_mul_f32 v%d, v%d, v%d" % (acc + 7, F_T + 15, acc + 7))
        for i in range(4):
            out.append("v_cvt_pk_bf16_f32 v%d, v%d, v%d" % (hp + i, acc + 2 * i, acc + 2 * i + 1))
        out.append("buffer_store_dwordx4 v[%d:%d], v%d, s[4:7], s%d offen offset:%d" % (hp, hp + 3, V_OFF[tile // 4], SH, (tile % 4) * 1024))
        if DBL[0]:
            out.append("buffer_store_dwordx4 v[%d:%d], v%d, s[4:7], s%d offen offset:%d" % (hp, hp + 3, V_OFF[tile // 4], SH, (tile % 4) * 1024))
        return out

    G0 = cfg.get("g0", 2)
    steps = []
    for ks in range(33):
        for tl in range(G0):
            steps.append((tl, ks))
    for tile in range(G0, 7):
        for ks in range(33):
            steps.append((tile, ks))
    N = len(steps)
    PF = cfg.get('pf', 6)
    lt = {}
    first_of, last_of = {}, {}
    for n, (tile, ks) in enumerate(steps):
        first_of.setdefault(tile, n)
        last_of[tile] = n
    dma_q = [(3, x) for x in dma_lines(3)]
    fence_t = {}

    def do_read(n):
        tile, ks = steps[n]
        if G3:
            ft = 5 if (tile, ks) == (4, 24) else (6 if (tile, ks) == (6, 0) else None)
            if ft:
                assert ft in fence_t and not any(q[0] <= ft for q in dma_q), ft
                a.wait_vm(fence_t[ft])
                a("s_barrier")
        elif n == first_of[tile] and tile >= 3:
            assert tile in fence_t and not any(q[0] == tile for q in dma_q), tile
            a.wait_vm(fence_t[tile])
            a("s_barrier")
        wread(tile, ks, n % 8)
        lt[n] = a.lt()

    cs_t = 0
    for n in range(PF):
        do_read(n)
    pending = []
    nx = XW
    nst, st_t, st_n, early_done, rb_done = 0, {}, {}, False, False
    for n, (tile, ks) in enumerate(steps):
        if tile >= G0 and ks == 0:
            stamp(a, cfg, 1 + tile)
        if tile == 0 and ks < 32:
            a.wait_vm(tX[ks])
        if n % 2 == 0:
            a.wait_lg(lt[min(n + 1, N - 1)])
            lg_done = lt[min(n + 1, N - 1)]
        acc = F_ACC[tile % NACC]
        if ks == 0 and tile >= NACC:
            assert nst > tile - NACC, (tile, nst)
        mf(a, acc, vr(F_W + 4 * (n % 8), 4), ar(4 * ks, 4) if ks < 32 else vr(F_CS, 4), "0" if ks == 0 else vr(acc, 16))
        if (tile == 0 or (tile < G0 and cfg.get('xfast', 0))) and nx < 32:
            xload(nx)
            nx += 1
            if nx == 32:
                load_stats(a, F_ST, 26, F_T, SC)
                t_st = a.vt()
        if n + PF < N:
            do_read(n + PF)
        if n == last_of[G0 - 1] + 2:
            a("s_barrier")
            if G3:
                dma_q += [(4, "s_mov_b32 m0, s28"), (4, "s_nop 0"),
                          (4, "buffer_load_dwordx4 v%d, s[4:7], s33 offen sc1 lds" % V_L16),
                          (4, "buffer_load_dwordx4 v%d, s[4:7], s33 offen offset:1024 sc1 lds" % V_L16)]
                for tl in (5, 6):
                    dma_q += [(tl, x) for x in dma_lines(tl)]
                b = Asm()
                for idx in range(46, 56):
                    w2load(b, idx, 53, 54)
                dma_q += [(99, l.strip()) for l in b.lines]
            else:
                for tl in range(4, 4 + G0):
                    dma_q += [(tl, x) for x in dma_lines(tl)]
        for old in range(G0, 3):
            if n == last_of[old] + 2:
                a("s_barrier")
                dma_q += [(old + 4, x) for x in dma_lines(old + 4)]
                if old == 2:
                    b = Asm()
                    for idx in range(46, 56):
                        w2load(b, idx, 53, 54)
                    dma_q += [(99, l.strip()) for l in b.lines]
        dcost = 0
        if dma_q and ((n >= cfg.get("d3_from", 38) and n % cfg.get("d3_every", 3) == 0) if tile < G0 else n % cfg.get("dma_every", 3) == 0):
            while dma_q:
                tl, x = dma_q.pop(0)
                a(x)
                dcost += cfg.get("dma_cost", 8)
                if x.startswith("buffer_load"):
                    fence_t[tl] = a.vt()
                    break
        if n == last_of[G0 - 1] - G0 - 2:
            a.wait_vm(t_st)
            finish_stats(a, F_ST, F_NMU, F_RS2)
            a("v_mul_f32 v%d, %s, v%d" % (F_C1, fl(-LOG2E), F_RS2))
            a("v_mov_b32 v%d, v%d" % (F_RS2, F_ST + 1))
            a("v_log_f32 v%d, v%d" % (F_LG, F_ST + 1))
            bextra(a, F_NMU, F_CS)
        for tl in range(0, 6):
            if n == max(last_of[tl], last_of[G0 - 1]) + 3:
                pending += epi(tl)
        if nst >= EARLY and not rb_done and n >= st_n[EARLY - 1] + 1:
            if cfg.get("h_wt", 6) < EARLY:
                readback(a, [(SH, 1024 * EARLY, 0)])
                a("s_mov_b64 exec, -1")
                dcost += 24
            rb_done = n
        cost = dcost
        lim = cfg.get("epi_cost", 16)
        while pending:
            x = pending[0]
            if x == "CSWAIT":
                pending.pop(0)
                if cs_t > lg_done:
                    a.wait_lg(cs_t)
                    cost += 4
                continue
            cx = 8 if x.split()[0] in TRANS else (8 if x.startswith("buffer_") else 4)
            if cost + cx > lim:
                break
            pending.pop(0)
            if x.startswith("buffer_store") and nst == EARLY + 1:
                assert rb_done
                assert not dma_q
                a("s_waitcnt vmcnt(0)")
                a("s_mov_b64 exec, 1")
                emit_l(a, "buffer_store_dword v%d, v%d, s[4:7], s%d offen offset:%d" % (V_TAG, V_ZERO, S_FH, 0x100))
                a("s_mov_b64 exec, -1")
                early_done = True
            if x.startswith("buffer_store") and nst < cfg.get("h_wt", 6):
                a(x + " sc1")
            elif x.startswith("buffer_store"):
                emit_l(a, x)
            else:
                a(x)
            cost += cx
            if x.startswith("ds_read"):
                cs_t = a.lt()
            if x.startswith("buffer_store"):
                nst += 1
                st_t[nst - 1] = a.vt()
                st_n[nst - 1] = n
    assert early_done
    assert not dma_q
    stamp(a, cfg, 8)
    for x in pending + epi(6):
        if x == "CSWAIT":
            a.wait_lg(cs_t)
            continue
        if x.startswith("buffer_store"):
            emit_l(a, x)
        else:
            a(x)
    stamp(a, cfg, 9)
    h0 = max(EARLY, cfg.get("h_wt", 6))
    assert nst >= cfg.get("h_wt", 6)
    a("s_add_u32 s17, s%d, %d" % (SH, h0 * 1024))
    publish(a, S_FH, [(17, 1024 * (7 - h0), 0)])
    stamp(a, cfg, 10)


def phase_ffn2(a, cfg):
    SB0, SB1, SX = 26, 27, 28
    SW0, SW1 = 24, 25
    side = []
    if cfg.get("touchq", 0):
        a("s_lshl_b32 s49, s%d, 16" % S_HQ)
        a("s_and_b32 s18, s%d, 3" % S_RB)
        a("s_lshl_b32 s18, s18, 14")
        a("s_add_u32 s49, s49, s18")
        a("s_lshl_b32 s18, s%d, 12" % S_W)
        a("s_add_u32 s49, s49, s18")
        a("s_add_u32 s49, s49, 0x%x" % OFF_WQ)
        a("s_cmp_eq_u32 s%d, 1" % S_LAYER)
        a("s_cselect_b32 s49, 0xf0000000, s49")
        a("v_lshlrev_b32 v%d, 6, v%d" % (G_T + 2, V_LANE))
        side.append("buffer_load_dword v%d, v%d, s[4:7], s49 offen" % (G_T + 3, G_T + 2))
    layer_off(a, SX, OFF_H, H_STRIDE)
    b_addr(a, SB0, SB1, SX, 112, 28)
    reduce_addr(a, LDS_R1)
    out_addr(a, 2)
    flag_addr(a, 38, FL_H, S_RG, 9, per_layer=0x2000)
    a("s_lshl_b32 s17, s%d, 6" % S_W)
    a("s_add_u32 s38, s38, s17")
    a("s_and_b32 s17, s%d, 1" % S_RB)
    a("s_lshl_b32 s17, s17, 3")
    a("s_add_u32 s38, s38, s17")
    lane_pat(a, G_T + 6, 7, 0, 2)
    xin_flag_addr(a, 39, True, 1)
    stamp(a, cfg, 8)
    poll(a, cfg, 38, G_T + 6, G_T + 4, imm=0x100)
    stamp(a, cfg, 9)
    wb = cfg.get("wbl2", 0)
    R = 32

    def hreg(e):
        return ar(4 * (e % R), 4)

    early = [7 * mm + tl for tl in range(EARLY) for mm in range(4)]
    late = [7 * mm + tl for tl in range(EARLY, 7) for mm in range(4)]
    order = [(1, i) for i in early] + [(0, i) for i in early] + [(1, i) for i in late] + [(0, i) for i in late]
    tp = {}

    def probe():
        a("buffer_load_dword v%d, v%d, s[4:7], s38 offen %s" % (G_T + 5, G_T + 6, SC))
        tp[0] = a.vt()

    def check():
        a.wait_vm(tp[0])
        a("v_cmp_ne_u32 vcc, v%d, v%d" % (V_TAG, G_T + 5))
        a("s_cbranch_vccz L_ffn2_go")
        keep = a.vm_issued
        poll(a, cfg, 38, G_T + 6, G_T + 4)
        a.vm_issued = keep
        a("L_ffn2_go:")
        if wb:
            a("s_lshr_b32 s17, s2, %d" % (3 if wb == 1 else 6))
            a("s_or_b32 s17, s17, s%d" % S_W)
            a("s_xor_b32 s18, s%d, 1" % S_LAYER)
            a("s_or_b32 s17, s17, s18")
            a("s_cmp_lg_u32 s17, 0")
            a("s_cbranch_scc1 L_ffn2_nowb")
            a("buffer_wbl2 sc1")
            a("L_ffn2_nowb:")
        stamp(a, cfg, 3)

    pp = cfg.get("probe_at", 16)
    gemm64_core(a, cfg, 28, lambda i: w2reg(0, i), lambda i: w2reg(1, i), hreg,
                lambda e: blk(a, hreg(e), SB1 if order[e][0] else SB0, order[e][1], SC), cfg.get('win2', 18), order=order,
                gate=(2 * len(early), probe, check, pp, pp), side=side, side_from=cfg.get('w2_side', 6), side_n=1,
                side2=wq_lines(), side2_from=cfg.get('wq_from', 32), ramp=cfg.get('ramp2', 10), resid=True)
    res_epilogue(a, cfg, 2, "L_final")
    stamp(a, cfg, 10)
    publish(a, 39, [(34, 2048, 0), (35, 256, 0)])
    stamp(a, cfg, 11)


def final_store(a):
    a("v_permlane32_swap_b32 v%d, v%d" % (V_RES, V_RES + 2))
    a("v_permlane32_swap_b32 v%d, v%d" % (V_RES + 1, V_RES + 3))
    a("v_permlane32_swap_b32 v%d, v%d" % (V_RES + 4, V_RES + 6))
    a("v_permlane32_swap_b32 v%d, v%d" % (V_RES + 5, V_RES + 7))
    a("s_lshl_b32 s17, s%d, 15" % S_RT)
    a("s_lshl_b32 s18, s%d, 6" % S_NT)
    a("s_add_u32 s17, s17, s18")
    a("v_lshlrev_b32 v%d, 10, v%d" % (G_T + 2, V_R31))
    a("v_lshl_add_u32 v%d, v%d, 4, v%d" % (G_T + 2, V_H, G_T + 2))
    a("buffer_store_dwordx4 v[%d:%d], v%d, s[8:11], s17 offen" % (V_RES, V_RES + 3, G_T + 2))
    a("buffer_store_dwordx4 v[%d:%d], v%d, s[8:11], s17 offen offset:32" % (V_RES + 4, V_RES + 7, G_T + 2))


def st_begin(a, cfg):
    kern.stamp_init(a, cfg)


def st_end(a, cfg, k):
    if not cfg.get("stamps"):
        return
    stamp(a, cfg, NSTAMP - 1)
    a("s_memrealtime s[62:63]")
    a("s_waitcnt lgkmcnt(0)")
    a("s_mov_b32 s79, s62")
    a("s_mul_i32 s60, s3, 5\ns_add_u32 s60, s60, %d" % k)
    a("s_lshl_b32 s60, s60, 16")
    a("s_lshl_b32 s61, s2, 8")
    a("s_add_u32 s60, s60, s61")
    a("s_lshl_b32 s61, s12, 6")
    a("s_add_u32 s60, s60, s61")
    a("s_add_u32 s60, s60, 0x%x" % kern.OFF_STAMP)
    for i in range(16):
        a("v_writelane_b32 v199, s%d, %d" % (64 + i, i))
    a("s_mov_b32 exec_lo, 0xffff\ns_mov_b32 exec_hi, 0x0")
    a("buffer_store_dword v199, v%d, s[4:7], s60 offen" % V_L4)
    a("s_mov_b64 exec, -1")


def dbgt(a, cfg, k, last=False):
    if not cfg.get("dbgtime"):
        return
    L = a.newlabel("L_dt")
    a("s_cmp_lg_u32 s2, %d" % (cfg["dbgtime"] - 1))
    a("s_cbranch_scc1 %s" % L)
    a("s_memrealtime s[64:65]")
    a("s_memtime s[66:67]")
    a("s_mov_b32 s68, s98\ns_mov_b32 s69, s99\ns_mov_b32 s70, 256\ns_mov_b32 s71, 0x00020000")
    a("s_mul_i32 s72, s3, 20")
    a("s_waitcnt lgkmcnt(0)")
    a("s_sub_u32 s64, s64, s60")
    a("s_sub_u32 s66, s66, s62")
    a("v_mov_b32 v199, s64")
    a("buffer_store_dword v199, v%d, s[68:71], s72 offen offset:%d" % (V_ZERO, 4 + 4 * k))
    if last:
        a("v_mov_b32 v198, s66")
        a("buffer_store_dword v198, v%d, s[68:71], 0 offen offset:%d" % (V_ZERO, 4 * 13))
    a(L + ":")


KNAME = kern.NAME + "_kernel"


def build(cfg):
    rep = []
    DBL[0] = cfg.get("dbl", 0)
    TOUCH[0] = cfg.get("ptouch", 0)
    COMPACT[0] = cfg.get("compact", 1)
    DUAL[0] = False
    LSC[0] = cfg.get("lsc", "")
    RBW[0] = cfg.get("rbw", 0)
    global OFF_WKV
    if COMPACT[0]:
        OFF_WKV = SU.OFF_WKV = C_WKV
    a = Asm()
    a("s_load_dwordx16 s[80:95], s[0:1], 0")
    a("s_load_dwordx2 s[96:97], s[0:1], 64")
    a("s_load_dwordx2 s[98:99], s[0:1], 80")
    kern.common_prologue(a, True)
    a("v_mov_b32 v%d, 0" % V_ZERO)
    a("v_mov_b32 v199, 0")
    a("v_lshlrev_b32 v%d, 7, v%d" % (V_L128, V_LANE))
    a("v_lshlrev_b32 v%d, 2, v%d" % (V_L4, V_LANE))
    a("s_lshr_b32 s17, s%d, 1" % S_W)
    a("s_and_b32 s18, s%d, 1" % S_W)
    a("s_lshl_b32 s%d, s%d, 1" % (S_NT, S_HQ))
    a("s_add_u32 s%d, s%d, s17" % (S_NT, S_NT))
    a("s_lshl_b32 s%d, s%d, 1" % (S_RT, S_RB))
    a("s_add_u32 s%d, s%d, s18" % (S_RT, S_RT))
    a("s_mov_b32 s%d, 0" % S_LAYER)
    if cfg.get("spin_limit"):
        a("s_mov_b32 s46, %d" % cfg["spin_limit"])
    if cfg.get("dbgtime"):
        a("s_memrealtime s[60:61]")
        a("s_memtime s[62:63]")
        a("s_waitcnt lgkmcnt(0)")
    st_begin(a, cfg)
    SU.startup(a, cfg, sys.modules[__name__])
    dbgt(a, cfg, 0)
    a_addr(a, S_Q0, S_Q1, OFF_WQ, 32, 8)
    a("s_lshl_b32 s%d, s%d, 13" % (S_KVW, S_W))
    a("s_add_u32 s%d, s%d, 0x%x" % (S_KVW, S_KVW, OFF_WKV))
    a("s_and_b32 s17, s2, 7")
    a("s_lshl_b32 s17, s17, 15")
    a("s_add_u32 s%d, s%d, s17" % (S_KVW, S_KVW))
    a("s_cmp_ge_u32 s%d, 4" % S_HQ)
    a("s_cselect_b32 s%d, s%d, s%d" % (S_KVW, S_Q0, S_KVW))
    st_end(a, cfg, 0)
    a("L_layer:")
    for k, ph in enumerate((phase_qkv, phase_att, phase_wo, phase_ffn1, phase_ffn2)):
        st_begin(a, cfg)
        ph(a, cfg)
        st_end(a, cfg, k + 1)
        dbgt(a, cfg, k + 1)
    a("s_mov_b32 s%d, 1" % S_LAYER)
    a("s_branch L_layer")
    a("L_final:")
    final_store(a)
    st_end(a, cfg, 5)
    dbgt(a, cfg, 5, True)
    a("L_exit:")
    a("s_endpgm")
    main_lines, _ = fix_hazards_fast(kern.uniq(a.lines, "main"), rep)

    pf = cfg.get("pfk", 0)
    if pf:
        b = Asm()
        b("s_cmp_ge_u32 s2, 256")
        b("s_cbranch_scc1 L_pf_end")
        b("s_load_dwordx16 s[16:31], s[0:1], 0")
        b("s_load_dwordx2 s[32:33], s[0:1], 64")
        b("s_getpc_b64 s[4:5]")
        b("L_pf_pc:")
        b("s_add_u32 s4, s4, L_code_begin-L_pf_pc")
        b("s_addc_u32 s5, s5, -1")
        b("s_lshr_b32 s6, s2, 3")
        b("s_and_b32 s7, s2, 7")
        b("s_lshl_b32 s8, s6, 11")
        b("v_lshlrev_b32 v1, 3, v0")
        b("v_add_u32 v1, s8, v1")
        b("v_min_u32 v1, L_code_end-L_code_begin-8, v1")
        b("global_load_dwordx2 v[2:3], v1, s[4:5]")
        if pf >= 2:
            b("v_lshlrev_b32 v1, 6, v0")
            b("s_lshl_b32 s8, s6, 14")
            b("v_add_u32 v4, s8, v1")
            b("s_lshl_b32 s9, s7, 18")
            b("s_lshl_b32 s10, s6, 13")
            b("s_add_u32 s9, s9, s10")
            b("v_lshlrev_b32 v5, 5, v0")
            b("v_add_u32 v5, s9, v5")
            b("s_mul_i32 s11, s2, 7168")
            b("v_mul_u32_u24 v6, 28, v0")
            b("v_add_u32 v6, s11, v6")
            b("s_lshl_b32 s11, s2, 11")
            b("v_lshlrev_b32 v7, 3, v0")
            b("v_add_u32 v7, s11, v7")
            b("s_waitcnt lgkmcnt(0)")
            b("global_load_dword v8, v4, s[18:19]")
            b("global_load_dword v9, v5, s[16:17]")
            b("global_load_dword v10, v1, s[20:21]")
            b("global_load_dword v11, v1, s[22:23]")
            b("global_load_dword v12, v6, s[28:29]")
            b("global_load_dword v13, v6, s[30:31]")
            b("global_load_dword v14, v6, s[32:33]")
            b("global_load_dword v15, v7, s[24:25]")
        b("L_pf_end:")
        b("s_endpgm")
        pfl, _ = fix_hazards_fast(["L_code_begin:", "L_code_end:"] + b.lines, rep)
        main_lines2 = [".p2align 8", "pf_kernel:"] + pfl[2:]
        s = "; @launch kernel=pf_kernel grid=(256,1,1) block=(256,1,1) lds=0\n"
        s += "; @launch kernel=%s grid=(256,1,1) block=(256,1,1) lds=%d\n" % (KNAME, 160 * 1024)
    else:
        main_lines2 = []
        s = "; @launch grid=(256,1,1) block=(256,1,1) lds=%d\n" % (160 * 1024)
    s += '.amdgcn_target "amdgcn-amd-amdhsa--gfx950"\n.text\n.globl %s\n.p2align 8\n.type %s,@function\n' % (KNAME, KNAME)
    s += "\n".join(["L_code_begin:", KNAME + ":"] + main_lines + ["L_code_end:"] + main_lines2) + "\n"
    s += '.section .rodata,"a"\n.p2align 6\n' + kernel_desc(KNAME, 512, 256, 102)
    if pf:
        s += ".p2align 6\n" + kernel_desc("pf_kernel", 16, 16, 40)
    return s, rep


if __name__ == "__main__":
    cfg = dict(code_prefetch=True)
    for kv in sys.argv[2:]:
        k, v = kv.split("=")
        cfg[k] = eval(v)
    s, rep = build(cfg)
    open(sys.argv[1], "w").write(s)
    print("auto nops:", sum(r[0] for r in rep), "sites", len(rep), "bytes of source", len(s))
    if cfg.get("verbose"):
        for r in rep:
            print(r)
```

```python
import sys
from asmlib import *
from layout import *
import kern
import startup as SU
from kern import (split3, fl, MF, S_LAYER, S_W, S_RB, S_HQ, S_RG, S_M, V_L16, V_LANE, V_R31, V_H, V_OFF, xhalf_sum,
                  load_stats, finish_stats, pack8, stamp, kernel_desc, prep, NSTAMP)

SC = "sc1"


COMPACT = [1]
CMAP = {OFF_X: 0x800000, OFF_O: 0xC00000, OFF_H: 0xE00000, OFF_STAT: OFF_STAT}
C_WKV = 0x780000
C_END = 0x1500000


def layer_off(a, sdst, base, stride, mul=1, add=0):
    if COMPACT[0] and base in CMAP:
        a("s_mov_b32 s%d, 0x%x" % (sdst, CMAP[base] + (add & 1) * stride))
    else:
        kern.layer_off(a, sdst, base, stride, mul, add)


def blk(a, dst, sbase, i, sc=SC):
    kern.blk(a, dst, sbase, i, SC)


FL_O = 0x0000
FL_X1 = 0x2000
FL_H = 0x8000
FL_XIN = 0x6000
OFF_FLW = 0x64C000
FL_KV = 0xC000

S_RT, S_NT = 31, 32
S_FO, S_FX1, S_FH = 40, 41, 42
S_W13, S_WL = 47, 48
S_RET = 44
V_RES = 12
V_TAG = 11
V_L4 = 20
V_ZERO = 21
VB = 24

G_ACC = 24
G_RED = 88
G_ST = 136
G_CS = 152
G_T = 168
V_WR = [184, 185, 186]
V_RD = 187
V_NMU, V_RSTD = 188, 189
G_KVACC = 88
G_Q = 190
W2V = 200

LDS_R1 = 96 * 1024
LDS_RQ = 0
LDS_KVX = 49152
LDS_CSX = 69632
LDS_CS = 152 * 1024
LDS_E = 128 * 1024


DBL = [0]
LSC = ["sc1"]
S_LOC = 57
DUAL = [False]
_dl = [0]


def lstore(text):
    lines = text if isinstance(text, list) else [text]
    if not DUAL[0]:
        return [l + " sc1" for l in lines]
    _dl[0] += 1
    n = _dl[0]
    return (["s_cbranch_scc1 L_ls%da ; needs scc" % n] + [l + " sc1" for l in lines] + ["s_branch L_ls%db" % n, "L_ls%da:" % n] +
            ["!" + l + " " + LSC[0] for l in lines] + ["L_ls%db:" % n])


def emit_l(a, text):
    out = lstore(text)
    if DUAL[0]:
        a("s_cmp_lg_u32 s%d, 0" % S_LOC)
    for l in out:
        if l.startswith("!"):
            a(l[1:])
        else:
            a(l)


def st4(a, data, voff, soff, imm=0):
    emit_l(a, "buffer_store_dwordx4 v[%d:%d], v%d, s[4:7], s%d offen offset:%d" % (data, data + 3, voff, soff, imm))
    if DBL[0]:
        a("buffer_store_dwordx4 v[%d:%d], v%d, s[4:7], s%d offen offset:%d" % (data, data + 3, voff, soff, imm))


TOUCH = [1]
V_L128 = 23
V_P2 = 199


V_L64 = 22


RBW = [0]


def readback(a, regions, final=False):
    if not DUAL[0]:
        return
    L = a.newlabel("L_rb")
    keep = a.vm_issued
    a("s_cmp_eq_u32 s%d, 0" % S_LOC)
    a("s_cbranch_scc1 %s" % L)
    a("v_lshlrev_b32 v%d, 6, v%d" % (V_L64, V_LANE))
    if RBW[0] and final:
        a("s_waitcnt vmcnt(0)")
    for sg, nb, imm in regions:
        n = nb // 64
        assert n <= 64
        a("s_mov_b32 exec_lo, 0x%x" % (((1 << n) - 1) & 0xffffffff))
        a("s_mov_b32 exec_hi, 0x%x" % (((1 << n) - 1) >> 32))
        a("buffer_load_dword v%d, v%d, s[4:7], s%d offen offset:%d %s" % (V_P2, V_L64, sg, imm, SC))
    a(L + ":")
    a.vm_issued = keep


def publish(a, s_addr, regions, imm=0):
    readback(a, regions, True)
    a("s_waitcnt vmcnt(0)")
    a("s_mov_b64 exec, 1")
    emit_l(a, "buffer_store_dword v%d, v%d, s[4:7], s%d offen offset:%d" % (V_TAG, V_ZERO, s_addr, imm))
    a("s_mov_b64 exec, -1")


def poll(a, cfg, s_addr, voff, vtmp, wide=False, imm=0, sleep=0):
    L = a.newlabel("L_poll")
    if cfg.get("spin_limit"):
        a("s_mov_b32 s46, %d" % cfg["spin_limit"])
    if cfg.get("ppoll", 0) and not wide and not sleep:
        ld = lambda r: a("buffer_load_dword v%d, v%d, s[4:7], s%d offen offset:%d %s" % (r, voff, s_addr, imm, SC))
        ld(vtmp)
        a("s_sleep %d" % cfg.get("ppoll_gap", 2))
        a(L + ":")
        ld(V_P2)
        a("s_waitcnt vmcnt(1)")
        a("v_cmp_ne_u32 vcc, v%d, v%d" % (V_TAG, vtmp))
        a("s_cbranch_vccz %s_out" % L)
        ld(vtmp)
        a("s_waitcnt vmcnt(1)")
        if cfg.get("spin_limit"):
            a("s_sub_u32 s46, s46, 1")
            a("s_cbranch_scc1 %s_out" % L)
        a("v_cmp_ne_u32 vcc, v%d, v%d" % (V_TAG, V_P2))
        a("s_cbranch_vccnz %s" % L)
        a.vm_issued -= 1
        a(L + "_out:")
        return
    a(L + ":")
    if wide:
        a("buffer_load_dwordx2 v[%d:%d], v%d, s[4:7], s%d offen %s" % (vtmp, vtmp + 1, voff, s_addr, SC))
        a("s_waitcnt vmcnt(0)")
        a("v_xor_b32 v%d, v%d, v%d" % (vtmp + 1, V_TAG, vtmp + 1))
        a("v_xor_b32 v%d, v%d, v%d" % (vtmp, vtmp, vtmp + 1))
        a("v_or_b32 v%d, v%d, v%d" % (vtmp, vtmp, vtmp + 1) if False else "v_cmp_ne_u32 s[18:19], 0, v%d" % (vtmp + 1))
        a("v_cndmask_b32 v%d, v%d, v%d, s[18:19]" % (vtmp, vtmp, V_ZERO))
    else:
        a("buffer_load_dword v%d, v%d, s[4:7], s%d offen offset:%d %s" % (vtmp, voff, s_addr, imm, SC))
        a("s_waitcnt vmcnt(0)")
    if cfg.get("spin_limit"):
        a("s_sub_u32 s46, s46, 1")
        a("s_cbranch_scc1 %s_out" % L)
    a("v_cmp_ne_u32 vcc, v%d, v%d" % (V_TAG, vtmp))
    if sleep:
        a("s_cbranch_vccz %s_out" % L)
        a("s_sleep %d" % sleep)
        a("s_branch %s" % L)
    else:
        a("s_cbranch_vccnz %s" % L)
    a(L + "_out:")


def lane_pat(a, vdst, mask, hi_shift, lo_mul):
    a("v_and_b32 v%d, %d, v%d" % (vdst, mask & ~1, V_LANE))
    a("v_lshlrev_b32 v%d, 3, v%d" % (vdst, vdst))
    a("v_and_b32 v%d, 1, v%d" % (vdst + 1, V_LANE))
    a("v_lshl_add_u32 v%d, v%d, %d, v%d" % (vdst, vdst + 1, lo_mul, vdst))


def flag_addr(a, sdst, base, s_grp, grp_shift, s_mem=None, per_layer=0x1000):
    a("s_mul_i32 s%d, s%d, 0x%x" % (sdst, S_LAYER, per_layer))
    a("s_add_u32 s%d, s%d, 0x%x" % (sdst, sdst, OFF_FLAGS + base))
    a("s_lshl_b32 s17, s%d, %d" % (s_grp, grp_shift))
    a("s_add_u32 s%d, s%d, s17" % (sdst, sdst))
    if s_mem is not None:
        a("s_lshl_b32 s17, s%d, 4" % s_mem)
        a("s_add_u32 s%d, s%d, s17" % (sdst, sdst))
        a("s_lshl_b32 s17, s%d, 2" % S_W)
        a("s_add_u32 s%d, s%d, s17" % (sdst, sdst))


def xin_flag_addr(a, sdst, own, layer_add):
    flag_addr(a, sdst, FL_XIN + 0x1000 * layer_add, S_RB, 7, S_HQ if own else None)


def a_addr(a, s_a0, s_a1, offA, ksA, ksw):
    a("s_mul_i32 s20, s%d, %d" % (S_W, ksw * 1024))
    a("s_mul_i32 s%d, s%d, %d" % (s_a0, S_NT, ksA * 1024))
    a("s_add_u32 s%d, s%d, s20" % (s_a0, s_a0))
    a("s_add_u32 s%d, s%d, 0x%x" % (s_a0, s_a0, offA))
    a("s_xor_b32 s21, s%d, 1" % S_NT)
    a("s_mul_i32 s%d, s21, %d" % (s_a1, ksA * 1024))
    a("s_add_u32 s%d, s%d, s20" % (s_a1, s_a1))
    a("s_add_u32 s%d, s%d, 0x%x" % (s_a1, s_a1, offA))


def b_addr(a, s_b0, s_b1, s_base, ksB, ksw):
    a("s_mul_i32 s20, s%d, %d" % (S_W, ksw * 1024))
    a("s_add_u32 s20, s20, s%d" % s_base)
    a("s_mul_i32 s%d, s%d, %d" % (s_b0, S_RT, ksB * 1024))
    a("s_add_u32 s%d, s%d, s20" % (s_b0, s_b0))
    a("s_xor_b32 s21, s%d, 1" % S_RT)
    a("s_mul_i32 s%d, s21, %d" % (s_b1, ksB * 1024))
    a("s_add_u32 s%d, s%d, s20" % (s_b1, s_b1))


def reduce_addr(a, base):
    for j in (1, 2, 3):
        a("s_xor_b32 s17, s%d, %d" % (S_W, j))
        a("s_mul_i32 s17, s17, 12288")
        a("s_add_u32 s17, s17, %d" % (base + (j - 1) * 4096))
        a("v_add_u32 v%d, s17, v%d" % (V_WR[j - 1], V_L16))
    a("s_mul_i32 s17, s%d, 12288" % S_W)
    a("s_add_u32 s17, s17, %d" % base)
    a("v_add_u32 v%d, s17, v%d" % (V_RD, V_L16))


def mf(a, d, x, y, c):
    a("%s v[%d:%d], %s, %s, %s" % (MF, d, d + 15, x, y, c))


def wr_tile(a, j):
    for q in range(4):
        r = G_ACC + 16 * j + 4 * q
        a("ds_write_b128 v%d, v[%d:%d] offset:%d" % (V_WR[j - 1], r, r + 3, q * 1024))


def rd_tile(a, j, dst):
    for q in range(4):
        a("ds_read_b128 v[%d:%d], v%d offset:%d" % (dst + 4 * q, dst + 4 * q + 3, V_RD, (j - 1) * 4096 + q * 1024))


def gemm64_core(a, cfg, n, A0, A1, Breg, issueB, window, pre_tickets=None, order=None, side=None, side_from=0, side_n=1,
                gate=None, side2=None, side2_from=0, ramp=None, resid=False, extra0=None, hooks=None):
    if order is None:
        order = [(1, i) for i in range(n)] + [(0, i) for i in range(n)]
    M = len(order)
    side = list(side or [])
    t = dict(pre_tickets or {})
    nxt = len(t)
    gpos = gate[0] if gate else M + 1
    gated = [False]

    def try_issue(limit):
        nonlocal nxt
        while nxt < M and nxt < limit:
            if nxt >= gpos and not gated[0]:
                return
            issueB(nxt)
            t[nxt] = a.vt()
            nxt += 1
            if gate and nxt == gate[3]:
                gate[1]()

    try_issue(ramp or window)
    if cfg.get("stamps") != 2:
        stamp(a, cfg, 1)
    last1 = max(e for e, (st, i) in enumerate(order) if st == 1)
    wr1 = last1 + 2
    bar1 = min(M - 2, last1 + 1 + max(2, (M - last1) // 2))
    seen = set()
    for e, (st, i) in enumerate(order):
        if gate and not gated[0] and e == gate[4]:
            assert not side
            gate[2]()
            gated[0] = True
            try_issue(e + window)
        if hooks and e in hooks:
            hooks[e]()
        a.wait_vm(t[e])
        if e == 0 and cfg.get("stamps") != 2:
            stamp(a, cfg, 2)
        first = "0" if st not in seen else None
        seen.add(st)
        if st == 1:
            mf(a, G_ACC + 16, A0(i), Breg(e), first or vr(G_ACC + 16, 16))
            if cfg.get("ldmid", 0) and window < 30:
                try_issue(min(e + 1 + window, nxt + 1))
            mf(a, G_ACC + 48, A1(i), Breg(e), first or vr(G_ACC + 48, 16))
        else:
            mf(a, G_ACC + 32, A1(i), Breg(e), first or vr(G_ACC + 32, 16))
            if cfg.get("ldmid", 0) and window < 30:
                try_issue(min(e + 1 + window, nxt + 1))
            mf(a, G_ACC, A0(i), Breg(e), first or vr(G_ACC, 16))
        try_issue(min(e + 1 + window, nxt + 2))
        if e >= side_from:
            k = 0
            while side and k < side_n:
                x = side.pop(0)
                a(x)
                k += x.startswith("buffer_")
        if side2 and e >= side2_from:
            for _ in range(cfg.get("side2_n", 1)):
                if side2:
                    a(side2.pop(0))
        if e == wr1:
            wr_tile(a, 1)
            wr_tile(a, 3)
        if e == bar1:
            a("s_waitcnt lgkmcnt(0)")
            a("s_barrier")
            rd_tile(a, 1, G_RED)
            rd_tile(a, 3, G_RED + 16)
    assert wr1 <= bar1 < M and not side2
    if extra0:
        extra0[2]()
        mf(a, G_ACC, extra0[0], extra0[1], vr(G_ACC, 16))
    stamp(a, cfg, 4)
    a("s_waitcnt lgkmcnt(0)")
    for e in range(6):
        a("v_add_f32 v%d, v%d, v%d" % (G_RED + e, G_RED + e, G_RED + 16 + e))
    wr_tile(a, 2)
    for e in range(6, 16):
        a("v_add_f32 v%d, v%d, v%d" % (G_RED + e, G_RED + e, G_RED + 16 + e))
    for e in range(16):
        a("v_add_f32 v%d, v%d, v%d" % (G_ACC + e, G_ACC + e, G_RED + e))
    if resid:
        for i in range(8):
            a("v_lshlrev_b32 v%d, 16, v%d" % (G_T, V_RES + i))
            a("v_and_b32 v%d, 0xffff0000, v%d" % (G_T + 1, V_RES + i))
            a("v_add_f32 v%d, v%d, v%d" % (G_ACC + 2 * i, G_ACC + 2 * i, G_T))
            a("v_add_f32 v%d, v%d, v%d" % (G_ACC + 2 * i + 1, G_ACC + 2 * i + 1, G_T + 1))
    for x in side:
        a(x)
    a("s_waitcnt lgkmcnt(0)")
    a("s_barrier")
    stamp(a, cfg, 6)
    rd_tile(a, 2, G_RED + 32)
    for q in range(4):
        a("s_waitcnt lgkmcnt(%d)" % (3 - q))
        for e in range(4):
            a("v_add_f32 v%d, v%d, v%d" % (G_ACC + 4 * q + e, G_ACC + 4 * q + e, G_RED + 32 + 4 * q + e))
    stamp(a, cfg, 7)


def bextra(a, nmu, d):
    split3(a, nmu, d + 4)
    a("v_lshrrev_b32 v%d, 16, v%d" % (d + 7, d + 4))
    a("v_or_b32 v%d, v%d, v%d" % (d, d + 7, d + 5))
    a("v_or_b32 v%d, v%d, v%d" % (d + 1, d + 7, d + 6))
    a("v_mov_b32 v%d, v%d" % (d + 2, d))
    a("v_mov_b32 v%d, 0" % (d + 3))


def res_epilogue(a, cfg, xout_add, final):
    for i in range(8):
        a("v_cvt_pk_bf16_f32 v%d, v%d, v%d" % (V_RES + i, G_ACC + 2 * i, G_ACC + 2 * i + 1))
        if i == 3 and final is None:
            st4(a, V_RES, V_L16, 34)
    if final is not None:
        a("s_cmp_eq_u32 s%d, 1" % S_LAYER)
        a("s_cbranch_scc1 %s" % final)
        st4(a, V_RES, V_L16, 34)
    store_x_tail(a)


def store_x_tail(a):
    st4(a, V_RES + 4, V_L16, 34, 1024)
    a("v_mov_b32 v%d, 0x3f803f80" % G_T)
    a("v_mov_b32 v%d, 0" % (G_T + 12))
    a("v_mov_b32 v%d, 0" % (G_T + 13))
    for r in range(8):
        a("v_dot2_f32_bf16 v%d, v%d, v%d, v%d" % (G_T + 12, V_RES + r, G_T, G_T + 12))
        a("v_dot2_f32_bf16 v%d, v%d, v%d, v%d" % (G_T + 13, V_RES + r, V_RES + r, G_T + 13))
    a("v_lshlrev_b32 v%d, 3, v%d" % (G_T + 2, V_R31))
    a("s_nop 1")
    a("v_mov_b32 v%d, v%d" % (G_T + 14, G_T + 12))
    a("v_mov_b32 v%d, v%d" % (G_T + 15, G_T + 13))
    a("s_nop 0")
    a("v_permlane32_swap_b32 v%d, v%d" % (G_T + 12, G_T + 14))
    a("v_permlane32_swap_b32 v%d, v%d" % (G_T + 13, G_T + 15))
    a("v_add_f32 v%d, v%d, v%d" % (G_T + 12, G_T + 12, G_T + 14))
    a("v_add_f32 v%d, v%d, v%d" % (G_T + 13, G_T + 13, G_T + 15))
    a("s_mov_b32 exec_lo, 0xffffffff\ns_mov_b32 exec_hi, 0x0")
    emit_l(a, "buffer_store_dwordx2 v[%d:%d], v%d, s[4:7], s35 offen" % (G_T + 12, G_T + 13, G_T + 2))
    a("s_mov_b64 exec, -1")


def out_addr(a, xout_add):
    layer_off(a, 34, OFF_X, X_STRIDE, 2, xout_add)
    a("s_lshl_b32 s18, s%d, 15" % S_RT)
    a("s_add_u32 s34, s34, s18")
    a("s_lshl_b32 s18, s%d, 11" % S_NT)
    a("s_add_u32 s34, s34, s18")
    layer_off(a, 35, OFF_STAT, STAT_STRIDE, 2, xout_add)
    a("s_lshl_b32 s18, s%d, 12" % S_RT)
    a("s_add_u32 s35, s35, s18")
    a("s_lshl_b32 s18, s%d, 8" % S_NT)
    a("s_add_u32 s35, s35, s18")


S_Q0, S_Q1, S_KVW = 50, 51, 52


def wq_lines():
    b = Asm()
    for i in range(8):
        blk(b, ar(128 + 4 * i, 4), S_KVW, i)
    for i in range(8):
        blk(b, ar(160 + 4 * i, 4), S_Q0, i)
        blk(b, ar(192 + 4 * i, 4), S_Q1, i)
    return [l.strip() for l in b.lines]


def phase_qkv(a, cfg):
    SA0, SA1, SB0, SB1, SX, SKV = 24, 25, 26, 27, 28, 29
    CK = G_T + 8
    a("v_lshlrev_b32 v%d, 4, v%d" % (G_T + 1, V_H))
    a("v_lshlrev_b32 v%d, 2, v%d" % (G_T + 6, V_R31))
    VP, VPA = 198, 22
    SU.probe_addr(a, sys.modules[__name__], VPA, VP, 59)
    def wcheck(tag):
        a("v_cmp_ne_u32 vcc, v%d, v%d" % (V_TAG, VP))
        a("s_cbranch_vccz L_qkv_wok%s" % tag)
        keep = a.vm_issued
        poll(a, cfg, 59, VPA, VP, sleep=1)
        a.vm_issued = keep
        a("L_qkv_wok%s:" % tag)

    layer_off(a, SX, OFF_X, X_STRIDE, 2, 0)
    b_addr(a, SB0, SB1, SX, 32, 8)
    layer_off(a, 30, OFF_STAT, STAT_STRIDE, 2, 0)
    a("s_lshl_b32 s17, s%d, 12" % S_RT)
    a("s_add_u32 s30, s30, s17")
    reduce_addr(a, LDS_RQ)
    layer_off(a, 33, OFF_KV, KV_STRIDE)
    a("s_lshr_b32 s36, s%d, 1" % S_HQ)
    a("s_lshl_b32 s17, s%d, 1" % S_RB)
    a("s_add_u32 s17, s17, s36")
    a("s_lshl_b32 s17, s17, 15")
    a("s_add_u32 s23, s17, s%d" % SX)
    a("s_lshl_b32 s17, s%d, 13" % S_W)
    a("s_add_u32 s23, s23, s17")
    a("s_sub_u32 s17, s%d, s36" % S_W)
    a("s_sub_u32 s17, s17, 1")
    a("s_and_b32 s17, s17, 3")
    a("s_lshl_b32 s17, s17, 12")
    a("s_add_u32 s17, s17, %d" % LDS_KVX)
    a("v_add_u32 v%d, s17, v%d" % (G_T + 2, V_L16))
    a("v_add_u32 v%d, %d, v%d" % (G_T + 3, LDS_KVX, V_L16))
    a("s_mul_i32 s37, s%d, 0x1000" % S_LAYER)
    a("s_add_u32 s37, s37, 0x%x" % (OFF_FLAGS + FL_KV))
    a("s_lshl_b32 s17, s%d, 4" % S_RB)
    a("s_add_u32 s37, s37, s17")
    a("s_lshl_b32 s17, s%d, 2" % S_HQ)
    a("s_add_u32 s37, s37, s17")
    a("s_lshl_b32 s39, s2, 11")
    a("s_add_u32 s39, s39, 0x%x" % OFF_CKS)
    a("s_cmp_eq_u32 s%d, 0" % S_LAYER)
    a("s_cbranch_scc1 L_qkv_cs0")
    a("buffer_load_dwordx4 v[%d:%d], v%d, s[4:7], s39 offen sc1" % (CK, CK + 3, V_L16))
    a("buffer_load_dwordx4 v[%d:%d], v%d, s[4:7], s39 offen offset:1024 sc1" % (CK + 4, CK + 7, V_L16))
    a("s_branch L_qkv_nocs")
    a("L_qkv_cs0:")
    a("s_cmp_ge_u32 s%d, 4" % S_HQ)
    a("s_cbranch_scc1 L_qkv_nocs")
    for r in range(4):
        a("v_mov_b32 v%d, 0x3f803f80" % (G_CS + r))
    a("s_lshl_b32 s17, s%d, 11" % S_W)
    a("s_add_u32 s17, s17, %d" % LDS_CSX)
    a("v_add_u32 v%d, s17, v%d" % (G_CS + 4, V_L16))
    a("v_add_u32 v%d, %d, v%d" % (G_CS + 5, LDS_CSX, V_L16))
    a("s_bitcmp1_b32 s%d, 0" % S_HQ)
    a("s_cbranch_scc1 L_qkv_c1")
    for i in range(8):
        mf(a, G_ACC, ar(128 + 4 * i, 4), vr(G_CS, 4), "0" if i == 0 else vr(G_ACC, 16))
    a("s_branch L_qkv_c2")
    a("L_qkv_c1:")
    for i in range(8):
        mf(a, G_ACC, vr(G_CS, 4), ar(128 + 4 * i, 4), "0" if i == 0 else vr(G_ACC, 16))
    a("L_qkv_c2:")
    a("ds_write_b128 v%d, v[%d:%d]" % (G_CS + 4, G_ACC + 8, G_ACC + 11))
    a("ds_write_b128 v%d, v[%d:%d] offset:1024" % (G_CS + 4, G_ACC + 12, G_ACC + 15))
    a("s_waitcnt lgkmcnt(0)")
    a("s_barrier")
    for w in range(4):
        for q in range(2):
            a("ds_read_b128 v[%d:%d], v%d offset:%d" % (G_RED + 8 * w + 4 * q, G_RED + 8 * w + 4 * q + 3, G_CS + 5, 2048 * w + 1024 * q))
    a("s_waitcnt lgkmcnt(0)")
    for e in range(8):
        a("v_add_f32 v%d, v%d, v%d" % (G_RED + e, G_RED + e, G_RED + 8 + e))
        a("v_add_f32 v%d, v%d, v%d" % (G_RED + 16 + e, G_RED + 16 + e, G_RED + 24 + e))
        a("v_add_f32 v%d, v%d, v%d" % (CK + e, G_RED + e, G_RED + 16 + e))
    a("buffer_store_dwordx4 v[%d:%d], v%d, s[4:7], s39 offen sc1" % (CK, CK + 3, V_L16))
    a("buffer_store_dwordx4 v[%d:%d], v%d, s[4:7], s39 offen offset:1024 sc1" % (CK + 4, CK + 7, V_L16))
    a("L_qkv_nocs:")
    stamp(a, cfg, 8)
    xin_flag_addr(a, 38, False, 0)
    poll(a, cfg, 38, G_T + 6, G_T + 4)
    stamp(a, cfg, 9)
    def b1_loads():
        for e in range(8):
            blk(a, ar(64 + 4 * e, 4), SB1, e, SC)
            tB[e] = a.vt()

    def cs_q():
        a("s_lshl_b32 s17, s%d, 10" % S_NT)
        a("s_add_u32 s17, s17, 0x%x" % OFF_CSQX)
        a("buffer_load_dwordx4 v[%d:%d], v%d, s[4:7], s17 offen sc1" % (G_CS, G_CS + 3, V_L16))

    a("s_cmp_ge_u32 s%d, 4" % S_HQ)
    a("s_cbranch_scc1 L_qkv_stats")
    tK = {}
    for i in range(8):
        blk(a, ar(224 + 4 * i, 4), 23, i, SC)
        tK[i] = a.vt()
    load_stats(a, G_ST, 30, G_T, SC)
    t_st = a.vt()
    tB = {}
    b1_loads()
    stamp(a, cfg, 1)
    a("s_bitcmp1_b32 s%d, 0" % S_HQ)
    a("s_cbranch_scc1 L_qkv_v1")
    for v in range(2):
        if v:
            a("L_qkv_v%d:" % v)
        for i in range(8):
            a.wait_vm(tK[i])
            x, w = ar(224 + 4 * i, 4), ar(128 + 4 * i, 4)
            c = "0" if i == 0 else vr(G_KVACC, 16)
            if v & 1:
                mf(a, G_KVACC, x, w, c)
            else:
                mf(a, G_KVACC, w, x, c)
        if v < 1:
            a("s_branch L_qkv_kvred")
    a("L_qkv_kvred:")
    stamp(a, cfg, 2)
    a.wait_vm(t_st)
    finish_stats(a, G_ST, V_NMU, V_RSTD)
    for q in range(4):
        a("ds_write_b128 v%d, v[%d:%d] offset:%d" % (G_T + 2, G_KVACC + 4 * q, G_KVACC + 4 * q + 3, q * 1024))
    XS = LDS_KVX + 16384
    a("s_lshl_b32 s17, s%d, 8" % S_W)
    a("s_add_u32 s17, s17, %d" % XS)
    a("v_add_u32 v%d, s17, v%d" % (G_T + 4, G_T + 6))
    a("v_mul_f32 v%d, v%d, v%d" % (G_T + 5, V_NMU, V_RSTD))
    a("ds_write_b32 v%d, v%d" % (G_T + 4, V_RSTD))
    a("ds_write_b32 v%d, v%d offset:128" % (G_T + 4, G_T + 5))
    a("v_add_u32 v%d, s17, v%d" % (G_T + 4, G_T + 1))
    RS = G_ACC + 16
    for g in range(4):
        a("ds_read_b128 v[%d:%d], v%d offset:%d" % (RS + 4 * g, RS + 4 * g + 3, G_T + 4, 32 * g))
        a("ds_read_b128 v[%d:%d], v%d offset:%d" % (RS + 16 + 4 * g, RS + 16 + 4 * g + 3, G_T + 4, 128 + 32 * g))
    a("s_waitcnt lgkmcnt(0)")
    a("s_barrier")
    stamp(a, cfg, 3)
    a("s_cmp_lg_u32 s%d, s36" % S_W)
    a("s_cbranch_scc1 L_qkv_q")
    RD = [G_RED + 16, G_RED + 32, G_ACC]
    for j in range(3):
        for q in range(4):
            a("ds_read_b128 v[%d:%d], v%d offset:%d" % (RD[j] + 4 * q, RD[j] + 4 * q + 3, G_T + 3, j * 4096 + q * 1024))
    for j in range(3):
        a("s_waitcnt lgkmcnt(%d)" % (8 - 4 * j))
        for e in range(16):
            a("v_add_f32 v%d, v%d, v%d" % (G_KVACC + e, G_KVACC + e, RD[j] + e))
    a("s_lshl_b32 s17, s%d, 10" % S_RT)
    a("s_add_u32 s34, s33, s17")
    a("s_bitcmp1_b32 s%d, 0" % S_HQ)
    a("s_cbranch_scc1 L_qkv_vfin")
    PK = G_RED + 16
    for e in range(8):
        a("v_fmac_f32 v%d, v%d, v%d" % (G_KVACC + 8 + e, V_NMU, CK + e))
        a("v_mul_f32 v%d, v%d, v%d" % (G_KVACC + 8 + e, V_RSTD, G_KVACC + 8 + e))
    pack8(a, PK, G_KVACC + 8)
    a("buffer_store_dwordx4 v[%d:%d], v%d, s[4:7], s34 offen %s" % (PK, PK + 3, V_L16, SC))
    a("v_mov_b32 v%d, 0" % (PK + 4))
    for r in range(4):
        a("v_dot2_f32_bf16 v%d, v%d, v%d, v%d" % (PK + 4, PK + r, PK + r, PK + 4))
    xhalf_sum(a, PK + 4, PK + 5)
    for d in ("row_shr:1", "row_shr:2", "row_shr:4", "row_shr:8"):
        a("v_max_f32_dpp v%d, v%d, v%d %s row_mask:0xf bank_mask:0xf" % (PK + 4, PK + 4, PK + 4, d))
    a("v_max_f32_dpp v%d, v%d, v%d row_bcast:15 row_mask:0xa bank_mask:0xf" % (PK + 4, PK + 4, PK + 4))
    a("s_lshl_b32 s18, s%d, 2" % S_RT)
    a("s_add_u32 s18, s18, s33")
    a("s_add_u32 s18, s18, 0x20000")
    a("s_mov_b32 exec_lo, 0x80000000\ns_mov_b32 exec_hi, 0x0")
    a("buffer_store_dword v%d, v%d, s[4:7], s18 offen %s" % (PK + 4, V_ZERO, SC))
    a("s_mov_b64 exec, -1")
    a("s_branch L_qkv_kvdone")
    a("L_qkv_vfin:")
    a("v_lshlrev_b32 v%d, 4, v%d" % (G_T + 4, V_R31))
    a("v_lshl_add_u32 v%d, v%d, 8, v%d" % (G_T + 4, V_H, G_T + 4))
    a("s_add_u32 s34, s34, 0x10000")
    for e in range(16):
        a("v_mul_f32 v%d, v%d, v%d" % (G_KVACC + e, RS + e, G_KVACC + e))
        a("v_fmac_f32 v%d, v%d, v%d" % (G_KVACC + e, RS + 16 + e, CK))
    pack8(a, G_ACC, G_KVACC)
    pack8(a, G_ACC + 4, G_KVACC + 8)
    a("s_mov_b32 exec_lo, 0xffff\ns_mov_b32 exec_hi, 0xffff")
    a("buffer_store_dwordx4 v[%d:%d], v%d, s[4:7], s34 offen %s" % (G_ACC, G_ACC + 3, G_T + 4, SC))
    a("buffer_store_dwordx4 v[%d:%d], v%d, s[4:7], s34 offen offset:512 %s" % (G_ACC + 4, G_ACC + 7, G_T + 4, SC))
    a("s_mov_b64 exec, -1")
    a("L_qkv_kvdone:")
    stamp(a, cfg, 5)
    a("v_lshlrev_b32 v%d, 9, v%d" % (G_T + 4, V_LANE))
    a("s_waitcnt vmcnt(0)")
    a("s_mov_b64 exec, 0xff")
    a("buffer_store_dword v%d, v%d, s[4:7], s37 offen %s" % (V_TAG, G_T + 4, SC))
    a("s_mov_b64 exec, -1")
    a("s_branch L_qkv_q")
    a("L_qkv_stats:")
    load_stats(a, G_ST, 30, G_T, SC)
    t_st = a.vt()
    b1_loads()
    a.wait_vm(t_st)
    finish_stats(a, G_ST, V_NMU, V_RSTD)
    a("L_qkv_q:")
    stamp(a, cfg, 10)
    bextra(a, V_NMU, G_CS + 4)
    tq = {}

    def h_probe():
        a("buffer_load_dword v%d, v%d, s[4:7], s59 offen sc1" % (VP, VPA))
        tq[0] = a.vt()

    def h_cs():
        a.wait_vm(tq[0])
        wcheck("q")
        cs_q()
        tq[1] = a.vt()
    gemm64_core(a, dict(cfg, stamps=cfg.get('stamps') and 2), 8, lambda i: ar(160 + 4 * i, 4), lambda i: ar(192 + 4 * i, 4), lambda e: ar(64 + 4 * e, 4),
                lambda e: blk(a, ar(64 + 4 * e, 4), SB1 if e < 8 else SB0, e % 8, SC), 16, pre_tickets=tB, ramp=12,
                side=[g[0] for g in SU.deferred_store_groups(sys.modules[__name__])], side_from=99, side_n=1, extra0=(vr(G_CS, 4), vr(G_CS + 4, 4), lambda: a.wait_vm(tq[1])),
                hooks={3: h_probe, 10: h_cs})
    a("v_mul_f32 v%d, %s, v%d" % (G_T, fl(QSCALE), V_RSTD))
    for e in range(16):
        a("v_mul_f32 v%d, v%d, v%d" % (G_ACC + e, G_T, G_ACC + e))
    pack8(a, G_Q, G_ACC)
    pack8(a, G_Q + 4, G_ACC + 8)
    if cfg.get("store_q"):
        a("s_lshl_b32 s17, s%d, 15" % S_RT)
        a("s_lshl_b32 s18, s%d, 11" % S_NT)
        a("s_add_u32 s17, s17, s18")
        a("s_add_u32 s17, s17, 0x%x" % OFF_Q)
        a("buffer_store_dwordx4 v[%d:%d], v%d, s[4:7], s17 offen" % (G_Q, G_Q + 3, V_L16))
        a("buffer_store_dwordx4 v[%d:%d], v%d, s[4:7], s17 offen offset:1024" % (G_Q + 4, G_Q + 7, V_L16))
    stamp(a, cfg, 11)


A_C = [24, 40]
A_O = [56, 72]
A_S = [88, 104]
A_P = [120, 124, 128, 132]
A_KF = [136, 140]
A_VF = [[144, 148], [152, 156]]
A_VK, A_VV, A_VINC = 160, 161, 162
A_T = 164
LDS_V = 65536
LDS_ONES = 131072
LDS_ATT_FLAG = LDS_ONES + 5120
UNR = 4


EARLY = 4
W2ORD = [7 * mm + tl for tl in range(7) for mm in range(4)]
W2POS = {k: p for p, k in enumerate(W2ORD)}


def w2load(a, idx, s0, s1):
    i = W2ORD[idx >> 1]
    blk(a, w2reg(idx & 1, i), s1 if idx & 1 else s0, i)


def w2reg(s, i):
    idx = 2 * W2POS[i] + s
    if idx < 32:
        return ar(128 + 4 * idx, 4)
    if idx < 46:
        return vr(W2V + 4 * (idx - 32), 4)
    if idx < 54:
        return vr(136 + 4 * (idx - 46), 4)
    return vr(190 + 4 * (idx - 54), 4)


SLOT13 = [0, 2, 1, 3, 0, 2, 1]


def dma13(a, i, part=None):
    slot = SLOT13[i]
    for hh in range(2):
        a("s_add_u32 m0, s%d, %d" % (S_WL, slot * 32768 + hh * 4096))
        a("s_add_u32 s29, s%d, %d" % (S_W13, i * 32768 + hh * 4096))
        for q in range(4):
            a("buffer_load_dwordx4 v%d, s[4:7], s29 offen offset:%d sc1 lds" % (V_L16, q * 1024))


def dma_lines(i):
    b = Asm()
    dma13(b, i)
    return [l.strip() for l in b.lines]


def phase_att(a, cfg):
    Q = [G_Q, G_Q + 4]
    SA0, SA1, SW0, SW1 = 24, 25, 26, 27
    a("v_mov_b32 v%d, 0x3f803f80" % (A_T + 4))
    if cfg.get("zpad", 1):
        a("v_and_b32 v%d, 2, v0" % (A_T + 5))
        a("v_cmp_eq_u32 vcc, 0, v%d" % (A_T + 5))
        a("v_cndmask_b32 v%d, v%d, v%d, vcc" % (A_T + 4, V_ZERO, A_T + 4))
    for r in range(1, 4):
        a("v_mov_b32 v%d, v%d" % (A_T + 4 + r, A_T + 4))
    a("v_lshlrev_b32 v%d, 4, v0" % (A_T + 2))
    a("v_add_u32 v%d, %d, v%d" % (A_T + 2, LDS_ONES, A_T + 2))
    a("ds_write_b128 v%d, v[%d:%d]" % (A_T + 2, A_T + 4, A_T + 7))
    a("ds_write_b128 v%d, v[%d:%d] offset:1024" % (A_T + 2, A_T + 4, A_T + 7))
    a("v_and_b32 v%d, 15, v%d" % (A_T + 2, V_LANE))
    a("v_lshlrev_b32 v%d, 4, v%d" % (A_T + 2, A_T + 2))
    a("v_lshl_add_u32 v%d, v%d, 8, v%d" % (A_T + 2, V_H, A_T + 2))
    a("v_add_u32 v%d, %d, v%d" % (A_VV, LDS_V, A_T + 2))
    a("v_add_u32 v%d, -20, v%d" % (A_T + 3, V_R31))
    a("v_cmp_gt_u32 vcc, 8, v%d" % (A_T + 3))
    a("v_mov_b32 v%d, %d" % (A_T + 2, LDS_ONES))
    a("v_mov_b32 v%d, %d" % (A_T + 3, LDS_ONES + 64))
    a("v_cndmask_b32 v%d, v%d, v%d, vcc" % (A_T + 2, A_T + 2, A_T + 3))
    if cfg.get("zpad", 1):
        a("v_and_b32 v%d, 27, v%d" % (A_T + 3, V_R31))
        a("v_cmp_ne_u32 vcc, 16, v%d" % (A_T + 3))
        a("v_add_u32 v%d, 32, v%d" % (A_T + 3, A_T + 2))
        a("v_cndmask_b32 v%d, v%d, v%d, vcc" % (A_T + 2, A_T + 2, A_T + 3))
    a("v_cmp_le_u32 vcc, 16, v%d" % V_R31)
    a("v_mov_b32 v%d, %d" % (A_VINC, UNR * 1024))
    a("v_cndmask_b32 v%d, v%d, v%d, vcc" % (A_VV, A_VV, A_T + 2))
    a("v_cndmask_b32 v%d, v%d, v%d, vcc" % (A_VINC, A_VINC, V_ZERO))
    for t in range(2):
        n = A_T + 8 + t
        a("v_mov_b32 v%d, 0" % n)
        for r in range(4):
            a("v_dot2_f32_bf16 v%d, v%d, v%d, v%d" % (n, Q[t] + r, Q[t] + r, n))
    for t in range(2):
        xhalf_sum(a, A_T + 8 + t, A_T + 10)
    a_addr(a, SA0, SA1, OFF_WO, 32, 8)
    a("s_mul_i32 s%d, s%d, %d" % (S_W13, S_M, 7 * 32768))
    a("s_lshl_b32 s%d, s%d, 13" % (S_WL, S_W))
    a("s_add_u32 s%d, s%d, s%d" % (S_W13, S_W13, S_WL))
    a("s_add_u32 s%d, s%d, 0x%x" % (S_W13, S_W13, OFF_W13))
    a_addr(a, SW0, SW1, OFF_W2, 112, 28)
    a("s_lshl_b32 s20, s%d, 10" % S_W)
    a("s_add_u32 s21, s33, s20")
    a("s_add_u32 s22, s21, 0x10000")
    a("s_add_u32 s23, s20, %d" % LDS_V)
    a("s_mul_i32 s38, s%d, 0x1000" % S_LAYER)
    a("s_add_u32 s38, s38, 0x%x" % (OFF_FLAGS + FL_KV))
    a("s_and_b32 s17, s2, 7")
    a("s_lshl_b32 s17, s17, 9")
    a("s_add_u32 s38, s38, s17")
    a("s_lshl_b32 s58, s2, 2")
    a("s_add_u32 s58, s58, 0x%x" % OFF_FLW)
    a("s_or_b32 s17, s%d, s%d" % (S_W, S_LAYER))
    a("s_cmp_lg_u32 s17, 0")
    a("s_cselect_b32 s58, 0xf0000000, s58")
    a("s_and_b32 s59, s2, 7")
    a("s_lshl_b32 s59, s59, 10")
    a("s_add_u32 s59, s59, 0x%x" % OFF_FLW)
    a("v_lshlrev_b32 v%d, 10, v%d" % (A_T + 16, V_LANE))
    a("s_getreg_b32 s17, hwreg(HW_REG_XCC_ID)")
    a("s_and_b32 s17, s17, 7")
    a("s_lshl_b32 s17, s17, 1")
    a("v_or_b32 v%d, s17, v%d" % (A_T + 17, V_TAG))
    a("v_and_b32 v%d, 15, v%d" % (A_T + 18, V_LANE))
    a("v_lshlrev_b32 v%d, 5, v%d" % (A_T + 18, A_T + 18))
    a("s_and_b32 s17, s2, 0x87")
    a("s_lshl_b32 s17, s17, 2")
    a("v_add_u32 v%d, s17, v%d" % (A_T + 18, A_T + 18))

    stamp(a, cfg, 1)
    a("v_lshlrev_b32 v%d, 3, v%d" % (A_T + 14, V_LANE))
    a("s_cmp_lg_u32 s%d, 0" % S_W)
    a("s_cbranch_scc1 L_att_nopoll")
    poll(a, cfg, 38, A_T + 14, A_T + 12, wide=True, sleep=cfg.get("kv_sleep", 2))
    a("L_att_nopoll:")
    a("s_waitcnt vmcnt(0)")
    a("s_barrier")
    a("s_mov_b64 exec, 0xff")
    a("buffer_store_dword v%d, v%d, s[4:7], s58 offen %s" % (A_T + 17, A_T + 16, SC))
    a("s_mov_b64 exec, -1")
    a("s_mov_b32 s%d, 0xf0000000" % SU.S_DST)
    stamp(a, cfg, 2)
    a("s_add_u32 s17, s33, 0x20000")
    a("buffer_load_dword v%d, v%d, s[4:7], s17 offen %s" % (A_T + 1, V_L4, SC))
    t_kn = a.vt()
    def kvdma(g):
        a("s_add_u32 m0, s20, %d" % (g * 4096))
        a("s_add_u32 s17, s21, %d" % (g * 4096))
        a("buffer_load_dwordx4 v%d, s[4:7], s17 offen %s lds" % (V_L16, SC))
        a("s_add_u32 m0, s23, %d" % (g * 4096))
        a("s_add_u32 s17, s22, %d" % (g * 4096))
        a("buffer_load_dwordx4 v%d, s[4:7], s17 offen %s lds" % (V_L16, SC))

    G1 = 6
    for g in range(G1):
        kvdma(g)
        if g == 3:
            t_g3 = a.vt()
            a.wait_vm(t_kn)
            k2 = A_T + 1
            for d in ("row_shr:1", "row_shr:2", "row_shr:4", "row_shr:8"):
                a("v_max_f32_dpp v%d, v%d, v%d %s row_mask:0xf bank_mask:0xf" % (k2, k2, k2, d))
            a("v_max_f32_dpp v%d, v%d, v%d row_bcast:15 row_mask:0xa bank_mask:0xf" % (k2, k2, k2))
            a("v_max_f32_dpp v%d, v%d, v%d row_bcast:31 row_mask:0xc bank_mask:0xf" % (k2, k2, k2))
            a("v_readlane_b32 s18, v%d, 63" % k2)
            for t in range(2):
                n = A_T + 8 + t
                a("v_mul_f32 v%d, s18, v%d" % (n, n))
                a("v_sqrt_f32 v%d, v%d" % (n, n))
            for t in range(2):
                n = A_T + 8 + t
                a("v_mul_f32 v%d, %s, v%d" % (n, fl(-1.001), n))
            a("v_min_f32 v%d, v%d, v%d" % (A_T + 10, A_T + 8, A_T + 9))
            a("v_mov_b32 v%d, %s" % (A_T + 11, fl(-cfg.get("bound_t", BOUND_T))))
            a("v_cmp_nge_f32 vcc, v%d, v%d" % (A_T + 10, A_T + 11))
            a("s_lshl_b32 s19, s%d, 2" % S_W)
            a("s_add_u32 s19, s19, %d" % LDS_ATT_FLAG)
            a("v_mov_b32 v%d, s19" % (A_T + 12))
            a("s_cmp_lg_u64 vcc, 0")
            a("s_cselect_b32 s18, 1, 0")
            a("v_mov_b32 v%d, s18" % (A_T + 11))
            a("ds_write_b32 v%d, v%d" % (A_T + 12, A_T + 11))
            for t in range(2):
                for r in range(16):
                    a("v_mov_b32 v%d, v%d" % (A_C[t] + r, A_T + 8 + t))
    stamp(a, cfg, 3)
    a.wait_vm(t_g3)
    a("s_waitcnt lgkmcnt(0)")
    a("s_barrier")
    stamp(a, cfg, 4)
    a("v_mov_b32 v%d, %d" % (A_T + 12, LDS_ATT_FLAG))
    a("ds_read_b128 v[%d:%d], v%d" % (A_T + 4, A_T + 7, A_T + 12))
    a("ds_read_b128 v[%d:%d], v%d" % (A_KF[0], A_KF[0] + 3, V_L16))
    a("ds_read_b128 v[%d:%d], v%d" % (A_VF[0][0], A_VF[0][0] + 3, A_VV))
    a("ds_read_b128 v[%d:%d], v%d offset:512" % (A_VF[0][1], A_VF[0][1] + 3, A_VV))
    a("ds_read_b128 v[%d:%d], v%d offset:1024" % (A_KF[1], A_KF[1] + 3, V_L16))
    a("s_waitcnt lgkmcnt(4)")
    a("v_or_b32 v%d, v%d, v%d" % (A_T + 4, A_T + 4, A_T + 5))
    a("v_or3_b32 v%d, v%d, v%d, v%d" % (A_T + 4, A_T + 4, A_T + 6, A_T + 7))
    a("v_readfirstlane_b32 s18, v%d" % (A_T + 4))
    a("s_cmp_eq_u32 s18, 0")
    a("s_cbranch_scc1 L_att_fast")
    keep = a.vm_issued
    for g in range(G1, 16):
        kvdma(g)
    a.vm_issued = keep
    a("s_waitcnt vmcnt(0)")
    a("s_barrier")
    a("v_mov_b32 v%d, 0xff800000" % (A_T + 8))
    a("v_mov_b32 v%d, 0xff800000" % (A_T + 9))
    a("v_mov_b32 v%d, v%d" % (A_T + 12, V_L16))
    a("s_mov_b32 s19, 64")
    a("L_att_pre:")
    a("ds_read_b128 v[%d:%d], v%d" % (A_P[0], A_P[0] + 3, A_T + 12))
    a("v_add_u32 v%d, 1024, v%d" % (A_T + 12, A_T + 12))
    a("s_waitcnt lgkmcnt(0)")
    for t in range(2):
        mf(a, A_S[t], vr(A_P[0], 4), vr(Q[t], 4), "0")
    for t in range(2):
        for r in range(0, 16, 2):
            a("v_max3_f32 v%d, v%d, v%d, v%d" % (A_T + 8 + t, A_S[t] + r, A_S[t] + r + 1, A_T + 8 + t))
    a("s_sub_u32 s19, s19, 1")
    a("s_cmp_lg_u32 s19, 0")
    a("s_cbranch_scc1 L_att_pre")
    for t in range(2):
        n = A_T + 8 + t
        a("v_mov_b32 v%d, v%d" % (A_T + 10, n))
        a("v_permlane32_swap_b32 v%d, v%d" % (n, A_T + 10))
        a("v_max_f32 v%d, v%d, v%d" % (n, n, A_T + 10))
        a("v_sub_f32 v%d, 0, v%d" % (n, n))
        for r in range(16):
            a("v_mov_b32 v%d, v%d" % (A_C[t] + r, n))
    a("L_att_fast:")
    a("s_waitcnt lgkmcnt(0)")

    def m4(d, x, y, c):
        mf(a, d, vr(x, 4), vr(y, 4), vr(c, 16))

    def ex(r):
        a("v_exp_f32 v%d, v%d" % (r, r))

    def cv(d, s):
        a("v_cvt_pk_bf16_f32 v%d, v%d, v%d" % (d, s, s + 1))

    m4(A_S[0], A_KF[0], Q[0], A_C[0])
    a("s_nop 7")

    def lines_of(fn):
        b = Asm()
        fn(b)
        return [l.strip() for l in b.lines]

    def groups(lines):
        out, cur = [], []
        for x in lines:
            cur.append(x)
            if x.startswith("buffer_"):
                out.append(cur)
                cur = []
        assert not cur
        return out

    def kvl(g):
        return ["s_add_u32 m0, s20, %d" % (g * 4096), "s_add_u32 s17, s21, %d" % (g * 4096),
                "buffer_load_dwordx4 v%d, s[4:7], s17 offen %s lds" % (V_L16, SC),
                "s_add_u32 m0, s23, %d" % (g * 4096), "s_add_u32 s17, s22, %d" % (g * 4096),
                "buffer_load_dwordx4 v%d, s[4:7], s17 offen %s lds" % (V_L16, SC)]

    q_kv = []
    for g in range(G1, 16):
        q_kv += [(x, g) for x in groups(kvl(g))]
    q_w = []
    for i in range(8):
        q_w += groups(lines_of(lambda b: blk(b, ar(4 * i, 4), SA0, i)))
        q_w += groups(lines_of(lambda b: blk(b, ar(32 + 4 * i, 4), SA1, i)))
    for idx in range(46):
        q_w += groups(lines_of(lambda b: w2load(b, idx, SW0, SW1)))
    q_t = [["s_add_u32 s17, s49, %d" % (q * 4096), "buffer_load_dword v%d, v%d, s[4:7], s17 offen sc1" % (A_T + 3, A_T + 2)] for q in range(5)]
    if not cfg.get("touch13", 1):
        q_t = []
    q_d = groups(dma_lines(0) + dma_lines(1))
    a("s_mul_i32 s49, s%d, %d" % (S_M, 7 * 32768))
    a("s_and_b32 s18, s%d, 1" % S_RG)
    a("s_mul_i32 s18, s18, %d" % 81920)
    a("s_add_u32 s49, s49, s18")
    a("s_mul_i32 s18, s%d, %d" % (S_W, 20480))
    a("s_add_u32 s49, s49, s18")
    a("s_add_u32 s49, s49, 0x%x" % (OFF_W13 + 65536))
    a("v_lshlrev_b32 v%d, 6, v%d" % (A_T + 2, V_LANE))
    tg = {}
    U_PROBE, U_CHK = cfg.get("u_probe", 21), cfg.get("u_chk", 24)
    PB = A_T + 12
    def slot(u):
        grp, g = None, None
        if q_kv:
            grp, g = q_kv.pop(0)
        elif u == U_PROBE:
            a("buffer_load_dwordx4 v[%d:%d], v%d, s[4:7], s59 offen %s" % (PB, PB + 3, V_L16, SC))
            tg["probe"] = a.vt()
        elif u == U_CHK:
            a.wait_vm(tg["probe"])
            a("L_att_wchk:")
            for r in range(4):
                a("v_and_b32 v%d, -15, v%d" % (PB + r, PB + r))
            a("v_cmp_ne_u32 vcc, v%d, v%d" % (V_TAG, PB))
            for r in range(1, 4):
                a("v_cmp_ne_u32 s[18:19], v%d, v%d" % (V_TAG, PB + r))
                a("s_or_b64 vcc, vcc, s[18:19]")
            a("s_cmp_eq_u64 vcc, 0")
            a("s_cbranch_scc1 L_att_wok")
            if cfg.get("spin_limit"):
                a("s_sub_u32 s46, s46, 1")
                a("s_cbranch_scc1 L_att_wok")
            keep = a.vm_issued
            a("s_sleep 4")
            a("buffer_load_dwordx4 v[%d:%d], v%d, s[4:7], s59 offen %s" % (PB, PB + 3, V_L16, SC))
            a("s_waitcnt vmcnt(0)")
            a("s_branch L_att_wchk")
            a.vm_issued = keep
            a("L_att_wok:")
            a("buffer_load_dword v%d, v%d, s[4:7], s59 offen %s" % (PB, A_T + 18, SC))
            tg["grp"] = a.vt()
        elif u == U_CHK + 8:
            a.wait_vm(tg["grp"])
            a("v_cmp_ne_u32 vcc, v%d, v%d" % (A_T + 17, PB))
            a("s_cmp_eq_u64 vcc, 0")
            a("s_cselect_b32 s%d, %d, 0" % (S_LOC, 0 if cfg.get("force_remote") else 1))
        elif u < U_CHK:
            pass
        elif u >= 68 and q_d:
            grp = q_d.pop(0)
        elif q_t and u % 8 == 1:
            grp = q_t.pop(0)
        elif q_w:
            grp = q_w.pop(0)
        elif q_t:
            grp = q_t.pop(0)
        if grp:
            for x in grp:
                a(x)
            if g is not None:
                tg[g] = a.vt()

    NU = 128
    BAR = {16: 9, 36: 15}
    for u in range(NU):
        j, t = u >> 1, u & 1
        nj, nt = (u + 1) >> 1, (u + 1) & 1
        pj, pt = (u - 1) >> 1, (u - 1) & 1
        jj = j % UNR
        sb, nsb = A_S[u % 2], A_S[(u + 1) % 2]
        plo, phi = A_P[(u % 2) * 2], A_P[(u % 2) * 2 + 1]
        pphi = A_P[((u - 1) % 2) * 2 + 1]
        if u + 1 < NU:
            m4(nsb, A_KF[nj % 2], Q[nt], A_C[nt])
        if t == 0 and j + 2 < 64:
            a("ds_read_b128 v[%d:%d], v%d offset:%d" % (A_KF[j % 2], A_KF[j % 2] + 3, V_L16, (j + 2) * 1024))
        if t == 1 and u > U_CHK and cfg.get('slot3', 0):
            slot(u)
        for r in range(0, 4):
            ex(sb + r)
        if u > 0:
            m4(A_O[pt], A_VF[pj % 2][1], pphi, A_O[pt])
        if t == 0 and j + 1 < 64:
            off = (jj + 1) * 1024
            a("ds_read_b128 v[%d:%d], v%d offset:%d" % (A_VF[(j + 1) % 2][0], A_VF[(j + 1) % 2][0] + 3, A_VV, off))
            a("ds_read_b128 v[%d:%d], v%d offset:%d" % (A_VF[(j + 1) % 2][1], A_VF[(j + 1) % 2][1] + 3, A_VV, off + 512))
        if t == 1:
            slot(u)
        for r in range(4, 9):
            ex(sb + r)
        for r in range(0, 4):
            cv(plo + r, sb + 2 * r)
        for r in range(9, 12):
            ex(sb + r)
        m4(A_O[t], A_VF[j % 2][0], plo, A_O[t]) if u > 1 else mf(a, A_O[t], vr(A_VF[j % 2][0], 4), vr(plo, 4), "0")
        if t == 1:
            a("s_waitcnt lgkmcnt(0)")
            if (j + 3) in BAR:
                g = BAR[j + 3]
                if g is not None:
                    a.wait_vm(tg[g])
                a("s_barrier")
                if j + 3 == 16:
                    stamp(a, cfg, 6)
        else:
            slot(u)
        for r in range(12, 16):
            ex(sb + r)
        if t == 1 and jj == UNR - 1:
            a("v_add_u32 v%d, v%d, v%d" % (A_VV, A_VINC, A_VV))
        for r in range(4, 8):
            cv(phi + r - 4, sb + 2 * r)
    assert not (q_kv or q_w or q_t or q_d), (len(q_kv), len(q_w), len(q_t), len(q_d))
    units = [(63, 1)]
    U = 128
    a("L_att_done:")
    DUAL[0] = bool(cfg.get("dual", 1))
    stamp(a, cfg, 7)
    lj, lt = units[-1]
    m4(A_O[lt], A_VF[lj % 2][1], A_P[((U - 1) % 2) * 2 + 1], A_O[lt])
    layer_off(a, 34, OFF_O, X_STRIDE)
    a("s_lshl_b32 s18, s%d, 15" % S_RT)
    a("s_add_u32 s34, s34, s18")
    a("s_lshl_b32 s18, s%d, 11" % S_NT)
    a("s_add_u32 s34, s34, s18")
    for t in range(2):
        a("v_rcp_f32 v%d, v%d" % (A_T, A_O[t] + 8))
        for r in range(8):
            a("v_mul_f32 v%d, v%d, v%d" % (A_O[t] + r, A_T, A_O[t] + r))
        pack8(a, A_P[t], A_O[t])
        st4(a, A_P[t], V_L16, 34, t * 1024)
    flag_addr(a, S_FO, FL_O, S_RB, 7, S_HQ)
    publish(a, S_FO, [(34, 2048, 0)])
    stamp(a, cfg, 8)


def phase_wo(a, cfg):
    SB0, SB1, SX = 26, 27, 28
    a("s_barrier")
    if not cfg.get("pf_att", 1):
        for i in range(8):
            blk(a, ar(4 * i, 4), 24, i)
            blk(a, ar(32 + 4 * i, 4), 25, i)
    b = Asm()
    dma13(b, 2)
    b("s_mul_i32 s29, s%d, %d" % (S_M, 7 * 1024))
    b("s_lshl_b32 s17, s%d, 11" % S_W)
    b("s_add_u32 s29, s29, s17")
    b("s_add_u32 m0, s17, %d" % LDS_CS)
    b("s_add_u32 s29, s29, 0x%x" % OFF_CSX)
    b("buffer_load_dwordx4 v%d, s[4:7], s29 offen sc1 lds" % V_L16)
    b("buffer_load_dwordx4 v%d, s[4:7], s29 offen offset:1024 sc1 lds" % V_L16)
    wside = [l.strip() for l in b.lines]
    layer_off(a, SX, OFF_O, X_STRIDE)
    b_addr(a, SB0, SB1, SX, 32, 8)
    reduce_addr(a, LDS_R1)
    out_addr(a, 1)
    flag_addr(a, 38, FL_O, S_RB, 7)
    a("s_lshl_b32 s17, s%d, 5" % S_W)
    a("s_add_u32 s38, s38, s17")
    a("v_and_b32 v%d, 28, v%d" % (G_T + 5, V_L4))
    flag_addr(a, S_FX1, FL_X1, S_RG, 8, S_M)
    stamp(a, cfg, 8)
    poll(a, cfg, 38, G_T + 5, G_T + 4)
    stamp(a, cfg, 9)
    gemm64_core(a, cfg, 8, lambda i: ar(4 * i, 4), lambda i: ar(32 + 4 * i, 4), lambda e: ar(64 + 4 * e, 4),
                lambda e: blk(a, ar(64 + 4 * e, 4), SB1 if e < 8 else SB0, e % 8, SC), 16, ramp=cfg.get("ramp1", 8), resid=True,
                side=wside, side_from=cfg.get("wo_side", 5), side_n=1)
    res_epilogue(a, cfg, 1, None)
    stamp(a, cfg, 10)
    publish(a, S_FX1, [(34, 2048, 0), (35, 256, 0)])
    stamp(a, cfg, 11)


F_ACC = [24, 40, 56, 72]
NACC = 4
F_W = 88
F_CS = 120
F_H = 128
F_ST = 136
F_T = 168
F_LA = [184, 185]
F_NMU, F_C1, F_RS2, F_CSA, F_LG = 186, 187, 188, 189, 198
F_TA = 172


def phase_ffn1(a, cfg):
    SX, SH = 24, 27
    G3 = cfg.get("g0", 2) == 3
    if G3:
        a("s_mul_i32 s17, s%d, 6144" % S_W)
        a("s_sub_u32 s29, s%d, s%d" % (S_W13, S_WL))
        a("s_add_u32 s29, s29, s17")
        a("s_add_u32 m0, s17, %d" % LDS_E)
        a("s_add_u32 s29, s29, %d" % (4 * 32768))
        for q in range(4):
            a("buffer_load_dwordx4 v%d, s[4:7], s29 offen offset:%d sc1 lds" % (V_L16, q * 1024))
        a("s_add_u32 m0, s17, %d" % (LDS_E + 4096))
        a("s_add_u32 s29, s29, 4096")
        for q in range(2):
            a("buffer_load_dwordx4 v%d, s[4:7], s29 offen offset:%d sc1 lds" % (V_L16, q * 1024))
        a("s_lshl_b32 s28, s%d, 11" % S_W)
        a("s_sub_u32 s33, s%d, s%d" % (S_W13, S_WL))
        a("s_add_u32 s33, s33, s28")
        a("s_add_u32 s33, s33, %d" % (4 * 32768 + 24 * 1024))
    a("s_lshl_b32 s30, s%d, 2" % S_RG)
    a("s_add_u32 s30, s30, s%d" % S_W)
    layer_off(a, SX, OFF_X, X_STRIDE, 2, 1)
    a("s_lshl_b32 s17, s30, 15")
    a("s_add_u32 s%d, s%d, s17" % (SX, SX))
    a("s_add_u32 s25, s%d, %d" % (SX, 28 * 1024))
    layer_off(a, 26, OFF_STAT, STAT_STRIDE, 2, 1)
    a("s_lshl_b32 s18, s30, 12")
    a("s_add_u32 s26, s26, s18")
    layer_off(a, SH, OFF_H, H_STRIDE)
    a("s_mul_i32 s17, s30, %d" % (112 * 1024))
    a("s_add_u32 s%d, s%d, s17" % (SH, SH))
    a("s_mul_i32 s17, s%d, %d" % (S_M, 7 * 1024))
    a("s_add_u32 s%d, s%d, s17" % (SH, SH))
    a("v_mov_b32 v%d, v%d" % (F_LA[0], V_L16))
    a("v_add_u32 v%d, 65536, v%d" % (F_LA[1], V_L16))
    a("v_add_u32 v%d, %d, v%d" % (F_CSA, LDS_E, V_L16))
    a("v_and_b32 v%d, 0x380, v%d" % (F_TA, V_L128))
    a("v_add_u32 v%d, 4096, v%d" % (F_TA + 1, F_TA))
    a_addr(a, 53, 54, OFF_W2, 112, 28)
    flag_addr(a, 38, FL_X1, S_RG, 8)
    a("s_lshr_b32 s17, s%d, 1" % S_W)
    a("s_lshl_b32 s17, s17, 7")
    a("s_add_u32 s38, s38, s17")
    a("s_and_b32 s17, s%d, 1" % S_W)
    a("s_lshl_b32 s17, s17, 2")
    a("s_add_u32 s38, s38, s17")
    lane_pat(a, F_T + 2, 15, 0, 3)
    flag_addr(a, S_FH, FL_H, S_RG, 9, S_M, per_layer=0x2000)
    stamp(a, cfg, 1)
    a("s_barrier")
    poll(a, cfg, 38, F_T + 2, F_T)
    stamp(a, cfg, 2)
    tX = {}

    def xload(i):
        if i < 28:
            blk(a, ar(4 * i, 4), SX, i, SC)
        else:
            blk(a, ar(4 * i, 4), 25, i - 28, SC)
        tX[i] = a.vt()

    XW = cfg.get("xwin", 14)
    for i in range(XW):
        xload(i)

    def wread(tile, ks, ring):
        slot = SLOT13[tile]
        if ks == 32:
            a("ds_read_b128 v[%d:%d], v%d offset:%d" % (F_W + 4 * ring, F_W + 4 * ring + 3, F_CSA, LDS_CS - LDS_E + tile * 1024))
            return
        if G3 and tile == 4:
            a("ds_read_b128 v[%d:%d], v%d offset:%d" % (F_W + 4 * ring, F_W + 4 * ring + 3, F_CSA if ks < 24 else F_LA[0], (ks % 24) * 1024))
            return
        a("ds_read_b128 v[%d:%d], v%d offset:%d" % (F_W + 4 * ring, F_W + 4 * ring + 3, F_LA[slot >> 1], (slot & 1) * 32768 + ks * 1024))

    def epi(tile):
        acc, cs = F_ACC[tile % NACC], F_CS
        hp = F_H + 4 * (tile % 2)
        out = []
        for e in range(8):
            out.append("v_fma_f32 v%d, v%d, v%d, v%d" % (F_T + 8 + e, F_C1, acc + e, F_LG))
        for e in range(8):
            out.append("v_exp_f32 v%d, v%d" % (F_T + 8 + e, F_T + 8 + e))
            out.append("v_mul_f32 v%d, v%d, v%d" % (acc + e, acc + e, acc + 8 + e))
            if e:
                out.append("v_add_f32 v%d, v%d, v%d" % (F_T + 7 + e, F_RS2, F_T + 7 + e))
        out.append("v_add_f32 v%d, v%d, v%d" % (F_T + 15, F_RS2, F_T + 15))
        for e in range(8):
            out.append("v_rcp_f32 v%d, v%d" % (F_T + 8 + e, F_T + 8 + e))
            if e:
                out.append("v_mul_f32 v%d, v%d, v%d" % (acc + e - 1, F_T + 7 + e, acc + e - 1))
        out.append("v_mul_f32 v%d, v%d, v%d" % (acc + 7, F_T + 15, acc + 7))
        for i in range(4):
            out.append("v_cvt_pk_bf16_f32 v%d, v%d, v%d" % (hp + i, acc + 2 * i, acc + 2 * i + 1))
        out.append("buffer_store_dwordx4 v[%d:%d], v%d, s[4:7], s%d offen offset:%d" % (hp, hp + 3, V_OFF[tile // 4], SH, (tile % 4) * 1024))
        if DBL[0]:
            out.append("buffer_store_dwordx4 v[%d:%d], v%d, s[4:7], s%d offen offset:%d" % (hp, hp + 3, V_OFF[tile // 4], SH, (tile % 4) * 1024))
        return out

    G0 = cfg.get("g0", 2)
    steps = []
    for ks in range(33):
        for tl in range(G0):
            steps.append((tl, ks))
    for tile in range(G0, 7):
        for ks in range(33):
            steps.append((tile, ks))
    N = len(steps)
    PF = cfg.get('pf', 6)
    lt = {}
    first_of, last_of = {}, {}
    for n, (tile, ks) in enumerate(steps):
        first_of.setdefault(tile, n)
        last_of[tile] = n
    dma_q = [(3, x) for x in dma_lines(3)]
    fence_t = {}

    def do_read(n):
        tile, ks = steps[n]
        if G3:
            ft = 5 if (tile, ks) == (4, 24) else (6 if (tile, ks) == (6, 0) else None)
            if ft:
                assert ft in fence_t and not any(q[0] <= ft for q in dma_q), ft
                a.wait_vm(fence_t[ft])
                a("s_barrier")
        elif n == first_of[tile] and tile >= 3:
            assert tile in fence_t and not any(q[0] == tile for q in dma_q), tile
            a.wait_vm(fence_t[tile])
            a("s_barrier")
        wread(tile, ks, n % 8)
        lt[n] = a.lt()

    cs_t = 0
    for n in range(PF):
        do_read(n)
    pending = []
    nx = XW
    nst, st_t, st_n, early_done, rb_done = 0, {}, {}, False, False
    for n, (tile, ks) in enumerate(steps):
        if tile >= G0 and ks == 0:
            stamp(a, cfg, 1 + tile)
        if tile == 0 and ks < 32:
            a.wait_vm(tX[ks])
        if n % 2 == 0:
            a.wait_lg(lt[min(n + 1, N - 1)])
            lg_done = lt[min(n + 1, N - 1)]
        acc = F_ACC[tile % NACC]
        if ks == 0 and tile >= NACC:
            assert nst > tile - NACC, (tile, nst)
        mf(a, acc, vr(F_W + 4 * (n % 8), 4), ar(4 * ks, 4) if ks < 32 else vr(F_CS, 4), "0" if ks == 0 else vr(acc, 16))
        if (tile == 0 or (tile < G0 and cfg.get('xfast', 0))) and nx < 32:
            xload(nx)
            nx += 1
            if nx == 32:
                load_stats(a, F_ST, 26, F_T, SC)
                t_st = a.vt()
        if n + PF < N:
            do_read(n + PF)
        if n == last_of[G0 - 1] + 2:
            a("s_barrier")
            if G3:
                dma_q += [(4, "s_mov_b32 m0, s28"), (4, "s_nop 0"),
                          (4, "buffer_load_dwordx4 v%d, s[4:7], s33 offen sc1 lds" % V_L16),
                          (4, "buffer_load_dwordx4 v%d, s[4:7], s33 offen offset:1024 sc1 lds" % V_L16)]
                for tl in (5, 6):
                    dma_q += [(tl, x) for x in dma_lines(tl)]
                b = Asm()
                for idx in range(46, 56):
                    w2load(b, idx, 53, 54)
                dma_q += [(99, l.strip()) for l in b.lines]
            else:
                for tl in range(4, 4 + G0):
                    dma_q += [(tl, x) for x in dma_lines(tl)]
        for old in range(G0, 3):
            if n == last_of[old] + 2:
                a("s_barrier")
                dma_q += [(old + 4, x) for x in dma_lines(old + 4)]
                if old == 2:
                    b = Asm()
                    for idx in range(46, 56):
                        w2load(b, idx, 53, 54)
                    dma_q += [(99, l.strip()) for l in b.lines]
        dcost = 0
        if dma_q and ((n >= cfg.get("d3_from", 38) and n % cfg.get("d3_every", 3) == 0) if tile < G0 else n % cfg.get("dma_every", 3) == 0):
            while dma_q:
                tl, x = dma_q.pop(0)
                a(x)
                dcost += cfg.get("dma_cost", 8)
                if x.startswith("buffer_load"):
                    fence_t[tl] = a.vt()
                    break
        if n == last_of[G0 - 1] - G0 - 2:
            a.wait_vm(t_st)
            finish_stats(a, F_ST, F_NMU, F_RS2)
            a("v_mul_f32 v%d, %s, v%d" % (F_C1, fl(-LOG2E), F_RS2))
            a("v_mov_b32 v%d, v%d" % (F_RS2, F_ST + 1))
            a("v_log_f32 v%d, v%d" % (F_LG, F_ST + 1))
            bextra(a, F_NMU, F_CS)
        for tl in range(0, 6):
            if n == max(last_of[tl], last_of[G0 - 1]) + 3:
                pending += epi(tl)
        if nst >= EARLY and not rb_done and n >= st_n[EARLY - 1] + 1:
            if cfg.get("h_wt", 6) < EARLY:
                readback(a, [(SH, 1024 * EARLY, 0)])
                a("s_mov_b64 exec, -1")
                dcost += 24
            rb_done = n
        for tl in range(cfg.get("h_touch", 0)):
            if tl in st_n and n == st_n[tl] + cfg.get("touch_lag", 24):
                a("buffer_load_dword v%d, v%d, s[4:7], s%d offen offset:%d sc1" % (V_P2, F_TA + (tl // 4), SH, (tl % 4) * 1024))
                a.vm_issued -= 0
                dcost += 8
        cost = dcost
        lim = cfg.get("epi_cost", 16)
        while pending:
            x = pending[0]
            if x == "CSWAIT":
                pending.pop(0)
                if cs_t > lg_done:
                    a.wait_lg(cs_t)
                    cost += 4
                continue
            cx = 8 if x.split()[0] in TRANS else (8 if x.startswith("buffer_") else 4)
            if cost + cx > lim:
                break
            pending.pop(0)
            if x.startswith("buffer_store") and nst == EARLY + 1:
                assert rb_done
                assert not dma_q
                a("s_waitcnt vmcnt(0)")
                a("s_mov_b64 exec, 1")
                emit_l(a, "buffer_store_dword v%d, v%d, s[4:7], s%d offen offset:%d" % (V_TAG, V_ZERO, S_FH, 0x100))
                a("s_mov_b64 exec, -1")
                early_done = True
            if x.startswith("buffer_store") and nst < cfg.get("h_wt", 6):
                a(x + " sc1")
            elif x.startswith("buffer_store"):
                emit_l(a, x)
            else:
                a(x)
            cost += cx
            if x.startswith("ds_read"):
                cs_t = a.lt()
            if x.startswith("buffer_store"):
                nst += 1
                st_t[nst - 1] = a.vt()
                st_n[nst - 1] = n
    assert early_done
    assert not dma_q
    stamp(a, cfg, 8)
    for x in pending + epi(6):
        if x == "CSWAIT":
            a.wait_lg(cs_t)
            continue
        if x.startswith("buffer_store"):
            emit_l(a, x)
        else:
            a(x)
    stamp(a, cfg, 9)
    h0 = max(EARLY, cfg.get("h_wt", 6))
    assert nst >= cfg.get("h_wt", 6)
    a("s_add_u32 s17, s%d, %d" % (SH, h0 * 1024))
    publish(a, S_FH, [(17, 1024 * (7 - h0), 0)])
    stamp(a, cfg, 10)


def phase_ffn2(a, cfg):
    SB0, SB1, SX = 26, 27, 28
    SW0, SW1 = 24, 25
    side = []
    if cfg.get("touchq", 0):
        a("s_lshl_b32 s49, s%d, 16" % S_HQ)
        a("s_and_b32 s18, s%d, 3" % S_RB)
        a("s_lshl_b32 s18, s18, 14")
        a("s_add_u32 s49, s49, s18")
        a("s_lshl_b32 s18, s%d, 12" % S_W)
        a("s_add_u32 s49, s49, s18")
        a("s_add_u32 s49, s49, 0x%x" % OFF_WQ)
        a("s_cmp_eq_u32 s%d, 1" % S_LAYER)
        a("s_cselect_b32 s49, 0xf0000000, s49")
        a("v_lshlrev_b32 v%d, 6, v%d" % (G_T + 2, V_LANE))
        side.append("buffer_load_dword v%d, v%d, s[4:7], s49 offen" % (G_T + 3, G_T + 2))
    layer_off(a, SX, OFF_H, H_STRIDE)
    b_addr(a, SB0, SB1, SX, 112, 28)
    reduce_addr(a, LDS_R1)
    out_addr(a, 2)
    flag_addr(a, 38, FL_H, S_RG, 9, per_layer=0x2000)
    a("s_lshl_b32 s17, s%d, 6" % S_W)
    a("s_add_u32 s38, s38, s17")
    a("s_and_b32 s17, s%d, 1" % S_RB)
    a("s_lshl_b32 s17, s17, 3")
    a("s_add_u32 s38, s38, s17")
    lane_pat(a, G_T + 6, 7, 0, 2)
    xin_flag_addr(a, 39, True, 1)
    stamp(a, cfg, 8)
    poll(a, cfg, 38, G_T + 6, G_T + 4, imm=0x100)
    stamp(a, cfg, 9)
    wb = cfg.get("wbl2", 0)
    R = 32

    def hreg(e):
        return ar(4 * (e % R), 4)

    early = [7 * mm + tl for tl in range(EARLY) for mm in range(4)]
    late = [7 * mm + tl for tl in range(EARLY, 7) for mm in range(4)]
    order = [(1, i) for i in early] + [(0, i) for i in early] + [(1, i) for i in late] + [(0, i) for i in late]
    tp = {}

    def probe():
        a("buffer_load_dword v%d, v%d, s[4:7], s38 offen %s" % (G_T + 5, G_T + 6, SC))
        tp[0] = a.vt()

    def check():
        a.wait_vm(tp[0])
        a("v_cmp_ne_u32 vcc, v%d, v%d" % (V_TAG, G_T + 5))
        a("s_cbranch_vccz L_ffn2_go")
        keep = a.vm_issued
        poll(a, cfg, 38, G_T + 6, G_T + 4)
        a.vm_issued = keep
        a("L_ffn2_go:")
        if wb:
            a("s_lshr_b32 s17, s2, %d" % (3 if wb == 1 else 6))
            a("s_or_b32 s17, s17, s%d" % S_W)
            a("s_xor_b32 s18, s%d, 1" % S_LAYER)
            a("s_or_b32 s17, s17, s18")
            a("s_cmp_lg_u32 s17, 0")
            a("s_cbranch_scc1 L_ffn2_nowb")
            a("buffer_wbl2 sc1")
            a("L_ffn2_nowb:")
        stamp(a, cfg, 3)

    pp = cfg.get("probe_at", 16)
    gemm64_core(a, cfg, 28, lambda i: w2reg(0, i), lambda i: w2reg(1, i), hreg,
                lambda e: blk(a, hreg(e), SB1 if order[e][0] else SB0, order[e][1], SC), cfg.get('win2', 18), order=order,
                gate=(2 * len(early), probe, check, pp, pp), side=side, side_from=cfg.get('w2_side', 6), side_n=1,
                side2=wq_lines(), side2_from=cfg.get('wq_from', 32), ramp=cfg.get('ramp2', 10), resid=True)
    res_epilogue(a, cfg, 2, "L_final")
    stamp(a, cfg, 10)
    publish(a, 39, [(34, 2048, 0), (35, 256, 0)])
    stamp(a, cfg, 11)


def final_store(a):
    a("v_permlane32_swap_b32 v%d, v%d" % (V_RES, V_RES + 2))
    a("v_permlane32_swap_b32 v%d, v%d" % (V_RES + 1, V_RES + 3))
    a("v_permlane32_swap_b32 v%d, v%d" % (V_RES + 4, V_RES + 6))
    a("v_permlane32_swap_b32 v%d, v%d" % (V_RES + 5, V_RES + 7))
    a("s_lshl_b32 s17, s%d, 15" % S_RT)
    a("s_lshl_b32 s18, s%d, 6" % S_NT)
    a("s_add_u32 s17, s17, s18")
    a("v_lshlrev_b32 v%d, 10, v%d" % (G_T + 2, V_R31))
    a("v_lshl_add_u32 v%d, v%d, 4, v%d" % (G_T + 2, V_H, G_T + 2))
    a("buffer_store_dwordx4 v[%d:%d], v%d, s[8:11], s17 offen" % (V_RES, V_RES + 3, G_T + 2))
    a("buffer_store_dwordx4 v[%d:%d], v%d, s[8:11], s17 offen offset:32" % (V_RES + 4, V_RES + 7, G_T + 2))


def st_begin(a, cfg):
    kern.stamp_init(a, cfg)


def st_end(a, cfg, k):
    if not cfg.get("stamps"):
        return
    stamp(a, cfg, NSTAMP - 1)
    a("s_memrealtime s[62:63]")
    a("s_waitcnt lgkmcnt(0)")
    a("s_mov_b32 s79, s62")
    a("s_mul_i32 s60, s3, 5\ns_add_u32 s60, s60, %d" % k)
    a("s_lshl_b32 s60, s60, 16")
    a("s_lshl_b32 s61, s2, 8")
    a("s_add_u32 s60, s60, s61")
    a("s_lshl_b32 s61, s12, 6")
    a("s_add_u32 s60, s60, s61")
    a("s_add_u32 s60, s60, 0x%x" % kern.OFF_STAMP)
    for i in range(16):
        a("v_writelane_b32 v199, s%d, %d" % (64 + i, i))
    a("s_mov_b32 exec_lo, 0xffff\ns_mov_b32 exec_hi, 0x0")
    a("buffer_store_dword v199, v%d, s[4:7], s60 offen" % V_L4)
    a("s_mov_b64 exec, -1")


def dbgt(a, cfg, k, last=False):
    if not cfg.get("dbgtime"):
        return
    L = a.newlabel("L_dt")
    a("s_cmp_lg_u32 s2, %d" % (cfg["dbgtime"] - 1))
    a("s_cbranch_scc1 %s" % L)
    a("s_memrealtime s[64:65]")
    a("s_memtime s[66:67]")
    a("s_mov_b32 s68, s98\ns_mov_b32 s69, s99\ns_mov_b32 s70, 256\ns_mov_b32 s71, 0x00020000")
    a("s_mul_i32 s72, s3, 20")
    a("s_waitcnt lgkmcnt(0)")
    a("s_sub_u32 s64, s64, s60")
    a("s_sub_u32 s66, s66, s62")
    a("v_mov_b32 v199, s64")
    a("buffer_store_dword v199, v%d, s[68:71], s72 offen offset:%d" % (V_ZERO, 4 + 4 * k))
    if last:
        a("v_mov_b32 v198, s66")
        a("buffer_store_dword v198, v%d, s[68:71], 0 offen offset:%d" % (V_ZERO, 4 * 13))
    a(L + ":")


KNAME = kern.NAME + "_kernel"


def build(cfg):
    rep = []
    DBL[0] = cfg.get("dbl", 0)
    TOUCH[0] = cfg.get("ptouch", 0)
    COMPACT[0] = cfg.get("compact", 1)
    DUAL[0] = False
    LSC[0] = cfg.get("lsc", "")
    RBW[0] = cfg.get("rbw", 0)
    global OFF_WKV
    if COMPACT[0]:
        OFF_WKV = SU.OFF_WKV = C_WKV
    a = Asm()
    a("s_load_dwordx16 s[80:95], s[0:1], 0")
    a("s_load_dwordx2 s[96:97], s[0:1], 64")
    a("s_load_dwordx2 s[98:99], s[0:1], 80")
    kern.common_prologue(a, True)
    a("v_mov_b32 v%d, 0" % V_ZERO)
    a("v_mov_b32 v199, 0")
    a("v_lshlrev_b32 v%d, 7, v%d" % (V_L128, V_LANE))
    a("v_lshlrev_b32 v%d, 2, v%d" % (V_L4, V_LANE))
    a("s_lshr_b32 s17, s%d, 1" % S_W)
    a("s_and_b32 s18, s%d, 1" % S_W)
    a("s_lshl_b32 s%d, s%d, 1" % (S_NT, S_HQ))
    a("s_add_u32 s%d, s%d, s17" % (S_NT, S_NT))
    a("s_lshl_b32 s%d, s%d, 1" % (S_RT, S_RB))
    a("s_add_u32 s%d, s%d, s18" % (S_RT, S_RT))
    a("s_mov_b32 s%d, 0" % S_LAYER)
    if cfg.get("spin_limit"):
        a("s_mov_b32 s46, %d" % cfg["spin_limit"])
    if cfg.get("dbgtime"):
        a("s_memrealtime s[60:61]")
        a("s_memtime s[62:63]")
        a("s_waitcnt lgkmcnt(0)")
    st_begin(a, cfg)
    SU.startup(a, cfg, sys.modules[__name__])
    dbgt(a, cfg, 0)
    a_addr(a, S_Q0, S_Q1, OFF_WQ, 32, 8)
    a("s_lshl_b32 s%d, s%d, 13" % (S_KVW, S_W))
    a("s_add_u32 s%d, s%d, 0x%x" % (S_KVW, S_KVW, OFF_WKV))
    a("s_and_b32 s17, s2, 7")
    a("s_lshl_b32 s17, s17, 15")
    a("s_add_u32 s%d, s%d, s17" % (S_KVW, S_KVW))
    a("s_cmp_ge_u32 s%d, 4" % S_HQ)
    a("s_cselect_b32 s%d, s%d, s%d" % (S_KVW, S_Q0, S_KVW))
    st_end(a, cfg, 0)
    a("L_layer:")
    for k, ph in enumerate((phase_qkv, phase_att, phase_wo, phase_ffn1, phase_ffn2)):
        st_begin(a, cfg)
        ph(a, cfg)
        st_end(a, cfg, k + 1)
        dbgt(a, cfg, k + 1)
    a("s_mov_b32 s%d, 1" % S_LAYER)
    a("s_branch L_layer")
    a("L_final:")
    final_store(a)
    st_end(a, cfg, 5)
    dbgt(a, cfg, 5, True)
    a("L_exit:")
    a("s_endpgm")
    main_lines, _ = fix_hazards_fast(kern.uniq(a.lines, "main"), rep)

    pf = cfg.get("pfk", 0)
    if pf:
        b = Asm()
        b("s_cmp_ge_u32 s2, 256")
        b("s_cbranch_scc1 L_pf_end")
        b("s_load_dwordx16 s[16:31], s[0:1], 0")
        b("s_load_dwordx2 s[32:33], s[0:1], 64")
        b("s_getpc_b64 s[4:5]")
        b("L_pf_pc:")
        b("s_add_u32 s4, s4, L_code_begin-L_pf_pc")
        b("s_addc_u32 s5, s5, -1")
        b("s_lshr_b32 s6, s2, 3")
        b("s_and_b32 s7, s2, 7")
        b("s_lshl_b32 s8, s6, 11")
        b("v_lshlrev_b32 v1, 3, v0")
        b("v_add_u32 v1, s8, v1")
        b("v_min_u32 v1, L_code_end-L_code_begin-8, v1")
        b("global_load_dwordx2 v[2:3], v1, s[4:5]")
        if pf >= 2:
            b("v_lshlrev_b32 v1, 6, v0")
            b("s_lshl_b32 s8, s6, 14")
            b("v_add_u32 v4, s8, v1")
            b("s_lshl_b32 s9, s7, 18")
            b("s_lshl_b32 s10, s6, 13")
            b("s_add_u32 s9, s9, s10")
            b("v_lshlrev_b32 v5, 5, v0")
            b("v_add_u32 v5, s9, v5")
            b("s_mul_i32 s11, s2, 7168")
            b("v_mul_u32_u24 v6, 28, v0")
            b("v_add_u32 v6, s11, v6")
            b("s_lshl_b32 s11, s2, 11")
            b("v_lshlrev_b32 v7, 3, v0")
            b("v_add_u32 v7, s11, v7")
            b("s_waitcnt lgkmcnt(0)")
            b("global_load_dword v8, v4, s[18:19]")
            b("global_load_dword v9, v5, s[16:17]")
            b("global_load_dword v10, v1, s[20:21]")
            b("global_load_dword v11, v1, s[22:23]")
            b("global_load_dword v12, v6, s[28:29]")
            b("global_load_dword v13, v6, s[30:31]")
            b("global_load_dword v14, v6, s[32:33]")
            b("global_load_dword v15, v7, s[24:25]")
        b("L_pf_end:")
        b("s_endpgm")
        pfl, _ = fix_hazards_fast(["L_code_begin:", "L_code_end:"] + b.lines, rep)
        main_lines2 = [".p2align 8", "pf_kernel:"] + pfl[2:]
        s = "; @launch kernel=pf_kernel grid=(256,1,1) block=(256,1,1) lds=0\n"
        s += "; @launch kernel=%s grid=(256,1,1) block=(256,1,1) lds=%d\n" % (KNAME, 160 * 1024)
    else:
        main_lines2 = []
        s = "; @launch grid=(256,1,1) block=(256,1,1) lds=%d\n" % (160 * 1024)
    s += '.amdgcn_target "amdgcn-amd-amdhsa--gfx950"\n.text\n.globl %s\n.p2align 8\n.type %s,@function\n' % (KNAME, KNAME)
    s += "\n".join(["L_code_begin:", KNAME + ":"] + main_lines + ["L_code_end:"] + main_lines2) + "\n"
    s += '.section .rodata,"a"\n.p2align 6\n' + kernel_desc(KNAME, 512, 256, 102)
    if pf:
        s += ".p2align 6\n" + kernel_desc("pf_kernel", 16, 16, 40)
    return s, rep


if __name__ == "__main__":
    cfg = dict(code_prefetch=True)
    for kv in sys.argv[2:]:
        k, v = kv.split("=")
        cfg[k] = eval(v)
    s, rep = build(cfg)
    open(sys.argv[1], "w").write(s)
    print("auto nops:", sum(r[0] for r in rep), "sites", len(rep), "bytes of source", len(s))
    if cfg.get("verbose"):
        for r in rep:
            print(r)
```

```python
import re

TRANS = ("v_exp_f32", "v_log_f32", "v_rcp_f32", "v_rsq_f32", "v_sqrt_f32", "v_sin_f32", "v_cos_f32",
         "v_rcp_iflag_f32", "v_exp_f16", "v_rcp_f16")

_reg_re = re.compile(r"^(-|abs\(|\|)?([vas])(\d+)\)?\|?$")
_rng_re = re.compile(r"^(-|abs\()?([vas])\[(\d+):(\d+)\]\)?$")


def regs_of(op):
    op = op.strip()
    m = _reg_re.match(op)
    if m:
        return [m.group(2) + m.group(3)]
    m = _rng_re.match(op)
    if m:
        return [m.group(2) + str(i) for i in range(int(m.group(3)), int(m.group(4)) + 1)]
    if op in ("vcc", "exec"):
        return [op + "_lo", op + "_hi"]
    if op in ("vcc_lo", "vcc_hi", "exec_lo", "exec_hi", "m0", "scc"):
        return [op]
    return []


def split_ops(s):
    out, depth, cur = [], 0, ""
    for ch in s:
        if ch in "[(":
            depth += 1
        elif ch in "])":
            depth -= 1
        if ch == "," and depth == 0:
            out.append(cur.strip())
            cur = ""
        else:
            cur += ch
    if cur.strip():
        out.append(cur.strip())
    return out


class Ins:
    __slots__ = ("text", "mn", "ops", "mods", "kind", "dst", "src", "srcA", "srcC", "label", "target", "ws", "passes",
                 "dpp", "perm", "lds_dma", "wide_store_data", "sgpr_src", "auto")

    def __init__(self, text):
        self.text = text
        self.label = None
        self.target = None
        self.dst, self.src, self.srcA, self.srcC = set(), set(), set(), []
        self.kind = "other"
        self.ws = 1
        self.passes = 0
        self.dpp = self.perm = self.lds_dma = False
        self.wide_store_data = set()
        self.auto = False
        t = text.split(";")[0].strip()
        self.mn, self.ops, self.mods = "", [], ""
        if not t:
            self.kind, self.ws = "empty", 0
            return
        if t.endswith(":"):
            self.kind, self.ws, self.label = "label", 0, t[:-1]
            return
        if t.startswith("."):
            self.kind, self.ws = "directive", 0
            return
        parts = t.split(None, 1)
        mn = parts[0]
        rest = parts[1] if len(parts) > 1 else ""
        ops = split_ops(rest)
        mods = ""
        if ops:
            lp = ops[-1].split(None, 1)
            if len(lp) > 1 and not ops[-1].startswith("hwreg"):
                ops[-1] = lp[0]
                mods = lp[1]
        self.mn, self.ops, self.mods = mn, ops, mods
        R = lambda i: regs_of(ops[i]) if i < len(ops) else []
        if mn == "s_nop":
            self.kind, self.ws = "nop", int(ops[0], 0) + 1
        elif mn in ("s_branch",) or mn.startswith("s_cbranch"):
            self.kind, self.target = "branch", ops[0]
            if "vcc" in mn:
                self.src |= {"vcc_lo", "vcc_hi"}
        elif mn == "s_endpgm":
            self.kind = "end"
        elif mn == "s_call_b64":
            self.kind, self.target = "branch", ops[1]
            self.mn = "s_branch"
        elif mn == "s_setpc_b64":
            self.kind = "branch"
            self.mn = "s_branch"
            self.target = text.split("ret=")[1].strip().split(",")
        elif mn in ("s_waitcnt", "s_barrier", "s_sleep", "s_setprio"):
            self.kind = "ctl"
        elif mn.startswith("s_load") or mn.startswith("s_memtime") or mn.startswith("s_memrealtime") or mn.startswith("s_buffer_load"):
            self.kind = "smem"
            self.dst |= set(R(0))
            for i in range(1, len(ops)):
                self.src |= set(R(i))
        elif mn.startswith("s_cmp") or mn.startswith("s_bitcmp"):
            self.kind = "salu"
            for i in range(len(ops)):
                self.src |= set(R(i))
        elif mn.startswith("s_"):
            self.kind = "salu"
            self.dst |= set(R(0))
            for i in range(1, len(ops)):
                self.src |= set(R(i))
            if "saveexec" in mn:
                self.dst |= {"exec_lo", "exec_hi"}
        elif mn.startswith("v_mfma"):
            self.kind = "mfma"
            self.passes = 8 if "32x32x16" in mn else (4 if "16x16x32" in mn else None)
            assert self.passes, mn
            self.dst |= set(R(0))
            self.srcA = set(R(1)) | set(R(2))
            self.srcC = R(3)
            self.src = self.srcA | set(self.srcC)
        elif mn.startswith("v_"):
            base = mn.replace("_e32", "").replace("_e64", "").replace("_dpp", "")
            self.kind = "trans" if base in TRANS else "valu"
            if base.startswith("v_dot2"):
                self.kind = "dot"
            self.dpp = mn.endswith("_dpp") or "row_" in mods or "quad_perm" in mods
            if base.startswith("v_permlane"):
                self.perm = True
                self.dst |= set(R(0)) | set(R(1))
                self.src |= set(R(0)) | set(R(1))
            elif base.startswith("v_cmp"):
                self.dst |= set(R(0))
                for i in range(1, len(ops)):
                    self.src |= set(R(i))
            else:
                self.dst |= set(R(0))
                st = 1
                if base in ("v_add_co_u32", "v_sub_co_u32", "v_addc_co_u32", "v_subb_co_u32"):
                    self.dst |= set(R(1))
                    st = 2
                for i in range(st, len(ops)):
                    self.src |= set(R(i))
                if base in ("v_fmac_f32", "v_dot2c_f32_bf16") or self.dpp:
                    self.src |= set(R(0))
        elif mn.startswith("buffer_") or mn.startswith("global_"):
            self.kind = "vmem"
            is_lds = " lds" in (" " + mods) or "_lds_" in mn
            self.lds_dma = is_lds
            if mn in ("buffer_wbl2", "buffer_inv"):
                pass
            elif "load" in mn:
                st = 0 if is_lds else 1
                if not is_lds:
                    self.dst |= set(R(0))
                for i in range(st, len(ops)):
                    self.src |= set(R(i))
                if is_lds:
                    self.src.add("m0")
            else:
                for i in range(len(ops)):
                    self.src |= set(R(i))
                di = 0 if mn.startswith("buffer_") else 1
                if "x4" in mn or "x3" in mn:
                    self.wide_store_data = set(R(di))
                if "atomic" in mn and "sc0" in mods:
                    self.dst |= set(R(0))
        elif mn.startswith("ds_"):
            self.kind = "ds"
            if "read" in mn or "permute" in mn or "swizzle" in mn or "rtn" in mn:
                self.dst |= set(R(0))
                for i in range(1, len(ops)):
                    self.src |= set(R(i))
            else:
                for i in range(len(ops)):
                    self.src |= set(R(i))
        else:
            raise ValueError("unknown instruction: " + text)

    def is_valu(self):
        return self.kind in ("valu", "trans", "dot")


def _sg(rs):
    return {r for r in rs if r[0] == "s" or r.startswith("vcc")}


def required(p, c):
    n = 0
    pv, cv = p.is_valu(), c.is_valu()
    if pv:
        w = p.dst
        vw = {r for r in w if r[0] in "va" and not r.startswith("vcc")}
        sw = _sg(w)
        if c.kind == "mfma" and vw & c.src:
            n = max(n, 2)
        if p.kind == "trans" and (vw & c.src) and c.kind != "trans":
            n = max(n, 1)
        if cv and c.dpp and vw & c.src:
            n = max(n, 2)
        if cv and c.perm and vw & c.src:
            n = max(n, 2)
        if c.mn.startswith("v_readfirstlane") or c.mn.startswith("v_readlane"):
            if vw & c.src:
                n = max(n, 1)
            if sw & c.src:
                n = max(n, 4)
        if sw:
            if cv and sw & c.src:
                n = max(n, 2)
            if c.kind == "vmem" and sw & c.src:
                n = max(n, 5)
            if c.kind in ("salu", "smem", "branch") and sw & c.src:
                n = max(n, 2)
        if p.kind == "dot":
            if c.kind == "dot" and c.mn == p.mn:
                ab = set()
                for o in c.ops[1:3]:
                    ab |= set(regs_of(o))
                if vw & ab:
                    n = max(n, 3)
            elif vw & (c.src | c.dst):
                n = max(n, 3)
    if p.kind == "mfma":
        big = p.passes == 8
        D = p.dst
        if c.kind == "mfma":
            if D & c.srcA:
                n = max(n, 12 if big else 8)
            if D & set(c.srcC):
                if not (set(c.srcC) == D and c.mn == p.mn):
                    n = max(n, 10 if big else 6)
        elif cv:
            if D & (c.src | c.dst):
                n = max(n, 12 if big else 8)
            if set(p.srcC) & c.dst:
                n = max(n, 7 if big else 3)
        elif c.kind in ("vmem", "ds"):
            if D & (c.src | c.dst):
                n = max(n, 12 if big else 8)
            if set(p.srcC) & c.dst:
                n = max(n, 7 if big else 3)
    if p.kind == "salu" and "m0" in p.dst and c.lds_dma:
        n = max(n, 1)
    if p.wide_store_data and (p.wide_store_data & c.dst):
        n = max(n, 2 if cv else 1)
    return n


MAXLOOK = 12


def fix_hazards(lines, report=None):
    ins = [Ins(l) for l in lines]
    changed = True
    total = 0
    while changed:
        changed = False
        labels = {x.label: i for i, x in enumerate(ins) if x.kind == "label"}
        branch_to = {}
        for i, x in enumerate(ins):
            if x.kind == "branch":
                branch_to.setdefault(labels[x.target], []).append(i)

        def preds(i):
            out = []
            if i > 0:
                q = ins[i - 1]
                if not (q.mn == "s_branch" or q.kind == "end"):
                    out.append(i - 1)
            if ins[i].kind == "label":
                out += branch_to.get(i, [])
            return out

        for i, c in enumerate(ins):
            if c.ws == 0 or c.kind in ("nop", "ctl", "end"):
                continue
            need = 0
            stack = [(j, 0) for j in preds(i)]
            seen = set()
            while stack:
                j, dist = stack.pop()
                if (j, dist) in seen:
                    continue
                seen.add((j, dist))
                p = ins[j]
                if p.ws:
                    r = required(p, c)
                    if r - dist > need:
                        need = r - dist
                        why = p.text
                nd = dist + p.ws
                if nd < MAXLOOK:
                    for k in preds(j):
                        stack.append((k, nd))
            if need > 0:
                n = Ins("  s_nop %d" % (need - 1))
                n.auto = True
                n.text += "   ; auto-hazard"
                ins.insert(i, n)
                total += need
                if report is not None:
                    report.append((need, why.strip(), c.text.strip()))
                changed = True
                break
    return [x.text for x in ins], total


def fix_hazards_fast(lines, report=None):
    ins = [Ins(l) for l in lines]
    total = 0
    while True:
        labels = {x.label: i for i, x in enumerate(ins) if x.kind == "label"}
        branch_to = {}
        for i, x in enumerate(ins):
            if x.kind == "branch":
                for tg in (x.target if isinstance(x.target, list) else [x.target]):
                    branch_to.setdefault(labels[tg], []).append(i)
        extra = {}

        def preds(i):
            out = []
            if i > 0:
                q = ins[i - 1]
                if not (q.mn == "s_branch" or q.kind == "end"):
                    out.append(i - 1)
            if ins[i].kind == "label":
                out += branch_to.get(i, [])
            return out

        for i, c in enumerate(ins):
            if c.ws == 0 or c.kind in ("nop", "ctl", "end"):
                continue
            need, why = 0, None
            stack = [(j, 0) for j in preds(i)]
            seen = set()
            while stack:
                j, dist = stack.pop()
                if (j, dist) in seen:
                    continue
                seen.add((j, dist))
                p = ins[j]
                if p.ws:
                    r = required(p, c)
                    if r - dist > need:
                        need, why = r - dist, p.text
                nd = dist + p.ws + extra.get(j, 0)
                if nd < MAXLOOK:
                    for k in preds(j):
                        stack.append((k, nd))
            if need > 0:
                extra[i] = need
                total += need
                if report is not None:
                    report.append((need, why.strip(), c.text.strip()))
        if not extra:
            break
        new = []
        for i, x in enumerate(ins):
            if i in extra:
                n = Ins("  s_nop %d   ; auto-hazard" % (extra[i] - 1))
                new.append(n)
            new.append(x)
        ins = new
    return [x.text for x in ins], total


class Asm:
    def __init__(self):
        self.lines = []
        self.vm_issued = 0
        self.dma_issued = 0
        self.last_cls = "v"
        self.lg_issued = 0
        self._lab = 0

    def __call__(self, text):
        for l in text.split("\n"):
            l = l.strip()
            if not l:
                continue
            if l.endswith(":") or l.startswith("."):
                self.lines.append(l)
            else:
                self.lines.append("  " + l)
            mn = l.split()[0]
            if (mn.startswith("buffer_") or mn.startswith("global_")) and "load" in mn:
                if l.split(";")[0].split()[-1] == "lds":
                    self.dma_issued += 1
                    self.last_cls = "d"
                else:
                    self.vm_issued += 1
                    self.last_cls = "v"
            elif mn.startswith("ds_"):
                self.lg_issued += 1

    def c(self, text):
        self.lines.append("  ; " + text)

    def newlabel(self, base="L"):
        self._lab += 1
        return "%s_%d" % (base, self._lab)

    def vt(self):
        return ("d", self.dma_issued) if self.last_cls == "d" else ("v", self.vm_issued)

    def lt(self):
        return self.lg_issued

    def wait_vm(self, ticket):
        n = (self.dma_issued if ticket[0] == "d" else self.vm_issued) - ticket[1]
        assert 0 <= n, n
        self("s_waitcnt vmcnt(%d)" % min(n, 63))

    def wait_lg(self, ticket):
        n = self.lg_issued - ticket
        assert 0 <= n
        self("s_waitcnt lgkmcnt(%d)" % min(n, 15))


def vr(b, n=1):
    return "v%d" % b if n == 1 else "v[%d:%d]" % (b, b + n - 1)


def ar(b, n=1):
    return "a%d" % b if n == 1 else "a[%d:%d]" % (b, b + n - 1)


def sr(b, n=1):
    return "s%d" % b if n == 1 else "s[%d:%d]" % (b, b + n - 1)


def rr(spec, off=0, n=1):
    f, b = spec
    return (vr if f == "v" else ar)(b + off, n)
```

```python
import sys
from asmlib import *
from layout import *
import kern
import startup as SU
from kern import (split3, fl, MF, S_LAYER, S_W, S_RB, S_HQ, S_RG, S_M, V_L16, V_LANE, V_R31, V_H, V_OFF, xhalf_sum,
                  load_stats, finish_stats, pack8, stamp, kernel_desc, prep, NSTAMP)

SC = "sc1"


COMPACT = [1]
CMAP = {OFF_X: 0x800000, OFF_O: 0xC00000, OFF_H: 0xE00000, OFF_STAT: OFF_STAT}
C_WKV = 0x780000
C_END = 0x1500000


def layer_off(a, sdst, base, stride, mul=1, add=0):
    if COMPACT[0] and base in CMAP:
        a("s_mov_b32 s%d, 0x%x" % (sdst, CMAP[base] + (add & 1) * stride))
    else:
        kern.layer_off(a, sdst, base, stride, mul, add)


def blk(a, dst, sbase, i, sc=SC):
    kern.blk(a, dst, sbase, i, SC)


FL_O = 0x0000
FL_X1 = 0x2000
FL_H = 0x8000
FL_XIN = 0x6000
OFF_FLW = 0x64C000
FL_KV = 0x640000 - OFF_FLAGS

S_RT, S_NT = 31, 32
S_FO, S_FX1, S_FH = 40, 41, 42
S_W13, S_WL = 47, 48
S_RET = 44
V_RES = 12
V_TAG = 11
V_L4 = 20
V_ZERO = 21
VB = 24

G_ACC = 24
G_RED = 88
G_ST = 136
G_CS = 152
G_T = 168
V_WR = [184, 185, 186]
V_RD = 187
V_NMU, V_RSTD = 188, 189
G_KVACC = 88
G_Q = 190
W2V = 200

LDS_R1 = 96 * 1024
LDS_RQ = 0
LDS_KVX = 49152
LDS_CSX = 69632
LDS_CS = 152 * 1024
LDS_E = 128 * 1024


DBL = [0]
LSC = ["sc1"]
S_LOC = 57
DUAL = [False]
_dl = [0]


def lstore(text):
    lines = text if isinstance(text, list) else [text]
    if not DUAL[0]:
        return [l + " sc1" for l in lines]
    _dl[0] += 1
    n = _dl[0]
    return (["s_cbranch_scc1 L_ls%da ; needs scc" % n] + [l + " sc1" for l in lines] + ["s_branch L_ls%db" % n, "L_ls%da:" % n] +
            ["!" + l + " " + LSC[0] for l in lines] + ["L_ls%db:" % n])


def emit_l(a, text):
    out = lstore(text)
    if DUAL[0]:
        a("s_cmp_lg_u32 s%d, 0" % S_LOC)
    for l in out:
        if l.startswith("!"):
            a(l[1:])
        else:
            a(l)


def st4(a, data, voff, soff, imm=0):
    emit_l(a, "buffer_store_dwordx4 v[%d:%d], v%d, s[4:7], s%d offen offset:%d" % (data, data + 3, voff, soff, imm))
    if DBL[0]:
        a("buffer_store_dwordx4 v[%d:%d], v%d, s[4:7], s%d offen offset:%d" % (data, data + 3, voff, soff, imm))


TOUCH = [1]
V_L128 = 23
V_P2 = 199


V_L64 = 22


RBW = [0]


def readback(a, regions, final=False):
    if not DUAL[0]:
        return
    L = a.newlabel("L_rb")
    keep = a.vm_issued
    a("s_cmp_eq_u32 s%d, 0" % S_LOC)
    a("s_cbranch_scc1 %s" % L)
    a("v_lshlrev_b32 v%d, 6, v%d" % (V_L64, V_LANE))
    if RBW[0] and final:
        a("s_waitcnt vmcnt(0)")
    for sg, nb, imm in regions:
        n = nb // 64
        assert n <= 64
        a("s_mov_b32 exec_lo, 0x%x" % (((1 << n) - 1) & 0xffffffff))
        a("s_mov_b32 exec_hi, 0x%x" % (((1 << n) - 1) >> 32))
        a("buffer_load_dword v%d, v%d, s[4:7], s%d offen offset:%d %s" % (V_P2, V_L64, sg, imm, SC))
    a(L + ":")
    a.vm_issued = keep


def publish(a, s_addr, regions, imm=0, between=()):
    readback(a, regions, True)
    if between:
        a("s_mov_b64 exec, -1")
        for x in between:
            a(x)
    a("s_waitcnt vmcnt(0)")
    a("s_mov_b64 exec, 1")
    emit_l(a, "buffer_store_dword v%d, v%d, s[4:7], s%d offen offset:%d" % (V_TAG, V_ZERO, s_addr, imm))
    a("s_mov_b64 exec, -1")


def poll(a, cfg, s_addr, voff, vtmp, wide=False, imm=0, sleep=0):
    L = a.newlabel("L_poll")
    if cfg.get("spin_limit"):
        a("s_mov_b32 s46, %d" % cfg["spin_limit"])
    if cfg.get("ppoll", 0) and not wide and not sleep:
        ld = lambda r: a("buffer_load_dword v%d, v%d, s[4:7], s%d offen offset:%d %s" % (r, voff, s_addr, imm, SC))
        ld(vtmp)
        a("s_sleep %d" % cfg.get("ppoll_gap", 2))
        a(L + ":")
        ld(V_P2)
        a("s_waitcnt vmcnt(1)")
        a("v_cmp_ne_u32 vcc, v%d, v%d" % (V_TAG, vtmp))
        a("s_cbranch_vccz %s_out" % L)
        ld(vtmp)
        a("s_waitcnt vmcnt(1)")
        if cfg.get("spin_limit"):
            a("s_sub_u32 s46, s46, 1")
            a("s_cbranch_scc1 %s_out" % L)
        a("v_cmp_ne_u32 vcc, v%d, v%d" % (V_TAG, V_P2))
        a("s_cbranch_vccnz %s" % L)
        a.vm_issued -= 1
        a(L + "_out:")
        return
    a(L + ":")
    if wide:
        a("buffer_load_dwordx4 v[%d:%d], v%d, s[4:7], s%d offen %s" % (vtmp, vtmp + 3, voff, s_addr, SC))
        a("s_waitcnt vmcnt(0)")
        a("v_cmp_ne_u32 s[18:19], v%d, v%d" % (V_TAG, vtmp + 2))
        a("v_cndmask_b32 v%d, v%d, v%d, s[18:19]" % (vtmp, vtmp, V_ZERO))
    else:
        a("buffer_load_dword v%d, v%d, s[4:7], s%d offen offset:%d %s" % (vtmp, voff, s_addr, imm, SC))
        a("s_waitcnt vmcnt(0)")
    if cfg.get("spin_limit"):
        a("s_sub_u32 s46, s46, 1")
        a("s_cbranch_scc1 %s_out" % L)
    a("v_cmp_ne_u32 vcc, v%d, v%d" % (V_TAG, vtmp))
    if sleep:
        a("s_cbranch_vccz %s_out" % L)
        a("s_sleep %d" % sleep)
        a("s_branch %s" % L)
    else:
        a("s_cbranch_vccnz %s" % L)
    a(L + "_out:")


def lane_pat(a, vdst, mask, hi_shift, lo_mul):
    a("v_and_b32 v%d, %d, v%d" % (vdst, mask & ~1, V_LANE))
    a("v_lshlrev_b32 v%d, 3, v%d" % (vdst, vdst))
    a("v_and_b32 v%d, 1, v%d" % (vdst + 1, V_LANE))
    a("v_lshl_add_u32 v%d, v%d, %d, v%d" % (vdst, vdst + 1, lo_mul, vdst))


def flag_addr(a, sdst, base, s_grp, grp_shift, s_mem=None, per_layer=0x1000):
    a("s_mul_i32 s%d, s%d, 0x%x" % (sdst, S_LAYER, per_layer))
    a("s_add_u32 s%d, s%d, 0x%x" % (sdst, sdst, OFF_FLAGS + base))
    a("s_lshl_b32 s17, s%d, %d" % (s_grp, grp_shift))
    a("s_add_u32 s%d, s%d, s17" % (sdst, sdst))
    if s_mem is not None:
        a("s_lshl_b32 s17, s%d, 4" % s_mem)
        a("s_add_u32 s%d, s%d, s17" % (sdst, sdst))
        a("s_lshl_b32 s17, s%d, 2" % S_W)
        a("s_add_u32 s%d, s%d, s17" % (sdst, sdst))


def xin_flag_addr(a, sdst, own, layer_add):
    flag_addr(a, sdst, FL_XIN + 0x1000 * layer_add, S_RB, 7, S_HQ if own else None)


def a_addr(a, s_a0, s_a1, offA, ksA, ksw):
    a("s_mul_i32 s20, s%d, %d" % (S_W, ksw * 1024))
    a("s_mul_i32 s%d, s%d, %d" % (s_a0, S_NT, ksA * 1024))
    a("s_add_u32 s%d, s%d, s20" % (s_a0, s_a0))
    a("s_add_u32 s%d, s%d, 0x%x" % (s_a0, s_a0, offA))
    a("s_xor_b32 s21, s%d, 1" % S_NT)
    a("s_mul_i32 s%d, s21, %d" % (s_a1, ksA * 1024))
    a("s_add_u32 s%d, s%d, s20" % (s_a1, s_a1))
    a("s_add_u32 s%d, s%d, 0x%x" % (s_a1, s_a1, offA))


def b_addr(a, s_b0, s_b1, s_base, ksB, ksw):
    a("s_mul_i32 s20, s%d, %d" % (S_W, ksw * 1024))
    a("s_add_u32 s20, s20, s%d" % s_base)
    a("s_mul_i32 s%d, s%d, %d" % (s_b0, S_RT, ksB * 1024))
    a("s_add_u32 s%d, s%d, s20" % (s_b0, s_b0))
    a("s_xor_b32 s21, s%d, 1" % S_RT)
    a("s_mul_i32 s%d, s21, %d" % (s_b1, ksB * 1024))
    a("s_add_u32 s%d, s%d, s20" % (s_b1, s_b1))


def reduce_addr(a, base):
    for j in (1, 2, 3):
        a("s_xor_b32 s17, s%d, %d" % (S_W, j))
        a("s_mul_i32 s17, s17, 12288")
        a("s_add_u32 s17, s17, %d" % (base + (j - 1) * 4096))
        a("v_add_u32 v%d, s17, v%d" % (V_WR[j - 1], V_L16))
    a("s_mul_i32 s17, s%d, 12288" % S_W)
    a("s_add_u32 s17, s17, %d" % base)
    a("v_add_u32 v%d, s17, v%d" % (V_RD, V_L16))


def mf(a, d, x, y, c):
    a("%s v[%d:%d], %s, %s, %s" % (MF, d, d + 15, x, y, c))


def wr_tile(a, j):
    for q in range(4):
        r = G_ACC + 16 * j + 4 * q
        a("ds_write_b128 v%d, v[%d:%d] offset:%d" % (V_WR[j - 1], r, r + 3, q * 1024))


def rd_tile(a, j, dst):
    for q in range(4):
        a("ds_read_b128 v[%d:%d], v%d offset:%d" % (dst + 4 * q, dst + 4 * q + 3, V_RD, (j - 1) * 4096 + q * 1024))


def gemm64_core(a, cfg, n, A0, A1, Breg, issueB, window, pre_tickets=None, order=None, side=None, side_from=0, side_n=1,
                gate=None, side2=None, side2_from=0, ramp=None, resid=False, extra0=None, hooks=None):
    if order is None:
        order = [(1, i) for i in range(n)] + [(0, i) for i in range(n)]
    M = len(order)
    side = list(side or [])
    t = dict(pre_tickets or {})
    nxt = len(t)
    gpos = gate[0] if gate else M + 1
    gated = [False]

    def try_issue(limit):
        nonlocal nxt
        while nxt < M and nxt < limit:
            if nxt >= gpos and not gated[0]:
                return
            issueB(nxt)
            t[nxt] = a.vt()
            nxt += 1
            if gate and nxt == gate[3]:
                gate[1]()

    try_issue(ramp or window)
    if cfg.get("stamps") != 2:
        stamp(a, cfg, 1)
    last1 = max(e for e, (st, i) in enumerate(order) if st == 1)
    wr1 = last1 + 2
    bar1 = min(M - 2, last1 + 1 + max(2, (M - last1) // 2))
    seen = set()
    for e, (st, i) in enumerate(order):
        if gate and not gated[0] and e == gate[4]:
            assert not side
            gate[2]()
            gated[0] = True
            try_issue(e + window)
        if hooks and e in hooks:
            hooks[e]()
        a.wait_vm(t[e])
        if e == 0 and cfg.get("stamps") != 2:
            stamp(a, cfg, 2)
        first = "0" if st not in seen else None
        seen.add(st)
        if st == 1:
            mf(a, G_ACC + 16, A0(i), Breg(e), first or vr(G_ACC + 16, 16))
            if cfg.get("ldmid", 0) and window < 30:
                try_issue(min(e + 1 + window, nxt + 1))
            mf(a, G_ACC + 48, A1(i), Breg(e), first or vr(G_ACC + 48, 16))
        else:
            mf(a, G_ACC + 32, A1(i), Breg(e), first or vr(G_ACC + 32, 16))
            if cfg.get("ldmid", 0) and window < 30:
                try_issue(min(e + 1 + window, nxt + 1))
            mf(a, G_ACC, A0(i), Breg(e), first or vr(G_ACC, 16))
        try_issue(min(e + 1 + window, nxt + 2))
        if e >= side_from:
            k = 0
            while side and k < side_n:
                x = side.pop(0)
                a(x)
                k += x.startswith("buffer_")
        if side2 and e >= side2_from:
            for _ in range(cfg.get("side2_n", 1)):
                if side2:
                    a(side2.pop(0))
        if e == wr1:
            wr_tile(a, 1)
            wr_tile(a, 3)
        if e == bar1:
            a("s_waitcnt lgkmcnt(0)")
            a("s_barrier")
            rd_tile(a, 1, G_RED)
            rd_tile(a, 3, G_RED + 16)
    assert wr1 <= bar1 < M and not side2
    if extra0:
        extra0[2]()
        mf(a, G_ACC, extra0[0], extra0[1], vr(G_ACC, 16))
    stamp(a, cfg, 4)
    a("s_waitcnt lgkmcnt(0)")
    for e in range(6):
        a("v_add_f32 v%d, v%d, v%d" % (G_RED + e, G_RED + e, G_RED + 16 + e))
    wr_tile(a, 2)
    for e in range(6, 16):
        a("v_add_f32 v%d, v%d, v%d" % (G_RED + e, G_RED + e, G_RED + 16 + e))
    for e in range(16):
        a("v_add_f32 v%d, v%d, v%d" % (G_ACC + e, G_ACC + e, G_RED + e))
    if resid:
        for i in range(8):
            a("v_lshlrev_b32 v%d, 16, v%d" % (G_T, V_RES + i))
            a("v_and_b32 v%d, 0xffff0000, v%d" % (G_T + 1, V_RES + i))
            a("v_add_f32 v%d, v%d, v%d" % (G_ACC + 2 * i, G_ACC + 2 * i, G_T))
            a("v_add_f32 v%d, v%d, v%d" % (G_ACC + 2 * i + 1, G_ACC + 2 * i + 1, G_T + 1))
    for x in side:
        a(x)
    a("s_waitcnt lgkmcnt(0)")
    a("s_barrier")
    stamp(a, cfg, 6)
    rd_tile(a, 2, G_RED + 32)
    for q in range(4):
        a("s_waitcnt lgkmcnt(%d)" % (3 - q))
        for e in range(4):
            a("v_add_f32 v%d, v%d, v%d" % (G_ACC + 4 * q + e, G_ACC + 4 * q + e, G_RED + 32 + 4 * q + e))
    stamp(a, cfg, 7)


def bextra(a, nmu, d):
    split3(a, nmu, d + 4)
    a("v_lshrrev_b32 v%d, 16, v%d" % (d + 7, d + 4))
    a("v_or_b32 v%d, v%d, v%d" % (d, d + 7, d + 5))
    a("v_or_b32 v%d, v%d, v%d" % (d + 1, d + 7, d + 6))
    a("v_mov_b32 v%d, v%d" % (d + 2, d))
    a("v_mov_b32 v%d, 0" % (d + 3))


def res_epilogue(a, cfg, xout_add, final):
    for i in range(8):
        a("v_cvt_pk_bf16_f32 v%d, v%d, v%d" % (V_RES + i, G_ACC + 2 * i, G_ACC + 2 * i + 1))
        if i == 3 and final is None:
            st4(a, V_RES, V_L16, 34)
    if final is not None:
        a("s_cmp_eq_u32 s%d, 1" % S_LAYER)
        a("s_cbranch_scc1 %s" % final)
        st4(a, V_RES, V_L16, 34)
    store_x_tail(a)


def store_x_tail(a):
    st4(a, V_RES + 4, V_L16, 34, 1024)
    a("v_mov_b32 v%d, 0x3f803f80" % G_T)
    a("v_mov_b32 v%d, 0" % (G_T + 12))
    a("v_mov_b32 v%d, 0" % (G_T + 13))
    for r in range(8):
        a("v_dot2_f32_bf16 v%d, v%d, v%d, v%d" % (G_T + 12, V_RES + r, G_T, G_T + 12))
        a("v_dot2_f32_bf16 v%d, v%d, v%d, v%d" % (G_T + 13, V_RES + r, V_RES + r, G_T + 13))
    a("v_lshlrev_b32 v%d, 3, v%d" % (G_T + 2, V_R31))
    a("s_nop 1")
    a("v_mov_b32 v%d, v%d" % (G_T + 14, G_T + 12))
    a("v_mov_b32 v%d, v%d" % (G_T + 15, G_T + 13))
    a("s_nop 0")
    a("v_permlane32_swap_b32 v%d, v%d" % (G_T + 12, G_T + 14))
    a("v_permlane32_swap_b32 v%d, v%d" % (G_T + 13, G_T + 15))
    a("v_add_f32 v%d, v%d, v%d" % (G_T + 12, G_T + 12, G_T + 14))
    a("v_add_f32 v%d, v%d, v%d" % (G_T + 13, G_T + 13, G_T + 15))
    a("s_mov_b32 exec_lo, 0xffffffff\ns_mov_b32 exec_hi, 0x0")
    emit_l(a, "buffer_store_dwordx2 v[%d:%d], v%d, s[4:7], s35 offen" % (G_T + 12, G_T + 13, G_T + 2))
    a("s_mov_b64 exec, -1")


def out_addr(a, xout_add):
    layer_off(a, 34, OFF_X, X_STRIDE, 2, xout_add)
    a("s_lshl_b32 s18, s%d, 15" % S_RT)
    a("s_add_u32 s34, s34, s18")
    a("s_lshl_b32 s18, s%d, 11" % S_NT)
    a("s_add_u32 s34, s34, s18")
    layer_off(a, 35, OFF_STAT, STAT_STRIDE, 2, xout_add)
    a("s_lshl_b32 s18, s%d, 12" % S_RT)
    a("s_add_u32 s35, s35, s18")
    a("s_lshl_b32 s18, s%d, 8" % S_NT)
    a("s_add_u32 s35, s35, s18")


S_Q0, S_Q1, S_KVW = 50, 51, 52


def wq_lines():
    b = Asm()
    for i in range(8):
        blk(b, ar(128 + 4 * i, 4), S_KVW, i)
    for i in range(8):
        blk(b, ar(160 + 4 * i, 4), S_Q0, i)
        blk(b, ar(192 + 4 * i, 4), S_Q1, i)
    return [l.strip() for l in b.lines]


def phase_qkv(a, cfg):
    SA0, SA1, SB0, SB1, SX, SKV = 24, 25, 26, 27, 28, 29
    CK = G_T + 8
    a("v_lshlrev_b32 v%d, 4, v%d" % (G_T + 1, V_H))
    a("v_lshlrev_b32 v%d, 2, v%d" % (G_T + 6, V_R31))
    VP, VPA = 198, 22
    SU.probe_addr(a, sys.modules[__name__], VPA, VP, 59)
    def wcheck(tag):
        a("v_cmp_ne_u32 vcc, v%d, v%d" % (V_TAG, VP))
        a("s_cbranch_vccz L_qkv_wok%s" % tag)
        keep = a.vm_issued
        poll(a, cfg, 59, VPA, VP, sleep=1)
        a.vm_issued = keep
        a("L_qkv_wok%s:" % tag)

    layer_off(a, SX, OFF_X, X_STRIDE, 2, 0)
    b_addr(a, SB0, SB1, SX, 32, 8)
    layer_off(a, 30, OFF_STAT, STAT_STRIDE, 2, 0)
    a("s_lshl_b32 s17, s%d, 12" % S_RT)
    a("s_add_u32 s30, s30, s17")
    reduce_addr(a, LDS_RQ)
    layer_off(a, 33, OFF_KV, KV_STRIDE)
    a("s_lshr_b32 s36, s%d, 1" % S_HQ)
    a("s_lshl_b32 s17, s%d, 1" % S_RB)
    a("s_add_u32 s17, s17, s36")
    a("s_lshl_b32 s17, s17, 15")
    a("s_add_u32 s23, s17, s%d" % SX)
    a("s_lshl_b32 s17, s%d, 13" % S_W)
    a("s_add_u32 s23, s23, s17")
    a("s_sub_u32 s17, s%d, s36" % S_W)
    a("s_sub_u32 s17, s17, 1")
    a("s_and_b32 s17, s17, 3")
    a("s_lshl_b32 s17, s17, 12")
    a("s_add_u32 s17, s17, %d" % LDS_KVX)
    a("v_add_u32 v%d, s17, v%d" % (G_T + 2, V_L16))
    a("v_add_u32 v%d, %d, v%d" % (G_T + 3, LDS_KVX, V_L16))
    a("s_mul_i32 s37, s%d, 0x2000" % S_LAYER)
    a("s_add_u32 s37, s37, 0x%x" % (OFF_FLAGS + FL_KV))
    a("s_lshl_b32 s17, s%d, 5" % S_RB)
    a("s_add_u32 s37, s37, s17")
    a("s_lshl_b32 s17, s36, 4")
    a("s_add_u32 s37, s37, s17")
    a("s_lshl_b32 s39, s2, 11")
    a("s_add_u32 s39, s39, 0x%x" % OFF_CKS)
    a("s_cmp_eq_u32 s%d, 0" % S_LAYER)
    a("s_cbranch_scc1 L_qkv_cs0")
    a("buffer_load_dwordx4 v[%d:%d], v%d, s[4:7], s39 offen sc1" % (CK, CK + 3, V_L16))
    a("buffer_load_dwordx4 v[%d:%d], v%d, s[4:7], s39 offen offset:1024 sc1" % (CK + 4, CK + 7, V_L16))
    a("s_branch L_qkv_nocs")
    a("L_qkv_cs0:")
    a("s_cmp_ge_u32 s%d, 4" % S_HQ)
    a("s_cbranch_scc1 L_qkv_nocs")
    for r in range(4):
        a("v_mov_b32 v%d, 0x3f803f80" % (G_CS + r))
    a("s_lshl_b32 s17, s%d, 11" % S_W)
    a("s_add_u32 s17, s17, %d" % LDS_CSX)
    a("v_add_u32 v%d, s17, v%d" % (G_CS + 4, V_L16))
    a("v_add_u32 v%d, %d, v%d" % (G_CS + 5, LDS_CSX, V_L16))
    a("s_bitcmp1_b32 s%d, 0" % S_HQ)
    a("s_cbranch_scc1 L_qkv_c1")
    for i in range(8):
        mf(a, G_ACC, ar(128 + 4 * i, 4), vr(G_CS, 4), "0" if i == 0 else vr(G_ACC, 16))
    a("s_branch L_qkv_c2")
    a("L_qkv_c1:")
    for i in range(8):
        mf(a, G_ACC, vr(G_CS, 4), ar(128 + 4 * i, 4), "0" if i == 0 else vr(G_ACC, 16))
    a("L_qkv_c2:")
    a("ds_write_b128 v%d, v[%d:%d]" % (G_CS + 4, G_ACC + 8, G_ACC + 11))
    a("ds_write_b128 v%d, v[%d:%d] offset:1024" % (G_CS + 4, G_ACC + 12, G_ACC + 15))
    a("s_waitcnt lgkmcnt(0)")
    a("s_barrier")
    for w in range(4):
        for q in range(2):
            a("ds_read_b128 v[%d:%d], v%d offset:%d" % (G_RED + 8 * w + 4 * q, G_RED + 8 * w + 4 * q + 3, G_CS + 5, 2048 * w + 1024 * q))
    a("s_waitcnt lgkmcnt(0)")
    for e in range(8):
        a("v_add_f32 v%d, v%d, v%d" % (G_RED + e, G_RED + e, G_RED + 8 + e))
        a("v_add_f32 v%d, v%d, v%d" % (G_RED + 16 + e, G_RED + 16 + e, G_RED + 24 + e))
        a("v_add_f32 v%d, v%d, v%d" % (CK + e, G_RED + e, G_RED + 16 + e))
    a("buffer_store_dwordx4 v[%d:%d], v%d, s[4:7], s39 offen sc1" % (CK, CK + 3, V_L16))
    a("buffer_store_dwordx4 v[%d:%d], v%d, s[4:7], s39 offen offset:1024 sc1" % (CK + 4, CK + 7, V_L16))
    a("L_qkv_nocs:")
    stamp(a, cfg, 8)
    xin_flag_addr(a, 38, False, 0)
    poll(a, cfg, 38, G_T + 6, G_T + 4)
    stamp(a, cfg, 9)
    def b1_loads():
        for e in range(8):
            blk(a, ar(64 + 4 * e, 4), SB1, e, SC)
            tB[e] = a.vt()

    def cs_q():
        a("s_lshl_b32 s17, s%d, 10" % S_NT)
        a("s_add_u32 s17, s17, 0x%x" % OFF_CSQX)
        a("buffer_load_dwordx4 v[%d:%d], v%d, s[4:7], s17 offen sc1" % (G_CS, G_CS + 3, V_L16))

    a("s_cmp_ge_u32 s%d, 4" % S_HQ)
    a("s_cbranch_scc1 L_qkv_stats")
    tK = {}
    for i in range(8):
        blk(a, ar(224 + 4 * i, 4), 23, i, SC)
        tK[i] = a.vt()
    load_stats(a, G_ST, 30, G_T, SC)
    t_st = a.vt()
    tB = {}
    b1_loads()
    stamp(a, cfg, 1)
    a("s_bitcmp1_b32 s%d, 0" % S_HQ)
    a("s_cbranch_scc1 L_qkv_v1")
    for v in range(2):
        if v:
            a("L_qkv_v%d:" % v)
        for i in range(8):
            a.wait_vm(tK[i])
            x, w = ar(224 + 4 * i, 4), ar(128 + 4 * i, 4)
            c = "0" if i == 0 else vr(G_KVACC, 16)
            if v & 1:
                mf(a, G_KVACC, x, w, c)
            else:
                mf(a, G_KVACC, w, x, c)
        if v < 1:
            a("s_branch L_qkv_kvred")
    a("L_qkv_kvred:")
    stamp(a, cfg, 2)
    a.wait_vm(t_st)
    finish_stats(a, G_ST, V_NMU, V_RSTD)
    for q in range(4):
        a("ds_write_b128 v%d, v[%d:%d] offset:%d" % (G_T + 2, G_KVACC + 4 * q, G_KVACC + 4 * q + 3, q * 1024))
    XS = LDS_KVX + 16384
    a("s_lshl_b32 s17, s%d, 8" % S_W)
    a("s_add_u32 s17, s17, %d" % XS)
    a("v_add_u32 v%d, s17, v%d" % (G_T + 4, G_T + 6))
    a("v_mul_f32 v%d, v%d, v%d" % (G_T + 5, V_NMU, V_RSTD))
    a("ds_write_b32 v%d, v%d" % (G_T + 4, V_RSTD))
    a("ds_write_b32 v%d, v%d offset:128" % (G_T + 4, G_T + 5))
    a("v_add_u32 v%d, s17, v%d" % (G_T + 4, G_T + 1))
    RS = G_ACC + 16
    for g in range(4):
        a("ds_read_b128 v[%d:%d], v%d offset:%d" % (RS + 4 * g, RS + 4 * g + 3, G_T + 4, 32 * g))
        a("ds_read_b128 v[%d:%d], v%d offset:%d" % (RS + 16 + 4 * g, RS + 16 + 4 * g + 3, G_T + 4, 128 + 32 * g))
    a("s_waitcnt lgkmcnt(0)")
    a("s_barrier")
    stamp(a, cfg, 3)
    a("s_cmp_lg_u32 s%d, s36" % S_W)
    a("s_cbranch_scc1 L_qkv_q")
    RD = [G_RED + 16, G_RED + 32, G_ACC]
    for j in range(3):
        for q in range(4):
            a("ds_read_b128 v[%d:%d], v%d offset:%d" % (RD[j] + 4 * q, RD[j] + 4 * q + 3, G_T + 3, j * 4096 + q * 1024))
    for j in range(3):
        a("s_waitcnt lgkmcnt(%d)" % (8 - 4 * j))
        for e in range(16):
            a("v_add_f32 v%d, v%d, v%d" % (G_KVACC + e, G_KVACC + e, RD[j] + e))
    a("s_lshl_b32 s17, s%d, 10" % S_RT)
    a("s_add_u32 s34, s33, s17")
    a("s_bitcmp1_b32 s%d, 0" % S_HQ)
    a("s_cbranch_scc1 L_qkv_vfin")
    PK = G_RED + 16
    for e in range(8):
        a("v_fmac_f32 v%d, v%d, v%d" % (G_KVACC + 8 + e, V_NMU, CK + e))
        a("v_mul_f32 v%d, v%d, v%d" % (G_KVACC + 8 + e, V_RSTD, G_KVACC + 8 + e))
    pack8(a, PK, G_KVACC + 8)
    a("buffer_store_dwordx4 v[%d:%d], v%d, s[4:7], s34 offen %s" % (PK, PK + 3, V_L16, SC))
    a("v_mov_b32 v%d, 0" % (PK + 4))
    for r in range(4):
        a("v_dot2_f32_bf16 v%d, v%d, v%d, v%d" % (PK + 4, PK + r, PK + r, PK + 4))
    xhalf_sum(a, PK + 4, PK + 5)
    for d in ("row_shr:1", "row_shr:2", "row_shr:4", "row_shr:8"):
        a("v_max_f32_dpp v%d, v%d, v%d %s row_mask:0xf bank_mask:0xf" % (PK + 4, PK + 4, PK + 4, d))
    a("v_max_f32_dpp v%d, v%d, v%d row_bcast:15 row_mask:0xa bank_mask:0xf" % (PK + 4, PK + 4, PK + 4))
    a("v_readlane_b32 s18, v%d, 31" % (PK + 4))
    a("v_lshlrev_b32 v%d, 10, v%d" % (G_T + 4, V_LANE))
    a("v_mov_b32 v%d, v%d" % (PK + 6, V_TAG))
    a("v_mov_b32 v%d, s18" % (PK + 7))
    a("s_waitcnt vmcnt(0)")
    a("s_mov_b64 exec, 0xff")
    a("buffer_store_dwordx2 v[%d:%d], v%d, s[4:7], s37 offen %s" % (PK + 6, PK + 7, G_T + 4, SC))
    a("s_mov_b64 exec, -1")
    a("s_branch L_qkv_q")
    a("L_qkv_vfin:")
    a("v_lshlrev_b32 v%d, 4, v%d" % (G_T + 4, V_R31))
    a("v_lshl_add_u32 v%d, v%d, 8, v%d" % (G_T + 4, V_H, G_T + 4))
    a("s_add_u32 s34, s34, 0x10000")
    for e in range(16):
        a("v_mul_f32 v%d, v%d, v%d" % (G_KVACC + e, RS + e, G_KVACC + e))
        a("v_fmac_f32 v%d, v%d, v%d" % (G_KVACC + e, RS + 16 + e, CK))
    pack8(a, G_ACC, G_KVACC)
    pack8(a, G_ACC + 4, G_KVACC + 8)
    a("s_mov_b32 exec_lo, 0xffff\ns_mov_b32 exec_hi, 0xffff")
    a("buffer_store_dwordx4 v[%d:%d], v%d, s[4:7], s34 offen %s" % (G_ACC, G_ACC + 3, G_T + 4, SC))
    a("buffer_store_dwordx4 v[%d:%d], v%d, s[4:7], s34 offen offset:512 %s" % (G_ACC + 4, G_ACC + 7, G_T + 4, SC))
    a("s_mov_b64 exec, -1")
    a("L_qkv_kvdone:")
    stamp(a, cfg, 5)
    a("v_lshlrev_b32 v%d, 10, v%d" % (G_T + 4, V_LANE))
    a("s_waitcnt vmcnt(0)")
    a("s_mov_b64 exec, 0xff")
    a("buffer_store_dword v%d, v%d, s[4:7], s37 offen offset:8 %s" % (V_TAG, G_T + 4, SC))
    a("s_mov_b64 exec, -1")
    a("s_branch L_qkv_q")
    a("L_qkv_stats:")
    load_stats(a, G_ST, 30, G_T, SC)
    t_st = a.vt()
    b1_loads()
    a.wait_vm(t_st)
    finish_stats(a, G_ST, V_NMU, V_RSTD)
    a("L_qkv_q:")
    stamp(a, cfg, 10)
    bextra(a, V_NMU, G_CS + 4)
    tq = {}

    def h_probe():
        a("buffer_load_dword v%d, v%d, s[4:7], s59 offen sc1" % (VP, VPA))
        tq[0] = a.vt()

    def h_cs():
        a.wait_vm(tq[0])
        wcheck("q")
        cs_q()
        tq[1] = a.vt()
    gemm64_core(a, dict(cfg, stamps=cfg.get('stamps') and 2), 8, lambda i: ar(160 + 4 * i, 4), lambda i: ar(192 + 4 * i, 4), lambda e: ar(64 + 4 * e, 4),
                lambda e: blk(a, ar(64 + 4 * e, 4), SB1 if e < 8 else SB0, e % 8, SC), 16, pre_tickets=tB, ramp=12,
                side=[g[0] for g in SU.deferred_store_groups(sys.modules[__name__])], side_from=99, side_n=1, extra0=(vr(G_CS, 4), vr(G_CS + 4, 4), lambda: a.wait_vm(tq[1])),
                hooks={3: h_probe, 10: h_cs})
    a("v_mul_f32 v%d, %s, v%d" % (G_T, fl(QSCALE), V_RSTD))
    for e in range(16):
        a("v_mul_f32 v%d, v%d, v%d" % (G_ACC + e, G_T, G_ACC + e))
    pack8(a, G_Q, G_ACC)
    pack8(a, G_Q + 4, G_ACC + 8)
    if cfg.get("store_q"):
        a("s_lshl_b32 s17, s%d, 15" % S_RT)
        a("s_lshl_b32 s18, s%d, 11" % S_NT)
        a("s_add_u32 s17, s17, s18")
        a("s_add_u32 s17, s17, 0x%x" % OFF_Q)
        a("buffer_store_dwordx4 v[%d:%d], v%d, s[4:7], s17 offen" % (G_Q, G_Q + 3, V_L16))
        a("buffer_store_dwordx4 v[%d:%d], v%d, s[4:7], s17 offen offset:1024" % (G_Q + 4, G_Q + 7, V_L16))
    stamp(a, cfg, 11)


A_C = [24, 40]
A_O = [56, 72]
A_S = [88, 104]
A_P = [120, 124, 128, 132]
A_KF = [136, 140]
A_VF = [[144, 148], [152, 156]]
A_VK, A_VV, A_VINC = 160, 161, 162
A_T = 164
LDS_V = 65536
LDS_ONES = 131072
LDS_ATT_FLAG = LDS_ONES + 5120
UNR = 4


EARLY = 4
W2ORD = [7 * mm + tl for tl in range(7) for mm in range(4)]
W2POS = {k: p for p, k in enumerate(W2ORD)}


def w2load(a, idx, s0, s1):
    i = W2ORD[idx >> 1]
    blk(a, w2reg(idx & 1, i), s1 if idx & 1 else s0, i)


def w2reg(s, i):
    idx = 2 * W2POS[i] + s
    if idx < 32:
        return ar(128 + 4 * idx, 4)
    if idx < 46:
        return vr(W2V + 4 * (idx - 32), 4)
    if idx < 54:
        return vr(136 + 4 * (idx - 46), 4)
    return vr(190 + 4 * (idx - 54), 4)


SLOT13 = [0, 2, 1, 3, 0, 2, 1]


def dma13(a, i, part=None):
    slot = SLOT13[i]
    for hh in range(2):
        a("s_add_u32 m0, s%d, %d" % (S_WL, slot * 32768 + hh * 4096))
        a("s_add_u32 s29, s%d, %d" % (S_W13, i * 32768 + hh * 4096))
        for q in range(4):
            a("buffer_load_dwordx4 v%d, s[4:7], s29 offen offset:%d sc1 lds" % (V_L16, q * 1024))


def dma_lines(i):
    b = Asm()
    dma13(b, i)
    return [l.strip() for l in b.lines]


def phase_att(a, cfg):
    Q = [G_Q, G_Q + 4]
    SA0, SA1, SW0, SW1 = 24, 25, 26, 27
    a("v_mov_b32 v%d, 0x3f803f80" % (A_T + 4))
    if cfg.get("zpad", 1):
        a("v_and_b32 v%d, 2, v0" % (A_T + 5))
        a("v_cmp_eq_u32 vcc, 0, v%d" % (A_T + 5))
        a("v_cndmask_b32 v%d, v%d, v%d, vcc" % (A_T + 4, V_ZERO, A_T + 4))
    for r in range(1, 4):
        a("v_mov_b32 v%d, v%d" % (A_T + 4 + r, A_T + 4))
    a("v_lshlrev_b32 v%d, 4, v0" % (A_T + 2))
    a("v_add_u32 v%d, %d, v%d" % (A_T + 2, LDS_ONES, A_T + 2))
    a("ds_write_b128 v%d, v[%d:%d]" % (A_T + 2, A_T + 4, A_T + 7))
    a("ds_write_b128 v%d, v[%d:%d] offset:1024" % (A_T + 2, A_T + 4, A_T + 7))
    a("v_and_b32 v%d, 15, v%d" % (A_T + 2, V_LANE))
    a("v_lshlrev_b32 v%d, 4, v%d" % (A_T + 2, A_T + 2))
    a("v_lshl_add_u32 v%d, v%d, 8, v%d" % (A_T + 2, V_H, A_T + 2))
    a("v_add_u32 v%d, %d, v%d" % (A_VV, LDS_V, A_T + 2))
    a("v_add_u32 v%d, -20, v%d" % (A_T + 3, V_R31))
    a("v_cmp_gt_u32 vcc, 8, v%d" % (A_T + 3))
    a("v_mov_b32 v%d, %d" % (A_T + 2, LDS_ONES))
    a("v_mov_b32 v%d, %d" % (A_T + 3, LDS_ONES + 64))
    a("v_cndmask_b32 v%d, v%d, v%d, vcc" % (A_T + 2, A_T + 2, A_T + 3))
    if cfg.get("zpad", 1):
        a("v_and_b32 v%d, 27, v%d" % (A_T + 3, V_R31))
        a("v_cmp_ne_u32 vcc, 16, v%d" % (A_T + 3))
        a("v_add_u32 v%d, 32, v%d" % (A_T + 3, A_T + 2))
        a("v_cndmask_b32 v%d, v%d, v%d, vcc" % (A_T + 2, A_T + 2, A_T + 3))
    a("v_cmp_le_u32 vcc, 16, v%d" % V_R31)
    a("v_mov_b32 v%d, %d" % (A_VINC, UNR * 1024))
    a("v_cndmask_b32 v%d, v%d, v%d, vcc" % (A_VV, A_VV, A_T + 2))
    a("v_cndmask_b32 v%d, v%d, v%d, vcc" % (A_VINC, A_VINC, V_ZERO))
    for t in range(2):
        n = A_T + 8 + t
        a("v_mov_b32 v%d, 0" % n)
        for r in range(4):
            a("v_dot2_f32_bf16 v%d, v%d, v%d, v%d" % (n, Q[t] + r, Q[t] + r, n))
    for t in range(2):
        xhalf_sum(a, A_T + 8 + t, A_T + 10)
    a_addr(a, SA0, SA1, OFF_WO, 32, 8)
    a("s_mul_i32 s%d, s%d, %d" % (S_W13, S_M, 7 * 32768))
    a("s_lshl_b32 s%d, s%d, 13" % (S_WL, S_W))
    a("s_add_u32 s%d, s%d, s%d" % (S_W13, S_W13, S_WL))
    a("s_add_u32 s%d, s%d, 0x%x" % (S_W13, S_W13, OFF_W13))
    a_addr(a, SW0, SW1, OFF_W2, 112, 28)
    a("s_lshl_b32 s20, s%d, 10" % S_W)
    a("s_add_u32 s21, s33, s20")
    a("s_add_u32 s22, s21, 0x10000")
    a("s_add_u32 s23, s20, %d" % LDS_V)
    a("s_mul_i32 s38, s%d, 0x2000" % S_LAYER)
    a("s_add_u32 s38, s38, 0x%x" % (OFF_FLAGS + FL_KV))
    a("s_and_b32 s17, s2, 7")
    a("s_lshl_b32 s17, s17, 10")
    a("s_add_u32 s38, s38, s17")
    a("s_lshl_b32 s58, s2, 2")
    a("s_add_u32 s58, s58, 0x%x" % OFF_FLW)
    a("s_or_b32 s17, s%d, s%d" % (S_W, S_LAYER))
    a("s_cmp_lg_u32 s17, 0")
    a("s_cselect_b32 s58, 0xf0000000, s58")
    a("s_and_b32 s59, s2, 7")
    a("s_lshl_b32 s59, s59, 10")
    a("s_add_u32 s59, s59, 0x%x" % OFF_FLW)
    a("v_lshlrev_b32 v%d, 10, v%d" % (A_T + 16, V_LANE))
    a("s_getreg_b32 s17, hwreg(HW_REG_XCC_ID)")
    a("s_and_b32 s17, s17, 7")
    a("s_lshl_b32 s17, s17, 1")
    a("v_or_b32 v%d, s17, v%d" % (A_T + 17, V_TAG))
    a("v_and_b32 v%d, 15, v%d" % (A_T + 18, V_LANE))
    a("v_lshlrev_b32 v%d, 5, v%d" % (A_T + 18, A_T + 18))
    a("s_and_b32 s17, s2, 0x87")
    a("s_lshl_b32 s17, s17, 2")
    a("v_add_u32 v%d, s17, v%d" % (A_T + 18, A_T + 18))

    stamp(a, cfg, 1)
    a("s_cmp_lg_u32 s%d, 0" % S_W)
    a("s_cbranch_scc1 L_att_nopoll")
    poll(a, cfg, 38, V_L16, A_T + 12, wide=True, sleep=cfg.get("kv_sleep", 2))
    k2 = A_T + 13
    for d in ("row_shr:1", "row_shr:2", "row_shr:4", "row_shr:8"):
        a("v_max_f32_dpp v%d, v%d, v%d %s row_mask:0xf bank_mask:0xf" % (k2, k2, k2, d))
    a("v_max_f32_dpp v%d, v%d, v%d row_bcast:15 row_mask:0xa bank_mask:0xf" % (k2, k2, k2))
    a("v_max_f32_dpp v%d, v%d, v%d row_bcast:31 row_mask:0xc bank_mask:0xf" % (k2, k2, k2))
    a("v_mov_b32 v%d, %d" % (A_T + 12, LDS_ATT_FLAG + 16 - 63 * 4))
    a("v_add_u32 v%d, v%d, v%d" % (A_T + 12, V_L4, A_T + 12))
    a("s_mov_b32 exec_lo, 0")
    a("s_mov_b32 exec_hi, 0x80000000")
    a("ds_write_b32 v%d, v%d" % (A_T + 12, k2))
    a("s_mov_b64 exec, -1")
    a("s_waitcnt lgkmcnt(0)")
    a("L_att_nopoll:")
    a("s_waitcnt vmcnt(0)")
    a("s_barrier")
    a("s_mov_b64 exec, 0xff")
    a("buffer_store_dword v%d, v%d, s[4:7], s58 offen %s" % (A_T + 17, A_T + 16, SC))
    a("s_mov_b64 exec, -1")
    a("s_mov_b32 s%d, 0xf0000000" % SU.S_DST)
    stamp(a, cfg, 2)
    a("v_mov_b32 v%d, %d" % (A_T + 12, LDS_ATT_FLAG + 16))
    a("ds_read_b32 v%d, v%d" % (A_T + 1, A_T + 12))
    def kvdma(g):
        a("s_add_u32 m0, s20, %d" % (g * 4096))
        a("s_add_u32 s17, s21, %d" % (g * 4096))
        a("buffer_load_dwordx4 v%d, s[4:7], s17 offen %s lds" % (V_L16, SC))
        a("s_add_u32 m0, s23, %d" % (g * 4096))
        a("s_add_u32 s17, s22, %d" % (g * 4096))
        a("buffer_load_dwordx4 v%d, s[4:7], s17 offen %s lds" % (V_L16, SC))

    G1 = 6
    for g in range(G1):
        kvdma(g)
        if g == 3:
            t_g3 = a.vt()
            a("s_waitcnt lgkmcnt(0)")
            for t in range(2):
                n = A_T + 8 + t
                a("v_mul_f32 v%d, v%d, v%d" % (n, A_T + 1, n))
                a("v_sqrt_f32 v%d, v%d" % (n, n))
            for t in range(2):
                n = A_T + 8 + t
                a("v_mul_f32 v%d, %s, v%d" % (n, fl(-1.001), n))
            a("v_min_f32 v%d, v%d, v%d" % (A_T + 10, A_T + 8, A_T + 9))
            a("v_mov_b32 v%d, %s" % (A_T + 11, fl(-cfg.get("bound_t", BOUND_T))))
            a("v_cmp_nge_f32 vcc, v%d, v%d" % (A_T + 10, A_T + 11))
            a("s_lshl_b32 s19, s%d, 2" % S_W)
            a("s_add_u32 s19, s19, %d" % LDS_ATT_FLAG)
            a("v_mov_b32 v%d, s19" % (A_T + 12))
            a("s_cmp_lg_u64 vcc, 0")
            a("s_cselect_b32 s18, 1, 0")
            a("v_mov_b32 v%d, s18" % (A_T + 11))
            a("ds_write_b32 v%d, v%d" % (A_T + 12, A_T + 11))
            for t in range(2):
                for r in range(16):
                    a("v_mov_b32 v%d, v%d" % (A_C[t] + r, A_T + 8 + t))
    stamp(a, cfg, 3)
    a.wait_vm(t_g3)
    a("s_waitcnt lgkmcnt(0)")
    a("s_barrier")
    stamp(a, cfg, 4)
    a("v_mov_b32 v%d, %d" % (A_T + 12, LDS_ATT_FLAG))
    a("ds_read_b128 v[%d:%d], v%d" % (A_T + 4, A_T + 7, A_T + 12))
    a("ds_read_b128 v[%d:%d], v%d" % (A_KF[0], A_KF[0] + 3, V_L16))
    a("ds_read_b128 v[%d:%d], v%d" % (A_VF[0][0], A_VF[0][0] + 3, A_VV))
    a("ds_read_b128 v[%d:%d], v%d offset:512" % (A_VF[0][1], A_VF[0][1] + 3, A_VV))
    a("ds_read_b128 v[%d:%d], v%d offset:1024" % (A_KF[1], A_KF[1] + 3, V_L16))
    a("s_waitcnt lgkmcnt(4)")
    a("v_or_b32 v%d, v%d, v%d" % (A_T + 4, A_T + 4, A_T + 5))
    a("v_or3_b32 v%d, v%d, v%d, v%d" % (A_T + 4, A_T + 4, A_T + 6, A_T + 7))
    a("v_readfirstlane_b32 s18, v%d" % (A_T + 4))
    a("s_cmp_eq_u32 s18, 0")
    a("s_cbranch_scc1 L_att_fast")
    keep = a.dma_issued
    for g in range(G1, 16):
        kvdma(g)
    a.dma_issued = keep
    a("s_waitcnt vmcnt(0)")
    a("s_barrier")
    a("v_mov_b32 v%d, 0xff800000" % (A_T + 8))
    a("v_mov_b32 v%d, 0xff800000" % (A_T + 9))
    a("v_mov_b32 v%d, v%d" % (A_T + 12, V_L16))
    a("s_mov_b32 s19, 64")
    a("L_att_pre:")
    a("ds_read_b128 v[%d:%d], v%d" % (A_P[0], A_P[0] + 3, A_T + 12))
    a("v_add_u32 v%d, 1024, v%d" % (A_T + 12, A_T + 12))
    a("s_waitcnt lgkmcnt(0)")
    for t in range(2):
        mf(a, A_S[t], vr(A_P[0], 4), vr(Q[t], 4), "0")
    for t in range(2):
        for r in range(0, 16, 2):
            a("v_max3_f32 v%d, v%d, v%d, v%d" % (A_T + 8 + t, A_S[t] + r, A_S[t] + r + 1, A_T + 8 + t))
    a("s_sub_u32 s19, s19, 1")
    a("s_cmp_lg_u32 s19, 0")
    a("s_cbranch_scc1 L_att_pre")
    for t in range(2):
        n = A_T + 8 + t
        a("v_mov_b32 v%d, v%d" % (A_T + 10, n))
        a("v_permlane32_swap_b32 v%d, v%d" % (n, A_T + 10))
        a("v_max_f32 v%d, v%d, v%d" % (n, n, A_T + 10))
        a("v_sub_f32 v%d, 0, v%d" % (n, n))
        for r in range(16):
            a("v_mov_b32 v%d, v%d" % (A_C[t] + r, n))
    a("L_att_fast:")
    a("s_waitcnt lgkmcnt(0)")

    def m4(d, x, y, c):
        mf(a, d, vr(x, 4), vr(y, 4), vr(c, 16))

    def ex(r):
        a("v_exp_f32 v%d, v%d" % (r, r))

    def cv(d, s):
        a("v_cvt_pk_bf16_f32 v%d, v%d, v%d" % (d, s, s + 1))

    m4(A_S[0], A_KF[0], Q[0], A_C[0])
    a("s_nop 7")

    def lines_of(fn):
        b = Asm()
        fn(b)
        return [l.strip() for l in b.lines]

    def groups(lines):
        out, cur = [], []
        for x in lines:
            cur.append(x)
            if x.startswith("buffer_"):
                out.append(cur)
                cur = []
        assert not cur
        return out

    def kvl(g):
        return ["s_add_u32 m0, s20, %d" % (g * 4096), "s_add_u32 s17, s21, %d" % (g * 4096),
                "buffer_load_dwordx4 v%d, s[4:7], s17 offen %s lds" % (V_L16, SC),
                "s_add_u32 m0, s23, %d" % (g * 4096), "s_add_u32 s17, s22, %d" % (g * 4096),
                "buffer_load_dwordx4 v%d, s[4:7], s17 offen %s lds" % (V_L16, SC)]

    q_kv = []
    for g in range(G1, 16):
        q_kv += [(x, g) for x in groups(kvl(g))]
    q_w = []
    for i in range(8):
        q_w += groups(lines_of(lambda b: blk(b, ar(4 * i, 4), SA0, i)))
        q_w += groups(lines_of(lambda b: blk(b, ar(32 + 4 * i, 4), SA1, i)))
    for idx in range(46):
        q_w += groups(lines_of(lambda b: w2load(b, idx, SW0, SW1)))
    q_t = [["s_add_u32 s17, s49, %d" % (q * 4096), "buffer_load_dword v%d, v%d, s[4:7], s17 offen sc1" % (A_T + 3, A_T + 2)] for q in range(5)]
    if not cfg.get("touch13", 1):
        q_t = []
    q_d = groups(dma_lines(0) + dma_lines(1))
    a("s_mul_i32 s49, s%d, %d" % (S_M, 7 * 32768))
    a("s_and_b32 s18, s%d, 1" % S_RG)
    a("s_mul_i32 s18, s18, %d" % 81920)
    a("s_add_u32 s49, s49, s18")
    a("s_mul_i32 s18, s%d, %d" % (S_W, 20480))
    a("s_add_u32 s49, s49, s18")
    a("s_add_u32 s49, s49, 0x%x" % (OFF_W13 + 65536))
    a("v_lshlrev_b32 v%d, 6, v%d" % (A_T + 2, V_LANE))
    tg = {}
    U_PROBE, U_CHK = cfg.get("u_probe", 21), cfg.get("u_chk", 24)
    PB = A_T + 12
    def slot(u):
        grp, g = None, None
        if q_kv:
            grp, g = q_kv.pop(0)
        elif u == U_PROBE:
            a("buffer_load_dwordx4 v[%d:%d], v%d, s[4:7], s59 offen %s" % (PB, PB + 3, V_L16, SC))
            tg["probe"] = a.vt()
        elif u == U_CHK:
            assert not q_kv
            a("s_waitcnt vmcnt(0)")
            a("L_att_wchk:")
            for r in range(4):
                a("v_and_b32 v%d, -15, v%d" % (PB + r, PB + r))
            a("v_cmp_ne_u32 vcc, v%d, v%d" % (V_TAG, PB))
            for r in range(1, 4):
                a("v_cmp_ne_u32 s[18:19], v%d, v%d" % (V_TAG, PB + r))
                a("s_or_b64 vcc, vcc, s[18:19]")
            a("s_cmp_eq_u64 vcc, 0")
            a("s_cbranch_scc1 L_att_wok")
            if cfg.get("spin_limit"):
                a("s_sub_u32 s46, s46, 1")
                a("s_cbranch_scc1 L_att_wok")
            keep = a.vm_issued
            a("s_sleep 4")
            a("buffer_load_dwordx4 v[%d:%d], v%d, s[4:7], s59 offen %s" % (PB, PB + 3, V_L16, SC))
            a("s_waitcnt vmcnt(0)")
            a("s_branch L_att_wchk")
            a.vm_issued = keep
            a("L_att_wok:")
            a("buffer_load_dword v%d, v%d, s[4:7], s59 offen %s" % (PB, A_T + 18, SC))
            tg["grp"] = a.vt()
        elif u == U_CHK + 8:
            a.wait_vm(tg["grp"])
            a("v_cmp_ne_u32 vcc, v%d, v%d" % (A_T + 17, PB))
            a("s_cmp_eq_u64 vcc, 0")
            a("s_cselect_b32 s%d, %d, 0" % (S_LOC, 0 if cfg.get("force_remote") else 1))
        elif u < U_CHK:
            pass
        elif u >= 68 and q_d:
            grp = q_d.pop(0)
        elif q_t and u % 8 == 1:
            grp = q_t.pop(0)
        elif q_w:
            grp = q_w.pop(0)
        elif q_t:
            grp = q_t.pop(0)
        if grp:
            for x in grp:
                a(x)
            if g is not None:
                tg[g] = a.vt()

    NU = 128
    BAR = {16: None, 36: None}
    for u in range(NU):
        j, t = u >> 1, u & 1
        nj, nt = (u + 1) >> 1, (u + 1) & 1
        pj, pt = (u - 1) >> 1, (u - 1) & 1
        jj = j % UNR
        sb, nsb = A_S[u % 2], A_S[(u + 1) % 2]
        plo, phi = A_P[(u % 2) * 2], A_P[(u % 2) * 2 + 1]
        pphi = A_P[((u - 1) % 2) * 2 + 1]
        if u + 1 < NU:
            m4(nsb, A_KF[nj % 2], Q[nt], A_C[nt])
        if t == 0 and j + 2 < 64:
            a("ds_read_b128 v[%d:%d], v%d offset:%d" % (A_KF[j % 2], A_KF[j % 2] + 3, V_L16, (j + 2) * 1024))
        if t == 1 and u > U_CHK and cfg.get('slot3', 0):
            slot(u)
        for r in range(0, 4):
            ex(sb + r)
        if u > 0:
            m4(A_O[pt], A_VF[pj % 2][1], pphi, A_O[pt])
        if t == 0 and j + 1 < 64:
            off = (jj + 1) * 1024
            a("ds_read_b128 v[%d:%d], v%d offset:%d" % (A_VF[(j + 1) % 2][0], A_VF[(j + 1) % 2][0] + 3, A_VV, off))
            a("ds_read_b128 v[%d:%d], v%d offset:%d" % (A_VF[(j + 1) % 2][1], A_VF[(j + 1) % 2][1] + 3, A_VV, off + 512))
        if t == 1:
            slot(u)
        for r in range(4, 9):
            ex(sb + r)
        for r in range(0, 4):
            cv(plo + r, sb + 2 * r)
        for r in range(9, 12):
            ex(sb + r)
        m4(A_O[t], A_VF[j % 2][0], plo, A_O[t]) if u > 1 else mf(a, A_O[t], vr(A_VF[j % 2][0], 4), vr(plo, 4), "0")
        if t == 1:
            a("s_waitcnt lgkmcnt(0)")
            if (j + 3) in BAR:
                g = BAR[j + 3]
                if g is not None:
                    a.wait_vm(tg[g])
                a("s_barrier")
                if j + 3 == 16:
                    stamp(a, cfg, 6)
        else:
            slot(u)
        for r in range(12, 16):
            ex(sb + r)
        if t == 1 and jj == UNR - 1:
            a("v_add_u32 v%d, v%d, v%d" % (A_VV, A_VINC, A_VV))
        for r in range(4, 8):
            cv(phi + r - 4, sb + 2 * r)
    assert not (q_kv or q_w or q_t or q_d), (len(q_kv), len(q_w), len(q_t), len(q_d))
    units = [(63, 1)]
    U = 128
    a("L_att_done:")
    DUAL[0] = bool(cfg.get("dual", 1))
    stamp(a, cfg, 7)
    lj, lt = units[-1]
    m4(A_O[lt], A_VF[lj % 2][1], A_P[((U - 1) % 2) * 2 + 1], A_O[lt])
    layer_off(a, 34, OFF_O, X_STRIDE)
    a("s_lshl_b32 s18, s%d, 15" % S_RT)
    a("s_add_u32 s34, s34, s18")
    a("s_lshl_b32 s18, s%d, 11" % S_NT)
    a("s_add_u32 s34, s34, s18")
    for t in range(2):
        a("v_rcp_f32 v%d, v%d" % (A_T, A_O[t] + 8))
        for r in range(8):
            a("v_mul_f32 v%d, v%d, v%d" % (A_O[t] + r, A_T, A_O[t] + r))
        pack8(a, A_P[t], A_O[t])
        st4(a, A_P[t], V_L16, 34, t * 1024)
    flag_addr(a, S_FO, FL_O, S_RB, 7, S_HQ)
    publish(a, S_FO, [(34, 2048, 0)])
    stamp(a, cfg, 8)


def phase_wo(a, cfg):
    SB0, SB1, SX = 26, 27, 28
    a("s_barrier")
    if not cfg.get("pf_att", 1):
        for i in range(8):
            blk(a, ar(4 * i, 4), 24, i)
            blk(a, ar(32 + 4 * i, 4), 25, i)
    b = Asm()
    dma13(b, 2)
    b("s_mul_i32 s29, s%d, %d" % (S_M, 7 * 1024))
    b("s_lshl_b32 s17, s%d, 11" % S_W)
    b("s_add_u32 s29, s29, s17")
    b("s_add_u32 m0, s17, %d" % LDS_CS)
    b("s_add_u32 s29, s29, 0x%x" % OFF_CSX)
    b("buffer_load_dwordx4 v%d, s[4:7], s29 offen sc1 lds" % V_L16)
    b("buffer_load_dwordx4 v%d, s[4:7], s29 offen offset:1024 sc1 lds" % V_L16)
    wside = [l.strip() for l in b.lines]
    layer_off(a, SX, OFF_O, X_STRIDE)
    b_addr(a, SB0, SB1, SX, 32, 8)
    reduce_addr(a, LDS_R1)
    out_addr(a, 1)
    flag_addr(a, 38, FL_O, S_RB, 7)
    a("s_lshl_b32 s17, s%d, 5" % S_W)
    a("s_add_u32 s38, s38, s17")
    a("v_and_b32 v%d, 28, v%d" % (G_T + 5, V_L4))
    flag_addr(a, S_FX1, FL_X1, S_RG, 8, S_M)
    stamp(a, cfg, 8)
    poll(a, cfg, 38, G_T + 5, G_T + 4)
    stamp(a, cfg, 9)
    gemm64_core(a, cfg, 8, lambda i: ar(4 * i, 4), lambda i: ar(32 + 4 * i, 4), lambda e: ar(64 + 4 * e, 4),
                lambda e: blk(a, ar(64 + 4 * e, 4), SB1 if e < 8 else SB0, e % 8, SC), 16, ramp=cfg.get("ramp1", 8), resid=True)
    res_epilogue(a, cfg, 1, None)
    stamp(a, cfg, 10)
    publish(a, S_FX1, [(34, 2048, 0), (35, 256, 0)], between=wside)
    stamp(a, cfg, 11)


F_ACC = [24, 40, 56, 72]
NACC = 4
F_W = 88
F_CS = 120
F_H = 128
F_ST = 136
F_T = 168
F_LA = [184, 185]
F_NMU, F_C1, F_RS2, F_CSA, F_LG = 186, 187, 188, 189, 198
F_TA = 172


def phase_ffn1(a, cfg):
    SX, SH = 24, 27
    G3 = cfg.get("g0", 2) == 3
    if G3:
        a("s_mul_i32 s17, s%d, 6144" % S_W)
        a("s_sub_u32 s29, s%d, s%d" % (S_W13, S_WL))
        a("s_add_u32 s29, s29, s17")
        a("s_add_u32 m0, s17, %d" % LDS_E)
        a("s_add_u32 s29, s29, %d" % (4 * 32768))
        for q in range(4):
            a("buffer_load_dwordx4 v%d, s[4:7], s29 offen offset:%d sc1 lds" % (V_L16, q * 1024))
        a("s_add_u32 m0, s17, %d" % (LDS_E + 4096))
        a("s_add_u32 s29, s29, 4096")
        for q in range(2):
            a("buffer_load_dwordx4 v%d, s[4:7], s29 offen offset:%d sc1 lds" % (V_L16, q * 1024))
        a("s_lshl_b32 s28, s%d, 11" % S_W)
        a("s_sub_u32 s33, s%d, s%d" % (S_W13, S_WL))
        a("s_add_u32 s33, s33, s28")
        a("s_add_u32 s33, s33, %d" % (4 * 32768 + 24 * 1024))
    a("s_lshl_b32 s30, s%d, 2" % S_RG)
    a("s_add_u32 s30, s30, s%d" % S_W)
    layer_off(a, SX, OFF_X, X_STRIDE, 2, 1)
    a("s_lshl_b32 s17, s30, 15")
    a("s_add_u32 s%d, s%d, s17" % (SX, SX))
    a("s_add_u32 s25, s%d, %d" % (SX, 28 * 1024))
    layer_off(a, 26, OFF_STAT, STAT_STRIDE, 2, 1)
    a("s_lshl_b32 s18, s30, 12")
    a("s_add_u32 s26, s26, s18")
    layer_off(a, SH, OFF_H, H_STRIDE)
    a("s_mul_i32 s17, s30, %d" % (112 * 1024))
    a("s_add_u32 s%d, s%d, s17" % (SH, SH))
    a("s_mul_i32 s17, s%d, %d" % (S_M, 7 * 1024))
    a("s_add_u32 s%d, s%d, s17" % (SH, SH))
    a("v_mov_b32 v%d, v%d" % (F_LA[0], V_L16))
    a("v_add_u32 v%d, 65536, v%d" % (F_LA[1], V_L16))
    a("v_add_u32 v%d, %d, v%d" % (F_CSA, LDS_E, V_L16))
    a("v_and_b32 v%d, 0x380, v%d" % (F_TA, V_L128))
    a("v_add_u32 v%d, 4096, v%d" % (F_TA + 1, F_TA))
    a_addr(a, 53, 54, OFF_W2, 112, 28)
    flag_addr(a, 38, FL_X1, S_RG, 8)
    a("s_lshr_b32 s17, s%d, 1" % S_W)
    a("s_lshl_b32 s17, s17, 7")
    a("s_add_u32 s38, s38, s17")
    a("s_and_b32 s17, s%d, 1" % S_W)
    a("s_lshl_b32 s17, s17, 2")
    a("s_add_u32 s38, s38, s17")
    lane_pat(a, F_T + 2, 15, 0, 3)
    flag_addr(a, S_FH, FL_H, S_RG, 9, S_M, per_layer=0x2000)
    stamp(a, cfg, 1)
    a("s_barrier")
    dma13(a, 3)
    t3 = a.vt()
    poll(a, cfg, 38, F_T + 2, F_T)
    stamp(a, cfg, 2)
    tX = {}

    def xload(i):
        if i < 28:
            blk(a, ar(4 * i, 4), SX, i, SC)
        else:
            blk(a, ar(4 * i, 4), 25, i - 28, SC)
        tX[i] = a.vt()

    XW = cfg.get("xwin", 14)
    for i in range(XW):
        xload(i)

    def wread(tile, ks, ring):
        slot = SLOT13[tile]
        if ks == 32:
            a("ds_read_b128 v[%d:%d], v%d offset:%d" % (F_W + 4 * ring, F_W + 4 * ring + 3, F_CSA, LDS_CS - LDS_E + tile * 1024))
            return
        if G3 and tile == 4:
            a("ds_read_b128 v[%d:%d], v%d offset:%d" % (F_W + 4 * ring, F_W + 4 * ring + 3, F_CSA if ks < 24 else F_LA[0], (ks % 24) * 1024))
            return
        a("ds_read_b128 v[%d:%d], v%d offset:%d" % (F_W + 4 * ring, F_W + 4 * ring + 3, F_LA[slot >> 1], (slot & 1) * 32768 + ks * 1024))

    def epi(tile):
        acc, cs = F_ACC[tile % NACC], F_CS
        hp = F_H + 4 * (tile % 2)
        out = []
        for e in range(8):
            out.append("v_fma_f32 v%d, v%d, v%d, v%d" % (F_T + 8 + e, F_C1, acc + e, F_LG))
        for e in range(8):
            out.append("v_exp_f32 v%d, v%d" % (F_T + 8 + e, F_T + 8 + e))
            out.append("v_mul_f32 v%d, v%d, v%d" % (acc + e, acc + e, acc + 8 + e))
            if e:
                out.append("v_add_f32 v%d, v%d, v%d" % (F_T + 7 + e, F_RS2, F_T + 7 + e))
        out.append("v_add_f32 v%d, v%d, v%d" % (F_T + 15, F_RS2, F_T + 15))
        for e in range(8):
            out.append("v_rcp_f32 v%d, v%d" % (F_T + 8 + e, F_T + 8 + e))
            if e:
                out.append("v_mul_f32 v%d, v%d, v%d" % (acc + e - 1, F_T + 7 + e, acc + e - 1))
        out.append("v_mul_f32 v%d, v%d, v%d" % (acc + 7, F_T + 15, acc + 7))
        for i in range(4):
            out.append("v_cvt_pk_bf16_f32 v%d, v%d, v%d" % (hp + i, acc + 2 * i, acc + 2 * i + 1))
        out.append("buffer_store_dwordx4 v[%d:%d], v%d, s[4:7], s%d offen offset:%d" % (hp, hp + 3, V_OFF[tile // 4], SH, (tile % 4) * 1024))
        if DBL[0]:
            out.append("buffer_store_dwordx4 v[%d:%d], v%d, s[4:7], s%d offen offset:%d" % (hp, hp + 3, V_OFF[tile // 4], SH, (tile % 4) * 1024))
        return out

    G0 = cfg.get("g0", 2)
    steps = []
    for ks in range(33):
        for tl in range(G0):
            steps.append((tl, ks))
    for tile in range(G0, 7):
        for ks in range(33):
            steps.append((tile, ks))
    N = len(steps)
    PF = cfg.get('pf', 6)
    lt = {}
    first_of, last_of = {}, {}
    for n, (tile, ks) in enumerate(steps):
        first_of.setdefault(tile, n)
        last_of[tile] = n
    dma_q = []
    fence_t = {}

    def do_read(n):
        tile, ks = steps[n]
        if G3:
            ft = 5 if (tile, ks) == (4, 24) else (6 if (tile, ks) == (6, 0) else None)
            if ft:
                assert ft in fence_t and not any(q[0] <= ft for q in dma_q), ft
                a.wait_vm(fence_t[ft])
                a("s_barrier")
        elif n == first_of[tile] and tile >= 4:
            assert tile in fence_t and not any(q[0] == tile for q in dma_q), tile
            a.wait_vm(fence_t[tile])
            a("s_barrier")
        wread(tile, ks, n % 8)
        lt[n] = a.lt()

    cs_t = 0
    for n in range(PF):
        do_read(n)
    pending = []
    nx = XW
    nst, st_t, st_n, early_done, rb_done = 0, {}, {}, False, False
    for n, (tile, ks) in enumerate(steps):
        if tile >= G0 and ks == 0:
            stamp(a, cfg, 1 + tile)
        if tile == 0 and ks < 32:
            a.wait_vm(tX[ks])
        if n % 2 == 0:
            a.wait_lg(lt[min(n + 1, N - 1)])
            lg_done = lt[min(n + 1, N - 1)]
        acc = F_ACC[tile % NACC]
        if ks == 0 and tile >= NACC:
            assert nst > tile - NACC, (tile, nst)
        mf(a, acc, vr(F_W + 4 * (n % 8), 4), ar(4 * ks, 4) if ks < 32 else vr(F_CS, 4), "0" if ks == 0 else vr(acc, 16))
        if (tile == 0 or (tile < G0 and cfg.get('xfast', 0))) and nx < 32:
            xload(nx)
            nx += 1
            if nx == 32:
                load_stats(a, F_ST, 26, F_T, SC)
                t_st = a.vt()
        if n + PF < N:
            do_read(n + PF)
        if n == last_of[G0 - 1] + 2:
            a("s_barrier")
            if G3:
                dma_q += [(4, "s_mov_b32 m0, s28"), (4, "s_nop 0"),
                          (4, "buffer_load_dwordx4 v%d, s[4:7], s33 offen sc1 lds" % V_L16),
                          (4, "buffer_load_dwordx4 v%d, s[4:7], s33 offen offset:1024 sc1 lds" % V_L16)]
                for tl in (5, 6):
                    dma_q += [(tl, x) for x in dma_lines(tl)]
                b = Asm()
                for idx in range(46, 56):
                    w2load(b, idx, 53, 54)
                dma_q += [(99, l.strip()) for l in b.lines]
            else:
                for tl in range(4, 4 + G0):
                    dma_q += [(tl, x) for x in dma_lines(tl)]
        for old in range(G0, 3):
            if n == last_of[old] + 2:
                a("s_barrier")
                dma_q += [(old + 4, x) for x in dma_lines(old + 4)]
                if old == 2:
                    b = Asm()
                    for idx in range(46, 56):
                        w2load(b, idx, 53, 54)
                    dma_q += [(99, l.strip()) for l in b.lines]
        dcost = 0
        if dma_q and ((n >= cfg.get("d3_from", 38) and n % cfg.get("d3_every", 3) == 0) if tile < G0 else n % cfg.get("dma_every", 3) == 0):
            while dma_q:
                tl, x = dma_q.pop(0)
                a(x)
                dcost += cfg.get("dma_cost", 8)
                if x.startswith("buffer_load"):
                    fence_t[tl] = a.vt()
                    break
        if n == last_of[G0 - 1] - G0 - 2:
            a.wait_vm(t_st)
            finish_stats(a, F_ST, F_NMU, F_RS2)
            a("v_mul_f32 v%d, %s, v%d" % (F_C1, fl(-LOG2E), F_RS2))
            a("v_mov_b32 v%d, v%d" % (F_RS2, F_ST + 1))
            a("v_log_f32 v%d, v%d" % (F_LG, F_ST + 1))
            bextra(a, F_NMU, F_CS)
        for tl in range(0, 6):
            if n == max(last_of[tl], last_of[G0 - 1]) + 3:
                pending += epi(tl)
        if nst >= EARLY and not rb_done and n >= st_n[EARLY - 1] + 1:
            if cfg.get("h_wt", 6) < EARLY:
                readback(a, [(SH, 1024 * EARLY, 0)])
                a("s_mov_b64 exec, -1")
                dcost += 24
            rb_done = n
        for tl in range(cfg.get("h_touch", 0)):
            if tl in st_n and n == st_n[tl] + cfg.get("touch_lag", 24):
                a("buffer_load_dword v%d, v%d, s[4:7], s%d offen offset:%d sc1" % (V_P2, F_TA + (tl // 4), SH, (tl % 4) * 1024))
                a.vm_issued -= 0
                dcost += 8
        cost = dcost
        lim = cfg.get("epi_cost", 16)
        while pending:
            x = pending[0]
            if x == "CSWAIT":
                pending.pop(0)
                if cs_t > lg_done:
                    a.wait_lg(cs_t)
                    cost += 4
                continue
            cx = 8 if x.split()[0] in TRANS else (8 if x.startswith("buffer_") else 4)
            if cost + cx > lim:
                break
            pending.pop(0)
            if x.startswith("buffer_store") and nst == EARLY + 1:
                assert rb_done
                assert not dma_q
                a("s_waitcnt vmcnt(0)")
                a("s_mov_b64 exec, 1")
                emit_l(a, "buffer_store_dword v%d, v%d, s[4:7], s%d offen offset:%d" % (V_TAG, V_ZERO, S_FH, 0x100))
                a("s_mov_b64 exec, -1")
                early_done = True
            if x.startswith("buffer_store") and nst < cfg.get("h_wt", 6):
                a(x + " sc1")
            elif x.startswith("buffer_store"):
                emit_l(a, x)
            else:
                a(x)
            cost += cx
            if x.startswith("ds_read"):
                cs_t = a.lt()
            if x.startswith("buffer_store"):
                nst += 1
                st_t[nst - 1] = a.vt()
                st_n[nst - 1] = n
    assert early_done
    assert not dma_q
    stamp(a, cfg, 8)
    for x in pending + epi(6):
        if x == "CSWAIT":
            a.wait_lg(cs_t)
            continue
        if x.startswith("buffer_store"):
            emit_l(a, x)
        else:
            a(x)
    stamp(a, cfg, 9)
    h0 = max(EARLY, cfg.get("h_wt", 6))
    assert nst >= cfg.get("h_wt", 6)
    a("s_add_u32 s17, s%d, %d" % (SH, h0 * 1024))
    publish(a, S_FH, [(17, 1024 * (7 - h0), 0)])
    stamp(a, cfg, 10)


def phase_ffn2(a, cfg):
    SB0, SB1, SX = 26, 27, 28
    SW0, SW1 = 24, 25
    side = []
    if cfg.get("touchq", 0):
        a("s_lshl_b32 s49, s%d, 16" % S_HQ)
        a("s_and_b32 s18, s%d, 3" % S_RB)
        a("s_lshl_b32 s18, s18, 14")
        a("s_add_u32 s49, s49, s18")
        a("s_lshl_b32 s18, s%d, 12" % S_W)
        a("s_add_u32 s49, s49, s18")
        a("s_add_u32 s49, s49, 0x%x" % OFF_WQ)
        a("s_cmp_eq_u32 s%d, 1" % S_LAYER)
        a("s_cselect_b32 s49, 0xf0000000, s49")
        a("v_lshlrev_b32 v%d, 6, v%d" % (G_T + 2, V_LANE))
        side.append("buffer_load_dword v%d, v%d, s[4:7], s49 offen" % (G_T + 3, G_T + 2))
    layer_off(a, SX, OFF_H, H_STRIDE)
    b_addr(a, SB0, SB1, SX, 112, 28)
    reduce_addr(a, LDS_R1)
    out_addr(a, 2)
    flag_addr(a, 38, FL_H, S_RG, 9, per_layer=0x2000)
    a("s_lshl_b32 s17, s%d, 6" % S_W)
    a("s_add_u32 s38, s38, s17")
    a("s_and_b32 s17, s%d, 1" % S_RB)
    a("s_lshl_b32 s17, s17, 3")
    a("s_add_u32 s38, s38, s17")
    lane_pat(a, G_T + 6, 7, 0, 2)
    xin_flag_addr(a, 39, True, 1)
    stamp(a, cfg, 8)
    poll(a, cfg, 38, G_T + 6, G_T + 4, imm=0x100)
    stamp(a, cfg, 9)
    wb = cfg.get("wbl2", 0)
    R = 32

    def hreg(e):
        return ar(4 * (e % R), 4)

    early = [7 * mm + tl for tl in range(EARLY) for mm in range(4)]
    late = [7 * mm + tl for tl in range(EARLY, 7) for mm in range(4)]
    order = [(1, i) for i in early] + [(0, i) for i in early] + [(1, i) for i in late] + [(0, i) for i in late]
    tp = {}

    def probe():
        a("buffer_load_dword v%d, v%d, s[4:7], s38 offen %s" % (G_T + 5, G_T + 6, SC))
        tp[0] = a.vt()

    def check():
        a.wait_vm(tp[0])
        a("v_cmp_ne_u32 vcc, v%d, v%d" % (V_TAG, G_T + 5))
        a("s_cbranch_vccz L_ffn2_go")
        keep = a.vm_issued
        poll(a, cfg, 38, G_T + 6, G_T + 4)
        a.vm_issued = keep
        a("L_ffn2_go:")
        if wb:
            a("s_lshr_b32 s17, s2, %d" % (3 if wb == 1 else 6))
            a("s_or_b32 s17, s17, s%d" % S_W)
            a("s_xor_b32 s18, s%d, 1" % S_LAYER)
            a("s_or_b32 s17, s17, s18")
            a("s_cmp_lg_u32 s17, 0")
            a("s_cbranch_scc1 L_ffn2_nowb")
            a("buffer_wbl2 sc1")
            a("L_ffn2_nowb:")
        stamp(a, cfg, 3)

    pp = cfg.get("probe_at", 16)
    gemm64_core(a, cfg, 28, lambda i: w2reg(0, i), lambda i: w2reg(1, i), hreg,
                lambda e: blk(a, hreg(e), SB1 if order[e][0] else SB0, order[e][1], SC), cfg.get('win2', 18), order=order,
                gate=(2 * len(early), probe, check, pp, pp), side=side, side_from=cfg.get('w2_side', 6), side_n=1,
                side2=wq_lines(), side2_from=cfg.get('wq_from', 32), ramp=cfg.get('ramp2', 10), resid=True)
    res_epilogue(a, cfg, 2, "L_final")
    stamp(a, cfg, 10)
    publish(a, 39, [(34, 2048, 0), (35, 256, 0)])
    stamp(a, cfg, 11)


def final_store(a):
    a("v_permlane32_swap_b32 v%d, v%d" % (V_RES, V_RES + 2))
    a("v_permlane32_swap_b32 v%d, v%d" % (V_RES + 1, V_RES + 3))
    a("v_permlane32_swap_b32 v%d, v%d" % (V_RES + 4, V_RES + 6))
    a("v_permlane32_swap_b32 v%d, v%d" % (V_RES + 5, V_RES + 7))
    a("s_lshl_b32 s17, s%d, 15" % S_RT)
    a("s_lshl_b32 s18, s%d, 6" % S_NT)
    a("s_add_u32 s17, s17, s18")
    a("v_lshlrev_b32 v%d, 10, v%d" % (G_T + 2, V_R31))
    a("v_lshl_add_u32 v%d, v%d, 4, v%d" % (G_T + 2, V_H, G_T + 2))
    a("buffer_store_dwordx4 v[%d:%d], v%d, s[8:11], s17 offen" % (V_RES, V_RES + 3, G_T + 2))
    a("buffer_store_dwordx4 v[%d:%d], v%d, s[8:11], s17 offen offset:32" % (V_RES + 4, V_RES + 7, G_T + 2))


def st_begin(a, cfg):
    kern.stamp_init(a, cfg)


def st_end(a, cfg, k):
    if not cfg.get("stamps"):
        return
    stamp(a, cfg, NSTAMP - 1)
    a("s_memrealtime s[62:63]")
    a("s_waitcnt lgkmcnt(0)")
    a("s_mov_b32 s79, s62")
    a("s_mul_i32 s60, s3, 5\ns_add_u32 s60, s60, %d" % k)
    a("s_lshl_b32 s60, s60, 16")
    a("s_lshl_b32 s61, s2, 8")
    a("s_add_u32 s60, s60, s61")
    a("s_lshl_b32 s61, s12, 6")
    a("s_add_u32 s60, s60, s61")
    a("s_add_u32 s60, s60, 0x%x" % kern.OFF_STAMP)
    for i in range(16):
        a("v_writelane_b32 v199, s%d, %d" % (64 + i, i))
    a("s_mov_b32 exec_lo, 0xffff\ns_mov_b32 exec_hi, 0x0")
    a("buffer_store_dword v199, v%d, s[4:7], s60 offen" % V_L4)
    a("s_mov_b64 exec, -1")


def dbgt(a, cfg, k, last=False):
    if not cfg.get("dbgtime"):
        return
    L = a.newlabel("L_dt")
    a("s_cmp_lg_u32 s2, %d" % (cfg["dbgtime"] - 1))
    a("s_cbranch_scc1 %s" % L)
    a("s_memrealtime s[64:65]")
    a("s_memtime s[66:67]")
    a("s_mov_b32 s68, s98\ns_mov_b32 s69, s99\ns_mov_b32 s70, 256\ns_mov_b32 s71, 0x00020000")
    a("s_mul_i32 s72, s3, 20")
    a("s_waitcnt lgkmcnt(0)")
    a("s_sub_u32 s64, s64, s60")
    a("s_sub_u32 s66, s66, s62")
    a("v_mov_b32 v199, s64")
    a("buffer_store_dword v199, v%d, s[68:71], s72 offen offset:%d" % (V_ZERO, 4 + 4 * k))
    if last:
        a("v_mov_b32 v198, s66")
        a("buffer_store_dword v198, v%d, s[68:71], 0 offen offset:%d" % (V_ZERO, 4 * 13))
    a(L + ":")


KNAME = kern.NAME + "_kernel"


def build(cfg):
    rep = []
    DBL[0] = cfg.get("dbl", 0)
    TOUCH[0] = cfg.get("ptouch", 0)
    COMPACT[0] = cfg.get("compact", 1)
    DUAL[0] = False
    LSC[0] = cfg.get("lsc", "")
    RBW[0] = cfg.get("rbw", 0)
    global OFF_WKV
    if COMPACT[0]:
        OFF_WKV = SU.OFF_WKV = C_WKV
    a = Asm()
    a("s_load_dwordx16 s[80:95], s[0:1], 0")
    a("s_load_dwordx2 s[96:97], s[0:1], 64")
    a("s_load_dwordx2 s[98:99], s[0:1], 80")
    kern.common_prologue(a, True)
    a("v_mov_b32 v%d, 0" % V_ZERO)
    a("v_mov_b32 v199, 0")
    a("v_lshlrev_b32 v%d, 7, v%d" % (V_L128, V_LANE))
    a("v_lshlrev_b32 v%d, 2, v%d" % (V_L4, V_LANE))
    a("s_lshr_b32 s17, s%d, 1" % S_W)
    a("s_and_b32 s18, s%d, 1" % S_W)
    a("s_lshl_b32 s%d, s%d, 1" % (S_NT, S_HQ))
    a("s_add_u32 s%d, s%d, s17" % (S_NT, S_NT))
    a("s_lshl_b32 s%d, s%d, 1" % (S_RT, S_RB))
    a("s_add_u32 s%d, s%d, s18" % (S_RT, S_RT))
    a("s_mov_b32 s%d, 0" % S_LAYER)
    if cfg.get("spin_limit"):
        a("s_mov_b32 s46, %d" % cfg["spin_limit"])
    if cfg.get("dbgtime"):
        a("s_memrealtime s[60:61]")
        a("s_memtime s[62:63]")
        a("s_waitcnt lgkmcnt(0)")
    st_begin(a, cfg)
    SU.startup(a, cfg, sys.modules[__name__])
    dbgt(a, cfg, 0)
    a_addr(a, S_Q0, S_Q1, OFF_WQ, 32, 8)
    a("s_lshl_b32 s%d, s%d, 13" % (S_KVW, S_W))
    a("s_add_u32 s%d, s%d, 0x%x" % (S_KVW, S_KVW, OFF_WKV))
    a("s_and_b32 s17, s2, 7")
    a("s_lshl_b32 s17, s17, 15")
    a("s_add_u32 s%d, s%d, s17" % (S_KVW, S_KVW))
    a("s_cmp_ge_u32 s%d, 4" % S_HQ)
    a("s_cselect_b32 s%d, s%d, s%d" % (S_KVW, S_Q0, S_KVW))
    st_end(a, cfg, 0)
    a("L_layer:")
    for k, ph in enumerate((phase_qkv, phase_att, phase_wo, phase_ffn1, phase_ffn2)):
        st_begin(a, cfg)
        ph(a, cfg)
        st_end(a, cfg, k + 1)
        dbgt(a, cfg, k + 1)
    a("s_mov_b32 s%d, 1" % S_LAYER)
    a("s_branch L_layer")
    a("L_final:")
    final_store(a)
    st_end(a, cfg, 5)
    dbgt(a, cfg, 5, True)
    a("L_exit:")
    a("s_endpgm")
    main_lines, _ = fix_hazards_fast(kern.uniq(a.lines, "main"), rep)

    pf = cfg.get("pfk", 0)
    if pf:
        b = Asm()
        b("s_cmp_ge_u32 s2, 256")
        b("s_cbranch_scc1 L_pf_end")
        b("s_load_dwordx16 s[16:31], s[0:1], 0")
        b("s_load_dwordx2 s[32:33], s[0:1], 64")
        b("s_getpc_b64 s[4:5]")
        b("L_pf_pc:")
        b("s_add_u32 s4, s4, L_code_begin-L_pf_pc")
        b("s_addc_u32 s5, s5, -1")
        b("s_lshr_b32 s6, s2, 3")
        b("s_and_b32 s7, s2, 7")
        b("s_lshl_b32 s8, s6, 11")
        b("v_lshlrev_b32 v1, 3, v0")
        b("v_add_u32 v1, s8, v1")
        b("v_min_u32 v1, L_code_end-L_code_begin-8, v1")
        b("global_load_dwordx2 v[2:3], v1, s[4:5]")
        if pf >= 2:
            b("v_lshlrev_b32 v1, 6, v0")
            b("s_lshl_b32 s8, s6, 14")
            b("v_add_u32 v4, s8, v1")
            b("s_lshl_b32 s9, s7, 18")
            b("s_lshl_b32 s10, s6, 13")
            b("s_add_u32 s9, s9, s10")
            b("v_lshlrev_b32 v5, 5, v0")
            b("v_add_u32 v5, s9, v5")
            b("s_mul_i32 s11, s2, 7168")
            b("v_mul_u32_u24 v6, 28, v0")
            b("v_add_u32 v6, s11, v6")
            b("s_lshl_b32 s11, s2, 11")
            b("v_lshlrev_b32 v7, 3, v0")
            b("v_add_u32 v7, s11, v7")
            b("s_waitcnt lgkmcnt(0)")
            b("global_load_dword v8, v4, s[18:19]")
            b("global_load_dword v9, v5, s[16:17]")
            b("global_load_dword v10, v1, s[20:21]")
            b("global_load_dword v11, v1, s[22:23]")
            b("global_load_dword v12, v6, s[28:29]")
            b("global_load_dword v13, v6, s[30:31]")
            b("global_load_dword v14, v6, s[32:33]")
            b("global_load_dword v15, v7, s[24:25]")
        b("L_pf_end:")
        b("s_endpgm")
        pfl, _ = fix_hazards_fast(["L_code_begin:", "L_code_end:"] + b.lines, rep)
        main_lines2 = [".p2align 8", "pf_kernel:"] + pfl[2:]
        s = "; @launch kernel=pf_kernel grid=(256,1,1) block=(256,1,1) lds=0\n"
        s += "; @launch kernel=%s grid=(256,1,1) block=(256,1,1) lds=%d\n" % (KNAME, 160 * 1024)
    else:
        main_lines2 = []
        s = "; @launch grid=(256,1,1) block=(256,1,1) lds=%d\n" % (160 * 1024)
    s += '.amdgcn_target "amdgcn-amd-amdhsa--gfx950"\n.text\n.globl %s\n.p2align 8\n.type %s,@function\n' % (KNAME, KNAME)
    s += "\n".join(["L_code_begin:", KNAME + ":"] + main_lines + ["L_code_end:"] + main_lines2) + "\n"
    s += '.section .rodata,"a"\n.p2align 6\n' + kernel_desc(KNAME, 512, 256, 102)
    if pf:
        s += ".p2align 6\n" + kernel_desc("pf_kernel", 16, 16, 40)
    return s, rep


if __name__ == "__main__":
    cfg = dict(code_prefetch=True)
    for kv in sys.argv[2:]:
        k, v = kv.split("=")
        cfg[k] = eval(v)
    s, rep = build(cfg)
    open(sys.argv[1], "w").write(s)
    print("auto nops:", sum(r[0] for r in rep), "sites", len(rep), "bytes of source", len(s))
    if cfg.get("verbose"):
        for r in rep:
            print(r)
```

```python
import sys
from asmlib import *
from layout import *
import kern
import startup as SU
from kern import (split3, fl, MF, S_LAYER, S_W, S_RB, S_HQ, S_RG, S_M, V_L16, V_LANE, V_R31, V_H, V_OFF, xhalf_sum,
                  load_stats, finish_stats, pack8, stamp, kernel_desc, prep, NSTAMP)

SC = "sc1"


COMPACT = [1]
CMAP = {OFF_X: 0x800000, OFF_O: 0xC00000, OFF_H: 0xE00000, OFF_STAT: OFF_STAT}
C_WKV = 0x780000
C_END = 0x1500000


def layer_off(a, sdst, base, stride, mul=1, add=0):
    if COMPACT[0] and base in CMAP:
        a("s_mov_b32 s%d, 0x%x" % (sdst, CMAP[base] + (add & 1) * stride))
    else:
        kern.layer_off(a, sdst, base, stride, mul, add)


def blk(a, dst, sbase, i, sc=SC):
    kern.blk(a, dst, sbase, i, SC)


FL_O = 0x0000
FL_X1 = 0x2000
FL_H = 0x8000
FL_XIN = 0x6000
OFF_FLW = 0x64C000
FL_KV = 0x640000 - OFF_FLAGS

S_RT, S_NT = 31, 32
S_FO, S_FX1, S_FH = 40, 41, 42
S_W13, S_WL = 47, 48
S_RET = 44
V_RES = 12
V_TAG = 11
V_L4 = 20
V_ZERO = 21
VB = 24

G_ACC = 24
G_RED = 88
G_ST = 136
G_CS = 152
G_T = 168
V_WR = [184, 185, 186]
V_RD = 187
V_NMU, V_RSTD = 188, 189
G_KVACC = 88
G_Q = 190
W2V = 200

LDS_R1 = 96 * 1024
LDS_RQ = 0
LDS_KVX = 49152
LDS_CSX = 69632
LDS_CS = 152 * 1024
LDS_E = 128 * 1024


DBL = [0]
LSC = ["sc1"]
S_LOC = 57
DUAL = [False]
_dl = [0]


def lstore(text):
    lines = text if isinstance(text, list) else [text]
    if not DUAL[0]:
        return [l + " sc1" for l in lines]
    _dl[0] += 1
    n = _dl[0]
    return (["s_cbranch_scc1 L_ls%da ; needs scc" % n] + [l + " sc1" for l in lines] + ["s_branch L_ls%db" % n, "L_ls%da:" % n] +
            ["!" + l + " " + LSC[0] for l in lines] + ["L_ls%db:" % n])


def emit_l(a, text):
    out = lstore(text)
    if DUAL[0]:
        a("s_cmp_lg_u32 s%d, 0" % S_LOC)
    for l in out:
        if l.startswith("!"):
            a(l[1:])
        else:
            a(l)


def st4(a, data, voff, soff, imm=0):
    emit_l(a, "buffer_store_dwordx4 v[%d:%d], v%d, s[4:7], s%d offen offset:%d" % (data, data + 3, voff, soff, imm))
    if DBL[0]:
        a("buffer_store_dwordx4 v[%d:%d], v%d, s[4:7], s%d offen offset:%d" % (data, data + 3, voff, soff, imm))


TOUCH = [1]
V_L128 = 23
V_P2 = 199


V_L64 = 22


RBW = [0]


def readback(a, regions, final=False):
    if not DUAL[0]:
        return
    L = a.newlabel("L_rb")
    keep = a.vm_issued
    a("s_cmp_eq_u32 s%d, 0" % S_LOC)
    a("s_cbranch_scc1 %s" % L)
    a("v_lshlrev_b32 v%d, 6, v%d" % (V_L64, V_LANE))
    if RBW[0] and final:
        a("s_waitcnt vmcnt(0)")
    for sg, nb, imm in regions:
        n = nb // 64
        assert n <= 64
        a("s_mov_b32 exec_lo, 0x%x" % (((1 << n) - 1) & 0xffffffff))
        a("s_mov_b32 exec_hi, 0x%x" % (((1 << n) - 1) >> 32))
        a("buffer_load_dword v%d, v%d, s[4:7], s%d offen offset:%d %s" % (V_P2, V_L64, sg, imm, SC))
    a(L + ":")
    a.vm_issued = keep


def publish(a, s_addr, regions, imm=0, between=()):
    readback(a, regions, True)
    if between:
        a("s_mov_b64 exec, -1")
        for x in between:
            a(x)
    a("s_waitcnt vmcnt(0)")
    a("s_mov_b64 exec, 1")
    emit_l(a, "buffer_store_dword v%d, v%d, s[4:7], s%d offen offset:%d" % (V_TAG, V_ZERO, s_addr, imm))
    a("s_mov_b64 exec, -1")


def poll(a, cfg, s_addr, voff, vtmp, wide=False, imm=0, sleep=0):
    L = a.newlabel("L_poll")
    if cfg.get("spin_limit"):
        a("s_mov_b32 s46, %d" % cfg["spin_limit"])
    if cfg.get("ppoll", 0) and not wide and not sleep:
        ld = lambda r: a("buffer_load_dword v%d, v%d, s[4:7], s%d offen offset:%d %s" % (r, voff, s_addr, imm, SC))
        ld(vtmp)
        a("s_sleep %d" % cfg.get("ppoll_gap", 2))
        a(L + ":")
        ld(V_P2)
        a("s_waitcnt vmcnt(1)")
        a("v_cmp_ne_u32 vcc, v%d, v%d" % (V_TAG, vtmp))
        a("s_cbranch_vccz %s_out" % L)
        ld(vtmp)
        a("s_waitcnt vmcnt(1)")
        if cfg.get("spin_limit"):
            a("s_sub_u32 s46, s46, 1")
            a("s_cbranch_scc1 %s_out" % L)
        a("v_cmp_ne_u32 vcc, v%d, v%d" % (V_TAG, V_P2))
        a("s_cbranch_vccnz %s" % L)
        a.vm_issued -= 1
        a(L + "_out:")
        return
    a(L + ":")
    if wide:
        a("buffer_load_dwordx4 v[%d:%d], v%d, s[4:7], s%d offen %s" % (vtmp, vtmp + 3, voff, s_addr, SC))
        a("s_waitcnt vmcnt(0)")
        a("v_cmp_ne_u32 s[18:19], v%d, v%d" % (V_TAG, vtmp + 2))
        a("v_cndmask_b32 v%d, v%d, v%d, s[18:19]" % (vtmp, vtmp, V_ZERO))
    else:
        a("buffer_load_dword v%d, v%d, s[4:7], s%d offen offset:%d %s" % (vtmp, voff, s_addr, imm, SC))
        a("s_waitcnt vmcnt(0)")
    if cfg.get("spin_limit"):
        a("s_sub_u32 s46, s46, 1")
        a("s_cbranch_scc1 %s_out" % L)
    a("v_cmp_ne_u32 vcc, v%d, v%d" % (V_TAG, vtmp))
    if sleep:
        a("s_cbranch_vccz %s_out" % L)
        a("s_sleep %d" % sleep)
        a("s_branch %s" % L)
    else:
        a("s_cbranch_vccnz %s" % L)
    a(L + "_out:")


def lane_pat(a, vdst, mask, hi_shift, lo_mul):
    a("v_and_b32 v%d, %d, v%d" % (vdst, mask & ~1, V_LANE))
    a("v_lshlrev_b32 v%d, 3, v%d" % (vdst, vdst))
    a("v_and_b32 v%d, 1, v%d" % (vdst + 1, V_LANE))
    a("v_lshl_add_u32 v%d, v%d, %d, v%d" % (vdst, vdst + 1, lo_mul, vdst))


def flag_addr(a, sdst, base, s_grp, grp_shift, s_mem=None, per_layer=0x1000):
    a("s_mul_i32 s%d, s%d, 0x%x" % (sdst, S_LAYER, per_layer))
    a("s_add_u32 s%d, s%d, 0x%x" % (sdst, sdst, OFF_FLAGS + base))
    a("s_lshl_b32 s17, s%d, %d" % (s_grp, grp_shift))
    a("s_add_u32 s%d, s%d, s17" % (sdst, sdst))
    if s_mem is not None:
        a("s_lshl_b32 s17, s%d, 4" % s_mem)
        a("s_add_u32 s%d, s%d, s17" % (sdst, sdst))
        a("s_lshl_b32 s17, s%d, 2" % S_W)
        a("s_add_u32 s%d, s%d, s17" % (sdst, sdst))


def xin_flag_addr(a, sdst, own, layer_add):
    flag_addr(a, sdst, FL_XIN + 0x1000 * layer_add, S_RB, 7, S_HQ if own else None)


def a_addr(a, s_a0, s_a1, offA, ksA, ksw):
    a("s_mul_i32 s20, s%d, %d" % (S_W, ksw * 1024))
    a("s_mul_i32 s%d, s%d, %d" % (s_a0, S_NT, ksA * 1024))
    a("s_add_u32 s%d, s%d, s20" % (s_a0, s_a0))
    a("s_add_u32 s%d, s%d, 0x%x" % (s_a0, s_a0, offA))
    a("s_xor_b32 s21, s%d, 1" % S_NT)
    a("s_mul_i32 s%d, s21, %d" % (s_a1, ksA * 1024))
    a("s_add_u32 s%d, s%d, s20" % (s_a1, s_a1))
    a("s_add_u32 s%d, s%d, 0x%x" % (s_a1, s_a1, offA))


def b_addr(a, s_b0, s_b1, s_base, ksB, ksw):
    a("s_mul_i32 s20, s%d, %d" % (S_W, ksw * 1024))
    a("s_add_u32 s20, s20, s%d" % s_base)
    a("s_mul_i32 s%d, s%d, %d" % (s_b0, S_RT, ksB * 1024))
    a("s_add_u32 s%d, s%d, s20" % (s_b0, s_b0))
    a("s_xor_b32 s21, s%d, 1" % S_RT)
    a("s_mul_i32 s%d, s21, %d" % (s_b1, ksB * 1024))
    a("s_add_u32 s%d, s%d, s20" % (s_b1, s_b1))


def reduce_addr(a, base):
    for j in (1, 2, 3):
        a("s_xor_b32 s17, s%d, %d" % (S_W, j))
        a("s_mul_i32 s17, s17, 12288")
        a("s_add_u32 s17, s17, %d" % (base + (j - 1) * 4096))
        a("v_add_u32 v%d, s17, v%d" % (V_WR[j - 1], V_L16))
    a("s_mul_i32 s17, s%d, 12288" % S_W)
    a("s_add_u32 s17, s17, %d" % base)
    a("v_add_u32 v%d, s17, v%d" % (V_RD, V_L16))


def mf(a, d, x, y, c):
    a("%s v[%d:%d], %s, %s, %s" % (MF, d, d + 15, x, y, c))


def wr_tile(a, j):
    for q in range(4):
        r = G_ACC + 16 * j + 4 * q
        a("ds_write_b128 v%d, v[%d:%d] offset:%d" % (V_WR[j - 1], r, r + 3, q * 1024))


def rd_tile(a, j, dst):
    for q in range(4):
        a("ds_read_b128 v[%d:%d], v%d offset:%d" % (dst + 4 * q, dst + 4 * q + 3, V_RD, (j - 1) * 4096 + q * 1024))


def gemm64_core(a, cfg, n, A0, A1, Breg, issueB, window, pre_tickets=None, order=None, side=None, side_from=0, side_n=1,
                gate=None, side2=None, side2_from=0, ramp=None, resid=False, extra0=None, hooks=None):
    if order is None:
        order = [(1, i) for i in range(n)] + [(0, i) for i in range(n)]
    M = len(order)
    side = list(side or [])
    t = dict(pre_tickets or {})
    nxt = len(t)
    gpos = gate[0] if gate else M + 1
    gated = [False]

    def try_issue(limit):
        nonlocal nxt
        while nxt < M and nxt < limit:
            if nxt >= gpos and not gated[0]:
                return
            issueB(nxt)
            t[nxt] = a.vt()
            nxt += 1
            if gate and nxt == gate[3]:
                gate[1]()

    try_issue(ramp or window)
    if cfg.get("stamps") != 2:
        stamp(a, cfg, 1)
    last1 = max(e for e, (st, i) in enumerate(order) if st == 1)
    wr1 = last1 + 2
    bar1 = min(M - 2, last1 + 1 + max(2, (M - last1) // 2))
    seen = set()
    for e, (st, i) in enumerate(order):
        if gate and not gated[0] and e == gate[4]:
            assert not side
            gate[2]()
            gated[0] = True
            try_issue(e + window)
        if hooks and e in hooks:
            hooks[e]()
        a.wait_vm(t[e])
        if e == 0 and cfg.get("stamps") != 2:
            stamp(a, cfg, 2)
        first = "0" if st not in seen else None
        seen.add(st)
        if st == 1:
            mf(a, G_ACC + 16, A0(i), Breg(e), first or vr(G_ACC + 16, 16))
            if cfg.get("ldmid", 0) and window < 30:
                try_issue(min(e + 1 + window, nxt + 1))
            mf(a, G_ACC + 48, A1(i), Breg(e), first or vr(G_ACC + 48, 16))
        else:
            mf(a, G_ACC + 32, A1(i), Breg(e), first or vr(G_ACC + 32, 16))
            if cfg.get("ldmid", 0) and window < 30:
                try_issue(min(e + 1 + window, nxt + 1))
            mf(a, G_ACC, A0(i), Breg(e), first or vr(G_ACC, 16))
        try_issue(min(e + 1 + window, nxt + 2))
        if e >= side_from:
            k = 0
            while side and k < side_n:
                x = side.pop(0)
                a(x)
                k += x.startswith("buffer_")
        if side2 and e >= side2_from:
            for _ in range(cfg.get("side2_n", 1)):
                if side2:
                    a(side2.pop(0))
        if e == wr1:
            wr_tile(a, 1)
            wr_tile(a, 3)
        if e == bar1:
            a("s_waitcnt lgkmcnt(0)")
            a("s_barrier")
            rd_tile(a, 1, G_RED)
            rd_tile(a, 3, G_RED + 16)
    assert wr1 <= bar1 < M and not side2
    if extra0:
        extra0[2]()
        mf(a, G_ACC, extra0[0], extra0[1], vr(G_ACC, 16))
    stamp(a, cfg, 4)
    a("s_waitcnt lgkmcnt(0)")
    for e in range(6):
        a("v_add_f32 v%d, v%d, v%d" % (G_RED + e, G_RED + e, G_RED + 16 + e))
    wr_tile(a, 2)
    for e in range(6, 16):
        a("v_add_f32 v%d, v%d, v%d" % (G_RED + e, G_RED + e, G_RED + 16 + e))
    for e in range(16):
        a("v_add_f32 v%d, v%d, v%d" % (G_ACC + e, G_ACC + e, G_RED + e))
    if resid:
        for i in range(8):
            a("v_lshlrev_b32 v%d, 16, v%d" % (G_T, V_RES + i))
            a("v_and_b32 v%d, 0xffff0000, v%d" % (G_T + 1, V_RES + i))
            a("v_add_f32 v%d, v%d, v%d" % (G_ACC + 2 * i, G_ACC + 2 * i, G_T))
            a("v_add_f32 v%d, v%d, v%d" % (G_ACC + 2 * i + 1, G_ACC + 2 * i + 1, G_T + 1))
    for x in side:
        a(x)
    a("s_waitcnt lgkmcnt(0)")
    a("s_barrier")
    stamp(a, cfg, 6)
    rd_tile(a, 2, G_RED + 32)
    for q in range(4):
        a("s_waitcnt lgkmcnt(%d)" % (3 - q))
        for e in range(4):
            a("v_add_f32 v%d, v%d, v%d" % (G_ACC + 4 * q + e, G_ACC + 4 * q + e, G_RED + 32 + 4 * q + e))
    stamp(a, cfg, 7)


def bextra(a, nmu, d):
    split3(a, nmu, d + 4)
    a("v_lshrrev_b32 v%d, 16, v%d" % (d + 7, d + 4))
    a("v_or_b32 v%d, v%d, v%d" % (d, d + 7, d + 5))
    a("v_or_b32 v%d, v%d, v%d" % (d + 1, d + 7, d + 6))
    a("v_mov_b32 v%d, v%d" % (d + 2, d))
    a("v_mov_b32 v%d, 0" % (d + 3))


def res_epilogue(a, cfg, xout_add, final):
    for i in range(8):
        a("v_cvt_pk_bf16_f32 v%d, v%d, v%d" % (V_RES + i, G_ACC + 2 * i, G_ACC + 2 * i + 1))
        if i == 3 and final is None:
            st4(a, V_RES, V_L16, 34)
    if final is not None:
        a("s_cmp_eq_u32 s%d, 1" % S_LAYER)
        a("s_cbranch_scc1 %s" % final)
        st4(a, V_RES, V_L16, 34)
    store_x_tail(a)


def store_x_tail(a):
    st4(a, V_RES + 4, V_L16, 34, 1024)
    a("v_mov_b32 v%d, 0x3f803f80" % G_T)
    a("v_mov_b32 v%d, 0" % (G_T + 12))
    a("v_mov_b32 v%d, 0" % (G_T + 13))
    for r in range(8):
        a("v_dot2_f32_bf16 v%d, v%d, v%d, v%d" % (G_T + 12, V_RES + r, G_T, G_T + 12))
        a("v_dot2_f32_bf16 v%d, v%d, v%d, v%d" % (G_T + 13, V_RES + r, V_RES + r, G_T + 13))
    a("v_lshlrev_b32 v%d, 3, v%d" % (G_T + 2, V_R31))
    a("s_nop 1")
    a("v_mov_b32 v%d, v%d" % (G_T + 14, G_T + 12))
    a("v_mov_b32 v%d, v%d" % (G_T + 15, G_T + 13))
    a("s_nop 0")
    a("v_permlane32_swap_b32 v%d, v%d" % (G_T + 12, G_T + 14))
    a("v_permlane32_swap_b32 v%d, v%d" % (G_T + 13, G_T + 15))
    a("v_add_f32 v%d, v%d, v%d" % (G_T + 12, G_T + 12, G_T + 14))
    a("v_add_f32 v%d, v%d, v%d" % (G_T + 13, G_T + 13, G_T + 15))
    a("s_mov_b32 exec_lo, 0xffffffff\ns_mov_b32 exec_hi, 0x0")
    emit_l(a, "buffer_store_dwordx2 v[%d:%d], v%d, s[4:7], s35 offen" % (G_T + 12, G_T + 13, G_T + 2))
    a("s_mov_b64 exec, -1")


def out_addr(a, xout_add):
    layer_off(a, 34, OFF_X, X_STRIDE, 2, xout_add)
    a("s_lshl_b32 s18, s%d, 15" % S_RT)
    a("s_add_u32 s34, s34, s18")
    a("s_lshl_b32 s18, s%d, 11" % S_NT)
    a("s_add_u32 s34, s34, s18")
    layer_off(a, 35, OFF_STAT, STAT_STRIDE, 2, xout_add)
    a("s_lshl_b32 s18, s%d, 12" % S_RT)
    a("s_add_u32 s35, s35, s18")
    a("s_lshl_b32 s18, s%d, 8" % S_NT)
    a("s_add_u32 s35, s35, s18")


S_Q0, S_Q1, S_KVW = 50, 51, 52


def wq_lines():
    b = Asm()
    for i in range(8):
        blk(b, ar(128 + 4 * i, 4), S_KVW, i)
    for i in range(8):
        blk(b, ar(160 + 4 * i, 4), S_Q0, i)
        blk(b, ar(192 + 4 * i, 4), S_Q1, i)
    return [l.strip() for l in b.lines]


def phase_qkv(a, cfg):
    SA0, SA1, SB0, SB1, SX, SKV = 24, 25, 26, 27, 28, 29
    CK = G_T + 8
    a("v_lshlrev_b32 v%d, 4, v%d" % (G_T + 1, V_H))
    a("v_lshlrev_b32 v%d, 2, v%d" % (G_T + 6, V_R31))
    VP, VPA = 198, 22
    SU.probe_addr(a, sys.modules[__name__], VPA, VP, 59)
    def wcheck(tag):
        a("v_cmp_ne_u32 vcc, v%d, v%d" % (V_TAG, VP))
        a("s_cbranch_vccz L_qkv_wok%s" % tag)
        keep = a.vm_issued
        poll(a, cfg, 59, VPA, VP, sleep=1)
        a.vm_issued = keep
        a("L_qkv_wok%s:" % tag)

    layer_off(a, SX, OFF_X, X_STRIDE, 2, 0)
    b_addr(a, SB0, SB1, SX, 32, 8)
    layer_off(a, 30, OFF_STAT, STAT_STRIDE, 2, 0)
    a("s_lshl_b32 s17, s%d, 12" % S_RT)
    a("s_add_u32 s30, s30, s17")
    reduce_addr(a, LDS_RQ)
    layer_off(a, 33, OFF_KV, KV_STRIDE)
    a("s_lshr_b32 s36, s%d, 1" % S_HQ)
    a("s_lshl_b32 s17, s%d, 1" % S_RB)
    a("s_add_u32 s17, s17, s36")
    a("s_lshl_b32 s17, s17, 15")
    a("s_add_u32 s23, s17, s%d" % SX)
    a("s_lshl_b32 s17, s%d, 13" % S_W)
    a("s_add_u32 s23, s23, s17")
    a("s_sub_u32 s17, s%d, s36" % S_W)
    a("s_sub_u32 s17, s17, 1")
    a("s_and_b32 s17, s17, 3")
    a("s_lshl_b32 s17, s17, 12")
    a("s_add_u32 s17, s17, %d" % LDS_KVX)
    a("v_add_u32 v%d, s17, v%d" % (G_T + 2, V_L16))
    a("v_add_u32 v%d, %d, v%d" % (G_T + 3, LDS_KVX, V_L16))
    a("s_mul_i32 s37, s%d, 0x2000" % S_LAYER)
    a("s_add_u32 s37, s37, 0x%x" % (OFF_FLAGS + FL_KV))
    a("s_lshl_b32 s17, s%d, 5" % S_RB)
    a("s_add_u32 s37, s37, s17")
    a("s_lshl_b32 s17, s36, 4")
    a("s_add_u32 s37, s37, s17")
    a("s_lshl_b32 s39, s2, 11")
    a("s_add_u32 s39, s39, 0x%x" % OFF_CKS)
    a("s_cmp_eq_u32 s%d, 0" % S_LAYER)
    a("s_cbranch_scc1 L_qkv_cs0")
    a("buffer_load_dwordx4 v[%d:%d], v%d, s[4:7], s39 offen sc1" % (CK, CK + 3, V_L16))
    a("buffer_load_dwordx4 v[%d:%d], v%d, s[4:7], s39 offen offset:1024 sc1" % (CK + 4, CK + 7, V_L16))
    a("s_branch L_qkv_nocs")
    a("L_qkv_cs0:")
    a("s_cmp_ge_u32 s%d, 4" % S_HQ)
    a("s_cbranch_scc1 L_qkv_nocs")
    for r in range(4):
        a("v_mov_b32 v%d, 0x3f803f80" % (G_CS + r))
    a("s_lshl_b32 s17, s%d, 11" % S_W)
    a("s_add_u32 s17, s17, %d" % LDS_CSX)
    a("v_add_u32 v%d, s17, v%d" % (G_CS + 4, V_L16))
    a("v_add_u32 v%d, %d, v%d" % (G_CS + 5, LDS_CSX, V_L16))
    a("s_bitcmp1_b32 s%d, 0" % S_HQ)
    a("s_cbranch_scc1 L_qkv_c1")
    for i in range(8):
        mf(a, G_ACC, ar(128 + 4 * i, 4), vr(G_CS, 4), "0" if i == 0 else vr(G_ACC, 16))
    a("s_branch L_qkv_c2")
    a("L_qkv_c1:")
    for i in range(8):
        mf(a, G_ACC, vr(G_CS, 4), ar(128 + 4 * i, 4), "0" if i == 0 else vr(G_ACC, 16))
    a("L_qkv_c2:")
    a("ds_write_b128 v%d, v[%d:%d]" % (G_CS + 4, G_ACC + 8, G_ACC + 11))
    a("ds_write_b128 v%d, v[%d:%d] offset:1024" % (G_CS + 4, G_ACC + 12, G_ACC + 15))
    a("s_waitcnt lgkmcnt(0)")
    a("s_barrier")
    for w in range(4):
        for q in range(2):
            a("ds_read_b128 v[%d:%d], v%d offset:%d" % (G_RED + 8 * w + 4 * q, G_RED + 8 * w + 4 * q + 3, G_CS + 5, 2048 * w + 1024 * q))
    a("s_waitcnt lgkmcnt(0)")
    for e in range(8):
        a("v_add_f32 v%d, v%d, v%d" % (G_RED + e, G_RED + e, G_RED + 8 + e))
        a("v_add_f32 v%d, v%d, v%d" % (G_RED + 16 + e, G_RED + 16 + e, G_RED + 24 + e))
        a("v_add_f32 v%d, v%d, v%d" % (CK + e, G_RED + e, G_RED + 16 + e))
    a("buffer_store_dwordx4 v[%d:%d], v%d, s[4:7], s39 offen sc1" % (CK, CK + 3, V_L16))
    a("buffer_store_dwordx4 v[%d:%d], v%d, s[4:7], s39 offen offset:1024 sc1" % (CK + 4, CK + 7, V_L16))
    a("L_qkv_nocs:")
    stamp(a, cfg, 8)
    xin_flag_addr(a, 38, False, 0)
    poll(a, cfg, 38, G_T + 6, G_T + 4)
    stamp(a, cfg, 9)
    def b1_loads():
        for e in range(8):
            blk(a, ar(64 + 4 * e, 4), SB1, e, SC)
            tB[e] = a.vt()

    def cs_q():
        a("s_lshl_b32 s17, s%d, 10" % S_NT)
        a("s_add_u32 s17, s17, 0x%x" % OFF_CSQX)
        a("buffer_load_dwordx4 v[%d:%d], v%d, s[4:7], s17 offen sc1" % (G_CS, G_CS + 3, V_L16))

    a("s_cmp_ge_u32 s%d, 4" % S_HQ)
    a("s_cbranch_scc1 L_qkv_stats")
    tK = {}
    for i in range(8):
        blk(a, ar(224 + 4 * i, 4), 23, i, SC)
        tK[i] = a.vt()
    load_stats(a, G_ST, 30, G_T, SC)
    t_st = a.vt()
    tB = {}
    b1_loads()
    stamp(a, cfg, 1)
    a("s_bitcmp1_b32 s%d, 0" % S_HQ)
    a("s_cbranch_scc1 L_qkv_v1")
    for v in range(2):
        if v:
            a("L_qkv_v%d:" % v)
        for i in range(8):
            a.wait_vm(tK[i])
            x, w = ar(224 + 4 * i, 4), ar(128 + 4 * i, 4)
            c = "0" if i == 0 else vr(G_KVACC, 16)
            if v & 1:
                mf(a, G_KVACC, x, w, c)
            else:
                mf(a, G_KVACC, w, x, c)
        if v < 1:
            a("s_branch L_qkv_kvred")
    a("L_qkv_kvred:")
    stamp(a, cfg, 2)
    a.wait_vm(t_st)
    finish_stats(a, G_ST, V_NMU, V_RSTD)
    for q in range(4):
        a("ds_write_b128 v%d, v[%d:%d] offset:%d" % (G_T + 2, G_KVACC + 4 * q, G_KVACC + 4 * q + 3, q * 1024))
    XS = LDS_KVX + 16384
    a("s_lshl_b32 s17, s%d, 8" % S_W)
    a("s_add_u32 s17, s17, %d" % XS)
    a("v_add_u32 v%d, s17, v%d" % (G_T + 4, G_T + 6))
    a("v_mul_f32 v%d, v%d, v%d" % (G_T + 5, V_NMU, V_RSTD))
    a("ds_write_b32 v%d, v%d" % (G_T + 4, V_RSTD))
    a("ds_write_b32 v%d, v%d offset:128" % (G_T + 4, G_T + 5))
    a("v_add_u32 v%d, s17, v%d" % (G_T + 4, G_T + 1))
    RS = G_ACC + 16
    for g in range(4):
        a("ds_read_b128 v[%d:%d], v%d offset:%d" % (RS + 4 * g, RS + 4 * g + 3, G_T + 4, 32 * g))
        a("ds_read_b128 v[%d:%d], v%d offset:%d" % (RS + 16 + 4 * g, RS + 16 + 4 * g + 3, G_T + 4, 128 + 32 * g))
    a("s_waitcnt lgkmcnt(0)")
    a("s_barrier")
    stamp(a, cfg, 3)
    a("s_cmp_lg_u32 s%d, s36" % S_W)
    a("s_cbranch_scc1 L_qkv_q")
    RD = [G_RED + 16, G_RED + 32, G_ACC]
    for j in range(3):
        for q in range(4):
            a("ds_read_b128 v[%d:%d], v%d offset:%d" % (RD[j] + 4 * q, RD[j] + 4 * q + 3, G_T + 3, j * 4096 + q * 1024))
    for j in range(3):
        a("s_waitcnt lgkmcnt(%d)" % (8 - 4 * j))
        for e in range(16):
            a("v_add_f32 v%d, v%d, v%d" % (G_KVACC + e, G_KVACC + e, RD[j] + e))
    a("s_lshl_b32 s17, s%d, 10" % S_RT)
    a("s_add_u32 s34, s33, s17")
    a("s_bitcmp1_b32 s%d, 0" % S_HQ)
    a("s_cbranch_scc1 L_qkv_vfin")
    PK = G_RED + 16
    for e in range(8):
        a("v_fmac_f32 v%d, v%d, v%d" % (G_KVACC + 8 + e, V_NMU, CK + e))
        a("v_mul_f32 v%d, v%d, v%d" % (G_KVACC + 8 + e, V_RSTD, G_KVACC + 8 + e))
    pack8(a, PK, G_KVACC + 8)
    a("buffer_store_dwordx4 v[%d:%d], v%d, s[4:7], s34 offen %s" % (PK, PK + 3, V_L16, SC))
    a("v_mov_b32 v%d, 0" % (PK + 4))
    for r in range(4):
        a("v_dot2_f32_bf16 v%d, v%d, v%d, v%d" % (PK + 4, PK + r, PK + r, PK + 4))
    xhalf_sum(a, PK + 4, PK + 5)
    for d in ("row_shr:1", "row_shr:2", "row_shr:4", "row_shr:8"):
        a("v_max_f32_dpp v%d, v%d, v%d %s row_mask:0xf bank_mask:0xf" % (PK + 4, PK + 4, PK + 4, d))
    a("v_max_f32_dpp v%d, v%d, v%d row_bcast:15 row_mask:0xa bank_mask:0xf" % (PK + 4, PK + 4, PK + 4))
    a("v_readlane_b32 s18, v%d, 31" % (PK + 4))
    a("v_lshlrev_b32 v%d, 10, v%d" % (G_T + 4, V_LANE))
    a("v_mov_b32 v%d, v%d" % (PK + 6, V_TAG))
    a("v_mov_b32 v%d, s18" % (PK + 7))
    a("s_waitcnt vmcnt(0)")
    a("s_mov_b64 exec, 0xff")
    a("buffer_store_dwordx2 v[%d:%d], v%d, s[4:7], s37 offen %s" % (PK + 6, PK + 7, G_T + 4, SC))
    a("s_mov_b64 exec, -1")
    a("s_branch L_qkv_q")
    a("L_qkv_vfin:")
    a("v_lshlrev_b32 v%d, 4, v%d" % (G_T + 4, V_R31))
    a("v_lshl_add_u32 v%d, v%d, 8, v%d" % (G_T + 4, V_H, G_T + 4))
    a("s_add_u32 s34, s34, 0x10000")
    for e in range(16):
        a("v_mul_f32 v%d, v%d, v%d" % (G_KVACC + e, RS + e, G_KVACC + e))
        a("v_fmac_f32 v%d, v%d, v%d" % (G_KVACC + e, RS + 16 + e, CK))
    pack8(a, G_ACC, G_KVACC)
    pack8(a, G_ACC + 4, G_KVACC + 8)
    a("s_mov_b32 exec_lo, 0xffff\ns_mov_b32 exec_hi, 0xffff")
    a("buffer_store_dwordx4 v[%d:%d], v%d, s[4:7], s34 offen %s" % (G_ACC, G_ACC + 3, G_T + 4, SC))
    a("buffer_store_dwordx4 v[%d:%d], v%d, s[4:7], s34 offen offset:512 %s" % (G_ACC + 4, G_ACC + 7, G_T + 4, SC))
    a("s_mov_b64 exec, -1")
    a("L_qkv_kvdone:")
    stamp(a, cfg, 5)
    a("v_lshlrev_b32 v%d, 10, v%d" % (G_T + 4, V_LANE))
    a("s_waitcnt vmcnt(0)")
    a("s_mov_b64 exec, 0xff")
    a("buffer_store_dword v%d, v%d, s[4:7], s37 offen offset:8 %s" % (V_TAG, G_T + 4, SC))
    a("s_mov_b64 exec, -1")
    a("s_branch L_qkv_q")
    a("L_qkv_stats:")
    load_stats(a, G_ST, 30, G_T, SC)
    t_st = a.vt()
    b1_loads()
    a.wait_vm(t_st)
    finish_stats(a, G_ST, V_NMU, V_RSTD)
    a("L_qkv_q:")
    stamp(a, cfg, 10)
    bextra(a, V_NMU, G_CS + 4)
    tq = {}

    def h_probe():
        a("buffer_load_dword v%d, v%d, s[4:7], s59 offen sc1" % (VP, VPA))
        tq[0] = a.vt()

    def h_cs():
        a.wait_vm(tq[0])
        wcheck("q")
        cs_q()
        tq[1] = a.vt()
    gemm64_core(a, dict(cfg, stamps=cfg.get('stamps') and 2), 8, lambda i: ar(160 + 4 * i, 4), lambda i: ar(192 + 4 * i, 4), lambda e: ar(64 + 4 * e, 4),
                lambda e: blk(a, ar(64 + 4 * e, 4), SB1 if e < 8 else SB0, e % 8, SC), 16, pre_tickets=tB, ramp=12,
                side=[g[0] for g in SU.deferred_store_groups(sys.modules[__name__])], side_from=99, side_n=1, extra0=(vr(G_CS, 4), vr(G_CS + 4, 4), lambda: a.wait_vm(tq[1])),
                hooks={3: h_probe, 10: h_cs})
    a("v_mul_f32 v%d, %s, v%d" % (G_T, fl(QSCALE), V_RSTD))
    for e in range(16):
        a("v_mul_f32 v%d, v%d, v%d" % (G_ACC + e, G_T, G_ACC + e))
    pack8(a, G_Q, G_ACC)
    pack8(a, G_Q + 4, G_ACC + 8)
    if cfg.get("store_q"):
        a("s_lshl_b32 s17, s%d, 15" % S_RT)
        a("s_lshl_b32 s18, s%d, 11" % S_NT)
        a("s_add_u32 s17, s17, s18")
        a("s_add_u32 s17, s17, 0x%x" % OFF_Q)
        a("buffer_store_dwordx4 v[%d:%d], v%d, s[4:7], s17 offen" % (G_Q, G_Q + 3, V_L16))
        a("buffer_store_dwordx4 v[%d:%d], v%d, s[4:7], s17 offen offset:1024" % (G_Q + 4, G_Q + 7, V_L16))
    stamp(a, cfg, 11)


A_C = [24, 40]
A_O = [56, 72]
A_S = [88, 104]
A_P = [120, 124, 128, 132]
A_KF = [136, 140]
A_VF = [[144, 148], [152, 156]]
A_VK, A_VV, A_VINC = 160, 161, 162
A_T = 164
LDS_V = 65536
LDS_ONES = 131072
LDS_ATT_FLAG = LDS_ONES + 5120
UNR = 4


EARLY = 4
W2ORD = [7 * mm + tl for tl in range(7) for mm in range(4)]
W2POS = {k: p for p, k in enumerate(W2ORD)}


def w2load(a, idx, s0, s1):
    i = W2ORD[idx >> 1]
    blk(a, w2reg(idx & 1, i), s1 if idx & 1 else s0, i)


def w2reg(s, i):
    idx = 2 * W2POS[i] + s
    if idx < 32:
        return ar(128 + 4 * idx, 4)
    if idx < 46:
        return vr(W2V + 4 * (idx - 32), 4)
    if idx < 54:
        return vr(136 + 4 * (idx - 46), 4)
    return vr(190 + 4 * (idx - 54), 4)


SLOT13 = [0, 2, 1, 3, 0, 2, 1]


def dma13(a, i, part=None):
    slot = SLOT13[i]
    for hh in range(2):
        a("s_add_u32 m0, s%d, %d" % (S_WL, slot * 32768 + hh * 4096))
        a("s_add_u32 s29, s%d, %d" % (S_W13, i * 32768 + hh * 4096))
        for q in range(4):
            a("buffer_load_dwordx4 v%d, s[4:7], s29 offen offset:%d sc1 lds" % (V_L16, q * 1024))


def dma_lines(i):
    b = Asm()
    dma13(b, i)
    return [l.strip() for l in b.lines]


def phase_att(a, cfg):
    Q = [G_Q, G_Q + 4]
    SA0, SA1, SW0, SW1 = 24, 25, 26, 27
    a("v_mov_b32 v%d, 0x3f803f80" % (A_T + 4))
    if cfg.get("zpad", 1):
        a("v_and_b32 v%d, 2, v0" % (A_T + 5))
        a("v_cmp_eq_u32 vcc, 0, v%d" % (A_T + 5))
        a("v_cndmask_b32 v%d, v%d, v%d, vcc" % (A_T + 4, V_ZERO, A_T + 4))
    for r in range(1, 4):
        a("v_mov_b32 v%d, v%d" % (A_T + 4 + r, A_T + 4))
    a("v_lshlrev_b32 v%d, 4, v0" % (A_T + 2))
    a("v_add_u32 v%d, %d, v%d" % (A_T + 2, LDS_ONES, A_T + 2))
    a("ds_write_b128 v%d, v[%d:%d]" % (A_T + 2, A_T + 4, A_T + 7))
    a("ds_write_b128 v%d, v[%d:%d] offset:1024" % (A_T + 2, A_T + 4, A_T + 7))
    a("v_and_b32 v%d, 15, v%d" % (A_T + 2, V_LANE))
    a("v_lshlrev_b32 v%d, 4, v%d" % (A_T + 2, A_T + 2))
    a("v_lshl_add_u32 v%d, v%d, 8, v%d" % (A_T + 2, V_H, A_T + 2))
    a("v_add_u32 v%d, %d, v%d" % (A_VV, LDS_V, A_T + 2))
    a("v_add_u32 v%d, -20, v%d" % (A_T + 3, V_R31))
    a("v_cmp_gt_u32 vcc, 8, v%d" % (A_T + 3))
    a("v_mov_b32 v%d, %d" % (A_T + 2, LDS_ONES))
    a("v_mov_b32 v%d, %d" % (A_T + 3, LDS_ONES + 64))
    a("v_cndmask_b32 v%d, v%d, v%d, vcc" % (A_T + 2, A_T + 2, A_T + 3))
    if cfg.get("zpad", 1):
        a("v_and_b32 v%d, 27, v%d" % (A_T + 3, V_R31))
        a("v_cmp_ne_u32 vcc, 16, v%d" % (A_T + 3))
        a("v_add_u32 v%d, 32, v%d" % (A_T + 3, A_T + 2))
        a("v_cndmask_b32 v%d, v%d, v%d, vcc" % (A_T + 2, A_T + 2, A_T + 3))
    a("v_cmp_le_u32 vcc, 16, v%d" % V_R31)
    a("v_mov_b32 v%d, %d" % (A_VINC, UNR * 1024))
    a("v_cndmask_b32 v%d, v%d, v%d, vcc" % (A_VV, A_VV, A_T + 2))
    a("v_cndmask_b32 v%d, v%d, v%d, vcc" % (A_VINC, A_VINC, V_ZERO))
    for t in range(2):
        n = A_T + 8 + t
        a("v_mov_b32 v%d, 0" % n)
        for r in range(4):
            a("v_dot2_f32_bf16 v%d, v%d, v%d, v%d" % (n, Q[t] + r, Q[t] + r, n))
    for t in range(2):
        xhalf_sum(a, A_T + 8 + t, A_T + 10)
    a_addr(a, SA0, SA1, OFF_WO, 32, 8)
    a("s_mul_i32 s%d, s%d, %d" % (S_W13, S_M, 7 * 32768))
    a("s_lshl_b32 s%d, s%d, 13" % (S_WL, S_W))
    a("s_add_u32 s%d, s%d, s%d" % (S_W13, S_W13, S_WL))
    a("s_add_u32 s%d, s%d, 0x%x" % (S_W13, S_W13, OFF_W13))
    a_addr(a, SW0, SW1, OFF_W2, 112, 28)
    a("s_lshl_b32 s20, s%d, 10" % S_W)
    a("s_add_u32 s21, s33, s20")
    a("s_add_u32 s22, s21, 0x10000")
    a("s_add_u32 s23, s20, %d" % LDS_V)
    a("s_mul_i32 s38, s%d, 0x2000" % S_LAYER)
    a("s_add_u32 s38, s38, 0x%x" % (OFF_FLAGS + FL_KV))
    a("s_and_b32 s17, s2, 7")
    a("s_lshl_b32 s17, s17, 10")
    a("s_add_u32 s38, s38, s17")
    a("s_lshl_b32 s58, s2, 2")
    a("s_add_u32 s58, s58, 0x%x" % OFF_FLW)
    a("s_or_b32 s17, s%d, s%d" % (S_W, S_LAYER))
    a("s_cmp_lg_u32 s17, 0")
    a("s_cselect_b32 s58, 0xf0000000, s58")
    a("s_and_b32 s59, s2, 7")
    a("s_lshl_b32 s59, s59, 10")
    a("s_add_u32 s59, s59, 0x%x" % OFF_FLW)
    a("v_lshlrev_b32 v%d, 10, v%d" % (A_T + 16, V_LANE))
    a("s_getreg_b32 s17, hwreg(HW_REG_XCC_ID)")
    a("s_and_b32 s17, s17, 7")
    a("s_lshl_b32 s17, s17, 1")
    a("v_or_b32 v%d, s17, v%d" % (A_T + 17, V_TAG))
    a("v_and_b32 v%d, 15, v%d" % (A_T + 18, V_LANE))
    a("v_lshlrev_b32 v%d, 5, v%d" % (A_T + 18, A_T + 18))
    a("s_and_b32 s17, s2, 0x87")
    a("s_lshl_b32 s17, s17, 2")
    a("v_add_u32 v%d, s17, v%d" % (A_T + 18, A_T + 18))

    stamp(a, cfg, 1)
    a("s_cmp_lg_u32 s%d, 0" % S_W)
    a("s_cbranch_scc1 L_att_nopoll")
    poll(a, cfg, 38, V_L16, A_T + 12, wide=True, sleep=cfg.get("kv_sleep", 2))
    k2 = A_T + 13
    for d in ("row_shr:1", "row_shr:2", "row_shr:4", "row_shr:8"):
        a("v_max_f32_dpp v%d, v%d, v%d %s row_mask:0xf bank_mask:0xf" % (k2, k2, k2, d))
    a("v_max_f32_dpp v%d, v%d, v%d row_bcast:15 row_mask:0xa bank_mask:0xf" % (k2, k2, k2))
    a("v_max_f32_dpp v%d, v%d, v%d row_bcast:31 row_mask:0xc bank_mask:0xf" % (k2, k2, k2))
    a("v_mov_b32 v%d, %d" % (A_T + 12, LDS_ATT_FLAG + 16 - 63 * 4))
    a("v_add_u32 v%d, v%d, v%d" % (A_T + 12, V_L4, A_T + 12))
    a("s_mov_b32 exec_lo, 0")
    a("s_mov_b32 exec_hi, 0x80000000")
    a("ds_write_b32 v%d, v%d" % (A_T + 12, k2))
    a("s_mov_b64 exec, -1")
    a("s_waitcnt lgkmcnt(0)")
    a("L_att_nopoll:")
    a("s_waitcnt vmcnt(0)")
    a("s_barrier")
    a("s_mov_b64 exec, 0xff")
    a("buffer_store_dword v%d, v%d, s[4:7], s58 offen %s" % (A_T + 17, A_T + 16, SC))
    a("s_mov_b64 exec, -1")
    a("s_mov_b32 s%d, 0xf0000000" % SU.S_DST)
    stamp(a, cfg, 2)
    a("v_mov_b32 v%d, %d" % (A_T + 12, LDS_ATT_FLAG + 16))
    a("ds_read_b32 v%d, v%d" % (A_T + 1, A_T + 12))
    def kvdma(g):
        a("s_add_u32 m0, s20, %d" % (g * 4096))
        a("s_add_u32 s17, s21, %d" % (g * 4096))
        a("buffer_load_dwordx4 v%d, s[4:7], s17 offen %s lds" % (V_L16, SC))
        a("s_add_u32 m0, s23, %d" % (g * 4096))
        a("s_add_u32 s17, s22, %d" % (g * 4096))
        a("buffer_load_dwordx4 v%d, s[4:7], s17 offen %s lds" % (V_L16, SC))

    G1 = 6
    for g in range(G1):
        kvdma(g)
        if g == 3:
            t_g3 = a.vt()
            a("s_waitcnt lgkmcnt(0)")
            for t in range(2):
                n = A_T + 8 + t
                a("v_mul_f32 v%d, v%d, v%d" % (n, A_T + 1, n))
                a("v_sqrt_f32 v%d, v%d" % (n, n))
            for t in range(2):
                n = A_T + 8 + t
                a("v_mul_f32 v%d, %s, v%d" % (n, fl(-1.001), n))
            a("v_min_f32 v%d, v%d, v%d" % (A_T + 10, A_T + 8, A_T + 9))
            a("v_mov_b32 v%d, %s" % (A_T + 11, fl(-cfg.get("bound_t", BOUND_T))))
            a("v_cmp_nge_f32 vcc, v%d, v%d" % (A_T + 10, A_T + 11))
            a("s_lshl_b32 s19, s%d, 2" % S_W)
            a("s_add_u32 s19, s19, %d" % LDS_ATT_FLAG)
            a("v_mov_b32 v%d, s19" % (A_T + 12))
            a("s_cmp_lg_u64 vcc, 0")
            a("s_cselect_b32 s18, 1, 0")
            a("v_mov_b32 v%d, s18" % (A_T + 11))
            a("ds_write_b32 v%d, v%d" % (A_T + 12, A_T + 11))
            for t in range(2):
                for r in range(16):
                    a("v_mov_b32 v%d, v%d" % (A_C[t] + r, A_T + 8 + t))
    stamp(a, cfg, 3)
    a.wait_vm(t_g3)
    a("s_waitcnt lgkmcnt(0)")
    a("s_barrier")
    stamp(a, cfg, 4)
    a("v_mov_b32 v%d, %d" % (A_T + 12, LDS_ATT_FLAG))
    a("ds_read_b128 v[%d:%d], v%d" % (A_T + 4, A_T + 7, A_T + 12))
    a("ds_read_b128 v[%d:%d], v%d" % (A_KF[0], A_KF[0] + 3, V_L16))
    a("ds_read_b128 v[%d:%d], v%d" % (A_VF[0][0], A_VF[0][0] + 3, A_VV))
    a("ds_read_b128 v[%d:%d], v%d offset:512" % (A_VF[0][1], A_VF[0][1] + 3, A_VV))
    a("ds_read_b128 v[%d:%d], v%d offset:1024" % (A_KF[1], A_KF[1] + 3, V_L16))
    a("s_waitcnt lgkmcnt(4)")
    a("v_or_b32 v%d, v%d, v%d" % (A_T + 4, A_T + 4, A_T + 5))
    a("v_or3_b32 v%d, v%d, v%d, v%d" % (A_T + 4, A_T + 4, A_T + 6, A_T + 7))
    a("v_readfirstlane_b32 s18, v%d" % (A_T + 4))
    a("s_cmp_eq_u32 s18, 0")
    a("s_cbranch_scc1 L_att_fast")
    keep = a.dma_issued
    for g in range(G1, 16):
        kvdma(g)
    a.dma_issued = keep
    a("s_waitcnt vmcnt(0)")
    a("s_barrier")
    a("v_mov_b32 v%d, 0xff800000" % (A_T + 8))
    a("v_mov_b32 v%d, 0xff800000" % (A_T + 9))
    a("v_mov_b32 v%d, v%d" % (A_T + 12, V_L16))
    a("s_mov_b32 s19, 64")
    a("L_att_pre:")
    a("ds_read_b128 v[%d:%d], v%d" % (A_P[0], A_P[0] + 3, A_T + 12))
    a("v_add_u32 v%d, 1024, v%d" % (A_T + 12, A_T + 12))
    a("s_waitcnt lgkmcnt(0)")
    for t in range(2):
        mf(a, A_S[t], vr(A_P[0], 4), vr(Q[t], 4), "0")
    for t in range(2):
        for r in range(0, 16, 2):
            a("v_max3_f32 v%d, v%d, v%d, v%d" % (A_T + 8 + t, A_S[t] + r, A_S[t] + r + 1, A_T + 8 + t))
    a("s_sub_u32 s19, s19, 1")
    a("s_cmp_lg_u32 s19, 0")
    a("s_cbranch_scc1 L_att_pre")
    for t in range(2):
        n = A_T + 8 + t
        a("v_mov_b32 v%d, v%d" % (A_T + 10, n))
        a("v_permlane32_swap_b32 v%d, v%d" % (n, A_T + 10))
        a("v_max_f32 v%d, v%d, v%d" % (n, n, A_T + 10))
        a("v_sub_f32 v%d, 0, v%d" % (n, n))
        for r in range(16):
            a("v_mov_b32 v%d, v%d" % (A_C[t] + r, n))
    a("L_att_fast:")
    a("s_waitcnt lgkmcnt(0)")

    def m4(d, x, y, c):
        mf(a, d, vr(x, 4), vr(y, 4), vr(c, 16))

    def ex(r):
        a("v_exp_f32 v%d, v%d" % (r, r))

    def cv(d, s):
        a("v_cvt_pk_bf16_f32 v%d, v%d, v%d" % (d, s, s + 1))

    m4(A_S[0], A_KF[0], Q[0], A_C[0])
    a("s_nop 7")

    def lines_of(fn):
        b = Asm()
        fn(b)
        return [l.strip() for l in b.lines]

    def groups(lines):
        out, cur = [], []
        for x in lines:
            cur.append(x)
            if x.startswith("buffer_"):
                out.append(cur)
                cur = []
        assert not cur
        return out

    def kvl(g):
        return ["s_add_u32 m0, s20, %d" % (g * 4096), "s_add_u32 s17, s21, %d" % (g * 4096),
                "buffer_load_dwordx4 v%d, s[4:7], s17 offen %s lds" % (V_L16, SC),
                "s_add_u32 m0, s23, %d" % (g * 4096), "s_add_u32 s17, s22, %d" % (g * 4096),
                "buffer_load_dwordx4 v%d, s[4:7], s17 offen %s lds" % (V_L16, SC)]

    q_kv = []
    for g in range(G1, 16):
        q_kv += [(x, g) for x in groups(kvl(g))]
    q_w = []
    for i in range(8):
        q_w += groups(lines_of(lambda b: blk(b, ar(4 * i, 4), SA0, i)))
        q_w += groups(lines_of(lambda b: blk(b, ar(32 + 4 * i, 4), SA1, i)))
    for idx in range(46):
        q_w += groups(lines_of(lambda b: w2load(b, idx, SW0, SW1)))
    q_t = [["s_add_u32 s17, s49, %d" % (q * 4096), "buffer_load_dword v%d, v%d, s[4:7], s17 offen sc1" % (A_T + 3, A_T + 2)] for q in range(5)]
    if not cfg.get("touch13", 1):
        q_t = []
    q_d = groups(dma_lines(0) + dma_lines(1))
    a("s_mul_i32 s49, s%d, %d" % (S_M, 7 * 32768))
    a("s_and_b32 s18, s%d, 1" % S_RG)
    a("s_mul_i32 s18, s18, %d" % 81920)
    a("s_add_u32 s49, s49, s18")
    a("s_mul_i32 s18, s%d, %d" % (S_W, 20480))
    a("s_add_u32 s49, s49, s18")
    a("s_add_u32 s49, s49, 0x%x" % (OFF_W13 + 65536))
    a("v_lshlrev_b32 v%d, 6, v%d" % (A_T + 2, V_LANE))
    tg = {}
    U_PROBE, U_CHK = cfg.get("u_probe", 21), cfg.get("u_chk", 24)
    PB = A_T + 12
    def slot(u):
        grp, g = None, None
        if q_kv:
            grp, g = q_kv.pop(0)
        elif u == U_PROBE:
            a("buffer_load_dwordx4 v[%d:%d], v%d, s[4:7], s59 offen %s" % (PB, PB + 3, V_L16, SC))
            tg["probe"] = a.vt()
        elif u == U_CHK:
            assert not q_kv
            a("s_waitcnt vmcnt(0)")
            a("L_att_wchk:")
            for r in range(4):
                a("v_and_b32 v%d, -15, v%d" % (PB + r, PB + r))
            a("v_cmp_ne_u32 vcc, v%d, v%d" % (V_TAG, PB))
            for r in range(1, 4):
                a("v_cmp_ne_u32 s[18:19], v%d, v%d" % (V_TAG, PB + r))
                a("s_or_b64 vcc, vcc, s[18:19]")
            a("s_cmp_eq_u64 vcc, 0")
            a("s_cbranch_scc1 L_att_wok")
            if cfg.get("spin_limit"):
                a("s_sub_u32 s46, s46, 1")
                a("s_cbranch_scc1 L_att_wok")
            keep = a.vm_issued
            a("s_sleep 4")
            a("buffer_load_dwordx4 v[%d:%d], v%d, s[4:7], s59 offen %s" % (PB, PB + 3, V_L16, SC))
            a("s_waitcnt vmcnt(0)")
            a("s_branch L_att_wchk")
            a.vm_issued = keep
            a("L_att_wok:")
            a("buffer_load_dword v%d, v%d, s[4:7], s59 offen %s" % (PB, A_T + 18, SC))
            tg["grp"] = a.vt()
        elif u == U_CHK + 8:
            a.wait_vm(tg["grp"])
            a("v_cmp_ne_u32 vcc, v%d, v%d" % (A_T + 17, PB))
            a("s_cmp_eq_u64 vcc, 0")
            a("s_cselect_b32 s%d, %d, 0" % (S_LOC, 0 if cfg.get("force_remote") else 1))
        elif u < U_CHK:
            pass
        elif q_t and u >= cfg.get("t_from", 100) and (u - cfg.get("t_from", 100)) % cfg.get("t_every", 4) == 1:
            grp = q_t.pop(0)
        elif u >= 68 and q_d:
            grp = q_d.pop(0)
        elif q_w:
            grp = q_w.pop(0)
        if grp:
            for x in grp:
                a(x)
            if g is not None:
                tg[g] = a.vt()

    NU = 128
    BAR = {16: None, 36: None}
    for u in range(NU):
        j, t = u >> 1, u & 1
        nj, nt = (u + 1) >> 1, (u + 1) & 1
        pj, pt = (u - 1) >> 1, (u - 1) & 1
        jj = j % UNR
        sb, nsb = A_S[u % 2], A_S[(u + 1) % 2]
        plo, phi = A_P[(u % 2) * 2], A_P[(u % 2) * 2 + 1]
        pphi = A_P[((u - 1) % 2) * 2 + 1]
        if u + 1 < NU:
            m4(nsb, A_KF[nj % 2], Q[nt], A_C[nt])
        if t == 0 and j + 2 < 64:
            a("ds_read_b128 v[%d:%d], v%d offset:%d" % (A_KF[j % 2], A_KF[j % 2] + 3, V_L16, (j + 2) * 1024))
        if t == 1 and u > U_CHK and cfg.get('slot3', 0):
            slot(u)
        for r in range(0, 4):
            ex(sb + r)
        if u > 0:
            m4(A_O[pt], A_VF[pj % 2][1], pphi, A_O[pt])
        if t == 0 and j + 1 < 64:
            off = (jj + 1) * 1024
            a("ds_read_b128 v[%d:%d], v%d offset:%d" % (A_VF[(j + 1) % 2][0], A_VF[(j + 1) % 2][0] + 3, A_VV, off))
            a("ds_read_b128 v[%d:%d], v%d offset:%d" % (A_VF[(j + 1) % 2][1], A_VF[(j + 1) % 2][1] + 3, A_VV, off + 512))
        if t == 1:
            slot(u)
        for r in range(4, 9):
            ex(sb + r)
        for r in range(0, 4):
            cv(plo + r, sb + 2 * r)
        for r in range(9, 12):
            ex(sb + r)
        m4(A_O[t], A_VF[j % 2][0], plo, A_O[t]) if u > 1 else mf(a, A_O[t], vr(A_VF[j % 2][0], 4), vr(plo, 4), "0")
        if t == 1:
            a("s_waitcnt lgkmcnt(0)")
            if (j + 3) in BAR:
                g = BAR[j + 3]
                if g is not None:
                    a.wait_vm(tg[g])
                a("s_barrier")
                if j + 3 == 16:
                    stamp(a, cfg, 6)
        else:
            slot(u)
        for r in range(12, 16):
            ex(sb + r)
        if t == 1 and jj == UNR - 1:
            a("v_add_u32 v%d, v%d, v%d" % (A_VV, A_VINC, A_VV))
        for r in range(4, 8):
            cv(phi + r - 4, sb + 2 * r)
    assert not (q_kv or q_w or q_t or q_d), (len(q_kv), len(q_w), len(q_t), len(q_d))
    units = [(63, 1)]
    U = 128
    a("L_att_done:")
    DUAL[0] = bool(cfg.get("dual", 1))
    stamp(a, cfg, 7)
    lj, lt = units[-1]
    m4(A_O[lt], A_VF[lj % 2][1], A_P[((U - 1) % 2) * 2 + 1], A_O[lt])
    layer_off(a, 34, OFF_O, X_STRIDE)
    a("s_lshl_b32 s18, s%d, 15" % S_RT)
    a("s_add_u32 s34, s34, s18")
    a("s_lshl_b32 s18, s%d, 11" % S_NT)
    a("s_add_u32 s34, s34, s18")
    for t in range(2):
        a("v_rcp_f32 v%d, v%d" % (A_T, A_O[t] + 8))
        for r in range(8):
            a("v_mul_f32 v%d, v%d, v%d" % (A_O[t] + r, A_T, A_O[t] + r))
        pack8(a, A_P[t], A_O[t])
        st4(a, A_P[t], V_L16, 34, t * 1024)
    flag_addr(a, S_FO, FL_O, S_RB, 7, S_HQ)
    publish(a, S_FO, [(34, 2048, 0)])
    stamp(a, cfg, 8)


def phase_wo(a, cfg):
    SB0, SB1, SX = 26, 27, 28
    a("s_barrier")
    if not cfg.get("pf_att", 1):
        for i in range(8):
            blk(a, ar(4 * i, 4), 24, i)
            blk(a, ar(32 + 4 * i, 4), 25, i)
    b = Asm()
    dma13(b, 2)
    b("s_mul_i32 s29, s%d, %d" % (S_M, 7 * 1024))
    b("s_lshl_b32 s17, s%d, 11" % S_W)
    b("s_add_u32 s29, s29, s17")
    b("s_add_u32 m0, s17, %d" % LDS_CS)
    b("s_add_u32 s29, s29, 0x%x" % OFF_CSX)
    b("buffer_load_dwordx4 v%d, s[4:7], s29 offen sc1 lds" % V_L16)
    b("buffer_load_dwordx4 v%d, s[4:7], s29 offen offset:1024 sc1 lds" % V_L16)
    wside = [l.strip() for l in b.lines]
    if cfg.get("t2_pre", 1):
        for x in wside:
            a(x)
        wside = []
    layer_off(a, SX, OFF_O, X_STRIDE)
    b_addr(a, SB0, SB1, SX, 32, 8)
    reduce_addr(a, LDS_R1)
    out_addr(a, 1)
    flag_addr(a, 38, FL_O, S_RB, 7)
    a("s_lshl_b32 s17, s%d, 5" % S_W)
    a("s_add_u32 s38, s38, s17")
    a("v_and_b32 v%d, 28, v%d" % (G_T + 5, V_L4))
    flag_addr(a, S_FX1, FL_X1, S_RG, 8, S_M)
    stamp(a, cfg, 8)
    poll(a, cfg, 38, G_T + 5, G_T + 4)
    stamp(a, cfg, 9)
    gemm64_core(a, cfg, 8, lambda i: ar(4 * i, 4), lambda i: ar(32 + 4 * i, 4), lambda e: ar(64 + 4 * e, 4),
                lambda e: blk(a, ar(64 + 4 * e, 4), SB1 if e < 8 else SB0, e % 8, SC), 16, ramp=cfg.get("ramp1", 8), resid=True)
    res_epilogue(a, cfg, 1, None)
    stamp(a, cfg, 10)
    publish(a, S_FX1, [(34, 2048, 0), (35, 256, 0)], between=wside)
    stamp(a, cfg, 11)


F_ACC = [24, 40, 56, 72]
NACC = 4
F_W = 88
F_CS = 120
F_H = 128
F_ST = 136
F_T = 168
F_LA = [184, 185]
F_NMU, F_C1, F_RS2, F_CSA, F_LG = 186, 187, 188, 189, 198
F_TA = 172


def phase_ffn1(a, cfg):
    SX, SH = 24, 27
    G3 = cfg.get("g0", 2) == 3
    if G3:
        a("s_mul_i32 s17, s%d, 6144" % S_W)
        a("s_sub_u32 s29, s%d, s%d" % (S_W13, S_WL))
        a("s_add_u32 s29, s29, s17")
        a("s_add_u32 m0, s17, %d" % LDS_E)
        a("s_add_u32 s29, s29, %d" % (4 * 32768))
        for q in range(4):
            a("buffer_load_dwordx4 v%d, s[4:7], s29 offen offset:%d sc1 lds" % (V_L16, q * 1024))
        a("s_add_u32 m0, s17, %d" % (LDS_E + 4096))
        a("s_add_u32 s29, s29, 4096")
        for q in range(2):
            a("buffer_load_dwordx4 v%d, s[4:7], s29 offen offset:%d sc1 lds" % (V_L16, q * 1024))
        a("s_lshl_b32 s28, s%d, 11" % S_W)
        a("s_sub_u32 s33, s%d, s%d" % (S_W13, S_WL))
        a("s_add_u32 s33, s33, s28")
        a("s_add_u32 s33, s33, %d" % (4 * 32768 + 24 * 1024))
    a("s_lshl_b32 s30, s%d, 2" % S_RG)
    a("s_add_u32 s30, s30, s%d" % S_W)
    layer_off(a, SX, OFF_X, X_STRIDE, 2, 1)
    a("s_lshl_b32 s17, s30, 15")
    a("s_add_u32 s%d, s%d, s17" % (SX, SX))
    a("s_add_u32 s25, s%d, %d" % (SX, 28 * 1024))
    layer_off(a, 26, OFF_STAT, STAT_STRIDE, 2, 1)
    a("s_lshl_b32 s18, s30, 12")
    a("s_add_u32 s26, s26, s18")
    layer_off(a, SH, OFF_H, H_STRIDE)
    a("s_mul_i32 s17, s30, %d" % (112 * 1024))
    a("s_add_u32 s%d, s%d, s17" % (SH, SH))
    a("s_mul_i32 s17, s%d, %d" % (S_M, 7 * 1024))
    a("s_add_u32 s%d, s%d, s17" % (SH, SH))
    a("v_mov_b32 v%d, v%d" % (F_LA[0], V_L16))
    a("v_add_u32 v%d, 65536, v%d" % (F_LA[1], V_L16))
    a("v_add_u32 v%d, %d, v%d" % (F_CSA, LDS_E, V_L16))
    a("v_and_b32 v%d, 0x380, v%d" % (F_TA, V_L128))
    a("v_add_u32 v%d, 4096, v%d" % (F_TA + 1, F_TA))
    a_addr(a, 53, 54, OFF_W2, 112, 28)
    flag_addr(a, 38, FL_X1, S_RG, 8)
    a("s_lshr_b32 s17, s%d, 1" % S_W)
    a("s_lshl_b32 s17, s17, 7")
    a("s_add_u32 s38, s38, s17")
    a("s_and_b32 s17, s%d, 1" % S_W)
    a("s_lshl_b32 s17, s17, 2")
    a("s_add_u32 s38, s38, s17")
    lane_pat(a, F_T + 2, 15, 0, 3)
    flag_addr(a, S_FH, FL_H, S_RG, 9, S_M, per_layer=0x2000)
    stamp(a, cfg, 1)
    a("s_barrier")
    dma13(a, 3)
    t3 = a.vt()
    poll(a, cfg, 38, F_T + 2, F_T)
    stamp(a, cfg, 2)
    tX = {}

    def xload(i):
        if i < 28:
            blk(a, ar(4 * i, 4), SX, i, SC)
        else:
            blk(a, ar(4 * i, 4), 25, i - 28, SC)
        tX[i] = a.vt()

    XW = cfg.get("xwin", 14)
    for i in range(XW):
        xload(i)

    def wread(tile, ks, ring):
        slot = SLOT13[tile]
        if ks == 32:
            a("ds_read_b128 v[%d:%d], v%d offset:%d" % (F_W + 4 * ring, F_W + 4 * ring + 3, F_CSA, LDS_CS - LDS_E + tile * 1024))
            return
        if G3 and tile == 4:
            a("ds_read_b128 v[%d:%d], v%d offset:%d" % (F_W + 4 * ring, F_W + 4 * ring + 3, F_CSA if ks < 24 else F_LA[0], (ks % 24) * 1024))
            return
        a("ds_read_b128 v[%d:%d], v%d offset:%d" % (F_W + 4 * ring, F_W + 4 * ring + 3, F_LA[slot >> 1], (slot & 1) * 32768 + ks * 1024))

    def epi(tile):
        acc, cs = F_ACC[tile % NACC], F_CS
        hp = F_H + 4 * (tile % 2)
        out = []
        for e in range(8):
            out.append("v_fma_f32 v%d, v%d, v%d, v%d" % (F_T + 8 + e, F_C1, acc + e, F_LG))
        for e in range(8):
            out.append("v_exp_f32 v%d, v%d" % (F_T + 8 + e, F_T + 8 + e))
            out.append("v_mul_f32 v%d, v%d, v%d" % (acc + e, acc + e, acc + 8 + e))
            if e:
                out.append("v_add_f32 v%d, v%d, v%d" % (F_T + 7 + e, F_RS2, F_T + 7 + e))
        out.append("v_add_f32 v%d, v%d, v%d" % (F_T + 15, F_RS2, F_T + 15))
        for e in range(8):
            out.append("v_rcp_f32 v%d, v%d" % (F_T + 8 + e, F_T + 8 + e))
            if e:
                out.append("v_mul_f32 v%d, v%d, v%d" % (acc + e - 1, F_T + 7 + e, acc + e - 1))
        out.append("v_mul_f32 v%d, v%d, v%d" % (acc + 7, F_T + 15, acc + 7))
        for i in range(4):
            out.append("v_cvt_pk_bf16_f32 v%d, v%d, v%d" % (hp + i, acc + 2 * i, acc + 2 * i + 1))
        out.append("buffer_store_dwordx4 v[%d:%d], v%d, s[4:7], s%d offen offset:%d" % (hp, hp + 3, V_OFF[tile // 4], SH, (tile % 4) * 1024))
        if DBL[0]:
            out.append("buffer_store_dwordx4 v[%d:%d], v%d, s[4:7], s%d offen offset:%d" % (hp, hp + 3, V_OFF[tile // 4], SH, (tile % 4) * 1024))
        return out

    G0 = cfg.get("g0", 2)
    steps = []
    for ks in range(33):
        for tl in range(G0):
            steps.append((tl, ks))
    for tile in range(G0, 7):
        for ks in range(33):
            steps.append((tile, ks))
    N = len(steps)
    PF = cfg.get('pf', 6)
    lt = {}
    first_of, last_of = {}, {}
    for n, (tile, ks) in enumerate(steps):
        first_of.setdefault(tile, n)
        last_of[tile] = n
    dma_q = []
    fence_t, fence_n, fenced = {}, {}, set()

    def do_read(n):
        tile, ks = steps[n]
        if G3:
            ft = 5 if (tile, ks) == (4, 24) else (6 if (tile, ks) == (6, 0) else None)
            if ft:
                assert ft in fence_t and not any(q[0] <= ft for q in dma_q), ft
                a.wait_vm(fence_t[ft])
                a("s_barrier")
        elif n == first_of[tile] and tile >= 4 and tile not in fenced:
            assert tile in fence_t and not any(q[0] == tile for q in dma_q), tile
            a.wait_vm(fence_t[tile])
            a("s_barrier")
        wread(tile, ks, n % 8)
        lt[n] = a.lt()

    cs_t = 0
    for n in range(PF):
        do_read(n)
    pending = []
    nx = XW
    nst, st_t, st_n, early_done, rb_done = 0, {}, {}, False, False
    for n, (tile, ks) in enumerate(steps):
        if tile >= G0 and ks == 0:
            stamp(a, cfg, 1 + tile)
        if tile == 0 and ks < 32:
            a.wait_vm(tX[ks])
        if n % 2 == 0:
            a.wait_lg(lt[min(n + 1, N - 1)])
            lg_done = lt[min(n + 1, N - 1)]
        acc = F_ACC[tile % NACC]
        if ks == 0 and tile >= NACC:
            assert nst > tile - NACC, (tile, nst)
        mf(a, acc, vr(F_W + 4 * (n % 8), 4), ar(4 * ks, 4) if ks < 32 else vr(F_CS, 4), "0" if ks == 0 else vr(acc, 16))
        if (tile == 0 or (tile < G0 and cfg.get('xfast', 0))) and nx < 32:
            xload(nx)
            nx += 1
            if nx == 32:
                load_stats(a, F_ST, 26, F_T, SC)
                t_st = a.vt()
        if n + PF < N:
            do_read(n + PF)
        if n == last_of[G0 - 1] + 2:
            a("s_barrier")
            if G3:
                dma_q += [(4, "s_mov_b32 m0, s28"), (4, "s_nop 0"),
                          (4, "buffer_load_dwordx4 v%d, s[4:7], s33 offen sc1 lds" % V_L16),
                          (4, "buffer_load_dwordx4 v%d, s[4:7], s33 offen offset:1024 sc1 lds" % V_L16)]
                for tl in (5, 6):
                    dma_q += [(tl, x) for x in dma_lines(tl)]
                b = Asm()
                for idx in range(46, 56):
                    w2load(b, idx, 53, 54)
                dma_q += [(99, l.strip()) for l in b.lines]
            else:
                for tl in range(4, 4 + G0):
                    dma_q += [(tl, x) for x in dma_lines(tl)]
        for old in range(G0, 3):
            if n == last_of[old] + 2:
                a("s_barrier")
                dma_q += [(old + 4, x) for x in dma_lines(old + 4)]
                if old == 2:
                    b = Asm()
                    for idx in range(46, 56):
                        w2load(b, idx, 53, 54)
                    dma_q += [(99, l.strip()) for l in b.lines]
        dcost = 0
        if dma_q and ((n >= cfg.get("d3_from", 38) and n % cfg.get("d3_every", 3) == 0) if tile < G0 else n % cfg.get("dma_every", 3) == 0):
            while dma_q:
                tl, x = dma_q.pop(0)
                a(x)
                dcost += cfg.get("dma_cost", 8)
                if x.startswith("buffer_load"):
                    fence_t[tl] = a.vt()
                    fence_n[tl] = n
                    break
        if n == last_of[G0 - 1] - G0 - 2:
            a.wait_vm(t_st)
            finish_stats(a, F_ST, F_NMU, F_RS2)
            a("v_mul_f32 v%d, %s, v%d" % (F_C1, fl(-LOG2E), F_RS2))
            a("v_mov_b32 v%d, v%d" % (F_RS2, F_ST + 1))
            a("v_log_f32 v%d, v%d" % (F_LG, F_ST + 1))
            bextra(a, F_NMU, F_CS)
        for tl in range(0, 6):
            if n == max(last_of[tl], last_of[G0 - 1]) + 3:
                pending += epi(tl)
        if nst >= EARLY and not rb_done and n >= st_n[EARLY - 1] + 1:
            if cfg.get("h_wt", 6) < EARLY:
                readback(a, [(SH, 1024 * EARLY, 0)])
                a("s_mov_b64 exec, -1")
                dcost += 24
            rb_done = n
        for tl in range(cfg.get("h_touch", 0)):
            if tl in st_n and n == st_n[tl] + cfg.get("touch_lag", 24):
                a("buffer_load_dword v%d, v%d, s[4:7], s%d offen offset:%d sc1" % (V_P2, F_TA + (tl // 4), SH, (tl % 4) * 1024))
                a.vm_issued -= 0
                dcost += 8
        cost = dcost
        lim = cfg.get("epi_cost", 16)
        while pending:
            x = pending[0]
            if x == "CSWAIT":
                pending.pop(0)
                if cs_t > lg_done:
                    a.wait_lg(cs_t)
                    cost += 4
                continue
            cx = 8 if x.split()[0] in TRANS else (8 if x.startswith("buffer_") else 4)
            if cost + cx > lim:
                break
            pending.pop(0)
            if x.startswith("buffer_store") and not G3:
                ok = [t for t in (4, 5, 6) if t in fence_n and t not in fenced and not any(q[0] == t for q in dma_q)
                      and fence_n[t] + cfg.get("fence_age", 20) <= n
                      and (99 not in fence_n or (not dma_q and fence_n[99] + cfg.get("fence_age", 20) <= n))]
                if ok:
                    a.wait_vm(fence_t[max(ok)])
                    a("s_barrier")
                    fenced.update(ok)
            if x.startswith("buffer_store") and nst == EARLY + 1:
                assert rb_done
                assert not dma_q
                a("s_waitcnt vmcnt(0)")
                a("s_mov_b64 exec, 1")
                emit_l(a, "buffer_store_dword v%d, v%d, s[4:7], s%d offen offset:%d" % (V_TAG, V_ZERO, S_FH, 0x100))
                a("s_mov_b64 exec, -1")
                early_done = True
            if x.startswith("buffer_store") and nst < cfg.get("h_wt", 6):
                a(x + " sc1")
            elif x.startswith("buffer_store"):
                emit_l(a, x)
            else:
                a(x)
            cost += cx
            if x.startswith("ds_read"):
                cs_t = a.lt()
            if x.startswith("buffer_store"):
                nst += 1
                st_t[nst - 1] = a.vt()
                st_n[nst - 1] = n
    assert early_done
    assert not dma_q
    stamp(a, cfg, 8)
    for x in pending + epi(6):
        if x == "CSWAIT":
            a.wait_lg(cs_t)
            continue
        if x.startswith("buffer_store"):
            emit_l(a, x)
        else:
            a(x)
    stamp(a, cfg, 9)
    h0 = max(EARLY, cfg.get("h_wt", 6))
    assert nst >= cfg.get("h_wt", 6)
    a("s_add_u32 s17, s%d, %d" % (SH, h0 * 1024))
    publish(a, S_FH, [(17, 1024 * (7 - h0), 0)])
    stamp(a, cfg, 10)


def phase_ffn2(a, cfg):
    SB0, SB1, SX = 26, 27, 28
    SW0, SW1 = 24, 25
    side = []
    if cfg.get("touchq", 0):
        a("s_lshl_b32 s49, s%d, 16" % S_HQ)
        a("s_and_b32 s18, s%d, 3" % S_RB)
        a("s_lshl_b32 s18, s18, 14")
        a("s_add_u32 s49, s49, s18")
        a("s_lshl_b32 s18, s%d, 12" % S_W)
        a("s_add_u32 s49, s49, s18")
        a("s_add_u32 s49, s49, 0x%x" % OFF_WQ)
        a("s_cmp_eq_u32 s%d, 1" % S_LAYER)
        a("s_cselect_b32 s49, 0xf0000000, s49")
        a("v_lshlrev_b32 v%d, 6, v%d" % (G_T + 2, V_LANE))
        side.append("buffer_load_dword v%d, v%d, s[4:7], s49 offen" % (G_T + 3, G_T + 2))
    layer_off(a, SX, OFF_H, H_STRIDE)
    b_addr(a, SB0, SB1, SX, 112, 28)
    reduce_addr(a, LDS_R1)
    out_addr(a, 2)
    flag_addr(a, 38, FL_H, S_RG, 9, per_layer=0x2000)
    a("s_lshl_b32 s17, s%d, 6" % S_W)
    a("s_add_u32 s38, s38, s17")
    a("s_and_b32 s17, s%d, 1" % S_RB)
    a("s_lshl_b32 s17, s17, 3")
    a("s_add_u32 s38, s38, s17")
    lane_pat(a, G_T + 6, 7, 0, 2)
    xin_flag_addr(a, 39, True, 1)
    stamp(a, cfg, 8)
    poll(a, cfg, 38, G_T + 6, G_T + 4, imm=0x100)
    stamp(a, cfg, 9)
    wb = cfg.get("wbl2", 0)
    R = 32

    def hreg(e):
        return ar(4 * (e % R), 4)

    early = [7 * mm + tl for tl in range(EARLY) for mm in range(4)]
    late = [7 * mm + tl for tl in range(EARLY, 7) for mm in range(4)]
    order = [(1, i) for i in early] + [(0, i) for i in early] + [(1, i) for i in late] + [(0, i) for i in late]
    tp = {}

    def probe():
        a("buffer_load_dword v%d, v%d, s[4:7], s38 offen %s" % (G_T + 5, G_T + 6, SC))
        tp[0] = a.vt()

    def check():
        a.wait_vm(tp[0])
        a("v_cmp_ne_u32 vcc, v%d, v%d" % (V_TAG, G_T + 5))
        a("s_cbranch_vccz L_ffn2_go")
        keep = a.vm_issued
        poll(a, cfg, 38, G_T + 6, G_T + 4)
        a.vm_issued = keep
        a("L_ffn2_go:")
        if wb:
            a("s_lshr_b32 s17, s2, %d" % (3 if wb == 1 else 6))
            a("s_or_b32 s17, s17, s%d" % S_W)
            a("s_xor_b32 s18, s%d, 1" % S_LAYER)
            a("s_or_b32 s17, s17, s18")
            a("s_cmp_lg_u32 s17, 0")
            a("s_cbranch_scc1 L_ffn2_nowb")
            a("buffer_wbl2 sc1")
            a("L_ffn2_nowb:")
        stamp(a, cfg, 3)

    pp = cfg.get("probe_at", 16)
    gemm64_core(a, cfg, 28, lambda i: w2reg(0, i), lambda i: w2reg(1, i), hreg,
                lambda e: blk(a, hreg(e), SB1 if order[e][0] else SB0, order[e][1], SC), cfg.get('win2', 18), order=order,
                gate=(2 * len(early), probe, check, pp, pp), side=side, side_from=cfg.get('w2_side', 6), side_n=1,
                side2=wq_lines(), side2_from=cfg.get('wq_from', 32), ramp=cfg.get('ramp2', 10), resid=True)
    res_epilogue(a, cfg, 2, "L_final")
    stamp(a, cfg, 10)
    publish(a, 39, [(34, 2048, 0), (35, 256, 0)])
    stamp(a, cfg, 11)


def final_store(a):
    a("v_permlane32_swap_b32 v%d, v%d" % (V_RES, V_RES + 2))
    a("v_permlane32_swap_b32 v%d, v%d" % (V_RES + 1, V_RES + 3))
    a("v_permlane32_swap_b32 v%d, v%d" % (V_RES + 4, V_RES + 6))
    a("v_permlane32_swap_b32 v%d, v%d" % (V_RES + 5, V_RES + 7))
    a("s_lshl_b32 s17, s%d, 15" % S_RT)
    a("s_lshl_b32 s18, s%d, 6" % S_NT)
    a("s_add_u32 s17, s17, s18")
    a("v_lshlrev_b32 v%d, 10, v%d" % (G_T + 2, V_R31))
    a("v_lshl_add_u32 v%d, v%d, 4, v%d" % (G_T + 2, V_H, G_T + 2))
    a("buffer_store_dwordx4 v[%d:%d], v%d, s[8:11], s17 offen" % (V_RES, V_RES + 3, G_T + 2))
    a("buffer_store_dwordx4 v[%d:%d], v%d, s[8:11], s17 offen offset:32" % (V_RES + 4, V_RES + 7, G_T + 2))


def st_begin(a, cfg):
    kern.stamp_init(a, cfg)


def st_end(a, cfg, k):
    if not cfg.get("stamps"):
        return
    stamp(a, cfg, NSTAMP - 1)
    a("s_memrealtime s[62:63]")
    a("s_waitcnt lgkmcnt(0)")
    a("s_mov_b32 s79, s62")
    a("s_mul_i32 s60, s3, 5\ns_add_u32 s60, s60, %d" % k)
    a("s_lshl_b32 s60, s60, 16")
    a("s_lshl_b32 s61, s2, 8")
    a("s_add_u32 s60, s60, s61")
    a("s_lshl_b32 s61, s12, 6")
    a("s_add_u32 s60, s60, s61")
    a("s_add_u32 s60, s60, 0x%x" % kern.OFF_STAMP)
    for i in range(16):
        a("v_writelane_b32 v199, s%d, %d" % (64 + i, i))
    a("s_mov_b32 exec_lo, 0xffff\ns_mov_b32 exec_hi, 0x0")
    a("buffer_store_dword v199, v%d, s[4:7], s60 offen" % V_L4)
    a("s_mov_b64 exec, -1")


def dbgt(a, cfg, k, last=False):
    if not cfg.get("dbgtime"):
        return
    L = a.newlabel("L_dt")
    a("s_cmp_lg_u32 s2, %d" % (cfg["dbgtime"] - 1))
    a("s_cbranch_scc1 %s" % L)
    a("s_memrealtime s[64:65]")
    a("s_memtime s[66:67]")
    a("s_mov_b32 s68, s98\ns_mov_b32 s69, s99\ns_mov_b32 s70, 256\ns_mov_b32 s71, 0x00020000")
    a("s_mul_i32 s72, s3, 20")
    a("s_waitcnt lgkmcnt(0)")
    a("s_sub_u32 s64, s64, s60")
    a("s_sub_u32 s66, s66, s62")
    a("v_mov_b32 v199, s64")
    a("buffer_store_dword v199, v%d, s[68:71], s72 offen offset:%d" % (V_ZERO, 4 + 4 * k))
    if last:
        a("v_mov_b32 v198, s66")
        a("buffer_store_dword v198, v%d, s[68:71], 0 offen offset:%d" % (V_ZERO, 4 * 13))
    a(L + ":")


KNAME = kern.NAME + "_kernel"


def build(cfg):
    rep = []
    DBL[0] = cfg.get("dbl", 0)
    TOUCH[0] = cfg.get("ptouch", 0)
    COMPACT[0] = cfg.get("compact", 1)
    DUAL[0] = False
    LSC[0] = cfg.get("lsc", "")
    RBW[0] = cfg.get("rbw", 0)
    global OFF_WKV
    if COMPACT[0]:
        OFF_WKV = SU.OFF_WKV = C_WKV
    a = Asm()
    a("s_load_dwordx16 s[80:95], s[0:1], 0")
    a("s_load_dwordx2 s[96:97], s[0:1], 64")
    a("s_load_dwordx2 s[98:99], s[0:1], 80")
    kern.common_prologue(a, True)
    a("v_mov_b32 v%d, 0" % V_ZERO)
    a("v_mov_b32 v199, 0")
    a("v_lshlrev_b32 v%d, 7, v%d" % (V_L128, V_LANE))
    a("v_lshlrev_b32 v%d, 2, v%d" % (V_L4, V_LANE))
    a("s_lshr_b32 s17, s%d, 1" % S_W)
    a("s_and_b32 s18, s%d, 1" % S_W)
    a("s_lshl_b32 s%d, s%d, 1" % (S_NT, S_HQ))
    a("s_add_u32 s%d, s%d, s17" % (S_NT, S_NT))
    a("s_lshl_b32 s%d, s%d, 1" % (S_RT, S_RB))
    a("s_add_u32 s%d, s%d, s18" % (S_RT, S_RT))
    a("s_mov_b32 s%d, 0" % S_LAYER)
    if cfg.get("spin_limit"):
        a("s_mov_b32 s46, %d" % cfg["spin_limit"])
    if cfg.get("dbgtime"):
        a("s_memrealtime s[60:61]")
        a("s_memtime s[62:63]")
        a("s_waitcnt lgkmcnt(0)")
    st_begin(a, cfg)
    SU.startup(a, cfg, sys.modules[__name__])
    dbgt(a, cfg, 0)
    a_addr(a, S_Q0, S_Q1, OFF_WQ, 32, 8)
    a("s_lshl_b32 s%d, s%d, 13" % (S_KVW, S_W))
    a("s_add_u32 s%d, s%d, 0x%x" % (S_KVW, S_KVW, OFF_WKV))
    a("s_and_b32 s17, s2, 7")
    a("s_lshl_b32 s17, s17, 15")
    a("s_add_u32 s%d, s%d, s17" % (S_KVW, S_KVW))
    a("s_cmp_ge_u32 s%d, 4" % S_HQ)
    a("s_cselect_b32 s%d, s%d, s%d" % (S_KVW, S_Q0, S_KVW))
    st_end(a, cfg, 0)
    a("L_layer:")
    for k, ph in enumerate((phase_qkv, phase_att, phase_wo, phase_ffn1, phase_ffn2)):
        st_begin(a, cfg)
        ph(a, cfg)
        st_end(a, cfg, k + 1)
        dbgt(a, cfg, k + 1)
    a("s_mov_b32 s%d, 1" % S_LAYER)
    a("s_branch L_layer")
    a("L_final:")
    final_store(a)
    st_end(a, cfg, 5)
    dbgt(a, cfg, 5, True)
    a("L_exit:")
    a("s_endpgm")
    main_lines, _ = fix_hazards_fast(kern.uniq(a.lines, "main"), rep)

    pf = cfg.get("pfk", 0)
    if pf:
        b = Asm()
        b("s_cmp_ge_u32 s2, 256")
        b("s_cbranch_scc1 L_pf_end")
        b("s_load_dwordx16 s[16:31], s[0:1], 0")
        b("s_load_dwordx2 s[32:33], s[0:1], 64")
        b("s_getpc_b64 s[4:5]")
        b("L_pf_pc:")
        b("s_add_u32 s4, s4, L_code_begin-L_pf_pc")
        b("s_addc_u32 s5, s5, -1")
        b("s_lshr_b32 s6, s2, 3")
        b("s_and_b32 s7, s2, 7")
        b("s_lshl_b32 s8, s6, 11")
        b("v_lshlrev_b32 v1, 3, v0")
        b("v_add_u32 v1, s8, v1")
        b("v_min_u32 v1, L_code_end-L_code_begin-8, v1")
        b("global_load_dwordx2 v[2:3], v1, s[4:5]")
        if pf >= 2:
            b("v_lshlrev_b32 v1, 6, v0")
            b("s_lshl_b32 s8, s6, 14")
            b("v_add_u32 v4, s8, v1")
            b("s_lshl_b32 s9, s7, 18")
            b("s_lshl_b32 s10, s6, 13")
            b("s_add_u32 s9, s9, s10")
            b("v_lshlrev_b32 v5, 5, v0")
            b("v_add_u32 v5, s9, v5")
            b("s_mul_i32 s11, s2, 7168")
            b("v_mul_u32_u24 v6, 28, v0")
            b("v_add_u32 v6, s11, v6")
            b("s_lshl_b32 s11, s2, 11")
            b("v_lshlrev_b32 v7, 3, v0")
            b("v_add_u32 v7, s11, v7")
            b("s_waitcnt lgkmcnt(0)")
            b("global_load_dword v8, v4, s[18:19]")
            b("global_load_dword v9, v5, s[16:17]")
            b("global_load_dword v10, v1, s[20:21]")
            b("global_load_dword v11, v1, s[22:23]")
            b("global_load_dword v12, v6, s[28:29]")
            b("global_load_dword v13, v6, s[30:31]")
            b("global_load_dword v14, v6, s[32:33]")
            b("global_load_dword v15, v7, s[24:25]")
        b("L_pf_end:")
        b("s_endpgm")
        pfl, _ = fix_hazards_fast(["L_code_begin:", "L_code_end:"] + b.lines, rep)
        main_lines2 = [".p2align 8", "pf_kernel:"] + pfl[2:]
        s = "; @launch kernel=pf_kernel grid=(256,1,1) block=(256,1,1) lds=0\n"
        s += "; @launch kernel=%s grid=(256,1,1) block=(256,1,1) lds=%d\n" % (KNAME, 160 * 1024)
    else:
        main_lines2 = []
        s = "; @launch grid=(256,1,1) block=(256,1,1) lds=%d\n" % (160 * 1024)
    s += '.amdgcn_target "amdgcn-amd-amdhsa--gfx950"\n.text\n.globl %s\n.p2align 8\n.type %s,@function\n' % (KNAME, KNAME)
    s += "\n".join(["L_code_begin:", KNAME + ":"] + main_lines + ["L_code_end:"] + main_lines2) + "\n"
    s += '.section .rodata,"a"\n.p2align 6\n' + kernel_desc(KNAME, 512, 256, 102)
    if pf:
        s += ".p2align 6\n" + kernel_desc("pf_kernel", 16, 16, 40)
    return s, rep


if __name__ == "__main__":
    cfg = dict(code_prefetch=True)
    for kv in sys.argv[2:]:
        k, v = kv.split("=")
        cfg[k] = eval(v)
    s, rep = build(cfg)
    open(sys.argv[1], "w").write(s)
    print("auto nops:", sum(r[0] for r in rep), "sites", len(rep), "bytes of source", len(s))
    if cfg.get("verbose"):
        for r in rep:
            print(r)
```

```python
from asmlib import *
from layout import *
from kern import split3, stamp, S_W, S_RB, S_HQ, V_L16, V_LANE, V_R31, V_H

LROW = 192
LST = 96 * 1024
LCS = LST + 49152
PX, PWQ, PWK, PWV, PWO, PW1, PW3, PW2, PDBG = 80, 82, 84, 86, 88, 92, 94, 96, 98
D = 200
V_SO, V_SO2 = 232, 233
S_DST = 55
S_TASK = 56
FL_WQ = 0xE000
WKV_COPY = 0x8000


def startup(a, cfg, K):
    SC = K.SC
    RES = K.V_RES
    t0, t1, t2, t3, t4, t5 = 24, 25, 26, 27, 28, 29
    ONES, CS = 32, 33
    R = 36
    QR = 88
    u0, u1, u2, u3, u4, u5, u6 = 48, 49, 50, 51, 52, 53, 54
    a("s_mov_b32 s36, s%d" % PDBG)
    a("s_mov_b32 s37, s%d" % (PDBG + 1))
    a("s_mov_b32 s38, 256")
    a("s_mov_b32 s39, 0x00020000")
    a("s_or_b32 s17, s2, s%d" % S_W)
    a("s_cmp_lg_u32 s17, 0")
    a("s_cbranch_scc1 L_s_notag")
    a("s_memrealtime s[18:19]")
    a("s_waitcnt lgkmcnt(0)")
    a("s_lshl_b32 s18, s18, 4")
    a("s_or_b32 s18, s18, 1")
    a("v_mov_b32 v%d, s18" % t0)
    a("s_mov_b64 exec, 3")
    a("buffer_store_dword v%d, v%d, s[36:39], 0 offen %s" % (t0, K.V_L128, SC))
    a("s_mov_b64 exec, -1")
    a("L_s_notag:")
    a("s_getpc_b64 s[18:19]")
    a("L_s_pc:")
    a("s_add_u32 s18, s18, L_code_begin-L_s_pc")
    a("s_addc_u32 s19, s19, -1")
    a("s_lshr_b32 s17, s2, 3")
    a("s_lshl_b32 s17, s17, 11")
    a("v_lshlrev_b32 v%d, 3, v0" % t0)
    a("v_add_u32 v%d, s17, v%d" % (t0, t0))
    a("v_min_u32 v%d, L_code_end-L_code_begin-8, v%d" % (t0, t0))
    a("global_load_dwordx2 v[254:255], v%d, s[18:19]" % t0)
    a("s_mov_b32 s40, s%d" % PX)
    a("s_mov_b32 s41, s%d" % (PX + 1))
    a("s_mov_b32 s42, %d" % (2048 * 512 * 2))
    a("s_mov_b32 s43, 0x00020000")
    a("s_lshl_b32 s17, s%d, 15" % K.S_RT)
    a("s_lshl_b32 s18, s%d, 6" % K.S_NT)
    a("s_add_u32 s17, s17, s18")
    a("v_lshlrev_b32 v%d, 10, v%d" % (t0, V_R31))
    a("v_lshl_add_u32 v%d, v%d, 4, v%d" % (t0, V_H, t0))
    a("buffer_load_dwordx4 v[%d:%d], v%d, s[40:43], s17 offen" % (RES, RES + 3, t0))
    a("buffer_load_dwordx4 v[%d:%d], v%d, s[40:43], s17 offen offset:32" % (RES + 4, RES + 7, t0))
    a("s_bitcmp1_b32 s%d, 0" % S_HQ)
    a("s_cselect_b32 s40, s%d, s%d" % (PWV, PWK))
    a("s_cselect_b32 s41, s%d, s%d" % (PWV + 1, PWK + 1))
    a("s_mov_b32 s42, %d" % (512 * 16 * 2))
    a("s_lshl_b32 s17, s%d, 12" % S_W)
    for p in range(4):
        a("buffer_load_dwordx4 v[%d:%d], v%d, s[40:43], s17 offen offset:%d" % (QR + 4 * p, QR + 4 * p + 3, V_L16, 1024 * p))
    a("s_mov_b32 s40, s%d\ns_mov_b32 s41, s%d\ns_mov_b32 s42, %d" % (PWQ, PWQ + 1, 512 * 512 * 2))
    a("v_lshrrev_b32 v%d, 3, v%d" % (u0, V_LANE))
    a("v_and_b32 v%d, 7, v%d" % (u1, V_LANE))
    a("v_lshlrev_b32 v%d, 10, v%d" % (u2, u0))
    a("v_lshl_add_u32 v%d, v%d, 4, v%d" % (u2, u1, u2))
    a("s_lshl_b32 s17, s%d, 17" % S_W)
    a("s_lshl_b32 s18, s%d, 7" % S_HQ)
    a("s_add_u32 s17, s17, s18")
    a("v_mov_b32 v%d, v%d" % (u6, u2))
    for p in range(8):
        a("buffer_load_dwordx4 v[%d:%d], v%d, s[40:43], s17 offen" % (QR + 16 + 4 * p, QR + 16 + 4 * p + 3, u6))
        a("s_add_u32 s17, s17, 8192")
    a("s_mov_b32 s54, s17")
    a("s_and_b32 s18, s%d, 1" % S_W)
    a("s_lshl_b32 s59, s18, 7")
    a("buffer_load_dword v%d, v%d, s[36:39], s59 offen %s" % (K.V_TAG, K.V_ZERO, SC))
    a("s_mul_i32 s18, s%d, %d" % (S_W, 128 * LROW))
    a("v_mul_u32_u24 v%d, %d, v%d" % (u2, LROW, u0))
    a("v_lshl_add_u32 v%d, v%d, 4, v%d" % (u2, u1, u2))
    a("v_add_u32 v%d, s18, v%d" % (u2, u2))
    a("v_lshrrev_b32 v%d, 1, v%d" % (u0, V_LANE))
    a("v_and_b32 v%d, 1, v%d" % (u1, V_LANE))
    a("v_mul_u32_u24 v%d, %d, v%d" % (u3, LROW, u0))
    a("v_lshl_add_u32 v%d, v%d, 4, v%d" % (u3, u1, u3))
    a("v_add_u32 v%d, s18, v%d" % (u3, u3))
    a("v_and_b32 v%d, 15, v%d" % (u0, V_LANE))
    a("v_lshrrev_b32 v%d, 2, v%d" % (u1, u0))
    a("v_lshl_add_u32 v%d, v%d, 2, v%d" % (u1, V_H, u1))
    a("v_mul_u32_u24 v%d, %d, v%d" % (u4, LROW, u1))
    a("v_and_b32 v%d, 3, v%d" % (u0, u0))
    a("v_lshl_add_u32 v%d, v%d, 3, v%d" % (u4, u0, u4))
    a("v_add_u32 v%d, s18, v%d" % (u4, u4))
    a("v_bfe_u32 v%d, v%d, 4, 1" % (u0, V_LANE))
    a("v_lshl_add_u32 v%d, v%d, 5, v%d" % (u5, u0, u4))
    a("s_lshr_b32 s18, s%d, 1" % S_W)
    a("s_lshl_b32 s18, s18, 6")
    a("v_add_u32 v%d, s18, v%d" % (u0, u5))
    a("s_xor_b32 s18, s18, 64")
    a("v_add_u32 v%d, s18, v%d" % (u1, u5))

    def raw_stage(j0, j1, last, extra):
        for j in range(j0, j1):
            if (j - j0) % 2 == 0:
                a("s_waitcnt vmcnt(%d)" % (last - j - 1 + extra))
            if j < 4:
                a("ds_write_b128 v%d, v[%d:%d] offset:%d" % (u3, QR + 4 * j, QR + 4 * j + 3, 128 + 32 * LROW * j))
            else:
                a("ds_write_b128 v%d, v[%d:%d] offset:%d" % (u2, QR + 4 * j, QR + 4 * j + 3, 8 * LROW * (j - 4)))

    def xflag(tagn, cnt):
        a("s_waitcnt vmcnt(%d)" % cnt)
        a("L_s_tg%d:" % tagn)
        a("v_cmp_ne_u32 vcc, 0, v%d" % K.V_TAG)
        a("s_cbranch_vccnz L_s_tagok%d" % tagn)
        if cfg.get("spin_limit"):
            a("s_sub_u32 s46, s46, 1")
            a("s_cbranch_scc1 L_s_tagok%d" % tagn)
        a("s_sleep 2")
        a("buffer_load_dword v%d, v%d, s[36:39], s59 offen %s" % (K.V_TAG, K.V_ZERO, SC))
        a("s_waitcnt vmcnt(0)")
        a("s_branch L_s_tg%d" % tagn)
        a("L_s_tagok%d:" % tagn)
        a("s_mov_b64 exec, 1")
        a("buffer_store_dword v%d, v%d, s[4:7], s58 offen %s" % (K.V_TAG, K.V_ZERO, SC))
        a("s_mov_b64 exec, -1")
        stamp(a, cfg, 4)


    stamp(a, cfg, 1)
    a("s_waitcnt vmcnt(13)")
    stamp(a, cfg, 2)
    a("v_permlane32_swap_b32 v%d, v%d" % (RES, RES + 2))
    a("v_permlane32_swap_b32 v%d, v%d" % (RES + 1, RES + 3))
    a("v_permlane32_swap_b32 v%d, v%d" % (RES + 4, RES + 6))
    a("v_permlane32_swap_b32 v%d, v%d" % (RES + 5, RES + 7))
    K.out_addr(a, 0)
    K.st4(a, RES, V_L16, 34)
    K.store_x_tail(a)
    K.xin_flag_addr(a, 58, True, 0)
    raw_stage(0, 12, 11, 1)
    a("s_waitcnt lgkmcnt(0)")
    for i in range(8):
        a("ds_read_b64_tr_b16 a[%d:%d], v%d offset:%d" % (128 + 4 * i, 129 + 4 * i, u4, 128 + 16 * LROW * i))
        a("ds_read_b64_tr_b16 a[%d:%d], v%d offset:%d" % (130 + 4 * i, 131 + 4 * i, u4, 128 + 16 * LROW * i + 8 * LROW))
    xflag(0, 0)
    for p in range(8, 16):
        a("buffer_load_dwordx4 v[%d:%d], v%d, s[40:43], s54 offen" % (QR + 16 + 4 * p, QR + 16 + 4 * p + 3, u6))
        a("s_add_u32 s54, s54, 8192")
    a("s_lshr_b32 s20, s2, 3")
    a("s_and_b32 s21, s2, 7")
    a("v_lshrrev_b32 v%d, 3, v0" % t1)
    a("v_and_b32 v%d, 7, v0" % t2)
    a("v_mul_u32_u24 v%d, %d, v%d" % (t4, LROW, t1))
    a("v_lshl_add_u32 v%d, v%d, 4, v%d" % (t4, t2, t4))
    a("v_add_u32 v%d, %d, v%d" % (t4, LST, t4))
    a("v_mov_b32 v%d, v%d" % (V_SO, V_L16))
    a("s_mov_b32 s22, 0")
    a("s_mov_b32 s23, 0")
    a("s_mov_b32 s24, 32768")
    a("s_mov_b32 s25, 1024")
    a("s_mov_b32 s42, %d" % (512 * 512 * 2))
    a("s_mov_b32 s%d, 2" % S_TASK)
    a("s_lshr_b32 s26, s20, 3")
    a("s_and_b32 s17, s20, 0x17")
    a("s_cmp_eq_u32 s17, 4")
    a("s_cbranch_scc1 L_s_wkv")
    a("s_cmp_eq_u32 s17, 5")
    a("s_cbranch_scc1 L_s_wq")
    a("s_cmp_gt_u32 s20, 5")
    a("s_cselect_b32 s17, 2, 0")
    a("s_sub_u32 s27, s20, s17")
    a("s_cmp_gt_u32 s20, 13")
    a("s_cselect_b32 s17, 2, 0")
    a("s_sub_u32 s27, s27, s17")
    a("s_lshl_b32 s27, s27, 3")
    a("s_add_u32 s27, s27, s21")
    a("s_and_b32 s26, s27, 1")
    a("s_cmp_lt_u32 s27, 112")
    a("s_cbranch_scc1 L_s_w13")
    a("s_cmp_lt_u32 s27, 168")
    a("s_cbranch_scc1 L_s_w2")
    a("s_cmp_lt_u32 s27, 184")
    a("s_cbranch_scc1 L_s_wo")
    a("s_mov_b32 s%d, 0" % S_TASK)
    a("s_mov_b32 s%d, 0xf0000000" % S_DST)
    a("s_branch L_s_loaded")
    a("L_s_wq:")
    a("s_mov_b32 s%d, 1" % S_TASK)
    a("s_mov_b32 s40, s%d\ns_mov_b32 s41, s%d" % (PWQ, PWQ + 1))
    a("s_mov_b32 s28, s21")
    a("s_mov_b32 s%d, 0x%x" % (S_DST, OFF_WQ))
    a("s_lshl_b32 s23, s28, 11")
    a("s_lshl_b32 s17, s26, 9")
    a("s_add_u32 s23, s23, s17")
    a("s_add_u32 s23, s23, 0x%x" % OFF_CSQX)
    a("s_lshl_b32 s29, s28, 5")
    a("s_lshl_b32 s17, s26, 4")
    a("s_add_u32 s29, s29, s17")
    a("s_add_u32 s29, s29, 0x%x" % (OFF_FLAGS + FL_WQ))
    a("s_branch L_s_qo")
    a("L_s_wo:")
    a("s_mov_b32 s40, s%d\ns_mov_b32 s41, s%d" % (PWO, PWO + 1))
    a("s_sub_u32 s28, s27, 168")
    a("s_lshr_b32 s28, s28, 1")
    a("s_mov_b32 s%d, 0x%x" % (S_DST, OFF_WO))
    a("L_s_qo:")
    a("s_lshl_b32 s30, s26, 18")
    a("s_lshl_b32 s17, s28, 7")
    a("s_add_u32 s30, s30, s17")
    a("s_lshl_b32 s17, s28, 16")
    a("s_add_u32 s%d, s%d, s17" % (S_DST, S_DST))
    a("s_lshl_b32 s17, s26, 14")
    a("s_add_u32 s%d, s%d, s17" % (S_DST, S_DST))
    a("s_branch L_s_go")
    a("L_s_w2:")
    a("s_sub_u32 s27, s27, 112")
    a("s_and_b32 s28, s27, 7")
    a("s_lshr_b32 s27, s27, 3")
    a("s_mov_b32 s40, s%d\ns_mov_b32 s41, s%d\ns_mov_b32 s42, %d" % (PW2, PW2 + 1, 1792 * 512 * 2))
    a("s_lshl_b32 s30, s27, 18")
    a("s_lshl_b32 s17, s28, 7")
    a("s_add_u32 s30, s30, s17")
    a("s_mov_b32 s24, %d" % (112 * 1024))
    a("s_mul_i32 s%d, s28, %d" % (S_DST, 2 * 112 * 1024))
    a("s_lshl_b32 s17, s27, 14")
    a("s_add_u32 s%d, s%d, s17" % (S_DST, S_DST))
    a("s_add_u32 s%d, s%d, 0x%x" % (S_DST, S_DST, OFF_W2))
    a("s_branch L_s_go")
    a("L_s_w13:")
    a("s_bfe_u32 s29, s27, 0x10001")
    a("s_lshr_b32 s28, s27, 2")
    a("s_cmp_eq_u32 s29, 0")
    a("s_cselect_b32 s40, s%d, s%d" % (PW1, PW3))
    a("s_cselect_b32 s41, s%d, s%d" % (PW1 + 1, PW3 + 1))
    a("s_mov_b32 s42, %d" % (512 * 1792 * 2))
    a("s_mov_b32 s25, 3584")
    a("s_mul_i32 s30, s26, %d" % (256 * 3584))
    a("s_lshl_b32 s17, s28, 7")
    a("s_add_u32 s30, s30, s17")
    a("s_mov_b32 s24, 65536")
    a("s_lshl_b32 s%d, s28, 17" % S_DST)
    a("s_lshl_b32 s17, s26, 14")
    a("s_add_u32 s%d, s%d, s17" % (S_DST, S_DST))
    a("s_lshl_b32 s17, s29, 8")
    a("s_add_u32 s%d, s%d, s17" % (S_DST, S_DST))
    a("s_add_u32 s%d, s%d, 0x%x" % (S_DST, S_DST, OFF_W13))
    a("s_lshl_b32 s23, s28, 12")
    a("s_add_u32 s23, s23, s17")
    a("s_lshl_b32 s17, s26, 9")
    a("s_add_u32 s23, s23, s17")
    a("s_add_u32 s23, s23, 0x%x" % OFF_CSX)
    a("v_and_b32 v%d, 15, v%d" % (V_SO, V_LANE))
    a("v_lshlrev_b32 v%d, 4, v%d" % (V_SO, V_SO))
    a("v_lshl_add_u32 v%d, v%d, 9, v%d" % (V_SO, V_H, V_SO))
    a("v_bfe_u32 v%d, v%d, 4, 1" % (t5, V_LANE))
    a("v_lshl_add_u32 v%d, v%d, 15, v%d" % (V_SO, t5, V_SO))
    a("L_s_go:")
    a("v_mul_lo_u32 v%d, v%d, s25" % (t3, t1))
    a("v_lshl_add_u32 v%d, v%d, 4, v%d" % (t3, t2, t3))
    a("s_lshl_b32 s17, s25, 5")
    for p in range(8):
        a("buffer_load_dwordx4 v[%d:%d], v%d, s[40:43], s30 offen" % (D + 4 * p, D + 4 * p + 3, t3))
        if p < 7:
            a("s_add_u32 s30, s30, s17")
    a("s_lshr_b32 s17, s%d, 1" % S_W)
    a("s_and_b32 s18, s%d, 1" % S_W)
    a("s_mul_i32 s19, s17, s24")
    a("s_add_u32 s%d, s%d, s19" % (S_DST, S_DST))
    a("s_lshl_b32 s19, s18, 13")
    a("s_add_u32 s%d, s%d, s19" % (S_DST, S_DST))
    a("s_lshl_b32 s17, s17, 6")
    a("s_mul_i32 s18, s18, %d" % (128 * LROW))
    a("s_add_u32 s33, s17, s18")
    a("v_bfe_u32 v%d, v%d, 4, 1" % (t1, V_LANE))
    a("v_lshlrev_b32 v%d, 5, v%d" % (t1, t1))
    a("s_mov_b32 s30, %d" % (32 * LROW))
    a("s_branch L_s_common")
    a("L_s_wkv:")
    a("s_mov_b32 s%d, 1" % S_TASK)
    a("s_cmp_eq_u32 s26, 0")
    a("s_cselect_b32 s40, s%d, s%d" % (PWV, PWK))
    a("s_cselect_b32 s41, s%d, s%d" % (PWV + 1, PWK + 1))
    a("s_mov_b32 s42, %d" % (512 * 16 * 2))
    a("v_lshrrev_b32 v%d, 1, v0" % t1)
    a("v_and_b32 v%d, 1, v0" % t2)
    a("v_mul_u32_u24 v%d, %d, v%d" % (t4, LROW, t1))
    a("v_lshl_add_u32 v%d, v%d, 4, v%d" % (t4, t2, t4))
    a("v_add_u32 v%d, %d, v%d" % (t4, LST, t4))
    a("v_lshlrev_b32 v%d, 4, v0" % t3)
    a("s_mov_b32 s30, 0")
    for p in range(8):
        a("buffer_load_dwordx4 v[%d:%d], v%d, s[40:43], s30 offen" % (D + 4 * p, D + 4 * p + 3, t3))
        if p < 7:
            a("s_add_u32 s30, s30, 4096")
            a("s_and_b32 s30, s30, 0x3fff")
    a("v_and_b32 v%d, 15, v%d" % (V_SO, V_LANE))
    a("v_lshlrev_b32 v%d, 4, v%d" % (V_SO, V_SO))
    a("v_lshl_add_u32 v%d, v%d, 9, v%d" % (V_SO, V_H, V_SO))
    a("s_mul_i32 s%d, s21, 0x%x" % (S_DST, WKV_COPY))
    a("s_lshl_b32 s17, s%d, 13" % S_W)
    a("s_add_u32 s%d, s%d, s17" % (S_DST, S_DST))
    a("s_lshl_b32 s17, s26, 8")
    a("s_add_u32 s%d, s%d, s17" % (S_DST, S_DST))
    a("s_add_u32 s%d, s%d, 0x%x" % (S_DST, S_DST, OFF_WKV))
    a("s_lshl_b32 s29, s21, 7")
    a("s_lshl_b32 s17, s26, 4")
    a("s_add_u32 s29, s29, s17")
    a("s_add_u32 s29, s29, 0x%x" % (OFF_FLAGS + FL_WQ + 0x800))
    a("s_lshl_b32 s33, s%d, 5" % S_W)
    a("v_mov_b32 v%d, 0" % t1)
    a("s_mov_b32 s30, 16")
    a("s_mov_b32 s%d, 3" % S_TASK)
    a("L_s_common:")
    a("v_and_b32 v%d, 15, v%d" % (t2, V_LANE))
    a("v_lshrrev_b32 v%d, 2, v%d" % (t3, t2))
    a("v_lshl_add_u32 v%d, v%d, 2, v%d" % (t3, V_H, t3))
    a("v_mul_u32_u24 v%d, %d, v%d" % (t5, LROW, t3))
    a("v_and_b32 v%d, 3, v%d" % (t2, t2))
    a("v_lshl_add_u32 v%d, v%d, 3, v%d" % (t5, t2, t5))
    a("v_add_u32 v%d, v%d, v%d" % (t5, t1, t5))
    a("s_add_u32 s33, s33, %d" % LST)
    a("v_add_u32 v%d, s33, v%d" % (t5, t5))
    a("L_s_loaded:")
    a("v_add_u32 v%d, 4096, v%d" % (V_SO2, V_SO))
    a("s_cmp_eq_u32 s%d, 0" % S_TASK)
    a("s_cbranch_scc1 L_s_raw0")
    raw_stage(12, 20, 19, 8)
    a("s_branch L_s_raw1")
    a("L_s_raw0:")
    raw_stage(12, 20, 19, 0)
    a("L_s_raw1:")
    a("s_waitcnt lgkmcnt(0)")
    for j, ua in ((160, u0), (192, u1)):
        for i in range(8):
            a("ds_read_b64_tr_b16 a[%d:%d], v%d offset:%d" % (j + 4 * i, j + 1 + 4 * i, ua, 16 * LROW * i))
            a("ds_read_b64_tr_b16 a[%d:%d], v%d offset:%d" % (j + 2 + 4 * i, j + 3 + 4 * i, ua, 16 * LROW * i + 8 * LROW))
    stamp(a, cfg, 7)
    a("s_cmp_eq_u32 s%d, 0" % S_TASK)
    a("s_cbranch_scc1 L_s_xpub")
    a("s_cmp_eq_u32 s%d, 3" % S_TASK)
    a("s_cbranch_scc1 L_s_kvw")
    for p in range(8):
        a("s_waitcnt vmcnt(%d)" % (7 - p))
        a("ds_write_b128 v%d, v[%d:%d] offset:%d" % (t4, D + 4 * p, D + 4 * p + 3, 32 * LROW * p))
    a("s_branch L_s_xpub")
    a("L_s_kvw:")
    for p in range(4):
        a("s_waitcnt vmcnt(%d)" % (7 - p))
        a("ds_write_b128 v%d, v[%d:%d] offset:%d" % (t4, D + 4 * p, D + 4 * p + 3, 32 * p))
    a("s_waitcnt vmcnt(0)")
    a("L_s_xpub:")
    stamp(a, cfg, 3)

    a("s_cmp_eq_u32 s%d, 0" % S_TASK)
    a("s_cbranch_scc1 L_s_done")
    a("L_s_tr:")
    a("s_waitcnt lgkmcnt(0)")
    a("s_barrier")
    for i in range(8):
        a("ds_read_b64_tr_b16 v[%d:%d], v%d offset:%d" % (D + 4 * i, D + 4 * i + 1, t5, 16 * LROW * i))
        a("ds_read_b64_tr_b16 v[%d:%d], v%d offset:%d" % (D + 4 * i + 2, D + 4 * i + 3, t5, 16 * LROW * i + 8 * LROW))
    a("s_cmp_eq_u32 s%d, 2" % S_TASK)
    a("s_cbranch_scc1 L_s_nost")
    for i in range(8):
        a("s_waitcnt lgkmcnt(%d)" % min(15, 14 - 2 * i))
        a("buffer_store_dwordx4 v[%d:%d], v%d, s[4:7], s%d offen offset:%d %s" % (D + 4 * i, D + 4 * i + 3, V_SO if i < 4 else V_SO2, S_DST, (i % 4) * 1024, SC))
    a("s_mov_b32 s%d, 0xf0000000" % S_DST)
    a("L_s_nost:")
    a("s_cmp_eq_u32 s%d, 3" % S_TASK)
    a("s_cbranch_scc1 L_s_pub")
    a("s_cmp_eq_u32 s23, 0")
    a("s_cbranch_scc1 L_s_done")
    a("v_mov_b32 v%d, 0x3f803f80" % ONES)
    a("v_mov_b32 v%d, 0" % CS)
    a("s_waitcnt lgkmcnt(0)")
    for r in range(32):
        a("v_dot2_f32_bf16 v%d, v%d, v%d, v%d" % (CS, D + r, ONES, CS))
    a("v_lshlrev_b32 v%d, 2, v0" % t0)
    a("v_add_u32 v%d, %d, v%d" % (t0, LCS, t0))
    a("ds_write_b32 v%d, v%d" % (t0, CS))
    a("s_waitcnt lgkmcnt(0)")
    a("s_barrier")
    a("s_and_b32 s17, s%d, 2" % S_W)
    a("s_lshl_b32 s17, s17, 8")
    a("s_add_u32 s17, s17, %d" % LCS)
    a("v_lshlrev_b32 v%d, 2, v%d" % (t0, V_R31))
    a("v_add_u32 v%d, s17, v%d" % (t1, t0))
    for q in range(4):
        a("ds_read_b32 v%d, v%d offset:%d" % (R + q, t1, 128 * q))
    a("s_waitcnt lgkmcnt(0)")
    a("v_add_f32 v%d, v%d, v%d" % (R, R, R + 1))
    a("v_add_f32 v%d, v%d, v%d" % (R + 2, R + 2, R + 3))
    a("v_add_f32 v%d, v%d, v%d" % (R, R, R + 2))
    split3(a, R, R + 4)
    a("v_lshrrev_b32 v%d, 16, v%d" % (R + 1, R + 4))
    a("v_or_b32 v%d, v%d, v%d" % (R + 8, R + 1, R + 4))
    a("v_lshrrev_b32 v%d, 16, v%d" % (R + 1, R + 5))
    a("v_or_b32 v%d, v%d, v%d" % (R + 9, R + 1, R + 4))
    a("v_lshrrev_b32 v%d, 16, v%d" % (R + 1, R + 6))
    a("v_or_b32 v%d, v%d, v%d" % (R + 10, R + 1, R + 5))
    a("v_mov_b32 v%d, 0" % (R + 11))
    a("v_and_b32 v%d, 15, v%d" % (t0, V_LANE))
    a("v_lshlrev_b32 v%d, 4, v%d" % (t0, t0))
    a("v_bfe_u32 v%d, v%d, 4, 1" % (t1, V_LANE))
    a("s_cmp_eq_u32 s%d, 1" % S_TASK)
    a("s_cselect_b32 s18, 8, 10")
    a("s_cselect_b32 s19, 10, 11")
    a("v_lshlrev_b32 v%d, s18, v%d" % (t1, t1))
    a("v_add_u32 v%d, v%d, v%d" % (t0, t1, t0))
    a("s_lshr_b32 s17, s%d, 1" % S_W)
    a("s_lshl_b32 s17, s17, s19")
    a("s_add_u32 s23, s23, s17")
    a("s_mov_b32 exec_hi, 0")
    a("buffer_store_dwordx4 v[%d:%d], v%d, s[4:7], s23 offen %s" % (R + 8, R + 11, t0, SC))
    a("s_mov_b32 exec_hi, -1")
    a("s_cmp_eq_u32 s%d, 2" % S_TASK)
    a("s_cbranch_scc1 L_s_done")
    a("L_s_pub:")
    a("s_lshl_b32 s17, s%d, 2" % S_W)
    a("s_add_u32 s29, s29, s17")
    a("v_lshlrev_b32 v%d, 8, v%d" % (t1, V_LANE))
    a("s_cmp_eq_u32 s%d, 1" % S_TASK)
    a("s_cselect_b32 s17, 0xff, 1")
    a("s_waitcnt vmcnt(0)")
    a("s_mov_b32 exec_hi, 0")
    a("s_mov_b32 exec_lo, s17")
    a("buffer_store_dword v%d, v%d, s[4:7], s29 offen %s" % (K.V_TAG, t1, SC))
    a("s_mov_b64 exec, -1")
    a("L_s_done:")
    a("s_waitcnt lgkmcnt(0)")
    stamp(a, cfg, 5)
    a("s_barrier")
    stamp(a, cfg, 6)


def probe_addr(a, K, v0, v1, sdst):
    a("v_and_b32 v%d, 28, v%d" % (v0, K.V_L4))
    a("v_bfe_u32 v%d, v%d, 3, 1" % (v1, V_LANE))
    a("s_and_b32 s19, s2, 7")
    a("s_lshl_b32 s17, s%d, 5" % S_HQ)
    a("s_lshl_b32 s18, s19, 8")
    a("s_add_u32 s17, s17, s18")
    a("s_lshl_b32 s18, s19, 7")
    a("s_add_u32 s18, s18, 0x800")
    a("s_sub_u32 s18, s18, s17")
    a("v_mul_lo_u32 v%d, v%d, s18" % (v1, v1))
    a("v_add_u32 v%d, v%d, v%d" % (v0, v0, v1))
    a("s_add_u32 s%d, s17, 0x%x" % (sdst, OFF_FLAGS + FL_WQ))


def deferred_store_groups(K):
    return [["buffer_store_dwordx4 v[%d:%d], v%d, s[4:7], s%d offen offset:%d %s" % (D + 4 * i, D + 4 * i + 3, V_SO if i < 4 else V_SO2, S_DST, (i % 4) * 1024, K.SC)]
            for i in range(8)]
```

```python
import re

TRANS = ("v_exp_f32", "v_log_f32", "v_rcp_f32", "v_rsq_f32", "v_sqrt_f32", "v_sin_f32", "v_cos_f32",
         "v_rcp_iflag_f32", "v_exp_f16", "v_rcp_f16")

_reg_re = re.compile(r"^(-|abs\(|\|)?([vas])(\d+)\)?\|?$")
_rng_re = re.compile(r"^(-|abs\()?([vas])\[(\d+):(\d+)\]\)?$")


def regs_of(op):
    op = op.strip()
    m = _reg_re.match(op)
    if m:
        return [m.group(2) + m.group(3)]
    m = _rng_re.match(op)
    if m:
        return [m.group(2) + str(i) for i in range(int(m.group(3)), int(m.group(4)) + 1)]
    if op in ("vcc", "exec"):
        return [op + "_lo", op + "_hi"]
    if op in ("vcc_lo", "vcc_hi", "exec_lo", "exec_hi", "m0", "scc"):
        return [op]
    return []


def split_ops(s):
    out, depth, cur = [], 0, ""
    for ch in s:
        if ch in "[(":
            depth += 1
        elif ch in "])":
            depth -= 1
        if ch == "," and depth == 0:
            out.append(cur.strip())
            cur = ""
        else:
            cur += ch
    if cur.strip():
        out.append(cur.strip())
    return out


class Ins:
    __slots__ = ("text", "mn", "ops", "mods", "kind", "dst", "src", "srcA", "srcC", "label", "target", "ws", "passes",
                 "dpp", "perm", "lds_dma", "wide_store_data", "sgpr_src", "auto")

    def __init__(self, text):
        self.text = text
        self.label = None
        self.target = None
        self.dst, self.src, self.srcA, self.srcC = set(), set(), set(), []
        self.kind = "other"
        self.ws = 1
        self.passes = 0
        self.dpp = self.perm = self.lds_dma = False
        self.wide_store_data = set()
        self.auto = False
        t = text.split(";")[0].strip()
        self.mn, self.ops, self.mods = "", [], ""
        if not t:
            self.kind, self.ws = "empty", 0
            return
        if t.endswith(":"):
            self.kind, self.ws, self.label = "label", 0, t[:-1]
            return
        if t.startswith("."):
            self.kind, self.ws = "directive", 0
            return
        parts = t.split(None, 1)
        mn = parts[0]
        rest = parts[1] if len(parts) > 1 else ""
        ops = split_ops(rest)
        mods = ""
        if ops:
            lp = ops[-1].split(None, 1)
            if len(lp) > 1 and not ops[-1].startswith("hwreg"):
                ops[-1] = lp[0]
                mods = lp[1]
        self.mn, self.ops, self.mods = mn, ops, mods
        R = lambda i: regs_of(ops[i]) if i < len(ops) else []
        if mn == "s_nop":
            self.kind, self.ws = "nop", int(ops[0], 0) + 1
        elif mn in ("s_branch",) or mn.startswith("s_cbranch"):
            self.kind, self.target = "branch", ops[0]
            if "vcc" in mn:
                self.src |= {"vcc_lo", "vcc_hi"}
        elif mn == "s_endpgm":
            self.kind = "end"
        elif mn == "s_call_b64":
            self.kind, self.target = "branch", ops[1]
            self.mn = "s_branch"
        elif mn == "s_setpc_b64":
            self.kind = "branch"
            self.mn = "s_branch"
            self.target = text.split("ret=")[1].strip().split(",")
        elif mn in ("s_waitcnt", "s_barrier", "s_sleep", "s_setprio"):
            self.kind = "ctl"
        elif mn.startswith("s_load") or mn.startswith("s_memtime") or mn.startswith("s_memrealtime") or mn.startswith("s_buffer_load"):
            self.kind = "smem"
            self.dst |= set(R(0))
            for i in range(1, len(ops)):
                self.src |= set(R(i))
        elif mn.startswith("s_cmp") or mn.startswith("s_bitcmp"):
            self.kind = "salu"
            for i in range(len(ops)):
                self.src |= set(R(i))
        elif mn.startswith("s_"):
            self.kind = "salu"
            self.dst |= set(R(0))
            for i in range(1, len(ops)):
                self.src |= set(R(i))
            if "saveexec" in mn:
                self.dst |= {"exec_lo", "exec_hi"}
        elif mn.startswith("v_mfma"):
            self.kind = "mfma"
            self.passes = 8 if "32x32x16" in mn else (4 if "16x16x32" in mn else None)
            assert self.passes, mn
            self.dst |= set(R(0))
            self.srcA = set(R(1)) | set(R(2))
            self.srcC = R(3)
            self.src = self.srcA | set(self.srcC)
        elif mn.startswith("v_"):
            base = mn.replace("_e32", "").replace("_e64", "").replace("_dpp", "")
            self.kind = "trans" if base in TRANS else "valu"
            if base.startswith("v_dot2"):
                self.kind = "dot"
            self.dpp = mn.endswith("_dpp") or "row_" in mods or "quad_perm" in mods
            if base.startswith("v_permlane"):
                self.perm = True
                self.dst |= set(R(0)) | set(R(1))
                self.src |= set(R(0)) | set(R(1))
            elif base.startswith("v_cmp"):
                self.dst |= set(R(0))
                for i in range(1, len(ops)):
                    self.src |= set(R(i))
            else:
                self.dst |= set(R(0))
                st = 1
                if base in ("v_add_co_u32", "v_sub_co_u32", "v_addc_co_u32", "v_subb_co_u32"):
                    self.dst |= set(R(1))
                    st = 2
                for i in range(st, len(ops)):
                    self.src |= set(R(i))
                if base in ("v_fmac_f32", "v_dot2c_f32_bf16") or self.dpp:
                    self.src |= set(R(0))
        elif mn.startswith("buffer_") or mn.startswith("global_"):
            self.kind = "vmem"
            is_lds = " lds" in (" " + mods) or "_lds_" in mn
            self.lds_dma = is_lds
            if mn in ("buffer_wbl2", "buffer_inv"):
                pass
            elif "load" in mn:
                st = 0 if is_lds else 1
                if not is_lds:
                    self.dst |= set(R(0))
                for i in range(st, len(ops)):
                    self.src |= set(R(i))
                if is_lds:
                    self.src.add("m0")
            else:
                for i in range(len(ops)):
                    self.src |= set(R(i))
                di = 0 if mn.startswith("buffer_") else 1
                if "x4" in mn or "x3" in mn:
                    self.wide_store_data = set(R(di))
                if "atomic" in mn and "sc0" in mods:
                    self.dst |= set(R(0))
        elif mn.startswith("ds_"):
            self.kind = "ds"
            if "read" in mn or "permute" in mn or "swizzle" in mn or "rtn" in mn:
                self.dst |= set(R(0))
                for i in range(1, len(ops)):
                    self.src |= set(R(i))
            else:
                for i in range(len(ops)):
                    self.src |= set(R(i))
        else:
            raise ValueError("unknown instruction: " + text)

    def is_valu(self):
        return self.kind in ("valu", "trans", "dot")


def _sg(rs):
    return {r for r in rs if r[0] == "s" or r.startswith("vcc")}


def required(p, c):
    n = 0
    pv, cv = p.is_valu(), c.is_valu()
    if pv:
        w = p.dst
        vw = {r for r in w if r[0] in "va" and not r.startswith("vcc")}
        sw = _sg(w)
        if c.kind == "mfma" and vw & c.src:
            n = max(n, 2)
        if p.kind == "trans" and (vw & c.src) and c.kind != "trans":
            n = max(n, 1)
        if cv and c.dpp and vw & c.src:
            n = max(n, 2)
        if cv and c.perm and vw & c.src:
            n = max(n, 2)
        if c.mn.startswith("v_readfirstlane") or c.mn.startswith("v_readlane"):
            if vw & c.src:
                n = max(n, 1)
            if sw & c.src:
                n = max(n, 4)
        if sw:
            if cv and sw & c.src:
                n = max(n, 2)
            if c.kind == "vmem" and sw & c.src:
                n = max(n, 5)
            if c.kind in ("salu", "smem", "branch") and sw & c.src:
                n = max(n, 2)
        if p.kind == "dot":
            if c.kind == "dot" and c.mn == p.mn:
                ab = set()
                for o in c.ops[1:3]:
                    ab |= set(regs_of(o))
                if vw & ab:
                    n = max(n, 3)
            elif vw & (c.src | c.dst):
                n = max(n, 3)
    if p.kind == "mfma":
        big = p.passes == 8
        D = p.dst
        if c.kind == "mfma":
            if D & c.srcA:
                n = max(n, 12 if big else 8)
            if D & set(c.srcC):
                if not (set(c.srcC) == D and c.mn == p.mn):
                    n = max(n, 10 if big else 6)
        elif cv:
            if D & (c.src | c.dst):
                n = max(n, 12 if big else 8)
            if set(p.srcC) & c.dst:
                n = max(n, 7 if big else 3)
        elif c.kind in ("vmem", "ds"):
            if D & (c.src | c.dst):
                n = max(n, 12 if big else 8)
            if set(p.srcC) & c.dst:
                n = max(n, 7 if big else 3)
    if p.kind == "salu" and "m0" in p.dst and c.lds_dma:
        n = max(n, 1)
    if p.wide_store_data and (p.wide_store_data & c.dst):
        n = max(n, 2 if cv else 1)
    return n


MAXLOOK = 12


def fix_hazards(lines, report=None):
    ins = [Ins(l) for l in lines]
    changed = True
    total = 0
    while changed:
        changed = False
        labels = {x.label: i for i, x in enumerate(ins) if x.kind == "label"}
        branch_to = {}
        for i, x in enumerate(ins):
            if x.kind == "branch":
                branch_to.setdefault(labels[x.target], []).append(i)

        def preds(i):
            out = []
            if i > 0:
                q = ins[i - 1]
                if not (q.mn == "s_branch" or q.kind == "end"):
                    out.append(i - 1)
            if ins[i].kind == "label":
                out += branch_to.get(i, [])
            return out

        for i, c in enumerate(ins):
            if c.ws == 0 or c.kind in ("nop", "ctl", "end"):
                continue
            need = 0
            stack = [(j, 0) for j in preds(i)]
            seen = set()
            while stack:
                j, dist = stack.pop()
                if (j, dist) in seen:
                    continue
                seen.add((j, dist))
                p = ins[j]
                if p.ws:
                    r = required(p, c)
                    if r - dist > need:
                        need = r - dist
                        why = p.text
                nd = dist + p.ws
                if nd < MAXLOOK:
                    for k in preds(j):
                        stack.append((k, nd))
            if need > 0:
                n = Ins("  s_nop %d" % (need - 1))
                n.auto = True
                n.text += "   ; auto-hazard"
                ins.insert(i, n)
                total += need
                if report is not None:
                    report.append((need, why.strip(), c.text.strip()))
                changed = True
                break
    return [x.text for x in ins], total


def fix_hazards_fast(lines, report=None):
    ins = [Ins(l) for l in lines]
    total = 0
    while True:
        labels = {x.label: i for i, x in enumerate(ins) if x.kind == "label"}
        branch_to = {}
        for i, x in enumerate(ins):
            if x.kind == "branch":
                for tg in (x.target if isinstance(x.target, list) else [x.target]):
                    branch_to.setdefault(labels[tg], []).append(i)
        extra = {}

        def preds(i):
            out = []
            if i > 0:
                q = ins[i - 1]
                if not (q.mn == "s_branch" or q.kind == "end"):
                    out.append(i - 1)
            if ins[i].kind == "label":
                out += branch_to.get(i, [])
            return out

        for i, c in enumerate(ins):
            if c.ws == 0 or c.kind in ("nop", "ctl", "end"):
                continue
            need, why = 0, None
            stack = [(j, 0) for j in preds(i)]
            seen = set()
            while stack:
                j, dist = stack.pop()
                if (j, dist) in seen:
                    continue
                seen.add((j, dist))
                p = ins[j]
                if p.ws:
                    r = required(p, c)
                    if r - dist > need:
                        need, why = r - dist, p.text
                nd = dist + p.ws + extra.get(j, 0)
                if nd < MAXLOOK:
                    for k in preds(j):
                        stack.append((k, nd))
            if need > 0:
                extra[i] = need
                total += need
                if report is not None:
                    report.append((need, why.strip(), c.text.strip()))
        if not extra:
            break
        new = []
        for i, x in enumerate(ins):
            if i in extra:
                n = Ins("  s_nop %d   ; auto-hazard" % (extra[i] - 1))
                new.append(n)
            new.append(x)
        ins = new
    return [x.text for x in ins], total


SPLIT_DMA = [1]


class Asm:
    def __init__(self):
        self.lines = []
        self.vm_issued = 0
        self.dma_issued = 0
        self.last_cls = "v"
        self.lg_issued = 0
        self._lab = 0

    def __call__(self, text):
        for l in text.split("\n"):
            l = l.strip()
            if not l:
                continue
            if l.endswith(":") or l.startswith("."):
                self.lines.append(l)
            else:
                self.lines.append("  " + l)
            mn = l.split()[0]
            if (mn.startswith("buffer_") or mn.startswith("global_")) and "load" in mn:
                if SPLIT_DMA[0] and l.split(";")[0].split()[-1] == "lds":
                    self.dma_issued += 1
                    self.last_cls = "d"
                else:
                    self.vm_issued += 1
                    self.last_cls = "v"
            elif mn.startswith("ds_"):
                self.lg_issued += 1

    def c(self, text):
        self.lines.append("  ; " + text)

    def newlabel(self, base="L"):
        self._lab += 1
        return "%s_%d" % (base, self._lab)

    def vt(self):
        return ("d", self.dma_issued) if self.last_cls == "d" else ("v", self.vm_issued)

    def lt(self):
        return self.lg_issued

    def wait_vm(self, ticket):
        n = (self.dma_issued if ticket[0] == "d" else self.vm_issued) - ticket[1]
        assert 0 <= n, n
        self("s_waitcnt vmcnt(%d)" % min(n, 63))

    def wait_lg(self, ticket):
        n = self.lg_issued - ticket
        assert 0 <= n
        self("s_waitcnt lgkmcnt(%d)" % min(n, 15))


def vr(b, n=1):
    return "v%d" % b if n == 1 else "v[%d:%d]" % (b, b + n - 1)


def ar(b, n=1):
    return "a%d" % b if n == 1 else "a[%d:%d]" % (b, b + n - 1)


def sr(b, n=1):
    return "s%d" % b if n == 1 else "s[%d:%d]" % (b, b + n - 1)


def rr(spec, off=0, n=1):
    f, b = spec
    return (vr if f == "v" else ar)(b + off, n)
```

```python
import sys
from asmlib import *
from layout import *
import kern
import startup as SU
from kern import (split3, fl, MF, S_LAYER, S_W, S_RB, S_HQ, S_RG, S_M, V_L16, V_LANE, V_R31, V_H, V_OFF, xhalf_sum,
                  load_stats, finish_stats, pack8, stamp, kernel_desc, prep, NSTAMP)

SC = "sc1"


COMPACT = [1]
CMAP = {OFF_X: 0x800000, OFF_O: 0xC00000, OFF_H: 0xE00000, OFF_STAT: OFF_STAT}
C_WKV = 0x780000
C_END = 0x1500000


def layer_off(a, sdst, base, stride, mul=1, add=0):
    if COMPACT[0] and base in CMAP:
        a("s_mov_b32 s%d, 0x%x" % (sdst, CMAP[base] + (add & 1) * stride))
    else:
        kern.layer_off(a, sdst, base, stride, mul, add)


def blk(a, dst, sbase, i, sc=SC):
    kern.blk(a, dst, sbase, i, SC)


FL_O = 0x0000
FL_X1 = 0x2000
FL_H = 0x8000
FL_XIN = 0x6000
OFF_FLW = 0x64C000
FL_KV = 0x640000 - OFF_FLAGS

S_RT, S_NT = 31, 32
S_FO, S_FX1, S_FH = 40, 41, 42
S_W13, S_WL = 47, 48
S_RET = 44
V_RES = 12
V_TAG = 11
V_L4 = 20
V_ZERO = 21
VB = 24

G_ACC = 24
G_RED = 88
G_ST = 136
G_CS = 152
G_T = 168
V_WR = [184, 185, 186]
V_RD = 187
V_NMU, V_RSTD = 188, 189
G_KVACC = 88
G_Q = 190
W2V = 200

LDS_R1 = 96 * 1024
LDS_RQ = 0
LDS_KVX = 49152
LDS_CSX = 69632
LDS_CS = 152 * 1024
LDS_E = 128 * 1024


DBL = [0]
LSC = ["sc1"]
S_LOC = 57
DUAL = [False]
_dl = [0]


def lstore(text):
    lines = text if isinstance(text, list) else [text]
    if not DUAL[0]:
        return [l + " sc1" for l in lines]
    _dl[0] += 1
    n = _dl[0]
    return (["s_cbranch_scc1 L_ls%da ; needs scc" % n] + [l + " sc1" for l in lines] + ["s_branch L_ls%db" % n, "L_ls%da:" % n] +
            ["!" + l + " " + LSC[0] for l in lines] + ["L_ls%db:" % n])


def emit_l(a, text):
    out = lstore(text)
    if DUAL[0]:
        a("s_cmp_lg_u32 s%d, 0" % S_LOC)
    for l in out:
        if l.startswith("!"):
            a(l[1:])
        else:
            a(l)


def st4(a, data, voff, soff, imm=0):
    emit_l(a, "buffer_store_dwordx4 v[%d:%d], v%d, s[4:7], s%d offen offset:%d" % (data, data + 3, voff, soff, imm))
    if DBL[0]:
        a("buffer_store_dwordx4 v[%d:%d], v%d, s[4:7], s%d offen offset:%d" % (data, data + 3, voff, soff, imm))


TOUCH = [1]
V_L128 = 23
V_P2 = 199


V_L64 = 22


RBW = [0]


def readback(a, regions, final=False):
    if not DUAL[0]:
        return
    L = a.newlabel("L_rb")
    keep = a.vm_issued
    a("s_cmp_eq_u32 s%d, 0" % S_LOC)
    a("s_cbranch_scc1 %s" % L)
    a("v_lshlrev_b32 v%d, 6, v%d" % (V_L64, V_LANE))
    if RBW[0] and final:
        a("s_waitcnt vmcnt(0)")
    for sg, nb, imm in regions:
        n = nb // 64
        assert n <= 64
        a("s_mov_b32 exec_lo, 0x%x" % (((1 << n) - 1) & 0xffffffff))
        a("s_mov_b32 exec_hi, 0x%x" % (((1 << n) - 1) >> 32))
        a("buffer_load_dword v%d, v%d, s[4:7], s%d offen offset:%d %s" % (V_P2, V_L64, sg, imm, SC))
    a(L + ":")
    a.vm_issued = keep


def publish(a, s_addr, regions, imm=0, between=()):
    readback(a, regions, True)
    if between:
        a("s_mov_b64 exec, -1")
        for x in between:
            a(x)
    a("s_waitcnt vmcnt(0)")
    a("s_mov_b64 exec, 1")
    emit_l(a, "buffer_store_dword v%d, v%d, s[4:7], s%d offen offset:%d" % (V_TAG, V_ZERO, s_addr, imm))
    a("s_mov_b64 exec, -1")


def poll(a, cfg, s_addr, voff, vtmp, wide=False, imm=0, sleep=0):
    L = a.newlabel("L_poll")
    if cfg.get("spin_limit"):
        a("s_mov_b32 s46, %d" % cfg["spin_limit"])
    if cfg.get("ppoll", 0) and not wide and not sleep:
        ld = lambda r: a("buffer_load_dword v%d, v%d, s[4:7], s%d offen offset:%d %s" % (r, voff, s_addr, imm, SC))
        ld(vtmp)
        a("s_sleep %d" % cfg.get("ppoll_gap", 2))
        a(L + ":")
        ld(V_P2)
        a("s_waitcnt vmcnt(1)")
        a("v_cmp_ne_u32 vcc, v%d, v%d" % (V_TAG, vtmp))
        a("s_cbranch_vccz %s_out" % L)
        ld(vtmp)
        a("s_waitcnt vmcnt(1)")
        if cfg.get("spin_limit"):
            a("s_sub_u32 s46, s46, 1")
            a("s_cbranch_scc1 %s_out" % L)
        a("v_cmp_ne_u32 vcc, v%d, v%d" % (V_TAG, V_P2))
        a("s_cbranch_vccnz %s" % L)
        a.vm_issued -= 1
        a(L + "_out:")
        return
    a(L + ":")
    if wide:
        a("buffer_load_dwordx4 v[%d:%d], v%d, s[4:7], s%d offen %s" % (vtmp, vtmp + 3, voff, s_addr, SC))
        a("s_waitcnt vmcnt(0)")
        a("v_cmp_ne_u32 s[18:19], v%d, v%d" % (V_TAG, vtmp + 2))
        a("v_cndmask_b32 v%d, v%d, v%d, s[18:19]" % (vtmp, vtmp, V_ZERO))
    else:
        a("buffer_load_dword v%d, v%d, s[4:7], s%d offen offset:%d %s" % (vtmp, voff, s_addr, imm, SC))
        a("s_waitcnt vmcnt(0)")
    if cfg.get("spin_limit"):
        a("s_sub_u32 s46, s46, 1")
        a("s_cbranch_scc1 %s_out" % L)
    a("v_cmp_ne_u32 vcc, v%d, v%d" % (V_TAG, vtmp))
    if sleep:
        a("s_cbranch_vccz %s_out" % L)
        a("s_sleep %d" % sleep)
        a("s_branch %s" % L)
    else:
        a("s_cbranch_vccnz %s" % L)
    a(L + "_out:")


def lane_pat(a, vdst, mask, hi_shift, lo_mul):
    a("v_and_b32 v%d, %d, v%d" % (vdst, mask & ~1, V_LANE))
    a("v_lshlrev_b32 v%d, 3, v%d" % (vdst, vdst))
    a("v_and_b32 v%d, 1, v%d" % (vdst + 1, V_LANE))
    a("v_lshl_add_u32 v%d, v%d, %d, v%d" % (vdst, vdst + 1, lo_mul, vdst))


def flag_addr(a, sdst, base, s_grp, grp_shift, s_mem=None, per_layer=0x1000):
    a("s_mul_i32 s%d, s%d, 0x%x" % (sdst, S_LAYER, per_layer))
    a("s_add_u32 s%d, s%d, 0x%x" % (sdst, sdst, OFF_FLAGS + base))
    a("s_lshl_b32 s17, s%d, %d" % (s_grp, grp_shift))
    a("s_add_u32 s%d, s%d, s17" % (sdst, sdst))
    if s_mem is not None:
        a("s_lshl_b32 s17, s%d, 4" % s_mem)
        a("s_add_u32 s%d, s%d, s17" % (sdst, sdst))
        a("s_lshl_b32 s17, s%d, 2" % S_W)
        a("s_add_u32 s%d, s%d, s17" % (sdst, sdst))


def xin_flag_addr(a, sdst, own, layer_add):
    flag_addr(a, sdst, FL_XIN + 0x1000 * layer_add, S_RB, 7, S_HQ if own else None)


def a_addr(a, s_a0, s_a1, offA, ksA, ksw):
    a("s_mul_i32 s20, s%d, %d" % (S_W, ksw * 1024))
    a("s_mul_i32 s%d, s%d, %d" % (s_a0, S_NT, ksA * 1024))
    a("s_add_u32 s%d, s%d, s20" % (s_a0, s_a0))
    a("s_add_u32 s%d, s%d, 0x%x" % (s_a0, s_a0, offA))
    a("s_xor_b32 s21, s%d, 1" % S_NT)
    a("s_mul_i32 s%d, s21, %d" % (s_a1, ksA * 1024))
    a("s_add_u32 s%d, s%d, s20" % (s_a1, s_a1))
    a("s_add_u32 s%d, s%d, 0x%x" % (s_a1, s_a1, offA))


def b_addr(a, s_b0, s_b1, s_base, ksB, ksw):
    a("s_mul_i32 s20, s%d, %d" % (S_W, ksw * 1024))
    a("s_add_u32 s20, s20, s%d" % s_base)
    a("s_mul_i32 s%d, s%d, %d" % (s_b0, S_RT, ksB * 1024))
    a("s_add_u32 s%d, s%d, s20" % (s_b0, s_b0))
    a("s_xor_b32 s21, s%d, 1" % S_RT)
    a("s_mul_i32 s%d, s21, %d" % (s_b1, ksB * 1024))
    a("s_add_u32 s%d, s%d, s20" % (s_b1, s_b1))


def reduce_addr(a, base):
    for j in (1, 2, 3):
        a("s_xor_b32 s17, s%d, %d" % (S_W, j))
        a("s_mul_i32 s17, s17, 12288")
        a("s_add_u32 s17, s17, %d" % (base + (j - 1) * 4096))
        a("v_add_u32 v%d, s17, v%d" % (V_WR[j - 1], V_L16))
    a("s_mul_i32 s17, s%d, 12288" % S_W)
    a("s_add_u32 s17, s17, %d" % base)
    a("v_add_u32 v%d, s17, v%d" % (V_RD, V_L16))


def mf(a, d, x, y, c):
    a("%s v[%d:%d], %s, %s, %s" % (MF, d, d + 15, x, y, c))


def wr_tile(a, j):
    for q in range(4):
        r = G_ACC + 16 * j + 4 * q
        a("ds_write_b128 v%d, v[%d:%d] offset:%d" % (V_WR[j - 1], r, r + 3, q * 1024))


def rd_tile(a, j, dst):
    for q in range(4):
        a("ds_read_b128 v[%d:%d], v%d offset:%d" % (dst + 4 * q, dst + 4 * q + 3, V_RD, (j - 1) * 4096 + q * 1024))


def gemm64_core(a, cfg, n, A0, A1, Breg, issueB, window, pre_tickets=None, order=None, side=None, side_from=0, side_n=1,
                gate=None, side2=None, side2_from=0, ramp=None, resid=False, extra0=None, hooks=None):
    if order is None:
        order = [(1, i) for i in range(n)] + [(0, i) for i in range(n)]
    M = len(order)
    side = list(side or [])
    t = dict(pre_tickets or {})
    nxt = len(t)
    gpos = gate[0] if gate else M + 1
    gated = [False]

    def try_issue(limit):
        nonlocal nxt
        while nxt < M and nxt < limit:
            if nxt >= gpos and not gated[0]:
                return
            issueB(nxt)
            t[nxt] = a.vt()
            nxt += 1
            if gate and nxt == gate[3]:
                gate[1]()

    try_issue(ramp or window)
    if cfg.get("stamps") != 2:
        stamp(a, cfg, 1)
    last1 = max(e for e, (st, i) in enumerate(order) if st == 1)
    wr1 = last1 + 2
    bar1 = min(M - 2, last1 + 1 + max(2, (M - last1) // 2))
    seen = set()
    for e, (st, i) in enumerate(order):
        if gate and not gated[0] and e == gate[4]:
            assert not side
            gate[2]()
            gated[0] = True
            try_issue(e + window)
        if hooks and e in hooks:
            hooks[e]()
        a.wait_vm(t[e])
        if e == 0 and cfg.get("stamps") != 2:
            stamp(a, cfg, 2)
        first = "0" if st not in seen else None
        seen.add(st)
        if st == 1:
            mf(a, G_ACC + 16, A0(i), Breg(e), first or vr(G_ACC + 16, 16))
            if cfg.get("ldmid", 0) and window < 30:
                try_issue(min(e + 1 + window, nxt + 1))
            mf(a, G_ACC + 48, A1(i), Breg(e), first or vr(G_ACC + 48, 16))
        else:
            mf(a, G_ACC + 32, A1(i), Breg(e), first or vr(G_ACC + 32, 16))
            if cfg.get("ldmid", 0) and window < 30:
                try_issue(min(e + 1 + window, nxt + 1))
            mf(a, G_ACC, A0(i), Breg(e), first or vr(G_ACC, 16))
        try_issue(min(e + 1 + window, nxt + 2))
        if e >= side_from:
            k = 0
            while side and k < side_n:
                x = side.pop(0)
                a(x)
                k += x.startswith("buffer_")
        if side2 and e >= side2_from:
            for _ in range(cfg.get("side2_n", 1)):
                if side2:
                    a(side2.pop(0))
        if e == wr1:
            wr_tile(a, 1)
            wr_tile(a, 3)
        if e == bar1:
            a("s_waitcnt lgkmcnt(0)")
            a("s_barrier")
            rd_tile(a, 1, G_RED)
            rd_tile(a, 3, G_RED + 16)
    assert wr1 <= bar1 < M and not side2
    if extra0:
        extra0[2]()
        mf(a, G_ACC, extra0[0], extra0[1], vr(G_ACC, 16))
    stamp(a, cfg, 4)
    a("s_waitcnt lgkmcnt(0)")
    for e in range(6):
        a("v_add_f32 v%d, v%d, v%d" % (G_RED + e, G_RED + e, G_RED + 16 + e))
    wr_tile(a, 2)
    for e in range(6, 16):
        a("v_add_f32 v%d, v%d, v%d" % (G_RED + e, G_RED + e, G_RED + 16 + e))
    for e in range(16):
        a("v_add_f32 v%d, v%d, v%d" % (G_ACC + e, G_ACC + e, G_RED + e))
    if resid:
        for i in range(8):
            a("v_lshlrev_b32 v%d, 16, v%d" % (G_T, V_RES + i))
            a("v_and_b32 v%d, 0xffff0000, v%d" % (G_T + 1, V_RES + i))
            a("v_add_f32 v%d, v%d, v%d" % (G_ACC + 2 * i, G_ACC + 2 * i, G_T))
            a("v_add_f32 v%d, v%d, v%d" % (G_ACC + 2 * i + 1, G_ACC + 2 * i + 1, G_T + 1))
    for x in side:
        a(x)
    a("s_waitcnt lgkmcnt(0)")
    a("s_barrier")
    stamp(a, cfg, 6)
    rd_tile(a, 2, G_RED + 32)
    for q in range(4):
        a("s_waitcnt lgkmcnt(%d)" % (3 - q))
        for e in range(4):
            a("v_add_f32 v%d, v%d, v%d" % (G_ACC + 4 * q + e, G_ACC + 4 * q + e, G_RED + 32 + 4 * q + e))
    stamp(a, cfg, 7)


def bextra(a, nmu, d):
    split3(a, nmu, d + 4)
    a("v_lshrrev_b32 v%d, 16, v%d" % (d + 7, d + 4))
    a("v_or_b32 v%d, v%d, v%d" % (d, d + 7, d + 5))
    a("v_or_b32 v%d, v%d, v%d" % (d + 1, d + 7, d + 6))
    a("v_mov_b32 v%d, v%d" % (d + 2, d))
    a("v_mov_b32 v%d, 0" % (d + 3))


def res_epilogue(a, cfg, xout_add, final):
    for i in range(8):
        a("v_cvt_pk_bf16_f32 v%d, v%d, v%d" % (V_RES + i, G_ACC + 2 * i, G_ACC + 2 * i + 1))
        if i == 3 and final is None:
            st4(a, V_RES, V_L16, 34)
    if final is not None:
        a("s_cmp_eq_u32 s%d, 1" % S_LAYER)
        a("s_cbranch_scc1 %s" % final)
        st4(a, V_RES, V_L16, 34)
    store_x_tail(a)


def store_x_tail(a):
    st4(a, V_RES + 4, V_L16, 34, 1024)
    a("v_mov_b32 v%d, 0x3f803f80" % G_T)
    a("v_mov_b32 v%d, 0" % (G_T + 12))
    a("v_mov_b32 v%d, 0" % (G_T + 13))
    for r in range(8):
        a("v_dot2_f32_bf16 v%d, v%d, v%d, v%d" % (G_T + 12, V_RES + r, G_T, G_T + 12))
        a("v_dot2_f32_bf16 v%d, v%d, v%d, v%d" % (G_T + 13, V_RES + r, V_RES + r, G_T + 13))
    a("v_lshlrev_b32 v%d, 3, v%d" % (G_T + 2, V_R31))
    a("s_nop 1")
    a("v_mov_b32 v%d, v%d" % (G_T + 14, G_T + 12))
    a("v_mov_b32 v%d, v%d" % (G_T + 15, G_T + 13))
    a("s_nop 0")
    a("v_permlane32_swap_b32 v%d, v%d" % (G_T + 12, G_T + 14))
    a("v_permlane32_swap_b32 v%d, v%d" % (G_T + 13, G_T + 15))
    a("v_add_f32 v%d, v%d, v%d" % (G_T + 12, G_T + 12, G_T + 14))
    a("v_add_f32 v%d, v%d, v%d" % (G_T + 13, G_T + 13, G_T + 15))
    a("s_mov_b32 exec_lo, 0xffffffff\ns_mov_b32 exec_hi, 0x0")
    emit_l(a, "buffer_store_dwordx2 v[%d:%d], v%d, s[4:7], s35 offen" % (G_T + 12, G_T + 13, G_T + 2))
    a("s_mov_b64 exec, -1")


def out_addr(a, xout_add):
    layer_off(a, 34, OFF_X, X_STRIDE, 2, xout_add)
    a("s_lshl_b32 s18, s%d, 15" % S_RT)
    a("s_add_u32 s34, s34, s18")
    a("s_lshl_b32 s18, s%d, 11" % S_NT)
    a("s_add_u32 s34, s34, s18")
    layer_off(a, 35, OFF_STAT, STAT_STRIDE, 2, xout_add)
    a("s_lshl_b32 s18, s%d, 12" % S_RT)
    a("s_add_u32 s35, s35, s18")
    a("s_lshl_b32 s18, s%d, 8" % S_NT)
    a("s_add_u32 s35, s35, s18")


S_Q0, S_Q1, S_KVW = 50, 51, 52


def wq_lines():
    b = Asm()
    for i in range(8):
        blk(b, ar(128 + 4 * i, 4), S_KVW, i)
    for i in range(8):
        blk(b, ar(160 + 4 * i, 4), S_Q0, i)
        blk(b, ar(192 + 4 * i, 4), S_Q1, i)
    return [l.strip() for l in b.lines]


def phase_qkv(a, cfg):
    SA0, SA1, SB0, SB1, SX, SKV = 24, 25, 26, 27, 28, 29
    CK = G_T + 8
    a("v_lshlrev_b32 v%d, 4, v%d" % (G_T + 1, V_H))
    a("v_lshlrev_b32 v%d, 2, v%d" % (G_T + 6, V_R31))
    VP, VPA = 198, 22
    SU.probe_addr(a, sys.modules[__name__], VPA, VP, 59)
    def wcheck(tag):
        a("v_cmp_ne_u32 vcc, v%d, v%d" % (V_TAG, VP))
        a("s_cbranch_vccz L_qkv_wok%s" % tag)
        keep = a.vm_issued
        poll(a, cfg, 59, VPA, VP, sleep=1)
        a.vm_issued = keep
        a("L_qkv_wok%s:" % tag)

    layer_off(a, SX, OFF_X, X_STRIDE, 2, 0)
    b_addr(a, SB0, SB1, SX, 32, 8)
    layer_off(a, 30, OFF_STAT, STAT_STRIDE, 2, 0)
    a("s_lshl_b32 s17, s%d, 12" % S_RT)
    a("s_add_u32 s30, s30, s17")
    reduce_addr(a, LDS_RQ)
    layer_off(a, 33, OFF_KV, KV_STRIDE)
    a("s_lshr_b32 s36, s%d, 1" % S_HQ)
    a("s_lshl_b32 s17, s%d, 1" % S_RB)
    a("s_add_u32 s17, s17, s36")
    a("s_lshl_b32 s17, s17, 15")
    a("s_add_u32 s23, s17, s%d" % SX)
    a("s_lshl_b32 s17, s%d, 13" % S_W)
    a("s_add_u32 s23, s23, s17")
    a("s_sub_u32 s17, s%d, s36" % S_W)
    a("s_sub_u32 s17, s17, 1")
    a("s_and_b32 s17, s17, 3")
    a("s_lshl_b32 s17, s17, 12")
    a("s_add_u32 s17, s17, %d" % LDS_KVX)
    a("v_add_u32 v%d, s17, v%d" % (G_T + 2, V_L16))
    a("v_add_u32 v%d, %d, v%d" % (G_T + 3, LDS_KVX, V_L16))
    a("s_mul_i32 s37, s%d, 0x2000" % S_LAYER)
    a("s_add_u32 s37, s37, 0x%x" % (OFF_FLAGS + FL_KV))
    a("s_lshl_b32 s17, s%d, 5" % S_RB)
    a("s_add_u32 s37, s37, s17")
    a("s_lshl_b32 s17, s36, 4")
    a("s_add_u32 s37, s37, s17")
    a("s_lshl_b32 s39, s2, 11")
    a("s_add_u32 s39, s39, 0x%x" % OFF_CKS)
    a("s_cmp_eq_u32 s%d, 0" % S_LAYER)
    a("s_cbranch_scc1 L_qkv_cs0")
    a("buffer_load_dwordx4 v[%d:%d], v%d, s[4:7], s39 offen sc1" % (CK, CK + 3, V_L16))
    a("buffer_load_dwordx4 v[%d:%d], v%d, s[4:7], s39 offen offset:1024 sc1" % (CK + 4, CK + 7, V_L16))
    a("s_branch L_qkv_nocs")
    a("L_qkv_cs0:")
    a("s_cmp_ge_u32 s%d, 4" % S_HQ)
    a("s_cbranch_scc1 L_qkv_nocs")
    for r in range(4):
        a("v_mov_b32 v%d, 0x3f803f80" % (G_CS + r))
    a("s_lshl_b32 s17, s%d, 11" % S_W)
    a("s_add_u32 s17, s17, %d" % LDS_CSX)
    a("v_add_u32 v%d, s17, v%d" % (G_CS + 4, V_L16))
    a("v_add_u32 v%d, %d, v%d" % (G_CS + 5, LDS_CSX, V_L16))
    a("s_bitcmp1_b32 s%d, 0" % S_HQ)
    a("s_cbranch_scc1 L_qkv_c1")
    for i in range(8):
        mf(a, G_ACC, ar(128 + 4 * i, 4), vr(G_CS, 4), "0" if i == 0 else vr(G_ACC, 16))
    a("s_branch L_qkv_c2")
    a("L_qkv_c1:")
    for i in range(8):
        mf(a, G_ACC, vr(G_CS, 4), ar(128 + 4 * i, 4), "0" if i == 0 else vr(G_ACC, 16))
    a("L_qkv_c2:")
    a("ds_write_b128 v%d, v[%d:%d]" % (G_CS + 4, G_ACC + 8, G_ACC + 11))
    a("ds_write_b128 v%d, v[%d:%d] offset:1024" % (G_CS + 4, G_ACC + 12, G_ACC + 15))
    a("s_waitcnt lgkmcnt(0)")
    a("s_barrier")
    for w in range(4):
        for q in range(2):
            a("ds_read_b128 v[%d:%d], v%d offset:%d" % (G_RED + 8 * w + 4 * q, G_RED + 8 * w + 4 * q + 3, G_CS + 5, 2048 * w + 1024 * q))
    a("s_waitcnt lgkmcnt(0)")
    for e in range(8):
        a("v_add_f32 v%d, v%d, v%d" % (G_RED + e, G_RED + e, G_RED + 8 + e))
        a("v_add_f32 v%d, v%d, v%d" % (G_RED + 16 + e, G_RED + 16 + e, G_RED + 24 + e))
        a("v_add_f32 v%d, v%d, v%d" % (CK + e, G_RED + e, G_RED + 16 + e))
    a("buffer_store_dwordx4 v[%d:%d], v%d, s[4:7], s39 offen sc1" % (CK, CK + 3, V_L16))
    a("buffer_store_dwordx4 v[%d:%d], v%d, s[4:7], s39 offen offset:1024 sc1" % (CK + 4, CK + 7, V_L16))
    a("L_qkv_nocs:")
    stamp(a, cfg, 8)
    xin_flag_addr(a, 38, False, 0)
    poll(a, cfg, 38, G_T + 6, G_T + 4)
    stamp(a, cfg, 9)
    def b1_loads():
        for e in range(8):
            blk(a, ar(64 + 4 * e, 4), SB1, e, SC)
            tB[e] = a.vt()

    def cs_q():
        a("s_lshl_b32 s17, s%d, 10" % S_NT)
        a("s_add_u32 s17, s17, 0x%x" % OFF_CSQX)
        a("buffer_load_dwordx4 v[%d:%d], v%d, s[4:7], s17 offen sc1" % (G_CS, G_CS + 3, V_L16))

    a("s_cmp_ge_u32 s%d, 4" % S_HQ)
    a("s_cbranch_scc1 L_qkv_stats")
    tK = {}
    for i in range(8):
        blk(a, ar(224 + 4 * i, 4), 23, i, SC)
        tK[i] = a.vt()
    load_stats(a, G_ST, 30, G_T, SC)
    t_st = a.vt()
    tB = {}
    b1_loads()
    stamp(a, cfg, 1)
    a("s_bitcmp1_b32 s%d, 0" % S_HQ)
    a("s_cbranch_scc1 L_qkv_v1")
    for v in range(2):
        if v:
            a("L_qkv_v%d:" % v)
        for i in range(8):
            a.wait_vm(tK[i])
            x, w = ar(224 + 4 * i, 4), ar(128 + 4 * i, 4)
            c = "0" if i == 0 else vr(G_KVACC, 16)
            if v & 1:
                mf(a, G_KVACC, x, w, c)
            else:
                mf(a, G_KVACC, w, x, c)
        if v < 1:
            a("s_branch L_qkv_kvred")
    a("L_qkv_kvred:")
    stamp(a, cfg, 2)
    a.wait_vm(t_st)
    finish_stats(a, G_ST, V_NMU, V_RSTD)
    for q in range(4):
        a("ds_write_b128 v%d, v[%d:%d] offset:%d" % (G_T + 2, G_KVACC + 4 * q, G_KVACC + 4 * q + 3, q * 1024))
    XS = LDS_KVX + 16384
    a("s_lshl_b32 s17, s%d, 8" % S_W)
    a("s_add_u32 s17, s17, %d" % XS)
    a("v_add_u32 v%d, s17, v%d" % (G_T + 4, G_T + 6))
    a("v_mul_f32 v%d, v%d, v%d" % (G_T + 5, V_NMU, V_RSTD))
    a("ds_write_b32 v%d, v%d" % (G_T + 4, V_RSTD))
    a("ds_write_b32 v%d, v%d offset:128" % (G_T + 4, G_T + 5))
    a("v_add_u32 v%d, s17, v%d" % (G_T + 4, G_T + 1))
    RS = G_ACC + 16
    for g in range(4):
        a("ds_read_b128 v[%d:%d], v%d offset:%d" % (RS + 4 * g, RS + 4 * g + 3, G_T + 4, 32 * g))
        a("ds_read_b128 v[%d:%d], v%d offset:%d" % (RS + 16 + 4 * g, RS + 16 + 4 * g + 3, G_T + 4, 128 + 32 * g))
    a("s_waitcnt lgkmcnt(0)")
    a("s_barrier")
    stamp(a, cfg, 3)
    a("s_cmp_lg_u32 s%d, s36" % S_W)
    a("s_cbranch_scc1 L_qkv_q")
    RD = [G_RED + 16, G_RED + 32, G_ACC]
    for j in range(3):
        for q in range(4):
            a("ds_read_b128 v[%d:%d], v%d offset:%d" % (RD[j] + 4 * q, RD[j] + 4 * q + 3, G_T + 3, j * 4096 + q * 1024))
    for j in range(3):
        a("s_waitcnt lgkmcnt(%d)" % (8 - 4 * j))
        for e in range(16):
            a("v_add_f32 v%d, v%d, v%d" % (G_KVACC + e, G_KVACC + e, RD[j] + e))
    a("s_lshl_b32 s17, s%d, 10" % S_RT)
    a("s_add_u32 s34, s33, s17")
    a("s_bitcmp1_b32 s%d, 0" % S_HQ)
    a("s_cbranch_scc1 L_qkv_vfin")
    PK = G_RED + 16
    for e in range(8):
        a("v_fmac_f32 v%d, v%d, v%d" % (G_KVACC + 8 + e, V_NMU, CK + e))
        a("v_mul_f32 v%d, v%d, v%d" % (G_KVACC + 8 + e, V_RSTD, G_KVACC + 8 + e))
    pack8(a, PK, G_KVACC + 8)
    a("buffer_store_dwordx4 v[%d:%d], v%d, s[4:7], s34 offen %s" % (PK, PK + 3, V_L16, SC))
    a("v_mov_b32 v%d, 0" % (PK + 4))
    for r in range(4):
        a("v_dot2_f32_bf16 v%d, v%d, v%d, v%d" % (PK + 4, PK + r, PK + r, PK + 4))
    xhalf_sum(a, PK + 4, PK + 5)
    for d in ("row_shr:1", "row_shr:2", "row_shr:4", "row_shr:8"):
        a("v_max_f32_dpp v%d, v%d, v%d %s row_mask:0xf bank_mask:0xf" % (PK + 4, PK + 4, PK + 4, d))
    a("v_max_f32_dpp v%d, v%d, v%d row_bcast:15 row_mask:0xa bank_mask:0xf" % (PK + 4, PK + 4, PK + 4))
    a("v_readlane_b32 s18, v%d, 31" % (PK + 4))
    a("v_lshlrev_b32 v%d, 10, v%d" % (G_T + 4, V_LANE))
    a("v_mov_b32 v%d, v%d" % (PK + 6, V_TAG))
    a("v_mov_b32 v%d, s18" % (PK + 7))
    a("s_waitcnt vmcnt(0)")
    a("s_mov_b64 exec, 0xff")
    a("buffer_store_dwordx2 v[%d:%d], v%d, s[4:7], s37 offen %s" % (PK + 6, PK + 7, G_T + 4, SC))
    a("s_mov_b64 exec, -1")
    a("s_branch L_qkv_q")
    a("L_qkv_vfin:")
    a("v_lshlrev_b32 v%d, 4, v%d" % (G_T + 4, V_R31))
    a("v_lshl_add_u32 v%d, v%d, 8, v%d" % (G_T + 4, V_H, G_T + 4))
    a("s_add_u32 s34, s34, 0x10000")
    for e in range(16):
        a("v_mul_f32 v%d, v%d, v%d" % (G_KVACC + e, RS + e, G_KVACC + e))
        a("v_fmac_f32 v%d, v%d, v%d" % (G_KVACC + e, RS + 16 + e, CK))
    pack8(a, G_ACC, G_KVACC)
    pack8(a, G_ACC + 4, G_KVACC + 8)
    a("s_mov_b32 exec_lo, 0xffff\ns_mov_b32 exec_hi, 0xffff")
    a("buffer_store_dwordx4 v[%d:%d], v%d, s[4:7], s34 offen %s" % (G_ACC, G_ACC + 3, G_T + 4, SC))
    a("buffer_store_dwordx4 v[%d:%d], v%d, s[4:7], s34 offen offset:512 %s" % (G_ACC + 4, G_ACC + 7, G_T + 4, SC))
    a("s_mov_b64 exec, -1")
    a("L_qkv_kvdone:")
    stamp(a, cfg, 5)
    a("v_lshlrev_b32 v%d, 10, v%d" % (G_T + 4, V_LANE))
    a("s_waitcnt vmcnt(0)")
    a("s_mov_b64 exec, 0xff")
    a("buffer_store_dword v%d, v%d, s[4:7], s37 offen offset:8 %s" % (V_TAG, G_T + 4, SC))
    a("s_mov_b64 exec, -1")
    a("s_branch L_qkv_q")
    a("L_qkv_stats:")
    load_stats(a, G_ST, 30, G_T, SC)
    t_st = a.vt()
    b1_loads()
    a.wait_vm(t_st)
    finish_stats(a, G_ST, V_NMU, V_RSTD)
    a("L_qkv_q:")
    stamp(a, cfg, 10)
    bextra(a, V_NMU, G_CS + 4)
    tq = {}

    def h_probe():
        a("buffer_load_dword v%d, v%d, s[4:7], s59 offen sc1" % (VP, VPA))
        tq[0] = a.vt()

    def h_cs():
        a.wait_vm(tq[0])
        wcheck("q")
        cs_q()
        tq[1] = a.vt()
    gemm64_core(a, dict(cfg, stamps=cfg.get('stamps') and 2), 8, lambda i: ar(160 + 4 * i, 4), lambda i: ar(192 + 4 * i, 4), lambda e: ar(64 + 4 * e, 4),
                lambda e: blk(a, ar(64 + 4 * e, 4), SB1 if e < 8 else SB0, e % 8, SC), 16, pre_tickets=tB, ramp=12,
                side=[g[0] for g in SU.deferred_store_groups(sys.modules[__name__])], side_from=99, side_n=1, extra0=(vr(G_CS, 4), vr(G_CS + 4, 4), lambda: a.wait_vm(tq[1])),
                hooks={3: h_probe, 10: h_cs})
    a("v_mul_f32 v%d, %s, v%d" % (G_T, fl(QSCALE), V_RSTD))
    for e in range(16):
        a("v_mul_f32 v%d, v%d, v%d" % (G_ACC + e, G_T, G_ACC + e))
    pack8(a, G_Q, G_ACC)
    pack8(a, G_Q + 4, G_ACC + 8)
    if cfg.get("store_q"):
        a("s_lshl_b32 s17, s%d, 15" % S_RT)
        a("s_lshl_b32 s18, s%d, 11" % S_NT)
        a("s_add_u32 s17, s17, s18")
        a("s_add_u32 s17, s17, 0x%x" % OFF_Q)
        a("buffer_store_dwordx4 v[%d:%d], v%d, s[4:7], s17 offen" % (G_Q, G_Q + 3, V_L16))
        a("buffer_store_dwordx4 v[%d:%d], v%d, s[4:7], s17 offen offset:1024" % (G_Q + 4, G_Q + 7, V_L16))
    stamp(a, cfg, 11)


A_C = [24, 40]
A_O = [56, 72]
A_S = [88, 104]
A_P = [120, 124, 128, 132]
A_KF = [136, 140]
A_VF = [[144, 148], [152, 156]]
A_VK, A_VV, A_VINC = 160, 161, 162
A_T = 164
LDS_V = 65536
LDS_ONES = 131072
LDS_ATT_FLAG = LDS_ONES + 5120
UNR = 4


EARLY = 4
W2ORD = [7 * mm + tl for tl in range(7) for mm in range(4)]
W2POS = {k: p for p, k in enumerate(W2ORD)}


def w2load(a, idx, s0, s1):
    i = W2ORD[idx >> 1]
    blk(a, w2reg(idx & 1, i), s1 if idx & 1 else s0, i)


def w2reg(s, i):
    idx = 2 * W2POS[i] + s
    if idx < 32:
        return ar(128 + 4 * idx, 4)
    if idx < 46:
        return vr(W2V + 4 * (idx - 32), 4)
    if idx < 54:
        return vr(136 + 4 * (idx - 46), 4)
    return vr(190 + 4 * (idx - 54), 4)


SLOT13 = [0, 2, 1, 3, 0, 2, 1]


def dma13(a, i, part=None):
    slot = SLOT13[i]
    for hh in range(2):
        a("s_add_u32 m0, s%d, %d" % (S_WL, slot * 32768 + hh * 4096))
        a("s_add_u32 s29, s%d, %d" % (S_W13, i * 32768 + hh * 4096))
        for q in range(4):
            a("buffer_load_dwordx4 v%d, s[4:7], s29 offen offset:%d sc1 lds" % (V_L16, q * 1024))


def dma_lines(i):
    b = Asm()
    dma13(b, i)
    return [l.strip() for l in b.lines]


def phase_att(a, cfg):
    Q = [G_Q, G_Q + 4]
    SA0, SA1, SW0, SW1 = 24, 25, 26, 27
    a("v_mov_b32 v%d, 0x3f803f80" % (A_T + 4))
    if cfg.get("zpad", 1):
        a("v_and_b32 v%d, 2, v0" % (A_T + 5))
        a("v_cmp_eq_u32 vcc, 0, v%d" % (A_T + 5))
        a("v_cndmask_b32 v%d, v%d, v%d, vcc" % (A_T + 4, V_ZERO, A_T + 4))
    for r in range(1, 4):
        a("v_mov_b32 v%d, v%d" % (A_T + 4 + r, A_T + 4))
    a("v_lshlrev_b32 v%d, 4, v0" % (A_T + 2))
    a("v_add_u32 v%d, %d, v%d" % (A_T + 2, LDS_ONES, A_T + 2))
    a("ds_write_b128 v%d, v[%d:%d]" % (A_T + 2, A_T + 4, A_T + 7))
    a("ds_write_b128 v%d, v[%d:%d] offset:1024" % (A_T + 2, A_T + 4, A_T + 7))
    a("v_and_b32 v%d, 15, v%d" % (A_T + 2, V_LANE))
    a("v_lshlrev_b32 v%d, 4, v%d" % (A_T + 2, A_T + 2))
    a("v_lshl_add_u32 v%d, v%d, 8, v%d" % (A_T + 2, V_H, A_T + 2))
    a("v_add_u32 v%d, %d, v%d" % (A_VV, LDS_V, A_T + 2))
    a("v_add_u32 v%d, -20, v%d" % (A_T + 3, V_R31))
    a("v_cmp_gt_u32 vcc, 8, v%d" % (A_T + 3))
    a("v_mov_b32 v%d, %d" % (A_T + 2, LDS_ONES))
    a("v_mov_b32 v%d, %d" % (A_T + 3, LDS_ONES + 64))
    a("v_cndmask_b32 v%d, v%d, v%d, vcc" % (A_T + 2, A_T + 2, A_T + 3))
    if cfg.get("zpad", 1):
        a("v_and_b32 v%d, 27, v%d" % (A_T + 3, V_R31))
        a("v_cmp_ne_u32 vcc, 16, v%d" % (A_T + 3))
        a("v_add_u32 v%d, 32, v%d" % (A_T + 3, A_T + 2))
        a("v_cndmask_b32 v%d, v%d, v%d, vcc" % (A_T + 2, A_T + 2, A_T + 3))
    a("v_cmp_le_u32 vcc, 16, v%d" % V_R31)
    a("v_mov_b32 v%d, %d" % (A_VINC, UNR * 1024))
    a("v_cndmask_b32 v%d, v%d, v%d, vcc" % (A_VV, A_VV, A_T + 2))
    a("v_cndmask_b32 v%d, v%d, v%d, vcc" % (A_VINC, A_VINC, V_ZERO))
    for t in range(2):
        n = A_T + 8 + t
        a("v_mov_b32 v%d, 0" % n)
        for r in range(4):
            a("v_dot2_f32_bf16 v%d, v%d, v%d, v%d" % (n, Q[t] + r, Q[t] + r, n))
    for t in range(2):
        xhalf_sum(a, A_T + 8 + t, A_T + 10)
    a_addr(a, SA0, SA1, OFF_WO, 32, 8)
    a("s_mul_i32 s%d, s%d, %d" % (S_W13, S_M, 7 * 32768))
    a("s_lshl_b32 s%d, s%d, 13" % (S_WL, S_W))
    a("s_add_u32 s%d, s%d, s%d" % (S_W13, S_W13, S_WL))
    a("s_add_u32 s%d, s%d, 0x%x" % (S_W13, S_W13, OFF_W13))
    a_addr(a, SW0, SW1, OFF_W2, 112, 28)
    a("s_lshl_b32 s20, s%d, 10" % S_W)
    a("s_add_u32 s21, s33, s20")
    a("s_add_u32 s22, s21, 0x10000")
    a("s_add_u32 s23, s20, %d" % LDS_V)
    a("s_mul_i32 s38, s%d, 0x2000" % S_LAYER)
    a("s_add_u32 s38, s38, 0x%x" % (OFF_FLAGS + FL_KV))
    a("s_and_b32 s17, s2, 7")
    a("s_lshl_b32 s17, s17, 10")
    a("s_add_u32 s38, s38, s17")
    a("s_lshl_b32 s58, s2, 2")
    a("s_add_u32 s58, s58, 0x%x" % OFF_FLW)
    a("s_or_b32 s17, s%d, s%d" % (S_W, S_LAYER))
    a("s_cmp_lg_u32 s17, 0")
    a("s_cselect_b32 s58, 0xf0000000, s58")
    a("s_and_b32 s59, s2, 7")
    a("s_lshl_b32 s59, s59, 10")
    a("s_add_u32 s59, s59, 0x%x" % OFF_FLW)
    a("v_lshlrev_b32 v%d, 10, v%d" % (A_T + 16, V_LANE))
    a("s_getreg_b32 s17, hwreg(HW_REG_XCC_ID)")
    a("s_and_b32 s17, s17, 7")
    a("s_lshl_b32 s17, s17, 1")
    a("v_or_b32 v%d, s17, v%d" % (A_T + 17, V_TAG))
    a("v_and_b32 v%d, 15, v%d" % (A_T + 18, V_LANE))
    a("v_lshlrev_b32 v%d, 5, v%d" % (A_T + 18, A_T + 18))
    a("s_and_b32 s17, s2, 0x87")
    a("s_lshl_b32 s17, s17, 2")
    a("v_add_u32 v%d, s17, v%d" % (A_T + 18, A_T + 18))

    stamp(a, cfg, 1)
    a("s_cmp_lg_u32 s%d, 0" % S_W)
    a("s_cbranch_scc1 L_att_nopoll")
    poll(a, cfg, 38, V_L16, A_T + 12, wide=True, sleep=cfg.get("kv_sleep", 2))
    k2 = A_T + 13
    for d in ("row_shr:1", "row_shr:2", "row_shr:4", "row_shr:8"):
        a("v_max_f32_dpp v%d, v%d, v%d %s row_mask:0xf bank_mask:0xf" % (k2, k2, k2, d))
    a("v_max_f32_dpp v%d, v%d, v%d row_bcast:15 row_mask:0xa bank_mask:0xf" % (k2, k2, k2))
    a("v_max_f32_dpp v%d, v%d, v%d row_bcast:31 row_mask:0xc bank_mask:0xf" % (k2, k2, k2))
    a("v_mov_b32 v%d, %d" % (A_T + 12, LDS_ATT_FLAG + 16 - 63 * 4))
    a("v_add_u32 v%d, v%d, v%d" % (A_T + 12, V_L4, A_T + 12))
    a("s_mov_b32 exec_lo, 0")
    a("s_mov_b32 exec_hi, 0x80000000")
    a("ds_write_b32 v%d, v%d" % (A_T + 12, k2))
    a("s_mov_b64 exec, -1")
    a("s_waitcnt lgkmcnt(0)")
    a("L_att_nopoll:")
    a("s_waitcnt vmcnt(0)")
    a("s_barrier")
    a("s_mov_b64 exec, 0xff")
    a("buffer_store_dword v%d, v%d, s[4:7], s58 offen %s" % (A_T + 17, A_T + 16, SC))
    a("s_mov_b64 exec, -1")
    a("s_mov_b32 s%d, 0xf0000000" % SU.S_DST)
    stamp(a, cfg, 2)
    a("v_mov_b32 v%d, %d" % (A_T + 12, LDS_ATT_FLAG + 16))
    a("ds_read_b32 v%d, v%d" % (A_T + 1, A_T + 12))
    def kvdma(g):
        a("s_add_u32 m0, s20, %d" % (g * 4096))
        a("s_add_u32 s17, s21, %d" % (g * 4096))
        a("buffer_load_dwordx4 v%d, s[4:7], s17 offen %s lds" % (V_L16, SC))
        a("s_add_u32 m0, s23, %d" % (g * 4096))
        a("s_add_u32 s17, s22, %d" % (g * 4096))
        a("buffer_load_dwordx4 v%d, s[4:7], s17 offen %s lds" % (V_L16, SC))

    G1 = 6
    for g in range(G1):
        kvdma(g)
        if g == 3:
            t_g3 = a.vt()
            a("s_waitcnt lgkmcnt(0)")
            for t in range(2):
                n = A_T + 8 + t
                a("v_mul_f32 v%d, v%d, v%d" % (n, A_T + 1, n))
                a("v_sqrt_f32 v%d, v%d" % (n, n))
            for t in range(2):
                n = A_T + 8 + t
                a("v_mul_f32 v%d, %s, v%d" % (n, fl(-1.001), n))
            a("v_min_f32 v%d, v%d, v%d" % (A_T + 10, A_T + 8, A_T + 9))
            a("v_mov_b32 v%d, %s" % (A_T + 11, fl(-cfg.get("bound_t", BOUND_T))))
            a("v_cmp_nge_f32 vcc, v%d, v%d" % (A_T + 10, A_T + 11))
            a("s_lshl_b32 s19, s%d, 2" % S_W)
            a("s_add_u32 s19, s19, %d" % LDS_ATT_FLAG)
            a("v_mov_b32 v%d, s19" % (A_T + 12))
            a("s_cmp_lg_u64 vcc, 0")
            a("s_cselect_b32 s18, 1, 0")
            a("v_mov_b32 v%d, s18" % (A_T + 11))
            a("ds_write_b32 v%d, v%d" % (A_T + 12, A_T + 11))
            for t in range(2):
                for r in range(16):
                    a("v_mov_b32 v%d, v%d" % (A_C[t] + r, A_T + 8 + t))
    stamp(a, cfg, 3)
    a.wait_vm(t_g3)
    a("s_waitcnt lgkmcnt(0)")
    a("s_barrier")
    stamp(a, cfg, 4)
    a("v_mov_b32 v%d, %d" % (A_T + 12, LDS_ATT_FLAG))
    a("ds_read_b128 v[%d:%d], v%d" % (A_T + 4, A_T + 7, A_T + 12))
    a("ds_read_b128 v[%d:%d], v%d" % (A_KF[0], A_KF[0] + 3, V_L16))
    a("ds_read_b128 v[%d:%d], v%d" % (A_VF[0][0], A_VF[0][0] + 3, A_VV))
    a("ds_read_b128 v[%d:%d], v%d offset:512" % (A_VF[0][1], A_VF[0][1] + 3, A_VV))
    a("ds_read_b128 v[%d:%d], v%d offset:1024" % (A_KF[1], A_KF[1] + 3, V_L16))
    a("s_waitcnt lgkmcnt(4)")
    a("v_or_b32 v%d, v%d, v%d" % (A_T + 4, A_T + 4, A_T + 5))
    a("v_or3_b32 v%d, v%d, v%d, v%d" % (A_T + 4, A_T + 4, A_T + 6, A_T + 7))
    a("v_readfirstlane_b32 s18, v%d" % (A_T + 4))
    a("s_cmp_eq_u32 s18, 0")
    a("s_cbranch_scc1 L_att_fast")
    keep = a.dma_issued, a.vm_issued
    for g in range(G1, 16):
        kvdma(g)
    a.dma_issued, a.vm_issued = keep
    a("s_waitcnt vmcnt(0)")
    a("s_barrier")
    a("v_mov_b32 v%d, 0xff800000" % (A_T + 8))
    a("v_mov_b32 v%d, 0xff800000" % (A_T + 9))
    a("v_mov_b32 v%d, v%d" % (A_T + 12, V_L16))
    a("s_mov_b32 s19, 64")
    a("L_att_pre:")
    a("ds_read_b128 v[%d:%d], v%d" % (A_P[0], A_P[0] + 3, A_T + 12))
    a("v_add_u32 v%d, 1024, v%d" % (A_T + 12, A_T + 12))
    a("s_waitcnt lgkmcnt(0)")
    for t in range(2):
        mf(a, A_S[t], vr(A_P[0], 4), vr(Q[t], 4), "0")
    for t in range(2):
        for r in range(0, 16, 2):
            a("v_max3_f32 v%d, v%d, v%d, v%d" % (A_T + 8 + t, A_S[t] + r, A_S[t] + r + 1, A_T + 8 + t))
    a("s_sub_u32 s19, s19, 1")
    a("s_cmp_lg_u32 s19, 0")
    a("s_cbranch_scc1 L_att_pre")
    for t in range(2):
        n = A_T + 8 + t
        a("v_mov_b32 v%d, v%d" % (A_T + 10, n))
        a("v_permlane32_swap_b32 v%d, v%d" % (n, A_T + 10))
        a("v_max_f32 v%d, v%d, v%d" % (n, n, A_T + 10))
        a("v_sub_f32 v%d, 0, v%d" % (n, n))
        for r in range(16):
            a("v_mov_b32 v%d, v%d" % (A_C[t] + r, n))
    a("L_att_fast:")
    a("s_waitcnt lgkmcnt(0)")

    def m4(d, x, y, c):
        mf(a, d, vr(x, 4), vr(y, 4), vr(c, 16))

    def ex(r):
        a("v_exp_f32 v%d, v%d" % (r, r))

    def cv(d, s):
        a("v_cvt_pk_bf16_f32 v%d, v%d, v%d" % (d, s, s + 1))

    m4(A_S[0], A_KF[0], Q[0], A_C[0])
    a("s_nop 7")

    def lines_of(fn):
        b = Asm()
        fn(b)
        return [l.strip() for l in b.lines]

    def groups(lines):
        out, cur = [], []
        for x in lines:
            cur.append(x)
            if x.startswith("buffer_"):
                out.append(cur)
                cur = []
        assert not cur
        return out

    def kvl(g):
        return ["s_add_u32 m0, s20, %d" % (g * 4096), "s_add_u32 s17, s21, %d" % (g * 4096),
                "buffer_load_dwordx4 v%d, s[4:7], s17 offen %s lds" % (V_L16, SC),
                "s_add_u32 m0, s23, %d" % (g * 4096), "s_add_u32 s17, s22, %d" % (g * 4096),
                "buffer_load_dwordx4 v%d, s[4:7], s17 offen %s lds" % (V_L16, SC)]

    q_kv = []
    for g in range(G1, 16):
        q_kv += [(x, g) for x in groups(kvl(g))]
    q_w = []
    for i in range(8):
        q_w += groups(lines_of(lambda b: blk(b, ar(4 * i, 4), SA0, i)))
        q_w += groups(lines_of(lambda b: blk(b, ar(32 + 4 * i, 4), SA1, i)))
    for idx in range(46):
        q_w += groups(lines_of(lambda b: w2load(b, idx, SW0, SW1)))
    q_t = [["s_add_u32 s17, s49, %d" % (q * 4096), "buffer_load_dword v%d, v%d, s[4:7], s17 offen sc1" % (A_T + 3, A_T + 2)] for q in range(5)]
    if not cfg.get("touch13", 1):
        q_t = []
    q_d = groups(dma_lines(0) + dma_lines(1))
    a("s_mul_i32 s49, s%d, %d" % (S_M, 7 * 32768))
    a("s_and_b32 s18, s%d, 1" % S_RG)
    a("s_mul_i32 s18, s18, %d" % 81920)
    a("s_add_u32 s49, s49, s18")
    a("s_mul_i32 s18, s%d, %d" % (S_W, 20480))
    a("s_add_u32 s49, s49, s18")
    a("s_add_u32 s49, s49, 0x%x" % (OFF_W13 + 65536))
    a("v_lshlrev_b32 v%d, 6, v%d" % (A_T + 2, V_LANE))
    tg = {}
    U_PROBE, U_CHK = cfg.get("u_probe", 21), cfg.get("u_chk", 24)
    PB = A_T + 12
    def slot(u):
        grp, g = None, None
        if q_kv:
            grp, g = q_kv.pop(0)
        elif u == U_PROBE:
            a("buffer_load_dwordx4 v[%d:%d], v%d, s[4:7], s59 offen %s" % (PB, PB + 3, V_L16, SC))
            tg["probe"] = a.vt()
        elif u == U_CHK:
            assert not q_kv
            a("s_waitcnt vmcnt(0)")
            a("L_att_wchk:")
            for r in range(4):
                a("v_and_b32 v%d, -15, v%d" % (PB + r, PB + r))
            a("v_cmp_ne_u32 vcc, v%d, v%d" % (V_TAG, PB))
            for r in range(1, 4):
                a("v_cmp_ne_u32 s[18:19], v%d, v%d" % (V_TAG, PB + r))
                a("s_or_b64 vcc, vcc, s[18:19]")
            a("s_cmp_eq_u64 vcc, 0")
            a("s_cbranch_scc1 L_att_wok")
            if cfg.get("spin_limit"):
                a("s_sub_u32 s46, s46, 1")
                a("s_cbranch_scc1 L_att_wok")
            keep = a.vm_issued
            a("s_sleep 4")
            a("buffer_load_dwordx4 v[%d:%d], v%d, s[4:7], s59 offen %s" % (PB, PB + 3, V_L16, SC))
            a("s_waitcnt vmcnt(0)")
            a("s_branch L_att_wchk")
            a.vm_issued = keep
            a("L_att_wok:")
            a("buffer_load_dword v%d, v%d, s[4:7], s59 offen %s" % (PB, A_T + 18, SC))
            tg["grp"] = a.vt()
        elif u == U_CHK + 8:
            a.wait_vm(tg["grp"])
            a("v_cmp_ne_u32 vcc, v%d, v%d" % (A_T + 17, PB))
            a("s_cmp_eq_u64 vcc, 0")
            a("s_cselect_b32 s%d, %d, 0" % (S_LOC, 0 if cfg.get("force_remote") else 1))
        elif u < U_CHK:
            pass
        elif q_t and u >= cfg.get("t_from", 100) and (u - cfg.get("t_from", 100)) % cfg.get("t_every", 4) == 1:
            grp = q_t.pop(0)
        elif u >= 68 and q_d:
            grp = q_d.pop(0)
        elif q_w:
            grp = q_w.pop(0)
        if grp:
            for x in grp:
                a(x)
            if g is not None:
                tg[g] = a.vt()

    NU = 128
    BAR = {16: None, 36: None}
    for u in range(NU):
        j, t = u >> 1, u & 1
        nj, nt = (u + 1) >> 1, (u + 1) & 1
        pj, pt = (u - 1) >> 1, (u - 1) & 1
        jj = j % UNR
        sb, nsb = A_S[u % 2], A_S[(u + 1) % 2]
        plo, phi = A_P[(u % 2) * 2], A_P[(u % 2) * 2 + 1]
        pphi = A_P[((u - 1) % 2) * 2 + 1]
        if u + 1 < NU:
            m4(nsb, A_KF[nj % 2], Q[nt], A_C[nt])
        if t == 0 and j + 2 < 64:
            a("ds_read_b128 v[%d:%d], v%d offset:%d" % (A_KF[j % 2], A_KF[j % 2] + 3, V_L16, (j + 2) * 1024))
        if t == 1 and u > U_CHK and cfg.get('slot3', 0):
            slot(u)
        for r in range(0, 4):
            ex(sb + r)
        if u > 0:
            m4(A_O[pt], A_VF[pj % 2][1], pphi, A_O[pt])
        if t == 0 and j + 1 < 64:
            off = (jj + 1) * 1024
            a("ds_read_b128 v[%d:%d], v%d offset:%d" % (A_VF[(j + 1) % 2][0], A_VF[(j + 1) % 2][0] + 3, A_VV, off))
            a("ds_read_b128 v[%d:%d], v%d offset:%d" % (A_VF[(j + 1) % 2][1], A_VF[(j + 1) % 2][1] + 3, A_VV, off + 512))
        if t == 1:
            slot(u)
        for r in range(4, 9):
            ex(sb + r)
        for r in range(0, 4):
            cv(plo + r, sb + 2 * r)
        for r in range(9, 12):
            ex(sb + r)
        m4(A_O[t], A_VF[j % 2][0], plo, A_O[t]) if u > 1 else mf(a, A_O[t], vr(A_VF[j % 2][0], 4), vr(plo, 4), "0")
        if t == 1:
            a("s_waitcnt lgkmcnt(0)")
            if (j + 3) in BAR:
                g = BAR[j + 3]
                if g is not None:
                    a.wait_vm(tg[g])
                a("s_barrier")
                if j + 3 == 16:
                    stamp(a, cfg, 6)
        else:
            slot(u)
        for r in range(12, 16):
            ex(sb + r)
        if t == 1 and jj == UNR - 1:
            a("v_add_u32 v%d, v%d, v%d" % (A_VV, A_VINC, A_VV))
        for r in range(4, 8):
            cv(phi + r - 4, sb + 2 * r)
    assert not (q_kv or q_w or q_t or q_d), (len(q_kv), len(q_w), len(q_t), len(q_d))
    units = [(63, 1)]
    U = 128
    a("L_att_done:")
    DUAL[0] = bool(cfg.get("dual", 1))
    stamp(a, cfg, 7)
    lj, lt = units[-1]
    m4(A_O[lt], A_VF[lj % 2][1], A_P[((U - 1) % 2) * 2 + 1], A_O[lt])
    layer_off(a, 34, OFF_O, X_STRIDE)
    a("s_lshl_b32 s18, s%d, 15" % S_RT)
    a("s_add_u32 s34, s34, s18")
    a("s_lshl_b32 s18, s%d, 11" % S_NT)
    a("s_add_u32 s34, s34, s18")
    for t in range(2):
        a("v_rcp_f32 v%d, v%d" % (A_T, A_O[t] + 8))
        for r in range(8):
            a("v_mul_f32 v%d, v%d, v%d" % (A_O[t] + r, A_T, A_O[t] + r))
        pack8(a, A_P[t], A_O[t])
        st4(a, A_P[t], V_L16, 34, t * 1024)
    flag_addr(a, S_FO, FL_O, S_RB, 7, S_HQ)
    publish(a, S_FO, [(34, 2048, 0)])
    stamp(a, cfg, 8)


def phase_wo(a, cfg):
    SB0, SB1, SX = 26, 27, 28
    a("s_barrier")
    if not cfg.get("pf_att", 1):
        for i in range(8):
            blk(a, ar(4 * i, 4), 24, i)
            blk(a, ar(32 + 4 * i, 4), 25, i)
    b = Asm()
    dma13(b, 2)
    b("s_mul_i32 s29, s%d, %d" % (S_M, 7 * 1024))
    b("s_lshl_b32 s17, s%d, 11" % S_W)
    b("s_add_u32 s29, s29, s17")
    b("s_add_u32 m0, s17, %d" % LDS_CS)
    b("s_add_u32 s29, s29, 0x%x" % OFF_CSX)
    b("buffer_load_dwordx4 v%d, s[4:7], s29 offen sc1 lds" % V_L16)
    b("buffer_load_dwordx4 v%d, s[4:7], s29 offen offset:1024 sc1 lds" % V_L16)
    wside = [l.strip() for l in b.lines]
    wside2 = []
    if cfg.get("mix", 0):
        wside2, wside = wside, []
    elif cfg.get("t2_pre", 1):
        for x in wside:
            a(x)
        wside = []
    layer_off(a, SX, OFF_O, X_STRIDE)
    b_addr(a, SB0, SB1, SX, 32, 8)
    reduce_addr(a, LDS_R1)
    out_addr(a, 1)
    flag_addr(a, 38, FL_O, S_RB, 7)
    a("s_lshl_b32 s17, s%d, 5" % S_W)
    a("s_add_u32 s38, s38, s17")
    a("v_and_b32 v%d, 28, v%d" % (G_T + 5, V_L4))
    flag_addr(a, S_FX1, FL_X1, S_RG, 8, S_M)
    stamp(a, cfg, 8)
    poll(a, cfg, 38, G_T + 5, G_T + 4)
    stamp(a, cfg, 9)
    gemm64_core(a, cfg, 8, lambda i: ar(4 * i, 4), lambda i: ar(32 + 4 * i, 4), lambda e: ar(64 + 4 * e, 4),
                lambda e: blk(a, ar(64 + 4 * e, 4), SB1 if e < 8 else SB0, e % 8, SC), 16, ramp=cfg.get("ramp1", 8), resid=True,
                side=wside2, side_from=cfg.get("wo_side", 5), side_n=1)
    res_epilogue(a, cfg, 1, None)
    stamp(a, cfg, 10)
    publish(a, S_FX1, [(34, 2048, 0), (35, 256, 0)], between=wside)
    stamp(a, cfg, 11)


F_ACC = [24, 40, 56, 72]
NACC = 4
F_W = 88
F_CS = 120
F_H = 128
F_ST = 136
F_T = 168
F_LA = [184, 185]
F_NMU, F_C1, F_RS2, F_CSA, F_LG = 186, 187, 188, 189, 198
F_TA = 172


def phase_ffn1(a, cfg):
    SX, SH = 24, 27
    G3 = cfg.get("g0", 2) == 3
    if G3:
        a("s_mul_i32 s17, s%d, 6144" % S_W)
        a("s_sub_u32 s29, s%d, s%d" % (S_W13, S_WL))
        a("s_add_u32 s29, s29, s17")
        a("s_add_u32 m0, s17, %d" % LDS_E)
        a("s_add_u32 s29, s29, %d" % (4 * 32768))
        for q in range(4):
            a("buffer_load_dwordx4 v%d, s[4:7], s29 offen offset:%d sc1 lds" % (V_L16, q * 1024))
        a("s_add_u32 m0, s17, %d" % (LDS_E + 4096))
        a("s_add_u32 s29, s29, 4096")
        for q in range(2):
            a("buffer_load_dwordx4 v%d, s[4:7], s29 offen offset:%d sc1 lds" % (V_L16, q * 1024))
        a("s_lshl_b32 s28, s%d, 11" % S_W)
        a("s_sub_u32 s33, s%d, s%d" % (S_W13, S_WL))
        a("s_add_u32 s33, s33, s28")
        a("s_add_u32 s33, s33, %d" % (4 * 32768 + 24 * 1024))
    a("s_lshl_b32 s30, s%d, 2" % S_RG)
    a("s_add_u32 s30, s30, s%d" % S_W)
    layer_off(a, SX, OFF_X, X_STRIDE, 2, 1)
    a("s_lshl_b32 s17, s30, 15")
    a("s_add_u32 s%d, s%d, s17" % (SX, SX))
    a("s_add_u32 s25, s%d, %d" % (SX, 28 * 1024))
    layer_off(a, 26, OFF_STAT, STAT_STRIDE, 2, 1)
    a("s_lshl_b32 s18, s30, 12")
    a("s_add_u32 s26, s26, s18")
    layer_off(a, SH, OFF_H, H_STRIDE)
    a("s_mul_i32 s17, s30, %d" % (112 * 1024))
    a("s_add_u32 s%d, s%d, s17" % (SH, SH))
    a("s_mul_i32 s17, s%d, %d" % (S_M, 7 * 1024))
    a("s_add_u32 s%d, s%d, s17" % (SH, SH))
    a("v_mov_b32 v%d, v%d" % (F_LA[0], V_L16))
    a("v_add_u32 v%d, 65536, v%d" % (F_LA[1], V_L16))
    a("v_add_u32 v%d, %d, v%d" % (F_CSA, LDS_E, V_L16))
    a("v_and_b32 v%d, 0x380, v%d" % (F_TA, V_L128))
    a("v_add_u32 v%d, 4096, v%d" % (F_TA + 1, F_TA))
    a_addr(a, 53, 54, OFF_W2, 112, 28)
    flag_addr(a, 38, FL_X1, S_RG, 8)
    a("s_lshr_b32 s17, s%d, 1" % S_W)
    a("s_lshl_b32 s17, s17, 7")
    a("s_add_u32 s38, s38, s17")
    a("s_and_b32 s17, s%d, 1" % S_W)
    a("s_lshl_b32 s17, s17, 2")
    a("s_add_u32 s38, s38, s17")
    lane_pat(a, F_T + 2, 15, 0, 3)
    flag_addr(a, S_FH, FL_H, S_RG, 9, S_M, per_layer=0x2000)
    stamp(a, cfg, 1)
    a("s_barrier")
    if not cfg.get("mix", 0):
        dma13(a, 3)
    poll(a, cfg, 38, F_T + 2, F_T)
    stamp(a, cfg, 2)
    tX = {}

    def xload(i):
        if i < 28:
            blk(a, ar(4 * i, 4), SX, i, SC)
        else:
            blk(a, ar(4 * i, 4), 25, i - 28, SC)
        tX[i] = a.vt()

    XW = cfg.get("xwin", 14)
    for i in range(XW):
        xload(i)

    def wread(tile, ks, ring):
        slot = SLOT13[tile]
        if ks == 32:
            a("ds_read_b128 v[%d:%d], v%d offset:%d" % (F_W + 4 * ring, F_W + 4 * ring + 3, F_CSA, LDS_CS - LDS_E + tile * 1024))
            return
        if G3 and tile == 4:
            a("ds_read_b128 v[%d:%d], v%d offset:%d" % (F_W + 4 * ring, F_W + 4 * ring + 3, F_CSA if ks < 24 else F_LA[0], (ks % 24) * 1024))
            return
        a("ds_read_b128 v[%d:%d], v%d offset:%d" % (F_W + 4 * ring, F_W + 4 * ring + 3, F_LA[slot >> 1], (slot & 1) * 32768 + ks * 1024))

    def epi(tile):
        acc, cs = F_ACC[tile % NACC], F_CS
        hp = F_H + 4 * (tile % 2)
        out = []
        for e in range(8):
            out.append("v_fma_f32 v%d, v%d, v%d, v%d" % (F_T + 8 + e, F_C1, acc + e, F_LG))
        for e in range(8):
            out.append("v_exp_f32 v%d, v%d" % (F_T + 8 + e, F_T + 8 + e))
            out.append("v_mul_f32 v%d, v%d, v%d" % (acc + e, acc + e, acc + 8 + e))
            if e:
                out.append("v_add_f32 v%d, v%d, v%d" % (F_T + 7 + e, F_RS2, F_T + 7 + e))
        out.append("v_add_f32 v%d, v%d, v%d" % (F_T + 15, F_RS2, F_T + 15))
        for e in range(8):
            out.append("v_rcp_f32 v%d, v%d" % (F_T + 8 + e, F_T + 8 + e))
            if e:
                out.append("v_mul_f32 v%d, v%d, v%d" % (acc + e - 1, F_T + 7 + e, acc + e - 1))
        out.append("v_mul_f32 v%d, v%d, v%d" % (acc + 7, F_T + 15, acc + 7))
        for i in range(4):
            out.append("v_cvt_pk_bf16_f32 v%d, v%d, v%d" % (hp + i, acc + 2 * i, acc + 2 * i + 1))
        out.append("buffer_store_dwordx4 v[%d:%d], v%d, s[4:7], s%d offen offset:%d" % (hp, hp + 3, V_OFF[tile // 4], SH, (tile % 4) * 1024))
        if DBL[0]:
            out.append("buffer_store_dwordx4 v[%d:%d], v%d, s[4:7], s%d offen offset:%d" % (hp, hp + 3, V_OFF[tile // 4], SH, (tile % 4) * 1024))
        return out

    G0 = cfg.get("g0", 2)
    steps = []
    for ks in range(33):
        for tl in range(G0):
            steps.append((tl, ks))
    for tile in range(G0, 7):
        for ks in range(33):
            steps.append((tile, ks))
    N = len(steps)
    PF = cfg.get('pf', 6)
    lt = {}
    first_of, last_of = {}, {}
    for n, (tile, ks) in enumerate(steps):
        first_of.setdefault(tile, n)
        last_of[tile] = n
    dma_q = [(3, x) for x in dma_lines(3)] if cfg.get('mix', 0) else []
    fence_t, fence_n, fenced = {}, {}, set()

    def do_read(n):
        tile, ks = steps[n]
        if G3:
            ft = 5 if (tile, ks) == (4, 24) else (6 if (tile, ks) == (6, 0) else None)
            if ft:
                assert ft in fence_t and not any(q[0] <= ft for q in dma_q), ft
                a.wait_vm(fence_t[ft])
                a("s_barrier")
        elif n == first_of[tile] and tile >= (3 if cfg.get('mix', 0) else 4) and tile not in fenced:
            assert tile in fence_t and not any(q[0] == tile for q in dma_q), tile
            a.wait_vm(fence_t[tile])
            a("s_barrier")
        wread(tile, ks, n % 8)
        lt[n] = a.lt()

    cs_t = 0
    for n in range(PF):
        do_read(n)
    pending = []
    nx = XW
    nst, st_t, st_n, early_done, rb_done = 0, {}, {}, False, False
    for n, (tile, ks) in enumerate(steps):
        if tile >= G0 and ks == 0:
            stamp(a, cfg, 1 + tile)
        if tile == 0 and ks < 32:
            a.wait_vm(tX[ks])
        if n % 2 == 0:
            a.wait_lg(lt[min(n + 1, N - 1)])
            lg_done = lt[min(n + 1, N - 1)]
        acc = F_ACC[tile % NACC]
        if ks == 0 and tile >= NACC:
            assert nst > tile - NACC, (tile, nst)
        mf(a, acc, vr(F_W + 4 * (n % 8), 4), ar(4 * ks, 4) if ks < 32 else vr(F_CS, 4), "0" if ks == 0 else vr(acc, 16))
        if (tile == 0 or (tile < G0 and cfg.get('xfast', 0))) and nx < 32:
            xload(nx)
            nx += 1
            if nx == 32:
                load_stats(a, F_ST, 26, F_T, SC)
                t_st = a.vt()
        if n + PF < N:
            do_read(n + PF)
        if n == last_of[G0 - 1] + 2:
            a("s_barrier")
            if G3:
                dma_q += [(4, "s_mov_b32 m0, s28"), (4, "s_nop 0"),
                          (4, "buffer_load_dwordx4 v%d, s[4:7], s33 offen sc1 lds" % V_L16),
                          (4, "buffer_load_dwordx4 v%d, s[4:7], s33 offen offset:1024 sc1 lds" % V_L16)]
                for tl in (5, 6):
                    dma_q += [(tl, x) for x in dma_lines(tl)]
                b = Asm()
                for idx in range(46, 56):
                    w2load(b, idx, 53, 54)
                dma_q += [(99, l.strip()) for l in b.lines]
            else:
                for tl in range(4, 4 + G0):
                    dma_q += [(tl, x) for x in dma_lines(tl)]
        for old in range(G0, 3):
            if n == last_of[old] + 2:
                a("s_barrier")
                dma_q += [(old + 4, x) for x in dma_lines(old + 4)]
                if old == 2:
                    b = Asm()
                    for idx in range(46, 56):
                        w2load(b, idx, 53, 54)
                    dma_q += [(99, l.strip()) for l in b.lines]
        dcost = 0
        if dma_q and ((n >= cfg.get("d3_from", 38) and n % cfg.get("d3_every", 3) == 0) if tile < G0 else n % cfg.get("dma_every", 3) == 0):
            while dma_q:
                tl, x = dma_q.pop(0)
                a(x)
                dcost += cfg.get("dma_cost", 8)
                if x.startswith("buffer_load"):
                    fence_t[tl] = a.vt()
                    fence_n[tl] = n
                    break
        if n == last_of[G0 - 1] - G0 - 2:
            a.wait_vm(t_st)
            finish_stats(a, F_ST, F_NMU, F_RS2)
            a("v_mul_f32 v%d, %s, v%d" % (F_C1, fl(-LOG2E), F_RS2))
            a("v_mov_b32 v%d, v%d" % (F_RS2, F_ST + 1))
            a("v_log_f32 v%d, v%d" % (F_LG, F_ST + 1))
            bextra(a, F_NMU, F_CS)
        for tl in range(0, 6):
            if n == max(last_of[tl], last_of[G0 - 1]) + 3:
                pending += epi(tl)
        if nst >= EARLY and not rb_done and n >= st_n[EARLY - 1] + 1:
            if cfg.get("h_wt", 6) < EARLY:
                readback(a, [(SH, 1024 * EARLY, 0)])
                a("s_mov_b64 exec, -1")
                dcost += 24
            rb_done = n
        for tl in range(cfg.get("h_touch", 0)):
            if tl in st_n and n == st_n[tl] + cfg.get("touch_lag", 24):
                a("buffer_load_dword v%d, v%d, s[4:7], s%d offen offset:%d sc1" % (V_P2, F_TA + (tl // 4), SH, (tl % 4) * 1024))
                a.vm_issued -= 0
                dcost += 8
        cost = dcost
        lim = cfg.get("epi_cost", 16)
        while pending:
            x = pending[0]
            if x == "CSWAIT":
                pending.pop(0)
                if cs_t > lg_done:
                    a.wait_lg(cs_t)
                    cost += 4
                continue
            cx = 8 if x.split()[0] in TRANS else (8 if x.startswith("buffer_") else 4)
            if cost + cx > lim:
                break
            pending.pop(0)
            if x.startswith("buffer_store") and not G3:
                ok = [t for t in (3, 4, 5, 6) if t in fence_n and t not in fenced and not any(q[0] == t for q in dma_q)
                      and fence_n[t] + cfg.get("fence_age", 20) <= n
                      and (99 not in fence_n or (not dma_q and fence_n[99] + cfg.get("fence_age", 20) <= n))]
                if ok:
                    a.wait_vm(fence_t[max(ok)])
                    a("s_barrier")
                    fenced.update(ok)
            if x.startswith("buffer_store") and nst == EARLY + 1:
                assert rb_done
                assert not dma_q
                a("s_waitcnt vmcnt(0)")
                a("s_mov_b64 exec, 1")
                emit_l(a, "buffer_store_dword v%d, v%d, s[4:7], s%d offen offset:%d" % (V_TAG, V_ZERO, S_FH, 0x100))
                a("s_mov_b64 exec, -1")
                early_done = True
            if x.startswith("buffer_store") and nst < cfg.get("h_wt", 6):
                a(x + " sc1")
            elif x.startswith("buffer_store"):
                emit_l(a, x)
            else:
                a(x)
            cost += cx
            if x.startswith("ds_read"):
                cs_t = a.lt()
            if x.startswith("buffer_store"):
                nst += 1
                st_t[nst - 1] = a.vt()
                st_n[nst - 1] = n
    assert early_done
    assert not dma_q
    stamp(a, cfg, 8)
    for x in pending + epi(6):
        if x == "CSWAIT":
            a.wait_lg(cs_t)
            continue
        if x.startswith("buffer_store"):
            emit_l(a, x)
        else:
            a(x)
    stamp(a, cfg, 9)
    h0 = max(EARLY, cfg.get("h_wt", 6))
    assert nst >= cfg.get("h_wt", 6)
    a("s_add_u32 s17, s%d, %d" % (SH, h0 * 1024))
    publish(a, S_FH, [(17, 1024 * (7 - h0), 0)])
    stamp(a, cfg, 10)


def phase_ffn2(a, cfg):
    SB0, SB1, SX = 26, 27, 28
    SW0, SW1 = 24, 25
    side = []
    if cfg.get("touchq", 0):
        a("s_lshl_b32 s49, s%d, 16" % S_HQ)
        a("s_and_b32 s18, s%d, 3" % S_RB)
        a("s_lshl_b32 s18, s18, 14")
        a("s_add_u32 s49, s49, s18")
        a("s_lshl_b32 s18, s%d, 12" % S_W)
        a("s_add_u32 s49, s49, s18")
        a("s_add_u32 s49, s49, 0x%x" % OFF_WQ)
        a("s_cmp_eq_u32 s%d, 1" % S_LAYER)
        a("s_cselect_b32 s49, 0xf0000000, s49")
        a("v_lshlrev_b32 v%d, 6, v%d" % (G_T + 2, V_LANE))
        side.append("buffer_load_dword v%d, v%d, s[4:7], s49 offen" % (G_T + 3, G_T + 2))
    layer_off(a, SX, OFF_H, H_STRIDE)
    b_addr(a, SB0, SB1, SX, 112, 28)
    reduce_addr(a, LDS_R1)
    out_addr(a, 2)
    flag_addr(a, 38, FL_H, S_RG, 9, per_layer=0x2000)
    a("s_lshl_b32 s17, s%d, 6" % S_W)
    a("s_add_u32 s38, s38, s17")
    a("s_and_b32 s17, s%d, 1" % S_RB)
    a("s_lshl_b32 s17, s17, 3")
    a("s_add_u32 s38, s38, s17")
    lane_pat(a, G_T + 6, 7, 0, 2)
    xin_flag_addr(a, 39, True, 1)
    stamp(a, cfg, 8)
    poll(a, cfg, 38, G_T + 6, G_T + 4, imm=0x100)
    stamp(a, cfg, 9)
    wb = cfg.get("wbl2", 0)
    R = 32

    def hreg(e):
        return ar(4 * (e % R), 4)

    early = [7 * mm + tl for tl in range(EARLY) for mm in range(4)]
    late = [7 * mm + tl for tl in range(EARLY, 7) for mm in range(4)]
    order = [(1, i) for i in early] + [(0, i) for i in early] + [(1, i) for i in late] + [(0, i) for i in late]
    tp = {}

    def probe():
        a("buffer_load_dword v%d, v%d, s[4:7], s38 offen %s" % (G_T + 5, G_T + 6, SC))
        tp[0] = a.vt()

    def check():
        a.wait_vm(tp[0])
        a("v_cmp_ne_u32 vcc, v%d, v%d" % (V_TAG, G_T + 5))
        a("s_cbranch_vccz L_ffn2_go")
        keep = a.vm_issued
        poll(a, cfg, 38, G_T + 6, G_T + 4)
        a.vm_issued = keep
        a("L_ffn2_go:")
        if wb:
            a("s_lshr_b32 s17, s2, %d" % (3 if wb == 1 else 6))
            a("s_or_b32 s17, s17, s%d" % S_W)
            a("s_xor_b32 s18, s%d, 1" % S_LAYER)
            a("s_or_b32 s17, s17, s18")
            a("s_cmp_lg_u32 s17, 0")
            a("s_cbranch_scc1 L_ffn2_nowb")
            a("buffer_wbl2 sc1")
            a("L_ffn2_nowb:")
        stamp(a, cfg, 3)

    pp = cfg.get("probe_at", 16)
    gemm64_core(a, cfg, 28, lambda i: w2reg(0, i), lambda i: w2reg(1, i), hreg,
                lambda e: blk(a, hreg(e), SB1 if order[e][0] else SB0, order[e][1], SC), cfg.get('win2', 18), order=order,
                gate=(2 * len(early), probe, check, pp, pp), side=side, side_from=cfg.get('w2_side', 6), side_n=1,
                side2=wq_lines(), side2_from=cfg.get('wq_from', 32), ramp=cfg.get('ramp2', 10), resid=True)
    res_epilogue(a, cfg, 2, "L_final")
    stamp(a, cfg, 10)
    publish(a, 39, [(34, 2048, 0), (35, 256, 0)])
    stamp(a, cfg, 11)


def final_store(a):
    a("v_permlane32_swap_b32 v%d, v%d" % (V_RES, V_RES + 2))
    a("v_permlane32_swap_b32 v%d, v%d" % (V_RES + 1, V_RES + 3))
    a("v_permlane32_swap_b32 v%d, v%d" % (V_RES + 4, V_RES + 6))
    a("v_permlane32_swap_b32 v%d, v%d" % (V_RES + 5, V_RES + 7))
    a("s_lshl_b32 s17, s%d, 15" % S_RT)
    a("s_lshl_b32 s18, s%d, 6" % S_NT)
    a("s_add_u32 s17, s17, s18")
    a("v_lshlrev_b32 v%d, 10, v%d" % (G_T + 2, V_R31))
    a("v_lshl_add_u32 v%d, v%d, 4, v%d" % (G_T + 2, V_H, G_T + 2))
    a("buffer_store_dwordx4 v[%d:%d], v%d, s[8:11], s17 offen" % (V_RES, V_RES + 3, G_T + 2))
    a("buffer_store_dwordx4 v[%d:%d], v%d, s[8:11], s17 offen offset:32" % (V_RES + 4, V_RES + 7, G_T + 2))


def st_begin(a, cfg):
    kern.stamp_init(a, cfg)


def st_end(a, cfg, k):
    if not cfg.get("stamps"):
        return
    stamp(a, cfg, NSTAMP - 1)
    a("s_memrealtime s[62:63]")
    a("s_waitcnt lgkmcnt(0)")
    a("s_mov_b32 s79, s62")
    a("s_mul_i32 s60, s3, 5\ns_add_u32 s60, s60, %d" % k)
    a("s_lshl_b32 s60, s60, 16")
    a("s_lshl_b32 s61, s2, 8")
    a("s_add_u32 s60, s60, s61")
    a("s_lshl_b32 s61, s12, 6")
    a("s_add_u32 s60, s60, s61")
    a("s_add_u32 s60, s60, 0x%x" % kern.OFF_STAMP)
    for i in range(16):
        a("v_writelane_b32 v199, s%d, %d" % (64 + i, i))
    a("s_mov_b32 exec_lo, 0xffff\ns_mov_b32 exec_hi, 0x0")
    a("buffer_store_dword v199, v%d, s[4:7], s60 offen" % V_L4)
    a("s_mov_b64 exec, -1")


def dbgt(a, cfg, k, last=False):
    if not cfg.get("dbgtime"):
        return
    L = a.newlabel("L_dt")
    a("s_cmp_lg_u32 s2, %d" % (cfg["dbgtime"] - 1))
    a("s_cbranch_scc1 %s" % L)
    a("s_memrealtime s[64:65]")
    a("s_memtime s[66:67]")
    a("s_mov_b32 s68, s98\ns_mov_b32 s69, s99\ns_mov_b32 s70, 256\ns_mov_b32 s71, 0x00020000")
    a("s_mul_i32 s72, s3, 20")
    a("s_waitcnt lgkmcnt(0)")
    a("s_sub_u32 s64, s64, s60")
    a("s_sub_u32 s66, s66, s62")
    a("v_mov_b32 v199, s64")
    a("buffer_store_dword v199, v%d, s[68:71], s72 offen offset:%d" % (V_ZERO, 4 + 4 * k))
    if last:
        a("v_mov_b32 v198, s66")
        a("buffer_store_dword v198, v%d, s[68:71], 0 offen offset:%d" % (V_ZERO, 4 * 13))
    a(L + ":")


KNAME = kern.NAME + "_kernel"


def build(cfg):
    rep = []
    DBL[0] = cfg.get("dbl", 0)
    TOUCH[0] = cfg.get("ptouch", 0)
    COMPACT[0] = cfg.get("compact", 1)
    DUAL[0] = False
    LSC[0] = cfg.get("lsc", "")
    RBW[0] = cfg.get("rbw", 0)
    SPLIT_DMA[0] = not cfg.get("mix", 0)
    global OFF_WKV
    if COMPACT[0]:
        OFF_WKV = SU.OFF_WKV = C_WKV
    a = Asm()
    a("s_load_dwordx16 s[80:95], s[0:1], 0")
    a("s_load_dwordx2 s[96:97], s[0:1], 64")
    a("s_load_dwordx2 s[98:99], s[0:1], 80")
    kern.common_prologue(a, True)
    a("v_mov_b32 v%d, 0" % V_ZERO)
    a("v_mov_b32 v199, 0")
    a("v_lshlrev_b32 v%d, 7, v%d" % (V_L128, V_LANE))
    a("v_lshlrev_b32 v%d, 2, v%d" % (V_L4, V_LANE))
    a("s_lshr_b32 s17, s%d, 1" % S_W)
    a("s_and_b32 s18, s%d, 1" % S_W)
    a("s_lshl_b32 s%d, s%d, 1" % (S_NT, S_HQ))
    a("s_add_u32 s%d, s%d, s17" % (S_NT, S_NT))
    a("s_lshl_b32 s%d, s%d, 1" % (S_RT, S_RB))
    a("s_add_u32 s%d, s%d, s18" % (S_RT, S_RT))
    a("s_mov_b32 s%d, 0" % S_LAYER)
    if cfg.get("spin_limit"):
        a("s_mov_b32 s46, %d" % cfg["spin_limit"])
    if cfg.get("dbgtime"):
        a("s_memrealtime s[60:61]")
        a("s_memtime s[62:63]")
        a("s_waitcnt lgkmcnt(0)")
    st_begin(a, cfg)
    SU.startup(a, cfg, sys.modules[__name__])
    dbgt(a, cfg, 0)
    a_addr(a, S_Q0, S_Q1, OFF_WQ, 32, 8)
    a("s_lshl_b32 s%d, s%d, 13" % (S_KVW, S_W))
    a("s_add_u32 s%d, s%d, 0x%x" % (S_KVW, S_KVW, OFF_WKV))
    a("s_and_b32 s17, s2, 7")
    a("s_lshl_b32 s17, s17, 15")
    a("s_add_u32 s%d, s%d, s17" % (S_KVW, S_KVW))
    a("s_cmp_ge_u32 s%d, 4" % S_HQ)
    a("s_cselect_b32 s%d, s%d, s%d" % (S_KVW, S_Q0, S_KVW))
    st_end(a, cfg, 0)
    a("L_layer:")
    for k, ph in enumerate((phase_qkv, phase_att, phase_wo, phase_ffn1, phase_ffn2)):
        st_begin(a, cfg)
        ph(a, cfg)
        st_end(a, cfg, k + 1)
        dbgt(a, cfg, k + 1)
    a("s_mov_b32 s%d, 1" % S_LAYER)
    a("s_branch L_layer")
    a("L_final:")
    final_store(a)
    st_end(a, cfg, 5)
    dbgt(a, cfg, 5, True)
    a("L_exit:")
    a("s_endpgm")
    main_lines, _ = fix_hazards_fast(kern.uniq(a.lines, "main"), rep)

    pf = cfg.get("pfk", 0)
    if pf:
        b = Asm()
        b("s_cmp_ge_u32 s2, 256")
        b("s_cbranch_scc1 L_pf_end")
        b("s_load_dwordx16 s[16:31], s[0:1], 0")
        b("s_load_dwordx2 s[32:33], s[0:1], 64")
        b("s_getpc_b64 s[4:5]")
        b("L_pf_pc:")
        b("s_add_u32 s4, s4, L_code_begin-L_pf_pc")
        b("s_addc_u32 s5, s5, -1")
        b("s_lshr_b32 s6, s2, 3")
        b("s_and_b32 s7, s2, 7")
        b("s_lshl_b32 s8, s6, 11")
        b("v_lshlrev_b32 v1, 3, v0")
        b("v_add_u32 v1, s8, v1")
        b("v_min_u32 v1, L_code_end-L_code_begin-8, v1")
        b("global_load_dwordx2 v[2:3], v1, s[4:5]")
        if pf >= 2:
            b("v_lshlrev_b32 v1, 6, v0")
            b("s_lshl_b32 s8, s6, 14")
            b("v_add_u32 v4, s8, v1")
            b("s_lshl_b32 s9, s7, 18")
            b("s_lshl_b32 s10, s6, 13")
            b("s_add_u32 s9, s9, s10")
            b("v_lshlrev_b32 v5, 5, v0")
            b("v_add_u32 v5, s9, v5")
            b("s_mul_i32 s11, s2, 7168")
            b("v_mul_u32_u24 v6, 28, v0")
            b("v_add_u32 v6, s11, v6")
            b("s_lshl_b32 s11, s2, 11")
            b("v_lshlrev_b32 v7, 3, v0")
            b("v_add_u32 v7, s11, v7")
            b("s_waitcnt lgkmcnt(0)")
            b("global_load_dword v8, v4, s[18:19]")
            b("global_load_dword v9, v5, s[16:17]")
            b("global_load_dword v10, v1, s[20:21]")
            b("global_load_dword v11, v1, s[22:23]")
            b("global_load_dword v12, v6, s[28:29]")
            b("global_load_dword v13, v6, s[30:31]")
            b("global_load_dword v14, v6, s[32:33]")
            b("global_load_dword v15, v7, s[24:25]")
        b("L_pf_end:")
        b("s_endpgm")
        pfl, _ = fix_hazards_fast(["L_code_begin:", "L_code_end:"] + b.lines, rep)
        main_lines2 = [".p2align 8", "pf_kernel:"] + pfl[2:]
        s = "; @launch kernel=pf_kernel grid=(256,1,1) block=(256,1,1) lds=0\n"
        s += "; @launch kernel=%s grid=(256,1,1) block=(256,1,1) lds=%d\n" % (KNAME, 160 * 1024)
    else:
        main_lines2 = []
        s = "; @launch grid=(256,1,1) block=(256,1,1) lds=%d\n" % (160 * 1024)
    s += '.amdgcn_target "amdgcn-amd-amdhsa--gfx950"\n.text\n.globl %s\n.p2align 8\n.type %s,@function\n' % (KNAME, KNAME)
    s += "\n".join(["L_code_begin:", KNAME + ":"] + main_lines + ["L_code_end:"] + main_lines2) + "\n"
    s += '.section .rodata,"a"\n.p2align 6\n' + kernel_desc(KNAME, 512, 256, 102)
    if pf:
        s += ".p2align 6\n" + kernel_desc("pf_kernel", 16, 16, 40)
    return s, rep


if __name__ == "__main__":
    cfg = dict(code_prefetch=True)
    for kv in sys.argv[2:]:
        k, v = kv.split("=")
        cfg[k] = eval(v)
    s, rep = build(cfg)
    open(sys.argv[1], "w").write(s)
    print("auto nops:", sum(r[0] for r in rep), "sites", len(rep), "bytes of source", len(s))
    if cfg.get("verbose"):
        for r in rep:
            print(r)
```

```python
import sys
from asmlib import *
from layout import *
import kern
import startup as SU
from kern import (split3, fl, MF, S_LAYER, S_W, S_RB, S_HQ, S_RG, S_M, V_L16, V_LANE, V_R31, V_H, V_OFF, xhalf_sum,
                  load_stats, finish_stats, pack8, stamp, kernel_desc, prep, NSTAMP)

SC = "sc1"


COMPACT = [1]
CMAP = {OFF_X: 0x800000, OFF_O: 0xC00000, OFF_H: 0xE00000, OFF_STAT: OFF_STAT}
C_WKV = 0x780000
C_END = 0x1500000


def layer_off(a, sdst, base, stride, mul=1, add=0):
    if COMPACT[0] and base in CMAP:
        a("s_mov_b32 s%d, 0x%x" % (sdst, CMAP[base] + (add & 1) * stride))
    else:
        kern.layer_off(a, sdst, base, stride, mul, add)


def blk(a, dst, sbase, i, sc=SC):
    kern.blk(a, dst, sbase, i, SC)


FL_O = 0x0000
FL_X1 = 0x2000
FL_H = 0x8000
FL_XIN = 0x6000
OFF_FLW = 0x64C000
FL_KV = 0x640000 - OFF_FLAGS

S_RT, S_NT = 31, 32
S_FO, S_FX1, S_FH = 40, 41, 42
S_W13, S_WL = 47, 48
S_RET = 44
V_RES = 12
V_TAG = 11
V_L4 = 20
V_ZERO = 21
VB = 24

G_ACC = 24
G_RED = 88
G_ST = 136
G_CS = 152
G_T = 168
V_WR = [184, 185, 186]
V_RD = 187
V_NMU, V_RSTD = 188, 189
G_KVACC = 88
G_Q = 190
W2V = 200

LDS_R1 = 96 * 1024
LDS_RQ = 0
LDS_KVX = 49152
LDS_CSX = 69632
LDS_CS = 152 * 1024
LDS_E = 128 * 1024


DBL = [0]
LSC = ["sc1"]
S_LOC = 57
DUAL = [False]
_dl = [0]


def lstore(text):
    lines = text if isinstance(text, list) else [text]
    if not DUAL[0]:
        return [l + " sc1" for l in lines]
    _dl[0] += 1
    n = _dl[0]
    return (["s_cbranch_scc1 L_ls%da ; needs scc" % n] + [l + " sc1" for l in lines] + ["s_branch L_ls%db" % n, "L_ls%da:" % n] +
            ["!" + l + " " + LSC[0] for l in lines] + ["L_ls%db:" % n])


def emit_l(a, text):
    out = lstore(text)
    if DUAL[0]:
        a("s_cmp_lg_u32 s%d, 0" % S_LOC)
    for l in out:
        if l.startswith("!"):
            a(l[1:])
        else:
            a(l)


def st4(a, data, voff, soff, imm=0):
    emit_l(a, "buffer_store_dwordx4 v[%d:%d], v%d, s[4:7], s%d offen offset:%d" % (data, data + 3, voff, soff, imm))
    if DBL[0]:
        a("buffer_store_dwordx4 v[%d:%d], v%d, s[4:7], s%d offen offset:%d" % (data, data + 3, voff, soff, imm))


TOUCH = [1]
V_L128 = 23
V_P2 = 199


V_L64 = 22


RBW = [0]


def readback(a, regions, final=False):
    if not DUAL[0]:
        return
    L = a.newlabel("L_rb")
    keep = a.vm_issued
    a("s_cmp_eq_u32 s%d, 0" % S_LOC)
    a("s_cbranch_scc1 %s" % L)
    a("v_lshlrev_b32 v%d, 6, v%d" % (V_L64, V_LANE))
    if RBW[0] and final:
        a("s_waitcnt vmcnt(0)")
    for sg, nb, imm in regions:
        n = nb // 64
        assert n <= 64
        a("s_mov_b32 exec_lo, 0x%x" % (((1 << n) - 1) & 0xffffffff))
        a("s_mov_b32 exec_hi, 0x%x" % (((1 << n) - 1) >> 32))
        a("buffer_load_dword v%d, v%d, s[4:7], s%d offen offset:%d %s" % (V_P2, V_L64, sg, imm, SC))
    a(L + ":")
    a.vm_issued = keep


def publish(a, s_addr, regions, imm=0, between=()):
    readback(a, regions, True)
    if between:
        a("s_mov_b64 exec, -1")
        for x in between:
            a(x)
    a("s_waitcnt vmcnt(0)")
    a("s_mov_b64 exec, 1")
    emit_l(a, "buffer_store_dword v%d, v%d, s[4:7], s%d offen offset:%d" % (V_TAG, V_ZERO, s_addr, imm))
    a("s_mov_b64 exec, -1")


def poll(a, cfg, s_addr, voff, vtmp, wide=False, imm=0, sleep=0):
    L = a.newlabel("L_poll")
    if cfg.get("spin_limit"):
        a("s_mov_b32 s46, %d" % cfg["spin_limit"])
    if cfg.get("ppoll", 0) and not wide and not sleep:
        ld = lambda r: a("buffer_load_dword v%d, v%d, s[4:7], s%d offen offset:%d %s" % (r, voff, s_addr, imm, SC))
        ld(vtmp)
        a("s_sleep %d" % cfg.get("ppoll_gap", 2))
        a(L + ":")
        ld(V_P2)
        a("s_waitcnt vmcnt(1)")
        a("v_cmp_ne_u32 vcc, v%d, v%d" % (V_TAG, vtmp))
        a("s_cbranch_vccz %s_out" % L)
        ld(vtmp)
        a("s_waitcnt vmcnt(1)")
        if cfg.get("spin_limit"):
            a("s_sub_u32 s46, s46, 1")
            a("s_cbranch_scc1 %s_out" % L)
        a("v_cmp_ne_u32 vcc, v%d, v%d" % (V_TAG, V_P2))
        a("s_cbranch_vccnz %s" % L)
        a.vm_issued -= 1
        a(L + "_out:")
        return
    a(L + ":")
    if wide:
        a("buffer_load_dwordx4 v[%d:%d], v%d, s[4:7], s%d offen %s" % (vtmp, vtmp + 3, voff, s_addr, SC))
        a("s_waitcnt vmcnt(0)")
        a("v_cmp_ne_u32 s[18:19], v%d, v%d" % (V_TAG, vtmp + 2))
        a("v_cndmask_b32 v%d, v%d, v%d, s[18:19]" % (vtmp, vtmp, V_ZERO))
    else:
        a("buffer_load_dword v%d, v%d, s[4:7], s%d offen offset:%d %s" % (vtmp, voff, s_addr, imm, SC))
        a("s_waitcnt vmcnt(0)")
    if cfg.get("spin_limit"):
        a("s_sub_u32 s46, s46, 1")
        a("s_cbranch_scc1 %s_out" % L)
    a("v_cmp_ne_u32 vcc, v%d, v%d" % (V_TAG, vtmp))
    if sleep:
        a("s_cbranch_vccz %s_out" % L)
        a("s_sleep %d" % sleep)
        a("s_branch %s" % L)
    else:
        a("s_cbranch_vccnz %s" % L)
    a(L + "_out:")


def lane_pat(a, vdst, mask, hi_shift, lo_mul):
    a("v_and_b32 v%d, %d, v%d" % (vdst, mask & ~1, V_LANE))
    a("v_lshlrev_b32 v%d, 3, v%d" % (vdst, vdst))
    a("v_and_b32 v%d, 1, v%d" % (vdst + 1, V_LANE))
    a("v_lshl_add_u32 v%d, v%d, %d, v%d" % (vdst, vdst + 1, lo_mul, vdst))


def flag_addr(a, sdst, base, s_grp, grp_shift, s_mem=None, per_layer=0x1000):
    a("s_mul_i32 s%d, s%d, 0x%x" % (sdst, S_LAYER, per_layer))
    a("s_add_u32 s%d, s%d, 0x%x" % (sdst, sdst, OFF_FLAGS + base))
    a("s_lshl_b32 s17, s%d, %d" % (s_grp, grp_shift))
    a("s_add_u32 s%d, s%d, s17" % (sdst, sdst))
    if s_mem is not None:
        a("s_lshl_b32 s17, s%d, 4" % s_mem)
        a("s_add_u32 s%d, s%d, s17" % (sdst, sdst))
        a("s_lshl_b32 s17, s%d, 2" % S_W)
        a("s_add_u32 s%d, s%d, s17" % (sdst, sdst))


def xin_flag_addr(a, sdst, own, layer_add):
    flag_addr(a, sdst, FL_XIN + 0x1000 * layer_add, S_RB, 7, S_HQ if own else None)


def a_addr(a, s_a0, s_a1, offA, ksA, ksw):
    a("s_mul_i32 s20, s%d, %d" % (S_W, ksw * 1024))
    a("s_mul_i32 s%d, s%d, %d" % (s_a0, S_NT, ksA * 1024))
    a("s_add_u32 s%d, s%d, s20" % (s_a0, s_a0))
    a("s_add_u32 s%d, s%d, 0x%x" % (s_a0, s_a0, offA))
    a("s_xor_b32 s21, s%d, 1" % S_NT)
    a("s_mul_i32 s%d, s21, %d" % (s_a1, ksA * 1024))
    a("s_add_u32 s%d, s%d, s20" % (s_a1, s_a1))
    a("s_add_u32 s%d, s%d, 0x%x" % (s_a1, s_a1, offA))


def b_addr(a, s_b0, s_b1, s_base, ksB, ksw):
    a("s_mul_i32 s20, s%d, %d" % (S_W, ksw * 1024))
    a("s_add_u32 s20, s20, s%d" % s_base)
    a("s_mul_i32 s%d, s%d, %d" % (s_b0, S_RT, ksB * 1024))
    a("s_add_u32 s%d, s%d, s20" % (s_b0, s_b0))
    a("s_xor_b32 s21, s%d, 1" % S_RT)
    a("s_mul_i32 s%d, s21, %d" % (s_b1, ksB * 1024))
    a("s_add_u32 s%d, s%d, s20" % (s_b1, s_b1))


def reduce_addr(a, base):
    for j in (1, 2, 3):
        a("s_xor_b32 s17, s%d, %d" % (S_W, j))
        a("s_mul_i32 s17, s17, 12288")
        a("s_add_u32 s17, s17, %d" % (base + (j - 1) * 4096))
        a("v_add_u32 v%d, s17, v%d" % (V_WR[j - 1], V_L16))
    a("s_mul_i32 s17, s%d, 12288" % S_W)
    a("s_add_u32 s17, s17, %d" % base)
    a("v_add_u32 v%d, s17, v%d" % (V_RD, V_L16))


def mf(a, d, x, y, c):
    a("%s v[%d:%d], %s, %s, %s" % (MF, d, d + 15, x, y, c))


def wr_tile(a, j):
    for q in range(4):
        r = G_ACC + 16 * j + 4 * q
        a("ds_write_b128 v%d, v[%d:%d] offset:%d" % (V_WR[j - 1], r, r + 3, q * 1024))


def rd_tile(a, j, dst):
    for q in range(4):
        a("ds_read_b128 v[%d:%d], v%d offset:%d" % (dst + 4 * q, dst + 4 * q + 3, V_RD, (j - 1) * 4096 + q * 1024))


def gemm64_core(a, cfg, n, A0, A1, Breg, issueB, window, pre_tickets=None, order=None, side=None, side_from=0, side_n=1,
                gate=None, side2=None, side2_from=0, ramp=None, resid=False, extra0=None, hooks=None):
    if order is None:
        order = [(1, i) for i in range(n)] + [(0, i) for i in range(n)]
    M = len(order)
    side = list(side or [])
    t = dict(pre_tickets or {})
    nxt = len(t)
    gpos = gate[0] if gate else M + 1
    gated = [False]

    def try_issue(limit):
        nonlocal nxt
        while nxt < M and nxt < limit:
            if nxt >= gpos and not gated[0]:
                return
            issueB(nxt)
            t[nxt] = a.vt()
            nxt += 1
            if gate and nxt == gate[3]:
                gate[1]()

    try_issue(ramp or window)
    if cfg.get("stamps") != 2:
        stamp(a, cfg, 1)
    last1 = max(e for e, (st, i) in enumerate(order) if st == 1)
    wr1 = last1 + 2
    bar1 = min(M - 2, last1 + 1 + max(2, (M - last1) // 2))
    seen = set()
    for e, (st, i) in enumerate(order):
        if gate and not gated[0] and e == gate[4]:
            assert not side
            gate[2]()
            gated[0] = True
            try_issue(e + window)
        if hooks and e in hooks:
            hooks[e]()
        a.wait_vm(t[e])
        if e == 0 and cfg.get("stamps") != 2:
            stamp(a, cfg, 2)
        first = "0" if st not in seen else None
        seen.add(st)
        if st == 1:
            mf(a, G_ACC + 16, A0(i), Breg(e), first or vr(G_ACC + 16, 16))
            if cfg.get("ldmid", 0) and window < 30:
                try_issue(min(e + 1 + window, nxt + 1))
            mf(a, G_ACC + 48, A1(i), Breg(e), first or vr(G_ACC + 48, 16))
        else:
            mf(a, G_ACC + 32, A1(i), Breg(e), first or vr(G_ACC + 32, 16))
            if cfg.get("ldmid", 0) and window < 30:
                try_issue(min(e + 1 + window, nxt + 1))
            mf(a, G_ACC, A0(i), Breg(e), first or vr(G_ACC, 16))
        try_issue(min(e + 1 + window, nxt + 2))
        if e >= side_from:
            k = 0
            while side and k < side_n:
                x = side.pop(0)
                a(x)
                k += x.startswith("buffer_")
        if side2 and e >= side2_from:
            for _ in range(cfg.get("side2_n", 1)):
                if side2:
                    a(side2.pop(0))
        if e == wr1:
            wr_tile(a, 1)
            wr_tile(a, 3)
        if e == bar1:
            a("s_waitcnt lgkmcnt(0)")
            a("s_barrier")
            rd_tile(a, 1, G_RED)
            rd_tile(a, 3, G_RED + 16)
    assert wr1 <= bar1 < M and not side2
    if extra0:
        extra0[2]()
        mf(a, G_ACC, extra0[0], extra0[1], vr(G_ACC, 16))
    stamp(a, cfg, 4)
    a("s_waitcnt lgkmcnt(0)")
    for e in range(6):
        a("v_add_f32 v%d, v%d, v%d" % (G_RED + e, G_RED + e, G_RED + 16 + e))
    wr_tile(a, 2)
    for e in range(6, 16):
        a("v_add_f32 v%d, v%d, v%d" % (G_RED + e, G_RED + e, G_RED + 16 + e))
    for e in range(16):
        a("v_add_f32 v%d, v%d, v%d" % (G_ACC + e, G_ACC + e, G_RED + e))
    if resid:
        for i in range(8):
            a("v_lshlrev_b32 v%d, 16, v%d" % (G_T, V_RES + i))
            a("v_and_b32 v%d, 0xffff0000, v%d" % (G_T + 1, V_RES + i))
            a("v_add_f32 v%d, v%d, v%d" % (G_ACC + 2 * i, G_ACC + 2 * i, G_T))
            a("v_add_f32 v%d, v%d, v%d" % (G_ACC + 2 * i + 1, G_ACC + 2 * i + 1, G_T + 1))
    for x in side:
        a(x)
    a("s_waitcnt lgkmcnt(0)")
    a("s_barrier")
    stamp(a, cfg, 6)
    rd_tile(a, 2, G_RED + 32)
    for q in range(4):
        a("s_waitcnt lgkmcnt(%d)" % (3 - q))
        for e in range(4):
            a("v_add_f32 v%d, v%d, v%d" % (G_ACC + 4 * q + e, G_ACC + 4 * q + e, G_RED + 32 + 4 * q + e))
    stamp(a, cfg, 7)


def bextra(a, nmu, d):
    split3(a, nmu, d + 4)
    a("v_lshrrev_b32 v%d, 16, v%d" % (d + 7, d + 4))
    a("v_or_b32 v%d, v%d, v%d" % (d, d + 7, d + 5))
    a("v_or_b32 v%d, v%d, v%d" % (d + 1, d + 7, d + 6))
    a("v_mov_b32 v%d, v%d" % (d + 2, d))
    a("v_mov_b32 v%d, 0" % (d + 3))


def res_epilogue(a, cfg, xout_add, final):
    for i in range(8):
        a("v_cvt_pk_bf16_f32 v%d, v%d, v%d" % (V_RES + i, G_ACC + 2 * i, G_ACC + 2 * i + 1))
        if i == 3 and final is None:
            st4(a, V_RES, V_L16, 34)
    if final is not None:
        a("s_cmp_eq_u32 s%d, 1" % S_LAYER)
        a("s_cbranch_scc1 %s" % final)
        st4(a, V_RES, V_L16, 34)
    store_x_tail(a)


def store_x_tail(a):
    st4(a, V_RES + 4, V_L16, 34, 1024)
    a("v_mov_b32 v%d, 0x3f803f80" % G_T)
    a("v_mov_b32 v%d, 0" % (G_T + 12))
    a("v_mov_b32 v%d, 0" % (G_T + 13))
    for r in range(8):
        a("v_dot2_f32_bf16 v%d, v%d, v%d, v%d" % (G_T + 12, V_RES + r, G_T, G_T + 12))
        a("v_dot2_f32_bf16 v%d, v%d, v%d, v%d" % (G_T + 13, V_RES + r, V_RES + r, G_T + 13))
    a("v_lshlrev_b32 v%d, 3, v%d" % (G_T + 2, V_R31))
    a("s_nop 1")
    a("v_mov_b32 v%d, v%d" % (G_T + 14, G_T + 12))
    a("v_mov_b32 v%d, v%d" % (G_T + 15, G_T + 13))
    a("s_nop 0")
    a("v_permlane32_swap_b32 v%d, v%d" % (G_T + 12, G_T + 14))
    a("v_permlane32_swap_b32 v%d, v%d" % (G_T + 13, G_T + 15))
    a("v_add_f32 v%d, v%d, v%d" % (G_T + 12, G_T + 12, G_T + 14))
    a("v_add_f32 v%d, v%d, v%d" % (G_T + 13, G_T + 13, G_T + 15))
    a("s_mov_b32 exec_lo, 0xffffffff\ns_mov_b32 exec_hi, 0x0")
    emit_l(a, "buffer_store_dwordx2 v[%d:%d], v%d, s[4:7], s35 offen" % (G_T + 12, G_T + 13, G_T + 2))
    a("s_mov_b64 exec, -1")


def out_addr(a, xout_add):
    layer_off(a, 34, OFF_X, X_STRIDE, 2, xout_add)
    a("s_lshl_b32 s18, s%d, 15" % S_RT)
    a("s_add_u32 s34, s34, s18")
    a("s_lshl_b32 s18, s%d, 11" % S_NT)
    a("s_add_u32 s34, s34, s18")
    layer_off(a, 35, OFF_STAT, STAT_STRIDE, 2, xout_add)
    a("s_lshl_b32 s18, s%d, 12" % S_RT)
    a("s_add_u32 s35, s35, s18")
    a("s_lshl_b32 s18, s%d, 8" % S_NT)
    a("s_add_u32 s35, s35, s18")


S_Q0, S_Q1, S_KVW = 50, 51, 52


def wq_lines():
    b = Asm()
    for i in range(8):
        blk(b, ar(128 + 4 * i, 4), S_KVW, i)
    for i in range(8):
        blk(b, ar(160 + 4 * i, 4), S_Q0, i)
        blk(b, ar(192 + 4 * i, 4), S_Q1, i)
    return [l.strip() for l in b.lines]


def phase_qkv(a, cfg):
    SA0, SA1, SB0, SB1, SX, SKV = 24, 25, 26, 27, 28, 29
    CK = G_T + 8
    a("v_lshlrev_b32 v%d, 4, v%d" % (G_T + 1, V_H))
    a("v_lshlrev_b32 v%d, 2, v%d" % (G_T + 6, V_R31))
    VP, VPA = 198, 22
    SU.probe_addr(a, sys.modules[__name__], VPA, VP, 59)
    def wcheck(tag):
        a("v_cmp_ne_u32 vcc, v%d, v%d" % (V_TAG, VP))
        a("s_cbranch_vccz L_qkv_wok%s" % tag)
        keep = a.vm_issued
        poll(a, cfg, 59, VPA, VP, sleep=1)
        a.vm_issued = keep
        a("L_qkv_wok%s:" % tag)

    layer_off(a, SX, OFF_X, X_STRIDE, 2, 0)
    b_addr(a, SB0, SB1, SX, 32, 8)
    layer_off(a, 30, OFF_STAT, STAT_STRIDE, 2, 0)
    a("s_lshl_b32 s17, s%d, 12" % S_RT)
    a("s_add_u32 s30, s30, s17")
    reduce_addr(a, LDS_RQ)
    layer_off(a, 33, OFF_KV, KV_STRIDE)
    a("s_lshr_b32 s36, s%d, 1" % S_HQ)
    a("s_lshl_b32 s17, s%d, 1" % S_RB)
    a("s_add_u32 s17, s17, s36")
    a("s_lshl_b32 s17, s17, 15")
    a("s_add_u32 s23, s17, s%d" % SX)
    a("s_lshl_b32 s17, s%d, 13" % S_W)
    a("s_add_u32 s23, s23, s17")
    a("s_sub_u32 s17, s%d, s36" % S_W)
    a("s_sub_u32 s17, s17, 1")
    a("s_and_b32 s17, s17, 3")
    a("s_lshl_b32 s17, s17, 12")
    a("s_add_u32 s17, s17, %d" % LDS_KVX)
    a("v_add_u32 v%d, s17, v%d" % (G_T + 2, V_L16))
    a("v_add_u32 v%d, %d, v%d" % (G_T + 3, LDS_KVX, V_L16))
    a("s_mul_i32 s37, s%d, 0x2000" % S_LAYER)
    a("s_add_u32 s37, s37, 0x%x" % (OFF_FLAGS + FL_KV))
    a("s_lshl_b32 s17, s%d, 5" % S_RB)
    a("s_add_u32 s37, s37, s17")
    a("s_lshl_b32 s17, s36, 4")
    a("s_add_u32 s37, s37, s17")
    a("s_lshl_b32 s39, s2, 11")
    a("s_add_u32 s39, s39, 0x%x" % OFF_CKS)
    a("s_cmp_eq_u32 s%d, 0" % S_LAYER)
    a("s_cbranch_scc1 L_qkv_cs0")
    a("buffer_load_dwordx4 v[%d:%d], v%d, s[4:7], s39 offen sc1" % (CK, CK + 3, V_L16))
    a("buffer_load_dwordx4 v[%d:%d], v%d, s[4:7], s39 offen offset:1024 sc1" % (CK + 4, CK + 7, V_L16))
    a("s_branch L_qkv_nocs")
    a("L_qkv_cs0:")
    a("s_cmp_ge_u32 s%d, 4" % S_HQ)
    a("s_cbranch_scc1 L_qkv_nocs")
    for r in range(4):
        a("v_mov_b32 v%d, 0x3f803f80" % (G_CS + r))
    a("s_lshl_b32 s17, s%d, 11" % S_W)
    a("s_add_u32 s17, s17, %d" % LDS_CSX)
    a("v_add_u32 v%d, s17, v%d" % (G_CS + 4, V_L16))
    a("v_add_u32 v%d, %d, v%d" % (G_CS + 5, LDS_CSX, V_L16))
    a("s_bitcmp1_b32 s%d, 0" % S_HQ)
    a("s_cbranch_scc1 L_qkv_c1")
    for i in range(8):
        mf(a, G_ACC, ar(128 + 4 * i, 4), vr(G_CS, 4), "0" if i == 0 else vr(G_ACC, 16))
    a("s_branch L_qkv_c2")
    a("L_qkv_c1:")
    for i in range(8):
        mf(a, G_ACC, vr(G_CS, 4), ar(128 + 4 * i, 4), "0" if i == 0 else vr(G_ACC, 16))
    a("L_qkv_c2:")
    a("ds_write_b128 v%d, v[%d:%d]" % (G_CS + 4, G_ACC + 8, G_ACC + 11))
    a("ds_write_b128 v%d, v[%d:%d] offset:1024" % (G_CS + 4, G_ACC + 12, G_ACC + 15))
    a("s_waitcnt lgkmcnt(0)")
    a("s_barrier")
    for w in range(4):
        for q in range(2):
            a("ds_read_b128 v[%d:%d], v%d offset:%d" % (G_RED + 8 * w + 4 * q, G_RED + 8 * w + 4 * q + 3, G_CS + 5, 2048 * w + 1024 * q))
    a("s_waitcnt lgkmcnt(0)")
    for e in range(8):
        a("v_add_f32 v%d, v%d, v%d" % (G_RED + e, G_RED + e, G_RED + 8 + e))
        a("v_add_f32 v%d, v%d, v%d" % (G_RED + 16 + e, G_RED + 16 + e, G_RED + 24 + e))
        a("v_add_f32 v%d, v%d, v%d" % (CK + e, G_RED + e, G_RED + 16 + e))
    a("buffer_store_dwordx4 v[%d:%d], v%d, s[4:7], s39 offen sc1" % (CK, CK + 3, V_L16))
    a("buffer_store_dwordx4 v[%d:%d], v%d, s[4:7], s39 offen offset:1024 sc1" % (CK + 4, CK + 7, V_L16))
    a("L_qkv_nocs:")
    stamp(a, cfg, 8)
    xin_flag_addr(a, 38, False, 0)
    poll(a, cfg, 38, G_T + 6, G_T + 4)
    stamp(a, cfg, 9)
    def b1_loads():
        for e in range(8):
            blk(a, ar(64 + 4 * e, 4), SB1, e, SC)
            tB[e] = a.vt()

    def cs_q():
        a("s_lshl_b32 s17, s%d, 10" % S_NT)
        a("s_add_u32 s17, s17, 0x%x" % OFF_CSQX)
        a("buffer_load_dwordx4 v[%d:%d], v%d, s[4:7], s17 offen sc1" % (G_CS, G_CS + 3, V_L16))

    a("s_cmp_ge_u32 s%d, 4" % S_HQ)
    a("s_cbranch_scc1 L_qkv_stats")
    tK = {}
    for i in range(8):
        blk(a, ar(224 + 4 * i, 4), 23, i, SC)
        tK[i] = a.vt()
    load_stats(a, G_ST, 30, G_T, SC)
    t_st = a.vt()
    tB = {}
    b1_loads()
    stamp(a, cfg, 1)
    a("s_bitcmp1_b32 s%d, 0" % S_HQ)
    a("s_cbranch_scc1 L_qkv_v1")
    for v in range(2):
        if v:
            a("L_qkv_v%d:" % v)
        for i in range(8):
            a.wait_vm(tK[i])
            x, w = ar(224 + 4 * i, 4), ar(128 + 4 * i, 4)
            c = "0" if i == 0 else vr(G_KVACC, 16)
            if v & 1:
                mf(a, G_KVACC, x, w, c)
            else:
                mf(a, G_KVACC, w, x, c)
        if v < 1:
            a("s_branch L_qkv_kvred")
    a("L_qkv_kvred:")
    stamp(a, cfg, 2)
    a.wait_vm(t_st)
    finish_stats(a, G_ST, V_NMU, V_RSTD)
    for q in range(4):
        a("ds_write_b128 v%d, v[%d:%d] offset:%d" % (G_T + 2, G_KVACC + 4 * q, G_KVACC + 4 * q + 3, q * 1024))
    XS = LDS_KVX + 16384
    a("s_lshl_b32 s17, s%d, 8" % S_W)
    a("s_add_u32 s17, s17, %d" % XS)
    a("v_add_u32 v%d, s17, v%d" % (G_T + 4, G_T + 6))
    a("v_mul_f32 v%d, v%d, v%d" % (G_T + 5, V_NMU, V_RSTD))
    a("ds_write_b32 v%d, v%d" % (G_T + 4, V_RSTD))
    a("ds_write_b32 v%d, v%d offset:128" % (G_T + 4, G_T + 5))
    a("v_add_u32 v%d, s17, v%d" % (G_T + 4, G_T + 1))
    RS = G_ACC + 16
    for g in range(4):
        a("ds_read_b128 v[%d:%d], v%d offset:%d" % (RS + 4 * g, RS + 4 * g + 3, G_T + 4, 32 * g))
        a("ds_read_b128 v[%d:%d], v%d offset:%d" % (RS + 16 + 4 * g, RS + 16 + 4 * g + 3, G_T + 4, 128 + 32 * g))
    a("s_waitcnt lgkmcnt(0)")
    a("s_barrier")
    stamp(a, cfg, 3)
    a("s_cmp_lg_u32 s%d, s36" % S_W)
    a("s_cbranch_scc1 L_qkv_q")
    RD = [G_RED + 16, G_RED + 32, G_ACC]
    for j in range(3):
        for q in range(4):
            a("ds_read_b128 v[%d:%d], v%d offset:%d" % (RD[j] + 4 * q, RD[j] + 4 * q + 3, G_T + 3, j * 4096 + q * 1024))
    for j in range(3):
        a("s_waitcnt lgkmcnt(%d)" % (8 - 4 * j))
        for e in range(16):
            a("v_add_f32 v%d, v%d, v%d" % (G_KVACC + e, G_KVACC + e, RD[j] + e))
    a("s_lshl_b32 s17, s%d, 10" % S_RT)
    a("s_add_u32 s34, s33, s17")
    a("s_bitcmp1_b32 s%d, 0" % S_HQ)
    a("s_cbranch_scc1 L_qkv_vfin")
    PK = G_RED + 16
    for e in range(8):
        a("v_fmac_f32 v%d, v%d, v%d" % (G_KVACC + 8 + e, V_NMU, CK + e))
        a("v_mul_f32 v%d, v%d, v%d" % (G_KVACC + 8 + e, V_RSTD, G_KVACC + 8 + e))
    pack8(a, PK, G_KVACC + 8)
    a("buffer_store_dwordx4 v[%d:%d], v%d, s[4:7], s34 offen %s" % (PK, PK + 3, V_L16, SC))
    a("v_mov_b32 v%d, 0" % (PK + 4))
    for r in range(4):
        a("v_dot2_f32_bf16 v%d, v%d, v%d, v%d" % (PK + 4, PK + r, PK + r, PK + 4))
    xhalf_sum(a, PK + 4, PK + 5)
    for d in ("row_shr:1", "row_shr:2", "row_shr:4", "row_shr:8"):
        a("v_max_f32_dpp v%d, v%d, v%d %s row_mask:0xf bank_mask:0xf" % (PK + 4, PK + 4, PK + 4, d))
    a("v_max_f32_dpp v%d, v%d, v%d row_bcast:15 row_mask:0xa bank_mask:0xf" % (PK + 4, PK + 4, PK + 4))
    a("v_readlane_b32 s18, v%d, 31" % (PK + 4))
    a("v_lshlrev_b32 v%d, 10, v%d" % (G_T + 4, V_LANE))
    a("v_mov_b32 v%d, v%d" % (PK + 6, V_TAG))
    a("v_mov_b32 v%d, s18" % (PK + 7))
    a("s_waitcnt vmcnt(0)")
    a("s_mov_b64 exec, 0xff")
    a("buffer_store_dwordx2 v[%d:%d], v%d, s[4:7], s37 offen %s" % (PK + 6, PK + 7, G_T + 4, SC))
    a("s_mov_b64 exec, -1")
    a("s_branch L_qkv_q")
    a("L_qkv_vfin:")
    a("v_lshlrev_b32 v%d, 4, v%d" % (G_T + 4, V_R31))
    a("v_lshl_add_u32 v%d, v%d, 8, v%d" % (G_T + 4, V_H, G_T + 4))
    a("s_add_u32 s34, s34, 0x10000")
    for e in range(16):
        a("v_mul_f32 v%d, v%d, v%d" % (G_KVACC + e, RS + e, G_KVACC + e))
        a("v_fmac_f32 v%d, v%d, v%d" % (G_KVACC + e, RS + 16 + e, CK))
    pack8(a, G_ACC, G_KVACC)
    pack8(a, G_ACC + 4, G_KVACC + 8)
    a("s_mov_b32 exec_lo, 0xffff\ns_mov_b32 exec_hi, 0xffff")
    a("buffer_store_dwordx4 v[%d:%d], v%d, s[4:7], s34 offen %s" % (G_ACC, G_ACC + 3, G_T + 4, SC))
    a("buffer_store_dwordx4 v[%d:%d], v%d, s[4:7], s34 offen offset:512 %s" % (G_ACC + 4, G_ACC + 7, G_T + 4, SC))
    a("s_mov_b64 exec, -1")
    a("L_qkv_kvdone:")
    stamp(a, cfg, 5)
    a("v_lshlrev_b32 v%d, 10, v%d" % (G_T + 4, V_LANE))
    a("s_waitcnt vmcnt(0)")
    a("s_mov_b64 exec, 0xff")
    a("buffer_store_dword v%d, v%d, s[4:7], s37 offen offset:8 %s" % (V_TAG, G_T + 4, SC))
    a("s_mov_b64 exec, -1")
    a("s_branch L_qkv_q")
    a("L_qkv_stats:")
    load_stats(a, G_ST, 30, G_T, SC)
    t_st = a.vt()
    b1_loads()
    a.wait_vm(t_st)
    finish_stats(a, G_ST, V_NMU, V_RSTD)
    a("L_qkv_q:")
    stamp(a, cfg, 10)
    bextra(a, V_NMU, G_CS + 4)
    tq = {}

    def h_probe():
        a("buffer_load_dword v%d, v%d, s[4:7], s59 offen sc1" % (VP, VPA))
        tq[0] = a.vt()

    def h_cs():
        a.wait_vm(tq[0])
        wcheck("q")
        cs_q()
        tq[1] = a.vt()
    gemm64_core(a, dict(cfg, stamps=cfg.get('stamps') and 2), 8, lambda i: ar(160 + 4 * i, 4), lambda i: ar(192 + 4 * i, 4), lambda e: ar(64 + 4 * e, 4),
                lambda e: blk(a, ar(64 + 4 * e, 4), SB1 if e < 8 else SB0, e % 8, SC), 16, pre_tickets=tB, ramp=12,
                side=[g[0] for g in SU.deferred_store_groups(sys.modules[__name__])], side_from=99, side_n=1, extra0=(vr(G_CS, 4), vr(G_CS + 4, 4), lambda: a.wait_vm(tq[1])),
                hooks={3: h_probe, 10: h_cs})
    a("v_mul_f32 v%d, %s, v%d" % (G_T, fl(QSCALE), V_RSTD))
    for e in range(16):
        a("v_mul_f32 v%d, v%d, v%d" % (G_ACC + e, G_T, G_ACC + e))
    pack8(a, G_Q, G_ACC)
    pack8(a, G_Q + 4, G_ACC + 8)
    if cfg.get("store_q"):
        a("s_lshl_b32 s17, s%d, 15" % S_RT)
        a("s_lshl_b32 s18, s%d, 11" % S_NT)
        a("s_add_u32 s17, s17, s18")
        a("s_add_u32 s17, s17, 0x%x" % OFF_Q)
        a("buffer_store_dwordx4 v[%d:%d], v%d, s[4:7], s17 offen" % (G_Q, G_Q + 3, V_L16))
        a("buffer_store_dwordx4 v[%d:%d], v%d, s[4:7], s17 offen offset:1024" % (G_Q + 4, G_Q + 7, V_L16))
    stamp(a, cfg, 11)


A_C = [24, 40]
A_O = [56, 72]
A_S = [88, 104]
A_P = [120, 124, 128, 132]
A_KF = [136, 140]
A_VF = [[144, 148], [152, 156]]
A_VK, A_VV, A_VINC = 160, 161, 162
A_T = 164
LDS_V = 65536
LDS_ONES = 131072
LDS_ATT_FLAG = LDS_ONES + 5120
UNR = 4


EARLY = 4
W2ORD = [7 * mm + tl for tl in range(7) for mm in range(4)]
W2POS = {k: p for p, k in enumerate(W2ORD)}


def w2load(a, idx, s0, s1):
    i = W2ORD[idx >> 1]
    blk(a, w2reg(idx & 1, i), s1 if idx & 1 else s0, i)


def w2reg(s, i):
    idx = 2 * W2POS[i] + s
    if idx < 32:
        return ar(128 + 4 * idx, 4)
    if idx < 46:
        return vr(W2V + 4 * (idx - 32), 4)
    if idx < 54:
        return vr(136 + 4 * (idx - 46), 4)
    return vr(190 + 4 * (idx - 54), 4)


SLOT13 = [0, 2, 1, 3, 0, 2, 1]


def dma13(a, i, part=None):
    slot = SLOT13[i]
    for hh in range(2):
        a("s_add_u32 m0, s%d, %d" % (S_WL, slot * 32768 + hh * 4096))
        a("s_add_u32 s29, s%d, %d" % (S_W13, i * 32768 + hh * 4096))
        for q in range(4):
            a("buffer_load_dwordx4 v%d, s[4:7], s29 offen offset:%d sc1 lds" % (V_L16, q * 1024))


def dma_lines(i):
    b = Asm()
    dma13(b, i)
    return [l.strip() for l in b.lines]


def phase_att(a, cfg):
    Q = [G_Q, G_Q + 4]
    SA0, SA1, SW0, SW1 = 24, 25, 26, 27
    a("v_mov_b32 v%d, 0x3f803f80" % (A_T + 4))
    if cfg.get("zpad", 1):
        a("v_and_b32 v%d, 2, v0" % (A_T + 5))
        a("v_cmp_eq_u32 vcc, 0, v%d" % (A_T + 5))
        a("v_cndmask_b32 v%d, v%d, v%d, vcc" % (A_T + 4, V_ZERO, A_T + 4))
    for r in range(1, 4):
        a("v_mov_b32 v%d, v%d" % (A_T + 4 + r, A_T + 4))
    a("v_lshlrev_b32 v%d, 4, v0" % (A_T + 2))
    a("v_add_u32 v%d, %d, v%d" % (A_T + 2, LDS_ONES, A_T + 2))
    a("ds_write_b128 v%d, v[%d:%d]" % (A_T + 2, A_T + 4, A_T + 7))
    a("ds_write_b128 v%d, v[%d:%d] offset:1024" % (A_T + 2, A_T + 4, A_T + 7))
    a("v_and_b32 v%d, 15, v%d" % (A_T + 2, V_LANE))
    a("v_lshlrev_b32 v%d, 4, v%d" % (A_T + 2, A_T + 2))
    a("v_lshl_add_u32 v%d, v%d, 8, v%d" % (A_T + 2, V_H, A_T + 2))
    a("v_add_u32 v%d, %d, v%d" % (A_VV, LDS_V, A_T + 2))
    a("v_add_u32 v%d, -20, v%d" % (A_T + 3, V_R31))
    a("v_cmp_gt_u32 vcc, 8, v%d" % (A_T + 3))
    a("v_mov_b32 v%d, %d" % (A_T + 2, LDS_ONES))
    a("v_mov_b32 v%d, %d" % (A_T + 3, LDS_ONES + 64))
    a("v_cndmask_b32 v%d, v%d, v%d, vcc" % (A_T + 2, A_T + 2, A_T + 3))
    if cfg.get("zpad", 1):
        a("v_and_b32 v%d, 27, v%d" % (A_T + 3, V_R31))
        a("v_cmp_ne_u32 vcc, 16, v%d" % (A_T + 3))
        a("v_add_u32 v%d, 32, v%d" % (A_T + 3, A_T + 2))
        a("v_cndmask_b32 v%d, v%d, v%d, vcc" % (A_T + 2, A_T + 2, A_T + 3))
    a("v_cmp_le_u32 vcc, 16, v%d" % V_R31)
    a("v_mov_b32 v%d, %d" % (A_VINC, UNR * 1024))
    a("v_cndmask_b32 v%d, v%d, v%d, vcc" % (A_VV, A_VV, A_T + 2))
    a("v_cndmask_b32 v%d, v%d, v%d, vcc" % (A_VINC, A_VINC, V_ZERO))
    for t in range(2):
        n = A_T + 8 + t
        a("v_mov_b32 v%d, 0" % n)
        for r in range(4):
            a("v_dot2_f32_bf16 v%d, v%d, v%d, v%d" % (n, Q[t] + r, Q[t] + r, n))
    for t in range(2):
        xhalf_sum(a, A_T + 8 + t, A_T + 10)
    a_addr(a, SA0, SA1, OFF_WO, 32, 8)
    a("s_mul_i32 s%d, s%d, %d" % (S_W13, S_M, 7 * 32768))
    a("s_lshl_b32 s%d, s%d, 13" % (S_WL, S_W))
    a("s_add_u32 s%d, s%d, s%d" % (S_W13, S_W13, S_WL))
    a("s_add_u32 s%d, s%d, 0x%x" % (S_W13, S_W13, OFF_W13))
    a_addr(a, SW0, SW1, OFF_W2, 112, 28)
    a("s_lshl_b32 s20, s%d, 10" % S_W)
    a("s_add_u32 s21, s33, s20")
    a("s_add_u32 s22, s21, 0x10000")
    a("s_add_u32 s23, s20, %d" % LDS_V)
    a("s_mul_i32 s38, s%d, 0x2000" % S_LAYER)
    a("s_add_u32 s38, s38, 0x%x" % (OFF_FLAGS + FL_KV))
    a("s_and_b32 s17, s2, 7")
    a("s_lshl_b32 s17, s17, 10")
    a("s_add_u32 s38, s38, s17")
    a("s_lshl_b32 s58, s2, 2")
    a("s_add_u32 s58, s58, 0x%x" % OFF_FLW)
    a("s_or_b32 s17, s%d, s%d" % (S_W, S_LAYER))
    a("s_cmp_lg_u32 s17, 0")
    a("s_cselect_b32 s58, 0xf0000000, s58")
    a("s_and_b32 s59, s2, 7")
    a("s_lshl_b32 s59, s59, 10")
    a("s_add_u32 s59, s59, 0x%x" % OFF_FLW)
    a("v_lshlrev_b32 v%d, 10, v%d" % (A_T + 16, V_LANE))
    a("s_getreg_b32 s17, hwreg(HW_REG_XCC_ID)")
    a("s_and_b32 s17, s17, 7")
    a("s_lshl_b32 s17, s17, 1")
    a("v_or_b32 v%d, s17, v%d" % (A_T + 17, V_TAG))
    a("v_and_b32 v%d, 15, v%d" % (A_T + 18, V_LANE))
    a("v_lshlrev_b32 v%d, 5, v%d" % (A_T + 18, A_T + 18))
    a("s_and_b32 s17, s2, 0x87")
    a("s_lshl_b32 s17, s17, 2")
    a("v_add_u32 v%d, s17, v%d" % (A_T + 18, A_T + 18))

    stamp(a, cfg, 1)
    a("s_cmp_lg_u32 s%d, 0" % S_W)
    a("s_cbranch_scc1 L_att_nopoll")
    poll(a, cfg, 38, V_L16, A_T + 12, wide=True, sleep=cfg.get("kv_sleep", 2))
    k2 = A_T + 13
    for d in ("row_shr:1", "row_shr:2", "row_shr:4", "row_shr:8"):
        a("v_max_f32_dpp v%d, v%d, v%d %s row_mask:0xf bank_mask:0xf" % (k2, k2, k2, d))
    a("v_max_f32_dpp v%d, v%d, v%d row_bcast:15 row_mask:0xa bank_mask:0xf" % (k2, k2, k2))
    a("v_max_f32_dpp v%d, v%d, v%d row_bcast:31 row_mask:0xc bank_mask:0xf" % (k2, k2, k2))
    a("v_mov_b32 v%d, %d" % (A_T + 12, LDS_ATT_FLAG + 16 - 63 * 4))
    a("v_add_u32 v%d, v%d, v%d" % (A_T + 12, V_L4, A_T + 12))
    a("s_mov_b32 exec_lo, 0")
    a("s_mov_b32 exec_hi, 0x80000000")
    a("ds_write_b32 v%d, v%d" % (A_T + 12, k2))
    a("s_mov_b64 exec, -1")
    a("s_waitcnt lgkmcnt(0)")
    a("L_att_nopoll:")
    a("s_waitcnt vmcnt(0)")
    a("s_barrier")
    a("s_mov_b64 exec, 0xff")
    a("buffer_store_dword v%d, v%d, s[4:7], s58 offen %s" % (A_T + 17, A_T + 16, SC))
    a("s_mov_b64 exec, -1")
    a("s_mov_b32 s%d, 0xf0000000" % SU.S_DST)
    stamp(a, cfg, 2)
    a("v_mov_b32 v%d, %d" % (A_T + 12, LDS_ATT_FLAG + 16))
    a("ds_read_b32 v%d, v%d" % (A_T + 1, A_T + 12))
    def kvdma(g):
        a("s_add_u32 m0, s20, %d" % (g * 4096))
        a("s_add_u32 s17, s21, %d" % (g * 4096))
        a("buffer_load_dwordx4 v%d, s[4:7], s17 offen %s lds" % (V_L16, SC))
        a("s_add_u32 m0, s23, %d" % (g * 4096))
        a("s_add_u32 s17, s22, %d" % (g * 4096))
        a("buffer_load_dwordx4 v%d, s[4:7], s17 offen %s lds" % (V_L16, SC))

    G1 = 6
    for g in range(G1):
        kvdma(g)
        if g == 3:
            t_g3 = a.vt()
            a("s_waitcnt lgkmcnt(0)")
            for t in range(2):
                n = A_T + 8 + t
                a("v_mul_f32 v%d, v%d, v%d" % (n, A_T + 1, n))
                a("v_sqrt_f32 v%d, v%d" % (n, n))
            for t in range(2):
                n = A_T + 8 + t
                a("v_mul_f32 v%d, %s, v%d" % (n, fl(-1.001), n))
            a("v_min_f32 v%d, v%d, v%d" % (A_T + 10, A_T + 8, A_T + 9))
            a("v_mov_b32 v%d, %s" % (A_T + 11, fl(-cfg.get("bound_t", BOUND_T))))
            a("v_cmp_nge_f32 vcc, v%d, v%d" % (A_T + 10, A_T + 11))
            a("s_lshl_b32 s19, s%d, 2" % S_W)
            a("s_add_u32 s19, s19, %d" % LDS_ATT_FLAG)
            a("v_mov_b32 v%d, s19" % (A_T + 12))
            a("s_cmp_lg_u64 vcc, 0")
            a("s_cselect_b32 s18, 1, 0")
            a("v_mov_b32 v%d, s18" % (A_T + 11))
            a("ds_write_b32 v%d, v%d" % (A_T + 12, A_T + 11))
            for t in range(2):
                for r in range(16):
                    a("v_mov_b32 v%d, v%d" % (A_C[t] + r, A_T + 8 + t))
    stamp(a, cfg, 3)
    a.wait_vm(t_g3)
    a("s_waitcnt lgkmcnt(0)")
    a("s_barrier")
    stamp(a, cfg, 4)
    a("v_mov_b32 v%d, %d" % (A_T + 12, LDS_ATT_FLAG))
    a("ds_read_b128 v[%d:%d], v%d" % (A_T + 4, A_T + 7, A_T + 12))
    a("ds_read_b128 v[%d:%d], v%d" % (A_KF[0], A_KF[0] + 3, V_L16))
    a("ds_read_b128 v[%d:%d], v%d" % (A_VF[0][0], A_VF[0][0] + 3, A_VV))
    a("ds_read_b128 v[%d:%d], v%d offset:512" % (A_VF[0][1], A_VF[0][1] + 3, A_VV))
    a("ds_read_b128 v[%d:%d], v%d offset:1024" % (A_KF[1], A_KF[1] + 3, V_L16))
    a("s_waitcnt lgkmcnt(4)")
    a("v_or_b32 v%d, v%d, v%d" % (A_T + 4, A_T + 4, A_T + 5))
    a("v_or3_b32 v%d, v%d, v%d, v%d" % (A_T + 4, A_T + 4, A_T + 6, A_T + 7))
    a("v_readfirstlane_b32 s18, v%d" % (A_T + 4))
    a("s_cmp_eq_u32 s18, 0")
    a("s_cbranch_scc1 L_att_fast")
    keep = a.dma_issued, a.vm_issued
    for g in range(G1, 16):
        kvdma(g)
    a.dma_issued, a.vm_issued = keep
    a("s_waitcnt vmcnt(0)")
    a("s_barrier")
    a("v_mov_b32 v%d, 0xff800000" % (A_T + 8))
    a("v_mov_b32 v%d, 0xff800000" % (A_T + 9))
    a("v_mov_b32 v%d, v%d" % (A_T + 12, V_L16))
    a("s_mov_b32 s19, 64")
    a("L_att_pre:")
    a("ds_read_b128 v[%d:%d], v%d" % (A_P[0], A_P[0] + 3, A_T + 12))
    a("v_add_u32 v%d, 1024, v%d" % (A_T + 12, A_T + 12))
    a("s_waitcnt lgkmcnt(0)")
    for t in range(2):
        mf(a, A_S[t], vr(A_P[0], 4), vr(Q[t], 4), "0")
    for t in range(2):
        for r in range(0, 16, 2):
            a("v_max3_f32 v%d, v%d, v%d, v%d" % (A_T + 8 + t, A_S[t] + r, A_S[t] + r + 1, A_T + 8 + t))
    a("s_sub_u32 s19, s19, 1")
    a("s_cmp_lg_u32 s19, 0")
    a("s_cbranch_scc1 L_att_pre")
    for t in range(2):
        n = A_T + 8 + t
        a("v_mov_b32 v%d, v%d" % (A_T + 10, n))
        a("v_permlane32_swap_b32 v%d, v%d" % (n, A_T + 10))
        a("v_max_f32 v%d, v%d, v%d" % (n, n, A_T + 10))
        a("v_sub_f32 v%d, 0, v%d" % (n, n))
        for r in range(16):
            a("v_mov_b32 v%d, v%d" % (A_C[t] + r, n))
    a("L_att_fast:")
    a("s_waitcnt lgkmcnt(0)")

    def m4(d, x, y, c):
        mf(a, d, vr(x, 4), vr(y, 4), vr(c, 16))

    def ex(r):
        a("v_exp_f32 v%d, v%d" % (r, r))

    def cv(d, s):
        a("v_cvt_pk_bf16_f32 v%d, v%d, v%d" % (d, s, s + 1))

    m4(A_S[0], A_KF[0], Q[0], A_C[0])
    a("s_nop 7")

    def lines_of(fn):
        b = Asm()
        fn(b)
        return [l.strip() for l in b.lines]

    def groups(lines):
        out, cur = [], []
        for x in lines:
            cur.append(x)
            if x.startswith("buffer_"):
                out.append(cur)
                cur = []
        assert not cur
        return out

    def kvl(g):
        return ["s_add_u32 m0, s20, %d" % (g * 4096), "s_add_u32 s17, s21, %d" % (g * 4096),
                "buffer_load_dwordx4 v%d, s[4:7], s17 offen %s lds" % (V_L16, SC),
                "s_add_u32 m0, s23, %d" % (g * 4096), "s_add_u32 s17, s22, %d" % (g * 4096),
                "buffer_load_dwordx4 v%d, s[4:7], s17 offen %s lds" % (V_L16, SC)]

    q_kv = []
    for g in range(G1, 16):
        q_kv += [(x, g) for x in groups(kvl(g))]
    q_w = []
    for i in range(8):
        q_w += groups(lines_of(lambda b: blk(b, ar(4 * i, 4), SA0, i)))
        q_w += groups(lines_of(lambda b: blk(b, ar(32 + 4 * i, 4), SA1, i)))
    for idx in range(46):
        q_w += groups(lines_of(lambda b: w2load(b, idx, SW0, SW1)))
    q_t = [["s_add_u32 s17, s49, %d" % (q * 4096), "buffer_load_dword v%d, v%d, s[4:7], s17 offen sc1" % (A_T + 3, A_T + 2)] for q in range(5)]
    if not cfg.get("touch13", 1):
        q_t = []
    q_d = groups(dma_lines(0) + dma_lines(1))
    a("s_mul_i32 s49, s%d, %d" % (S_M, 7 * 32768))
    a("s_and_b32 s18, s%d, 1" % S_RG)
    a("s_mul_i32 s18, s18, %d" % 81920)
    a("s_add_u32 s49, s49, s18")
    a("s_mul_i32 s18, s%d, %d" % (S_W, 20480))
    a("s_add_u32 s49, s49, s18")
    a("s_add_u32 s49, s49, 0x%x" % (OFF_W13 + 65536))
    a("v_lshlrev_b32 v%d, 6, v%d" % (A_T + 2, V_LANE))
    tg = {}
    U_PROBE, U_CHK = cfg.get("u_probe", 21), cfg.get("u_chk", 24)
    PB = A_T + 12
    def slot(u):
        grp, g = None, None
        if q_kv:
            grp, g = q_kv.pop(0)
        elif u == U_PROBE:
            a("buffer_load_dwordx4 v[%d:%d], v%d, s[4:7], s59 offen %s" % (PB, PB + 3, V_L16, SC))
            tg["probe"] = a.vt()
        elif u == U_CHK:
            assert not q_kv
            a("s_waitcnt vmcnt(0)")
            a("L_att_wchk:")
            for r in range(4):
                a("v_and_b32 v%d, -15, v%d" % (PB + r, PB + r))
            a("v_cmp_ne_u32 vcc, v%d, v%d" % (V_TAG, PB))
            for r in range(1, 4):
                a("v_cmp_ne_u32 s[18:19], v%d, v%d" % (V_TAG, PB + r))
                a("s_or_b64 vcc, vcc, s[18:19]")
            a("s_cmp_eq_u64 vcc, 0")
            a("s_cbranch_scc1 L_att_wok")
            if cfg.get("spin_limit"):
                a("s_sub_u32 s46, s46, 1")
                a("s_cbranch_scc1 L_att_wok")
            keep = a.vm_issued
            a("s_sleep 4")
            a("buffer_load_dwordx4 v[%d:%d], v%d, s[4:7], s59 offen %s" % (PB, PB + 3, V_L16, SC))
            a("s_waitcnt vmcnt(0)")
            a("s_branch L_att_wchk")
            a.vm_issued = keep
            a("L_att_wok:")
            a("buffer_load_dword v%d, v%d, s[4:7], s59 offen %s" % (PB, A_T + 18, SC))
            tg["grp"] = a.vt()
        elif u == U_CHK + 8:
            a.wait_vm(tg["grp"])
            a("v_cmp_ne_u32 vcc, v%d, v%d" % (A_T + 17, PB))
            a("s_cmp_eq_u64 vcc, 0")
            a("s_cselect_b32 s%d, %d, 0" % (S_LOC, 0 if cfg.get("force_remote") else 1))
        elif u < U_CHK:
            pass
        elif q_t and u >= cfg.get("t_from", 100) and (u - cfg.get("t_from", 100)) % cfg.get("t_every", 4) == 1:
            grp = q_t.pop(0)
        elif u >= 68 and q_d:
            grp = q_d.pop(0)
        elif q_w:
            grp = q_w.pop(0)
        if grp:
            for x in grp:
                a(x)
            if g is not None:
                tg[g] = a.vt()

    NU = 128
    BAR = {16: None, 36: None}
    for u in range(NU):
        j, t = u >> 1, u & 1
        nj, nt = (u + 1) >> 1, (u + 1) & 1
        pj, pt = (u - 1) >> 1, (u - 1) & 1
        jj = j % UNR
        sb, nsb = A_S[u % 2], A_S[(u + 1) % 2]
        plo, phi = A_P[(u % 2) * 2], A_P[(u % 2) * 2 + 1]
        pphi = A_P[((u - 1) % 2) * 2 + 1]
        if u + 1 < NU:
            m4(nsb, A_KF[nj % 2], Q[nt], A_C[nt])
        if t == 0 and j + 2 < 64:
            a("ds_read_b128 v[%d:%d], v%d offset:%d" % (A_KF[j % 2], A_KF[j % 2] + 3, V_L16, (j + 2) * 1024))
        if t == 1 and u > U_CHK and cfg.get('slot3', 0):
            slot(u)
        for r in range(0, 4):
            ex(sb + r)
        if u > 0:
            m4(A_O[pt], A_VF[pj % 2][1], pphi, A_O[pt])
        if t == 0 and j + 1 < 64:
            off = (jj + 1) * 1024
            a("ds_read_b128 v[%d:%d], v%d offset:%d" % (A_VF[(j + 1) % 2][0], A_VF[(j + 1) % 2][0] + 3, A_VV, off))
            a("ds_read_b128 v[%d:%d], v%d offset:%d" % (A_VF[(j + 1) % 2][1], A_VF[(j + 1) % 2][1] + 3, A_VV, off + 512))
        if t == 1:
            slot(u)
        for r in range(4, 9):
            ex(sb + r)
        for r in range(0, 4):
            cv(plo + r, sb + 2 * r)
        for r in range(9, 12):
            ex(sb + r)
        m4(A_O[t], A_VF[j % 2][0], plo, A_O[t]) if u > 1 else mf(a, A_O[t], vr(A_VF[j % 2][0], 4), vr(plo, 4), "0")
        if t == 1:
            a("s_waitcnt lgkmcnt(0)")
            if (j + 3) in BAR:
                g = BAR[j + 3]
                if g is not None:
                    a.wait_vm(tg[g])
                a("s_barrier")
                if j + 3 == 16:
                    stamp(a, cfg, 6)
        else:
            slot(u)
        for r in range(12, 16):
            ex(sb + r)
        if t == 1 and jj == UNR - 1:
            a("v_add_u32 v%d, v%d, v%d" % (A_VV, A_VINC, A_VV))
        for r in range(4, 8):
            cv(phi + r - 4, sb + 2 * r)
    assert not (q_kv or q_w or q_t or q_d), (len(q_kv), len(q_w), len(q_t), len(q_d))
    units = [(63, 1)]
    U = 128
    a("L_att_done:")
    DUAL[0] = bool(cfg.get("dual", 1))
    stamp(a, cfg, 7)
    lj, lt = units[-1]
    m4(A_O[lt], A_VF[lj % 2][1], A_P[((U - 1) % 2) * 2 + 1], A_O[lt])
    layer_off(a, 34, OFF_O, X_STRIDE)
    a("s_lshl_b32 s18, s%d, 15" % S_RT)
    a("s_add_u32 s34, s34, s18")
    a("s_lshl_b32 s18, s%d, 11" % S_NT)
    a("s_add_u32 s34, s34, s18")
    for t in range(2):
        a("v_rcp_f32 v%d, v%d" % (A_T, A_O[t] + 8))
        for r in range(8):
            a("v_mul_f32 v%d, v%d, v%d" % (A_O[t] + r, A_T, A_O[t] + r))
        pack8(a, A_P[t], A_O[t])
        st4(a, A_P[t], V_L16, 34, t * 1024)
    flag_addr(a, S_FO, FL_O, S_RB, 7, S_HQ)
    publish(a, S_FO, [(34, 2048, 0)])
    stamp(a, cfg, 8)


def phase_wo(a, cfg):
    SB0, SB1, SX = 26, 27, 28
    a("s_barrier")
    if not cfg.get("pf_att", 1):
        for i in range(8):
            blk(a, ar(4 * i, 4), 24, i)
            blk(a, ar(32 + 4 * i, 4), 25, i)
    b = Asm()
    dma13(b, 2)
    b("s_mul_i32 s29, s%d, %d" % (S_M, 7 * 1024))
    b("s_lshl_b32 s17, s%d, 11" % S_W)
    b("s_add_u32 s29, s29, s17")
    b("s_add_u32 m0, s17, %d" % LDS_CS)
    b("s_add_u32 s29, s29, 0x%x" % OFF_CSX)
    b("buffer_load_dwordx4 v%d, s[4:7], s29 offen sc1 lds" % V_L16)
    b("buffer_load_dwordx4 v%d, s[4:7], s29 offen offset:1024 sc1 lds" % V_L16)
    wside = [l.strip() for l in b.lines]
    wside2 = []
    if cfg.get("mix", 1):
        wside2, wside = wside, []
    elif cfg.get("t2_pre", 1):
        for x in wside:
            a(x)
        wside = []
    layer_off(a, SX, OFF_O, X_STRIDE)
    b_addr(a, SB0, SB1, SX, 32, 8)
    reduce_addr(a, LDS_R1)
    out_addr(a, 1)
    flag_addr(a, 38, FL_O, S_RB, 7)
    a("s_lshl_b32 s17, s%d, 5" % S_W)
    a("s_add_u32 s38, s38, s17")
    a("v_and_b32 v%d, 28, v%d" % (G_T + 5, V_L4))
    flag_addr(a, S_FX1, FL_X1, S_RG, 8, S_M)
    stamp(a, cfg, 8)
    poll(a, cfg, 38, G_T + 5, G_T + 4)
    stamp(a, cfg, 9)
    gemm64_core(a, cfg, 8, lambda i: ar(4 * i, 4), lambda i: ar(32 + 4 * i, 4), lambda e: ar(64 + 4 * e, 4),
                lambda e: blk(a, ar(64 + 4 * e, 4), SB1 if e < 8 else SB0, e % 8, SC), 16, ramp=cfg.get("ramp1", 8), resid=True,
                side=wside2, side_from=cfg.get("wo_side", 5), side_n=1)
    res_epilogue(a, cfg, 1, None)
    stamp(a, cfg, 10)
    publish(a, S_FX1, [(34, 2048, 0), (35, 256, 0)], between=wside)
    stamp(a, cfg, 11)


F_ACC = [24, 40, 56, 72]
NACC = 4
F_W = 88
F_CS = 120
F_H = 128
F_ST = 136
F_T = 168
F_LA = [184, 185]
F_NMU, F_C1, F_RS2, F_CSA, F_LG = 186, 187, 188, 189, 198
F_TA = 172


def phase_ffn1(a, cfg):
    SX, SH = 24, 27
    G3 = cfg.get("g0", 2) == 3
    if G3:
        a("s_mul_i32 s17, s%d, 6144" % S_W)
        a("s_sub_u32 s29, s%d, s%d" % (S_W13, S_WL))
        a("s_add_u32 s29, s29, s17")
        a("s_add_u32 m0, s17, %d" % LDS_E)
        a("s_add_u32 s29, s29, %d" % (4 * 32768))
        for q in range(4):
            a("buffer_load_dwordx4 v%d, s[4:7], s29 offen offset:%d sc1 lds" % (V_L16, q * 1024))
        a("s_add_u32 m0, s17, %d" % (LDS_E + 4096))
        a("s_add_u32 s29, s29, 4096")
        for q in range(2):
            a("buffer_load_dwordx4 v%d, s[4:7], s29 offen offset:%d sc1 lds" % (V_L16, q * 1024))
        a("s_lshl_b32 s28, s%d, 11" % S_W)
        a("s_sub_u32 s33, s%d, s%d" % (S_W13, S_WL))
        a("s_add_u32 s33, s33, s28")
        a("s_add_u32 s33, s33, %d" % (4 * 32768 + 24 * 1024))
    a("s_lshl_b32 s30, s%d, 2" % S_RG)
    a("s_add_u32 s30, s30, s%d" % S_W)
    layer_off(a, SX, OFF_X, X_STRIDE, 2, 1)
    a("s_lshl_b32 s17, s30, 15")
    a("s_add_u32 s%d, s%d, s17" % (SX, SX))
    a("s_add_u32 s25, s%d, %d" % (SX, 28 * 1024))
    layer_off(a, 26, OFF_STAT, STAT_STRIDE, 2, 1)
    a("s_lshl_b32 s18, s30, 12")
    a("s_add_u32 s26, s26, s18")
    layer_off(a, SH, OFF_H, H_STRIDE)
    a("s_mul_i32 s17, s30, %d" % (112 * 1024))
    a("s_add_u32 s%d, s%d, s17" % (SH, SH))
    a("s_mul_i32 s17, s%d, %d" % (S_M, 7 * 1024))
    a("s_add_u32 s%d, s%d, s17" % (SH, SH))
    a("v_mov_b32 v%d, v%d" % (F_LA[0], V_L16))
    a("v_add_u32 v%d, 65536, v%d" % (F_LA[1], V_L16))
    a("v_add_u32 v%d, %d, v%d" % (F_CSA, LDS_E, V_L16))
    a("v_and_b32 v%d, 0x380, v%d" % (F_TA, V_L128))
    a("v_add_u32 v%d, 4096, v%d" % (F_TA + 1, F_TA))
    a_addr(a, 53, 54, OFF_W2, 112, 28)
    flag_addr(a, 38, FL_X1, S_RG, 8)
    a("s_lshr_b32 s17, s%d, 1" % S_W)
    a("s_lshl_b32 s17, s17, 7")
    a("s_add_u32 s38, s38, s17")
    a("s_and_b32 s17, s%d, 1" % S_W)
    a("s_lshl_b32 s17, s17, 2")
    a("s_add_u32 s38, s38, s17")
    lane_pat(a, F_T + 2, 15, 0, 3)
    flag_addr(a, S_FH, FL_H, S_RG, 9, S_M, per_layer=0x2000)
    stamp(a, cfg, 1)
    a("s_barrier")
    if not cfg.get("mix", 1):
        dma13(a, 3)
    poll(a, cfg, 38, F_T + 2, F_T)
    stamp(a, cfg, 2)
    tX = {}

    def xload(i):
        if i < 28:
            blk(a, ar(4 * i, 4), SX, i, SC)
        else:
            blk(a, ar(4 * i, 4), 25, i - 28, SC)
        tX[i] = a.vt()

    XW = cfg.get("xwin", 14)
    for i in range(XW):
        xload(i)

    def wread(tile, ks, ring):
        slot = SLOT13[tile]
        if ks == 32:
            a("ds_read_b128 v[%d:%d], v%d offset:%d" % (F_W + 4 * ring, F_W + 4 * ring + 3, F_CSA, LDS_CS - LDS_E + tile * 1024))
            return
        if G3 and tile == 4:
            a("ds_read_b128 v[%d:%d], v%d offset:%d" % (F_W + 4 * ring, F_W + 4 * ring + 3, F_CSA if ks < 24 else F_LA[0], (ks % 24) * 1024))
            return
        a("ds_read_b128 v[%d:%d], v%d offset:%d" % (F_W + 4 * ring, F_W + 4 * ring + 3, F_LA[slot >> 1], (slot & 1) * 32768 + ks * 1024))

    def epi(tile):
        acc, cs = F_ACC[tile % NACC], F_CS
        hp = F_H + 4 * (tile % 2)
        out = []
        for e in range(8):
            out.append("v_fma_f32 v%d, v%d, v%d, v%d" % (F_T + 8 + e, F_C1, acc + e, F_LG))
        for e in range(8):
            out.append("v_exp_f32 v%d, v%d" % (F_T + 8 + e, F_T + 8 + e))
            out.append("v_mul_f32 v%d, v%d, v%d" % (acc + e, acc + e, acc + 8 + e))
            if e:
                out.append("v_add_f32 v%d, v%d, v%d" % (F_T + 7 + e, F_RS2, F_T + 7 + e))
        out.append("v_add_f32 v%d, v%d, v%d" % (F_T + 15, F_RS2, F_T + 15))
        for e in range(8):
            out.append("v_rcp_f32 v%d, v%d" % (F_T + 8 + e, F_T + 8 + e))
            if e:
                out.append("v_mul_f32 v%d, v%d, v%d" % (acc + e - 1, F_T + 7 + e, acc + e - 1))
        out.append("v_mul_f32 v%d, v%d, v%d" % (acc + 7, F_T + 15, acc + 7))
        for i in range(4):
            out.append("v_cvt_pk_bf16_f32 v%d, v%d, v%d" % (hp + i, acc + 2 * i, acc + 2 * i + 1))
        out.append("buffer_store_dwordx4 v[%d:%d], v%d, s[4:7], s%d offen offset:%d" % (hp, hp + 3, V_OFF[tile // 4], SH, (tile % 4) * 1024))
        if DBL[0]:
            out.append("buffer_store_dwordx4 v[%d:%d], v%d, s[4:7], s%d offen offset:%d" % (hp, hp + 3, V_OFF[tile // 4], SH, (tile % 4) * 1024))
        return out

    G0 = cfg.get("g0", 2)
    steps = []
    for ks in range(33):
        for tl in range(G0):
            steps.append((tl, ks))
    for tile in range(G0, 7):
        for ks in range(33):
            steps.append((tile, ks))
    N = len(steps)
    PF = cfg.get('pf', 6)
    lt = {}
    first_of, last_of = {}, {}
    for n, (tile, ks) in enumerate(steps):
        first_of.setdefault(tile, n)
        last_of[tile] = n
    dma_q = [(3, x) for x in dma_lines(3)] if cfg.get('mix', 1) else []
    fence_t, fence_n, fenced = {}, {}, set()

    def do_read(n):
        tile, ks = steps[n]
        if G3:
            ft = 5 if (tile, ks) == (4, 24) else (6 if (tile, ks) == (6, 0) else None)
            if ft:
                assert ft in fence_t and not any(q[0] <= ft for q in dma_q), ft
                a.wait_vm(fence_t[ft])
                a("s_barrier")
        elif n == first_of[tile] and tile >= (3 if cfg.get('mix', 1) else 4) and tile not in fenced:
            assert tile in fence_t and not any(q[0] == tile for q in dma_q), tile
            a.wait_vm(fence_t[tile])
            a("s_barrier")
        wread(tile, ks, n % 8)
        lt[n] = a.lt()

    cs_t = 0
    for n in range(PF):
        do_read(n)
    pending = []
    nx = XW
    nst, st_t, st_n, early_done, rb_done = 0, {}, {}, False, False
    for n, (tile, ks) in enumerate(steps):
        if tile >= G0 and ks == 0:
            stamp(a, cfg, 1 + tile)
        if tile == 0 and ks < 32:
            a.wait_vm(tX[ks])
        if n % 2 == 0:
            a.wait_lg(lt[min(n + 1, N - 1)])
            lg_done = lt[min(n + 1, N - 1)]
        acc = F_ACC[tile % NACC]
        if ks == 0 and tile >= NACC:
            assert nst > tile - NACC, (tile, nst)
        mf(a, acc, vr(F_W + 4 * (n % 8), 4), ar(4 * ks, 4) if ks < 32 else vr(F_CS, 4), "0" if ks == 0 else vr(acc, 16))
        if (tile == 0 or (tile < G0 and cfg.get('xfast', 0))) and nx < 32:
            xload(nx)
            nx += 1
            if nx == 32:
                load_stats(a, F_ST, 26, F_T, SC)
                t_st = a.vt()
        if n + PF < N:
            do_read(n + PF)
        if n == last_of[G0 - 1] + 2:
            a("s_barrier")
            if G3:
                dma_q += [(4, "s_mov_b32 m0, s28"), (4, "s_nop 0"),
                          (4, "buffer_load_dwordx4 v%d, s[4:7], s33 offen sc1 lds" % V_L16),
                          (4, "buffer_load_dwordx4 v%d, s[4:7], s33 offen offset:1024 sc1 lds" % V_L16)]
                for tl in (5, 6):
                    dma_q += [(tl, x) for x in dma_lines(tl)]
                b = Asm()
                for idx in range(46, 56):
                    w2load(b, idx, 53, 54)
                dma_q += [(99, l.strip()) for l in b.lines]
            else:
                for tl in range(4, 4 + G0):
                    dma_q += [(tl, x) for x in dma_lines(tl)]
        for old in range(G0, 3):
            if n == last_of[old] + 2:
                a("s_barrier")
                dma_q += [(old + 4, x) for x in dma_lines(old + 4)]
                if old == 2:
                    b = Asm()
                    for idx in range(46, 56):
                        w2load(b, idx, 53, 54)
                    dma_q += [(99, l.strip()) for l in b.lines]
        dcost = 0
        if dma_q and ((n >= cfg.get("d3_from", 38) and n % cfg.get("d3_every", 3) == 0) if tile < G0 else n % cfg.get("dma_every", 3) == 0):
            while dma_q:
                tl, x = dma_q.pop(0)
                a(x)
                dcost += cfg.get("dma_cost", 8)
                if x.startswith("buffer_load"):
                    fence_t[tl] = a.vt()
                    fence_n[tl] = n
                    break
        if n == last_of[G0 - 1] - G0 - 2:
            a.wait_vm(t_st)
            finish_stats(a, F_ST, F_NMU, F_RS2)
            a("v_mul_f32 v%d, %s, v%d" % (F_C1, fl(-LOG2E), F_RS2))
            a("v_mov_b32 v%d, v%d" % (F_RS2, F_ST + 1))
            a("v_log_f32 v%d, v%d" % (F_LG, F_ST + 1))
            bextra(a, F_NMU, F_CS)
        for tl in range(0, 6):
            if n == max(last_of[tl], last_of[G0 - 1]) + 3:
                pending += epi(tl)
        if nst >= EARLY and not rb_done and n >= st_n[EARLY - 1] + 1:
            if cfg.get("h_wt", 6) < EARLY:
                readback(a, [(SH, 1024 * EARLY, 0)])
                a("s_mov_b64 exec, -1")
                dcost += 24
            rb_done = n
        for tl in range(cfg.get("h_touch", 0)):
            if tl in st_n and n == st_n[tl] + cfg.get("touch_lag", 24):
                a("buffer_load_dword v%d, v%d, s[4:7], s%d offen offset:%d sc1" % (V_P2, F_TA + (tl // 4), SH, (tl % 4) * 1024))
                a.vm_issued -= 0
                dcost += 8
        cost = dcost
        lim = cfg.get("epi_cost", 16)
        while pending:
            x = pending[0]
            if x == "CSWAIT":
                pending.pop(0)
                if cs_t > lg_done:
                    a.wait_lg(cs_t)
                    cost += 4
                continue
            cx = 8 if x.split()[0] in TRANS else (8 if x.startswith("buffer_") else 4)
            if cost + cx > lim:
                break
            pending.pop(0)
            if x.startswith("buffer_store") and not G3:
                ok = [t for t in (3, 4, 5, 6) if t in fence_n and t not in fenced and not any(q[0] == t for q in dma_q)
                      and fence_n[t] + cfg.get("fence_age", 20) <= n
                      and (99 not in fence_n or (not dma_q and fence_n[99] + cfg.get("fence_age", 20) <= n))]
                if ok:
                    a.wait_vm(fence_t[max(ok)])
                    a("s_barrier")
                    fenced.update(ok)
            if x.startswith("buffer_store") and nst == EARLY + 1:
                assert rb_done
                assert not dma_q
                a("s_waitcnt vmcnt(0)")
                a("s_mov_b64 exec, 1")
                emit_l(a, "buffer_store_dword v%d, v%d, s[4:7], s%d offen offset:%d" % (V_TAG, V_ZERO, S_FH, 0x100))
                a("s_mov_b64 exec, -1")
                early_done = True
            if x.startswith("buffer_store") and nst < cfg.get("h_wt", 6):
                a(x + " sc1")
            elif x.startswith("buffer_store"):
                emit_l(a, x)
            else:
                a(x)
            cost += cx
            if x.startswith("ds_read"):
                cs_t = a.lt()
            if x.startswith("buffer_store"):
                nst += 1
                st_t[nst - 1] = a.vt()
                st_n[nst - 1] = n
    assert early_done
    assert not dma_q
    stamp(a, cfg, 8)
    for x in pending + epi(6):
        if x == "CSWAIT":
            a.wait_lg(cs_t)
            continue
        if x.startswith("buffer_store"):
            emit_l(a, x)
        else:
            a(x)
    stamp(a, cfg, 9)
    h0 = max(EARLY, cfg.get("h_wt", 6))
    assert nst >= cfg.get("h_wt", 6)
    a("s_add_u32 s17, s%d, %d" % (SH, h0 * 1024))
    publish(a, S_FH, [(17, 1024 * (7 - h0), 0)])
    stamp(a, cfg, 10)


def phase_ffn2(a, cfg):
    SB0, SB1, SX = 26, 27, 28
    SW0, SW1 = 24, 25
    side = []
    if cfg.get("touchq", 0):
        a("s_lshl_b32 s49, s%d, 16" % S_HQ)
        a("s_and_b32 s18, s%d, 3" % S_RB)
        a("s_lshl_b32 s18, s18, 14")
        a("s_add_u32 s49, s49, s18")
        a("s_lshl_b32 s18, s%d, 12" % S_W)
        a("s_add_u32 s49, s49, s18")
        a("s_add_u32 s49, s49, 0x%x" % OFF_WQ)
        a("s_cmp_eq_u32 s%d, 1" % S_LAYER)
        a("s_cselect_b32 s49, 0xf0000000, s49")
        a("v_lshlrev_b32 v%d, 6, v%d" % (G_T + 2, V_LANE))
        side.append("buffer_load_dword v%d, v%d, s[4:7], s49 offen" % (G_T + 3, G_T + 2))
    layer_off(a, SX, OFF_H, H_STRIDE)
    b_addr(a, SB0, SB1, SX, 112, 28)
    reduce_addr(a, LDS_R1)
    out_addr(a, 2)
    flag_addr(a, 38, FL_H, S_RG, 9, per_layer=0x2000)
    a("s_lshl_b32 s17, s%d, 6" % S_W)
    a("s_add_u32 s38, s38, s17")
    a("s_and_b32 s17, s%d, 1" % S_RB)
    a("s_lshl_b32 s17, s17, 3")
    a("s_add_u32 s38, s38, s17")
    lane_pat(a, G_T + 6, 7, 0, 2)
    xin_flag_addr(a, 39, True, 1)
    stamp(a, cfg, 8)
    poll(a, cfg, 38, G_T + 6, G_T + 4, imm=0x100)
    stamp(a, cfg, 9)
    wb = cfg.get("wbl2", 0)
    R = 32

    def hreg(e):
        return ar(4 * (e % R), 4)

    early = [7 * mm + tl for tl in range(EARLY) for mm in range(4)]
    late = [7 * mm + tl for tl in range(EARLY, 7) for mm in range(4)]
    order = [(1, i) for i in early] + [(0, i) for i in early] + [(1, i) for i in late] + [(0, i) for i in late]
    tp = {}

    def probe():
        a("buffer_load_dword v%d, v%d, s[4:7], s38 offen %s" % (G_T + 5, G_T + 6, SC))
        tp[0] = a.vt()

    def check():
        a.wait_vm(tp[0])
        a("v_cmp_ne_u32 vcc, v%d, v%d" % (V_TAG, G_T + 5))
        a("s_cbranch_vccz L_ffn2_go")
        keep = a.vm_issued
        poll(a, cfg, 38, G_T + 6, G_T + 4)
        a.vm_issued = keep
        a("L_ffn2_go:")
        if wb:
            a("s_lshr_b32 s17, s2, %d" % (3 if wb == 1 else 6))
            a("s_or_b32 s17, s17, s%d" % S_W)
            a("s_xor_b32 s18, s%d, 1" % S_LAYER)
            a("s_or_b32 s17, s17, s18")
            a("s_cmp_lg_u32 s17, 0")
            a("s_cbranch_scc1 L_ffn2_nowb")
            a("buffer_wbl2 sc1")
            a("L_ffn2_nowb:")
        stamp(a, cfg, 3)

    pp = cfg.get("probe_at", 16)
    gemm64_core(a, cfg, 28, lambda i: w2reg(0, i), lambda i: w2reg(1, i), hreg,
                lambda e: blk(a, hreg(e), SB1 if order[e][0] else SB0, order[e][1], SC), cfg.get('win2', 18), order=order,
                gate=(2 * len(early), probe, check, pp, pp), side=side, side_from=cfg.get('w2_side', 6), side_n=1,
                side2=wq_lines(), side2_from=cfg.get('wq_from', 32), ramp=cfg.get('ramp2', 10), resid=True)
    res_epilogue(a, cfg, 2, "L_final")
    stamp(a, cfg, 10)
    publish(a, 39, [(34, 2048, 0), (35, 256, 0)])
    stamp(a, cfg, 11)


def final_store(a):
    a("v_permlane32_swap_b32 v%d, v%d" % (V_RES, V_RES + 2))
    a("v_permlane32_swap_b32 v%d, v%d" % (V_RES + 1, V_RES + 3))
    a("v_permlane32_swap_b32 v%d, v%d" % (V_RES + 4, V_RES + 6))
    a("v_permlane32_swap_b32 v%d, v%d" % (V_RES + 5, V_RES + 7))
    a("s_lshl_b32 s17, s%d, 15" % S_RT)
    a("s_lshl_b32 s18, s%d, 6" % S_NT)
    a("s_add_u32 s17, s17, s18")
    a("v_lshlrev_b32 v%d, 10, v%d" % (G_T + 2, V_R31))
    a("v_lshl_add_u32 v%d, v%d, 4, v%d" % (G_T + 2, V_H, G_T + 2))
    a("buffer_store_dwordx4 v[%d:%d], v%d, s[8:11], s17 offen" % (V_RES, V_RES + 3, G_T + 2))
    a("buffer_store_dwordx4 v[%d:%d], v%d, s[8:11], s17 offen offset:32" % (V_RES + 4, V_RES + 7, G_T + 2))


def st_begin(a, cfg):
    kern.stamp_init(a, cfg)


def st_end(a, cfg, k):
    if not cfg.get("stamps"):
        return
    stamp(a, cfg, NSTAMP - 1)
    a("s_memrealtime s[62:63]")
    a("s_waitcnt lgkmcnt(0)")
    a("s_mov_b32 s79, s62")
    a("s_mul_i32 s60, s3, 5\ns_add_u32 s60, s60, %d" % k)
    a("s_lshl_b32 s60, s60, 16")
    a("s_lshl_b32 s61, s2, 8")
    a("s_add_u32 s60, s60, s61")
    a("s_lshl_b32 s61, s12, 6")
    a("s_add_u32 s60, s60, s61")
    a("s_add_u32 s60, s60, 0x%x" % kern.OFF_STAMP)
    for i in range(16):
        a("v_writelane_b32 v199, s%d, %d" % (64 + i, i))
    a("s_mov_b32 exec_lo, 0xffff\ns_mov_b32 exec_hi, 0x0")
    a("buffer_store_dword v199, v%d, s[4:7], s60 offen" % V_L4)
    a("s_mov_b64 exec, -1")


def dbgt(a, cfg, k, last=False):
    if not cfg.get("dbgtime"):
        return
    L = a.newlabel("L_dt")
    a("s_cmp_lg_u32 s2, %d" % (cfg["dbgtime"] - 1))
    a("s_cbranch_scc1 %s" % L)
    a("s_memrealtime s[64:65]")
    a("s_memtime s[66:67]")
    a("s_mov_b32 s68, s98\ns_mov_b32 s69, s99\ns_mov_b32 s70, 256\ns_mov_b32 s71, 0x00020000")
    a("s_mul_i32 s72, s3, 20")
    a("s_waitcnt lgkmcnt(0)")
    a("s_sub_u32 s64, s64, s60")
    a("s_sub_u32 s66, s66, s62")
    a("v_mov_b32 v199, s64")
    a("buffer_store_dword v199, v%d, s[68:71], s72 offen offset:%d" % (V_ZERO, 4 + 4 * k))
    if last:
        a("v_mov_b32 v198, s66")
        a("buffer_store_dword v198, v%d, s[68:71], 0 offen offset:%d" % (V_ZERO, 4 * 13))
    a(L + ":")


KNAME = kern.NAME + "_kernel"


def build(cfg):
    rep = []
    DBL[0] = cfg.get("dbl", 0)
    TOUCH[0] = cfg.get("ptouch", 0)
    COMPACT[0] = cfg.get("compact", 1)
    DUAL[0] = False
    LSC[0] = cfg.get("lsc", "")
    RBW[0] = cfg.get("rbw", 0)
    SPLIT_DMA[0] = not cfg.get("mix", 1)
    global OFF_WKV
    if COMPACT[0]:
        OFF_WKV = SU.OFF_WKV = C_WKV
    a = Asm()
    a("s_load_dwordx16 s[80:95], s[0:1], 0")
    a("s_load_dwordx2 s[96:97], s[0:1], 64")
    a("s_load_dwordx2 s[98:99], s[0:1], 80")
    kern.common_prologue(a, True)
    a("v_mov_b32 v%d, 0" % V_ZERO)
    a("v_mov_b32 v199, 0")
    a("v_lshlrev_b32 v%d, 7, v%d" % (V_L128, V_LANE))
    a("v_lshlrev_b32 v%d, 2, v%d" % (V_L4, V_LANE))
    a("s_lshr_b32 s17, s%d, 1" % S_W)
    a("s_and_b32 s18, s%d, 1" % S_W)
    a("s_lshl_b32 s%d, s%d, 1" % (S_NT, S_HQ))
    a("s_add_u32 s%d, s%d, s17" % (S_NT, S_NT))
    a("s_lshl_b32 s%d, s%d, 1" % (S_RT, S_RB))
    a("s_add_u32 s%d, s%d, s18" % (S_RT, S_RT))
    a("s_mov_b32 s%d, 0" % S_LAYER)
    if cfg.get("spin_limit"):
        a("s_mov_b32 s46, %d" % cfg["spin_limit"])
    if cfg.get("dbgtime"):
        a("s_memrealtime s[60:61]")
        a("s_memtime s[62:63]")
        a("s_waitcnt lgkmcnt(0)")
    st_begin(a, cfg)
    SU.startup(a, cfg, sys.modules[__name__])
    dbgt(a, cfg, 0)
    a_addr(a, S_Q0, S_Q1, OFF_WQ, 32, 8)
    a("s_lshl_b32 s%d, s%d, 13" % (S_KVW, S_W))
    a("s_add_u32 s%d, s%d, 0x%x" % (S_KVW, S_KVW, OFF_WKV))
    a("s_and_b32 s17, s2, 7")
    a("s_lshl_b32 s17, s17, 15")
    a("s_add_u32 s%d, s%d, s17" % (S_KVW, S_KVW))
    a("s_cmp_ge_u32 s%d, 4" % S_HQ)
    a("s_cselect_b32 s%d, s%d, s%d" % (S_KVW, S_Q0, S_KVW))
    st_end(a, cfg, 0)
    a("L_layer:")
    for k, ph in enumerate((phase_qkv, phase_att, phase_wo, phase_ffn1, phase_ffn2)):
        st_begin(a, cfg)
        ph(a, cfg)
        st_end(a, cfg, k + 1)
        dbgt(a, cfg, k + 1)
    a("s_mov_b32 s%d, 1" % S_LAYER)
    a("s_branch L_layer")
    a("L_final:")
    final_store(a)
    st_end(a, cfg, 5)
    dbgt(a, cfg, 5, True)
    a("L_exit:")
    a("s_endpgm")
    main_lines, _ = fix_hazards_fast(kern.uniq(a.lines, "main"), rep)

    pf = cfg.get("pfk", 0)
    if pf:
        b = Asm()
        b("s_cmp_ge_u32 s2, 256")
        b("s_cbranch_scc1 L_pf_end")
        b("s_load_dwordx16 s[16:31], s[0:1], 0")
        b("s_load_dwordx2 s[32:33], s[0:1], 64")
        b("s_getpc_b64 s[4:5]")
        b("L_pf_pc:")
        b("s_add_u32 s4, s4, L_code_begin-L_pf_pc")
        b("s_addc_u32 s5, s5, -1")
        b("s_lshr_b32 s6, s2, 3")
        b("s_and_b32 s7, s2, 7")
        b("s_lshl_b32 s8, s6, 11")
        b("v_lshlrev_b32 v1, 3, v0")
        b("v_add_u32 v1, s8, v1")
        b("v_min_u32 v1, L_code_end-L_code_begin-8, v1")
        b("global_load_dwordx2 v[2:3], v1, s[4:5]")
        if pf >= 2:
            b("v_lshlrev_b32 v1, 6, v0")
            b("s_lshl_b32 s8, s6, 14")
            b("v_add_u32 v4, s8, v1")
            b("s_lshl_b32 s9, s7, 18")
            b("s_lshl_b32 s10, s6, 13")
            b("s_add_u32 s9, s9, s10")
            b("v_lshlrev_b32 v5, 5, v0")
            b("v_add_u32 v5, s9, v5")
            b("s_mul_i32 s11, s2, 7168")
            b("v_mul_u32_u24 v6, 28, v0")
            b("v_add_u32 v6, s11, v6")
            b("s_lshl_b32 s11, s2, 11")
            b("v_lshlrev_b32 v7, 3, v0")
            b("v_add_u32 v7, s11, v7")
            b("s_waitcnt lgkmcnt(0)")
            b("global_load_dword v8, v4, s[18:19]")
            b("global_load_dword v9, v5, s[16:17]")
            b("global_load_dword v10, v1, s[20:21]")
            b("global_load_dword v11, v1, s[22:23]")
            b("global_load_dword v12, v6, s[28:29]")
            b("global_load_dword v13, v6, s[30:31]")
            b("global_load_dword v14, v6, s[32:33]")
            b("global_load_dword v15, v7, s[24:25]")
        b("L_pf_end:")
        b("s_endpgm")
        pfl, _ = fix_hazards_fast(["L_code_begin:", "L_code_end:"] + b.lines, rep)
        main_lines2 = [".p2align 8", "pf_kernel:"] + pfl[2:]
        s = "; @launch kernel=pf_kernel grid=(256,1,1) block=(256,1,1) lds=0\n"
        s += "; @launch kernel=%s grid=(256,1,1) block=(256,1,1) lds=%d\n" % (KNAME, 160 * 1024)
    else:
        main_lines2 = []
        s = "; @launch grid=(256,1,1) block=(256,1,1) lds=%d\n" % (160 * 1024)
    s += '.amdgcn_target "amdgcn-amd-amdhsa--gfx950"\n.text\n.globl %s\n.p2align 8\n.type %s,@function\n' % (KNAME, KNAME)
    s += "\n".join(["L_code_begin:", KNAME + ":"] + main_lines + ["L_code_end:"] + main_lines2) + "\n"
    s += '.section .rodata,"a"\n.p2align 6\n' + kernel_desc(KNAME, 512, 256, 102)
    if pf:
        s += ".p2align 6\n" + kernel_desc("pf_kernel", 16, 16, 40)
    return s, rep


if __name__ == "__main__":
    cfg = dict(code_prefetch=True)
    for kv in sys.argv[2:]:
        k, v = kv.split("=")
        cfg[k] = eval(v)
    s, rep = build(cfg)
    open(sys.argv[1], "w").write(s)
    print("auto nops:", sum(r[0] for r in rep), "sites", len(rep), "bytes of source", len(s))
    if cfg.get("verbose"):
        for r in rep:
            print(r)
```

```python
from asmlib import *
from layout import *
from kern import split3, stamp, S_W, S_RB, S_HQ, V_L16, V_LANE, V_R31, V_H

LROW = 192
LST = 96 * 1024
LCS = LST + 49152
PX, PWQ, PWK, PWV, PWO, PW1, PW3, PW2, PDBG = 80, 82, 84, 86, 88, 92, 94, 96, 98
D = 200
V_SO, V_SO2 = 232, 233
S_DST = 55
S_TASK = 56
FL_WQ = 0xE000
WKV_COPY = 0x8000


def startup(a, cfg, K):
    SC = K.SC
    RES = K.V_RES
    t0, t1, t2, t3, t4, t5 = 24, 25, 26, 27, 28, 29
    ONES, CS = 32, 33
    R = 36
    QR = 88
    u0, u1, u2, u3, u4, u5, u6 = 48, 49, 50, 51, 52, 53, 54
    a("s_mov_b32 s36, s%d" % PDBG)
    a("s_mov_b32 s37, s%d" % (PDBG + 1))
    a("s_mov_b32 s38, 256")
    a("s_mov_b32 s39, 0x00020000")
    a("s_or_b32 s17, s2, s%d" % S_W)
    a("s_cmp_lg_u32 s17, 0")
    a("s_cbranch_scc1 L_s_notag")
    a("s_memrealtime s[18:19]")
    a("s_waitcnt lgkmcnt(0)")
    a("s_lshl_b32 s18, s18, 4")
    a("s_or_b32 s18, s18, 1")
    a("v_mov_b32 v%d, s18" % t0)
    a("s_mov_b64 exec, 3")
    a("buffer_store_dword v%d, v%d, s[36:39], 0 offen %s" % (t0, K.V_L128, SC))
    a("s_mov_b64 exec, -1")
    a("L_s_notag:")
    a("s_getpc_b64 s[18:19]")
    a("L_s_pc:")
    a("s_add_u32 s18, s18, L_code_begin-L_s_pc")
    a("s_addc_u32 s19, s19, -1")
    a("s_lshr_b32 s17, s2, 3")
    a("s_lshl_b32 s17, s17, 11")
    a("v_lshlrev_b32 v%d, 3, v0" % t0)
    a("v_add_u32 v%d, s17, v%d" % (t0, t0))
    a("v_min_u32 v%d, L_code_end-L_code_begin-8, v%d" % (t0, t0))
    a("global_load_dwordx2 v[254:255], v%d, s[18:19]" % t0)
    a("s_mov_b32 s40, s%d" % PX)
    a("s_mov_b32 s41, s%d" % (PX + 1))
    a("s_mov_b32 s42, %d" % (2048 * 512 * 2))
    a("s_mov_b32 s43, 0x00020000")
    a("s_lshl_b32 s17, s%d, 15" % K.S_RT)
    a("s_lshl_b32 s18, s%d, 6" % K.S_NT)
    a("s_add_u32 s17, s17, s18")
    a("v_lshlrev_b32 v%d, 10, v%d" % (t0, V_R31))
    a("v_lshl_add_u32 v%d, v%d, 4, v%d" % (t0, V_H, t0))
    a("buffer_load_dwordx4 v[%d:%d], v%d, s[40:43], s17 offen" % (RES, RES + 3, t0))
    a("buffer_load_dwordx4 v[%d:%d], v%d, s[40:43], s17 offen offset:32" % (RES + 4, RES + 7, t0))
    a("s_bitcmp1_b32 s%d, 0" % S_HQ)
    a("s_cselect_b32 s40, s%d, s%d" % (PWV, PWK))
    a("s_cselect_b32 s41, s%d, s%d" % (PWV + 1, PWK + 1))
    a("s_mov_b32 s42, %d" % (512 * 16 * 2))
    a("s_lshl_b32 s17, s%d, 12" % S_W)
    for p in range(4):
        a("buffer_load_dwordx4 v[%d:%d], v%d, s[40:43], s17 offen offset:%d" % (QR + 4 * p, QR + 4 * p + 3, V_L16, 1024 * p))
    a("s_mov_b32 s40, s%d\ns_mov_b32 s41, s%d\ns_mov_b32 s42, %d" % (PWQ, PWQ + 1, 512 * 512 * 2))
    a("v_lshrrev_b32 v%d, 3, v%d" % (u0, V_LANE))
    a("v_and_b32 v%d, 7, v%d" % (u1, V_LANE))
    a("v_lshlrev_b32 v%d, 10, v%d" % (u2, u0))
    a("v_lshl_add_u32 v%d, v%d, 4, v%d" % (u2, u1, u2))
    a("s_lshl_b32 s17, s%d, 17" % S_W)
    a("s_lshl_b32 s18, s%d, 7" % S_HQ)
    a("s_add_u32 s17, s17, s18")
    a("v_mov_b32 v%d, v%d" % (u6, u2))
    for p in range(8):
        a("buffer_load_dwordx4 v[%d:%d], v%d, s[40:43], s17 offen" % (QR + 16 + 4 * p, QR + 16 + 4 * p + 3, u6))
        a("s_add_u32 s17, s17, 8192")
    a("s_mov_b32 s54, s17")
    a("s_and_b32 s18, s%d, 1" % S_W)
    a("s_lshl_b32 s59, s18, 7")
    a("buffer_load_dword v%d, v%d, s[36:39], s59 offen %s" % (K.V_TAG, K.V_ZERO, SC))
    a("s_mul_i32 s18, s%d, %d" % (S_W, 128 * LROW))
    a("v_mul_u32_u24 v%d, %d, v%d" % (u2, LROW, u0))
    a("v_lshl_add_u32 v%d, v%d, 4, v%d" % (u2, u1, u2))
    a("v_add_u32 v%d, s18, v%d" % (u2, u2))
    a("v_lshrrev_b32 v%d, 1, v%d" % (u0, V_LANE))
    a("v_and_b32 v%d, 1, v%d" % (u1, V_LANE))
    a("v_mul_u32_u24 v%d, %d, v%d" % (u3, LROW, u0))
    a("v_lshl_add_u32 v%d, v%d, 4, v%d" % (u3, u1, u3))
    a("v_add_u32 v%d, s18, v%d" % (u3, u3))
    a("v_and_b32 v%d, 15, v%d" % (u0, V_LANE))
    a("v_lshrrev_b32 v%d, 2, v%d" % (u1, u0))
    a("v_lshl_add_u32 v%d, v%d, 2, v%d" % (u1, V_H, u1))
    a("v_mul_u32_u24 v%d, %d, v%d" % (u4, LROW, u1))
    a("v_and_b32 v%d, 3, v%d" % (u0, u0))
    a("v_lshl_add_u32 v%d, v%d, 3, v%d" % (u4, u0, u4))
    a("v_add_u32 v%d, s18, v%d" % (u4, u4))
    a("v_bfe_u32 v%d, v%d, 4, 1" % (u0, V_LANE))
    a("v_lshl_add_u32 v%d, v%d, 5, v%d" % (u5, u0, u4))
    a("s_lshr_b32 s18, s%d, 1" % S_W)
    a("s_lshl_b32 s18, s18, 6")
    a("v_add_u32 v%d, s18, v%d" % (u0, u5))
    a("s_xor_b32 s18, s18, 64")
    a("v_add_u32 v%d, s18, v%d" % (u1, u5))

    def raw_stage(j0, j1, last, extra):
        for j in range(j0, j1):
            if (j - j0) % 2 == 0:
                a("s_waitcnt vmcnt(%d)" % (last - j - 1 + extra))
            if j < 4:
                a("ds_write_b128 v%d, v[%d:%d] offset:%d" % (u3, QR + 4 * j, QR + 4 * j + 3, 128 + 32 * LROW * j))
            else:
                a("ds_write_b128 v%d, v[%d:%d] offset:%d" % (u2, QR + 4 * j, QR + 4 * j + 3, 8 * LROW * (j - 4)))

    def xflag(tagn, cnt):
        a("s_waitcnt vmcnt(%d)" % cnt)
        a("L_s_tg%d:" % tagn)
        a("v_cmp_ne_u32 vcc, 0, v%d" % K.V_TAG)
        a("s_cbranch_vccnz L_s_tagok%d" % tagn)
        if cfg.get("spin_limit"):
            a("s_sub_u32 s46, s46, 1")
            a("s_cbranch_scc1 L_s_tagok%d" % tagn)
        a("s_sleep 2")
        a("buffer_load_dword v%d, v%d, s[36:39], s59 offen %s" % (K.V_TAG, K.V_ZERO, SC))
        a("s_waitcnt vmcnt(0)")
        a("s_branch L_s_tg%d" % tagn)
        a("L_s_tagok%d:" % tagn)
        a("s_mov_b64 exec, 1")
        a("buffer_store_dword v%d, v%d, s[4:7], s58 offen %s" % (K.V_TAG, K.V_ZERO, SC))
        a("s_mov_b64 exec, -1")
        stamp(a, cfg, 4)


    stamp(a, cfg, 1)
    a("s_waitcnt vmcnt(13)")
    stamp(a, cfg, 2)
    a("v_permlane32_swap_b32 v%d, v%d" % (RES, RES + 2))
    a("v_permlane32_swap_b32 v%d, v%d" % (RES + 1, RES + 3))
    a("v_permlane32_swap_b32 v%d, v%d" % (RES + 4, RES + 6))
    a("v_permlane32_swap_b32 v%d, v%d" % (RES + 5, RES + 7))
    K.out_addr(a, 0)
    K.st4(a, RES, V_L16, 34)
    K.store_x_tail(a)
    K.xin_flag_addr(a, 58, True, 0)
    raw_stage(0, 12, 11, 1)
    a("s_waitcnt lgkmcnt(0)")
    for i in range(8):
        a("ds_read_b64_tr_b16 a[%d:%d], v%d offset:%d" % (128 + 4 * i, 129 + 4 * i, u4, 128 + 16 * LROW * i))
        a("ds_read_b64_tr_b16 a[%d:%d], v%d offset:%d" % (130 + 4 * i, 131 + 4 * i, u4, 128 + 16 * LROW * i + 8 * LROW))
    xflag(0, 0)
    for p in range(8, 16):
        a("buffer_load_dwordx4 v[%d:%d], v%d, s[40:43], s54 offen" % (QR + 16 + 4 * p, QR + 16 + 4 * p + 3, u6))
        a("s_add_u32 s54, s54, 8192")
    a("s_lshr_b32 s20, s2, 3")
    a("s_and_b32 s21, s2, 7")
    a("v_lshrrev_b32 v%d, 3, v0" % t1)
    a("v_and_b32 v%d, 7, v0" % t2)
    a("v_mul_u32_u24 v%d, %d, v%d" % (t4, LROW, t1))
    a("v_lshl_add_u32 v%d, v%d, 4, v%d" % (t4, t2, t4))
    a("v_add_u32 v%d, %d, v%d" % (t4, LST, t4))
    a("v_mov_b32 v%d, v%d" % (V_SO, V_L16))
    a("s_mov_b32 s22, 0")
    a("s_mov_b32 s23, 0")
    a("s_mov_b32 s24, 32768")
    a("s_mov_b32 s25, 1024")
    a("s_mov_b32 s42, %d" % (512 * 512 * 2))
    a("s_mov_b32 s%d, 2" % S_TASK)
    a("s_lshr_b32 s26, s20, 3")
    a("s_and_b32 s17, s20, 0x17")
    a("s_cmp_eq_u32 s17, 4")
    a("s_cbranch_scc1 L_s_wkv")
    a("s_cmp_eq_u32 s17, 5")
    a("s_cbranch_scc1 L_s_wq")
    a("s_lshl_b32 s17, s26, 2")
    a("s_add_u32 s27, s17, s%d" % S_HQ)
    a("s_add_u32 s18, s27, 12")
    a("s_sub_u32 s19, s27, 8")
    a("s_lshl_b32 s17, s26, 1")
    a("s_add_u32 s17, s17, s%d" % S_HQ)
    a("s_sub_u32 s17, s17, 6")
    a("s_cmp_lt_u32 s26, 2")
    a("s_cselect_b32 s27, s17, s19")
    a("s_cmp_lt_u32 s%d, 4" % S_HQ)
    a("s_cselect_b32 s27, s18, s27")
    a("s_lshl_b32 s27, s27, 3")
    a("s_add_u32 s27, s27, s21")
    a("s_and_b32 s26, s27, 1")
    a("s_cmp_lt_u32 s27, 112")
    a("s_cbranch_scc1 L_s_w13")
    a("s_cmp_lt_u32 s27, 168")
    a("s_cbranch_scc1 L_s_w2")
    a("s_cmp_lt_u32 s27, 184")
    a("s_cbranch_scc1 L_s_wo")
    a("s_mov_b32 s%d, 0" % S_TASK)
    a("s_mov_b32 s%d, 0xf0000000" % S_DST)
    a("s_branch L_s_loaded")
    a("L_s_wq:")
    a("s_mov_b32 s%d, 1" % S_TASK)
    a("s_mov_b32 s40, s%d\ns_mov_b32 s41, s%d" % (PWQ, PWQ + 1))
    a("s_mov_b32 s28, s21")
    a("s_mov_b32 s%d, 0x%x" % (S_DST, OFF_WQ))
    a("s_lshl_b32 s23, s28, 11")
    a("s_lshl_b32 s17, s26, 9")
    a("s_add_u32 s23, s23, s17")
    a("s_add_u32 s23, s23, 0x%x" % OFF_CSQX)
    a("s_lshl_b32 s29, s28, 5")
    a("s_lshl_b32 s17, s26, 4")
    a("s_add_u32 s29, s29, s17")
    a("s_add_u32 s29, s29, 0x%x" % (OFF_FLAGS + FL_WQ))
    a("s_branch L_s_qo")
    a("L_s_wo:")
    a("s_mov_b32 s40, s%d\ns_mov_b32 s41, s%d" % (PWO, PWO + 1))
    a("s_sub_u32 s28, s27, 168")
    a("s_lshr_b32 s28, s28, 1")
    a("s_mov_b32 s%d, 0x%x" % (S_DST, OFF_WO))
    a("L_s_qo:")
    a("s_lshl_b32 s30, s26, 18")
    a("s_lshl_b32 s17, s28, 7")
    a("s_add_u32 s30, s30, s17")
    a("s_lshl_b32 s17, s28, 16")
    a("s_add_u32 s%d, s%d, s17" % (S_DST, S_DST))
    a("s_lshl_b32 s17, s26, 14")
    a("s_add_u32 s%d, s%d, s17" % (S_DST, S_DST))
    a("s_branch L_s_go")
    a("L_s_w2:")
    a("s_sub_u32 s27, s27, 112")
    a("s_and_b32 s28, s27, 7")
    a("s_lshr_b32 s27, s27, 3")
    a("s_mov_b32 s40, s%d\ns_mov_b32 s41, s%d\ns_mov_b32 s42, %d" % (PW2, PW2 + 1, 1792 * 512 * 2))
    a("s_lshl_b32 s30, s27, 18")
    a("s_lshl_b32 s17, s28, 7")
    a("s_add_u32 s30, s30, s17")
    a("s_mov_b32 s24, %d" % (112 * 1024))
    a("s_mul_i32 s%d, s28, %d" % (S_DST, 2 * 112 * 1024))
    a("s_lshl_b32 s17, s27, 14")
    a("s_add_u32 s%d, s%d, s17" % (S_DST, S_DST))
    a("s_add_u32 s%d, s%d, 0x%x" % (S_DST, S_DST, OFF_W2))
    a("s_branch L_s_go")
    a("L_s_w13:")
    a("s_bfe_u32 s29, s27, 0x10001")
    a("s_lshr_b32 s28, s27, 2")
    a("s_cmp_eq_u32 s29, 0")
    a("s_cselect_b32 s40, s%d, s%d" % (PW1, PW3))
    a("s_cselect_b32 s41, s%d, s%d" % (PW1 + 1, PW3 + 1))
    a("s_mov_b32 s42, %d" % (512 * 1792 * 2))
    a("s_mov_b32 s25, 3584")
    a("s_mul_i32 s30, s26, %d" % (256 * 3584))
    a("s_lshl_b32 s17, s28, 7")
    a("s_add_u32 s30, s30, s17")
    a("s_mov_b32 s24, 65536")
    a("s_lshl_b32 s%d, s28, 17" % S_DST)
    a("s_lshl_b32 s17, s26, 14")
    a("s_add_u32 s%d, s%d, s17" % (S_DST, S_DST))
    a("s_lshl_b32 s17, s29, 8")
    a("s_add_u32 s%d, s%d, s17" % (S_DST, S_DST))
    a("s_add_u32 s%d, s%d, 0x%x" % (S_DST, S_DST, OFF_W13))
    a("s_lshl_b32 s23, s28, 12")
    a("s_add_u32 s23, s23, s17")
    a("s_lshl_b32 s17, s26, 9")
    a("s_add_u32 s23, s23, s17")
    a("s_add_u32 s23, s23, 0x%x" % OFF_CSX)
    a("v_and_b32 v%d, 15, v%d" % (V_SO, V_LANE))
    a("v_lshlrev_b32 v%d, 4, v%d" % (V_SO, V_SO))
    a("v_lshl_add_u32 v%d, v%d, 9, v%d" % (V_SO, V_H, V_SO))
    a("v_bfe_u32 v%d, v%d, 4, 1" % (t5, V_LANE))
    a("v_lshl_add_u32 v%d, v%d, 15, v%d" % (V_SO, t5, V_SO))
    a("L_s_go:")
    a("v_mul_lo_u32 v%d, v%d, s25" % (t3, t1))
    a("v_lshl_add_u32 v%d, v%d, 4, v%d" % (t3, t2, t3))
    a("s_lshl_b32 s17, s25, 5")
    for p in range(8):
        a("buffer_load_dwordx4 v[%d:%d], v%d, s[40:43], s30 offen" % (D + 4 * p, D + 4 * p + 3, t3))
        if p < 7:
            a("s_add_u32 s30, s30, s17")
    a("s_lshr_b32 s17, s%d, 1" % S_W)
    a("s_and_b32 s18, s%d, 1" % S_W)
    a("s_mul_i32 s19, s17, s24")
    a("s_add_u32 s%d, s%d, s19" % (S_DST, S_DST))
    a("s_lshl_b32 s19, s18, 13")
    a("s_add_u32 s%d, s%d, s19" % (S_DST, S_DST))
    a("s_lshl_b32 s17, s17, 6")
    a("s_mul_i32 s18, s18, %d" % (128 * LROW))
    a("s_add_u32 s33, s17, s18")
    a("v_bfe_u32 v%d, v%d, 4, 1" % (t1, V_LANE))
    a("v_lshlrev_b32 v%d, 5, v%d" % (t1, t1))
    a("s_mov_b32 s30, %d" % (32 * LROW))
    a("s_branch L_s_common")
    a("L_s_wkv:")
    a("s_mov_b32 s%d, 1" % S_TASK)
    a("s_cmp_eq_u32 s26, 0")
    a("s_cselect_b32 s40, s%d, s%d" % (PWV, PWK))
    a("s_cselect_b32 s41, s%d, s%d" % (PWV + 1, PWK + 1))
    a("s_mov_b32 s42, %d" % (512 * 16 * 2))
    a("v_lshrrev_b32 v%d, 1, v0" % t1)
    a("v_and_b32 v%d, 1, v0" % t2)
    a("v_mul_u32_u24 v%d, %d, v%d" % (t4, LROW, t1))
    a("v_lshl_add_u32 v%d, v%d, 4, v%d" % (t4, t2, t4))
    a("v_add_u32 v%d, %d, v%d" % (t4, LST, t4))
    a("v_lshlrev_b32 v%d, 4, v0" % t3)
    a("s_mov_b32 s30, 0")
    for p in range(8):
        a("buffer_load_dwordx4 v[%d:%d], v%d, s[40:43], s30 offen" % (D + 4 * p, D + 4 * p + 3, t3))
        if p < 7:
            a("s_add_u32 s30, s30, 4096")
            a("s_and_b32 s30, s30, 0x3fff")
    a("v_and_b32 v%d, 15, v%d" % (V_SO, V_LANE))
    a("v_lshlrev_b32 v%d, 4, v%d" % (V_SO, V_SO))
    a("v_lshl_add_u32 v%d, v%d, 9, v%d" % (V_SO, V_H, V_SO))
    a("s_mul_i32 s%d, s21, 0x%x" % (S_DST, WKV_COPY))
    a("s_lshl_b32 s17, s%d, 13" % S_W)
    a("s_add_u32 s%d, s%d, s17" % (S_DST, S_DST))
    a("s_lshl_b32 s17, s26, 8")
    a("s_add_u32 s%d, s%d, s17" % (S_DST, S_DST))
    a("s_add_u32 s%d, s%d, 0x%x" % (S_DST, S_DST, OFF_WKV))
    a("s_lshl_b32 s29, s21, 7")
    a("s_lshl_b32 s17, s26, 4")
    a("s_add_u32 s29, s29, s17")
    a("s_add_u32 s29, s29, 0x%x" % (OFF_FLAGS + FL_WQ + 0x800))
    a("s_lshl_b32 s33, s%d, 5" % S_W)
    a("v_mov_b32 v%d, 0" % t1)
    a("s_mov_b32 s30, 16")
    a("s_mov_b32 s%d, 3" % S_TASK)
    a("L_s_common:")
    a("v_and_b32 v%d, 15, v%d" % (t2, V_LANE))
    a("v_lshrrev_b32 v%d, 2, v%d" % (t3, t2))
    a("v_lshl_add_u32 v%d, v%d, 2, v%d" % (t3, V_H, t3))
    a("v_mul_u32_u24 v%d, %d, v%d" % (t5, LROW, t3))
    a("v_and_b32 v%d, 3, v%d" % (t2, t2))
    a("v_lshl_add_u32 v%d, v%d, 3, v%d" % (t5, t2, t5))
    a("v_add_u32 v%d, v%d, v%d" % (t5, t1, t5))
    a("s_add_u32 s33, s33, %d" % LST)
    a("v_add_u32 v%d, s33, v%d" % (t5, t5))
    a("L_s_loaded:")
    a("v_add_u32 v%d, 4096, v%d" % (V_SO2, V_SO))
    a("s_cmp_eq_u32 s%d, 0" % S_TASK)
    a("s_cbranch_scc1 L_s_raw0")
    raw_stage(12, 20, 19, 8)
    a("s_branch L_s_raw1")
    a("L_s_raw0:")
    raw_stage(12, 20, 19, 0)
    a("L_s_raw1:")
    a("s_waitcnt lgkmcnt(0)")
    for j, ua in ((160, u0), (192, u1)):
        for i in range(8):
            a("ds_read_b64_tr_b16 a[%d:%d], v%d offset:%d" % (j + 4 * i, j + 1 + 4 * i, ua, 16 * LROW * i))
            a("ds_read_b64_tr_b16 a[%d:%d], v%d offset:%d" % (j + 2 + 4 * i, j + 3 + 4 * i, ua, 16 * LROW * i + 8 * LROW))
    stamp(a, cfg, 7)
    a("s_cmp_eq_u32 s%d, 0" % S_TASK)
    a("s_cbranch_scc1 L_s_xpub")
    a("s_cmp_eq_u32 s%d, 3" % S_TASK)
    a("s_cbranch_scc1 L_s_kvw")
    for p in range(8):
        a("s_waitcnt vmcnt(%d)" % (7 - p))
        a("ds_write_b128 v%d, v[%d:%d] offset:%d" % (t4, D + 4 * p, D + 4 * p + 3, 32 * LROW * p))
    a("s_branch L_s_xpub")
    a("L_s_kvw:")
    for p in range(4):
        a("s_waitcnt vmcnt(%d)" % (7 - p))
        a("ds_write_b128 v%d, v[%d:%d] offset:%d" % (t4, D + 4 * p, D + 4 * p + 3, 32 * p))
    a("s_waitcnt vmcnt(0)")
    a("L_s_xpub:")
    stamp(a, cfg, 3)

    a("s_cmp_eq_u32 s%d, 0" % S_TASK)
    a("s_cbranch_scc1 L_s_done")
    a("L_s_tr:")
    a("s_waitcnt lgkmcnt(0)")
    a("s_barrier")
    for i in range(8):
        a("ds_read_b64_tr_b16 v[%d:%d], v%d offset:%d" % (D + 4 * i, D + 4 * i + 1, t5, 16 * LROW * i))
        a("ds_read_b64_tr_b16 v[%d:%d], v%d offset:%d" % (D + 4 * i + 2, D + 4 * i + 3, t5, 16 * LROW * i + 8 * LROW))
    a("s_cmp_eq_u32 s%d, 2" % S_TASK)
    a("s_cbranch_scc1 L_s_nost")
    for i in range(8):
        a("s_waitcnt lgkmcnt(%d)" % min(15, 14 - 2 * i))
        a("buffer_store_dwordx4 v[%d:%d], v%d, s[4:7], s%d offen offset:%d %s" % (D + 4 * i, D + 4 * i + 3, V_SO if i < 4 else V_SO2, S_DST, (i % 4) * 1024, SC))
    a("s_mov_b32 s%d, 0xf0000000" % S_DST)
    a("L_s_nost:")
    a("s_cmp_eq_u32 s%d, 3" % S_TASK)
    a("s_cbranch_scc1 L_s_pub")
    a("s_cmp_eq_u32 s23, 0")
    a("s_cbranch_scc1 L_s_done")
    a("v_mov_b32 v%d, 0x3f803f80" % ONES)
    a("v_mov_b32 v%d, 0" % CS)
    a("s_waitcnt lgkmcnt(0)")
    for r in range(32):
        a("v_dot2_f32_bf16 v%d, v%d, v%d, v%d" % (CS, D + r, ONES, CS))
    a("v_lshlrev_b32 v%d, 2, v0" % t0)
    a("v_add_u32 v%d, %d, v%d" % (t0, LCS, t0))
    a("ds_write_b32 v%d, v%d" % (t0, CS))
    a("s_waitcnt lgkmcnt(0)")
    a("s_barrier")
    a("s_and_b32 s17, s%d, 2" % S_W)
    a("s_lshl_b32 s17, s17, 8")
    a("s_add_u32 s17, s17, %d" % LCS)
    a("v_lshlrev_b32 v%d, 2, v%d" % (t0, V_R31))
    a("v_add_u32 v%d, s17, v%d" % (t1, t0))
    for q in range(4):
        a("ds_read_b32 v%d, v%d offset:%d" % (R + q, t1, 128 * q))
    a("s_waitcnt lgkmcnt(0)")
    a("v_add_f32 v%d, v%d, v%d" % (R, R, R + 1))
    a("v_add_f32 v%d, v%d, v%d" % (R + 2, R + 2, R + 3))
    a("v_add_f32 v%d, v%d, v%d" % (R, R, R + 2))
    split3(a, R, R + 4)
    a("v_lshrrev_b32 v%d, 16, v%d" % (R + 1, R + 4))
    a("v_or_b32 v%d, v%d, v%d" % (R + 8, R + 1, R + 4))
    a("v_lshrrev_b32 v%d, 16, v%d" % (R + 1, R + 5))
    a("v_or_b32 v%d, v%d, v%d" % (R + 9, R + 1, R + 4))
    a("v_lshrrev_b32 v%d, 16, v%d" % (R + 1, R + 6))
    a("v_or_b32 v%d, v%d, v%d" % (R + 10, R + 1, R + 5))
    a("v_mov_b32 v%d, 0" % (R + 11))
    a("v_and_b32 v%d, 15, v%d" % (t0, V_LANE))
    a("v_lshlrev_b32 v%d, 4, v%d" % (t0, t0))
    a("v_bfe_u32 v%d, v%d, 4, 1" % (t1, V_LANE))
    a("s_cmp_eq_u32 s%d, 1" % S_TASK)
    a("s_cselect_b32 s18, 8, 10")
    a("s_cselect_b32 s19, 10, 11")
    a("v_lshlrev_b32 v%d, s18, v%d" % (t1, t1))
    a("v_add_u32 v%d, v%d, v%d" % (t0, t1, t0))
    a("s_lshr_b32 s17, s%d, 1" % S_W)
    a("s_lshl_b32 s17, s17, s19")
    a("s_add_u32 s23, s23, s17")
    a("s_mov_b32 exec_hi, 0")
    a("buffer_store_dwordx4 v[%d:%d], v%d, s[4:7], s23 offen %s" % (R + 8, R + 11, t0, SC))
    a("s_mov_b32 exec_hi, -1")
    a("s_cmp_eq_u32 s%d, 2" % S_TASK)
    a("s_cbranch_scc1 L_s_done")
    a("L_s_pub:")
    a("s_lshl_b32 s17, s%d, 2" % S_W)
    a("s_add_u32 s29, s29, s17")
    a("v_lshlrev_b32 v%d, 8, v%d" % (t1, V_LANE))
    a("s_cmp_eq_u32 s%d, 1" % S_TASK)
    a("s_cselect_b32 s17, 0xff, 1")
    a("s_waitcnt vmcnt(0)")
    a("s_mov_b32 exec_hi, 0")
    a("s_mov_b32 exec_lo, s17")
    a("buffer_store_dword v%d, v%d, s[4:7], s29 offen %s" % (K.V_TAG, t1, SC))
    a("s_mov_b64 exec, -1")
    a("L_s_done:")
    a("s_waitcnt lgkmcnt(0)")
    stamp(a, cfg, 5)
    a("s_barrier")
    stamp(a, cfg, 6)


def probe_addr(a, K, v0, v1, sdst):
    a("v_and_b32 v%d, 28, v%d" % (v0, K.V_L4))
    a("v_bfe_u32 v%d, v%d, 3, 1" % (v1, V_LANE))
    a("s_and_b32 s19, s2, 7")
    a("s_lshl_b32 s17, s%d, 5" % S_HQ)
    a("s_lshl_b32 s18, s19, 8")
    a("s_add_u32 s17, s17, s18")
    a("s_lshl_b32 s18, s19, 7")
    a("s_add_u32 s18, s18, 0x800")
    a("s_sub_u32 s18, s18, s17")
    a("v_mul_lo_u32 v%d, v%d, s18" % (v1, v1))
    a("v_add_u32 v%d, v%d, v%d" % (v0, v0, v1))
    a("s_add_u32 s%d, s17, 0x%x" % (sdst, OFF_FLAGS + FL_WQ))


def deferred_store_groups(K):
    return [["buffer_store_dwordx4 v[%d:%d], v%d, s[4:7], s%d offen offset:%d %s" % (D + 4 * i, D + 4 * i + 3, V_SO if i < 4 else V_SO2, S_DST, (i % 4) * 1024, K.SC)]
            for i in range(8)]
```

```python
import sys
from asmlib import *
from layout import *
import kern
import startup as SU
from kern import (split3, fl, MF, S_LAYER, S_W, S_RB, S_HQ, S_RG, S_M, V_L16, V_LANE, V_R31, V_H, V_OFF, xhalf_sum,
                  load_stats, finish_stats, pack8, stamp, kernel_desc, prep, NSTAMP)

SC = "sc1"


COMPACT = [1]
CMAP = {OFF_X: 0x800000, OFF_O: 0xC00000, OFF_H: 0xE00000, OFF_STAT: OFF_STAT}
C_WKV = 0x780000
C_END = 0x1500000


def layer_off(a, sdst, base, stride, mul=1, add=0):
    if COMPACT[0] and base in CMAP:
        a("s_mov_b32 s%d, 0x%x" % (sdst, CMAP[base] + (add & 1) * stride))
    else:
        kern.layer_off(a, sdst, base, stride, mul, add)


def blk(a, dst, sbase, i, sc=SC):
    kern.blk(a, dst, sbase, i, SC)


FL_O = 0x0000
FL_X1 = 0x2000
FL_H = 0x8000
FL_XIN = 0x6000
OFF_FLW = 0x64C000
FL_KV = 0x640000 - OFF_FLAGS

S_RT, S_NT = 31, 32
S_FO, S_FX1, S_FH = 40, 41, 42
S_W13, S_WL = 47, 48
S_RET = 44
V_RES = 12
V_TAG = 11
V_L4 = 20
V_ZERO = 21
VB = 24

G_ACC = 24
G_RED = 88
G_ST = 136
G_CS = 152
G_T = 168
V_WR = [184, 185, 186]
V_RD = 187
V_NMU, V_RSTD = 188, 189
G_KVACC = 88
G_Q = 190
W2V = 200

LDS_R1 = 96 * 1024
LDS_RQ = 0
LDS_KVX = 49152
LDS_CSX = 69632
LDS_CS = 152 * 1024
LDS_E = 128 * 1024


DBL = [0]
LSC = ["sc1"]
S_LOC = 57
DUAL = [False]
_dl = [0]


def lstore(text):
    lines = text if isinstance(text, list) else [text]
    if not DUAL[0]:
        return [l + " sc1" for l in lines]
    _dl[0] += 1
    n = _dl[0]
    return (["s_cbranch_scc1 L_ls%da ; needs scc" % n] + [l + " sc1" for l in lines] + ["s_branch L_ls%db" % n, "L_ls%da:" % n] +
            ["!" + l + " " + LSC[0] for l in lines] + ["L_ls%db:" % n])


def emit_l(a, text):
    out = lstore(text)
    if DUAL[0]:
        a("s_cmp_lg_u32 s%d, 0" % S_LOC)
    for l in out:
        if l.startswith("!"):
            a(l[1:])
        else:
            a(l)


def st4(a, data, voff, soff, imm=0):
    emit_l(a, "buffer_store_dwordx4 v[%d:%d], v%d, s[4:7], s%d offen offset:%d" % (data, data + 3, voff, soff, imm))
    if DBL[0]:
        a("buffer_store_dwordx4 v[%d:%d], v%d, s[4:7], s%d offen offset:%d" % (data, data + 3, voff, soff, imm))


TOUCH = [1]
V_L128 = 23
V_P2 = 199


V_L64 = 22


RBW = [0]


def readback(a, regions, final=False):
    if not DUAL[0]:
        return
    L = a.newlabel("L_rb")
    keep = a.vm_issued
    a("s_cmp_eq_u32 s%d, 0" % S_LOC)
    a("s_cbranch_scc1 %s" % L)
    a("v_lshlrev_b32 v%d, 6, v%d" % (V_L64, V_LANE))
    if RBW[0] and final:
        a("s_waitcnt vmcnt(0)")
    for sg, nb, imm in regions:
        n = nb // 64
        assert n <= 64
        a("s_mov_b32 exec_lo, 0x%x" % (((1 << n) - 1) & 0xffffffff))
        a("s_mov_b32 exec_hi, 0x%x" % (((1 << n) - 1) >> 32))
        a("buffer_load_dword v%d, v%d, s[4:7], s%d offen offset:%d %s" % (V_P2, V_L64, sg, imm, SC))
    a(L + ":")
    a.vm_issued = keep


def publish(a, s_addr, regions, imm=0, between=()):
    readback(a, regions, True)
    if between:
        a("s_mov_b64 exec, -1")
        for x in between:
            a(x)
    a("s_waitcnt vmcnt(0)")
    a("s_mov_b64 exec, 1")
    emit_l(a, "buffer_store_dword v%d, v%d, s[4:7], s%d offen offset:%d" % (V_TAG, V_ZERO, s_addr, imm))
    a("s_mov_b64 exec, -1")


def poll(a, cfg, s_addr, voff, vtmp, wide=False, imm=0, sleep=0):
    L = a.newlabel("L_poll")
    if cfg.get("spin_limit"):
        a("s_mov_b32 s46, %d" % cfg["spin_limit"])
    if cfg.get("ppoll", 0) and not wide and not sleep:
        ld = lambda r: a("buffer_load_dword v%d, v%d, s[4:7], s%d offen offset:%d %s" % (r, voff, s_addr, imm, SC))
        ld(vtmp)
        a("s_sleep %d" % cfg.get("ppoll_gap", 2))
        a(L + ":")
        ld(V_P2)
        a("s_waitcnt vmcnt(1)")
        a("v_cmp_ne_u32 vcc, v%d, v%d" % (V_TAG, vtmp))
        a("s_cbranch_vccz %s_out" % L)
        ld(vtmp)
        a("s_waitcnt vmcnt(1)")
        if cfg.get("spin_limit"):
            a("s_sub_u32 s46, s46, 1")
            a("s_cbranch_scc1 %s_out" % L)
        a("v_cmp_ne_u32 vcc, v%d, v%d" % (V_TAG, V_P2))
        a("s_cbranch_vccnz %s" % L)
        a.vm_issued -= 1
        a(L + "_out:")
        return
    a(L + ":")
    if wide:
        a("buffer_load_dwordx4 v[%d:%d], v%d, s[4:7], s%d offen %s" % (vtmp, vtmp + 3, voff, s_addr, SC))
        a("s_waitcnt vmcnt(0)")
        a("v_cmp_ne_u32 s[18:19], v%d, v%d" % (V_TAG, vtmp + 2))
        a("v_cndmask_b32 v%d, v%d, v%d, s[18:19]" % (vtmp, vtmp, V_ZERO))
        a("v_cmp_ne_u32 s[18:19], v%d, v%d" % (V_TAG, vtmp + 3))
        a("v_cndmask_b32 v%d, v%d, v%d, s[18:19]" % (vtmp, vtmp, V_ZERO))
    else:
        a("buffer_load_dword v%d, v%d, s[4:7], s%d offen offset:%d %s" % (vtmp, voff, s_addr, imm, SC))
        a("s_waitcnt vmcnt(0)")
    if cfg.get("spin_limit"):
        a("s_sub_u32 s46, s46, 1")
        a("s_cbranch_scc1 %s_out" % L)
    a("v_cmp_ne_u32 vcc, v%d, v%d" % (V_TAG, vtmp))
    if sleep:
        a("s_cbranch_vccz %s_out" % L)
        a("s_sleep %d" % sleep)
        a("s_branch %s" % L)
    else:
        a("s_cbranch_vccnz %s" % L)
    a(L + "_out:")


def lane_pat(a, vdst, mask, hi_shift, lo_mul):
    a("v_and_b32 v%d, %d, v%d" % (vdst, mask & ~1, V_LANE))
    a("v_lshlrev_b32 v%d, 3, v%d" % (vdst, vdst))
    a("v_and_b32 v%d, 1, v%d" % (vdst + 1, V_LANE))
    a("v_lshl_add_u32 v%d, v%d, %d, v%d" % (vdst, vdst + 1, lo_mul, vdst))


def flag_addr(a, sdst, base, s_grp, grp_shift, s_mem=None, per_layer=0x1000):
    a("s_mul_i32 s%d, s%d, 0x%x" % (sdst, S_LAYER, per_layer))
    a("s_add_u32 s%d, s%d, 0x%x" % (sdst, sdst, OFF_FLAGS + base))
    a("s_lshl_b32 s17, s%d, %d" % (s_grp, grp_shift))
    a("s_add_u32 s%d, s%d, s17" % (sdst, sdst))
    if s_mem is not None:
        a("s_lshl_b32 s17, s%d, 4" % s_mem)
        a("s_add_u32 s%d, s%d, s17" % (sdst, sdst))
        a("s_lshl_b32 s17, s%d, 2" % S_W)
        a("s_add_u32 s%d, s%d, s17" % (sdst, sdst))


def xin_flag_addr(a, sdst, own, layer_add):
    flag_addr(a, sdst, FL_XIN + 0x1000 * layer_add, S_RB, 7, S_HQ if own else None)


def a_addr(a, s_a0, s_a1, offA, ksA, ksw):
    a("s_mul_i32 s20, s%d, %d" % (S_W, ksw * 1024))
    a("s_mul_i32 s%d, s%d, %d" % (s_a0, S_NT, ksA * 1024))
    a("s_add_u32 s%d, s%d, s20" % (s_a0, s_a0))
    a("s_add_u32 s%d, s%d, 0x%x" % (s_a0, s_a0, offA))
    a("s_xor_b32 s21, s%d, 1" % S_NT)
    a("s_mul_i32 s%d, s21, %d" % (s_a1, ksA * 1024))
    a("s_add_u32 s%d, s%d, s20" % (s_a1, s_a1))
    a("s_add_u32 s%d, s%d, 0x%x" % (s_a1, s_a1, offA))


def b_addr(a, s_b0, s_b1, s_base, ksB, ksw):
    a("s_mul_i32 s20, s%d, %d" % (S_W, ksw * 1024))
    a("s_add_u32 s20, s20, s%d" % s_base)
    a("s_mul_i32 s%d, s%d, %d" % (s_b0, S_RT, ksB * 1024))
    a("s_add_u32 s%d, s%d, s20" % (s_b0, s_b0))
    a("s_xor_b32 s21, s%d, 1" % S_RT)
    a("s_mul_i32 s%d, s21, %d" % (s_b1, ksB * 1024))
    a("s_add_u32 s%d, s%d, s20" % (s_b1, s_b1))


def reduce_addr(a, base):
    for j in (1, 2, 3):
        a("s_xor_b32 s17, s%d, %d" % (S_W, j))
        a("s_mul_i32 s17, s17, 12288")
        a("s_add_u32 s17, s17, %d" % (base + (j - 1) * 4096))
        a("v_add_u32 v%d, s17, v%d" % (V_WR[j - 1], V_L16))
    a("s_mul_i32 s17, s%d, 12288" % S_W)
    a("s_add_u32 s17, s17, %d" % base)
    a("v_add_u32 v%d, s17, v%d" % (V_RD, V_L16))


def mf(a, d, x, y, c):
    a("%s v[%d:%d], %s, %s, %s" % (MF, d, d + 15, x, y, c))


def wr_tile(a, j):
    for q in range(4):
        r = G_ACC + 16 * j + 4 * q
        a("ds_write_b128 v%d, v[%d:%d] offset:%d" % (V_WR[j - 1], r, r + 3, q * 1024))


def rd_tile(a, j, dst):
    for q in range(4):
        a("ds_read_b128 v[%d:%d], v%d offset:%d" % (dst + 4 * q, dst + 4 * q + 3, V_RD, (j - 1) * 4096 + q * 1024))


def gemm64_core(a, cfg, n, A0, A1, Breg, issueB, window, pre_tickets=None, order=None, side=None, side_from=0, side_n=1,
                gate=None, side2=None, side2_from=0, ramp=None, resid=False, extra0=None, hooks=None, tail_side=None, dup_last=False):
    if order is None:
        order = [(1, i) for i in range(n)] + [(0, i) for i in range(n)]
    M = len(order)
    side = list(side or [])
    t = dict(pre_tickets or {})
    nxt = len(t)
    gpos = gate[0] if gate else M + 1
    gated = [False]

    def try_issue(limit):
        nonlocal nxt
        while nxt < M and nxt < limit:
            if nxt >= gpos and not gated[0]:
                return
            issueB(nxt)
            t[nxt] = a.vt()
            nxt += 1
            if gate and nxt == gate[3]:
                gate[1]()

    try_issue(ramp or window)
    if cfg.get("stamps") != 2:
        stamp(a, cfg, 1)
    last1 = max(e for e, (st, i) in enumerate(order) if st == 1)
    wr1 = last1 + 2
    bar1 = min(M - 2, last1 + 1 + max(2, (M - last1) // 2))
    seen = set()
    def step(e):
        st, i = order[e]
        if gate and not gated[0] and e == gate[4]:
            assert not side
            gate[2]()
            gated[0] = True
            try_issue(e + window)
        if hooks and e in hooks:
            hooks[e]()
        a.wait_vm(t[e])
        if e == 0 and cfg.get("stamps") != 2:
            stamp(a, cfg, 2)
        first = "0" if st not in seen else None
        seen.add(st)
        if st == 1:
            mf(a, G_ACC + 16, A0(i), Breg(e), first or vr(G_ACC + 16, 16))
            if cfg.get("ldmid", 0) and window < 30:
                try_issue(min(e + 1 + window, nxt + 1))
            mf(a, G_ACC + 48, A1(i), Breg(e), first or vr(G_ACC + 48, 16))
        else:
            mf(a, G_ACC + 32, A1(i), Breg(e), first or vr(G_ACC + 32, 16))
            if cfg.get("ldmid", 0) and window < 30:
                try_issue(min(e + 1 + window, nxt + 1))
            mf(a, G_ACC, A0(i), Breg(e), first or vr(G_ACC, 16))
        try_issue(min(e + 1 + window, nxt + 2))
        if e >= side_from:
            k = 0
            while side and k < side_n:
                x = side.pop(0)
                a(x)
                k += x.startswith("buffer_")
        if side2 and e >= side2_from:
            for _ in range(cfg.get("side2_n", 1)):
                if side2:
                    a(side2.pop(0))
        if e == wr1:
            wr_tile(a, 1)
            wr_tile(a, 3)
        if e == bar1:
            a("s_waitcnt lgkmcnt(0)")
            a("s_barrier")
            rd_tile(a, 1, G_RED)
            rd_tile(a, 3, G_RED + 16)

    for e in range(M):
        if dup_last and e == side2_from:
            snap = (nxt, dict(t), a.vm_issued, a.lg_issued, a.dma_issued)
            a("s_cmp_eq_u32 s%d, 1" % S_LAYER)
            a("s_cbranch_scc1 L_g64_last")
            for e2 in range(e, M):
                step(e2)
            a("s_branch L_g64_join")
            a("L_g64_last:")
            nxt, t, a.vm_issued, a.lg_issued, a.dma_issued = snap[0], snap[1], snap[2], snap[3], snap[4]
            for e2 in range(e, M):
                step(e2)
            a("L_g64_join:")
            break
        step(e)
    assert wr1 <= bar1 < M and not side2
    if extra0:
        extra0[2]()
        mf(a, G_ACC, extra0[0], extra0[1], vr(G_ACC, 16))
    tside = list(tail_side or [])
    cnt = [0]

    def av(x):
        a(x)
        cnt[0] += 1
        if tside and cnt[0] % cfg.get("tail_every", 4) == 0:
            a(tside.pop(0))

    stamp(a, cfg, 4)
    a("s_waitcnt lgkmcnt(0)")
    for e in range(6):
        av("v_add_f32 v%d, v%d, v%d" % (G_RED + e, G_RED + e, G_RED + 16 + e))
    wr_tile(a, 2)
    for e in range(6, 16):
        av("v_add_f32 v%d, v%d, v%d" % (G_RED + e, G_RED + e, G_RED + 16 + e))
    for e in range(16):
        av("v_add_f32 v%d, v%d, v%d" % (G_ACC + e, G_ACC + e, G_RED + e))
    if resid:
        for i in range(8):
            av("v_lshlrev_b32 v%d, 16, v%d" % (G_T, V_RES + i))
            av("v_and_b32 v%d, 0xffff0000, v%d" % (G_T + 1, V_RES + i))
            av("v_add_f32 v%d, v%d, v%d" % (G_ACC + 2 * i, G_ACC + 2 * i, G_T))
            av("v_add_f32 v%d, v%d, v%d" % (G_ACC + 2 * i + 1, G_ACC + 2 * i + 1, G_T + 1))
    for x in side:
        a(x)
    a("s_waitcnt lgkmcnt(0)")
    a("s_barrier")
    stamp(a, cfg, 6)
    rd_tile(a, 2, G_RED + 32)
    for q in range(4):
        a("s_waitcnt lgkmcnt(%d)" % (3 - q))
        for e in range(4):
            av("v_add_f32 v%d, v%d, v%d" % (G_ACC + 4 * q + e, G_ACC + 4 * q + e, G_RED + 32 + 4 * q + e))
    for x in tside:
        a(x)
    stamp(a, cfg, 7)


def bextra(a, nmu, d):
    split3(a, nmu, d + 4)
    a("v_lshrrev_b32 v%d, 16, v%d" % (d + 7, d + 4))
    a("v_or_b32 v%d, v%d, v%d" % (d, d + 7, d + 5))
    a("v_or_b32 v%d, v%d, v%d" % (d + 1, d + 7, d + 6))
    a("v_mov_b32 v%d, v%d" % (d + 2, d))
    a("v_mov_b32 v%d, 0" % (d + 3))


def res_epilogue(a, cfg, xout_add, final):
    for i in range(8):
        a("v_cvt_pk_bf16_f32 v%d, v%d, v%d" % (V_RES + i, G_ACC + 2 * i, G_ACC + 2 * i + 1))
        if i == 3 and final is None:
            st4(a, V_RES, V_L16, 34)
    if final is not None:
        a("s_cmp_eq_u32 s%d, 1" % S_LAYER)
        a("s_cbranch_scc1 %s" % final)
        st4(a, V_RES, V_L16, 34)
    store_x_tail(a)


def store_x_tail(a):
    st4(a, V_RES + 4, V_L16, 34, 1024)
    a("v_mov_b32 v%d, 0x3f803f80" % G_T)
    a("v_mov_b32 v%d, 0" % (G_T + 12))
    a("v_mov_b32 v%d, 0" % (G_T + 13))
    for r in range(8):
        a("v_dot2_f32_bf16 v%d, v%d, v%d, v%d" % (G_T + 12, V_RES + r, G_T, G_T + 12))
        a("v_dot2_f32_bf16 v%d, v%d, v%d, v%d" % (G_T + 13, V_RES + r, V_RES + r, G_T + 13))
    a("v_lshlrev_b32 v%d, 3, v%d" % (G_T + 2, V_R31))
    a("s_nop 1")
    a("v_mov_b32 v%d, v%d" % (G_T + 14, G_T + 12))
    a("v_mov_b32 v%d, v%d" % (G_T + 15, G_T + 13))
    a("s_nop 0")
    a("v_permlane32_swap_b32 v%d, v%d" % (G_T + 12, G_T + 14))
    a("v_permlane32_swap_b32 v%d, v%d" % (G_T + 13, G_T + 15))
    a("v_add_f32 v%d, v%d, v%d" % (G_T + 12, G_T + 12, G_T + 14))
    a("v_add_f32 v%d, v%d, v%d" % (G_T + 13, G_T + 13, G_T + 15))
    a("s_mov_b32 exec_lo, 0xffffffff\ns_mov_b32 exec_hi, 0x0")
    emit_l(a, "buffer_store_dwordx2 v[%d:%d], v%d, s[4:7], s35 offen" % (G_T + 12, G_T + 13, G_T + 2))
    a("s_mov_b64 exec, -1")


def out_addr(a, xout_add):
    layer_off(a, 34, OFF_X, X_STRIDE, 2, xout_add)
    a("s_lshl_b32 s18, s%d, 15" % S_RT)
    a("s_add_u32 s34, s34, s18")
    a("s_lshl_b32 s18, s%d, 11" % S_NT)
    a("s_add_u32 s34, s34, s18")
    layer_off(a, 35, OFF_STAT, STAT_STRIDE, 2, xout_add)
    a("s_lshl_b32 s18, s%d, 12" % S_RT)
    a("s_add_u32 s35, s35, s18")
    a("s_lshl_b32 s18, s%d, 8" % S_NT)
    a("s_add_u32 s35, s35, s18")


S_Q0, S_Q1, S_KVW = 50, 51, 52


def wq_lines():
    b = Asm()
    for i in range(8):
        blk(b, ar(128 + 4 * i, 4), S_KVW, i)
    for i in range(8):
        blk(b, ar(160 + 4 * i, 4), S_Q0, i)
        blk(b, ar(192 + 4 * i, 4), S_Q1, i)
    return [l.strip() for l in b.lines]


def phase_qkv(a, cfg):
    SA0, SA1, SB0, SB1, SX, SKV = 24, 25, 26, 27, 28, 29
    CK = G_T + 8
    a("v_lshlrev_b32 v%d, 4, v%d" % (G_T + 1, V_H))
    a("v_lshlrev_b32 v%d, 2, v%d" % (G_T + 6, V_R31))
    VP, VPA = 198, 22
    SU.probe_addr(a, sys.modules[__name__], VPA, VP, 59)
    def wcheck(tag):
        a("v_cmp_ne_u32 vcc, v%d, v%d" % (V_TAG, VP))
        a("s_cbranch_vccz L_qkv_wok%s" % tag)
        keep = a.vm_issued
        poll(a, cfg, 59, VPA, VP, sleep=1)
        a.vm_issued = keep
        a("L_qkv_wok%s:" % tag)

    layer_off(a, SX, OFF_X, X_STRIDE, 2, 0)
    b_addr(a, SB0, SB1, SX, 32, 8)
    layer_off(a, 30, OFF_STAT, STAT_STRIDE, 2, 0)
    a("s_lshl_b32 s17, s%d, 12" % S_RT)
    a("s_add_u32 s30, s30, s17")
    reduce_addr(a, LDS_RQ)
    layer_off(a, 33, OFF_KV, KV_STRIDE)
    a("s_lshr_b32 s36, s%d, 1" % S_HQ)
    a("s_lshl_b32 s17, s%d, 1" % S_RB)
    a("s_add_u32 s17, s17, s36")
    a("s_lshl_b32 s17, s17, 15")
    a("s_add_u32 s23, s17, s%d" % SX)
    a("s_lshl_b32 s17, s%d, 13" % S_W)
    a("s_add_u32 s23, s23, s17")
    a("s_lshl_b32 s17, s%d, 12" % S_W)
    a("s_add_u32 s17, s17, %d" % LDS_KVX)
    a("v_add_u32 v%d, s17, v%d" % (G_T + 2, V_L16))
    a("v_add_u32 v%d, %d, v%d" % (G_T + 3, LDS_KVX, V_L16))
    a("s_mul_i32 s37, s%d, 0x2000" % S_LAYER)
    a("s_add_u32 s37, s37, 0x%x" % (OFF_FLAGS + FL_KV))
    a("s_lshl_b32 s17, s%d, 5" % S_RB)
    a("s_add_u32 s37, s37, s17")
    a("s_lshl_b32 s17, s36, 4")
    a("s_add_u32 s37, s37, s17")
    a("s_lshl_b32 s39, s2, 11")
    a("s_add_u32 s39, s39, 0x%x" % OFF_CKS)
    a("s_cmp_eq_u32 s%d, 0" % S_LAYER)
    a("s_cbranch_scc1 L_qkv_cs0")
    a("buffer_load_dwordx4 v[%d:%d], v%d, s[4:7], s39 offen sc1" % (CK, CK + 3, V_L16))
    a("buffer_load_dwordx4 v[%d:%d], v%d, s[4:7], s39 offen offset:1024 sc1" % (CK + 4, CK + 7, V_L16))
    a("s_branch L_qkv_nocs")
    a("L_qkv_cs0:")
    a("s_cmp_ge_u32 s%d, 4" % S_HQ)
    a("s_cbranch_scc1 L_qkv_nocs")
    for r in range(4):
        a("v_mov_b32 v%d, 0x3f803f80" % (G_CS + r))
    a("s_lshl_b32 s17, s%d, 11" % S_W)
    a("s_add_u32 s17, s17, %d" % LDS_CSX)
    a("v_add_u32 v%d, s17, v%d" % (G_CS + 4, V_L16))
    a("v_add_u32 v%d, %d, v%d" % (G_CS + 5, LDS_CSX, V_L16))
    a("s_bitcmp1_b32 s%d, 0" % S_HQ)
    a("s_cbranch_scc1 L_qkv_c1")
    for i in range(8):
        mf(a, G_ACC, ar(128 + 4 * i, 4), vr(G_CS, 4), "0" if i == 0 else vr(G_ACC, 16))
    a("s_branch L_qkv_c2")
    a("L_qkv_c1:")
    for i in range(8):
        mf(a, G_ACC, vr(G_CS, 4), ar(128 + 4 * i, 4), "0" if i == 0 else vr(G_ACC, 16))
    a("L_qkv_c2:")
    a("ds_write_b128 v%d, v[%d:%d]" % (G_CS + 4, G_ACC + 8, G_ACC + 11))
    a("ds_write_b128 v%d, v[%d:%d] offset:1024" % (G_CS + 4, G_ACC + 12, G_ACC + 15))
    a("s_waitcnt lgkmcnt(0)")
    a("s_barrier")
    for w in range(4):
        for q in range(2):
            a("ds_read_b128 v[%d:%d], v%d offset:%d" % (G_RED + 8 * w + 4 * q, G_RED + 8 * w + 4 * q + 3, G_CS + 5, 2048 * w + 1024 * q))
    a("s_waitcnt lgkmcnt(0)")
    for e in range(8):
        a("v_add_f32 v%d, v%d, v%d" % (G_RED + e, G_RED + e, G_RED + 8 + e))
        a("v_add_f32 v%d, v%d, v%d" % (G_RED + 16 + e, G_RED + 16 + e, G_RED + 24 + e))
        a("v_add_f32 v%d, v%d, v%d" % (CK + e, G_RED + e, G_RED + 16 + e))
    a("buffer_store_dwordx4 v[%d:%d], v%d, s[4:7], s39 offen sc1" % (CK, CK + 3, V_L16))
    a("buffer_store_dwordx4 v[%d:%d], v%d, s[4:7], s39 offen offset:1024 sc1" % (CK + 4, CK + 7, V_L16))
    a("L_qkv_nocs:")
    stamp(a, cfg, 8)
    xin_flag_addr(a, 38, False, 0)
    poll(a, cfg, 38, G_T + 6, G_T + 4)
    stamp(a, cfg, 9)
    def b1_loads():
        for e in range(8):
            blk(a, ar(64 + 4 * e, 4), SB1, e, SC)
            tB[e] = a.vt()

    def cs_q():
        a("s_lshl_b32 s17, s%d, 10" % S_NT)
        a("s_add_u32 s17, s17, 0x%x" % OFF_CSQX)
        a("buffer_load_dwordx4 v[%d:%d], v%d, s[4:7], s17 offen sc1" % (G_CS, G_CS + 3, V_L16))

    a("s_cmp_ge_u32 s%d, 4" % S_HQ)
    a("s_cbranch_scc1 L_qkv_stats")
    load_stats(a, G_ST, 30, G_T, SC)
    t_st = a.vt()
    tK = {}
    for i in range(8):
        blk(a, ar(224 + 4 * i, 4), 23, i, SC)
        tK[i] = a.vt()
    tB = {}
    b1_loads()
    stamp(a, cfg, 1)
    a.wait_vm(t_st)
    finish_stats(a, G_ST, V_NMU, V_RSTD)
    XS = LDS_KVX + 16384
    a("s_lshl_b32 s17, s%d, 8" % S_W)
    a("s_add_u32 s17, s17, %d" % XS)
    a("v_add_u32 v%d, s17, v%d" % (G_T + 4, G_T + 6))
    a("v_mul_f32 v%d, v%d, v%d" % (G_T + 5, V_NMU, V_RSTD))
    a("ds_write_b32 v%d, v%d" % (G_T + 4, V_RSTD))
    a("ds_write_b32 v%d, v%d offset:128" % (G_T + 4, G_T + 5))
    a("s_lshr_b32 s18, s%d, 1" % S_W)
    a("s_bitcmp1_b32 s%d, 0" % S_HQ)
    a("s_cselect_b32 s18, s18, 1")
    a("s_lshl_b32 s19, s18, 6")
    a("s_add_u32 s17, s17, s19")
    a("v_add_u32 v%d, s17, v%d" % (G_T + 4, G_T + 1))
    a("s_lshl_b32 s19, s18, 11")
    a("v_add_u32 v%d, s19, v%d" % (G_T + 3, G_T + 3))
    RS = G_ACC + 16
    for g in range(2):
        a("ds_read_b128 v[%d:%d], v%d offset:%d" % (RS + 4 * g, RS + 4 * g + 3, G_T + 4, 32 * g))
        a("ds_read_b128 v[%d:%d], v%d offset:%d" % (RS + 8 + 4 * g, RS + 8 + 4 * g + 3, G_T + 4, 128 + 32 * g))
    a("s_lshl_b32 s17, s%d, 10" % S_RT)
    a("s_add_u32 s34, s33, s17")
    a("s_bitcmp1_b32 s%d, 0" % S_HQ)
    a("s_cbranch_scc1 L_qkv_v1")
    for v in range(2):
        if v:
            a("L_qkv_v%d:" % v)
        for i in range(8):
            a.wait_vm(tK[i])
            x, w = ar(224 + 4 * i, 4), ar(128 + 4 * i, 4)
            c = "0" if i == 0 else vr(G_KVACC, 16)
            if v & 1:
                mf(a, G_KVACC, x, w, c)
            else:
                mf(a, G_KVACC, w, x, c)
        if v < 1:
            a("v_lshlrev_b32 v%d, 10, v%d" % (G_T + 4, V_LANE))
            a("s_branch L_qkv_kvred")
    a("v_lshlrev_b32 v%d, 10, v%d" % (G_T + 4, V_LANE))
    a("v_lshlrev_b32 v%d, 4, v%d" % (G_T + 5, V_R31))
    a("v_lshl_add_u32 v%d, v%d, 8, v%d" % (G_T + 5, V_H, G_T + 5))
    a("s_lshl_b32 s19, s18, 9")
    a("s_add_u32 s34, s34, s19")
    a("s_add_u32 s34, s34, 0x10000")
    a("s_lshl_b32 s19, s18, 2")
    a("s_add_u32 s37, s37, s19")
    for q in range(2):
        a("ds_write_b128 v%d, v[%d:%d] offset:%d" % (G_T + 2, G_KVACC + 4 * q, G_KVACC + 4 * q + 3, q * 1024))
    a("L_qkv_kvred:")
    stamp(a, cfg, 2)
    for q in range(2, 4):
        a("ds_write_b128 v%d, v[%d:%d] offset:%d" % (G_T + 2, G_KVACC + 4 * q, G_KVACC + 4 * q + 3, q * 1024))
    a("s_waitcnt lgkmcnt(0)")
    a("s_barrier")
    stamp(a, cfg, 3)
    a("s_and_b32 s17, s%d, 1" % S_W)
    a("s_cmp_lg_u32 s17, s36")
    a("s_cbranch_scc1 L_qkv_q")
    a("s_and_b32 s17, s%d, 1" % S_HQ)
    a("s_lshl_b32 s17, s17, 1")
    a("s_add_u32 s17, s17, 1")
    a("s_cmp_gt_u32 s%d, s17" % S_W)
    a("s_cbranch_scc1 L_qkv_q")
    RD = G_RED + 16
    for j in range(4):
        for q in range(2):
            a("ds_read_b128 v[%d:%d], v%d offset:%d" % (RD + 8 * j + 4 * q, RD + 8 * j + 4 * q + 3, G_T + 3, j * 4096 + q * 1024))
    a("s_waitcnt lgkmcnt(4)")
    for e in range(8):
        a("v_add_f32 v%d, v%d, v%d" % (RD + e, RD + e, RD + 8 + e))
    a("s_waitcnt lgkmcnt(0)")
    for e in range(8):
        a("v_add_f32 v%d, v%d, v%d" % (RD + 16 + e, RD + 16 + e, RD + 24 + e))
    for e in range(8):
        a("v_add_f32 v%d, v%d, v%d" % (RD + e, RD + e, RD + 16 + e))
    PK = RD + 8
    a("s_bitcmp1_b32 s%d, 0" % S_HQ)
    a("s_cbranch_scc1 L_qkv_vfin")
    for e in range(8):
        a("v_fmac_f32 v%d, v%d, v%d" % (RD + e, V_NMU, CK + e))
        a("v_mul_f32 v%d, v%d, v%d" % (RD + e, V_RSTD, RD + e))
    pack8(a, PK, RD)
    a("buffer_store_dwordx4 v[%d:%d], v%d, s[4:7], s34 offen %s" % (PK, PK + 3, V_L16, SC))
    a("v_mov_b32 v%d, 0" % (PK + 4))
    for r in range(4):
        a("v_dot2_f32_bf16 v%d, v%d, v%d, v%d" % (PK + 4, PK + r, PK + r, PK + 4))
    xhalf_sum(a, PK + 4, PK + 5)
    for d in ("row_shr:1", "row_shr:2", "row_shr:4", "row_shr:8"):
        a("v_max_f32_dpp v%d, v%d, v%d %s row_mask:0xf bank_mask:0xf" % (PK + 4, PK + 4, PK + 4, d))
    a("v_max_f32_dpp v%d, v%d, v%d row_bcast:15 row_mask:0xa bank_mask:0xf" % (PK + 4, PK + 4, PK + 4))
    a("v_readlane_b32 s18, v%d, 31" % (PK + 4))
    a("v_mov_b32 v%d, v%d" % (PK + 6, V_TAG))
    a("v_mov_b32 v%d, s18" % (PK + 7))
    a("s_waitcnt vmcnt(0)")
    a("s_mov_b64 exec, 0xff")
    a("buffer_store_dwordx2 v[%d:%d], v%d, s[4:7], s37 offen %s" % (PK + 6, PK + 7, G_T + 4, SC))
    a("s_mov_b64 exec, -1")
    a("s_branch L_qkv_q")
    a("L_qkv_vfin:")
    for e in range(8):
        a("v_mul_f32 v%d, v%d, v%d" % (RD + e, RS + e, RD + e))
        a("v_fmac_f32 v%d, v%d, v%d" % (RD + e, RS + 8 + e, CK))
    pack8(a, PK, RD)
    a("s_mov_b32 exec_lo, 0xffff\ns_mov_b32 exec_hi, 0xffff")
    a("buffer_store_dwordx4 v[%d:%d], v%d, s[4:7], s34 offen %s" % (PK, PK + 3, G_T + 5, SC))
    stamp(a, cfg, 5)
    a("s_waitcnt vmcnt(0)")
    a("s_mov_b64 exec, 0xff")
    a("buffer_store_dword v%d, v%d, s[4:7], s37 offen offset:8 %s" % (V_TAG, G_T + 4, SC))
    a("s_mov_b64 exec, -1")
    a("s_branch L_qkv_q")
    a("L_qkv_stats:")
    load_stats(a, G_ST, 30, G_T, SC)
    t_st = a.vt()
    b1_loads()
    a.wait_vm(t_st)
    finish_stats(a, G_ST, V_NMU, V_RSTD)
    a("L_qkv_q:")
    stamp(a, cfg, 10)
    bextra(a, V_NMU, G_CS + 4)
    tq = {}

    def h_probe():
        a("buffer_load_dword v%d, v%d, s[4:7], s59 offen sc1" % (VP, VPA))
        tq[0] = a.vt()

    def h_cs():
        a.wait_vm(tq[0])
        wcheck("q")
        cs_q()
        tq[1] = a.vt()
    gemm64_core(a, dict(cfg, stamps=cfg.get('stamps') and 2), 8, lambda i: ar(160 + 4 * i, 4), lambda i: ar(192 + 4 * i, 4), lambda e: ar(64 + 4 * e, 4),
                lambda e: blk(a, ar(64 + 4 * e, 4), SB1 if e < 8 else SB0, e % 8, SC), 16, pre_tickets=tB, ramp=12,
                side=[g[0] for g in SU.deferred_store_groups(sys.modules[__name__])], side_from=99, side_n=1, extra0=(vr(G_CS, 4), vr(G_CS + 4, 4), lambda: a.wait_vm(tq[1])),
                hooks={3: h_probe, 10: h_cs})
    a("v_mul_f32 v%d, %s, v%d" % (G_T, fl(QSCALE), V_RSTD))
    for e in range(16):
        a("v_mul_f32 v%d, v%d, v%d" % (G_ACC + e, G_T, G_ACC + e))
    pack8(a, G_Q, G_ACC)
    pack8(a, G_Q + 4, G_ACC + 8)
    if cfg.get("store_q"):
        a("s_lshl_b32 s17, s%d, 15" % S_RT)
        a("s_lshl_b32 s18, s%d, 11" % S_NT)
        a("s_add_u32 s17, s17, s18")
        a("s_add_u32 s17, s17, 0x%x" % OFF_Q)
        a("buffer_store_dwordx4 v[%d:%d], v%d, s[4:7], s17 offen" % (G_Q, G_Q + 3, V_L16))
        a("buffer_store_dwordx4 v[%d:%d], v%d, s[4:7], s17 offen offset:1024" % (G_Q + 4, G_Q + 7, V_L16))
    stamp(a, cfg, 11)


A_C = [24, 40]
A_O = [56, 72]
A_S = [88, 104]
A_P = [120, 124, 128, 132]
A_KF = [136, 140]
A_VF = [[144, 148], [152, 156]]
A_VK, A_VV, A_VINC = 160, 161, 162
A_T = 164
LDS_V = 65536
LDS_ONES = 131072
LDS_ATT_FLAG = LDS_ONES + 5120
UNR = 4


EARLY = 4
W2ORD = [7 * mm + tl for tl in range(7) for mm in range(4)]
W2POS = {k: p for p, k in enumerate(W2ORD)}


def w2load(a, idx, s0, s1):
    i = W2ORD[idx >> 1]
    blk(a, w2reg(idx & 1, i), s1 if idx & 1 else s0, i)


def w2reg(s, i):
    idx = 2 * W2POS[i] + s
    if idx < 32:
        return ar(128 + 4 * idx, 4)
    if idx < 46:
        return vr(W2V + 4 * (idx - 32), 4)
    if idx < 54:
        return vr(136 + 4 * (idx - 46), 4)
    return vr(190 + 4 * (idx - 54), 4)


SLOT13 = [0, 2, 1, 3, 0, 2, 1]


def dma13(a, i, part=None):
    slot = SLOT13[i]
    for hh in range(2):
        a("s_add_u32 m0, s%d, %d" % (S_WL, slot * 32768 + hh * 4096))
        a("s_add_u32 s29, s%d, %d" % (S_W13, i * 32768 + hh * 4096))
        for q in range(4):
            a("buffer_load_dwordx4 v%d, s[4:7], s29 offen offset:%d sc1 lds" % (V_L16, q * 1024))


def dma_lines(i):
    b = Asm()
    dma13(b, i)
    return [l.strip() for l in b.lines]


def phase_att(a, cfg):
    Q = [G_Q, G_Q + 4]
    SA0, SA1, SW0, SW1 = 24, 25, 26, 27
    a("v_mov_b32 v%d, 0x3f803f80" % (A_T + 4))
    if cfg.get("zpad", 1):
        a("v_and_b32 v%d, 2, v0" % (A_T + 5))
        a("v_cmp_eq_u32 vcc, 0, v%d" % (A_T + 5))
        a("v_cndmask_b32 v%d, v%d, v%d, vcc" % (A_T + 4, V_ZERO, A_T + 4))
    for r in range(1, 4):
        a("v_mov_b32 v%d, v%d" % (A_T + 4 + r, A_T + 4))
    a("v_lshlrev_b32 v%d, 4, v0" % (A_T + 2))
    a("v_add_u32 v%d, %d, v%d" % (A_T + 2, LDS_ONES, A_T + 2))
    a("ds_write_b128 v%d, v[%d:%d]" % (A_T + 2, A_T + 4, A_T + 7))
    a("ds_write_b128 v%d, v[%d:%d] offset:1024" % (A_T + 2, A_T + 4, A_T + 7))
    a("v_and_b32 v%d, 15, v%d" % (A_T + 2, V_LANE))
    a("v_lshlrev_b32 v%d, 4, v%d" % (A_T + 2, A_T + 2))
    a("v_lshl_add_u32 v%d, v%d, 8, v%d" % (A_T + 2, V_H, A_T + 2))
    a("v_add_u32 v%d, %d, v%d" % (A_VV, LDS_V, A_T + 2))
    a("v_add_u32 v%d, -20, v%d" % (A_T + 3, V_R31))
    a("v_cmp_gt_u32 vcc, 8, v%d" % (A_T + 3))
    a("v_mov_b32 v%d, %d" % (A_T + 2, LDS_ONES))
    a("v_mov_b32 v%d, %d" % (A_T + 3, LDS_ONES + 64))
    a("v_cndmask_b32 v%d, v%d, v%d, vcc" % (A_T + 2, A_T + 2, A_T + 3))
    if cfg.get("zpad", 1):
        a("v_and_b32 v%d, 27, v%d" % (A_T + 3, V_R31))
        a("v_cmp_ne_u32 vcc, 16, v%d" % (A_T + 3))
        a("v_add_u32 v%d, 32, v%d" % (A_T + 3, A_T + 2))
        a("v_cndmask_b32 v%d, v%d, v%d, vcc" % (A_T + 2, A_T + 2, A_T + 3))
    a("v_cmp_le_u32 vcc, 16, v%d" % V_R31)
    a("v_mov_b32 v%d, %d" % (A_VINC, UNR * 1024))
    a("v_cndmask_b32 v%d, v%d, v%d, vcc" % (A_VV, A_VV, A_T + 2))
    a("v_cndmask_b32 v%d, v%d, v%d, vcc" % (A_VINC, A_VINC, V_ZERO))
    for t in range(2):
        n = A_T + 8 + t
        a("v_mov_b32 v%d, 0" % n)
        for r in range(4):
            a("v_dot2_f32_bf16 v%d, v%d, v%d, v%d" % (n, Q[t] + r, Q[t] + r, n))
    for t in range(2):
        xhalf_sum(a, A_T + 8 + t, A_T + 10)
    a_addr(a, SA0, SA1, OFF_WO, 32, 8)
    a("s_mul_i32 s%d, s%d, %d" % (S_W13, S_M, 7 * 32768))
    a("s_lshl_b32 s%d, s%d, 13" % (S_WL, S_W))
    a("s_add_u32 s%d, s%d, s%d" % (S_W13, S_W13, S_WL))
    a("s_add_u32 s%d, s%d, 0x%x" % (S_W13, S_W13, OFF_W13))
    a_addr(a, SW0, SW1, OFF_W2, 112, 28)
    a("s_lshl_b32 s20, s%d, 10" % S_W)
    a("s_add_u32 s21, s33, s20")
    a("s_add_u32 s22, s21, 0x10000")
    a("s_add_u32 s23, s20, %d" % LDS_V)
    a("s_mul_i32 s38, s%d, 0x2000" % S_LAYER)
    a("s_add_u32 s38, s38, 0x%x" % (OFF_FLAGS + FL_KV))
    a("s_and_b32 s17, s2, 7")
    a("s_lshl_b32 s17, s17, 10")
    a("s_add_u32 s38, s38, s17")
    a("s_lshl_b32 s58, s2, 2")
    a("s_add_u32 s58, s58, 0x%x" % OFF_FLW)
    a("s_or_b32 s17, s%d, s%d" % (S_W, S_LAYER))
    a("s_cmp_lg_u32 s17, 0")
    a("s_cselect_b32 s58, 0xf0000000, s58")
    a("s_and_b32 s59, s2, 7")
    a("s_lshl_b32 s59, s59, 10")
    a("s_add_u32 s59, s59, 0x%x" % OFF_FLW)
    a("v_lshlrev_b32 v%d, 10, v%d" % (A_T + 16, V_LANE))
    a("s_getreg_b32 s17, hwreg(HW_REG_XCC_ID)")
    a("s_and_b32 s17, s17, 7")
    a("s_lshl_b32 s17, s17, 1")
    a("v_or_b32 v%d, s17, v%d" % (A_T + 17, V_TAG))
    a("v_and_b32 v%d, 15, v%d" % (A_T + 18, V_LANE))
    a("v_lshlrev_b32 v%d, 5, v%d" % (A_T + 18, A_T + 18))
    a("s_and_b32 s17, s2, 0x87")
    a("s_lshl_b32 s17, s17, 2")
    a("v_add_u32 v%d, s17, v%d" % (A_T + 18, A_T + 18))

    stamp(a, cfg, 1)
    a("s_cmp_lg_u32 s%d, 0" % S_W)
    a("s_cbranch_scc1 L_att_nopoll")
    poll(a, cfg, 38, V_L16, A_T + 12, wide=True, sleep=cfg.get("kv_sleep", 2))
    k2 = A_T + 13
    for d in ("row_shr:1", "row_shr:2", "row_shr:4", "row_shr:8"):
        a("v_max_f32_dpp v%d, v%d, v%d %s row_mask:0xf bank_mask:0xf" % (k2, k2, k2, d))
    a("v_max_f32_dpp v%d, v%d, v%d row_bcast:15 row_mask:0xa bank_mask:0xf" % (k2, k2, k2))
    a("v_max_f32_dpp v%d, v%d, v%d row_bcast:31 row_mask:0xc bank_mask:0xf" % (k2, k2, k2))
    a("v_mov_b32 v%d, %d" % (A_T + 12, LDS_ATT_FLAG + 16 - 63 * 4))
    a("v_add_u32 v%d, v%d, v%d" % (A_T + 12, V_L4, A_T + 12))
    a("s_mov_b32 exec_lo, 0")
    a("s_mov_b32 exec_hi, 0x80000000")
    a("ds_write_b32 v%d, v%d" % (A_T + 12, k2))
    a("s_mov_b64 exec, -1")
    a("s_waitcnt lgkmcnt(0)")
    a("L_att_nopoll:")
    a("s_waitcnt vmcnt(0)")
    a("s_barrier")
    a("s_mov_b64 exec, 0xff")
    a("buffer_store_dword v%d, v%d, s[4:7], s58 offen %s" % (A_T + 17, A_T + 16, SC))
    a("s_mov_b64 exec, -1")
    a("s_mov_b32 s%d, 0xf0000000" % SU.S_DST)
    stamp(a, cfg, 2)
    a("v_mov_b32 v%d, %d" % (A_T + 12, LDS_ATT_FLAG + 16))
    a("ds_read_b32 v%d, v%d" % (A_T + 1, A_T + 12))
    def kvdma(g):
        a("s_add_u32 m0, s20, %d" % (g * 4096))
        a("s_add_u32 s17, s21, %d" % (g * 4096))
        a("buffer_load_dwordx4 v%d, s[4:7], s17 offen %s lds" % (V_L16, SC))
        a("s_add_u32 m0, s23, %d" % (g * 4096))
        a("s_add_u32 s17, s22, %d" % (g * 4096))
        a("buffer_load_dwordx4 v%d, s[4:7], s17 offen %s lds" % (V_L16, SC))

    G1 = 6
    for g in range(G1):
        kvdma(g)
        if g == 3:
            t_g3 = a.vt()
            a("s_waitcnt lgkmcnt(0)")
            for t in range(2):
                n = A_T + 8 + t
                a("v_mul_f32 v%d, v%d, v%d" % (n, A_T + 1, n))
                a("v_sqrt_f32 v%d, v%d" % (n, n))
            for t in range(2):
                n = A_T + 8 + t
                a("v_mul_f32 v%d, %s, v%d" % (n, fl(-1.001), n))
            a("v_min_f32 v%d, v%d, v%d" % (A_T + 10, A_T + 8, A_T + 9))
            a("v_mov_b32 v%d, %s" % (A_T + 11, fl(-cfg.get("bound_t", BOUND_T))))
            a("v_cmp_nge_f32 vcc, v%d, v%d" % (A_T + 10, A_T + 11))
            a("s_lshl_b32 s19, s%d, 2" % S_W)
            a("s_add_u32 s19, s19, %d" % LDS_ATT_FLAG)
            a("v_mov_b32 v%d, s19" % (A_T + 12))
            a("s_cmp_lg_u64 vcc, 0")
            a("s_cselect_b32 s18, 1, 0")
            a("v_mov_b32 v%d, s18" % (A_T + 11))
            a("ds_write_b32 v%d, v%d" % (A_T + 12, A_T + 11))
            for t in range(2):
                for r in range(16):
                    a("v_mov_b32 v%d, v%d" % (A_C[t] + r, A_T + 8 + t))
    stamp(a, cfg, 3)
    a.wait_vm(t_g3)
    a("s_waitcnt lgkmcnt(0)")
    a("s_barrier")
    stamp(a, cfg, 4)
    a("v_mov_b32 v%d, %d" % (A_T + 12, LDS_ATT_FLAG))
    a("ds_read_b128 v[%d:%d], v%d" % (A_T + 4, A_T + 7, A_T + 12))
    a("ds_read_b128 v[%d:%d], v%d" % (A_KF[0], A_KF[0] + 3, V_L16))
    a("ds_read_b128 v[%d:%d], v%d" % (A_VF[0][0], A_VF[0][0] + 3, A_VV))
    a("ds_read_b128 v[%d:%d], v%d offset:512" % (A_VF[0][1], A_VF[0][1] + 3, A_VV))
    a("ds_read_b128 v[%d:%d], v%d offset:1024" % (A_KF[1], A_KF[1] + 3, V_L16))
    a("s_waitcnt lgkmcnt(4)")
    a("v_or_b32 v%d, v%d, v%d" % (A_T + 4, A_T + 4, A_T + 5))
    a("v_or3_b32 v%d, v%d, v%d, v%d" % (A_T + 4, A_T + 4, A_T + 6, A_T + 7))
    a("v_readfirstlane_b32 s18, v%d" % (A_T + 4))
    a("s_cmp_eq_u32 s18, 0")
    a("s_cbranch_scc1 L_att_fast")
    keep = a.dma_issued, a.vm_issued
    for g in range(G1, 16):
        kvdma(g)
    a.dma_issued, a.vm_issued = keep
    a("s_waitcnt vmcnt(0)")
    a("s_barrier")
    a("v_mov_b32 v%d, 0xff800000" % (A_T + 8))
    a("v_mov_b32 v%d, 0xff800000" % (A_T + 9))
    a("v_mov_b32 v%d, v%d" % (A_T + 12, V_L16))
    a("s_mov_b32 s19, 64")
    a("L_att_pre:")
    a("ds_read_b128 v[%d:%d], v%d" % (A_P[0], A_P[0] + 3, A_T + 12))
    a("v_add_u32 v%d, 1024, v%d" % (A_T + 12, A_T + 12))
    a("s_waitcnt lgkmcnt(0)")
    for t in range(2):
        mf(a, A_S[t], vr(A_P[0], 4), vr(Q[t], 4), "0")
    for t in range(2):
        for r in range(0, 16, 2):
            a("v_max3_f32 v%d, v%d, v%d, v%d" % (A_T + 8 + t, A_S[t] + r, A_S[t] + r + 1, A_T + 8 + t))
    a("s_sub_u32 s19, s19, 1")
    a("s_cmp_lg_u32 s19, 0")
    a("s_cbranch_scc1 L_att_pre")
    for t in range(2):
        n = A_T + 8 + t
        a("v_mov_b32 v%d, v%d" % (A_T + 10, n))
        a("v_permlane32_swap_b32 v%d, v%d" % (n, A_T + 10))
        a("v_max_f32 v%d, v%d, v%d" % (n, n, A_T + 10))
        a("v_sub_f32 v%d, 0, v%d" % (n, n))
        for r in range(16):
            a("v_mov_b32 v%d, v%d" % (A_C[t] + r, n))
    a("L_att_fast:")
    a("s_waitcnt lgkmcnt(0)")

    def m4(d, x, y, c):
        mf(a, d, vr(x, 4), vr(y, 4), vr(c, 16))

    def ex(r):
        a("v_exp_f32 v%d, v%d" % (r, r))

    def cv(d, s):
        a("v_cvt_pk_bf16_f32 v%d, v%d, v%d" % (d, s, s + 1))

    m4(A_S[0], A_KF[0], Q[0], A_C[0])
    a("s_nop 7")

    def lines_of(fn):
        b = Asm()
        fn(b)
        return [l.strip() for l in b.lines]

    def groups(lines):
        out, cur = [], []
        for x in lines:
            cur.append(x)
            if x.startswith("buffer_"):
                out.append(cur)
                cur = []
        assert not cur
        return out

    def kvl(g):
        return ["s_add_u32 m0, s20, %d" % (g * 4096), "s_add_u32 s17, s21, %d" % (g * 4096),
                "buffer_load_dwordx4 v%d, s[4:7], s17 offen %s lds" % (V_L16, SC),
                "s_add_u32 m0, s23, %d" % (g * 4096), "s_add_u32 s17, s22, %d" % (g * 4096),
                "buffer_load_dwordx4 v%d, s[4:7], s17 offen %s lds" % (V_L16, SC)]

    q_kv = []
    for g in range(G1, 16):
        q_kv += [(x, g) for x in groups(kvl(g))]
    q_w = []
    for i in range(8):
        q_w += groups(lines_of(lambda b: blk(b, ar(4 * i, 4), SA0, i)))
        q_w += groups(lines_of(lambda b: blk(b, ar(32 + 4 * i, 4), SA1, i)))
    for idx in range(46):
        q_w += groups(lines_of(lambda b: w2load(b, idx, SW0, SW1)))
    q_t = [["s_add_u32 s17, s49, %d" % (q * 4096), "buffer_load_dword v%d, v%d, s[4:7], s17 offen sc1" % (A_T + 3, A_T + 2)] for q in range(5)]
    if not cfg.get("touch13", 1):
        q_t = []
    q_d = groups(dma_lines(0) + dma_lines(1))
    a("s_mul_i32 s49, s%d, %d" % (S_M, 7 * 32768))
    a("s_and_b32 s18, s%d, 1" % S_RG)
    a("s_mul_i32 s18, s18, %d" % 81920)
    a("s_add_u32 s49, s49, s18")
    a("s_mul_i32 s18, s%d, %d" % (S_W, 20480))
    a("s_add_u32 s49, s49, s18")
    a("s_add_u32 s49, s49, 0x%x" % (OFF_W13 + 65536))
    a("v_lshlrev_b32 v%d, 6, v%d" % (A_T + 2, V_LANE))
    tg = {}
    U_PROBE, U_CHK = cfg.get("u_probe", 21), cfg.get("u_chk", 24)
    PB = A_T + 12
    def slot(u):
        grp, g = None, None
        if q_kv:
            grp, g = q_kv.pop(0)
        elif u == U_PROBE:
            a("buffer_load_dwordx4 v[%d:%d], v%d, s[4:7], s59 offen %s" % (PB, PB + 3, V_L16, SC))
            tg["probe"] = a.vt()
        elif u == U_CHK:
            assert not q_kv
            a("s_waitcnt vmcnt(0)")
            a("L_att_wchk:")
            for r in range(4):
                a("v_and_b32 v%d, -15, v%d" % (PB + r, PB + r))
            a("v_cmp_ne_u32 vcc, v%d, v%d" % (V_TAG, PB))
            for r in range(1, 4):
                a("v_cmp_ne_u32 s[18:19], v%d, v%d" % (V_TAG, PB + r))
                a("s_or_b64 vcc, vcc, s[18:19]")
            a("s_cmp_eq_u64 vcc, 0")
            a("s_cbranch_scc1 L_att_wok")
            if cfg.get("spin_limit"):
                a("s_sub_u32 s46, s46, 1")
                a("s_cbranch_scc1 L_att_wok")
            keep = a.vm_issued
            a("s_sleep 4")
            a("buffer_load_dwordx4 v[%d:%d], v%d, s[4:7], s59 offen %s" % (PB, PB + 3, V_L16, SC))
            a("s_waitcnt vmcnt(0)")
            a("s_branch L_att_wchk")
            a.vm_issued = keep
            a("L_att_wok:")
            a("buffer_load_dword v%d, v%d, s[4:7], s59 offen %s" % (PB, A_T + 18, SC))
            tg["grp"] = a.vt()
        elif u == U_CHK + 8:
            a.wait_vm(tg["grp"])
            a("v_cmp_ne_u32 vcc, v%d, v%d" % (A_T + 17, PB))
            a("s_cmp_eq_u64 vcc, 0")
            a("s_cselect_b32 s%d, %d, 0" % (S_LOC, 0 if cfg.get("force_remote") else 1))
        elif u < U_CHK:
            pass
        elif q_t and u >= cfg.get("t_from", 100) and (u - cfg.get("t_from", 100)) % cfg.get("t_every", 4) == 1:
            grp = q_t.pop(0)
        elif u >= 68 and q_d:
            grp = q_d.pop(0)
        elif q_w:
            grp = q_w.pop(0)
        if grp:
            for x in grp:
                a(x)
            if g is not None:
                tg[g] = a.vt()

    NU = 128
    BAR = {16: None, 36: None}
    for u in range(NU):
        j, t = u >> 1, u & 1
        nj, nt = (u + 1) >> 1, (u + 1) & 1
        pj, pt = (u - 1) >> 1, (u - 1) & 1
        jj = j % UNR
        sb, nsb = A_S[u % 2], A_S[(u + 1) % 2]
        plo, phi = A_P[(u % 2) * 2], A_P[(u % 2) * 2 + 1]
        pphi = A_P[((u - 1) % 2) * 2 + 1]
        if u + 1 < NU:
            m4(nsb, A_KF[nj % 2], Q[nt], A_C[nt])
        if t == 0 and j + 2 < 64:
            a("ds_read_b128 v[%d:%d], v%d offset:%d" % (A_KF[j % 2], A_KF[j % 2] + 3, V_L16, (j + 2) * 1024))
        if t == 1 and u > U_CHK and cfg.get('slot3', 0):
            slot(u)
        for r in range(0, 4):
            ex(sb + r)
        if u > 0:
            m4(A_O[pt], A_VF[pj % 2][1], pphi, A_O[pt])
        if t == 0 and j + 1 < 64:
            off = (jj + 1) * 1024
            a("ds_read_b128 v[%d:%d], v%d offset:%d" % (A_VF[(j + 1) % 2][0], A_VF[(j + 1) % 2][0] + 3, A_VV, off))
            a("ds_read_b128 v[%d:%d], v%d offset:%d" % (A_VF[(j + 1) % 2][1], A_VF[(j + 1) % 2][1] + 3, A_VV, off + 512))
        if t == 1:
            slot(u)
        for r in range(4, 9):
            ex(sb + r)
        for r in range(0, 4):
            cv(plo + r, sb + 2 * r)
        for r in range(9, 12):
            ex(sb + r)
        m4(A_O[t], A_VF[j % 2][0], plo, A_O[t]) if u > 1 else mf(a, A_O[t], vr(A_VF[j % 2][0], 4), vr(plo, 4), "0")
        if t == 1:
            a("s_waitcnt lgkmcnt(0)")
            if (j + 3) in BAR:
                g = BAR[j + 3]
                if g is not None:
                    a.wait_vm(tg[g])
                a("s_barrier")
                if j + 3 == 16:
                    stamp(a, cfg, 6)
        else:
            slot(u)
        for r in range(12, 16):
            ex(sb + r)
        if t == 1 and jj == UNR - 1:
            a("v_add_u32 v%d, v%d, v%d" % (A_VV, A_VINC, A_VV))
        for r in range(4, 8):
            cv(phi + r - 4, sb + 2 * r)
    assert not (q_kv or q_w or q_t or q_d), (len(q_kv), len(q_w), len(q_t), len(q_d))
    units = [(63, 1)]
    U = 128
    a("L_att_done:")
    DUAL[0] = bool(cfg.get("dual", 1))
    stamp(a, cfg, 7)
    lj, lt = units[-1]
    m4(A_O[lt], A_VF[lj % 2][1], A_P[((U - 1) % 2) * 2 + 1], A_O[lt])
    layer_off(a, 34, OFF_O, X_STRIDE)
    a("s_lshl_b32 s18, s%d, 15" % S_RT)
    a("s_add_u32 s34, s34, s18")
    a("s_lshl_b32 s18, s%d, 11" % S_NT)
    a("s_add_u32 s34, s34, s18")
    for t in range(2):
        a("v_rcp_f32 v%d, v%d" % (A_T, A_O[t] + 8))
        for r in range(8):
            a("v_mul_f32 v%d, v%d, v%d" % (A_O[t] + r, A_T, A_O[t] + r))
        pack8(a, A_P[t], A_O[t])
        st4(a, A_P[t], V_L16, 34, t * 1024)
    flag_addr(a, S_FO, FL_O, S_RB, 7, S_HQ)
    publish(a, S_FO, [(34, 2048, 0)])
    stamp(a, cfg, 8)


def phase_wo(a, cfg):
    SB0, SB1, SX = 26, 27, 28
    a("s_barrier")
    if not cfg.get("pf_att", 1):
        for i in range(8):
            blk(a, ar(4 * i, 4), 24, i)
            blk(a, ar(32 + 4 * i, 4), 25, i)
    b = Asm()
    dma13(b, 2)
    b("s_mul_i32 s29, s%d, %d" % (S_M, 7 * 1024))
    b("s_lshl_b32 s17, s%d, 11" % S_W)
    b("s_add_u32 s29, s29, s17")
    b("s_add_u32 m0, s17, %d" % LDS_CS)
    b("s_add_u32 s29, s29, 0x%x" % OFF_CSX)
    b("buffer_load_dwordx4 v%d, s[4:7], s29 offen sc1 lds" % V_L16)
    b("buffer_load_dwordx4 v%d, s[4:7], s29 offen offset:1024 sc1 lds" % V_L16)
    wside = [l.strip() for l in b.lines]
    wside2 = []
    if cfg.get("mix", 1):
        wside2, wside = wside, []
    elif cfg.get("t2_pre", 1):
        for x in wside:
            a(x)
        wside = []
    layer_off(a, SX, OFF_O, X_STRIDE)
    b_addr(a, SB0, SB1, SX, 32, 8)
    reduce_addr(a, LDS_R1)
    out_addr(a, 1)
    flag_addr(a, 38, FL_O, S_RB, 7)
    a("s_lshl_b32 s17, s%d, 5" % S_W)
    a("s_add_u32 s38, s38, s17")
    a("v_and_b32 v%d, 28, v%d" % (G_T + 5, V_L4))
    flag_addr(a, S_FX1, FL_X1, S_RG, 8, S_M)
    stamp(a, cfg, 8)
    poll(a, cfg, 38, G_T + 5, G_T + 4)
    stamp(a, cfg, 9)
    gemm64_core(a, cfg, 8, lambda i: ar(4 * i, 4), lambda i: ar(32 + 4 * i, 4), lambda e: ar(64 + 4 * e, 4),
                lambda e: blk(a, ar(64 + 4 * e, 4), SB1 if e < 8 else SB0, e % 8, SC), 16, ramp=cfg.get("ramp1", 8), resid=True,
                side=wside2, side_from=cfg.get("wo_side", 5), side_n=1)
    res_epilogue(a, cfg, 1, None)
    stamp(a, cfg, 10)
    publish(a, S_FX1, [(34, 2048, 0), (35, 256, 0)], between=wside)
    stamp(a, cfg, 11)


F_ACC = [24, 40, 56, 72]
NACC = 4
F_W = 88
F_CS = 120
F_H = 128
F_ST = 136
F_T = 168
F_LA = [184, 185]
F_NMU, F_C1, F_RS2, F_CSA, F_LG = 186, 187, 188, 189, 198
F_TA = 172


def phase_ffn1(a, cfg):
    SX, SH = 24, 27
    G3 = cfg.get("g0", 2) == 3
    if G3:
        a("s_mul_i32 s17, s%d, 6144" % S_W)
        a("s_sub_u32 s29, s%d, s%d" % (S_W13, S_WL))
        a("s_add_u32 s29, s29, s17")
        a("s_add_u32 m0, s17, %d" % LDS_E)
        a("s_add_u32 s29, s29, %d" % (4 * 32768))
        for q in range(4):
            a("buffer_load_dwordx4 v%d, s[4:7], s29 offen offset:%d sc1 lds" % (V_L16, q * 1024))
        a("s_add_u32 m0, s17, %d" % (LDS_E + 4096))
        a("s_add_u32 s29, s29, 4096")
        for q in range(2):
            a("buffer_load_dwordx4 v%d, s[4:7], s29 offen offset:%d sc1 lds" % (V_L16, q * 1024))
        a("s_lshl_b32 s28, s%d, 11" % S_W)
        a("s_sub_u32 s33, s%d, s%d" % (S_W13, S_WL))
        a("s_add_u32 s33, s33, s28")
        a("s_add_u32 s33, s33, %d" % (4 * 32768 + 24 * 1024))
    a("s_lshl_b32 s30, s%d, 2" % S_RG)
    a("s_add_u32 s30, s30, s%d" % S_W)
    layer_off(a, SX, OFF_X, X_STRIDE, 2, 1)
    a("s_lshl_b32 s17, s30, 15")
    a("s_add_u32 s%d, s%d, s17" % (SX, SX))
    a("s_add_u32 s25, s%d, %d" % (SX, 28 * 1024))
    layer_off(a, 26, OFF_STAT, STAT_STRIDE, 2, 1)
    a("s_lshl_b32 s18, s30, 12")
    a("s_add_u32 s26, s26, s18")
    layer_off(a, SH, OFF_H, H_STRIDE)
    a("s_mul_i32 s17, s30, %d" % (112 * 1024))
    a("s_add_u32 s%d, s%d, s17" % (SH, SH))
    a("s_mul_i32 s17, s%d, %d" % (S_M, 7 * 1024))
    a("s_add_u32 s%d, s%d, s17" % (SH, SH))
    a("v_mov_b32 v%d, v%d" % (F_LA[0], V_L16))
    a("v_add_u32 v%d, 65536, v%d" % (F_LA[1], V_L16))
    a("v_add_u32 v%d, %d, v%d" % (F_CSA, LDS_E, V_L16))
    a("v_and_b32 v%d, 0x380, v%d" % (F_TA, V_L128))
    a("v_add_u32 v%d, 4096, v%d" % (F_TA + 1, F_TA))
    a_addr(a, 53, 54, OFF_W2, 112, 28)
    flag_addr(a, 38, FL_X1, S_RG, 8)
    a("s_lshr_b32 s17, s%d, 1" % S_W)
    a("s_lshl_b32 s17, s17, 7")
    a("s_add_u32 s38, s38, s17")
    a("s_and_b32 s17, s%d, 1" % S_W)
    a("s_lshl_b32 s17, s17, 2")
    a("s_add_u32 s38, s38, s17")
    lane_pat(a, F_T + 2, 15, 0, 3)
    flag_addr(a, S_FH, FL_H, S_RG, 9, S_M, per_layer=0x2000)
    stamp(a, cfg, 1)
    a("s_barrier")
    if not cfg.get("mix", 1):
        dma13(a, 3)
    poll(a, cfg, 38, F_T + 2, F_T)
    stamp(a, cfg, 2)
    tX = {}

    def xload(i):
        if i < 28:
            blk(a, ar(4 * i, 4), SX, i, SC)
        else:
            blk(a, ar(4 * i, 4), 25, i - 28, SC)
        tX[i] = a.vt()

    XW = cfg.get("xwin", 14)
    for i in range(XW):
        xload(i)

    def wread(tile, ks, ring):
        slot = SLOT13[tile]
        if ks == 32:
            a("ds_read_b128 v[%d:%d], v%d offset:%d" % (F_W + 4 * ring, F_W + 4 * ring + 3, F_CSA, LDS_CS - LDS_E + tile * 1024))
            return
        if G3 and tile == 4:
            a("ds_read_b128 v[%d:%d], v%d offset:%d" % (F_W + 4 * ring, F_W + 4 * ring + 3, F_CSA if ks < 24 else F_LA[0], (ks % 24) * 1024))
            return
        a("ds_read_b128 v[%d:%d], v%d offset:%d" % (F_W + 4 * ring, F_W + 4 * ring + 3, F_LA[slot >> 1], (slot & 1) * 32768 + ks * 1024))

    def epi(tile):
        acc, cs = F_ACC[tile % NACC], F_CS
        hp = F_H + 4 * (tile % 2)
        out = []
        for e in range(8):
            out.append("v_fma_f32 v%d, v%d, v%d, v%d" % (F_T + 8 + e, F_C1, acc + e, F_LG))
        for e in range(8):
            out.append("v_exp_f32 v%d, v%d" % (F_T + 8 + e, F_T + 8 + e))
            out.append("v_mul_f32 v%d, v%d, v%d" % (acc + e, acc + e, acc + 8 + e))
            if e:
                out.append("v_add_f32 v%d, v%d, v%d" % (F_T + 7 + e, F_RS2, F_T + 7 + e))
        out.append("v_add_f32 v%d, v%d, v%d" % (F_T + 15, F_RS2, F_T + 15))
        for e in range(8):
            out.append("v_rcp_f32 v%d, v%d" % (F_T + 8 + e, F_T + 8 + e))
            if e:
                out.append("v_mul_f32 v%d, v%d, v%d" % (acc + e - 1, F_T + 7 + e, acc + e - 1))
        out.append("v_mul_f32 v%d, v%d, v%d" % (acc + 7, F_T + 15, acc + 7))
        for i in range(4):
            out.append("v_cvt_pk_bf16_f32 v%d, v%d, v%d" % (hp + i, acc + 2 * i, acc + 2 * i + 1))
        out.append("buffer_store_dwordx4 v[%d:%d], v%d, s[4:7], s%d offen offset:%d" % (hp, hp + 3, V_OFF[tile // 4], SH, (tile % 4) * 1024))
        if DBL[0]:
            out.append("buffer_store_dwordx4 v[%d:%d], v%d, s[4:7], s%d offen offset:%d" % (hp, hp + 3, V_OFF[tile // 4], SH, (tile % 4) * 1024))
        return out

    G0 = cfg.get("g0", 2)
    steps = []
    for ks in range(33):
        for tl in range(G0):
            steps.append((tl, ks))
    for tile in range(G0, 7):
        for ks in range(33):
            steps.append((tile, ks))
    N = len(steps)
    PF = cfg.get('pf', 6)
    lt = {}
    first_of, last_of = {}, {}
    for n, (tile, ks) in enumerate(steps):
        first_of.setdefault(tile, n)
        last_of[tile] = n
    dma_q = [(3, x) for x in dma_lines(3)] if cfg.get('mix', 1) else []
    fence_t, fence_n, fenced = {}, {}, set()

    def do_read(n):
        tile, ks = steps[n]
        if G3:
            ft = 5 if (tile, ks) == (4, 24) else (6 if (tile, ks) == (6, 0) else None)
            if ft:
                assert ft in fence_t and not any(q[0] <= ft for q in dma_q), ft
                a.wait_vm(fence_t[ft])
                a("s_barrier")
        elif n == first_of[tile] and tile >= (3 if cfg.get('mix', 1) else 4) and tile not in fenced:
            assert tile in fence_t and not any(q[0] == tile for q in dma_q), tile
            a.wait_vm(fence_t[tile])
            a("s_barrier")
        wread(tile, ks, n % 8)
        lt[n] = a.lt()

    cs_t = 0
    for n in range(PF):
        do_read(n)
    pending = []
    nx = XW
    nst, st_t, st_n, early_done, rb_done = 0, {}, {}, False, False
    for n, (tile, ks) in enumerate(steps):
        if tile >= G0 and ks == 0:
            stamp(a, cfg, 1 + tile)
        if tile == 0 and ks < 32:
            a.wait_vm(tX[ks])
        if n % 2 == 0:
            a.wait_lg(lt[min(n + 1, N - 1)])
            lg_done = lt[min(n + 1, N - 1)]
        acc = F_ACC[tile % NACC]
        if ks == 0 and tile >= NACC:
            assert nst > tile - NACC, (tile, nst)
        mf(a, acc, vr(F_W + 4 * (n % 8), 4), ar(4 * ks, 4) if ks < 32 else vr(F_CS, 4), "0" if ks == 0 else vr(acc, 16))
        if (tile == 0 or (tile < G0 and cfg.get('xfast', 0))) and nx < 32:
            xload(nx)
            nx += 1
            if nx == 32:
                load_stats(a, F_ST, 26, F_T, SC)
                t_st = a.vt()
        if n + PF < N:
            do_read(n + PF)
        if n == last_of[G0 - 1] + 2:
            a("s_barrier")
            if G3:
                dma_q += [(4, "s_mov_b32 m0, s28"), (4, "s_nop 0"),
                          (4, "buffer_load_dwordx4 v%d, s[4:7], s33 offen sc1 lds" % V_L16),
                          (4, "buffer_load_dwordx4 v%d, s[4:7], s33 offen offset:1024 sc1 lds" % V_L16)]
                for tl in (5, 6):
                    dma_q += [(tl, x) for x in dma_lines(tl)]
                b = Asm()
                for idx in range(46, 56):
                    w2load(b, idx, 53, 54)
                dma_q += [(99, l.strip()) for l in b.lines]
            else:
                for tl in range(4, 4 + G0):
                    dma_q += [(tl, x) for x in dma_lines(tl)]
        for old in range(G0, 3):
            if n == last_of[old] + 2:
                a("s_barrier")
                dma_q += [(old + 4, x) for x in dma_lines(old + 4)]
                if old == 2:
                    b = Asm()
                    for idx in range(46, 56):
                        w2load(b, idx, 53, 54)
                    dma_q += [(99, l.strip()) for l in b.lines]
        dcost = 0
        if dma_q and ((n >= cfg.get("d3_from", 38) and n % cfg.get("d3_every", 3) == 0) if tile < G0 else n % cfg.get("dma_every", 3) == 0):
            while dma_q:
                tl, x = dma_q.pop(0)
                a(x)
                dcost += cfg.get("dma_cost", 8)
                if x.startswith("buffer_load"):
                    fence_t[tl] = a.vt()
                    fence_n[tl] = n
                    break
        if n == last_of[G0 - 1] - G0 - 2:
            a.wait_vm(t_st)
            finish_stats(a, F_ST, F_NMU, F_RS2)
            a("v_mul_f32 v%d, %s, v%d" % (F_C1, fl(-LOG2E), F_RS2))
            a("v_mov_b32 v%d, v%d" % (F_RS2, F_ST + 1))
            a("v_log_f32 v%d, v%d" % (F_LG, F_ST + 1))
            bextra(a, F_NMU, F_CS)
        for tl in range(0, 6):
            if n == max(last_of[tl], last_of[G0 - 1]) + 3:
                pending += epi(tl)
        if nst >= EARLY and not rb_done and n >= st_n[EARLY - 1] + 1:
            if cfg.get("h_wt", 6) < EARLY:
                readback(a, [(SH, 1024 * EARLY, 0)])
                a("s_mov_b64 exec, -1")
                dcost += 24
            rb_done = n
        for tl in range(cfg.get("h_touch", 0)):
            if tl in st_n and n == st_n[tl] + cfg.get("touch_lag", 24):
                a("buffer_load_dword v%d, v%d, s[4:7], s%d offen offset:%d sc1" % (V_P2, F_TA + (tl // 4), SH, (tl % 4) * 1024))
                a.vm_issued -= 0
                dcost += 8
        cost = dcost
        lim = cfg.get("epi_cost", 16)
        while pending:
            x = pending[0]
            if x == "CSWAIT":
                pending.pop(0)
                if cs_t > lg_done:
                    a.wait_lg(cs_t)
                    cost += 4
                continue
            cx = 8 if x.split()[0] in TRANS else (8 if x.startswith("buffer_") else 4)
            if cost + cx > lim:
                break
            pending.pop(0)
            if x.startswith("buffer_store") and not G3:
                ok = [t for t in (3, 4, 5, 6) if t in fence_n and t not in fenced and not any(q[0] == t for q in dma_q)
                      and fence_n[t] + cfg.get("fence_age", 20) <= n
                      and (99 not in fence_n or (not dma_q and fence_n[99] + cfg.get("fence_age", 20) <= n))]
                if ok:
                    a.wait_vm(fence_t[max(ok)])
                    a("s_barrier")
                    fenced.update(ok)
            if x.startswith("buffer_store") and nst == EARLY + 1:
                assert rb_done
                assert not dma_q
                a("s_waitcnt vmcnt(0)")
                a("s_mov_b64 exec, 1")
                emit_l(a, "buffer_store_dword v%d, v%d, s[4:7], s%d offen offset:%d" % (V_TAG, V_ZERO, S_FH, 0x100))
                a("s_mov_b64 exec, -1")
                early_done = True
            if x.startswith("buffer_store") and nst < cfg.get("h_wt", 6):
                a(x + " sc1")
            elif x.startswith("buffer_store"):
                emit_l(a, x)
            else:
                a(x)
            cost += cx
            if x.startswith("ds_read"):
                cs_t = a.lt()
            if x.startswith("buffer_store"):
                nst += 1
                st_t[nst - 1] = a.vt()
                st_n[nst - 1] = n
    assert early_done
    assert not dma_q
    stamp(a, cfg, 8)
    for x in pending + epi(6):
        if x == "CSWAIT":
            a.wait_lg(cs_t)
            continue
        if x.startswith("buffer_store"):
            emit_l(a, x)
        else:
            a(x)
    stamp(a, cfg, 9)
    h0 = max(EARLY, cfg.get("h_wt", 6))
    assert nst >= cfg.get("h_wt", 6)
    a("s_add_u32 s17, s%d, %d" % (SH, h0 * 1024))
    publish(a, S_FH, [(17, 1024 * (7 - h0), 0)])
    stamp(a, cfg, 10)


def phase_ffn2(a, cfg):
    SB0, SB1, SX = 26, 27, 28
    SW0, SW1 = 24, 25
    side = []
    if cfg.get("touchq", 0):
        a("s_lshl_b32 s49, s%d, 16" % S_HQ)
        a("s_and_b32 s18, s%d, 3" % S_RB)
        a("s_lshl_b32 s18, s18, 14")
        a("s_add_u32 s49, s49, s18")
        a("s_lshl_b32 s18, s%d, 12" % S_W)
        a("s_add_u32 s49, s49, s18")
        a("s_add_u32 s49, s49, 0x%x" % OFF_WQ)
        a("s_cmp_eq_u32 s%d, 1" % S_LAYER)
        a("s_cselect_b32 s49, 0xf0000000, s49")
        a("v_lshlrev_b32 v%d, 6, v%d" % (G_T + 2, V_LANE))
        side.append("buffer_load_dword v%d, v%d, s[4:7], s49 offen" % (G_T + 3, G_T + 2))
    layer_off(a, SX, OFF_H, H_STRIDE)
    b_addr(a, SB0, SB1, SX, 112, 28)
    reduce_addr(a, LDS_R1)
    out_addr(a, 2)
    flag_addr(a, 38, FL_H, S_RG, 9, per_layer=0x2000)
    a("s_lshl_b32 s17, s%d, 6" % S_W)
    a("s_add_u32 s38, s38, s17")
    a("s_and_b32 s17, s%d, 1" % S_RB)
    a("s_lshl_b32 s17, s17, 3")
    a("s_add_u32 s38, s38, s17")
    lane_pat(a, G_T + 6, 7, 0, 2)
    xin_flag_addr(a, 39, True, 1)
    stamp(a, cfg, 8)
    poll(a, cfg, 38, G_T + 6, G_T + 4, imm=0x100)
    stamp(a, cfg, 9)
    wb = cfg.get("wbl2", 0)
    R = 32

    def hreg(e):
        return ar(4 * (e % R), 4)

    early = [7 * mm + tl for tl in range(EARLY) for mm in range(4)]
    late = [7 * mm + tl for tl in range(EARLY, 7) for mm in range(4)]
    order = [(1, i) for i in early] + [(0, i) for i in early] + [(1, i) for i in late] + [(0, i) for i in late]
    tp = {}

    def probe():
        a("buffer_load_dword v%d, v%d, s[4:7], s38 offen %s" % (G_T + 5, G_T + 6, SC))
        tp[0] = a.vt()

    def check():
        a.wait_vm(tp[0])
        a("v_cmp_ne_u32 vcc, v%d, v%d" % (V_TAG, G_T + 5))
        a("s_cbranch_vccz L_ffn2_go")
        keep = a.vm_issued
        poll(a, cfg, 38, G_T + 6, G_T + 4)
        a.vm_issued = keep
        a("L_ffn2_go:")
        if wb:
            a("s_lshr_b32 s17, s2, %d" % (3 if wb == 1 else 6))
            a("s_or_b32 s17, s17, s%d" % S_W)
            a("s_xor_b32 s18, s%d, 1" % S_LAYER)
            a("s_or_b32 s17, s17, s18")
            a("s_cmp_lg_u32 s17, 0")
            a("s_cbranch_scc1 L_ffn2_nowb")
            a("buffer_wbl2 sc1")
            a("L_ffn2_nowb:")
        stamp(a, cfg, 3)

    pp = cfg.get("probe_at", 16)
    gemm64_core(a, cfg, 28, lambda i: w2reg(0, i), lambda i: w2reg(1, i), hreg,
                lambda e: blk(a, hreg(e), SB1 if order[e][0] else SB0, order[e][1], SC), cfg.get('win2', 18), order=order,
                gate=(2 * len(early), probe, check, pp, pp), side=side, side_from=cfg.get('w2_side', 6), side_n=1,
                side2=wq_lines(), side2_from=cfg.get('wq_from', 32), dup_last=True, ramp=cfg.get('ramp2', 10), resid=True)
    res_epilogue(a, cfg, 2, "L_final")
    stamp(a, cfg, 10)
    publish(a, 39, [(34, 2048, 0), (35, 256, 0)])
    stamp(a, cfg, 11)


def final_store(a):
    a("v_permlane32_swap_b32 v%d, v%d" % (V_RES, V_RES + 2))
    a("v_permlane32_swap_b32 v%d, v%d" % (V_RES + 1, V_RES + 3))
    a("v_permlane32_swap_b32 v%d, v%d" % (V_RES + 4, V_RES + 6))
    a("v_permlane32_swap_b32 v%d, v%d" % (V_RES + 5, V_RES + 7))
    a("s_lshl_b32 s17, s%d, 15" % S_RT)
    a("s_lshl_b32 s18, s%d, 6" % S_NT)
    a("s_add_u32 s17, s17, s18")
    a("v_lshlrev_b32 v%d, 10, v%d" % (G_T + 2, V_R31))
    a("v_lshl_add_u32 v%d, v%d, 4, v%d" % (G_T + 2, V_H, G_T + 2))
    a("buffer_store_dwordx4 v[%d:%d], v%d, s[8:11], s17 offen" % (V_RES, V_RES + 3, G_T + 2))
    a("buffer_store_dwordx4 v[%d:%d], v%d, s[8:11], s17 offen offset:32" % (V_RES + 4, V_RES + 7, G_T + 2))


def st_begin(a, cfg):
    kern.stamp_init(a, cfg)


def st_end(a, cfg, k):
    if not cfg.get("stamps"):
        return
    stamp(a, cfg, NSTAMP - 1)
    a("s_memrealtime s[62:63]")
    a("s_waitcnt lgkmcnt(0)")
    a("s_mov_b32 s79, s62")
    a("s_mul_i32 s60, s3, 5\ns_add_u32 s60, s60, %d" % k)
    a("s_lshl_b32 s60, s60, 16")
    a("s_lshl_b32 s61, s2, 8")
    a("s_add_u32 s60, s60, s61")
    a("s_lshl_b32 s61, s12, 6")
    a("s_add_u32 s60, s60, s61")
    a("s_add_u32 s60, s60, 0x%x" % kern.OFF_STAMP)
    for i in range(16):
        a("v_writelane_b32 v199, s%d, %d" % (64 + i, i))
    a("s_mov_b32 exec_lo, 0xffff\ns_mov_b32 exec_hi, 0x0")
    a("buffer_store_dword v199, v%d, s[4:7], s60 offen" % V_L4)
    a("s_mov_b64 exec, -1")


def dbgt(a, cfg, k, last=False):
    if not cfg.get("dbgtime"):
        return
    L = a.newlabel("L_dt")
    a("s_cmp_lg_u32 s2, %d" % (cfg["dbgtime"] - 1))
    a("s_cbranch_scc1 %s" % L)
    a("s_memrealtime s[64:65]")
    a("s_memtime s[66:67]")
    a("s_mov_b32 s68, s98\ns_mov_b32 s69, s99\ns_mov_b32 s70, 256\ns_mov_b32 s71, 0x00020000")
    a("s_mul_i32 s72, s3, 20")
    a("s_waitcnt lgkmcnt(0)")
    a("s_sub_u32 s64, s64, s60")
    a("s_sub_u32 s66, s66, s62")
    a("v_mov_b32 v199, s64")
    a("buffer_store_dword v199, v%d, s[68:71], s72 offen offset:%d" % (V_ZERO, 4 + 4 * k))
    if last:
        a("v_mov_b32 v198, s66")
        a("buffer_store_dword v198, v%d, s[68:71], 0 offen offset:%d" % (V_ZERO, 4 * 13))
    a(L + ":")


KNAME = kern.NAME + "_kernel"


def build(cfg):
    rep = []
    DBL[0] = cfg.get("dbl", 0)
    TOUCH[0] = cfg.get("ptouch", 0)
    COMPACT[0] = cfg.get("compact", 1)
    DUAL[0] = False
    LSC[0] = cfg.get("lsc", "")
    RBW[0] = cfg.get("rbw", 0)
    SPLIT_DMA[0] = not cfg.get("mix", 1)
    global OFF_WKV
    if COMPACT[0]:
        OFF_WKV = SU.OFF_WKV = C_WKV
    a = Asm()
    a("s_load_dwordx16 s[80:95], s[0:1], 0")
    a("s_load_dwordx2 s[96:97], s[0:1], 64")
    a("s_load_dwordx2 s[98:99], s[0:1], 80")
    kern.common_prologue(a, True)
    a("v_mov_b32 v%d, 0" % V_ZERO)
    a("v_mov_b32 v199, 0")
    a("v_lshlrev_b32 v%d, 7, v%d" % (V_L128, V_LANE))
    a("v_lshlrev_b32 v%d, 2, v%d" % (V_L4, V_LANE))
    a("s_lshr_b32 s17, s%d, 1" % S_W)
    a("s_and_b32 s18, s%d, 1" % S_W)
    a("s_lshl_b32 s%d, s%d, 1" % (S_NT, S_HQ))
    a("s_add_u32 s%d, s%d, s17" % (S_NT, S_NT))
    a("s_lshl_b32 s%d, s%d, 1" % (S_RT, S_RB))
    a("s_add_u32 s%d, s%d, s18" % (S_RT, S_RT))
    a("s_mov_b32 s%d, 0" % S_LAYER)
    if cfg.get("spin_limit"):
        a("s_mov_b32 s46, %d" % cfg["spin_limit"])
    if cfg.get("dbgtime"):
        a("s_memrealtime s[60:61]")
        a("s_memtime s[62:63]")
        a("s_waitcnt lgkmcnt(0)")
    st_begin(a, cfg)
    SU.startup(a, cfg, sys.modules[__name__])
    dbgt(a, cfg, 0)
    a_addr(a, S_Q0, S_Q1, OFF_WQ, 32, 8)
    a("s_lshl_b32 s%d, s%d, 13" % (S_KVW, S_W))
    a("s_add_u32 s%d, s%d, 0x%x" % (S_KVW, S_KVW, OFF_WKV))
    a("s_and_b32 s17, s2, 7")
    a("s_lshl_b32 s17, s17, 15")
    a("s_add_u32 s%d, s%d, s17" % (S_KVW, S_KVW))
    a("s_cmp_ge_u32 s%d, 4" % S_HQ)
    a("s_cselect_b32 s%d, s%d, s%d" % (S_KVW, S_Q0, S_KVW))
    st_end(a, cfg, 0)
    a("L_layer:")
    for k, ph in enumerate((phase_qkv, phase_att, phase_wo, phase_ffn1, phase_ffn2)):
        st_begin(a, cfg)
        ph(a, cfg)
        st_end(a, cfg, k + 1)
        dbgt(a, cfg, k + 1)
    a("s_mov_b32 s%d, 1" % S_LAYER)
    a("s_branch L_layer")
    a("L_final:")
    final_store(a)
    st_end(a, cfg, 5)
    dbgt(a, cfg, 5, True)
    a("L_exit:")
    a("s_endpgm")
    main_lines, _ = fix_hazards_fast(kern.uniq(a.lines, "main"), rep)

    pf = cfg.get("pfk", 0)
    if pf:
        b = Asm()
        b("s_cmp_ge_u32 s2, 256")
        b("s_cbranch_scc1 L_pf_end")
        b("s_load_dwordx16 s[16:31], s[0:1], 0")
        b("s_load_dwordx2 s[32:33], s[0:1], 64")
        b("s_getpc_b64 s[4:5]")
        b("L_pf_pc:")
        b("s_add_u32 s4, s4, L_code_begin-L_pf_pc")
        b("s_addc_u32 s5, s5, -1")
        b("s_lshr_b32 s6, s2, 3")
        b("s_and_b32 s7, s2, 7")
        b("s_lshl_b32 s8, s6, 11")
        b("v_lshlrev_b32 v1, 3, v0")
        b("v_add_u32 v1, s8, v1")
        b("v_min_u32 v1, L_code_end-L_code_begin-8, v1")
        b("global_load_dwordx2 v[2:3], v1, s[4:5]")
        if pf >= 2:
            b("v_lshlrev_b32 v1, 6, v0")
            b("s_lshl_b32 s8, s6, 14")
            b("v_add_u32 v4, s8, v1")
            b("s_lshl_b32 s9, s7, 18")
            b("s_lshl_b32 s10, s6, 13")
            b("s_add_u32 s9, s9, s10")
            b("v_lshlrev_b32 v5, 5, v0")
            b("v_add_u32 v5, s9, v5")
            b("s_mul_i32 s11, s2, 7168")
            b("v_mul_u32_u24 v6, 28, v0")
            b("v_add_u32 v6, s11, v6")
            b("s_lshl_b32 s11, s2, 11")
            b("v_lshlrev_b32 v7, 3, v0")
            b("v_add_u32 v7, s11, v7")
            b("s_waitcnt lgkmcnt(0)")
            b("global_load_dword v8, v4, s[18:19]")
            b("global_load_dword v9, v5, s[16:17]")
            b("global_load_dword v10, v1, s[20:21]")
            b("global_load_dword v11, v1, s[22:23]")
            b("global_load_dword v12, v6, s[28:29]")
            b("global_load_dword v13, v6, s[30:31]")
            b("global_load_dword v14, v6, s[32:33]")
            b("global_load_dword v15, v7, s[24:25]")
        b("L_pf_end:")
        b("s_endpgm")
        pfl, _ = fix_hazards_fast(["L_code_begin:", "L_code_end:"] + b.lines, rep)
        main_lines2 = [".p2align 8", "pf_kernel:"] + pfl[2:]
        s = "; @launch kernel=pf_kernel grid=(256,1,1) block=(256,1,1) lds=0\n"
        s += "; @launch kernel=%s grid=(256,1,1) block=(256,1,1) lds=%d\n" % (KNAME, 160 * 1024)
    else:
        main_lines2 = []
        s = "; @launch grid=(256,1,1) block=(256,1,1) lds=%d\n" % (160 * 1024)
    s += '.amdgcn_target "amdgcn-amd-amdhsa--gfx950"\n.text\n.globl %s\n.p2align 8\n.type %s,@function\n' % (KNAME, KNAME)
    s += "\n".join(["L_code_begin:", KNAME + ":"] + main_lines + ["L_code_end:"] + main_lines2) + "\n"
    s += '.section .rodata,"a"\n.p2align 6\n' + kernel_desc(KNAME, 512, 256, 102)
    if pf:
        s += ".p2align 6\n" + kernel_desc("pf_kernel", 16, 16, 40)
    return s, rep


if __name__ == "__main__":
    cfg = dict(code_prefetch=True)
    for kv in sys.argv[2:]:
        k, v = kv.split("=")
        cfg[k] = eval(v)
    s, rep = build(cfg)
    open(sys.argv[1], "w").write(s)
    print("auto nops:", sum(r[0] for r in rep), "sites", len(rep), "bytes of source", len(s))
    if cfg.get("verbose"):
        for r in rep:
            print(r)
```

```python
import struct, sys
from asmlib import *
from layout import *

NAME = "interleave_layers__grouped_kv_mqa__glu_gated_swiglu__prompt"


def f2u(x):
    return struct.unpack("<I", struct.pack("<f", x))[0]


def fl(x):
    return "0x%08x" % f2u(x)


MF = "v_mfma_f32_32x32x16_bf16"

S_LAYER = 3
SRD_WS = 4
SRD_AUX = 8
S_W = 12
S_RB, S_HQ, S_RG, S_M = 13, 14, 15, 16
V_TID, V_L16, V_LANE, V_R31, V_H = 0, 1, 2, 3, 4
V_OFF = [1, 5, 6, 7, 8, 9, 10]
V_FIRST = 12


def blk(a, dst, sbase, i, sc=""):
    a("buffer_load_dwordx4 %s, v%d, s[4:7], s%d offen offset:%d %s" % (dst, V_OFF[i // 4], sbase, (i % 4) * 1024, sc))


OFF_STAMP = 0x2600000
NSTAMP = 14


def stamp(a, cfg, i):
    if not cfg.get("stamps"):
        return
    a("s_memtime s[62:63]")
    a("s_waitcnt lgkmcnt(0)")
    a("s_mov_b32 s%d, s62" % (64 + i))


def stamp_init(a, cfg):
    if not cfg.get("stamps"):
        return
    for i in range(NSTAMP):
        a("s_mov_b32 s%d, 0" % (64 + i))
    a("s_memrealtime s[62:63]")
    a("s_waitcnt lgkmcnt(0)")
    a("s_mov_b32 s78, s62")
    stamp(a, cfg, 0)


def stamp_flush(a, cfg, idx_expr):
    if not cfg.get("stamps"):
        return
    a("s_waitcnt vmcnt(0)")
    stamp(a, cfg, NSTAMP - 1)
    a("s_memrealtime s[62:63]")
    a("s_waitcnt lgkmcnt(0)")
    a("s_mov_b32 s79, s62")
    a(idx_expr)
    a("s_lshl_b32 s60, s60, 16")
    a("s_lshl_b32 s61, s2, 8")
    a("s_add_u32 s60, s60, s61")
    a("s_lshl_b32 s61, s12, 6")
    a("s_add_u32 s60, s60, s61")
    a("s_add_u32 s60, s60, 0x%x" % OFF_STAMP)
    a("v_mov_b32 v12, 0")
    for i in range(16):
        a("v_mov_b32 v13, s%d" % (64 + i))
        a("buffer_store_dword v13, v12, s[4:7], s60 offen offset:%d" % (4 * i))


def common_prologue(a, need_out=False):
    a("s_cmp_ge_u32 s2, 256")
    a("s_cbranch_scc1 L_exit")
    a("s_load_dwordx2 s[4:5], s[0:1], 88")
    if need_out:
        a("s_load_dwordx2 s[8:9], s[0:1], 72")
    a("v_and_b32 v%d, 63, v0" % V_LANE)
    a("v_lshrrev_b32 v%d, 6, v0" % V_H)
    a("v_lshlrev_b32 v%d, 4, v%d" % (V_L16, V_LANE))
    a("v_readfirstlane_b32 s%d, v%d" % (S_W, V_H))
    a("v_and_b32 v%d, 31, v0" % V_R31)
    a("v_lshrrev_b32 v%d, 5, v%d" % (V_H, V_LANE))
    for j in range(1, 7):
        a("v_add_u32 v%d, %d, v%d" % (V_OFF[j], 4096 * j, V_L16))
    a("s_and_b32 s17, s2, 7")
    a("s_lshr_b32 s18, s2, 3")
    a("s_lshl_b32 s%d, s17, 1" % S_RG)
    a("s_lshr_b32 s19, s18, 4")
    a("s_add_u32 s%d, s%d, s19" % (S_RG, S_RG))
    a("s_and_b32 s%d, s18, 15" % S_M)
    a("s_and_b32 s%d, s18, 7" % S_HQ)
    a("s_lshl_b32 s%d, s17, 2" % S_RB)
    a("s_lshr_b32 s19, s18, 3")
    a("s_add_u32 s%d, s%d, s19" % (S_RB, S_RB))
    a("s_mov_b32 s6, 0x%x" % (WS_USED + 0x200000))
    a("s_mov_b32 s7, 0x00020000")
    if need_out:
        a("s_mov_b32 s10, %d" % (2048 * 512 * 2))
        a("s_mov_b32 s11, 0x00020000")
    a("s_waitcnt lgkmcnt(0)")


def xhalf_sum(a, v, tmp):
    a("v_mov_b32 v%d, v%d" % (tmp, v))
    a("v_permlane32_swap_b32 v%d, v%d" % (v, tmp))
    a("v_add_f32 v%d, v%d, v%d" % (v, v, tmp))


def load_stats(a, st, s_off, vtmp, sc=""):
    a("v_lshlrev_b32 v%d, 4, v%d" % (vtmp, V_R31))
    a("v_lshl_add_u32 v%d, v%d, 11, v%d" % (vtmp, V_H, vtmp))
    for q in range(4):
        a("buffer_load_dwordx4 v[%d:%d], v%d, s[4:7], s%d offen offset:%d %s" % (st + 4 * q, st + 4 * q + 3, vtmp, s_off, 512 * q, sc))


def finish_stats(a, st, nmu, rstd):
    for q in (4, 2, 1):
        for i in range(q):
            a("v_add_f32 v%d, v%d, v%d" % (st + 2 * i, st + 2 * i, st + 2 * (i + q)))
            a("v_add_f32 v%d, v%d, v%d" % (st + 2 * i + 1, st + 2 * i + 1, st + 2 * (i + q) + 1))
    a("v_mov_b32 v%d, v%d" % (st + 2, st))
    a("v_mov_b32 v%d, v%d" % (st + 3, st + 1))
    a("v_permlane32_swap_b32 v%d, v%d" % (st, st + 2))
    a("v_permlane32_swap_b32 v%d, v%d" % (st + 1, st + 3))
    a("v_add_f32 v%d, v%d, v%d" % (st, st, st + 2))
    a("v_add_f32 v%d, v%d, v%d" % (st + 1, st + 1, st + 3))
    a("v_mul_f32 v%d, %s, v%d" % (nmu, fl(-1.0 / 512), st))
    a("v_mul_f32 v%d, %s, v%d" % (st + 1, fl(1.0 / 512), st + 1))
    a("v_fma_f32 v%d, -v%d, v%d, v%d" % (st + 1, nmu, nmu, st + 1))
    a("v_max_f32 v%d, 0, v%d" % (st + 1, st + 1))
    a("v_add_f32 v%d, %s, v%d" % (st + 1, fl(1e-5), st + 1))
    a("v_rsq_f32 v%d, v%d" % (rstd, st + 1))


def split3(a, x, d):
    a("v_cvt_pk_bf16_f32 v%d, v%d, v%d" % (d, x, x))
    a("v_and_b32 v%d, 0xffff0000, v%d" % (d, d))
    a("v_sub_f32 v%d, v%d, v%d" % (d + 3, x, d))
    a("v_cvt_pk_bf16_f32 v%d, v%d, v%d" % (d + 1, d + 3, d + 3))
    a("v_and_b32 v%d, 0xffff0000, v%d" % (d + 1, d + 1))
    a("v_sub_f32 v%d, v%d, v%d" % (d + 3, d + 3, d + 1))
    a("v_cvt_pk_bf16_f32 v%d, v%d, v%d" % (d + 2, d + 3, d + 3))
    a("v_and_b32 v%d, 0xffff0000, v%d" % (d + 2, d + 2))


def pack8(a, dst, src):
    for i in range(4):
        a("v_cvt_pk_bf16_f32 v%d, v%d, v%d" % (dst + i, src + 2 * i, src + 2 * i + 1))


def prep(a, cfg):
    a("s_cmp_ge_u32 s2, 256")
    a("s_cbranch_scc1 L_exit")
    stamp_init(a, cfg)
    a("s_load_dwordx16 s[16:31], s[0:1], 0")
    a("s_load_dwordx2 s[32:33], s[0:1], 64")
    a("s_load_dwordx2 s[4:5], s[0:1], 88")
    a("v_and_b32 v2, 63, v0")
    a("v_lshrrev_b32 v4, 6, v0")
    a("v_lshlrev_b32 v1, 4, v2")
    a("v_readfirstlane_b32 s12, v4")
    a("v_and_b32 v3, 31, v0")
    a("v_lshrrev_b32 v4, 5, v2")
    a("s_mov_b32 s6, 0x%x" % (WS_USED + 0x200000))
    a("s_mov_b32 s7, 0x00020000")
    a("s_mov_b32 s11, 0x00020000")
    a("s_mov_b32 s39, 0x00020000")
    a("s_and_b32 s13, s2, 7")
    a("s_lshl_b32 s13, s13, 3")
    a("s_bfe_u32 s14, s2, 0x30003")
    a("s_add_u32 s13, s13, s14")
    a("s_lshr_b32 s14, s2, 6")
    a("s_lshl_b32 s14, s14, 2")
    a("s_add_u32 s14, s14, s12")
    a("s_lshl_b32 s15, s13, 15")
    a("s_lshl_b32 s40, s14, 6")
    a("s_add_u32 s15, s15, s40")
    a("v_lshlrev_b32 v5, 10, v3")
    a("v_lshl_add_u32 v5, v4, 4, v5")
    a("s_waitcnt lgkmcnt(0)")
    a("s_mov_b32 s8, s16")
    a("s_mov_b32 s9, s17")
    a("s_mov_b32 s10, %d" % (2048 * 512 * 2))
    a("buffer_load_dwordx4 v[8:11], v5, s[8:11], s15 offen")
    a("buffer_load_dwordx4 v[12:15], v5, s[8:11], s15 offen offset:32")
    t_x = a.vt()
    stamp(a, cfg, 1)
    a("s_mov_b32 s45, 8")
    a("s_mov_b32 s44, 0")
    a("s_lshr_b32 s46, s12, 1")
    a("s_cmp_lt_u32 s2, 16")
    a("s_cbranch_scc1 L_p_wq")
    a("s_cmp_eq_u32 s2, 16")
    a("s_cbranch_scc1 L_p_wkv")
    a("s_cmp_lt_u32 s2, 33")
    a("s_cbranch_scc1 L_p_wo")
    a("s_cmp_lt_u32 s2, 145")
    a("s_cbranch_scc1 L_p_w13")
    a("s_cmp_lt_u32 s2, 209")
    a("s_cbranch_scc1 L_p_w2")
    a("s_mov_b32 s45, 0")
    a("s_branch L_p_xpart")
    a("L_p_wq:")
    a("s_mov_b32 s36, s18\ns_mov_b32 s37, s19\ns_mov_b32 s38, %d" % (512 * 512 * 2))
    a("s_mov_b32 s41, 1024")
    a("s_lshl_b32 s42, s2, 6\ns_lshl_b32 s47, s46, 5\ns_add_u32 s42, s42, s47")
    a("s_lshl_b32 s43, s2, 15\ns_add_u32 s43, s43, 0x%x" % OFF_WQ)
    a("s_lshl_b32 s44, s2, 7\ns_add_u32 s44, s44, 0x%x" % OFF_CSQ)
    a("s_branch L_p_go")
    a("L_p_wkv:")
    a("s_cmp_eq_u32 s46, 0")
    a("s_cselect_b32 s36, s22, s20\ns_cselect_b32 s37, s23, s21\ns_mov_b32 s38, %d" % (512 * 16 * 2))
    a("s_mov_b32 s41, 32\ns_mov_b32 s42, 0\ns_mov_b32 s43, 0x%x\ns_mov_b32 s44, 0x%x" % (OFF_WKV, OFF_CSKV))
    a("s_branch L_p_go")
    a("L_p_wo:")
    a("s_mov_b32 s36, s24\ns_mov_b32 s37, s25\ns_mov_b32 s38, %d" % (512 * 512 * 2))
    a("s_mov_b32 s41, 1024\ns_sub_u32 s48, s2, 17")
    a("s_lshl_b32 s42, s48, 6\ns_lshl_b32 s47, s46, 5\ns_add_u32 s42, s42, s47")
    a("s_lshl_b32 s43, s48, 15\ns_add_u32 s43, s43, 0x%x" % OFF_WO)
    a("s_branch L_p_go")
    a("L_p_w13:")
    a("s_cmp_eq_u32 s46, 0")
    a("s_cselect_b32 s36, s28, s30\ns_cselect_b32 s37, s29, s31\ns_mov_b32 s38, %d" % (512 * 1792 * 2))
    a("s_mov_b32 s41, 3584\ns_sub_u32 s48, s2, 33")
    a("s_lshl_b32 s42, s48, 5")
    a("s_lshl_b32 s43, s48, 15\ns_add_u32 s43, s43, 0x%x" % OFF_W13)
    a("s_lshl_b32 s44, s48, 7\ns_add_u32 s44, s44, 0x%x" % OFF_CS13)
    a("s_branch L_p_go")
    a("L_p_w2:")
    a("s_mov_b32 s36, s32\ns_mov_b32 s37, s33\ns_mov_b32 s38, %d" % (1792 * 512 * 2))
    a("s_mov_b32 s41, 1024\ns_sub_u32 s48, s2, 145")
    a("s_lshr_b32 s49, s48, 2\ns_and_b32 s48, s48, 3")
    a("s_mul_i32 s42, s48, %d" % (448 * 1024))
    a("s_lshl_b32 s47, s49, 6\ns_add_u32 s42, s42, s47\ns_lshl_b32 s47, s46, 5\ns_add_u32 s42, s42, s47")
    a("s_mul_i32 s43, s49, %d\ns_mul_i32 s47, s48, %d\ns_add_u32 s43, s43, s47\ns_add_u32 s43, s43, 0x%x" % (112 * 1024, 28 * 1024, OFF_W2))
    a("s_mov_b32 s45, 7")
    a("L_p_go:")
    a("v_and_b32 v6, 127, v0")
    a("v_lshrrev_b32 v7, 1, v6")
    a("v_and_b32 v6, 1, v6")
    a("v_mul_lo_u32 v16, v7, s41")
    a("v_lshl_add_u32 v16, v6, 4, v16")
    a("v_lshlrev_b32 v17, 6, v7")
    a("v_lshl_add_u32 v17, v6, 4, v17")
    a("s_lshl_b32 s47, s46, 5")
    a("v_add_u32 v17, s47, v17")
    a("s_lshl_b32 s47, s41, 6")
    for p in range(8):
        a("buffer_load_dwordx4 v[%d:%d], v16, s[36:39], s42 offen" % (20 + 4 * p, 23 + 4 * p))
        if p < 7:
            a("s_add_u32 s42, s42, s47")
    stamp(a, cfg, 2)
    for p in range(8):
        a("s_waitcnt vmcnt(%d)" % (7 - p))
        a("ds_write_b128 v17, v[%d:%d] offset:%d" % (20 + 4 * p, 23 + 4 * p, 4096 * p))
    a("v_and_b32 v6, 15, v2")
    a("v_lshrrev_b32 v7, 2, v6")
    a("v_and_b32 v6, 3, v6")
    a("v_lshlrev_b32 v18, 8, v4")
    a("v_lshl_add_u32 v18, v7, 6, v18")
    a("v_lshl_add_u32 v18, v6, 3, v18")
    a("v_bfe_u32 v6, v2, 4, 1")
    a("v_lshl_add_u32 v18, v6, 5, v18")
    a("s_mul_i32 s47, s12, s45")
    a("s_lshl_b32 s47, s47, 10")
    a("v_add_u32 v18, s47, v18")
    a("s_add_u32 s43, s43, s47")
    a("v_add_u32 v19, 4096, v1")
    a("s_waitcnt lgkmcnt(0)")
    stamp(a, cfg, 3)
    a("s_barrier")
    stamp(a, cfg, 4)
    for i in range(8):
        a("ds_read_b64_tr_b16 v[%d:%d], v18 offset:%d" % (20 + 4 * i, 21 + 4 * i, 1024 * i))
        a("ds_read_b64_tr_b16 v[%d:%d], v18 offset:%d" % (22 + 4 * i, 23 + 4 * i, 1024 * i + 512))
    a("v_mov_b32 v52, 0x3f803f80")
    a("v_mov_b32 v53, 0")
    for i in range(8):
        a("s_waitcnt lgkmcnt(%d)" % min(15, 14 - 2 * i))
        if i == 7:
            a("s_cmp_eq_u32 s45, 7")
            a("s_cbranch_scc1 L_p_skip7")
        a("buffer_store_dwordx4 v[%d:%d], v%d, s[4:7], s43 offen offset:%d" % (20 + 4 * i, 23 + 4 * i, 1 if i < 4 else 19, (i % 4) * 1024))
        for r in range(4):
            a("v_dot2_f32_bf16 v53, v%d, v52, v53" % (20 + 4 * i + r))
    a("L_p_skip7:")
    stamp(a, cfg, 5)
    a("s_cmp_eq_u32 s44, 0")
    a("s_cbranch_scc1 L_p_xpart")
    a("v_lshlrev_b32 v6, 2, v0")
    a("ds_write_b32 v6, v53 offset:32768")
    a("s_waitcnt lgkmcnt(0)")
    a("s_barrier")
    a("s_cmp_lg_u32 s12, 0")
    a("s_cbranch_scc1 L_p_xpart")
    a("v_lshlrev_b32 v6, 2, v3")
    for w in range(4):
        a("ds_read2_b32 v[%d:%d], v6 offset0:%d offset1:%d" % (56 + 2 * w, 57 + 2 * w, 0, 32) if False else
          "ds_read_b32 v%d, v6 offset:%d\nds_read_b32 v%d, v6 offset:%d" % (56 + 2 * w, 32768 + 256 * w, 57 + 2 * w, 32768 + 256 * w + 128))
    a("s_waitcnt lgkmcnt(0)")
    for q in (4, 2, 1):
        for i in range(q):
            a("v_add_f32 v%d, v%d, v%d" % (56 + i, 56 + i, 56 + i + q))
    a("buffer_store_dword v56, v6, s[4:7], s44 offen")
    a("s_cmp_lt_u32 s2, 33")
    a("s_cbranch_scc1 L_p_xpart")
    split3(a, 56, 60)
    a("v_lshrrev_b32 v57, 16, v60")
    a("v_or_b32 v20, v57, v60")
    a("v_lshrrev_b32 v58, 16, v61")
    a("v_or_b32 v21, v58, v60")
    a("v_lshrrev_b32 v58, 16, v62")
    a("v_or_b32 v22, v58, v61")
    a("v_mov_b32 v23, 0")
    a("v_cmp_gt_u32 vcc, 32, v2")
    a("v_cndmask_b32 v20, v23, v20, vcc")
    a("v_cndmask_b32 v21, v23, v21, vcc")
    a("v_cndmask_b32 v22, v23, v22, vcc")
    a("s_sub_u32 s48, s2, 33")
    a("s_lshl_b32 s48, s48, 10")
    a("s_add_u32 s48, s48, 0x%x" % OFF_CSX)
    a("buffer_store_dwordx4 v[20:23], v1, s[4:7], s48 offen")
    a("L_p_xpart:")
    stamp(a, cfg, 6)
    a("s_waitcnt vmcnt(0)")
    stamp(a, cfg, 7)
    a("v_permlane32_swap_b32 v8, v10")
    a("v_permlane32_swap_b32 v9, v11")
    a("v_permlane32_swap_b32 v12, v14")
    a("v_permlane32_swap_b32 v13, v15")
    a("s_lshl_b32 s15, s13, 15")
    a("s_lshl_b32 s40, s14, 11")
    a("s_add_u32 s15, s15, s40")
    a("s_add_u32 s15, s15, 0x%x" % OFF_X)
    a("buffer_store_dwordx4 v[8:11], v1, s[4:7], s15 offen")
    a("buffer_store_dwordx4 v[12:15], v1, s[4:7], s15 offen offset:1024")
    a("v_mov_b32 v52, 0x3f803f80")
    a("v_mov_b32 v54, 0")
    a("v_mov_b32 v55, 0")
    for r in range(8, 16):
        a("v_dot2_f32_bf16 v54, v%d, v52, v54" % r)
        a("v_dot2_f32_bf16 v55, v%d, v%d, v55" % (r, r))
    a("v_mov_b32 v56, v54")
    a("v_mov_b32 v57, v55")
    a("v_permlane32_swap_b32 v54, v56")
    a("v_permlane32_swap_b32 v55, v57")
    a("v_add_f32 v54, v54, v56")
    a("v_add_f32 v55, v55, v57")
    a("s_lshl_b32 s15, s13, 12")
    a("s_lshl_b32 s40, s14, 8")
    a("s_add_u32 s15, s15, s40")
    a("s_add_u32 s15, s15, 0x%x" % OFF_STAT)
    a("v_lshlrev_b32 v6, 3, v3")
    a("buffer_store_dwordx2 v[54:55], v6, s[4:7], s15 offen")
    a("v_mov_b32 v58, 0")
    a("s_lshl_b32 s15, s2, 8")
    a("s_add_u32 s15, s15, 0x%x" % OFF_FLAGS)
    a("v_lshlrev_b32 v6, 2, v2")
    a("buffer_store_dword v58, v6, s[4:7], s15 offen")
    stamp(a, cfg, 8)
    stamp_flush(a, cfg, "s_mov_b32 s60, 0")
    if cfg.get("code_prefetch"):
        a("s_getpc_b64 s[50:51]")
        a("L_p_pc:")
        a("s_add_u32 s50, s50, L_code_begin-L_p_pc")
        a("s_addc_u32 s51, s51, 0")
        a("s_lshr_b32 s52, s2, 3")
        a("s_lshl_b32 s52, s52, 11")
        a("v_lshlrev_b32 v6, 3, v0")
        a("v_add_u32 v6, s52, v6")
        a("v_cmp_gt_u32 vcc, L_code_end-L_code_begin-8, v6")
        a("s_and_saveexec_b64 s[54:55], vcc")
        a("s_cbranch_execz L_exit")
        a("global_load_dwordx2 v[60:61], v6, s[50:51]")
        a("s_waitcnt vmcnt(0)")


G_ACC = 16
G_ST = 80
G_CS = 96
G_T = 112
G_RED = 128
G_KVACC = 176
G_Q = 208
V_NMU, V_RSTD = 218, 219
V_WR = [220, 221, 222]
V_RD = 223


def gemm64_addr(a, s_a0, s_a1, s_b0, s_b1, offA, ksA, offB_sreg, ksB, ksw):
    a("s_lshr_b32 s17, s%d, 1" % S_W)
    a("s_and_b32 s18, s%d, 1" % S_W)
    a("s_lshl_b32 s19, s%d, 1" % S_HQ)
    a("s_add_u32 s19, s19, s17")
    a("s_mul_i32 s20, s%d, %d" % (S_W, ksw * 1024))
    a("s_mul_i32 s%d, s19, %d" % (s_a0, ksA * 1024))
    a("s_add_u32 s%d, s%d, s20" % (s_a0, s_a0))
    a("s_add_u32 s%d, s%d, 0x%x" % (s_a0, s_a0, offA))
    a("s_xor_b32 s21, s19, 1")
    a("s_mul_i32 s%d, s21, %d" % (s_a1, ksA * 1024))
    a("s_add_u32 s%d, s%d, s20" % (s_a1, s_a1))
    a("s_add_u32 s%d, s%d, 0x%x" % (s_a1, s_a1, offA))
    a("s_lshl_b32 s22, s%d, 1" % S_RB)
    a("s_add_u32 s22, s22, s18")
    a("s_mul_i32 s%d, s22, %d" % (s_b0, ksB * 1024))
    a("s_add_u32 s%d, s%d, s20" % (s_b0, s_b0))
    a("s_add_u32 s%d, s%d, s%d" % (s_b0, s_b0, offB_sreg))
    a("s_xor_b32 s21, s22, 1")
    a("s_mul_i32 s%d, s21, %d" % (s_b1, ksB * 1024))
    a("s_add_u32 s%d, s%d, s20" % (s_b1, s_b1))
    a("s_add_u32 s%d, s%d, s%d" % (s_b1, s_b1, offB_sreg))


def reduce_addr(a, base=0):
    for j in (1, 2, 3):
        a("s_xor_b32 s17, s%d, %d" % (S_W, j))
        a("s_mul_i32 s17, s17, 12288")
        a("s_add_u32 s17, s17, %d" % (base + (j - 1) * 4096))
        a("v_add_u32 v%d, s17, v%d" % (V_WR[j - 1], V_L16))
    a("s_mul_i32 s17, s%d, 12288" % S_W)
    a("s_add_u32 s17, s17, %d" % base)
    a("v_add_u32 v%d, s17, v%d" % (V_RD, V_L16))


def reduce4(a, cfg={}):
    stamp(a, cfg, 4)
    for j in (1, 2, 3):
        for q in range(4):
            r = G_ACC + 16 * j + 4 * q
            a("ds_write_b128 v%d, v[%d:%d] offset:%d" % (V_WR[j - 1], r, r + 3, q * 1024))
    a("s_waitcnt lgkmcnt(0)")
    stamp(a, cfg, 5)
    a("s_barrier")
    stamp(a, cfg, 6)
    for j in range(3):
        for q in range(4):
            r = G_RED + 16 * j + 4 * q
            a("ds_read_b128 v[%d:%d], v%d offset:%d" % (r, r + 3, V_RD, j * 4096 + q * 1024))
    for j in range(3):
        for q in range(4):
            a("s_waitcnt lgkmcnt(%d)" % (11 - (j * 4 + q)))
            for e in range(4):
                a("v_add_f32 v%d, v%d, v%d" % (G_ACC + 4 * q + e, G_ACC + 4 * q + e, G_RED + 16 * j + 4 * q + e))


def layer_off(a, sdst, base, stride, mul=1, add=0):
    a("s_mul_i32 s%d, s%d, 0x%x" % (sdst, S_LAYER, stride * mul))
    a("s_add_u32 s%d, s%d, 0x%x" % (sdst, sdst, base + add * stride))


def phase_qkv(a, cfg):
    sc = cfg.get("sc", "")
    SA0, SA1, SB0, SB1, SX, SKV = 24, 25, 26, 27, 28, 29
    layer_off(a, SX, OFF_X, X_STRIDE, 2, 0)
    gemm64_addr(a, SA0, SA1, SB0, SB1, OFF_WQ, 32, SX, 32, 8)
    a("s_lshl_b32 s%d, s%d, 13" % (SKV, S_W))
    a("s_add_u32 s%d, s%d, 0x%x" % (SKV, SKV, OFF_WKV))
    layer_off(a, 30, OFF_STAT, STAT_STRIDE, 2, 0)
    a("s_lshl_b32 s17, s22, 12")
    a("s_add_u32 s30, s30, s17")
    a("s_mov_b32 s31, s22")
    a("s_mov_b32 s32, s19")
    tB = []
    for i in range(8):
        blk(a, ar(64 + 4 * i, 4), SB0, i, sc)
        blk(a, ar(96 + 4 * i, 4), SB1, i, sc)
        blk(a, ar(128 + 4 * i, 4), SKV, i)
        tB.append(a.vt())
    load_stats(a, G_ST, 30, G_T, sc)
    t_st = a.vt()
    tA = []
    for i in range(8):
        blk(a, ar(0 + 4 * i, 4), SA0, i)
        blk(a, ar(32 + 4 * i, 4), SA1, i)
        tA.append(a.vt())
    a("s_lshl_b32 s17, s32, 7")
    a("s_add_u32 s17, s17, 0x%x" % OFF_CSQ)
    a("v_lshlrev_b32 v%d, 4, v%d" % (G_T + 1, V_H))
    for g in range(4):
        a("buffer_load_dwordx4 v[%d:%d], v%d, s[4:7], s17 offen offset:%d" % (G_CS + 4 * g, G_CS + 4 * g + 3, G_T + 1, 32 * g))
    t_cs = a.vt()
    reduce_addr(a, 0)
    layer_off(a, 33, OFF_KV, KV_STRIDE)
    stamp(a, cfg, 1)
    a("s_cmp_ge_u32 s%d, 2" % S_HQ)
    a("s_cbranch_scc1 L_qkv_nokv")
    KVL = 49152
    a("s_and_b32 s17, s%d, 1" % S_W)
    a("s_xor_b32 s17, s17, 1")
    a("s_lshl_b32 s17, s17, 1")
    a("s_lshr_b32 s18, s%d, 1" % S_W)
    a("s_add_u32 s17, s17, s18")
    a("s_lshl_b32 s17, s17, 12")
    a("s_add_u32 s17, s17, %d" % KVL)
    a("v_add_u32 v%d, s17, v%d" % (G_T + 2, V_L16))
    a("s_lshl_b32 s17, s%d, 12" % S_W)
    a("s_add_u32 s17, s17, %d" % (KVL + 16384))
    a("v_add_u32 v%d, s17, v%d" % (G_T + 3, V_L16))
    a("s_lshl_b32 s17, s%d, 12" % S_W)
    a("s_add_u32 s17, s17, %d" % KVL)
    a("v_add_u32 v%d, s17, v%d" % (G_T + 4, V_L16))
    a("v_add_u32 v%d, s17, v%d" % (G_T + 5, V_L16))
    a("s_lshl_b32 s17, s%d, 12" % S_W)
    a("v_add_u32 v%d, s17, v%d" % (G_T + 5, G_T + 5))
    a("s_cmp_eq_u32 s%d, 1" % S_HQ)
    a("s_cbranch_scc1 L_qkv_vacc")
    for i in range(8):
        a.wait_vm(tB[i])
        for j in range(2):
            a("%s v[%d:%d], %s, %s, %s" % (MF, G_KVACC + 16 * j, G_KVACC + 16 * j + 15, ar(128 + 4 * i, 4), ar(64 + 32 * j + 4 * i, 4),
                                          "0" if i == 0 else vr(G_KVACC + 16 * j, 16)))
    a("s_branch L_qkv_kvred")
    a("L_qkv_vacc:")
    for i in range(8):
        a.wait_vm(tB[i])
        for j in range(2):
            a("%s v[%d:%d], %s, %s, %s" % (MF, G_KVACC + 16 * j, G_KVACC + 16 * j + 15, ar(64 + 32 * j + 4 * i, 4), ar(128 + 4 * i, 4),
                                          "0" if i == 0 else vr(G_KVACC + 16 * j, 16)))
    a("L_qkv_kvred:")
    for q in range(4):
        a("ds_write_b128 v%d, v[%d:%d] offset:%d" % (G_T + 2, G_KVACC + 16 + 4 * q, G_KVACC + 16 + 4 * q + 3, q * 1024))
    for q in range(4):
        a("ds_write_b128 v%d, v[%d:%d] offset:%d" % (G_T + 3, G_KVACC + 4 * q, G_KVACC + 4 * q + 3, q * 1024))
    a("s_waitcnt lgkmcnt(0)")
    a("s_barrier")
    a("s_cmp_ge_u32 s%d, 2" % S_W)
    a("s_cbranch_scc1 L_qkv_nokv")
    for q in range(4):
        a("ds_read_b128 v[%d:%d], v%d offset:%d" % (G_RED + 4 * q, G_RED + 4 * q + 3, G_T + 5, q * 1024))
        a("ds_read_b128 v[%d:%d], v%d offset:%d" % (G_RED + 16 + 4 * q, G_RED + 16 + 4 * q + 3, G_T + 5, 4096 + q * 1024))
        a("ds_read_b128 v[%d:%d], v%d offset:%d" % (G_RED + 32 + 4 * q, G_RED + 32 + 4 * q + 3, G_T + 4, 16384 + 8192 + q * 1024))
    a("s_mov_b32 s17, 0x%x" % OFF_CSKV)
    a("buffer_load_dwordx4 v[%d:%d], v%d, s[4:7], s17 offen offset:64" % (G_KVACC + 16, G_KVACC + 19, G_T + 1))
    a("buffer_load_dwordx4 v[%d:%d], v%d, s[4:7], s17 offen offset:96" % (G_KVACC + 20, G_KVACC + 23, G_T + 1))
    a("v_lshlrev_b32 v%d, 2, v%d" % (G_T + 6, V_R31))
    a("buffer_load_dword v%d, v%d, s[4:7], s17 offen" % (G_KVACC + 24, G_T + 6))
    a.wait_vm(t_st)
    finish_stats(a, G_ST, V_NMU, V_RSTD)
    a("s_waitcnt lgkmcnt(0)")
    for j in range(3):
        for e in range(16):
            a("v_add_f32 v%d, v%d, v%d" % (G_KVACC + e, G_KVACC + e, G_RED + 16 * j + e))
    a("s_waitcnt vmcnt(0)")
    a("s_lshl_b32 s17, s31, 10")
    a("s_add_u32 s34, s33, s17")
    a("s_cmp_eq_u32 s%d, 1" % S_HQ)
    a("s_cbranch_scc1 L_qkv_vfin")
    for e in range(8):
        a("v_fmac_f32 v%d, v%d, v%d" % (G_KVACC + 8 + e, V_NMU, G_KVACC + 16 + e))
        a("v_mul_f32 v%d, v%d, v%d" % (G_KVACC + 8 + e, V_RSTD, G_KVACC + 8 + e))
    pack8(a, G_T + 8, G_KVACC + 8)
    a("buffer_store_dwordx4 v[%d:%d], v%d, s[4:7], s34 offen %s" % (G_T + 8, G_T + 11, V_L16, sc))
    a("v_mov_b32 v%d, 0" % (G_T + 12))
    for r in range(4):
        a("v_dot2_f32_bf16 v%d, v%d, v%d, v%d" % (G_T + 12, G_T + 8 + r, G_T + 8 + r, G_T + 12))
    xhalf_sum(a, G_T + 12, G_T + 13)
    for d in ("row_shr:1", "row_shr:2", "row_shr:4", "row_shr:8"):
        a("v_max_f32_dpp v%d, v%d, v%d %s row_mask:0xf bank_mask:0xf" % (G_T + 12, G_T + 12, G_T + 12, d))
    a("v_max_f32_dpp v%d, v%d, v%d row_bcast:15 row_mask:0xa bank_mask:0xf" % (G_T + 12, G_T + 12, G_T + 12))
    a("v_readlane_b32 s17, v%d, 31" % (G_T + 12))
    a("s_lshl_b32 s18, s31, 2")
    a("s_add_u32 s18, s18, s33")
    a("s_add_u32 s18, s18, 0x20000")
    a("v_mov_b32 v%d, s17" % (G_T + 13))
    a("v_mov_b32 v%d, 0" % (G_T + 14))
    a("buffer_store_dword v%d, v%d, s[4:7], s18 offen %s" % (G_T + 13, G_T + 14, sc))
    a("s_branch L_qkv_kvdone")
    a("L_qkv_vfin:")
    a("s_lshl_b32 s17, s%d, 8" % S_W)
    a("s_add_u32 s17, s17, %d" % (KVL + 32768))
    a("v_add_u32 v%d, s17, v%d" % (G_T + 7, G_T + 6))
    a("v_mul_f32 v%d, v%d, v%d" % (G_T + 8, V_NMU, V_RSTD))
    a("ds_write_b32 v%d, v%d" % (G_T + 7, V_RSTD))
    a("ds_write_b32 v%d, v%d offset:128" % (G_T + 7, G_T + 8))
    a("v_add_u32 v%d, s17, v%d" % (G_T + 7, G_T + 1))
    a("s_waitcnt lgkmcnt(0)")
    for g in range(4):
        a("ds_read_b128 v[%d:%d], v%d offset:%d" % (G_RED + 4 * g, G_RED + 4 * g + 3, G_T + 7, 32 * g))
        a("ds_read_b128 v[%d:%d], v%d offset:%d" % (G_RED + 16 + 4 * g, G_RED + 16 + 4 * g + 3, G_T + 7, 128 + 32 * g))
    a("s_waitcnt lgkmcnt(0)")
    for e in range(16):
        a("v_mul_f32 v%d, v%d, v%d" % (G_KVACC + e, G_RED + e, G_KVACC + e))
        a("v_fmac_f32 v%d, v%d, v%d" % (G_KVACC + e, G_RED + 16 + e, G_KVACC + 24))
    pack8(a, G_T + 8, G_KVACC)
    pack8(a, G_T + 12, G_KVACC + 8)
    a("v_lshlrev_b32 v%d, 4, v%d" % (G_T + 7, V_R31))
    a("v_lshl_add_u32 v%d, v%d, 8, v%d" % (G_T + 7, V_H, G_T + 7))
    a("s_add_u32 s34, s34, 0x10000")
    a("v_cmp_gt_u32 vcc, 16, v%d" % V_R31)
    a("s_and_saveexec_b64 s[36:37], vcc")
    a("buffer_store_dwordx4 v[%d:%d], v%d, s[4:7], s34 offen %s" % (G_T + 8, G_T + 11, G_T + 7, sc))
    a("buffer_store_dwordx4 v[%d:%d], v%d, s[4:7], s34 offen offset:512 %s" % (G_T + 12, G_T + 15, G_T + 7, sc))
    a("s_mov_b64 exec, s[36:37]")
    a("L_qkv_kvdone:")
    a("s_mov_b32 s35, 1")
    a("s_branch L_qkv_q")
    a("L_qkv_nokv:")
    a("s_mov_b32 s35, 0")
    a("L_qkv_q:")
    stamp(a, cfg, 2)
    nq = t_cs
    for i in range(8):
        a("s_waitcnt vmcnt(%d)" % (nq - tA[i]))
        for j in range(4):
            a("%s v[%d:%d], %s, %s, %s" % (MF, G_ACC + 16 * j, G_ACC + 16 * j + 15, ar(32 * (j >> 1) + 4 * i, 4), ar(64 + 32 * (j & 1) + 4 * i, 4),
                                          "0" if i == 0 else vr(G_ACC + 16 * j, 16)))
    a("s_cmp_eq_u32 s35, 1")
    a("s_cbranch_scc1 L_qkv_hs")
    finish_stats(a, G_ST, V_NMU, V_RSTD)
    a("L_qkv_hs:")
    reduce4(a, cfg)
    stamp(a, cfg, 7)
    a("s_waitcnt vmcnt(0)")
    a("v_mul_f32 v%d, %s, v%d" % (G_T, fl(QSCALE), V_RSTD))
    for e in range(16):
        a("v_fmac_f32 v%d, v%d, v%d" % (G_ACC + e, V_NMU, G_CS + e))
        a("v_mul_f32 v%d, v%d, v%d" % (G_ACC + e, G_T, G_ACC + e))
    pack8(a, G_Q, G_ACC)
    pack8(a, G_Q + 4, G_ACC + 8)
    if cfg.get("store_q"):
        a("s_lshl_b32 s17, s31, 15")
        a("s_lshl_b32 s18, s32, 11")
        a("s_add_u32 s17, s17, s18")
        a("s_add_u32 s17, s17, 0x%x" % OFF_Q)
        a("buffer_store_dwordx4 v[%d:%d], v%d, s[4:7], s17 offen" % (G_Q, G_Q + 3, V_L16))
        a("buffer_store_dwordx4 v[%d:%d], v%d, s[4:7], s17 offen offset:1024" % (G_Q + 4, G_Q + 7, V_L16))


A_C = [16, 32]
A_O = [48, 64]
A_S = [80, 96]
A_P = [112, 116, 120, 124]
A_KF = [128, 132]
A_VF = [[136, 140], [144, 148]]
A_VK, A_VV, A_VINC = 152, 153, 154
A_T = 156
LDS_V = 65536
LDS_ONES = 131072
LDS_ATT_FLAG = LDS_ONES + 5120
UNR = 4


def phase_att(a, cfg):
    sc = cfg.get("sc", "")
    Q = [G_Q, G_Q + 4]
    layer_off(a, 33, OFF_KV, KV_STRIDE)
    a("s_lshr_b32 s17, s%d, 1" % S_W)
    a("s_and_b32 s18, s%d, 1" % S_W)
    a("s_lshl_b32 s32, s%d, 1" % S_HQ)
    a("s_add_u32 s32, s32, s17")
    a("s_lshl_b32 s31, s%d, 1" % S_RB)
    a("s_add_u32 s31, s31, s18")
    if cfg.get("load_q"):
        a("s_lshl_b32 s17, s31, 15")
        a("s_lshl_b32 s18, s32, 11")
        a("s_add_u32 s17, s17, s18")
        a("s_add_u32 s17, s17, 0x%x" % OFF_Q)
        a("buffer_load_dwordx4 v[%d:%d], v%d, s[4:7], s17 offen" % (G_Q, G_Q + 3, V_L16))
        a("buffer_load_dwordx4 v[%d:%d], v%d, s[4:7], s17 offen offset:1024" % (G_Q + 4, G_Q + 7, V_L16))
    a("v_lshlrev_b32 v%d, 2, v%d" % (A_T, V_LANE))
    a("s_add_u32 s17, s33, 0x20000")
    a("buffer_load_dword v%d, v%d, s[4:7], s17 offen %s" % (A_T + 1, A_T, sc))
    t_kn = a.vt()
    a("s_lshl_b32 s20, s%d, 10" % S_W)
    a("s_add_u32 s21, s33, s20")
    a("s_add_u32 s22, s21, 0x10000")
    a("s_add_u32 s23, s20, %d" % LDS_V)
    for g in range(16):
        a("s_add_u32 m0, s20, %d" % (g * 4096))
        a("buffer_load_dwordx4 v%d, s[4:7], s21 offen %s lds" % (V_L16, sc))
        a("s_add_u32 m0, s23, %d" % (g * 4096))
        a("buffer_load_dwordx4 v%d, s[4:7], s22 offen %s lds" % (V_L16, sc))
        if g < 15:
            a("s_add_u32 s21, s21, 4096")
            a("s_add_u32 s22, s22, 4096")
        if g == 3:
            t_g3 = a.vt()
    t_all = a.vt()
    for r in range(4):
        a("v_mov_b32 v%d, 0x3f803f80" % (A_T + 4 + r))
    a("v_lshlrev_b32 v%d, 4, v0" % (A_T + 2))
    a("ds_write_b128 v%d, v[%d:%d] offset:%d" % (A_T + 2, A_T + 4, A_T + 7, 0) if False else
      "v_add_u32 v%d, %d, v%d" % (A_T + 2, LDS_ONES, A_T + 2))
    a("ds_write_b128 v%d, v[%d:%d]" % (A_T + 2, A_T + 4, A_T + 7))
    a("ds_write_b128 v%d, v[%d:%d] offset:1024" % (A_T + 2, A_T + 4, A_T + 7))
    a("v_mov_b32 v%d, v%d" % (A_VK, V_L16))
    a("v_and_b32 v%d, 15, v%d" % (A_T + 2, V_LANE))
    a("v_lshlrev_b32 v%d, 4, v%d" % (A_T + 2, A_T + 2))
    a("v_lshl_add_u32 v%d, v%d, 8, v%d" % (A_T + 2, V_H, A_T + 2))
    a("v_add_u32 v%d, %d, v%d" % (A_VV, LDS_V, A_T + 2))
    a("v_add_u32 v%d, -20, v%d" % (A_T + 3, V_R31))
    a("v_cmp_gt_u32 vcc, 8, v%d" % (A_T + 3))
    a("v_mov_b32 v%d, %d" % (A_T + 2, LDS_ONES))
    a("v_mov_b32 v%d, %d" % (A_T + 3, LDS_ONES + 64))
    a("v_cndmask_b32 v%d, v%d, v%d, vcc" % (A_T + 2, A_T + 2, A_T + 3))
    a("v_cmp_le_u32 vcc, 16, v%d" % V_R31)
    a("v_mov_b32 v%d, %d" % (A_VINC, UNR * 1024))
    a("v_mov_b32 v%d, 0" % (A_T + 3))
    a("v_cndmask_b32 v%d, v%d, v%d, vcc" % (A_VV, A_VV, A_T + 2))
    a("v_cndmask_b32 v%d, v%d, v%d, vcc" % (A_VINC, A_VINC, A_T + 3))
    for t in range(2):
        for r in range(16):
            a("v_mov_b32 v%d, 0" % (A_O[t] + r))
    for r in range(4):
        a("v_mov_b32 v%d, 0" % (A_P[3] + r))
        a("v_mov_b32 v%d, 0" % (A_VF[1][1] + r))
    stamp(a, cfg, 1)
    a.wait_vm(t_kn)
    stamp(a, cfg, 2)
    k2 = A_T + 1
    for d in ("row_shr:1", "row_shr:2", "row_shr:4", "row_shr:8"):
        a("v_max_f32_dpp v%d, v%d, v%d %s row_mask:0xf bank_mask:0xf" % (k2, k2, k2, d))
    a("v_max_f32_dpp v%d, v%d, v%d row_bcast:15 row_mask:0xa bank_mask:0xf" % (k2, k2, k2))
    a("v_max_f32_dpp v%d, v%d, v%d row_bcast:31 row_mask:0xc bank_mask:0xf" % (k2, k2, k2))
    a("v_readlane_b32 s17, v%d, 63" % k2)
    for t in range(2):
        n = A_T + 8 + t
        a("v_mov_b32 v%d, 0" % n)
        for r in range(4):
            a("v_dot2_f32_bf16 v%d, v%d, v%d, v%d" % (n, Q[t] + r, Q[t] + r, n))
        xhalf_sum(a, n, A_T + 10)
        a("v_mul_f32 v%d, s17, v%d" % (n, n))
        a("v_sqrt_f32 v%d, v%d" % (n, n))
        a("v_mul_f32 v%d, %s, v%d" % (n, fl(-1.001), n))
        for r in range(16):
            a("v_mov_b32 v%d, v%d" % (A_C[t] + r, n))
    a("v_min_f32 v%d, v%d, v%d" % (A_T + 10, A_T + 8, A_T + 9))
    a("v_cmp_nge_f32 vcc, v%d, v%d" % (A_T + 10, A_T + 10) if False else "v_mov_b32 v%d, %s" % (A_T + 11, fl(-cfg.get("bound_t", BOUND_T))))
    a("v_cmp_nge_f32 vcc, v%d, v%d" % (A_T + 10, A_T + 11))
    a("s_cmp_lg_u64 vcc, 0")
    a("s_cselect_b32 s18, 1, 0")
    a("v_mov_b32 v%d, s18" % (A_T + 11))
    a("s_lshl_b32 s19, s%d, 2" % S_W)
    a("s_add_u32 s19, s19, %d" % LDS_ATT_FLAG)
    a("v_mov_b32 v%d, s19" % (A_T + 12))
    a("ds_write_b32 v%d, v%d" % (A_T + 12, A_T + 11))
    stamp(a, cfg, 3)
    a.wait_vm(t_g3)
    a("s_waitcnt lgkmcnt(0)")
    a("s_barrier")
    stamp(a, cfg, 4)
    a("v_mov_b32 v%d, %d" % (A_T + 12, LDS_ATT_FLAG))
    a("ds_read_b128 v[%d:%d], v%d" % (A_T + 4, A_T + 7, A_T + 12))
    a("ds_read_b128 v[%d:%d], v%d" % (A_KF[0], A_KF[0] + 3, A_VK))
    a("ds_read_b128 v[%d:%d], v%d" % (A_VF[0][0], A_VF[0][0] + 3, A_VV))
    a("ds_read_b128 v[%d:%d], v%d offset:512" % (A_VF[0][1], A_VF[0][1] + 3, A_VV))
    a("ds_read_b128 v[%d:%d], v%d offset:1024" % (A_KF[1], A_KF[1] + 3, A_VK))
    a("s_waitcnt lgkmcnt(4)")
    a("v_or_b32 v%d, v%d, v%d" % (A_T + 4, A_T + 4, A_T + 5))
    a("v_or3_b32 v%d, v%d, v%d, v%d" % (A_T + 4, A_T + 4, A_T + 6, A_T + 7))
    a("v_readfirstlane_b32 s18, v%d" % (A_T + 4))
    a("s_cmp_eq_u32 s18, 0")
    a("s_cbranch_scc1 L_att_fast")
    a("s_waitcnt vmcnt(0)")
    a("s_barrier")
    a("v_mov_b32 v%d, 0xff800000" % (A_T + 8))
    a("v_mov_b32 v%d, 0xff800000" % (A_T + 9))
    a("v_mov_b32 v%d, v%d" % (A_T + 12, V_L16))
    a("s_mov_b32 s19, 64")
    a("L_att_pre:")
    a("ds_read_b128 v[%d:%d], v%d" % (A_P[0], A_P[0] + 3, A_T + 12))
    a("v_add_u32 v%d, 1024, v%d" % (A_T + 12, A_T + 12))
    a("s_waitcnt lgkmcnt(0)")
    for t in range(2):
        a("%s v[%d:%d], v[%d:%d], v[%d:%d], 0" % (MF, A_S[t], A_S[t] + 15, A_P[0], A_P[0] + 3, Q[t], Q[t] + 3))
    for t in range(2):
        for r in range(0, 16, 2):
            a("v_max3_f32 v%d, v%d, v%d, v%d" % (A_T + 8 + t, A_S[t] + r, A_S[t] + r + 1, A_T + 8 + t))
    a("s_sub_u32 s19, s19, 1")
    a("s_cmp_lg_u32 s19, 0")
    a("s_cbranch_scc1 L_att_pre")
    for t in range(2):
        n = A_T + 8 + t
        a("v_mov_b32 v%d, v%d" % (A_T + 10, n))
        a("v_permlane32_swap_b32 v%d, v%d" % (n, A_T + 10))
        a("v_max_f32 v%d, v%d, v%d" % (n, n, A_T + 10))
        a("v_sub_f32 v%d, 0, v%d" % (n, n))
        for r in range(16):
            a("v_mov_b32 v%d, v%d" % (A_C[t] + r, n))
    a("L_att_fast:")
    a("s_waitcnt lgkmcnt(0)")

    def mf(d, x, y, c):
        a("%s v[%d:%d], v[%d:%d], v[%d:%d], v[%d:%d]" % (MF, d, d + 15, x, x + 3, y, y + 3, c, c + 15))

    def ex(r):
        a("v_exp_f32 v%d, v%d" % (r, r))

    def cv(d, s):
        a("v_cvt_pk_bf16_f32 v%d, v%d, v%d" % (d, s, s + 1))

    mf(A_S[0], A_KF[0], Q[0], A_C[0])
    a("s_mov_b32 s19, 3")
    a("s_mov_b32 s18, 0")
    a("s_nop 7")
    a(".p2align 3")
    a("L_att_loop:")
    units = [(j, t) for j in range(UNR) for t in range(2)]
    U = len(units)
    for u, (j, t) in enumerate(units):
        nj, nt = units[(u + 1) % U]
        pj, pt = units[(u - 1) % U]
        sb, nsb = A_S[u % 2], A_S[(u + 1) % 2]
        plo, phi = A_P[(u % 2) * 2], A_P[(u % 2) * 2 + 1]
        pphi = A_P[((u - 1) % 2) * 2 + 1]
        mf(nsb, A_KF[nj % 2], Q[nt], A_C[nt])
        if t == 0:
            a("ds_read_b128 v[%d:%d], v%d offset:%d" % (A_KF[j % 2], A_KF[j % 2] + 3, A_VK, (j + 2) * 1024))
        for r in range(0, 4):
            ex(sb + r)
        mf(A_O[pt], A_VF[pj % 2][1], pphi, A_O[pt])
        if t == 0:
            off = (j + 1) * 1024
            a("ds_read_b128 v[%d:%d], v%d offset:%d" % (A_VF[(j + 1) % 2][0], A_VF[(j + 1) % 2][0] + 3, A_VV, off))
            a("ds_read_b128 v[%d:%d], v%d offset:%d" % (A_VF[(j + 1) % 2][1], A_VF[(j + 1) % 2][1] + 3, A_VV, off + 512))
        for r in range(4, 9):
            ex(sb + r)
        for r in range(0, 4):
            cv(plo + r, sb + 2 * r)
        for r in range(9, 12):
            ex(sb + r)
        mf(A_O[t], A_VF[j % 2][0], plo, A_O[t])
        if t == 1:
            a("s_waitcnt lgkmcnt(0)")
        if u == U - 1:
            a("s_sub_u32 s19, s19, 1")
        for r in range(12, 16):
            ex(sb + r)
        if u == U - 1:
            a("v_add_u32 v%d, %d, v%d" % (A_VK, UNR * 1024, A_VK))
            a("v_add_u32 v%d, v%d, v%d" % (A_VV, A_VINC, A_VV))
        for r in range(4, 8):
            cv(phi + r - 4, sb + 2 * r)
    a("s_cmp_lg_u32 s19, 0")
    a("s_cbranch_scc1 L_att_loop")
    a("s_cmp_lg_u32 s18, 0")
    a("s_cbranch_scc1 L_att_done")
    a("s_mov_b32 s18, 1")
    a("s_mov_b32 s19, %d" % (64 // UNR - 3))
    stamp(a, cfg, 5)
    a("s_waitcnt vmcnt(%d)" % (a.vm_issued - t_all))
    a("s_barrier")
    stamp(a, cfg, 6)
    a("s_branch L_att_loop")
    a("L_att_done:")
    stamp(a, cfg, 7)
    lj, lt = units[-1]
    mf(A_O[lt], A_VF[lj % 2][1], A_P[((U - 1) % 2) * 2 + 1], A_O[lt])
    layer_off(a, 17, OFF_O, X_STRIDE)
    a("s_lshl_b32 s18, s31, 15")
    a("s_add_u32 s17, s17, s18")
    a("s_lshl_b32 s18, s32, 11")
    a("s_add_u32 s17, s17, s18")
    for t in range(2):
        a("v_rcp_f32 v%d, v%d" % (A_T, A_O[t] + 8))
        for r in range(8):
            a("v_mul_f32 v%d, v%d, v%d" % (A_O[t] + r, A_T, A_O[t] + r))
        pack8(a, A_P[t], A_O[t])
        a("buffer_store_dwordx4 v[%d:%d], v%d, s[4:7], s17 offen offset:%d %s" % (A_P[t], A_P[t] + 3, V_L16, t * 1024, sc))


def res_epilogue(a, cfg, xin_mul_add, xout_add, final):
    sc = cfg.get("sc", "")
    for i in range(8):
        a("v_lshlrev_b32 v%d, 16, v%d" % (G_T, G_CS + i))
        a("v_and_b32 v%d, 0xffff0000, v%d" % (G_T + 1, G_CS + i))
        a("v_add_f32 v%d, v%d, v%d" % (G_ACC + 2 * i, G_ACC + 2 * i, G_T))
        a("v_add_f32 v%d, v%d, v%d" % (G_ACC + 2 * i + 1, G_ACC + 2 * i + 1, G_T + 1))
    pack8(a, G_T + 4, G_ACC)
    pack8(a, G_T + 8, G_ACC + 8)
    if final is not None:
        a("s_cmp_eq_u32 s%d, 1" % S_LAYER)
        a("s_cbranch_scc1 %s" % final)
    layer_off(a, 17, OFF_X, X_STRIDE, 2, xout_add)
    a("s_lshl_b32 s18, s31, 15")
    a("s_add_u32 s17, s17, s18")
    a("s_lshl_b32 s18, s32, 11")
    a("s_add_u32 s17, s17, s18")
    a("buffer_store_dwordx4 v[%d:%d], v%d, s[4:7], s17 offen %s" % (G_T + 4, G_T + 7, V_L16, sc))
    a("buffer_store_dwordx4 v[%d:%d], v%d, s[4:7], s17 offen offset:1024 %s" % (G_T + 8, G_T + 11, V_L16, sc))
    a("v_mov_b32 v%d, 0x3f803f80" % G_T)
    a("v_mov_b32 v%d, 0" % (G_T + 12))
    a("v_mov_b32 v%d, 0" % (G_T + 13))
    for r in range(8):
        a("v_dot2_f32_bf16 v%d, v%d, v%d, v%d" % (G_T + 12, G_T + 4 + r, G_T, G_T + 12))
        a("v_dot2_f32_bf16 v%d, v%d, v%d, v%d" % (G_T + 13, G_T + 4 + r, G_T + 4 + r, G_T + 13))
    a("v_mov_b32 v%d, v%d" % (G_T + 14, G_T + 12))
    a("v_mov_b32 v%d, v%d" % (G_T + 15, G_T + 13))
    a("v_permlane32_swap_b32 v%d, v%d" % (G_T + 12, G_T + 14))
    a("v_permlane32_swap_b32 v%d, v%d" % (G_T + 13, G_T + 15))
    a("v_add_f32 v%d, v%d, v%d" % (G_T + 12, G_T + 12, G_T + 14))
    a("v_add_f32 v%d, v%d, v%d" % (G_T + 13, G_T + 13, G_T + 15))
    layer_off(a, 17, OFF_STAT, STAT_STRIDE, 2, xout_add)
    a("s_lshl_b32 s18, s31, 12")
    a("s_add_u32 s17, s17, s18")
    a("s_lshl_b32 s18, s32, 3")
    a("s_add_u32 s17, s17, s18")
    a("v_lshlrev_b32 v%d, 7, v%d" % (G_T + 2, V_R31))
    a("v_cmp_gt_u32 vcc, 32, v%d" % V_LANE)
    a("s_and_saveexec_b64 s[36:37], vcc")
    a("buffer_store_dwordx2 v[%d:%d], v%d, s[4:7], s17 offen %s" % (G_T + 12, G_T + 13, G_T + 2, sc))
    a("s_mov_b64 exec, s[36:37]")


def final_store(a):
    a("v_permlane32_swap_b32 v%d, v%d" % (G_T + 4, G_T + 6))
    a("v_permlane32_swap_b32 v%d, v%d" % (G_T + 5, G_T + 7))
    a("v_permlane32_swap_b32 v%d, v%d" % (G_T + 8, G_T + 10))
    a("v_permlane32_swap_b32 v%d, v%d" % (G_T + 9, G_T + 11))
    a("s_lshl_b32 s17, s31, 15")
    a("s_lshl_b32 s18, s32, 6")
    a("s_add_u32 s17, s17, s18")
    a("v_lshlrev_b32 v%d, 10, v%d" % (G_T + 2, V_R31))
    a("v_lshl_add_u32 v%d, v%d, 4, v%d" % (G_T + 2, V_H, G_T + 2))
    a("buffer_store_dwordx4 v[%d:%d], v%d, s[8:11], s17 offen" % (G_T + 4, G_T + 7, G_T + 2))
    a("buffer_store_dwordx4 v[%d:%d], v%d, s[8:11], s17 offen offset:32" % (G_T + 8, G_T + 11, G_T + 2))


def load_resid(a, cfg, xin_add):
    sc = cfg.get("sc", "")
    layer_off(a, 17, OFF_X, X_STRIDE, 2, xin_add)
    a("s_lshl_b32 s18, s31, 15")
    a("s_add_u32 s17, s17, s18")
    a("s_lshl_b32 s18, s32, 11")
    a("s_add_u32 s17, s17, s18")
    a("buffer_load_dwordx4 v[%d:%d], v%d, s[4:7], s17 offen %s" % (G_CS, G_CS + 3, V_L16, sc))
    a("buffer_load_dwordx4 v[%d:%d], v%d, s[4:7], s17 offen offset:1024 %s" % (G_CS + 4, G_CS + 7, V_L16, sc))


def phase_wo(a, cfg):
    sc = cfg.get("sc", "")
    SA0, SA1, SB0, SB1, SX = 24, 25, 26, 27, 28
    layer_off(a, SX, OFF_O, X_STRIDE)
    gemm64_addr(a, SA0, SA1, SB0, SB1, OFF_WO, 32, SX, 32, 8)
    a("s_mov_b32 s31, s22")
    a("s_mov_b32 s32, s19")
    t = []
    for i in range(8):
        blk(a, ar(0 + 4 * i, 4), SA0, i)
        blk(a, ar(64 + 4 * i, 4), SB0, i, sc)
        blk(a, ar(96 + 4 * i, 4), SB1, i, sc)
        blk(a, ar(32 + 4 * i, 4), SA1, i)
        t.append(a.vt())
    load_resid(a, cfg, 0)
    reduce_addr(a, 0)
    stamp(a, cfg, 1)
    for i in range(8):
        a.wait_vm(t[i])
        if i == 0:
            stamp(a, cfg, 2)
        for j in range(4):
            a("%s v[%d:%d], %s, %s, %s" % (MF, G_ACC + 16 * j, G_ACC + 16 * j + 15, ar(32 * (j >> 1) + 4 * i, 4), ar(64 + 32 * (j & 1) + 4 * i, 4),
                                          "0" if i == 0 else vr(G_ACC + 16 * j, 16)))
    reduce4(a, cfg)
    stamp(a, cfg, 7)
    a("s_waitcnt vmcnt(0)")
    res_epilogue(a, cfg, 0, 1, None)


def phase_ffn2(a, cfg):
    sc = cfg.get("sc", "")
    SA0, SA1, SB0, SB1, SX = 24, 25, 26, 27, 28
    layer_off(a, SX, OFF_H, H_STRIDE)
    gemm64_addr(a, SA0, SA1, SB0, SB1, OFF_W2, 112, SX, 112, 28)
    a("s_mov_b32 s31, s22")
    a("s_mov_b32 s32, s19")
    R = 14
    t = {}

    def issue(i):
        b = 16 * (i % R)
        blk(a, ar(b, 4), SA0, i)
        blk(a, ar(b + 8, 4), SB0, i, sc)
        blk(a, ar(b + 12, 4), SB1, i, sc)
        blk(a, ar(b + 4, 4), SA1, i)
        t[i] = a.vt()

    load_resid(a, cfg, 1)
    for i in range(R):
        issue(i)
    reduce_addr(a, 0)
    stamp(a, cfg, 1)
    for i in range(28):
        a.wait_vm(t[i])
        if i == 0:
            stamp(a, cfg, 2)
        if i == 14:
            stamp(a, cfg, 3)
        b = 16 * (i % R)
        for j in range(4):
            a("%s v[%d:%d], %s, %s, %s" % (MF, G_ACC + 16 * j, G_ACC + 16 * j + 15, ar(b + 4 * (j >> 1), 4), ar(b + 8 + 4 * (j & 1), 4),
                                          "0" if i == 0 else vr(G_ACC + 16 * j, 16)))
        if i + R < 28:
            issue(i + R)
    reduce4(a, cfg)
    stamp(a, cfg, 7)
    res_epilogue(a, cfg, 1, 2, "L_ffn2_final")
    a("s_branch L_ffn2_end")
    a("L_ffn2_final:")
    final_store(a)
    a("L_ffn2_end:")


F_ACC = [16, 32, 48]
F_W = 64
F_CS = [96, 112]
F_ST = 128
F_T = 144
F_H = 176
F_LA = [184, 185]
F_NMU, F_C1, F_RS2 = 186, 187, 188


def phase_ffn1(a, cfg):
    sc = cfg.get("sc", "")
    SX, SW, SCS, SH = 24, 25, 26, 27
    a("s_lshl_b32 s31, s%d, 2" % S_RG)
    a("s_add_u32 s31, s31, s%d" % S_W)
    a("s_mul_i32 s%d, s%d, %d" % (SW, S_M, 7 * 32768))
    a("s_lshl_b32 s17, s%d, 13" % S_W)
    a("s_add_u32 s%d, s%d, s17" % (SW, SW))
    a("s_add_u32 s%d, s%d, 0x%x" % (SW, SW, OFF_W13))
    a("s_mov_b32 s28, s17")

    def dma(i):
        slot = i % 4
        for hh in range(2):
            a("s_add_u32 m0, s28, %d" % (slot * 32768 + hh * 4096))
            a("s_add_u32 s29, s%d, %d" % (SW, i * 32768 + hh * 4096))
            for q in range(4):
                a("buffer_load_dwordx4 v%d, s[4:7], s29 offen offset:%d lds" % (V_L16, q * 1024))

    layer_off(a, SX, OFF_X, X_STRIDE, 2, 1)
    a("s_lshl_b32 s17, s31, 15")
    a("s_add_u32 s%d, s%d, s17" % (SX, SX))
    a("s_add_u32 s30, s%d, %d" % (SX, 28 * 1024))
    dma(0)
    dma(1)
    t_w01 = a.vt()
    tX = []
    for i in range(32):
        if i < 28:
            blk(a, ar(4 * i, 4), SX, i, sc)
        else:
            blk(a, ar(4 * i, 4), 30, i - 28, sc)
        tX.append(a.vt())
    layer_off(a, 17, OFF_STAT, STAT_STRIDE, 2, 1)
    a("s_lshl_b32 s18, s31, 12")
    a("s_add_u32 s17, s17, s18")
    load_stats(a, F_ST, 17, F_T, sc)
    t_st = a.vt()
    a("s_mul_i32 s%d, s%d, %d" % (SCS, S_M, 7 * 128))
    a("s_add_u32 s%d, s%d, 0x%x" % (SCS, SCS, OFF_CS13))
    a("v_lshlrev_b32 v%d, 4, v%d" % (F_T + 1, V_H))
    t_cs = {}

    def load_cs(i):
        for g in range(4):
            a("buffer_load_dwordx4 v[%d:%d], v%d, s[4:7], s%d offen offset:%d" % (F_CS[i % 2] + 4 * g, F_CS[i % 2] + 4 * g + 3, F_T + 1, SCS, i * 128 + 32 * g))
        t_cs[i] = a.vt()

    load_cs(0)
    load_cs(1)
    layer_off(a, SH, OFF_H, H_STRIDE)
    a("s_mul_i32 s17, s31, %d" % (112 * 1024))
    a("s_add_u32 s%d, s%d, s17" % (SH, SH))
    a("s_mul_i32 s17, s%d, %d" % (S_M, 7 * 1024))
    a("s_add_u32 s%d, s%d, s17" % (SH, SH))
    a("v_mov_b32 v%d, v%d" % (F_LA[0], V_L16))
    a("v_add_u32 v%d, 65536, v%d" % (F_LA[1], V_L16))
    stamp(a, cfg, 1)
    a.wait_vm(t_w01)
    a("s_barrier")
    stamp(a, cfg, 2)
    dma(2)
    dma(3)
    t_w23 = a.vt()

    def wread(tile, ks, ring):
        slot = tile % 4
        a("ds_read_b128 v[%d:%d], v%d offset:%d" % (F_W + 4 * ring, F_W + 4 * ring + 3, F_LA[slot >> 1], (slot & 1) * 32768 + ks * 1024))

    def epi(tile):
        acc, cs = F_ACC[tile % 3], F_CS[tile % 2]
        hp = F_H + 4 * (tile % 2)
        out = []
        for e in range(8):
            out.append("v_fmac_f32 v%d, v%d, v%d" % (acc + e, F_NMU, cs + e))
            out.append("v_fmac_f32 v%d, v%d, v%d" % (acc + 8 + e, F_NMU, cs + 8 + e))
        for e in range(8):
            out.append("v_mul_f32 v%d, v%d, v%d" % (F_T + 8 + e, F_C1, acc + e))
        for e in range(8):
            out.append("v_exp_f32 v%d, v%d" % (F_T + 8 + e, F_T + 8 + e))
            out.append("v_mul_f32 v%d, v%d, v%d" % (acc + e, acc + e, acc + 8 + e))
        for e in range(8):
            out.append("v_add_f32 v%d, 1.0, v%d" % (F_T + 8 + e, F_T + 8 + e))
        for e in range(8):
            out.append("v_rcp_f32 v%d, v%d" % (F_T + 8 + e, F_T + 8 + e))
            out.append("v_mul_f32 v%d, v%d, v%d" % (acc + e, F_RS2, acc + e))
        for e in range(8):
            out.append("v_mul_f32 v%d, v%d, v%d" % (acc + e, F_T + 8 + e, acc + e))
        for i in range(4):
            out.append("v_cvt_pk_bf16_f32 v%d, v%d, v%d" % (hp + i, acc + 2 * i, acc + 2 * i + 1))
        out.append("buffer_store_dwordx4 v[%d:%d], v%d, s[4:7], s%d offen offset:%d %s" % (hp, hp + 3, V_OFF[tile // 4], SH, (tile % 4) * 1024, sc))
        return out

    steps = []
    for ks in range(32):
        steps.append((0, ks))
        steps.append((1, ks))
    for tile in range(2, 7):
        for ks in range(32):
            steps.append((tile, ks))
    N = len(steps)
    PF = 6
    lt = {}
    first_of = {}
    for n, (tile, ks) in enumerate(steps):
        first_of.setdefault(tile, n)
    def fence_before_read(tile):
        if tile == 2:
            a.wait_vm(t_w23)
            a("s_barrier")
        elif tile == 4:
            a.wait_vm(fence_t[4])
            a("s_barrier")
        elif tile == 6:
            a.wait_vm(fence_t[6])
            a("s_barrier")

    fence_t = {}
    nread = 0

    def do_read(n):
        tile, ks = steps[n]
        if n == first_of[tile]:
            fence_before_read(tile)
        wread(tile, ks, n % 8)
        lt[n] = a.lt()

    for n in range(PF):
        do_read(n)
    pending = []
    stats_done = False
    for n, (tile, ks) in enumerate(steps):
        if tile >= 2 and ks == 0:
            stamp(a, cfg, 1 + tile)
        if tile < 2 and tile == 0:
            a.wait_vm(tX[ks])
        a.wait_lg(lt[n])
        acc = F_ACC[tile % 3]
        a("%s v[%d:%d], v[%d:%d], %s, %s" % (MF, acc, acc + 15, F_W + 4 * (n % 8), F_W + 4 * (n % 8) + 3, ar(4 * ks, 4),
                                            "0" if ks == 0 else vr(acc, 16)))
        if n + PF < N:
            do_read(n + PF)
        if n == first_of[2] + 2:
            a("s_barrier")
            dma(4)
            dma(5)
            fence_t[4] = a.vt()
        if n == first_of[3] + 2:
            a("s_barrier")
            dma(6)
            fence_t[6] = a.vt()
        if n == first_of[2] - 12:
            a.wait_vm(t_st)
            finish_stats(a, F_ST, F_NMU, F_RS2)
            a("v_mul_f32 v%d, %s, v%d" % (F_C1, fl(-LOG2E), F_RS2))
            a("v_mul_f32 v%d, v%d, v%d" % (F_RS2, F_RS2, F_RS2))
        if n == first_of[2] + 4:
            a.wait_vm(t_cs[1]) if False else None
            pending += [("W", 0)] + epi(0) + [("W", 1)] + epi(1)
        for tl in range(3, 7):
            if n == first_of[tl] + 4:
                pending += [("W", tl - 1)] + epi(tl - 1)
        k = 0
        lim = 5 if tile == 2 else 3
        while pending and k < lim:
            x = pending.pop(0)
            if isinstance(x, tuple):
                a.wait_vm(t_cs[x[1]])
                continue
            a(x)
            k += 1
            if x.startswith("buffer_store"):
                pass
            for tl in range(0, 5):
                if x == "v_fmac_f32 v%d, v%d, v%d" % (F_ACC[tl % 3] + 15, F_NMU, F_CS[tl % 2] + 15) and (tl + 2) not in t_cs and tl in t_cs and cur_epi(tl, tile, n, first_of):
                    load_cs(tl + 2)
    assert not pending, len(pending)
    stamp(a, cfg, 8)
    a.wait_vm(t_cs[6])
    for x in epi(6):
        a(x)


def cur_epi(tl, tile, n, first_of):
    return tile == max(2, tl + 1)


def kernel_desc(name, nfv, acc, sgpr=96):
    return """.amdhsa_kernel %s
  .amdhsa_next_free_vgpr %d
  .amdhsa_next_free_sgpr %d
  .amdhsa_accum_offset %d
  .amdhsa_group_segment_fixed_size 0
  .amdhsa_kernarg_size 96
  .amdhsa_user_sgpr_count 2
  .amdhsa_user_sgpr_kernarg_segment_ptr 1
  .amdhsa_system_sgpr_workgroup_id_x 1
.end_amdhsa_kernel
""" % (name, nfv, sgpr, acc)


def uniq(lines, tag):
    out = []
    for l in lines:
        out.append(l.replace("L_exit", "L_exit_" + tag))
    return out


def build_multi(cfg):
    launches = []
    text = []
    descs = []
    rep = []

    def body(tag, fn, need_out=False, pro=True):
        a = Asm()
        if pro:
            stamp_init(a, cfg)
            common_prologue(a, need_out)
        fn(a, cfg)
        if pro:
            stamp_flush(a, cfg, "s_mul_i32 s60, s3, 5\ns_add_u32 s60, s60, %d" % (1 + ["qkv", "att", "wo", "ffn1", "ffn2"].index(tag)))
        a("L_exit:")
        a("s_endpgm")
        lines, tot = fix_hazards_fast(uniq(a.lines, tag), rep)
        return lines

    text += [".p2align 8", "prep_kernel:"] + body("prep", prep, pro=False)
    descs.append(kernel_desc("prep_kernel", 64, 64))
    text += [".p2align 8", "L_code_begin:"]
    phases = [("qkv", phase_qkv, False, 88 * 1024), ("att", phase_att, False, 137 * 1024), ("wo", phase_wo, False, 48 * 1024),
              ("ffn1", phase_ffn1, False, 128 * 1024), ("ffn2", phase_ffn2, True, 48 * 1024)]
    for tag, fn, no, lds in phases:
        text += [".p2align 8", "%s1_kernel:" % tag, "  s_mov_b32 s3, 1", "  s_branch L_%s_entry" % tag]
        text += [".p2align 8", "%s0_kernel:" % tag, "  s_mov_b32 s3, 0", "L_%s_entry:" % tag] + body(tag, fn, no)
        for l in (0, 1):
            descs.append(kernel_desc("%s%d_kernel" % (tag, l), 512, 256))
    text += ["L_code_end:"]
    launches.append("; @launch kernel=prep_kernel grid=(256,1,1) block=(256,1,1) lds=%d" % (34 * 1024))
    for l in (0, 1):
        for tag, fn, no, lds in phases:
            for _ in range(2 if cfg.get("twice") else 1):
                launches.append("; @launch kernel=%s%d_kernel grid=(256,1,1) block=(256,1,1) lds=%d" % (tag, l, lds))
    s = "\n".join(launches) + "\n"
    s += '.amdgcn_target "amdgcn-amd-amdhsa--gfx950"\n.text\n'
    s += "\n".join(text) + "\n"
    s += '.section .rodata,"a"\n.p2align 6\n' + ".p2align 6\n".join(descs)
    return s, rep


if __name__ == "__main__":
    cfg = dict(store_q=True, load_q=True, code_prefetch=True)
    for kv in sys.argv[2:]:
        k, v = kv.split("=")
        cfg[k] = eval(v)
    s, rep = build_multi(cfg)
    open(sys.argv[1], "w").write(s)
    from collections import Counter
    print("auto nops:", sum(r[0] for r in rep), "sites", len(rep))
    if cfg.get("verbose"):
        for r in rep:
            print(r)
```

```python
import sys
from asmlib import *
from layout import *
import kern
import startup as SU
from kern import (split3, fl, MF, S_LAYER, S_W, S_RB, S_HQ, S_RG, S_M, V_L16, V_LANE, V_R31, V_H, V_OFF, xhalf_sum,
                  load_stats, finish_stats, pack8, stamp, kernel_desc, prep, NSTAMP)

SC = "sc1"


COMPACT = [1]
CMAP = {OFF_X: 0x800000, OFF_O: 0xC00000, OFF_H: 0xE00000, OFF_STAT: OFF_STAT}
C_WKV = 0x780000
C_END = 0x1500000


def layer_off(a, sdst, base, stride, mul=1, add=0):
    if COMPACT[0] and base in CMAP:
        a("s_mov_b32 s%d, 0x%x" % (sdst, CMAP[base] + (add & 1) * stride))
    else:
        kern.layer_off(a, sdst, base, stride, mul, add)


def blk(a, dst, sbase, i, sc=SC):
    kern.blk(a, dst, sbase, i, SC)


FL_O = 0x0000
FL_X1 = 0x2000
FL_H = 0x8000
FL_XIN = 0x6000
OFF_FLW = 0x64C000
FL_KV = 0x640000 - OFF_FLAGS

S_RT, S_NT = 31, 32
S_FO, S_FX1, S_FH = 40, 41, 42
S_W13, S_WL = 47, 48
S_RET = 44
V_RES = 12
V_TAG = 11
V_L4 = 20
V_ZERO = 21
VB = 24

G_ACC = 24
G_RED = 88
G_ST = 136
G_CS = 152
G_T = 168
V_WR = [184, 185, 186]
V_RD = 187
V_NMU, V_RSTD = 188, 189
G_KVACC = 88
G_Q = 190
W2V = 200

LDS_R1 = 96 * 1024
LDS_RQ = 0
LDS_KVX = 49152
LDS_CSX = 69632
LDS_CS = 152 * 1024
LDS_E = 128 * 1024


DBL = [0]
LSC = ["sc1"]
S_LOC = 57
DUAL = [False]
_dl = [0]


def lstore(text):
    lines = text if isinstance(text, list) else [text]
    if not DUAL[0]:
        return [l + " sc1" for l in lines]
    _dl[0] += 1
    n = _dl[0]
    return (["s_cbranch_scc1 L_ls%da ; needs scc" % n] + [l + " sc1" for l in lines] + ["s_branch L_ls%db" % n, "L_ls%da:" % n] +
            ["!" + l + " " + LSC[0] for l in lines] + ["L_ls%db:" % n])


def emit_l(a, text):
    out = lstore(text)
    if DUAL[0]:
        a("s_cmp_lg_u32 s%d, 0" % S_LOC)
    for l in out:
        if l.startswith("!"):
            a(l[1:])
        else:
            a(l)


def st4(a, data, voff, soff, imm=0):
    emit_l(a, "buffer_store_dwordx4 v[%d:%d], v%d, s[4:7], s%d offen offset:%d" % (data, data + 3, voff, soff, imm))
    if DBL[0]:
        a("buffer_store_dwordx4 v[%d:%d], v%d, s[4:7], s%d offen offset:%d" % (data, data + 3, voff, soff, imm))


TOUCH = [1]
V_L128 = 23
V_P2 = 199


V_L64 = 22


RBW = [0]


def readback(a, regions, final=False):
    if not DUAL[0]:
        return
    L = a.newlabel("L_rb")
    keep = a.vm_issued
    a("s_cmp_eq_u32 s%d, 0" % S_LOC)
    a("s_cbranch_scc1 %s" % L)
    a("v_lshlrev_b32 v%d, 6, v%d" % (V_L64, V_LANE))
    if RBW[0] and final:
        a("s_waitcnt vmcnt(0)")
    for sg, nb, imm in regions:
        n = nb // 64
        assert n <= 64
        a("s_mov_b32 exec_lo, 0x%x" % (((1 << n) - 1) & 0xffffffff))
        a("s_mov_b32 exec_hi, 0x%x" % (((1 << n) - 1) >> 32))
        a("buffer_load_dword v%d, v%d, s[4:7], s%d offen offset:%d %s" % (V_P2, V_L64, sg, imm, SC))
    a(L + ":")
    a.vm_issued = keep


def publish(a, s_addr, regions, imm=0, between=()):
    readback(a, regions, True)
    if between:
        a("s_mov_b64 exec, -1")
        for x in between:
            a(x)
    a("s_waitcnt vmcnt(0)")
    a("s_mov_b64 exec, 1")
    emit_l(a, "buffer_store_dword v%d, v%d, s[4:7], s%d offen offset:%d" % (V_TAG, V_ZERO, s_addr, imm))
    a("s_mov_b64 exec, -1")


def poll(a, cfg, s_addr, voff, vtmp, wide=False, imm=0, sleep=0):
    L = a.newlabel("L_poll")
    if cfg.get("spin_limit"):
        a("s_mov_b32 s46, %d" % cfg["spin_limit"])
    if cfg.get("ppoll", 0) and not wide and not sleep:
        ld = lambda r: a("buffer_load_dword v%d, v%d, s[4:7], s%d offen offset:%d %s" % (r, voff, s_addr, imm, SC))
        ld(vtmp)
        a("s_sleep %d" % cfg.get("ppoll_gap", 2))
        a(L + ":")
        ld(V_P2)
        a("s_waitcnt vmcnt(1)")
        a("v_cmp_ne_u32 vcc, v%d, v%d" % (V_TAG, vtmp))
        a("s_cbranch_vccz %s_out" % L)
        ld(vtmp)
        a("s_waitcnt vmcnt(1)")
        if cfg.get("spin_limit"):
            a("s_sub_u32 s46, s46, 1")
            a("s_cbranch_scc1 %s_out" % L)
        a("v_cmp_ne_u32 vcc, v%d, v%d" % (V_TAG, V_P2))
        a("s_cbranch_vccnz %s" % L)
        a.vm_issued -= 1
        a(L + "_out:")
        return
    a(L + ":")
    if wide:
        a("buffer_load_dwordx4 v[%d:%d], v%d, s[4:7], s%d offen %s" % (vtmp, vtmp + 3, voff, s_addr, SC))
        a("s_waitcnt vmcnt(0)")
        a("v_cmp_ne_u32 s[18:19], v%d, v%d" % (V_TAG, vtmp + 2))
        a("v_cndmask_b32 v%d, v%d, v%d, s[18:19]" % (vtmp, vtmp, V_ZERO))
        a("v_cmp_ne_u32 s[18:19], v%d, v%d" % (V_TAG, vtmp + 3))
        a("v_cndmask_b32 v%d, v%d, v%d, s[18:19]" % (vtmp, vtmp, V_ZERO))
    else:
        a("buffer_load_dword v%d, v%d, s[4:7], s%d offen offset:%d %s" % (vtmp, voff, s_addr, imm, SC))
        a("s_waitcnt vmcnt(0)")
    if cfg.get("spin_limit"):
        a("s_sub_u32 s46, s46, 1")
        a("s_cbranch_scc1 %s_out" % L)
    a("v_cmp_ne_u32 vcc, v%d, v%d" % (V_TAG, vtmp))
    if sleep:
        a("s_cbranch_vccz %s_out" % L)
        a("s_sleep %d" % sleep)
        a("s_branch %s" % L)
    else:
        a("s_cbranch_vccnz %s" % L)
    a(L + "_out:")


def lane_pat(a, vdst, mask, hi_shift, lo_mul):
    a("v_and_b32 v%d, %d, v%d" % (vdst, mask & ~1, V_LANE))
    a("v_lshlrev_b32 v%d, 3, v%d" % (vdst, vdst))
    a("v_and_b32 v%d, 1, v%d" % (vdst + 1, V_LANE))
    a("v_lshl_add_u32 v%d, v%d, %d, v%d" % (vdst, vdst + 1, lo_mul, vdst))


def flag_addr(a, sdst, base, s_grp, grp_shift, s_mem=None, per_layer=0x1000):
    a("s_mul_i32 s%d, s%d, 0x%x" % (sdst, S_LAYER, per_layer))
    a("s_add_u32 s%d, s%d, 0x%x" % (sdst, sdst, OFF_FLAGS + base))
    a("s_lshl_b32 s17, s%d, %d" % (s_grp, grp_shift))
    a("s_add_u32 s%d, s%d, s17" % (sdst, sdst))
    if s_mem is not None:
        a("s_lshl_b32 s17, s%d, 4" % s_mem)
        a("s_add_u32 s%d, s%d, s17" % (sdst, sdst))
        a("s_lshl_b32 s17, s%d, 2" % S_W)
        a("s_add_u32 s%d, s%d, s17" % (sdst, sdst))


def xin_flag_addr(a, sdst, own, layer_add):
    flag_addr(a, sdst, FL_XIN + 0x1000 * layer_add, S_RB, 7, S_HQ if own else None)


def a_addr(a, s_a0, s_a1, offA, ksA, ksw):
    a("s_mul_i32 s20, s%d, %d" % (S_W, ksw * 1024))
    a("s_mul_i32 s%d, s%d, %d" % (s_a0, S_NT, ksA * 1024))
    a("s_add_u32 s%d, s%d, s20" % (s_a0, s_a0))
    a("s_add_u32 s%d, s%d, 0x%x" % (s_a0, s_a0, offA))
    a("s_xor_b32 s21, s%d, 1" % S_NT)
    a("s_mul_i32 s%d, s21, %d" % (s_a1, ksA * 1024))
    a("s_add_u32 s%d, s%d, s20" % (s_a1, s_a1))
    a("s_add_u32 s%d, s%d, 0x%x" % (s_a1, s_a1, offA))


def b_addr(a, s_b0, s_b1, s_base, ksB, ksw):
    a("s_mul_i32 s20, s%d, %d" % (S_W, ksw * 1024))
    a("s_add_u32 s20, s20, s%d" % s_base)
    a("s_mul_i32 s%d, s%d, %d" % (s_b0, S_RT, ksB * 1024))
    a("s_add_u32 s%d, s%d, s20" % (s_b0, s_b0))
    a("s_xor_b32 s21, s%d, 1" % S_RT)
    a("s_mul_i32 s%d, s21, %d" % (s_b1, ksB * 1024))
    a("s_add_u32 s%d, s%d, s20" % (s_b1, s_b1))


def reduce_addr(a, base):
    for j in (1, 2, 3):
        a("s_xor_b32 s17, s%d, %d" % (S_W, j))
        a("s_mul_i32 s17, s17, 12288")
        a("s_add_u32 s17, s17, %d" % (base + (j - 1) * 4096))
        a("v_add_u32 v%d, s17, v%d" % (V_WR[j - 1], V_L16))
    a("s_mul_i32 s17, s%d, 12288" % S_W)
    a("s_add_u32 s17, s17, %d" % base)
    a("v_add_u32 v%d, s17, v%d" % (V_RD, V_L16))


def mf(a, d, x, y, c):
    a("%s v[%d:%d], %s, %s, %s" % (MF, d, d + 15, x, y, c))


def wr_tile(a, j):
    for q in range(4):
        r = G_ACC + 16 * j + 4 * q
        a("ds_write_b128 v%d, v[%d:%d] offset:%d" % (V_WR[j - 1], r, r + 3, q * 1024))


def rd_tile(a, j, dst):
    for q in range(4):
        a("ds_read_b128 v[%d:%d], v%d offset:%d" % (dst + 4 * q, dst + 4 * q + 3, V_RD, (j - 1) * 4096 + q * 1024))


def gemm64_core(a, cfg, n, A0, A1, Breg, issueB, window, pre_tickets=None, order=None, side=None, side_from=0, side_n=1,
                gate=None, side2=None, side2_from=0, ramp=None, resid=False, extra0=None, hooks=None, tail_side=None, dup_last=False):
    if order is None:
        order = [(1, i) for i in range(n)] + [(0, i) for i in range(n)]
    M = len(order)
    side = list(side or [])
    t = dict(pre_tickets or {})
    nxt = len(t)
    gpos = gate[0] if gate else M + 1
    gated = [False]

    def try_issue(limit):
        nonlocal nxt
        while nxt < M and nxt < limit:
            if nxt >= gpos and not gated[0]:
                return
            issueB(nxt)
            t[nxt] = a.vt()
            nxt += 1
            if gate and nxt == gate[3]:
                gate[1]()

    try_issue(ramp or window)
    if cfg.get("stamps") != 2:
        stamp(a, cfg, 1)
    last1 = max(e for e, (st, i) in enumerate(order) if st == 1)
    wr1 = last1 + 2
    bar1 = min(M - 2, last1 + 1 + max(2, (M - last1) // 2))
    seen = set()
    pend = []

    def presum():
        out = ["v_add_f32 v%d, v%d, v%d" % (G_RED + e, G_RED + e, G_RED + 16 + e) for e in range(16)]
        if resid:
            for i in range(8):
                out += ["v_lshlrev_b32 v%d, 16, v%d" % (G_T, V_RES + i), "v_and_b32 v%d, 0xffff0000, v%d" % (G_T + 1, V_RES + i),
                        "v_add_f32 v%d, v%d, v%d" % (G_RED + 2 * i, G_RED + 2 * i, G_T),
                        "v_add_f32 v%d, v%d, v%d" % (G_RED + 2 * i + 1, G_RED + 2 * i + 1, G_T + 1)]
        return out

    def step(e):
        st, i = order[e]
        if gate and not gated[0] and e == gate[4]:
            assert not side
            gate[2]()
            gated[0] = True
            try_issue(e + window)
        if hooks and e in hooks:
            hooks[e]()
        a.wait_vm(t[e])
        if e == 0 and cfg.get("stamps") != 2:
            stamp(a, cfg, 2)
        first = "0" if st not in seen else None
        seen.add(st)
        if st == 1:
            mf(a, G_ACC + 16, A0(i), Breg(e), first or vr(G_ACC + 16, 16))
            if cfg.get("ldmid", 0) and window < 30:
                try_issue(min(e + 1 + window, nxt + 1))
            mf(a, G_ACC + 48, A1(i), Breg(e), first or vr(G_ACC + 48, 16))
        else:
            mf(a, G_ACC + 32, A1(i), Breg(e), first or vr(G_ACC + 32, 16))
            if cfg.get("ldmid", 0) and window < 30:
                try_issue(min(e + 1 + window, nxt + 1))
            mf(a, G_ACC, A0(i), Breg(e), first or vr(G_ACC, 16))
        try_issue(min(e + 1 + window, nxt + 2))
        if e >= side_from:
            k = 0
            while side and k < side_n:
                x = side.pop(0)
                a(x)
                k += x.startswith("buffer_")
        if side2 and e >= side2_from:
            for _ in range(cfg.get("side2_n", 1)):
                if side2:
                    a(side2.pop(0))
        if e == wr1:
            wr_tile(a, 1)
            wr_tile(a, 3)
        if e == bar1:
            a("s_waitcnt lgkmcnt(0)")
            a("s_barrier")
            rd_tile(a, 1, G_RED)
            rd_tile(a, 3, G_RED + 16)
            pend[:] = presum()
        elif pend and e > bar1:
            if e == bar1 + 1:
                a("s_waitcnt lgkmcnt(0)")
            for _ in range(cfg.get("pre_n", 10)):
                if pend:
                    a(pend.pop(0))

    for e in range(M):
        if dup_last and e == side2_from:
            snap = (nxt, dict(t), a.vm_issued, a.lg_issued, a.dma_issued)
            a("s_cmp_eq_u32 s%d, 1" % S_LAYER)
            a("s_cbranch_scc1 L_g64_last")
            for e2 in range(e, M):
                step(e2)
            a("s_branch L_g64_join")
            a("L_g64_last:")
            nxt, t, a.vm_issued, a.lg_issued, a.dma_issued = snap[0], snap[1], snap[2], snap[3], snap[4]
            for e2 in range(e, M):
                step(e2)
            a("L_g64_join:")
            break
        step(e)
    assert wr1 <= bar1 < M and not side2
    if extra0:
        extra0[2]()
        mf(a, G_ACC, extra0[0], extra0[1], vr(G_ACC, 16))
    tside = list(tail_side or [])
    cnt = [0]

    def av(x):
        a(x)
        cnt[0] += 1
        if tside and cnt[0] % cfg.get("tail_every", 4) == 0:
            a(tside.pop(0))

    stamp(a, cfg, 4)
    a("s_waitcnt lgkmcnt(0)")
    for _ in range(8):
        if pend:
            av(pend.pop(0))
    wr_tile(a, 2)
    for x in pend:
        av(x)
    for e in range(16):
        av("v_add_f32 v%d, v%d, v%d" % (G_ACC + e, G_ACC + e, G_RED + e))
    for x in side:
        a(x)
    a("s_waitcnt lgkmcnt(0)")
    a("s_barrier")
    stamp(a, cfg, 6)
    rd_tile(a, 2, G_RED + 32)
    for q in range(4):
        a("s_waitcnt lgkmcnt(%d)" % (3 - q))
        for e in range(4):
            av("v_add_f32 v%d, v%d, v%d" % (G_ACC + 4 * q + e, G_ACC + 4 * q + e, G_RED + 32 + 4 * q + e))
    for x in tside:
        a(x)
    stamp(a, cfg, 7)


def bextra(a, nmu, d):
    split3(a, nmu, d + 4)
    a("v_lshrrev_b32 v%d, 16, v%d" % (d + 7, d + 4))
    a("v_or_b32 v%d, v%d, v%d" % (d, d + 7, d + 5))
    a("v_or_b32 v%d, v%d, v%d" % (d + 1, d + 7, d + 6))
    a("v_mov_b32 v%d, v%d" % (d + 2, d))
    a("v_mov_b32 v%d, 0" % (d + 3))


def res_epilogue(a, cfg, xout_add, final):
    for i in range(8):
        a("v_cvt_pk_bf16_f32 v%d, v%d, v%d" % (V_RES + i, G_ACC + 2 * i, G_ACC + 2 * i + 1))
        if i == 3 and final is None:
            st4(a, V_RES, V_L16, 34)
    if final is not None:
        a("s_cmp_eq_u32 s%d, 1" % S_LAYER)
        a("s_cbranch_scc1 %s" % final)
        st4(a, V_RES, V_L16, 34)
    store_x_tail(a)


def store_x_tail(a):
    st4(a, V_RES + 4, V_L16, 34, 1024)
    a("v_mov_b32 v%d, 0x3f803f80" % G_T)
    a("v_mov_b32 v%d, 0" % (G_T + 12))
    a("v_mov_b32 v%d, 0" % (G_T + 13))
    for r in range(8):
        a("v_dot2_f32_bf16 v%d, v%d, v%d, v%d" % (G_T + 12, V_RES + r, G_T, G_T + 12))
        a("v_dot2_f32_bf16 v%d, v%d, v%d, v%d" % (G_T + 13, V_RES + r, V_RES + r, G_T + 13))
    a("v_lshlrev_b32 v%d, 4, v%d" % (G_T + 2, V_R31))
    a("s_nop 1")
    a("v_mov_b32 v%d, v%d" % (G_T + 14, G_T + 12))
    a("v_mov_b32 v%d, v%d" % (G_T + 15, G_T + 13))
    a("s_nop 0")
    a("v_permlane32_swap_b32 v%d, v%d" % (G_T + 12, G_T + 14))
    a("v_permlane32_swap_b32 v%d, v%d" % (G_T + 13, G_T + 15))
    a("v_add_f32 v%d, v%d, v%d" % (G_T + 12, G_T + 12, G_T + 14))
    a("v_add_f32 v%d, v%d, v%d" % (G_T + 13, G_T + 13, G_T + 15))
    a("s_mov_b32 exec_lo, 0xffffffff\ns_mov_b32 exec_hi, 0x0")
    emit_l(a, "buffer_store_dwordx2 v[%d:%d], v%d, s[4:7], s35 offen" % (G_T + 12, G_T + 13, G_T + 2))
    a("s_mov_b64 exec, -1")


def out_addr(a, xout_add):
    layer_off(a, 34, OFF_X, X_STRIDE, 2, xout_add)
    a("s_lshl_b32 s18, s%d, 15" % S_RT)
    a("s_add_u32 s34, s34, s18")
    a("s_lshl_b32 s18, s%d, 11" % S_NT)
    a("s_add_u32 s34, s34, s18")
    layer_off(a, 35, OFF_STAT, STAT_STRIDE, 2, xout_add)
    a("s_lshl_b32 s18, s%d, 12" % S_RT)
    a("s_add_u32 s35, s35, s18")
    a("s_lshr_b32 s18, s%d, 1" % S_NT)
    a("s_lshl_b32 s18, s18, 9")
    a("s_add_u32 s35, s35, s18")
    a("s_and_b32 s18, s%d, 1" % S_NT)
    a("s_lshl_b32 s18, s18, 3")
    a("s_add_u32 s35, s35, s18")


S_Q0, S_Q1, S_KVW = 50, 51, 52


def wq_lines():
    b = Asm()
    for i in range(8):
        blk(b, ar(128 + 4 * i, 4), S_KVW, i)
    for i in range(8):
        blk(b, ar(160 + 4 * i, 4), S_Q0, i)
        blk(b, ar(192 + 4 * i, 4), S_Q1, i)
    return [l.strip() for l in b.lines]


def phase_qkv(a, cfg):
    SA0, SA1, SB0, SB1, SX, SKV = 24, 25, 26, 27, 28, 29
    CK = G_T + 8
    a("v_lshlrev_b32 v%d, 4, v%d" % (G_T + 1, V_H))
    a("v_lshlrev_b32 v%d, 2, v%d" % (G_T + 6, V_R31))
    VP, VPA = 198, 22
    SU.probe_addr(a, sys.modules[__name__], VPA, VP, 59)
    def wcheck(tag):
        a("v_cmp_ne_u32 vcc, v%d, v%d" % (V_TAG, VP))
        a("s_cbranch_vccz L_qkv_wok%s" % tag)
        keep = a.vm_issued
        poll(a, cfg, 59, VPA, VP, sleep=1)
        a.vm_issued = keep
        a("L_qkv_wok%s:" % tag)

    layer_off(a, SX, OFF_X, X_STRIDE, 2, 0)
    b_addr(a, SB0, SB1, SX, 32, 8)
    layer_off(a, 30, OFF_STAT, STAT_STRIDE, 2, 0)
    a("s_lshl_b32 s17, s%d, 12" % S_RT)
    a("s_add_u32 s30, s30, s17")
    reduce_addr(a, LDS_RQ)
    layer_off(a, 33, OFF_KV, KV_STRIDE)
    a("s_lshr_b32 s36, s%d, 1" % S_HQ)
    a("s_lshl_b32 s17, s%d, 1" % S_RB)
    a("s_add_u32 s17, s17, s36")
    a("s_lshl_b32 s17, s17, 15")
    a("s_add_u32 s23, s17, s%d" % SX)
    a("s_lshl_b32 s17, s%d, 13" % S_W)
    a("s_add_u32 s23, s23, s17")
    a("s_lshl_b32 s17, s%d, 12" % S_W)
    a("s_add_u32 s17, s17, %d" % LDS_KVX)
    a("v_add_u32 v%d, s17, v%d" % (G_T + 2, V_L16))
    a("v_add_u32 v%d, %d, v%d" % (G_T + 3, LDS_KVX, V_L16))
    a("s_mul_i32 s37, s%d, 0x2000" % S_LAYER)
    a("s_add_u32 s37, s37, 0x%x" % (OFF_FLAGS + FL_KV))
    a("s_lshl_b32 s17, s%d, 5" % S_RB)
    a("s_add_u32 s37, s37, s17")
    a("s_lshl_b32 s17, s36, 4")
    a("s_add_u32 s37, s37, s17")
    a("s_lshl_b32 s39, s2, 11")
    a("s_add_u32 s39, s39, 0x%x" % OFF_CKS)
    a("s_cmp_eq_u32 s%d, 0" % S_LAYER)
    a("s_cbranch_scc1 L_qkv_cs0")
    a("buffer_load_dwordx4 v[%d:%d], v%d, s[4:7], s39 offen sc1" % (CK, CK + 3, V_L16))
    a("buffer_load_dwordx4 v[%d:%d], v%d, s[4:7], s39 offen offset:1024 sc1" % (CK + 4, CK + 7, V_L16))
    a("s_branch L_qkv_nocs")
    a("L_qkv_cs0:")
    a("s_cmp_ge_u32 s%d, 4" % S_HQ)
    a("s_cbranch_scc1 L_qkv_nocs")
    for r in range(4):
        a("v_mov_b32 v%d, 0x3f803f80" % (G_CS + r))
    a("s_lshl_b32 s17, s%d, 11" % S_W)
    a("s_add_u32 s17, s17, %d" % LDS_CSX)
    a("v_add_u32 v%d, s17, v%d" % (G_CS + 4, V_L16))
    a("v_add_u32 v%d, %d, v%d" % (G_CS + 5, LDS_CSX, V_L16))
    a("s_bitcmp1_b32 s%d, 0" % S_HQ)
    a("s_cbranch_scc1 L_qkv_c1")
    for i in range(8):
        mf(a, G_ACC, ar(128 + 4 * i, 4), vr(G_CS, 4), "0" if i == 0 else vr(G_ACC, 16))
    a("s_branch L_qkv_c2")
    a("L_qkv_c1:")
    for i in range(8):
        mf(a, G_ACC, vr(G_CS, 4), ar(128 + 4 * i, 4), "0" if i == 0 else vr(G_ACC, 16))
    a("L_qkv_c2:")
    a("ds_write_b128 v%d, v[%d:%d]" % (G_CS + 4, G_ACC + 8, G_ACC + 11))
    a("ds_write_b128 v%d, v[%d:%d] offset:1024" % (G_CS + 4, G_ACC + 12, G_ACC + 15))
    a("s_waitcnt lgkmcnt(0)")
    a("s_barrier")
    for w in range(4):
        for q in range(2):
            a("ds_read_b128 v[%d:%d], v%d offset:%d" % (G_RED + 8 * w + 4 * q, G_RED + 8 * w + 4 * q + 3, G_CS + 5, 2048 * w + 1024 * q))
    a("s_waitcnt lgkmcnt(0)")
    for e in range(8):
        a("v_add_f32 v%d, v%d, v%d" % (G_RED + e, G_RED + e, G_RED + 8 + e))
        a("v_add_f32 v%d, v%d, v%d" % (G_RED + 16 + e, G_RED + 16 + e, G_RED + 24 + e))
        a("v_add_f32 v%d, v%d, v%d" % (CK + e, G_RED + e, G_RED + 16 + e))
    a("buffer_store_dwordx4 v[%d:%d], v%d, s[4:7], s39 offen sc1" % (CK, CK + 3, V_L16))
    a("buffer_store_dwordx4 v[%d:%d], v%d, s[4:7], s39 offen offset:1024 sc1" % (CK + 4, CK + 7, V_L16))
    a("L_qkv_nocs:")
    stamp(a, cfg, 8)
    xin_flag_addr(a, 38, False, 0)
    poll(a, cfg, 38, G_T + 6, G_T + 4)
    stamp(a, cfg, 9)
    def b1_loads():
        for e in range(8):
            blk(a, ar(64 + 4 * e, 4), SB1, e, SC)
            tB[e] = a.vt()

    def cs_q():
        a("s_lshl_b32 s17, s%d, 10" % S_NT)
        a("s_add_u32 s17, s17, 0x%x" % OFF_CSQX)
        a("buffer_load_dwordx4 v[%d:%d], v%d, s[4:7], s17 offen sc1" % (G_CS, G_CS + 3, V_L16))

    a("s_cmp_ge_u32 s%d, 4" % S_HQ)
    a("s_cbranch_scc1 L_qkv_stats")
    load_stats(a, G_ST, 30, G_T, SC)
    t_st = a.vt()
    tK = {}
    for i in range(8):
        blk(a, ar(224 + 4 * i, 4), 23, i, SC)
        tK[i] = a.vt()
    tB = {}
    b1_loads()
    stamp(a, cfg, 1)
    a.wait_vm(t_st)
    finish_stats(a, G_ST, V_NMU, V_RSTD)
    XS = LDS_KVX + 16384
    a("s_lshl_b32 s17, s%d, 8" % S_W)
    a("s_add_u32 s17, s17, %d" % XS)
    a("v_add_u32 v%d, s17, v%d" % (G_T + 4, G_T + 6))
    a("v_mul_f32 v%d, v%d, v%d" % (G_T + 5, V_NMU, V_RSTD))
    a("ds_write_b32 v%d, v%d" % (G_T + 4, V_RSTD))
    a("ds_write_b32 v%d, v%d offset:128" % (G_T + 4, G_T + 5))
    a("s_lshr_b32 s18, s%d, 1" % S_W)
    a("s_bitcmp1_b32 s%d, 0" % S_HQ)
    a("s_cselect_b32 s18, s18, 1")
    a("s_lshl_b32 s19, s18, 6")
    a("s_add_u32 s17, s17, s19")
    a("v_add_u32 v%d, s17, v%d" % (G_T + 4, G_T + 1))
    a("s_lshl_b32 s19, s18, 11")
    a("v_add_u32 v%d, s19, v%d" % (G_T + 3, G_T + 3))
    RS = G_ACC + 16
    for g in range(2):
        a("ds_read_b128 v[%d:%d], v%d offset:%d" % (RS + 4 * g, RS + 4 * g + 3, G_T + 4, 32 * g))
        a("ds_read_b128 v[%d:%d], v%d offset:%d" % (RS + 8 + 4 * g, RS + 8 + 4 * g + 3, G_T + 4, 128 + 32 * g))
    a("s_lshl_b32 s17, s%d, 10" % S_RT)
    a("s_add_u32 s34, s33, s17")
    a("s_bitcmp1_b32 s%d, 0" % S_HQ)
    a("s_cbranch_scc1 L_qkv_v1")
    for v in range(2):
        if v:
            a("L_qkv_v%d:" % v)
        for i in range(8):
            a.wait_vm(tK[i])
            x, w = ar(224 + 4 * i, 4), ar(128 + 4 * i, 4)
            c = "0" if i == 0 else vr(G_KVACC, 16)
            if v & 1:
                mf(a, G_KVACC, x, w, c)
            else:
                mf(a, G_KVACC, w, x, c)
        if v < 1:
            a("v_lshlrev_b32 v%d, 10, v%d" % (G_T + 4, V_LANE))
            a("s_branch L_qkv_kvred")
    a("v_lshlrev_b32 v%d, 10, v%d" % (G_T + 4, V_LANE))
    a("v_lshlrev_b32 v%d, 4, v%d" % (G_T + 5, V_R31))
    a("v_lshl_add_u32 v%d, v%d, 8, v%d" % (G_T + 5, V_H, G_T + 5))
    a("s_lshl_b32 s19, s18, 9")
    a("s_add_u32 s34, s34, s19")
    a("s_add_u32 s34, s34, 0x10000")
    a("s_lshl_b32 s19, s18, 2")
    a("s_add_u32 s37, s37, s19")
    for q in range(2):
        a("ds_write_b128 v%d, v[%d:%d] offset:%d" % (G_T + 2, G_KVACC + 4 * q, G_KVACC + 4 * q + 3, q * 1024))
    a("L_qkv_kvred:")
    stamp(a, cfg, 2)
    for q in range(2, 4):
        a("ds_write_b128 v%d, v[%d:%d] offset:%d" % (G_T + 2, G_KVACC + 4 * q, G_KVACC + 4 * q + 3, q * 1024))
    a("s_waitcnt lgkmcnt(0)")
    a("s_barrier")
    stamp(a, cfg, 3)
    a("s_and_b32 s17, s%d, 1" % S_W)
    a("s_cmp_lg_u32 s17, s36")
    a("s_cbranch_scc1 L_qkv_q")
    a("s_and_b32 s17, s%d, 1" % S_HQ)
    a("s_lshl_b32 s17, s17, 1")
    a("s_add_u32 s17, s17, 1")
    a("s_cmp_gt_u32 s%d, s17" % S_W)
    a("s_cbranch_scc1 L_qkv_q")
    RD = G_RED + 16
    for j in range(4):
        for q in range(2):
            a("ds_read_b128 v[%d:%d], v%d offset:%d" % (RD + 8 * j + 4 * q, RD + 8 * j + 4 * q + 3, G_T + 3, j * 4096 + q * 1024))
    a("s_waitcnt lgkmcnt(4)")
    for e in range(8):
        a("v_add_f32 v%d, v%d, v%d" % (RD + e, RD + e, RD + 8 + e))
    a("s_waitcnt lgkmcnt(0)")
    for e in range(8):
        a("v_add_f32 v%d, v%d, v%d" % (RD + 16 + e, RD + 16 + e, RD + 24 + e))
    for e in range(8):
        a("v_add_f32 v%d, v%d, v%d" % (RD + e, RD + e, RD + 16 + e))
    PK = RD + 8
    a("s_bitcmp1_b32 s%d, 0" % S_HQ)
    a("s_cbranch_scc1 L_qkv_vfin")
    for e in range(8):
        a("v_fmac_f32 v%d, v%d, v%d" % (RD + e, V_NMU, CK + e))
        a("v_mul_f32 v%d, v%d, v%d" % (RD + e, V_RSTD, RD + e))
    pack8(a, PK, RD)
    a("buffer_store_dwordx4 v[%d:%d], v%d, s[4:7], s34 offen %s" % (PK, PK + 3, V_L16, SC))
    a("v_mov_b32 v%d, 0" % (PK + 4))
    for r in range(4):
        a("v_dot2_f32_bf16 v%d, v%d, v%d, v%d" % (PK + 4, PK + r, PK + r, PK + 4))
    xhalf_sum(a, PK + 4, PK + 5)
    for d in ("row_shr:1", "row_shr:2", "row_shr:4", "row_shr:8"):
        a("v_max_f32_dpp v%d, v%d, v%d %s row_mask:0xf bank_mask:0xf" % (PK + 4, PK + 4, PK + 4, d))
    a("v_max_f32_dpp v%d, v%d, v%d row_bcast:15 row_mask:0xa bank_mask:0xf" % (PK + 4, PK + 4, PK + 4))
    a("v_readlane_b32 s18, v%d, 31" % (PK + 4))
    a("v_mov_b32 v%d, v%d" % (PK + 6, V_TAG))
    a("v_mov_b32 v%d, s18" % (PK + 7))
    a("s_waitcnt vmcnt(0)")
    a("s_mov_b64 exec, 0xff")
    a("buffer_store_dwordx2 v[%d:%d], v%d, s[4:7], s37 offen %s" % (PK + 6, PK + 7, G_T + 4, SC))
    a("s_mov_b64 exec, -1")
    a("s_branch L_qkv_q")
    a("L_qkv_vfin:")
    for e in range(8):
        a("v_mul_f32 v%d, v%d, v%d" % (RD + e, RS + e, RD + e))
        a("v_fmac_f32 v%d, v%d, v%d" % (RD + e, RS + 8 + e, CK))
    pack8(a, PK, RD)
    a("s_mov_b32 exec_lo, 0xffff\ns_mov_b32 exec_hi, 0xffff")
    a("buffer_store_dwordx4 v[%d:%d], v%d, s[4:7], s34 offen %s" % (PK, PK + 3, G_T + 5, SC))
    stamp(a, cfg, 5)
    a("s_waitcnt vmcnt(0)")
    a("s_mov_b64 exec, 0xff")
    a("buffer_store_dword v%d, v%d, s[4:7], s37 offen offset:8 %s" % (V_TAG, G_T + 4, SC))
    a("s_mov_b64 exec, -1")
    a("s_branch L_qkv_q")
    a("L_qkv_stats:")
    load_stats(a, G_ST, 30, G_T, SC)
    t_st = a.vt()
    b1_loads()
    a.wait_vm(t_st)
    finish_stats(a, G_ST, V_NMU, V_RSTD)
    a("L_qkv_q:")
    stamp(a, cfg, 10)
    bextra(a, V_NMU, G_CS + 4)
    tq = {}

    def h_probe():
        a("buffer_load_dword v%d, v%d, s[4:7], s59 offen sc1" % (VP, VPA))
        tq[0] = a.vt()

    def h_cs():
        a.wait_vm(tq[0])
        wcheck("q")
        cs_q()
        tq[1] = a.vt()
    gemm64_core(a, dict(cfg, stamps=cfg.get('stamps') and 2), 8, lambda i: ar(160 + 4 * i, 4), lambda i: ar(192 + 4 * i, 4), lambda e: ar(64 + 4 * e, 4),
                lambda e: blk(a, ar(64 + 4 * e, 4), SB1 if e < 8 else SB0, e % 8, SC), 16, pre_tickets=tB, ramp=12,
                side=[g[0] for g in SU.deferred_store_groups(sys.modules[__name__])], side_from=99, side_n=1, extra0=(vr(G_CS, 4), vr(G_CS + 4, 4), lambda: a.wait_vm(tq[1])),
                hooks={3: h_probe, 10: h_cs})
    a("v_mul_f32 v%d, %s, v%d" % (G_T, fl(QSCALE), V_RSTD))
    for e in range(16):
        a("v_mul_f32 v%d, v%d, v%d" % (G_ACC + e, G_T, G_ACC + e))
    pack8(a, G_Q, G_ACC)
    pack8(a, G_Q + 4, G_ACC + 8)
    if cfg.get("store_q"):
        a("s_lshl_b32 s17, s%d, 15" % S_RT)
        a("s_lshl_b32 s18, s%d, 11" % S_NT)
        a("s_add_u32 s17, s17, s18")
        a("s_add_u32 s17, s17, 0x%x" % OFF_Q)
        a("buffer_store_dwordx4 v[%d:%d], v%d, s[4:7], s17 offen" % (G_Q, G_Q + 3, V_L16))
        a("buffer_store_dwordx4 v[%d:%d], v%d, s[4:7], s17 offen offset:1024" % (G_Q + 4, G_Q + 7, V_L16))
    stamp(a, cfg, 11)


A_C = [24, 40]
A_O = [56, 72]
A_S = [88, 104]
A_P = [120, 124, 128, 132]
A_KF = [136, 140]
A_VF = [[144, 148], [152, 156]]
A_VK, A_VV, A_VINC = 160, 161, 162
A_T = 164
LDS_V = 65536
LDS_ONES = 131072
LDS_ATT_FLAG = LDS_ONES + 5120
UNR = 4


EARLY = 4
W2ORD = [7 * mm + tl for tl in range(7) for mm in range(4)]
W2POS = {k: p for p, k in enumerate(W2ORD)}


def w2load(a, idx, s0, s1):
    i = W2ORD[idx >> 1]
    blk(a, w2reg(idx & 1, i), s1 if idx & 1 else s0, i)


def w2reg(s, i):
    idx = 2 * W2POS[i] + s
    if idx < 32:
        return ar(128 + 4 * idx, 4)
    if idx < 46:
        return vr(W2V + 4 * (idx - 32), 4)
    if idx < 54:
        return vr(136 + 4 * (idx - 46), 4)
    return vr(190 + 4 * (idx - 54), 4)


SLOT13 = [0, 2, 1, 3, 0, 2, 1]


def dma13(a, i, part=None):
    slot = SLOT13[i]
    for hh in range(2):
        a("s_add_u32 m0, s%d, %d" % (S_WL, slot * 32768 + hh * 4096))
        a("s_add_u32 s29, s%d, %d" % (S_W13, i * 32768 + hh * 4096))
        for q in range(4):
            a("buffer_load_dwordx4 v%d, s[4:7], s29 offen offset:%d sc1 lds" % (V_L16, q * 1024))


def dma_lines(i):
    b = Asm()
    dma13(b, i)
    return [l.strip() for l in b.lines]


def phase_att(a, cfg):
    Q = [G_Q, G_Q + 4]
    SA0, SA1, SW0, SW1 = 24, 25, 26, 27
    a("v_mov_b32 v%d, 0x3f803f80" % (A_T + 4))
    if cfg.get("zpad", 1):
        a("v_and_b32 v%d, 2, v0" % (A_T + 5))
        a("v_cmp_eq_u32 vcc, 0, v%d" % (A_T + 5))
        a("v_cndmask_b32 v%d, v%d, v%d, vcc" % (A_T + 4, V_ZERO, A_T + 4))
    for r in range(1, 4):
        a("v_mov_b32 v%d, v%d" % (A_T + 4 + r, A_T + 4))
    a("v_lshlrev_b32 v%d, 4, v0" % (A_T + 2))
    a("v_add_u32 v%d, %d, v%d" % (A_T + 2, LDS_ONES, A_T + 2))
    a("ds_write_b128 v%d, v[%d:%d]" % (A_T + 2, A_T + 4, A_T + 7))
    a("ds_write_b128 v%d, v[%d:%d] offset:1024" % (A_T + 2, A_T + 4, A_T + 7))
    a("v_and_b32 v%d, 15, v%d" % (A_T + 2, V_LANE))
    a("v_lshlrev_b32 v%d, 4, v%d" % (A_T + 2, A_T + 2))
    a("v_lshl_add_u32 v%d, v%d, 8, v%d" % (A_T + 2, V_H, A_T + 2))
    a("v_add_u32 v%d, %d, v%d" % (A_VV, LDS_V, A_T + 2))
    a("v_add_u32 v%d, -20, v%d" % (A_T + 3, V_R31))
    a("v_cmp_gt_u32 vcc, 8, v%d" % (A_T + 3))
    a("v_mov_b32 v%d, %d" % (A_T + 2, LDS_ONES))
    a("v_mov_b32 v%d, %d" % (A_T + 3, LDS_ONES + 64))
    a("v_cndmask_b32 v%d, v%d, v%d, vcc" % (A_T + 2, A_T + 2, A_T + 3))
    if cfg.get("zpad", 1):
        a("v_and_b32 v%d, 27, v%d" % (A_T + 3, V_R31))
        a("v_cmp_ne_u32 vcc, 16, v%d" % (A_T + 3))
        a("v_add_u32 v%d, 32, v%d" % (A_T + 3, A_T + 2))
        a("v_cndmask_b32 v%d, v%d, v%d, vcc" % (A_T + 2, A_T + 2, A_T + 3))
    a("v_cmp_le_u32 vcc, 16, v%d" % V_R31)
    a("v_mov_b32 v%d, %d" % (A_VINC, UNR * 1024))
    a("v_cndmask_b32 v%d, v%d, v%d, vcc" % (A_VV, A_VV, A_T + 2))
    a("v_cndmask_b32 v%d, v%d, v%d, vcc" % (A_VINC, A_VINC, V_ZERO))
    for t in range(2):
        n = A_T + 8 + t
        a("v_mov_b32 v%d, 0" % n)
        for r in range(4):
            a("v_dot2_f32_bf16 v%d, v%d, v%d, v%d" % (n, Q[t] + r, Q[t] + r, n))
    for t in range(2):
        xhalf_sum(a, A_T + 8 + t, A_T + 10)
    a_addr(a, SA0, SA1, OFF_WO, 32, 8)
    a("s_mul_i32 s%d, s%d, %d" % (S_W13, S_M, 7 * 32768))
    a("s_lshl_b32 s%d, s%d, 13" % (S_WL, S_W))
    a("s_add_u32 s%d, s%d, s%d" % (S_W13, S_W13, S_WL))
    a("s_add_u32 s%d, s%d, 0x%x" % (S_W13, S_W13, OFF_W13))
    a_addr(a, SW0, SW1, OFF_W2, 112, 28)
    a("s_lshl_b32 s20, s%d, 12" % S_W)
    a("s_add_u32 s21, s33, s20")
    a("s_add_u32 s22, s21, 0x10000")
    a("s_add_u32 s23, s20, %d" % LDS_V)
    a("s_mul_i32 s38, s%d, 0x2000" % S_LAYER)
    a("s_add_u32 s38, s38, 0x%x" % (OFF_FLAGS + FL_KV))
    a("s_and_b32 s17, s2, 7")
    a("s_lshl_b32 s17, s17, 10")
    a("s_add_u32 s38, s38, s17")
    a("s_lshl_b32 s58, s2, 2")
    a("s_add_u32 s58, s58, 0x%x" % OFF_FLW)
    a("s_or_b32 s17, s%d, s%d" % (S_W, S_LAYER))
    a("s_cmp_lg_u32 s17, 0")
    a("s_cselect_b32 s58, 0xf0000000, s58")
    a("s_and_b32 s59, s2, 7")
    a("s_lshl_b32 s59, s59, 10")
    a("s_add_u32 s59, s59, 0x%x" % OFF_FLW)
    a("v_lshlrev_b32 v%d, 10, v%d" % (A_T + 16, V_LANE))
    a("s_getreg_b32 s17, hwreg(HW_REG_XCC_ID)")
    a("s_and_b32 s17, s17, 7")
    a("s_lshl_b32 s17, s17, 1")
    a("v_or_b32 v%d, s17, v%d" % (A_T + 17, V_TAG))
    a("v_and_b32 v%d, 15, v%d" % (A_T + 18, V_LANE))
    a("v_lshlrev_b32 v%d, 5, v%d" % (A_T + 18, A_T + 18))
    a("s_and_b32 s17, s2, 0x87")
    a("s_lshl_b32 s17, s17, 2")
    a("v_add_u32 v%d, s17, v%d" % (A_T + 18, A_T + 18))

    stamp(a, cfg, 1)
    a("s_cmp_lg_u32 s%d, 0" % S_W)
    a("s_cbranch_scc1 L_att_nopoll")
    poll(a, cfg, 38, V_L16, A_T + 12, wide=True, sleep=cfg.get("kv_sleep", 2))
    k2 = A_T + 13
    for d in ("row_shr:1", "row_shr:2", "row_shr:4", "row_shr:8"):
        a("v_max_f32_dpp v%d, v%d, v%d %s row_mask:0xf bank_mask:0xf" % (k2, k2, k2, d))
    a("v_max_f32_dpp v%d, v%d, v%d row_bcast:15 row_mask:0xa bank_mask:0xf" % (k2, k2, k2))
    a("v_max_f32_dpp v%d, v%d, v%d row_bcast:31 row_mask:0xc bank_mask:0xf" % (k2, k2, k2))
    a("v_mov_b32 v%d, %d" % (A_T + 12, LDS_ATT_FLAG + 16 - 63 * 4))
    a("v_add_u32 v%d, v%d, v%d" % (A_T + 12, V_L4, A_T + 12))
    a("s_mov_b32 exec_lo, 0")
    a("s_mov_b32 exec_hi, 0x80000000")
    a("ds_write_b32 v%d, v%d" % (A_T + 12, k2))
    a("s_mov_b64 exec, -1")
    a("s_waitcnt lgkmcnt(0)")
    a("L_att_nopoll:")
    a("s_waitcnt vmcnt(0)")
    a("s_barrier")
    a("s_mov_b64 exec, 0xff")
    a("buffer_store_dword v%d, v%d, s[4:7], s58 offen %s" % (A_T + 17, A_T + 16, SC))
    a("s_mov_b64 exec, -1")
    a("s_mov_b32 s%d, 0xf0000000" % SU.S_DST)
    stamp(a, cfg, 2)
    a("v_mov_b32 v%d, %d" % (A_T + 12, LDS_ATT_FLAG + 16))
    a("ds_read_b32 v%d, v%d" % (A_T + 1, A_T + 12))
    def kvl(g):
        out = []
        for sl, sg in ((20, 21), (23, 22)):
            out += ["s_add_u32 m0, s%d, %d" % (sl, g * 16384), "s_add_u32 s17, s%d, %d" % (sg, g * 16384)]
            out += ["buffer_load_dwordx4 v%d, s[4:7], s17 offen offset:%d %s lds" % (V_L16, q * 1024, SC) for q in range(4)]
        return out

    def kvdma(g):
        for x in kvl(g):
            a(x)

    G1 = 1
    for g in range(G1):
        kvdma(g)
        if g == 0:
            t_g3 = a.vt()
            a("s_waitcnt lgkmcnt(0)")
            for t in range(2):
                n = A_T + 8 + t
                a("v_mul_f32 v%d, v%d, v%d" % (n, A_T + 1, n))
                a("v_sqrt_f32 v%d, v%d" % (n, n))
            for t in range(2):
                n = A_T + 8 + t
                a("v_mul_f32 v%d, %s, v%d" % (n, fl(-1.001), n))
            a("v_min_f32 v%d, v%d, v%d" % (A_T + 10, A_T + 8, A_T + 9))
            a("v_mov_b32 v%d, %s" % (A_T + 11, fl(-cfg.get("bound_t", BOUND_T))))
            a("v_cmp_nge_f32 vcc, v%d, v%d" % (A_T + 10, A_T + 11))
            a("s_lshl_b32 s19, s%d, 2" % S_W)
            a("s_add_u32 s19, s19, %d" % LDS_ATT_FLAG)
            a("v_mov_b32 v%d, s19" % (A_T + 12))
            a("s_cmp_lg_u64 vcc, 0")
            a("s_cselect_b32 s18, 1, 0")
            a("v_mov_b32 v%d, s18" % (A_T + 11))
            a("ds_write_b32 v%d, v%d" % (A_T + 12, A_T + 11))
            for t in range(2):
                for r in range(16):
                    a("v_mov_b32 v%d, v%d" % (A_C[t] + r, A_T + 8 + t))
    stamp(a, cfg, 3)
    a.wait_vm(t_g3)
    a("s_waitcnt lgkmcnt(0)")
    a("s_barrier")
    stamp(a, cfg, 4)
    a("v_mov_b32 v%d, %d" % (A_T + 12, LDS_ATT_FLAG))
    a("ds_read_b128 v[%d:%d], v%d" % (A_T + 4, A_T + 7, A_T + 12))
    a("ds_read_b128 v[%d:%d], v%d" % (A_KF[0], A_KF[0] + 3, V_L16))
    a("ds_read_b128 v[%d:%d], v%d" % (A_VF[0][0], A_VF[0][0] + 3, A_VV))
    a("ds_read_b128 v[%d:%d], v%d offset:512" % (A_VF[0][1], A_VF[0][1] + 3, A_VV))
    a("ds_read_b128 v[%d:%d], v%d offset:1024" % (A_KF[1], A_KF[1] + 3, V_L16))
    a("s_waitcnt lgkmcnt(4)")
    a("v_or_b32 v%d, v%d, v%d" % (A_T + 4, A_T + 4, A_T + 5))
    a("v_or3_b32 v%d, v%d, v%d, v%d" % (A_T + 4, A_T + 4, A_T + 6, A_T + 7))
    a("v_readfirstlane_b32 s18, v%d" % (A_T + 4))
    a("s_cmp_eq_u32 s18, 0")
    a("s_cbranch_scc1 L_att_fast")
    keep = a.dma_issued, a.vm_issued
    for g in range(G1, 4):
        kvdma(g)
    a.dma_issued, a.vm_issued = keep
    a("s_waitcnt vmcnt(0)")
    a("s_barrier")
    a("v_mov_b32 v%d, 0xff800000" % (A_T + 8))
    a("v_mov_b32 v%d, 0xff800000" % (A_T + 9))
    a("v_mov_b32 v%d, v%d" % (A_T + 12, V_L16))
    a("s_mov_b32 s19, 64")
    a("L_att_pre:")
    a("ds_read_b128 v[%d:%d], v%d" % (A_P[0], A_P[0] + 3, A_T + 12))
    a("v_add_u32 v%d, 1024, v%d" % (A_T + 12, A_T + 12))
    a("s_waitcnt lgkmcnt(0)")
    for t in range(2):
        mf(a, A_S[t], vr(A_P[0], 4), vr(Q[t], 4), "0")
    for t in range(2):
        for r in range(0, 16, 2):
            a("v_max3_f32 v%d, v%d, v%d, v%d" % (A_T + 8 + t, A_S[t] + r, A_S[t] + r + 1, A_T + 8 + t))
    a("s_sub_u32 s19, s19, 1")
    a("s_cmp_lg_u32 s19, 0")
    a("s_cbranch_scc1 L_att_pre")
    for t in range(2):
        n = A_T + 8 + t
        a("v_mov_b32 v%d, v%d" % (A_T + 10, n))
        a("v_permlane32_swap_b32 v%d, v%d" % (n, A_T + 10))
        a("v_max_f32 v%d, v%d, v%d" % (n, n, A_T + 10))
        a("v_sub_f32 v%d, 0, v%d" % (n, n))
        for r in range(16):
            a("v_mov_b32 v%d, v%d" % (A_C[t] + r, n))
    a("L_att_fast:")
    a("s_waitcnt lgkmcnt(0)")

    def m4(d, x, y, c):
        mf(a, d, vr(x, 4), vr(y, 4), vr(c, 16))

    def ex(r):
        a("v_exp_f32 v%d, v%d" % (r, r))

    def cv(d, s):
        a("v_cvt_pk_bf16_f32 v%d, v%d, v%d" % (d, s, s + 1))

    m4(A_S[0], A_KF[0], Q[0], A_C[0])
    a("s_nop 7")

    def lines_of(fn):
        b = Asm()
        fn(b)
        return [l.strip() for l in b.lines]

    def groups(lines):
        out, cur = [], []
        for x in lines:
            cur.append(x)
            if x.startswith("buffer_"):
                out.append(cur)
                cur = []
        assert not cur
        return out

    q_kv = []
    for g in range(G1, 4):
        q_kv += [(x, g) for x in groups(kvl(g))]
    q_w = []
    for i in range(8):
        q_w += groups(lines_of(lambda b: blk(b, ar(4 * i, 4), SA0, i)))
        q_w += groups(lines_of(lambda b: blk(b, ar(32 + 4 * i, 4), SA1, i)))
    for idx in range(46):
        q_w += groups(lines_of(lambda b: w2load(b, idx, SW0, SW1)))
    q_t = [["s_add_u32 s17, s49, %d" % (q * 4096), "buffer_load_dword v%d, v%d, s[4:7], s17 offen sc1" % (A_T + 3, A_T + 2)] for q in range(5)]
    if not cfg.get("touch13", 1):
        q_t = []
    q_d = groups(dma_lines(0) + dma_lines(1))
    a("s_mul_i32 s49, s%d, %d" % (S_M, 7 * 32768))
    a("s_and_b32 s18, s%d, 1" % S_RG)
    a("s_mul_i32 s18, s18, %d" % 81920)
    a("s_add_u32 s49, s49, s18")
    a("s_mul_i32 s18, s%d, %d" % (S_W, 20480))
    a("s_add_u32 s49, s49, s18")
    a("s_add_u32 s49, s49, 0x%x" % (OFF_W13 + 65536))
    a("v_lshlrev_b32 v%d, 6, v%d" % (A_T + 2, V_LANE))
    tg = {}
    U_PROBE, U_CHK = cfg.get("u_probe", 21), cfg.get("u_chk", 24)
    PB = A_T + 12
    def slot(u):
        grp, g = None, None
        if q_kv:
            grp, g = q_kv.pop(0)
            if u < 4:
                grp = grp + q_kv.pop(0)[0]
        elif u == U_PROBE:
            a("buffer_load_dwordx4 v[%d:%d], v%d, s[4:7], s59 offen %s" % (PB, PB + 3, V_L16, SC))
            tg["probe"] = a.vt()
        elif u == U_CHK:
            assert not q_kv
            a("s_waitcnt vmcnt(0)")
            a("L_att_wchk:")
            for r in range(4):
                a("v_and_b32 v%d, -15, v%d" % (PB + r, PB + r))
            a("v_cmp_ne_u32 vcc, v%d, v%d" % (V_TAG, PB))
            for r in range(1, 4):
                a("v_cmp_ne_u32 s[18:19], v%d, v%d" % (V_TAG, PB + r))
                a("s_or_b64 vcc, vcc, s[18:19]")
            a("s_cmp_eq_u64 vcc, 0")
            a("s_cbranch_scc1 L_att_wok")
            if cfg.get("spin_limit"):
                a("s_sub_u32 s46, s46, 1")
                a("s_cbranch_scc1 L_att_wok")
            keep = a.vm_issued
            a("s_sleep 4")
            a("buffer_load_dwordx4 v[%d:%d], v%d, s[4:7], s59 offen %s" % (PB, PB + 3, V_L16, SC))
            a("s_waitcnt vmcnt(0)")
            a("s_branch L_att_wchk")
            a.vm_issued = keep
            a("L_att_wok:")
            a("buffer_load_dword v%d, v%d, s[4:7], s59 offen %s" % (PB, A_T + 18, SC))
            tg["grp"] = a.vt()
        elif u == U_CHK + 8:
            a.wait_vm(tg["grp"])
            a("v_cmp_ne_u32 vcc, v%d, v%d" % (A_T + 17, PB))
            a("s_cmp_eq_u64 vcc, 0")
            a("s_cselect_b32 s%d, %d, 0" % (S_LOC, 0 if cfg.get("force_remote") else 1))
        elif u < U_CHK:
            pass
        elif q_t and u >= cfg.get("t_from", 100) and (u - cfg.get("t_from", 100)) % cfg.get("t_every", 4) == 1:
            grp = q_t.pop(0)
        elif u >= 68 and q_d:
            grp = q_d.pop(0)
        elif q_w:
            grp = q_w.pop(0)
        if grp:
            for x in grp:
                a(x)
            if g is not None:
                tg[g] = a.vt()

    NU = 128
    BAR = {16: None, 36: None}
    for u in range(NU):
        j, t = u >> 1, u & 1
        nj, nt = (u + 1) >> 1, (u + 1) & 1
        pj, pt = (u - 1) >> 1, (u - 1) & 1
        jj = j % UNR
        sb, nsb = A_S[u % 2], A_S[(u + 1) % 2]
        plo, phi = A_P[(u % 2) * 2], A_P[(u % 2) * 2 + 1]
        pphi = A_P[((u - 1) % 2) * 2 + 1]
        if u + 1 < NU:
            m4(nsb, A_KF[nj % 2], Q[nt], A_C[nt])
        if t == 0 and j + 2 < 64:
            a("ds_read_b128 v[%d:%d], v%d offset:%d" % (A_KF[j % 2], A_KF[j % 2] + 3, V_L16, (j + 2) * 1024))
        if t == 1 and u > U_CHK and cfg.get('slot3', 0):
            slot(u)
        for r in range(0, 4):
            ex(sb + r)
        if u > 0:
            m4(A_O[pt], A_VF[pj % 2][1], pphi, A_O[pt])
        if t == 0 and j + 1 < 64:
            off = (jj + 1) * 1024
            a("ds_read_b128 v[%d:%d], v%d offset:%d" % (A_VF[(j + 1) % 2][0], A_VF[(j + 1) % 2][0] + 3, A_VV, off))
            a("ds_read_b128 v[%d:%d], v%d offset:%d" % (A_VF[(j + 1) % 2][1], A_VF[(j + 1) % 2][1] + 3, A_VV, off + 512))
        if t == 1:
            slot(u)
        for r in range(4, 9):
            ex(sb + r)
        for r in range(0, 4):
            cv(plo + r, sb + 2 * r)
        for r in range(9, 12):
            ex(sb + r)
        m4(A_O[t], A_VF[j % 2][0], plo, A_O[t]) if u > 1 else mf(a, A_O[t], vr(A_VF[j % 2][0], 4), vr(plo, 4), "0")
        if t == 1:
            a("s_waitcnt lgkmcnt(0)")
            if (j + 3) in BAR:
                g = BAR[j + 3]
                if g is not None:
                    a.wait_vm(tg[g])
                a("s_barrier")
                if j + 3 == 16:
                    stamp(a, cfg, 6)
        else:
            slot(u)
        for r in range(12, 16):
            ex(sb + r)
        if t == 1 and jj == UNR - 1:
            a("v_add_u32 v%d, v%d, v%d" % (A_VV, A_VINC, A_VV))
        for r in range(4, 8):
            cv(phi + r - 4, sb + 2 * r)
    assert not (q_kv or q_w or q_t or q_d), (len(q_kv), len(q_w), len(q_t), len(q_d))
    units = [(63, 1)]
    U = 128
    a("L_att_done:")
    DUAL[0] = bool(cfg.get("dual", 1))
    stamp(a, cfg, 7)
    lj, lt = units[-1]
    m4(A_O[lt], A_VF[lj % 2][1], A_P[((U - 1) % 2) * 2 + 1], A_O[lt])
    layer_off(a, 34, OFF_O, X_STRIDE)
    a("s_lshl_b32 s18, s%d, 15" % S_RT)
    a("s_add_u32 s34, s34, s18")
    a("s_lshl_b32 s18, s%d, 11" % S_NT)
    a("s_add_u32 s34, s34, s18")
    for t in range(2):
        a("v_rcp_f32 v%d, v%d" % (A_T, A_O[t] + 8))
        for r in range(8):
            a("v_mul_f32 v%d, v%d, v%d" % (A_O[t] + r, A_T, A_O[t] + r))
        pack8(a, A_P[t], A_O[t])
        st4(a, A_P[t], V_L16, 34, t * 1024)
    flag_addr(a, S_FO, FL_O, S_RB, 7, S_HQ)
    publish(a, S_FO, [(34, 2048, 0)])
    stamp(a, cfg, 8)


def phase_wo(a, cfg):
    SB0, SB1, SX = 26, 27, 28
    a("s_barrier")
    if not cfg.get("pf_att", 1):
        for i in range(8):
            blk(a, ar(4 * i, 4), 24, i)
            blk(a, ar(32 + 4 * i, 4), 25, i)
    b = Asm()
    dma13(b, 2)
    b("s_mul_i32 s29, s%d, %d" % (S_M, 7 * 1024))
    b("s_lshl_b32 s17, s%d, 11" % S_W)
    b("s_add_u32 s29, s29, s17")
    b("s_add_u32 m0, s17, %d" % LDS_CS)
    b("s_add_u32 s29, s29, 0x%x" % OFF_CSX)
    b("buffer_load_dwordx4 v%d, s[4:7], s29 offen sc1 lds" % V_L16)
    b("buffer_load_dwordx4 v%d, s[4:7], s29 offen offset:1024 sc1 lds" % V_L16)
    wside = [l.strip() for l in b.lines]
    wside2 = []
    if cfg.get("mix", 1):
        wside2, wside = wside, []
    elif cfg.get("t2_pre", 1):
        for x in wside:
            a(x)
        wside = []
    layer_off(a, SX, OFF_O, X_STRIDE)
    b_addr(a, SB0, SB1, SX, 32, 8)
    reduce_addr(a, LDS_R1)
    out_addr(a, 1)
    flag_addr(a, 38, FL_O, S_RB, 7)
    a("s_lshl_b32 s17, s%d, 5" % S_W)
    a("s_add_u32 s38, s38, s17")
    a("v_and_b32 v%d, 28, v%d" % (G_T + 5, V_L4))
    flag_addr(a, S_FX1, FL_X1, S_RG, 8, S_M)
    stamp(a, cfg, 8)
    poll(a, cfg, 38, G_T + 5, G_T + 4)
    stamp(a, cfg, 9)
    gemm64_core(a, cfg, 8, lambda i: ar(4 * i, 4), lambda i: ar(32 + 4 * i, 4), lambda e: ar(64 + 4 * e, 4),
                lambda e: blk(a, ar(64 + 4 * e, 4), SB1 if e < 8 else SB0, e % 8, SC), 16, ramp=cfg.get("ramp1", 8), resid=True,
                side=wside2, side_from=cfg.get("wo_side", 5), side_n=1)
    res_epilogue(a, cfg, 1, None)
    stamp(a, cfg, 10)
    publish(a, S_FX1, [(34, 2048, 0), (35, 512, 0)], between=wside)
    stamp(a, cfg, 11)


F_ACC = [24, 40, 56, 72]
NACC = 4
F_W = 88
F_CS = 120
F_H = 128
F_ST = 136
F_T = 168
F_LA = [184, 185]
F_NMU, F_C1, F_RS2, F_CSA, F_LG = 186, 187, 188, 189, 198
F_TA = 172


def phase_ffn1(a, cfg):
    SX, SH = 24, 27
    G3 = cfg.get("g0", 3) == 3
    if G3:
        a("s_mul_i32 s35, s%d, 6144" % S_W)
        a("s_sub_u32 s34, s%d, s%d" % (S_W13, S_WL))
        a("s_add_u32 s34, s34, s35")
        a("s_add_u32 s34, s34, %d" % (4 * 32768))
        head4 = ["s_add_u32 m0, s35, %d" % LDS_E, "s_nop 0"]
        head4 += ["buffer_load_dwordx4 v%d, s[4:7], s34 offen offset:%d sc1 lds" % (V_L16, q * 1024) for q in range(4)]
        head4 += ["s_add_u32 m0, s35, %d" % (LDS_E + 4096), "s_add_u32 s34, s34, 4096"]
        head4 += ["buffer_load_dwordx4 v%d, s[4:7], s34 offen offset:%d sc1 lds" % (V_L16, q * 1024) for q in range(2)]
        a("s_lshl_b32 s28, s%d, 11" % S_W)
        a("s_sub_u32 s33, s%d, s%d" % (S_W13, S_WL))
        a("s_add_u32 s33, s33, s28")
        a("s_add_u32 s33, s33, %d" % (4 * 32768 + 24 * 1024))
    a("s_lshl_b32 s30, s%d, 2" % S_RG)
    a("s_add_u32 s30, s30, s%d" % S_W)
    layer_off(a, SX, OFF_X, X_STRIDE, 2, 1)
    a("s_lshl_b32 s17, s30, 15")
    a("s_add_u32 s%d, s%d, s17" % (SX, SX))
    a("s_add_u32 s25, s%d, %d" % (SX, 28 * 1024))
    layer_off(a, 26, OFF_STAT, STAT_STRIDE, 2, 1)
    a("s_lshl_b32 s18, s30, 12")
    a("s_add_u32 s26, s26, s18")
    layer_off(a, SH, OFF_H, H_STRIDE)
    a("s_mul_i32 s17, s30, %d" % (112 * 1024))
    a("s_add_u32 s%d, s%d, s17" % (SH, SH))
    a("s_mul_i32 s17, s%d, %d" % (S_M, 7 * 1024))
    a("s_add_u32 s%d, s%d, s17" % (SH, SH))
    a("v_mov_b32 v%d, v%d" % (F_LA[0], V_L16))
    a("v_add_u32 v%d, 65536, v%d" % (F_LA[1], V_L16))
    a("v_add_u32 v%d, %d, v%d" % (F_CSA, LDS_E, V_L16))
    a("v_and_b32 v%d, 0x380, v%d" % (F_TA, V_L128))
    a("v_add_u32 v%d, 4096, v%d" % (F_TA + 1, F_TA))
    a_addr(a, 53, 54, OFF_W2, 112, 28)
    flag_addr(a, 38, FL_X1, S_RG, 8)
    a("s_lshr_b32 s17, s%d, 1" % S_W)
    a("s_lshl_b32 s17, s17, 7")
    a("s_add_u32 s38, s38, s17")
    a("s_and_b32 s17, s%d, 1" % S_W)
    a("s_lshl_b32 s17, s17, 2")
    a("s_add_u32 s38, s38, s17")
    lane_pat(a, F_T + 2, 15, 0, 3)
    flag_addr(a, S_FH, FL_H, S_RG, 9, S_M, per_layer=0x2000)
    stamp(a, cfg, 1)
    a("s_barrier")
    if not cfg.get("mix", 1):
        dma13(a, 3)
    poll(a, cfg, 38, F_T + 2, F_T)
    stamp(a, cfg, 2)
    tX = {}

    def xload(i):
        if i < 28:
            blk(a, ar(4 * i, 4), SX, i, SC)
        else:
            blk(a, ar(4 * i, 4), 25, i - 28, SC)
        tX[i] = a.vt()

    XW = cfg.get("xwin", 10)
    for i in range(XW):
        xload(i)

    def wread(tile, ks, ring):
        slot = SLOT13[tile]
        if ks == 32:
            a("ds_read_b128 v[%d:%d], v%d offset:%d" % (F_W + 4 * ring, F_W + 4 * ring + 3, F_CSA, LDS_CS - LDS_E + tile * 1024))
            return
        if G3 and tile == 4:
            a("ds_read_b128 v[%d:%d], v%d offset:%d" % (F_W + 4 * ring, F_W + 4 * ring + 3, F_CSA if ks < 24 else F_LA[0], (ks % 24) * 1024))
            return
        a("ds_read_b128 v[%d:%d], v%d offset:%d" % (F_W + 4 * ring, F_W + 4 * ring + 3, F_LA[slot >> 1], (slot & 1) * 32768 + ks * 1024))

    def epi(tile):
        acc, cs = F_ACC[tile % NACC], F_CS
        hp = F_H + 4 * (tile % 2)
        out = []
        for e in range(8):
            out.append("v_fma_f32 v%d, v%d, v%d, v%d" % (F_T + 8 + e, F_C1, acc + e, F_LG))
        for e in range(8):
            out.append("v_exp_f32 v%d, v%d" % (F_T + 8 + e, F_T + 8 + e))
            out.append("v_mul_f32 v%d, v%d, v%d" % (acc + e, acc + e, acc + 8 + e))
            if e:
                out.append("v_add_f32 v%d, v%d, v%d" % (F_T + 7 + e, F_RS2, F_T + 7 + e))
        out.append("v_add_f32 v%d, v%d, v%d" % (F_T + 15, F_RS2, F_T + 15))
        for e in range(8):
            out.append("v_rcp_f32 v%d, v%d" % (F_T + 8 + e, F_T + 8 + e))
            if e:
                out.append("v_mul_f32 v%d, v%d, v%d" % (acc + e - 1, F_T + 7 + e, acc + e - 1))
        out.append("v_mul_f32 v%d, v%d, v%d" % (acc + 7, F_T + 15, acc + 7))
        for i in range(4):
            out.append("v_cvt_pk_bf16_f32 v%d, v%d, v%d" % (hp + i, acc + 2 * i, acc + 2 * i + 1))
        out.append("buffer_store_dwordx4 v[%d:%d], v%d, s[4:7], s%d offen offset:%d" % (hp, hp + 3, V_OFF[tile // 4], SH, (tile % 4) * 1024))
        if DBL[0]:
            out.append("buffer_store_dwordx4 v[%d:%d], v%d, s[4:7], s%d offen offset:%d" % (hp, hp + 3, V_OFF[tile // 4], SH, (tile % 4) * 1024))
        return out

    G0 = cfg.get("g0", 3)
    steps = []
    for ks in range(33):
        for tl in range(G0):
            steps.append((tl, ks))
    for tile in range(G0, 7):
        for ks in range(33):
            steps.append((tile, ks))
    N = len(steps)
    PF = cfg.get('pf', 6)
    lt = {}
    first_of, last_of = {}, {}
    for n, (tile, ks) in enumerate(steps):
        first_of.setdefault(tile, n)
        last_of[tile] = n
    dma_q = [(3, x) for x in dma_lines(3)] if cfg.get('mix', 1) else []
    if G3:
        dma_q += [(3, x) for x in head4]
    fence_t, fence_n, fenced = {}, {}, set()

    def do_read(n):
        tile, ks = steps[n]
        if G3:
            ft = {(3, 0): 3, (4, 24): 5, (6, 0): 6}.get((tile, ks))
            if ft and ft not in fenced:
                assert ft in fence_t and not any(q[0] <= ft for q in dma_q), ft
                a.wait_vm(fence_t[ft])
                a("s_barrier")
                fenced.add(ft)
        elif n == first_of[tile] and tile >= (3 if cfg.get('mix', 1) else 4) and tile not in fenced:
            assert tile in fence_t and not any(q[0] == tile for q in dma_q), tile
            a.wait_vm(fence_t[tile])
            a("s_barrier")
        wread(tile, ks, n % 8)
        lt[n] = a.lt()

    cs_t = 0
    for n in range(PF):
        do_read(n)
    pending = []
    nx = XW
    nst, st_t, st_n, early_done, rb_done = 0, {}, {}, False, False
    for n, (tile, ks) in enumerate(steps):
        if tile >= G0 and ks == 0:
            stamp(a, cfg, 1 + tile)
        if tile == 0 and ks < 32:
            a.wait_vm(tX[ks])
        if n % 2 == 0:
            a.wait_lg(lt[min(n + 1, N - 1)])
            lg_done = lt[min(n + 1, N - 1)]
        acc = F_ACC[tile % NACC]
        if ks == 0 and tile >= NACC:
            assert nst > tile - NACC, (tile, nst)
        mf(a, acc, vr(F_W + 4 * (n % 8), 4), ar(4 * ks, 4) if ks < 32 else vr(F_CS, 4), "0" if ks == 0 else vr(acc, 16))
        if (tile == 0 or (tile < G0 and cfg.get('xfast', 0))) and nx < 32:
            xload(nx)
            nx += 1
            if nx == 32:
                load_stats(a, F_ST, 26, F_T, SC)
                t_st = a.vt()
        if n + PF < N:
            do_read(n + PF)
        if n == last_of[G0 - 1] + 2:
            a("s_barrier")
            if G3:
                dma_q += [(5, "s_mov_b32 m0, s28"), (5, "s_nop 0"),
                          (5, "buffer_load_dwordx4 v%d, s[4:7], s33 offen sc1 lds" % V_L16),
                          (5, "buffer_load_dwordx4 v%d, s[4:7], s33 offen offset:1024 sc1 lds" % V_L16)]
                for tl in (5, 6):
                    dma_q += [(tl, x) for x in dma_lines(tl)]
                b = Asm()
                for idx in range(46, 56):
                    w2load(b, idx, 53, 54)
                dma_q += [(99, l.strip()) for l in b.lines]
            else:
                for tl in range(4, 4 + G0):
                    dma_q += [(tl, x) for x in dma_lines(tl)]
        for old in range(G0, 3):
            if n == last_of[old] + 2:
                a("s_barrier")
                dma_q += [(old + 4, x) for x in dma_lines(old + 4)]
                if old == 2:
                    b = Asm()
                    for idx in range(46, 56):
                        w2load(b, idx, 53, 54)
                    dma_q += [(99, l.strip()) for l in b.lines]
        dcost = 0
        if dma_q and ((n >= cfg.get("d3_from", 20) and n % cfg.get("d3_every", 5) == 0) if tile < G0 else n % cfg.get("dma_every", 3) == 0):
            while dma_q:
                tl, x = dma_q.pop(0)
                a(x)
                dcost += cfg.get("dma_cost", 8)
                if x.startswith("buffer_load"):
                    fence_t[tl] = a.vt()
                    fence_n[tl] = n
                    break
        if n == last_of[G0 - 1] - G0 - 2:
            a.wait_vm(t_st)
            finish_stats(a, F_ST, F_NMU, F_RS2)
            a("v_mul_f32 v%d, %s, v%d" % (F_C1, fl(-LOG2E), F_RS2))
            a("v_mov_b32 v%d, v%d" % (F_RS2, F_ST + 1))
            a("v_log_f32 v%d, v%d" % (F_LG, F_ST + 1))
            bextra(a, F_NMU, F_CS)
        for tl in range(0, 6):
            if n == max(last_of[tl], last_of[G0 - 1]) + 3:
                pending += epi(tl)
        if nst >= EARLY and not rb_done and n >= st_n[EARLY - 1] + 1:
            if cfg.get("h_wt", 6) < EARLY:
                readback(a, [(SH, 1024 * EARLY, 0)])
                a("s_mov_b64 exec, -1")
                dcost += 24
            rb_done = n
        for tl in range(cfg.get("h_touch", 0)):
            if tl in st_n and n == st_n[tl] + cfg.get("touch_lag", 24):
                a("buffer_load_dword v%d, v%d, s[4:7], s%d offen offset:%d sc1" % (V_P2, F_TA + (tl // 4), SH, (tl % 4) * 1024))
                a.vm_issued -= 0
                dcost += 8
        cost = dcost
        lim = cfg.get("epi_cost", 16)
        while pending:
            x = pending[0]
            if x == "CSWAIT":
                pending.pop(0)
                if cs_t > lg_done:
                    a.wait_lg(cs_t)
                    cost += 4
                continue
            cx = 8 if x.split()[0] in TRANS else (8 if x.startswith("buffer_") else 4)
            if cost + cx > lim:
                break
            pending.pop(0)
            if x.startswith("buffer_store"):
                ok = [t for t in (3, 4, 5, 6) if t in fence_n and t not in fenced and not any(q[0] == t for q in dma_q)
                      and fence_n[t] + cfg.get("fence_age", 20) <= n
                      and (99 not in fence_n or (not dma_q and fence_n[99] + cfg.get("fence_age", 20) <= n))]
                if ok:
                    a.wait_vm(fence_t[max(ok)])
                    a("s_barrier")
                    fenced.update(ok)
            if x.startswith("buffer_store") and nst == EARLY + 1:
                assert rb_done
                assert not dma_q
                a("s_waitcnt vmcnt(0)")
                a("s_mov_b64 exec, 1")
                emit_l(a, "buffer_store_dword v%d, v%d, s[4:7], s%d offen offset:%d" % (V_TAG, V_ZERO, S_FH, 0x100))
                a("s_mov_b64 exec, -1")
                early_done = True
            if x.startswith("buffer_store") and nst < cfg.get("h_wt", 6):
                a(x + " sc1")
            elif x.startswith("buffer_store"):
                emit_l(a, x)
            else:
                a(x)
            cost += cx
            if x.startswith("ds_read"):
                cs_t = a.lt()
            if x.startswith("buffer_store"):
                nst += 1
                st_t[nst - 1] = a.vt()
                st_n[nst - 1] = n
    assert early_done
    assert not dma_q
    stamp(a, cfg, 8)
    for x in pending + epi(6):
        if x == "CSWAIT":
            a.wait_lg(cs_t)
            continue
        if x.startswith("buffer_store"):
            emit_l(a, x)
        else:
            a(x)
    stamp(a, cfg, 9)
    h0 = max(EARLY, cfg.get("h_wt", 6))
    assert nst >= cfg.get("h_wt", 6)
    a("s_add_u32 s17, s%d, %d" % (SH, h0 * 1024))
    publish(a, S_FH, [(17, 1024 * (7 - h0), 0)])
    stamp(a, cfg, 10)


def phase_ffn2(a, cfg):
    SB0, SB1, SX = 26, 27, 28
    SW0, SW1 = 24, 25
    side = []
    if cfg.get("touchq", 0):
        a("s_lshl_b32 s49, s%d, 16" % S_HQ)
        a("s_and_b32 s18, s%d, 3" % S_RB)
        a("s_lshl_b32 s18, s18, 14")
        a("s_add_u32 s49, s49, s18")
        a("s_lshl_b32 s18, s%d, 12" % S_W)
        a("s_add_u32 s49, s49, s18")
        a("s_add_u32 s49, s49, 0x%x" % OFF_WQ)
        a("s_cmp_eq_u32 s%d, 1" % S_LAYER)
        a("s_cselect_b32 s49, 0xf0000000, s49")
        a("v_lshlrev_b32 v%d, 6, v%d" % (G_T + 2, V_LANE))
        side.append("buffer_load_dword v%d, v%d, s[4:7], s49 offen" % (G_T + 3, G_T + 2))
    layer_off(a, SX, OFF_H, H_STRIDE)
    b_addr(a, SB0, SB1, SX, 112, 28)
    reduce_addr(a, LDS_R1)
    out_addr(a, 2)
    flag_addr(a, 38, FL_H, S_RG, 9, per_layer=0x2000)
    a("s_lshl_b32 s17, s%d, 6" % S_W)
    a("s_add_u32 s38, s38, s17")
    a("s_and_b32 s17, s%d, 1" % S_RB)
    a("s_lshl_b32 s17, s17, 3")
    a("s_add_u32 s38, s38, s17")
    lane_pat(a, G_T + 6, 7, 0, 2)
    xin_flag_addr(a, 39, True, 1)
    stamp(a, cfg, 8)
    poll(a, cfg, 38, G_T + 6, G_T + 4, imm=0x100)
    stamp(a, cfg, 9)
    wb = cfg.get("wbl2", 0)
    R = 32

    def hreg(e):
        return ar(4 * (e % R), 4)

    early = [7 * mm + tl for tl in range(EARLY) for mm in range(4)]
    late = [7 * mm + tl for tl in range(EARLY, 7) for mm in range(4)]
    order = [(1, i) for i in early] + [(0, i) for i in early] + [(1, i) for i in late] + [(0, i) for i in late]
    tp = {}

    def probe():
        a("buffer_load_dword v%d, v%d, s[4:7], s38 offen %s" % (G_T + 5, G_T + 6, SC))
        tp[0] = a.vt()

    def check():
        a.wait_vm(tp[0])
        a("v_cmp_ne_u32 vcc, v%d, v%d" % (V_TAG, G_T + 5))
        a("s_cbranch_vccz L_ffn2_go")
        keep = a.vm_issued
        poll(a, cfg, 38, G_T + 6, G_T + 4)
        a.vm_issued = keep
        a("L_ffn2_go:")
        if wb:
            a("s_lshr_b32 s17, s2, %d" % (3 if wb == 1 else 6))
            a("s_or_b32 s17, s17, s%d" % S_W)
            a("s_xor_b32 s18, s%d, 1" % S_LAYER)
            a("s_or_b32 s17, s17, s18")
            a("s_cmp_lg_u32 s17, 0")
            a("s_cbranch_scc1 L_ffn2_nowb")
            a("buffer_wbl2 sc1")
            a("L_ffn2_nowb:")
        stamp(a, cfg, 3)

    pp = cfg.get("probe_at", 16)
    gemm64_core(a, cfg, 28, lambda i: w2reg(0, i), lambda i: w2reg(1, i), hreg,
                lambda e: blk(a, hreg(e), SB1 if order[e][0] else SB0, order[e][1], SC), cfg.get('win2', 18), order=order,
                gate=(2 * len(early), probe, check, pp, pp), side=side, side_from=cfg.get('w2_side', 6), side_n=1,
                side2=wq_lines(), side2_from=cfg.get('wq_from', 32), dup_last=True, ramp=cfg.get('ramp2', 10), resid=True)
    res_epilogue(a, cfg, 2, "L_final")
    stamp(a, cfg, 10)
    publish(a, 39, [(34, 2048, 0), (35, 512, 0)])
    stamp(a, cfg, 11)


def final_store(a):
    a("v_permlane32_swap_b32 v%d, v%d" % (V_RES, V_RES + 2))
    a("v_permlane32_swap_b32 v%d, v%d" % (V_RES + 1, V_RES + 3))
    a("v_permlane32_swap_b32 v%d, v%d" % (V_RES + 4, V_RES + 6))
    a("v_permlane32_swap_b32 v%d, v%d" % (V_RES + 5, V_RES + 7))
    a("s_lshl_b32 s17, s%d, 15" % S_RT)
    a("s_lshl_b32 s18, s%d, 6" % S_NT)
    a("s_add_u32 s17, s17, s18")
    a("v_lshlrev_b32 v%d, 10, v%d" % (G_T + 2, V_R31))
    a("v_lshl_add_u32 v%d, v%d, 4, v%d" % (G_T + 2, V_H, G_T + 2))
    a("buffer_store_dwordx4 v[%d:%d], v%d, s[8:11], s17 offen" % (V_RES, V_RES + 3, G_T + 2))
    a("buffer_store_dwordx4 v[%d:%d], v%d, s[8:11], s17 offen offset:32" % (V_RES + 4, V_RES + 7, G_T + 2))


def st_begin(a, cfg):
    kern.stamp_init(a, cfg)


def st_end(a, cfg, k):
    if not cfg.get("stamps"):
        return
    stamp(a, cfg, NSTAMP - 1)
    a("s_memrealtime s[62:63]")
    a("s_waitcnt lgkmcnt(0)")
    a("s_mov_b32 s79, s62")
    a("s_mul_i32 s60, s3, 5\ns_add_u32 s60, s60, %d" % k)
    a("s_lshl_b32 s60, s60, 16")
    a("s_lshl_b32 s61, s2, 8")
    a("s_add_u32 s60, s60, s61")
    a("s_lshl_b32 s61, s12, 6")
    a("s_add_u32 s60, s60, s61")
    a("s_add_u32 s60, s60, 0x%x" % kern.OFF_STAMP)
    for i in range(16):
        a("v_writelane_b32 v199, s%d, %d" % (64 + i, i))
    a("s_mov_b32 exec_lo, 0xffff\ns_mov_b32 exec_hi, 0x0")
    a("buffer_store_dword v199, v%d, s[4:7], s60 offen" % V_L4)
    a("s_mov_b64 exec, -1")


def dbgt(a, cfg, k, last=False):
    if not cfg.get("dbgtime"):
        return
    L = a.newlabel("L_dt")
    a("s_cmp_lg_u32 s2, %d" % (cfg["dbgtime"] - 1))
    a("s_cbranch_scc1 %s" % L)
    a("s_memrealtime s[64:65]")
    a("s_memtime s[66:67]")
    a("s_mov_b32 s68, s98\ns_mov_b32 s69, s99\ns_mov_b32 s70, 256\ns_mov_b32 s71, 0x00020000")
    a("s_mul_i32 s72, s3, 20")
    a("s_waitcnt lgkmcnt(0)")
    a("s_sub_u32 s64, s64, s60")
    a("s_sub_u32 s66, s66, s62")
    a("v_mov_b32 v199, s64")
    a("buffer_store_dword v199, v%d, s[68:71], s72 offen offset:%d" % (V_ZERO, 4 + 4 * k))
    if last:
        a("v_mov_b32 v198, s66")
        a("buffer_store_dword v198, v%d, s[68:71], 0 offen offset:%d" % (V_ZERO, 4 * 13))
    a(L + ":")


KNAME = kern.NAME + "_kernel"


def build(cfg):
    rep = []
    DBL[0] = cfg.get("dbl", 0)
    TOUCH[0] = cfg.get("ptouch", 0)
    COMPACT[0] = cfg.get("compact", 1)
    DUAL[0] = False
    LSC[0] = cfg.get("lsc", "")
    RBW[0] = cfg.get("rbw", 0)
    SPLIT_DMA[0] = not cfg.get("mix", 1)
    global OFF_WKV
    if COMPACT[0]:
        OFF_WKV = SU.OFF_WKV = C_WKV
    a = Asm()
    a("s_load_dwordx16 s[80:95], s[0:1], 0")
    a("s_load_dwordx2 s[96:97], s[0:1], 64")
    a("s_load_dwordx2 s[98:99], s[0:1], 80")
    kern.common_prologue(a, True)
    a("v_mov_b32 v%d, 0" % V_ZERO)
    a("v_mov_b32 v199, 0")
    a("v_lshlrev_b32 v%d, 7, v%d" % (V_L128, V_LANE))
    a("v_lshlrev_b32 v%d, 2, v%d" % (V_L4, V_LANE))
    a("s_lshr_b32 s17, s%d, 1" % S_W)
    a("s_and_b32 s18, s%d, 1" % S_W)
    a("s_lshl_b32 s%d, s%d, 1" % (S_NT, S_HQ))
    a("s_add_u32 s%d, s%d, s17" % (S_NT, S_NT))
    a("s_lshl_b32 s%d, s%d, 1" % (S_RT, S_RB))
    a("s_add_u32 s%d, s%d, s18" % (S_RT, S_RT))
    a("s_mov_b32 s%d, 0" % S_LAYER)
    if cfg.get("spin_limit"):
        a("s_mov_b32 s46, %d" % cfg["spin_limit"])
    if cfg.get("dbgtime"):
        a("s_memrealtime s[60:61]")
        a("s_memtime s[62:63]")
        a("s_waitcnt lgkmcnt(0)")
    st_begin(a, cfg)
    SU.startup(a, cfg, sys.modules[__name__])
    dbgt(a, cfg, 0)
    a_addr(a, S_Q0, S_Q1, OFF_WQ, 32, 8)
    a("s_lshl_b32 s%d, s%d, 13" % (S_KVW, S_W))
    a("s_add_u32 s%d, s%d, 0x%x" % (S_KVW, S_KVW, OFF_WKV))
    a("s_and_b32 s17, s2, 7")
    a("s_lshl_b32 s17, s17, 15")
    a("s_add_u32 s%d, s%d, s17" % (S_KVW, S_KVW))
    a("s_cmp_ge_u32 s%d, 4" % S_HQ)
    a("s_cselect_b32 s%d, s%d, s%d" % (S_KVW, S_Q0, S_KVW))
    st_end(a, cfg, 0)
    a("L_layer:")
    for k, ph in enumerate((phase_qkv, phase_att, phase_wo, phase_ffn1, phase_ffn2)):
        st_begin(a, cfg)
        ph(a, cfg)
        st_end(a, cfg, k + 1)
        dbgt(a, cfg, k + 1)
    a("s_mov_b32 s%d, 1" % S_LAYER)
    a("s_branch L_layer")
    a("L_final:")
    final_store(a)
    st_end(a, cfg, 5)
    dbgt(a, cfg, 5, True)
    a("L_exit:")
    a("s_endpgm")
    main_lines, _ = fix_hazards_fast(kern.uniq(a.lines, "main"), rep)

    pf = cfg.get("pfk", 0)
    if pf:
        b = Asm()
        b("s_cmp_ge_u32 s2, 256")
        b("s_cbranch_scc1 L_pf_end")
        b("s_load_dwordx16 s[16:31], s[0:1], 0")
        b("s_load_dwordx2 s[32:33], s[0:1], 64")
        b("s_getpc_b64 s[4:5]")
        b("L_pf_pc:")
        b("s_add_u32 s4, s4, L_code_begin-L_pf_pc")
        b("s_addc_u32 s5, s5, -1")
        b("s_lshr_b32 s6, s2, 3")
        b("s_and_b32 s7, s2, 7")
        b("s_lshl_b32 s8, s6, 11")
        b("v_lshlrev_b32 v1, 3, v0")
        b("v_add_u32 v1, s8, v1")
        b("v_min_u32 v1, L_code_end-L_code_begin-8, v1")
        b("global_load_dwordx2 v[2:3], v1, s[4:5]")
        if pf >= 2:
            b("v_lshlrev_b32 v1, 6, v0")
            b("s_lshl_b32 s8, s6, 14")
            b("v_add_u32 v4, s8, v1")
            b("s_lshl_b32 s9, s7, 18")
            b("s_lshl_b32 s10, s6, 13")
            b("s_add_u32 s9, s9, s10")
            b("v_lshlrev_b32 v5, 5, v0")
            b("v_add_u32 v5, s9, v5")
            b("s_mul_i32 s11, s2, 7168")
            b("v_mul_u32_u24 v6, 28, v0")
            b("v_add_u32 v6, s11, v6")
            b("s_lshl_b32 s11, s2, 11")
            b("v_lshlrev_b32 v7, 3, v0")
            b("v_add_u32 v7, s11, v7")
            b("s_waitcnt lgkmcnt(0)")
            b("global_load_dword v8, v4, s[18:19]")
            b("global_load_dword v9, v5, s[16:17]")
            b("global_load_dword v10, v1, s[20:21]")
            b("global_load_dword v11, v1, s[22:23]")
            b("global_load_dword v12, v6, s[28:29]")
            b("global_load_dword v13, v6, s[30:31]")
            b("global_load_dword v14, v6, s[32:33]")
            b("global_load_dword v15, v7, s[24:25]")
        b("L_pf_end:")
        b("s_endpgm")
        pfl, _ = fix_hazards_fast(["L_code_begin:", "L_code_end:"] + b.lines, rep)
        main_lines2 = [".p2align 8", "pf_kernel:"] + pfl[2:]
        s = "; @launch kernel=pf_kernel grid=(256,1,1) block=(256,1,1) lds=0\n"
        s += "; @launch kernel=%s grid=(256,1,1) block=(256,1,1) lds=%d\n" % (KNAME, 160 * 1024)
    else:
        main_lines2 = []
        s = "; @launch grid=(256,1,1) block=(256,1,1) lds=%d\n" % (160 * 1024)
    s += '.amdgcn_target "amdgcn-amd-amdhsa--gfx950"\n.text\n.globl %s\n.p2align 8\n.type %s,@function\n' % (KNAME, KNAME)
    s += "\n".join(["L_code_begin:", KNAME + ":"] + main_lines + ["L_code_end:"] + main_lines2) + "\n"
    s += '.section .rodata,"a"\n.p2align 6\n' + kernel_desc(KNAME, 512, 256, 102)
    if pf:
        s += ".p2align 6\n" + kernel_desc("pf_kernel", 16, 16, 40)
    return s, rep


if __name__ == "__main__":
    cfg = dict(code_prefetch=True)
    for kv in sys.argv[2:]:
        k, v = kv.split("=")
        cfg[k] = eval(v)
    s, rep = build(cfg)
    open(sys.argv[1], "w").write(s)
    print("auto nops:", sum(r[0] for r in rep), "sites", len(rep), "bytes of source", len(s))
    if cfg.get("verbose"):
        for r in rep:
            print(r)
```

```python
import sys
from asmlib import *
from layout import *
import kern
import startup as SU
from kern import (split3, fl, MF, S_LAYER, S_W, S_RB, S_HQ, S_RG, S_M, V_L16, V_LANE, V_R31, V_H, V_OFF, xhalf_sum,
                  load_stats, finish_stats, pack8, stamp, kernel_desc, prep, NSTAMP)

SC = "sc1"


COMPACT = [1]
CMAP = {OFF_X: 0x800000, OFF_O: 0xC00000, OFF_H: 0xE00000, OFF_STAT: OFF_STAT}
C_WKV = 0x780000
C_END = 0x1500000


def layer_off(a, sdst, base, stride, mul=1, add=0):
    if COMPACT[0] and base in CMAP:
        a("s_mov_b32 s%d, 0x%x" % (sdst, CMAP[base] + (add & 1) * stride))
    else:
        kern.layer_off(a, sdst, base, stride, mul, add)


LLD = ["sc1"]


def blk(a, dst, sbase, i, sc=None):
    kern.blk(a, dst, sbase, i, LLD[0] if sc else SC)


FL_O = 0x0000
FL_X1 = 0x2000
FL_H = 0x8000
FL_XIN = 0x6000
OFF_FLW = 0x64C000
FL_KV = 0x640000 - OFF_FLAGS

S_RT, S_NT = 31, 32
S_FO, S_FX1, S_FH = 40, 41, 42
S_W13, S_WL = 47, 48
S_RET = 44
V_RES = 12
V_TAG = 11
V_L4 = 20
V_ZERO = 21
VB = 24

G_ACC = 24
G_RED = 88
G_ST = 136
G_CS = 152
G_T = 168
V_WR = [184, 185, 186]
V_RD = 187
V_NMU, V_RSTD = 188, 189
G_KVACC = 88
G_Q = 190
W2V = 200

LDS_R1 = 96 * 1024
LDS_RQ = 0
LDS_KVX = 49152
LDS_CSX = 69632
LDS_CS = 152 * 1024
LDS_E = 128 * 1024


DBL = [0]
LSC = ["sc1"]
S_LOC = 57
DUAL = [False]
_dl = [0]


def lstore(text):
    lines = text if isinstance(text, list) else [text]
    if not DUAL[0]:
        return [l + " sc1" for l in lines]
    _dl[0] += 1
    n = _dl[0]
    return (["s_cbranch_scc1 L_ls%da ; needs scc" % n] + [l + " sc1" for l in lines] + ["s_branch L_ls%db" % n, "L_ls%da:" % n] +
            ["!" + l + " " + LSC[0] for l in lines] + ["L_ls%db:" % n])


def emit_l(a, text):
    out = lstore(text)
    if DUAL[0]:
        a("s_cmp_lg_u32 s%d, 0" % S_LOC)
    for l in out:
        if l.startswith("!"):
            a(l[1:])
        else:
            a(l)


def st4(a, data, voff, soff, imm=0):
    emit_l(a, "buffer_store_dwordx4 v[%d:%d], v%d, s[4:7], s%d offen offset:%d" % (data, data + 3, voff, soff, imm))
    if DBL[0]:
        a("buffer_store_dwordx4 v[%d:%d], v%d, s[4:7], s%d offen offset:%d" % (data, data + 3, voff, soff, imm))


TOUCH = [1]
V_L128 = 23
V_P2 = 199


V_L64 = 22


RBW = [0]


def readback(a, regions, final=False):
    if not DUAL[0]:
        return
    L = a.newlabel("L_rb")
    keep = a.vm_issued
    a("s_cmp_eq_u32 s%d, 0" % S_LOC)
    a("s_cbranch_scc1 %s" % L)
    a("v_lshlrev_b32 v%d, 6, v%d" % (V_L64, V_LANE))
    if RBW[0] and final:
        a("s_waitcnt vmcnt(0)")
    for sg, nb, imm in regions:
        n = nb // 64
        assert n <= 64
        a("s_mov_b32 exec_lo, 0x%x" % (((1 << n) - 1) & 0xffffffff))
        a("s_mov_b32 exec_hi, 0x%x" % (((1 << n) - 1) >> 32))
        a("buffer_load_dword v%d, v%d, s[4:7], s%d offen offset:%d %s" % (V_P2, V_L64, sg, imm, LLD[0]))
    a(L + ":")
    a.vm_issued = keep


def publish(a, s_addr, regions, imm=0, between=()):
    readback(a, regions, True)
    if between:
        a("s_mov_b64 exec, -1")
        for x in between:
            a(x)
    a("s_waitcnt vmcnt(0)")
    a("s_mov_b64 exec, 1")
    emit_l(a, "buffer_store_dword v%d, v%d, s[4:7], s%d offen offset:%d" % (V_TAG, V_ZERO, s_addr, imm))
    a("s_mov_b64 exec, -1")


def poll(a, cfg, s_addr, voff, vtmp, wide=False, imm=0, sleep=0):
    L = a.newlabel("L_poll")
    if cfg.get("spin_limit"):
        a("s_mov_b32 s46, %d" % cfg["spin_limit"])
    if cfg.get("ppoll", 0) and not wide and not sleep:
        ld = lambda r: a("buffer_load_dword v%d, v%d, s[4:7], s%d offen offset:%d %s" % (r, voff, s_addr, imm, SC))
        ld(vtmp)
        a("s_sleep %d" % cfg.get("ppoll_gap", 2))
        a(L + ":")
        ld(V_P2)
        a("s_waitcnt vmcnt(1)")
        a("v_cmp_ne_u32 vcc, v%d, v%d" % (V_TAG, vtmp))
        a("s_cbranch_vccz %s_out" % L)
        ld(vtmp)
        a("s_waitcnt vmcnt(1)")
        if cfg.get("spin_limit"):
            a("s_sub_u32 s46, s46, 1")
            a("s_cbranch_scc1 %s_out" % L)
        a("v_cmp_ne_u32 vcc, v%d, v%d" % (V_TAG, V_P2))
        a("s_cbranch_vccnz %s" % L)
        a.vm_issued -= 1
        a(L + "_out:")
        return
    a(L + ":")
    if wide:
        a("buffer_load_dwordx4 v[%d:%d], v%d, s[4:7], s%d offen %s" % (vtmp, vtmp + 3, voff, s_addr, SC))
        a("s_waitcnt vmcnt(0)")
        a("v_cmp_ne_u32 s[18:19], v%d, v%d" % (V_TAG, vtmp + 2))
        a("v_cndmask_b32 v%d, v%d, v%d, s[18:19]" % (vtmp, vtmp, V_ZERO))
        a("v_cmp_ne_u32 s[18:19], v%d, v%d" % (V_TAG, vtmp + 3))
        a("v_cndmask_b32 v%d, v%d, v%d, s[18:19]" % (vtmp, vtmp, V_ZERO))
    else:
        a("buffer_load_dword v%d, v%d, s[4:7], s%d offen offset:%d %s" % (vtmp, voff, s_addr, imm, SC))
        a("s_waitcnt vmcnt(0)")
    if cfg.get("spin_limit"):
        a("s_sub_u32 s46, s46, 1")
        a("s_cbranch_scc1 %s_out" % L)
    a("v_cmp_ne_u32 vcc, v%d, v%d" % (V_TAG, vtmp))
    if sleep:
        a("s_cbranch_vccz %s_out" % L)
        a("s_sleep %d" % sleep)
        a("s_branch %s" % L)
    else:
        a("s_cbranch_vccnz %s" % L)
    a(L + "_out:")


def lane_pat(a, vdst, mask, hi_shift, lo_mul):
    a("v_and_b32 v%d, %d, v%d" % (vdst, mask & ~1, V_LANE))
    a("v_lshlrev_b32 v%d, 3, v%d" % (vdst, vdst))
    a("v_and_b32 v%d, 1, v%d" % (vdst + 1, V_LANE))
    a("v_lshl_add_u32 v%d, v%d, %d, v%d" % (vdst, vdst + 1, lo_mul, vdst))


def flag_addr(a, sdst, base, s_grp, grp_shift, s_mem=None, per_layer=0x1000):
    a("s_mul_i32 s%d, s%d, 0x%x" % (sdst, S_LAYER, per_layer))
    a("s_add_u32 s%d, s%d, 0x%x" % (sdst, sdst, OFF_FLAGS + base))
    a("s_lshl_b32 s17, s%d, %d" % (s_grp, grp_shift))
    a("s_add_u32 s%d, s%d, s17" % (sdst, sdst))
    if s_mem is not None:
        a("s_lshl_b32 s17, s%d, 4" % s_mem)
        a("s_add_u32 s%d, s%d, s17" % (sdst, sdst))
        a("s_lshl_b32 s17, s%d, 2" % S_W)
        a("s_add_u32 s%d, s%d, s17" % (sdst, sdst))


def xin_flag_addr(a, sdst, own, layer_add):
    flag_addr(a, sdst, FL_XIN + 0x1000 * layer_add, S_RB, 7, S_HQ if own else None)


def a_addr(a, s_a0, s_a1, offA, ksA, ksw):
    a("s_mul_i32 s20, s%d, %d" % (S_W, ksw * 1024))
    a("s_mul_i32 s%d, s%d, %d" % (s_a0, S_NT, ksA * 1024))
    a("s_add_u32 s%d, s%d, s20" % (s_a0, s_a0))
    a("s_add_u32 s%d, s%d, 0x%x" % (s_a0, s_a0, offA))
    a("s_xor_b32 s21, s%d, 1" % S_NT)
    a("s_mul_i32 s%d, s21, %d" % (s_a1, ksA * 1024))
    a("s_add_u32 s%d, s%d, s20" % (s_a1, s_a1))
    a("s_add_u32 s%d, s%d, 0x%x" % (s_a1, s_a1, offA))


def b_addr(a, s_b0, s_b1, s_base, ksB, ksw):
    a("s_mul_i32 s20, s%d, %d" % (S_W, ksw * 1024))
    a("s_add_u32 s20, s20, s%d" % s_base)
    a("s_mul_i32 s%d, s%d, %d" % (s_b0, S_RT, ksB * 1024))
    a("s_add_u32 s%d, s%d, s20" % (s_b0, s_b0))
    a("s_xor_b32 s21, s%d, 1" % S_RT)
    a("s_mul_i32 s%d, s21, %d" % (s_b1, ksB * 1024))
    a("s_add_u32 s%d, s%d, s20" % (s_b1, s_b1))


def reduce_addr(a, base):
    for j in (1, 2, 3):
        a("s_xor_b32 s17, s%d, %d" % (S_W, j))
        a("s_mul_i32 s17, s17, 12288")
        a("s_add_u32 s17, s17, %d" % (base + (j - 1) * 4096))
        a("v_add_u32 v%d, s17, v%d" % (V_WR[j - 1], V_L16))
    a("s_mul_i32 s17, s%d, 12288" % S_W)
    a("s_add_u32 s17, s17, %d" % base)
    a("v_add_u32 v%d, s17, v%d" % (V_RD, V_L16))


def mf(a, d, x, y, c):
    a("%s v[%d:%d], %s, %s, %s" % (MF, d, d + 15, x, y, c))


def wr_tile(a, j):
    for q in range(4):
        r = G_ACC + 16 * j + 4 * q
        a("ds_write_b128 v%d, v[%d:%d] offset:%d" % (V_WR[j - 1], r, r + 3, q * 1024))


def rd_tile(a, j, dst):
    for q in range(4):
        a("ds_read_b128 v[%d:%d], v%d offset:%d" % (dst + 4 * q, dst + 4 * q + 3, V_RD, (j - 1) * 4096 + q * 1024))


def gemm64_core(a, cfg, n, A0, A1, Breg, issueB, window, pre_tickets=None, order=None, side=None, side_from=0, side_n=1,
                gate=None, side2=None, side2_from=0, ramp=None, resid=False, extra0=None, hooks=None, tail_side=None, dup_last=False):
    if order is None:
        order = [(1, i) for i in range(n)] + [(0, i) for i in range(n)]
    M = len(order)
    side = list(side or [])
    t = dict(pre_tickets or {})
    nxt = len(t)
    gpos = gate[0] if gate else M + 1
    gated = [False]

    def try_issue(limit):
        nonlocal nxt
        while nxt < M and nxt < limit:
            if nxt >= gpos and not gated[0]:
                return
            issueB(nxt)
            t[nxt] = a.vt()
            nxt += 1
            if gate and nxt == gate[3]:
                gate[1]()

    try_issue(ramp or window)
    if cfg.get("stamps") != 2:
        stamp(a, cfg, 1)
    last1 = max(e for e, (st, i) in enumerate(order) if st == 1)
    wr1 = last1 + 2
    bar1 = min(M - 2, last1 + 1 + max(2, (M - last1) // 2))
    seen = set()
    pend = []

    def presum():
        out = ["v_add_f32 v%d, v%d, v%d" % (G_RED + e, G_RED + e, G_RED + 16 + e) for e in range(16)]
        if resid:
            for i in range(8):
                out += ["v_lshlrev_b32 v%d, 16, v%d" % (G_T, V_RES + i), "v_and_b32 v%d, 0xffff0000, v%d" % (G_T + 1, V_RES + i),
                        "v_add_f32 v%d, v%d, v%d" % (G_RED + 2 * i, G_RED + 2 * i, G_T),
                        "v_add_f32 v%d, v%d, v%d" % (G_RED + 2 * i + 1, G_RED + 2 * i + 1, G_T + 1)]
        return out

    def step(e):
        st, i = order[e]
        if gate and not gated[0] and e == gate[4]:
            assert not side
            gate[2]()
            gated[0] = True
            try_issue(e + window)
        if hooks and e in hooks:
            hooks[e]()
        a.wait_vm(t[e])
        if e == 0 and cfg.get("stamps") != 2:
            stamp(a, cfg, 2)
        first = "0" if st not in seen else None
        seen.add(st)
        if st == 1:
            mf(a, G_ACC + 16, A0(i), Breg(e), first or vr(G_ACC + 16, 16))
            if cfg.get("ldmid", 0) and window < 30:
                try_issue(min(e + 1 + window, nxt + 1))
            mf(a, G_ACC + 48, A1(i), Breg(e), first or vr(G_ACC + 48, 16))
        else:
            mf(a, G_ACC + 32, A1(i), Breg(e), first or vr(G_ACC + 32, 16))
            if cfg.get("ldmid", 0) and window < 30:
                try_issue(min(e + 1 + window, nxt + 1))
            mf(a, G_ACC, A0(i), Breg(e), first or vr(G_ACC, 16))
        try_issue(min(e + 1 + window, nxt + 2))
        if e >= side_from:
            k = 0
            while side and k < side_n:
                x = side.pop(0)
                a(x)
                k += x.startswith("buffer_")
        if side2 and e >= side2_from:
            for _ in range(cfg.get("side2_n", 1)):
                if side2:
                    a(side2.pop(0))
        if e == wr1:
            wr_tile(a, 1)
            wr_tile(a, 3)
        if e == bar1:
            a("s_waitcnt lgkmcnt(0)")
            a("s_barrier")
            rd_tile(a, 1, G_RED)
            rd_tile(a, 3, G_RED + 16)
            pend[:] = presum()
        elif pend and e > bar1:
            if e == bar1 + 1:
                a("s_waitcnt lgkmcnt(0)")
            for _ in range(cfg.get("pre_n", 10)):
                if pend:
                    a(pend.pop(0))

    for e in range(M):
        if dup_last and e == side2_from:
            snap = (nxt, dict(t), a.vm_issued, a.lg_issued, a.dma_issued)
            a("s_cmp_eq_u32 s%d, 1" % S_LAYER)
            a("s_cbranch_scc1 L_g64_last")
            for e2 in range(e, M):
                step(e2)
            a("s_branch L_g64_join")
            a("L_g64_last:")
            nxt, t, a.vm_issued, a.lg_issued, a.dma_issued = snap[0], snap[1], snap[2], snap[3], snap[4]
            for e2 in range(e, M):
                step(e2)
            a("L_g64_join:")
            break
        step(e)
    assert wr1 <= bar1 < M and not side2
    if extra0:
        extra0[2]()
        mf(a, G_ACC, extra0[0], extra0[1], vr(G_ACC, 16))
    tside = list(tail_side or [])
    cnt = [0]

    def av(x):
        a(x)
        cnt[0] += 1
        if tside and cnt[0] % cfg.get("tail_every", 4) == 0:
            a(tside.pop(0))

    stamp(a, cfg, 4)
    a("s_waitcnt lgkmcnt(0)")
    for _ in range(8):
        if pend:
            av(pend.pop(0))
    wr_tile(a, 2)
    for x in pend:
        av(x)
    for e in range(16):
        av("v_add_f32 v%d, v%d, v%d" % (G_ACC + e, G_ACC + e, G_RED + e))
    for x in side:
        a(x)
    a("s_waitcnt lgkmcnt(0)")
    a("s_barrier")
    stamp(a, cfg, 6)
    rd_tile(a, 2, G_RED + 32)
    for q in range(4):
        a("s_waitcnt lgkmcnt(%d)" % (3 - q))
        for e in range(4):
            av("v_add_f32 v%d, v%d, v%d" % (G_ACC + 4 * q + e, G_ACC + 4 * q + e, G_RED + 32 + 4 * q + e))
    for x in tside:
        a(x)
    stamp(a, cfg, 7)


def bextra(a, nmu, d):
    split3(a, nmu, d + 4)
    a("v_lshrrev_b32 v%d, 16, v%d" % (d + 7, d + 4))
    a("v_or_b32 v%d, v%d, v%d" % (d, d + 7, d + 5))
    a("v_or_b32 v%d, v%d, v%d" % (d + 1, d + 7, d + 6))
    a("v_mov_b32 v%d, v%d" % (d + 2, d))
    a("v_mov_b32 v%d, 0" % (d + 3))


def res_epilogue(a, cfg, xout_add, final):
    for i in range(8):
        a("v_cvt_pk_bf16_f32 v%d, v%d, v%d" % (V_RES + i, G_ACC + 2 * i, G_ACC + 2 * i + 1))
        if i == 3 and final is None:
            st4(a, V_RES, V_L16, 34)
    if final is not None:
        a("s_cmp_eq_u32 s%d, 1" % S_LAYER)
        a("s_cbranch_scc1 %s" % final)
        st4(a, V_RES, V_L16, 34)
    store_x_tail(a)


def store_x_tail(a):
    st4(a, V_RES + 4, V_L16, 34, 1024)
    a("v_mov_b32 v%d, 0x3f803f80" % G_T)
    a("v_mov_b32 v%d, 0" % (G_T + 12))
    a("v_mov_b32 v%d, 0" % (G_T + 13))
    for r in range(8):
        a("v_dot2_f32_bf16 v%d, v%d, v%d, v%d" % (G_T + 12, V_RES + r, G_T, G_T + 12))
        a("v_dot2_f32_bf16 v%d, v%d, v%d, v%d" % (G_T + 13, V_RES + r, V_RES + r, G_T + 13))
    a("v_lshlrev_b32 v%d, 4, v%d" % (G_T + 2, V_R31))
    a("s_nop 1")
    a("v_mov_b32 v%d, v%d" % (G_T + 14, G_T + 12))
    a("v_mov_b32 v%d, v%d" % (G_T + 15, G_T + 13))
    a("s_nop 0")
    a("v_permlane32_swap_b32 v%d, v%d" % (G_T + 12, G_T + 14))
    a("v_permlane32_swap_b32 v%d, v%d" % (G_T + 13, G_T + 15))
    a("v_add_f32 v%d, v%d, v%d" % (G_T + 12, G_T + 12, G_T + 14))
    a("v_add_f32 v%d, v%d, v%d" % (G_T + 13, G_T + 13, G_T + 15))
    a("s_mov_b32 exec_lo, 0xffffffff\ns_mov_b32 exec_hi, 0x0")
    emit_l(a, "buffer_store_dwordx2 v[%d:%d], v%d, s[4:7], s35 offen" % (G_T + 12, G_T + 13, G_T + 2))
    a("s_mov_b64 exec, -1")


def out_addr(a, xout_add):
    layer_off(a, 34, OFF_X, X_STRIDE, 2, xout_add)
    a("s_lshl_b32 s18, s%d, 15" % S_RT)
    a("s_add_u32 s34, s34, s18")
    a("s_lshl_b32 s18, s%d, 11" % S_NT)
    a("s_add_u32 s34, s34, s18")
    layer_off(a, 35, OFF_STAT, STAT_STRIDE, 2, xout_add)
    a("s_lshl_b32 s18, s%d, 12" % S_RT)
    a("s_add_u32 s35, s35, s18")
    a("s_lshr_b32 s18, s%d, 1" % S_NT)
    a("s_lshl_b32 s18, s18, 9")
    a("s_add_u32 s35, s35, s18")
    a("s_and_b32 s18, s%d, 1" % S_NT)
    a("s_lshl_b32 s18, s18, 3")
    a("s_add_u32 s35, s35, s18")


S_Q0, S_Q1, S_KVW = 50, 51, 52


def wq_lines():
    b = Asm()
    for i in range(8):
        blk(b, ar(128 + 4 * i, 4), S_KVW, i)
    for i in range(8):
        blk(b, ar(160 + 4 * i, 4), S_Q0, i)
        blk(b, ar(192 + 4 * i, 4), S_Q1, i)
    return [l.strip() for l in b.lines]


def phase_qkv(a, cfg):
    SA0, SA1, SB0, SB1, SX, SKV = 24, 25, 26, 27, 28, 29
    CK = G_T + 8
    a("v_lshlrev_b32 v%d, 4, v%d" % (G_T + 1, V_H))
    a("v_lshlrev_b32 v%d, 2, v%d" % (G_T + 6, V_R31))
    VP, VPA = 198, 22
    SU.probe_addr(a, sys.modules[__name__], VPA, VP, 59)
    def wcheck(tag):
        a("v_cmp_ne_u32 vcc, v%d, v%d" % (V_TAG, VP))
        a("s_cbranch_vccz L_qkv_wok%s" % tag)
        keep = a.vm_issued
        poll(a, cfg, 59, VPA, VP, sleep=1)
        a.vm_issued = keep
        a("L_qkv_wok%s:" % tag)

    layer_off(a, SX, OFF_X, X_STRIDE, 2, 0)
    b_addr(a, SB0, SB1, SX, 32, 8)
    layer_off(a, 30, OFF_STAT, STAT_STRIDE, 2, 0)
    a("s_lshl_b32 s17, s%d, 12" % S_RT)
    a("s_add_u32 s30, s30, s17")
    reduce_addr(a, LDS_RQ)
    layer_off(a, 33, OFF_KV, KV_STRIDE)
    a("s_lshr_b32 s36, s%d, 1" % S_HQ)
    a("s_lshl_b32 s17, s%d, 1" % S_RB)
    a("s_add_u32 s17, s17, s36")
    a("s_lshl_b32 s17, s17, 15")
    a("s_add_u32 s23, s17, s%d" % SX)
    a("s_lshl_b32 s17, s%d, 13" % S_W)
    a("s_add_u32 s23, s23, s17")
    a("s_lshl_b32 s17, s%d, 12" % S_W)
    a("s_add_u32 s17, s17, %d" % LDS_KVX)
    a("v_add_u32 v%d, s17, v%d" % (G_T + 2, V_L16))
    a("v_add_u32 v%d, %d, v%d" % (G_T + 3, LDS_KVX, V_L16))
    a("s_mul_i32 s37, s%d, 0x2000" % S_LAYER)
    a("s_add_u32 s37, s37, 0x%x" % (OFF_FLAGS + FL_KV))
    a("s_lshl_b32 s17, s%d, 5" % S_RB)
    a("s_add_u32 s37, s37, s17")
    a("s_lshl_b32 s17, s36, 4")
    a("s_add_u32 s37, s37, s17")
    a("s_lshl_b32 s39, s2, 11")
    a("s_add_u32 s39, s39, 0x%x" % OFF_CKS)
    a("s_cmp_eq_u32 s%d, 0" % S_LAYER)
    a("s_cbranch_scc1 L_qkv_cs0")
    a("buffer_load_dwordx4 v[%d:%d], v%d, s[4:7], s39 offen sc1" % (CK, CK + 3, V_L16))
    a("buffer_load_dwordx4 v[%d:%d], v%d, s[4:7], s39 offen offset:1024 sc1" % (CK + 4, CK + 7, V_L16))
    a("s_branch L_qkv_nocs")
    a("L_qkv_cs0:")
    a("s_cmp_ge_u32 s%d, 4" % S_HQ)
    a("s_cbranch_scc1 L_qkv_nocs")
    for r in range(4):
        a("v_mov_b32 v%d, 0x3f803f80" % (G_CS + r))
    a("s_lshl_b32 s17, s%d, 11" % S_W)
    a("s_add_u32 s17, s17, %d" % LDS_CSX)
    a("v_add_u32 v%d, s17, v%d" % (G_CS + 4, V_L16))
    a("v_add_u32 v%d, %d, v%d" % (G_CS + 5, LDS_CSX, V_L16))
    a("s_bitcmp1_b32 s%d, 0" % S_HQ)
    a("s_cbranch_scc1 L_qkv_c1")
    for i in range(8):
        mf(a, G_ACC, ar(128 + 4 * i, 4), vr(G_CS, 4), "0" if i == 0 else vr(G_ACC, 16))
    a("s_branch L_qkv_c2")
    a("L_qkv_c1:")
    for i in range(8):
        mf(a, G_ACC, vr(G_CS, 4), ar(128 + 4 * i, 4), "0" if i == 0 else vr(G_ACC, 16))
    a("L_qkv_c2:")
    a("ds_write_b128 v%d, v[%d:%d]" % (G_CS + 4, G_ACC + 8, G_ACC + 11))
    a("ds_write_b128 v%d, v[%d:%d] offset:1024" % (G_CS + 4, G_ACC + 12, G_ACC + 15))
    a("s_waitcnt lgkmcnt(0)")
    a("s_barrier")
    for w in range(4):
        for q in range(2):
            a("ds_read_b128 v[%d:%d], v%d offset:%d" % (G_RED + 8 * w + 4 * q, G_RED + 8 * w + 4 * q + 3, G_CS + 5, 2048 * w + 1024 * q))
    a("s_waitcnt lgkmcnt(0)")
    for e in range(8):
        a("v_add_f32 v%d, v%d, v%d" % (G_RED + e, G_RED + e, G_RED + 8 + e))
        a("v_add_f32 v%d, v%d, v%d" % (G_RED + 16 + e, G_RED + 16 + e, G_RED + 24 + e))
        a("v_add_f32 v%d, v%d, v%d" % (CK + e, G_RED + e, G_RED + 16 + e))
    a("buffer_store_dwordx4 v[%d:%d], v%d, s[4:7], s39 offen sc1" % (CK, CK + 3, V_L16))
    a("buffer_store_dwordx4 v[%d:%d], v%d, s[4:7], s39 offen offset:1024 sc1" % (CK + 4, CK + 7, V_L16))
    a("L_qkv_nocs:")
    stamp(a, cfg, 8)
    xin_flag_addr(a, 38, False, 0)
    poll(a, cfg, 38, G_T + 6, G_T + 4)
    stamp(a, cfg, 9)
    def b1_loads():
        for e in range(8):
            blk(a, ar(64 + 4 * e, 4), SB1, e, SC)
            tB[e] = a.vt()

    def cs_q():
        a("s_lshl_b32 s17, s%d, 10" % S_NT)
        a("s_add_u32 s17, s17, 0x%x" % OFF_CSQX)
        a("buffer_load_dwordx4 v[%d:%d], v%d, s[4:7], s17 offen sc1" % (G_CS, G_CS + 3, V_L16))

    a("s_cmp_ge_u32 s%d, 4" % S_HQ)
    a("s_cbranch_scc1 L_qkv_stats")
    load_stats(a, G_ST, 30, G_T, LLD[0])
    t_st = a.vt()
    tK = {}
    for i in range(8):
        blk(a, ar(224 + 4 * i, 4), 23, i, SC)
        tK[i] = a.vt()
    tB = {}
    b1_loads()
    stamp(a, cfg, 1)
    a.wait_vm(t_st)
    finish_stats(a, G_ST, V_NMU, V_RSTD)
    XS = LDS_KVX + 16384
    a("s_lshl_b32 s17, s%d, 8" % S_W)
    a("s_add_u32 s17, s17, %d" % XS)
    a("v_add_u32 v%d, s17, v%d" % (G_T + 4, G_T + 6))
    a("v_mul_f32 v%d, v%d, v%d" % (G_T + 5, V_NMU, V_RSTD))
    a("ds_write_b32 v%d, v%d" % (G_T + 4, V_RSTD))
    a("ds_write_b32 v%d, v%d offset:128" % (G_T + 4, G_T + 5))
    a("s_lshr_b32 s18, s%d, 1" % S_W)
    a("s_bitcmp1_b32 s%d, 0" % S_HQ)
    a("s_cselect_b32 s18, s18, 1")
    a("s_lshl_b32 s19, s18, 6")
    a("s_add_u32 s17, s17, s19")
    a("v_add_u32 v%d, s17, v%d" % (G_T + 4, G_T + 1))
    a("s_lshl_b32 s19, s18, 11")
    a("v_add_u32 v%d, s19, v%d" % (G_T + 3, G_T + 3))
    RS = G_ACC + 16
    for g in range(2):
        a("ds_read_b128 v[%d:%d], v%d offset:%d" % (RS + 4 * g, RS + 4 * g + 3, G_T + 4, 32 * g))
        a("ds_read_b128 v[%d:%d], v%d offset:%d" % (RS + 8 + 4 * g, RS + 8 + 4 * g + 3, G_T + 4, 128 + 32 * g))
    a("s_lshl_b32 s17, s%d, 10" % S_RT)
    a("s_add_u32 s34, s33, s17")
    a("s_bitcmp1_b32 s%d, 0" % S_HQ)
    a("s_cbranch_scc1 L_qkv_v1")
    for v in range(2):
        if v:
            a("L_qkv_v%d:" % v)
        for i in range(8):
            a.wait_vm(tK[i])
            x, w = ar(224 + 4 * i, 4), ar(128 + 4 * i, 4)
            c = "0" if i == 0 else vr(G_KVACC, 16)
            if v & 1:
                mf(a, G_KVACC, x, w, c)
            else:
                mf(a, G_KVACC, w, x, c)
        if v < 1:
            a("v_lshlrev_b32 v%d, 10, v%d" % (G_T + 4, V_LANE))
            a("s_branch L_qkv_kvred")
    a("v_lshlrev_b32 v%d, 10, v%d" % (G_T + 4, V_LANE))
    a("v_lshlrev_b32 v%d, 4, v%d" % (G_T + 5, V_R31))
    a("v_lshl_add_u32 v%d, v%d, 8, v%d" % (G_T + 5, V_H, G_T + 5))
    a("s_lshl_b32 s19, s18, 9")
    a("s_add_u32 s34, s34, s19")
    a("s_add_u32 s34, s34, 0x10000")
    a("s_lshl_b32 s19, s18, 2")
    a("s_add_u32 s37, s37, s19")
    for q in range(2):
        a("ds_write_b128 v%d, v[%d:%d] offset:%d" % (G_T + 2, G_KVACC + 4 * q, G_KVACC + 4 * q + 3, q * 1024))
    a("L_qkv_kvred:")
    stamp(a, cfg, 2)
    for q in range(2, 4):
        a("ds_write_b128 v%d, v[%d:%d] offset:%d" % (G_T + 2, G_KVACC + 4 * q, G_KVACC + 4 * q + 3, q * 1024))
    a("s_waitcnt lgkmcnt(0)")
    a("s_barrier")
    stamp(a, cfg, 3)
    a("s_and_b32 s17, s%d, 1" % S_W)
    a("s_cmp_lg_u32 s17, s36")
    a("s_cbranch_scc1 L_qkv_q")
    a("s_and_b32 s17, s%d, 1" % S_HQ)
    a("s_lshl_b32 s17, s17, 1")
    a("s_add_u32 s17, s17, 1")
    a("s_cmp_gt_u32 s%d, s17" % S_W)
    a("s_cbranch_scc1 L_qkv_q")
    RD = G_RED + 16
    for j in range(4):
        for q in range(2):
            a("ds_read_b128 v[%d:%d], v%d offset:%d" % (RD + 8 * j + 4 * q, RD + 8 * j + 4 * q + 3, G_T + 3, j * 4096 + q * 1024))
    a("s_waitcnt lgkmcnt(4)")
    for e in range(8):
        a("v_add_f32 v%d, v%d, v%d" % (RD + e, RD + e, RD + 8 + e))
    a("s_waitcnt lgkmcnt(0)")
    for e in range(8):
        a("v_add_f32 v%d, v%d, v%d" % (RD + 16 + e, RD + 16 + e, RD + 24 + e))
    for e in range(8):
        a("v_add_f32 v%d, v%d, v%d" % (RD + e, RD + e, RD + 16 + e))
    PK = RD + 8
    a("s_bitcmp1_b32 s%d, 0" % S_HQ)
    a("s_cbranch_scc1 L_qkv_vfin")
    for e in range(8):
        a("v_fmac_f32 v%d, v%d, v%d" % (RD + e, V_NMU, CK + e))
        a("v_mul_f32 v%d, v%d, v%d" % (RD + e, V_RSTD, RD + e))
    pack8(a, PK, RD)
    a("buffer_store_dwordx4 v[%d:%d], v%d, s[4:7], s34 offen %s" % (PK, PK + 3, V_L16, SC))
    a("v_mov_b32 v%d, 0" % (PK + 4))
    for r in range(4):
        a("v_dot2_f32_bf16 v%d, v%d, v%d, v%d" % (PK + 4, PK + r, PK + r, PK + 4))
    xhalf_sum(a, PK + 4, PK + 5)
    for d in ("row_shr:1", "row_shr:2", "row_shr:4", "row_shr:8"):
        a("v_max_f32_dpp v%d, v%d, v%d %s row_mask:0xf bank_mask:0xf" % (PK + 4, PK + 4, PK + 4, d))
    a("v_max_f32_dpp v%d, v%d, v%d row_bcast:15 row_mask:0xa bank_mask:0xf" % (PK + 4, PK + 4, PK + 4))
    a("v_readlane_b32 s18, v%d, 31" % (PK + 4))
    a("v_mov_b32 v%d, v%d" % (PK + 6, V_TAG))
    a("v_mov_b32 v%d, s18" % (PK + 7))
    a("s_waitcnt vmcnt(0)")
    a("s_mov_b64 exec, 0xff")
    a("buffer_store_dwordx2 v[%d:%d], v%d, s[4:7], s37 offen %s" % (PK + 6, PK + 7, G_T + 4, SC))
    a("s_mov_b64 exec, -1")
    a("s_branch L_qkv_q")
    a("L_qkv_vfin:")
    for e in range(8):
        a("v_mul_f32 v%d, v%d, v%d" % (RD + e, RS + e, RD + e))
        a("v_fmac_f32 v%d, v%d, v%d" % (RD + e, RS + 8 + e, CK))
    pack8(a, PK, RD)
    a("s_mov_b32 exec_lo, 0xffff\ns_mov_b32 exec_hi, 0xffff")
    a("buffer_store_dwordx4 v[%d:%d], v%d, s[4:7], s34 offen %s" % (PK, PK + 3, G_T + 5, SC))
    stamp(a, cfg, 5)
    a("s_waitcnt vmcnt(0)")
    a("s_mov_b64 exec, 0xff")
    a("buffer_store_dword v%d, v%d, s[4:7], s37 offen offset:8 %s" % (V_TAG, G_T + 4, SC))
    a("s_mov_b64 exec, -1")
    a("s_branch L_qkv_q")
    a("L_qkv_stats:")
    load_stats(a, G_ST, 30, G_T, LLD[0])
    t_st = a.vt()
    b1_loads()
    a.wait_vm(t_st)
    finish_stats(a, G_ST, V_NMU, V_RSTD)
    a("L_qkv_q:")
    stamp(a, cfg, 10)
    bextra(a, V_NMU, G_CS + 4)
    tq = {}

    def h_probe():
        a("buffer_load_dword v%d, v%d, s[4:7], s59 offen sc1" % (VP, VPA))
        tq[0] = a.vt()

    def h_cs():
        a.wait_vm(tq[0])
        wcheck("q")
        cs_q()
        tq[1] = a.vt()
    gemm64_core(a, dict(cfg, stamps=cfg.get('stamps') and 2), 8, lambda i: ar(160 + 4 * i, 4), lambda i: ar(192 + 4 * i, 4), lambda e: ar(64 + 4 * e, 4),
                lambda e: blk(a, ar(64 + 4 * e, 4), SB1 if e < 8 else SB0, e % 8, SC), 16, pre_tickets=tB, ramp=12,
                side=[g[0] for g in SU.deferred_store_groups(sys.modules[__name__])], side_from=99, side_n=1, extra0=(vr(G_CS, 4), vr(G_CS + 4, 4), lambda: a.wait_vm(tq[1])),
                hooks={3: h_probe, 10: h_cs})
    a("v_mul_f32 v%d, %s, v%d" % (G_T, fl(QSCALE), V_RSTD))
    for e in range(16):
        a("v_mul_f32 v%d, v%d, v%d" % (G_ACC + e, G_T, G_ACC + e))
    pack8(a, G_Q, G_ACC)
    pack8(a, G_Q + 4, G_ACC + 8)
    if cfg.get("store_q"):
        a("s_lshl_b32 s17, s%d, 15" % S_RT)
        a("s_lshl_b32 s18, s%d, 11" % S_NT)
        a("s_add_u32 s17, s17, s18")
        a("s_add_u32 s17, s17, 0x%x" % OFF_Q)
        a("buffer_store_dwordx4 v[%d:%d], v%d, s[4:7], s17 offen" % (G_Q, G_Q + 3, V_L16))
        a("buffer_store_dwordx4 v[%d:%d], v%d, s[4:7], s17 offen offset:1024" % (G_Q + 4, G_Q + 7, V_L16))
    stamp(a, cfg, 11)


A_C = [24, 40]
A_O = [56, 72]
A_S = [88, 104]
A_P = [120, 124, 128, 132]
A_KF = [136, 140]
A_VF = [[144, 148], [152, 156]]
A_VK, A_VV, A_VINC = 160, 161, 162
A_T = 164
LDS_V = 65536
LDS_ONES = 131072
LDS_ATT_FLAG = LDS_ONES + 5120
UNR = 4


EARLY = 4
W2ORD = [7 * mm + tl for tl in range(7) for mm in range(4)]
W2POS = {k: p for p, k in enumerate(W2ORD)}


def w2load(a, idx, s0, s1):
    i = W2ORD[idx >> 1]
    blk(a, w2reg(idx & 1, i), s1 if idx & 1 else s0, i)


def w2reg(s, i):
    idx = 2 * W2POS[i] + s
    if idx < 32:
        return ar(128 + 4 * idx, 4)
    if idx < 46:
        return vr(W2V + 4 * (idx - 32), 4)
    if idx < 54:
        return vr(136 + 4 * (idx - 46), 4)
    return vr(190 + 4 * (idx - 54), 4)


SLOT13 = [0, 2, 1, 3, 0, 2, 1]


def dma13(a, i, part=None):
    slot = SLOT13[i]
    for hh in range(2):
        a("s_add_u32 m0, s%d, %d" % (S_WL, slot * 32768 + hh * 4096))
        a("s_add_u32 s29, s%d, %d" % (S_W13, i * 32768 + hh * 4096))
        for q in range(4):
            a("buffer_load_dwordx4 v%d, s[4:7], s29 offen offset:%d sc1 lds" % (V_L16, q * 1024))


def dma_lines(i):
    b = Asm()
    dma13(b, i)
    return [l.strip() for l in b.lines]


def phase_att(a, cfg):
    Q = [G_Q, G_Q + 4]
    SA0, SA1, SW0, SW1 = 24, 25, 26, 27
    a("v_mov_b32 v%d, 0x3f803f80" % (A_T + 4))
    if cfg.get("zpad", 1):
        a("v_and_b32 v%d, 2, v0" % (A_T + 5))
        a("v_cmp_eq_u32 vcc, 0, v%d" % (A_T + 5))
        a("v_cndmask_b32 v%d, v%d, v%d, vcc" % (A_T + 4, V_ZERO, A_T + 4))
    for r in range(1, 4):
        a("v_mov_b32 v%d, v%d" % (A_T + 4 + r, A_T + 4))
    a("v_lshlrev_b32 v%d, 4, v0" % (A_T + 2))
    a("v_add_u32 v%d, %d, v%d" % (A_T + 2, LDS_ONES, A_T + 2))
    a("ds_write_b128 v%d, v[%d:%d]" % (A_T + 2, A_T + 4, A_T + 7))
    a("ds_write_b128 v%d, v[%d:%d] offset:1024" % (A_T + 2, A_T + 4, A_T + 7))
    a("v_and_b32 v%d, 15, v%d" % (A_T + 2, V_LANE))
    a("v_lshlrev_b32 v%d, 4, v%d" % (A_T + 2, A_T + 2))
    a("v_lshl_add_u32 v%d, v%d, 8, v%d" % (A_T + 2, V_H, A_T + 2))
    a("v_add_u32 v%d, %d, v%d" % (A_VV, LDS_V, A_T + 2))
    a("v_add_u32 v%d, -20, v%d" % (A_T + 3, V_R31))
    a("v_cmp_gt_u32 vcc, 8, v%d" % (A_T + 3))
    a("v_mov_b32 v%d, %d" % (A_T + 2, LDS_ONES))
    a("v_mov_b32 v%d, %d" % (A_T + 3, LDS_ONES + 64))
    a("v_cndmask_b32 v%d, v%d, v%d, vcc" % (A_T + 2, A_T + 2, A_T + 3))
    if cfg.get("zpad", 1):
        a("v_and_b32 v%d, 27, v%d" % (A_T + 3, V_R31))
        a("v_cmp_ne_u32 vcc, 16, v%d" % (A_T + 3))
        a("v_add_u32 v%d, 32, v%d" % (A_T + 3, A_T + 2))
        a("v_cndmask_b32 v%d, v%d, v%d, vcc" % (A_T + 2, A_T + 2, A_T + 3))
    a("v_cmp_le_u32 vcc, 16, v%d" % V_R31)
    a("v_mov_b32 v%d, %d" % (A_VINC, UNR * 1024))
    a("v_cndmask_b32 v%d, v%d, v%d, vcc" % (A_VV, A_VV, A_T + 2))
    a("v_cndmask_b32 v%d, v%d, v%d, vcc" % (A_VINC, A_VINC, V_ZERO))
    for t in range(2):
        n = A_T + 8 + t
        a("v_mov_b32 v%d, 0" % n)
        for r in range(4):
            a("v_dot2_f32_bf16 v%d, v%d, v%d, v%d" % (n, Q[t] + r, Q[t] + r, n))
    for t in range(2):
        xhalf_sum(a, A_T + 8 + t, A_T + 10)
    a_addr(a, SA0, SA1, OFF_WO, 32, 8)
    a("s_mul_i32 s%d, s%d, %d" % (S_W13, S_M, 7 * 32768))
    a("s_lshl_b32 s%d, s%d, 13" % (S_WL, S_W))
    a("s_add_u32 s%d, s%d, s%d" % (S_W13, S_W13, S_WL))
    a("s_add_u32 s%d, s%d, 0x%x" % (S_W13, S_W13, OFF_W13))
    a_addr(a, SW0, SW1, OFF_W2, 112, 28)
    a("s_lshl_b32 s20, s%d, 12" % S_W)
    a("s_add_u32 s21, s33, s20")
    a("s_add_u32 s22, s21, 0x10000")
    a("s_add_u32 s23, s20, %d" % LDS_V)
    a("s_mul_i32 s38, s%d, 0x2000" % S_LAYER)
    a("s_add_u32 s38, s38, 0x%x" % (OFF_FLAGS + FL_KV))
    a("s_and_b32 s17, s2, 7")
    a("s_lshl_b32 s17, s17, 10")
    a("s_add_u32 s38, s38, s17")
    a("s_lshl_b32 s58, s2, 2")
    a("s_add_u32 s58, s58, 0x%x" % OFF_FLW)
    a("s_or_b32 s17, s%d, s%d" % (S_W, S_LAYER))
    a("s_cmp_lg_u32 s17, 0")
    a("s_cselect_b32 s58, 0xf0000000, s58")
    a("s_and_b32 s59, s2, 7")
    a("s_lshl_b32 s59, s59, 10")
    a("s_add_u32 s59, s59, 0x%x" % OFF_FLW)
    a("v_lshlrev_b32 v%d, 10, v%d" % (A_T + 16, V_LANE))
    a("s_getreg_b32 s17, hwreg(HW_REG_XCC_ID)")
    a("s_and_b32 s17, s17, 7")
    a("s_lshl_b32 s17, s17, 1")
    a("v_or_b32 v%d, s17, v%d" % (A_T + 17, V_TAG))
    a("v_and_b32 v%d, 15, v%d" % (A_T + 18, V_LANE))
    a("v_lshlrev_b32 v%d, 5, v%d" % (A_T + 18, A_T + 18))
    a("s_and_b32 s17, s2, 0x87")
    a("s_lshl_b32 s17, s17, 2")
    a("v_add_u32 v%d, s17, v%d" % (A_T + 18, A_T + 18))

    stamp(a, cfg, 1)
    a("s_cmp_lg_u32 s%d, 0" % S_W)
    a("s_cbranch_scc1 L_att_nopoll")
    poll(a, cfg, 38, V_L16, A_T + 12, wide=True, sleep=cfg.get("kv_sleep", 2))
    k2 = A_T + 13
    for d in ("row_shr:1", "row_shr:2", "row_shr:4", "row_shr:8"):
        a("v_max_f32_dpp v%d, v%d, v%d %s row_mask:0xf bank_mask:0xf" % (k2, k2, k2, d))
    a("v_max_f32_dpp v%d, v%d, v%d row_bcast:15 row_mask:0xa bank_mask:0xf" % (k2, k2, k2))
    a("v_max_f32_dpp v%d, v%d, v%d row_bcast:31 row_mask:0xc bank_mask:0xf" % (k2, k2, k2))
    a("v_mov_b32 v%d, %d" % (A_T + 12, LDS_ATT_FLAG + 16 - 63 * 4))
    a("v_add_u32 v%d, v%d, v%d" % (A_T + 12, V_L4, A_T + 12))
    a("s_mov_b32 exec_lo, 0")
    a("s_mov_b32 exec_hi, 0x80000000")
    a("ds_write_b32 v%d, v%d" % (A_T + 12, k2))
    a("s_mov_b64 exec, -1")
    a("s_waitcnt lgkmcnt(0)")
    a("L_att_nopoll:")
    a("s_waitcnt vmcnt(0)")
    a("s_barrier")
    a("s_mov_b64 exec, 0xff")
    a("buffer_store_dword v%d, v%d, s[4:7], s58 offen %s" % (A_T + 17, A_T + 16, SC))
    a("s_mov_b64 exec, -1")
    a("s_mov_b32 s%d, 0xf0000000" % SU.S_DST)
    stamp(a, cfg, 2)
    a("v_mov_b32 v%d, %d" % (A_T + 12, LDS_ATT_FLAG + 16))
    a("ds_read_b32 v%d, v%d" % (A_T + 1, A_T + 12))
    def kvl(g):
        out = []
        for sl, sg in ((20, 21), (23, 22)):
            out += ["s_add_u32 m0, s%d, %d" % (sl, g * 16384), "s_add_u32 s17, s%d, %d" % (sg, g * 16384)]
            out += ["buffer_load_dwordx4 v%d, s[4:7], s17 offen offset:%d %s lds" % (V_L16, q * 1024, SC) for q in range(4)]
        return out

    def kvdma(g):
        for x in kvl(g):
            a(x)

    G1 = 1
    for g in range(G1):
        kvdma(g)
        if g == 0:
            t_g3 = a.vt()
            a("s_waitcnt lgkmcnt(0)")
            for t in range(2):
                n = A_T + 8 + t
                a("v_mul_f32 v%d, v%d, v%d" % (n, A_T + 1, n))
                a("v_sqrt_f32 v%d, v%d" % (n, n))
            for t in range(2):
                n = A_T + 8 + t
                a("v_mul_f32 v%d, %s, v%d" % (n, fl(-1.001), n))
            a("v_min_f32 v%d, v%d, v%d" % (A_T + 10, A_T + 8, A_T + 9))
            a("v_mov_b32 v%d, %s" % (A_T + 11, fl(-cfg.get("bound_t", BOUND_T))))
            a("v_cmp_nge_f32 vcc, v%d, v%d" % (A_T + 10, A_T + 11))
            a("s_lshl_b32 s19, s%d, 2" % S_W)
            a("s_add_u32 s19, s19, %d" % LDS_ATT_FLAG)
            a("v_mov_b32 v%d, s19" % (A_T + 12))
            a("s_cmp_lg_u64 vcc, 0")
            a("s_cselect_b32 s18, 1, 0")
            a("v_mov_b32 v%d, s18" % (A_T + 11))
            a("ds_write_b32 v%d, v%d" % (A_T + 12, A_T + 11))
            for t in range(2):
                for r in range(16):
                    a("v_mov_b32 v%d, v%d" % (A_C[t] + r, A_T + 8 + t))
    stamp(a, cfg, 3)
    a.wait_vm(t_g3)
    a("s_waitcnt lgkmcnt(0)")
    a("s_barrier")
    stamp(a, cfg, 4)
    a("v_mov_b32 v%d, %d" % (A_T + 12, LDS_ATT_FLAG))
    a("ds_read_b128 v[%d:%d], v%d" % (A_T + 4, A_T + 7, A_T + 12))
    a("ds_read_b128 v[%d:%d], v%d" % (A_KF[0], A_KF[0] + 3, V_L16))
    a("ds_read_b128 v[%d:%d], v%d" % (A_VF[0][0], A_VF[0][0] + 3, A_VV))
    a("ds_read_b128 v[%d:%d], v%d offset:512" % (A_VF[0][1], A_VF[0][1] + 3, A_VV))
    a("ds_read_b128 v[%d:%d], v%d offset:1024" % (A_KF[1], A_KF[1] + 3, V_L16))
    a("s_waitcnt lgkmcnt(4)")
    a("v_or_b32 v%d, v%d, v%d" % (A_T + 4, A_T + 4, A_T + 5))
    a("v_or3_b32 v%d, v%d, v%d, v%d" % (A_T + 4, A_T + 4, A_T + 6, A_T + 7))
    a("v_readfirstlane_b32 s18, v%d" % (A_T + 4))
    a("s_cmp_eq_u32 s18, 0")
    a("s_cbranch_scc1 L_att_fast")
    keep = a.dma_issued, a.vm_issued
    for g in range(G1, 4):
        kvdma(g)
    a.dma_issued, a.vm_issued = keep
    a("s_waitcnt vmcnt(0)")
    a("s_barrier")
    a("v_mov_b32 v%d, 0xff800000" % (A_T + 8))
    a("v_mov_b32 v%d, 0xff800000" % (A_T + 9))
    a("v_mov_b32 v%d, v%d" % (A_T + 12, V_L16))
    a("s_mov_b32 s19, 64")
    a("L_att_pre:")
    a("ds_read_b128 v[%d:%d], v%d" % (A_P[0], A_P[0] + 3, A_T + 12))
    a("v_add_u32 v%d, 1024, v%d" % (A_T + 12, A_T + 12))
    a("s_waitcnt lgkmcnt(0)")
    for t in range(2):
        mf(a, A_S[t], vr(A_P[0], 4), vr(Q[t], 4), "0")
    for t in range(2):
        for r in range(0, 16, 2):
            a("v_max3_f32 v%d, v%d, v%d, v%d" % (A_T + 8 + t, A_S[t] + r, A_S[t] + r + 1, A_T + 8 + t))
    a("s_sub_u32 s19, s19, 1")
    a("s_cmp_lg_u32 s19, 0")
    a("s_cbranch_scc1 L_att_pre")
    for t in range(2):
        n = A_T + 8 + t
        a("v_mov_b32 v%d, v%d" % (A_T + 10, n))
        a("v_permlane32_swap_b32 v%d, v%d" % (n, A_T + 10))
        a("v_max_f32 v%d, v%d, v%d" % (n, n, A_T + 10))
        a("v_sub_f32 v%d, 0, v%d" % (n, n))
        for r in range(16):
            a("v_mov_b32 v%d, v%d" % (A_C[t] + r, n))
    a("L_att_fast:")
    a("s_waitcnt lgkmcnt(0)")

    def m4(d, x, y, c):
        mf(a, d, vr(x, 4), vr(y, 4), vr(c, 16))

    def ex(r):
        a("v_exp_f32 v%d, v%d" % (r, r))

    def cv(d, s):
        a("v_cvt_pk_bf16_f32 v%d, v%d, v%d" % (d, s, s + 1))

    m4(A_S[0], A_KF[0], Q[0], A_C[0])
    a("s_nop 7")

    def lines_of(fn):
        b = Asm()
        fn(b)
        return [l.strip() for l in b.lines]

    def groups(lines):
        out, cur = [], []
        for x in lines:
            cur.append(x)
            if x.startswith("buffer_"):
                out.append(cur)
                cur = []
        assert not cur
        return out

    q_kv = []
    for g in range(G1, 4):
        q_kv += [(x, g) for x in groups(kvl(g))]
    q_w = []
    for i in range(8):
        q_w += groups(lines_of(lambda b: blk(b, ar(4 * i, 4), SA0, i)))
        q_w += groups(lines_of(lambda b: blk(b, ar(32 + 4 * i, 4), SA1, i)))
    for idx in range(46):
        q_w += groups(lines_of(lambda b: w2load(b, idx, SW0, SW1)))
    q_t = [["s_add_u32 s17, s49, %d" % (q * 4096), "buffer_load_dword v%d, v%d, s[4:7], s17 offen sc1" % (A_T + 3, A_T + 2)] for q in range(5)]
    if not cfg.get("touch13", 1):
        q_t = []
    q_d = groups(dma_lines(0) + dma_lines(1))
    a("s_mul_i32 s49, s%d, %d" % (S_M, 7 * 32768))
    a("s_and_b32 s18, s%d, 1" % S_RG)
    a("s_mul_i32 s18, s18, %d" % 81920)
    a("s_add_u32 s49, s49, s18")
    a("s_mul_i32 s18, s%d, %d" % (S_W, 20480))
    a("s_add_u32 s49, s49, s18")
    a("s_add_u32 s49, s49, 0x%x" % (OFF_W13 + 65536))
    a("v_lshlrev_b32 v%d, 6, v%d" % (A_T + 2, V_LANE))
    tg = {}
    U_PROBE, U_CHK = cfg.get("u_probe", 21), cfg.get("u_chk", 24)
    PB = A_T + 12
    def slot(u):
        grp, g = None, None
        if q_kv:
            grp, g = q_kv.pop(0)
            if u < 4:
                grp = grp + q_kv.pop(0)[0]
        elif u == U_PROBE:
            a("buffer_load_dwordx4 v[%d:%d], v%d, s[4:7], s59 offen %s" % (PB, PB + 3, V_L16, SC))
            tg["probe"] = a.vt()
        elif u == U_CHK:
            assert not q_kv
            a("s_waitcnt vmcnt(0)")
            a("L_att_wchk:")
            for r in range(4):
                a("v_and_b32 v%d, -15, v%d" % (PB + r, PB + r))
            a("v_cmp_ne_u32 vcc, v%d, v%d" % (V_TAG, PB))
            for r in range(1, 4):
                a("v_cmp_ne_u32 s[18:19], v%d, v%d" % (V_TAG, PB + r))
                a("s_or_b64 vcc, vcc, s[18:19]")
            a("s_cmp_eq_u64 vcc, 0")
            a("s_cbranch_scc1 L_att_wok")
            if cfg.get("spin_limit"):
                a("s_sub_u32 s46, s46, 1")
                a("s_cbranch_scc1 L_att_wok")
            keep = a.vm_issued
            a("s_sleep 4")
            a("buffer_load_dwordx4 v[%d:%d], v%d, s[4:7], s59 offen %s" % (PB, PB + 3, V_L16, SC))
            a("s_waitcnt vmcnt(0)")
            a("s_branch L_att_wchk")
            a.vm_issued = keep
            a("L_att_wok:")
            a("buffer_load_dword v%d, v%d, s[4:7], s59 offen %s" % (PB, A_T + 18, SC))
            tg["grp"] = a.vt()
        elif u == U_CHK + 8:
            a.wait_vm(tg["grp"])
            a("v_cmp_ne_u32 vcc, v%d, v%d" % (A_T + 17, PB))
            a("s_cmp_eq_u64 vcc, 0")
            a("s_cselect_b32 s%d, %d, 0" % (S_LOC, 0 if cfg.get("force_remote") else 1))
        elif u < U_CHK:
            pass
        elif q_t and u >= cfg.get("t_from", 100) and (u - cfg.get("t_from", 100)) % cfg.get("t_every", 4) == 1:
            grp = q_t.pop(0)
        elif u >= 68 and q_d:
            grp = q_d.pop(0)
        elif q_w:
            grp = q_w.pop(0)
        if grp:
            for x in grp:
                a(x)
            if g is not None:
                tg[g] = a.vt()

    NU = 128
    BAR = {16: None, 36: None}
    for u in range(NU):
        j, t = u >> 1, u & 1
        nj, nt = (u + 1) >> 1, (u + 1) & 1
        pj, pt = (u - 1) >> 1, (u - 1) & 1
        jj = j % UNR
        sb, nsb = A_S[u % 2], A_S[(u + 1) % 2]
        plo, phi = A_P[(u % 2) * 2], A_P[(u % 2) * 2 + 1]
        pphi = A_P[((u - 1) % 2) * 2 + 1]
        if u + 1 < NU:
            m4(nsb, A_KF[nj % 2], Q[nt], A_C[nt])
        if t == 0 and j + 2 < 64:
            a("ds_read_b128 v[%d:%d], v%d offset:%d" % (A_KF[j % 2], A_KF[j % 2] + 3, V_L16, (j + 2) * 1024))
        if t == 1 and u > U_CHK and cfg.get('slot3', 0):
            slot(u)
        for r in range(0, 4):
            ex(sb + r)
        if u > 0:
            m4(A_O[pt], A_VF[pj % 2][1], pphi, A_O[pt])
        if t == 0 and j + 1 < 64:
            off = (jj + 1) * 1024
            a("ds_read_b128 v[%d:%d], v%d offset:%d" % (A_VF[(j + 1) % 2][0], A_VF[(j + 1) % 2][0] + 3, A_VV, off))
            a("ds_read_b128 v[%d:%d], v%d offset:%d" % (A_VF[(j + 1) % 2][1], A_VF[(j + 1) % 2][1] + 3, A_VV, off + 512))
        if t == 1:
            slot(u)
        for r in range(4, 9):
            ex(sb + r)
        for r in range(0, 4):
            cv(plo + r, sb + 2 * r)
        for r in range(9, 12):
            ex(sb + r)
        m4(A_O[t], A_VF[j % 2][0], plo, A_O[t]) if u > 1 else mf(a, A_O[t], vr(A_VF[j % 2][0], 4), vr(plo, 4), "0")
        if t == 1:
            a("s_waitcnt lgkmcnt(0)")
            if (j + 3) in BAR:
                g = BAR[j + 3]
                if g is not None:
                    a.wait_vm(tg[g])
                a("s_barrier")
                if j + 3 == 16:
                    stamp(a, cfg, 6)
        else:
            slot(u)
        for r in range(12, 16):
            ex(sb + r)
        if t == 1 and jj == UNR - 1:
            a("v_add_u32 v%d, v%d, v%d" % (A_VV, A_VINC, A_VV))
        for r in range(4, 8):
            cv(phi + r - 4, sb + 2 * r)
    assert not (q_kv or q_w or q_t or q_d), (len(q_kv), len(q_w), len(q_t), len(q_d))
    units = [(63, 1)]
    U = 128
    a("L_att_done:")
    DUAL[0] = bool(cfg.get("dual", 1))
    stamp(a, cfg, 7)
    lj, lt = units[-1]
    m4(A_O[lt], A_VF[lj % 2][1], A_P[((U - 1) % 2) * 2 + 1], A_O[lt])
    layer_off(a, 34, OFF_O, X_STRIDE)
    a("s_lshl_b32 s18, s%d, 15" % S_RT)
    a("s_add_u32 s34, s34, s18")
    a("s_lshl_b32 s18, s%d, 11" % S_NT)
    a("s_add_u32 s34, s34, s18")
    for t in range(2):
        a("v_rcp_f32 v%d, v%d" % (A_T, A_O[t] + 8))
        for r in range(8):
            a("v_mul_f32 v%d, v%d, v%d" % (A_O[t] + r, A_T, A_O[t] + r))
        pack8(a, A_P[t], A_O[t])
        st4(a, A_P[t], V_L16, 34, t * 1024)
    flag_addr(a, S_FO, FL_O, S_RB, 7, S_HQ)
    publish(a, S_FO, [(34, 2048, 0)])
    stamp(a, cfg, 8)


def phase_wo(a, cfg):
    SB0, SB1, SX = 26, 27, 28
    a("s_barrier")
    if not cfg.get("pf_att", 1):
        for i in range(8):
            blk(a, ar(4 * i, 4), 24, i)
            blk(a, ar(32 + 4 * i, 4), 25, i)
    b = Asm()
    dma13(b, 2)
    b("s_mul_i32 s29, s%d, %d" % (S_M, 7 * 1024))
    b("s_lshl_b32 s17, s%d, 11" % S_W)
    b("s_add_u32 s29, s29, s17")
    b("s_add_u32 m0, s17, %d" % LDS_CS)
    b("s_add_u32 s29, s29, 0x%x" % OFF_CSX)
    b("buffer_load_dwordx4 v%d, s[4:7], s29 offen sc1 lds" % V_L16)
    b("buffer_load_dwordx4 v%d, s[4:7], s29 offen offset:1024 sc1 lds" % V_L16)
    wside = [l.strip() for l in b.lines]
    wside2 = []
    if cfg.get("mix", 1):
        wside2, wside = wside, []
    elif cfg.get("t2_pre", 1):
        for x in wside:
            a(x)
        wside = []
    layer_off(a, SX, OFF_O, X_STRIDE)
    b_addr(a, SB0, SB1, SX, 32, 8)
    reduce_addr(a, LDS_R1)
    out_addr(a, 1)
    flag_addr(a, 38, FL_O, S_RB, 7)
    a("s_lshl_b32 s17, s%d, 5" % S_W)
    a("s_add_u32 s38, s38, s17")
    a("v_and_b32 v%d, 28, v%d" % (G_T + 5, V_L4))
    flag_addr(a, S_FX1, FL_X1, S_RG, 8, S_M)
    stamp(a, cfg, 8)
    poll(a, cfg, 38, G_T + 5, G_T + 4)
    stamp(a, cfg, 9)
    gemm64_core(a, cfg, 8, lambda i: ar(4 * i, 4), lambda i: ar(32 + 4 * i, 4), lambda e: ar(64 + 4 * e, 4),
                lambda e: blk(a, ar(64 + 4 * e, 4), SB1 if e < 8 else SB0, e % 8, SC), 16, ramp=cfg.get("ramp1", 8), resid=True,
                side=wside2, side_from=cfg.get("wo_side", 5), side_n=1)
    res_epilogue(a, cfg, 1, None)
    stamp(a, cfg, 10)
    publish(a, S_FX1, [(34, 2048, 0), (35, 512, 0)], between=wside)
    stamp(a, cfg, 11)


F_ACC = [24, 40, 56, 72]
NACC = 4
F_W = 88
F_CS = 120
F_H = 128
F_ST = 136
F_T = 168
F_LA = [184, 185]
F_NMU, F_C1, F_RS2, F_CSA, F_LG = 186, 187, 188, 189, 198
F_TA = 172


def phase_ffn1(a, cfg):
    SX, SH = 24, 27
    G3 = cfg.get("g0", 3) == 3
    if G3:
        a("s_mul_i32 s35, s%d, 6144" % S_W)
        a("s_sub_u32 s34, s%d, s%d" % (S_W13, S_WL))
        a("s_add_u32 s34, s34, s35")
        a("s_add_u32 s34, s34, %d" % (4 * 32768))
        head4 = ["s_add_u32 m0, s35, %d" % LDS_E, "s_nop 0"]
        head4 += ["buffer_load_dwordx4 v%d, s[4:7], s34 offen offset:%d sc1 lds" % (V_L16, q * 1024) for q in range(4)]
        head4 += ["s_add_u32 m0, s35, %d" % (LDS_E + 4096), "s_add_u32 s34, s34, 4096"]
        head4 += ["buffer_load_dwordx4 v%d, s[4:7], s34 offen offset:%d sc1 lds" % (V_L16, q * 1024) for q in range(2)]
        a("s_lshl_b32 s28, s%d, 11" % S_W)
        a("s_sub_u32 s33, s%d, s%d" % (S_W13, S_WL))
        a("s_add_u32 s33, s33, s28")
        a("s_add_u32 s33, s33, %d" % (4 * 32768 + 24 * 1024))
    a("s_lshl_b32 s30, s%d, 2" % S_RG)
    a("s_add_u32 s30, s30, s%d" % S_W)
    layer_off(a, SX, OFF_X, X_STRIDE, 2, 1)
    a("s_lshl_b32 s17, s30, 15")
    a("s_add_u32 s%d, s%d, s17" % (SX, SX))
    a("s_add_u32 s25, s%d, %d" % (SX, 28 * 1024))
    layer_off(a, 26, OFF_STAT, STAT_STRIDE, 2, 1)
    a("s_lshl_b32 s18, s30, 12")
    a("s_add_u32 s26, s26, s18")
    layer_off(a, SH, OFF_H, H_STRIDE)
    a("s_mul_i32 s17, s30, %d" % (112 * 1024))
    a("s_add_u32 s%d, s%d, s17" % (SH, SH))
    a("s_mul_i32 s17, s%d, %d" % (S_M, 7 * 1024))
    a("s_add_u32 s%d, s%d, s17" % (SH, SH))
    a("v_mov_b32 v%d, v%d" % (F_LA[0], V_L16))
    a("v_add_u32 v%d, 65536, v%d" % (F_LA[1], V_L16))
    a("v_add_u32 v%d, %d, v%d" % (F_CSA, LDS_E, V_L16))
    a("v_and_b32 v%d, 0x380, v%d" % (F_TA, V_L128))
    a("v_add_u32 v%d, 4096, v%d" % (F_TA + 1, F_TA))
    a_addr(a, 53, 54, OFF_W2, 112, 28)
    flag_addr(a, 38, FL_X1, S_RG, 8)
    a("s_lshr_b32 s17, s%d, 1" % S_W)
    a("s_lshl_b32 s17, s17, 7")
    a("s_add_u32 s38, s38, s17")
    a("s_and_b32 s17, s%d, 1" % S_W)
    a("s_lshl_b32 s17, s17, 2")
    a("s_add_u32 s38, s38, s17")
    lane_pat(a, F_T + 2, 15, 0, 3)
    flag_addr(a, S_FH, FL_H, S_RG, 9, S_M, per_layer=0x2000)
    stamp(a, cfg, 1)
    a("s_barrier")
    if not cfg.get("mix", 1):
        dma13(a, 3)
    poll(a, cfg, 38, F_T + 2, F_T)
    stamp(a, cfg, 2)
    tX = {}

    def xload(i):
        if i < 28:
            blk(a, ar(4 * i, 4), SX, i, SC)
        else:
            blk(a, ar(4 * i, 4), 25, i - 28, SC)
        tX[i] = a.vt()

    XW = cfg.get("xwin", 10)
    for i in range(XW):
        xload(i)

    def wread(tile, ks, ring):
        slot = SLOT13[tile]
        if ks == 32:
            a("ds_read_b128 v[%d:%d], v%d offset:%d" % (F_W + 4 * ring, F_W + 4 * ring + 3, F_CSA, LDS_CS - LDS_E + tile * 1024))
            return
        if G3 and tile == 4:
            a("ds_read_b128 v[%d:%d], v%d offset:%d" % (F_W + 4 * ring, F_W + 4 * ring + 3, F_CSA if ks < 24 else F_LA[0], (ks % 24) * 1024))
            return
        a("ds_read_b128 v[%d:%d], v%d offset:%d" % (F_W + 4 * ring, F_W + 4 * ring + 3, F_LA[slot >> 1], (slot & 1) * 32768 + ks * 1024))

    def epi(tile):
        acc, cs = F_ACC[tile % NACC], F_CS
        hp = F_H + 4 * (tile % 2)
        out = []
        for e in range(8):
            out.append("v_fma_f32 v%d, v%d, v%d, v%d" % (F_T + 8 + e, F_C1, acc + e, F_LG))
        for e in range(8):
            out.append("v_exp_f32 v%d, v%d" % (F_T + 8 + e, F_T + 8 + e))
            out.append("v_mul_f32 v%d, v%d, v%d" % (acc + e, acc + e, acc + 8 + e))
            if e:
                out.append("v_add_f32 v%d, v%d, v%d" % (F_T + 7 + e, F_RS2, F_T + 7 + e))
        out.append("v_add_f32 v%d, v%d, v%d" % (F_T + 15, F_RS2, F_T + 15))
        for e in range(8):
            out.append("v_rcp_f32 v%d, v%d" % (F_T + 8 + e, F_T + 8 + e))
            if e:
                out.append("v_mul_f32 v%d, v%d, v%d" % (acc + e - 1, F_T + 7 + e, acc + e - 1))
        out.append("v_mul_f32 v%d, v%d, v%d" % (acc + 7, F_T + 15, acc + 7))
        for i in range(4):
            out.append("v_cvt_pk_bf16_f32 v%d, v%d, v%d" % (hp + i, acc + 2 * i, acc + 2 * i + 1))
        out.append("buffer_store_dwordx4 v[%d:%d], v%d, s[4:7], s%d offen offset:%d" % (hp, hp + 3, V_OFF[tile // 4], SH, (tile % 4) * 1024))
        if DBL[0]:
            out.append("buffer_store_dwordx4 v[%d:%d], v%d, s[4:7], s%d offen offset:%d" % (hp, hp + 3, V_OFF[tile // 4], SH, (tile % 4) * 1024))
        return out

    G0 = cfg.get("g0", 3)
    steps = []
    for ks in range(33):
        for tl in range(G0):
            steps.append((tl, ks))
    for tile in range(G0, 7):
        for ks in range(33):
            steps.append((tile, ks))
    N = len(steps)
    PF = cfg.get('pf', 6)
    lt = {}
    first_of, last_of = {}, {}
    for n, (tile, ks) in enumerate(steps):
        first_of.setdefault(tile, n)
        last_of[tile] = n
    dma_q = [(3, x) for x in dma_lines(3)] if cfg.get('mix', 1) else []
    if G3:
        dma_q += [(3, x) for x in head4]
    fence_t, fence_n, fenced = {}, {}, set()

    def do_read(n):
        tile, ks = steps[n]
        if G3:
            ft = {(3, 0): 3, (4, 24): 5, (6, 0): 6}.get((tile, ks))
            if ft and ft not in fenced:
                assert ft in fence_t and not any(q[0] <= ft for q in dma_q), ft
                a.wait_vm(fence_t[ft])
                a("s_barrier")
                fenced.add(ft)
        elif n == first_of[tile] and tile >= (3 if cfg.get('mix', 1) else 4) and tile not in fenced:
            assert tile in fence_t and not any(q[0] == tile for q in dma_q), tile
            a.wait_vm(fence_t[tile])
            a("s_barrier")
        wread(tile, ks, n % 8)
        lt[n] = a.lt()

    cs_t = 0
    for n in range(PF):
        do_read(n)
    pending = []
    nx = XW
    nst, st_t, st_n, early_done, rb_done = 0, {}, {}, False, False
    for n, (tile, ks) in enumerate(steps):
        if tile >= G0 and ks == 0:
            stamp(a, cfg, 1 + tile)
        if tile == 0 and ks < 32:
            a.wait_vm(tX[ks])
        if n % 2 == 0:
            a.wait_lg(lt[min(n + 1, N - 1)])
            lg_done = lt[min(n + 1, N - 1)]
        acc = F_ACC[tile % NACC]
        if ks == 0 and tile >= NACC:
            assert nst > tile - NACC, (tile, nst)
        mf(a, acc, vr(F_W + 4 * (n % 8), 4), ar(4 * ks, 4) if ks < 32 else vr(F_CS, 4), "0" if ks == 0 else vr(acc, 16))
        if (tile == 0 or (tile < G0 and cfg.get('xfast', 0))) and nx < 32:
            xload(nx)
            nx += 1
            if nx == 32:
                load_stats(a, F_ST, 26, F_T, LLD[0])
                t_st = a.vt()
        if n + PF < N:
            do_read(n + PF)
        if n == last_of[G0 - 1] + 2:
            a("s_barrier")
            if G3:
                dma_q += [(5, "s_mov_b32 m0, s28"), (5, "s_nop 0"),
                          (5, "buffer_load_dwordx4 v%d, s[4:7], s33 offen sc1 lds" % V_L16),
                          (5, "buffer_load_dwordx4 v%d, s[4:7], s33 offen offset:1024 sc1 lds" % V_L16)]
                for tl in (5, 6):
                    dma_q += [(tl, x) for x in dma_lines(tl)]
                b = Asm()
                for idx in range(46, 56):
                    w2load(b, idx, 53, 54)
                dma_q += [(99, l.strip()) for l in b.lines]
            else:
                for tl in range(4, 4 + G0):
                    dma_q += [(tl, x) for x in dma_lines(tl)]
        for old in range(G0, 3):
            if n == last_of[old] + 2:
                a("s_barrier")
                dma_q += [(old + 4, x) for x in dma_lines(old + 4)]
                if old == 2:
                    b = Asm()
                    for idx in range(46, 56):
                        w2load(b, idx, 53, 54)
                    dma_q += [(99, l.strip()) for l in b.lines]
        dcost = 0
        if dma_q and ((n >= cfg.get("d3_from", 20) and n % cfg.get("d3_every", 5) == 0) if tile < G0 else n % cfg.get("dma_every", 3) == 0):
            while dma_q:
                tl, x = dma_q.pop(0)
                a(x)
                dcost += cfg.get("dma_cost", 8)
                if x.startswith("buffer_load"):
                    fence_t[tl] = a.vt()
                    fence_n[tl] = n
                    break
        if n == last_of[G0 - 1] - G0 - 2:
            a.wait_vm(t_st)
            finish_stats(a, F_ST, F_NMU, F_RS2)
            a("v_mul_f32 v%d, %s, v%d" % (F_C1, fl(-LOG2E), F_RS2))
            a("v_mov_b32 v%d, v%d" % (F_RS2, F_ST + 1))
            a("v_log_f32 v%d, v%d" % (F_LG, F_ST + 1))
            bextra(a, F_NMU, F_CS)
        for tl in range(0, 6):
            if n == max(last_of[tl], last_of[G0 - 1]) + 3:
                pending += epi(tl)
        if nst >= EARLY and not rb_done and n >= st_n[EARLY - 1] + 1:
            if cfg.get("h_wt", 6) < EARLY:
                readback(a, [(SH, 1024 * EARLY, 0)])
                a("s_mov_b64 exec, -1")
                dcost += 24
            rb_done = n
        for tl in range(cfg.get("h_touch", 0)):
            if tl in st_n and n == st_n[tl] + cfg.get("touch_lag", 24):
                a("buffer_load_dword v%d, v%d, s[4:7], s%d offen offset:%d sc1" % (V_P2, F_TA + (tl // 4), SH, (tl % 4) * 1024))
                a.vm_issued -= 0
                dcost += 8
        cost = dcost
        lim = cfg.get("epi_cost", 16)
        while pending:
            x = pending[0]
            if x == "CSWAIT":
                pending.pop(0)
                if cs_t > lg_done:
                    a.wait_lg(cs_t)
                    cost += 4
                continue
            cx = 8 if x.split()[0] in TRANS else (8 if x.startswith("buffer_") else 4)
            if cost + cx > lim:
                break
            pending.pop(0)
            if x.startswith("buffer_store"):
                ok = [t for t in (3, 4, 5, 6) if t in fence_n and t not in fenced and not any(q[0] == t for q in dma_q)
                      and fence_n[t] + cfg.get("fence_age", 20) <= n
                      and (99 not in fence_n or (not dma_q and fence_n[99] + cfg.get("fence_age", 20) <= n))]
                if ok:
                    a.wait_vm(fence_t[max(ok)])
                    a("s_barrier")
                    fenced.update(ok)
            if x.startswith("buffer_store") and nst == EARLY + 1:
                assert rb_done
                assert not dma_q
                a("s_waitcnt vmcnt(0)")
                a("s_mov_b64 exec, 1")
                emit_l(a, "buffer_store_dword v%d, v%d, s[4:7], s%d offen offset:%d" % (V_TAG, V_ZERO, S_FH, 0x100))
                a("s_mov_b64 exec, -1")
                early_done = True
            if x.startswith("buffer_store") and nst < cfg.get("h_wt", 6):
                a(x + " sc1")
            elif x.startswith("buffer_store"):
                emit_l(a, x)
            else:
                a(x)
            cost += cx
            if x.startswith("ds_read"):
                cs_t = a.lt()
            if x.startswith("buffer_store"):
                nst += 1
                st_t[nst - 1] = a.vt()
                st_n[nst - 1] = n
    assert early_done
    assert not dma_q
    stamp(a, cfg, 8)
    for x in pending + epi(6):
        if x == "CSWAIT":
            a.wait_lg(cs_t)
            continue
        if x.startswith("buffer_store"):
            emit_l(a, x)
        else:
            a(x)
    stamp(a, cfg, 9)
    h0 = max(EARLY, cfg.get("h_wt", 6))
    assert nst >= cfg.get("h_wt", 6)
    a("s_add_u32 s17, s%d, %d" % (SH, h0 * 1024))
    publish(a, S_FH, [(17, 1024 * (7 - h0), 0)])
    stamp(a, cfg, 10)


def phase_ffn2(a, cfg):
    SB0, SB1, SX = 26, 27, 28
    SW0, SW1 = 24, 25
    side = []
    if cfg.get("touchq", 0):
        a("s_lshl_b32 s49, s%d, 16" % S_HQ)
        a("s_and_b32 s18, s%d, 3" % S_RB)
        a("s_lshl_b32 s18, s18, 14")
        a("s_add_u32 s49, s49, s18")
        a("s_lshl_b32 s18, s%d, 12" % S_W)
        a("s_add_u32 s49, s49, s18")
        a("s_add_u32 s49, s49, 0x%x" % OFF_WQ)
        a("s_cmp_eq_u32 s%d, 1" % S_LAYER)
        a("s_cselect_b32 s49, 0xf0000000, s49")
        a("v_lshlrev_b32 v%d, 6, v%d" % (G_T + 2, V_LANE))
        side.append("buffer_load_dword v%d, v%d, s[4:7], s49 offen" % (G_T + 3, G_T + 2))
    layer_off(a, SX, OFF_H, H_STRIDE)
    b_addr(a, SB0, SB1, SX, 112, 28)
    reduce_addr(a, LDS_R1)
    out_addr(a, 2)
    flag_addr(a, 38, FL_H, S_RG, 9, per_layer=0x2000)
    a("s_lshl_b32 s17, s%d, 6" % S_W)
    a("s_add_u32 s38, s38, s17")
    a("s_and_b32 s17, s%d, 1" % S_RB)
    a("s_lshl_b32 s17, s17, 3")
    a("s_add_u32 s38, s38, s17")
    lane_pat(a, G_T + 6, 7, 0, 2)
    xin_flag_addr(a, 39, True, 1)
    stamp(a, cfg, 8)
    poll(a, cfg, 38, G_T + 6, G_T + 4, imm=0x100)
    stamp(a, cfg, 9)
    wb = cfg.get("wbl2", 0)
    R = 32

    def hreg(e):
        return ar(4 * (e % R), 4)

    early = [7 * mm + tl for tl in range(EARLY) for mm in range(4)]
    late = [7 * mm + tl for tl in range(EARLY, 7) for mm in range(4)]
    order = [(1, i) for i in early] + [(0, i) for i in early] + [(1, i) for i in late] + [(0, i) for i in late]
    tp = {}

    def probe():
        a("buffer_load_dword v%d, v%d, s[4:7], s38 offen %s" % (G_T + 5, G_T + 6, SC))
        tp[0] = a.vt()

    def check():
        a.wait_vm(tp[0])
        a("v_cmp_ne_u32 vcc, v%d, v%d" % (V_TAG, G_T + 5))
        a("s_cbranch_vccz L_ffn2_go")
        keep = a.vm_issued
        poll(a, cfg, 38, G_T + 6, G_T + 4)
        a.vm_issued = keep
        a("L_ffn2_go:")
        if wb:
            a("s_lshr_b32 s17, s2, %d" % (3 if wb == 1 else 6))
            a("s_or_b32 s17, s17, s%d" % S_W)
            a("s_xor_b32 s18, s%d, 1" % S_LAYER)
            a("s_or_b32 s17, s17, s18")
            a("s_cmp_lg_u32 s17, 0")
            a("s_cbranch_scc1 L_ffn2_nowb")
            a("buffer_wbl2 sc1")
            a("L_ffn2_nowb:")
        stamp(a, cfg, 3)

    pp = cfg.get("probe_at", 16)
    gemm64_core(a, cfg, 28, lambda i: w2reg(0, i), lambda i: w2reg(1, i), hreg,
                lambda e: blk(a, hreg(e), SB1 if order[e][0] else SB0, order[e][1], SC), cfg.get('win2', 18), order=order,
                gate=(2 * len(early), probe, check, pp, pp), side=side, side_from=cfg.get('w2_side', 6), side_n=1,
                side2=wq_lines(), side2_from=cfg.get('wq_from', 32), dup_last=True, ramp=cfg.get('ramp2', 10), resid=True)
    res_epilogue(a, cfg, 2, "L_final")
    stamp(a, cfg, 10)
    publish(a, 39, [(34, 2048, 0), (35, 512, 0)])
    stamp(a, cfg, 11)


def final_store(a):
    a("v_permlane32_swap_b32 v%d, v%d" % (V_RES, V_RES + 2))
    a("v_permlane32_swap_b32 v%d, v%d" % (V_RES + 1, V_RES + 3))
    a("v_permlane32_swap_b32 v%d, v%d" % (V_RES + 4, V_RES + 6))
    a("v_permlane32_swap_b32 v%d, v%d" % (V_RES + 5, V_RES + 7))
    a("s_lshl_b32 s17, s%d, 15" % S_RT)
    a("s_lshl_b32 s18, s%d, 6" % S_NT)
    a("s_add_u32 s17, s17, s18")
    a("v_lshlrev_b32 v%d, 10, v%d" % (G_T + 2, V_R31))
    a("v_lshl_add_u32 v%d, v%d, 4, v%d" % (G_T + 2, V_H, G_T + 2))
    a("buffer_store_dwordx4 v[%d:%d], v%d, s[8:11], s17 offen" % (V_RES, V_RES + 3, G_T + 2))
    a("buffer_store_dwordx4 v[%d:%d], v%d, s[8:11], s17 offen offset:32" % (V_RES + 4, V_RES + 7, G_T + 2))


def st_begin(a, cfg):
    kern.stamp_init(a, cfg)


def st_end(a, cfg, k):
    if not cfg.get("stamps"):
        return
    stamp(a, cfg, NSTAMP - 1)
    a("s_memrealtime s[62:63]")
    a("s_waitcnt lgkmcnt(0)")
    a("s_mov_b32 s79, s62")
    a("s_mul_i32 s60, s3, 5\ns_add_u32 s60, s60, %d" % k)
    a("s_lshl_b32 s60, s60, 16")
    a("s_lshl_b32 s61, s2, 8")
    a("s_add_u32 s60, s60, s61")
    a("s_lshl_b32 s61, s12, 6")
    a("s_add_u32 s60, s60, s61")
    a("s_add_u32 s60, s60, 0x%x" % kern.OFF_STAMP)
    for i in range(16):
        a("v_writelane_b32 v199, s%d, %d" % (64 + i, i))
    a("s_mov_b32 exec_lo, 0xffff\ns_mov_b32 exec_hi, 0x0")
    a("buffer_store_dword v199, v%d, s[4:7], s60 offen" % V_L4)
    a("s_mov_b64 exec, -1")


def dbgt(a, cfg, k, last=False):
    if not cfg.get("dbgtime"):
        return
    L = a.newlabel("L_dt")
    a("s_cmp_lg_u32 s2, %d" % (cfg["dbgtime"] - 1))
    a("s_cbranch_scc1 %s" % L)
    a("s_memrealtime s[64:65]")
    a("s_memtime s[66:67]")
    a("s_mov_b32 s68, s98\ns_mov_b32 s69, s99\ns_mov_b32 s70, 256\ns_mov_b32 s71, 0x00020000")
    a("s_mul_i32 s72, s3, 20")
    a("s_waitcnt lgkmcnt(0)")
    a("s_sub_u32 s64, s64, s60")
    a("s_sub_u32 s66, s66, s62")
    a("v_mov_b32 v199, s64")
    a("buffer_store_dword v199, v%d, s[68:71], s72 offen offset:%d" % (V_ZERO, 4 + 4 * k))
    if last:
        a("v_mov_b32 v198, s66")
        a("buffer_store_dword v198, v%d, s[68:71], 0 offen offset:%d" % (V_ZERO, 4 * 13))
    a(L + ":")


KNAME = kern.NAME + "_kernel"


def build(cfg):
    rep = []
    DBL[0] = cfg.get("dbl", 0)
    TOUCH[0] = cfg.get("ptouch", 0)
    COMPACT[0] = cfg.get("compact", 1)
    DUAL[0] = False
    LSC[0] = cfg.get("lsc", "")
    RBW[0] = cfg.get("rbw", 0)
    LLD[0] = cfg.get("lld", "sc1")
    SPLIT_DMA[0] = not cfg.get("mix", 1)
    global OFF_WKV
    if COMPACT[0]:
        OFF_WKV = SU.OFF_WKV = C_WKV
    a = Asm()
    a("s_load_dwordx16 s[80:95], s[0:1], 0")
    a("s_load_dwordx2 s[96:97], s[0:1], 64")
    a("s_load_dwordx2 s[98:99], s[0:1], 80")
    kern.common_prologue(a, True)
    a("v_mov_b32 v%d, 0" % V_ZERO)
    a("v_mov_b32 v199, 0")
    a("v_lshlrev_b32 v%d, 7, v%d" % (V_L128, V_LANE))
    a("v_lshlrev_b32 v%d, 2, v%d" % (V_L4, V_LANE))
    a("s_lshr_b32 s17, s%d, 1" % S_W)
    a("s_and_b32 s18, s%d, 1" % S_W)
    a("s_lshl_b32 s%d, s%d, 1" % (S_NT, S_HQ))
    a("s_add_u32 s%d, s%d, s17" % (S_NT, S_NT))
    a("s_lshl_b32 s%d, s%d, 1" % (S_RT, S_RB))
    a("s_add_u32 s%d, s%d, s18" % (S_RT, S_RT))
    a("s_mov_b32 s%d, 0" % S_LAYER)
    if cfg.get("spin_limit"):
        a("s_mov_b32 s46, %d" % cfg["spin_limit"])
    if cfg.get("dbgtime"):
        a("s_memrealtime s[60:61]")
        a("s_memtime s[62:63]")
        a("s_waitcnt lgkmcnt(0)")
    st_begin(a, cfg)
    SU.startup(a, cfg, sys.modules[__name__])
    dbgt(a, cfg, 0)
    a_addr(a, S_Q0, S_Q1, OFF_WQ, 32, 8)
    a("s_lshl_b32 s%d, s%d, 13" % (S_KVW, S_W))
    a("s_add_u32 s%d, s%d, 0x%x" % (S_KVW, S_KVW, OFF_WKV))
    a("s_and_b32 s17, s2, 7")
    a("s_lshl_b32 s17, s17, 15")
    a("s_add_u32 s%d, s%d, s17" % (S_KVW, S_KVW))
    a("s_cmp_ge_u32 s%d, 4" % S_HQ)
    a("s_cselect_b32 s%d, s%d, s%d" % (S_KVW, S_Q0, S_KVW))
    st_end(a, cfg, 0)
    a("L_layer:")
    for k, ph in enumerate((phase_qkv, phase_att, phase_wo, phase_ffn1, phase_ffn2)):
        st_begin(a, cfg)
        ph(a, cfg)
        st_end(a, cfg, k + 1)
        dbgt(a, cfg, k + 1)
    a("s_mov_b32 s%d, 1" % S_LAYER)
    a("s_branch L_layer")
    a("L_final:")
    final_store(a)
    st_end(a, cfg, 5)
    dbgt(a, cfg, 5, True)
    a("L_exit:")
    a("s_endpgm")
    main_lines, _ = fix_hazards_fast(kern.uniq(a.lines, "main"), rep)

    pf = cfg.get("pfk", 0)
    if pf:
        b = Asm()
        b("s_cmp_ge_u32 s2, 256")
        b("s_cbranch_scc1 L_pf_end")
        b("s_load_dwordx16 s[16:31], s[0:1], 0")
        b("s_load_dwordx2 s[32:33], s[0:1], 64")
        b("s_getpc_b64 s[4:5]")
        b("L_pf_pc:")
        b("s_add_u32 s4, s4, L_code_begin-L_pf_pc")
        b("s_addc_u32 s5, s5, -1")
        b("s_lshr_b32 s6, s2, 3")
        b("s_and_b32 s7, s2, 7")
        b("s_lshl_b32 s8, s6, 11")
        b("v_lshlrev_b32 v1, 3, v0")
        b("v_add_u32 v1, s8, v1")
        b("v_min_u32 v1, L_code_end-L_code_begin-8, v1")
        b("global_load_dwordx2 v[2:3], v1, s[4:5]")
        if pf >= 2:
            b("v_lshlrev_b32 v1, 6, v0")
            b("s_lshl_b32 s8, s6, 14")
            b("v_add_u32 v4, s8, v1")
            b("s_lshl_b32 s9, s7, 18")
            b("s_lshl_b32 s10, s6, 13")
            b("s_add_u32 s9, s9, s10")
            b("v_lshlrev_b32 v5, 5, v0")
            b("v_add_u32 v5, s9, v5")
            b("s_mul_i32 s11, s2, 7168")
            b("v_mul_u32_u24 v6, 28, v0")
            b("v_add_u32 v6, s11, v6")
            b("s_lshl_b32 s11, s2, 11")
            b("v_lshlrev_b32 v7, 3, v0")
            b("v_add_u32 v7, s11, v7")
            b("s_waitcnt lgkmcnt(0)")
            b("global_load_dword v8, v4, s[18:19]")
            b("global_load_dword v9, v5, s[16:17]")
            b("global_load_dword v10, v1, s[20:21]")
            b("global_load_dword v11, v1, s[22:23]")
            b("global_load_dword v12, v6, s[28:29]")
            b("global_load_dword v13, v6, s[30:31]")
            b("global_load_dword v14, v6, s[32:33]")
            b("global_load_dword v15, v7, s[24:25]")
        b("L_pf_end:")
        b("s_endpgm")
        pfl, _ = fix_hazards_fast(["L_code_begin:", "L_code_end:"] + b.lines, rep)
        main_lines2 = [".p2align 8", "pf_kernel:"] + pfl[2:]
        s = "; @launch kernel=pf_kernel grid=(256,1,1) block=(256,1,1) lds=0\n"
        s += "; @launch kernel=%s grid=(256,1,1) block=(256,1,1) lds=%d\n" % (KNAME, 160 * 1024)
    else:
        main_lines2 = []
        s = "; @launch grid=(256,1,1) block=(256,1,1) lds=%d\n" % (160 * 1024)
    s += '.amdgcn_target "amdgcn-amd-amdhsa--gfx950"\n.text\n.globl %s\n.p2align 8\n.type %s,@function\n' % (KNAME, KNAME)
    s += "\n".join(["L_code_begin:", KNAME + ":"] + main_lines + ["L_code_end:"] + main_lines2) + "\n"
    s += '.section .rodata,"a"\n.p2align 6\n' + kernel_desc(KNAME, 512, 256, 102)
    if pf:
        s += ".p2align 6\n" + kernel_desc("pf_kernel", 16, 16, 40)
    return s, rep


if __name__ == "__main__":
    cfg = dict(code_prefetch=True)
    for kv in sys.argv[2:]:
        k, v = kv.split("=")
        cfg[k] = eval(v)
    s, rep = build(cfg)
    open(sys.argv[1], "w").write(s)
    print("auto nops:", sum(r[0] for r in rep), "sites", len(rep), "bytes of source", len(s))
    if cfg.get("verbose"):
        for r in rep:
            print(r)
```

```python
from asmlib import *
from layout import *
from kern import split3, stamp, S_W, S_RB, S_HQ, V_L16, V_LANE, V_R31, V_H

LROW = 192
LST = 96 * 1024
LCS = LST + 49152
PX, PWQ, PWK, PWV, PWO, PW1, PW3, PW2, PDBG = 80, 82, 84, 86, 88, 92, 94, 96, 98
D = 200
V_SO, V_SO2 = 232, 233
S_DST = 55
S_TASK = 56
FL_WQ = 0xE000
WKV_COPY = 0x8000


def startup(a, cfg, K):
    SC = K.SC
    RES = K.V_RES
    t0, t1, t2, t3, t4, t5 = 24, 25, 26, 241, 242, 243
    Q2, u8 = 56, 27
    ONES, CS = 32, 33
    R = 36
    QR = 88
    u0, u1, u2, u3, u4, u5, u6 = 234, 235, 236, 237, 238, 239, 240
    a("s_mov_b32 s36, s%d" % PDBG)
    a("s_mov_b32 s37, s%d" % (PDBG + 1))
    a("s_mov_b32 s38, 256")
    a("s_mov_b32 s39, 0x00020000")
    a("s_or_b32 s17, s2, s%d" % S_W)
    a("s_cmp_lg_u32 s17, 0")
    a("s_cbranch_scc1 L_s_notag")
    a("s_memrealtime s[18:19]")
    a("s_waitcnt lgkmcnt(0)")
    a("s_lshl_b32 s18, s18, 4")
    a("s_or_b32 s18, s18, 1")
    a("v_mov_b32 v%d, s18" % t0)
    a("s_mov_b64 exec, 3")
    a("buffer_store_dword v%d, v%d, s[36:39], 0 offen %s" % (t0, K.V_L128, SC))
    a("s_mov_b64 exec, -1")
    a("L_s_notag:")
    a("s_getpc_b64 s[18:19]")
    a("L_s_pc:")
    a("s_add_u32 s18, s18, L_code_begin-L_s_pc")
    a("s_addc_u32 s19, s19, -1")
    a("s_lshr_b32 s17, s2, 3")
    a("s_lshl_b32 s17, s17, 11")
    a("v_lshlrev_b32 v%d, 3, v0" % t0)
    a("v_add_u32 v%d, s17, v%d" % (t0, t0))
    a("v_min_u32 v%d, L_code_end-L_code_begin-8, v%d" % (t0, t0))
    a("global_load_dwordx2 v[254:255], v%d, s[18:19]" % t0)
    a("s_mov_b32 s40, s%d" % PX)
    a("s_mov_b32 s41, s%d" % (PX + 1))
    a("s_mov_b32 s42, %d" % (2048 * 512 * 2))
    a("s_mov_b32 s43, 0x00020000")
    a("s_lshl_b32 s17, s%d, 15" % K.S_RT)
    a("s_lshl_b32 s18, s%d, 6" % K.S_NT)
    a("s_add_u32 s17, s17, s18")
    a("v_lshlrev_b32 v%d, 10, v%d" % (t0, V_R31))
    a("v_lshl_add_u32 v%d, v%d, 4, v%d" % (t0, V_H, t0))
    a("buffer_load_dwordx4 v[%d:%d], v%d, s[40:43], s17 offen" % (RES, RES + 3, t0))
    a("buffer_load_dwordx4 v[%d:%d], v%d, s[40:43], s17 offen offset:32" % (RES + 4, RES + 7, t0))
    a("s_bitcmp1_b32 s%d, 0" % S_HQ)
    a("s_cselect_b32 s40, s%d, s%d" % (PWV, PWK))
    a("s_cselect_b32 s41, s%d, s%d" % (PWV + 1, PWK + 1))
    a("s_mov_b32 s42, %d" % (512 * 16 * 2))
    a("s_lshl_b32 s17, s%d, 12" % S_W)
    for p in range(4):
        a("buffer_load_dwordx4 v[%d:%d], v%d, s[40:43], s17 offen offset:%d" % (QR + 4 * p, QR + 4 * p + 3, V_L16, 1024 * p))
    a("s_mov_b32 s40, s%d\ns_mov_b32 s41, s%d\ns_mov_b32 s42, %d" % (PWQ, PWQ + 1, 512 * 512 * 2))
    a("v_lshrrev_b32 v%d, 3, v%d" % (u0, V_LANE))
    a("v_and_b32 v%d, 7, v%d" % (u1, V_LANE))
    a("v_lshlrev_b32 v%d, 10, v%d" % (u2, u0))
    a("v_lshl_add_u32 v%d, v%d, 4, v%d" % (u2, u1, u2))
    a("s_lshl_b32 s17, s%d, 17" % S_W)
    a("s_lshl_b32 s18, s%d, 7" % S_HQ)
    a("s_add_u32 s17, s17, s18")
    a("v_mov_b32 v%d, v%d" % (u6, u2))
    for p in range(8):
        a("buffer_load_dwordx4 v[%d:%d], v%d, s[40:43], s17 offen" % (QR + 16 + 4 * p, QR + 16 + 4 * p + 3, u6))
        a("s_add_u32 s17, s17, 8192")
    a("s_mov_b32 s54, s17")
    a("s_and_b32 s18, s%d, 1" % S_W)
    a("s_lshl_b32 s59, s18, 7")
    a("buffer_load_dword v%d, v%d, s[36:39], s59 offen %s" % (K.V_TAG, K.V_ZERO, SC))
    a("s_mul_i32 s18, s%d, %d" % (S_W, 128 * LROW))
    a("v_mul_u32_u24 v%d, %d, v%d" % (u2, LROW, u0))
    a("v_lshl_add_u32 v%d, v%d, 4, v%d" % (u2, u1, u2))
    a("v_add_u32 v%d, s18, v%d" % (u2, u2))
    a("v_lshrrev_b32 v%d, 1, v%d" % (u0, V_LANE))
    a("v_and_b32 v%d, 1, v%d" % (u1, V_LANE))
    a("v_mul_u32_u24 v%d, %d, v%d" % (u3, LROW, u0))
    a("v_lshl_add_u32 v%d, v%d, 4, v%d" % (u3, u1, u3))
    a("v_add_u32 v%d, s18, v%d" % (u3, u3))
    a("v_and_b32 v%d, 15, v%d" % (u0, V_LANE))
    a("v_lshrrev_b32 v%d, 2, v%d" % (u1, u0))
    a("v_lshl_add_u32 v%d, v%d, 2, v%d" % (u1, V_H, u1))
    a("v_mul_u32_u24 v%d, %d, v%d" % (u4, LROW, u1))
    a("v_and_b32 v%d, 3, v%d" % (u0, u0))
    a("v_lshl_add_u32 v%d, v%d, 3, v%d" % (u4, u0, u4))
    a("v_add_u32 v%d, s18, v%d" % (u4, u4))
    a("v_bfe_u32 v%d, v%d, 4, 1" % (u0, V_LANE))
    a("v_lshl_add_u32 v%d, v%d, 5, v%d" % (u5, u0, u4))
    a("s_lshr_b32 s18, s%d, 1" % S_W)
    a("s_lshl_b32 s18, s18, 6")
    a("v_add_u32 v%d, s18, v%d" % (u0, u5))
    a("s_xor_b32 s18, s18, 64")
    a("v_add_u32 v%d, s18, v%d" % (u1, u5))

    a("s_lshr_b32 s20, s2, 3")
    a("s_and_b32 s21, s2, 7")
    a("v_lshrrev_b32 v%d, 3, v0" % t1)
    a("v_and_b32 v%d, 7, v0" % t2)
    a("v_mul_u32_u24 v%d, %d, v%d" % (t4, LROW, t1))
    a("v_lshl_add_u32 v%d, v%d, 4, v%d" % (t4, t2, t4))
    a("v_add_u32 v%d, %d, v%d" % (t4, LST, t4))
    a("v_mov_b32 v%d, v%d" % (V_SO, V_L16))
    a("s_mov_b32 s50, 0")
    a("s_mov_b32 s24, 32768")
    a("s_mov_b32 s25, 1024")
    a("s_mov_b32 s46, %d" % (512 * 512 * 2))
    a("s_mov_b32 s%d, 2" % S_TASK)
    a("s_mov_b32 s47, 0x00020000")
    a("s_lshr_b32 s26, s20, 3")
    a("s_and_b32 s17, s20, 0x17")
    a("s_cmp_eq_u32 s17, 4")
    a("s_cbranch_scc1 L_s_wkv")
    a("s_cmp_eq_u32 s17, 5")
    a("s_cbranch_scc1 L_s_wq")
    a("s_lshl_b32 s17, s26, 2")
    a("s_add_u32 s27, s17, s%d" % S_HQ)
    a("s_add_u32 s18, s27, 12")
    a("s_sub_u32 s19, s27, 8")
    a("s_lshl_b32 s17, s26, 1")
    a("s_add_u32 s17, s17, s%d" % S_HQ)
    a("s_sub_u32 s17, s17, 6")
    a("s_cmp_lt_u32 s26, 2")
    a("s_cselect_b32 s27, s17, s19")
    a("s_cmp_lt_u32 s%d, 4" % S_HQ)
    a("s_cselect_b32 s27, s18, s27")
    a("s_lshl_b32 s27, s27, 3")
    a("s_add_u32 s27, s27, s21")
    a("s_and_b32 s26, s27, 1")
    a("s_cmp_lt_u32 s27, 112")
    a("s_cbranch_scc1 L_s_w13")
    a("s_cmp_lt_u32 s27, 168")
    a("s_cbranch_scc1 L_s_w2")
    a("s_cmp_lt_u32 s27, 184")
    a("s_cbranch_scc1 L_s_wo")
    a("s_mov_b32 s%d, 0" % S_TASK)
    a("s_mov_b32 s%d, 0xf0000000" % S_DST)
    a("s_mov_b32 s44, s%d\ns_mov_b32 s45, s%d" % (PWQ, PWQ + 1))
    a("s_mov_b32 s48, 0\ns_mov_b32 s49, 0\ns_mov_b32 s52, 0")
    a("v_mov_b32 v%d, 0" % t3)
    a("s_branch L_s_loaded")
    a("L_s_wq:")
    a("s_mov_b32 s%d, 1" % S_TASK)
    a("s_mov_b32 s44, s%d\ns_mov_b32 s45, s%d" % (PWQ, PWQ + 1))
    a("s_mov_b32 s28, s21")
    a("s_mov_b32 s%d, 0x%x" % (S_DST, OFF_WQ))
    a("s_lshl_b32 s50, s28, 11")
    a("s_lshl_b32 s17, s26, 9")
    a("s_add_u32 s50, s50, s17")
    a("s_add_u32 s50, s50, 0x%x" % OFF_CSQX)
    a("s_lshl_b32 s29, s28, 5")
    a("s_lshl_b32 s17, s26, 4")
    a("s_add_u32 s29, s29, s17")
    a("s_add_u32 s29, s29, 0x%x" % (OFF_FLAGS + FL_WQ))
    a("s_branch L_s_qo")
    a("L_s_wo:")
    a("s_mov_b32 s44, s%d\ns_mov_b32 s45, s%d" % (PWO, PWO + 1))
    a("s_sub_u32 s28, s27, 168")
    a("s_lshr_b32 s28, s28, 1")
    a("s_mov_b32 s%d, 0x%x" % (S_DST, OFF_WO))
    a("L_s_qo:")
    a("s_lshl_b32 s48, s26, 18")
    a("s_lshl_b32 s17, s28, 7")
    a("s_add_u32 s48, s48, s17")
    a("s_lshl_b32 s17, s28, 16")
    a("s_add_u32 s%d, s%d, s17" % (S_DST, S_DST))
    a("s_lshl_b32 s17, s26, 14")
    a("s_add_u32 s%d, s%d, s17" % (S_DST, S_DST))
    a("s_branch L_s_go")
    a("L_s_w2:")
    a("s_sub_u32 s27, s27, 112")
    a("s_and_b32 s28, s27, 7")
    a("s_lshr_b32 s27, s27, 3")
    a("s_mov_b32 s44, s%d\ns_mov_b32 s45, s%d\ns_mov_b32 s46, %d" % (PW2, PW2 + 1, 1792 * 512 * 2))
    a("s_lshl_b32 s48, s27, 18")
    a("s_lshl_b32 s17, s28, 7")
    a("s_add_u32 s48, s48, s17")
    a("s_mov_b32 s24, %d" % (112 * 1024))
    a("s_mul_i32 s%d, s28, %d" % (S_DST, 2 * 112 * 1024))
    a("s_lshl_b32 s17, s27, 14")
    a("s_add_u32 s%d, s%d, s17" % (S_DST, S_DST))
    a("s_add_u32 s%d, s%d, 0x%x" % (S_DST, S_DST, OFF_W2))
    a("s_branch L_s_go")
    a("L_s_w13:")
    a("s_bfe_u32 s29, s27, 0x10001")
    a("s_lshr_b32 s28, s27, 2")
    a("s_cmp_eq_u32 s29, 0")
    a("s_cselect_b32 s44, s%d, s%d" % (PW1, PW3))
    a("s_cselect_b32 s45, s%d, s%d" % (PW1 + 1, PW3 + 1))
    a("s_mov_b32 s46, %d" % (512 * 1792 * 2))
    a("s_mov_b32 s25, 3584")
    a("s_mul_i32 s48, s26, %d" % (256 * 3584))
    a("s_lshl_b32 s17, s28, 7")
    a("s_add_u32 s48, s48, s17")
    a("s_mov_b32 s24, 65536")
    a("s_lshl_b32 s%d, s28, 17" % S_DST)
    a("s_lshl_b32 s17, s26, 14")
    a("s_add_u32 s%d, s%d, s17" % (S_DST, S_DST))
    a("s_lshl_b32 s17, s29, 8")
    a("s_add_u32 s%d, s%d, s17" % (S_DST, S_DST))
    a("s_add_u32 s%d, s%d, 0x%x" % (S_DST, S_DST, OFF_W13))
    a("s_lshl_b32 s50, s28, 12")
    a("s_add_u32 s50, s50, s17")
    a("s_lshl_b32 s17, s26, 9")
    a("s_add_u32 s50, s50, s17")
    a("s_add_u32 s50, s50, 0x%x" % OFF_CSX)
    a("v_and_b32 v%d, 15, v%d" % (V_SO, V_LANE))
    a("v_lshlrev_b32 v%d, 4, v%d" % (V_SO, V_SO))
    a("v_lshl_add_u32 v%d, v%d, 9, v%d" % (V_SO, V_H, V_SO))
    a("v_bfe_u32 v%d, v%d, 4, 1" % (t5, V_LANE))
    a("v_lshl_add_u32 v%d, v%d, 15, v%d" % (V_SO, t5, V_SO))
    a("L_s_go:")
    a("v_mul_lo_u32 v%d, v%d, s25" % (t3, t1))
    a("v_lshl_add_u32 v%d, v%d, 4, v%d" % (t3, t2, t3))
    a("s_lshl_b32 s49, s25, 5")
    a("s_mov_b32 s52, -1")
    a("s_lshr_b32 s17, s%d, 1" % S_W)
    a("s_and_b32 s18, s%d, 1" % S_W)
    a("s_mul_i32 s19, s17, s24")
    a("s_add_u32 s%d, s%d, s19" % (S_DST, S_DST))
    a("s_lshl_b32 s19, s18, 13")
    a("s_add_u32 s%d, s%d, s19" % (S_DST, S_DST))
    a("s_lshl_b32 s17, s17, 6")
    a("s_mul_i32 s18, s18, %d" % (128 * LROW))
    a("s_add_u32 s33, s17, s18")
    a("v_bfe_u32 v%d, v%d, 4, 1" % (t1, V_LANE))
    a("v_lshlrev_b32 v%d, 5, v%d" % (t1, t1))
    a("s_branch L_s_common")
    a("L_s_wkv:")
    a("s_mov_b32 s%d, 1" % S_TASK)
    a("s_cmp_eq_u32 s26, 0")
    a("s_cselect_b32 s44, s%d, s%d" % (PWV, PWK))
    a("s_cselect_b32 s45, s%d, s%d" % (PWV + 1, PWK + 1))
    a("s_mov_b32 s46, %d" % (512 * 16 * 2))
    a("v_lshrrev_b32 v%d, 1, v0" % t1)
    a("v_and_b32 v%d, 1, v0" % t2)
    a("v_mul_u32_u24 v%d, %d, v%d" % (t4, LROW, t1))
    a("v_lshl_add_u32 v%d, v%d, 4, v%d" % (t4, t2, t4))
    a("v_add_u32 v%d, %d, v%d" % (t4, LST, t4))
    a("v_lshlrev_b32 v%d, 4, v0" % t3)
    a("s_mov_b32 s48, 0")
    a("s_mov_b32 s49, 4096")
    a("s_mov_b32 s52, 0x3fff")
    a("v_and_b32 v%d, 15, v%d" % (V_SO, V_LANE))
    a("v_lshlrev_b32 v%d, 4, v%d" % (V_SO, V_SO))
    a("v_lshl_add_u32 v%d, v%d, 9, v%d" % (V_SO, V_H, V_SO))
    a("s_mul_i32 s%d, s21, 0x%x" % (S_DST, WKV_COPY))
    a("s_lshl_b32 s17, s%d, 13" % S_W)
    a("s_add_u32 s%d, s%d, s17" % (S_DST, S_DST))
    a("s_lshl_b32 s17, s26, 8")
    a("s_add_u32 s%d, s%d, s17" % (S_DST, S_DST))
    a("s_add_u32 s%d, s%d, 0x%x" % (S_DST, S_DST, OFF_WKV))
    a("s_lshl_b32 s29, s21, 7")
    a("s_lshl_b32 s17, s26, 4")
    a("s_add_u32 s29, s29, s17")
    a("s_add_u32 s29, s29, 0x%x" % (OFF_FLAGS + FL_WQ + 0x800))
    a("s_lshl_b32 s33, s%d, 5" % S_W)
    a("v_mov_b32 v%d, 0" % t1)
    a("s_mov_b32 s%d, 3" % S_TASK)
    a("L_s_common:")
    a("v_and_b32 v%d, 15, v%d" % (t2, V_LANE))
    a("v_lshrrev_b32 v%d, 2, v%d" % (u8, t2))
    a("v_lshl_add_u32 v%d, v%d, 2, v%d" % (u8, V_H, u8))
    a("v_mul_u32_u24 v%d, %d, v%d" % (t5, LROW, u8))
    a("v_and_b32 v%d, 3, v%d" % (t2, t2))
    a("v_lshl_add_u32 v%d, v%d, 3, v%d" % (t5, t2, t5))
    a("v_add_u32 v%d, v%d, v%d" % (t5, t1, t5))
    a("s_add_u32 s33, s33, %d" % LST)
    a("v_add_u32 v%d, s33, v%d" % (t5, t5))
    a("L_s_loaded:")
    a("s_mov_b32 s51, s29")

    rq = lambda j: QR + 4 * j if j < 12 else Q2 + 4 * (j - 12)

    def raw_stage(j0, j1, last, extra):
        for j in range(j0, j1):
            if (j - j0) % 2 == 0:
                a("s_waitcnt vmcnt(%d)" % (last - j - 1 + extra))
            if j < 4:
                a("ds_write_b128 v%d, v[%d:%d] offset:%d" % (u3, QR + 4 * j, QR + 4 * j + 3, 128 + 32 * LROW * j))
            else:
                a("ds_write_b128 v%d, v[%d:%d] offset:%d" % (u2, rq(j), rq(j) + 3, 8 * LROW * (j - 4)))

    def xflag(tagn, cnt):
        a("s_waitcnt vmcnt(%d)" % cnt)
        a("L_s_tg%d:" % tagn)
        a("v_cmp_ne_u32 vcc, 0, v%d" % K.V_TAG)
        a("s_cbranch_vccnz L_s_tagok%d" % tagn)
        if cfg.get("spin_limit"):
            a("s_sub_u32 s101, s101, 1")
            a("s_cbranch_scc1 L_s_tagok%d" % tagn)
        a("s_sleep 2")
        a("buffer_load_dword v%d, v%d, s[36:39], s59 offen %s" % (K.V_TAG, K.V_ZERO, SC))
        a("s_waitcnt vmcnt(0)")
        a("s_branch L_s_tg%d" % tagn)
        a("L_s_tagok%d:" % tagn)
        a("s_mov_b64 exec, 1")
        a("buffer_store_dword v%d, v%d, s[4:7], s58 offen %s" % (K.V_TAG, K.V_ZERO, SC))
        a("s_mov_b64 exec, -1")
        stamp(a, cfg, 4)


    stamp(a, cfg, 1)
    a("s_waitcnt vmcnt(13)")
    stamp(a, cfg, 2)
    a("v_permlane32_swap_b32 v%d, v%d" % (RES, RES + 2))
    a("v_permlane32_swap_b32 v%d, v%d" % (RES + 1, RES + 3))
    a("v_permlane32_swap_b32 v%d, v%d" % (RES + 4, RES + 6))
    a("v_permlane32_swap_b32 v%d, v%d" % (RES + 5, RES + 7))
    K.out_addr(a, 0)
    K.st4(a, RES, V_L16, 34)
    K.store_x_tail(a)
    K.xin_flag_addr(a, 58, True, 0)
    raw_stage(0, 12, 11, 1)
    a("s_waitcnt lgkmcnt(0)")
    for i in range(8):
        a("ds_read_b64_tr_b16 a[%d:%d], v%d offset:%d" % (128 + 4 * i, 129 + 4 * i, u4, 128 + 16 * LROW * i))
        a("ds_read_b64_tr_b16 a[%d:%d], v%d offset:%d" % (130 + 4 * i, 131 + 4 * i, u4, 128 + 16 * LROW * i + 8 * LROW))
    xflag(0, 0)

    def bulk(sfx):
        for p in range(8, 16):
            a("buffer_load_dwordx4 v[%d:%d], v%d, s[40:43], s54 offen" % (Q2 + 4 * (p - 8), Q2 + 4 * (p - 8) + 3, u6))
            a("s_add_u32 s54, s54, 8192")
        for p in range(8):
            a("buffer_load_dwordx4 v[%d:%d], v%d, s[44:47], s48 offen" % (D + 4 * p, D + 4 * p + 3, t3))
            a("s_add_u32 s48, s48, s49")
            a("s_and_b32 s48, s48, s52")

    K.kv_layer0(a, cfg, bulk)
    a("v_add_u32 v%d, 4096, v%d" % (V_SO2, V_SO))
    raw_stage(12, 20, 19, 8)
    a("s_waitcnt lgkmcnt(0)")
    for j, ua in ((160, u0), (192, u1)):
        for i in range(8):
            a("ds_read_b64_tr_b16 a[%d:%d], v%d offset:%d" % (j + 4 * i, j + 1 + 4 * i, ua, 16 * LROW * i))
            a("ds_read_b64_tr_b16 a[%d:%d], v%d offset:%d" % (j + 2 + 4 * i, j + 3 + 4 * i, ua, 16 * LROW * i + 8 * LROW))
    stamp(a, cfg, 7)
    a("s_cmp_eq_u32 s%d, 0" % S_TASK)
    a("s_cbranch_scc1 L_s_xpub")
    a("s_barrier")
    a("s_cmp_eq_u32 s%d, 3" % S_TASK)
    a("s_cbranch_scc1 L_s_kvw")
    for p in range(8):
        a("s_waitcnt vmcnt(%d)" % (7 - p))
        a("ds_write_b128 v%d, v[%d:%d] offset:%d" % (t4, D + 4 * p, D + 4 * p + 3, 32 * LROW * p))
    a("s_branch L_s_xpub")
    a("L_s_kvw:")
    for p in range(4):
        a("s_waitcnt vmcnt(%d)" % (7 - p))
        a("ds_write_b128 v%d, v[%d:%d] offset:%d" % (t4, D + 4 * p, D + 4 * p + 3, 32 * p))
    a("s_waitcnt vmcnt(0)")
    a("L_s_xpub:")
    stamp(a, cfg, 3)

    a("s_cmp_eq_u32 s%d, 0" % S_TASK)
    a("s_cbranch_scc1 L_s_done")
    a("L_s_tr:")
    a("s_waitcnt lgkmcnt(0)")
    a("s_barrier")
    for i in range(8):
        a("ds_read_b64_tr_b16 v[%d:%d], v%d offset:%d" % (D + 4 * i, D + 4 * i + 1, t5, 16 * LROW * i))
        a("ds_read_b64_tr_b16 v[%d:%d], v%d offset:%d" % (D + 4 * i + 2, D + 4 * i + 3, t5, 16 * LROW * i + 8 * LROW))
    a("s_cmp_eq_u32 s%d, 2" % S_TASK)
    a("s_cbranch_scc1 L_s_nost")
    for i in range(8):
        a("s_waitcnt lgkmcnt(%d)" % min(15, 14 - 2 * i))
        a("buffer_store_dwordx4 v[%d:%d], v%d, s[4:7], s%d offen offset:%d %s" % (D + 4 * i, D + 4 * i + 3, V_SO if i < 4 else V_SO2, S_DST, (i % 4) * 1024, SC))
    a("s_mov_b32 s%d, 0xf0000000" % S_DST)
    a("L_s_nost:")
    a("s_cmp_eq_u32 s%d, 3" % S_TASK)
    a("s_cbranch_scc1 L_s_pub")
    a("s_cmp_eq_u32 s50, 0")
    a("s_cbranch_scc1 L_s_done")
    a("v_mov_b32 v%d, 0x3f803f80" % ONES)
    a("v_mov_b32 v%d, 0" % CS)
    a("s_waitcnt lgkmcnt(0)")
    for r in range(32):
        a("v_dot2_f32_bf16 v%d, v%d, v%d, v%d" % (CS, D + r, ONES, CS))
    a("v_lshlrev_b32 v%d, 2, v0" % t0)
    a("v_add_u32 v%d, %d, v%d" % (t0, LCS, t0))
    a("ds_write_b32 v%d, v%d" % (t0, CS))
    a("s_waitcnt lgkmcnt(0)")
    a("s_barrier")
    a("s_and_b32 s17, s%d, 2" % S_W)
    a("s_lshl_b32 s17, s17, 8")
    a("s_add_u32 s17, s17, %d" % LCS)
    a("v_lshlrev_b32 v%d, 2, v%d" % (t0, V_R31))
    a("v_add_u32 v%d, s17, v%d" % (t1, t0))
    for q in range(4):
        a("ds_read_b32 v%d, v%d offset:%d" % (R + q, t1, 128 * q))
    a("s_waitcnt lgkmcnt(0)")
    a("v_add_f32 v%d, v%d, v%d" % (R, R, R + 1))
    a("v_add_f32 v%d, v%d, v%d" % (R + 2, R + 2, R + 3))
    a("v_add_f32 v%d, v%d, v%d" % (R, R, R + 2))
    split3(a, R, R + 4)
    a("v_lshrrev_b32 v%d, 16, v%d" % (R + 1, R + 4))
    a("v_or_b32 v%d, v%d, v%d" % (R + 8, R + 1, R + 4))
    a("v_lshrrev_b32 v%d, 16, v%d" % (R + 1, R + 5))
    a("v_or_b32 v%d, v%d, v%d" % (R + 9, R + 1, R + 4))
    a("v_lshrrev_b32 v%d, 16, v%d" % (R + 1, R + 6))
    a("v_or_b32 v%d, v%d, v%d" % (R + 10, R + 1, R + 5))
    a("v_mov_b32 v%d, 0" % (R + 11))
    a("v_and_b32 v%d, 15, v%d" % (t0, V_LANE))
    a("v_lshlrev_b32 v%d, 4, v%d" % (t0, t0))
    a("v_bfe_u32 v%d, v%d, 4, 1" % (t1, V_LANE))
    a("s_cmp_eq_u32 s%d, 1" % S_TASK)
    a("s_cselect_b32 s18, 8, 10")
    a("s_cselect_b32 s19, 10, 11")
    a("v_lshlrev_b32 v%d, s18, v%d" % (t1, t1))
    a("v_add_u32 v%d, v%d, v%d" % (t0, t1, t0))
    a("s_lshr_b32 s17, s%d, 1" % S_W)
    a("s_lshl_b32 s17, s17, s19")
    a("s_add_u32 s50, s50, s17")
    a("s_mov_b32 exec_hi, 0")
    a("buffer_store_dwordx4 v[%d:%d], v%d, s[4:7], s50 offen %s" % (R + 8, R + 11, t0, SC))
    a("s_mov_b32 exec_hi, -1")
    a("s_cmp_eq_u32 s%d, 2" % S_TASK)
    a("s_cbranch_scc1 L_s_done")
    a("L_s_pub:")
    a("s_lshl_b32 s17, s%d, 2" % S_W)
    a("s_add_u32 s51, s51, s17")
    a("v_lshlrev_b32 v%d, 8, v%d" % (t1, V_LANE))
    a("s_cmp_eq_u32 s%d, 1" % S_TASK)
    a("s_cselect_b32 s17, 0xff, 1")
    a("s_waitcnt vmcnt(0)")
    a("s_mov_b32 exec_hi, 0")
    a("s_mov_b32 exec_lo, s17")
    a("buffer_store_dword v%d, v%d, s[4:7], s51 offen %s" % (K.V_TAG, t1, SC))
    a("s_mov_b64 exec, -1")
    a("L_s_done:")
    a("s_waitcnt lgkmcnt(0)")
    stamp(a, cfg, 5)
    a("s_barrier")
    stamp(a, cfg, 6)


def probe_addr(a, K, v0, v1, sdst):
    a("v_and_b32 v%d, 28, v%d" % (v0, K.V_L4))
    a("v_bfe_u32 v%d, v%d, 3, 1" % (v1, V_LANE))
    a("s_and_b32 s19, s2, 7")
    a("s_lshl_b32 s17, s%d, 5" % S_HQ)
    a("s_lshl_b32 s18, s19, 8")
    a("s_add_u32 s17, s17, s18")
    a("s_lshl_b32 s18, s19, 7")
    a("s_add_u32 s18, s18, 0x800")
    a("s_sub_u32 s18, s18, s17")
    a("v_mul_lo_u32 v%d, v%d, s18" % (v1, v1))
    a("v_add_u32 v%d, v%d, v%d" % (v0, v0, v1))
    a("s_add_u32 s%d, s17, 0x%x" % (sdst, OFF_FLAGS + FL_WQ))


def deferred_store_groups(K):
    return [["buffer_store_dwordx4 v[%d:%d], v%d, s[4:7], s%d offen offset:%d %s" % (D + 4 * i, D + 4 * i + 3, V_SO if i < 4 else V_SO2, S_DST, (i % 4) * 1024, K.SC)]
            for i in range(8)]
```

```python
import sys
from asmlib import *
from layout import *
import kern
import startup as SU
from kern import (split3, fl, MF, S_LAYER, S_W, S_RB, S_HQ, S_RG, S_M, V_L16, V_LANE, V_R31, V_H, V_OFF, xhalf_sum,
                  load_stats, finish_stats, pack8, stamp, kernel_desc, prep, NSTAMP)

SC = "sc1"


COMPACT = [1]
CMAP = {OFF_X: 0x800000, OFF_O: 0xC00000, OFF_H: 0xE00000, OFF_STAT: OFF_STAT}
C_WKV = 0x780000
C_END = 0x1500000


def layer_off(a, sdst, base, stride, mul=1, add=0):
    if COMPACT[0] and base in CMAP:
        a("s_mov_b32 s%d, 0x%x" % (sdst, CMAP[base] + (add & 1) * stride))
    else:
        kern.layer_off(a, sdst, base, stride, mul, add)


LLD = ["sc1"]


def blk(a, dst, sbase, i, sc=None):
    kern.blk(a, dst, sbase, i, LLD[0] if sc else SC)


FL_O = 0x0000
FL_X1 = 0x2000
FL_H = 0x8000
FL_XIN = 0x6000
OFF_FLW = 0x64C000
FL_KV = 0x640000 - OFF_FLAGS

S_RT, S_NT = 31, 32
S_FO, S_FX1, S_FH = 40, 41, 42
S_W13, S_WL = 47, 48
S_RET = 44
V_RES = 12
V_TAG = 11
V_L4 = 20
V_ZERO = 21
VB = 24

G_ACC = 24
G_RED = 88
G_ST = 136
G_CS = 152
G_T = 168
V_WR = [184, 185, 186]
V_RD = 187
V_NMU, V_RSTD = 188, 189
G_KVACC = 88
G_Q = 190
W2V = 200

LDS_R1 = 96 * 1024
LDS_RQ = 0
LDS_KVX = 49152
LDS_CSX = 69632
LDS_CS = 152 * 1024
LDS_E = 128 * 1024


DBL = [0]
LSC = ["sc1"]
S_LOC = 57
DUAL = [False]
_dl = [0]


def lstore(text):
    lines = text if isinstance(text, list) else [text]
    if not DUAL[0]:
        return [l + " sc1" for l in lines]
    _dl[0] += 1
    n = _dl[0]
    return (["s_cbranch_scc1 L_ls%da ; needs scc" % n] + [l + " sc1" for l in lines] + ["s_branch L_ls%db" % n, "L_ls%da:" % n] +
            ["!" + l + " " + LSC[0] for l in lines] + ["L_ls%db:" % n])


def emit_l(a, text):
    out = lstore(text)
    if DUAL[0]:
        a("s_cmp_lg_u32 s%d, 0" % S_LOC)
    for l in out:
        if l.startswith("!"):
            a(l[1:])
        else:
            a(l)


def st4(a, data, voff, soff, imm=0):
    emit_l(a, "buffer_store_dwordx4 v[%d:%d], v%d, s[4:7], s%d offen offset:%d" % (data, data + 3, voff, soff, imm))
    if DBL[0]:
        a("buffer_store_dwordx4 v[%d:%d], v%d, s[4:7], s%d offen offset:%d" % (data, data + 3, voff, soff, imm))


TOUCH = [1]
V_L128 = 23
V_P2 = 199


V_L64 = 22


RBW = [0]


def readback(a, regions, final=False):
    if not DUAL[0]:
        return
    L = a.newlabel("L_rb")
    keep = a.vm_issued
    a("s_cmp_eq_u32 s%d, 0" % S_LOC)
    a("s_cbranch_scc1 %s" % L)
    a("v_lshlrev_b32 v%d, 6, v%d" % (V_L64, V_LANE))
    if RBW[0] and final:
        a("s_waitcnt vmcnt(0)")
    for sg, nb, imm in regions:
        n = nb // 64
        assert n <= 64
        a("s_mov_b32 exec_lo, 0x%x" % (((1 << n) - 1) & 0xffffffff))
        a("s_mov_b32 exec_hi, 0x%x" % (((1 << n) - 1) >> 32))
        a("buffer_load_dword v%d, v%d, s[4:7], s%d offen offset:%d %s" % (V_P2, V_L64, sg, imm, LLD[0]))
    a(L + ":")
    a.vm_issued = keep


def publish(a, s_addr, regions, imm=0, between=()):
    readback(a, regions, True)
    if between:
        a("s_mov_b64 exec, -1")
        for x in between:
            a(x)
    a("s_waitcnt vmcnt(0)")
    a("s_mov_b64 exec, 1")
    emit_l(a, "buffer_store_dword v%d, v%d, s[4:7], s%d offen offset:%d" % (V_TAG, V_ZERO, s_addr, imm))
    a("s_mov_b64 exec, -1")


def poll(a, cfg, s_addr, voff, vtmp, wide=False, imm=0, sleep=0):
    L = a.newlabel("L_poll")
    if cfg.get("spin_limit"):
        a("s_mov_b32 s101, %d" % cfg["spin_limit"])
    if cfg.get("ppoll", 0) and not wide and not sleep:
        ld = lambda r: a("buffer_load_dword v%d, v%d, s[4:7], s%d offen offset:%d %s" % (r, voff, s_addr, imm, SC))
        ld(vtmp)
        a("s_sleep %d" % cfg.get("ppoll_gap", 2))
        a(L + ":")
        ld(V_P2)
        a("s_waitcnt vmcnt(1)")
        a("v_cmp_ne_u32 vcc, v%d, v%d" % (V_TAG, vtmp))
        a("s_cbranch_vccz %s_out" % L)
        ld(vtmp)
        a("s_waitcnt vmcnt(1)")
        if cfg.get("spin_limit"):
            a("s_sub_u32 s101, s101, 1")
            a("s_cbranch_scc1 %s_out" % L)
        a("v_cmp_ne_u32 vcc, v%d, v%d" % (V_TAG, V_P2))
        a("s_cbranch_vccnz %s" % L)
        a.vm_issued -= 1
        a(L + "_out:")
        return
    a(L + ":")
    if wide:
        a("buffer_load_dwordx4 v[%d:%d], v%d, s[4:7], s%d offen %s" % (vtmp, vtmp + 3, voff, s_addr, SC))
        a("s_waitcnt vmcnt(0)")
        a("v_cmp_ne_u32 s[18:19], v%d, v%d" % (V_TAG, vtmp + 2))
        a("v_cndmask_b32 v%d, v%d, v%d, s[18:19]" % (vtmp, vtmp, V_ZERO))
        a("v_cmp_ne_u32 s[18:19], v%d, v%d" % (V_TAG, vtmp + 3))
        a("v_cndmask_b32 v%d, v%d, v%d, s[18:19]" % (vtmp, vtmp, V_ZERO))
    else:
        a("buffer_load_dword v%d, v%d, s[4:7], s%d offen offset:%d %s" % (vtmp, voff, s_addr, imm, SC))
        a("s_waitcnt vmcnt(0)")
    if cfg.get("spin_limit"):
        a("s_sub_u32 s101, s101, 1")
        a("s_cbranch_scc1 %s_out" % L)
    a("v_cmp_ne_u32 vcc, v%d, v%d" % (V_TAG, vtmp))
    if sleep:
        a("s_cbranch_vccz %s_out" % L)
        a("s_sleep %d" % sleep)
        a("s_branch %s" % L)
    else:
        a("s_cbranch_vccnz %s" % L)
    a(L + "_out:")


def lane_pat(a, vdst, mask, hi_shift, lo_mul):
    a("v_and_b32 v%d, %d, v%d" % (vdst, mask & ~1, V_LANE))
    a("v_lshlrev_b32 v%d, 3, v%d" % (vdst, vdst))
    a("v_and_b32 v%d, 1, v%d" % (vdst + 1, V_LANE))
    a("v_lshl_add_u32 v%d, v%d, %d, v%d" % (vdst, vdst + 1, lo_mul, vdst))


def flag_addr(a, sdst, base, s_grp, grp_shift, s_mem=None, per_layer=0x1000):
    a("s_mul_i32 s%d, s%d, 0x%x" % (sdst, S_LAYER, per_layer))
    a("s_add_u32 s%d, s%d, 0x%x" % (sdst, sdst, OFF_FLAGS + base))
    a("s_lshl_b32 s17, s%d, %d" % (s_grp, grp_shift))
    a("s_add_u32 s%d, s%d, s17" % (sdst, sdst))
    if s_mem is not None:
        a("s_lshl_b32 s17, s%d, 4" % s_mem)
        a("s_add_u32 s%d, s%d, s17" % (sdst, sdst))
        a("s_lshl_b32 s17, s%d, 2" % S_W)
        a("s_add_u32 s%d, s%d, s17" % (sdst, sdst))


def xin_flag_addr(a, sdst, own, layer_add):
    flag_addr(a, sdst, FL_XIN + 0x1000 * layer_add, S_RB, 7, S_HQ if own else None)


def a_addr(a, s_a0, s_a1, offA, ksA, ksw):
    a("s_mul_i32 s20, s%d, %d" % (S_W, ksw * 1024))
    a("s_mul_i32 s%d, s%d, %d" % (s_a0, S_NT, ksA * 1024))
    a("s_add_u32 s%d, s%d, s20" % (s_a0, s_a0))
    a("s_add_u32 s%d, s%d, 0x%x" % (s_a0, s_a0, offA))
    a("s_xor_b32 s21, s%d, 1" % S_NT)
    a("s_mul_i32 s%d, s21, %d" % (s_a1, ksA * 1024))
    a("s_add_u32 s%d, s%d, s20" % (s_a1, s_a1))
    a("s_add_u32 s%d, s%d, 0x%x" % (s_a1, s_a1, offA))


def b_addr(a, s_b0, s_b1, s_base, ksB, ksw):
    a("s_mul_i32 s20, s%d, %d" % (S_W, ksw * 1024))
    a("s_add_u32 s20, s20, s%d" % s_base)
    a("s_mul_i32 s%d, s%d, %d" % (s_b0, S_RT, ksB * 1024))
    a("s_add_u32 s%d, s%d, s20" % (s_b0, s_b0))
    a("s_xor_b32 s21, s%d, 1" % S_RT)
    a("s_mul_i32 s%d, s21, %d" % (s_b1, ksB * 1024))
    a("s_add_u32 s%d, s%d, s20" % (s_b1, s_b1))


def reduce_addr(a, base):
    for j in (1, 2, 3):
        a("s_xor_b32 s17, s%d, %d" % (S_W, j))
        a("s_mul_i32 s17, s17, 12288")
        a("s_add_u32 s17, s17, %d" % (base + (j - 1) * 4096))
        a("v_add_u32 v%d, s17, v%d" % (V_WR[j - 1], V_L16))
    a("s_mul_i32 s17, s%d, 12288" % S_W)
    a("s_add_u32 s17, s17, %d" % base)
    a("v_add_u32 v%d, s17, v%d" % (V_RD, V_L16))


def mf(a, d, x, y, c):
    a("%s v[%d:%d], %s, %s, %s" % (MF, d, d + 15, x, y, c))


def wr_tile(a, j):
    for q in range(4):
        r = G_ACC + 16 * j + 4 * q
        a("ds_write_b128 v%d, v[%d:%d] offset:%d" % (V_WR[j - 1], r, r + 3, q * 1024))


def rd_tile(a, j, dst):
    for q in range(4):
        a("ds_read_b128 v[%d:%d], v%d offset:%d" % (dst + 4 * q, dst + 4 * q + 3, V_RD, (j - 1) * 4096 + q * 1024))


def gemm64_core(a, cfg, n, A0, A1, Breg, issueB, window, pre_tickets=None, order=None, side=None, side_from=0, side_n=1,
                gate=None, side2=None, side2_from=0, ramp=None, resid=False, extra0=None, hooks=None, tail_side=None, dup_last=False):
    if order is None:
        order = [(1, i) for i in range(n)] + [(0, i) for i in range(n)]
    M = len(order)
    side = list(side or [])
    t = dict(pre_tickets or {})
    nxt = len(t)
    gpos = gate[0] if gate else M + 1
    gated = [False]

    def try_issue(limit):
        nonlocal nxt
        while nxt < M and nxt < limit:
            if nxt >= gpos and not gated[0]:
                return
            issueB(nxt)
            t[nxt] = a.vt()
            nxt += 1
            if gate and nxt == gate[3]:
                gate[1]()

    try_issue(ramp or window)
    if cfg.get("stamps") != 2:
        stamp(a, cfg, 1)
    last1 = max(e for e, (st, i) in enumerate(order) if st == 1)
    wr1 = last1 + 2
    bar1 = min(M - 2, last1 + 1 + max(2, (M - last1) // 2))
    seen = set()
    pend = []

    def presum():
        out = ["v_add_f32 v%d, v%d, v%d" % (G_RED + e, G_RED + e, G_RED + 16 + e) for e in range(16)]
        if resid:
            for i in range(8):
                out += ["v_lshlrev_b32 v%d, 16, v%d" % (G_T, V_RES + i), "v_and_b32 v%d, 0xffff0000, v%d" % (G_T + 1, V_RES + i),
                        "v_add_f32 v%d, v%d, v%d" % (G_RED + 2 * i, G_RED + 2 * i, G_T),
                        "v_add_f32 v%d, v%d, v%d" % (G_RED + 2 * i + 1, G_RED + 2 * i + 1, G_T + 1)]
        return out

    def step(e):
        st, i = order[e]
        if gate and not gated[0] and e == gate[4]:
            assert not side
            gate[2]()
            gated[0] = True
            try_issue(e + window)
        if hooks and e in hooks:
            hooks[e]()
        a.wait_vm(t[e])
        if e == 0 and cfg.get("stamps") != 2:
            stamp(a, cfg, 2)
        first = "0" if st not in seen else None
        seen.add(st)
        if st == 1:
            mf(a, G_ACC + 16, A0(i), Breg(e), first or vr(G_ACC + 16, 16))
            if cfg.get("ldmid", 0) and window < 30:
                try_issue(min(e + 1 + window, nxt + 1))
            mf(a, G_ACC + 48, A1(i), Breg(e), first or vr(G_ACC + 48, 16))
        else:
            mf(a, G_ACC + 32, A1(i), Breg(e), first or vr(G_ACC + 32, 16))
            if cfg.get("ldmid", 0) and window < 30:
                try_issue(min(e + 1 + window, nxt + 1))
            mf(a, G_ACC, A0(i), Breg(e), first or vr(G_ACC, 16))
        try_issue(min(e + 1 + window, nxt + 2))
        if e >= side_from:
            k = 0
            while side and k < side_n:
                x = side.pop(0)
                a(x)
                k += x.startswith("buffer_")
        if side2 and e >= side2_from:
            for _ in range(cfg.get("side2_n", 1)):
                if side2:
                    a(side2.pop(0))
        if e == wr1:
            wr_tile(a, 1)
            wr_tile(a, 3)
        if e == bar1:
            a("s_waitcnt lgkmcnt(0)")
            a("s_barrier")
            rd_tile(a, 1, G_RED)
            rd_tile(a, 3, G_RED + 16)
            pend[:] = presum()
        elif pend and e > bar1:
            if e == bar1 + 1:
                a("s_waitcnt lgkmcnt(0)")
            for _ in range(cfg.get("pre_n", 10)):
                if pend:
                    a(pend.pop(0))

    for e in range(M):
        if dup_last and e == side2_from:
            snap = (nxt, dict(t), a.vm_issued, a.lg_issued, a.dma_issued)
            a("s_cmp_eq_u32 s%d, 1" % S_LAYER)
            a("s_cbranch_scc1 L_g64_last")
            for e2 in range(e, M):
                step(e2)
            a("s_branch L_g64_join")
            a("L_g64_last:")
            nxt, t, a.vm_issued, a.lg_issued, a.dma_issued = snap[0], snap[1], snap[2], snap[3], snap[4]
            for e2 in range(e, M):
                step(e2)
            a("L_g64_join:")
            break
        step(e)
    assert wr1 <= bar1 < M and not side2
    if extra0:
        extra0[2]()
        mf(a, G_ACC, extra0[0], extra0[1], vr(G_ACC, 16))
    tside = list(tail_side or [])
    cnt = [0]

    def av(x):
        a(x)
        cnt[0] += 1
        if tside and cnt[0] % cfg.get("tail_every", 4) == 0:
            a(tside.pop(0))

    stamp(a, cfg, 4)
    a("s_waitcnt lgkmcnt(0)")
    for _ in range(8):
        if pend:
            av(pend.pop(0))
    wr_tile(a, 2)
    for x in pend:
        av(x)
    for e in range(16):
        av("v_add_f32 v%d, v%d, v%d" % (G_ACC + e, G_ACC + e, G_RED + e))
    for x in side:
        a(x)
    a("s_waitcnt lgkmcnt(0)")
    a("s_barrier")
    stamp(a, cfg, 6)
    rd_tile(a, 2, G_RED + 32)
    for q in range(4):
        a("s_waitcnt lgkmcnt(%d)" % (3 - q))
        for e in range(4):
            av("v_add_f32 v%d, v%d, v%d" % (G_ACC + 4 * q + e, G_ACC + 4 * q + e, G_RED + 32 + 4 * q + e))
    for x in tside:
        a(x)
    stamp(a, cfg, 7)


def bextra(a, nmu, d):
    split3(a, nmu, d + 4)
    a("v_lshrrev_b32 v%d, 16, v%d" % (d + 7, d + 4))
    a("v_or_b32 v%d, v%d, v%d" % (d, d + 7, d + 5))
    a("v_or_b32 v%d, v%d, v%d" % (d + 1, d + 7, d + 6))
    a("v_mov_b32 v%d, v%d" % (d + 2, d))
    a("v_mov_b32 v%d, 0" % (d + 3))


def res_epilogue(a, cfg, xout_add, final):
    for i in range(8):
        a("v_cvt_pk_bf16_f32 v%d, v%d, v%d" % (V_RES + i, G_ACC + 2 * i, G_ACC + 2 * i + 1))
        if i == 3 and final is None:
            st4(a, V_RES, V_L16, 34)
    if final is not None:
        a("s_cmp_eq_u32 s%d, 1" % S_LAYER)
        a("s_cbranch_scc1 %s" % final)
        st4(a, V_RES, V_L16, 34)
    store_x_tail(a)


def store_x_tail(a):
    st4(a, V_RES + 4, V_L16, 34, 1024)
    a("v_mov_b32 v%d, 0x3f803f80" % G_T)
    a("v_mov_b32 v%d, 0" % (G_T + 12))
    a("v_mov_b32 v%d, 0" % (G_T + 13))
    for r in range(8):
        a("v_dot2_f32_bf16 v%d, v%d, v%d, v%d" % (G_T + 12, V_RES + r, G_T, G_T + 12))
        a("v_dot2_f32_bf16 v%d, v%d, v%d, v%d" % (G_T + 13, V_RES + r, V_RES + r, G_T + 13))
    a("v_lshlrev_b32 v%d, 4, v%d" % (G_T + 2, V_R31))
    a("s_nop 1")
    a("v_mov_b32 v%d, v%d" % (G_T + 14, G_T + 12))
    a("v_mov_b32 v%d, v%d" % (G_T + 15, G_T + 13))
    a("s_nop 0")
    a("v_permlane32_swap_b32 v%d, v%d" % (G_T + 12, G_T + 14))
    a("v_permlane32_swap_b32 v%d, v%d" % (G_T + 13, G_T + 15))
    a("v_add_f32 v%d, v%d, v%d" % (G_T + 12, G_T + 12, G_T + 14))
    a("v_add_f32 v%d, v%d, v%d" % (G_T + 13, G_T + 13, G_T + 15))
    a("s_mov_b32 exec_lo, 0xffffffff\ns_mov_b32 exec_hi, 0x0")
    emit_l(a, "buffer_store_dwordx2 v[%d:%d], v%d, s[4:7], s35 offen" % (G_T + 12, G_T + 13, G_T + 2))
    a("s_mov_b64 exec, -1")


def out_addr(a, xout_add):
    layer_off(a, 34, OFF_X, X_STRIDE, 2, xout_add)
    a("s_lshl_b32 s18, s%d, 15" % S_RT)
    a("s_add_u32 s34, s34, s18")
    a("s_lshl_b32 s18, s%d, 11" % S_NT)
    a("s_add_u32 s34, s34, s18")
    layer_off(a, 35, OFF_STAT, STAT_STRIDE, 2, xout_add)
    a("s_lshl_b32 s18, s%d, 12" % S_RT)
    a("s_add_u32 s35, s35, s18")
    a("s_lshr_b32 s18, s%d, 1" % S_NT)
    a("s_lshl_b32 s18, s18, 9")
    a("s_add_u32 s35, s35, s18")
    a("s_and_b32 s18, s%d, 1" % S_NT)
    a("s_lshl_b32 s18, s18, 3")
    a("s_add_u32 s35, s35, s18")


S_Q0, S_Q1, S_KVW = 50, 51, 52


def wq_lines():
    b = Asm()
    for i in range(8):
        blk(b, ar(128 + 4 * i, 4), S_KVW, i)
    for i in range(8):
        blk(b, ar(160 + 4 * i, 4), S_Q0, i)
        blk(b, ar(192 + 4 * i, 4), S_Q1, i)
    return [l.strip() for l in b.lines]


SB0, SB1, SX = 26, 27, 28
CK = G_T + 8


def qkv_setup(a, kvx):
    a("v_lshlrev_b32 v%d, 4, v%d" % (G_T + 1, V_H))
    a("v_lshlrev_b32 v%d, 2, v%d" % (G_T + 6, V_R31))
    layer_off(a, SX, OFF_X, X_STRIDE, 2, 0)
    b_addr(a, SB0, SB1, SX, 32, 8)
    layer_off(a, 30, OFF_STAT, STAT_STRIDE, 2, 0)
    a("s_lshl_b32 s17, s%d, 12" % S_RT)
    a("s_add_u32 s30, s30, s17")
    reduce_addr(a, LDS_RQ)
    layer_off(a, 33, OFF_KV, KV_STRIDE)
    a("s_lshr_b32 s36, s%d, 1" % S_HQ)
    a("s_lshl_b32 s17, s%d, 1" % S_RB)
    a("s_add_u32 s17, s17, s36")
    a("s_lshl_b32 s17, s17, 15")
    a("s_add_u32 s23, s17, s%d" % SX)
    a("s_lshl_b32 s17, s%d, 13" % S_W)
    a("s_add_u32 s23, s23, s17")
    a("s_lshl_b32 s17, s%d, 12" % S_W)
    a("s_add_u32 s17, s17, %d" % kvx)
    a("v_add_u32 v%d, s17, v%d" % (G_T + 2, V_L16))
    a("v_add_u32 v%d, %d, v%d" % (G_T + 3, kvx, V_L16))
    a("s_mul_i32 s37, s%d, 0x2000" % S_LAYER)
    a("s_add_u32 s37, s37, 0x%x" % (OFF_FLAGS + FL_KV))
    a("s_lshl_b32 s17, s%d, 5" % S_RB)
    a("s_add_u32 s37, s37, s17")
    a("s_lshl_b32 s17, s36, 4")
    a("s_add_u32 s37, s37, s17")
    a("s_lshl_b32 s39, s2, 11")
    a("s_add_u32 s39, s39, 0x%x" % OFF_CKS)


def kv_job(a, cfg, sfx, kvx, done, b1):
    load_stats(a, G_ST, 30, G_T, LLD[0])
    t_st = a.vt()
    tK = {}
    for i in range(8):
        blk(a, ar(224 + 4 * i, 4), 23, i, SC)
        tK[i] = a.vt()
    if b1:
        b1()
    stamp(a, cfg, 1)
    a.wait_vm(t_st)
    finish_stats(a, G_ST, V_NMU, V_RSTD)
    XS = kvx + 16384
    a("s_lshl_b32 s17, s%d, 8" % S_W)
    a("s_add_u32 s17, s17, %d" % XS)
    a("v_add_u32 v%d, s17, v%d" % (G_T + 4, G_T + 6))
    a("v_mul_f32 v%d, v%d, v%d" % (G_T + 5, V_NMU, V_RSTD))
    a("ds_write_b32 v%d, v%d" % (G_T + 4, V_RSTD))
    a("ds_write_b32 v%d, v%d offset:128" % (G_T + 4, G_T + 5))
    a("s_lshr_b32 s18, s%d, 1" % S_W)
    a("s_bitcmp1_b32 s%d, 0" % S_HQ)
    a("s_cselect_b32 s18, s18, 1")
    a("s_lshl_b32 s19, s18, 6")
    a("s_add_u32 s17, s17, s19")
    a("v_add_u32 v%d, s17, v%d" % (G_T + 4, G_T + 1))
    a("s_lshl_b32 s19, s18, 11")
    a("v_add_u32 v%d, s19, v%d" % (G_T + 3, G_T + 3))
    RS = G_ACC + 16
    for g in range(2):
        a("ds_read_b128 v[%d:%d], v%d offset:%d" % (RS + 4 * g, RS + 4 * g + 3, G_T + 4, 32 * g))
        a("ds_read_b128 v[%d:%d], v%d offset:%d" % (RS + 8 + 4 * g, RS + 8 + 4 * g + 3, G_T + 4, 128 + 32 * g))
    a("s_lshl_b32 s17, s%d, 10" % S_RT)
    a("s_add_u32 s34, s33, s17")
    a("s_bitcmp1_b32 s%d, 0" % S_HQ)
    a("s_cbranch_scc1 L_qkv_v1" + sfx)
    for v in range(2):
        if v:
            a("L_qkv_v%d%s:" % (v, sfx))
        for i in range(8):
            a.wait_vm(tK[i])
            x, w = ar(224 + 4 * i, 4), ar(128 + 4 * i, 4)
            c = "0" if i == 0 else vr(G_KVACC, 16)
            if v & 1:
                mf(a, G_KVACC, x, w, c)
            else:
                mf(a, G_KVACC, w, x, c)
        if v < 1:
            a("v_lshlrev_b32 v%d, 10, v%d" % (G_T + 4, V_LANE))
            a("s_branch L_qkv_kvred" + sfx)
    a("v_lshlrev_b32 v%d, 10, v%d" % (G_T + 4, V_LANE))
    a("v_lshlrev_b32 v%d, 4, v%d" % (G_T + 5, V_R31))
    a("v_lshl_add_u32 v%d, v%d, 8, v%d" % (G_T + 5, V_H, G_T + 5))
    a("s_lshl_b32 s19, s18, 9")
    a("s_add_u32 s34, s34, s19")
    a("s_add_u32 s34, s34, 0x10000")
    a("s_lshl_b32 s19, s18, 2")
    a("s_add_u32 s37, s37, s19")
    for q in range(2):
        a("ds_write_b128 v%d, v[%d:%d] offset:%d" % (G_T + 2, G_KVACC + 4 * q, G_KVACC + 4 * q + 3, q * 1024))
    a("L_qkv_kvred" + sfx + ":")
    stamp(a, cfg, 2)
    for q in range(2, 4):
        a("ds_write_b128 v%d, v[%d:%d] offset:%d" % (G_T + 2, G_KVACC + 4 * q, G_KVACC + 4 * q + 3, q * 1024))
    a("s_waitcnt lgkmcnt(0)")
    a("s_barrier")
    stamp(a, cfg, 3)
    a("s_and_b32 s17, s%d, 1" % S_W)
    a("s_cmp_lg_u32 s17, s36")
    a("s_cbranch_scc1 " + done)
    a("s_and_b32 s17, s%d, 1" % S_HQ)
    a("s_lshl_b32 s17, s17, 1")
    a("s_add_u32 s17, s17, 1")
    a("s_cmp_gt_u32 s%d, s17" % S_W)
    a("s_cbranch_scc1 " + done)
    RD = G_RED + 16
    for j in range(4):
        for q in range(2):
            a("ds_read_b128 v[%d:%d], v%d offset:%d" % (RD + 8 * j + 4 * q, RD + 8 * j + 4 * q + 3, G_T + 3, j * 4096 + q * 1024))
    a("s_waitcnt lgkmcnt(4)")
    for e in range(8):
        a("v_add_f32 v%d, v%d, v%d" % (RD + e, RD + e, RD + 8 + e))
    a("s_waitcnt lgkmcnt(0)")
    for e in range(8):
        a("v_add_f32 v%d, v%d, v%d" % (RD + 16 + e, RD + 16 + e, RD + 24 + e))
    for e in range(8):
        a("v_add_f32 v%d, v%d, v%d" % (RD + e, RD + e, RD + 16 + e))
    PK = RD + 8
    a("s_bitcmp1_b32 s%d, 0" % S_HQ)
    a("s_cbranch_scc1 L_qkv_vfin" + sfx)
    for e in range(8):
        a("v_fmac_f32 v%d, v%d, v%d" % (RD + e, V_NMU, CK + e))
        a("v_mul_f32 v%d, v%d, v%d" % (RD + e, V_RSTD, RD + e))
    pack8(a, PK, RD)
    a("buffer_store_dwordx4 v[%d:%d], v%d, s[4:7], s34 offen %s" % (PK, PK + 3, V_L16, SC))
    a("v_mov_b32 v%d, 0" % (PK + 4))
    for r in range(4):
        a("v_dot2_f32_bf16 v%d, v%d, v%d, v%d" % (PK + 4, PK + r, PK + r, PK + 4))
    xhalf_sum(a, PK + 4, PK + 5)
    for d in ("row_shr:1", "row_shr:2", "row_shr:4", "row_shr:8"):
        a("v_max_f32_dpp v%d, v%d, v%d %s row_mask:0xf bank_mask:0xf" % (PK + 4, PK + 4, PK + 4, d))
    a("v_max_f32_dpp v%d, v%d, v%d row_bcast:15 row_mask:0xa bank_mask:0xf" % (PK + 4, PK + 4, PK + 4))
    a("v_readlane_b32 s18, v%d, 31" % (PK + 4))
    a("v_mov_b32 v%d, v%d" % (PK + 6, V_TAG))
    a("v_mov_b32 v%d, s18" % (PK + 7))
    a("s_waitcnt vmcnt(0)")
    a("s_mov_b64 exec, 0xff")
    a("buffer_store_dwordx2 v[%d:%d], v%d, s[4:7], s37 offen %s" % (PK + 6, PK + 7, G_T + 4, SC))
    a("s_mov_b64 exec, -1")
    a("s_branch " + done)
    a("L_qkv_vfin" + sfx + ":")
    for e in range(8):
        a("v_mul_f32 v%d, v%d, v%d" % (RD + e, RS + e, RD + e))
        a("v_fmac_f32 v%d, v%d, v%d" % (RD + e, RS + 8 + e, CK))
    pack8(a, PK, RD)
    a("s_mov_b32 exec_lo, 0xffff\ns_mov_b32 exec_hi, 0xffff")
    a("buffer_store_dwordx4 v[%d:%d], v%d, s[4:7], s34 offen %s" % (PK, PK + 3, G_T + 5, SC))
    stamp(a, cfg, 5)
    a("s_waitcnt vmcnt(0)")
    a("s_mov_b64 exec, 0xff")
    a("buffer_store_dword v%d, v%d, s[4:7], s37 offen offset:8 %s" % (V_TAG, G_T + 4, SC))
    a("s_mov_b64 exec, -1")


def kv_layer0(a, cfg, bulk):
    kvx = 96 * 1024
    LDS_CSX = kvx + 20480
    a("s_cmp_ge_u32 s%d, 4" % S_HQ)
    a("s_cbranch_scc1 L_kv0_none")
    qkv_setup(a, kvx)
    a("s_waitcnt lgkmcnt(0)")
    for r in range(4):
        a("v_mov_b32 v%d, 0x3f803f80" % (G_CS + r))
    a("s_lshl_b32 s17, s%d, 11" % S_W)
    a("s_add_u32 s17, s17, %d" % LDS_CSX)
    a("v_add_u32 v%d, s17, v%d" % (G_CS + 4, V_L16))
    a("v_add_u32 v%d, %d, v%d" % (G_CS + 5, LDS_CSX, V_L16))
    a("s_bitcmp1_b32 s%d, 0" % S_HQ)
    a("s_cbranch_scc1 L_qkv_c1")
    for i in range(8):
        mf(a, G_ACC, ar(128 + 4 * i, 4), vr(G_CS, 4), "0" if i == 0 else vr(G_ACC, 16))
    a("s_branch L_qkv_c2")
    a("L_qkv_c1:")
    for i in range(8):
        mf(a, G_ACC, vr(G_CS, 4), ar(128 + 4 * i, 4), "0" if i == 0 else vr(G_ACC, 16))
    a("L_qkv_c2:")
    a("ds_write_b128 v%d, v[%d:%d]" % (G_CS + 4, G_ACC + 8, G_ACC + 11))
    a("ds_write_b128 v%d, v[%d:%d] offset:1024" % (G_CS + 4, G_ACC + 12, G_ACC + 15))
    a("s_waitcnt lgkmcnt(0)")
    a("s_barrier")
    for w in range(4):
        for q in range(2):
            a("ds_read_b128 v[%d:%d], v%d offset:%d" % (G_RED + 8 * w + 4 * q, G_RED + 8 * w + 4 * q + 3, G_CS + 5, 2048 * w + 1024 * q))
    a("s_waitcnt lgkmcnt(0)")
    for e in range(8):
        a("v_add_f32 v%d, v%d, v%d" % (G_RED + e, G_RED + e, G_RED + 8 + e))
        a("v_add_f32 v%d, v%d, v%d" % (G_RED + 16 + e, G_RED + 16 + e, G_RED + 24 + e))
        a("v_add_f32 v%d, v%d, v%d" % (CK + e, G_RED + e, G_RED + 16 + e))
    a("buffer_store_dwordx4 v[%d:%d], v%d, s[4:7], s39 offen sc1" % (CK, CK + 3, V_L16))
    a("buffer_store_dwordx4 v[%d:%d], v%d, s[4:7], s39 offen offset:1024 sc1" % (CK + 4, CK + 7, V_L16))
    xin_flag_addr(a, 38, False, 0)
    poll(a, cfg, 38, G_T + 6, G_T + 4)
    kv_job(a, dict(cfg, stamps=0), "_0", kvx, "L_kv0_done", lambda: bulk("a"))
    a("s_branch L_kv0_done")
    a("L_kv0_none:")
    bulk("b")
    a("L_kv0_done:")


def phase_qkv(a, cfg):
    qkv_setup(a, LDS_KVX)
    VP, VPA = 198, 22
    SU.probe_addr(a, sys.modules[__name__], VPA, VP, 59)
    def wcheck(tag):
        a("v_cmp_ne_u32 vcc, v%d, v%d" % (V_TAG, VP))
        a("s_cbranch_vccz L_qkv_wok%s" % tag)
        keep = a.vm_issued
        poll(a, cfg, 59, VPA, VP, sleep=1)
        a.vm_issued = keep
        a("L_qkv_wok%s:" % tag)

    a("buffer_load_dwordx4 v[%d:%d], v%d, s[4:7], s39 offen sc1" % (CK, CK + 3, V_L16))
    a("buffer_load_dwordx4 v[%d:%d], v%d, s[4:7], s39 offen offset:1024 sc1" % (CK + 4, CK + 7, V_L16))
    stamp(a, cfg, 8)
    xin_flag_addr(a, 38, False, 0)
    poll(a, cfg, 38, G_T + 6, G_T + 4)
    stamp(a, cfg, 9)
    tB = {}
    def b1_loads():
        for e in range(8):
            blk(a, ar(64 + 4 * e, 4), SB1, e, SC)
            tB[e] = a.vt()

    def cs_q():
        a("s_lshl_b32 s17, s%d, 10" % S_NT)
        a("s_add_u32 s17, s17, 0x%x" % OFF_CSQX)
        a("buffer_load_dwordx4 v[%d:%d], v%d, s[4:7], s17 offen sc1" % (G_CS, G_CS + 3, V_L16))

    a("s_cmp_ge_u32 s%d, 4" % S_HQ)
    a("s_cbranch_scc1 L_qkv_stats")
    a("s_cmp_eq_u32 s%d, 0" % S_LAYER)
    a("s_cbranch_scc1 L_qkv_stats")
    kv_job(a, cfg, "", LDS_KVX, "L_qkv_q", b1_loads)
    a("s_branch L_qkv_q")
    a("L_qkv_stats:")
    load_stats(a, G_ST, 30, G_T, LLD[0])
    t_st = a.vt()
    b1_loads()
    a.wait_vm(t_st)
    finish_stats(a, G_ST, V_NMU, V_RSTD)
    a("L_qkv_q:")
    stamp(a, cfg, 10)
    bextra(a, V_NMU, G_CS + 4)
    tq = {}

    def h_probe():
        a("buffer_load_dword v%d, v%d, s[4:7], s59 offen sc1" % (VP, VPA))
        tq[0] = a.vt()

    def h_cs():
        a.wait_vm(tq[0])
        wcheck("q")
        cs_q()
        tq[1] = a.vt()
    gemm64_core(a, dict(cfg, stamps=cfg.get('stamps') and 2), 8, lambda i: ar(160 + 4 * i, 4), lambda i: ar(192 + 4 * i, 4), lambda e: ar(64 + 4 * e, 4),
                lambda e: blk(a, ar(64 + 4 * e, 4), SB1 if e < 8 else SB0, e % 8, SC), 16, pre_tickets=tB, ramp=12,
                side=[g[0] for g in SU.deferred_store_groups(sys.modules[__name__])], side_from=99, side_n=1, extra0=(vr(G_CS, 4), vr(G_CS + 4, 4), lambda: a.wait_vm(tq[1])),
                hooks={3: h_probe, 10: h_cs})
    a("v_mul_f32 v%d, %s, v%d" % (G_T, fl(QSCALE), V_RSTD))
    for e in range(16):
        a("v_mul_f32 v%d, v%d, v%d" % (G_ACC + e, G_T, G_ACC + e))
    pack8(a, G_Q, G_ACC)
    pack8(a, G_Q + 4, G_ACC + 8)
    if cfg.get("store_q"):
        a("s_lshl_b32 s17, s%d, 15" % S_RT)
        a("s_lshl_b32 s18, s%d, 11" % S_NT)
        a("s_add_u32 s17, s17, s18")
        a("s_add_u32 s17, s17, 0x%x" % OFF_Q)
        a("buffer_store_dwordx4 v[%d:%d], v%d, s[4:7], s17 offen" % (G_Q, G_Q + 3, V_L16))
        a("buffer_store_dwordx4 v[%d:%d], v%d, s[4:7], s17 offen offset:1024" % (G_Q + 4, G_Q + 7, V_L16))
    stamp(a, cfg, 11)


A_C = [24, 40]
A_O = [56, 72]
A_S = [88, 104]
A_P = [120, 124, 128, 132]
A_KF = [136, 140]
A_VF = [[144, 148], [152, 156]]
A_VK, A_VV, A_VINC = 160, 161, 162
A_T = 164
LDS_V = 65536
LDS_ONES = 131072
LDS_ATT_FLAG = LDS_ONES + 5120
UNR = 4


EARLY = 4
W2ORD = [7 * mm + tl for tl in range(7) for mm in range(4)]
W2POS = {k: p for p, k in enumerate(W2ORD)}


def w2load(a, idx, s0, s1):
    i = W2ORD[idx >> 1]
    blk(a, w2reg(idx & 1, i), s1 if idx & 1 else s0, i)


def w2reg(s, i):
    idx = 2 * W2POS[i] + s
    if idx < 32:
        return ar(128 + 4 * idx, 4)
    if idx < 46:
        return vr(W2V + 4 * (idx - 32), 4)
    if idx < 54:
        return vr(136 + 4 * (idx - 46), 4)
    return vr(190 + 4 * (idx - 54), 4)


SLOT13 = [0, 2, 1, 3, 0, 2, 1]


def dma13(a, i, part=None):
    slot = SLOT13[i]
    for hh in range(2):
        a("s_add_u32 m0, s%d, %d" % (S_WL, slot * 32768 + hh * 4096))
        a("s_add_u32 s29, s%d, %d" % (S_W13, i * 32768 + hh * 4096))
        for q in range(4):
            a("buffer_load_dwordx4 v%d, s[4:7], s29 offen offset:%d sc1 lds" % (V_L16, q * 1024))


def dma_lines(i):
    b = Asm()
    dma13(b, i)
    return [l.strip() for l in b.lines]


def phase_att(a, cfg):
    Q = [G_Q, G_Q + 4]
    SA0, SA1, SW0, SW1 = 24, 25, 26, 27
    a("v_mov_b32 v%d, 0x3f803f80" % (A_T + 4))
    if cfg.get("zpad", 1):
        a("v_and_b32 v%d, 2, v0" % (A_T + 5))
        a("v_cmp_eq_u32 vcc, 0, v%d" % (A_T + 5))
        a("v_cndmask_b32 v%d, v%d, v%d, vcc" % (A_T + 4, V_ZERO, A_T + 4))
    for r in range(1, 4):
        a("v_mov_b32 v%d, v%d" % (A_T + 4 + r, A_T + 4))
    a("v_lshlrev_b32 v%d, 4, v0" % (A_T + 2))
    a("v_add_u32 v%d, %d, v%d" % (A_T + 2, LDS_ONES, A_T + 2))
    a("ds_write_b128 v%d, v[%d:%d]" % (A_T + 2, A_T + 4, A_T + 7))
    a("ds_write_b128 v%d, v[%d:%d] offset:1024" % (A_T + 2, A_T + 4, A_T + 7))
    a("v_and_b32 v%d, 15, v%d" % (A_T + 2, V_LANE))
    a("v_lshlrev_b32 v%d, 4, v%d" % (A_T + 2, A_T + 2))
    a("v_lshl_add_u32 v%d, v%d, 8, v%d" % (A_T + 2, V_H, A_T + 2))
    a("v_add_u32 v%d, %d, v%d" % (A_VV, LDS_V, A_T + 2))
    a("v_add_u32 v%d, -20, v%d" % (A_T + 3, V_R31))
    a("v_cmp_gt_u32 vcc, 8, v%d" % (A_T + 3))
    a("v_mov_b32 v%d, %d" % (A_T + 2, LDS_ONES))
    a("v_mov_b32 v%d, %d" % (A_T + 3, LDS_ONES + 64))
    a("v_cndmask_b32 v%d, v%d, v%d, vcc" % (A_T + 2, A_T + 2, A_T + 3))
    if cfg.get("zpad", 1):
        a("v_and_b32 v%d, 27, v%d" % (A_T + 3, V_R31))
        a("v_cmp_ne_u32 vcc, 16, v%d" % (A_T + 3))
        a("v_add_u32 v%d, 32, v%d" % (A_T + 3, A_T + 2))
        a("v_cndmask_b32 v%d, v%d, v%d, vcc" % (A_T + 2, A_T + 2, A_T + 3))
    a("v_cmp_le_u32 vcc, 16, v%d" % V_R31)
    a("v_mov_b32 v%d, %d" % (A_VINC, UNR * 1024))
    a("v_cndmask_b32 v%d, v%d, v%d, vcc" % (A_VV, A_VV, A_T + 2))
    a("v_cndmask_b32 v%d, v%d, v%d, vcc" % (A_VINC, A_VINC, V_ZERO))
    for t in range(2):
        n = A_T + 8 + t
        a("v_mov_b32 v%d, 0" % n)
        for r in range(4):
            a("v_dot2_f32_bf16 v%d, v%d, v%d, v%d" % (n, Q[t] + r, Q[t] + r, n))
    for t in range(2):
        xhalf_sum(a, A_T + 8 + t, A_T + 10)
    a_addr(a, SA0, SA1, OFF_WO, 32, 8)
    a("s_mul_i32 s%d, s%d, %d" % (S_W13, S_M, 7 * 32768))
    a("s_lshl_b32 s%d, s%d, 13" % (S_WL, S_W))
    a("s_add_u32 s%d, s%d, s%d" % (S_W13, S_W13, S_WL))
    a("s_add_u32 s%d, s%d, 0x%x" % (S_W13, S_W13, OFF_W13))
    a_addr(a, SW0, SW1, OFF_W2, 112, 28)
    a("s_lshl_b32 s20, s%d, 12" % S_W)
    a("s_add_u32 s21, s33, s20")
    a("s_add_u32 s22, s21, 0x10000")
    a("s_add_u32 s23, s20, %d" % LDS_V)
    a("s_mul_i32 s38, s%d, 0x2000" % S_LAYER)
    a("s_add_u32 s38, s38, 0x%x" % (OFF_FLAGS + FL_KV))
    a("s_and_b32 s17, s2, 7")
    a("s_lshl_b32 s17, s17, 10")
    a("s_add_u32 s38, s38, s17")
    a("s_lshl_b32 s58, s2, 2")
    a("s_add_u32 s58, s58, 0x%x" % OFF_FLW)
    a("s_or_b32 s17, s%d, s%d" % (S_W, S_LAYER))
    a("s_cmp_lg_u32 s17, 0")
    a("s_cselect_b32 s58, 0xf0000000, s58")
    a("s_and_b32 s59, s2, 7")
    a("s_lshl_b32 s59, s59, 10")
    a("s_add_u32 s59, s59, 0x%x" % OFF_FLW)
    a("v_lshlrev_b32 v%d, 10, v%d" % (A_T + 16, V_LANE))
    a("s_getreg_b32 s17, hwreg(HW_REG_XCC_ID)")
    a("s_and_b32 s17, s17, 7")
    a("s_lshl_b32 s17, s17, 1")
    a("v_or_b32 v%d, s17, v%d" % (A_T + 17, V_TAG))
    a("v_and_b32 v%d, 15, v%d" % (A_T + 18, V_LANE))
    a("v_lshlrev_b32 v%d, 5, v%d" % (A_T + 18, A_T + 18))
    a("s_and_b32 s17, s2, 0x87")
    a("s_lshl_b32 s17, s17, 2")
    a("v_add_u32 v%d, s17, v%d" % (A_T + 18, A_T + 18))

    stamp(a, cfg, 1)
    a("s_cmp_lg_u32 s%d, 0" % S_W)
    a("s_cbranch_scc1 L_att_nopoll")
    poll(a, cfg, 38, V_L16, A_T + 12, wide=True, sleep=cfg.get("kv_sleep", 2))
    k2 = A_T + 13
    for d in ("row_shr:1", "row_shr:2", "row_shr:4", "row_shr:8"):
        a("v_max_f32_dpp v%d, v%d, v%d %s row_mask:0xf bank_mask:0xf" % (k2, k2, k2, d))
    a("v_max_f32_dpp v%d, v%d, v%d row_bcast:15 row_mask:0xa bank_mask:0xf" % (k2, k2, k2))
    a("v_max_f32_dpp v%d, v%d, v%d row_bcast:31 row_mask:0xc bank_mask:0xf" % (k2, k2, k2))
    a("v_mov_b32 v%d, %d" % (A_T + 12, LDS_ATT_FLAG + 16 - 63 * 4))
    a("v_add_u32 v%d, v%d, v%d" % (A_T + 12, V_L4, A_T + 12))
    a("s_mov_b32 exec_lo, 0")
    a("s_mov_b32 exec_hi, 0x80000000")
    a("ds_write_b32 v%d, v%d" % (A_T + 12, k2))
    a("s_mov_b64 exec, -1")
    a("s_waitcnt lgkmcnt(0)")
    a("L_att_nopoll:")
    a("s_waitcnt vmcnt(0)")
    a("s_barrier")
    a("s_mov_b64 exec, 0xff")
    a("buffer_store_dword v%d, v%d, s[4:7], s58 offen %s" % (A_T + 17, A_T + 16, SC))
    a("s_mov_b64 exec, -1")
    a("s_mov_b32 s%d, 0xf0000000" % SU.S_DST)
    stamp(a, cfg, 2)
    a("v_mov_b32 v%d, %d" % (A_T + 12, LDS_ATT_FLAG + 16))
    a("ds_read_b32 v%d, v%d" % (A_T + 1, A_T + 12))
    def kvl(g):
        out = []
        for sl, sg in ((20, 21), (23, 22)):
            out += ["s_add_u32 m0, s%d, %d" % (sl, g * 16384), "s_add_u32 s17, s%d, %d" % (sg, g * 16384)]
            out += ["buffer_load_dwordx4 v%d, s[4:7], s17 offen offset:%d %s lds" % (V_L16, q * 1024, SC) for q in range(4)]
        return out

    def kvdma(g):
        for x in kvl(g):
            a(x)

    G1 = 1
    for g in range(G1):
        kvdma(g)
        if g == 0:
            t_g3 = a.vt()
            a("s_waitcnt lgkmcnt(0)")
            for t in range(2):
                n = A_T + 8 + t
                a("v_mul_f32 v%d, v%d, v%d" % (n, A_T + 1, n))
                a("v_sqrt_f32 v%d, v%d" % (n, n))
            for t in range(2):
                n = A_T + 8 + t
                a("v_mul_f32 v%d, %s, v%d" % (n, fl(-1.001), n))
            a("v_min_f32 v%d, v%d, v%d" % (A_T + 10, A_T + 8, A_T + 9))
            a("v_mov_b32 v%d, %s" % (A_T + 11, fl(-cfg.get("bound_t", BOUND_T))))
            a("v_cmp_nge_f32 vcc, v%d, v%d" % (A_T + 10, A_T + 11))
            a("s_lshl_b32 s19, s%d, 2" % S_W)
            a("s_add_u32 s19, s19, %d" % LDS_ATT_FLAG)
            a("v_mov_b32 v%d, s19" % (A_T + 12))
            a("s_cmp_lg_u64 vcc, 0")
            a("s_cselect_b32 s18, 1, 0")
            a("v_mov_b32 v%d, s18" % (A_T + 11))
            a("ds_write_b32 v%d, v%d" % (A_T + 12, A_T + 11))
            for t in range(2):
                for r in range(16):
                    a("v_mov_b32 v%d, v%d" % (A_C[t] + r, A_T + 8 + t))
    stamp(a, cfg, 3)
    a.wait_vm(t_g3)
    a("s_waitcnt lgkmcnt(0)")
    a("s_barrier")
    stamp(a, cfg, 4)
    a("v_mov_b32 v%d, %d" % (A_T + 12, LDS_ATT_FLAG))
    a("ds_read_b128 v[%d:%d], v%d" % (A_T + 4, A_T + 7, A_T + 12))
    a("ds_read_b128 v[%d:%d], v%d" % (A_KF[0], A_KF[0] + 3, V_L16))
    a("ds_read_b128 v[%d:%d], v%d" % (A_VF[0][0], A_VF[0][0] + 3, A_VV))
    a("ds_read_b128 v[%d:%d], v%d offset:512" % (A_VF[0][1], A_VF[0][1] + 3, A_VV))
    a("ds_read_b128 v[%d:%d], v%d offset:1024" % (A_KF[1], A_KF[1] + 3, V_L16))
    a("s_waitcnt lgkmcnt(4)")
    a("v_or_b32 v%d, v%d, v%d" % (A_T + 4, A_T + 4, A_T + 5))
    a("v_or3_b32 v%d, v%d, v%d, v%d" % (A_T + 4, A_T + 4, A_T + 6, A_T + 7))
    a("v_readfirstlane_b32 s18, v%d" % (A_T + 4))
    a("s_cmp_eq_u32 s18, 0")
    a("s_cbranch_scc1 L_att_fast")
    keep = a.dma_issued, a.vm_issued
    for g in range(G1, 4):
        kvdma(g)
    a.dma_issued, a.vm_issued = keep
    a("s_waitcnt vmcnt(0)")
    a("s_barrier")
    a("v_mov_b32 v%d, 0xff800000" % (A_T + 8))
    a("v_mov_b32 v%d, 0xff800000" % (A_T + 9))
    a("v_mov_b32 v%d, v%d" % (A_T + 12, V_L16))
    a("s_mov_b32 s19, 64")
    a("L_att_pre:")
    a("ds_read_b128 v[%d:%d], v%d" % (A_P[0], A_P[0] + 3, A_T + 12))
    a("v_add_u32 v%d, 1024, v%d" % (A_T + 12, A_T + 12))
    a("s_waitcnt lgkmcnt(0)")
    for t in range(2):
        mf(a, A_S[t], vr(A_P[0], 4), vr(Q[t], 4), "0")
    for t in range(2):
        for r in range(0, 16, 2):
            a("v_max3_f32 v%d, v%d, v%d, v%d" % (A_T + 8 + t, A_S[t] + r, A_S[t] + r + 1, A_T + 8 + t))
    a("s_sub_u32 s19, s19, 1")
    a("s_cmp_lg_u32 s19, 0")
    a("s_cbranch_scc1 L_att_pre")
    for t in range(2):
        n = A_T + 8 + t
        a("v_mov_b32 v%d, v%d" % (A_T + 10, n))
        a("v_permlane32_swap_b32 v%d, v%d" % (n, A_T + 10))
        a("v_max_f32 v%d, v%d, v%d" % (n, n, A_T + 10))
        a("v_sub_f32 v%d, 0, v%d" % (n, n))
        for r in range(16):
            a("v_mov_b32 v%d, v%d" % (A_C[t] + r, n))
    a("L_att_fast:")
    a("s_waitcnt lgkmcnt(0)")

    def m4(d, x, y, c):
        mf(a, d, vr(x, 4), vr(y, 4), vr(c, 16))

    def ex(r):
        a("v_exp_f32 v%d, v%d" % (r, r))

    def cv(d, s):
        a("v_cvt_pk_bf16_f32 v%d, v%d, v%d" % (d, s, s + 1))

    m4(A_S[0], A_KF[0], Q[0], A_C[0])
    a("s_nop 7")

    def lines_of(fn):
        b = Asm()
        fn(b)
        return [l.strip() for l in b.lines]

    def groups(lines):
        out, cur = [], []
        for x in lines:
            cur.append(x)
            if x.startswith("buffer_"):
                out.append(cur)
                cur = []
        assert not cur
        return out

    q_kv = []
    for g in range(G1, 4):
        q_kv += [(x, g) for x in groups(kvl(g))]
    q_w = []
    for i in range(8):
        q_w += groups(lines_of(lambda b: blk(b, ar(4 * i, 4), SA0, i)))
        q_w += groups(lines_of(lambda b: blk(b, ar(32 + 4 * i, 4), SA1, i)))
    for idx in range(46):
        q_w += groups(lines_of(lambda b: w2load(b, idx, SW0, SW1)))
    q_t = [["s_add_u32 s17, s49, %d" % (q * 4096), "buffer_load_dword v%d, v%d, s[4:7], s17 offen sc1" % (A_T + 3, A_T + 2)] for q in range(5)]
    if not cfg.get("touch13", 1):
        q_t = []
    q_d = groups(dma_lines(0) + dma_lines(1))
    a("s_mul_i32 s49, s%d, %d" % (S_M, 7 * 32768))
    a("s_and_b32 s18, s%d, 1" % S_RG)
    a("s_mul_i32 s18, s18, %d" % 81920)
    a("s_add_u32 s49, s49, s18")
    a("s_mul_i32 s18, s%d, %d" % (S_W, 20480))
    a("s_add_u32 s49, s49, s18")
    a("s_add_u32 s49, s49, 0x%x" % (OFF_W13 + 65536))
    a("v_lshlrev_b32 v%d, 6, v%d" % (A_T + 2, V_LANE))
    tg = {}
    U_PROBE, U_CHK = cfg.get("u_probe", 21), cfg.get("u_chk", 24)
    PB = A_T + 12
    def slot(u):
        grp, g = None, None
        if q_kv:
            grp, g = q_kv.pop(0)
            if u < 4:
                grp = grp + q_kv.pop(0)[0]
        elif u == U_PROBE:
            a("buffer_load_dwordx4 v[%d:%d], v%d, s[4:7], s59 offen %s" % (PB, PB + 3, V_L16, SC))
            tg["probe"] = a.vt()
        elif u == U_CHK:
            assert not q_kv
            a("s_waitcnt vmcnt(0)")
            a("L_att_wchk:")
            for r in range(4):
                a("v_and_b32 v%d, -15, v%d" % (PB + r, PB + r))
            a("v_cmp_ne_u32 vcc, v%d, v%d" % (V_TAG, PB))
            for r in range(1, 4):
                a("v_cmp_ne_u32 s[18:19], v%d, v%d" % (V_TAG, PB + r))
                a("s_or_b64 vcc, vcc, s[18:19]")
            a("s_cmp_eq_u64 vcc, 0")
            a("s_cbranch_scc1 L_att_wok")
            if cfg.get("spin_limit"):
                a("s_sub_u32 s101, s101, 1")
                a("s_cbranch_scc1 L_att_wok")
            keep = a.vm_issued
            a("s_sleep 4")
            a("buffer_load_dwordx4 v[%d:%d], v%d, s[4:7], s59 offen %s" % (PB, PB + 3, V_L16, SC))
            a("s_waitcnt vmcnt(0)")
            a("s_branch L_att_wchk")
            a.vm_issued = keep
            a("L_att_wok:")
            a("buffer_load_dword v%d, v%d, s[4:7], s59 offen %s" % (PB, A_T + 18, SC))
            tg["grp"] = a.vt()
        elif u == U_CHK + 8:
            a.wait_vm(tg["grp"])
            a("v_cmp_ne_u32 vcc, v%d, v%d" % (A_T + 17, PB))
            a("s_cmp_eq_u64 vcc, 0")
            a("s_cselect_b32 s%d, %d, 0" % (S_LOC, 0 if cfg.get("force_remote") else 1))
        elif u < U_CHK:
            pass
        elif q_t and u >= cfg.get("t_from", 100) and (u - cfg.get("t_from", 100)) % cfg.get("t_every", 4) == 1:
            grp = q_t.pop(0)
        elif u >= 68 and q_d:
            grp = q_d.pop(0)
        elif q_w:
            grp = q_w.pop(0)
        if grp:
            for x in grp:
                a(x)
            if g is not None:
                tg[g] = a.vt()

    NU = 128
    BAR = {16: None, 36: None}
    for u in range(NU):
        j, t = u >> 1, u & 1
        nj, nt = (u + 1) >> 1, (u + 1) & 1
        pj, pt = (u - 1) >> 1, (u - 1) & 1
        jj = j % UNR
        sb, nsb = A_S[u % 2], A_S[(u + 1) % 2]
        plo, phi = A_P[(u % 2) * 2], A_P[(u % 2) * 2 + 1]
        pphi = A_P[((u - 1) % 2) * 2 + 1]
        if u + 1 < NU:
            m4(nsb, A_KF[nj % 2], Q[nt], A_C[nt])
        if t == 0 and j + 2 < 64:
            a("ds_read_b128 v[%d:%d], v%d offset:%d" % (A_KF[j % 2], A_KF[j % 2] + 3, V_L16, (j + 2) * 1024))
        if t == 1 and u > U_CHK and cfg.get('slot3', 0):
            slot(u)
        for r in range(0, 4):
            ex(sb + r)
        if u > 0:
            m4(A_O[pt], A_VF[pj % 2][1], pphi, A_O[pt])
        if t == 0 and j + 1 < 64:
            off = (jj + 1) * 1024
            a("ds_read_b128 v[%d:%d], v%d offset:%d" % (A_VF[(j + 1) % 2][0], A_VF[(j + 1) % 2][0] + 3, A_VV, off))
            a("ds_read_b128 v[%d:%d], v%d offset:%d" % (A_VF[(j + 1) % 2][1], A_VF[(j + 1) % 2][1] + 3, A_VV, off + 512))
        if t == 1:
            slot(u)
        for r in range(4, 9):
            ex(sb + r)
        for r in range(0, 4):
            cv(plo + r, sb + 2 * r)
        for r in range(9, 12):
            ex(sb + r)
        m4(A_O[t], A_VF[j % 2][0], plo, A_O[t]) if u > 1 else mf(a, A_O[t], vr(A_VF[j % 2][0], 4), vr(plo, 4), "0")
        if t == 1:
            a("s_waitcnt lgkmcnt(0)")
            if (j + 3) in BAR:
                g = BAR[j + 3]
                if g is not None:
                    a.wait_vm(tg[g])
                a("s_barrier")
                if j + 3 == 16:
                    stamp(a, cfg, 6)
        else:
            slot(u)
        for r in range(12, 16):
            ex(sb + r)
        if t == 1 and jj == UNR - 1:
            a("v_add_u32 v%d, v%d, v%d" % (A_VV, A_VINC, A_VV))
        for r in range(4, 8):
            cv(phi + r - 4, sb + 2 * r)
    assert not (q_kv or q_w or q_t or q_d), (len(q_kv), len(q_w), len(q_t), len(q_d))
    units = [(63, 1)]
    U = 128
    a("L_att_done:")
    DUAL[0] = bool(cfg.get("dual", 1))
    stamp(a, cfg, 7)
    lj, lt = units[-1]
    m4(A_O[lt], A_VF[lj % 2][1], A_P[((U - 1) % 2) * 2 + 1], A_O[lt])
    layer_off(a, 34, OFF_O, X_STRIDE)
    a("s_lshl_b32 s18, s%d, 15" % S_RT)
    a("s_add_u32 s34, s34, s18")
    a("s_lshl_b32 s18, s%d, 11" % S_NT)
    a("s_add_u32 s34, s34, s18")
    for t in range(2):
        a("v_rcp_f32 v%d, v%d" % (A_T, A_O[t] + 8))
        for r in range(8):
            a("v_mul_f32 v%d, v%d, v%d" % (A_O[t] + r, A_T, A_O[t] + r))
        pack8(a, A_P[t], A_O[t])
        st4(a, A_P[t], V_L16, 34, t * 1024)
    flag_addr(a, S_FO, FL_O, S_RB, 7, S_HQ)
    publish(a, S_FO, [(34, 2048, 0)])
    stamp(a, cfg, 8)


def phase_wo(a, cfg):
    SB0, SB1, SX = 26, 27, 28
    a("s_barrier")
    if not cfg.get("pf_att", 1):
        for i in range(8):
            blk(a, ar(4 * i, 4), 24, i)
            blk(a, ar(32 + 4 * i, 4), 25, i)
    b = Asm()
    dma13(b, 2)
    b("s_mul_i32 s29, s%d, %d" % (S_M, 7 * 1024))
    b("s_lshl_b32 s17, s%d, 11" % S_W)
    b("s_add_u32 s29, s29, s17")
    b("s_add_u32 m0, s17, %d" % LDS_CS)
    b("s_add_u32 s29, s29, 0x%x" % OFF_CSX)
    b("buffer_load_dwordx4 v%d, s[4:7], s29 offen sc1 lds" % V_L16)
    b("buffer_load_dwordx4 v%d, s[4:7], s29 offen offset:1024 sc1 lds" % V_L16)
    wside = [l.strip() for l in b.lines]
    wside2 = []
    if cfg.get("mix", 1):
        wside2, wside = wside, []
    elif cfg.get("t2_pre", 1):
        for x in wside:
            a(x)
        wside = []
    layer_off(a, SX, OFF_O, X_STRIDE)
    b_addr(a, SB0, SB1, SX, 32, 8)
    reduce_addr(a, LDS_R1)
    out_addr(a, 1)
    flag_addr(a, 38, FL_O, S_RB, 7)
    a("s_lshl_b32 s17, s%d, 5" % S_W)
    a("s_add_u32 s38, s38, s17")
    a("v_and_b32 v%d, 28, v%d" % (G_T + 5, V_L4))
    flag_addr(a, S_FX1, FL_X1, S_RG, 8, S_M)
    stamp(a, cfg, 8)
    poll(a, cfg, 38, G_T + 5, G_T + 4)
    stamp(a, cfg, 9)
    gemm64_core(a, cfg, 8, lambda i: ar(4 * i, 4), lambda i: ar(32 + 4 * i, 4), lambda e: ar(64 + 4 * e, 4),
                lambda e: blk(a, ar(64 + 4 * e, 4), SB1 if e < 8 else SB0, e % 8, SC), 16, ramp=cfg.get("ramp1", 8), resid=True,
                side=wside2, side_from=cfg.get("wo_side", 5), side_n=1)
    res_epilogue(a, cfg, 1, None)
    stamp(a, cfg, 10)
    publish(a, S_FX1, [(34, 2048, 0), (35, 512, 0)], between=wside)
    stamp(a, cfg, 11)


F_ACC = [24, 40, 56, 72]
NACC = 4
F_W = 88
F_CS = 120
F_H = 128
F_ST = 136
F_T = 168
F_LA = [184, 185]
F_NMU, F_C1, F_RS2, F_CSA, F_LG = 186, 187, 188, 189, 198
F_TA = 172


def phase_ffn1(a, cfg):
    SX, SH = 24, 27
    G3 = cfg.get("g0", 3) == 3
    if G3:
        a("s_mul_i32 s35, s%d, 6144" % S_W)
        a("s_sub_u32 s34, s%d, s%d" % (S_W13, S_WL))
        a("s_add_u32 s34, s34, s35")
        a("s_add_u32 s34, s34, %d" % (4 * 32768))
        head4 = ["s_add_u32 m0, s35, %d" % LDS_E, "s_nop 0"]
        head4 += ["buffer_load_dwordx4 v%d, s[4:7], s34 offen offset:%d sc1 lds" % (V_L16, q * 1024) for q in range(4)]
        head4 += ["s_add_u32 m0, s35, %d" % (LDS_E + 4096), "s_add_u32 s34, s34, 4096"]
        head4 += ["buffer_load_dwordx4 v%d, s[4:7], s34 offen offset:%d sc1 lds" % (V_L16, q * 1024) for q in range(2)]
        a("s_lshl_b32 s28, s%d, 11" % S_W)
        a("s_sub_u32 s33, s%d, s%d" % (S_W13, S_WL))
        a("s_add_u32 s33, s33, s28")
        a("s_add_u32 s33, s33, %d" % (4 * 32768 + 24 * 1024))
    a("s_lshl_b32 s30, s%d, 2" % S_RG)
    a("s_add_u32 s30, s30, s%d" % S_W)
    layer_off(a, SX, OFF_X, X_STRIDE, 2, 1)
    a("s_lshl_b32 s17, s30, 15")
    a("s_add_u32 s%d, s%d, s17" % (SX, SX))
    a("s_add_u32 s25, s%d, %d" % (SX, 28 * 1024))
    layer_off(a, 26, OFF_STAT, STAT_STRIDE, 2, 1)
    a("s_lshl_b32 s18, s30, 12")
    a("s_add_u32 s26, s26, s18")
    layer_off(a, SH, OFF_H, H_STRIDE)
    a("s_mul_i32 s17, s30, %d" % (112 * 1024))
    a("s_add_u32 s%d, s%d, s17" % (SH, SH))
    a("s_mul_i32 s17, s%d, %d" % (S_M, 7 * 1024))
    a("s_add_u32 s%d, s%d, s17" % (SH, SH))
    a("v_mov_b32 v%d, v%d" % (F_LA[0], V_L16))
    a("v_add_u32 v%d, 65536, v%d" % (F_LA[1], V_L16))
    a("v_add_u32 v%d, %d, v%d" % (F_CSA, LDS_E, V_L16))
    a("v_and_b32 v%d, 0x380, v%d" % (F_TA, V_L128))
    a("v_add_u32 v%d, 4096, v%d" % (F_TA + 1, F_TA))
    a_addr(a, 53, 54, OFF_W2, 112, 28)
    flag_addr(a, 38, FL_X1, S_RG, 8)
    a("s_lshr_b32 s17, s%d, 1" % S_W)
    a("s_lshl_b32 s17, s17, 7")
    a("s_add_u32 s38, s38, s17")
    a("s_and_b32 s17, s%d, 1" % S_W)
    a("s_lshl_b32 s17, s17, 2")
    a("s_add_u32 s38, s38, s17")
    lane_pat(a, F_T + 2, 15, 0, 3)
    flag_addr(a, S_FH, FL_H, S_RG, 9, S_M, per_layer=0x2000)
    stamp(a, cfg, 1)
    a("s_barrier")
    if not cfg.get("mix", 1):
        dma13(a, 3)
    poll(a, cfg, 38, F_T + 2, F_T)
    stamp(a, cfg, 2)
    tX = {}

    def xload(i):
        if i < 28:
            blk(a, ar(4 * i, 4), SX, i, SC)
        else:
            blk(a, ar(4 * i, 4), 25, i - 28, SC)
        tX[i] = a.vt()

    XW = cfg.get("xwin", 10)
    for i in range(XW):
        xload(i)

    def wread(tile, ks, ring):
        slot = SLOT13[tile]
        if ks == 32:
            a("ds_read_b128 v[%d:%d], v%d offset:%d" % (F_W + 4 * ring, F_W + 4 * ring + 3, F_CSA, LDS_CS - LDS_E + tile * 1024))
            return
        if G3 and tile == 4:
            a("ds_read_b128 v[%d:%d], v%d offset:%d" % (F_W + 4 * ring, F_W + 4 * ring + 3, F_CSA if ks < 24 else F_LA[0], (ks % 24) * 1024))
            return
        a("ds_read_b128 v[%d:%d], v%d offset:%d" % (F_W + 4 * ring, F_W + 4 * ring + 3, F_LA[slot >> 1], (slot & 1) * 32768 + ks * 1024))

    def epi(tile):
        acc, cs = F_ACC[tile % NACC], F_CS
        hp = F_H + 4 * (tile % 2)
        out = []
        for e in range(8):
            out.append("v_fma_f32 v%d, v%d, v%d, v%d" % (F_T + 8 + e, F_C1, acc + e, F_LG))
        for e in range(8):
            out.append("v_exp_f32 v%d, v%d" % (F_T + 8 + e, F_T + 8 + e))
            out.append("v_mul_f32 v%d, v%d, v%d" % (acc + e, acc + e, acc + 8 + e))
            if e:
                out.append("v_add_f32 v%d, v%d, v%d" % (F_T + 7 + e, F_RS2, F_T + 7 + e))
        out.append("v_add_f32 v%d, v%d, v%d" % (F_T + 15, F_RS2, F_T + 15))
        for e in range(8):
            out.append("v_rcp_f32 v%d, v%d" % (F_T + 8 + e, F_T + 8 + e))
            if e:
                out.append("v_mul_f32 v%d, v%d, v%d" % (acc + e - 1, F_T + 7 + e, acc + e - 1))
        out.append("v_mul_f32 v%d, v%d, v%d" % (acc + 7, F_T + 15, acc + 7))
        for i in range(4):
            out.append("v_cvt_pk_bf16_f32 v%d, v%d, v%d" % (hp + i, acc + 2 * i, acc + 2 * i + 1))
        out.append("buffer_store_dwordx4 v[%d:%d], v%d, s[4:7], s%d offen offset:%d" % (hp, hp + 3, V_OFF[tile // 4], SH, (tile % 4) * 1024))
        if DBL[0]:
            out.append("buffer_store_dwordx4 v[%d:%d], v%d, s[4:7], s%d offen offset:%d" % (hp, hp + 3, V_OFF[tile // 4], SH, (tile % 4) * 1024))
        return out

    G0 = cfg.get("g0", 3)
    steps = []
    for ks in range(33):
        for tl in range(G0):
            steps.append((tl, ks))
    for tile in range(G0, 7):
        for ks in range(33):
            steps.append((tile, ks))
    N = len(steps)
    PF = cfg.get('pf', 6)
    lt = {}
    first_of, last_of = {}, {}
    for n, (tile, ks) in enumerate(steps):
        first_of.setdefault(tile, n)
        last_of[tile] = n
    dma_q = [(3, x) for x in dma_lines(3)] if cfg.get('mix', 1) else []
    if G3:
        dma_q += [(3, x) for x in head4]
    fence_t, fence_n, fenced = {}, {}, set()

    def do_read(n):
        tile, ks = steps[n]
        if G3:
            ft = {(3, 0): 3, (4, 24): 5, (6, 0): 6}.get((tile, ks))
            if ft and ft not in fenced:
                assert ft in fence_t and not any(q[0] <= ft for q in dma_q), ft
                a.wait_vm(fence_t[ft])
                a("s_barrier")
                fenced.add(ft)
        elif n == first_of[tile] and tile >= (3 if cfg.get('mix', 1) else 4) and tile not in fenced:
            assert tile in fence_t and not any(q[0] == tile for q in dma_q), tile
            a.wait_vm(fence_t[tile])
            a("s_barrier")
        wread(tile, ks, n % 8)
        lt[n] = a.lt()

    cs_t = 0
    for n in range(PF):
        do_read(n)
    pending = []
    nx = XW
    nst, st_t, st_n, early_done, rb_done = 0, {}, {}, False, False
    for n, (tile, ks) in enumerate(steps):
        if tile >= G0 and ks == 0:
            stamp(a, cfg, 1 + tile)
        if tile == 0 and ks < 32:
            a.wait_vm(tX[ks])
        if n % 2 == 0:
            a.wait_lg(lt[min(n + 1, N - 1)])
            lg_done = lt[min(n + 1, N - 1)]
        acc = F_ACC[tile % NACC]
        if ks == 0 and tile >= NACC:
            assert nst > tile - NACC, (tile, nst)
        mf(a, acc, vr(F_W + 4 * (n % 8), 4), ar(4 * ks, 4) if ks < 32 else vr(F_CS, 4), "0" if ks == 0 else vr(acc, 16))
        if (tile == 0 or (tile < G0 and cfg.get('xfast', 0))) and nx < 32:
            xload(nx)
            nx += 1
            if nx == 32:
                load_stats(a, F_ST, 26, F_T, LLD[0])
                t_st = a.vt()
        if n + PF < N:
            do_read(n + PF)
        if n == last_of[G0 - 1] + 2:
            a("s_barrier")
            if G3:
                dma_q += [(5, "s_mov_b32 m0, s28"), (5, "s_nop 0"),
                          (5, "buffer_load_dwordx4 v%d, s[4:7], s33 offen sc1 lds" % V_L16),
                          (5, "buffer_load_dwordx4 v%d, s[4:7], s33 offen offset:1024 sc1 lds" % V_L16)]
                for tl in (5, 6):
                    dma_q += [(tl, x) for x in dma_lines(tl)]
                b = Asm()
                for idx in range(46, 56):
                    w2load(b, idx, 53, 54)
                dma_q += [(99, l.strip()) for l in b.lines]
            else:
                for tl in range(4, 4 + G0):
                    dma_q += [(tl, x) for x in dma_lines(tl)]
        for old in range(G0, 3):
            if n == last_of[old] + 2:
                a("s_barrier")
                dma_q += [(old + 4, x) for x in dma_lines(old + 4)]
                if old == 2:
                    b = Asm()
                    for idx in range(46, 56):
                        w2load(b, idx, 53, 54)
                    dma_q += [(99, l.strip()) for l in b.lines]
        dcost = 0
        if dma_q and ((n >= cfg.get("d3_from", 20) and n % cfg.get("d3_every", 5) == 0) if tile < G0 else n % cfg.get("dma_every", 3) == 0):
            while dma_q:
                tl, x = dma_q.pop(0)
                a(x)
                dcost += cfg.get("dma_cost", 8)
                if x.startswith("buffer_load"):
                    fence_t[tl] = a.vt()
                    fence_n[tl] = n
                    break
        if n == last_of[G0 - 1] - G0 - 2:
            a.wait_vm(t_st)
            finish_stats(a, F_ST, F_NMU, F_RS2)
            a("v_mul_f32 v%d, %s, v%d" % (F_C1, fl(-LOG2E), F_RS2))
            a("v_mov_b32 v%d, v%d" % (F_RS2, F_ST + 1))
            a("v_log_f32 v%d, v%d" % (F_LG, F_ST + 1))
            bextra(a, F_NMU, F_CS)
        for tl in range(0, 6):
            if n == max(last_of[tl], last_of[G0 - 1]) + 3:
                pending += epi(tl)
        if nst >= EARLY and not rb_done and n >= st_n[EARLY - 1] + 1:
            if cfg.get("h_wt", 6) < EARLY:
                readback(a, [(SH, 1024 * EARLY, 0)])
                a("s_mov_b64 exec, -1")
                dcost += 24
            rb_done = n
        for tl in range(cfg.get("h_touch", 0)):
            if tl in st_n and n == st_n[tl] + cfg.get("touch_lag", 24):
                a("buffer_load_dword v%d, v%d, s[4:7], s%d offen offset:%d sc1" % (V_P2, F_TA + (tl // 4), SH, (tl % 4) * 1024))
                a.vm_issued -= 0
                dcost += 8
        cost = dcost
        lim = cfg.get("epi_cost", 16)
        while pending:
            x = pending[0]
            if x == "CSWAIT":
                pending.pop(0)
                if cs_t > lg_done:
                    a.wait_lg(cs_t)
                    cost += 4
                continue
            cx = 8 if x.split()[0] in TRANS else (8 if x.startswith("buffer_") else 4)
            if cost + cx > lim:
                break
            pending.pop(0)
            if x.startswith("buffer_store"):
                ok = [t for t in (3, 4, 5, 6) if t in fence_n and t not in fenced and not any(q[0] == t for q in dma_q)
                      and fence_n[t] + cfg.get("fence_age", 20) <= n
                      and (99 not in fence_n or (not dma_q and fence_n[99] + cfg.get("fence_age", 20) <= n))]
                if ok:
                    a.wait_vm(fence_t[max(ok)])
                    a("s_barrier")
                    fenced.update(ok)
            if x.startswith("buffer_store") and nst == EARLY + 1:
                assert rb_done
                assert not dma_q
                a("s_waitcnt vmcnt(0)")
                a("s_mov_b64 exec, 1")
                emit_l(a, "buffer_store_dword v%d, v%d, s[4:7], s%d offen offset:%d" % (V_TAG, V_ZERO, S_FH, 0x100))
                a("s_mov_b64 exec, -1")
                early_done = True
            if x.startswith("buffer_store") and nst < cfg.get("h_wt", 6):
                a(x + " sc1")
            elif x.startswith("buffer_store"):
                emit_l(a, x)
            else:
                a(x)
            cost += cx
            if x.startswith("ds_read"):
                cs_t = a.lt()
            if x.startswith("buffer_store"):
                nst += 1
                st_t[nst - 1] = a.vt()
                st_n[nst - 1] = n
    assert early_done
    assert not dma_q
    stamp(a, cfg, 8)
    for x in pending + epi(6):
        if x == "CSWAIT":
            a.wait_lg(cs_t)
            continue
        if x.startswith("buffer_store"):
            emit_l(a, x)
        else:
            a(x)
    stamp(a, cfg, 9)
    h0 = max(EARLY, cfg.get("h_wt", 6))
    assert nst >= cfg.get("h_wt", 6)
    a("s_add_u32 s17, s%d, %d" % (SH, h0 * 1024))
    publish(a, S_FH, [(17, 1024 * (7 - h0), 0)])
    stamp(a, cfg, 10)


def phase_ffn2(a, cfg):
    SB0, SB1, SX = 26, 27, 28
    SW0, SW1 = 24, 25
    side = []
    if cfg.get("touchq", 0):
        a("s_lshl_b32 s49, s%d, 16" % S_HQ)
        a("s_and_b32 s18, s%d, 3" % S_RB)
        a("s_lshl_b32 s18, s18, 14")
        a("s_add_u32 s49, s49, s18")
        a("s_lshl_b32 s18, s%d, 12" % S_W)
        a("s_add_u32 s49, s49, s18")
        a("s_add_u32 s49, s49, 0x%x" % OFF_WQ)
        a("s_cmp_eq_u32 s%d, 1" % S_LAYER)
        a("s_cselect_b32 s49, 0xf0000000, s49")
        a("v_lshlrev_b32 v%d, 6, v%d" % (G_T + 2, V_LANE))
        side.append("buffer_load_dword v%d, v%d, s[4:7], s49 offen" % (G_T + 3, G_T + 2))
    layer_off(a, SX, OFF_H, H_STRIDE)
    b_addr(a, SB0, SB1, SX, 112, 28)
    reduce_addr(a, LDS_R1)
    out_addr(a, 2)
    flag_addr(a, 38, FL_H, S_RG, 9, per_layer=0x2000)
    a("s_lshl_b32 s17, s%d, 6" % S_W)
    a("s_add_u32 s38, s38, s17")
    a("s_and_b32 s17, s%d, 1" % S_RB)
    a("s_lshl_b32 s17, s17, 3")
    a("s_add_u32 s38, s38, s17")
    lane_pat(a, G_T + 6, 7, 0, 2)
    xin_flag_addr(a, 39, True, 1)
    stamp(a, cfg, 8)
    poll(a, cfg, 38, G_T + 6, G_T + 4, imm=0x100)
    stamp(a, cfg, 9)
    wb = cfg.get("wbl2", 0)
    R = 32

    def hreg(e):
        return ar(4 * (e % R), 4)

    early = [7 * mm + tl for tl in range(EARLY) for mm in range(4)]
    late = [7 * mm + tl for tl in range(EARLY, 7) for mm in range(4)]
    order = [(1, i) for i in early] + [(0, i) for i in early] + [(1, i) for i in late] + [(0, i) for i in late]
    tp = {}

    def probe():
        a("buffer_load_dword v%d, v%d, s[4:7], s38 offen %s" % (G_T + 5, G_T + 6, SC))
        tp[0] = a.vt()

    def check():
        a.wait_vm(tp[0])
        a("v_cmp_ne_u32 vcc, v%d, v%d" % (V_TAG, G_T + 5))
        a("s_cbranch_vccz L_ffn2_go")
        keep = a.vm_issued
        poll(a, cfg, 38, G_T + 6, G_T + 4)
        a.vm_issued = keep
        a("L_ffn2_go:")
        if wb:
            a("s_lshr_b32 s17, s2, %d" % (3 if wb == 1 else 6))
            a("s_or_b32 s17, s17, s%d" % S_W)
            a("s_xor_b32 s18, s%d, 1" % S_LAYER)
            a("s_or_b32 s17, s17, s18")
            a("s_cmp_lg_u32 s17, 0")
            a("s_cbranch_scc1 L_ffn2_nowb")
            a("buffer_wbl2 sc1")
            a("L_ffn2_nowb:")
        stamp(a, cfg, 3)

    pp = cfg.get("probe_at", 16)
    gemm64_core(a, cfg, 28, lambda i: w2reg(0, i), lambda i: w2reg(1, i), hreg,
                lambda e: blk(a, hreg(e), SB1 if order[e][0] else SB0, order[e][1], SC), cfg.get('win2', 18), order=order,
                gate=(2 * len(early), probe, check, pp, pp), side=side, side_from=cfg.get('w2_side', 6), side_n=1,
                side2=wq_lines(), side2_from=cfg.get('wq_from', 32), dup_last=True, ramp=cfg.get('ramp2', 10), resid=True)
    res_epilogue(a, cfg, 2, "L_final")
    stamp(a, cfg, 10)
    publish(a, 39, [(34, 2048, 0), (35, 512, 0)])
    stamp(a, cfg, 11)


def final_store(a):
    a("v_permlane32_swap_b32 v%d, v%d" % (V_RES, V_RES + 2))
    a("v_permlane32_swap_b32 v%d, v%d" % (V_RES + 1, V_RES + 3))
    a("v_permlane32_swap_b32 v%d, v%d" % (V_RES + 4, V_RES + 6))
    a("v_permlane32_swap_b32 v%d, v%d" % (V_RES + 5, V_RES + 7))
    a("s_lshl_b32 s17, s%d, 15" % S_RT)
    a("s_lshl_b32 s18, s%d, 6" % S_NT)
    a("s_add_u32 s17, s17, s18")
    a("v_lshlrev_b32 v%d, 10, v%d" % (G_T + 2, V_R31))
    a("v_lshl_add_u32 v%d, v%d, 4, v%d" % (G_T + 2, V_H, G_T + 2))
    a("buffer_store_dwordx4 v[%d:%d], v%d, s[8:11], s17 offen" % (V_RES, V_RES + 3, G_T + 2))
    a("buffer_store_dwordx4 v[%d:%d], v%d, s[8:11], s17 offen offset:32" % (V_RES + 4, V_RES + 7, G_T + 2))


def st_begin(a, cfg):
    kern.stamp_init(a, cfg)


def st_end(a, cfg, k):
    if not cfg.get("stamps"):
        return
    stamp(a, cfg, NSTAMP - 1)
    a("s_memrealtime s[62:63]")
    a("s_waitcnt lgkmcnt(0)")
    a("s_mov_b32 s79, s62")
    a("s_mul_i32 s60, s3, 5\ns_add_u32 s60, s60, %d" % k)
    a("s_lshl_b32 s60, s60, 16")
    a("s_lshl_b32 s61, s2, 8")
    a("s_add_u32 s60, s60, s61")
    a("s_lshl_b32 s61, s12, 6")
    a("s_add_u32 s60, s60, s61")
    a("s_add_u32 s60, s60, 0x%x" % kern.OFF_STAMP)
    for i in range(16):
        a("v_writelane_b32 v199, s%d, %d" % (64 + i, i))
    a("s_mov_b32 exec_lo, 0xffff\ns_mov_b32 exec_hi, 0x0")
    a("buffer_store_dword v199, v%d, s[4:7], s60 offen" % V_L4)
    a("s_mov_b64 exec, -1")


def dbgt(a, cfg, k, last=False):
    if not cfg.get("dbgtime"):
        return
    L = a.newlabel("L_dt")
    a("s_cmp_lg_u32 s2, %d" % (cfg["dbgtime"] - 1))
    a("s_cbranch_scc1 %s" % L)
    a("s_memrealtime s[64:65]")
    a("s_memtime s[66:67]")
    a("s_mov_b32 s68, s98\ns_mov_b32 s69, s99\ns_mov_b32 s70, 256\ns_mov_b32 s71, 0x00020000")
    a("s_mul_i32 s72, s3, 20")
    a("s_waitcnt lgkmcnt(0)")
    a("s_sub_u32 s64, s64, s60")
    a("s_sub_u32 s66, s66, s62")
    a("v_mov_b32 v199, s64")
    a("buffer_store_dword v199, v%d, s[68:71], s72 offen offset:%d" % (V_ZERO, 4 + 4 * k))
    if last:
        a("v_mov_b32 v198, s66")
        a("buffer_store_dword v198, v%d, s[68:71], 0 offen offset:%d" % (V_ZERO, 4 * 13))
    a(L + ":")


KNAME = kern.NAME + "_kernel"


def build(cfg):
    rep = []
    DBL[0] = cfg.get("dbl", 0)
    TOUCH[0] = cfg.get("ptouch", 0)
    COMPACT[0] = cfg.get("compact", 1)
    DUAL[0] = False
    LSC[0] = cfg.get("lsc", "")
    RBW[0] = cfg.get("rbw", 0)
    LLD[0] = cfg.get("lld", "sc1")
    SPLIT_DMA[0] = not cfg.get("mix", 1)
    global OFF_WKV
    if COMPACT[0]:
        OFF_WKV = SU.OFF_WKV = C_WKV
    a = Asm()
    a("s_load_dwordx16 s[80:95], s[0:1], 0")
    a("s_load_dwordx2 s[96:97], s[0:1], 64")
    a("s_load_dwordx2 s[98:99], s[0:1], 80")
    kern.common_prologue(a, True)
    a("v_mov_b32 v%d, 0" % V_ZERO)
    a("v_mov_b32 v199, 0")
    a("v_lshlrev_b32 v%d, 7, v%d" % (V_L128, V_LANE))
    a("v_lshlrev_b32 v%d, 2, v%d" % (V_L4, V_LANE))
    a("s_lshr_b32 s17, s%d, 1" % S_W)
    a("s_and_b32 s18, s%d, 1" % S_W)
    a("s_lshl_b32 s%d, s%d, 1" % (S_NT, S_HQ))
    a("s_add_u32 s%d, s%d, s17" % (S_NT, S_NT))
    a("s_lshl_b32 s%d, s%d, 1" % (S_RT, S_RB))
    a("s_add_u32 s%d, s%d, s18" % (S_RT, S_RT))
    a("s_mov_b32 s%d, 0" % S_LAYER)
    if cfg.get("spin_limit"):
        a("s_mov_b32 s101, %d" % cfg["spin_limit"])
    if cfg.get("dbgtime"):
        a("s_memrealtime s[60:61]")
        a("s_memtime s[62:63]")
        a("s_waitcnt lgkmcnt(0)")
    st_begin(a, cfg)
    SU.startup(a, cfg, sys.modules[__name__])
    dbgt(a, cfg, 0)
    a_addr(a, S_Q0, S_Q1, OFF_WQ, 32, 8)
    a("s_lshl_b32 s%d, s%d, 13" % (S_KVW, S_W))
    a("s_add_u32 s%d, s%d, 0x%x" % (S_KVW, S_KVW, OFF_WKV))
    a("s_and_b32 s17, s2, 7")
    a("s_lshl_b32 s17, s17, 15")
    a("s_add_u32 s%d, s%d, s17" % (S_KVW, S_KVW))
    a("s_cmp_ge_u32 s%d, 4" % S_HQ)
    a("s_cselect_b32 s%d, s%d, s%d" % (S_KVW, S_Q0, S_KVW))
    st_end(a, cfg, 0)
    a("L_layer:")
    for k, ph in enumerate((phase_qkv, phase_att, phase_wo, phase_ffn1, phase_ffn2)):
        st_begin(a, cfg)
        ph(a, cfg)
        st_end(a, cfg, k + 1)
        dbgt(a, cfg, k + 1)
    a("s_mov_b32 s%d, 1" % S_LAYER)
    a("s_branch L_layer")
    a("L_final:")
    final_store(a)
    st_end(a, cfg, 5)
    dbgt(a, cfg, 5, True)
    a("L_exit:")
    a("s_endpgm")
    main_lines, _ = fix_hazards_fast(kern.uniq(a.lines, "main"), rep)

    pf = cfg.get("pfk", 0)
    if pf:
        b = Asm()
        b("s_cmp_ge_u32 s2, 256")
        b("s_cbranch_scc1 L_pf_end")
        b("s_load_dwordx16 s[16:31], s[0:1], 0")
        b("s_load_dwordx2 s[32:33], s[0:1], 64")
        b("s_getpc_b64 s[4:5]")
        b("L_pf_pc:")
        b("s_add_u32 s4, s4, L_code_begin-L_pf_pc")
        b("s_addc_u32 s5, s5, -1")
        b("s_lshr_b32 s6, s2, 3")
        b("s_and_b32 s7, s2, 7")
        b("s_lshl_b32 s8, s6, 11")
        b("v_lshlrev_b32 v1, 3, v0")
        b("v_add_u32 v1, s8, v1")
        b("v_min_u32 v1, L_code_end-L_code_begin-8, v1")
        b("global_load_dwordx2 v[2:3], v1, s[4:5]")
        if pf >= 2:
            b("v_lshlrev_b32 v1, 6, v0")
            b("s_lshl_b32 s8, s6, 14")
            b("v_add_u32 v4, s8, v1")
            b("s_lshl_b32 s9, s7, 18")
            b("s_lshl_b32 s10, s6, 13")
            b("s_add_u32 s9, s9, s10")
            b("v_lshlrev_b32 v5, 5, v0")
            b("v_add_u32 v5, s9, v5")
            b("s_mul_i32 s11, s2, 7168")
            b("v_mul_u32_u24 v6, 28, v0")
            b("v_add_u32 v6, s11, v6")
            b("s_lshl_b32 s11, s2, 11")
            b("v_lshlrev_b32 v7, 3, v0")
            b("v_add_u32 v7, s11, v7")
            b("s_waitcnt lgkmcnt(0)")
            b("global_load_dword v8, v4, s[18:19]")
            b("global_load_dword v9, v5, s[16:17]")
            b("global_load_dword v10, v1, s[20:21]")
            b("global_load_dword v11, v1, s[22:23]")
            b("global_load_dword v12, v6, s[28:29]")
            b("global_load_dword v13, v6, s[30:31]")
            b("global_load_dword v14, v6, s[32:33]")
            b("global_load_dword v15, v7, s[24:25]")
        b("L_pf_end:")
        b("s_endpgm")
        pfl, _ = fix_hazards_fast(["L_code_begin:", "L_code_end:"] + b.lines, rep)
        main_lines2 = [".p2align 8", "pf_kernel:"] + pfl[2:]
        s = "; @launch kernel=pf_kernel grid=(256,1,1) block=(256,1,1) lds=0\n"
        s += "; @launch kernel=%s grid=(256,1,1) block=(256,1,1) lds=%d\n" % (KNAME, 160 * 1024)
    else:
        main_lines2 = []
        s = "; @launch grid=(256,1,1) block=(256,1,1) lds=%d\n" % (160 * 1024)
    s += '.amdgcn_target "amdgcn-amd-amdhsa--gfx950"\n.text\n.globl %s\n.p2align 8\n.type %s,@function\n' % (KNAME, KNAME)
    s += "\n".join(["L_code_begin:", KNAME + ":"] + main_lines + ["L_code_end:"] + main_lines2) + "\n"
    s += '.section .rodata,"a"\n.p2align 6\n' + kernel_desc(KNAME, 512, 256, 102)
    if pf:
        s += ".p2align 6\n" + kernel_desc("pf_kernel", 16, 16, 40)
    return s, rep


if __name__ == "__main__":
    cfg = dict(code_prefetch=True)
    for kv in sys.argv[2:]:
        k, v = kv.split("=")
        cfg[k] = eval(v)
    s, rep = build(cfg)
    open(sys.argv[1], "w").write(s)
    print("auto nops:", sum(r[0] for r in rep), "sites", len(rep), "bytes of source", len(s))
    if cfg.get("verbose"):
        for r in rep:
            print(r)
```

```python
import struct, sys
from asmlib import *
from layout import *

NAME = "interleave_layers__grouped_kv_mqa__glu_gated_swiglu__prompt"


def f2u(x):
    return struct.unpack("<I", struct.pack("<f", x))[0]


def fl(x):
    return "0x%08x" % f2u(x)


MF = "v_mfma_f32_32x32x16_bf16"

S_LAYER = 3
SRD_WS = 4
SRD_AUX = 8
S_W = 12
S_RB, S_HQ, S_RG, S_M = 13, 14, 15, 16
V_TID, V_L16, V_LANE, V_R31, V_H = 0, 1, 2, 3, 4
V_OFF = [1, 5, 6, 7, 8, 9, 10]
V_FIRST = 12


def blk(a, dst, sbase, i, sc=""):
    a("buffer_load_dwordx4 %s, v%d, s[4:7], s%d offen offset:%d %s" % (dst, V_OFF[i // 4], sbase, (i % 4) * 1024, sc))


OFF_STAMP = 0x2600000
NSTAMP = 14


def stamp(a, cfg, i):
    if not cfg.get("stamps"):
        return
    a("s_memtime s[62:63]")
    a("s_waitcnt lgkmcnt(0)")
    a("s_mov_b32 s%d, s62" % (64 + i))


def stamp_init(a, cfg):
    if not cfg.get("stamps"):
        return
    for i in range(NSTAMP):
        a("s_mov_b32 s%d, 0" % (64 + i))
    a("s_memrealtime s[62:63]")
    a("s_waitcnt lgkmcnt(0)")
    a("s_mov_b32 s78, s62")
    stamp(a, cfg, 0)


def stamp_flush(a, cfg, idx_expr):
    if not cfg.get("stamps"):
        return
    a("s_waitcnt vmcnt(0)")
    stamp(a, cfg, NSTAMP - 1)
    a("s_memrealtime s[62:63]")
    a("s_waitcnt lgkmcnt(0)")
    a("s_mov_b32 s79, s62")
    a(idx_expr)
    a("s_lshl_b32 s60, s60, 16")
    a("s_lshl_b32 s61, s2, 8")
    a("s_add_u32 s60, s60, s61")
    a("s_lshl_b32 s61, s12, 6")
    a("s_add_u32 s60, s60, s61")
    a("s_add_u32 s60, s60, 0x%x" % OFF_STAMP)
    a("v_mov_b32 v12, 0")
    for i in range(16):
        a("v_mov_b32 v13, s%d" % (64 + i))
        a("buffer_store_dword v13, v12, s[4:7], s60 offen offset:%d" % (4 * i))


def common_prologue(a, need_out=False):
    a("s_cmp_ge_u32 s2, 256")
    a("s_cbranch_scc1 L_exit")
    a("s_load_dwordx2 s[4:5], s[0:1], 88")
    if need_out:
        a("s_load_dwordx2 s[8:9], s[0:1], 72")
    a("v_and_b32 v%d, 63, v0" % V_LANE)
    a("v_lshrrev_b32 v%d, 6, v0" % V_H)
    a("v_lshlrev_b32 v%d, 4, v%d" % (V_L16, V_LANE))
    a("v_readfirstlane_b32 s%d, v%d" % (S_W, V_H))
    a("v_and_b32 v%d, 31, v0" % V_R31)
    a("v_lshrrev_b32 v%d, 5, v%d" % (V_H, V_LANE))
    for j in range(1, 7):
        a("v_add_u32 v%d, %d, v%d" % (V_OFF[j], 4096 * j, V_L16))
    a("s_and_b32 s17, s2, 7")
    a("s_lshr_b32 s18, s2, 3")
    a("s_lshl_b32 s%d, s17, 1" % S_RG)
    a("s_lshr_b32 s19, s18, 4")
    a("s_add_u32 s%d, s%d, s19" % (S_RG, S_RG))
    a("s_and_b32 s%d, s18, 15" % S_M)
    a("s_and_b32 s%d, s18, 7" % S_HQ)
    a("s_lshl_b32 s%d, s17, 2" % S_RB)
    a("s_lshr_b32 s19, s18, 3")
    a("s_add_u32 s%d, s%d, s19" % (S_RB, S_RB))
    a("s_mov_b32 s6, 0x%x" % (WS_USED + 0x200000))
    a("s_mov_b32 s7, 0x00020000")
    if need_out:
        a("s_mov_b32 s10, %d" % (2048 * 512 * 2))
        a("s_mov_b32 s11, 0x00020000")
    a("s_waitcnt lgkmcnt(0)")


def xhalf_sum(a, v, tmp):
    a("v_mov_b32 v%d, v%d" % (tmp, v))
    a("v_permlane32_swap_b32 v%d, v%d" % (v, tmp))
    a("v_add_f32 v%d, v%d, v%d" % (v, v, tmp))


def load_stats(a, st, s_off, vtmp, sc=""):
    a("v_lshlrev_b32 v%d, 4, v%d" % (vtmp, V_R31))
    a("v_lshl_add_u32 v%d, v%d, 11, v%d" % (vtmp, V_H, vtmp))
    for q in range(4):
        a("buffer_load_dwordx4 v[%d:%d], v%d, s[4:7], s%d offen offset:%d %s" % (st + 4 * q, st + 4 * q + 3, vtmp, s_off, 512 * q, sc))


def finish_stats(a, st, nmu, rstd, xhalf=True):
    for q in (4, 2, 1):
        for i in range(q):
            a("v_add_f32 v%d, v%d, v%d" % (st + 2 * i, st + 2 * i, st + 2 * (i + q)))
            a("v_add_f32 v%d, v%d, v%d" % (st + 2 * i + 1, st + 2 * i + 1, st + 2 * (i + q) + 1))
    if xhalf:
        a("v_mov_b32 v%d, v%d" % (st + 2, st))
        a("v_mov_b32 v%d, v%d" % (st + 3, st + 1))
        a("v_permlane32_swap_b32 v%d, v%d" % (st, st + 2))
        a("v_permlane32_swap_b32 v%d, v%d" % (st + 1, st + 3))
        a("v_add_f32 v%d, v%d, v%d" % (st, st, st + 2))
        a("v_add_f32 v%d, v%d, v%d" % (st + 1, st + 1, st + 3))
    a("v_mul_f32 v%d, %s, v%d" % (nmu, fl(-1.0 / 512), st))
    a("v_mul_f32 v%d, %s, v%d" % (st + 1, fl(1.0 / 512), st + 1))
    a("v_fma_f32 v%d, -v%d, v%d, v%d" % (st + 1, nmu, nmu, st + 1))
    a("v_max_f32 v%d, 0, v%d" % (st + 1, st + 1))
    a("v_add_f32 v%d, %s, v%d" % (st + 1, fl(1e-5), st + 1))
    a("v_rsq_f32 v%d, v%d" % (rstd, st + 1))


def split3(a, x, d):
    a("v_cvt_pk_bf16_f32 v%d, v%d, v%d" % (d, x, x))
    a("v_and_b32 v%d, 0xffff0000, v%d" % (d, d))
    a("v_sub_f32 v%d, v%d, v%d" % (d + 3, x, d))
    a("v_cvt_pk_bf16_f32 v%d, v%d, v%d" % (d + 1, d + 3, d + 3))
    a("v_and_b32 v%d, 0xffff0000, v%d" % (d + 1, d + 1))
    a("v_sub_f32 v%d, v%d, v%d" % (d + 3, d + 3, d + 1))
    a("v_cvt_pk_bf16_f32 v%d, v%d, v%d" % (d + 2, d + 3, d + 3))
    a("v_and_b32 v%d, 0xffff0000, v%d" % (d + 2, d + 2))


def pack8(a, dst, src):
    for i in range(4):
        a("v_cvt_pk_bf16_f32 v%d, v%d, v%d" % (dst + i, src + 2 * i, src + 2 * i + 1))


def prep(a, cfg):
    a("s_cmp_ge_u32 s2, 256")
    a("s_cbranch_scc1 L_exit")
    stamp_init(a, cfg)
    a("s_load_dwordx16 s[16:31], s[0:1], 0")
    a("s_load_dwordx2 s[32:33], s[0:1], 64")
    a("s_load_dwordx2 s[4:5], s[0:1], 88")
    a("v_and_b32 v2, 63, v0")
    a("v_lshrrev_b32 v4, 6, v0")
    a("v_lshlrev_b32 v1, 4, v2")
    a("v_readfirstlane_b32 s12, v4")
    a("v_and_b32 v3, 31, v0")
    a("v_lshrrev_b32 v4, 5, v2")
    a("s_mov_b32 s6, 0x%x" % (WS_USED + 0x200000))
    a("s_mov_b32 s7, 0x00020000")
    a("s_mov_b32 s11, 0x00020000")
    a("s_mov_b32 s39, 0x00020000")
    a("s_and_b32 s13, s2, 7")
    a("s_lshl_b32 s13, s13, 3")
    a("s_bfe_u32 s14, s2, 0x30003")
    a("s_add_u32 s13, s13, s14")
    a("s_lshr_b32 s14, s2, 6")
    a("s_lshl_b32 s14, s14, 2")
    a("s_add_u32 s14, s14, s12")
    a("s_lshl_b32 s15, s13, 15")
    a("s_lshl_b32 s40, s14, 6")
    a("s_add_u32 s15, s15, s40")
    a("v_lshlrev_b32 v5, 10, v3")
    a("v_lshl_add_u32 v5, v4, 4, v5")
    a("s_waitcnt lgkmcnt(0)")
    a("s_mov_b32 s8, s16")
    a("s_mov_b32 s9, s17")
    a("s_mov_b32 s10, %d" % (2048 * 512 * 2))
    a("buffer_load_dwordx4 v[8:11], v5, s[8:11], s15 offen")
    a("buffer_load_dwordx4 v[12:15], v5, s[8:11], s15 offen offset:32")
    t_x = a.vt()
    stamp(a, cfg, 1)
    a("s_mov_b32 s45, 8")
    a("s_mov_b32 s44, 0")
    a("s_lshr_b32 s46, s12, 1")
    a("s_cmp_lt_u32 s2, 16")
    a("s_cbranch_scc1 L_p_wq")
    a("s_cmp_eq_u32 s2, 16")
    a("s_cbranch_scc1 L_p_wkv")
    a("s_cmp_lt_u32 s2, 33")
    a("s_cbranch_scc1 L_p_wo")
    a("s_cmp_lt_u32 s2, 145")
    a("s_cbranch_scc1 L_p_w13")
    a("s_cmp_lt_u32 s2, 209")
    a("s_cbranch_scc1 L_p_w2")
    a("s_mov_b32 s45, 0")
    a("s_branch L_p_xpart")
    a("L_p_wq:")
    a("s_mov_b32 s36, s18\ns_mov_b32 s37, s19\ns_mov_b32 s38, %d" % (512 * 512 * 2))
    a("s_mov_b32 s41, 1024")
    a("s_lshl_b32 s42, s2, 6\ns_lshl_b32 s47, s46, 5\ns_add_u32 s42, s42, s47")
    a("s_lshl_b32 s43, s2, 15\ns_add_u32 s43, s43, 0x%x" % OFF_WQ)
    a("s_lshl_b32 s44, s2, 7\ns_add_u32 s44, s44, 0x%x" % OFF_CSQ)
    a("s_branch L_p_go")
    a("L_p_wkv:")
    a("s_cmp_eq_u32 s46, 0")
    a("s_cselect_b32 s36, s22, s20\ns_cselect_b32 s37, s23, s21\ns_mov_b32 s38, %d" % (512 * 16 * 2))
    a("s_mov_b32 s41, 32\ns_mov_b32 s42, 0\ns_mov_b32 s43, 0x%x\ns_mov_b32 s44, 0x%x" % (OFF_WKV, OFF_CSKV))
    a("s_branch L_p_go")
    a("L_p_wo:")
    a("s_mov_b32 s36, s24\ns_mov_b32 s37, s25\ns_mov_b32 s38, %d" % (512 * 512 * 2))
    a("s_mov_b32 s41, 1024\ns_sub_u32 s48, s2, 17")
    a("s_lshl_b32 s42, s48, 6\ns_lshl_b32 s47, s46, 5\ns_add_u32 s42, s42, s47")
    a("s_lshl_b32 s43, s48, 15\ns_add_u32 s43, s43, 0x%x" % OFF_WO)
    a("s_branch L_p_go")
    a("L_p_w13:")
    a("s_cmp_eq_u32 s46, 0")
    a("s_cselect_b32 s36, s28, s30\ns_cselect_b32 s37, s29, s31\ns_mov_b32 s38, %d" % (512 * 1792 * 2))
    a("s_mov_b32 s41, 3584\ns_sub_u32 s48, s2, 33")
    a("s_lshl_b32 s42, s48, 5")
    a("s_lshl_b32 s43, s48, 15\ns_add_u32 s43, s43, 0x%x" % OFF_W13)
    a("s_lshl_b32 s44, s48, 7\ns_add_u32 s44, s44, 0x%x" % OFF_CS13)
    a("s_branch L_p_go")
    a("L_p_w2:")
    a("s_mov_b32 s36, s32\ns_mov_b32 s37, s33\ns_mov_b32 s38, %d" % (1792 * 512 * 2))
    a("s_mov_b32 s41, 1024\ns_sub_u32 s48, s2, 145")
    a("s_lshr_b32 s49, s48, 2\ns_and_b32 s48, s48, 3")
    a("s_mul_i32 s42, s48, %d" % (448 * 1024))
    a("s_lshl_b32 s47, s49, 6\ns_add_u32 s42, s42, s47\ns_lshl_b32 s47, s46, 5\ns_add_u32 s42, s42, s47")
    a("s_mul_i32 s43, s49, %d\ns_mul_i32 s47, s48, %d\ns_add_u32 s43, s43, s47\ns_add_u32 s43, s43, 0x%x" % (112 * 1024, 28 * 1024, OFF_W2))
    a("s_mov_b32 s45, 7")
    a("L_p_go:")
    a("v_and_b32 v6, 127, v0")
    a("v_lshrrev_b32 v7, 1, v6")
    a("v_and_b32 v6, 1, v6")
    a("v_mul_lo_u32 v16, v7, s41")
    a("v_lshl_add_u32 v16, v6, 4, v16")
    a("v_lshlrev_b32 v17, 6, v7")
    a("v_lshl_add_u32 v17, v6, 4, v17")
    a("s_lshl_b32 s47, s46, 5")
    a("v_add_u32 v17, s47, v17")
    a("s_lshl_b32 s47, s41, 6")
    for p in range(8):
        a("buffer_load_dwordx4 v[%d:%d], v16, s[36:39], s42 offen" % (20 + 4 * p, 23 + 4 * p))
        if p < 7:
            a("s_add_u32 s42, s42, s47")
    stamp(a, cfg, 2)
    for p in range(8):
        a("s_waitcnt vmcnt(%d)" % (7 - p))
        a("ds_write_b128 v17, v[%d:%d] offset:%d" % (20 + 4 * p, 23 + 4 * p, 4096 * p))
    a("v_and_b32 v6, 15, v2")
    a("v_lshrrev_b32 v7, 2, v6")
    a("v_and_b32 v6, 3, v6")
    a("v_lshlrev_b32 v18, 8, v4")
    a("v_lshl_add_u32 v18, v7, 6, v18")
    a("v_lshl_add_u32 v18, v6, 3, v18")
    a("v_bfe_u32 v6, v2, 4, 1")
    a("v_lshl_add_u32 v18, v6, 5, v18")
    a("s_mul_i32 s47, s12, s45")
    a("s_lshl_b32 s47, s47, 10")
    a("v_add_u32 v18, s47, v18")
    a("s_add_u32 s43, s43, s47")
    a("v_add_u32 v19, 4096, v1")
    a("s_waitcnt lgkmcnt(0)")
    stamp(a, cfg, 3)
    a("s_barrier")
    stamp(a, cfg, 4)
    for i in range(8):
        a("ds_read_b64_tr_b16 v[%d:%d], v18 offset:%d" % (20 + 4 * i, 21 + 4 * i, 1024 * i))
        a("ds_read_b64_tr_b16 v[%d:%d], v18 offset:%d" % (22 + 4 * i, 23 + 4 * i, 1024 * i + 512))
    a("v_mov_b32 v52, 0x3f803f80")
    a("v_mov_b32 v53, 0")
    for i in range(8):
        a("s_waitcnt lgkmcnt(%d)" % min(15, 14 - 2 * i))
        if i == 7:
            a("s_cmp_eq_u32 s45, 7")
            a("s_cbranch_scc1 L_p_skip7")
        a("buffer_store_dwordx4 v[%d:%d], v%d, s[4:7], s43 offen offset:%d" % (20 + 4 * i, 23 + 4 * i, 1 if i < 4 else 19, (i % 4) * 1024))
        for r in range(4):
            a("v_dot2_f32_bf16 v53, v%d, v52, v53" % (20 + 4 * i + r))
    a("L_p_skip7:")
    stamp(a, cfg, 5)
    a("s_cmp_eq_u32 s44, 0")
    a("s_cbranch_scc1 L_p_xpart")
    a("v_lshlrev_b32 v6, 2, v0")
    a("ds_write_b32 v6, v53 offset:32768")
    a("s_waitcnt lgkmcnt(0)")
    a("s_barrier")
    a("s_cmp_lg_u32 s12, 0")
    a("s_cbranch_scc1 L_p_xpart")
    a("v_lshlrev_b32 v6, 2, v3")
    for w in range(4):
        a("ds_read2_b32 v[%d:%d], v6 offset0:%d offset1:%d" % (56 + 2 * w, 57 + 2 * w, 0, 32) if False else
          "ds_read_b32 v%d, v6 offset:%d\nds_read_b32 v%d, v6 offset:%d" % (56 + 2 * w, 32768 + 256 * w, 57 + 2 * w, 32768 + 256 * w + 128))
    a("s_waitcnt lgkmcnt(0)")
    for q in (4, 2, 1):
        for i in range(q):
            a("v_add_f32 v%d, v%d, v%d" % (56 + i, 56 + i, 56 + i + q))
    a("buffer_store_dword v56, v6, s[4:7], s44 offen")
    a("s_cmp_lt_u32 s2, 33")
    a("s_cbranch_scc1 L_p_xpart")
    split3(a, 56, 60)
    a("v_lshrrev_b32 v57, 16, v60")
    a("v_or_b32 v20, v57, v60")
    a("v_lshrrev_b32 v58, 16, v61")
    a("v_or_b32 v21, v58, v60")
    a("v_lshrrev_b32 v58, 16, v62")
    a("v_or_b32 v22, v58, v61")
    a("v_mov_b32 v23, 0")
    a("v_cmp_gt_u32 vcc, 32, v2")
    a("v_cndmask_b32 v20, v23, v20, vcc")
    a("v_cndmask_b32 v21, v23, v21, vcc")
    a("v_cndmask_b32 v22, v23, v22, vcc")
    a("s_sub_u32 s48, s2, 33")
    a("s_lshl_b32 s48, s48, 10")
    a("s_add_u32 s48, s48, 0x%x" % OFF_CSX)
    a("buffer_store_dwordx4 v[20:23], v1, s[4:7], s48 offen")
    a("L_p_xpart:")
    stamp(a, cfg, 6)
    a("s_waitcnt vmcnt(0)")
    stamp(a, cfg, 7)
    a("v_permlane32_swap_b32 v8, v10")
    a("v_permlane32_swap_b32 v9, v11")
    a("v_permlane32_swap_b32 v12, v14")
    a("v_permlane32_swap_b32 v13, v15")
    a("s_lshl_b32 s15, s13, 15")
    a("s_lshl_b32 s40, s14, 11")
    a("s_add_u32 s15, s15, s40")
    a("s_add_u32 s15, s15, 0x%x" % OFF_X)
    a("buffer_store_dwordx4 v[8:11], v1, s[4:7], s15 offen")
    a("buffer_store_dwordx4 v[12:15], v1, s[4:7], s15 offen offset:1024")
    a("v_mov_b32 v52, 0x3f803f80")
    a("v_mov_b32 v54, 0")
    a("v_mov_b32 v55, 0")
    for r in range(8, 16):
        a("v_dot2_f32_bf16 v54, v%d, v52, v54" % r)
        a("v_dot2_f32_bf16 v55, v%d, v%d, v55" % (r, r))
    a("v_mov_b32 v56, v54")
    a("v_mov_b32 v57, v55")
    a("v_permlane32_swap_b32 v54, v56")
    a("v_permlane32_swap_b32 v55, v57")
    a("v_add_f32 v54, v54, v56")
    a("v_add_f32 v55, v55, v57")
    a("s_lshl_b32 s15, s13, 12")
    a("s_lshl_b32 s40, s14, 8")
    a("s_add_u32 s15, s15, s40")
    a("s_add_u32 s15, s15, 0x%x" % OFF_STAT)
    a("v_lshlrev_b32 v6, 3, v3")
    a("buffer_store_dwordx2 v[54:55], v6, s[4:7], s15 offen")
    a("v_mov_b32 v58, 0")
    a("s_lshl_b32 s15, s2, 8")
    a("s_add_u32 s15, s15, 0x%x" % OFF_FLAGS)
    a("v_lshlrev_b32 v6, 2, v2")
    a("buffer_store_dword v58, v6, s[4:7], s15 offen")
    stamp(a, cfg, 8)
    stamp_flush(a, cfg, "s_mov_b32 s60, 0")
    if cfg.get("code_prefetch"):
        a("s_getpc_b64 s[50:51]")
        a("L_p_pc:")
        a("s_add_u32 s50, s50, L_code_begin-L_p_pc")
        a("s_addc_u32 s51, s51, 0")
        a("s_lshr_b32 s52, s2, 3")
        a("s_lshl_b32 s52, s52, 11")
        a("v_lshlrev_b32 v6, 3, v0")
        a("v_add_u32 v6, s52, v6")
        a("v_cmp_gt_u32 vcc, L_code_end-L_code_begin-8, v6")
        a("s_and_saveexec_b64 s[54:55], vcc")
        a("s_cbranch_execz L_exit")
        a("global_load_dwordx2 v[60:61], v6, s[50:51]")
        a("s_waitcnt vmcnt(0)")


G_ACC = 16
G_ST = 80
G_CS = 96
G_T = 112
G_RED = 128
G_KVACC = 176
G_Q = 208
V_NMU, V_RSTD = 218, 219
V_WR = [220, 221, 222]
V_RD = 223


def gemm64_addr(a, s_a0, s_a1, s_b0, s_b1, offA, ksA, offB_sreg, ksB, ksw):
    a("s_lshr_b32 s17, s%d, 1" % S_W)
    a("s_and_b32 s18, s%d, 1" % S_W)
    a("s_lshl_b32 s19, s%d, 1" % S_HQ)
    a("s_add_u32 s19, s19, s17")
    a("s_mul_i32 s20, s%d, %d" % (S_W, ksw * 1024))
    a("s_mul_i32 s%d, s19, %d" % (s_a0, ksA * 1024))
    a("s_add_u32 s%d, s%d, s20" % (s_a0, s_a0))
    a("s_add_u32 s%d, s%d, 0x%x" % (s_a0, s_a0, offA))
    a("s_xor_b32 s21, s19, 1")
    a("s_mul_i32 s%d, s21, %d" % (s_a1, ksA * 1024))
    a("s_add_u32 s%d, s%d, s20" % (s_a1, s_a1))
    a("s_add_u32 s%d, s%d, 0x%x" % (s_a1, s_a1, offA))
    a("s_lshl_b32 s22, s%d, 1" % S_RB)
    a("s_add_u32 s22, s22, s18")
    a("s_mul_i32 s%d, s22, %d" % (s_b0, ksB * 1024))
    a("s_add_u32 s%d, s%d, s20" % (s_b0, s_b0))
    a("s_add_u32 s%d, s%d, s%d" % (s_b0, s_b0, offB_sreg))
    a("s_xor_b32 s21, s22, 1")
    a("s_mul_i32 s%d, s21, %d" % (s_b1, ksB * 1024))
    a("s_add_u32 s%d, s%d, s20" % (s_b1, s_b1))
    a("s_add_u32 s%d, s%d, s%d" % (s_b1, s_b1, offB_sreg))


def reduce_addr(a, base=0):
    for j in (1, 2, 3):
        a("s_xor_b32 s17, s%d, %d" % (S_W, j))
        a("s_mul_i32 s17, s17, 12288")
        a("s_add_u32 s17, s17, %d" % (base + (j - 1) * 4096))
        a("v_add_u32 v%d, s17, v%d" % (V_WR[j - 1], V_L16))
    a("s_mul_i32 s17, s%d, 12288" % S_W)
    a("s_add_u32 s17, s17, %d" % base)
    a("v_add_u32 v%d, s17, v%d" % (V_RD, V_L16))


def reduce4(a, cfg={}):
    stamp(a, cfg, 4)
    for j in (1, 2, 3):
        for q in range(4):
            r = G_ACC + 16 * j + 4 * q
            a("ds_write_b128 v%d, v[%d:%d] offset:%d" % (V_WR[j - 1], r, r + 3, q * 1024))
    a("s_waitcnt lgkmcnt(0)")
    stamp(a, cfg, 5)
    a("s_barrier")
    stamp(a, cfg, 6)
    for j in range(3):
        for q in range(4):
            r = G_RED + 16 * j + 4 * q
            a("ds_read_b128 v[%d:%d], v%d offset:%d" % (r, r + 3, V_RD, j * 4096 + q * 1024))
    for j in range(3):
        for q in range(4):
            a("s_waitcnt lgkmcnt(%d)" % (11 - (j * 4 + q)))
            for e in range(4):
                a("v_add_f32 v%d, v%d, v%d" % (G_ACC + 4 * q + e, G_ACC + 4 * q + e, G_RED + 16 * j + 4 * q + e))


def layer_off(a, sdst, base, stride, mul=1, add=0):
    a("s_mul_i32 s%d, s%d, 0x%x" % (sdst, S_LAYER, stride * mul))
    a("s_add_u32 s%d, s%d, 0x%x" % (sdst, sdst, base + add * stride))


def phase_qkv(a, cfg):
    sc = cfg.get("sc", "")
    SA0, SA1, SB0, SB1, SX, SKV = 24, 25, 26, 27, 28, 29
    layer_off(a, SX, OFF_X, X_STRIDE, 2, 0)
    gemm64_addr(a, SA0, SA1, SB0, SB1, OFF_WQ, 32, SX, 32, 8)
    a("s_lshl_b32 s%d, s%d, 13" % (SKV, S_W))
    a("s_add_u32 s%d, s%d, 0x%x" % (SKV, SKV, OFF_WKV))
    layer_off(a, 30, OFF_STAT, STAT_STRIDE, 2, 0)
    a("s_lshl_b32 s17, s22, 12")
    a("s_add_u32 s30, s30, s17")
    a("s_mov_b32 s31, s22")
    a("s_mov_b32 s32, s19")
    tB = []
    for i in range(8):
        blk(a, ar(64 + 4 * i, 4), SB0, i, sc)
        blk(a, ar(96 + 4 * i, 4), SB1, i, sc)
        blk(a, ar(128 + 4 * i, 4), SKV, i)
        tB.append(a.vt())
    load_stats(a, G_ST, 30, G_T, sc)
    t_st = a.vt()
    tA = []
    for i in range(8):
        blk(a, ar(0 + 4 * i, 4), SA0, i)
        blk(a, ar(32 + 4 * i, 4), SA1, i)
        tA.append(a.vt())
    a("s_lshl_b32 s17, s32, 7")
    a("s_add_u32 s17, s17, 0x%x" % OFF_CSQ)
    a("v_lshlrev_b32 v%d, 4, v%d" % (G_T + 1, V_H))
    for g in range(4):
        a("buffer_load_dwordx4 v[%d:%d], v%d, s[4:7], s17 offen offset:%d" % (G_CS + 4 * g, G_CS + 4 * g + 3, G_T + 1, 32 * g))
    t_cs = a.vt()
    reduce_addr(a, 0)
    layer_off(a, 33, OFF_KV, KV_STRIDE)
    stamp(a, cfg, 1)
    a("s_cmp_ge_u32 s%d, 2" % S_HQ)
    a("s_cbranch_scc1 L_qkv_nokv")
    KVL = 49152
    a("s_and_b32 s17, s%d, 1" % S_W)
    a("s_xor_b32 s17, s17, 1")
    a("s_lshl_b32 s17, s17, 1")
    a("s_lshr_b32 s18, s%d, 1" % S_W)
    a("s_add_u32 s17, s17, s18")
    a("s_lshl_b32 s17, s17, 12")
    a("s_add_u32 s17, s17, %d" % KVL)
    a("v_add_u32 v%d, s17, v%d" % (G_T + 2, V_L16))
    a("s_lshl_b32 s17, s%d, 12" % S_W)
    a("s_add_u32 s17, s17, %d" % (KVL + 16384))
    a("v_add_u32 v%d, s17, v%d" % (G_T + 3, V_L16))
    a("s_lshl_b32 s17, s%d, 12" % S_W)
    a("s_add_u32 s17, s17, %d" % KVL)
    a("v_add_u32 v%d, s17, v%d" % (G_T + 4, V_L16))
    a("v_add_u32 v%d, s17, v%d" % (G_T + 5, V_L16))
    a("s_lshl_b32 s17, s%d, 12" % S_W)
    a("v_add_u32 v%d, s17, v%d" % (G_T + 5, G_T + 5))
    a("s_cmp_eq_u32 s%d, 1" % S_HQ)
    a("s_cbranch_scc1 L_qkv_vacc")
    for i in range(8):
        a.wait_vm(tB[i])
        for j in range(2):
            a("%s v[%d:%d], %s, %s, %s" % (MF, G_KVACC + 16 * j, G_KVACC + 16 * j + 15, ar(128 + 4 * i, 4), ar(64 + 32 * j + 4 * i, 4),
                                          "0" if i == 0 else vr(G_KVACC + 16 * j, 16)))
    a("s_branch L_qkv_kvred")
    a("L_qkv_vacc:")
    for i in range(8):
        a.wait_vm(tB[i])
        for j in range(2):
            a("%s v[%d:%d], %s, %s, %s" % (MF, G_KVACC + 16 * j, G_KVACC + 16 * j + 15, ar(64 + 32 * j + 4 * i, 4), ar(128 + 4 * i, 4),
                                          "0" if i == 0 else vr(G_KVACC + 16 * j, 16)))
    a("L_qkv_kvred:")
    for q in range(4):
        a("ds_write_b128 v%d, v[%d:%d] offset:%d" % (G_T + 2, G_KVACC + 16 + 4 * q, G_KVACC + 16 + 4 * q + 3, q * 1024))
    for q in range(4):
        a("ds_write_b128 v%d, v[%d:%d] offset:%d" % (G_T + 3, G_KVACC + 4 * q, G_KVACC + 4 * q + 3, q * 1024))
    a("s_waitcnt lgkmcnt(0)")
    a("s_barrier")
    a("s_cmp_ge_u32 s%d, 2" % S_W)
    a("s_cbranch_scc1 L_qkv_nokv")
    for q in range(4):
        a("ds_read_b128 v[%d:%d], v%d offset:%d" % (G_RED + 4 * q, G_RED + 4 * q + 3, G_T + 5, q * 1024))
        a("ds_read_b128 v[%d:%d], v%d offset:%d" % (G_RED + 16 + 4 * q, G_RED + 16 + 4 * q + 3, G_T + 5, 4096 + q * 1024))
        a("ds_read_b128 v[%d:%d], v%d offset:%d" % (G_RED + 32 + 4 * q, G_RED + 32 + 4 * q + 3, G_T + 4, 16384 + 8192 + q * 1024))
    a("s_mov_b32 s17, 0x%x" % OFF_CSKV)
    a("buffer_load_dwordx4 v[%d:%d], v%d, s[4:7], s17 offen offset:64" % (G_KVACC + 16, G_KVACC + 19, G_T + 1))
    a("buffer_load_dwordx4 v[%d:%d], v%d, s[4:7], s17 offen offset:96" % (G_KVACC + 20, G_KVACC + 23, G_T + 1))
    a("v_lshlrev_b32 v%d, 2, v%d" % (G_T + 6, V_R31))
    a("buffer_load_dword v%d, v%d, s[4:7], s17 offen" % (G_KVACC + 24, G_T + 6))
    a.wait_vm(t_st)
    finish_stats(a, G_ST, V_NMU, V_RSTD)
    a("s_waitcnt lgkmcnt(0)")
    for j in range(3):
        for e in range(16):
            a("v_add_f32 v%d, v%d, v%d" % (G_KVACC + e, G_KVACC + e, G_RED + 16 * j + e))
    a("s_waitcnt vmcnt(0)")
    a("s_lshl_b32 s17, s31, 10")
    a("s_add_u32 s34, s33, s17")
    a("s_cmp_eq_u32 s%d, 1" % S_HQ)
    a("s_cbranch_scc1 L_qkv_vfin")
    for e in range(8):
        a("v_fmac_f32 v%d, v%d, v%d" % (G_KVACC + 8 + e, V_NMU, G_KVACC + 16 + e))
        a("v_mul_f32 v%d, v%d, v%d" % (G_KVACC + 8 + e, V_RSTD, G_KVACC + 8 + e))
    pack8(a, G_T + 8, G_KVACC + 8)
    a("buffer_store_dwordx4 v[%d:%d], v%d, s[4:7], s34 offen %s" % (G_T + 8, G_T + 11, V_L16, sc))
    a("v_mov_b32 v%d, 0" % (G_T + 12))
    for r in range(4):
        a("v_dot2_f32_bf16 v%d, v%d, v%d, v%d" % (G_T + 12, G_T + 8 + r, G_T + 8 + r, G_T + 12))
    xhalf_sum(a, G_T + 12, G_T + 13)
    for d in ("row_shr:1", "row_shr:2", "row_shr:4", "row_shr:8"):
        a("v_max_f32_dpp v%d, v%d, v%d %s row_mask:0xf bank_mask:0xf" % (G_T + 12, G_T + 12, G_T + 12, d))
    a("v_max_f32_dpp v%d, v%d, v%d row_bcast:15 row_mask:0xa bank_mask:0xf" % (G_T + 12, G_T + 12, G_T + 12))
    a("v_readlane_b32 s17, v%d, 31" % (G_T + 12))
    a("s_lshl_b32 s18, s31, 2")
    a("s_add_u32 s18, s18, s33")
    a("s_add_u32 s18, s18, 0x20000")
    a("v_mov_b32 v%d, s17" % (G_T + 13))
    a("v_mov_b32 v%d, 0" % (G_T + 14))
    a("buffer_store_dword v%d, v%d, s[4:7], s18 offen %s" % (G_T + 13, G_T + 14, sc))
    a("s_branch L_qkv_kvdone")
    a("L_qkv_vfin:")
    a("s_lshl_b32 s17, s%d, 8" % S_W)
    a("s_add_u32 s17, s17, %d" % (KVL + 32768))
    a("v_add_u32 v%d, s17, v%d" % (G_T + 7, G_T + 6))
    a("v_mul_f32 v%d, v%d, v%d" % (G_T + 8, V_NMU, V_RSTD))
    a("ds_write_b32 v%d, v%d" % (G_T + 7, V_RSTD))
    a("ds_write_b32 v%d, v%d offset:128" % (G_T + 7, G_T + 8))
    a("v_add_u32 v%d, s17, v%d" % (G_T + 7, G_T + 1))
    a("s_waitcnt lgkmcnt(0)")
    for g in range(4):
        a("ds_read_b128 v[%d:%d], v%d offset:%d" % (G_RED + 4 * g, G_RED + 4 * g + 3, G_T + 7, 32 * g))
        a("ds_read_b128 v[%d:%d], v%d offset:%d" % (G_RED + 16 + 4 * g, G_RED + 16 + 4 * g + 3, G_T + 7, 128 + 32 * g))
    a("s_waitcnt lgkmcnt(0)")
    for e in range(16):
        a("v_mul_f32 v%d, v%d, v%d" % (G_KVACC + e, G_RED + e, G_KVACC + e))
        a("v_fmac_f32 v%d, v%d, v%d" % (G_KVACC + e, G_RED + 16 + e, G_KVACC + 24))
    pack8(a, G_T + 8, G_KVACC)
    pack8(a, G_T + 12, G_KVACC + 8)
    a("v_lshlrev_b32 v%d, 4, v%d" % (G_T + 7, V_R31))
    a("v_lshl_add_u32 v%d, v%d, 8, v%d" % (G_T + 7, V_H, G_T + 7))
    a("s_add_u32 s34, s34, 0x10000")
    a("v_cmp_gt_u32 vcc, 16, v%d" % V_R31)
    a("s_and_saveexec_b64 s[36:37], vcc")
    a("buffer_store_dwordx4 v[%d:%d], v%d, s[4:7], s34 offen %s" % (G_T + 8, G_T + 11, G_T + 7, sc))
    a("buffer_store_dwordx4 v[%d:%d], v%d, s[4:7], s34 offen offset:512 %s" % (G_T + 12, G_T + 15, G_T + 7, sc))
    a("s_mov_b64 exec, s[36:37]")
    a("L_qkv_kvdone:")
    a("s_mov_b32 s35, 1")
    a("s_branch L_qkv_q")
    a("L_qkv_nokv:")
    a("s_mov_b32 s35, 0")
    a("L_qkv_q:")
    stamp(a, cfg, 2)
    nq = t_cs
    for i in range(8):
        a("s_waitcnt vmcnt(%d)" % (nq - tA[i]))
        for j in range(4):
            a("%s v[%d:%d], %s, %s, %s" % (MF, G_ACC + 16 * j, G_ACC + 16 * j + 15, ar(32 * (j >> 1) + 4 * i, 4), ar(64 + 32 * (j & 1) + 4 * i, 4),
                                          "0" if i == 0 else vr(G_ACC + 16 * j, 16)))
    a("s_cmp_eq_u32 s35, 1")
    a("s_cbranch_scc1 L_qkv_hs")
    finish_stats(a, G_ST, V_NMU, V_RSTD)
    a("L_qkv_hs:")
    reduce4(a, cfg)
    stamp(a, cfg, 7)
    a("s_waitcnt vmcnt(0)")
    a("v_mul_f32 v%d, %s, v%d" % (G_T, fl(QSCALE), V_RSTD))
    for e in range(16):
        a("v_fmac_f32 v%d, v%d, v%d" % (G_ACC + e, V_NMU, G_CS + e))
        a("v_mul_f32 v%d, v%d, v%d" % (G_ACC + e, G_T, G_ACC + e))
    pack8(a, G_Q, G_ACC)
    pack8(a, G_Q + 4, G_ACC + 8)
    if cfg.get("store_q"):
        a("s_lshl_b32 s17, s31, 15")
        a("s_lshl_b32 s18, s32, 11")
        a("s_add_u32 s17, s17, s18")
        a("s_add_u32 s17, s17, 0x%x" % OFF_Q)
        a("buffer_store_dwordx4 v[%d:%d], v%d, s[4:7], s17 offen" % (G_Q, G_Q + 3, V_L16))
        a("buffer_store_dwordx4 v[%d:%d], v%d, s[4:7], s17 offen offset:1024" % (G_Q + 4, G_Q + 7, V_L16))


A_C = [16, 32]
A_O = [48, 64]
A_S = [80, 96]
A_P = [112, 116, 120, 124]
A_KF = [128, 132]
A_VF = [[136, 140], [144, 148]]
A_VK, A_VV, A_VINC = 152, 153, 154
A_T = 156
LDS_V = 65536
LDS_ONES = 131072
LDS_ATT_FLAG = LDS_ONES + 5120
UNR = 4


def phase_att(a, cfg):
    sc = cfg.get("sc", "")
    Q = [G_Q, G_Q + 4]
    layer_off(a, 33, OFF_KV, KV_STRIDE)
    a("s_lshr_b32 s17, s%d, 1" % S_W)
    a("s_and_b32 s18, s%d, 1" % S_W)
    a("s_lshl_b32 s32, s%d, 1" % S_HQ)
    a("s_add_u32 s32, s32, s17")
    a("s_lshl_b32 s31, s%d, 1" % S_RB)
    a("s_add_u32 s31, s31, s18")
    if cfg.get("load_q"):
        a("s_lshl_b32 s17, s31, 15")
        a("s_lshl_b32 s18, s32, 11")
        a("s_add_u32 s17, s17, s18")
        a("s_add_u32 s17, s17, 0x%x" % OFF_Q)
        a("buffer_load_dwordx4 v[%d:%d], v%d, s[4:7], s17 offen" % (G_Q, G_Q + 3, V_L16))
        a("buffer_load_dwordx4 v[%d:%d], v%d, s[4:7], s17 offen offset:1024" % (G_Q + 4, G_Q + 7, V_L16))
    a("v_lshlrev_b32 v%d, 2, v%d" % (A_T, V_LANE))
    a("s_add_u32 s17, s33, 0x20000")
    a("buffer_load_dword v%d, v%d, s[4:7], s17 offen %s" % (A_T + 1, A_T, sc))
    t_kn = a.vt()
    a("s_lshl_b32 s20, s%d, 10" % S_W)
    a("s_add_u32 s21, s33, s20")
    a("s_add_u32 s22, s21, 0x10000")
    a("s_add_u32 s23, s20, %d" % LDS_V)
    for g in range(16):
        a("s_add_u32 m0, s20, %d" % (g * 4096))
        a("buffer_load_dwordx4 v%d, s[4:7], s21 offen %s lds" % (V_L16, sc))
        a("s_add_u32 m0, s23, %d" % (g * 4096))
        a("buffer_load_dwordx4 v%d, s[4:7], s22 offen %s lds" % (V_L16, sc))
        if g < 15:
            a("s_add_u32 s21, s21, 4096")
            a("s_add_u32 s22, s22, 4096")
        if g == 3:
            t_g3 = a.vt()
    t_all = a.vt()
    for r in range(4):
        a("v_mov_b32 v%d, 0x3f803f80" % (A_T + 4 + r))
    a("v_lshlrev_b32 v%d, 4, v0" % (A_T + 2))
    a("ds_write_b128 v%d, v[%d:%d] offset:%d" % (A_T + 2, A_T + 4, A_T + 7, 0) if False else
      "v_add_u32 v%d, %d, v%d" % (A_T + 2, LDS_ONES, A_T + 2))
    a("ds_write_b128 v%d, v[%d:%d]" % (A_T + 2, A_T + 4, A_T + 7))
    a("ds_write_b128 v%d, v[%d:%d] offset:1024" % (A_T + 2, A_T + 4, A_T + 7))
    a("v_mov_b32 v%d, v%d" % (A_VK, V_L16))
    a("v_and_b32 v%d, 15, v%d" % (A_T + 2, V_LANE))
    a("v_lshlrev_b32 v%d, 4, v%d" % (A_T + 2, A_T + 2))
    a("v_lshl_add_u32 v%d, v%d, 8, v%d" % (A_T + 2, V_H, A_T + 2))
    a("v_add_u32 v%d, %d, v%d" % (A_VV, LDS_V, A_T + 2))
    a("v_add_u32 v%d, -20, v%d" % (A_T + 3, V_R31))
    a("v_cmp_gt_u32 vcc, 8, v%d" % (A_T + 3))
    a("v_mov_b32 v%d, %d" % (A_T + 2, LDS_ONES))
    a("v_mov_b32 v%d, %d" % (A_T + 3, LDS_ONES + 64))
    a("v_cndmask_b32 v%d, v%d, v%d, vcc" % (A_T + 2, A_T + 2, A_T + 3))
    a("v_cmp_le_u32 vcc, 16, v%d" % V_R31)
    a("v_mov_b32 v%d, %d" % (A_VINC, UNR * 1024))
    a("v_mov_b32 v%d, 0" % (A_T + 3))
    a("v_cndmask_b32 v%d, v%d, v%d, vcc" % (A_VV, A_VV, A_T + 2))
    a("v_cndmask_b32 v%d, v%d, v%d, vcc" % (A_VINC, A_VINC, A_T + 3))
    for t in range(2):
        for r in range(16):
            a("v_mov_b32 v%d, 0" % (A_O[t] + r))
    for r in range(4):
        a("v_mov_b32 v%d, 0" % (A_P[3] + r))
        a("v_mov_b32 v%d, 0" % (A_VF[1][1] + r))
    stamp(a, cfg, 1)
    a.wait_vm(t_kn)
    stamp(a, cfg, 2)
    k2 = A_T + 1
    for d in ("row_shr:1", "row_shr:2", "row_shr:4", "row_shr:8"):
        a("v_max_f32_dpp v%d, v%d, v%d %s row_mask:0xf bank_mask:0xf" % (k2, k2, k2, d))
    a("v_max_f32_dpp v%d, v%d, v%d row_bcast:15 row_mask:0xa bank_mask:0xf" % (k2, k2, k2))
    a("v_max_f32_dpp v%d, v%d, v%d row_bcast:31 row_mask:0xc bank_mask:0xf" % (k2, k2, k2))
    a("v_readlane_b32 s17, v%d, 63" % k2)
    for t in range(2):
        n = A_T + 8 + t
        a("v_mov_b32 v%d, 0" % n)
        for r in range(4):
            a("v_dot2_f32_bf16 v%d, v%d, v%d, v%d" % (n, Q[t] + r, Q[t] + r, n))
        xhalf_sum(a, n, A_T + 10)
        a("v_mul_f32 v%d, s17, v%d" % (n, n))
        a("v_sqrt_f32 v%d, v%d" % (n, n))
        a("v_mul_f32 v%d, %s, v%d" % (n, fl(-1.001), n))
        for r in range(16):
            a("v_mov_b32 v%d, v%d" % (A_C[t] + r, n))
    a("v_min_f32 v%d, v%d, v%d" % (A_T + 10, A_T + 8, A_T + 9))
    a("v_cmp_nge_f32 vcc, v%d, v%d" % (A_T + 10, A_T + 10) if False else "v_mov_b32 v%d, %s" % (A_T + 11, fl(-cfg.get("bound_t", BOUND_T))))
    a("v_cmp_nge_f32 vcc, v%d, v%d" % (A_T + 10, A_T + 11))
    a("s_cmp_lg_u64 vcc, 0")
    a("s_cselect_b32 s18, 1, 0")
    a("v_mov_b32 v%d, s18" % (A_T + 11))
    a("s_lshl_b32 s19, s%d, 2" % S_W)
    a("s_add_u32 s19, s19, %d" % LDS_ATT_FLAG)
    a("v_mov_b32 v%d, s19" % (A_T + 12))
    a("ds_write_b32 v%d, v%d" % (A_T + 12, A_T + 11))
    stamp(a, cfg, 3)
    a.wait_vm(t_g3)
    a("s_waitcnt lgkmcnt(0)")
    a("s_barrier")
    stamp(a, cfg, 4)
    a("v_mov_b32 v%d, %d" % (A_T + 12, LDS_ATT_FLAG))
    a("ds_read_b128 v[%d:%d], v%d" % (A_T + 4, A_T + 7, A_T + 12))
    a("ds_read_b128 v[%d:%d], v%d" % (A_KF[0], A_KF[0] + 3, A_VK))
    a("ds_read_b128 v[%d:%d], v%d" % (A_VF[0][0], A_VF[0][0] + 3, A_VV))
    a("ds_read_b128 v[%d:%d], v%d offset:512" % (A_VF[0][1], A_VF[0][1] + 3, A_VV))
    a("ds_read_b128 v[%d:%d], v%d offset:1024" % (A_KF[1], A_KF[1] + 3, A_VK))
    a("s_waitcnt lgkmcnt(4)")
    a("v_or_b32 v%d, v%d, v%d" % (A_T + 4, A_T + 4, A_T + 5))
    a("v_or3_b32 v%d, v%d, v%d, v%d" % (A_T + 4, A_T + 4, A_T + 6, A_T + 7))
    a("v_readfirstlane_b32 s18, v%d" % (A_T + 4))
    a("s_cmp_eq_u32 s18, 0")
    a("s_cbranch_scc1 L_att_fast")
    a("s_waitcnt vmcnt(0)")
    a("s_barrier")
    a("v_mov_b32 v%d, 0xff800000" % (A_T + 8))
    a("v_mov_b32 v%d, 0xff800000" % (A_T + 9))
    a("v_mov_b32 v%d, v%d" % (A_T + 12, V_L16))
    a("s_mov_b32 s19, 64")
    a("L_att_pre:")
    a("ds_read_b128 v[%d:%d], v%d" % (A_P[0], A_P[0] + 3, A_T + 12))
    a("v_add_u32 v%d, 1024, v%d" % (A_T + 12, A_T + 12))
    a("s_waitcnt lgkmcnt(0)")
    for t in range(2):
        a("%s v[%d:%d], v[%d:%d], v[%d:%d], 0" % (MF, A_S[t], A_S[t] + 15, A_P[0], A_P[0] + 3, Q[t], Q[t] + 3))
    for t in range(2):
        for r in range(0, 16, 2):
            a("v_max3_f32 v%d, v%d, v%d, v%d" % (A_T + 8 + t, A_S[t] + r, A_S[t] + r + 1, A_T + 8 + t))
    a("s_sub_u32 s19, s19, 1")
    a("s_cmp_lg_u32 s19, 0")
    a("s_cbranch_scc1 L_att_pre")
    for t in range(2):
        n = A_T + 8 + t
        a("v_mov_b32 v%d, v%d" % (A_T + 10, n))
        a("v_permlane32_swap_b32 v%d, v%d" % (n, A_T + 10))
        a("v_max_f32 v%d, v%d, v%d" % (n, n, A_T + 10))
        a("v_sub_f32 v%d, 0, v%d" % (n, n))
        for r in range(16):
            a("v_mov_b32 v%d, v%d" % (A_C[t] + r, n))
    a("L_att_fast:")
    a("s_waitcnt lgkmcnt(0)")

    def mf(d, x, y, c):
        a("%s v[%d:%d], v[%d:%d], v[%d:%d], v[%d:%d]" % (MF, d, d + 15, x, x + 3, y, y + 3, c, c + 15))

    def ex(r):
        a("v_exp_f32 v%d, v%d" % (r, r))

    def cv(d, s):
        a("v_cvt_pk_bf16_f32 v%d, v%d, v%d" % (d, s, s + 1))

    mf(A_S[0], A_KF[0], Q[0], A_C[0])
    a("s_mov_b32 s19, 3")
    a("s_mov_b32 s18, 0")
    a("s_nop 7")
    a(".p2align 3")
    a("L_att_loop:")
    units = [(j, t) for j in range(UNR) for t in range(2)]
    U = len(units)
    for u, (j, t) in enumerate(units):
        nj, nt = units[(u + 1) % U]
        pj, pt = units[(u - 1) % U]
        sb, nsb = A_S[u % 2], A_S[(u + 1) % 2]
        plo, phi = A_P[(u % 2) * 2], A_P[(u % 2) * 2 + 1]
        pphi = A_P[((u - 1) % 2) * 2 + 1]
        mf(nsb, A_KF[nj % 2], Q[nt], A_C[nt])
        if t == 0:
            a("ds_read_b128 v[%d:%d], v%d offset:%d" % (A_KF[j % 2], A_KF[j % 2] + 3, A_VK, (j + 2) * 1024))
        for r in range(0, 4):
            ex(sb + r)
        mf(A_O[pt], A_VF[pj % 2][1], pphi, A_O[pt])
        if t == 0:
            off = (j + 1) * 1024
            a("ds_read_b128 v[%d:%d], v%d offset:%d" % (A_VF[(j + 1) % 2][0], A_VF[(j + 1) % 2][0] + 3, A_VV, off))
            a("ds_read_b128 v[%d:%d], v%d offset:%d" % (A_VF[(j + 1) % 2][1], A_VF[(j + 1) % 2][1] + 3, A_VV, off + 512))
        for r in range(4, 9):
            ex(sb + r)
        for r in range(0, 4):
            cv(plo + r, sb + 2 * r)
        for r in range(9, 12):
            ex(sb + r)
        mf(A_O[t], A_VF[j % 2][0], plo, A_O[t])
        if t == 1:
            a("s_waitcnt lgkmcnt(0)")
        if u == U - 1:
            a("s_sub_u32 s19, s19, 1")
        for r in range(12, 16):
            ex(sb + r)
        if u == U - 1:
            a("v_add_u32 v%d, %d, v%d" % (A_VK, UNR * 1024, A_VK))
            a("v_add_u32 v%d, v%d, v%d" % (A_VV, A_VINC, A_VV))
        for r in range(4, 8):
            cv(phi + r - 4, sb + 2 * r)
    a("s_cmp_lg_u32 s19, 0")
    a("s_cbranch_scc1 L_att_loop")
    a("s_cmp_lg_u32 s18, 0")
    a("s_cbranch_scc1 L_att_done")
    a("s_mov_b32 s18, 1")
    a("s_mov_b32 s19, %d" % (64 // UNR - 3))
    stamp(a, cfg, 5)
    a("s_waitcnt vmcnt(%d)" % (a.vm_issued - t_all))
    a("s_barrier")
    stamp(a, cfg, 6)
    a("s_branch L_att_loop")
    a("L_att_done:")
    stamp(a, cfg, 7)
    lj, lt = units[-1]
    mf(A_O[lt], A_VF[lj % 2][1], A_P[((U - 1) % 2) * 2 + 1], A_O[lt])
    layer_off(a, 17, OFF_O, X_STRIDE)
    a("s_lshl_b32 s18, s31, 15")
    a("s_add_u32 s17, s17, s18")
    a("s_lshl_b32 s18, s32, 11")
    a("s_add_u32 s17, s17, s18")
    for t in range(2):
        a("v_rcp_f32 v%d, v%d" % (A_T, A_O[t] + 8))
        for r in range(8):
            a("v_mul_f32 v%d, v%d, v%d" % (A_O[t] + r, A_T, A_O[t] + r))
        pack8(a, A_P[t], A_O[t])
        a("buffer_store_dwordx4 v[%d:%d], v%d, s[4:7], s17 offen offset:%d %s" % (A_P[t], A_P[t] + 3, V_L16, t * 1024, sc))


def res_epilogue(a, cfg, xin_mul_add, xout_add, final):
    sc = cfg.get("sc", "")
    for i in range(8):
        a("v_lshlrev_b32 v%d, 16, v%d" % (G_T, G_CS + i))
        a("v_and_b32 v%d, 0xffff0000, v%d" % (G_T + 1, G_CS + i))
        a("v_add_f32 v%d, v%d, v%d" % (G_ACC + 2 * i, G_ACC + 2 * i, G_T))
        a("v_add_f32 v%d, v%d, v%d" % (G_ACC + 2 * i + 1, G_ACC + 2 * i + 1, G_T + 1))
    pack8(a, G_T + 4, G_ACC)
    pack8(a, G_T + 8, G_ACC + 8)
    if final is not None:
        a("s_cmp_eq_u32 s%d, 1" % S_LAYER)
        a("s_cbranch_scc1 %s" % final)
    layer_off(a, 17, OFF_X, X_STRIDE, 2, xout_add)
    a("s_lshl_b32 s18, s31, 15")
    a("s_add_u32 s17, s17, s18")
    a("s_lshl_b32 s18, s32, 11")
    a("s_add_u32 s17, s17, s18")
    a("buffer_store_dwordx4 v[%d:%d], v%d, s[4:7], s17 offen %s" % (G_T + 4, G_T + 7, V_L16, sc))
    a("buffer_store_dwordx4 v[%d:%d], v%d, s[4:7], s17 offen offset:1024 %s" % (G_T + 8, G_T + 11, V_L16, sc))
    a("v_mov_b32 v%d, 0x3f803f80" % G_T)
    a("v_mov_b32 v%d, 0" % (G_T + 12))
    a("v_mov_b32 v%d, 0" % (G_T + 13))
    for r in range(8):
        a("v_dot2_f32_bf16 v%d, v%d, v%d, v%d" % (G_T + 12, G_T + 4 + r, G_T, G_T + 12))
        a("v_dot2_f32_bf16 v%d, v%d, v%d, v%d" % (G_T + 13, G_T + 4 + r, G_T + 4 + r, G_T + 13))
    a("v_mov_b32 v%d, v%d" % (G_T + 14, G_T + 12))
    a("v_mov_b32 v%d, v%d" % (G_T + 15, G_T + 13))
    a("v_permlane32_swap_b32 v%d, v%d" % (G_T + 12, G_T + 14))
    a("v_permlane32_swap_b32 v%d, v%d" % (G_T + 13, G_T + 15))
    a("v_add_f32 v%d, v%d, v%d" % (G_T + 12, G_T + 12, G_T + 14))
    a("v_add_f32 v%d, v%d, v%d" % (G_T + 13, G_T + 13, G_T + 15))
    layer_off(a, 17, OFF_STAT, STAT_STRIDE, 2, xout_add)
    a("s_lshl_b32 s18, s31, 12")
    a("s_add_u32 s17, s17, s18")
    a("s_lshl_b32 s18, s32, 3")
    a("s_add_u32 s17, s17, s18")
    a("v_lshlrev_b32 v%d, 7, v%d" % (G_T + 2, V_R31))
    a("v_cmp_gt_u32 vcc, 32, v%d" % V_LANE)
    a("s_and_saveexec_b64 s[36:37], vcc")
    a("buffer_store_dwordx2 v[%d:%d], v%d, s[4:7], s17 offen %s" % (G_T + 12, G_T + 13, G_T + 2, sc))
    a("s_mov_b64 exec, s[36:37]")


def final_store(a):
    a("v_permlane32_swap_b32 v%d, v%d" % (G_T + 4, G_T + 6))
    a("v_permlane32_swap_b32 v%d, v%d" % (G_T + 5, G_T + 7))
    a("v_permlane32_swap_b32 v%d, v%d" % (G_T + 8, G_T + 10))
    a("v_permlane32_swap_b32 v%d, v%d" % (G_T + 9, G_T + 11))
    a("s_lshl_b32 s17, s31, 15")
    a("s_lshl_b32 s18, s32, 6")
    a("s_add_u32 s17, s17, s18")
    a("v_lshlrev_b32 v%d, 10, v%d" % (G_T + 2, V_R31))
    a("v_lshl_add_u32 v%d, v%d, 4, v%d" % (G_T + 2, V_H, G_T + 2))
    a("buffer_store_dwordx4 v[%d:%d], v%d, s[8:11], s17 offen" % (G_T + 4, G_T + 7, G_T + 2))
    a("buffer_store_dwordx4 v[%d:%d], v%d, s[8:11], s17 offen offset:32" % (G_T + 8, G_T + 11, G_T + 2))


def load_resid(a, cfg, xin_add):
    sc = cfg.get("sc", "")
    layer_off(a, 17, OFF_X, X_STRIDE, 2, xin_add)
    a("s_lshl_b32 s18, s31, 15")
    a("s_add_u32 s17, s17, s18")
    a("s_lshl_b32 s18, s32, 11")
    a("s_add_u32 s17, s17, s18")
    a("buffer_load_dwordx4 v[%d:%d], v%d, s[4:7], s17 offen %s" % (G_CS, G_CS + 3, V_L16, sc))
    a("buffer_load_dwordx4 v[%d:%d], v%d, s[4:7], s17 offen offset:1024 %s" % (G_CS + 4, G_CS + 7, V_L16, sc))


def phase_wo(a, cfg):
    sc = cfg.get("sc", "")
    SA0, SA1, SB0, SB1, SX = 24, 25, 26, 27, 28
    layer_off(a, SX, OFF_O, X_STRIDE)
    gemm64_addr(a, SA0, SA1, SB0, SB1, OFF_WO, 32, SX, 32, 8)
    a("s_mov_b32 s31, s22")
    a("s_mov_b32 s32, s19")
    t = []
    for i in range(8):
        blk(a, ar(0 + 4 * i, 4), SA0, i)
        blk(a, ar(64 + 4 * i, 4), SB0, i, sc)
        blk(a, ar(96 + 4 * i, 4), SB1, i, sc)
        blk(a, ar(32 + 4 * i, 4), SA1, i)
        t.append(a.vt())
    load_resid(a, cfg, 0)
    reduce_addr(a, 0)
    stamp(a, cfg, 1)
    for i in range(8):
        a.wait_vm(t[i])
        if i == 0:
            stamp(a, cfg, 2)
        for j in range(4):
            a("%s v[%d:%d], %s, %s, %s" % (MF, G_ACC + 16 * j, G_ACC + 16 * j + 15, ar(32 * (j >> 1) + 4 * i, 4), ar(64 + 32 * (j & 1) + 4 * i, 4),
                                          "0" if i == 0 else vr(G_ACC + 16 * j, 16)))
    reduce4(a, cfg)
    stamp(a, cfg, 7)
    a("s_waitcnt vmcnt(0)")
    res_epilogue(a, cfg, 0, 1, None)


def phase_ffn2(a, cfg):
    sc = cfg.get("sc", "")
    SA0, SA1, SB0, SB1, SX = 24, 25, 26, 27, 28
    layer_off(a, SX, OFF_H, H_STRIDE)
    gemm64_addr(a, SA0, SA1, SB0, SB1, OFF_W2, 112, SX, 112, 28)
    a("s_mov_b32 s31, s22")
    a("s_mov_b32 s32, s19")
    R = 14
    t = {}

    def issue(i):
        b = 16 * (i % R)
        blk(a, ar(b, 4), SA0, i)
        blk(a, ar(b + 8, 4), SB0, i, sc)
        blk(a, ar(b + 12, 4), SB1, i, sc)
        blk(a, ar(b + 4, 4), SA1, i)
        t[i] = a.vt()

    load_resid(a, cfg, 1)
    for i in range(R):
        issue(i)
    reduce_addr(a, 0)
    stamp(a, cfg, 1)
    for i in range(28):
        a.wait_vm(t[i])
        if i == 0:
            stamp(a, cfg, 2)
        if i == 14:
            stamp(a, cfg, 3)
        b = 16 * (i % R)
        for j in range(4):
            a("%s v[%d:%d], %s, %s, %s" % (MF, G_ACC + 16 * j, G_ACC + 16 * j + 15, ar(b + 4 * (j >> 1), 4), ar(b + 8 + 4 * (j & 1), 4),
                                          "0" if i == 0 else vr(G_ACC + 16 * j, 16)))
        if i + R < 28:
            issue(i + R)
    reduce4(a, cfg)
    stamp(a, cfg, 7)
    res_epilogue(a, cfg, 1, 2, "L_ffn2_final")
    a("s_branch L_ffn2_end")
    a("L_ffn2_final:")
    final_store(a)
    a("L_ffn2_end:")


F_ACC = [16, 32, 48]
F_W = 64
F_CS = [96, 112]
F_ST = 128
F_T = 144
F_H = 176
F_LA = [184, 185]
F_NMU, F_C1, F_RS2 = 186, 187, 188


def phase_ffn1(a, cfg):
    sc = cfg.get("sc", "")
    SX, SW, SCS, SH = 24, 25, 26, 27
    a("s_lshl_b32 s31, s%d, 2" % S_RG)
    a("s_add_u32 s31, s31, s%d" % S_W)
    a("s_mul_i32 s%d, s%d, %d" % (SW, S_M, 7 * 32768))
    a("s_lshl_b32 s17, s%d, 13" % S_W)
    a("s_add_u32 s%d, s%d, s17" % (SW, SW))
    a("s_add_u32 s%d, s%d, 0x%x" % (SW, SW, OFF_W13))
    a("s_mov_b32 s28, s17")

    def dma(i):
        slot = i % 4
        for hh in range(2):
            a("s_add_u32 m0, s28, %d" % (slot * 32768 + hh * 4096))
            a("s_add_u32 s29, s%d, %d" % (SW, i * 32768 + hh * 4096))
            for q in range(4):
                a("buffer_load_dwordx4 v%d, s[4:7], s29 offen offset:%d lds" % (V_L16, q * 1024))

    layer_off(a, SX, OFF_X, X_STRIDE, 2, 1)
    a("s_lshl_b32 s17, s31, 15")
    a("s_add_u32 s%d, s%d, s17" % (SX, SX))
    a("s_add_u32 s30, s%d, %d" % (SX, 28 * 1024))
    dma(0)
    dma(1)
    t_w01 = a.vt()
    tX = []
    for i in range(32):
        if i < 28:
            blk(a, ar(4 * i, 4), SX, i, sc)
        else:
            blk(a, ar(4 * i, 4), 30, i - 28, sc)
        tX.append(a.vt())
    layer_off(a, 17, OFF_STAT, STAT_STRIDE, 2, 1)
    a("s_lshl_b32 s18, s31, 12")
    a("s_add_u32 s17, s17, s18")
    load_stats(a, F_ST, 17, F_T, sc)
    t_st = a.vt()
    a("s_mul_i32 s%d, s%d, %d" % (SCS, S_M, 7 * 128))
    a("s_add_u32 s%d, s%d, 0x%x" % (SCS, SCS, OFF_CS13))
    a("v_lshlrev_b32 v%d, 4, v%d" % (F_T + 1, V_H))
    t_cs = {}

    def load_cs(i):
        for g in range(4):
            a("buffer_load_dwordx4 v[%d:%d], v%d, s[4:7], s%d offen offset:%d" % (F_CS[i % 2] + 4 * g, F_CS[i % 2] + 4 * g + 3, F_T + 1, SCS, i * 128 + 32 * g))
        t_cs[i] = a.vt()

    load_cs(0)
    load_cs(1)
    layer_off(a, SH, OFF_H, H_STRIDE)
    a("s_mul_i32 s17, s31, %d" % (112 * 1024))
    a("s_add_u32 s%d, s%d, s17" % (SH, SH))
    a("s_mul_i32 s17, s%d, %d" % (S_M, 7 * 1024))
    a("s_add_u32 s%d, s%d, s17" % (SH, SH))
    a("v_mov_b32 v%d, v%d" % (F_LA[0], V_L16))
    a("v_add_u32 v%d, 65536, v%d" % (F_LA[1], V_L16))
    stamp(a, cfg, 1)
    a.wait_vm(t_w01)
    a("s_barrier")
    stamp(a, cfg, 2)
    dma(2)
    dma(3)
    t_w23 = a.vt()

    def wread(tile, ks, ring):
        slot = tile % 4
        a("ds_read_b128 v[%d:%d], v%d offset:%d" % (F_W + 4 * ring, F_W + 4 * ring + 3, F_LA[slot >> 1], (slot & 1) * 32768 + ks * 1024))

    def epi(tile):
        acc, cs = F_ACC[tile % 3], F_CS[tile % 2]
        hp = F_H + 4 * (tile % 2)
        out = []
        for e in range(8):
            out.append("v_fmac_f32 v%d, v%d, v%d" % (acc + e, F_NMU, cs + e))
            out.append("v_fmac_f32 v%d, v%d, v%d" % (acc + 8 + e, F_NMU, cs + 8 + e))
        for e in range(8):
            out.append("v_mul_f32 v%d, v%d, v%d" % (F_T + 8 + e, F_C1, acc + e))
        for e in range(8):
            out.append("v_exp_f32 v%d, v%d" % (F_T + 8 + e, F_T + 8 + e))
            out.append("v_mul_f32 v%d, v%d, v%d" % (acc + e, acc + e, acc + 8 + e))
        for e in range(8):
            out.append("v_add_f32 v%d, 1.0, v%d" % (F_T + 8 + e, F_T + 8 + e))
        for e in range(8):
            out.append("v_rcp_f32 v%d, v%d" % (F_T + 8 + e, F_T + 8 + e))
            out.append("v_mul_f32 v%d, v%d, v%d" % (acc + e, F_RS2, acc + e))
        for e in range(8):
            out.append("v_mul_f32 v%d, v%d, v%d" % (acc + e, F_T + 8 + e, acc + e))
        for i in range(4):
            out.append("v_cvt_pk_bf16_f32 v%d, v%d, v%d" % (hp + i, acc + 2 * i, acc + 2 * i + 1))
        out.append("buffer_store_dwordx4 v[%d:%d], v%d, s[4:7], s%d offen offset:%d %s" % (hp, hp + 3, V_OFF[tile // 4], SH, (tile % 4) * 1024, sc))
        return out

    steps = []
    for ks in range(32):
        steps.append((0, ks))
        steps.append((1, ks))
    for tile in range(2, 7):
        for ks in range(32):
            steps.append((tile, ks))
    N = len(steps)
    PF = 6
    lt = {}
    first_of = {}
    for n, (tile, ks) in enumerate(steps):
        first_of.setdefault(tile, n)
    def fence_before_read(tile):
        if tile == 2:
            a.wait_vm(t_w23)
            a("s_barrier")
        elif tile == 4:
            a.wait_vm(fence_t[4])
            a("s_barrier")
        elif tile == 6:
            a.wait_vm(fence_t[6])
            a("s_barrier")

    fence_t = {}
    nread = 0

    def do_read(n):
        tile, ks = steps[n]
        if n == first_of[tile]:
            fence_before_read(tile)
        wread(tile, ks, n % 8)
        lt[n] = a.lt()

    for n in range(PF):
        do_read(n)
    pending = []
    stats_done = False
    for n, (tile, ks) in enumerate(steps):
        if tile >= 2 and ks == 0:
            stamp(a, cfg, 1 + tile)
        if tile < 2 and tile == 0:
            a.wait_vm(tX[ks])
        a.wait_lg(lt[n])
        acc = F_ACC[tile % 3]
        a("%s v[%d:%d], v[%d:%d], %s, %s" % (MF, acc, acc + 15, F_W + 4 * (n % 8), F_W + 4 * (n % 8) + 3, ar(4 * ks, 4),
                                            "0" if ks == 0 else vr(acc, 16)))
        if n + PF < N:
            do_read(n + PF)
        if n == first_of[2] + 2:
            a("s_barrier")
            dma(4)
            dma(5)
            fence_t[4] = a.vt()
        if n == first_of[3] + 2:
            a("s_barrier")
            dma(6)
            fence_t[6] = a.vt()
        if n == first_of[2] - 12:
            a.wait_vm(t_st)
            finish_stats(a, F_ST, F_NMU, F_RS2)
            a("v_mul_f32 v%d, %s, v%d" % (F_C1, fl(-LOG2E), F_RS2))
            a("v_mul_f32 v%d, v%d, v%d" % (F_RS2, F_RS2, F_RS2))
        if n == first_of[2] + 4:
            a.wait_vm(t_cs[1]) if False else None
            pending += [("W", 0)] + epi(0) + [("W", 1)] + epi(1)
        for tl in range(3, 7):
            if n == first_of[tl] + 4:
                pending += [("W", tl - 1)] + epi(tl - 1)
        k = 0
        lim = 5 if tile == 2 else 3
        while pending and k < lim:
            x = pending.pop(0)
            if isinstance(x, tuple):
                a.wait_vm(t_cs[x[1]])
                continue
            a(x)
            k += 1
            if x.startswith("buffer_store"):
                pass
            for tl in range(0, 5):
                if x == "v_fmac_f32 v%d, v%d, v%d" % (F_ACC[tl % 3] + 15, F_NMU, F_CS[tl % 2] + 15) and (tl + 2) not in t_cs and tl in t_cs and cur_epi(tl, tile, n, first_of):
                    load_cs(tl + 2)
    assert not pending, len(pending)
    stamp(a, cfg, 8)
    a.wait_vm(t_cs[6])
    for x in epi(6):
        a(x)


def cur_epi(tl, tile, n, first_of):
    return tile == max(2, tl + 1)


def kernel_desc(name, nfv, acc, sgpr=96):
    return """.amdhsa_kernel %s
  .amdhsa_next_free_vgpr %d
  .amdhsa_next_free_sgpr %d
  .amdhsa_accum_offset %d
  .amdhsa_group_segment_fixed_size 0
  .amdhsa_kernarg_size 96
  .amdhsa_user_sgpr_count 2
  .amdhsa_user_sgpr_kernarg_segment_ptr 1
  .amdhsa_system_sgpr_workgroup_id_x 1
.end_amdhsa_kernel
""" % (name, nfv, sgpr, acc)


def uniq(lines, tag):
    out = []
    for l in lines:
        out.append(l.replace("L_exit", "L_exit_" + tag))
    return out


def build_multi(cfg):
    launches = []
    text = []
    descs = []
    rep = []

    def body(tag, fn, need_out=False, pro=True):
        a = Asm()
        if pro:
            stamp_init(a, cfg)
            common_prologue(a, need_out)
        fn(a, cfg)
        if pro:
            stamp_flush(a, cfg, "s_mul_i32 s60, s3, 5\ns_add_u32 s60, s60, %d" % (1 + ["qkv", "att", "wo", "ffn1", "ffn2"].index(tag)))
        a("L_exit:")
        a("s_endpgm")
        lines, tot = fix_hazards_fast(uniq(a.lines, tag), rep)
        return lines

    text += [".p2align 8", "prep_kernel:"] + body("prep", prep, pro=False)
    descs.append(kernel_desc("prep_kernel", 64, 64))
    text += [".p2align 8", "L_code_begin:"]
    phases = [("qkv", phase_qkv, False, 88 * 1024), ("att", phase_att, False, 137 * 1024), ("wo", phase_wo, False, 48 * 1024),
              ("ffn1", phase_ffn1, False, 128 * 1024), ("ffn2", phase_ffn2, True, 48 * 1024)]
    for tag, fn, no, lds in phases:
        text += [".p2align 8", "%s1_kernel:" % tag, "  s_mov_b32 s3, 1", "  s_branch L_%s_entry" % tag]
        text += [".p2align 8", "%s0_kernel:" % tag, "  s_mov_b32 s3, 0", "L_%s_entry:" % tag] + body(tag, fn, no)
        for l in (0, 1):
            descs.append(kernel_desc("%s%d_kernel" % (tag, l), 512, 256))
    text += ["L_code_end:"]
    launches.append("; @launch kernel=prep_kernel grid=(256,1,1) block=(256,1,1) lds=%d" % (34 * 1024))
    for l in (0, 1):
        for tag, fn, no, lds in phases:
            for _ in range(2 if cfg.get("twice") else 1):
                launches.append("; @launch kernel=%s%d_kernel grid=(256,1,1) block=(256,1,1) lds=%d" % (tag, l, lds))
    s = "\n".join(launches) + "\n"
    s += '.amdgcn_target "amdgcn-amd-amdhsa--gfx950"\n.text\n'
    s += "\n".join(text) + "\n"
    s += '.section .rodata,"a"\n.p2align 6\n' + ".p2align 6\n".join(descs)
    return s, rep


if __name__ == "__main__":
    cfg = dict(store_q=True, load_q=True, code_prefetch=True)
    for kv in sys.argv[2:]:
        k, v = kv.split("=")
        cfg[k] = eval(v)
    s, rep = build_multi(cfg)
    open(sys.argv[1], "w").write(s)
    from collections import Counter
    print("auto nops:", sum(r[0] for r in rep), "sites", len(rep))
    if cfg.get("verbose"):
        for r in rep:
            print(r)
```

```python
import sys
from asmlib import *
from layout import *
import kern
import startup as SU
from kern import (split3, fl, MF, S_LAYER, S_W, S_RB, S_HQ, S_RG, S_M, V_L16, V_LANE, V_R31, V_H, V_OFF, xhalf_sum,
                  load_stats, finish_stats, pack8, stamp, kernel_desc, prep, NSTAMP)

SC = "sc1"


COMPACT = [1]
CMAP = {OFF_X: 0x800000, OFF_O: 0xC00000, OFF_H: 0xE00000, OFF_STAT: OFF_STAT}
C_WKV = 0x780000
C_END = 0x1500000


def layer_off(a, sdst, base, stride, mul=1, add=0):
    if COMPACT[0] and base in CMAP:
        a("s_mov_b32 s%d, 0x%x" % (sdst, CMAP[base] + (add & 1) * stride))
    else:
        kern.layer_off(a, sdst, base, stride, mul, add)


LLD = ["sc1"]


def blk(a, dst, sbase, i, sc=None):
    kern.blk(a, dst, sbase, i, LLD[0] if sc else SC)


FL_O = 0x0000
FL_X1 = 0x2000
FL_H = 0x8000
FL_XIN = 0x6000
OFF_FLW = 0x64C000
FL_KV = 0x640000 - OFF_FLAGS

S_RT, S_NT = 31, 32
S_FO, S_FX1, S_FH = 40, 41, 42
S_W13, S_WL = 47, 48
S_RET = 44
V_RES = 12
V_TAG = 11
V_L4 = 20
V_ZERO = 21
VB = 24

G_ACC = 24
G_RED = 88
G_ST = 136
G_CS = 152
G_T = 168
V_WR = [184, 185, 186]
V_RD = 187
V_NMU, V_RSTD = 188, 189
G_KVACC = 88
G_Q = 190
W2V = 200

LDS_R1 = 96 * 1024
LDS_RQ = 0
LDS_KVX = 49152
LDS_CSX = 69632
LDS_CS = 152 * 1024
LDS_E = 128 * 1024


DBL = [0]
LSC = ["sc1"]
S_LOC = 57
DUAL = [False]
_dl = [0]


def lstore(text):
    lines = text if isinstance(text, list) else [text]
    if not DUAL[0]:
        return [l + " sc1" for l in lines]
    _dl[0] += 1
    n = _dl[0]
    return (["s_cbranch_scc1 L_ls%da ; needs scc" % n] + [l + " sc1" for l in lines] + ["s_branch L_ls%db" % n, "L_ls%da:" % n] +
            ["!" + l + " " + LSC[0] for l in lines] + ["L_ls%db:" % n])


def emit_l(a, text):
    out = lstore(text)
    if DUAL[0]:
        a("s_cmp_lg_u32 s%d, 0" % S_LOC)
    for l in out:
        if l.startswith("!"):
            a(l[1:])
        else:
            a(l)


def st4(a, data, voff, soff, imm=0):
    emit_l(a, "buffer_store_dwordx4 v[%d:%d], v%d, s[4:7], s%d offen offset:%d" % (data, data + 3, voff, soff, imm))
    if DBL[0]:
        a("buffer_store_dwordx4 v[%d:%d], v%d, s[4:7], s%d offen offset:%d" % (data, data + 3, voff, soff, imm))


TOUCH = [1]
V_L128 = 23
V_P2 = 199


V_L64 = 22


RBW = [0]


def readback(a, regions, final=False):
    if not DUAL[0]:
        return
    L = a.newlabel("L_rb")
    keep = a.vm_issued
    a("s_cmp_eq_u32 s%d, 0" % S_LOC)
    a("s_cbranch_scc1 %s" % L)
    a("v_lshlrev_b32 v%d, 6, v%d" % (V_L64, V_LANE))
    if RBW[0] and final:
        a("s_waitcnt vmcnt(0)")
    for sg, nb, imm in regions:
        n = nb // 64
        assert n <= 64
        a("s_mov_b32 exec_lo, 0x%x" % (((1 << n) - 1) & 0xffffffff))
        a("s_mov_b32 exec_hi, 0x%x" % (((1 << n) - 1) >> 32))
        a("buffer_load_dword v%d, v%d, s[4:7], s%d offen offset:%d %s" % (V_P2, V_L64, sg, imm, LLD[0]))
    a(L + ":")
    a.vm_issued = keep


def publish(a, s_addr, regions, imm=0, between=()):
    readback(a, regions, True)
    if between:
        a("s_mov_b64 exec, -1")
        for x in between:
            a(x)
    a("s_waitcnt vmcnt(0)")
    a("s_mov_b64 exec, 1")
    emit_l(a, "buffer_store_dword v%d, v%d, s[4:7], s%d offen offset:%d" % (V_TAG, V_ZERO, s_addr, imm))
    a("s_mov_b64 exec, -1")


def poll(a, cfg, s_addr, voff, vtmp, wide=False, imm=0, sleep=0):
    L = a.newlabel("L_poll")
    if cfg.get("spin_limit"):
        a("s_mov_b32 s101, %d" % cfg["spin_limit"])
    if cfg.get("ppoll", 0) and not wide and not sleep:
        ld = lambda r: a("buffer_load_dword v%d, v%d, s[4:7], s%d offen offset:%d %s" % (r, voff, s_addr, imm, SC))
        ld(vtmp)
        a("s_sleep %d" % cfg.get("ppoll_gap", 2))
        a(L + ":")
        ld(V_P2)
        a("s_waitcnt vmcnt(1)")
        a("v_cmp_ne_u32 vcc, v%d, v%d" % (V_TAG, vtmp))
        a("s_cbranch_vccz %s_out" % L)
        ld(vtmp)
        a("s_waitcnt vmcnt(1)")
        if cfg.get("spin_limit"):
            a("s_sub_u32 s101, s101, 1")
            a("s_cbranch_scc1 %s_out" % L)
        a("v_cmp_ne_u32 vcc, v%d, v%d" % (V_TAG, V_P2))
        a("s_cbranch_vccnz %s" % L)
        a.vm_issued -= 1
        a(L + "_out:")
        return
    a(L + ":")
    if wide:
        a("buffer_load_dwordx4 v[%d:%d], v%d, s[4:7], s%d offen %s" % (vtmp, vtmp + 3, voff, s_addr, SC))
        a("s_waitcnt vmcnt(0)")
        a("v_cmp_ne_u32 s[18:19], v%d, v%d" % (V_TAG, vtmp + 2))
        a("v_cndmask_b32 v%d, v%d, v%d, s[18:19]" % (vtmp, vtmp, V_ZERO))
        a("v_cmp_ne_u32 s[18:19], v%d, v%d" % (V_TAG, vtmp + 3))
        a("v_cndmask_b32 v%d, v%d, v%d, s[18:19]" % (vtmp, vtmp, V_ZERO))
    else:
        a("buffer_load_dword v%d, v%d, s[4:7], s%d offen offset:%d %s" % (vtmp, voff, s_addr, imm, SC))
        a("s_waitcnt vmcnt(0)")
    if cfg.get("spin_limit"):
        a("s_sub_u32 s101, s101, 1")
        a("s_cbranch_scc1 %s_out" % L)
    a("v_cmp_ne_u32 vcc, v%d, v%d" % (V_TAG, vtmp))
    if sleep:
        a("s_cbranch_vccz %s_out" % L)
        a("s_sleep %d" % sleep)
        a("s_branch %s" % L)
    else:
        a("s_cbranch_vccnz %s" % L)
    a(L + "_out:")


def lane_pat(a, vdst, mask, hi_shift, lo_mul):
    a("v_and_b32 v%d, %d, v%d" % (vdst, mask & ~1, V_LANE))
    a("v_lshlrev_b32 v%d, 3, v%d" % (vdst, vdst))
    a("v_and_b32 v%d, 1, v%d" % (vdst + 1, V_LANE))
    a("v_lshl_add_u32 v%d, v%d, %d, v%d" % (vdst, vdst + 1, lo_mul, vdst))


def flag_addr(a, sdst, base, s_grp, grp_shift, s_mem=None, per_layer=0x1000):
    a("s_mul_i32 s%d, s%d, 0x%x" % (sdst, S_LAYER, per_layer))
    a("s_add_u32 s%d, s%d, 0x%x" % (sdst, sdst, OFF_FLAGS + base))
    a("s_lshl_b32 s17, s%d, %d" % (s_grp, grp_shift))
    a("s_add_u32 s%d, s%d, s17" % (sdst, sdst))
    if s_mem is not None:
        a("s_lshl_b32 s17, s%d, 4" % s_mem)
        a("s_add_u32 s%d, s%d, s17" % (sdst, sdst))
        a("s_lshl_b32 s17, s%d, 2" % S_W)
        a("s_add_u32 s%d, s%d, s17" % (sdst, sdst))


def xin_flag_addr(a, sdst, own, layer_add):
    flag_addr(a, sdst, FL_XIN + 0x1000 * layer_add, S_RB, 7, S_HQ if own else None)


def a_addr(a, s_a0, s_a1, offA, ksA, ksw):
    a("s_mul_i32 s20, s%d, %d" % (S_W, ksw * 1024))
    a("s_mul_i32 s%d, s%d, %d" % (s_a0, S_NT, ksA * 1024))
    a("s_add_u32 s%d, s%d, s20" % (s_a0, s_a0))
    a("s_add_u32 s%d, s%d, 0x%x" % (s_a0, s_a0, offA))
    a("s_xor_b32 s21, s%d, 1" % S_NT)
    a("s_mul_i32 s%d, s21, %d" % (s_a1, ksA * 1024))
    a("s_add_u32 s%d, s%d, s20" % (s_a1, s_a1))
    a("s_add_u32 s%d, s%d, 0x%x" % (s_a1, s_a1, offA))


def b_addr(a, s_b0, s_b1, s_base, ksB, ksw):
    a("s_mul_i32 s20, s%d, %d" % (S_W, ksw * 1024))
    a("s_add_u32 s20, s20, s%d" % s_base)
    a("s_mul_i32 s%d, s%d, %d" % (s_b0, S_RT, ksB * 1024))
    a("s_add_u32 s%d, s%d, s20" % (s_b0, s_b0))
    a("s_xor_b32 s21, s%d, 1" % S_RT)
    a("s_mul_i32 s%d, s21, %d" % (s_b1, ksB * 1024))
    a("s_add_u32 s%d, s%d, s20" % (s_b1, s_b1))


def reduce_addr(a, base):
    for j in (1, 2, 3):
        a("s_xor_b32 s17, s%d, %d" % (S_W, j))
        a("s_mul_i32 s17, s17, 12288")
        a("s_add_u32 s17, s17, %d" % (base + (j - 1) * 4096))
        a("v_add_u32 v%d, s17, v%d" % (V_WR[j - 1], V_L16))
    a("s_mul_i32 s17, s%d, 12288" % S_W)
    a("s_add_u32 s17, s17, %d" % base)
    a("v_add_u32 v%d, s17, v%d" % (V_RD, V_L16))


def mf(a, d, x, y, c):
    a("%s v[%d:%d], %s, %s, %s" % (MF, d, d + 15, x, y, c))


def wr_tile(a, j):
    for q in range(4):
        r = G_ACC + 16 * j + 4 * q
        a("ds_write_b128 v%d, v[%d:%d] offset:%d" % (V_WR[j - 1], r, r + 3, q * 1024))


def rd_tile(a, j, dst):
    for q in range(4):
        a("ds_read_b128 v[%d:%d], v%d offset:%d" % (dst + 4 * q, dst + 4 * q + 3, V_RD, (j - 1) * 4096 + q * 1024))


def gemm64_core(a, cfg, n, A0, A1, Breg, issueB, window, pre_tickets=None, order=None, side=None, side_from=0, side_n=1,
                gate=None, side2=None, side2_from=0, ramp=None, resid=False, extra0=None, hooks=None, tail_side=None, dup_last=False):
    if order is None:
        order = [(1, i) for i in range(n)] + [(0, i) for i in range(n)]
    M = len(order)
    side = list(side or [])
    t = dict(pre_tickets or {})
    nxt = len(t)
    gpos = gate[0] if gate else M + 1
    gated = [False]

    def try_issue(limit):
        nonlocal nxt
        while nxt < M and nxt < limit:
            if nxt >= gpos and not gated[0]:
                return
            issueB(nxt)
            t[nxt] = a.vt()
            nxt += 1
            if gate and nxt == gate[3]:
                gate[1]()

    try_issue(ramp or window)
    if cfg.get("stamps") != 2:
        stamp(a, cfg, 1)
    last1 = max(e for e, (st, i) in enumerate(order) if st == 1)
    wr1 = last1 + 2
    bar1 = min(M - 2, last1 + 1 + max(2, (M - last1) // 2))
    seen = set()
    pend = []

    def presum():
        out = ["v_add_f32 v%d, v%d, v%d" % (G_RED + e, G_RED + e, G_RED + 16 + e) for e in range(16)]
        if resid:
            for i in range(8):
                out += ["v_lshlrev_b32 v%d, 16, v%d" % (G_T, V_RES + i), "v_and_b32 v%d, 0xffff0000, v%d" % (G_T + 1, V_RES + i),
                        "v_add_f32 v%d, v%d, v%d" % (G_RED + 2 * i, G_RED + 2 * i, G_T),
                        "v_add_f32 v%d, v%d, v%d" % (G_RED + 2 * i + 1, G_RED + 2 * i + 1, G_T + 1)]
        return out

    def step(e):
        st, i = order[e]
        if gate and not gated[0] and e == gate[4]:
            assert not side
            gate[2]()
            gated[0] = True
            try_issue(e + window)
        if hooks and e in hooks:
            hooks[e]()
        a.wait_vm(t[e])
        if e == 0 and cfg.get("stamps") != 2:
            stamp(a, cfg, 2)
        first = "0" if st not in seen else None
        seen.add(st)
        if st == 1:
            mf(a, G_ACC + 16, A0(i), Breg(e), first or vr(G_ACC + 16, 16))
            if cfg.get("ldmid", 0) and window < 30:
                try_issue(min(e + 1 + window, nxt + 1))
            mf(a, G_ACC + 48, A1(i), Breg(e), first or vr(G_ACC + 48, 16))
        else:
            mf(a, G_ACC + 32, A1(i), Breg(e), first or vr(G_ACC + 32, 16))
            if cfg.get("ldmid", 0) and window < 30:
                try_issue(min(e + 1 + window, nxt + 1))
            mf(a, G_ACC, A0(i), Breg(e), first or vr(G_ACC, 16))
        try_issue(min(e + 1 + window, nxt + 2))
        if e >= side_from:
            k = 0
            while side and k < side_n:
                x = side.pop(0)
                a(x)
                k += x.startswith("buffer_")
        if side2 and e >= side2_from:
            for _ in range(cfg.get("side2_n", 1)):
                if side2:
                    a(side2.pop(0))
        if e == wr1:
            wr_tile(a, 1)
            wr_tile(a, 3)
        if e == bar1:
            a("s_waitcnt lgkmcnt(0)")
            a("s_barrier")
            rd_tile(a, 1, G_RED)
            rd_tile(a, 3, G_RED + 16)
            pend[:] = presum()
        elif pend and e > bar1:
            if e == bar1 + 1:
                a("s_waitcnt lgkmcnt(0)")
            for _ in range(cfg.get("pre_n", 10)):
                if pend:
                    a(pend.pop(0))

    for e in range(M):
        if dup_last and e == side2_from:
            snap = (nxt, dict(t), a.vm_issued, a.lg_issued, a.dma_issued)
            a("s_cmp_eq_u32 s%d, 1" % S_LAYER)
            a("s_cbranch_scc1 L_g64_last")
            for e2 in range(e, M):
                step(e2)
            a("s_branch L_g64_join")
            a("L_g64_last:")
            nxt, t, a.vm_issued, a.lg_issued, a.dma_issued = snap[0], snap[1], snap[2], snap[3], snap[4]
            for e2 in range(e, M):
                step(e2)
            a("L_g64_join:")
            break
        step(e)
    assert wr1 <= bar1 < M and not side2
    if extra0:
        extra0[2]()
        mf(a, G_ACC, extra0[0], extra0[1], vr(G_ACC, 16))
    tside = list(tail_side or [])
    cnt = [0]

    def av(x):
        a(x)
        cnt[0] += 1
        if tside and cnt[0] % cfg.get("tail_every", 4) == 0:
            a(tside.pop(0))

    stamp(a, cfg, 4)
    a("s_waitcnt lgkmcnt(0)")
    for _ in range(8):
        if pend:
            av(pend.pop(0))
    wr_tile(a, 2)
    for x in pend:
        av(x)
    for e in range(16):
        av("v_add_f32 v%d, v%d, v%d" % (G_ACC + e, G_ACC + e, G_RED + e))
    for x in side:
        a(x)
    a("s_waitcnt lgkmcnt(0)")
    a("s_barrier")
    stamp(a, cfg, 6)
    rd_tile(a, 2, G_RED + 32)
    for q in range(4):
        a("s_waitcnt lgkmcnt(%d)" % (3 - q))
        for e in range(4):
            av("v_add_f32 v%d, v%d, v%d" % (G_ACC + 4 * q + e, G_ACC + 4 * q + e, G_RED + 32 + 4 * q + e))
    for x in tside:
        a(x)
    stamp(a, cfg, 7)


def bextra(a, nmu, d):
    split3(a, nmu, d + 4)
    a("v_lshrrev_b32 v%d, 16, v%d" % (d + 7, d + 4))
    a("v_or_b32 v%d, v%d, v%d" % (d, d + 7, d + 5))
    a("v_or_b32 v%d, v%d, v%d" % (d + 1, d + 7, d + 6))
    a("v_mov_b32 v%d, v%d" % (d + 2, d))
    a("v_mov_b32 v%d, 0" % (d + 3))


def res_epilogue(a, cfg, xout_add, final):
    for i in range(8):
        a("v_cvt_pk_bf16_f32 v%d, v%d, v%d" % (V_RES + i, G_ACC + 2 * i, G_ACC + 2 * i + 1))
        if i == 3 and final is None:
            st4(a, V_RES, V_L16, 34)
    if final is not None:
        a("s_cmp_eq_u32 s%d, 1" % S_LAYER)
        a("s_cbranch_scc1 %s" % final)
        st4(a, V_RES, V_L16, 34)
    store_x_tail(a)


def store_x_tail(a):
    st4(a, V_RES + 4, V_L16, 34, 1024)
    a("v_mov_b32 v%d, 0x3f803f80" % G_T)
    a("v_mov_b32 v%d, 0" % (G_T + 12))
    a("v_mov_b32 v%d, 0" % (G_T + 13))
    for r in range(8):
        a("v_dot2_f32_bf16 v%d, v%d, v%d, v%d" % (G_T + 12, V_RES + r, G_T, G_T + 12))
        a("v_dot2_f32_bf16 v%d, v%d, v%d, v%d" % (G_T + 13, V_RES + r, V_RES + r, G_T + 13))
    a("v_lshlrev_b32 v%d, 4, v%d" % (G_T + 2, V_R31))
    a("s_nop 1")
    a("v_mov_b32 v%d, v%d" % (G_T + 14, G_T + 12))
    a("v_mov_b32 v%d, v%d" % (G_T + 15, G_T + 13))
    a("s_nop 0")
    a("v_permlane32_swap_b32 v%d, v%d" % (G_T + 12, G_T + 14))
    a("v_permlane32_swap_b32 v%d, v%d" % (G_T + 13, G_T + 15))
    a("v_add_f32 v%d, v%d, v%d" % (G_T + 12, G_T + 12, G_T + 14))
    a("v_add_f32 v%d, v%d, v%d" % (G_T + 13, G_T + 13, G_T + 15))
    a("s_mov_b32 exec_lo, 0xffffffff\ns_mov_b32 exec_hi, 0x0")
    emit_l(a, "buffer_store_dwordx2 v[%d:%d], v%d, s[4:7], s35 offen" % (G_T + 12, G_T + 13, G_T + 2))
    a("s_mov_b64 exec, -1")


def out_addr(a, xout_add):
    layer_off(a, 34, OFF_X, X_STRIDE, 2, xout_add)
    a("s_lshl_b32 s18, s%d, 15" % S_RT)
    a("s_add_u32 s34, s34, s18")
    a("s_lshl_b32 s18, s%d, 11" % S_NT)
    a("s_add_u32 s34, s34, s18")
    layer_off(a, 35, OFF_STAT, STAT_STRIDE, 2, xout_add)
    a("s_lshl_b32 s18, s%d, 12" % S_RT)
    a("s_add_u32 s35, s35, s18")
    a("s_lshr_b32 s18, s%d, 1" % S_NT)
    a("s_lshl_b32 s18, s18, 9")
    a("s_add_u32 s35, s35, s18")
    a("s_and_b32 s18, s%d, 1" % S_NT)
    a("s_lshl_b32 s18, s18, 3")
    a("s_add_u32 s35, s35, s18")


S_Q0, S_Q1, S_KVW = 50, 51, 52


def wq_lines():
    b = Asm()
    for i in range(8):
        blk(b, ar(128 + 4 * i, 4), S_KVW, i)
    for i in range(8):
        blk(b, ar(160 + 4 * i, 4), S_Q0, i)
        blk(b, ar(192 + 4 * i, 4), S_Q1, i)
    return [l.strip() for l in b.lines]


SB0, SB1, SX = 26, 27, 28
CK = G_T + 8


def qkv_setup(a, kvx):
    a("v_lshlrev_b32 v%d, 4, v%d" % (G_T + 1, V_H))
    a("v_lshlrev_b32 v%d, 2, v%d" % (G_T + 6, V_R31))
    layer_off(a, SX, OFF_X, X_STRIDE, 2, 0)
    b_addr(a, SB0, SB1, SX, 32, 8)
    layer_off(a, 30, OFF_STAT, STAT_STRIDE, 2, 0)
    a("s_lshl_b32 s17, s%d, 12" % S_RT)
    a("s_add_u32 s30, s30, s17")
    reduce_addr(a, LDS_RQ)
    layer_off(a, 33, OFF_KV, KV_STRIDE)
    a("s_lshr_b32 s36, s%d, 1" % S_HQ)
    a("s_lshl_b32 s17, s%d, 1" % S_RB)
    a("s_add_u32 s17, s17, s36")
    a("s_lshl_b32 s17, s17, 15")
    a("s_add_u32 s23, s17, s%d" % SX)
    a("s_lshl_b32 s17, s%d, 13" % S_W)
    a("s_add_u32 s23, s23, s17")
    a("s_lshl_b32 s17, s%d, 12" % S_W)
    a("s_add_u32 s17, s17, %d" % kvx)
    a("v_add_u32 v%d, s17, v%d" % (G_T + 2, V_L16))
    a("v_add_u32 v%d, %d, v%d" % (G_T + 3, kvx, V_L16))
    a("s_mul_i32 s37, s%d, 0x2000" % S_LAYER)
    a("s_add_u32 s37, s37, 0x%x" % (OFF_FLAGS + FL_KV))
    a("s_lshl_b32 s17, s%d, 5" % S_RB)
    a("s_add_u32 s37, s37, s17")
    a("s_lshl_b32 s17, s36, 4")
    a("s_add_u32 s37, s37, s17")
    a("s_lshl_b32 s39, s2, 11")
    a("s_add_u32 s39, s39, 0x%x" % OFF_CKS)


def kv_job(a, cfg, sfx, kvx, done, b1):
    load_stats(a, G_ST, 30, G_T, LLD[0])
    t_st = a.vt()
    tK = {}
    for i in range(8):
        blk(a, ar(224 + 4 * i, 4), 23, i, SC)
        tK[i] = a.vt()
    if b1:
        b1()
    stamp(a, cfg, 1)
    a.wait_vm(t_st)
    finish_stats(a, G_ST, V_NMU, V_RSTD)
    XS = kvx + 16384
    a("s_lshl_b32 s17, s%d, 8" % S_W)
    a("s_add_u32 s17, s17, %d" % XS)
    a("v_add_u32 v%d, s17, v%d" % (G_T + 4, G_T + 6))
    a("v_mul_f32 v%d, v%d, v%d" % (G_T + 5, V_NMU, V_RSTD))
    a("ds_write_b32 v%d, v%d" % (G_T + 4, V_RSTD))
    a("ds_write_b32 v%d, v%d offset:128" % (G_T + 4, G_T + 5))
    a("s_lshr_b32 s18, s%d, 1" % S_W)
    a("s_bitcmp1_b32 s%d, 0" % S_HQ)
    a("s_cselect_b32 s18, s18, 1")
    a("s_lshl_b32 s19, s18, 6")
    a("s_add_u32 s17, s17, s19")
    a("v_add_u32 v%d, s17, v%d" % (G_T + 4, G_T + 1))
    a("s_lshl_b32 s19, s18, 11")
    a("v_add_u32 v%d, s19, v%d" % (G_T + 3, G_T + 3))
    RS = G_ACC + 16
    for g in range(2):
        a("ds_read_b128 v[%d:%d], v%d offset:%d" % (RS + 4 * g, RS + 4 * g + 3, G_T + 4, 32 * g))
        a("ds_read_b128 v[%d:%d], v%d offset:%d" % (RS + 8 + 4 * g, RS + 8 + 4 * g + 3, G_T + 4, 128 + 32 * g))
    a("s_lshl_b32 s17, s%d, 10" % S_RT)
    a("s_add_u32 s34, s33, s17")
    a("s_bitcmp1_b32 s%d, 0" % S_HQ)
    a("s_cbranch_scc1 L_qkv_v1" + sfx)
    for v in range(2):
        if v:
            a("L_qkv_v%d%s:" % (v, sfx))
        for i in range(8):
            a.wait_vm(tK[i])
            x, w = ar(224 + 4 * i, 4), ar(128 + 4 * i, 4)
            c = "0" if i == 0 else vr(G_KVACC, 16)
            if v & 1:
                mf(a, G_KVACC, x, w, c)
            else:
                mf(a, G_KVACC, w, x, c)
        if v < 1:
            a("v_lshlrev_b32 v%d, 10, v%d" % (G_T + 4, V_LANE))
            a("s_branch L_qkv_kvred" + sfx)
    a("v_lshlrev_b32 v%d, 10, v%d" % (G_T + 4, V_LANE))
    a("v_lshlrev_b32 v%d, 4, v%d" % (G_T + 5, V_R31))
    a("v_lshl_add_u32 v%d, v%d, 8, v%d" % (G_T + 5, V_H, G_T + 5))
    a("s_lshl_b32 s19, s18, 9")
    a("s_add_u32 s34, s34, s19")
    a("s_add_u32 s34, s34, 0x10000")
    a("s_lshl_b32 s19, s18, 2")
    a("s_add_u32 s37, s37, s19")
    for q in range(2):
        a("ds_write_b128 v%d, v[%d:%d] offset:%d" % (G_T + 2, G_KVACC + 4 * q, G_KVACC + 4 * q + 3, q * 1024))
    a("L_qkv_kvred" + sfx + ":")
    stamp(a, cfg, 2)
    for q in range(2, 4):
        a("ds_write_b128 v%d, v[%d:%d] offset:%d" % (G_T + 2, G_KVACC + 4 * q, G_KVACC + 4 * q + 3, q * 1024))
    a("s_waitcnt lgkmcnt(0)")
    a("s_barrier")
    stamp(a, cfg, 3)
    a("s_and_b32 s17, s%d, 1" % S_W)
    a("s_cmp_lg_u32 s17, s36")
    a("s_cbranch_scc1 " + done)
    a("s_and_b32 s17, s%d, 1" % S_HQ)
    a("s_lshl_b32 s17, s17, 1")
    a("s_add_u32 s17, s17, 1")
    a("s_cmp_gt_u32 s%d, s17" % S_W)
    a("s_cbranch_scc1 " + done)
    RD = G_RED + 16
    for j in range(4):
        for q in range(2):
            a("ds_read_b128 v[%d:%d], v%d offset:%d" % (RD + 8 * j + 4 * q, RD + 8 * j + 4 * q + 3, G_T + 3, j * 4096 + q * 1024))
    a("s_waitcnt lgkmcnt(4)")
    for e in range(8):
        a("v_add_f32 v%d, v%d, v%d" % (RD + e, RD + e, RD + 8 + e))
    a("s_waitcnt lgkmcnt(0)")
    for e in range(8):
        a("v_add_f32 v%d, v%d, v%d" % (RD + 16 + e, RD + 16 + e, RD + 24 + e))
    for e in range(8):
        a("v_add_f32 v%d, v%d, v%d" % (RD + e, RD + e, RD + 16 + e))
    PK = RD + 8
    a("s_bitcmp1_b32 s%d, 0" % S_HQ)
    a("s_cbranch_scc1 L_qkv_vfin" + sfx)
    for e in range(8):
        a("v_fmac_f32 v%d, v%d, v%d" % (RD + e, V_NMU, CK + e))
        a("v_mul_f32 v%d, v%d, v%d" % (RD + e, V_RSTD, RD + e))
    pack8(a, PK, RD)
    a("buffer_store_dwordx4 v[%d:%d], v%d, s[4:7], s34 offen %s" % (PK, PK + 3, V_L16, SC))
    a("v_mov_b32 v%d, 0" % (PK + 4))
    for r in range(4):
        a("v_dot2_f32_bf16 v%d, v%d, v%d, v%d" % (PK + 4, PK + r, PK + r, PK + 4))
    xhalf_sum(a, PK + 4, PK + 5)
    for d in ("row_shr:1", "row_shr:2", "row_shr:4", "row_shr:8"):
        a("v_max_f32_dpp v%d, v%d, v%d %s row_mask:0xf bank_mask:0xf" % (PK + 4, PK + 4, PK + 4, d))
    a("v_max_f32_dpp v%d, v%d, v%d row_bcast:15 row_mask:0xa bank_mask:0xf" % (PK + 4, PK + 4, PK + 4))
    a("v_readlane_b32 s18, v%d, 31" % (PK + 4))
    a("v_mov_b32 v%d, v%d" % (PK + 6, V_TAG))
    a("v_mov_b32 v%d, s18" % (PK + 7))
    a("s_waitcnt vmcnt(0)")
    a("s_mov_b64 exec, 0xff")
    a("buffer_store_dwordx2 v[%d:%d], v%d, s[4:7], s37 offen %s" % (PK + 6, PK + 7, G_T + 4, SC))
    a("s_mov_b64 exec, -1")
    a("s_branch " + done)
    a("L_qkv_vfin" + sfx + ":")
    for e in range(8):
        a("v_mul_f32 v%d, v%d, v%d" % (RD + e, RS + e, RD + e))
        a("v_fmac_f32 v%d, v%d, v%d" % (RD + e, RS + 8 + e, CK))
    pack8(a, PK, RD)
    a("s_mov_b32 exec_lo, 0xffff\ns_mov_b32 exec_hi, 0xffff")
    a("buffer_store_dwordx4 v[%d:%d], v%d, s[4:7], s34 offen %s" % (PK, PK + 3, G_T + 5, SC))
    stamp(a, cfg, 5)
    a("s_waitcnt vmcnt(0)")
    a("s_mov_b64 exec, 0xff")
    a("buffer_store_dword v%d, v%d, s[4:7], s37 offen offset:8 %s" % (V_TAG, G_T + 4, SC))
    a("s_mov_b64 exec, -1")


def kv_layer0(a, cfg, bulk):
    kvx = 96 * 1024
    LDS_CSX = kvx + 20480
    a("s_cmp_ge_u32 s%d, 4" % S_HQ)
    a("s_cbranch_scc1 L_kv0_none")
    qkv_setup(a, kvx)
    a("s_waitcnt lgkmcnt(0)")
    for r in range(4):
        a("v_mov_b32 v%d, 0x3f803f80" % (G_CS + r))
    a("s_lshl_b32 s17, s%d, 11" % S_W)
    a("s_add_u32 s17, s17, %d" % LDS_CSX)
    a("v_add_u32 v%d, s17, v%d" % (G_CS + 4, V_L16))
    a("v_add_u32 v%d, %d, v%d" % (G_CS + 5, LDS_CSX, V_L16))
    a("s_bitcmp1_b32 s%d, 0" % S_HQ)
    a("s_cbranch_scc1 L_qkv_c1")
    for i in range(8):
        mf(a, G_ACC, ar(128 + 4 * i, 4), vr(G_CS, 4), "0" if i == 0 else vr(G_ACC, 16))
    a("s_branch L_qkv_c2")
    a("L_qkv_c1:")
    for i in range(8):
        mf(a, G_ACC, vr(G_CS, 4), ar(128 + 4 * i, 4), "0" if i == 0 else vr(G_ACC, 16))
    a("L_qkv_c2:")
    a("ds_write_b128 v%d, v[%d:%d]" % (G_CS + 4, G_ACC + 8, G_ACC + 11))
    a("ds_write_b128 v%d, v[%d:%d] offset:1024" % (G_CS + 4, G_ACC + 12, G_ACC + 15))
    a("s_waitcnt lgkmcnt(0)")
    a("s_barrier")
    for w in range(4):
        for q in range(2):
            a("ds_read_b128 v[%d:%d], v%d offset:%d" % (G_RED + 8 * w + 4 * q, G_RED + 8 * w + 4 * q + 3, G_CS + 5, 2048 * w + 1024 * q))
    a("s_waitcnt lgkmcnt(0)")
    for e in range(8):
        a("v_add_f32 v%d, v%d, v%d" % (G_RED + e, G_RED + e, G_RED + 8 + e))
        a("v_add_f32 v%d, v%d, v%d" % (G_RED + 16 + e, G_RED + 16 + e, G_RED + 24 + e))
        a("v_add_f32 v%d, v%d, v%d" % (CK + e, G_RED + e, G_RED + 16 + e))
    a("buffer_store_dwordx4 v[%d:%d], v%d, s[4:7], s39 offen sc1" % (CK, CK + 3, V_L16))
    a("buffer_store_dwordx4 v[%d:%d], v%d, s[4:7], s39 offen offset:1024 sc1" % (CK + 4, CK + 7, V_L16))
    xin_flag_addr(a, 38, False, 0)
    poll(a, cfg, 38, G_T + 6, G_T + 4)
    kv_job(a, dict(cfg, stamps=0), "_0", kvx, "L_kv0_done", lambda: bulk("a"))
    a("s_branch L_kv0_done")
    a("L_kv0_none:")
    bulk("b")
    a("L_kv0_done:")


def phase_qkv(a, cfg):
    qkv_setup(a, LDS_KVX)
    VP, VPA = 198, 22
    SU.probe_addr(a, sys.modules[__name__], VPA, VP, 59)
    def wcheck(tag):
        a("v_cmp_ne_u32 vcc, v%d, v%d" % (V_TAG, VP))
        a("s_cbranch_vccz L_qkv_wok%s" % tag)
        keep = a.vm_issued
        poll(a, cfg, 59, VPA, VP, sleep=1)
        a.vm_issued = keep
        a("L_qkv_wok%s:" % tag)

    a("buffer_load_dwordx4 v[%d:%d], v%d, s[4:7], s39 offen sc1" % (CK, CK + 3, V_L16))
    a("buffer_load_dwordx4 v[%d:%d], v%d, s[4:7], s39 offen offset:1024 sc1" % (CK + 4, CK + 7, V_L16))
    stamp(a, cfg, 8)
    xin_flag_addr(a, 38, False, 0)
    poll(a, cfg, 38, G_T + 6, G_T + 4)
    stamp(a, cfg, 9)
    tB = {}
    def b1_loads():
        for e in range(8):
            blk(a, ar(64 + 4 * e, 4), SB1, e, SC)
            tB[e] = a.vt()

    def cs_q():
        a("s_lshl_b32 s17, s%d, 10" % S_NT)
        a("s_add_u32 s17, s17, 0x%x" % OFF_CSQX)
        a("buffer_load_dwordx4 v[%d:%d], v%d, s[4:7], s17 offen sc1" % (G_CS, G_CS + 3, V_L16))

    a("s_cmp_ge_u32 s%d, 4" % S_HQ)
    a("s_cbranch_scc1 L_qkv_stats")
    a("s_cmp_eq_u32 s%d, 0" % S_LAYER)
    a("s_cbranch_scc1 L_qkv_stats")
    kv_job(a, cfg, "", LDS_KVX, "L_qkv_q", b1_loads)
    a("s_branch L_qkv_q")
    a("L_qkv_stats:")
    load_stats(a, G_ST, 30, G_T, LLD[0])
    t_st = a.vt()
    b1_loads()
    a.wait_vm(t_st)
    finish_stats(a, G_ST, V_NMU, V_RSTD)
    a("L_qkv_q:")
    stamp(a, cfg, 10)
    bextra(a, V_NMU, G_CS + 4)
    tq = {}

    def h_probe():
        a("buffer_load_dword v%d, v%d, s[4:7], s59 offen sc1" % (VP, VPA))
        tq[0] = a.vt()

    def h_cs():
        a.wait_vm(tq[0])
        wcheck("q")
        cs_q()
        tq[1] = a.vt()
    gemm64_core(a, dict(cfg, stamps=cfg.get('stamps') and 2), 8, lambda i: ar(160 + 4 * i, 4), lambda i: ar(192 + 4 * i, 4), lambda e: ar(64 + 4 * e, 4),
                lambda e: blk(a, ar(64 + 4 * e, 4), SB1 if e < 8 else SB0, e % 8, SC), 16, pre_tickets=tB, ramp=12,
                side=[g[0] for g in SU.deferred_store_groups(sys.modules[__name__])], side_from=99, side_n=1, extra0=(vr(G_CS, 4), vr(G_CS + 4, 4), lambda: a.wait_vm(tq[1])),
                hooks={3: h_probe, 10: h_cs})
    a("v_mul_f32 v%d, %s, v%d" % (G_T, fl(QSCALE), V_RSTD))
    for e in range(16):
        a("v_mul_f32 v%d, v%d, v%d" % (G_ACC + e, G_T, G_ACC + e))
    pack8(a, G_Q, G_ACC)
    pack8(a, G_Q + 4, G_ACC + 8)
    if cfg.get("store_q"):
        a("s_lshl_b32 s17, s%d, 15" % S_RT)
        a("s_lshl_b32 s18, s%d, 11" % S_NT)
        a("s_add_u32 s17, s17, s18")
        a("s_add_u32 s17, s17, 0x%x" % OFF_Q)
        a("buffer_store_dwordx4 v[%d:%d], v%d, s[4:7], s17 offen" % (G_Q, G_Q + 3, V_L16))
        a("buffer_store_dwordx4 v[%d:%d], v%d, s[4:7], s17 offen offset:1024" % (G_Q + 4, G_Q + 7, V_L16))
    stamp(a, cfg, 11)


A_C = [24, 40]
A_O = [56, 72]
A_S = [88, 104]
A_P = [120, 124, 128, 132]
A_KF = [136, 140]
A_VF = [[144, 148], [152, 156]]
A_VK, A_VV, A_VINC = 160, 161, 162
A_T = 164
LDS_V = 65536
LDS_ONES = 131072
LDS_ATT_FLAG = LDS_ONES + 5120
UNR = 4


EARLY = 4
W2ORD = [7 * mm + tl for tl in range(7) for mm in range(4)]
W2POS = {k: p for p, k in enumerate(W2ORD)}


def w2load(a, idx, s0, s1):
    i = W2ORD[idx >> 1]
    blk(a, w2reg(idx & 1, i), s1 if idx & 1 else s0, i)


def w2reg(s, i):
    idx = 2 * W2POS[i] + s
    if idx < 32:
        return ar(128 + 4 * idx, 4)
    if idx < 46:
        return vr(W2V + 4 * (idx - 32), 4)
    if idx < 54:
        return vr(136 + 4 * (idx - 46), 4)
    return vr(190 + 4 * (idx - 54), 4)


SLOT13 = [0, 2, 1, 3, 0, 2, 1]


def dma13(a, i, part=None):
    slot = SLOT13[i]
    for hh in range(2):
        a("s_add_u32 m0, s%d, %d" % (S_WL, slot * 32768 + hh * 4096))
        a("s_add_u32 s29, s%d, %d" % (S_W13, i * 32768 + hh * 4096))
        for q in range(4):
            a("buffer_load_dwordx4 v%d, s[4:7], s29 offen offset:%d sc1 lds" % (V_L16, q * 1024))


def dma_lines(i):
    b = Asm()
    dma13(b, i)
    return [l.strip() for l in b.lines]


def phase_att(a, cfg):
    Q = [G_Q, G_Q + 4]
    SA0, SA1, SW0, SW1 = 24, 25, 26, 27
    a("v_mov_b32 v%d, 0x3f803f80" % (A_T + 4))
    if cfg.get("zpad", 1):
        a("v_and_b32 v%d, 2, v0" % (A_T + 5))
        a("v_cmp_eq_u32 vcc, 0, v%d" % (A_T + 5))
        a("v_cndmask_b32 v%d, v%d, v%d, vcc" % (A_T + 4, V_ZERO, A_T + 4))
    for r in range(1, 4):
        a("v_mov_b32 v%d, v%d" % (A_T + 4 + r, A_T + 4))
    a("v_lshlrev_b32 v%d, 4, v0" % (A_T + 2))
    a("v_add_u32 v%d, %d, v%d" % (A_T + 2, LDS_ONES, A_T + 2))
    a("ds_write_b128 v%d, v[%d:%d]" % (A_T + 2, A_T + 4, A_T + 7))
    a("ds_write_b128 v%d, v[%d:%d] offset:1024" % (A_T + 2, A_T + 4, A_T + 7))
    a("v_and_b32 v%d, 15, v%d" % (A_T + 2, V_LANE))
    a("v_lshlrev_b32 v%d, 4, v%d" % (A_T + 2, A_T + 2))
    a("v_lshl_add_u32 v%d, v%d, 8, v%d" % (A_T + 2, V_H, A_T + 2))
    a("v_add_u32 v%d, %d, v%d" % (A_VV, LDS_V, A_T + 2))
    a("v_add_u32 v%d, -20, v%d" % (A_T + 3, V_R31))
    a("v_cmp_gt_u32 vcc, 8, v%d" % (A_T + 3))
    a("v_mov_b32 v%d, %d" % (A_T + 2, LDS_ONES))
    a("v_mov_b32 v%d, %d" % (A_T + 3, LDS_ONES + 64))
    a("v_cndmask_b32 v%d, v%d, v%d, vcc" % (A_T + 2, A_T + 2, A_T + 3))
    if cfg.get("zpad", 1):
        a("v_and_b32 v%d, 27, v%d" % (A_T + 3, V_R31))
        a("v_cmp_ne_u32 vcc, 16, v%d" % (A_T + 3))
        a("v_add_u32 v%d, 32, v%d" % (A_T + 3, A_T + 2))
        a("v_cndmask_b32 v%d, v%d, v%d, vcc" % (A_T + 2, A_T + 2, A_T + 3))
    a("v_cmp_le_u32 vcc, 16, v%d" % V_R31)
    a("v_mov_b32 v%d, %d" % (A_VINC, UNR * 1024))
    a("v_cndmask_b32 v%d, v%d, v%d, vcc" % (A_VV, A_VV, A_T + 2))
    a("v_cndmask_b32 v%d, v%d, v%d, vcc" % (A_VINC, A_VINC, V_ZERO))
    for t in range(2):
        n = A_T + 8 + t
        a("v_mov_b32 v%d, 0" % n)
        for r in range(4):
            a("v_dot2_f32_bf16 v%d, v%d, v%d, v%d" % (n, Q[t] + r, Q[t] + r, n))
    for t in range(2):
        xhalf_sum(a, A_T + 8 + t, A_T + 10)
    a_addr(a, SA0, SA1, OFF_WO, 32, 8)
    a("s_mul_i32 s%d, s%d, %d" % (S_W13, S_M, 7 * 32768))
    a("s_lshl_b32 s%d, s%d, 13" % (S_WL, S_W))
    a("s_add_u32 s%d, s%d, s%d" % (S_W13, S_W13, S_WL))
    a("s_add_u32 s%d, s%d, 0x%x" % (S_W13, S_W13, OFF_W13))
    a_addr(a, SW0, SW1, OFF_W2, 112, 28)
    a("s_lshl_b32 s20, s%d, 12" % S_W)
    a("s_add_u32 s21, s33, s20")
    a("s_add_u32 s22, s21, 0x10000")
    a("s_add_u32 s23, s20, %d" % LDS_V)
    a("s_mul_i32 s38, s%d, 0x2000" % S_LAYER)
    a("s_add_u32 s38, s38, 0x%x" % (OFF_FLAGS + FL_KV))
    a("s_and_b32 s17, s2, 7")
    a("s_lshl_b32 s17, s17, 10")
    a("s_add_u32 s38, s38, s17")
    a("s_lshl_b32 s58, s2, 2")
    a("s_add_u32 s58, s58, 0x%x" % OFF_FLW)
    a("s_or_b32 s17, s%d, s%d" % (S_W, S_LAYER))
    a("s_cmp_lg_u32 s17, 0")
    a("s_cselect_b32 s58, 0xf0000000, s58")
    a("s_and_b32 s59, s2, 7")
    a("s_lshl_b32 s59, s59, 10")
    a("s_add_u32 s59, s59, 0x%x" % OFF_FLW)
    a("v_lshlrev_b32 v%d, 10, v%d" % (A_T + 16, V_LANE))
    a("s_getreg_b32 s17, hwreg(HW_REG_XCC_ID)")
    a("s_and_b32 s17, s17, 7")
    a("s_lshl_b32 s17, s17, 1")
    a("v_or_b32 v%d, s17, v%d" % (A_T + 17, V_TAG))
    a("v_and_b32 v%d, 15, v%d" % (A_T + 18, V_LANE))
    a("v_lshlrev_b32 v%d, 5, v%d" % (A_T + 18, A_T + 18))
    a("s_and_b32 s17, s2, 0x87")
    a("s_lshl_b32 s17, s17, 2")
    a("v_add_u32 v%d, s17, v%d" % (A_T + 18, A_T + 18))

    stamp(a, cfg, 1)
    a("s_cmp_lg_u32 s%d, 0" % S_W)
    a("s_cbranch_scc1 L_att_nopoll")
    poll(a, cfg, 38, V_L16, A_T + 12, wide=True, sleep=cfg.get("kv_sleep", 2))
    k2 = A_T + 13
    for d in ("row_shr:1", "row_shr:2", "row_shr:4", "row_shr:8"):
        a("v_max_f32_dpp v%d, v%d, v%d %s row_mask:0xf bank_mask:0xf" % (k2, k2, k2, d))
    a("v_max_f32_dpp v%d, v%d, v%d row_bcast:15 row_mask:0xa bank_mask:0xf" % (k2, k2, k2))
    a("v_max_f32_dpp v%d, v%d, v%d row_bcast:31 row_mask:0xc bank_mask:0xf" % (k2, k2, k2))
    a("v_mov_b32 v%d, %d" % (A_T + 12, LDS_ATT_FLAG + 16 - 63 * 4))
    a("v_add_u32 v%d, v%d, v%d" % (A_T + 12, V_L4, A_T + 12))
    a("s_mov_b32 exec_lo, 0")
    a("s_mov_b32 exec_hi, 0x80000000")
    a("ds_write_b32 v%d, v%d" % (A_T + 12, k2))
    a("s_mov_b64 exec, -1")
    a("s_waitcnt lgkmcnt(0)")
    a("L_att_nopoll:")
    a("s_waitcnt vmcnt(0)")
    a("s_barrier")
    a("s_mov_b64 exec, 0xff")
    a("buffer_store_dword v%d, v%d, s[4:7], s58 offen %s" % (A_T + 17, A_T + 16, SC))
    a("s_mov_b64 exec, -1")
    a("s_mov_b32 s%d, 0xf0000000" % SU.S_DST)
    stamp(a, cfg, 2)
    a("v_mov_b32 v%d, %d" % (A_T + 12, LDS_ATT_FLAG + 16))
    a("ds_read_b32 v%d, v%d" % (A_T + 1, A_T + 12))
    def kvl(g):
        out = []
        for sl, sg in ((20, 21), (23, 22)):
            out += ["s_add_u32 m0, s%d, %d" % (sl, g * 16384), "s_add_u32 s17, s%d, %d" % (sg, g * 16384)]
            out += ["buffer_load_dwordx4 v%d, s[4:7], s17 offen offset:%d %s lds" % (V_L16, q * 1024, SC) for q in range(4)]
        return out

    def kvdma(g):
        for x in kvl(g):
            a(x)

    G1 = 1
    for g in range(G1):
        kvdma(g)
        if g == 0:
            t_g3 = a.vt()
            a("s_waitcnt lgkmcnt(0)")
            for t in range(2):
                n = A_T + 8 + t
                a("v_mul_f32 v%d, v%d, v%d" % (n, A_T + 1, n))
                a("v_sqrt_f32 v%d, v%d" % (n, n))
            for t in range(2):
                n = A_T + 8 + t
                a("v_mul_f32 v%d, %s, v%d" % (n, fl(-1.001), n))
            a("v_min_f32 v%d, v%d, v%d" % (A_T + 10, A_T + 8, A_T + 9))
            a("v_mov_b32 v%d, %s" % (A_T + 11, fl(-cfg.get("bound_t", BOUND_T))))
            a("v_cmp_nge_f32 vcc, v%d, v%d" % (A_T + 10, A_T + 11))
            a("s_lshl_b32 s19, s%d, 2" % S_W)
            a("s_add_u32 s19, s19, %d" % LDS_ATT_FLAG)
            a("v_mov_b32 v%d, s19" % (A_T + 12))
            a("s_cmp_lg_u64 vcc, 0")
            a("s_cselect_b32 s18, 1, 0")
            a("v_mov_b32 v%d, s18" % (A_T + 11))
            a("ds_write_b32 v%d, v%d" % (A_T + 12, A_T + 11))
            for t in range(2):
                for r in range(16):
                    a("v_mov_b32 v%d, v%d" % (A_C[t] + r, A_T + 8 + t))
    stamp(a, cfg, 3)
    a.wait_vm(t_g3)
    a("s_waitcnt lgkmcnt(0)")
    a("s_barrier")
    stamp(a, cfg, 4)
    a("v_mov_b32 v%d, %d" % (A_T + 12, LDS_ATT_FLAG))
    a("ds_read_b128 v[%d:%d], v%d" % (A_T + 4, A_T + 7, A_T + 12))
    a("ds_read_b128 v[%d:%d], v%d" % (A_KF[0], A_KF[0] + 3, V_L16))
    a("ds_read_b128 v[%d:%d], v%d" % (A_VF[0][0], A_VF[0][0] + 3, A_VV))
    a("ds_read_b128 v[%d:%d], v%d offset:512" % (A_VF[0][1], A_VF[0][1] + 3, A_VV))
    a("ds_read_b128 v[%d:%d], v%d offset:1024" % (A_KF[1], A_KF[1] + 3, V_L16))
    a("s_waitcnt lgkmcnt(4)")
    a("v_or_b32 v%d, v%d, v%d" % (A_T + 4, A_T + 4, A_T + 5))
    a("v_or3_b32 v%d, v%d, v%d, v%d" % (A_T + 4, A_T + 4, A_T + 6, A_T + 7))
    a("v_readfirstlane_b32 s18, v%d" % (A_T + 4))
    a("s_cmp_eq_u32 s18, 0")
    a("s_cbranch_scc1 L_att_fast")
    keep = a.dma_issued, a.vm_issued
    for g in range(G1, 4):
        kvdma(g)
    a.dma_issued, a.vm_issued = keep
    a("s_waitcnt vmcnt(0)")
    a("s_barrier")
    a("v_mov_b32 v%d, 0xff800000" % (A_T + 8))
    a("v_mov_b32 v%d, 0xff800000" % (A_T + 9))
    a("v_mov_b32 v%d, v%d" % (A_T + 12, V_L16))
    a("s_mov_b32 s19, 64")
    a("L_att_pre:")
    a("ds_read_b128 v[%d:%d], v%d" % (A_P[0], A_P[0] + 3, A_T + 12))
    a("v_add_u32 v%d, 1024, v%d" % (A_T + 12, A_T + 12))
    a("s_waitcnt lgkmcnt(0)")
    for t in range(2):
        mf(a, A_S[t], vr(A_P[0], 4), vr(Q[t], 4), "0")
    for t in range(2):
        for r in range(0, 16, 2):
            a("v_max3_f32 v%d, v%d, v%d, v%d" % (A_T + 8 + t, A_S[t] + r, A_S[t] + r + 1, A_T + 8 + t))
    a("s_sub_u32 s19, s19, 1")
    a("s_cmp_lg_u32 s19, 0")
    a("s_cbranch_scc1 L_att_pre")
    for t in range(2):
        n = A_T + 8 + t
        a("v_mov_b32 v%d, v%d" % (A_T + 10, n))
        a("v_permlane32_swap_b32 v%d, v%d" % (n, A_T + 10))
        a("v_max_f32 v%d, v%d, v%d" % (n, n, A_T + 10))
        a("v_sub_f32 v%d, 0, v%d" % (n, n))
        for r in range(16):
            a("v_mov_b32 v%d, v%d" % (A_C[t] + r, n))
    a("L_att_fast:")
    a("s_waitcnt lgkmcnt(0)")

    def m4(d, x, y, c):
        mf(a, d, vr(x, 4), vr(y, 4), vr(c, 16))

    def ex(r):
        a("v_exp_f32 v%d, v%d" % (r, r))

    def cv(d, s):
        a("v_cvt_pk_bf16_f32 v%d, v%d, v%d" % (d, s, s + 1))

    m4(A_S[0], A_KF[0], Q[0], A_C[0])
    a("s_nop 7")

    def lines_of(fn):
        b = Asm()
        fn(b)
        return [l.strip() for l in b.lines]

    def groups(lines):
        out, cur = [], []
        for x in lines:
            cur.append(x)
            if x.startswith("buffer_"):
                out.append(cur)
                cur = []
        assert not cur
        return out

    q_kv = []
    for g in range(G1, 4):
        q_kv += [(x, g) for x in groups(kvl(g))]
    q_w = []
    for i in range(8):
        q_w += groups(lines_of(lambda b: blk(b, ar(4 * i, 4), SA0, i)))
        q_w += groups(lines_of(lambda b: blk(b, ar(32 + 4 * i, 4), SA1, i)))
    for idx in range(46):
        q_w += groups(lines_of(lambda b: w2load(b, idx, SW0, SW1)))
    q_t = [["s_add_u32 s17, s49, %d" % (q * 4096), "buffer_load_dword v%d, v%d, s[4:7], s17 offen sc1" % (A_T + 3, A_T + 2)] for q in range(5)]
    if not cfg.get("touch13", 1):
        q_t = []
    q_d = groups(dma_lines(0) + dma_lines(1))
    a("s_mul_i32 s49, s%d, %d" % (S_M, 7 * 32768))
    a("s_and_b32 s18, s%d, 1" % S_RG)
    a("s_mul_i32 s18, s18, %d" % 81920)
    a("s_add_u32 s49, s49, s18")
    a("s_mul_i32 s18, s%d, %d" % (S_W, 20480))
    a("s_add_u32 s49, s49, s18")
    a("s_add_u32 s49, s49, 0x%x" % (OFF_W13 + 65536))
    a("v_lshlrev_b32 v%d, 6, v%d" % (A_T + 2, V_LANE))
    tg = {}
    U_PROBE, U_CHK = cfg.get("u_probe", 21), cfg.get("u_chk", 24)
    PB = A_T + 12
    def slot(u):
        grp, g = None, None
        if q_kv:
            grp, g = q_kv.pop(0)
            if u < 4:
                grp = grp + q_kv.pop(0)[0]
        elif u == U_PROBE:
            a("buffer_load_dwordx4 v[%d:%d], v%d, s[4:7], s59 offen %s" % (PB, PB + 3, V_L16, SC))
            tg["probe"] = a.vt()
        elif u == U_CHK:
            assert not q_kv
            a("s_waitcnt vmcnt(0)")
            a("L_att_wchk:")
            for r in range(4):
                a("v_and_b32 v%d, -15, v%d" % (PB + r, PB + r))
            a("v_cmp_ne_u32 vcc, v%d, v%d" % (V_TAG, PB))
            for r in range(1, 4):
                a("v_cmp_ne_u32 s[18:19], v%d, v%d" % (V_TAG, PB + r))
                a("s_or_b64 vcc, vcc, s[18:19]")
            a("s_cmp_eq_u64 vcc, 0")
            a("s_cbranch_scc1 L_att_wok")
            if cfg.get("spin_limit"):
                a("s_sub_u32 s101, s101, 1")
                a("s_cbranch_scc1 L_att_wok")
            keep = a.vm_issued
            a("s_sleep 4")
            a("buffer_load_dwordx4 v[%d:%d], v%d, s[4:7], s59 offen %s" % (PB, PB + 3, V_L16, SC))
            a("s_waitcnt vmcnt(0)")
            a("s_branch L_att_wchk")
            a.vm_issued = keep
            a("L_att_wok:")
            a("buffer_load_dword v%d, v%d, s[4:7], s59 offen %s" % (PB, A_T + 18, SC))
            tg["grp"] = a.vt()
        elif u == U_CHK + 8:
            a.wait_vm(tg["grp"])
            a("v_cmp_ne_u32 vcc, v%d, v%d" % (A_T + 17, PB))
            a("s_cmp_eq_u64 vcc, 0")
            a("s_cselect_b32 s%d, %d, 0" % (S_LOC, 0 if cfg.get("force_remote") else 1))
            if cfg.get("loc_l0"):
                a("s_andn2_b32 s%d, s%d, s%d" % (S_LOC, S_LOC, S_LAYER))
        elif u < U_CHK:
            pass
        elif q_t and u >= cfg.get("t_from", 100) and (u - cfg.get("t_from", 100)) % cfg.get("t_every", 4) == 1:
            grp = q_t.pop(0)
        elif u >= 68 and q_d:
            grp = q_d.pop(0)
        elif q_w:
            grp = q_w.pop(0)
        if grp:
            for x in grp:
                a(x)
            if g is not None:
                tg[g] = a.vt()

    NU = 128
    BAR = {16: None, 36: None}
    for u in range(NU):
        j, t = u >> 1, u & 1
        nj, nt = (u + 1) >> 1, (u + 1) & 1
        pj, pt = (u - 1) >> 1, (u - 1) & 1
        jj = j % UNR
        sb, nsb = A_S[u % 2], A_S[(u + 1) % 2]
        plo, phi = A_P[(u % 2) * 2], A_P[(u % 2) * 2 + 1]
        pphi = A_P[((u - 1) % 2) * 2 + 1]
        if u + 1 < NU:
            m4(nsb, A_KF[nj % 2], Q[nt], A_C[nt])
        if t == 0 and j + 2 < 64:
            a("ds_read_b128 v[%d:%d], v%d offset:%d" % (A_KF[j % 2], A_KF[j % 2] + 3, V_L16, (j + 2) * 1024))
        if t == 1 and u > U_CHK and cfg.get('slot3', 0):
            slot(u)
        for r in range(0, 4):
            ex(sb + r)
        if u > 0:
            m4(A_O[pt], A_VF[pj % 2][1], pphi, A_O[pt])
        if t == 0 and j + 1 < 64:
            off = (jj + 1) * 1024
            a("ds_read_b128 v[%d:%d], v%d offset:%d" % (A_VF[(j + 1) % 2][0], A_VF[(j + 1) % 2][0] + 3, A_VV, off))
            a("ds_read_b128 v[%d:%d], v%d offset:%d" % (A_VF[(j + 1) % 2][1], A_VF[(j + 1) % 2][1] + 3, A_VV, off + 512))
        if t == 1:
            slot(u)
        for r in range(4, 9):
            ex(sb + r)
        for r in range(0, 4):
            cv(plo + r, sb + 2 * r)
        for r in range(9, 12):
            ex(sb + r)
        m4(A_O[t], A_VF[j % 2][0], plo, A_O[t]) if u > 1 else mf(a, A_O[t], vr(A_VF[j % 2][0], 4), vr(plo, 4), "0")
        if t == 1:
            a("s_waitcnt lgkmcnt(0)")
            if (j + 3) in BAR:
                g = BAR[j + 3]
                if g is not None:
                    a.wait_vm(tg[g])
                a("s_barrier")
                if j + 3 == 16:
                    stamp(a, cfg, 6)
        else:
            slot(u)
        for r in range(12, 16):
            ex(sb + r)
        if t == 1 and jj == UNR - 1:
            a("v_add_u32 v%d, v%d, v%d" % (A_VV, A_VINC, A_VV))
        for r in range(4, 8):
            cv(phi + r - 4, sb + 2 * r)
    assert not (q_kv or q_w or q_t or q_d), (len(q_kv), len(q_w), len(q_t), len(q_d))
    units = [(63, 1)]
    U = 128
    a("L_att_done:")
    DUAL[0] = bool(cfg.get("dual", 1))
    stamp(a, cfg, 7)
    lj, lt = units[-1]
    m4(A_O[lt], A_VF[lj % 2][1], A_P[((U - 1) % 2) * 2 + 1], A_O[lt])
    layer_off(a, 34, OFF_O, X_STRIDE)
    a("s_lshl_b32 s18, s%d, 15" % S_RT)
    a("s_add_u32 s34, s34, s18")
    a("s_lshl_b32 s18, s%d, 11" % S_NT)
    a("s_add_u32 s34, s34, s18")
    for t in range(2):
        a("v_rcp_f32 v%d, v%d" % (A_T, A_O[t] + 8))
        for r in range(8):
            a("v_mul_f32 v%d, v%d, v%d" % (A_O[t] + r, A_T, A_O[t] + r))
        pack8(a, A_P[t], A_O[t])
        st4(a, A_P[t], V_L16, 34, t * 1024)
    flag_addr(a, S_FO, FL_O, S_RB, 7, S_HQ)
    publish(a, S_FO, [(34, 2048, 0)])
    stamp(a, cfg, 8)


def phase_wo(a, cfg):
    SB0, SB1, SX = 26, 27, 28
    a("s_barrier")
    if not cfg.get("pf_att", 1):
        for i in range(8):
            blk(a, ar(4 * i, 4), 24, i)
            blk(a, ar(32 + 4 * i, 4), 25, i)
    b = Asm()
    dma13(b, 2)
    b("s_mul_i32 s29, s%d, %d" % (S_M, 7 * 1024))
    b("s_lshl_b32 s17, s%d, 11" % S_W)
    b("s_add_u32 s29, s29, s17")
    b("s_add_u32 m0, s17, %d" % LDS_CS)
    b("s_add_u32 s29, s29, 0x%x" % OFF_CSX)
    b("buffer_load_dwordx4 v%d, s[4:7], s29 offen sc1 lds" % V_L16)
    b("buffer_load_dwordx4 v%d, s[4:7], s29 offen offset:1024 sc1 lds" % V_L16)
    wside = [l.strip() for l in b.lines]
    wside2 = []
    if cfg.get("mix", 1):
        wside2, wside = wside, []
    elif cfg.get("t2_pre", 1):
        for x in wside:
            a(x)
        wside = []
    layer_off(a, SX, OFF_O, X_STRIDE)
    b_addr(a, SB0, SB1, SX, 32, 8)
    reduce_addr(a, LDS_R1)
    out_addr(a, 1)
    flag_addr(a, 38, FL_O, S_RB, 7)
    a("s_lshl_b32 s17, s%d, 5" % S_W)
    a("s_add_u32 s38, s38, s17")
    a("v_and_b32 v%d, 28, v%d" % (G_T + 5, V_L4))
    flag_addr(a, S_FX1, FL_X1, S_RG, 8, S_M)
    stamp(a, cfg, 8)
    poll(a, cfg, 38, G_T + 5, G_T + 4)
    stamp(a, cfg, 9)
    gemm64_core(a, cfg, 8, lambda i: ar(4 * i, 4), lambda i: ar(32 + 4 * i, 4), lambda e: ar(64 + 4 * e, 4),
                lambda e: blk(a, ar(64 + 4 * e, 4), SB1 if e < 8 else SB0, e % 8, SC), 16, ramp=cfg.get("ramp1", 8), resid=True,
                side=wside2, side_from=cfg.get("wo_side", 5), side_n=1)
    res_epilogue(a, cfg, 1, None)
    stamp(a, cfg, 10)
    publish(a, S_FX1, [(34, 2048, 0), (35, 512, 0)], between=wside)
    stamp(a, cfg, 11)


F_ACC = [24, 40, 56, 72]
NACC = 4
F_W = 88
F_CS = 120
F_H = 128
F_ST = 136
F_T = 168
F_LA = [184, 185]
F_NMU, F_C1, F_RS2, F_CSA, F_LG = 186, 187, 188, 189, 198
F_TA = 172


def phase_ffn1(a, cfg):
    SX, SH = 24, 27
    G3 = cfg.get("g0", 3) == 3
    if G3:
        a("s_mul_i32 s35, s%d, 6144" % S_W)
        a("s_sub_u32 s34, s%d, s%d" % (S_W13, S_WL))
        a("s_add_u32 s34, s34, s35")
        a("s_add_u32 s34, s34, %d" % (4 * 32768))
        head4 = ["s_add_u32 m0, s35, %d" % LDS_E, "s_nop 0"]
        head4 += ["buffer_load_dwordx4 v%d, s[4:7], s34 offen offset:%d sc1 lds" % (V_L16, q * 1024) for q in range(4)]
        head4 += ["s_add_u32 m0, s35, %d" % (LDS_E + 4096), "s_add_u32 s34, s34, 4096"]
        head4 += ["buffer_load_dwordx4 v%d, s[4:7], s34 offen offset:%d sc1 lds" % (V_L16, q * 1024) for q in range(2)]
        a("s_lshl_b32 s28, s%d, 11" % S_W)
        a("s_sub_u32 s33, s%d, s%d" % (S_W13, S_WL))
        a("s_add_u32 s33, s33, s28")
        a("s_add_u32 s33, s33, %d" % (4 * 32768 + 24 * 1024))
    a("s_lshl_b32 s30, s%d, 2" % S_RG)
    a("s_add_u32 s30, s30, s%d" % S_W)
    layer_off(a, SX, OFF_X, X_STRIDE, 2, 1)
    a("s_lshl_b32 s17, s30, 15")
    a("s_add_u32 s%d, s%d, s17" % (SX, SX))
    a("s_add_u32 s25, s%d, %d" % (SX, 28 * 1024))
    layer_off(a, 26, OFF_STAT, STAT_STRIDE, 2, 1)
    a("s_lshl_b32 s18, s30, 12")
    a("s_add_u32 s26, s26, s18")
    layer_off(a, SH, OFF_H, H_STRIDE)
    a("s_mul_i32 s17, s30, %d" % (112 * 1024))
    a("s_add_u32 s%d, s%d, s17" % (SH, SH))
    a("s_mul_i32 s17, s%d, %d" % (S_M, 7 * 1024))
    a("s_add_u32 s%d, s%d, s17" % (SH, SH))
    a("v_mov_b32 v%d, v%d" % (F_LA[0], V_L16))
    a("v_add_u32 v%d, 65536, v%d" % (F_LA[1], V_L16))
    a("v_add_u32 v%d, %d, v%d" % (F_CSA, LDS_E, V_L16))
    a("v_and_b32 v%d, 0x380, v%d" % (F_TA, V_L128))
    a("v_add_u32 v%d, 4096, v%d" % (F_TA + 1, F_TA))
    a_addr(a, 53, 54, OFF_W2, 112, 28)
    flag_addr(a, 38, FL_X1, S_RG, 8)
    a("s_lshr_b32 s17, s%d, 1" % S_W)
    a("s_lshl_b32 s17, s17, 7")
    a("s_add_u32 s38, s38, s17")
    a("s_and_b32 s17, s%d, 1" % S_W)
    a("s_lshl_b32 s17, s17, 2")
    a("s_add_u32 s38, s38, s17")
    lane_pat(a, F_T + 2, 15, 0, 3)
    flag_addr(a, S_FH, FL_H, S_RG, 9, S_M, per_layer=0x2000)
    stamp(a, cfg, 1)
    a("s_barrier")
    if not cfg.get("mix", 1):
        dma13(a, 3)
    poll(a, cfg, 38, F_T + 2, F_T)
    stamp(a, cfg, 2)
    tX = {}

    def xload(i):
        if i < 28:
            blk(a, ar(4 * i, 4), SX, i, SC)
        else:
            blk(a, ar(4 * i, 4), 25, i - 28, SC)
        tX[i] = a.vt()

    XW = cfg.get("xwin", 10)
    for i in range(XW):
        xload(i)

    def wread(tile, ks, ring):
        slot = SLOT13[tile]
        if ks == 32:
            a("ds_read_b128 v[%d:%d], v%d offset:%d" % (F_W + 4 * ring, F_W + 4 * ring + 3, F_CSA, LDS_CS - LDS_E + tile * 1024))
            return
        if G3 and tile == 4:
            a("ds_read_b128 v[%d:%d], v%d offset:%d" % (F_W + 4 * ring, F_W + 4 * ring + 3, F_CSA if ks < 24 else F_LA[0], (ks % 24) * 1024))
            return
        a("ds_read_b128 v[%d:%d], v%d offset:%d" % (F_W + 4 * ring, F_W + 4 * ring + 3, F_LA[slot >> 1], (slot & 1) * 32768 + ks * 1024))

    def epi(tile):
        acc, cs = F_ACC[tile % NACC], F_CS
        hp = F_H + 4 * (tile % 2)
        out = []
        for e in range(8):
            out.append("v_fma_f32 v%d, v%d, v%d, v%d" % (F_T + 8 + e, F_C1, acc + e, F_LG))
        for e in range(8):
            out.append("v_exp_f32 v%d, v%d" % (F_T + 8 + e, F_T + 8 + e))
            out.append("v_mul_f32 v%d, v%d, v%d" % (acc + e, acc + e, acc + 8 + e))
            if e:
                out.append("v_add_f32 v%d, v%d, v%d" % (F_T + 7 + e, F_RS2, F_T + 7 + e))
        out.append("v_add_f32 v%d, v%d, v%d" % (F_T + 15, F_RS2, F_T + 15))
        for e in range(8):
            out.append("v_rcp_f32 v%d, v%d" % (F_T + 8 + e, F_T + 8 + e))
            if e:
                out.append("v_mul_f32 v%d, v%d, v%d" % (acc + e - 1, F_T + 7 + e, acc + e - 1))
        out.append("v_mul_f32 v%d, v%d, v%d" % (acc + 7, F_T + 15, acc + 7))
        for i in range(4):
            out.append("v_cvt_pk_bf16_f32 v%d, v%d, v%d" % (hp + i, acc + 2 * i, acc + 2 * i + 1))
        out.append("buffer_store_dwordx4 v[%d:%d], v%d, s[4:7], s%d offen offset:%d" % (hp, hp + 3, V_OFF[tile // 4], SH, (tile % 4) * 1024))
        if DBL[0]:
            out.append("buffer_store_dwordx4 v[%d:%d], v%d, s[4:7], s%d offen offset:%d" % (hp, hp + 3, V_OFF[tile // 4], SH, (tile % 4) * 1024))
        return out

    G0 = cfg.get("g0", 3)
    steps = []
    for ks in range(33):
        for tl in range(G0):
            steps.append((tl, ks))
    for tile in range(G0, 7):
        for ks in range(33):
            steps.append((tile, ks))
    N = len(steps)
    PF = cfg.get('pf', 6)
    lt = {}
    first_of, last_of = {}, {}
    for n, (tile, ks) in enumerate(steps):
        first_of.setdefault(tile, n)
        last_of[tile] = n
    dma_q = [(3, x) for x in dma_lines(3)] if cfg.get('mix', 1) else []
    if G3:
        dma_q += [(3, x) for x in head4]
    fence_t, fence_n, fenced = {}, {}, set()

    def do_read(n):
        tile, ks = steps[n]
        if G3:
            ft = {(3, 0): 3, (4, 24): 5, (6, 0): 6}.get((tile, ks))
            if ft and ft not in fenced:
                assert ft in fence_t and not any(q[0] <= ft for q in dma_q), ft
                a.wait_vm(fence_t[ft])
                a("s_barrier")
                fenced.add(ft)
        elif n == first_of[tile] and tile >= (3 if cfg.get('mix', 1) else 4) and tile not in fenced:
            assert tile in fence_t and not any(q[0] == tile for q in dma_q), tile
            a.wait_vm(fence_t[tile])
            a("s_barrier")
        wread(tile, ks, n % 8)
        lt[n] = a.lt()

    cs_t = 0
    for n in range(PF):
        do_read(n)
    pending = []
    nx = XW
    nst, st_t, st_n, early_done, rb_done = 0, {}, {}, False, False
    for n, (tile, ks) in enumerate(steps):
        if tile >= G0 and ks == 0:
            stamp(a, cfg, 1 + tile)
        if tile == 0 and ks < 32:
            a.wait_vm(tX[ks])
        if n % 2 == 0:
            a.wait_lg(lt[min(n + 1, N - 1)])
            lg_done = lt[min(n + 1, N - 1)]
        acc = F_ACC[tile % NACC]
        if ks == 0 and tile >= NACC:
            assert nst > tile - NACC, (tile, nst)
        mf(a, acc, vr(F_W + 4 * (n % 8), 4), ar(4 * ks, 4) if ks < 32 else vr(F_CS, 4), "0" if ks == 0 else vr(acc, 16))
        if (tile == 0 or (tile < G0 and cfg.get('xfast', 0))) and nx < 32:
            xload(nx)
            nx += 1
            if nx == 32:
                load_stats(a, F_ST, 26, F_T, LLD[0])
                t_st = a.vt()
        if n + PF < N:
            do_read(n + PF)
        if n == last_of[G0 - 1] + 2:
            a("s_barrier")
            if G3:
                dma_q += [(5, "s_mov_b32 m0, s28"), (5, "s_nop 0"),
                          (5, "buffer_load_dwordx4 v%d, s[4:7], s33 offen sc1 lds" % V_L16),
                          (5, "buffer_load_dwordx4 v%d, s[4:7], s33 offen offset:1024 sc1 lds" % V_L16)]
                for tl in (5, 6):
                    dma_q += [(tl, x) for x in dma_lines(tl)]
                b = Asm()
                for idx in range(46, 56):
                    w2load(b, idx, 53, 54)
                dma_q += [(99, l.strip()) for l in b.lines]
            else:
                for tl in range(4, 4 + G0):
                    dma_q += [(tl, x) for x in dma_lines(tl)]
        for old in range(G0, 3):
            if n == last_of[old] + 2:
                a("s_barrier")
                dma_q += [(old + 4, x) for x in dma_lines(old + 4)]
                if old == 2:
                    b = Asm()
                    for idx in range(46, 56):
                        w2load(b, idx, 53, 54)
                    dma_q += [(99, l.strip()) for l in b.lines]
        dcost = 0
        if dma_q and ((n >= cfg.get("d3_from", 20) and n % cfg.get("d3_every", 5) == 0) if tile < G0 else n % cfg.get("dma_every", 3) == 0):
            while dma_q:
                tl, x = dma_q.pop(0)
                a(x)
                dcost += cfg.get("dma_cost", 8)
                if x.startswith("buffer_load"):
                    fence_t[tl] = a.vt()
                    fence_n[tl] = n
                    break
        if n == last_of[G0 - 1] - G0 - 2:
            a.wait_vm(t_st)
            finish_stats(a, F_ST, F_NMU, F_RS2)
            a("v_mul_f32 v%d, %s, v%d" % (F_C1, fl(-LOG2E), F_RS2))
            a("v_mov_b32 v%d, v%d" % (F_RS2, F_ST + 1))
            a("v_log_f32 v%d, v%d" % (F_LG, F_ST + 1))
            bextra(a, F_NMU, F_CS)
        for tl in range(0, 6):
            if n == max(last_of[tl], last_of[G0 - 1]) + 3:
                pending += epi(tl)
        if nst >= EARLY and not rb_done and n >= st_n[EARLY - 1] + 1:
            if cfg.get("h_wt", 6) < EARLY:
                readback(a, [(SH, 1024 * EARLY, 0)])
                a("s_mov_b64 exec, -1")
                dcost += 24
            rb_done = n
        for tl in range(cfg.get("h_touch", 0)):
            if tl in st_n and n == st_n[tl] + cfg.get("touch_lag", 24):
                a("buffer_load_dword v%d, v%d, s[4:7], s%d offen offset:%d sc1" % (V_P2, F_TA + (tl // 4), SH, (tl % 4) * 1024))
                a.vm_issued -= 0
                dcost += 8
        cost = dcost
        lim = cfg.get("epi_cost", 16)
        while pending:
            x = pending[0]
            if x == "CSWAIT":
                pending.pop(0)
                if cs_t > lg_done:
                    a.wait_lg(cs_t)
                    cost += 4
                continue
            cx = 8 if x.split()[0] in TRANS else (8 if x.startswith("buffer_") else 4)
            if cost + cx > lim:
                break
            pending.pop(0)
            if x.startswith("buffer_store"):
                ok = [t for t in (3, 4, 5, 6) if t in fence_n and t not in fenced and not any(q[0] == t for q in dma_q)
                      and fence_n[t] + cfg.get("fence_age", 20) <= n
                      and (99 not in fence_n or (not dma_q and fence_n[99] + cfg.get("fence_age", 20) <= n))]
                if ok:
                    a.wait_vm(fence_t[max(ok)])
                    a("s_barrier")
                    fenced.update(ok)
            if x.startswith("buffer_store") and nst == EARLY + 1:
                assert rb_done
                assert not dma_q
                a("s_waitcnt vmcnt(0)")
                a("s_mov_b64 exec, 1")
                emit_l(a, "buffer_store_dword v%d, v%d, s[4:7], s%d offen offset:%d" % (V_TAG, V_ZERO, S_FH, 0x100))
                a("s_mov_b64 exec, -1")
                early_done = True
            if x.startswith("buffer_store") and nst < cfg.get("h_wt", 6):
                a(x + " sc1")
            elif x.startswith("buffer_store"):
                emit_l(a, x)
            else:
                a(x)
            cost += cx
            if x.startswith("ds_read"):
                cs_t = a.lt()
            if x.startswith("buffer_store"):
                nst += 1
                st_t[nst - 1] = a.vt()
                st_n[nst - 1] = n
    assert early_done
    assert not dma_q
    stamp(a, cfg, 8)
    for x in pending + epi(6):
        if x == "CSWAIT":
            a.wait_lg(cs_t)
            continue
        if x.startswith("buffer_store"):
            emit_l(a, x)
        else:
            a(x)
    stamp(a, cfg, 9)
    h0 = max(EARLY, cfg.get("h_wt", 6))
    assert nst >= cfg.get("h_wt", 6)
    a("s_add_u32 s17, s%d, %d" % (SH, h0 * 1024))
    publish(a, S_FH, [(17, 1024 * (7 - h0), 0)])
    stamp(a, cfg, 10)


def phase_ffn2(a, cfg):
    SB0, SB1, SX = 26, 27, 28
    SW0, SW1 = 24, 25
    side = []
    if cfg.get("touchq", 0):
        a("s_lshl_b32 s49, s%d, 16" % S_HQ)
        a("s_and_b32 s18, s%d, 3" % S_RB)
        a("s_lshl_b32 s18, s18, 14")
        a("s_add_u32 s49, s49, s18")
        a("s_lshl_b32 s18, s%d, 12" % S_W)
        a("s_add_u32 s49, s49, s18")
        a("s_add_u32 s49, s49, 0x%x" % OFF_WQ)
        a("s_cmp_eq_u32 s%d, 1" % S_LAYER)
        a("s_cselect_b32 s49, 0xf0000000, s49")
        a("v_lshlrev_b32 v%d, 6, v%d" % (G_T + 2, V_LANE))
        side.append("buffer_load_dword v%d, v%d, s[4:7], s49 offen" % (G_T + 3, G_T + 2))
    layer_off(a, SX, OFF_H, H_STRIDE)
    b_addr(a, SB0, SB1, SX, 112, 28)
    reduce_addr(a, LDS_R1)
    out_addr(a, 2)
    flag_addr(a, 38, FL_H, S_RG, 9, per_layer=0x2000)
    a("s_lshl_b32 s17, s%d, 6" % S_W)
    a("s_add_u32 s38, s38, s17")
    a("s_and_b32 s17, s%d, 1" % S_RB)
    a("s_lshl_b32 s17, s17, 3")
    a("s_add_u32 s38, s38, s17")
    lane_pat(a, G_T + 6, 7, 0, 2)
    xin_flag_addr(a, 39, True, 1)
    stamp(a, cfg, 8)
    poll(a, cfg, 38, G_T + 6, G_T + 4, imm=0x100)
    stamp(a, cfg, 9)
    wb = cfg.get("wbl2", 0)
    R = 32

    def hreg(e):
        return ar(4 * (e % R), 4)

    early = [7 * mm + tl for tl in range(EARLY) for mm in range(4)]
    late = [7 * mm + tl for tl in range(EARLY, 7) for mm in range(4)]
    order = [(1, i) for i in early] + [(0, i) for i in early] + [(1, i) for i in late] + [(0, i) for i in late]
    tp = {}

    def probe():
        a("buffer_load_dword v%d, v%d, s[4:7], s38 offen %s" % (G_T + 5, G_T + 6, SC))
        tp[0] = a.vt()

    def check():
        a.wait_vm(tp[0])
        a("v_cmp_ne_u32 vcc, v%d, v%d" % (V_TAG, G_T + 5))
        a("s_cbranch_vccz L_ffn2_go")
        keep = a.vm_issued
        poll(a, cfg, 38, G_T + 6, G_T + 4)
        a.vm_issued = keep
        a("L_ffn2_go:")
        if wb:
            a("s_lshr_b32 s17, s2, %d" % (3 if wb == 1 else 6))
            a("s_or_b32 s17, s17, s%d" % S_W)
            a("s_xor_b32 s18, s%d, 1" % S_LAYER)
            a("s_or_b32 s17, s17, s18")
            a("s_cmp_lg_u32 s17, 0")
            a("s_cbranch_scc1 L_ffn2_nowb")
            a("buffer_wbl2 sc1")
            a("L_ffn2_nowb:")
        stamp(a, cfg, 3)

    pp = cfg.get("probe_at", 16)
    gemm64_core(a, cfg, 28, lambda i: w2reg(0, i), lambda i: w2reg(1, i), hreg,
                lambda e: blk(a, hreg(e), SB1 if order[e][0] else SB0, order[e][1], SC), cfg.get('win2', 18), order=order,
                gate=(2 * len(early), probe, check, pp, pp), side=side, side_from=cfg.get('w2_side', 6), side_n=1,
                side2=wq_lines(), side2_from=cfg.get('wq_from', 32), dup_last=True, ramp=cfg.get('ramp2', 10), resid=True)
    res_epilogue(a, cfg, 2, "L_final")
    stamp(a, cfg, 10)
    publish(a, 39, [(34, 2048, 0), (35, 512, 0)])
    stamp(a, cfg, 11)


OSC = [""]


def final_store(a):
    a("v_permlane32_swap_b32 v%d, v%d" % (V_RES, V_RES + 2))
    a("v_permlane32_swap_b32 v%d, v%d" % (V_RES + 1, V_RES + 3))
    a("v_permlane32_swap_b32 v%d, v%d" % (V_RES + 4, V_RES + 6))
    a("v_permlane32_swap_b32 v%d, v%d" % (V_RES + 5, V_RES + 7))
    a("s_lshl_b32 s17, s%d, 15" % S_RT)
    a("s_lshl_b32 s18, s%d, 6" % S_NT)
    a("s_add_u32 s17, s17, s18")
    a("v_lshlrev_b32 v%d, 10, v%d" % (G_T + 2, V_R31))
    a("v_lshl_add_u32 v%d, v%d, 4, v%d" % (G_T + 2, V_H, G_T + 2))
    a("buffer_store_dwordx4 v[%d:%d], v%d, s[8:11], s17 offen %s" % (V_RES, V_RES + 3, G_T + 2, OSC[0]))
    a("buffer_store_dwordx4 v[%d:%d], v%d, s[8:11], s17 offen offset:32 %s" % (V_RES + 4, V_RES + 7, G_T + 2, OSC[0]))


def st_begin(a, cfg):
    kern.stamp_init(a, cfg)


def st_end(a, cfg, k):
    if not cfg.get("stamps"):
        return
    stamp(a, cfg, NSTAMP - 1)
    a("s_memrealtime s[62:63]")
    a("s_waitcnt lgkmcnt(0)")
    a("s_mov_b32 s79, s62")
    a("s_mul_i32 s60, s3, 5\ns_add_u32 s60, s60, %d" % k)
    a("s_lshl_b32 s60, s60, 16")
    a("s_lshl_b32 s61, s2, 8")
    a("s_add_u32 s60, s60, s61")
    a("s_lshl_b32 s61, s12, 6")
    a("s_add_u32 s60, s60, s61")
    a("s_add_u32 s60, s60, 0x%x" % kern.OFF_STAMP)
    for i in range(16):
        a("v_writelane_b32 v199, s%d, %d" % (64 + i, i))
    a("s_mov_b32 exec_lo, 0xffff\ns_mov_b32 exec_hi, 0x0")
    a("buffer_store_dword v199, v%d, s[4:7], s60 offen" % V_L4)
    a("s_mov_b64 exec, -1")


def dbgt(a, cfg, k, last=False):
    if not cfg.get("dbgtime"):
        return
    L = a.newlabel("L_dt")
    a("s_cmp_lg_u32 s2, %d" % (cfg["dbgtime"] - 1))
    a("s_cbranch_scc1 %s" % L)
    a("s_memrealtime s[64:65]")
    a("s_memtime s[66:67]")
    a("s_mov_b32 s68, s98\ns_mov_b32 s69, s99\ns_mov_b32 s70, 256\ns_mov_b32 s71, 0x00020000")
    a("s_mul_i32 s72, s3, 20")
    a("s_waitcnt lgkmcnt(0)")
    a("s_sub_u32 s64, s64, s60")
    a("s_sub_u32 s66, s66, s62")
    a("v_mov_b32 v199, s64")
    a("buffer_store_dword v199, v%d, s[68:71], s72 offen offset:%d" % (V_ZERO, 4 + 4 * k))
    if last:
        a("v_mov_b32 v198, s66")
        a("buffer_store_dword v198, v%d, s[68:71], 0 offen offset:%d" % (V_ZERO, 4 * 13))
    a(L + ":")


KNAME = kern.NAME + "_kernel"


def build(cfg):
    rep = []
    DBL[0] = cfg.get("dbl", 0)
    TOUCH[0] = cfg.get("ptouch", 0)
    COMPACT[0] = cfg.get("compact", 1)
    DUAL[0] = False
    LSC[0] = cfg.get("lsc", "")
    RBW[0] = cfg.get("rbw", 0)
    OSC[0] = cfg.get("osc", "")
    LLD[0] = cfg.get("lld", "sc1")
    SPLIT_DMA[0] = not cfg.get("mix", 1)
    global OFF_WKV
    if COMPACT[0]:
        OFF_WKV = SU.OFF_WKV = C_WKV
    a = Asm()
    a("s_load_dwordx16 s[80:95], s[0:1], 0")
    a("s_load_dwordx2 s[96:97], s[0:1], 64")
    a("s_load_dwordx2 s[98:99], s[0:1], 80")
    kern.common_prologue(a, True)
    a("v_mov_b32 v%d, 0" % V_ZERO)
    a("v_mov_b32 v199, 0")
    a("v_lshlrev_b32 v%d, 7, v%d" % (V_L128, V_LANE))
    a("v_lshlrev_b32 v%d, 2, v%d" % (V_L4, V_LANE))
    a("s_lshr_b32 s17, s%d, 1" % S_W)
    a("s_and_b32 s18, s%d, 1" % S_W)
    a("s_lshl_b32 s%d, s%d, 1" % (S_NT, S_HQ))
    a("s_add_u32 s%d, s%d, s17" % (S_NT, S_NT))
    a("s_lshl_b32 s%d, s%d, 1" % (S_RT, S_RB))
    a("s_add_u32 s%d, s%d, s18" % (S_RT, S_RT))
    a("s_mov_b32 s%d, 0" % S_LAYER)
    if cfg.get("spin_limit"):
        a("s_mov_b32 s101, %d" % cfg["spin_limit"])
    if cfg.get("dbgtime"):
        a("s_memrealtime s[60:61]")
        a("s_memtime s[62:63]")
        a("s_waitcnt lgkmcnt(0)")
    st_begin(a, cfg)
    SU.startup(a, cfg, sys.modules[__name__])
    dbgt(a, cfg, 0)
    a_addr(a, S_Q0, S_Q1, OFF_WQ, 32, 8)
    a("s_lshl_b32 s%d, s%d, 13" % (S_KVW, S_W))
    a("s_add_u32 s%d, s%d, 0x%x" % (S_KVW, S_KVW, OFF_WKV))
    a("s_and_b32 s17, s2, 7")
    a("s_lshl_b32 s17, s17, 15")
    a("s_add_u32 s%d, s%d, s17" % (S_KVW, S_KVW))
    a("s_cmp_ge_u32 s%d, 4" % S_HQ)
    a("s_cselect_b32 s%d, s%d, s%d" % (S_KVW, S_Q0, S_KVW))
    st_end(a, cfg, 0)
    a("L_layer:")
    for k, ph in enumerate((phase_qkv, phase_att, phase_wo, phase_ffn1, phase_ffn2)):
        st_begin(a, cfg)
        ph(a, cfg)
        st_end(a, cfg, k + 1)
        dbgt(a, cfg, k + 1)
    a("s_mov_b32 s%d, 1" % S_LAYER)
    a("s_branch L_layer")
    a("L_final:")
    final_store(a)
    st_end(a, cfg, 5)
    dbgt(a, cfg, 5, True)
    a("L_exit:")
    a("s_endpgm")
    main_lines, _ = fix_hazards_fast(kern.uniq(a.lines, "main"), rep)

    pf = cfg.get("pfk", 0)
    if pf:
        b = Asm()
        b("s_cmp_ge_u32 s2, 256")
        b("s_cbranch_scc1 L_pf_end")
        b("s_load_dwordx16 s[16:31], s[0:1], 0")
        b("s_load_dwordx2 s[32:33], s[0:1], 64")
        b("s_getpc_b64 s[4:5]")
        b("L_pf_pc:")
        b("s_add_u32 s4, s4, L_code_begin-L_pf_pc")
        b("s_addc_u32 s5, s5, -1")
        b("s_lshr_b32 s6, s2, 3")
        b("s_and_b32 s7, s2, 7")
        b("s_lshl_b32 s8, s6, 11")
        b("v_lshlrev_b32 v1, 3, v0")
        b("v_add_u32 v1, s8, v1")
        b("v_min_u32 v1, L_code_end-L_code_begin-8, v1")
        b("global_load_dwordx2 v[2:3], v1, s[4:5]")
        if pf >= 2:
            b("v_lshlrev_b32 v1, 6, v0")
            b("s_lshl_b32 s8, s6, 14")
            b("v_add_u32 v4, s8, v1")
            b("s_lshl_b32 s9, s7, 18")
            b("s_lshl_b32 s10, s6, 13")
            b("s_add_u32 s9, s9, s10")
            b("v_lshlrev_b32 v5, 5, v0")
            b("v_add_u32 v5, s9, v5")
            b("s_mul_i32 s11, s2, 7168")
            b("v_mul_u32_u24 v6, 28, v0")
            b("v_add_u32 v6, s11, v6")
            b("s_lshl_b32 s11, s2, 11")
            b("v_lshlrev_b32 v7, 3, v0")
            b("v_add_u32 v7, s11, v7")
            b("s_waitcnt lgkmcnt(0)")
            b("global_load_dword v8, v4, s[18:19]")
            b("global_load_dword v9, v5, s[16:17]")
            b("global_load_dword v10, v1, s[20:21]")
            b("global_load_dword v11, v1, s[22:23]")
            b("global_load_dword v12, v6, s[28:29]")
            b("global_load_dword v13, v6, s[30:31]")
            b("global_load_dword v14, v6, s[32:33]")
            b("global_load_dword v15, v7, s[24:25]")
        b("L_pf_end:")
        b("s_endpgm")
        pfl, _ = fix_hazards_fast(["L_code_begin:", "L_code_end:"] + b.lines, rep)
        main_lines2 = [".p2align 8", "pf_kernel:"] + pfl[2:]
        s = "; @launch kernel=pf_kernel grid=(256,1,1) block=(256,1,1) lds=0\n"
        s += "; @launch kernel=%s grid=(256,1,1) block=(256,1,1) lds=%d\n" % (KNAME, 160 * 1024)
    else:
        main_lines2 = []
        s = "; @launch grid=(256,1,1) block=(256,1,1) lds=%d\n" % (160 * 1024)
    s += '.amdgcn_target "amdgcn-amd-amdhsa--gfx950"\n.text\n.globl %s\n.p2align 8\n.type %s,@function\n' % (KNAME, KNAME)
    s += "\n".join(["L_code_begin:", KNAME + ":"] + main_lines + ["L_code_end:"] + main_lines2) + "\n"
    s += '.section .rodata,"a"\n.p2align 6\n' + kernel_desc(KNAME, 512, 256, 102)
    if pf:
        s += ".p2align 6\n" + kernel_desc("pf_kernel", 16, 16, 40)
    return s, rep


if __name__ == "__main__":
    cfg = dict(code_prefetch=True)
    for kv in sys.argv[2:]:
        k, v = kv.split("=")
        cfg[k] = eval(v)
    s, rep = build(cfg)
    open(sys.argv[1], "w").write(s)
    print("auto nops:", sum(r[0] for r in rep), "sites", len(rep), "bytes of source", len(s))
    if cfg.get("verbose"):
        for r in rep:
            print(r)
```

```python
import sys
from asmlib import *
from layout import *
import kern
import startup as SU
from kern import (split3, fl, MF, S_LAYER, S_W, S_RB, S_HQ, S_RG, S_M, V_L16, V_LANE, V_R31, V_H, V_OFF, xhalf_sum,
                  load_stats, finish_stats, pack8, stamp, kernel_desc, prep, NSTAMP)

SC = "sc1"


COMPACT = [1]
CMAP = {OFF_X: 0x800000, OFF_O: 0xC00000, OFF_H: 0xE00000, OFF_STAT: OFF_STAT}
C_WKV = 0x780000
C_END = 0x1500000


def layer_off(a, sdst, base, stride, mul=1, add=0):
    if COMPACT[0] and base in CMAP:
        a("s_mov_b32 s%d, 0x%x" % (sdst, CMAP[base] + (add & 1) * stride))
    else:
        kern.layer_off(a, sdst, base, stride, mul, add)


LLD = ["sc1"]


def blk(a, dst, sbase, i, sc=None):
    kern.blk(a, dst, sbase, i, LLD[0] if sc else SC)


FL_O = 0x0000
FL_X1 = 0x2000
FL_H = 0x8000
FL_XIN = 0x6000
OFF_FLW = 0x64C000
FL_KV = 0x640000 - OFF_FLAGS

S_RT, S_NT = 31, 32
S_FO, S_FX1, S_FH = 40, 41, 42
S_W13, S_WL = 47, 48
S_RET = 44
V_RES = 12
V_TAG = 11
V_L4 = 20
V_ZERO = 21
VB = 24

G_ACC = 24
G_RED = 88
G_ST = 136
G_CS = 152
G_T = 168
V_WR = [184, 185, 186]
V_RD = 187
V_NMU, V_RSTD = 188, 189
G_KVACC = 88
G_Q = 190
W2V = 200

LDS_R1 = 96 * 1024
LDS_RQ = 0
LDS_KVX = 49152
LDS_CSX = 69632
LDS_CS = 152 * 1024
LDS_E = 128 * 1024


DBL = [0]
LSC = ["sc1"]
S_LOC = 57
DUAL = [False]
_dl = [0]


def lstore(text):
    lines = text if isinstance(text, list) else [text]
    if not DUAL[0]:
        return [l + " sc1" for l in lines]
    _dl[0] += 1
    n = _dl[0]
    return (["s_cbranch_scc1 L_ls%da ; needs scc" % n] + [l + " sc1" for l in lines] + ["s_branch L_ls%db" % n, "L_ls%da:" % n] +
            ["!" + l + " " + LSC[0] for l in lines] + ["L_ls%db:" % n])


def emit_l(a, text):
    out = lstore(text)
    if DUAL[0]:
        a("s_cmp_lg_u32 s%d, 0" % S_LOC)
    for l in out:
        if l.startswith("!"):
            a(l[1:])
        else:
            a(l)


def st4(a, data, voff, soff, imm=0):
    emit_l(a, "buffer_store_dwordx4 v[%d:%d], v%d, s[4:7], s%d offen offset:%d" % (data, data + 3, voff, soff, imm))
    if DBL[0]:
        a("buffer_store_dwordx4 v[%d:%d], v%d, s[4:7], s%d offen offset:%d" % (data, data + 3, voff, soff, imm))


TOUCH = [1]
V_L128 = 23
V_P2 = 199


V_L64 = 22


RBW = [0]


def readback(a, regions, final=False):
    if not DUAL[0]:
        return
    L = a.newlabel("L_rb")
    keep = a.vm_issued
    a("s_cmp_eq_u32 s%d, 0" % S_LOC)
    a("s_cbranch_scc1 %s" % L)
    a("v_lshlrev_b32 v%d, 6, v%d" % (V_L64, V_LANE))
    if RBW[0] and final:
        a("s_waitcnt vmcnt(0)")
    for sg, nb, imm in regions:
        n = nb // 64
        assert n <= 64
        a("s_mov_b32 exec_lo, 0x%x" % (((1 << n) - 1) & 0xffffffff))
        a("s_mov_b32 exec_hi, 0x%x" % (((1 << n) - 1) >> 32))
        a("buffer_load_dword v%d, v%d, s[4:7], s%d offen offset:%d %s" % (V_P2, V_L64, sg, imm, LLD[0]))
    a(L + ":")
    a.vm_issued = keep


def publish(a, s_addr, regions, imm=0, between=()):
    readback(a, regions, True)
    if between:
        a("s_mov_b64 exec, -1")
        for x in between:
            a(x)
    a("s_waitcnt vmcnt(0)")
    a("s_mov_b64 exec, 1")
    emit_l(a, "buffer_store_dword v%d, v%d, s[4:7], s%d offen offset:%d" % (V_TAG, V_ZERO, s_addr, imm))
    a("s_mov_b64 exec, -1")


def poll(a, cfg, s_addr, voff, vtmp, wide=False, imm=0, sleep=0):
    L = a.newlabel("L_poll")
    if cfg.get("spin_limit"):
        a("s_mov_b32 s101, %d" % cfg["spin_limit"])
    if cfg.get("ppoll", 0) and not wide and not sleep:
        ld = lambda r: a("buffer_load_dword v%d, v%d, s[4:7], s%d offen offset:%d %s" % (r, voff, s_addr, imm, SC))
        ld(vtmp)
        a("s_sleep %d" % cfg.get("ppoll_gap", 2))
        a(L + ":")
        ld(V_P2)
        a("s_waitcnt vmcnt(1)")
        a("v_cmp_ne_u32 vcc, v%d, v%d" % (V_TAG, vtmp))
        a("s_cbranch_vccz %s_out" % L)
        ld(vtmp)
        a("s_waitcnt vmcnt(1)")
        if cfg.get("spin_limit"):
            a("s_sub_u32 s101, s101, 1")
            a("s_cbranch_scc1 %s_out" % L)
        a("v_cmp_ne_u32 vcc, v%d, v%d" % (V_TAG, V_P2))
        a("s_cbranch_vccnz %s" % L)
        a.vm_issued -= 1
        a(L + "_out:")
        return
    a(L + ":")
    if wide:
        a("buffer_load_dwordx4 v[%d:%d], v%d, s[4:7], s%d offen %s" % (vtmp, vtmp + 3, voff, s_addr, SC))
        a("s_waitcnt vmcnt(0)")
        a("v_cmp_ne_u32 s[18:19], v%d, v%d" % (V_TAG, vtmp + 2))
        a("v_cndmask_b32 v%d, v%d, v%d, s[18:19]" % (vtmp, vtmp, V_ZERO))
        a("v_cmp_ne_u32 s[18:19], v%d, v%d" % (V_TAG, vtmp + 3))
        a("v_cndmask_b32 v%d, v%d, v%d, s[18:19]" % (vtmp, vtmp, V_ZERO))
    else:
        a("buffer_load_dword v%d, v%d, s[4:7], s%d offen offset:%d %s" % (vtmp, voff, s_addr, imm, SC))
        a("s_waitcnt vmcnt(0)")
    if cfg.get("spin_limit"):
        a("s_sub_u32 s101, s101, 1")
        a("s_cbranch_scc1 %s_out" % L)
    a("v_cmp_ne_u32 vcc, v%d, v%d" % (V_TAG, vtmp))
    if sleep:
        a("s_cbranch_vccz %s_out" % L)
        a("s_sleep %d" % sleep)
        a("s_branch %s" % L)
    else:
        a("s_cbranch_vccnz %s" % L)
    a(L + "_out:")


def lane_pat(a, vdst, mask, hi_shift, lo_mul):
    a("v_and_b32 v%d, %d, v%d" % (vdst, mask & ~1, V_LANE))
    a("v_lshlrev_b32 v%d, 3, v%d" % (vdst, vdst))
    a("v_and_b32 v%d, 1, v%d" % (vdst + 1, V_LANE))
    a("v_lshl_add_u32 v%d, v%d, %d, v%d" % (vdst, vdst + 1, lo_mul, vdst))


def flag_addr(a, sdst, base, s_grp, grp_shift, s_mem=None, per_layer=0x1000):
    a("s_mul_i32 s%d, s%d, 0x%x" % (sdst, S_LAYER, per_layer))
    a("s_add_u32 s%d, s%d, 0x%x" % (sdst, sdst, OFF_FLAGS + base))
    a("s_lshl_b32 s17, s%d, %d" % (s_grp, grp_shift))
    a("s_add_u32 s%d, s%d, s17" % (sdst, sdst))
    if s_mem is not None:
        a("s_lshl_b32 s17, s%d, 4" % s_mem)
        a("s_add_u32 s%d, s%d, s17" % (sdst, sdst))
        a("s_lshl_b32 s17, s%d, 2" % S_W)
        a("s_add_u32 s%d, s%d, s17" % (sdst, sdst))


def xin_flag_addr(a, sdst, own, layer_add):
    flag_addr(a, sdst, FL_XIN + 0x1000 * layer_add, S_RB, 7, S_HQ if own else None)


def a_addr(a, s_a0, s_a1, offA, ksA, ksw):
    a("s_mul_i32 s20, s%d, %d" % (S_W, ksw * 1024))
    a("s_mul_i32 s%d, s%d, %d" % (s_a0, S_NT, ksA * 1024))
    a("s_add_u32 s%d, s%d, s20" % (s_a0, s_a0))
    a("s_add_u32 s%d, s%d, 0x%x" % (s_a0, s_a0, offA))
    a("s_xor_b32 s21, s%d, 1" % S_NT)
    a("s_mul_i32 s%d, s21, %d" % (s_a1, ksA * 1024))
    a("s_add_u32 s%d, s%d, s20" % (s_a1, s_a1))
    a("s_add_u32 s%d, s%d, 0x%x" % (s_a1, s_a1, offA))


def b_addr(a, s_b0, s_b1, s_base, ksB, ksw):
    a("s_mul_i32 s20, s%d, %d" % (S_W, ksw * 1024))
    a("s_add_u32 s20, s20, s%d" % s_base)
    a("s_mul_i32 s%d, s%d, %d" % (s_b0, S_RT, ksB * 1024))
    a("s_add_u32 s%d, s%d, s20" % (s_b0, s_b0))
    a("s_xor_b32 s21, s%d, 1" % S_RT)
    a("s_mul_i32 s%d, s21, %d" % (s_b1, ksB * 1024))
    a("s_add_u32 s%d, s%d, s20" % (s_b1, s_b1))


def reduce_addr(a, base):
    for j in (1, 2, 3):
        a("s_xor_b32 s17, s%d, %d" % (S_W, j))
        a("s_mul_i32 s17, s17, 12288")
        a("s_add_u32 s17, s17, %d" % (base + (j - 1) * 4096))
        a("v_add_u32 v%d, s17, v%d" % (V_WR[j - 1], V_L16))
    a("s_mul_i32 s17, s%d, 12288" % S_W)
    a("s_add_u32 s17, s17, %d" % base)
    a("v_add_u32 v%d, s17, v%d" % (V_RD, V_L16))


def mf(a, d, x, y, c):
    a("%s v[%d:%d], %s, %s, %s" % (MF, d, d + 15, x, y, c))


def wr_tile(a, j):
    for q in range(4):
        r = G_ACC + 16 * j + 4 * q
        a("ds_write_b128 v%d, v[%d:%d] offset:%d" % (V_WR[j - 1], r, r + 3, q * 1024))


def rd_tile(a, j, dst):
    for q in range(4):
        a("ds_read_b128 v[%d:%d], v%d offset:%d" % (dst + 4 * q, dst + 4 * q + 3, V_RD, (j - 1) * 4096 + q * 1024))


def gemm64_core(a, cfg, n, A0, A1, Breg, issueB, window, pre_tickets=None, order=None, side=None, side_from=0, side_n=1,
                gate=None, side2=None, side2_from=0, ramp=None, resid=False, extra0=None, hooks=None, tail_side=None, dup_last=False):
    if order is None:
        order = [(1, i) for i in range(n)] + [(0, i) for i in range(n)]
    M = len(order)
    side = list(side or [])
    t = dict(pre_tickets or {})
    nxt = len(t)
    gpos = gate[0] if gate else M + 1
    gated = [False]

    def try_issue(limit):
        nonlocal nxt
        while nxt < M and nxt < limit:
            if nxt >= gpos and not gated[0]:
                return
            issueB(nxt)
            t[nxt] = a.vt()
            nxt += 1
            if gate and nxt == gate[3]:
                gate[1]()

    try_issue(ramp or window)
    if cfg.get("stamps") != 2:
        stamp(a, cfg, 1)
    last1 = max(e for e, (st, i) in enumerate(order) if st == 1)
    wr1 = last1 + 2
    bar1 = min(M - 2, last1 + 1 + max(2, (M - last1) // 2))
    seen = set()
    pend = []

    def presum():
        out = ["v_add_f32 v%d, v%d, v%d" % (G_RED + e, G_RED + e, G_RED + 16 + e) for e in range(16)]
        if resid:
            for i in range(8):
                out += ["v_lshlrev_b32 v%d, 16, v%d" % (G_T, V_RES + i), "v_and_b32 v%d, 0xffff0000, v%d" % (G_T + 1, V_RES + i),
                        "v_add_f32 v%d, v%d, v%d" % (G_RED + 2 * i, G_RED + 2 * i, G_T),
                        "v_add_f32 v%d, v%d, v%d" % (G_RED + 2 * i + 1, G_RED + 2 * i + 1, G_T + 1)]
        return out

    def step(e):
        st, i = order[e]
        if gate and not gated[0] and e == gate[4]:
            assert not side
            gate[2]()
            gated[0] = True
            try_issue(e + window)
        if hooks and e in hooks:
            hooks[e]()
        a.wait_vm(t[e])
        if e == 0 and cfg.get("stamps") != 2:
            stamp(a, cfg, 2)
        first = "0" if st not in seen else None
        seen.add(st)
        if st == 1:
            mf(a, G_ACC + 16, A0(i), Breg(e), first or vr(G_ACC + 16, 16))
            if cfg.get("ldmid", 0) and window < 30:
                try_issue(min(e + 1 + window, nxt + 1))
            mf(a, G_ACC + 48, A1(i), Breg(e), first or vr(G_ACC + 48, 16))
        else:
            mf(a, G_ACC + 32, A1(i), Breg(e), first or vr(G_ACC + 32, 16))
            if cfg.get("ldmid", 0) and window < 30:
                try_issue(min(e + 1 + window, nxt + 1))
            mf(a, G_ACC, A0(i), Breg(e), first or vr(G_ACC, 16))
        try_issue(min(e + 1 + window, nxt + 2))
        if e >= side_from:
            k = 0
            while side and k < side_n:
                x = side.pop(0)
                a(x)
                k += x.startswith("buffer_")
        if side2 and e >= side2_from:
            for _ in range(cfg.get("side2_n", 1)):
                if side2:
                    a(side2.pop(0))
        if e == wr1:
            wr_tile(a, 1)
            wr_tile(a, 3)
        if e == bar1:
            a("s_waitcnt lgkmcnt(0)")
            a("s_barrier")
            rd_tile(a, 1, G_RED)
            rd_tile(a, 3, G_RED + 16)
            pend[:] = presum()
        elif pend and e > bar1:
            if e == bar1 + 1:
                a("s_waitcnt lgkmcnt(0)")
            for _ in range(cfg.get("pre_n", 10)):
                if pend:
                    a(pend.pop(0))

    for e in range(M):
        if dup_last and e == side2_from:
            snap = (nxt, dict(t), a.vm_issued, a.lg_issued, a.dma_issued)
            a("s_cmp_eq_u32 s%d, 1" % S_LAYER)
            a("s_cbranch_scc1 L_g64_last")
            for e2 in range(e, M):
                step(e2)
            a("s_branch L_g64_join")
            a("L_g64_last:")
            nxt, t, a.vm_issued, a.lg_issued, a.dma_issued = snap[0], snap[1], snap[2], snap[3], snap[4]
            for e2 in range(e, M):
                step(e2)
            a("L_g64_join:")
            break
        step(e)
    assert wr1 <= bar1 < M and not side2
    if extra0:
        extra0[2]()
        mf(a, G_ACC, extra0[0], extra0[1], vr(G_ACC, 16))
    tside = list(tail_side or [])
    cnt = [0]

    def av(x):
        a(x)
        cnt[0] += 1
        if tside and cnt[0] % cfg.get("tail_every", 4) == 0:
            a(tside.pop(0))

    stamp(a, cfg, 4)
    a("s_waitcnt lgkmcnt(0)")
    for _ in range(8):
        if pend:
            av(pend.pop(0))
    wr_tile(a, 2)
    for x in pend:
        av(x)
    for e in range(16):
        av("v_add_f32 v%d, v%d, v%d" % (G_ACC + e, G_ACC + e, G_RED + e))
    for x in side:
        a(x)
    a("s_waitcnt lgkmcnt(0)")
    a("s_barrier")
    stamp(a, cfg, 6)
    rd_tile(a, 2, G_RED + 32)
    for q in range(4):
        a("s_waitcnt lgkmcnt(%d)" % (3 - q))
        for e in range(4):
            av("v_add_f32 v%d, v%d, v%d" % (G_ACC + 4 * q + e, G_ACC + 4 * q + e, G_RED + 32 + 4 * q + e))
    for x in tside:
        a(x)
    stamp(a, cfg, 7)


def bextra(a, nmu, d):
    split3(a, nmu, d + 4)
    a("v_lshrrev_b32 v%d, 16, v%d" % (d + 7, d + 4))
    a("v_or_b32 v%d, v%d, v%d" % (d, d + 7, d + 5))
    a("v_or_b32 v%d, v%d, v%d" % (d + 1, d + 7, d + 6))
    a("v_mov_b32 v%d, v%d" % (d + 2, d))
    a("v_mov_b32 v%d, 0" % (d + 3))


def res_epilogue(a, cfg, xout_add, final):
    for i in range(8):
        a("v_cvt_pk_bf16_f32 v%d, v%d, v%d" % (V_RES + i, G_ACC + 2 * i, G_ACC + 2 * i + 1))
        if i == 3 and final is None:
            st4(a, V_RES, V_L16, 34)
    if final is not None:
        a("s_cmp_eq_u32 s%d, 1" % S_LAYER)
        a("s_cbranch_scc1 %s" % final)
        st4(a, V_RES, V_L16, 34)
    store_x_tail(a)


def store_x_tail(a):
    st4(a, V_RES + 4, V_L16, 34, 1024)
    a("v_mov_b32 v%d, 0x3f803f80" % G_T)
    a("v_mov_b32 v%d, 0" % (G_T + 12))
    a("v_mov_b32 v%d, 0" % (G_T + 13))
    for r in range(8):
        a("v_dot2_f32_bf16 v%d, v%d, v%d, v%d" % (G_T + 12, V_RES + r, G_T, G_T + 12))
        a("v_dot2_f32_bf16 v%d, v%d, v%d, v%d" % (G_T + 13, V_RES + r, V_RES + r, G_T + 13))
    a("v_lshlrev_b32 v%d, 4, v%d" % (G_T + 2, V_R31))
    a("s_nop 1")
    a("v_mov_b32 v%d, v%d" % (G_T + 14, G_T + 12))
    a("v_mov_b32 v%d, v%d" % (G_T + 15, G_T + 13))
    a("s_nop 0")
    a("v_permlane32_swap_b32 v%d, v%d" % (G_T + 12, G_T + 14))
    a("v_permlane32_swap_b32 v%d, v%d" % (G_T + 13, G_T + 15))
    a("v_add_f32 v%d, v%d, v%d" % (G_T + 12, G_T + 12, G_T + 14))
    a("v_add_f32 v%d, v%d, v%d" % (G_T + 13, G_T + 13, G_T + 15))
    a("s_mov_b32 exec_lo, 0xffffffff\ns_mov_b32 exec_hi, 0x0")
    emit_l(a, "buffer_store_dwordx2 v[%d:%d], v%d, s[4:7], s35 offen" % (G_T + 12, G_T + 13, G_T + 2))
    a("s_mov_b64 exec, -1")


def out_addr(a, xout_add):
    layer_off(a, 34, OFF_X, X_STRIDE, 2, xout_add)
    a("s_lshl_b32 s18, s%d, 15" % S_RT)
    a("s_add_u32 s34, s34, s18")
    a("s_lshl_b32 s18, s%d, 11" % S_NT)
    a("s_add_u32 s34, s34, s18")
    layer_off(a, 35, OFF_STAT, STAT_STRIDE, 2, xout_add)
    a("s_lshl_b32 s18, s%d, 12" % S_RT)
    a("s_add_u32 s35, s35, s18")
    a("s_lshr_b32 s18, s%d, 1" % S_NT)
    a("s_lshl_b32 s18, s18, 9")
    a("s_add_u32 s35, s35, s18")
    a("s_and_b32 s18, s%d, 1" % S_NT)
    a("s_lshl_b32 s18, s18, 3")
    a("s_add_u32 s35, s35, s18")


S_Q0, S_Q1, S_KVW = 50, 51, 52


def wq_lines():
    b = Asm()
    for i in range(8):
        blk(b, ar(128 + 4 * i, 4), S_KVW, i)
    for i in range(8):
        blk(b, ar(160 + 4 * i, 4), S_Q0, i)
        blk(b, ar(192 + 4 * i, 4), S_Q1, i)
    return [l.strip() for l in b.lines]


SB0, SB1, SX = 26, 27, 28
CK = G_T + 8


def qkv_setup(a, kvx):
    a("v_lshlrev_b32 v%d, 4, v%d" % (G_T + 1, V_H))
    a("v_lshlrev_b32 v%d, 2, v%d" % (G_T + 6, V_R31))
    layer_off(a, SX, OFF_X, X_STRIDE, 2, 0)
    b_addr(a, SB0, SB1, SX, 32, 8)
    layer_off(a, 30, OFF_STAT, STAT_STRIDE, 2, 0)
    a("s_lshl_b32 s17, s%d, 12" % S_RT)
    a("s_add_u32 s30, s30, s17")
    reduce_addr(a, LDS_RQ)
    layer_off(a, 33, OFF_KV, KV_STRIDE)
    a("s_lshr_b32 s36, s%d, 1" % S_HQ)
    a("s_lshl_b32 s17, s%d, 1" % S_RB)
    a("s_add_u32 s17, s17, s36")
    a("s_lshl_b32 s17, s17, 15")
    a("s_add_u32 s23, s17, s%d" % SX)
    a("s_lshl_b32 s17, s%d, 13" % S_W)
    a("s_add_u32 s23, s23, s17")
    a("s_lshl_b32 s17, s%d, 12" % S_W)
    a("s_add_u32 s17, s17, %d" % kvx)
    a("v_add_u32 v%d, s17, v%d" % (G_T + 2, V_L16))
    a("v_add_u32 v%d, %d, v%d" % (G_T + 3, kvx, V_L16))
    a("s_mul_i32 s37, s%d, 0x2000" % S_LAYER)
    a("s_add_u32 s37, s37, 0x%x" % (OFF_FLAGS + FL_KV))
    a("s_lshl_b32 s17, s%d, 5" % S_RB)
    a("s_add_u32 s37, s37, s17")
    a("s_lshl_b32 s17, s36, 4")
    a("s_add_u32 s37, s37, s17")
    a("s_lshl_b32 s39, s2, 11")
    a("s_add_u32 s39, s39, 0x%x" % OFF_CKS)


def kv_job(a, cfg, sfx, kvx, done, b1):
    load_stats(a, G_ST, 30, G_T, LLD[0])
    t_st = a.vt()
    tK = {}
    for i in range(8):
        blk(a, ar(224 + 4 * i, 4), 23, i, SC)
        tK[i] = a.vt()
    if b1:
        b1()
    stamp(a, cfg, 1)
    a.wait_vm(t_st)
    finish_stats(a, G_ST, V_NMU, V_RSTD)
    XS = kvx + 16384
    a("s_lshl_b32 s17, s%d, 8" % S_W)
    a("s_add_u32 s17, s17, %d" % XS)
    a("v_add_u32 v%d, s17, v%d" % (G_T + 4, G_T + 6))
    a("v_mul_f32 v%d, v%d, v%d" % (G_T + 5, V_NMU, V_RSTD))
    a("ds_write_b32 v%d, v%d" % (G_T + 4, V_RSTD))
    a("ds_write_b32 v%d, v%d offset:128" % (G_T + 4, G_T + 5))
    a("s_lshr_b32 s18, s%d, 1" % S_W)
    a("s_bitcmp1_b32 s%d, 0" % S_HQ)
    a("s_cselect_b32 s18, s18, 1")
    a("s_lshl_b32 s19, s18, 6")
    a("s_add_u32 s17, s17, s19")
    a("v_add_u32 v%d, s17, v%d" % (G_T + 4, G_T + 1))
    a("s_lshl_b32 s19, s18, 11")
    a("v_add_u32 v%d, s19, v%d" % (G_T + 3, G_T + 3))
    RS = G_ACC + 16
    for g in range(2):
        a("ds_read_b128 v[%d:%d], v%d offset:%d" % (RS + 4 * g, RS + 4 * g + 3, G_T + 4, 32 * g))
        a("ds_read_b128 v[%d:%d], v%d offset:%d" % (RS + 8 + 4 * g, RS + 8 + 4 * g + 3, G_T + 4, 128 + 32 * g))
    a("s_lshl_b32 s17, s%d, 10" % S_RT)
    a("s_add_u32 s34, s33, s17")
    a("s_bitcmp1_b32 s%d, 0" % S_HQ)
    a("s_cbranch_scc1 L_qkv_v1" + sfx)
    for v in range(2):
        if v:
            a("L_qkv_v%d%s:" % (v, sfx))
        for i in range(8):
            a.wait_vm(tK[i])
            x, w = ar(224 + 4 * i, 4), ar(128 + 4 * i, 4)
            c = "0" if i == 0 else vr(G_KVACC, 16)
            if v & 1:
                mf(a, G_KVACC, x, w, c)
            else:
                mf(a, G_KVACC, w, x, c)
        if v < 1:
            a("v_lshlrev_b32 v%d, 10, v%d" % (G_T + 4, V_LANE))
            a("s_branch L_qkv_kvred" + sfx)
    a("v_lshlrev_b32 v%d, 10, v%d" % (G_T + 4, V_LANE))
    a("v_lshlrev_b32 v%d, 4, v%d" % (G_T + 5, V_R31))
    a("v_lshl_add_u32 v%d, v%d, 8, v%d" % (G_T + 5, V_H, G_T + 5))
    a("s_lshl_b32 s19, s18, 9")
    a("s_add_u32 s34, s34, s19")
    a("s_add_u32 s34, s34, 0x10000")
    a("s_lshl_b32 s19, s18, 2")
    a("s_add_u32 s37, s37, s19")
    for q in range(2):
        a("ds_write_b128 v%d, v[%d:%d] offset:%d" % (G_T + 2, G_KVACC + 4 * q, G_KVACC + 4 * q + 3, q * 1024))
    a("L_qkv_kvred" + sfx + ":")
    stamp(a, cfg, 2)
    for q in range(2, 4):
        a("ds_write_b128 v%d, v[%d:%d] offset:%d" % (G_T + 2, G_KVACC + 4 * q, G_KVACC + 4 * q + 3, q * 1024))
    a("s_waitcnt lgkmcnt(0)")
    a("s_barrier")
    stamp(a, cfg, 3)
    a("s_and_b32 s17, s%d, 1" % S_W)
    a("s_cmp_lg_u32 s17, s36")
    a("s_cbranch_scc1 " + done)
    a("s_and_b32 s17, s%d, 1" % S_HQ)
    a("s_lshl_b32 s17, s17, 1")
    a("s_add_u32 s17, s17, 1")
    a("s_cmp_gt_u32 s%d, s17" % S_W)
    a("s_cbranch_scc1 " + done)
    RD = G_RED + 16
    for j in range(4):
        for q in range(2):
            a("ds_read_b128 v[%d:%d], v%d offset:%d" % (RD + 8 * j + 4 * q, RD + 8 * j + 4 * q + 3, G_T + 3, j * 4096 + q * 1024))
    a("s_waitcnt lgkmcnt(4)")
    for e in range(8):
        a("v_add_f32 v%d, v%d, v%d" % (RD + e, RD + e, RD + 8 + e))
    a("s_waitcnt lgkmcnt(0)")
    for e in range(8):
        a("v_add_f32 v%d, v%d, v%d" % (RD + 16 + e, RD + 16 + e, RD + 24 + e))
    for e in range(8):
        a("v_add_f32 v%d, v%d, v%d" % (RD + e, RD + e, RD + 16 + e))
    PK = RD + 8
    a("s_bitcmp1_b32 s%d, 0" % S_HQ)
    a("s_cbranch_scc1 L_qkv_vfin" + sfx)
    for e in range(8):
        a("v_fmac_f32 v%d, v%d, v%d" % (RD + e, V_NMU, CK + e))
        a("v_mul_f32 v%d, v%d, v%d" % (RD + e, V_RSTD, RD + e))
    pack8(a, PK, RD)
    a("buffer_store_dwordx4 v[%d:%d], v%d, s[4:7], s34 offen %s" % (PK, PK + 3, V_L16, SC))
    a("v_mov_b32 v%d, 0" % (PK + 4))
    for r in range(4):
        a("v_dot2_f32_bf16 v%d, v%d, v%d, v%d" % (PK + 4, PK + r, PK + r, PK + 4))
    xhalf_sum(a, PK + 4, PK + 5)
    for d in ("row_shr:1", "row_shr:2", "row_shr:4", "row_shr:8"):
        a("v_max_f32_dpp v%d, v%d, v%d %s row_mask:0xf bank_mask:0xf" % (PK + 4, PK + 4, PK + 4, d))
    a("v_max_f32_dpp v%d, v%d, v%d row_bcast:15 row_mask:0xa bank_mask:0xf" % (PK + 4, PK + 4, PK + 4))
    a("v_readlane_b32 s18, v%d, 31" % (PK + 4))
    a("v_mov_b32 v%d, v%d" % (PK + 6, V_TAG))
    a("v_mov_b32 v%d, s18" % (PK + 7))
    a("s_waitcnt vmcnt(0)")
    a("s_mov_b64 exec, 0xff")
    a("buffer_store_dwordx2 v[%d:%d], v%d, s[4:7], s37 offen %s" % (PK + 6, PK + 7, G_T + 4, SC))
    a("s_mov_b64 exec, -1")
    a("s_branch " + done)
    a("L_qkv_vfin" + sfx + ":")
    for e in range(8):
        a("v_mul_f32 v%d, v%d, v%d" % (RD + e, RS + e, RD + e))
        a("v_fmac_f32 v%d, v%d, v%d" % (RD + e, RS + 8 + e, CK))
    pack8(a, PK, RD)
    a("s_mov_b32 exec_lo, 0xffff\ns_mov_b32 exec_hi, 0xffff")
    a("buffer_store_dwordx4 v[%d:%d], v%d, s[4:7], s34 offen %s" % (PK, PK + 3, G_T + 5, SC))
    stamp(a, cfg, 5)
    a("s_waitcnt vmcnt(0)")
    a("s_mov_b64 exec, 0xff")
    a("buffer_store_dword v%d, v%d, s[4:7], s37 offen offset:8 %s" % (V_TAG, G_T + 4, SC))
    a("s_mov_b64 exec, -1")


def kv_layer0(a, cfg, bulk):
    kvx = 96 * 1024
    LDS_CSX = kvx + 20480
    a("s_cmp_ge_u32 s%d, 4" % S_HQ)
    a("s_cbranch_scc1 L_kv0_none")
    qkv_setup(a, kvx)
    a("s_waitcnt lgkmcnt(0)")
    for r in range(4):
        a("v_mov_b32 v%d, 0x3f803f80" % (G_CS + r))
    a("s_lshl_b32 s17, s%d, 11" % S_W)
    a("s_add_u32 s17, s17, %d" % LDS_CSX)
    a("v_add_u32 v%d, s17, v%d" % (G_CS + 4, V_L16))
    a("v_add_u32 v%d, %d, v%d" % (G_CS + 5, LDS_CSX, V_L16))
    a("s_bitcmp1_b32 s%d, 0" % S_HQ)
    a("s_cbranch_scc1 L_qkv_c1")
    for i in range(8):
        mf(a, G_ACC, ar(128 + 4 * i, 4), vr(G_CS, 4), "0" if i == 0 else vr(G_ACC, 16))
    a("s_branch L_qkv_c2")
    a("L_qkv_c1:")
    for i in range(8):
        mf(a, G_ACC, vr(G_CS, 4), ar(128 + 4 * i, 4), "0" if i == 0 else vr(G_ACC, 16))
    a("L_qkv_c2:")
    a("ds_write_b128 v%d, v[%d:%d]" % (G_CS + 4, G_ACC + 8, G_ACC + 11))
    a("ds_write_b128 v%d, v[%d:%d] offset:1024" % (G_CS + 4, G_ACC + 12, G_ACC + 15))
    a("s_waitcnt lgkmcnt(0)")
    a("s_barrier")
    for w in range(4):
        for q in range(2):
            a("ds_read_b128 v[%d:%d], v%d offset:%d" % (G_RED + 8 * w + 4 * q, G_RED + 8 * w + 4 * q + 3, G_CS + 5, 2048 * w + 1024 * q))
    a("s_waitcnt lgkmcnt(0)")
    for e in range(8):
        a("v_add_f32 v%d, v%d, v%d" % (G_RED + e, G_RED + e, G_RED + 8 + e))
        a("v_add_f32 v%d, v%d, v%d" % (G_RED + 16 + e, G_RED + 16 + e, G_RED + 24 + e))
        a("v_add_f32 v%d, v%d, v%d" % (CK + e, G_RED + e, G_RED + 16 + e))
    a("buffer_store_dwordx4 v[%d:%d], v%d, s[4:7], s39 offen sc1" % (CK, CK + 3, V_L16))
    a("buffer_store_dwordx4 v[%d:%d], v%d, s[4:7], s39 offen offset:1024 sc1" % (CK + 4, CK + 7, V_L16))
    xin_flag_addr(a, 38, False, 0)
    poll(a, cfg, 38, G_T + 6, G_T + 4)
    kv_job(a, dict(cfg, stamps=0), "_0", kvx, "L_kv0_done", lambda: bulk("a"))
    a("s_branch L_kv0_done")
    a("L_kv0_none:")
    bulk("b")
    a("L_kv0_done:")


def phase_qkv(a, cfg):
    qkv_setup(a, LDS_KVX)
    VP, VPA = 198, 22
    SU.probe_addr(a, sys.modules[__name__], VPA, VP, 59)
    def wcheck(tag):
        a("v_cmp_ne_u32 vcc, v%d, v%d" % (V_TAG, VP))
        a("s_cbranch_vccz L_qkv_wok%s" % tag)
        keep = a.vm_issued
        poll(a, cfg, 59, VPA, VP, sleep=1)
        a.vm_issued = keep
        a("L_qkv_wok%s:" % tag)

    a("buffer_load_dwordx4 v[%d:%d], v%d, s[4:7], s39 offen sc1" % (CK, CK + 3, V_L16))
    a("buffer_load_dwordx4 v[%d:%d], v%d, s[4:7], s39 offen offset:1024 sc1" % (CK + 4, CK + 7, V_L16))
    stamp(a, cfg, 8)
    xin_flag_addr(a, 38, False, 0)
    poll(a, cfg, 38, G_T + 6, G_T + 4)
    stamp(a, cfg, 9)
    tB = {}
    def b1_loads():
        for e in range(8):
            blk(a, ar(64 + 4 * e, 4), SB1, e, SC)
            tB[e] = a.vt()

    def cs_q():
        a("s_lshl_b32 s17, s%d, 10" % S_NT)
        a("s_add_u32 s17, s17, 0x%x" % OFF_CSQX)
        a("buffer_load_dwordx4 v[%d:%d], v%d, s[4:7], s17 offen sc1" % (G_CS, G_CS + 3, V_L16))

    a("s_cmp_ge_u32 s%d, 4" % S_HQ)
    a("s_cbranch_scc1 L_qkv_stats")
    a("s_cmp_eq_u32 s%d, 0" % S_LAYER)
    a("s_cbranch_scc1 L_qkv_stats")
    kv_job(a, cfg, "", LDS_KVX, "L_qkv_q", b1_loads)
    a("s_branch L_qkv_q")
    a("L_qkv_stats:")
    load_stats(a, G_ST, 30, G_T, LLD[0])
    t_st = a.vt()
    b1_loads()
    a.wait_vm(t_st)
    finish_stats(a, G_ST, V_NMU, V_RSTD)
    a("L_qkv_q:")
    stamp(a, cfg, 10)
    bextra(a, V_NMU, G_CS + 4)
    tq = {}

    def h_probe():
        a("buffer_load_dword v%d, v%d, s[4:7], s59 offen sc1" % (VP, VPA))
        tq[0] = a.vt()

    def h_cs():
        a.wait_vm(tq[0])
        wcheck("q")
        cs_q()
        tq[1] = a.vt()
    gemm64_core(a, dict(cfg, stamps=cfg.get('stamps') and 2), 8, lambda i: ar(160 + 4 * i, 4), lambda i: ar(192 + 4 * i, 4), lambda e: ar(64 + 4 * e, 4),
                lambda e: blk(a, ar(64 + 4 * e, 4), SB1 if e < 8 else SB0, e % 8, SC), 16, pre_tickets=tB, ramp=12,
                side=[g[0] for g in SU.deferred_store_groups(sys.modules[__name__])], side_from=99, side_n=1, extra0=(vr(G_CS, 4), vr(G_CS + 4, 4), lambda: a.wait_vm(tq[1])),
                hooks={3: h_probe, 10: h_cs})
    a("v_mul_f32 v%d, %s, v%d" % (G_T, fl(QSCALE), V_RSTD))
    for e in range(16):
        a("v_mul_f32 v%d, v%d, v%d" % (G_ACC + e, G_T, G_ACC + e))
    pack8(a, G_Q, G_ACC)
    pack8(a, G_Q + 4, G_ACC + 8)
    if cfg.get("store_q"):
        a("s_lshl_b32 s17, s%d, 15" % S_RT)
        a("s_lshl_b32 s18, s%d, 11" % S_NT)
        a("s_add_u32 s17, s17, s18")
        a("s_add_u32 s17, s17, 0x%x" % OFF_Q)
        a("buffer_store_dwordx4 v[%d:%d], v%d, s[4:7], s17 offen" % (G_Q, G_Q + 3, V_L16))
        a("buffer_store_dwordx4 v[%d:%d], v%d, s[4:7], s17 offen offset:1024" % (G_Q + 4, G_Q + 7, V_L16))
    stamp(a, cfg, 11)


A_C = [24, 40]
A_O = [56, 72]
A_S = [88, 104]
A_P = [120, 124, 128, 132]
A_KF = [136, 140]
A_VF = [[144, 148], [152, 156]]
A_VK, A_VV, A_VINC = 160, 161, 162
A_T = 164
LDS_V = 65536
LDS_ONES = 131072
LDS_ATT_FLAG = LDS_ONES + 5120
UNR = 4


EARLY = 4
W2ORD = [7 * mm + tl for tl in range(7) for mm in range(4)]
W2POS = {k: p for p, k in enumerate(W2ORD)}


def w2load(a, idx, s0, s1):
    i = W2ORD[idx >> 1]
    blk(a, w2reg(idx & 1, i), s1 if idx & 1 else s0, i)


def w2reg(s, i):
    idx = 2 * W2POS[i] + s
    if idx < 32:
        return ar(128 + 4 * idx, 4)
    if idx < 46:
        return vr(W2V + 4 * (idx - 32), 4)
    if idx < 54:
        return vr(136 + 4 * (idx - 46), 4)
    return vr(190 + 4 * (idx - 54), 4)


SLOT13 = [0, 2, 1, 3, 0, 2, 1]


def dma13(a, i, part=None):
    slot = SLOT13[i]
    for hh in range(2):
        a("s_add_u32 m0, s%d, %d" % (S_WL, slot * 32768 + hh * 4096))
        a("s_add_u32 s29, s%d, %d" % (S_W13, i * 32768 + hh * 4096))
        for q in range(4):
            a("buffer_load_dwordx4 v%d, s[4:7], s29 offen offset:%d sc1 lds" % (V_L16, q * 1024))


def dma_lines(i):
    b = Asm()
    dma13(b, i)
    return [l.strip() for l in b.lines]


def phase_att(a, cfg):
    Q = [G_Q, G_Q + 4]
    SA0, SA1, SW0, SW1 = 24, 25, 26, 27
    a("v_mov_b32 v%d, 0x3f803f80" % (A_T + 4))
    if cfg.get("zpad", 1):
        a("v_and_b32 v%d, 2, v0" % (A_T + 5))
        a("v_cmp_eq_u32 vcc, 0, v%d" % (A_T + 5))
        a("v_cndmask_b32 v%d, v%d, v%d, vcc" % (A_T + 4, V_ZERO, A_T + 4))
    for r in range(1, 4):
        a("v_mov_b32 v%d, v%d" % (A_T + 4 + r, A_T + 4))
    a("v_lshlrev_b32 v%d, 4, v0" % (A_T + 2))
    a("v_add_u32 v%d, %d, v%d" % (A_T + 2, LDS_ONES, A_T + 2))
    a("ds_write_b128 v%d, v[%d:%d]" % (A_T + 2, A_T + 4, A_T + 7))
    a("ds_write_b128 v%d, v[%d:%d] offset:1024" % (A_T + 2, A_T + 4, A_T + 7))
    a("v_and_b32 v%d, 15, v%d" % (A_T + 2, V_LANE))
    a("v_lshlrev_b32 v%d, 4, v%d" % (A_T + 2, A_T + 2))
    a("v_lshl_add_u32 v%d, v%d, 8, v%d" % (A_T + 2, V_H, A_T + 2))
    a("v_add_u32 v%d, %d, v%d" % (A_VV, LDS_V, A_T + 2))
    a("v_add_u32 v%d, -20, v%d" % (A_T + 3, V_R31))
    a("v_cmp_gt_u32 vcc, 8, v%d" % (A_T + 3))
    a("v_mov_b32 v%d, %d" % (A_T + 2, LDS_ONES))
    a("v_mov_b32 v%d, %d" % (A_T + 3, LDS_ONES + 64))
    a("v_cndmask_b32 v%d, v%d, v%d, vcc" % (A_T + 2, A_T + 2, A_T + 3))
    if cfg.get("zpad", 1):
        a("v_and_b32 v%d, 27, v%d" % (A_T + 3, V_R31))
        a("v_cmp_ne_u32 vcc, 16, v%d" % (A_T + 3))
        a("v_add_u32 v%d, 32, v%d" % (A_T + 3, A_T + 2))
        a("v_cndmask_b32 v%d, v%d, v%d, vcc" % (A_T + 2, A_T + 2, A_T + 3))
    a("v_cmp_le_u32 vcc, 16, v%d" % V_R31)
    a("v_mov_b32 v%d, %d" % (A_VINC, UNR * 1024))
    a("v_cndmask_b32 v%d, v%d, v%d, vcc" % (A_VV, A_VV, A_T + 2))
    a("v_cndmask_b32 v%d, v%d, v%d, vcc" % (A_VINC, A_VINC, V_ZERO))
    for t in range(2):
        n = A_T + 8 + t
        a("v_mov_b32 v%d, 0" % n)
        for r in range(4):
            a("v_dot2_f32_bf16 v%d, v%d, v%d, v%d" % (n, Q[t] + r, Q[t] + r, n))
    for t in range(2):
        xhalf_sum(a, A_T + 8 + t, A_T + 10)
    a_addr(a, SA0, SA1, OFF_WO, 32, 8)
    a("s_mul_i32 s%d, s%d, %d" % (S_W13, S_M, 7 * 32768))
    a("s_lshl_b32 s%d, s%d, 13" % (S_WL, S_W))
    a("s_add_u32 s%d, s%d, s%d" % (S_W13, S_W13, S_WL))
    a("s_add_u32 s%d, s%d, 0x%x" % (S_W13, S_W13, OFF_W13))
    a_addr(a, SW0, SW1, OFF_W2, 112, 28)
    a("s_lshl_b32 s20, s%d, 12" % S_W)
    a("s_add_u32 s21, s33, s20")
    a("s_add_u32 s22, s21, 0x10000")
    a("s_add_u32 s23, s20, %d" % LDS_V)
    a("s_mul_i32 s38, s%d, 0x2000" % S_LAYER)
    a("s_add_u32 s38, s38, 0x%x" % (OFF_FLAGS + FL_KV))
    a("s_and_b32 s17, s2, 7")
    a("s_lshl_b32 s17, s17, 10")
    a("s_add_u32 s38, s38, s17")
    a("s_lshl_b32 s58, s2, 2")
    a("s_add_u32 s58, s58, 0x%x" % OFF_FLW)
    a("s_or_b32 s17, s%d, s%d" % (S_W, S_LAYER))
    a("s_cmp_lg_u32 s17, 0")
    a("s_cselect_b32 s58, 0xf0000000, s58")
    a("s_and_b32 s59, s2, 7")
    a("s_lshl_b32 s59, s59, 10")
    a("s_add_u32 s59, s59, 0x%x" % OFF_FLW)
    a("v_lshlrev_b32 v%d, 10, v%d" % (A_T + 16, V_LANE))
    a("s_getreg_b32 s17, hwreg(HW_REG_XCC_ID)")
    a("s_and_b32 s17, s17, 7")
    a("s_lshl_b32 s17, s17, 1")
    a("v_or_b32 v%d, s17, v%d" % (A_T + 17, V_TAG))
    a("v_and_b32 v%d, 15, v%d" % (A_T + 18, V_LANE))
    a("v_lshlrev_b32 v%d, 5, v%d" % (A_T + 18, A_T + 18))
    a("s_and_b32 s17, s2, 0x87")
    a("s_lshl_b32 s17, s17, 2")
    a("v_add_u32 v%d, s17, v%d" % (A_T + 18, A_T + 18))

    stamp(a, cfg, 1)
    a("s_cmp_lg_u32 s%d, 0" % S_W)
    a("s_cbranch_scc1 L_att_nopoll")
    poll(a, cfg, 38, V_L16, A_T + 12, wide=True, sleep=cfg.get("kv_sleep", 2))
    k2 = A_T + 13
    for d in ("row_shr:1", "row_shr:2", "row_shr:4", "row_shr:8"):
        a("v_max_f32_dpp v%d, v%d, v%d %s row_mask:0xf bank_mask:0xf" % (k2, k2, k2, d))
    a("v_max_f32_dpp v%d, v%d, v%d row_bcast:15 row_mask:0xa bank_mask:0xf" % (k2, k2, k2))
    a("v_max_f32_dpp v%d, v%d, v%d row_bcast:31 row_mask:0xc bank_mask:0xf" % (k2, k2, k2))
    a("v_mov_b32 v%d, %d" % (A_T + 12, LDS_ATT_FLAG + 16 - 63 * 4))
    a("v_add_u32 v%d, v%d, v%d" % (A_T + 12, V_L4, A_T + 12))
    a("s_mov_b32 exec_lo, 0")
    a("s_mov_b32 exec_hi, 0x80000000")
    a("ds_write_b32 v%d, v%d" % (A_T + 12, k2))
    a("s_mov_b64 exec, -1")
    a("s_waitcnt lgkmcnt(0)")
    a("L_att_nopoll:")
    a("s_waitcnt vmcnt(0)")
    a("s_barrier")
    a("s_mov_b64 exec, 0xff")
    a("buffer_store_dword v%d, v%d, s[4:7], s58 offen %s" % (A_T + 17, A_T + 16, SC))
    a("s_mov_b64 exec, -1")
    a("s_mov_b32 s%d, 0xf0000000" % SU.S_DST)
    stamp(a, cfg, 2)
    a("v_mov_b32 v%d, %d" % (A_T + 12, LDS_ATT_FLAG + 16))
    a("ds_read_b32 v%d, v%d" % (A_T + 1, A_T + 12))
    def kvl(g):
        out = []
        for sl, sg in ((20, 21), (23, 22)):
            out += ["s_add_u32 m0, s%d, %d" % (sl, g * 16384), "s_add_u32 s17, s%d, %d" % (sg, g * 16384)]
            out += ["buffer_load_dwordx4 v%d, s[4:7], s17 offen offset:%d %s lds" % (V_L16, q * 1024, SC) for q in range(4)]
        return out

    def kvdma(g):
        for x in kvl(g):
            a(x)

    G1 = 1
    for g in range(G1):
        kvdma(g)
        if g == 0:
            t_g3 = a.vt()
            a("s_waitcnt lgkmcnt(0)")
            for t in range(2):
                n = A_T + 8 + t
                a("v_mul_f32 v%d, v%d, v%d" % (n, A_T + 1, n))
                a("v_sqrt_f32 v%d, v%d" % (n, n))
            for t in range(2):
                n = A_T + 8 + t
                a("v_mul_f32 v%d, %s, v%d" % (n, fl(-1.001), n))
            a("v_min_f32 v%d, v%d, v%d" % (A_T + 10, A_T + 8, A_T + 9))
            a("v_mov_b32 v%d, %s" % (A_T + 11, fl(-cfg.get("bound_t", BOUND_T))))
            a("v_cmp_nge_f32 vcc, v%d, v%d" % (A_T + 10, A_T + 11))
            a("s_lshl_b32 s19, s%d, 2" % S_W)
            a("s_add_u32 s19, s19, %d" % LDS_ATT_FLAG)
            a("v_mov_b32 v%d, s19" % (A_T + 12))
            a("s_cmp_lg_u64 vcc, 0")
            a("s_cselect_b32 s18, 1, 0")
            a("v_mov_b32 v%d, s18" % (A_T + 11))
            a("ds_write_b32 v%d, v%d" % (A_T + 12, A_T + 11))
            for t in range(2):
                for r in range(16):
                    a("v_mov_b32 v%d, v%d" % (A_C[t] + r, A_T + 8 + t))
    stamp(a, cfg, 3)
    a.wait_vm(t_g3)
    a("s_waitcnt lgkmcnt(0)")
    a("s_barrier")
    stamp(a, cfg, 4)
    a("v_mov_b32 v%d, %d" % (A_T + 12, LDS_ATT_FLAG))
    a("ds_read_b128 v[%d:%d], v%d" % (A_T + 4, A_T + 7, A_T + 12))
    a("ds_read_b128 v[%d:%d], v%d" % (A_KF[0], A_KF[0] + 3, V_L16))
    a("ds_read_b128 v[%d:%d], v%d" % (A_VF[0][0], A_VF[0][0] + 3, A_VV))
    a("ds_read_b128 v[%d:%d], v%d offset:512" % (A_VF[0][1], A_VF[0][1] + 3, A_VV))
    a("ds_read_b128 v[%d:%d], v%d offset:1024" % (A_KF[1], A_KF[1] + 3, V_L16))
    a("s_waitcnt lgkmcnt(4)")
    a("v_or_b32 v%d, v%d, v%d" % (A_T + 4, A_T + 4, A_T + 5))
    a("v_or3_b32 v%d, v%d, v%d, v%d" % (A_T + 4, A_T + 4, A_T + 6, A_T + 7))
    a("v_readfirstlane_b32 s18, v%d" % (A_T + 4))
    a("s_cmp_eq_u32 s18, 0")
    a("s_cbranch_scc1 L_att_fast")
    keep = a.dma_issued, a.vm_issued
    for g in range(G1, 4):
        kvdma(g)
    a.dma_issued, a.vm_issued = keep
    a("s_waitcnt vmcnt(0)")
    a("s_barrier")
    a("v_mov_b32 v%d, 0xff800000" % (A_T + 8))
    a("v_mov_b32 v%d, 0xff800000" % (A_T + 9))
    a("v_mov_b32 v%d, v%d" % (A_T + 12, V_L16))
    a("s_mov_b32 s19, 64")
    a("L_att_pre:")
    a("ds_read_b128 v[%d:%d], v%d" % (A_P[0], A_P[0] + 3, A_T + 12))
    a("v_add_u32 v%d, 1024, v%d" % (A_T + 12, A_T + 12))
    a("s_waitcnt lgkmcnt(0)")
    for t in range(2):
        mf(a, A_S[t], vr(A_P[0], 4), vr(Q[t], 4), "0")
    for t in range(2):
        for r in range(0, 16, 2):
            a("v_max3_f32 v%d, v%d, v%d, v%d" % (A_T + 8 + t, A_S[t] + r, A_S[t] + r + 1, A_T + 8 + t))
    a("s_sub_u32 s19, s19, 1")
    a("s_cmp_lg_u32 s19, 0")
    a("s_cbranch_scc1 L_att_pre")
    for t in range(2):
        n = A_T + 8 + t
        a("v_mov_b32 v%d, v%d" % (A_T + 10, n))
        a("v_permlane32_swap_b32 v%d, v%d" % (n, A_T + 10))
        a("v_max_f32 v%d, v%d, v%d" % (n, n, A_T + 10))
        a("v_sub_f32 v%d, 0, v%d" % (n, n))
        for r in range(16):
            a("v_mov_b32 v%d, v%d" % (A_C[t] + r, n))
    a("L_att_fast:")
    a("s_waitcnt lgkmcnt(0)")

    def m4(d, x, y, c):
        mf(a, d, vr(x, 4), vr(y, 4), vr(c, 16))

    def ex(r):
        a("v_exp_f32 v%d, v%d" % (r, r))

    def cv(d, s):
        a("v_cvt_pk_bf16_f32 v%d, v%d, v%d" % (d, s, s + 1))

    m4(A_S[0], A_KF[0], Q[0], A_C[0])
    a("s_nop 7")

    def lines_of(fn):
        b = Asm()
        fn(b)
        return [l.strip() for l in b.lines]

    def groups(lines):
        out, cur = [], []
        for x in lines:
            cur.append(x)
            if x.startswith("buffer_"):
                out.append(cur)
                cur = []
        assert not cur
        return out

    q_kv = []
    for g in range(G1, 4):
        q_kv += [(x, g) for x in groups(kvl(g))]
    q_w = []
    for i in range(8):
        q_w += groups(lines_of(lambda b: blk(b, ar(4 * i, 4), SA0, i)))
        q_w += groups(lines_of(lambda b: blk(b, ar(32 + 4 * i, 4), SA1, i)))
    for idx in range(46):
        q_w += groups(lines_of(lambda b: w2load(b, idx, SW0, SW1)))
    q_t = [["s_add_u32 s17, s49, %d" % (q * 4096), "buffer_load_dword v%d, v%d, s[4:7], s17 offen sc1" % (A_T + 3, A_T + 2)] for q in range(5)]
    if not cfg.get("touch13", 1):
        q_t = []
    q_d = groups(dma_lines(0) + dma_lines(1))
    a("s_mul_i32 s49, s%d, %d" % (S_M, 7 * 32768))
    a("s_and_b32 s18, s%d, 1" % S_RG)
    a("s_mul_i32 s18, s18, %d" % 81920)
    a("s_add_u32 s49, s49, s18")
    a("s_mul_i32 s18, s%d, %d" % (S_W, 20480))
    a("s_add_u32 s49, s49, s18")
    a("s_add_u32 s49, s49, 0x%x" % (OFF_W13 + 65536))
    a("v_lshlrev_b32 v%d, 6, v%d" % (A_T + 2, V_LANE))
    tg = {}
    U_PROBE, U_CHK = cfg.get("u_probe", 21), cfg.get("u_chk", 24)
    PB = A_T + 12
    def slot(u):
        grp, g = None, None
        if q_kv:
            grp, g = q_kv.pop(0)
            if u < 4:
                grp = grp + q_kv.pop(0)[0]
        elif u == U_PROBE:
            a("buffer_load_dwordx4 v[%d:%d], v%d, s[4:7], s59 offen %s" % (PB, PB + 3, V_L16, SC))
            tg["probe"] = a.vt()
        elif u == U_CHK:
            assert not q_kv
            a("s_waitcnt vmcnt(0)")
            a("L_att_wchk:")
            for r in range(4):
                a("v_and_b32 v%d, -15, v%d" % (PB + r, PB + r))
            a("v_cmp_ne_u32 vcc, v%d, v%d" % (V_TAG, PB))
            for r in range(1, 4):
                a("v_cmp_ne_u32 s[18:19], v%d, v%d" % (V_TAG, PB + r))
                a("s_or_b64 vcc, vcc, s[18:19]")
            a("s_cmp_eq_u64 vcc, 0")
            a("s_cbranch_scc1 L_att_wok")
            if cfg.get("spin_limit"):
                a("s_sub_u32 s101, s101, 1")
                a("s_cbranch_scc1 L_att_wok")
            keep = a.vm_issued
            a("s_sleep 4")
            a("buffer_load_dwordx4 v[%d:%d], v%d, s[4:7], s59 offen %s" % (PB, PB + 3, V_L16, SC))
            a("s_waitcnt vmcnt(0)")
            a("s_branch L_att_wchk")
            a.vm_issued = keep
            a("L_att_wok:")
            a("buffer_load_dword v%d, v%d, s[4:7], s59 offen %s" % (PB, A_T + 18, SC))
            tg["grp"] = a.vt()
        elif u == U_CHK + 8:
            a.wait_vm(tg["grp"])
            a("v_cmp_ne_u32 vcc, v%d, v%d" % (A_T + 17, PB))
            a("s_cmp_eq_u64 vcc, 0")
            a("s_cselect_b32 s%d, %d, 0" % (S_LOC, 0 if cfg.get("force_remote") else 1))
            if cfg.get("loc_l0"):
                a("s_andn2_b32 s%d, s%d, s%d" % (S_LOC, S_LOC, S_LAYER))
        elif u < U_CHK:
            pass
        elif q_t and u >= cfg.get("t_from", 100) and (u - cfg.get("t_from", 100)) % cfg.get("t_every", 4) == 1:
            grp = q_t.pop(0)
        elif u >= 68 and q_d:
            grp = q_d.pop(0)
        elif q_w:
            grp = q_w.pop(0)
        if grp:
            for x in grp:
                a(x)
            if g is not None:
                tg[g] = a.vt()

    NU = 128
    BAR = {16: None, 36: None}
    for u in range(NU):
        j, t = u >> 1, u & 1
        nj, nt = (u + 1) >> 1, (u + 1) & 1
        pj, pt = (u - 1) >> 1, (u - 1) & 1
        jj = j % UNR
        sb, nsb = A_S[u % 2], A_S[(u + 1) % 2]
        plo, phi = A_P[(u % 2) * 2], A_P[(u % 2) * 2 + 1]
        pphi = A_P[((u - 1) % 2) * 2 + 1]
        if u + 1 < NU:
            m4(nsb, A_KF[nj % 2], Q[nt], A_C[nt])
        if t == 0 and j + 2 < 64:
            a("ds_read_b128 v[%d:%d], v%d offset:%d" % (A_KF[j % 2], A_KF[j % 2] + 3, V_L16, (j + 2) * 1024))
        if t == 1 and u > U_CHK and cfg.get('slot3', 0):
            slot(u)
        for r in range(0, 4):
            ex(sb + r)
        if u > 0:
            m4(A_O[pt], A_VF[pj % 2][1], pphi, A_O[pt])
        if t == 0 and j + 1 < 64:
            off = (jj + 1) * 1024
            a("ds_read_b128 v[%d:%d], v%d offset:%d" % (A_VF[(j + 1) % 2][0], A_VF[(j + 1) % 2][0] + 3, A_VV, off))
            a("ds_read_b128 v[%d:%d], v%d offset:%d" % (A_VF[(j + 1) % 2][1], A_VF[(j + 1) % 2][1] + 3, A_VV, off + 512))
        if t == 1:
            slot(u)
        for r in range(4, 9):
            ex(sb + r)
        for r in range(0, 4):
            cv(plo + r, sb + 2 * r)
        for r in range(9, 12):
            ex(sb + r)
        m4(A_O[t], A_VF[j % 2][0], plo, A_O[t]) if u > 1 else mf(a, A_O[t], vr(A_VF[j % 2][0], 4), vr(plo, 4), "0")
        if t == 1:
            a("s_waitcnt lgkmcnt(0)")
            if (j + 3) in BAR:
                g = BAR[j + 3]
                if g is not None:
                    a.wait_vm(tg[g])
                a("s_barrier")
                if j + 3 == 16:
                    stamp(a, cfg, 6)
        else:
            slot(u)
        for r in range(12, 16):
            ex(sb + r)
        if t == 1 and jj == UNR - 1:
            a("v_add_u32 v%d, v%d, v%d" % (A_VV, A_VINC, A_VV))
        for r in range(4, 8):
            cv(phi + r - 4, sb + 2 * r)
    assert not (q_kv or q_w or q_t or q_d), (len(q_kv), len(q_w), len(q_t), len(q_d))
    units = [(63, 1)]
    U = 128
    a("L_att_done:")
    DUAL[0] = bool(cfg.get("dual", 1))
    stamp(a, cfg, 7)
    lj, lt = units[-1]
    m4(A_O[lt], A_VF[lj % 2][1], A_P[((U - 1) % 2) * 2 + 1], A_O[lt])
    layer_off(a, 34, OFF_O, X_STRIDE)
    a("s_lshl_b32 s18, s%d, 15" % S_RT)
    a("s_add_u32 s34, s34, s18")
    a("s_lshl_b32 s18, s%d, 11" % S_NT)
    a("s_add_u32 s34, s34, s18")
    for t in range(2):
        a("v_rcp_f32 v%d, v%d" % (A_T, A_O[t] + 8))
        for r in range(8):
            a("v_mul_f32 v%d, v%d, v%d" % (A_O[t] + r, A_T, A_O[t] + r))
        pack8(a, A_P[t], A_O[t])
        st4(a, A_P[t], V_L16, 34, t * 1024)
    flag_addr(a, S_FO, FL_O, S_RB, 7, S_HQ)
    publish(a, S_FO, [(34, 2048, 0)])
    stamp(a, cfg, 8)


def phase_wo(a, cfg):
    SB0, SB1, SX = 26, 27, 28
    if not cfg.get("wo_latebar", 0):
        a("s_barrier")
    if not cfg.get("pf_att", 1):
        for i in range(8):
            blk(a, ar(4 * i, 4), 24, i)
            blk(a, ar(32 + 4 * i, 4), 25, i)
    b = Asm()
    dma13(b, 2)
    b("s_mul_i32 s29, s%d, %d" % (S_M, 7 * 1024))
    b("s_lshl_b32 s17, s%d, 11" % S_W)
    b("s_add_u32 s29, s29, s17")
    b("s_add_u32 m0, s17, %d" % LDS_CS)
    b("s_add_u32 s29, s29, 0x%x" % OFF_CSX)
    b("buffer_load_dwordx4 v%d, s[4:7], s29 offen sc1 lds" % V_L16)
    b("buffer_load_dwordx4 v%d, s[4:7], s29 offen offset:1024 sc1 lds" % V_L16)
    wside = [l.strip() for l in b.lines]
    wside2 = []
    if cfg.get("mix", 1):
        wside2, wside = wside, []
    elif cfg.get("t2_pre", 1):
        for x in wside:
            a(x)
        wside = []
    layer_off(a, SX, OFF_O, X_STRIDE)
    b_addr(a, SB0, SB1, SX, 32, 8)
    reduce_addr(a, LDS_R1)
    out_addr(a, 1)
    flag_addr(a, 38, FL_O, S_RB, 7)
    a("s_lshl_b32 s17, s%d, 5" % S_W)
    a("s_add_u32 s38, s38, s17")
    a("v_and_b32 v%d, 28, v%d" % (G_T + 5, V_L4))
    flag_addr(a, S_FX1, FL_X1, S_RG, 8, S_M)
    stamp(a, cfg, 8)
    poll(a, cfg, 38, G_T + 5, G_T + 4)
    stamp(a, cfg, 9)
    gemm64_core(a, cfg, 8, lambda i: ar(4 * i, 4), lambda i: ar(32 + 4 * i, 4), lambda e: ar(64 + 4 * e, 4),
                lambda e: blk(a, ar(64 + 4 * e, 4), SB1 if e < 8 else SB0, e % 8, SC), 16, ramp=cfg.get("ramp1", 8), resid=True,
                side=wside2, side_from=cfg.get("wo_side", 5), side_n=1,
                hooks={3: lambda: a("s_barrier")} if cfg.get("wo_latebar", 0) else None)
    res_epilogue(a, cfg, 1, None)
    stamp(a, cfg, 10)
    publish(a, S_FX1, [(34, 2048, 0), (35, 512, 0)], between=wside)
    stamp(a, cfg, 11)


F_ACC = [24, 40, 56, 72]
NACC = 4
F_W = 88
F_CS = 120
F_H = 128
F_ST = 136
F_T = 168
F_LA = [184, 185]
F_NMU, F_C1, F_RS2, F_CSA, F_LG = 186, 187, 188, 189, 198
F_TA = 172


def phase_ffn1(a, cfg):
    SX, SH = 24, 27
    G3 = cfg.get("g0", 3) == 3
    if G3:
        a("s_mul_i32 s35, s%d, 6144" % S_W)
        a("s_sub_u32 s34, s%d, s%d" % (S_W13, S_WL))
        a("s_add_u32 s34, s34, s35")
        a("s_add_u32 s34, s34, %d" % (4 * 32768))
        head4 = ["s_add_u32 m0, s35, %d" % LDS_E, "s_nop 0"]
        head4 += ["buffer_load_dwordx4 v%d, s[4:7], s34 offen offset:%d sc1 lds" % (V_L16, q * 1024) for q in range(4)]
        head4 += ["s_add_u32 m0, s35, %d" % (LDS_E + 4096), "s_add_u32 s34, s34, 4096"]
        head4 += ["buffer_load_dwordx4 v%d, s[4:7], s34 offen offset:%d sc1 lds" % (V_L16, q * 1024) for q in range(2)]
        a("s_lshl_b32 s28, s%d, 11" % S_W)
        a("s_sub_u32 s33, s%d, s%d" % (S_W13, S_WL))
        a("s_add_u32 s33, s33, s28")
        a("s_add_u32 s33, s33, %d" % (4 * 32768 + 24 * 1024))
    a("s_lshl_b32 s30, s%d, 2" % S_RG)
    a("s_add_u32 s30, s30, s%d" % S_W)
    layer_off(a, SX, OFF_X, X_STRIDE, 2, 1)
    a("s_lshl_b32 s17, s30, 15")
    a("s_add_u32 s%d, s%d, s17" % (SX, SX))
    a("s_add_u32 s25, s%d, %d" % (SX, 28 * 1024))
    layer_off(a, 26, OFF_STAT, STAT_STRIDE, 2, 1)
    a("s_lshl_b32 s18, s30, 12")
    a("s_add_u32 s26, s26, s18")
    layer_off(a, SH, OFF_H, H_STRIDE)
    a("s_mul_i32 s17, s30, %d" % (112 * 1024))
    a("s_add_u32 s%d, s%d, s17" % (SH, SH))
    a("s_mul_i32 s17, s%d, %d" % (S_M, 7 * 1024))
    a("s_add_u32 s%d, s%d, s17" % (SH, SH))
    a("v_mov_b32 v%d, v%d" % (F_LA[0], V_L16))
    a("v_add_u32 v%d, 65536, v%d" % (F_LA[1], V_L16))
    a("v_add_u32 v%d, %d, v%d" % (F_CSA, LDS_E, V_L16))
    if cfg.get("tq", 0):
        a("v_lshlrev_b32 v%d, 6, v%d" % (F_TA, V_LANE))
        a("s_lshl_b32 s49, s%d, 16" % S_HQ)
        a("s_and_b32 s18, s%d, 3" % S_RB)
        a("s_lshl_b32 s18, s18, 14")
        a("s_add_u32 s49, s49, s18")
        a("s_lshl_b32 s18, s%d, 12" % S_W)
        a("s_add_u32 s49, s49, s18")
        a("s_add_u32 s49, s49, 0x%x" % OFF_WQ)
    a_addr(a, 53, 54, OFF_W2, 112, 28)
    flag_addr(a, 38, FL_X1, S_RG, 8)
    a("s_lshr_b32 s17, s%d, 1" % S_W)
    a("s_lshl_b32 s17, s17, 7")
    a("s_add_u32 s38, s38, s17")
    a("s_and_b32 s17, s%d, 1" % S_W)
    a("s_lshl_b32 s17, s17, 2")
    a("s_add_u32 s38, s38, s17")
    lane_pat(a, F_T + 2, 15, 0, 3)
    flag_addr(a, S_FH, FL_H, S_RG, 9, S_M, per_layer=0x2000)
    stamp(a, cfg, 1)
    a("s_barrier")
    if not cfg.get("mix", 1):
        dma13(a, 3)
    poll(a, cfg, 38, F_T + 2, F_T)
    stamp(a, cfg, 2)
    tX = {}

    def xload(i):
        if i < 28:
            blk(a, ar(4 * i, 4), SX, i, SC)
        else:
            blk(a, ar(4 * i, 4), 25, i - 28, SC)
        tX[i] = a.vt()

    XW = cfg.get("xwin", 10)
    for i in range(XW):
        xload(i)

    def wread(tile, ks, ring):
        slot = SLOT13[tile]
        if ks == 32:
            a("ds_read_b128 v[%d:%d], v%d offset:%d" % (F_W + 4 * ring, F_W + 4 * ring + 3, F_CSA, LDS_CS - LDS_E + tile * 1024))
            return
        if G3 and tile == 4:
            a("ds_read_b128 v[%d:%d], v%d offset:%d" % (F_W + 4 * ring, F_W + 4 * ring + 3, F_CSA if ks < 24 else F_LA[0], (ks % 24) * 1024))
            return
        a("ds_read_b128 v[%d:%d], v%d offset:%d" % (F_W + 4 * ring, F_W + 4 * ring + 3, F_LA[slot >> 1], (slot & 1) * 32768 + ks * 1024))

    def epi(tile):
        acc, cs = F_ACC[tile % NACC], F_CS
        hp = F_H + 4 * (tile % 2)
        out = []
        for e in range(8):
            out.append("v_fma_f32 v%d, v%d, v%d, v%d" % (F_T + 8 + e, F_C1, acc + e, F_LG))
        for e in range(8):
            out.append("v_exp_f32 v%d, v%d" % (F_T + 8 + e, F_T + 8 + e))
            out.append("v_mul_f32 v%d, v%d, v%d" % (acc + e, acc + e, acc + 8 + e))
            if e:
                out.append("v_add_f32 v%d, v%d, v%d" % (F_T + 7 + e, F_RS2, F_T + 7 + e))
        out.append("v_add_f32 v%d, v%d, v%d" % (F_T + 15, F_RS2, F_T + 15))
        for e in range(8):
            out.append("v_rcp_f32 v%d, v%d" % (F_T + 8 + e, F_T + 8 + e))
            if e:
                out.append("v_mul_f32 v%d, v%d, v%d" % (acc + e - 1, F_T + 7 + e, acc + e - 1))
        out.append("v_mul_f32 v%d, v%d, v%d" % (acc + 7, F_T + 15, acc + 7))
        for i in range(4):
            out.append("v_cvt_pk_bf16_f32 v%d, v%d, v%d" % (hp + i, acc + 2 * i, acc + 2 * i + 1))
        out.append("buffer_store_dwordx4 v[%d:%d], v%d, s[4:7], s%d offen offset:%d" % (hp, hp + 3, V_OFF[tile // 4], SH, (tile % 4) * 1024))
        if DBL[0]:
            out.append("buffer_store_dwordx4 v[%d:%d], v%d, s[4:7], s%d offen offset:%d" % (hp, hp + 3, V_OFF[tile // 4], SH, (tile % 4) * 1024))
        return out

    G0 = cfg.get("g0", 3)
    steps = []
    for ks in range(33):
        for tl in range(G0):
            steps.append((tl, ks))
    for tile in range(G0, 7):
        for ks in range(33):
            steps.append((tile, ks))
    N = len(steps)
    PF = cfg.get('pf', 6)
    lt = {}
    first_of, last_of = {}, {}
    for n, (tile, ks) in enumerate(steps):
        first_of.setdefault(tile, n)
        last_of[tile] = n
    dma_q = [(3, x) for x in dma_lines(3)] if cfg.get('mix', 1) else []
    if G3:
        dma_q += [(3, x) for x in head4]
    fence_t, fence_n, fenced = {}, {}, set()

    def do_read(n):
        tile, ks = steps[n]
        if G3:
            ft = {(3, 0): 3, (4, 24): 5, (6, 0): 6}.get((tile, ks))
            if ft and ft not in fenced:
                assert ft in fence_t and not any(q[0] <= ft for q in dma_q), ft
                a.wait_vm(fence_t[ft])
                a("s_barrier")
                fenced.add(ft)
        elif n == first_of[tile] and tile >= (3 if cfg.get('mix', 1) else 4) and tile not in fenced:
            assert tile in fence_t and not any(q[0] == tile for q in dma_q), tile
            a.wait_vm(fence_t[tile])
            a("s_barrier")
        wread(tile, ks, n % 8)
        lt[n] = a.lt()

    cs_t = 0
    for n in range(PF):
        do_read(n)
    pending = []
    nx = XW
    nst, st_t, st_n, early_done, rb_done = 0, {}, {}, False, False
    for n, (tile, ks) in enumerate(steps):
        if tile >= G0 and ks == 0:
            stamp(a, cfg, 1 + tile)
        if tile == 0 and ks < 32:
            a.wait_vm(tX[ks])
        if n % 2 == 0:
            a.wait_lg(lt[min(n + 1, N - 1)])
            lg_done = lt[min(n + 1, N - 1)]
        acc = F_ACC[tile % NACC]
        if ks == 0 and tile >= NACC:
            assert nst > tile - NACC, (tile, nst)
        mf(a, acc, vr(F_W + 4 * (n % 8), 4), ar(4 * ks, 4) if ks < 32 else vr(F_CS, 4), "0" if ks == 0 else vr(acc, 16))
        if (tile == 0 or (tile < G0 and cfg.get('xfast', 0))) and nx < 32:
            xload(nx)
            nx += 1
            if nx == 32:
                load_stats(a, F_ST, 26, F_T, LLD[0])
                t_st = a.vt()
        if n + PF < N:
            do_read(n + PF)
        if n == last_of[G0 - 1] + 2:
            a("s_barrier")
            if G3:
                dma_q += [(5, "s_mov_b32 m0, s28"), (5, "s_nop 0"),
                          (5, "buffer_load_dwordx4 v%d, s[4:7], s33 offen sc1 lds" % V_L16),
                          (5, "buffer_load_dwordx4 v%d, s[4:7], s33 offen offset:1024 sc1 lds" % V_L16)]
                for tl in (5, 6):
                    dma_q += [(tl, x) for x in dma_lines(tl)]
                b = Asm()
                for idx in range(46, 56):
                    w2load(b, idx, 53, 54)
                dma_q += [(99, l.strip()) for l in b.lines]
                if cfg.get("tq", 0):
                    dma_q += [(99, "buffer_load_dword v%d, v%d, s[4:7], s49 offen sc1" % (V_P2, F_TA))]
            else:
                for tl in range(4, 4 + G0):
                    dma_q += [(tl, x) for x in dma_lines(tl)]
        for old in range(G0, 3):
            if n == last_of[old] + 2:
                a("s_barrier")
                dma_q += [(old + 4, x) for x in dma_lines(old + 4)]
                if old == 2:
                    b = Asm()
                    for idx in range(46, 56):
                        w2load(b, idx, 53, 54)
                    dma_q += [(99, l.strip()) for l in b.lines]
        dcost = 0
        if dma_q and ((n >= cfg.get("d3_from", 20) and n % cfg.get("d3_every", 5) == 0) if tile < G0 else n % cfg.get("dma_every", 3) == 0):
            while dma_q:
                tl, x = dma_q.pop(0)
                a(x)
                dcost += cfg.get("dma_cost", 8)
                if x.startswith("buffer_load"):
                    fence_t[tl] = a.vt()
                    fence_n[tl] = n
                    break
        if n == last_of[G0 - 1] - G0 - 2:
            a.wait_vm(t_st)
            finish_stats(a, F_ST, F_NMU, F_RS2)
            a("v_mul_f32 v%d, %s, v%d" % (F_C1, fl(-LOG2E), F_RS2))
            a("v_mov_b32 v%d, v%d" % (F_RS2, F_ST + 1))
            a("v_log_f32 v%d, v%d" % (F_LG, F_ST + 1))
            bextra(a, F_NMU, F_CS)
        for tl in range(0, 6):
            if n == max(last_of[tl], last_of[G0 - 1]) + 3:
                pending += epi(tl)
        if nst >= EARLY and not rb_done and n >= st_n[EARLY - 1] + 1:
            if cfg.get("h_wt", 6) < EARLY:
                readback(a, [(SH, 1024 * EARLY, 0)])
                a("s_mov_b64 exec, -1")
                dcost += 24
            rb_done = n
        for tl in range(cfg.get("h_touch", 0)):
            if tl in st_n and n == st_n[tl] + cfg.get("touch_lag", 24):
                a("buffer_load_dword v%d, v%d, s[4:7], s%d offen offset:%d sc1" % (V_P2, F_TA + (tl // 4), SH, (tl % 4) * 1024))
                a.vm_issued -= 0
                dcost += 8
        cost = dcost
        lim = cfg.get("epi_cost", 16)
        while pending:
            x = pending[0]
            if x == "CSWAIT":
                pending.pop(0)
                if cs_t > lg_done:
                    a.wait_lg(cs_t)
                    cost += 4
                continue
            cx = 8 if x.split()[0] in TRANS else (8 if x.startswith("buffer_") else 4)
            if cost + cx > lim:
                break
            pending.pop(0)
            if x.startswith("buffer_store"):
                ok = [t for t in (3, 4, 5, 6) if t in fence_n and t not in fenced and not any(q[0] == t for q in dma_q)
                      and fence_n[t] + cfg.get("fence_age", 20) <= n
                      and (99 not in fence_n or (not dma_q and fence_n[99] + cfg.get("fence_age", 20) <= n))]
                if ok:
                    a.wait_vm(fence_t[max(ok)])
                    a("s_barrier")
                    fenced.update(ok)
            if x.startswith("buffer_store") and nst == EARLY + 1:
                assert rb_done
                assert not dma_q
                a("s_waitcnt vmcnt(0)")
                a("s_mov_b64 exec, 1")
                emit_l(a, "buffer_store_dword v%d, v%d, s[4:7], s%d offen offset:%d" % (V_TAG, V_ZERO, S_FH, 0x100))
                a("s_mov_b64 exec, -1")
                early_done = True
            if x.startswith("buffer_store") and nst < cfg.get("h_wt", 6):
                a(x + " sc1")
            elif x.startswith("buffer_store"):
                emit_l(a, x)
            else:
                a(x)
            cost += cx
            if x.startswith("ds_read"):
                cs_t = a.lt()
            if x.startswith("buffer_store"):
                nst += 1
                st_t[nst - 1] = a.vt()
                st_n[nst - 1] = n
    assert early_done
    assert not dma_q
    stamp(a, cfg, 8)
    for x in pending + epi(6):
        if x == "CSWAIT":
            a.wait_lg(cs_t)
            continue
        if x.startswith("buffer_store"):
            emit_l(a, x)
        else:
            a(x)
    stamp(a, cfg, 9)
    h0 = max(EARLY, cfg.get("h_wt", 6))
    assert nst >= cfg.get("h_wt", 6)
    a("s_add_u32 s17, s%d, %d" % (SH, h0 * 1024))
    publish(a, S_FH, [(17, 1024 * (7 - h0), 0)])
    stamp(a, cfg, 10)


def phase_ffn2(a, cfg):
    SB0, SB1, SX = 26, 27, 28
    SW0, SW1 = 24, 25
    side = []
    if cfg.get("touchq", 0):
        a("s_lshl_b32 s49, s%d, 16" % S_HQ)
        a("s_and_b32 s18, s%d, 3" % S_RB)
        a("s_lshl_b32 s18, s18, 14")
        a("s_add_u32 s49, s49, s18")
        a("s_lshl_b32 s18, s%d, 12" % S_W)
        a("s_add_u32 s49, s49, s18")
        a("s_add_u32 s49, s49, 0x%x" % OFF_WQ)
        a("s_cmp_eq_u32 s%d, 1" % S_LAYER)
        a("s_cselect_b32 s49, 0xf0000000, s49")
        a("v_lshlrev_b32 v%d, 6, v%d" % (G_T + 2, V_LANE))
        side.append("buffer_load_dword v%d, v%d, s[4:7], s49 offen" % (G_T + 3, G_T + 2))
    layer_off(a, SX, OFF_H, H_STRIDE)
    b_addr(a, SB0, SB1, SX, 112, 28)
    reduce_addr(a, LDS_R1)
    out_addr(a, 2)
    flag_addr(a, 38, FL_H, S_RG, 9, per_layer=0x2000)
    a("s_lshl_b32 s17, s%d, 6" % S_W)
    a("s_add_u32 s38, s38, s17")
    a("s_and_b32 s17, s%d, 1" % S_RB)
    a("s_lshl_b32 s17, s17, 3")
    a("s_add_u32 s38, s38, s17")
    lane_pat(a, G_T + 6, 7, 0, 2)
    xin_flag_addr(a, 39, True, 1)
    stamp(a, cfg, 8)
    poll(a, cfg, 38, G_T + 6, G_T + 4, imm=0x100)
    stamp(a, cfg, 9)
    wb = cfg.get("wbl2", 0)
    R = 32

    def hreg(e):
        return ar(4 * (e % R), 4)

    early = [7 * mm + tl for tl in range(EARLY) for mm in range(4)]
    late = [7 * mm + tl for tl in range(EARLY, 7) for mm in range(4)]
    order = [(1, i) for i in early] + [(0, i) for i in early] + [(1, i) for i in late] + [(0, i) for i in late]
    tp = {}

    def probe():
        a("buffer_load_dword v%d, v%d, s[4:7], s38 offen %s" % (G_T + 5, G_T + 6, SC))
        tp[0] = a.vt()

    def check():
        a.wait_vm(tp[0])
        a("v_cmp_ne_u32 vcc, v%d, v%d" % (V_TAG, G_T + 5))
        a("s_cbranch_vccz L_ffn2_go")
        keep = a.vm_issued
        poll(a, cfg, 38, G_T + 6, G_T + 4)
        a.vm_issued = keep
        a("L_ffn2_go:")
        if wb:
            a("s_lshr_b32 s17, s2, %d" % (3 if wb == 1 else 6))
            a("s_or_b32 s17, s17, s%d" % S_W)
            a("s_xor_b32 s18, s%d, 1" % S_LAYER)
            a("s_or_b32 s17, s17, s18")
            a("s_cmp_lg_u32 s17, 0")
            a("s_cbranch_scc1 L_ffn2_nowb")
            a("buffer_wbl2 sc1")
            a("L_ffn2_nowb:")
        stamp(a, cfg, 3)

    pp = cfg.get("probe_at", 16)
    gemm64_core(a, cfg, 28, lambda i: w2reg(0, i), lambda i: w2reg(1, i), hreg,
                lambda e: blk(a, hreg(e), SB1 if order[e][0] else SB0, order[e][1], SC), cfg.get('win2', 18), order=order,
                gate=(2 * len(early), probe, check, pp, pp), side=side, side_from=cfg.get('w2_side', 6), side_n=1,
                side2=wq_lines(), side2_from=cfg.get('wq_from', 32), dup_last=True, ramp=cfg.get('ramp2', 10), resid=True)
    res_epilogue(a, cfg, 2, "L_final")
    stamp(a, cfg, 10)
    publish(a, 39, [(34, 2048, 0), (35, 512, 0)])
    stamp(a, cfg, 11)


OSC = [""]


def final_store(a):
    a("v_permlane32_swap_b32 v%d, v%d" % (V_RES, V_RES + 2))
    a("v_permlane32_swap_b32 v%d, v%d" % (V_RES + 1, V_RES + 3))
    a("v_permlane32_swap_b32 v%d, v%d" % (V_RES + 4, V_RES + 6))
    a("v_permlane32_swap_b32 v%d, v%d" % (V_RES + 5, V_RES + 7))
    a("s_lshl_b32 s17, s%d, 15" % S_RT)
    a("s_lshl_b32 s18, s%d, 6" % S_NT)
    a("s_add_u32 s17, s17, s18")
    a("v_lshlrev_b32 v%d, 10, v%d" % (G_T + 2, V_R31))
    a("v_lshl_add_u32 v%d, v%d, 4, v%d" % (G_T + 2, V_H, G_T + 2))
    a("buffer_store_dwordx4 v[%d:%d], v%d, s[8:11], s17 offen %s" % (V_RES, V_RES + 3, G_T + 2, OSC[0]))
    a("buffer_store_dwordx4 v[%d:%d], v%d, s[8:11], s17 offen offset:32 %s" % (V_RES + 4, V_RES + 7, G_T + 2, OSC[0]))


def st_begin(a, cfg):
    kern.stamp_init(a, cfg)


def st_end(a, cfg, k):
    if not cfg.get("stamps"):
        return
    stamp(a, cfg, NSTAMP - 1)
    a("s_memrealtime s[62:63]")
    a("s_waitcnt lgkmcnt(0)")
    a("s_mov_b32 s79, s62")
    a("s_mul_i32 s60, s3, 5\ns_add_u32 s60, s60, %d" % k)
    a("s_lshl_b32 s60, s60, 16")
    a("s_lshl_b32 s61, s2, 8")
    a("s_add_u32 s60, s60, s61")
    a("s_lshl_b32 s61, s12, 6")
    a("s_add_u32 s60, s60, s61")
    a("s_add_u32 s60, s60, 0x%x" % kern.OFF_STAMP)
    for i in range(16):
        a("v_writelane_b32 v199, s%d, %d" % (64 + i, i))
    a("s_mov_b32 exec_lo, 0xffff\ns_mov_b32 exec_hi, 0x0")
    a("buffer_store_dword v199, v%d, s[4:7], s60 offen" % V_L4)
    a("s_mov_b64 exec, -1")


def dbgt(a, cfg, k, last=False):
    if not cfg.get("dbgtime"):
        return
    L = a.newlabel("L_dt")
    a("s_cmp_lg_u32 s2, %d" % (cfg["dbgtime"] - 1))
    a("s_cbranch_scc1 %s" % L)
    a("s_memrealtime s[64:65]")
    a("s_memtime s[66:67]")
    a("s_mov_b32 s68, s98\ns_mov_b32 s69, s99\ns_mov_b32 s70, 256\ns_mov_b32 s71, 0x00020000")
    a("s_mul_i32 s72, s3, 20")
    a("s_waitcnt lgkmcnt(0)")
    a("s_sub_u32 s64, s64, s60")
    a("s_sub_u32 s66, s66, s62")
    a("v_mov_b32 v199, s64")
    a("buffer_store_dword v199, v%d, s[68:71], s72 offen offset:%d" % (V_ZERO, 4 + 4 * k))
    if last:
        a("v_mov_b32 v198, s66")
        a("buffer_store_dword v198, v%d, s[68:71], 0 offen offset:%d" % (V_ZERO, 4 * 13))
    a(L + ":")


KNAME = kern.NAME + "_kernel"


def build(cfg):
    rep = []
    DBL[0] = cfg.get("dbl", 0)
    TOUCH[0] = cfg.get("ptouch", 0)
    COMPACT[0] = cfg.get("compact", 1)
    DUAL[0] = False
    LSC[0] = cfg.get("lsc", "")
    RBW[0] = cfg.get("rbw", 0)
    OSC[0] = cfg.get("osc", "")
    LLD[0] = cfg.get("lld", "sc1")
    SPLIT_DMA[0] = not cfg.get("mix", 1)
    global OFF_WKV
    if COMPACT[0]:
        OFF_WKV = SU.OFF_WKV = C_WKV
    a = Asm()
    a("s_load_dwordx16 s[80:95], s[0:1], 0")
    a("s_load_dwordx2 s[96:97], s[0:1], 64")
    a("s_load_dwordx2 s[98:99], s[0:1], 80")
    kern.common_prologue(a, True)
    a("v_mov_b32 v%d, 0" % V_ZERO)
    a("v_mov_b32 v199, 0")
    a("v_lshlrev_b32 v%d, 7, v%d" % (V_L128, V_LANE))
    a("v_lshlrev_b32 v%d, 2, v%d" % (V_L4, V_LANE))
    a("s_lshr_b32 s17, s%d, 1" % S_W)
    a("s_and_b32 s18, s%d, 1" % S_W)
    a("s_lshl_b32 s%d, s%d, 1" % (S_NT, S_HQ))
    a("s_add_u32 s%d, s%d, s17" % (S_NT, S_NT))
    a("s_lshl_b32 s%d, s%d, 1" % (S_RT, S_RB))
    a("s_add_u32 s%d, s%d, s18" % (S_RT, S_RT))
    a("s_mov_b32 s%d, 0" % S_LAYER)
    if cfg.get("spin_limit"):
        a("s_mov_b32 s101, %d" % cfg["spin_limit"])
    if cfg.get("dbgtime"):
        a("s_memrealtime s[60:61]")
        a("s_memtime s[62:63]")
        a("s_waitcnt lgkmcnt(0)")
    st_begin(a, cfg)
    SU.startup(a, cfg, sys.modules[__name__])
    dbgt(a, cfg, 0)
    a_addr(a, S_Q0, S_Q1, OFF_WQ, 32, 8)
    a("s_lshl_b32 s%d, s%d, 13" % (S_KVW, S_W))
    a("s_add_u32 s%d, s%d, 0x%x" % (S_KVW, S_KVW, OFF_WKV))
    a("s_and_b32 s17, s2, 7")
    a("s_lshl_b32 s17, s17, 15")
    a("s_add_u32 s%d, s%d, s17" % (S_KVW, S_KVW))
    a("s_cmp_ge_u32 s%d, 4" % S_HQ)
    a("s_cselect_b32 s%d, s%d, s%d" % (S_KVW, S_Q0, S_KVW))
    st_end(a, cfg, 0)
    a("L_layer:")
    for k, ph in enumerate((phase_qkv, phase_att, phase_wo, phase_ffn1, phase_ffn2)):
        st_begin(a, cfg)
        ph(a, cfg)
        st_end(a, cfg, k + 1)
        dbgt(a, cfg, k + 1)
    a("s_mov_b32 s%d, 1" % S_LAYER)
    a("s_branch L_layer")
    a("L_final:")
    final_store(a)
    st_end(a, cfg, 5)
    dbgt(a, cfg, 5, True)
    a("L_exit:")
    a("s_endpgm")
    main_lines, _ = fix_hazards_fast(kern.uniq(a.lines, "main"), rep)

    pf = cfg.get("pfk", 0)
    if pf:
        b = Asm()
        b("s_cmp_ge_u32 s2, 256")
        b("s_cbranch_scc1 L_pf_end")
        b("s_load_dwordx16 s[16:31], s[0:1], 0")
        b("s_load_dwordx2 s[32:33], s[0:1], 64")
        b("s_getpc_b64 s[4:5]")
        b("L_pf_pc:")
        b("s_add_u32 s4, s4, L_code_begin-L_pf_pc")
        b("s_addc_u32 s5, s5, -1")
        b("s_lshr_b32 s6, s2, 3")
        b("s_and_b32 s7, s2, 7")
        b("s_lshl_b32 s8, s6, 11")
        b("v_lshlrev_b32 v1, 3, v0")
        b("v_add_u32 v1, s8, v1")
        b("v_min_u32 v1, L_code_end-L_code_begin-8, v1")
        b("global_load_dwordx2 v[2:3], v1, s[4:5]")
        if pf >= 2:
            b("v_lshlrev_b32 v1, 6, v0")
            b("s_lshl_b32 s8, s6, 14")
            b("v_add_u32 v4, s8, v1")
            b("s_lshl_b32 s9, s7, 18")
            b("s_lshl_b32 s10, s6, 13")
            b("s_add_u32 s9, s9, s10")
            b("v_lshlrev_b32 v5, 5, v0")
            b("v_add_u32 v5, s9, v5")
            b("s_mul_i32 s11, s2, 7168")
            b("v_mul_u32_u24 v6, 28, v0")
            b("v_add_u32 v6, s11, v6")
            b("s_lshl_b32 s11, s2, 11")
            b("v_lshlrev_b32 v7, 3, v0")
            b("v_add_u32 v7, s11, v7")
            b("s_waitcnt lgkmcnt(0)")
            b("global_load_dword v8, v4, s[18:19]")
            b("global_load_dword v9, v5, s[16:17]")
            b("global_load_dword v10, v1, s[20:21]")
            b("global_load_dword v11, v1, s[22:23]")
            b("global_load_dword v12, v6, s[28:29]")
            b("global_load_dword v13, v6, s[30:31]")
            b("global_load_dword v14, v6, s[32:33]")
            b("global_load_dword v15, v7, s[24:25]")
        b("L_pf_end:")
        b("s_endpgm")
        pfl, _ = fix_hazards_fast(["L_code_begin:", "L_code_end:"] + b.lines, rep)
        main_lines2 = [".p2align 8", "pf_kernel:"] + pfl[2:]
        s = "; @launch kernel=pf_kernel grid=(256,1,1) block=(256,1,1) lds=0\n"
        s += "; @launch kernel=%s grid=(256,1,1) block=(256,1,1) lds=%d\n" % (KNAME, 160 * 1024)
    else:
        main_lines2 = []
        s = "; @launch grid=(256,1,1) block=(256,1,1) lds=%d\n" % (160 * 1024)
    s += '.amdgcn_target "amdgcn-amd-amdhsa--gfx950"\n.text\n.globl %s\n.p2align 8\n.type %s,@function\n' % (KNAME, KNAME)
    s += "\n".join(["L_code_begin:", KNAME + ":"] + main_lines + ["L_code_end:"] + main_lines2) + "\n"
    s += '.section .rodata,"a"\n.p2align 6\n' + kernel_desc(KNAME, 512, 256, 102)
    if pf:
        s += ".p2align 6\n" + kernel_desc("pf_kernel", 16, 16, 40)
    return s, rep


if __name__ == "__main__":
    cfg = dict(code_prefetch=True)
    for kv in sys.argv[2:]:
        k, v = kv.split("=")
        cfg[k] = eval(v)
    s, rep = build(cfg)
    open(sys.argv[1], "w").write(s)
    print("auto nops:", sum(r[0] for r in rep), "sites", len(rep), "bytes of source", len(s))
    if cfg.get("verbose"):
        for r in rep:
            print(r)
```
